```python
import torch

def _softmax(x, axis=-1):
    return torch.softmax(x, dim=axis)
def _gelu(x):
    return torch.nn.functional.gelu(x, approximate="tanh")
def _silu(x):
    return torch.nn.functional.silu(x)
def _sigmoid(x):
    return torch.sigmoid(x)
def _layernorm(x, axis=-1, eps=1e-5):
    m = x.mean(dim=axis, keepdim=True)
    v = x.var(dim=axis, keepdim=True, unbiased=False)
    return (x - m) / torch.sqrt(v + eps)
def _scatter_add(tgt, idx, src, axis=0):
    return tgt.clone().index_add_(axis, idx, src)
def _segment_sum(src, seg, n):
    out = torch.zeros((n,) + src.shape[1:], dtype=src.dtype)
    return out.index_add_(0, seg, src)
def _pad(x, pw):
    flat = tuple(v for pair in reversed(pw) for v in pair)
    return torch.nn.functional.pad(x, flat)

kernel_name = 'sequential_preLN__mha_block__dense_activation_squared_relu__prompt'

def setup_inputs():

    _w = (lambda a: (lambda t: t.to(torch.bfloat16) if t.is_floating_point() else t)(torch.as_tensor(a)))
    def _A_setup():
        B, S, D, H = 1, 2048, 640, 32
        return {
            "x": _w((lambda *s: torch.randn(*s, dtype=torch.bfloat16) * 0.05)(B, S, D)),
            "wqkv": _w((lambda *s: torch.randn(*s, dtype=torch.bfloat16) * 0.05)(D, 3 * D)),
            "wo": _w((lambda *s: torch.randn(*s, dtype=torch.bfloat16) * 0.05)(D, D)),
        }
    _A_in = _A_setup()

    def _B_setup():
        B, S, D, F = 1, 2048, 640, 1728
        return {
            "x": _w((lambda *s: torch.randn(*s, dtype=torch.bfloat16) * 0.05)(B, S, D)),
            "w1": _w((lambda *s: torch.randn(*s, dtype=torch.bfloat16) * 0.05)(D, F)),
            "b1": _w((lambda *s: torch.randn(*s, dtype=torch.bfloat16) * 0.4)(F)),
            "w2": _w((lambda *s: torch.randn(*s, dtype=torch.bfloat16) * 0.05)(F, D)),
            "b2": _w((lambda *s: torch.randn(*s, dtype=torch.bfloat16) * 3.2)(D)),
        }
    _B_in = _B_setup()

    return {
        "A_x": _A_in["x"],
        "A_wqkv": _A_in["wqkv"],
        "A_wo": _A_in["wo"],
        "B_x": _B_in["x"],
        "B_w1": _B_in["w1"],
        "B_b1": _B_in["b1"],
        "B_w2": _B_in["w2"],
        "B_b2": _B_in["b2"],
    }

def reference(A_x, A_wqkv, A_wo, B_x, B_w1, B_b1, B_w2, B_b2):
    def _A_ref(x, wqkv, wo):
        B, S, D = x.shape
        H = 32
        Dh = D // H
        qkv = (lambda x, *d: x.permute(*d))((x @ wqkv).reshape(B, S, 3, H, Dh), 2, 0, 3, 1, 4)
        q, k, v = qkv[0], qkv[1], qkv[2]
        scores = torch.einsum("bhqd,bhkd->bhqk", q, k) * (Dh ** -0.5)
        p = _softmax(scores, axis=-1)
        o = torch.einsum("bhqk,bhkd->bhqd", p, v)
        return (lambda x, *d: x.permute(*d))(o, 0, 2, 1, 3).reshape(B, S, D) @ wo

    def _B_ref(x, w1, b1, w2, b2):
        h = torch.einsum("bsd,df->bsf", x, w1) + b1
        zero = torch.zeros_like(h)
        r = torch.where(h > zero, h, zero)
        h = r * r
        out = torch.einsum("bsf,fd->bsd", h, w2) + b2
        return out

    x = A_x
    h = x + _A_ref(_layernorm(x, axis=-1), A_wqkv, A_wo)
    h2 = h + _B_ref(_layernorm(h, axis=-1), B_w1, B_b1, B_w2, B_b2)
    return h2
```

```python
import re

def v(i, n=1):
    return f"v{i}" if n == 1 else f"v[{i}:{i+n-1}]"
def s(i, n=1):
    return f"s{i}" if n == 1 else f"s[{i}:{i+n-1}]"

TRANS = ('v_exp_f32', 'v_log_f32', 'v_rcp_f32', 'v_rsq_f32', 'v_sqrt_f32', 'v_sin_f32', 'v_cos_f32', 'v_rcp_iflag_f32')
_reg_re = re.compile(r'^(v|s|a)(\d+)$')
_rng_re = re.compile(r'^(v|s|a)\[(\d+):(\d+)\]$')

def regs_of(tok):
    tok = tok.strip()
    neg = tok.lstrip('-')
    if neg.startswith('abs(') or neg.startswith('|'):
        neg = neg.replace('abs(', '').replace(')', '').replace('|', '')
    m = _reg_re.match(neg)
    if m: return {(m.group(1), int(m.group(2)))}
    m = _rng_re.match(neg)
    if m: return {(m.group(1), i) for i in range(int(m.group(2)), int(m.group(3)) + 1)}
    if neg == 'vcc': return {('s', 'vcc')}
    if neg == 'exec': return {('s', 'exec')}
    if neg == 'm0': return {('s', 'm0')}
    return set()

class Ins:
    __slots__ = ('text', 'op', 'ops', 'kind', 'dst', 'src', 'passes', 'srcC', 'nops')
    def __init__(self, text):
        self.text = text
        t = text.split(';')[0].strip()
        parts = t.split(None, 1)
        self.op = parts[0]
        rest = parts[1] if len(parts) > 1 else ''
        ops = []; cur = ''; depth = 0
        for ch in rest:
            if ch == '[': depth += 1
            if ch == ']': depth -= 1
            if ch == ',' and depth == 0:
                ops.append(cur.strip()); cur = ''
            else:
                cur += ch
        if cur.strip(): ops.append(cur.strip())
        mods = ''
        if ops:
            l = ops[-1].split()
            if len(l) > 1:
                ops[-1] = l[0]; mods = ' '.join(l[1:])
        self.ops = ops
        self.dst = set(); self.src = set(); self.passes = 0; self.srcC = set(); self.nops = 1
        op = self.op
        if op == 's_nop':
            self.kind = 'nop'; self.nops = int(ops[0], 0) + 1
        elif op.startswith('v_mfma'):
            self.kind = 'mfma'
            self.dst = regs_of(ops[0]); self.src = regs_of(ops[1]) | regs_of(ops[2]); self.srcC = regs_of(ops[3])
            self.passes = 4 if '16x16' in op else 8
        elif op.startswith('v_'):
            self.kind = 'valu'
            base = op.replace('_e32', '').replace('_e64', '').replace('_dpp', '').replace('_sdwa', '')
            if base.startswith('v_cmp'):
                self.dst = regs_of(ops[0])
                for o in ops[1:]: self.src |= regs_of(o)
            elif base in ('v_permlane32_swap_b32', 'v_permlane16_swap_b32'):
                self.dst = regs_of(ops[0]) | regs_of(ops[1]); self.src = set(self.dst); self.kind = 'permlane'
            elif base in ('v_add_co_u32', 'v_sub_co_u32', 'v_addc_co_u32', 'v_subb_co_u32'):
                self.dst = regs_of(ops[0]) | regs_of(ops[1])
                for o in ops[2:]: self.src |= regs_of(o)
            else:
                self.dst = regs_of(ops[0])
                for o in ops[1:]: self.src |= regs_of(o)
                if base in ('v_fmac_f32', 'v_dot2c_f32_bf16', 'v_pk_fmac_f16'): self.src |= self.dst
                if base == 'v_cndmask_b32' and len(ops) == 3: self.src |= {('s', 'vcc')}
                if '_dpp' in op or 'row_' in mods or 'quad_perm' in mods: self.kind = 'dpp'; self.src |= self.dst
                if base in ('v_readfirstlane_b32', 'v_readlane_b32'): self.kind = 'readlane'
                if base in TRANS: self.kind = 'trans'
        elif op.startswith('ds_'):
            self.kind = 'ds'
            if op.startswith('ds_read') or op.startswith('ds_bpermute') or op.startswith('ds_swizzle') or op.startswith('ds_permute'):
                self.dst = regs_of(ops[0])
                for o in ops[1:]: self.src |= regs_of(o)
            else:
                for o in ops: self.src |= regs_of(o)
        elif op.startswith('buffer_') or op.startswith('global_'):
            self.kind = 'vmem'
            is_lds = 'lds' in mods.split() or 'lds' in op
            if 'load' in op and not is_lds:
                self.dst = regs_of(ops[0])
                for o in ops[1:]: self.src |= regs_of(o)
            elif 'atomic' in op and ('sc0' in mods.split()):
                self.dst = regs_of(ops[0])
                for o in ops[1:]: self.src |= regs_of(o)
            else:
                for o in ops: self.src |= regs_of(o)
                if is_lds: self.src |= {('s', 'm0')}
            if 'store' in op and ('x4' in op or 'x3' in op): self.kind = 'vmem_wstore'
        elif op.startswith('s_'):
            self.kind = 'salu'
            if op.startswith('s_cmp') or op.startswith('s_cbranch') or op in ('s_branch', 's_barrier', 's_waitcnt', 's_endpgm', 's_sleep', 's_setprio', 's_bitcmp1_b32', 's_bitcmp0_b32'):
                for o in ops: self.src |= regs_of(o)
            else:
                if ops: self.dst = regs_of(ops[0])
                for o in ops[1:]: self.src |= regs_of(o)
        else:
            self.kind = 'other'
    def is_valu(self):
        return self.kind in ('valu', 'permlane', 'dpp', 'readlane', 'trans')

def isv(r): return r[0] in ('v', 'a')
def iss(r): return r[0] == 's'

def need_states(prev, cur):
    n = 0
    pv = {r for r in prev.dst if isv(r)}
    ps = {r for r in prev.dst if iss(r)}
    if prev.kind == 'mfma':
        big = prev.passes == 8
        if cur.kind == 'mfma':
            if pv & cur.src: n = max(n, 12 if big else 8)
            if pv & cur.srcC:
                if not (cur.srcC == prev.dst and cur.passes == prev.passes): n = max(n, 10 if big else 6)
            if pv & cur.dst and not (cur.srcC == prev.dst and cur.dst == prev.dst):
                n = max(n, 12 if big else 8)
        else:
            if pv & (cur.src | cur.dst): n = max(n, 12 if big else 8)
        if cur.is_valu() and (prev.srcC & cur.dst): n = max(n, 7 if big else 3)
    if prev.is_valu():
        if cur.kind == 'mfma' and pv & (cur.src | cur.srcC): n = max(n, 2)
        if cur.kind == 'readlane' and pv & cur.src: n = max(n, 1)
        if cur.kind == 'permlane' and pv & cur.src: n = max(n, 2)
        if cur.kind == 'dpp' and pv & cur.src: n = max(n, 2)
        if prev.kind == 'trans' and cur.is_valu() and cur.kind != 'trans' and pv & cur.src: n = max(n, 1)
        if prev.kind == 'trans' and cur.kind == 'mfma' and pv & (cur.src | cur.srcC): n = max(n, 2)
        if ps:
            if cur.is_valu() and ps & cur.src: n = max(n, 2)
            if cur.kind in ('vmem', 'vmem_wstore') and ps & cur.src: n = max(n, 5)
            if cur.kind == 'readlane' and ps & cur.src: n = max(n, 4)
            if cur.kind == 'salu' and ps & cur.src: n = max(n, 4)
            if ('s', 'exec') in ps and cur.kind == 'mfma': n = max(n, 4)
    if prev.kind == 'salu' and ('s', 'm0') in prev.dst and cur.kind in ('vmem',) and ('s', 'm0') in cur.src:
        n = max(n, 1)
    if prev.kind == 'vmem_wstore':
        data = {r for r in prev.src if isv(r)}
        if cur.is_valu() and data & cur.dst: n = max(n, 2)
        elif cur.kind in ('ds', 'vmem', 'mfma') and data & cur.dst: n = max(n, 1)
    return n

class Asm:
    def __init__(self):
        self.lines = []
    def __call__(self, text):
        for l in text.split('\n'):
            if l.strip(): self.lines.append(l.strip())
    def label(self, name): self.lines.append(name + ':')
    def comment(self, t): self.lines.append('; ' + t)
    def raw(self, t): self.lines.append('\x00' + t)

def is_ins(l):
    return not (l.endswith(':') or l.startswith(';') or l.startswith('.') or l.startswith('\x00'))

WIN = 24
def fix_hazards(lines):
    out = []
    hist = []
    for l in lines:
        if not is_ins(l):
            out.append(l); continue
        ins = Ins(l)
        need = 0; dist = 0
        for p in reversed(hist[-WIN:]):
            req = need_states(p, ins)
            if req > dist: need = max(need, req - dist)
            dist += p.nops
        while need > 0:
            k = min(need, 16)
            nop = Ins(f's_nop {k-1}')
            out.append(nop.text); hist.append(nop); need -= k
        out.append(l); hist.append(ins)
        if ins.op in ('s_branch', 's_endpgm'): hist = []
    labels = {}
    for i, l in enumerate(out):
        if l.endswith(':') and not l.startswith(';'): labels[l[:-1]] = i
    problems = []
    for i, l in enumerate(out):
        if is_ins(l) and (l.startswith('s_cbranch') or l.startswith('s_branch')):
            tgt = l.split()[1]
            if tgt not in labels: continue
            before = [Ins(x) for x in out[max(0, i - WIN):i + 1] if is_ins(x)]
            after = [Ins(x) for x in out[labels[tgt]:labels[tgt] + WIN + 8] if is_ins(x)][:WIN]
            seq = list(before)
            for ins in after:
                dist = 0
                for p in reversed(seq[-WIN:]):
                    req = need_states(p, ins)
                    if req > dist: problems.append((l, p.text, ins.text, req, dist))
                    dist += p.nops
                seq.append(ins)
                if ins.op in ('s_branch', 's_endpgm'): break
    return out, problems

def render(lines):
    o = []
    for l in lines:
        if l.startswith('\x00'): o.append(l[1:])
        elif l.endswith(':') and not l.startswith(';'): o.append(l)
        elif l.startswith('.'): o.append(l)
        else: o.append('    ' + l)
    return '\n'.join(o) + '\n'
```

```python
import sys, math
sys.path.insert(0, 'dev')
from asmlib import *

NAME = 'sequential_preLN__mha_block__dense_activation_squared_relu__prompt'
S, D, H, DH, F = 2048, 640, 32, 20, 1728
A_X, A_WQKV, A_WO, A_BX, A_W1, A_B1, A_W2, A_B2, A_OUT, A_DBG, A_WS = [8 * i for i in range(11)]
WS_XN = 0
WS_WQKV = WS_XN + S * D * 2
WS_WO = WS_WQKV + D * 3 * D * 2
WS_W1 = WS_WO + D * D * 2
WS_W2 = WS_W1 + D * F * 2
WS_Q = WS_W2 + F * D * 2
WS_K = WS_Q + S * D * 2
WS_VT = WS_K + S * D * 2
WS_O = WS_VT + S * D * 2
WS_H = WS_O + S * D * 2
WS_G = WS_H + S * D * 2
WS_CS1 = WS_G + S * F * 2
WS_B1F = WS_CS1 + 8192
WS_B2F = WS_B1F + 8192
WS_ST2 = WS_B2F + 8192
WS_FLAG = WS_ST2 + S * 8 * 8
WS_PROF = WS_FLAG + 65536
WS_END = WS_PROF + 8 * 256 * 8 * 64
PROF = False
EXP = set()
PS = 80

def magic(d):
    return (2 ** 32 + d - 1) // d

def srd(a, base_s, ptr_lo, nbytes):
    a(f's_mov_b32 s{base_s}, s{ptr_lo}')
    a(f's_and_b32 s{base_s+1}, s{ptr_lo+1}, 0xffff')
    a(f's_mov_b32 s{base_s+2}, {nbytes}')
    a(f's_mov_b32 s{base_s+3}, 0x20000')

def kernel_begin(a, label):
    a.raw(f'.globl {label}')
    a.raw('.p2align 8')
    a.raw(f'.type {label},@function')
    a.label(label)

def descriptor(label, nvgpr, nsgpr, accum=None):
    if accum is None: accum = (nvgpr + 3) // 4 * 4
    return f""".amdhsa_kernel {label}
  .amdhsa_next_free_vgpr {nvgpr}
  .amdhsa_next_free_sgpr {nsgpr}
  .amdhsa_accum_offset {accum}
  .amdhsa_group_segment_fixed_size 0
  .amdhsa_kernarg_size 88
  .amdhsa_user_sgpr_count 2
  .amdhsa_user_sgpr_kernarg_segment_ptr 1
  .amdhsa_system_sgpr_workgroup_id_x 1
.end_amdhsa_kernel
"""


def stamp(a, i, real=False):
    if not PROF: return
    a(f's_{"memrealtime" if real else "memtime"} s[{PS+16}:{PS+17}]')
    a('s_waitcnt lgkmcnt(0)')
    a(f's_mov_b32 s{PS+i}, s{PS+16}')

def stamp_flush(a, kidx, n, ssrd, swave):
    if not PROF: return
    a(f's_lshl_b32 s{PS+18}, s2, 3')
    a(f's_add_u32 s{PS+18}, s{PS+18}, s{swave}')
    a(f's_lshl_b32 s{PS+18}, s{PS+18}, 6')
    a(f's_add_u32 s{PS+18}, s{PS+18}, {WS_PROF + kidx*256*8*64}')
    a(f'v_mbcnt_lo_u32_b32 v0, -1, 0')
    a(f'v_mbcnt_hi_u32_b32 v0, -1, v0')
    a('v_lshlrev_b32 v0, 2, v0')
    a('v_mov_b32 v1, 0')
    for i in range(n):
        a(f'v_mov_b32 v2, s{PS+i}')
        a(f'v_cmp_eq_u32 vcc, {4*i}, v0')
        a('v_cndmask_b32 v1, v1, v2, vcc')
    a(f'v_cmp_gt_u32 vcc, {4*n}, v0')
    a(f's_and_saveexec_b64 s[{PS+20}:{PS+21}], vcc')
    a(f'buffer_store_dword v1, v0, s[{ssrd}:{ssrd+3}], s{PS+18} offen')
    a(f's_mov_b64 exec, s[{PS+20}:{PS+21}]')

K0_LN = 128
K0_PK = 470
K0_CS = 27
K0_GRID = K0_LN + K0_PK + K0_CS + 1

def k0():
    a = Asm()
    L = 'k0_kernel'
    kernel_begin(a, L)
    a(f's_cmp_ge_u32 s2, {K0_GRID}')
    a(f's_cbranch_scc1 {L}_end')
    a(f's_load_dwordx2 s[4:5], s[0:1], {A_X}')
    a(f's_load_dwordx2 s[6:7], s[0:1], {A_WQKV}')
    a(f's_load_dwordx2 s[8:9], s[0:1], {A_WO}')
    a(f's_load_dwordx2 s[10:11], s[0:1], {A_W1}')
    a(f's_load_dwordx2 s[12:13], s[0:1], {A_W2}')
    a(f's_load_dwordx2 s[14:15], s[0:1], {A_WS}')
    a(f's_load_dwordx2 s[16:17], s[0:1], {A_B1}')
    a(f's_load_dwordx2 s[18:19], s[0:1], {A_B2}')
    a('v_lshrrev_b32 v1, 6, v0')
    a('v_and_b32 v2, 63, v0')
    a('s_nop 0')
    a('v_readfirstlane_b32 s3, v1')
    a('s_waitcnt lgkmcnt(0)')
    srd(a, 20, 14, WS_END)
    a(f's_cmp_ge_u32 s2, {K0_LN}')
    a(f's_cbranch_scc1 {L}_pk')
    srd(a, 24, 4, S * D * 2)
    a('v_lshrrev_b32 v3, 4, v2')
    a('v_and_b32 v4, 15, v2')
    a('s_lshl_b32 s28, s2, 4')
    a('s_lshl_b32 s29, s3, 2')
    a('s_add_u32 s28, s28, s29')
    a('v_add_u32 v5, s28, v3')
    a('s_movk_i32 s30, 1280')
    a('v_mul_lo_u32 v5, v5, s30')
    a('v_lshl_add_u32 v5, v4, 4, v5')
    for i in range(5):
        a(f'buffer_load_dwordx4 v[{8+4*i}:{11+4*i}], v5, s[24:27], 0 offen offset:{256*i}')
    for i in range(20):
        if i % 4 == 0: a(f's_waitcnt vmcnt({4 - i // 4})')
        a(f'v_lshlrev_b32 v{32+2*i}, 16, v{8+i}')
        a(f'v_and_b32 v{33+2*i}, 0xffff0000, v{8+i}')
    a('v_add_f32 v6, v32, v33')
    for i in range(2, 40):
        a(f'v_add_f32 v6, v6, v{32+i}')
    for r in (8, 4, 2, 1):
        a(f'v_add_f32_dpp v7, v6, v6 row_ror:{r} row_mask:0xf bank_mask:0xf')
        a('v_mov_b32 v6, v7')
    a(f'v_mul_f32 v6, {1.0/640:.9e}, v6'.replace('e-03', 'e-03'))
    for i in range(40):
        a(f'v_sub_f32 v{32+i}, v{32+i}, v6')
    a('v_mul_f32 v7, v32, v32')
    for i in range(1, 40):
        a(f'v_fmac_f32 v7, v{32+i}, v{32+i}')
    for r in (8, 4, 2, 1):
        a(f'v_add_f32_dpp v6, v7, v7 row_ror:{r} row_mask:0xf bank_mask:0xf')
        a('v_mov_b32 v7, v6')
    a('v_mov_b32 v6, 0x3727c5ac')
    a(f'v_fmac_f32 v6, {f2hex(1.0/640)}, v7')
    a('v_rsq_f32 v6, v6')
    for i in range(40):
        a(f'v_mul_f32 v{32+i}, v{32+i}, v6')
    for i in range(20):
        a(f'v_cvt_pk_bf16_f32 v{8+i}, v{32+2*i}, v{33+2*i}')
    a('s_mul_i32 s28, s2, 20480')
    a('s_lshl_b32 s29, s3, 6')
    a('s_add_u32 s28, s28, s29')
    a('v_lshlrev_b32 v5, 8, v4')
    a('v_lshl_add_u32 v5, v3, 4, v5')
    a('v_add_u32 v5, s28, v5')
    for i in range(5):
        a(f's_mov_b32 s29, {WS_XN + 4096*i}')
        a(f'buffer_store_dwordx4 v[{8+4*i}:{11+4*i}], v5, s[20:23], s29 offen')
    a('s_endpgm')
    a.label(f'{L}_pk')
    a(f's_cmp_ge_u32 s2, {K0_LN + K0_PK}')
    a(f's_cbranch_scc1 {L}_cs')
    a(f's_sub_u32 s28, s2, {K0_LN}')
    a('s_lshl_b32 s28, s28, 2')
    a('s_add_u32 s28, s28, s3')
    mats = [(600, 6, 1920, 640, WS_WQKV, 30), (200, 8, 640, 640, WS_WO, 10), (540, 10, 1728, 640, WS_W1, 27), (540, 12, 640, 1728, WS_W2, 10)]
    start = 0
    for mi, (cnt, ptr, N, K, off, ncb) in enumerate(mats):
        if mi < len(mats) - 1:
            a(f's_cmp_lt_u32 s28, {start + cnt}')
            a(f's_cbranch_scc0 {L}_m{mi+1}')
        srd(a, 24, ptr, N * K * 2)
        a(f's_mov_b32 s30, {N*2}')
        a(f's_mov_b32 s31, {K//8*256}')
        a(f's_mov_b32 s32, {off}')
        a(f's_sub_u32 s28, s28, {start}')
        a(f's_mul_hi_u32 s34, s28, {magic(ncb)}')
        a(f's_mul_i32 s35, s34, {ncb}')
        a('s_sub_u32 s35, s28, s35')
        a(f's_branch {L}_go')
        if mi < len(mats) - 1: a.label(f'{L}_m{mi+1}')
        start += cnt
    a.label(f'{L}_go')
    a('s_lshl_b32 s36, s34, 5')
    a('s_mul_i32 s36, s36, s30')
    a('s_lshl_b32 s37, s35, 7')
    a('s_add_u32 s36, s36, s37')
    a('v_lshlrev_b32 v5, 1, v2')
    for r in range(32):
        a(f'buffer_load_ushort v{40+r}, v5, s[24:27], s36 offen')
        a('s_add_u32 s36, s36, s30')
    a('v_lshrrev_b32 v6, 4, v2')
    a('s_lshl_b32 s37, s35, 2')
    a('v_add_u32 v6, s37, v6')
    a('v_mul_lo_u32 v6, v6, s31')
    a('v_and_b32 v7, 15, v2')
    a('v_lshl_add_u32 v6, v7, 4, v6')
    a('s_lshl_b32 s37, s34, 10')
    a('s_add_u32 s37, s37, s32')
    a('s_waitcnt vmcnt(0)')
    for r in range(16):
        a(f'v_lshl_or_b32 v{8+r}, v{41+2*r}, 16, v{40+2*r}')
    for oc in range(4):
        a(f'buffer_store_dwordx4 v[{8+4*oc}:{11+4*oc}], v6, s[20:23], s37 offen offset:{256*oc}')
    a('s_endpgm')
    a.label(f'{L}_cs')
    a(f's_cmp_ge_u32 s2, {K0_LN + K0_PK + K0_CS}')
    a(f's_cbranch_scc1 {L}_bias')
    srd(a, 24, 10, D * F * 2)
    a(f's_sub_u32 s28, s2, {K0_LN + K0_PK}')
    a('v_lshrrev_b32 v3, 5, v2')
    a('v_and_b32 v4, 31, v2')
    a('s_mul_i32 s29, s3, 160')
    a('v_add_u32 v3, s29, v3')
    a('s_movk_i32 s30, 3456')
    a('v_mul_lo_u32 v5, v3, s30')
    a('v_lshl_add_u32 v5, v4, 2, v5')
    a('s_lshl_b32 s29, s28, 7')
    a('v_mov_b32 v6, 0')
    a('v_mov_b32 v7, 0')
    a('s_mov_b32 s31, 5')
    a.label(f'{L}_csl')
    for i in range(16):
        a(f'buffer_load_dword v{8+i}, v5, s[24:27], s29 offen')
        a(f's_add_u32 s29, s29, {2*3456}')
    a('s_waitcnt vmcnt(0)')
    for i in range(16):
        a(f'v_lshlrev_b32 v24, 16, v{8+i}')
        a(f'v_and_b32 v25, 0xffff0000, v{8+i}')
        a('v_add_f32 v6, v6, v24')
        a('v_add_f32 v7, v7, v25')
    a('s_sub_u32 s31, s31, 1')
    a('s_cmp_lg_u32 s31, 0')
    a(f's_cbranch_scc1 {L}_csl')
    a('v_lshlrev_b32 v8, 3, v0')
    a('ds_write_b64 v8, v[6:7]')
    a('s_waitcnt lgkmcnt(0)')
    a('s_barrier')
    a('v_cmp_gt_u32 vcc, 32, v0')
    a('s_and_saveexec_b64 s[40:41], vcc')
    a(f's_cbranch_execz {L}_end')
    for i in range(8):
        a(f'ds_read_b64 v[{10+2*i}:{11+2*i}], v8 offset:{256*i}')
    a('s_waitcnt lgkmcnt(0)')
    for i in range(1, 8):
        a(f'v_add_f32 v10, v10, v{10+2*i}')
        a(f'v_add_f32 v11, v11, v{11+2*i}')
    a('s_lshl_b32 s29, s28, 8')
    a(f's_add_u32 s29, s29, {WS_CS1}')
    a('buffer_store_dwordx2 v[10:11], v8, s[20:23], s29 offen')
    a('s_endpgm')
    a.label(f'{L}_bias')
    srd(a, 24, 16, F * 2)
    srd(a, 28, 18, D * 2)
    a('v_lshlrev_b32 v5, 1, v0')
    a('v_lshlrev_b32 v6, 2, v0')
    for i in range(7):
        a(f'buffer_load_ushort v{8+i}, v5, s[24:27], 0 offen offset:{512*i}')
    for i in range(3):
        a(f'buffer_load_ushort v{16+i}, v5, s[28:31], 0 offen offset:{512*i}')
    a('s_waitcnt vmcnt(0)')
    for i in range(7):
        a(f'v_lshlrev_b32 v{8+i}, 16, v{8+i}')
        a(f's_mov_b32 s32, {WS_B1F + 1024*i}')
        a(f'buffer_store_dword v{8+i}, v6, s[20:23], s32 offen')
    for i in range(3):
        a(f'v_lshlrev_b32 v{16+i}, 16, v{16+i}')
        a(f's_mov_b32 s32, {WS_B2F + 1024*i}')
        a(f'buffer_store_dword v{16+i}, v6, s[20:23], s32 offen')
    a.label(f'{L}_end')
    a('s_endpgm')
    return a, descriptor(L, 80, 48), f'; @launch kernel={L} grid=({K0_GRID},1,1) block=(256,1,1) lds=4096'


def ring_gemm(a, nst, ACC, FA, FB, vdma, vrdA, vrdB, ssrd, sdma, sm0, swap, tag, pro=2, NSLOT=4, pre=0):
    pend = [(st, ks) for st in range(nst) for ks in range(4)]
    issued = []
    def dma_one():
        st, ks = pend.pop(0)
        slot = st % NSLOT
        a(f's_add_u32 m0, s{sm0}, {slot*32768 + ks*8192}')
        a(f's_add_u32 s{sdma+1}, s{sdma}, {st*2048 + ks*512}')
        a(f'buffer_load_dwordx4 v{vdma}, s[{ssrd}:{ssrd+3}], s{sdma+1} offen lds')
        issued.append(st)
    def wait_stage(st):
        n = 0
        for x in reversed(issued):
            if x <= st: break
            n += 1
        assert issued.count(st) == 4
        a(f's_waitcnt vmcnt({n})')
    def reads(st, ks, buf):
        slot = st % NSLOT
        off = slot * 32768 + ks * 8192
        hi = 1 if off >= 65536 else 0
        off -= hi * 65536
        a(f'ds_read_b128 {v(FA+4*buf,4)}, v{vrdA[hi]} offset:{off}')
        a(f'ds_read_b128 {v(FB+8*buf,4)}, v{vrdB[hi]} offset:{off}')
        a(f'ds_read_b128 {v(FB+8*buf+4,4)}, v{vrdB[hi]} offset:{off+1024}')
    def mfmas(buf, first):
        for j in range(2):
            A = v(FA+4*buf, 4); B = v(FB+8*buf+4*j, 4)
            c = '0' if first else v(ACC+16*j, 16)
            if swap: a(f'v_mfma_f32_32x32x16_bf16 {v(ACC+16*j,16)}, {B}, {A}, {c}')
            else: a(f'v_mfma_f32_32x32x16_bf16 {v(ACC+16*j,16)}, {A}, {B}, {c}')
    for _ in range(4 * pro): dma_one()
    stamp(a, 2)
    wait_stage(0)
    a('s_barrier')
    stamp(a, 3)
    reads(0, 0, 0)
    buf = 0
    for st in range(nst):
        for ks in range(4):
            if ks < 3:
                reads(st, ks + 1, buf ^ 1)
                a('s_waitcnt lgkmcnt(3)')
                mfmas(buf, st == 0 and ks == 0)
            else:
                if st + 1 < nst:
                    a('s_waitcnt lgkmcnt(0)')
                    wait_stage(st + 1)
                    a('s_barrier')
                    reads(st + 1, 0, buf ^ 1)
                else:
                    a('s_waitcnt lgkmcnt(0)')
                mfmas(buf, False)
            lim = st + NSLOT - 1 + (1 if ks == 3 else 0)
            nq = 2 if (pend and pend[0][0] < lim and st == 0) else 1
            for _ in range(nq):
                if pend and pend[0][0] <= lim: dma_one()
            buf ^= 1
    a('s_nop 15')
    stamp(a, 4)

def lane_swap23(a, dst, src, tmp):
    a(f'v_and_b32 v{dst}, 0x13, v{src}')
    a(f'v_and_b32 v{tmp}, 4, v{src}')
    a(f'v_lshl_or_b32 v{dst}, v{tmp}, 1, v{dst}')
    a(f'v_and_b32 v{tmp}, 8, v{src}')
    a(f'v_lshrrev_b32 v{tmp}, 1, v{tmp}')
    a(f'v_or_b32 v{dst}, v{dst}, v{tmp}')

QSCALE = (DH ** -0.5) * 1.4426950408889634

def k1():
    a = Asm()
    L = 'k1_kernel'
    kernel_begin(a, L)
    a('s_cmp_ge_u32 s2, 256')
    a(f's_cbranch_scc1 {L}_end')
    stamp(a, 0, True); stamp(a, 1)
    a(f's_load_dwordx2 s[4:5], s[0:1], {A_WS}')
    a('s_and_b32 s15, s2, 7')
    a('s_lshr_b32 s16, s2, 3')
    a('s_and_b32 s13, s15, 3')
    a('s_lshl_b32 s13, s13, 2')
    a('s_and_b32 s17, s16, 3')
    a('s_add_u32 s13, s13, s17')
    a('s_lshr_b32 s14, s15, 2')
    a('s_lshl_b32 s14, s14, 3')
    a('s_lshr_b32 s17, s16, 2')
    a('s_add_u32 s14, s14, s17')
    a('s_cmp_ge_u32 s14, 15')
    a(f's_cbranch_scc1 {L}_end')
    a('v_lshrrev_b32 v1, 6, v0')
    a('v_and_b32 v2, 63, v0')
    a('v_readfirstlane_b32 s12, v1')
    a('v_and_b32 v3, 31, v2')
    a('v_lshrrev_b32 v4, 5, v2')
    lane_swap23(a, 5, 3, 6)
    a('s_waitcnt lgkmcnt(0)')
    srd(a, 8, 4, WS_END)
    a('s_cmp_lt_u32 s12, 4')
    a('s_cselect_b32 s17, 1, 0')
    a('s_cmp_lt_u32 s14, 10')
    a('s_cselect_b32 s18, s17, 0')
    a('s_cmp_eq_u32 s18, 1')
    a('s_cselect_b64 vcc, -1, 0')
    a('v_cndmask_b32 v6, v3, v5, vcc')
    a('v_lshrrev_b32 v7, 4, v6')
    a('s_movk_i32 s17, 20480')
    a('v_mul_lo_u32 v7, v7, s17')
    a('v_and_b32 v6, 15, v6')
    a('v_lshl_add_u32 v7, v6, 4, v7')
    a('v_lshl_add_u32 v7, v4, 8, v7')
    a('s_lshl_b32 s18, s14, 3')
    a('s_lshl_b32 s19, s12, 1')
    a('s_add_u32 s18, s18, s19')
    a('s_mul_i32 s18, s18, 20480')
    a(f's_add_u32 s18, s18, {WS_WQKV}')
    a('s_lshl_b32 s20, s13, 3')
    a('s_add_u32 s20, s20, s19')
    a('s_sub_u32 s20, s20, 8')
    a('s_mul_i32 s20, s20, 20480')
    a(f's_add_u32 s20, s20, {WS_XN}')
    a('s_cmp_lt_u32 s12, 4')
    a('s_cselect_b32 s20, s18, s20')
    a('s_lshl_b32 s22, s12, 10')
    a('s_and_b32 s23, s12, 3')
    a('s_lshr_b32 s24, s12, 2')
    a('v_lshlrev_b32 v8, 4, v2')
    a('s_lshl_b32 s17, s23, 10')
    a('v_add_u32 v9, s17, v8')
    a('v_add_u32 v10, 0x10000, v9')
    a('s_lshl_b32 s17, s24, 11')
    a('s_add_u32 s17, s17, 4096')
    a('v_add_u32 v11, s17, v8')
    a('v_add_u32 v12, 0x10000, v11')
    ACC, FA, FB = 32, 16, 64
    a('s_cmp_ge_u32 s14, 10')
    a(f's_cbranch_scc1 {L}_v')
    ring_gemm(a, 10, ACC, FA, FB, 7, (9, 10), (11, 12), 8, 20, 22, False, 'qk')
    a('s_cmp_ge_u32 s14, 5')
    a(f's_cbranch_scc1 {L}_noscale')
    a(f's_mov_b32 s17, {f2hex(QSCALE)}')
    for r in range(32):
        a(f'v_mul_f32 v{ACC+r}, s17, v{ACC+r}')
    a.label(f'{L}_noscale')
    for r in range(16):
        a(f'v_cvt_pk_bf16_f32 v{64+r}, v{ACC+2*r}, v{ACC+2*r+1}')
    a('v_lshrrev_b32 v13, 4, v3')
    a('s_movk_i32 s17, 20480')
    a('v_mul_lo_u32 v13, v13, s17')
    a('v_and_b32 v14, 15, v3')
    a('v_lshl_add_u32 v13, v14, 4, v13')
    a('v_lshl_add_u32 v13, v4, 8, v13')
    a('s_lshl_b32 s17, s13, 3')
    a('s_lshl_b32 s18, s24, 2')
    a('s_add_u32 s17, s17, s18')
    a('s_mul_i32 s17, s17, 20480')
    a(f's_mov_b32 s18, {WS_Q}')
    a(f's_mov_b32 s19, {WS_K - 80*256}')
    a('s_cmp_lt_u32 s14, 5')
    a('s_cselect_b32 s18, s18, s19')
    a('s_add_u32 s17, s17, s18')
    a('s_lshl_b32 s18, s14, 12')
    a('s_add_u32 s17, s17, s18')
    a('s_lshl_b32 s18, s23, 10')
    a('s_add_u32 s17, s17, s18')
    for j in range(2):
        a(f'buffer_store_dwordx4 {v(64+8*j,4)}, v13, s[8:11], s17 offen')
        a(f'buffer_store_dwordx4 {v(68+8*j,4)}, v13, s[8:11], s17 offen offset:512')
        if j == 0: a(f's_add_u32 s17, s17, {2*20480}')
    stamp(a, 5)
    if PROF: a('s_waitcnt vmcnt(0)')
    stamp(a, 6); stamp(a, 7, True)
    stamp_flush(a, 1, 8, 8, 12)
    a('s_endpgm')
    a.label(f'{L}_v')
    ring_gemm(a, 10, ACC, FA, FB, 7, (9, 10), (11, 12), 8, 20, 22, True, 'v')
    for r in range(16):
        a(f'v_cvt_pk_bf16_f32 v{64+r}, v{ACC+2*r}, v{ACC+2*r+1}')
    a('s_sub_u32 s17, s14, 10')
    a('s_lshl_b32 s17, s17, 7')
    a('s_lshl_b32 s18, s23, 5')
    a('s_add_u32 s17, s17, s18')
    a('v_add_u32 v13, s17, v3')
    a(f's_mov_b32 s17, {magic(20)}')
    a('v_mul_hi_u32 v14, v13, s17')
    a('v_mul_u32_u24 v15, 20, v14')
    a('v_sub_u32 v15, v13, v15')
    a('s_mov_b32 s17, 81920')
    a('v_mul_lo_u32 v14, v14, s17')
    a('v_lshl_add_u32 v14, v15, 4, v14')
    a('v_mul_u32_u24 v15, 320, v4')
    a('v_add_u32 v14, v14, v15')
    a('s_lshl_b32 s17, s13, 3')
    a('s_lshl_b32 s18, s24, 2')
    a('s_add_u32 s17, s17, s18')
    a('s_mul_i32 s17, s17, 640')
    a(f's_add_u32 s17, s17, {WS_VT}')
    for j in range(2):
        for gg in range(2):
            a(f'buffer_store_dwordx4 {v(64+8*j+4*gg,4)}, v14, s[8:11], s17 offen offset:{(2*j+gg)*640}')
    a.label(f'{L}_end')
    a('s_endpgm')
    return a, descriptor(L, 96, 102), f'; @launch kernel={L} grid=(256,1,1) block=(512,1,1) lds=131072'


AT_SLOT = 14336
class AR:
    QA = 16
    QC = 24
    KA = 28
    KC = 36
    VV = 40
    S = 56
    P = 88
    O = 104
    T = 136

def attn_setup(a, s_h, s_r, s_w, ssrd):
    a(f's_lshr_b32 s40, s{s_h}, 1')
    a(f's_and_b32 s41, s{s_h}, 1')
    a('s_mul_i32 s42, s40, 5')
    a('s_add_u32 s43, s42, 2')
    a('s_mul_i32 s44, s41, 3')
    a('s_add_u32 s42, s42, s44')
    a(f's_and_b32 s45, s{s_w}, 3')
    a(f's_lshr_b32 s46, s{s_w}, 2')
    a('v_lshrrev_b32 v5, 4, v3')
    a('s_movk_i32 s47, 20480')
    a('v_mul_lo_u32 v5, v5, s47')
    a('v_and_b32 v6, 15, v3')
    a('v_lshl_add_u32 v5, v6, 4, v5')
    a('v_lshl_add_u32 v7, v4, 8, v5')
    a(f's_lshl_b32 s47, s{s_r}, 4')
    a('s_lshl_b32 s48, s45, 2')
    a('s_add_u32 s47, s47, s48')
    a('s_mul_i32 s47, s47, 20480')
    a(f's_add_u32 s48, s47, {WS_Q}')
    a('s_lshl_b32 s49, s42, 8')
    a('s_add_u32 s49, s49, s48')
    a('s_lshl_b32 s50, s43, 8')
    a('s_add_u32 s50, s50, s48')
    a('s_lshl_b32 s51, s41, 3')
    a('s_add_u32 s50, s50, s51')
    for j in range(2):
        a(f'buffer_load_dwordx4 {v(AR.QA+4*j,4)}, v7, s[{ssrd}:{ssrd+3}], s49 offen')
        a(f'buffer_load_dwordx2 {v(AR.QC+2*j,2)}, v5, s[{ssrd}:{ssrd+3}], s50 offen')
        if j == 0:
            a(f's_add_u32 s49, s49, {2*20480}')
            a(f's_add_u32 s50, s50, {2*20480}')
    lane_swap23(a, 8, 3, 9)
    a('v_cmp_gt_u32 vcc, 16, v3')
    a('v_cndmask_b32 v8, v3, v8, vcc')
    a('s_lshl_b32 s51, s41, 2')
    a('v_add_u32 v8, s51, v8')
    a('v_subrev_u32 v9, 20, v8')
    a('v_cmp_le_u32 vcc, 20, v8')
    a('v_cndmask_b32 v8, v8, v9, vcc')
    a('v_mul_u32_u24 v9, 320, v4')
    a('v_lshl_add_u32 v8, v8, 4, v9')
    a(f's_mul_i32 s52, s{s_h}, 81920')
    a(f's_mul_i32 s53, s{s_w}, 640')
    a('s_add_u32 s52, s52, s53')
    a(f's_add_u32 s52, s52, {WS_VT}')
    a(f's_cmp_lt_u32 s{s_w}, 4')
    a(f's_cbranch_scc0 .Lat_kc')
    a('v_mov_b32 v9, v7')
    a(f's_lshl_b32 s53, s{s_w}, 1')
    a('s_mul_i32 s53, s53, 20480')
    a('s_lshl_b32 s54, s42, 8')
    a('s_add_u32 s53, s53, s54')
    a(f's_lshl_b32 s55, s{s_w}, 10')
    a('s_branch .Lat_kd')
    a.label('.Lat_kc')
    a('v_lshrrev_b32 v9, 4, v2')
    a('s_movk_i32 s53, 20480')
    a('v_mul_lo_u32 v9, v9, s53')
    a('v_lshl_add_u32 v9, v6, 4, v9')
    a(f's_and_b32 s55, s{s_w}, 1')
    a('s_lshl_b32 s53, s55, 2')
    a('s_mul_i32 s53, s53, 20480')
    a('s_lshl_b32 s54, s43, 8')
    a('s_add_u32 s53, s53, s54')
    a('s_lshl_b32 s55, s55, 10')
    a('s_add_u32 s55, s55, 4096')
    a.label('.Lat_kd')
    a(f's_add_u32 s53, s53, {WS_K}')
    a(f's_lshl_b32 s54, s{s_w}, 10')
    a('s_add_u32 s54, s54, 6144')
    a('v_lshlrev_b32 v10, 4, v2')
    a('s_lshl_b32 s56, s46, 11')
    a('v_add_u32 v11, s56, v10')
    a('v_lshlrev_b32 v12, 4, v3')
    a('s_lshl_b32 s56, s46, 10')
    a('s_lshl_b32 s57, s41, 3')
    a('s_add_u32 s56, s56, s57')
    a('s_add_u32 s56, s56, 4096')
    a('v_add_u32 v12, s56, v12')
    a('s_lshl_b32 s56, s46, 12')
    a('s_add_u32 s56, s56, 6144')
    a('v_add_u32 v13, s56, v10')
    a('v_mov_b32 v132, 0x3f803f80')
    for r in (133, 134, 135): a(f'v_mov_b32 v{r}, v132')
    a('v_add_u32 v14, s54, v10')
    a('s_mov_b32 s58, 0xfff00000')
    a('s_mov_b32 s59, 0xfff00000')
    a('s_mov_b64 exec, s[58:59]')
    for sl in range(4):
        a(f'ds_write_b128 v14, v[132:135] offset:{sl*AT_SLOT}')
    a('s_mov_b64 exec, -1')
    a('s_mov_b32 s58, 0x000fffff')
    a('s_mov_b32 s59, 0x000fffff')

def attn_dma(a, slot, ssrd):
    a(f's_add_u32 m0, s54, {slot*AT_SLOT}')
    a('s_mov_b64 exec, s[58:59]')
    a(f'buffer_load_dwordx4 v8, s[{ssrd}:{ssrd+3}], s52 offen lds')
    a('s_mov_b64 exec, -1')
    a(f's_add_u32 m0, s55, {slot*AT_SLOT}')
    a('s_add_u32 s52, s52, 5120')
    a(f'buffer_load_dwordx4 v9, s[{ssrd}:{ssrd+3}], s53 offen lds')
    a('s_add_u32 s53, s53, 163840')

def attn_dma_parts(slot, ssrd):
    return ([f's_add_u32 m0, s54, {slot*AT_SLOT}', 's_mov_b64 exec, s[58:59]',
             f'buffer_load_dwordx4 v8, s[{ssrd}:{ssrd+3}], s52 offen lds', 's_mov_b64 exec, -1', 's_add_u32 s52, s52, 5120'],
            [f's_add_u32 m0, s55, {slot*AT_SLOT}', 's_nop 0',
             f'buffer_load_dwordx4 v9, s[{ssrd}:{ssrd+3}], s53 offen lds', 's_add_u32 s53, s53, 163840'])

def attn_main(a, ssrd, tag):
    R = AR
    def kreads(slot, t, buf):
        return [f'ds_read_b128 {v(R.KA+4*buf,4)}, v11 offset:{slot*AT_SLOT + t*1024}',
                f'ds_read_b64 {v(R.KC+2*buf,2)}, v12 offset:{slot*AT_SLOT + t*512}']
    def vreads(slot, t, buf):
        return [f'ds_read_b128 {v(R.VV+8*buf,4)}, v13 offset:{slot*AT_SLOT + t*2048}',
                f'ds_read_b128 {v(R.VV+8*buf+4,4)}, v13 offset:{slot*AT_SLOT + t*2048 + 1024}']
    def m1(sb, kb, j): return f'v_mfma_f32_32x32x16_bf16 {v(R.S+16*sb,16)}, {v(R.KA+4*kb,4)}, {v(R.QA+4*j,4)}, 0'
    def m2(sb, kb, j): return f'v_mfma_f32_32x32x8bf16_1k {v(R.S+16*sb,16)}, {v(R.KC+2*kb,2)}, {v(R.QC+2*j,2)}, {v(R.S+16*sb,16)}'
    def m3(j, vb, pb): return f'v_mfma_f32_32x32x16_bf16 {v(R.O+16*j,16)}, {v(R.VV+8*vb,4)}, {v(R.P+8*pb,4)}, {v(R.O+16*j,16)}'
    def m4(j, vb, pb): return f'v_mfma_f32_32x32x16_bf16 {v(R.O+16*j,16)}, {v(R.VV+8*vb+4,4)}, {v(R.P+8*pb+4,4)}, {v(R.O+16*j,16)}'
    for r in range(32): a(f'v_mov_b32 v{R.O+r}, 0')
    for r in range(16): a(f'v_mov_b32 v{R.P+r}, 0')
    for r in range(16): a(f'v_mov_b32 v{R.VV+r}, 0')
    attn_dma(a, 0, ssrd)
    if 'pro3' in EXP:
        for st in range(1, 3): attn_dma(a, st, ssrd)
        a('s_waitcnt vmcnt(4)')
    else:
        a('s_waitcnt vmcnt(0)')
        for st in range(1, 3): attn_dma(a, st, ssrd)
    a('v_cmp_gt_u32 vcc, 32, v2')
    for r in range(4): a(f'v_cndmask_b32 v{R.QC+r}, 0, v{R.QC+r}, vcc')
    a('s_waitcnt lgkmcnt(0)')
    a('s_barrier')
    for x in kreads(0, 0, 0): a(x)
    a('s_waitcnt lgkmcnt(0)')
    a(m1(0, 0, 0)); a(m2(0, 0, 0))
    a('s_mov_b32 s60, 4')
    if 'barstamp' not in EXP: stamp(a, 7)
    if 'align' in EXP: a.raw('.p2align 6')
    a.label(f'.Lat_loop{tag}')
    for st in range(4):
        for u in range(4):
            n = st * 4 + u
            T = n >> 1; j = n & 1
            sb = n & 1; Tn = (n + 1) >> 1; jn = (n + 1) & 1
            Tp = (n - 1) >> 1; jp = (n - 1) & 1
            if 'prio' in EXP: a(f's_setprio {3-u}')
            extras = {}
            if u == 2 and 'nobar' not in EXP:
                if 'barstamp' in EXP: stamp(a, 7 + 2*st)
                a('s_waitcnt vmcnt(2)')
                a('s_barrier')
                if 'barstamp' in EXP: stamp(a, 8 + 2*st)
            if u == 3 and 'nodma' not in EXP:
                d = attn_dma_parts((st + 3) % 4, ssrd)
                extras.setdefault(3, []).extend(d[0])
                extras.setdefault(15, []).extend(d[1])
            if n % 2 == 0:
                T1 = T + 1
                if 'nods' not in EXP:
                    kr = kreads((T1 >> 1) % 4, T1 & 1, T1 & 1)
                    vr = vreads((T >> 1) % 4, T & 1, T & 1)
                    for pos, x in zip((2, 6, 11, 16), kr + vr): extras.setdefault(pos, []).append(x)
            else:
                a('s_waitcnt lgkmcnt(0)')
            S = R.S + 16 * sb
            ex = [f'v_exp_f32 v{S+i}, v{S+i}' for i in range(16)]
            cv = [f'v_cvt_pk_bf16_f32 v{R.P+8*sb+i}, v{S+2*i}, v{S+2*i+1}' for i in range(8)]
            M = [m1(sb ^ 1, Tn & 1, jn), m2(sb ^ 1, Tn & 1, jn), m3(jp, Tp & 1, (n - 1) & 1), m4(jp, Tp & 1, (n - 1) & 1)]
            seq = [M[0], ex[0], ex[1], ex[2], ex[3], cv[0], ex[4], M[1], ex[5], cv[1], ex[6], ex[7], cv[2],
                   M[2], ex[8], ex[9], cv[3], ex[10], ex[11], cv[4], M[3], ex[12], ex[13], cv[5], ex[14], ex[15], cv[6], cv[7]]
            for i, x in enumerate(seq):
                for y in extras.get(i, []): a(y)
                a(x)
    a('s_sub_u32 s60, s60, 1')
    a('s_cmp_lg_u32 s60, 0')
    a(f's_cbranch_scc1 .Lat_loop{tag}')
    a(m3(1, 1, 1)); a(m4(1, 1, 1))

def attn_stage_wrap_note(): pass

def k2():
    a = Asm()
    L = 'k2_kernel'
    kernel_begin(a, L)
    a('s_cmp_ge_u32 s2, 256')
    a(f's_cbranch_scc1 {L}_end')
    stamp(a, 0, True); stamp(a, 1)
    a(f's_load_dwordx2 s[4:5], s[0:1], {A_WS}')
    a('s_and_b32 s13, s2, 7')
    a('s_lshr_b32 s14, s2, 3')
    a('v_lshrrev_b32 v1, 6, v0')
    a('v_and_b32 v2, 63, v0')
    a('v_readfirstlane_b32 s12, v1')
    a('v_and_b32 v3, 31, v2')
    a('v_lshrrev_b32 v4, 5, v2')
    a('s_waitcnt lgkmcnt(0)')
    srd(a, 8, 4, WS_END)
    attn_setup(a, 14, 13, 12, 8)
    stamp(a, 2)
    attn_main(a, 8, '')
    stamp(a, 3)
    R = AR
    a('s_waitcnt vmcnt(0)')
    a('s_barrier')
    a('s_cmp_eq_u32 s46, 0')
    a('s_cbranch_scc1 .Lat_noswap')
    a('s_nop 7')
    for r in range(12): a(f'v_swap_b32 v{R.O+r}, v{R.O+16+r}')
    a.label('.Lat_noswap')
    a('s_nop 7')
    a(f's_mul_i32 s61, s12, 3072')
    a('v_add_u32 v14, s61, v10')
    for i in range(3): a(f'ds_write_b128 v14, {v(R.O+16+4*i,4)} offset:{1024*i}')
    a('s_xor_b32 s61, s12, 4')
    a('s_mul_i32 s61, s61, 3072')
    a('v_add_u32 v14, s61, v10')
    a('s_waitcnt lgkmcnt(0)')
    a('s_barrier')
    for i in range(3): a(f'ds_read_b128 {v(R.T+4*i,4)}, v14 offset:{1024*i}')
    a('s_waitcnt lgkmcnt(0)')
    for r in range(12): a(f'v_add_f32 v{R.O+r}, v{R.O+r}, v{R.T+r}')
    a(f'v_mov_b32 v{R.T}, v{R.O+8}')
    a(f'v_mov_b32 v{R.T+1}, v{R.O+8}')
    a(f'v_permlane32_swap_b32 v{R.T}, v{R.T+1}')
    a(f'v_rcp_f32 v{R.T+1}, v{R.T+1}')
    for r in range(12): a(f'v_mul_f32 v{R.O+r}, v{R.O+r}, v{R.T+1}')
    for i in range(6): a(f'v_cvt_pk_bf16_f32 v{R.T+4+i}, v{R.O+2*i}, v{R.O+2*i+1}')
    a('s_mul_i32 s61, s46, 40960')
    a('s_add_u32 s61, s61, s47')
    a(f's_add_u32 s61, s61, {WS_O}')
    a('s_lshl_b32 s62, s42, 8')
    a('s_add_u32 s62, s62, s61')
    a(f'buffer_store_dwordx4 {v(R.T+4,4)}, v7, s[8:11], s62 offen')
    a('s_lshl_b32 s62, s43, 8')
    a('s_add_u32 s62, s62, s61')
    a('s_lshl_b32 s63, s41, 3')
    a('s_add_u32 s62, s62, s63')
    a('s_mov_b64 exec, 0xffffffff')
    a(f'buffer_store_dwordx2 {v(R.T+8,2)}, v5, s[8:11], s62 offen')
    a('s_mov_b64 exec, -1')
    stamp(a, 4)
    if PROF: a('s_waitcnt vmcnt(0)')
    stamp(a, 5); stamp(a, 6, True)
    stamp_flush(a, 2, 15, 8, 12)
    a.label(f'{L}_end')
    a('s_endpgm')
    return a, descriptor(L, 160, 102), f'; @launch kernel={L} grid=(256,1,1) block=(512,1,1) lds={4*AT_SLOT}'


def common_prologue(a, L, kidx):
    a('s_cmp_ge_u32 s2, 256')
    a(f's_cbranch_scc1 {L}_end')
    stamp(a, 0, True); stamp(a, 1)
    a(f's_load_dwordx2 s[4:5], s[0:1], {A_WS}')
    a(f's_load_dwordx2 s[6:7], s[0:1], {A_X}')
    a(f's_load_dwordx2 s[24:25], s[0:1], {A_OUT}')
    a('s_and_b32 s13, s2, 7')
    a('s_lshr_b32 s14, s2, 3')
    a('v_lshrrev_b32 v1, 6, v0')
    a('v_and_b32 v2, 63, v0')
    a('v_readfirstlane_b32 s12, v1')
    a('v_and_b32 v3, 31, v2')
    a('v_lshrrev_b32 v4, 5, v2')
    a('v_lshlrev_b32 v10, 4, v2')
    a('s_waitcnt lgkmcnt(0)')
    srd(a, 8, 4, WS_END)

def ksplit_reduce(a, ACC, T, sw, sth, skq, vl16, vtmp):
    a(f's_lshl_b32 s40, s{skq}, 1')
    a(f's_add_u32 s40, s40, s{sth}')
    a('s_mul_i32 s40, s40, 10240')
    a(f'v_add_u32 v{vtmp}, s40, v{vl16}')
    for j in range(2):
        for ft in range(5):
            a(f'ds_write_b128 v{vtmp}, {v(ACC+4*(2*ft+j),4)} offset:{(j*5+ft)*1024}')
    a('s_waitcnt lgkmcnt(0)')
    a('s_barrier')

def ksplit_gather(a, T, sw, vl16, vtmp):
    a(f's_mul_i32 s40, s{sw}, 5120')
    a(f'v_add_u32 v{vtmp}, s40, v{vl16}')
    for kq in range(4):
        if kq == 2: a(f'v_add_u32 v{vtmp}, 40960, v{vtmp}')
        for ft in range(5):
            a(f'ds_read_b128 {v(T+20*kq+4*ft,4)}, v{vtmp} offset:{(kq&1)*20480 + ft*1024}')
    a('s_waitcnt lgkmcnt(0)')
    for r in range(20):
        a(f'v_add_f32 v{T+r}, v{T+r}, v{T+20+r}')
        a(f'v_add_f32 v{T+40+r}, v{T+40+r}, v{T+60+r}')
    for r in range(20):
        a(f'v_add_f32 v{T+r}, v{T+r}, v{T+40+r}')

def sum_q4(a, x, t1, t2):
    a(f'v_mov_b32 v{t1}, v{x}'); a(f'v_mov_b32 v{t2}, v{x}')
    a(f'v_permlane16_swap_b32 v{t1}, v{t2}')
    a(f'v_add_f32 v{x}, v{t1}, v{t2}')
    a(f'v_mov_b32 v{t1}, v{x}'); a(f'v_mov_b32 v{t2}, v{x}')
    a(f'v_permlane32_swap_b32 v{t1}, v{t2}')
    a(f'v_add_f32 v{x}, v{t1}, v{t2}')

def k3():
    a = Asm()
    L = 'k3_kernel'
    kernel_begin(a, L)
    common_prologue(a, L, 3)
    srd(a, 16, 6, S * D * 2)
    a('s_and_b32 s20, s14, 3')
    a('s_lshr_b32 s21, s14, 2')
    a('s_lshr_b32 s22, s12, 2')
    a('s_and_b32 s23, s12, 3')
    a('s_mul_i32 s26, s21, 102400')
    a(f's_add_u32 s26, s26, {WS_WO}')
    a('s_lshl_b32 s27, s12, 10')
    a('s_add_u32 s26, s26, s27')
    for i in range(13):
        if i == 12:
            a('s_cmp_ge_u32 s12, 4')
            a(f's_cbranch_scc1 {L}_nod')
        a(f's_add_u32 m0, s27, {i*8192}')
        a(f's_add_u32 s28, s26, {i*8192}')
        a('buffer_load_dwordx4 v10, s[8:11], s28 offen lds')
    a.label(f'{L}_nod')
    BF, AF, ACC, T, XR = 16, 56, 96, 136, 216
    a('s_lshl_b32 s29, s13, 4')
    a('s_lshl_b32 s30, s20, 2')
    a('s_add_u32 s29, s29, s30')
    a('s_lshl_b32 s30, s22, 1')
    a('s_add_u32 s30, s30, s29')
    a('s_mul_i32 s30, s30, 20480')
    a('s_mul_i32 s31, s23, 5120')
    a('s_add_u32 s30, s30, s31')
    a(f's_add_u32 s30, s30, {WS_O}')
    for j in range(2):
        for i in range(5):
            a(f's_add_u32 s31, s30, {j*20480 + i*1024}')
            a(f'buffer_load_dwordx4 {v(BF+4*(5*j+i),4)}, v10, s[8:11], s31 offen')
    a('v_and_b32 v5, 15, v2')
    a('v_lshrrev_b32 v6, 4, v2')
    a('s_and_b32 s31, s12, 3')
    a('s_add_u32 s31, s31, s29')
    a('s_lshl_b32 s31, s31, 4')
    a('v_add_u32 v7, s31, v5')
    a('s_movk_i32 s32, 1280')
    a('v_mul_lo_u32 v7, v7, s32')
    a('v_lshl_add_u32 v7, v6, 3, v7')
    a('s_mul_i32 s32, s21, 160')
    for ft in range(5):
        a(f'buffer_load_dwordx2 {v(XR+2*ft,2)}, v7, s[16:19], s32 offen offset:{32*ft}')
    stamp(a, 2)
    a('s_waitcnt vmcnt(0)')
    a('s_barrier')
    stamp(a, 3)
    a('s_mul_i32 s33, s23, 5120')
    a('v_add_u32 v8, s33, v10')
    a('v_add_u32 v9, 0x10000, v8')
    def areads(i, buf):
        for ft in range(5):
            off = ft * 20480 + i * 1024
            base = 8
            if off >= 65536: off -= 65536; base = 9
            a(f'ds_read_b128 {v(AF+20*buf+4*ft,4)}, v{base} offset:{off}')
    areads(0, 0)
    for i in range(5):
        if i < 4:
            areads(i + 1, (i + 1) & 1)
            a('s_waitcnt lgkmcnt(5)')
        else:
            a('s_waitcnt lgkmcnt(0)')
        for ft in range(5):
            for j in range(2):
                acc = v(ACC + 4 * (2 * ft + j), 4)
                a(f'v_mfma_f32_16x16x32_bf16 {acc}, {v(AF+20*(i&1)+4*ft,4)}, {v(BF+4*(5*j+i),4)}, {"0" if i == 0 else acc}')
    stamp(a, 4)
    a('s_barrier')
    ksplit_reduce(a, ACC, T, 12, 22, 23, 10, 11)
    a('s_cmp_ge_u32 s12, 4')
    a(f's_cbranch_scc1 {L}_end')
    ksplit_gather(a, T, 12, 10, 11)
    for ft in range(5):
        for h2 in range(2):
            a(f'v_lshlrev_b32 v{T+20}, 16, v{XR+2*ft+h2}')
            a(f'v_and_b32 v{T+21}, 0xffff0000, v{XR+2*ft+h2}')
            a(f'v_add_f32 v{T+4*ft+2*h2}, v{T+4*ft+2*h2}, v{T+20}')
            a(f'v_add_f32 v{T+4*ft+2*h2+1}, v{T+4*ft+2*h2+1}, v{T+21}')
    a(f'v_mov_b32 v{T+20}, v{T}')
    a(f'v_mul_f32 v{T+21}, v{T}, v{T}')
    for r in range(1, 20):
        a(f'v_add_f32 v{T+20}, v{T+20}, v{T+r}')
        a(f'v_fmac_f32 v{T+21}, v{T+r}, v{T+r}')
    sum_q4(a, T+20, T+22, T+23)
    sum_q4(a, T+21, T+22, T+23)
    for i in range(10):
        a(f'v_cvt_pk_bf16_f32 v{T+24+i}, v{T+2*i}, v{T+2*i+1}')
    a('s_add_u32 s33, s29, s12')
    a('s_mul_i32 s34, s33, 20480')
    a('s_mul_i32 s35, s21, 2560')
    a('s_add_u32 s34, s34, s35')
    a(f's_add_u32 s34, s34, {WS_H}')
    a('v_lshrrev_b32 v11, 1, v6')
    a('v_lshlrev_b32 v11, 8, v11')
    a('v_lshl_add_u32 v11, v5, 4, v11')
    a('v_and_b32 v12, 1, v6')
    a('v_lshl_add_u32 v11, v12, 3, v11')
    for ft in range(5):
        a(f'buffer_store_dwordx2 {v(T+24+2*ft,2)}, v11, s[8:11], s34 offen offset:{512*ft}')
    a('s_lshl_b32 s33, s33, 10')
    a('s_lshl_b32 s35, s21, 3')
    a('s_add_u32 s33, s33, s35')
    a(f's_add_u32 s33, s33, {WS_ST2}')
    a('v_lshlrev_b32 v12, 6, v5')
    a('s_mov_b64 exec, 0xffff')
    a(f'buffer_store_dwordx2 {v(T+20,2)}, v12, s[8:11], s33 offen')
    a('s_mov_b64 exec, -1')
    stamp(a, 5)
    if PROF: a('s_waitcnt vmcnt(0)')
    stamp(a, 6, True)
    stamp_flush(a, 3, 7, 8, 12)
    a.label(f'{L}_end')
    a('s_endpgm')
    return a, descriptor(L, 232, 102), f'; @launch kernel={L} grid=(256,1,1) block=(512,1,1) lds=102400'

def k4():
    a = Asm()
    L = 'k4_kernel'
    kernel_begin(a, L)
    common_prologue(a, L, 4)
    a('s_cmp_ge_u32 s14, 28')
    a(f's_cbranch_scc1 {L}_end')
    a('s_and_b32 s13, s14, 1')
    a('s_and_b32 s15, s2, 7')
    a('s_lshl_b32 s15, s15, 1')
    a('s_add_u32 s13, s13, s15')
    a('s_lshr_b32 s14, s14, 1')
    lane_swap23(a, 5, 3, 6)
    a('s_cmp_lt_u32 s12, 4')
    a('s_cselect_b64 vcc, -1, 0')
    a('v_cndmask_b32 v6, v3, v5, vcc')
    a('v_lshrrev_b32 v7, 4, v6')
    a('s_movk_i32 s17, 20480')
    a('v_mul_lo_u32 v7, v7, s17')
    a('v_and_b32 v6, 15, v6')
    a('v_lshl_add_u32 v7, v6, 4, v7')
    a('v_lshl_add_u32 v7, v4, 8, v7')
    a('s_lshl_b32 s18, s14, 3')
    a('s_lshl_b32 s19, s12, 1')
    a('s_add_u32 s18, s18, s19')
    a('s_mul_i32 s18, s18, 20480')
    a(f's_add_u32 s18, s18, {WS_W1}')
    a('s_lshl_b32 s20, s13, 3')
    a('s_add_u32 s20, s20, s19')
    a('s_sub_u32 s20, s20, 8')
    a('s_mul_i32 s20, s20, 20480')
    a(f's_add_u32 s20, s20, {WS_H}')
    a('s_cmp_lt_u32 s12, 4')
    a('s_cselect_b32 s20, s18, s20')
    a('s_lshl_b32 s22, s12, 10')
    a('s_and_b32 s23, s12, 3')
    a('s_lshr_b32 s26, s12, 2')
    a('s_lshl_b32 s17, s23, 10')
    a('v_add_u32 v9, s17, v10')
    a('v_add_u32 v11, 0x10000, v9')
    a('s_lshl_b32 s17, s26, 11')
    a('s_add_u32 s17, s17, 4096')
    a('v_add_u32 v12, s17, v10')
    a('v_add_u32 v13, 0x10000, v12')
    ST, CS, B1 = 96, 128, 144
    a('s_lshl_b32 s27, s13, 7')
    a('s_lshl_b32 s28, s26, 6')
    a('s_add_u32 s27, s27, s28')
    a('v_add_u32 v14, s27, v3')
    a('v_lshlrev_b32 v14, 6, v14')
    a(f's_mov_b32 s28, {WS_ST2}')
    for j in range(2):
        for q in range(4):
            a(f'buffer_load_dwordx4 {v(ST+16*j+4*q,4)}, v14, s[8:11], s28 offen offset:{j*2048 + 16*q}')
    a('s_lshl_b32 s29, s14, 7')
    a('s_lshl_b32 s30, s23, 5')
    a('s_add_u32 s29, s29, s30')
    a('s_lshl_b32 s29, s29, 2')
    a('v_lshlrev_b32 v15, 5, v4')
    a(f's_add_u32 s30, s29, {WS_CS1}')
    a(f's_add_u32 s31, s29, {WS_B1F}')
    for q, off in enumerate((0, 16, 64, 80)):
        a(f'buffer_load_dwordx4 {v(CS+4*q,4)}, v15, s[8:11], s30 offen offset:{off}')
        a(f'buffer_load_dwordx4 {v(B1+4*q,4)}, v15, s[8:11], s31 offen offset:{off}')
    ACC, FA, FB = 32, 16, 64
    ring_gemm(a, 10, ACC, FA, FB, 7, (9, 11), (12, 13), 8, 20, 22, False, 'f1', pre=16)
    for j in range(2):
        b = ST + 16 * j
        for q in range(1, 8):
            a(f'v_add_f32 v{b}, v{b}, v{b+2*q}')
            a(f'v_add_f32 v{b+1}, v{b+1}, v{b+2*q+1}')
        a(f'v_mul_f32 v{b}, {f2hex(1.0/640)}, v{b}')
        a(f'v_mul_f32 v{b+1}, {f2hex(1.0/640)}, v{b+1}')
        a(f'v_fma_f32 v{b+1}, -v{b}, v{b}, v{b+1}')
        a(f'v_add_f32 v{b+1}, 0x3727c5ac, v{b+1}')
        a(f'v_rsq_f32 v{b+1}, v{b+1}')
        a(f'v_mul_f32 v{b}, v{b}, v{b+1}')
    for j in range(2):
        b = ST + 16 * j
        for r in range(16):
            a(f'v_fma_f32 v{b+2}, -v{b}, v{CS+r}, v{B1+r}')
            a(f'v_fma_f32 v{ACC+16*j+r}, v{b+1}, v{ACC+16*j+r}, v{b+2}')
            a(f'v_max_f32 v{ACC+16*j+r}, 0, v{ACC+16*j+r}')
            a(f'v_mul_f32 v{ACC+16*j+r}, v{ACC+16*j+r}, v{ACC+16*j+r}')
    for r in range(16):
        a(f'v_cvt_pk_bf16_f32 v{64+r}, v{ACC+2*r}, v{ACC+2*r+1}')
    a('s_lshl_b32 s17, s14, 2')
    a('s_add_u32 s17, s17, s23')
    a('s_cmp_ge_u32 s17, 54')
    a(f's_cbranch_scc1 {L}_end')
    a('v_lshrrev_b32 v13, 4, v3')
    a('s_mov_b32 s18, 55296')
    a('v_mul_lo_u32 v13, v13, s18')
    a('v_and_b32 v14, 15, v3')
    a('v_lshl_add_u32 v13, v14, 4, v13')
    a('v_lshl_add_u32 v13, v4, 8, v13')
    a('s_lshr_b32 s18, s27, 4')
    a('s_mul_i32 s18, s18, 55296')
    a('s_lshl_b32 s17, s17, 10')
    a('s_add_u32 s17, s17, s18')
    a(f's_add_u32 s17, s17, {WS_G}')
    for j in range(2):
        a(f'buffer_store_dwordx4 {v(64+8*j,4)}, v13, s[8:11], s17 offen')
        a(f'buffer_store_dwordx4 {v(68+8*j,4)}, v13, s[8:11], s17 offen offset:512')
        if j == 0: a(f's_add_u32 s17, s17, {2*55296}')
    stamp(a, 5)
    if PROF: a('s_waitcnt vmcnt(0)')
    stamp(a, 6, True)
    stamp_flush(a, 4, 7, 8, 12)
    a.label(f'{L}_end')
    a('s_endpgm')
    return a, descriptor(L, 160, 102), f'; @launch kernel={L} grid=(256,1,1) block=(512,1,1) lds=131072'

F2_KS = (14, 14, 13, 13)
F2_K0 = (0, 14, 28, 41)
def k5():
    a = Asm()
    L = 'k5_kernel'
    kernel_begin(a, L)
    common_prologue(a, L, 5)
    srd(a, 16, 24, S * D * 2)
    a('s_and_b32 s20, s14, 3')
    a('s_lshr_b32 s21, s14, 2')
    a('s_lshr_b32 s22, s12, 2')
    a('s_and_b32 s23, s12, 3')
    a('s_mul_i32 s26, s23, 14')
    a('s_cmp_eq_u32 s23, 3')
    a('s_cselect_b32 s27, 1, 0')
    a('s_sub_u32 s26, s26, s27')
    a('s_mul_i32 s28, s21, 276480')
    a(f's_add_u32 s28, s28, {WS_W2}')
    a('s_add_u32 s29, s26, s22')
    a('s_lshl_b32 s29, s29, 10')
    a('s_add_u32 s28, s28, s29')
    a('s_lshl_b32 s29, s23, 1')
    a('s_add_u32 s29, s29, s22')
    a('s_mul_i32 s29, s29, 5120')
    NST = 7
    issued = []
    def dma_stage(st):
        slot = st % 3
        for ft in range(5):
            a(f's_add_u32 m0, s29, {slot*40960 + ft*1024}')
            a(f's_add_u32 s30, s28, {st*2048 + ft*55296}')
            a('buffer_load_dwordx4 v10, s[8:11], s30 offen lds')
            issued.append(('w', st))
    BF, ACC, AF, T = 16, 128, 168, 16
    dma_stage(0)
    a('s_lshl_b32 s31, s13, 4')
    a('s_lshl_b32 s32, s20, 2')
    a('s_add_u32 s31, s31, s32')
    a('s_lshl_b32 s32, s22, 1')
    a('s_add_u32 s32, s32, s31')
    a('s_mul_i32 s32, s32, 55296')
    a('s_lshl_b32 s33, s26, 10')
    a('s_add_u32 s32, s32, s33')
    a(f's_add_u32 s32, s32, {WS_G}')
    def bload(i):
        for j in range(2):
            a(f's_add_u32 s33, s32, {j*55296 + i*1024}')
            a(f'buffer_load_dwordx4 {v(BF+8*i+4*j,4)}, v10, s[8:11], s33 offen')
            issued.append(('b', i))
    for i in range(4): bload(i)
    dma_stage(1)
    for i in range(4, 8): bload(i)
    dma_stage(2)
    for i in range(8, 14): bload(i)
    def wait_for(pred):
        n = 0
        for x in reversed(issued):
            if pred(x): break
            n += 1
        a(f's_waitcnt vmcnt({min(n, 63)})')
    a('s_mul_i32 s34, s23, 10240')
    a('v_add_u32 v8, s34, v10')
    a('v_add_u32 v9, 0x10000, v8')
    def areads(st, i, buf):
        for ft in range(5):
            off = (st % 3) * 40960 + i * 5120 + ft * 1024
            base = 8
            if off >= 65536: off -= 65536; base = 9
            a(f'ds_read_b128 {v(AF+20*buf+4*ft,4)}, v{base} offset:{off}')
    stamp(a, 2)
    for st in range(NST):
        wait_for(lambda x: x == ('w', st) or x == ('b', min(2*st+1, 13)))
        a('s_barrier')
        if st == 0: stamp(a, 3)
        if st >= 1 and st + 2 < NST: dma_stage(st + 2)
        areads(st, 0, 0)
        areads(st, 1, 1)
        for i in range(2):
            ks = 2 * st + i
            a(f's_waitcnt lgkmcnt({5 if i == 0 else 0})')
            last = (ks == 13)
            if last:
                a('s_cmp_ge_u32 s23, 2')
                a(f's_cbranch_scc1 {L}_skip')
            for ft in range(5):
                for j in range(2):
                    acc = v(ACC + 4 * (2 * ft + j), 4)
                    a(f'v_mfma_f32_16x16x32_bf16 {acc}, {v(AF+20*i+4*ft,4)}, {v(BF+8*ks+4*j,4)}, {"0" if ks == 0 else acc}')
            if last: a.label(f'{L}_skip')
    stamp(a, 4)
    a('s_nop 7')
    a('s_barrier')
    ksplit_reduce(a, ACC, T, 12, 22, 23, 10, 11)
    a('s_cmp_ge_u32 s12, 4')
    a(f's_cbranch_scc1 {L}_end')
    a('v_and_b32 v5, 15, v2')
    a('v_lshrrev_b32 v6, 4, v2')
    HR, BB = 100, 112
    a('s_add_u32 s33, s31, s12')
    a('s_mul_i32 s34, s33, 20480')
    a('s_mul_i32 s35, s21, 2560')
    a('s_add_u32 s34, s34, s35')
    a(f's_add_u32 s34, s34, {WS_H}')
    a('v_lshrrev_b32 v11, 1, v6')
    a('v_lshlrev_b32 v11, 8, v11')
    a('v_lshl_add_u32 v11, v5, 4, v11')
    a('v_and_b32 v12, 1, v6')
    a('v_lshl_add_u32 v11, v12, 3, v11')
    for ft in range(5):
        a(f'buffer_load_dwordx2 {v(HR+2*ft,2)}, v11, s[8:11], s34 offen offset:{512*ft}')
    a('s_mul_i32 s35, s21, 320')
    a(f's_add_u32 s35, s35, {WS_B2F}')
    a('v_lshlrev_b32 v12, 4, v6')
    for ft in range(5):
        a(f'buffer_load_dwordx4 {v(BB+4*ft,4)}, v12, s[8:11], s35 offen offset:{64*ft}')
    ksplit_gather(a, T, 12, 10, 13)
    a('s_waitcnt vmcnt(0)')
    for ft in range(5):
        for h2 in range(2):
            a(f'v_lshlrev_b32 v{T+20}, 16, v{HR+2*ft+h2}')
            a(f'v_and_b32 v{T+21}, 0xffff0000, v{HR+2*ft+h2}')
            a(f'v_add_f32 v{T+4*ft+2*h2}, v{T+4*ft+2*h2}, v{BB+4*ft+2*h2}')
            a(f'v_add_f32 v{T+4*ft+2*h2+1}, v{T+4*ft+2*h2+1}, v{BB+4*ft+2*h2+1}')
            a(f'v_add_f32 v{T+4*ft+2*h2}, v{T+4*ft+2*h2}, v{T+20}')
            a(f'v_add_f32 v{T+4*ft+2*h2+1}, v{T+4*ft+2*h2+1}, v{T+21}')
    for i in range(10):
        a(f'v_cvt_pk_bf16_f32 v{T+24+i}, v{T+2*i}, v{T+2*i+1}')
    a('s_lshl_b32 s33, s33, 4')
    a('v_add_u32 v7, s33, v5')
    a('s_movk_i32 s34, 1280')
    a('v_mul_lo_u32 v7, v7, s34')
    a('v_lshl_add_u32 v7, v6, 3, v7')
    a('s_mul_i32 s34, s21, 160')
    for ft in range(5):
        a(f'buffer_store_dwordx2 {v(T+24+2*ft,2)}, v7, s[16:19], s34 offen offset:{32*ft}')
    stamp(a, 5)
    if PROF: a('s_waitcnt vmcnt(0)')
    stamp(a, 6, True)
    stamp_flush(a, 5, 7, 8, 12)
    a.label(f'{L}_end')
    a('s_endpgm')
    return a, descriptor(L, 232, 102), f'; @launch kernel={L} grid=(256,1,1) block=(512,1,1) lds=122880'

import struct
def f2hex(x):
    return '0x%08x' % struct.unpack('<I', struct.pack('<f', x))[0]

HEADER = """; Kernarg layout (88 bytes): x, wqkv, wo, B_x(unused), w1, b1, w2, b2, out, debug, ws
"""

def build(kernels):
    txt = HEADER
    bodies = []; descs = []
    for k in kernels:
        a, d, launch = k()
        txt += launch + '\n'
        lines, probs = fix_hazards(a.lines)
        if probs:
            for p in probs: print('HAZARD on branch edge:', p, file=sys.stderr)
        bodies.append(render(lines)); descs.append(d)
    txt += '.amdgcn_target "amdgcn-amd-amdhsa--gfx950"\n.text\n'
    txt += '\n'.join(bodies)
    txt += '.section .rodata,"a"\n.p2align 6\n' + '\n.p2align 6\n'.join(descs)
    return txt

if __name__ == '__main__':
    if 'prof' in sys.argv: PROF = True
    for x in sys.argv[2:]:
        if x.startswith('x:'): EXP.add(x[2:])
    ks = [k0, k1, k2, k3, k4, k5]
    out = sys.argv[1] if len(sys.argv) > 1 else 'test.s'
    open(out, 'w').write(build(ks))
    print('wrote', out)
```

```python
import sys, math
sys.path.insert(0, 'dev')
from asmlib import *

NAME = 'sequential_preLN__mha_block__dense_activation_squared_relu__prompt'
S, D, H, DH, F = 2048, 640, 32, 20, 1728
A_X, A_WQKV, A_WO, A_BX, A_W1, A_B1, A_W2, A_B2, A_OUT, A_DBG, A_WS = [8 * i for i in range(11)]
WS_XN = 0
WS_WQKV = WS_XN + S * D * 2
WS_WO = WS_WQKV + D * 3 * D * 2
WS_W1 = WS_WO + D * D * 2
WS_W2 = WS_W1 + D * F * 2
WS_Q = WS_W2 + F * D * 2
WS_K = WS_Q + S * D * 2
WS_VT = WS_K + S * D * 2
WS_O = WS_VT + S * D * 2
WS_H = WS_O + S * D * 2
WS_G = WS_H + S * D * 2
WS_CS1 = WS_G + S * F * 2
WS_B1F = WS_CS1 + 8192
WS_B2F = WS_B1F + 8192
WS_ST2 = WS_B2F + 8192
WS_FLAG = WS_ST2 + S * 16 * 8
WS_PROF = WS_FLAG + 65536
WS_END = WS_PROF + 8 * 256 * 8 * 64
PROF = False
EXP = set()
PS = 80

def magic(d):
    return (2 ** 32 + d - 1) // d

def srd(a, base_s, ptr_lo, nbytes):
    a(f's_mov_b32 s{base_s}, s{ptr_lo}')
    a(f's_and_b32 s{base_s+1}, s{ptr_lo+1}, 0xffff')
    a(f's_mov_b32 s{base_s+2}, {nbytes}')
    a(f's_mov_b32 s{base_s+3}, 0x20000')

def kernel_begin(a, label):
    a.raw(f'.globl {label}')
    a.raw('.p2align 8')
    a.raw(f'.type {label},@function')
    a.label(label)

def descriptor(label, nvgpr, nsgpr, accum=None):
    if accum is None: accum = (nvgpr + 3) // 4 * 4
    return f""".amdhsa_kernel {label}
  .amdhsa_next_free_vgpr {nvgpr}
  .amdhsa_next_free_sgpr {nsgpr}
  .amdhsa_accum_offset {accum}
  .amdhsa_group_segment_fixed_size 0
  .amdhsa_kernarg_size 88
  .amdhsa_user_sgpr_count 2
  .amdhsa_user_sgpr_kernarg_segment_ptr 1
  .amdhsa_system_sgpr_workgroup_id_x 1
.end_amdhsa_kernel
"""


def stamp(a, i, real=False):
    if not PROF: return
    a(f's_{"memrealtime" if real else "memtime"} s[{PS+16}:{PS+17}]')
    a('s_waitcnt lgkmcnt(0)')
    a(f's_mov_b32 s{PS+i}, s{PS+16}')

def stamp_flush(a, kidx, n, ssrd, swave):
    if not PROF: return
    a(f's_lshl_b32 s{PS+18}, s2, 3')
    a(f's_add_u32 s{PS+18}, s{PS+18}, s{swave}')
    a(f's_lshl_b32 s{PS+18}, s{PS+18}, 6')
    a(f's_add_u32 s{PS+18}, s{PS+18}, {WS_PROF + kidx*256*8*64}')
    a(f'v_mbcnt_lo_u32_b32 v0, -1, 0')
    a(f'v_mbcnt_hi_u32_b32 v0, -1, v0')
    a('v_lshlrev_b32 v0, 2, v0')
    a('v_mov_b32 v1, 0')
    for i in range(n):
        a(f'v_mov_b32 v2, s{PS+i}')
        a(f'v_cmp_eq_u32 vcc, {4*i}, v0')
        a('v_cndmask_b32 v1, v1, v2, vcc')
    a(f'v_cmp_gt_u32 vcc, {4*n}, v0')
    a(f's_and_saveexec_b64 s[{PS+20}:{PS+21}], vcc')
    a(f'buffer_store_dword v1, v0, s[{ssrd}:{ssrd+3}], s{PS+18} offen')
    a(f's_mov_b64 exec, s[{PS+20}:{PS+21}]')

K0_LN = 128
K0_PK = 470
K0_CS = 27
K0_GRID = K0_LN + K0_PK + K0_CS + 1

def k0():
    a = Asm()
    L = 'k0_kernel'
    kernel_begin(a, L)
    a(f's_cmp_ge_u32 s2, {K0_GRID}')
    a(f's_cbranch_scc1 {L}_end')
    a(f's_load_dwordx2 s[4:5], s[0:1], {A_X}')
    a(f's_load_dwordx2 s[6:7], s[0:1], {A_WQKV}')
    a(f's_load_dwordx2 s[8:9], s[0:1], {A_WO}')
    a(f's_load_dwordx2 s[10:11], s[0:1], {A_W1}')
    a(f's_load_dwordx2 s[12:13], s[0:1], {A_W2}')
    a(f's_load_dwordx2 s[14:15], s[0:1], {A_WS}')
    a(f's_load_dwordx2 s[16:17], s[0:1], {A_B1}')
    a(f's_load_dwordx2 s[18:19], s[0:1], {A_B2}')
    a('v_lshrrev_b32 v1, 6, v0')
    a('v_and_b32 v2, 63, v0')
    a('s_nop 0')
    a('v_readfirstlane_b32 s3, v1')
    a('s_waitcnt lgkmcnt(0)')
    srd(a, 20, 14, WS_END)
    a(f's_cmp_ge_u32 s2, {K0_LN}')
    a(f's_cbranch_scc1 {L}_pk')
    srd(a, 24, 4, S * D * 2)
    a('v_lshrrev_b32 v3, 4, v2')
    a('v_and_b32 v4, 15, v2')
    a('s_lshl_b32 s28, s2, 4')
    a('s_lshl_b32 s29, s3, 2')
    a('s_add_u32 s28, s28, s29')
    a('v_add_u32 v5, s28, v3')
    a('s_movk_i32 s30, 1280')
    a('v_mul_lo_u32 v5, v5, s30')
    a('v_lshl_add_u32 v5, v4, 4, v5')
    for i in range(5):
        a(f'buffer_load_dwordx4 v[{8+4*i}:{11+4*i}], v5, s[24:27], 0 offen offset:{256*i}')
    for i in range(20):
        if i % 4 == 0: a(f's_waitcnt vmcnt({4 - i // 4})')
        a(f'v_lshlrev_b32 v{32+2*i}, 16, v{8+i}')
        a(f'v_and_b32 v{33+2*i}, 0xffff0000, v{8+i}')
    a('v_add_f32 v6, v32, v33')
    for i in range(2, 40):
        a(f'v_add_f32 v6, v6, v{32+i}')
    for r in (8, 4, 2, 1):
        a(f'v_add_f32_dpp v7, v6, v6 row_ror:{r} row_mask:0xf bank_mask:0xf')
        a('v_mov_b32 v6, v7')
    a(f'v_mul_f32 v6, {1.0/640:.9e}, v6'.replace('e-03', 'e-03'))
    for i in range(40):
        a(f'v_sub_f32 v{32+i}, v{32+i}, v6')
    a('v_mul_f32 v7, v32, v32')
    for i in range(1, 40):
        a(f'v_fmac_f32 v7, v{32+i}, v{32+i}')
    for r in (8, 4, 2, 1):
        a(f'v_add_f32_dpp v6, v7, v7 row_ror:{r} row_mask:0xf bank_mask:0xf')
        a('v_mov_b32 v7, v6')
    a('v_mov_b32 v6, 0x3727c5ac')
    a(f'v_fmac_f32 v6, {f2hex(1.0/640)}, v7')
    a('v_rsq_f32 v6, v6')
    for i in range(40):
        a(f'v_mul_f32 v{32+i}, v{32+i}, v6')
    for i in range(20):
        a(f'v_cvt_pk_bf16_f32 v{8+i}, v{32+2*i}, v{33+2*i}')
    a('s_mul_i32 s28, s2, 20480')
    a('s_lshl_b32 s29, s3, 6')
    a('s_add_u32 s28, s28, s29')
    a('v_lshlrev_b32 v5, 8, v4')
    a('v_lshl_add_u32 v5, v3, 4, v5')
    a('v_add_u32 v5, s28, v5')
    for i in range(5):
        a(f's_mov_b32 s29, {WS_XN + 4096*i}')
        a(f'buffer_store_dwordx4 v[{8+4*i}:{11+4*i}], v5, s[20:23], s29 offen')
    a('s_endpgm')
    a.label(f'{L}_pk')
    a(f's_cmp_ge_u32 s2, {K0_LN + K0_PK}')
    a(f's_cbranch_scc1 {L}_cs')
    a(f's_sub_u32 s28, s2, {K0_LN}')
    a('s_lshl_b32 s28, s28, 2')
    a('s_add_u32 s28, s28, s3')
    mats = [(600, 6, 1920, 640, WS_WQKV, 30), (200, 8, 640, 640, WS_WO, 10), (540, 10, 1728, 640, WS_W1, 27), (540, 12, 640, 1728, WS_W2, 10)]
    start = 0
    for mi, (cnt, ptr, N, K, off, ncb) in enumerate(mats):
        if mi < len(mats) - 1:
            a(f's_cmp_lt_u32 s28, {start + cnt}')
            a(f's_cbranch_scc0 {L}_m{mi+1}')
        srd(a, 24, ptr, N * K * 2)
        a(f's_mov_b32 s30, {N*2}')
        a(f's_mov_b32 s31, {K//8*256}')
        a(f's_mov_b32 s32, {off}')
        a(f's_sub_u32 s28, s28, {start}')
        a(f's_mul_hi_u32 s34, s28, {magic(ncb)}')
        a(f's_mul_i32 s35, s34, {ncb}')
        a('s_sub_u32 s35, s28, s35')
        a(f's_branch {L}_go')
        if mi < len(mats) - 1: a.label(f'{L}_m{mi+1}')
        start += cnt
    a.label(f'{L}_go')
    a('s_lshl_b32 s36, s34, 5')
    a('s_mul_i32 s36, s36, s30')
    a('s_lshl_b32 s37, s35, 7')
    a('s_add_u32 s36, s36, s37')
    a('v_lshlrev_b32 v5, 1, v2')
    for r in range(32):
        a(f'buffer_load_ushort v{40+r}, v5, s[24:27], s36 offen')
        a('s_add_u32 s36, s36, s30')
    a('v_lshrrev_b32 v6, 4, v2')
    a('s_lshl_b32 s37, s35, 2')
    a('v_add_u32 v6, s37, v6')
    a('v_mul_lo_u32 v6, v6, s31')
    a('v_and_b32 v7, 15, v2')
    a('v_lshl_add_u32 v6, v7, 4, v6')
    a('s_lshl_b32 s37, s34, 10')
    a('s_add_u32 s37, s37, s32')
    a('s_waitcnt vmcnt(0)')
    for r in range(16):
        a(f'v_lshl_or_b32 v{8+r}, v{41+2*r}, 16, v{40+2*r}')
    for oc in range(4):
        a(f'buffer_store_dwordx4 v[{8+4*oc}:{11+4*oc}], v6, s[20:23], s37 offen offset:{256*oc}')
    a('s_endpgm')
    a.label(f'{L}_cs')
    a(f's_cmp_ge_u32 s2, {K0_LN + K0_PK + K0_CS}')
    a(f's_cbranch_scc1 {L}_bias')
    srd(a, 24, 10, D * F * 2)
    a(f's_sub_u32 s28, s2, {K0_LN + K0_PK}')
    a('v_lshrrev_b32 v3, 5, v2')
    a('v_and_b32 v4, 31, v2')
    a('s_mul_i32 s29, s3, 160')
    a('v_add_u32 v3, s29, v3')
    a('s_movk_i32 s30, 3456')
    a('v_mul_lo_u32 v5, v3, s30')
    a('v_lshl_add_u32 v5, v4, 2, v5')
    a('s_lshl_b32 s29, s28, 7')
    a('v_mov_b32 v6, 0')
    a('v_mov_b32 v7, 0')
    a('s_mov_b32 s31, 5')
    a.label(f'{L}_csl')
    for i in range(16):
        a(f'buffer_load_dword v{8+i}, v5, s[24:27], s29 offen')
        a(f's_add_u32 s29, s29, {2*3456}')
    a('s_waitcnt vmcnt(0)')
    for i in range(16):
        a(f'v_lshlrev_b32 v24, 16, v{8+i}')
        a(f'v_and_b32 v25, 0xffff0000, v{8+i}')
        a('v_add_f32 v6, v6, v24')
        a('v_add_f32 v7, v7, v25')
    a('s_sub_u32 s31, s31, 1')
    a('s_cmp_lg_u32 s31, 0')
    a(f's_cbranch_scc1 {L}_csl')
    a('v_lshlrev_b32 v8, 3, v0')
    a('ds_write_b64 v8, v[6:7]')
    a('s_waitcnt lgkmcnt(0)')
    a('s_barrier')
    a('v_cmp_gt_u32 vcc, 32, v0')
    a('s_and_saveexec_b64 s[40:41], vcc')
    a(f's_cbranch_execz {L}_end')
    for i in range(8):
        a(f'ds_read_b64 v[{10+2*i}:{11+2*i}], v8 offset:{256*i}')
    a('s_waitcnt lgkmcnt(0)')
    for i in range(1, 8):
        a(f'v_add_f32 v10, v10, v{10+2*i}')
        a(f'v_add_f32 v11, v11, v{11+2*i}')
    a('s_lshl_b32 s29, s28, 8')
    a(f's_add_u32 s29, s29, {WS_CS1}')
    a('buffer_store_dwordx2 v[10:11], v8, s[20:23], s29 offen')
    a('s_endpgm')
    a.label(f'{L}_bias')
    srd(a, 24, 16, F * 2)
    srd(a, 28, 18, D * 2)
    a('v_lshlrev_b32 v5, 1, v0')
    a('v_lshlrev_b32 v6, 2, v0')
    for i in range(7):
        a(f'buffer_load_ushort v{8+i}, v5, s[24:27], 0 offen offset:{512*i}')
    for i in range(3):
        a(f'buffer_load_ushort v{16+i}, v5, s[28:31], 0 offen offset:{512*i}')
    a('s_waitcnt vmcnt(0)')
    for i in range(7):
        a(f'v_lshlrev_b32 v{8+i}, 16, v{8+i}')
        a(f's_mov_b32 s32, {WS_B1F + 1024*i}')
        a(f'buffer_store_dword v{8+i}, v6, s[20:23], s32 offen')
    for i in range(3):
        a(f'v_lshlrev_b32 v{16+i}, 16, v{16+i}')
        a(f's_mov_b32 s32, {WS_B2F + 1024*i}')
        a(f'buffer_store_dword v{16+i}, v6, s[20:23], s32 offen')
    a.label(f'{L}_end')
    a('s_endpgm')
    return a, descriptor(L, 80, 48), f'; @launch kernel={L} grid=({K0_GRID},1,1) block=(256,1,1) lds=4096'


def ring_gemm(a, nst, ACC, FA, FB, vdma, vrdA, vrdB, ssrd, sdma, sm0, swap, tag, pro=2, NSLOT=4, pre=0):
    pend = [(st, ks) for st in range(nst) for ks in range(4)]
    issued = []
    def dma_one():
        st, ks = pend.pop(0)
        slot = st % NSLOT
        a(f's_add_u32 m0, s{sm0}, {slot*32768 + ks*8192}')
        a(f's_add_u32 s{sdma+1}, s{sdma}, {st*2048 + ks*512}')
        a(f'buffer_load_dwordx4 v{vdma}, s[{ssrd}:{ssrd+3}], s{sdma+1} offen lds')
        issued.append(st)
    def wait_stage(st):
        n = 0
        for x in reversed(issued):
            if x <= st: break
            n += 1
        assert issued.count(st) == 4
        a(f's_waitcnt vmcnt({n})')
    def reads(st, ks, buf):
        slot = st % NSLOT
        off = slot * 32768 + ks * 8192
        hi = 1 if off >= 65536 else 0
        off -= hi * 65536
        a(f'ds_read_b128 {v(FA+4*buf,4)}, v{vrdA[hi]} offset:{off}')
        a(f'ds_read_b128 {v(FB+8*buf,4)}, v{vrdB[hi]} offset:{off}')
        a(f'ds_read_b128 {v(FB+8*buf+4,4)}, v{vrdB[hi]} offset:{off+1024}')
    def mfmas(buf, first):
        for j in range(2):
            A = v(FA+4*buf, 4); B = v(FB+8*buf+4*j, 4)
            c = '0' if first else v(ACC+16*j, 16)
            if swap: a(f'v_mfma_f32_32x32x16_bf16 {v(ACC+16*j,16)}, {B}, {A}, {c}')
            else: a(f'v_mfma_f32_32x32x16_bf16 {v(ACC+16*j,16)}, {A}, {B}, {c}')
    for _ in range(4 * pro): dma_one()
    stamp(a, 2)
    wait_stage(0)
    a('s_barrier')
    stamp(a, 3)
    reads(0, 0, 0)
    buf = 0
    for st in range(nst):
        for ks in range(4):
            if ks < 3:
                reads(st, ks + 1, buf ^ 1)
                a('s_waitcnt lgkmcnt(3)')
                mfmas(buf, st == 0 and ks == 0)
            else:
                if st + 1 < nst:
                    a('s_waitcnt lgkmcnt(0)')
                    wait_stage(st + 1)
                    a('s_barrier')
                    reads(st + 1, 0, buf ^ 1)
                else:
                    a('s_waitcnt lgkmcnt(0)')
                mfmas(buf, False)
            lim = st + NSLOT - 1 + (1 if ks == 3 else 0)
            nq = 2 if (pend and pend[0][0] < lim and st == 0) else 1
            for _ in range(nq):
                if pend and pend[0][0] <= lim: dma_one()
            buf ^= 1
    a('s_nop 15')
    stamp(a, 4)

def lane_swap23(a, dst, src, tmp):
    a(f'v_and_b32 v{dst}, 0x13, v{src}')
    a(f'v_and_b32 v{tmp}, 4, v{src}')
    a(f'v_lshl_or_b32 v{dst}, v{tmp}, 1, v{dst}')
    a(f'v_and_b32 v{tmp}, 8, v{src}')
    a(f'v_lshrrev_b32 v{tmp}, 1, v{tmp}')
    a(f'v_or_b32 v{dst}, v{dst}, v{tmp}')

QSCALE = (DH ** -0.5) * 1.4426950408889634

def k1():
    a = Asm()
    L = 'k1_kernel'
    kernel_begin(a, L)
    a('s_cmp_ge_u32 s2, 256')
    a(f's_cbranch_scc1 {L}_end')
    stamp(a, 0, True); stamp(a, 1)
    a(f's_load_dwordx2 s[4:5], s[0:1], {A_WS}')
    a('s_and_b32 s15, s2, 7')
    a('s_lshr_b32 s16, s2, 3')
    a('s_and_b32 s13, s15, 3')
    a('s_lshl_b32 s13, s13, 2')
    a('s_and_b32 s17, s16, 3')
    a('s_add_u32 s13, s13, s17')
    a('s_lshr_b32 s14, s15, 2')
    a('s_lshl_b32 s14, s14, 3')
    a('s_lshr_b32 s17, s16, 2')
    a('s_add_u32 s14, s14, s17')
    a('s_cmp_ge_u32 s14, 15')
    a(f's_cbranch_scc1 {L}_zero')
    a('v_lshrrev_b32 v1, 6, v0')
    a('v_and_b32 v2, 63, v0')
    a('v_readfirstlane_b32 s12, v1')
    a('v_and_b32 v3, 31, v2')
    a('v_lshrrev_b32 v4, 5, v2')
    lane_swap23(a, 5, 3, 6)
    a('s_waitcnt lgkmcnt(0)')
    srd(a, 8, 4, WS_END)
    a('s_cmp_lt_u32 s12, 4')
    a('s_cselect_b32 s17, 1, 0')
    a('s_cmp_lt_u32 s14, 10')
    a('s_cselect_b32 s18, s17, 0')
    a('s_cmp_eq_u32 s18, 1')
    a('s_cselect_b64 vcc, -1, 0')
    a('v_cndmask_b32 v6, v3, v5, vcc')
    a('v_lshrrev_b32 v7, 4, v6')
    a('s_movk_i32 s17, 20480')
    a('v_mul_lo_u32 v7, v7, s17')
    a('v_and_b32 v6, 15, v6')
    a('v_lshl_add_u32 v7, v6, 4, v7')
    a('v_lshl_add_u32 v7, v4, 8, v7')
    a('s_lshl_b32 s18, s14, 3')
    a('s_lshl_b32 s19, s12, 1')
    a('s_add_u32 s18, s18, s19')
    a('s_mul_i32 s18, s18, 20480')
    a(f's_add_u32 s18, s18, {WS_WQKV}')
    a('s_lshl_b32 s20, s13, 3')
    a('s_add_u32 s20, s20, s19')
    a('s_sub_u32 s20, s20, 8')
    a('s_mul_i32 s20, s20, 20480')
    a(f's_add_u32 s20, s20, {WS_XN}')
    a('s_cmp_lt_u32 s12, 4')
    a('s_cselect_b32 s20, s18, s20')
    a('s_lshl_b32 s22, s12, 10')
    a('s_and_b32 s23, s12, 3')
    a('s_lshr_b32 s24, s12, 2')
    a('v_lshlrev_b32 v8, 4, v2')
    a('s_lshl_b32 s17, s23, 10')
    a('v_add_u32 v9, s17, v8')
    a('v_add_u32 v10, 0x10000, v9')
    a('s_lshl_b32 s17, s24, 11')
    a('s_add_u32 s17, s17, 4096')
    a('v_add_u32 v11, s17, v8')
    a('v_add_u32 v12, 0x10000, v11')
    ACC, FA, FB = 32, 16, 64
    a('s_cmp_ge_u32 s14, 10')
    a(f's_cbranch_scc1 {L}_v')
    ring_gemm(a, 10, ACC, FA, FB, 7, (9, 10), (11, 12), 8, 20, 22, False, 'qk')
    a('s_cmp_ge_u32 s14, 5')
    a(f's_cbranch_scc1 {L}_noscale')
    a(f's_mov_b32 s17, {f2hex(QSCALE)}')
    for r in range(32):
        a(f'v_mul_f32 v{ACC+r}, s17, v{ACC+r}')
    a.label(f'{L}_noscale')
    for r in range(16):
        a(f'v_cvt_pk_bf16_f32 v{64+r}, v{ACC+2*r}, v{ACC+2*r+1}')
    a('v_lshrrev_b32 v13, 4, v3')
    a('s_movk_i32 s17, 20480')
    a('v_mul_lo_u32 v13, v13, s17')
    a('v_and_b32 v14, 15, v3')
    a('v_lshl_add_u32 v13, v14, 4, v13')
    a('v_lshl_add_u32 v13, v4, 8, v13')
    a('s_lshl_b32 s17, s13, 3')
    a('s_lshl_b32 s18, s24, 2')
    a('s_add_u32 s17, s17, s18')
    a('s_mul_i32 s17, s17, 20480')
    a(f's_mov_b32 s18, {WS_Q}')
    a(f's_mov_b32 s19, {WS_K - 80*256}')
    a('s_cmp_lt_u32 s14, 5')
    a('s_cselect_b32 s18, s18, s19')
    a('s_add_u32 s17, s17, s18')
    a('s_lshl_b32 s18, s14, 12')
    a('s_add_u32 s17, s17, s18')
    a('s_lshl_b32 s18, s23, 10')
    a('s_add_u32 s17, s17, s18')
    for j in range(2):
        a(f'buffer_store_dwordx4 {v(64+8*j,4)}, v13, s[8:11], s17 offen')
        a(f'buffer_store_dwordx4 {v(68+8*j,4)}, v13, s[8:11], s17 offen offset:512')
        if j == 0: a(f's_add_u32 s17, s17, {2*20480}')
    stamp(a, 5)
    if PROF: a('s_waitcnt vmcnt(0)')
    stamp(a, 6); stamp(a, 7, True)
    stamp_flush(a, 1, 8, 8, 12)
    a('s_endpgm')
    a.label(f'{L}_v')
    ring_gemm(a, 10, ACC, FA, FB, 7, (9, 10), (11, 12), 8, 20, 22, True, 'v')
    for r in range(16):
        a(f'v_cvt_pk_bf16_f32 v{64+r}, v{ACC+2*r}, v{ACC+2*r+1}')
    a('s_sub_u32 s17, s14, 10')
    a('s_lshl_b32 s17, s17, 7')
    a('s_lshl_b32 s18, s23, 5')
    a('s_add_u32 s17, s17, s18')
    a('v_add_u32 v13, s17, v3')
    a(f's_mov_b32 s17, {magic(20)}')
    a('v_mul_hi_u32 v14, v13, s17')
    a('v_mul_u32_u24 v15, 20, v14')
    a('v_sub_u32 v15, v13, v15')
    a('s_mov_b32 s17, 81920')
    a('v_mul_lo_u32 v14, v14, s17')
    a('v_lshl_add_u32 v14, v15, 4, v14')
    a('v_mul_u32_u24 v15, 320, v4')
    a('v_add_u32 v14, v14, v15')
    a('s_lshl_b32 s17, s13, 3')
    a('s_lshl_b32 s18, s24, 2')
    a('s_add_u32 s17, s17, s18')
    a('s_mul_i32 s17, s17, 640')
    a(f's_add_u32 s17, s17, {WS_VT}')
    for j in range(2):
        for gg in range(2):
            a(f'buffer_store_dwordx4 {v(64+8*j+4*gg,4)}, v14, s[8:11], s17 offen offset:{(2*j+gg)*640}')
    stamp(a, 5)
    if PROF: a('s_waitcnt vmcnt(0)')
    stamp(a, 6); stamp(a, 7, True)
    stamp_flush(a, 1, 8, 8, 12)
    a('s_endpgm')
    a.label(f'{L}_zero')
    a('s_waitcnt lgkmcnt(0)')
    srd(a, 8, 4, WS_END)
    a('v_lshlrev_b32 v1, 4, v0')
    for r in range(4, 8): a(f'v_mov_b32 v{r}, 0')
    a(f's_mov_b32 s17, {WS_FLAG}')
    a('buffer_store_dwordx4 v[4:7], v1, s[8:11], s17 offen')
    a.label(f'{L}_end')
    a('s_endpgm')
    return a, descriptor(L, 96, 102), f'; @launch kernel={L} grid=(256,1,1) block=(512,1,1) lds=131072'


AT_SLOT = 14336
class AR:
    QA = 16
    QC = 24
    KA = 28
    KC = 36
    VV = 40
    S = 56
    P = 88
    O = 104
    T = 136

def attn_setup(a, s_h, s_r, s_w, ssrd):
    a(f's_lshr_b32 s40, s{s_h}, 1')
    a(f's_and_b32 s41, s{s_h}, 1')
    a('s_mul_i32 s42, s40, 5')
    a('s_add_u32 s43, s42, 2')
    a('s_mul_i32 s44, s41, 3')
    a('s_add_u32 s42, s42, s44')
    a(f's_and_b32 s45, s{s_w}, 3')
    a(f's_lshr_b32 s46, s{s_w}, 2')
    a('v_lshrrev_b32 v5, 4, v3')
    a('s_movk_i32 s47, 20480')
    a('v_mul_lo_u32 v5, v5, s47')
    a('v_and_b32 v6, 15, v3')
    a('v_lshl_add_u32 v5, v6, 4, v5')
    a('v_lshl_add_u32 v7, v4, 8, v5')
    a(f's_lshl_b32 s47, s{s_r}, 4')
    a('s_lshl_b32 s48, s45, 2')
    a('s_add_u32 s47, s47, s48')
    a('s_mul_i32 s47, s47, 20480')
    a(f's_add_u32 s48, s47, {WS_Q}')
    a('s_lshl_b32 s49, s42, 8')
    a('s_add_u32 s49, s49, s48')
    a('s_lshl_b32 s50, s43, 8')
    a('s_add_u32 s50, s50, s48')
    a('s_lshl_b32 s51, s41, 3')
    a('s_add_u32 s50, s50, s51')
    for j in range(2):
        a(f'buffer_load_dwordx4 {v(AR.QA+4*j,4)}, v7, s[{ssrd}:{ssrd+3}], s49 offen')
        a(f'buffer_load_dwordx2 {v(AR.QC+2*j,2)}, v5, s[{ssrd}:{ssrd+3}], s50 offen')
        if j == 0:
            a(f's_add_u32 s49, s49, {2*20480}')
            a(f's_add_u32 s50, s50, {2*20480}')
    lane_swap23(a, 8, 3, 9)
    a('v_cmp_gt_u32 vcc, 16, v3')
    a('v_cndmask_b32 v8, v3, v8, vcc')
    a('s_lshl_b32 s51, s41, 2')
    a('v_add_u32 v8, s51, v8')
    a('v_subrev_u32 v9, 20, v8')
    a('v_cmp_le_u32 vcc, 20, v8')
    a('v_cndmask_b32 v8, v8, v9, vcc')
    a('v_mul_u32_u24 v9, 320, v4')
    a('v_lshl_add_u32 v8, v8, 4, v9')
    a(f's_mul_i32 s52, s{s_h}, 81920')
    a(f's_mul_i32 s53, s{s_w}, 640')
    a('s_add_u32 s52, s52, s53')
    a(f's_add_u32 s52, s52, {WS_VT}')
    a(f's_cmp_lt_u32 s{s_w}, 4')
    a(f's_cbranch_scc0 .Lat_kc')
    a('v_mov_b32 v9, v7')
    a(f's_lshl_b32 s53, s{s_w}, 1')
    a('s_mul_i32 s53, s53, 20480')
    a('s_lshl_b32 s54, s42, 8')
    a('s_add_u32 s53, s53, s54')
    a(f's_lshl_b32 s55, s{s_w}, 10')
    a('s_branch .Lat_kd')
    a.label('.Lat_kc')
    a('v_lshrrev_b32 v9, 4, v2')
    a('s_movk_i32 s53, 20480')
    a('v_mul_lo_u32 v9, v9, s53')
    a('v_lshl_add_u32 v9, v6, 4, v9')
    a(f's_and_b32 s55, s{s_w}, 1')
    a('s_lshl_b32 s53, s55, 2')
    a('s_mul_i32 s53, s53, 20480')
    a('s_lshl_b32 s54, s43, 8')
    a('s_add_u32 s53, s53, s54')
    a('s_lshl_b32 s55, s55, 10')
    a('s_add_u32 s55, s55, 4096')
    a.label('.Lat_kd')
    a(f's_add_u32 s53, s53, {WS_K}')
    a(f's_lshl_b32 s54, s{s_w}, 10')
    a('s_add_u32 s54, s54, 6144')
    a('v_lshlrev_b32 v10, 4, v2')
    a('s_lshl_b32 s56, s46, 11')
    a('v_add_u32 v11, s56, v10')
    a('v_lshlrev_b32 v12, 4, v3')
    a('s_lshl_b32 s56, s46, 10')
    a('s_lshl_b32 s57, s41, 3')
    a('s_add_u32 s56, s56, s57')
    a('s_add_u32 s56, s56, 4096')
    a('v_add_u32 v12, s56, v12')
    a('s_lshl_b32 s56, s46, 12')
    a('s_add_u32 s56, s56, 6144')
    a('v_add_u32 v13, s56, v10')
    a('v_mov_b32 v132, 0x3f803f80')
    for r in (133, 134, 135): a(f'v_mov_b32 v{r}, v132')
    a('v_add_u32 v14, s54, v10')
    a('s_mov_b32 s58, 0xfff00000')
    a('s_mov_b32 s59, 0xfff00000')
    a('s_mov_b64 exec, s[58:59]')
    for sl in range(4):
        a(f'ds_write_b128 v14, v[132:135] offset:{sl*AT_SLOT}')
    a('s_mov_b64 exec, -1')
    a('s_mov_b32 s58, 0x000fffff')
    a('s_mov_b32 s59, 0x000fffff')

def attn_dma(a, slot, ssrd):
    a(f's_add_u32 m0, s54, {slot*AT_SLOT}')
    a('s_mov_b64 exec, s[58:59]')
    a(f'buffer_load_dwordx4 v8, s[{ssrd}:{ssrd+3}], s52 offen lds')
    a('s_mov_b64 exec, -1')
    a(f's_add_u32 m0, s55, {slot*AT_SLOT}')
    a('s_add_u32 s52, s52, 5120')
    a(f'buffer_load_dwordx4 v9, s[{ssrd}:{ssrd+3}], s53 offen lds')
    a('s_add_u32 s53, s53, 163840')

def attn_dma_parts(slot, ssrd):
    NT = 'nt ' if 'nt' in EXP else ''
    return ([f's_add_u32 m0, s54, {slot*AT_SLOT}', 's_mov_b64 exec, s[58:59]',
             f'buffer_load_dwordx4 v8, s[{ssrd}:{ssrd+3}], s52 offen {NT}lds', 's_mov_b64 exec, -1', 's_add_u32 s52, s52, 5120'],
            [f's_add_u32 m0, s55, {slot*AT_SLOT}', 's_nop 0',
             f'buffer_load_dwordx4 v9, s[{ssrd}:{ssrd+3}], s53 offen {NT}lds', 's_add_u32 s53, s53, 163840'])

def attn_main(a, ssrd, tag):
    R = AR
    def kreads(slot, t, buf):
        return [f'ds_read_b128 {v(R.KA+4*buf,4)}, v11 offset:{slot*AT_SLOT + t*1024}',
                f'ds_read_b64 {v(R.KC+2*buf,2)}, v12 offset:{slot*AT_SLOT + t*512}']
    def vreads(slot, t, buf):
        return [f'ds_read_b128 {v(R.VV+8*buf,4)}, v13 offset:{slot*AT_SLOT + t*2048}',
                f'ds_read_b128 {v(R.VV+8*buf+4,4)}, v13 offset:{slot*AT_SLOT + t*2048 + 1024}']
    def m1(sb, kb, j): return f'v_mfma_f32_32x32x16_bf16 {v(R.S+16*sb,16)}, {v(R.KA+4*kb,4)}, {v(R.QA+4*j,4)}, 0'
    def m2(sb, kb, j): return f'v_mfma_f32_32x32x8bf16_1k {v(R.S+16*sb,16)}, {v(R.KC+2*kb,2)}, {v(R.QC+2*j,2)}, {v(R.S+16*sb,16)}'
    def m3(j, vb, pb): return f'v_mfma_f32_32x32x16_bf16 {v(R.O+16*j,16)}, {v(R.VV+8*vb,4)}, {v(R.P+8*pb,4)}, {v(R.O+16*j,16)}'
    def m4(j, vb, pb): return f'v_mfma_f32_32x32x16_bf16 {v(R.O+16*j,16)}, {v(R.VV+8*vb+4,4)}, {v(R.P+8*pb+4,4)}, {v(R.O+16*j,16)}'
    for r in range(32): a(f'v_mov_b32 v{R.O+r}, 0')
    for r in range(16): a(f'v_mov_b32 v{R.P+r}, 0')
    for r in range(16): a(f'v_mov_b32 v{R.VV+r}, 0')
    attn_dma(a, 0, ssrd)
    if 'pro3' in EXP:
        for st in range(1, 3): attn_dma(a, st, ssrd)
        a('s_waitcnt vmcnt(4)')
    else:
        a('s_waitcnt vmcnt(0)')
        for st in range(1, 3): attn_dma(a, st, ssrd)
    a('v_cmp_gt_u32 vcc, 32, v2')
    for r in range(4): a(f'v_cndmask_b32 v{R.QC+r}, 0, v{R.QC+r}, vcc')
    a('s_waitcnt lgkmcnt(0)')
    a('s_barrier')
    for x in kreads(0, 0, 0): a(x)
    a('s_waitcnt lgkmcnt(0)')
    a(m1(0, 0, 0)); a(m2(0, 0, 0))
    a('s_mov_b32 s60, 4')
    if 'barstamp' not in EXP: stamp(a, 7)
    if 'align' in EXP: a.raw('.p2align 6')
    a.label(f'.Lat_loop{tag}')
    for st in range(4):
        for u in range(4):
            n = st * 4 + u
            T = n >> 1; j = n & 1
            sb = n & 1; Tn = (n + 1) >> 1; jn = (n + 1) & 1
            Tp = (n - 1) >> 1; jp = (n - 1) & 1
            if 'prio' in EXP: a(f's_setprio {3-u}')
            extras = {}
            if u == 2 and 'nobar' not in EXP:
                if 'barstamp' in EXP: stamp(a, 7 + 2*st)
                a('s_waitcnt vmcnt(2)')
                a('s_barrier')
                if 'barstamp' in EXP: stamp(a, 8 + 2*st)
            if u == 3 and 'nodma' not in EXP:
                d = attn_dma_parts((st + 3) % 4, ssrd)
                extras.setdefault(3, []).extend(d[0])
                extras.setdefault(15, []).extend(d[1])
            if n % 2 == 0:
                T1 = T + 1
                if 'nods' not in EXP:
                    kr = kreads((T1 >> 1) % 4, T1 & 1, T1 & 1)
                    vr = vreads((T >> 1) % 4, T & 1, T & 1)
                    for pos, x in zip((2, 6, 11, 16), kr + vr): extras.setdefault(pos, []).append(x)
            else:
                a('s_waitcnt lgkmcnt(0)')
            S = R.S + 16 * sb
            ex = [f'v_exp_f32 v{S+i}, v{S+i}' for i in range(16)]
            cv = [f'v_cvt_pk_bf16_f32 v{R.P+8*sb+i}, v{S+2*i}, v{S+2*i+1}' for i in range(8)]
            M = [m1(sb ^ 1, Tn & 1, jn), m2(sb ^ 1, Tn & 1, jn), m3(jp, Tp & 1, (n - 1) & 1), m4(jp, Tp & 1, (n - 1) & 1)]
            seq = [M[0], ex[0], ex[1], ex[2], ex[3], cv[0], ex[4], M[1], ex[5], cv[1], ex[6], ex[7], cv[2],
                   M[2], ex[8], ex[9], cv[3], ex[10], ex[11], cv[4], M[3], ex[12], ex[13], cv[5], ex[14], ex[15], cv[6], cv[7]]
            for i, x in enumerate(seq):
                for y in extras.get(i, []): a(y)
                a(x)
    a('s_sub_u32 s60, s60, 1')
    a('s_cmp_lg_u32 s60, 0')
    a(f's_cbranch_scc1 .Lat_loop{tag}')
    a(m3(1, 1, 1)); a(m4(1, 1, 1))

def attn_stage_wrap_note(): pass

def k2():
    a = Asm()
    L = 'k2_kernel'
    kernel_begin(a, L)
    a('s_cmp_ge_u32 s2, 256')
    a(f's_cbranch_scc1 {L}_end')
    stamp(a, 0, True); stamp(a, 1)
    a(f's_load_dwordx2 s[4:5], s[0:1], {A_WS}')
    a('s_and_b32 s13, s2, 7')
    a('s_lshr_b32 s14, s2, 3')
    a('v_lshrrev_b32 v1, 6, v0')
    a('v_and_b32 v2, 63, v0')
    a('v_readfirstlane_b32 s12, v1')
    a('v_and_b32 v3, 31, v2')
    a('v_lshrrev_b32 v4, 5, v2')
    a('s_waitcnt lgkmcnt(0)')
    srd(a, 8, 4, WS_END)
    attn_setup(a, 14, 13, 12, 8)
    stamp(a, 2)
    attn_main(a, 8, '')
    stamp(a, 3)
    R = AR
    a('s_waitcnt vmcnt(0)')
    a('s_barrier')
    a('s_cmp_eq_u32 s46, 0')
    a('s_cbranch_scc1 .Lat_noswap')
    a('s_nop 7')
    for r in range(12): a(f'v_swap_b32 v{R.O+r}, v{R.O+16+r}')
    a.label('.Lat_noswap')
    a('s_nop 7')
    a(f's_mul_i32 s61, s12, 3072')
    a('v_add_u32 v14, s61, v10')
    for i in range(3): a(f'ds_write_b128 v14, {v(R.O+16+4*i,4)} offset:{1024*i}')
    a('s_xor_b32 s61, s12, 4')
    a('s_mul_i32 s61, s61, 3072')
    a('v_add_u32 v14, s61, v10')
    a('s_waitcnt lgkmcnt(0)')
    a('s_barrier')
    for i in range(3): a(f'ds_read_b128 {v(R.T+4*i,4)}, v14 offset:{1024*i}')
    a('s_waitcnt lgkmcnt(0)')
    for r in range(12): a(f'v_add_f32 v{R.O+r}, v{R.O+r}, v{R.T+r}')
    a(f'v_mov_b32 v{R.T}, v{R.O+8}')
    a(f'v_mov_b32 v{R.T+1}, v{R.O+8}')
    a(f'v_permlane32_swap_b32 v{R.T}, v{R.T+1}')
    a(f'v_rcp_f32 v{R.T+1}, v{R.T+1}')
    for r in range(12): a(f'v_mul_f32 v{R.O+r}, v{R.O+r}, v{R.T+1}')
    for i in range(6): a(f'v_cvt_pk_bf16_f32 v{R.T+4+i}, v{R.O+2*i}, v{R.O+2*i+1}')
    a('s_mul_i32 s61, s46, 40960')
    a('s_add_u32 s61, s61, s47')
    a(f's_add_u32 s61, s61, {WS_O}')
    a('s_lshl_b32 s62, s42, 8')
    a('s_add_u32 s62, s62, s61')
    a(f'buffer_store_dwordx4 {v(R.T+4,4)}, v7, s[8:11], s62 offen')
    a('s_lshl_b32 s62, s43, 8')
    a('s_add_u32 s62, s62, s61')
    a('s_lshl_b32 s63, s41, 3')
    a('s_add_u32 s62, s62, s63')
    a('s_mov_b64 exec, 0xffffffff')
    a(f'buffer_store_dwordx2 {v(R.T+8,2)}, v5, s[8:11], s62 offen')
    a('s_mov_b64 exec, -1')
    stamp(a, 4)
    if PROF: a('s_waitcnt vmcnt(0)')
    stamp(a, 5); stamp(a, 6, True)
    stamp_flush(a, 2, 15, 8, 12)
    a.label(f'{L}_end')
    a('s_endpgm')
    return a, descriptor(L, 160, 102), f'; @launch kernel={L} grid=(256,1,1) block=(512,1,1) lds={4*AT_SLOT}'


def common_prologue(a, L, kidx):
    a('s_cmp_ge_u32 s2, 256')
    a(f's_cbranch_scc1 {L}_end')
    stamp(a, 0, True); stamp(a, 1)
    a(f's_load_dwordx2 s[4:5], s[0:1], {A_WS}')
    a(f's_load_dwordx2 s[6:7], s[0:1], {A_X}')
    a(f's_load_dwordx2 s[24:25], s[0:1], {A_OUT}')
    a('s_and_b32 s13, s2, 7')
    a('s_lshr_b32 s14, s2, 3')
    a('v_lshrrev_b32 v1, 6, v0')
    a('v_and_b32 v2, 63, v0')
    a('v_readfirstlane_b32 s12, v1')
    a('v_and_b32 v3, 31, v2')
    a('v_lshrrev_b32 v4, 5, v2')
    a('v_lshlrev_b32 v10, 4, v2')
    a('s_waitcnt lgkmcnt(0)')
    srd(a, 8, 4, WS_END)

def ksplit_reduce(a, ACC, T, sw, sth, skq, vl16, vtmp):
    a(f's_lshl_b32 s40, s{skq}, 1')
    a(f's_add_u32 s40, s40, s{sth}')
    a('s_mul_i32 s40, s40, 10240')
    a(f'v_add_u32 v{vtmp}, s40, v{vl16}')
    for j in range(2):
        for ft in range(5):
            a(f'ds_write_b128 v{vtmp}, {v(ACC+4*(2*ft+j),4)} offset:{(j*5+ft)*1024}')
    a('s_waitcnt lgkmcnt(0)')
    a('s_barrier')

def ksplit_gather(a, T, sw, vl16, vtmp):
    a(f's_mul_i32 s40, s{sw}, 5120')
    a(f'v_add_u32 v{vtmp}, s40, v{vl16}')
    for kq in range(4):
        if kq == 2: a(f'v_add_u32 v{vtmp}, 40960, v{vtmp}')
        for ft in range(5):
            a(f'ds_read_b128 {v(T+20*kq+4*ft,4)}, v{vtmp} offset:{(kq&1)*20480 + ft*1024}')
    a('s_waitcnt lgkmcnt(0)')
    for r in range(20):
        a(f'v_add_f32 v{T+r}, v{T+r}, v{T+20+r}')
        a(f'v_add_f32 v{T+40+r}, v{T+40+r}, v{T+60+r}')
    for r in range(20):
        a(f'v_add_f32 v{T+r}, v{T+r}, v{T+40+r}')

def sum_q4(a, x, t1, t2):
    a(f'v_mov_b32 v{t1}, v{x}'); a(f'v_mov_b32 v{t2}, v{x}')
    a(f'v_permlane16_swap_b32 v{t1}, v{t2}')
    a(f'v_add_f32 v{x}, v{t1}, v{t2}')
    a(f'v_mov_b32 v{t1}, v{x}'); a(f'v_mov_b32 v{t2}, v{x}')
    a(f'v_permlane32_swap_b32 v{t1}, v{t2}')
    a(f'v_add_f32 v{x}, v{t1}, v{t2}')

def k3():
    a = Asm()
    L = 'k3_kernel'
    kernel_begin(a, L)
    common_prologue(a, L, 3)
    srd(a, 16, 6, S * D * 2)
    a('s_and_b32 s20, s14, 3')
    a('s_lshr_b32 s21, s14, 2')
    a('s_lshr_b32 s22, s12, 2')
    a('s_and_b32 s23, s12, 3')
    a('s_mul_i32 s26, s21, 102400')
    a(f's_add_u32 s26, s26, {WS_WO}')
    a('s_lshl_b32 s27, s12, 10')
    a('s_add_u32 s26, s26, s27')
    for i in range(13):
        if i == 12:
            a('s_cmp_ge_u32 s12, 4')
            a(f's_cbranch_scc1 {L}_nod')
        a(f's_add_u32 m0, s27, {i*8192}')
        a(f's_add_u32 s28, s26, {i*8192}')
        a('buffer_load_dwordx4 v10, s[8:11], s28 offen lds')
    a.label(f'{L}_nod')
    BF, AF, ACC, T, XR = 16, 56, 96, 136, 216
    a('s_lshl_b32 s29, s13, 4')
    a('s_lshl_b32 s30, s20, 2')
    a('s_add_u32 s29, s29, s30')
    a('s_lshl_b32 s30, s22, 1')
    a('s_add_u32 s30, s30, s29')
    a('s_mul_i32 s30, s30, 20480')
    a('s_mul_i32 s31, s23, 5120')
    a('s_add_u32 s30, s30, s31')
    a(f's_add_u32 s30, s30, {WS_O}')
    for j in range(2):
        for i in range(5):
            a(f's_add_u32 s31, s30, {j*20480 + i*1024}')
            a(f'buffer_load_dwordx4 {v(BF+4*(5*j+i),4)}, v10, s[8:11], s31 offen')
    a('v_and_b32 v5, 15, v2')
    a('v_lshrrev_b32 v6, 4, v2')
    a('s_and_b32 s31, s12, 3')
    a('s_add_u32 s31, s31, s29')
    a('s_lshl_b32 s31, s31, 4')
    a('v_add_u32 v7, s31, v5')
    a('s_movk_i32 s32, 1280')
    a('v_mul_lo_u32 v7, v7, s32')
    a('v_lshl_add_u32 v7, v6, 3, v7')
    a('s_mul_i32 s32, s21, 160')
    for ft in range(5):
        a(f'buffer_load_dwordx2 {v(XR+2*ft,2)}, v7, s[16:19], s32 offen offset:{32*ft}')
    stamp(a, 2)
    a('s_waitcnt vmcnt(0)')
    a('s_barrier')
    stamp(a, 3)
    a('s_mul_i32 s33, s23, 5120')
    a('v_add_u32 v8, s33, v10')
    a('v_add_u32 v9, 0x10000, v8')
    def areads(i, buf):
        for ft in range(5):
            off = ft * 20480 + i * 1024
            base = 8
            if off >= 65536: off -= 65536; base = 9
            a(f'ds_read_b128 {v(AF+20*buf+4*ft,4)}, v{base} offset:{off}')
    areads(0, 0)
    for i in range(5):
        if i < 4:
            areads(i + 1, (i + 1) & 1)
            a('s_waitcnt lgkmcnt(5)')
        else:
            a('s_waitcnt lgkmcnt(0)')
        for ft in range(5):
            for j in range(2):
                acc = v(ACC + 4 * (2 * ft + j), 4)
                a(f'v_mfma_f32_16x16x32_bf16 {acc}, {v(AF+20*(i&1)+4*ft,4)}, {v(BF+4*(5*j+i),4)}, {"0" if i == 0 else acc}')
    stamp(a, 4)
    a('s_barrier')
    ksplit_reduce(a, ACC, T, 12, 22, 23, 10, 11)
    a('s_cmp_ge_u32 s12, 4')
    a(f's_cbranch_scc1 {L}_end')
    ksplit_gather(a, T, 12, 10, 11)
    for ft in range(5):
        for h2 in range(2):
            a(f'v_lshlrev_b32 v{T+20}, 16, v{XR+2*ft+h2}')
            a(f'v_and_b32 v{T+21}, 0xffff0000, v{XR+2*ft+h2}')
            a(f'v_add_f32 v{T+4*ft+2*h2}, v{T+4*ft+2*h2}, v{T+20}')
            a(f'v_add_f32 v{T+4*ft+2*h2+1}, v{T+4*ft+2*h2+1}, v{T+21}')
    a(f'v_mov_b32 v{T+20}, v{T}')
    a(f'v_mul_f32 v{T+21}, v{T}, v{T}')
    for r in range(1, 20):
        a(f'v_add_f32 v{T+20}, v{T+20}, v{T+r}')
        a(f'v_fmac_f32 v{T+21}, v{T+r}, v{T+r}')
    sum_q4(a, T+20, T+22, T+23)
    sum_q4(a, T+21, T+22, T+23)
    for i in range(10):
        a(f'v_cvt_pk_bf16_f32 v{T+24+i}, v{T+2*i}, v{T+2*i+1}')
    a('s_add_u32 s33, s29, s12')
    a('s_mul_i32 s34, s33, 20480')
    a('s_mul_i32 s35, s21, 2560')
    a('s_add_u32 s34, s34, s35')
    a(f's_add_u32 s34, s34, {WS_H}')
    a('v_lshrrev_b32 v11, 1, v6')
    a('v_lshlrev_b32 v11, 8, v11')
    a('v_lshl_add_u32 v11, v5, 4, v11')
    a('v_and_b32 v12, 1, v6')
    a('v_lshl_add_u32 v11, v12, 3, v11')
    for ft in range(5):
        a(f'buffer_store_dwordx2 {v(T+24+2*ft,2)}, v11, s[8:11], s34 offen offset:{512*ft}')
    a('s_lshl_b32 s33, s33, 10')
    a('s_lshl_b32 s35, s21, 3')
    a('s_add_u32 s33, s33, s35')
    a(f's_add_u32 s33, s33, {WS_ST2}')
    a('v_lshlrev_b32 v12, 6, v5')
    a('s_mov_b64 exec, 0xffff')
    a(f'buffer_store_dwordx2 {v(T+20,2)}, v12, s[8:11], s33 offen')
    a('s_mov_b64 exec, -1')
    stamp(a, 5)
    if PROF: a('s_waitcnt vmcnt(0)')
    stamp(a, 6, True)
    stamp_flush(a, 3, 7, 8, 12)
    a.label(f'{L}_end')
    a('s_endpgm')
    return a, descriptor(L, 232, 102), f'; @launch kernel={L} grid=(256,1,1) block=(512,1,1) lds=102400'

def k4():
    a = Asm()
    L = 'k4_kernel'
    kernel_begin(a, L)
    common_prologue(a, L, 4)
    a('s_cmp_ge_u32 s14, 28')
    a(f's_cbranch_scc1 {L}_end')
    a('s_and_b32 s13, s14, 1')
    a('s_and_b32 s15, s2, 7')
    a('s_lshl_b32 s15, s15, 1')
    a('s_add_u32 s13, s13, s15')
    a('s_lshr_b32 s14, s14, 1')
    lane_swap23(a, 5, 3, 6)
    a('s_cmp_lt_u32 s12, 4')
    a('s_cselect_b64 vcc, -1, 0')
    a('v_cndmask_b32 v6, v3, v5, vcc')
    a('v_lshrrev_b32 v7, 4, v6')
    a('s_movk_i32 s17, 20480')
    a('v_mul_lo_u32 v7, v7, s17')
    a('v_and_b32 v6, 15, v6')
    a('v_lshl_add_u32 v7, v6, 4, v7')
    a('v_lshl_add_u32 v7, v4, 8, v7')
    a('s_lshl_b32 s18, s14, 3')
    a('s_lshl_b32 s19, s12, 1')
    a('s_add_u32 s18, s18, s19')
    a('s_mul_i32 s18, s18, 20480')
    a(f's_add_u32 s18, s18, {WS_W1}')
    a('s_lshl_b32 s20, s13, 3')
    a('s_add_u32 s20, s20, s19')
    a('s_sub_u32 s20, s20, 8')
    a('s_mul_i32 s20, s20, 20480')
    a(f's_add_u32 s20, s20, {WS_H}')
    a('s_cmp_lt_u32 s12, 4')
    a('s_cselect_b32 s20, s18, s20')
    a('s_lshl_b32 s22, s12, 10')
    a('s_and_b32 s23, s12, 3')
    a('s_lshr_b32 s26, s12, 2')
    a('s_lshl_b32 s17, s23, 10')
    a('v_add_u32 v9, s17, v10')
    a('v_add_u32 v11, 0x10000, v9')
    a('s_lshl_b32 s17, s26, 11')
    a('s_add_u32 s17, s17, 4096')
    a('v_add_u32 v12, s17, v10')
    a('v_add_u32 v13, 0x10000, v12')
    ST, CS, B1 = 96, 128, 144
    a('s_lshl_b32 s27, s13, 7')
    a('s_lshl_b32 s28, s26, 6')
    a('s_add_u32 s27, s27, s28')
    a('v_add_u32 v14, s27, v3')
    a('v_lshlrev_b32 v14, 6, v14')
    a(f's_mov_b32 s28, {WS_ST2}')
    for j in range(2):
        for q in range(4):
            a(f'buffer_load_dwordx4 {v(ST+16*j+4*q,4)}, v14, s[8:11], s28 offen offset:{j*2048 + 16*q}')
    a('s_lshl_b32 s29, s14, 7')
    a('s_lshl_b32 s30, s23, 5')
    a('s_add_u32 s29, s29, s30')
    a('s_lshl_b32 s29, s29, 2')
    a('v_lshlrev_b32 v15, 5, v4')
    a(f's_add_u32 s30, s29, {WS_CS1}')
    a(f's_add_u32 s31, s29, {WS_B1F}')
    for q, off in enumerate((0, 16, 64, 80)):
        a(f'buffer_load_dwordx4 {v(CS+4*q,4)}, v15, s[8:11], s30 offen offset:{off}')
        a(f'buffer_load_dwordx4 {v(B1+4*q,4)}, v15, s[8:11], s31 offen offset:{off}')
    ACC, FA, FB = 32, 16, 64
    ring_gemm(a, 10, ACC, FA, FB, 7, (9, 11), (12, 13), 8, 20, 22, False, 'f1', pre=16)
    for j in range(2):
        b = ST + 16 * j
        for q in range(1, 8):
            a(f'v_add_f32 v{b}, v{b}, v{b+2*q}')
            a(f'v_add_f32 v{b+1}, v{b+1}, v{b+2*q+1}')
        a(f'v_mul_f32 v{b}, {f2hex(1.0/640)}, v{b}')
        a(f'v_mul_f32 v{b+1}, {f2hex(1.0/640)}, v{b+1}')
        a(f'v_fma_f32 v{b+1}, -v{b}, v{b}, v{b+1}')
        a(f'v_add_f32 v{b+1}, 0x3727c5ac, v{b+1}')
        a(f'v_rsq_f32 v{b+1}, v{b+1}')
        a(f'v_mul_f32 v{b}, v{b}, v{b+1}')
    for j in range(2):
        b = ST + 16 * j
        for r in range(16):
            a(f'v_fma_f32 v{b+2}, -v{b}, v{CS+r}, v{B1+r}')
            a(f'v_fma_f32 v{ACC+16*j+r}, v{b+1}, v{ACC+16*j+r}, v{b+2}')
            a(f'v_max_f32 v{ACC+16*j+r}, 0, v{ACC+16*j+r}')
            a(f'v_mul_f32 v{ACC+16*j+r}, v{ACC+16*j+r}, v{ACC+16*j+r}')
    for r in range(16):
        a(f'v_cvt_pk_bf16_f32 v{64+r}, v{ACC+2*r}, v{ACC+2*r+1}')
    a('s_lshl_b32 s17, s14, 2')
    a('s_add_u32 s17, s17, s23')
    a('s_cmp_ge_u32 s17, 54')
    a(f's_cbranch_scc1 {L}_end')
    a('v_lshrrev_b32 v13, 4, v3')
    a('s_mov_b32 s18, 55296')
    a('v_mul_lo_u32 v13, v13, s18')
    a('v_and_b32 v14, 15, v3')
    a('v_lshl_add_u32 v13, v14, 4, v13')
    a('v_lshl_add_u32 v13, v4, 8, v13')
    a('s_lshr_b32 s18, s27, 4')
    a('s_mul_i32 s18, s18, 55296')
    a('s_lshl_b32 s17, s17, 10')
    a('s_add_u32 s17, s17, s18')
    a(f's_add_u32 s17, s17, {WS_G}')
    for j in range(2):
        a(f'buffer_store_dwordx4 {v(64+8*j,4)}, v13, s[8:11], s17 offen')
        a(f'buffer_store_dwordx4 {v(68+8*j,4)}, v13, s[8:11], s17 offen offset:512')
        if j == 0: a(f's_add_u32 s17, s17, {2*55296}')
    stamp(a, 5)
    if PROF: a('s_waitcnt vmcnt(0)')
    stamp(a, 6, True)
    stamp_flush(a, 4, 7, 8, 12)
    a.label(f'{L}_end')
    a('s_endpgm')
    return a, descriptor(L, 160, 102), f'; @launch kernel={L} grid=(256,1,1) block=(512,1,1) lds=131072'

F2_KS = (14, 14, 13, 13)
F2_K0 = (0, 14, 28, 41)
def k5():
    a = Asm()
    L = 'k5_kernel'
    kernel_begin(a, L)
    common_prologue(a, L, 5)
    srd(a, 16, 24, S * D * 2)
    a('s_and_b32 s20, s14, 3')
    a('s_lshr_b32 s21, s14, 2')
    a('s_lshr_b32 s22, s12, 2')
    a('s_and_b32 s23, s12, 3')
    a('s_mul_i32 s26, s23, 14')
    a('s_cmp_eq_u32 s23, 3')
    a('s_cselect_b32 s27, 1, 0')
    a('s_sub_u32 s26, s26, s27')
    a('s_mul_i32 s28, s21, 276480')
    a(f's_add_u32 s28, s28, {WS_W2}')
    a('s_add_u32 s29, s26, s22')
    a('s_lshl_b32 s29, s29, 10')
    a('s_add_u32 s28, s28, s29')
    a('s_lshl_b32 s29, s23, 1')
    a('s_add_u32 s29, s29, s22')
    a('s_mul_i32 s29, s29, 5120')
    NST = 7
    issued = []
    def dma_stage(st):
        slot = st % 3
        for ft in range(5):
            a(f's_add_u32 m0, s29, {slot*40960 + ft*1024}')
            a(f's_add_u32 s30, s28, {st*2048 + ft*55296}')
            a('buffer_load_dwordx4 v10, s[8:11], s30 offen lds')
            issued.append(('w', st))
    BF, ACC, AF, T = 16, 128, 168, 16
    dma_stage(0)
    a('s_lshl_b32 s31, s13, 4')
    a('s_lshl_b32 s32, s20, 2')
    a('s_add_u32 s31, s31, s32')
    a('s_lshl_b32 s32, s22, 1')
    a('s_add_u32 s32, s32, s31')
    a('s_mul_i32 s32, s32, 55296')
    a('s_lshl_b32 s33, s26, 10')
    a('s_add_u32 s32, s32, s33')
    a(f's_add_u32 s32, s32, {WS_G}')
    def bload(i):
        for j in range(2):
            a(f's_add_u32 s33, s32, {j*55296 + i*1024}')
            a(f'buffer_load_dwordx4 {v(BF+8*i+4*j,4)}, v10, s[8:11], s33 offen')
            issued.append(('b', i))
    for i in range(4): bload(i)
    dma_stage(1)
    for i in range(4, 8): bload(i)
    dma_stage(2)
    for i in range(8, 14): bload(i)
    def wait_for(pred):
        n = 0
        for x in reversed(issued):
            if pred(x): break
            n += 1
        a(f's_waitcnt vmcnt({min(n, 63)})')
    a('s_mul_i32 s34, s23, 10240')
    a('v_add_u32 v8, s34, v10')
    a('v_add_u32 v9, 0x10000, v8')
    def areads(st, i, buf):
        for ft in range(5):
            off = (st % 3) * 40960 + i * 5120 + ft * 1024
            base = 8
            if off >= 65536: off -= 65536; base = 9
            a(f'ds_read_b128 {v(AF+20*buf+4*ft,4)}, v{base} offset:{off}')
    stamp(a, 2)
    for st in range(NST):
        wait_for(lambda x: x == ('w', st) or x == ('b', min(2*st+1, 13)))
        a('s_barrier')
        if st == 0: stamp(a, 3)
        if st >= 1 and st + 2 < NST: dma_stage(st + 2)
        areads(st, 0, 0)
        areads(st, 1, 1)
        for i in range(2):
            ks = 2 * st + i
            a(f's_waitcnt lgkmcnt({5 if i == 0 else 0})')
            last = (ks == 13)
            if last:
                a('s_cmp_ge_u32 s23, 2')
                a(f's_cbranch_scc1 {L}_skip')
            for ft in range(5):
                for j in range(2):
                    acc = v(ACC + 4 * (2 * ft + j), 4)
                    a(f'v_mfma_f32_16x16x32_bf16 {acc}, {v(AF+20*i+4*ft,4)}, {v(BF+8*ks+4*j,4)}, {"0" if ks == 0 else acc}')
            if last: a.label(f'{L}_skip')
    stamp(a, 4)
    a('s_nop 7')
    a('s_barrier')
    ksplit_reduce(a, ACC, T, 12, 22, 23, 10, 11)
    a('s_cmp_ge_u32 s12, 4')
    a(f's_cbranch_scc1 {L}_end')
    a('v_and_b32 v5, 15, v2')
    a('v_lshrrev_b32 v6, 4, v2')
    HR, BB = 100, 112
    a('s_add_u32 s33, s31, s12')
    a('s_mul_i32 s34, s33, 20480')
    a('s_mul_i32 s35, s21, 2560')
    a('s_add_u32 s34, s34, s35')
    a(f's_add_u32 s34, s34, {WS_H}')
    a('v_lshrrev_b32 v11, 1, v6')
    a('v_lshlrev_b32 v11, 8, v11')
    a('v_lshl_add_u32 v11, v5, 4, v11')
    a('v_and_b32 v12, 1, v6')
    a('v_lshl_add_u32 v11, v12, 3, v11')
    for ft in range(5):
        a(f'buffer_load_dwordx2 {v(HR+2*ft,2)}, v11, s[8:11], s34 offen offset:{512*ft}')
    a('s_mul_i32 s35, s21, 320')
    a(f's_add_u32 s35, s35, {WS_B2F}')
    a('v_lshlrev_b32 v12, 4, v6')
    for ft in range(5):
        a(f'buffer_load_dwordx4 {v(BB+4*ft,4)}, v12, s[8:11], s35 offen offset:{64*ft}')
    ksplit_gather(a, T, 12, 10, 13)
    a('s_waitcnt vmcnt(0)')
    for ft in range(5):
        for h2 in range(2):
            a(f'v_lshlrev_b32 v{T+20}, 16, v{HR+2*ft+h2}')
            a(f'v_and_b32 v{T+21}, 0xffff0000, v{HR+2*ft+h2}')
            a(f'v_add_f32 v{T+4*ft+2*h2}, v{T+4*ft+2*h2}, v{BB+4*ft+2*h2}')
            a(f'v_add_f32 v{T+4*ft+2*h2+1}, v{T+4*ft+2*h2+1}, v{BB+4*ft+2*h2+1}')
            a(f'v_add_f32 v{T+4*ft+2*h2}, v{T+4*ft+2*h2}, v{T+20}')
            a(f'v_add_f32 v{T+4*ft+2*h2+1}, v{T+4*ft+2*h2+1}, v{T+21}')
    for i in range(10):
        a(f'v_cvt_pk_bf16_f32 v{T+24+i}, v{T+2*i}, v{T+2*i+1}')
    a('s_lshl_b32 s33, s33, 4')
    a('v_add_u32 v7, s33, v5')
    a('s_movk_i32 s34, 1280')
    a('v_mul_lo_u32 v7, v7, s34')
    a('v_lshl_add_u32 v7, v6, 3, v7')
    a('s_mul_i32 s34, s21, 160')
    for ft in range(5):
        a(f'buffer_store_dwordx2 {v(T+24+2*ft,2)}, v7, s[16:19], s34 offen offset:{32*ft}')
    stamp(a, 5)
    if PROF: a('s_waitcnt vmcnt(0)')
    stamp(a, 6, True)
    stamp_flush(a, 5, 7, 8, 12)
    a.label(f'{L}_end')
    a('s_endpgm')
    return a, descriptor(L, 232, 102), f'; @launch kernel={L} grid=(256,1,1) block=(512,1,1) lds=122880'

import struct
def f2hex(x):
    return '0x%08x' % struct.unpack('<I', struct.pack('<f', x))[0]

HEADER = """; Kernarg layout (88 bytes): x, wqkv, wo, B_x(unused), w1, b1, w2, b2, out, debug, ws
"""

def build(kernels):
    txt = HEADER
    bodies = []; descs = []
    for k in kernels:
        a, d, launch = k()
        txt += launch + '\n'
        lines, probs = fix_hazards(a.lines)
        if probs:
            for p in probs: print('HAZARD on branch edge:', p, file=sys.stderr)
        bodies.append(render(lines)); descs.append(d)
    txt += '.amdgcn_target "amdgcn-amd-amdhsa--gfx950"\n.text\n'
    txt += '\n'.join(bodies)
    txt += '.section .rodata,"a"\n.p2align 6\n' + '\n.p2align 6\n'.join(descs)
    return txt

if __name__ == '__main__':
    if 'prof' in sys.argv: PROF = True
    for x in sys.argv[2:]:
        if x.startswith('x:'): EXP.add(x[2:])
    ks = [k0, k1, k2, k3, k4, k5]
    out = sys.argv[1] if len(sys.argv) > 1 else 'test.s'
    open(out, 'w').write(build(ks))
    print('wrote', out)
```

```python
import sys
sys.path.insert(0, 'dev')
import gen
from gen import *
from asmlib import *

WS_XT = WS_FLAG + 4096
SG, SJ, SPURE = 64, 65, 66
LDS_WO = 4 * AT_SLOT
SPIN_MAX = 40000

uid = [0]
def lab(p):
    uid[0] += 1
    return f'.L{p}{uid[0]}'

def stores2(a, instrs):
    l1, l2 = lab('st'), lab('st')
    a(f's_cmp_eq_u32 s{SPURE}, 1')
    a(f's_cbranch_scc0 {l1}')
    for x in instrs: a(x)
    a(f's_branch {l2}')
    a.label(l1)
    for x in instrs:
        a(x + ' sc1' if x.startswith('buffer_store') else x)
    a.label(l2)

def publish(a, p, vt):
    a('s_waitcnt vmcnt(0)')
    a('s_barrier')
    l = lab('pub')
    a('s_cmp_lg_u32 s12, 0')
    a(f's_cbranch_scc1 {l}')
    a(f's_lshl_b32 s40, s{SG}, 7')
    a(f's_lshl_b32 s41, s{SJ}, 2')
    a('s_add_u32 s40, s40, s41')
    a(f's_add_u32 s40, s40, {WS_FLAG + p*1024}')
    a(f'v_mov_b32 v{vt}, 0')
    a(f'v_mov_b32 v{vt+1}, 1')
    a('s_mov_b64 exec, 1')
    stores2(a, [f'buffer_store_dword v{vt+1}, v{vt}, s[8:11], s40 offen'])
    a('s_mov_b64 exec, -1')
    a.label(l)

def await_flags(a, p, smask, vt):
    l, lp, ld = lab('aw'), lab('aw'), lab('aw')
    a('s_cmp_lg_u32 s12, 0')
    a(f's_cbranch_scc1 {l}')
    a(f's_lshl_b32 s40, s{SG}, 7')
    a(f's_add_u32 s40, s40, {WS_FLAG + p*1024}')
    a(f'v_lshlrev_b32 v{vt}, 2, v2')
    a(f's_mov_b64 exec, s[{smask}:{smask+1}]')
    a('s_mov_b32 s41, 0')
    a.label(lp)
    a(f'buffer_load_dword v{vt+1}, v{vt}, s[8:11], s40 offen sc1')
    a('s_add_u32 s41, s41, 1')
    a('s_waitcnt vmcnt(0)')
    a(f'v_cmp_eq_u32 vcc, 0, v{vt+1}')
    a(f's_cbranch_vccz {ld}')
    a(f's_cmp_lt_u32 s41, {SPIN_MAX}')
    a(f's_cbranch_scc1 {lp}')
    a.label(ld)
    a('s_mov_b64 exec, -1')
    l3 = lab('aw')
    a(f's_cmp_eq_u32 s{SPURE}, 1')
    a(f's_cbranch_scc1 {l3}')
    a('buffer_inv sc1')
    a('s_waitcnt vmcnt(0)')
    a.label(l3)
    a.label(l)
    a('s_barrier')

def attn_units(a, ssrd, stages, dma_kv, extra, first_wait, prio=None):
    R = AR
    def kreads(slot, t, buf):
        return [f'ds_read_b128 {v(R.KA+4*buf,4)}, v11 offset:{slot*AT_SLOT + t*1024}',
                f'ds_read_b64 {v(R.KC+2*buf,2)}, v12 offset:{slot*AT_SLOT + t*512}']
    def vreads(slot, t, buf):
        return [f'ds_read_b128 {v(R.VV+8*buf,4)}, v13 offset:{slot*AT_SLOT + t*2048}',
                f'ds_read_b128 {v(R.VV+8*buf+4,4)}, v13 offset:{slot*AT_SLOT + t*2048 + 1024}']
    def m1(sb, kb, j): return f'v_mfma_f32_32x32x16_bf16 {v(R.S+16*sb,16)}, {v(R.KA+4*kb,4)}, {v(R.QA+4*j,4)}, 0'
    def m2(sb, kb, j): return f'v_mfma_f32_32x32x8bf16_1k {v(R.S+16*sb,16)}, {v(R.KC+2*kb,2)}, {v(R.QC+2*j,2)}, {v(R.S+16*sb,16)}'
    def m3(j, vb, pb): return f'v_mfma_f32_32x32x16_bf16 {v(R.O+16*j,16)}, {v(R.VV+8*vb,4)}, {v(R.P+8*pb,4)}, {v(R.O+16*j,16)}'
    def m4(j, vb, pb): return f'v_mfma_f32_32x32x16_bf16 {v(R.O+16*j,16)}, {v(R.VV+8*vb+4,4)}, {v(R.P+8*pb+4,4)}, {v(R.O+16*j,16)}'
    for st, last in stages:
        for u in range(4):
            n = st * 4 + u
            T = n >> 1
            sb = n & 1; Tn = (n + 1) >> 1; jn = (n + 1) & 1
            Tp = (n - 1) >> 1; jp = (n - 1) & 1
            a(f's_setprio {prio(st, u) if prio else {2: 3, 3: 2, 0: 1, 1: 0}[u]}')
            extras = {}
            for pos, l in extra(st, u).items(): extras.setdefault(pos, []).extend(l)
            final = last and u >= 2
            if u == 2 and not last:
                a(f's_waitcnt vmcnt({first_wait(st)})')
                a('s_barrier')
            if u == 3 and dma_kv(st):
                d = attn_dma_parts((st + 3) % 4, ssrd)
                extras.setdefault(3, []).extend(d[0])
                extras.setdefault(15, []).extend(d[1])
            if n % 2 == 0:
                T1 = T + 1
                kr = kreads((T1 >> 1) % 4, T1 & 1, T1 & 1) if not (last and u == 2) else []
                vr = vreads((T >> 1) % 4, T & 1, T & 1)
                for pos, x in zip((2, 6), kr): extras.setdefault(pos, []).append(x)
                for pos, x in zip((11, 16), vr): extras.setdefault(pos, []).append(x)
            else:
                a('s_waitcnt lgkmcnt(0)')
            S_ = R.S + 16 * sb
            ex = [f'v_exp_f32 v{S_+i}, v{S_+i}' for i in range(16)]
            cv = [f'v_cvt_pk_bf16_f32 v{R.P+8*sb+i}, v{S_+2*i}, v{S_+2*i+1}' for i in range(8)]
            M = [m1(sb ^ 1, Tn & 1, jn), m2(sb ^ 1, Tn & 1, jn), m3(jp, Tp & 1, (n - 1) & 1), m4(jp, Tp & 1, (n - 1) & 1)]
            if last and u == 3: M[0] = M[1] = None
            seq = [M[0], ex[0], ex[1], ex[2], ex[3], cv[0], ex[4], M[1], ex[5], cv[1], ex[6], ex[7], cv[2],
                   M[2], ex[8], ex[9], cv[3], ex[10], ex[11], cv[4], M[3], ex[12], ex[13], cv[5], ex[14], ex[15], cv[6], cv[7]]
            for i, x in enumerate(seq):
                for y in extras.get(i, []): a(y)
                if x: a(x)
    return m1, m2, m3, m4, kreads

def wo_dma():
    return ['s_mov_b32 m0, s61', 's_nop 0', 'buffer_load_dwordx4 v10, s[8:11], s62 offen lds',
            's_cmp_lt_u32 s62, s63', 's_cselect_b32 s67, 8192, 0', 's_add_u32 s62, s62, s67', 's_add_u32 s61, s61, s67']

def phase_attn(a):
    R = AR
    attn_setup(a, SJ, SG, 12, 8)
    a(f's_lshr_b32 s62, s{SJ}, 2')
    a('s_mul_i32 s62, s62, 102400')
    a(f's_add_u32 s62, s62, {WS_WO}')
    a('s_lshl_b32 s61, s12, 10')
    a('s_add_u32 s62, s62, s61')
    a('s_cmp_lt_u32 s12, 4')
    a(f's_mov_b32 s63, {11*8192}')
    a(f's_cselect_b32 s63, {12*8192}, s63')
    a('s_add_u32 s63, s63, s62')
    a(f's_add_u32 s61, s61, {LDS_WO}')
    for r in range(32): a(f'v_mov_b32 v{R.O+r}, 0')
    for r in range(16): a(f'v_mov_b32 v{R.P+r}, 0')
    for r in range(16): a(f'v_mov_b32 v{R.VV+r}, 0')
    attn_dma(a, 0, 8)
    a('s_waitcnt vmcnt(0)')
    for st in range(1, 3): attn_dma(a, st, 8)
    for x in wo_dma(): a(x)
    a('v_cmp_gt_u32 vcc, 32, v2')
    for r in range(4): a(f'v_cndmask_b32 v{R.QC+r}, 0, v{R.QC+r}, vcc')
    a('s_waitcnt lgkmcnt(0)')
    a('s_barrier')
    a('v_lshlrev_b32 v151, 7, v2')
    a(f's_mul_i32 s56, s{SJ}, 69120')
    a(f's_add_u32 s56, s56, {WS_W1}')
    a('s_add_u32 s57, s56, 65536')
    a('s_lshl_b32 s40, s12, 13')
    a('s_add_u32 s56, s56, s40')
    a('s_cmp_eq_u32 s12, 0')
    a('s_cselect_b32 s57, s57, s56')
    def pf(k):
        return [f'buffer_load_dword v150, v151, s[8:11], s{56+k} offen']
    ex = lambda st, u: ({8: wo_dma()} if u == 0 else {})
    a(f'ds_read_b128 {v(R.KA,4)}, v11 offset:0')
    a(f'ds_read_b64 {v(R.KC,2)}, v12 offset:0')
    a('s_waitcnt lgkmcnt(0)')
    a(f'v_mfma_f32_32x32x16_bf16 {v(R.S,16)}, {v(R.KA,4)}, {v(R.QA,4)}, 0')
    a(f'v_mfma_f32_32x32x8bf16_1k {v(R.S,16)}, {v(R.KC,2)}, {v(R.QC,2)}, {v(R.S,16)}')
    a('s_mov_b32 s60, 3')
    stamp(a, 7)
    a.label('.Lat_loop')
    attn_units(a, 8, [(st, False) for st in range(4)], lambda st: True, ex, lambda st: 4)
    a('s_sub_u32 s60, s60, 1')
    a('s_cmp_lg_u32 s60, 0')
    a('s_cbranch_scc1 .Lat_loop')
    tail_wait = {0: 4, 1: 4, 2: 2}
    def tail_extra(st, u):
        if st == 0 and u == 0: return {8: wo_dma()}
        if st == 0 and u == 3: return {22: pf(0)}
        if st == 1 and u == 3: return {8: pf(1)}
        return {}
    m1, m2, m3, m4, _ = attn_units(a, 8, [(0, False), (1, False), (2, False), (3, True)], lambda st: st == 0,
                                   tail_extra, lambda st: tail_wait[st])
    a(m3(1, 1, 1)); a(m4(1, 1, 1))
    a('s_setprio 0')
    stamp(a, 3)
    a(f's_lshl_b32 s40, s{SG}, 7')
    a(f's_add_u32 s40, s40, {WS_XT}')
    a('v_lshlrev_b32 v14, 2, v3')
    a('buffer_load_dword v15, v14, s[8:11], s40 offen sc1')
    a('s_barrier')
    a('s_cmp_eq_u32 s46, 0')
    a('s_cbranch_scc1 .Lat_noswap')
    a('s_nop 7')
    for r in range(12): a(f'v_swap_b32 v{R.O+r}, v{R.O+16+r}')
    a.label('.Lat_noswap')
    a('s_nop 7')
    a(f's_mul_i32 s40, s12, 3072')
    a('v_add_u32 v14, s40, v10')
    for i in range(3): a(f'ds_write_b128 v14, {v(R.O+16+4*i,4)} offset:{1024*i}')
    a('s_xor_b32 s40, s12, 4')
    a('s_mul_i32 s40, s40, 3072')
    a('v_add_u32 v14, s40, v10')
    a('s_waitcnt lgkmcnt(0)')
    a('s_barrier')
    for i in range(3): a(f'ds_read_b128 {v(R.T+4*i,4)}, v14 offset:{1024*i}')
    lp, ld = lab('xt'), lab('xt')
    a('s_mov_b32 s41, 0')
    a.label(lp)
    a('s_waitcnt vmcnt(0)')
    a('v_cmp_eq_u32 vcc, 0, v15')
    a(f's_cbranch_vccz {ld}')
    a(f's_lshl_b32 s40, s{SG}, 7')
    a(f's_add_u32 s40, s40, {WS_XT}')
    a('v_lshlrev_b32 v14, 2, v3')
    a('buffer_load_dword v15, v14, s[8:11], s40 offen sc1')
    a('s_add_u32 s41, s41, 1')
    a(f's_cmp_lt_u32 s41, {SPIN_MAX}')
    a(f's_cbranch_scc1 {lp}')
    a.label(ld)
    a('v_cmp_ne_u32 vcc, s67, v15') if False else None
    a(f'v_cmp_ne_u32 vcc, s{SPURE}, v15')
    a('s_cmp_eq_u64 vcc, 0')
    a(f's_cselect_b32 s{SPURE}, 1, 0')
    if 'slow' in gen.EXP: a(f's_mov_b32 s{SPURE}, 0')
    a('s_waitcnt lgkmcnt(0)')
    for r in range(12): a(f'v_add_f32 v{R.O+r}, v{R.O+r}, v{R.T+r}')
    a(f'v_mov_b32 v{R.T}, v{R.O+8}')
    a(f'v_mov_b32 v{R.T+1}, v{R.O+8}')
    a(f'v_permlane32_swap_b32 v{R.T}, v{R.T+1}')
    a(f'v_rcp_f32 v{R.T+1}, v{R.T+1}')
    for r in range(12): a(f'v_mul_f32 v{R.O+r}, v{R.O+r}, v{R.T+1}')
    for i in range(6): a(f'v_cvt_pk_bf16_f32 v{R.T+4+i}, v{R.O+2*i}, v{R.O+2*i+1}')
    a('s_mul_i32 s61, s46, 40960')
    a('s_add_u32 s61, s61, s47')
    a(f's_add_u32 s61, s61, {WS_O}')
    a('s_lshl_b32 s62, s42, 8')
    a('s_add_u32 s62, s62, s61')
    a('s_lshl_b32 s63, s43, 8')
    a('s_add_u32 s63, s63, s61')
    a('s_lshl_b32 s61, s41, 3') if False else None
    a(f's_and_b32 s61, s{SJ}, 1')
    a('s_lshl_b32 s61, s61, 3')
    a('s_add_u32 s63, s63, s61')
    stores2(a, [f'buffer_store_dwordx4 {v(R.T+4,4)}, v7, s[8:11], s62 offen',
                's_mov_b64 exec, 0xffffffff',
                f'buffer_store_dwordx2 {v(R.T+8,2)}, v5, s[8:11], s63 offen',
                's_mov_b64 exec, -1'])

def phase_oproj(a):
    BF, AF, ACC, XR, T = 16, 56, 96, 116, 128
    a(f's_and_b32 s20, s{SJ}, 3')
    a(f's_lshr_b32 s21, s{SJ}, 2')
    a('s_and_b32 s22, s12, 3')
    a('s_lshr_b32 s23, s12, 2')
    a(f's_lshl_b32 s29, s{SG}, 4')
    a('s_lshl_b32 s30, s20, 2')
    a('s_add_u32 s29, s29, s30')
    a('s_add_u32 s29, s29, s22')
    a('v_and_b32 v5, 15, v2')
    a('v_lshrrev_b32 v6, 4, v2')
    a('s_lshl_b32 s31, s29, 4')
    a('v_add_u32 v7, s31, v5')
    a('s_movk_i32 s32, 1280')
    a('v_mul_lo_u32 v7, v7, s32')
    a('v_lshl_add_u32 v7, v6, 3, v7')
    a('s_mul_i32 s32, s21, 160')
    a('s_mul_i32 s33, s23, 96')
    a('s_add_u32 s32, s32, s33')
    for i in range(3):
        a(f'buffer_load_dwordx2 {v(XR+2*i,2)}, v7, s[72:75], s32 offen offset:{32*i}')
    a('s_mov_b32 s44, -1')
    a('s_mov_b32 s45, 0')
    await_flags(a, 0, 44, 14)
    stamp(a, 8)
    a('s_mul_i32 s30, s29, 20480')
    a('s_mul_i32 s31, s23, 10240')
    a('s_add_u32 s30, s30, s31')
    a(f's_add_u32 s30, s30, {WS_O}')
    for i in range(10):
        if i % 4 == 0: a(f's_add_u32 s31, s30, {i*1024}')
        a(f'buffer_load_dwordx4 {v(BF+4*i,4)}, v10, s[8:11], s31 offen offset:{(i%4)*1024}' + ('' if 'f1plain' in gen.EXP else ' sc1'))
    a('s_mul_i32 s33, s23, 10240')
    a(f's_add_u32 s33, s33, {LDS_WO}')
    a('v_add_u32 v8, s33, v10')
    a(f'v_add_u32 v9, {3*20480}, v8')
    def areads(i, buf):
        for ft in range(5):
            off = ft * 20480 + i * 1024
            base = 8
            if ft >= 3: off -= 3 * 20480; base = 9
            a(f'ds_read_b128 {v(AF+20*buf+4*ft,4)}, v{base} offset:{off}')
    areads(0, 0)
    for i in range(10):
        if i < 9:
            areads(i + 1, (i + 1) & 1)
            a(f's_waitcnt vmcnt({9-i}) lgkmcnt(5)')
        else:
            a('s_waitcnt vmcnt(0) lgkmcnt(0)')
        for ft in range(5):
            acc = v(ACC + 4 * ft, 4)
            a(f'v_mfma_f32_16x16x32_bf16 {acc}, {v(AF+20*(i&1)+4*ft,4)}, {v(BF+4*i,4)}, {"0" if i == 0 else acc}')
    stamp(a, 9)
    a('s_mul_i32 s40, s12, 3072')
    a('s_add_u32 s40, s40, 32768')
    a('v_add_u32 v14, s40, v10')
    l1, l2 = lab('ox'), lab('ox')
    a('s_nop 7')
    a('s_cmp_eq_u32 s23, 0')
    a(f's_cbranch_scc0 {l1}')
    for i, ft in enumerate((3, 4)): a(f'ds_write_b128 v14, {v(ACC+4*ft,4)} offset:{1024*i}')
    a(f's_branch {l2}')
    a.label(l1)
    for ft in range(3): a(f'ds_write_b128 v14, {v(ACC+4*ft,4)} offset:{1024*ft}')
    a('s_waitcnt lgkmcnt(0)')
    for r in range(8): a(f'v_mov_b32 v{ACC+r}, v{ACC+12+r}')
    for r in range(8, 12): a(f'v_mov_b32 v{ACC+r}, 0')
    a.label(l2)
    a('s_xor_b32 s40, s12, 4')
    a('s_mul_i32 s40, s40, 3072')
    a('s_add_u32 s40, s40, 32768')
    a('v_add_u32 v14, s40, v10')
    a('s_waitcnt lgkmcnt(0)')
    a('s_barrier')
    for i in range(3): a(f'ds_read_b128 {v(T+4*i,4)}, v14 offset:{1024*i}')
    a('s_waitcnt lgkmcnt(0)')
    for r in range(12): a(f'v_add_f32 v{ACC+r}, v{ACC+r}, v{T+r}')
    for i in range(3):
        for h2 in range(2):
            a(f'v_lshlrev_b32 v{T}, 16, v{XR+2*i+h2}')
            a(f'v_and_b32 v{T+1}, 0xffff0000, v{XR+2*i+h2}')
            a(f'v_add_f32 v{ACC+4*i+2*h2}, v{ACC+4*i+2*h2}, v{T}')
            a(f'v_add_f32 v{ACC+4*i+2*h2+1}, v{ACC+4*i+2*h2+1}, v{T+1}')
    l3 = lab('ox')
    a('s_cmp_eq_u32 s23, 0')
    a(f's_cbranch_scc1 {l3}')
    for r in range(8, 12): a(f'v_mov_b32 v{ACC+r}, 0')
    a.label(l3)
    a(f'v_mov_b32 v{T}, v{ACC}')
    a(f'v_mul_f32 v{T+1}, v{ACC}, v{ACC}')
    for r in range(1, 12):
        a(f'v_add_f32 v{T}, v{T}, v{ACC+r}')
        a(f'v_fmac_f32 v{T+1}, v{ACC+r}, v{ACC+r}')
    sum_q4(a, T, T+2, T+3)
    sum_q4(a, T+1, T+2, T+3)
    for i in range(6): a(f'v_cvt_pk_bf16_f32 v{T+4+i}, v{ACC+2*i}, v{ACC+2*i+1}')
    a('s_mul_i32 s34, s29, 20480')
    a('s_mul_i32 s35, s21, 2560')
    a('s_add_u32 s34, s34, s35')
    a('s_mul_i32 s35, s23, 1536')
    a('s_add_u32 s34, s34, s35')
    a(f's_add_u32 s34, s34, {WS_H}')
    a('v_lshrrev_b32 v11, 1, v6')
    a('v_lshlrev_b32 v11, 8, v11')
    a('v_lshl_add_u32 v11, v5, 4, v11')
    a('v_and_b32 v12, 1, v6')
    a('v_lshl_add_u32 v11, v12, 3, v11')
    a('s_lshl_b32 s33, s29, 7')
    a('s_lshl_b32 s35, s21, 1')
    a('s_add_u32 s35, s35, s23')
    a('s_lshl_b32 s35, s35, 14')
    a('s_add_u32 s33, s33, s35')
    a(f's_add_u32 s33, s33, {WS_ST2}')
    a('v_lshlrev_b32 v12, 3, v5')
    a('s_cmp_eq_u32 s23, 0')
    a(f's_cselect_b32 s35, s34, {0x7ffff000}')
    stores2(a, [f'buffer_store_dwordx2 {v(T+4,2)}, v11, s[8:11], s34 offen',
                f'buffer_store_dwordx2 {v(T+6,2)}, v11, s[8:11], s34 offen offset:512',
                f'buffer_store_dwordx2 {v(T+8,2)}, v11, s[8:11], s35 offen offset:1024',
                's_mov_b64 exec, 0xffff',
                f'buffer_store_dwordx2 {v(T,2)}, v12, s[8:11], s33 offen',
                's_mov_b64 exec, -1'])

F1_WB, F1_HB, F1_NS = 0, 65536, 4
def phase_ffn1(a):
    ACC, FA, FB = 32, 16, 64
    ST, CS, B1 = 96, 160, 176
    a(f's_and_b32 s13, s{SJ}, 1')
    a(f's_lshl_b32 s15, s{SG}, 1')
    a('s_add_u32 s13, s13, s15')
    a(f's_lshr_b32 s14, s{SJ}, 1')
    lane_swap23(a, 5, 3, 6)
    a('s_cmp_lt_u32 s12, 4')
    a('s_cselect_b64 vcc, -1, 0')
    a('v_cndmask_b32 v6, v3, v5, vcc')
    a('v_lshrrev_b32 v7, 4, v6')
    a('s_movk_i32 s17, 20480')
    a('v_mul_lo_u32 v7, v7, s17')
    a('v_and_b32 v6, 15, v6')
    a('v_lshl_add_u32 v7, v6, 4, v7')
    a('v_lshl_add_u32 v7, v4, 8, v7')
    a('s_lshl_b32 s18, s14, 3')
    a('s_lshl_b32 s19, s12, 1')
    a('s_add_u32 s18, s18, s19')
    a('s_mul_i32 s18, s18, 20480')
    a(f's_add_u32 s18, s18, {WS_W1}')
    a('s_lshl_b32 s20, s13, 3')
    a('s_add_u32 s20, s20, s19')
    a('s_sub_u32 s20, s20, 8')
    a('s_mul_i32 s20, s20, 20480')
    a(f's_add_u32 s20, s20, {WS_H}')
    a('s_cmp_lt_u32 s12, 4')
    a('s_cselect_b32 s20, s18, s20')
    a('s_and_b32 s23, s12, 3')
    a('s_lshr_b32 s26, s12, 2')
    a('s_lshl_b32 s22, s23, 10')
    a('s_cmp_lt_u32 s12, 4')
    a(f's_cselect_b32 s17, {F1_WB}, {F1_HB}')
    a('s_add_u32 s22, s22, s17')
    a('s_lshl_b32 s17, s23, 10')
    a(f's_add_u32 s17, s17, {F1_WB}')
    a('v_add_u32 v9, s17, v10')
    a('s_lshl_b32 s17, s26, 11')
    a(f's_add_u32 s17, s17, {F1_HB}')
    a('v_add_u32 v12, s17, v10')
    a(f's_and_b32 s40, s{SJ}, 1')
    a('s_cmp_eq_u32 s40, 0')
    a('s_mov_b32 s44, 0xcccccccc')
    a('s_cselect_b32 s44, 0x33333333, s44')
    a('s_mov_b32 s45, 0')
    await_flags(a, 1, 44, 14)
    stamp(a, 10)
    a('s_lshl_b32 s27, s13, 7')
    a('s_lshl_b32 s28, s26, 6')
    a('s_add_u32 s27, s27, s28')
    lst = lab('st')
    a('s_cmp_ge_u32 s12, 4')
    a(f's_cbranch_scc1 {lst}')
    a('s_lshl_b32 s28, s13, 7')
    a('s_lshl_b32 s29, s12, 5')
    a('s_add_u32 s28, s28, s29')
    a('s_lshl_b32 s28, s28, 3')
    a(f's_add_u32 s28, s28, {WS_ST2}')
    a('v_lshlrev_b32 v14, 3, v3')
    a('v_lshl_add_u32 v14, v4, 17, v14')
    for q in range(8):
        a(f's_add_u32 s29, s28, {q*16384}')
        a(f'buffer_load_dwordx2 {v(ST+2*q,2)}, v14, s[8:11], s29 offen sc1')
    a.label(lst)
    a('s_lshl_b32 s29, s14, 7')
    a('s_lshl_b32 s30, s23, 5')
    a('s_add_u32 s29, s29, s30')
    a('s_lshl_b32 s29, s29, 2')
    a('v_lshlrev_b32 v15, 5, v4')
    a(f's_add_u32 s30, s29, {WS_CS1}')
    a(f's_add_u32 s31, s29, {WS_B1F}')
    for q, off in enumerate((0, 16, 64, 80)):
        a(f'buffer_load_dwordx4 {v(CS+4*q,4)}, v15, s[8:11], s30 offen offset:{off}')
        a(f'buffer_load_dwordx4 {v(B1+4*q,4)}, v15, s[8:11], s31 offen offset:{off}')
    nst, NS = 10, F1_NS
    pend = [(st, ks) for st in range(nst) for ks in range(4)]
    issued = []
    def dma_one():
        st, ks = pend.pop(0)
        a(f's_add_u32 m0, s22, {(st % NS)*16384 + ks*4096}')
        a(f's_add_u32 s21, s20, {st*2048 + ks*512}')
        a('buffer_load_dwordx4 v7, s[8:11], s21 offen ' + ('' if 'f1plain' in gen.EXP else 'sc1 ') + 'lds')
        issued.append(st)
    def wait_stage(st):
        n = 0
        for x in reversed(issued):
            if x <= st: break
            n += 1
        a(f's_waitcnt vmcnt({n})')
    def reads(st, ks, buf):
        off = (st % NS) * 16384 + ks * 4096
        a(f'ds_read_b128 {v(FA+4*buf,4)}, v9 offset:{off}')
        a(f'ds_read_b128 {v(FB+8*buf,4)}, v12 offset:{off}')
        a(f'ds_read_b128 {v(FB+8*buf+4,4)}, v12 offset:{off+1024}')
    def mfmas(buf, first):
        for j in range(2):
            c = '0' if first else v(ACC+16*j, 16)
            a(f'v_mfma_f32_32x32x16_bf16 {v(ACC+16*j,16)}, {v(FA+4*buf,4)}, {v(FB+8*buf+4*j,4)}, {c}')
    for _ in range(8): dma_one()
    if 'f1stamp' in gen.EXP: stamp(a, 2)
    wait_stage(0)
    a('s_barrier')
    if 'f1stamp' in gen.EXP: stamp(a, 3)
    reads(0, 0, 0)
    buf = 0
    for st in range(nst):
        for ks in range(4):
            if ks < 3:
                reads(st, ks + 1, buf ^ 1)
                a('s_waitcnt lgkmcnt(3)')
                mfmas(buf, st == 0 and ks == 0)
            else:
                if st + 1 < nst:
                    a('s_waitcnt lgkmcnt(0)')
                    if 'f1stamp' in gen.EXP and st in (0, 1, 4): stamp(a, {0: 4, 1: 7, 4: 9}[st])
                    wait_stage(st + 1)
                    a('s_barrier')
                    if 'f1stamp' in gen.EXP and st in (0, 1, 4): stamp(a, {0: 5, 1: 8, 4: 12}[st])
                    reads(st + 1, 0, buf ^ 1)
                else:
                    a('s_waitcnt lgkmcnt(0)')
                mfmas(buf, False)
            lim = st + NS - 1 + (1 if ks == 3 else 0)
            if pend and pend[0][0] <= lim: dma_one()
            buf ^= 1
    a('s_nop 15')
    stamp(a, 11)
    LST = 159744
    l2 = lab('st')
    a('s_cmp_ge_u32 s12, 4')
    a(f's_cbranch_scc1 {l2}')
    b = ST
    for q in range(1, 8):
        a(f'v_add_f32 v{b}, v{b}, v{b+2*q}')
        a(f'v_add_f32 v{b+1}, v{b+1}, v{b+2*q+1}')
    for r in range(2):
        a(f'v_mov_b32 v{b+2}, v{b+r}'); a(f'v_mov_b32 v{b+3}, v{b+r}')
        a(f'v_permlane32_swap_b32 v{b+2}, v{b+3}')
        a(f'v_add_f32 v{b+r}, v{b+2}, v{b+3}')
    a(f'v_mul_f32 v{b}, {f2hex(1.0/640)}, v{b}')
    a(f'v_mul_f32 v{b+1}, {f2hex(1.0/640)}, v{b+1}')
    a(f'v_fma_f32 v{b+1}, -v{b}, v{b}, v{b+1}')
    a(f'v_add_f32 v{b+1}, 0x3727c5ac, v{b+1}')
    a(f'v_rsq_f32 v{b+1}, v{b+1}')
    a(f'v_mul_f32 v{b}, v{b}, v{b+1}')
    a('s_lshl_b32 s28, s12, 8')
    a(f's_add_u32 s28, s28, {LST}')
    a('v_lshlrev_b32 v14, 3, v3')
    a('v_add_u32 v14, s28, v14')
    a(f'ds_write_b64 v14, {v(b,2)}')
    a.label(l2)
    a('s_waitcnt lgkmcnt(0)')
    a('s_barrier')
    a('s_lshl_b32 s28, s26, 9')
    a(f's_add_u32 s28, s28, {LST}')
    a('v_lshlrev_b32 v14, 3, v3')
    a('v_add_u32 v14, s28, v14')
    a(f'ds_read_b64 {v(ST,2)}, v14')
    a(f'ds_read_b64 {v(ST+32,2)}, v14 offset:256')
    a('s_waitcnt lgkmcnt(0)')
    for j in range(2):
        b = ST + 32 * j
        for r in range(16):
            a(f'v_fma_f32 v{b+2}, -v{b}, v{CS+r}, v{B1+r}')
            a(f'v_fma_f32 v{ACC+16*j+r}, v{b+1}, v{ACC+16*j+r}, v{b+2}')
            a(f'v_max_f32 v{ACC+16*j+r}, 0, v{ACC+16*j+r}')
            a(f'v_mul_f32 v{ACC+16*j+r}, v{ACC+16*j+r}, v{ACC+16*j+r}')
    for r in range(16):
        a(f'v_cvt_pk_bf16_f32 v{64+r}, v{ACC+2*r}, v{ACC+2*r+1}')
    a('v_lshrrev_b32 v13, 4, v3')
    a('s_mov_b32 s18, 55296')
    a('v_mul_lo_u32 v13, v13, s18')
    a('v_and_b32 v14, 15, v3')
    a('v_lshl_add_u32 v13, v14, 4, v13')
    a('v_lshl_add_u32 v13, v4, 8, v13')
    a('s_lshr_b32 s18, s27, 4')
    a('s_mul_i32 s18, s18, 55296')
    a('s_lshl_b32 s17, s14, 2')
    a('s_add_u32 s17, s17, s23')
    a('s_cmp_ge_u32 s17, 54')
    a('s_cselect_b32 s19, 0x40000000, 0')
    a('s_lshl_b32 s17, s17, 10')
    a('s_add_u32 s17, s17, s18')
    a(f's_add_u32 s17, s17, {WS_G}')
    a('s_add_u32 s17, s17, s19')
    a(f's_add_u32 s18, s17, {2*55296}')
    stores2(a, [f'buffer_store_dwordx4 {v(64,4)}, v13, s[8:11], s17 offen',
                f'buffer_store_dwordx4 {v(68,4)}, v13, s[8:11], s17 offen offset:512',
                f'buffer_store_dwordx4 {v(72,4)}, v13, s[8:11], s18 offen',
                f'buffer_store_dwordx4 {v(76,4)}, v13, s[8:11], s18 offen offset:512'])

def phase_ffn2(a, L):
    a(f's_and_b32 s20, s{SJ}, 3')
    a(f's_lshr_b32 s21, s{SJ}, 2')
    a('s_lshr_b32 s22, s12, 2')
    a('s_and_b32 s23, s12, 3')
    a('s_mul_i32 s26, s23, 14')
    a('s_cmp_eq_u32 s23, 3')
    a('s_cselect_b32 s27, 1, 0')
    a('s_sub_u32 s26, s26, s27')
    a('s_mul_i32 s28, s21, 276480')
    a(f's_add_u32 s28, s28, {WS_W2}')
    a('s_add_u32 s29, s26, s22')
    a('s_lshl_b32 s29, s29, 10')
    a('s_add_u32 s28, s28, s29')
    a('s_lshl_b32 s29, s23, 1')
    a('s_add_u32 s29, s29, s22')
    a('s_mul_i32 s29, s29, 5120')
    NST = 7
    issued = []
    def dma_stage(st):
        slot = st % 3
        for ft in range(5):
            a(f's_add_u32 m0, s29, {slot*40960 + ft*1024}')
            a(f's_add_u32 s30, s28, {st*2048 + ft*55296}')
            a('buffer_load_dwordx4 v10, s[8:11], s30 offen lds')
            issued.append(('w', st))
    BF, ACC, AF, T = 16, 128, 168, 16
    dma_stage(0); dma_stage(1); dma_stage(2)
    a('s_lshr_b32 s40, s20, 1')
    a('s_cmp_eq_u32 s40, 0')
    a('s_mov_b32 s44, 0x0aaaaaaa')
    a('s_cselect_b32 s44, 0x05555555, s44')
    a('s_mov_b32 s45, 0')
    await_flags(a, 2, 44, 14)
    if 'f1stamp' not in gen.EXP: stamp(a, 12)
    a(f's_lshl_b32 s31, s{SG}, 4')
    a('s_lshl_b32 s32, s20, 2')
    a('s_add_u32 s31, s31, s32')
    a('s_lshl_b32 s32, s22, 1')
    a('s_add_u32 s32, s32, s31')
    a('s_mul_i32 s32, s32, 55296')
    a('s_lshl_b32 s33, s26, 10')
    a('s_add_u32 s32, s32, s33')
    a(f's_add_u32 s32, s32, {WS_G}')
    for i in range(14):
        for j in range(2):
            a(f's_add_u32 s33, s32, {j*55296 + i*1024}')
            a(f'buffer_load_dwordx4 {v(BF+8*i+4*j,4)}, v10, s[8:11], s33 offen' + ('' if 'f1plain' in gen.EXP else ' sc1'))
            issued.append(('b', i))
    def wait_for(pred):
        n = 0
        for x in reversed(issued):
            if pred(x): break
            n += 1
        a(f's_waitcnt vmcnt({min(n, 63)})')
    a('s_mul_i32 s34, s23, 10240')
    a('v_add_u32 v8, s34, v10')
    a('v_add_u32 v9, 0x10000, v8')
    def areads(st, i, buf):
        for ft in range(5):
            off = (st % 3) * 40960 + i * 5120 + ft * 1024
            base = 8
            if off >= 65536: off -= 65536; base = 9
            a(f'ds_read_b128 {v(AF+20*buf+4*ft,4)}, v{base} offset:{off}')
    for st in range(NST):
        wait_for(lambda x: x == ('w', st) or x == ('b', min(2*st+1, 13)))
        a('s_barrier')
        if st >= 1 and st + 2 < NST: dma_stage(st + 2)
        areads(st, 0, 0)
        areads(st, 1, 1)
        for i in range(2):
            ks = 2 * st + i
            a(f's_waitcnt lgkmcnt({5 if i == 0 else 0})')
            last = (ks == 13)
            if last:
                a('s_cmp_ge_u32 s23, 2')
                a(f's_cbranch_scc1 {L}_skip')
            for ft in range(5):
                for j in range(2):
                    acc = v(ACC + 4 * (2 * ft + j), 4)
                    a(f'v_mfma_f32_16x16x32_bf16 {acc}, {v(AF+20*i+4*ft,4)}, {v(BF+8*ks+4*j,4)}, {"0" if ks == 0 else acc}')
            if last: a.label(f'{L}_skip')
    stamp(a, 13)
    a('s_nop 7')
    a('s_barrier')
    ksplit_reduce(a, ACC, T, 12, 22, 23, 10, 11)
    a('s_cmp_ge_u32 s12, 4')
    a(f's_cbranch_scc1 {L}_fin')
    a('v_and_b32 v5, 15, v2')
    a('v_lshrrev_b32 v6, 4, v2')
    HR, BB = 100, 112
    a('s_add_u32 s33, s31, s12')
    a('s_mul_i32 s34, s33, 20480')
    a('s_mul_i32 s35, s21, 2560')
    a('s_add_u32 s34, s34, s35')
    a(f's_add_u32 s34, s34, {WS_H}')
    a('v_lshrrev_b32 v11, 1, v6')
    a('v_lshlrev_b32 v11, 8, v11')
    a('v_lshl_add_u32 v11, v5, 4, v11')
    a('v_and_b32 v12, 1, v6')
    a('v_lshl_add_u32 v11, v12, 3, v11')
    for ft in range(5):
        a(f'buffer_load_dwordx2 {v(HR+2*ft,2)}, v11, s[8:11], s34 offen offset:{512*ft} sc1')
    a('s_mul_i32 s35, s21, 320')
    a(f's_add_u32 s35, s35, {WS_B2F}')
    a('v_lshlrev_b32 v12, 4, v6')
    for ft in range(5):
        a(f'buffer_load_dwordx4 {v(BB+4*ft,4)}, v12, s[8:11], s35 offen offset:{64*ft}')
    ksplit_gather(a, T, 12, 10, 13)
    a('s_waitcnt vmcnt(0)')
    for ft in range(5):
        for h2 in range(2):
            a(f'v_lshlrev_b32 v{T+20}, 16, v{HR+2*ft+h2}')
            a(f'v_and_b32 v{T+21}, 0xffff0000, v{HR+2*ft+h2}')
            a(f'v_add_f32 v{T+4*ft+2*h2}, v{T+4*ft+2*h2}, v{BB+4*ft+2*h2}')
            a(f'v_add_f32 v{T+4*ft+2*h2+1}, v{T+4*ft+2*h2+1}, v{BB+4*ft+2*h2+1}')
            a(f'v_add_f32 v{T+4*ft+2*h2}, v{T+4*ft+2*h2}, v{T+20}')
            a(f'v_add_f32 v{T+4*ft+2*h2+1}, v{T+4*ft+2*h2+1}, v{T+21}')
    for i in range(10):
        a(f'v_cvt_pk_bf16_f32 v{T+24+i}, v{T+2*i}, v{T+2*i+1}')
    a('s_lshl_b32 s33, s33, 4')
    a('v_add_u32 v7, s33, v5')
    a('s_movk_i32 s34, 1280')
    a('v_mul_lo_u32 v7, v7, s34')
    a('v_lshl_add_u32 v7, v6, 3, v7')
    a('s_mul_i32 s34, s21, 160')
    for ft in range(5):
        a(f'buffer_store_dwordx2 {v(T+24+2*ft,2)}, v7, s[76:79], s34 offen offset:{32*ft}')

def kf():
    a = Asm()
    L = 'kf_kernel'
    kernel_begin(a, L)
    a('s_cmp_ge_u32 s2, 256')
    a(f's_cbranch_scc1 {L}_end')
    stamp(a, 0, True); stamp(a, 1)
    a(f's_load_dwordx2 s[4:5], s[0:1], {A_WS}')
    a(f's_load_dwordx2 s[68:69], s[0:1], {A_X}')
    a(f's_load_dwordx2 s[70:71], s[0:1], {A_OUT}')
    a(f's_and_b32 s{SG}, s2, 7')
    a(f's_lshr_b32 s{SJ}, s2, 3')
    a('v_lshrrev_b32 v1, 6, v0')
    a('v_and_b32 v2, 63, v0')
    a('v_readfirstlane_b32 s12, v1')
    a('v_and_b32 v3, 31, v2')
    a('v_lshrrev_b32 v4, 5, v2')
    a(f's_getreg_b32 s{SPURE}, hwreg(HW_REG_XCC_ID, 0, 4)')
    a(f's_add_u32 s{SPURE}, s{SPURE}, 1')
    a('s_waitcnt lgkmcnt(0)')
    srd(a, 8, 4, WS_END)
    srd(a, 72, 68, S * D * 2)
    srd(a, 76, 70, S * D * 2)
    l = lab('xp')
    a('s_cmp_lg_u32 s12, 0')
    a(f's_cbranch_scc1 {l}')
    a(f's_lshl_b32 s40, s{SG}, 7')
    a(f's_lshl_b32 s41, s{SJ}, 2')
    a('s_add_u32 s40, s40, s41')
    a(f's_add_u32 s40, s40, {WS_XT}')
    a('v_mov_b32 v14, 0')
    a(f'v_mov_b32 v15, s{SPURE}')
    a('s_mov_b64 exec, 1')
    a('buffer_store_dword v15, v14, s[8:11], s40 offen sc1')
    a('s_mov_b64 exec, -1')
    a.label(l)
    stamp(a, 2)
    phase_attn(a)
    stamp(a, 4)
    publish(a, 0, 14)
    phase_oproj(a)
    publish(a, 1, 14)
    stamp(a, 5)
    a(f's_cmp_ge_u32 s{SJ}, 28')
    a(f's_cbranch_scc1 {L}_idle')
    phase_ffn1(a)
    publish(a, 2, 14)
    a(f's_branch {L}_f2')
    a.label(f'{L}_idle')
    a('v_lshlrev_b32 v201, 7, v2')
    a(f's_sub_u32 s56, s{SJ}, 28')
    a('s_mul_i32 s56, s56, 552960')
    a(f's_add_u32 s56, s56, {WS_W2}')
    a('s_lshl_b32 s40, s12, 13')
    a('s_add_u32 s56, s56, s40')
    for i in range(9):
        a('buffer_load_dword v200, v201, s[8:11], s56 offen')
        a('s_add_u32 s56, s56, 65536')
    a('s_waitcnt vmcnt(0)')
    a.label(f'{L}_f2')
    phase_ffn2(a, L)
    a.label(f'{L}_fin')
    stamp(a, 14)
    if gen.PROF: a(f's_add_u32 s{PS+14}, s{PS+1}, s{SPURE}')
    if gen.PROF: a('s_waitcnt vmcnt(0)')
    stamp(a, 6, True)
    stamp_flush(a, 2, 15, 8, 12)
    a.label(f'{L}_end')
    a('s_endpgm')
    return a, descriptor(L, 256, 102), f'; @launch kernel={L} grid=(256,1,1) block=(512,1,1) lds=163840'

if __name__ == '__main__':
    if 'prof' in sys.argv: gen.PROF = True
    for x in sys.argv[2:]:
        if x.startswith('x:'): gen.EXP.add(x[2:])
    out = sys.argv[1]
    open(out, 'w').write(build([k0, k1, kf]))
    print('wrote', out)
```

```python
import sys
sys.path.insert(0, 'dev')
import gen, gen2
from gen import *
from gen2 import lab, stores2, attn_units, wo_dma, WS_XT, SG, SJ, SPURE, LDS_WO, SPIN_MAX
from asmlib import *

class VM:
    def __init__(self): self.ops = []
    def issue(self, tag): self.ops.append(tag)
    def count_after(self, pred):
        n = 0
        for x in reversed(self.ops):
            if pred(x): return n
            n += 1
        raise Exception('no op matches')
    def wait(self, a, pred, extra=''):
        a(f's_waitcnt vmcnt({min(self.count_after(pred), 63)}){extra}')

XR0 = 136
W1A, W1B = 152, 16
def w1reg(s): return W1A + 4 * s if s < 26 else W1B + 4 * (s - 26)
S_W1 = 98
V_W1 = 1

def flag_store(a, p, vt):
    a(f's_lshl_b32 s40, s{SG}, 7')
    a(f's_lshl_b32 s41, s{SJ}, 2')
    a('s_add_u32 s40, s40, s41')
    a(f's_add_u32 s40, s40, {WS_FLAG + p*1024}')
    a(f'v_mov_b32 v{vt}, 0')
    a(f'v_mov_b32 v{vt+1}, 1')
    a('s_mov_b64 exec, 1')
    stores2(a, [f'buffer_store_dword v{vt+1}, v{vt}, s[8:11], s40 offen'])
    a('s_mov_b64 exec, -1')

def sync(a, p_pub, p_wait, smask_setup, prefetch, vt=14):
    if p_pub is not None:
        a('s_waitcnt vmcnt(0)')
        a('s_barrier')
    l0, l1, lp, ld, l3 = lab('sy'), lab('sy'), lab('sy'), lab('sy'), lab('sy')
    a('s_cmp_lg_u32 s12, 0')
    a(f's_cbranch_scc1 {l0}')
    if p_pub is not None: flag_store(a, p_pub, vt)
    smask_setup()
    a(f's_lshl_b32 s40, s{SG}, 7')
    a(f's_add_u32 s40, s40, {WS_FLAG + p_wait*1024}')
    a(f'v_lshlrev_b32 v{vt}, 2, v2')
    a('s_mov_b64 exec, s[44:45]')
    a('s_mov_b32 s41, 0')
    a.label(lp)
    a(f'buffer_load_dword v{vt+1}, v{vt}, s[8:11], s40 offen sc1')
    a('s_add_u32 s41, s41, 1')
    a('s_waitcnt vmcnt(0)')
    a(f'v_cmp_eq_u32 vcc, 0, v{vt+1}')
    a(f's_cbranch_vccz {ld}')
    a(f's_cmp_lt_u32 s41, {SPIN_MAX}')
    a(f's_cbranch_scc1 {lp}')
    a.label(ld)
    a('s_mov_b64 exec, -1')
    a(f's_cmp_eq_u32 s{SPURE}, 1')
    a(f's_cbranch_scc1 {l3}')
    a('buffer_inv sc1')
    a('s_waitcnt vmcnt(0)')
    a.label(l3)
    a('s_barrier')
    prefetch()
    a(f's_branch {l1}')
    a.label(l0)
    prefetch()
    a('s_barrier')
    a.label(l1)

def phase_attn(a):
    R = AR
    attn_setup(a, SJ, SG, 12, 8)
    a(f's_lshr_b32 s62, s{SJ}, 2')
    a('s_mul_i32 s62, s62, 102400')
    a(f's_add_u32 s62, s62, {WS_WO}')
    a('s_lshl_b32 s61, s12, 10')
    a('s_add_u32 s62, s62, s61')
    a('s_cmp_lt_u32 s12, 4')
    a(f's_mov_b32 s63, {11*8192}')
    a(f's_cselect_b32 s63, {12*8192}, s63')
    a('s_add_u32 s63, s63, s62')
    a(f's_add_u32 s61, s61, {LDS_WO}')
    for r in range(32): a(f'v_mov_b32 v{R.O+r}, 0')
    for r in range(16): a(f'v_mov_b32 v{R.P+r}, 0')
    for r in range(16): a(f'v_mov_b32 v{R.VV+r}, 0')
    vm = VM()
    attn_dma(a, 0, 8)
    lane_swap23(a, 14, 3, 15)
    a('v_lshrrev_b32 v15, 4, v14')
    a('s_movk_i32 s40, 20480')
    a('v_mul_lo_u32 v15, v15, s40')
    a('v_and_b32 v14, 15, v14')
    a('v_lshl_add_u32 v15, v14, 4, v15')
    a(f'v_lshl_add_u32 v{V_W1}, v4, 8, v15')
    a(f's_lshr_b32 s40, s{SJ}, 1')
    a('s_lshl_b32 s40, s40, 2')
    a('s_and_b32 s41, s12, 3')
    a('s_add_u32 s40, s40, s41')
    a('s_mul_i32 s41, s40, 40960')
    a(f's_add_u32 s41, s41, {WS_W1}')
    a('s_cmp_lt_u32 s40, 54')
    a(f's_cselect_b32 s{S_W1}, s41, 0x7ff00000')
    a('s_waitcnt vmcnt(0)')
    for st in (1, 2):
        attn_dma(a, st, 8); vm.issue(('kv', st)); vm.issue(('kv', st))
    for x in wo_dma(): a(x)
    vm.issue('wo')
    a('v_cmp_gt_u32 vcc, 32, v2')
    for r in range(4): a(f'v_cndmask_b32 v{R.QC+r}, 0, v{R.QC+r}, vcc')
    a('s_waitcnt lgkmcnt(0)')
    a('s_barrier')
    a(f'ds_read_b128 {v(R.KA,4)}, v11 offset:0')
    a(f'ds_read_b64 {v(R.KC,2)}, v12 offset:0')
    a('s_waitcnt lgkmcnt(0)')
    a(f'v_mfma_f32_32x32x16_bf16 {v(R.S,16)}, {v(R.KA,4)}, {v(R.QA,4)}, 0')
    a(f'v_mfma_f32_32x32x8bf16_1k {v(R.S,16)}, {v(R.KC,2)}, {v(R.QC,2)}, {v(R.S,16)}')
    a('s_mov_b32 s60, 2')
    stamp(a, 7)
    a.label('.Lat_loop')
    attn_units(a, 8, [(st, False) for st in range(4)], lambda st: True, lambda st, u: ({8: wo_dma()} if u == 0 else {}), lambda st: 4)
    a('s_sub_u32 s60, s60, 1')
    a('s_cmp_lg_u32 s60, 0')
    a('s_cbranch_scc1 .Lat_loop')
    for s_ in range(8):
        vm.issue('wo'); vm.issue(('kv', s_ + 3)); vm.issue(('kv', s_ + 3))
    nW = {8: 5, 9: 5, 10: 5, 11: 5, 12: 6, 13: 0, 14: 0, 15: 0}
    wnext = [0]
    def w1load():
        s_ = wnext[0]; wnext[0] += 1
        return [f's_add_u32 s40, s{S_W1}, {s_*512}', f'buffer_load_dwordx4 {v(w1reg(s_),4)}, v{V_W1}, s[8:11], s40 offen']
    plan = {}
    waits = {}
    a('v_lshlrev_b32 v148, 6, v2')
    a('s_lshr_b32 s40, s12, 1')
    a('s_lshl_b32 s40, s40, 5')
    a(f's_add_u32 s40, s40, s{SJ}')
    a('s_mul_i32 s56, s40, 20480')
    a('s_and_b32 s41, s12, 1')
    a('s_lshl_b32 s41, s41, 12')
    a('s_add_u32 s56, s56, s41')
    a(f's_add_u32 s56, s56, {WS_W1 + 13312}')
    a('s_cmp_lt_u32 s40, 108')
    a('s_cselect_b32 s56, s56, 0x7ff00000')
    a(f's_and_b32 s40, s{SJ}, 3')
    a('s_lshl_b32 s40, s40, 2')
    a(f's_lshl_b32 s41, s{SG}, 4')
    a('s_add_u32 s40, s40, s41')
    a('s_and_b32 s41, s12, 3')
    a('s_add_u32 s40, s40, s41')
    a('s_lshl_b32 s40, s40, 4')
    a('v_and_b32 v0, 15, v2')
    a('v_add_u32 v0, s40, v0')
    a('s_movk_i32 s41, 1280')
    a('v_mul_lo_u32 v0, v0, s41')
    a('v_lshrrev_b32 v14, 4, v2')
    a('v_lshl_add_u32 v0, v14, 3, v0')
    a(f's_lshr_b32 s57, s{SJ}, 2')
    a('s_mul_i32 s57, s57, 160')
    a('s_lshr_b32 s40, s12, 2')
    a('s_mul_i32 s40, s40, 96')
    a('s_add_u32 s57, s57, s40')
    for g in range(8, 16):
        ex = {}
        k = nW[g]
        slots = [(0, 20), (1, 8), (1, 20), (2, 20), (2, 24), (0, 14)][:k]
        slots.sort()
        if g <= 11:
            ex.setdefault(0, {})[8] = wo_dma(); vm.issue('wo')
        if g == 12:
            ex.setdefault(0, {})[8] = [f's_lshl_b32 s40, s{SG}, 7', f's_add_u32 s40, s40, {WS_XT}', 'v_lshlrev_b32 v150, 2, v3',
                                       'buffer_load_dword v150, v150, s[8:11], s40 offen sc1']
            vm.issue('xt')
        post = []
        for (u, pos) in slots:
            if u < 2:
                ex.setdefault(u, {})[pos] = w1load(); vm.issue('w1')
            else:
                post.append((u, pos))
        if g < 15: waits[g] = vm.count_after(lambda x: x == ('kv', g + 1))
        for (u, pos) in post:
            ex.setdefault(u, {})[pos] = w1load(); vm.issue('w1')
        if g <= 12:
            vm.issue(('kv', g + 3)); vm.issue(('kv', g + 3))
        if g == 13:
            ex.setdefault(3, {})[8] = ['buffer_load_dword v149, v148, s[8:11], s56 offen']
            vm.issue('touch')
        if g == 14:
            ex.setdefault(3, {})[20] = [f'buffer_load_dwordx2 {v(XR0+2*i,2)}, v0, s[72:75], s57 offen offset:{32*i}' for i in range(3)]
        plan[g] = ex
    assert wnext[0] == 26, wnext
    def run(stages_g):
        loc = {g % 4: g for g in stages_g}
        def prio(st, u):
            g = loc[st]
            if g == 15: return {0: 2, 1: 1, 2: 1, 3: 0}[u]
            if g == 14 and u >= 2: return 3
            return {2: 3, 3: 2, 0: 1, 1: 0}[u]
        return attn_units(a, 8, [(g % 4, g == 15) for g in stages_g], lambda st: loc[st] <= 12,
                          lambda st, u: plan[loc[st]].get(u, {}), lambda st: waits[loc[st]], prio)
    run([8, 9, 10, 11])
    m1, m2, m3, m4, _ = run([12, 13, 14, 15])
    a(m3(1, 1, 1)); a(m4(1, 1, 1))
    a('s_setprio 0')
    stamp(a, 3)
    a('s_cmp_eq_u32 s46, 0')
    a('s_cbranch_scc1 .Lat_noswap')
    a('s_nop 7')
    for r in range(12): a(f'v_swap_b32 v{R.O+r}, v{R.O+16+r}')
    a.label('.Lat_noswap')
    a('s_nop 7')
    a(f's_mul_i32 s40, s12, 3072')
    a('v_add_u32 v14, s40, v10')
    for i in range(3): a(f'ds_write_b128 v14, {v(R.O+16+4*i,4)} offset:{1024*i}')
    a('s_xor_b32 s40, s12, 4')
    a('s_mul_i32 s40, s40, 3072')
    a('v_add_u32 v14, s40, v10')
    a('s_waitcnt lgkmcnt(0)')
    a('s_barrier')
    TT = R.S
    for i in range(3): a(f'ds_read_b128 {v(TT+4*i,4)}, v14 offset:{1024*i}')
    lp, ld = lab('xt'), lab('xt')
    a('s_mov_b32 s41, 0')
    a('v_cmp_eq_u32 vcc, 0, v150')
    a(f's_cbranch_vccz {ld}')
    a.label(lp)
    a(f's_lshl_b32 s40, s{SG}, 7')
    a(f's_add_u32 s40, s40, {WS_XT}')
    a('v_lshlrev_b32 v14, 2, v3')
    a('buffer_load_dword v150, v14, s[8:11], s40 offen sc1')
    a('s_add_u32 s41, s41, 1')
    a('s_waitcnt vmcnt(0)')
    a('v_cmp_eq_u32 vcc, 0, v150')
    a(f's_cbranch_vccz {ld}')
    a(f's_cmp_lt_u32 s41, {SPIN_MAX}')
    a(f's_cbranch_scc1 {lp}')
    a.label(ld)
    a(f'v_cmp_ne_u32 vcc, s{SPURE}, v150')
    a('s_cmp_eq_u64 vcc, 0')
    a(f's_cselect_b32 s{SPURE}, 1, 0')
    if 'slow' in gen.EXP: a(f's_mov_b32 s{SPURE}, 0')
    a('s_waitcnt lgkmcnt(0)')
    for r in range(12): a(f'v_add_f32 v{R.O+r}, v{R.O+r}, v{TT+r}')
    a(f'v_mov_b32 v{TT}, v{R.O+8}')
    a(f'v_mov_b32 v{TT+1}, v{R.O+8}')
    a(f'v_permlane32_swap_b32 v{TT}, v{TT+1}')
    a(f'v_rcp_f32 v{TT+1}, v{TT+1}')
    for r in range(12): a(f'v_mul_f32 v{R.O+r}, v{R.O+r}, v{TT+1}')
    for i in range(6): a(f'v_cvt_pk_bf16_f32 v{TT+4+i}, v{R.O+2*i}, v{R.O+2*i+1}')
    a('s_mul_i32 s61, s46, 40960')
    a('s_add_u32 s61, s61, s47')
    a(f's_add_u32 s61, s61, {WS_O}')
    a('s_lshl_b32 s62, s42, 8')
    a('s_add_u32 s62, s62, s61')
    a('s_lshl_b32 s63, s43, 8')
    a('s_add_u32 s63, s63, s61')
    a(f's_and_b32 s61, s{SJ}, 1')
    a('s_lshl_b32 s61, s61, 3')
    a('s_add_u32 s63, s63, s61')
    stores2(a, [f'buffer_store_dwordx4 {v(TT+4,4)}, v7, s[8:11], s62 offen',
                's_mov_b64 exec, 0xffffffff',
                f'buffer_store_dwordx2 {v(TT+8,2)}, v5, s[8:11], s63 offen',
                's_mov_b64 exec, -1'])

def phase_oproj(a):
    BF, AF, ACC, XR, T = 16, 56, 96, XR0, 116
    a(f's_and_b32 s20, s{SJ}, 3')
    a(f's_lshr_b32 s21, s{SJ}, 2')
    a('s_and_b32 s22, s12, 3')
    a('s_lshr_b32 s23, s12, 2')
    a(f's_lshl_b32 s29, s{SG}, 4')
    a('s_lshl_b32 s30, s20, 2')
    a('s_add_u32 s29, s29, s30')
    a('s_add_u32 s29, s29, s22')
    a('v_and_b32 v5, 15, v2')
    a('v_lshrrev_b32 v6, 4, v2')
    a('s_mul_i32 s30, s29, 20480')
    a('s_mul_i32 s31, s23, 10240')
    a('s_add_u32 s30, s30, s31')
    a(f's_add_u32 s30, s30, {WS_O}')
    a('s_mul_i32 s33, s23, 10240')
    a(f's_add_u32 s33, s33, {LDS_WO}')
    a('v_add_u32 v8, s33, v10')
    a(f'v_add_u32 v9, {3*20480}, v8')
    def pre(): pass
    def mask():
        a('s_mov_b32 s44, -1'); a('s_mov_b32 s45, 0')
    sync(a, 0, 0, mask, pre)
    stamp(a, 8)
    for i in range(10):
        if i % 4 == 0: a(f's_add_u32 s31, s30, {i*1024}')
        a(f'buffer_load_dwordx4 {v(BF+4*i,4)}, v10, s[8:11], s31 offen offset:{(i%4)*1024} sc1')
    def areads(i, buf):
        for ft in range(5):
            off = ft * 20480 + i * 1024
            base = 8
            if ft >= 3: off -= 3 * 20480; base = 9
            a(f'ds_read_b128 {v(AF+20*buf+4*ft,4)}, v{base} offset:{off}')
    areads(0, 0)
    for i in range(10):
        if i < 9:
            areads(i + 1, (i + 1) & 1)
            a(f's_waitcnt vmcnt({9-i}) lgkmcnt(5)')
        else:
            a('s_waitcnt vmcnt(0) lgkmcnt(0)')
        for ft in range(5):
            acc = v(ACC + 4 * ft, 4)
            a(f'v_mfma_f32_16x16x32_bf16 {acc}, {v(AF+20*(i&1)+4*ft,4)}, {v(BF+4*i,4)}, {"0" if i == 0 else acc}')
    stamp(a, 9)
    a('s_mul_i32 s40, s12, 3072')
    a('s_add_u32 s40, s40, 32768')
    a('v_add_u32 v14, s40, v10')
    l1, l2 = lab('ox'), lab('ox')
    a('s_nop 7')
    a('s_cmp_eq_u32 s23, 0')
    a(f's_cbranch_scc0 {l1}')
    for i, ft in enumerate((3, 4)): a(f'ds_write_b128 v14, {v(ACC+4*ft,4)} offset:{1024*i}')
    a(f's_branch {l2}')
    a.label(l1)
    for ft in range(3): a(f'ds_write_b128 v14, {v(ACC+4*ft,4)} offset:{1024*ft}')
    a('s_waitcnt lgkmcnt(0)')
    for r in range(8): a(f'v_mov_b32 v{ACC+r}, v{ACC+12+r}')
    for r in range(8, 12): a(f'v_mov_b32 v{ACC+r}, 0')
    a.label(l2)
    a('s_xor_b32 s40, s12, 4')
    a('s_mul_i32 s40, s40, 3072')
    a('s_add_u32 s40, s40, 32768')
    a('v_add_u32 v14, s40, v10')
    a('s_waitcnt lgkmcnt(0)')
    a('s_barrier')
    for i in range(3): a(f'ds_read_b128 {v(T+4*i,4)}, v14 offset:{1024*i}')
    a('s_waitcnt lgkmcnt(0)')
    for r in range(12): a(f'v_add_f32 v{ACC+r}, v{ACC+r}, v{T+r}')
    for i in range(3):
        for h2 in range(2):
            a(f'v_lshlrev_b32 v{T}, 16, v{XR+2*i+h2}')
            a(f'v_and_b32 v{T+1}, 0xffff0000, v{XR+2*i+h2}')
            a(f'v_add_f32 v{ACC+4*i+2*h2}, v{ACC+4*i+2*h2}, v{T}')
            a(f'v_add_f32 v{ACC+4*i+2*h2+1}, v{ACC+4*i+2*h2+1}, v{T+1}')
    l3 = lab('ox')
    a('s_cmp_eq_u32 s23, 0')
    a(f's_cbranch_scc1 {l3}')
    for r in range(8, 12): a(f'v_mov_b32 v{ACC+r}, 0')
    a.label(l3)
    a(f'v_mov_b32 v{T}, v{ACC}')
    a(f'v_mul_f32 v{T+1}, v{ACC}, v{ACC}')
    for r in range(1, 12):
        a(f'v_add_f32 v{T}, v{T}, v{ACC+r}')
        a(f'v_fmac_f32 v{T+1}, v{ACC+r}, v{ACC+r}')
    sum_q4(a, T, T+2, T+3)
    sum_q4(a, T+1, T+2, T+3)
    for i in range(6): a(f'v_cvt_pk_bf16_f32 v{T+4+i}, v{ACC+2*i}, v{ACC+2*i+1}')
    a('s_mul_i32 s34, s29, 20480')
    a('s_mul_i32 s35, s21, 2560')
    a('s_add_u32 s34, s34, s35')
    a('s_mul_i32 s35, s23, 1536')
    a('s_add_u32 s34, s34, s35')
    a(f's_add_u32 s34, s34, {WS_H}')
    a('v_lshrrev_b32 v11, 1, v6')
    a('v_lshlrev_b32 v11, 8, v11')
    a('v_lshl_add_u32 v11, v5, 4, v11')
    a('v_and_b32 v12, 1, v6')
    a('v_lshl_add_u32 v11, v12, 3, v11')
    a('s_lshl_b32 s33, s29, 7')
    a('s_lshl_b32 s35, s21, 1')
    a('s_add_u32 s35, s35, s23')
    a('s_lshl_b32 s35, s35, 14')
    a('s_add_u32 s33, s33, s35')
    a(f's_add_u32 s33, s33, {WS_ST2}')
    a('v_lshlrev_b32 v12, 3, v5')
    a('s_cmp_eq_u32 s23, 0')
    a(f's_cselect_b32 s35, s34, {0x7ffff000}')
    stores2(a, [f'buffer_store_dwordx2 {v(T+4,2)}, v11, s[8:11], s34 offen',
                f'buffer_store_dwordx2 {v(T+6,2)}, v11, s[8:11], s34 offen offset:512',
                f'buffer_store_dwordx2 {v(T+8,2)}, v11, s[8:11], s35 offen offset:1024',
                's_mov_b64 exec, 0xffff',
                f'buffer_store_dwordx2 {v(T,2)}, v12, s[8:11], s33 offen',
                's_mov_b64 exec, -1'])

F2_SLOT = {0: 81920, 1: 122880, 2: 0, 3: 40960, 4: 81920, 5: 122880, 6: 0}
def w2_setup(a):
    a(f's_lshr_b32 s21, s{SJ}, 2')
    a('s_lshr_b32 s22, s12, 2')
    a('s_and_b32 s23, s12, 3')
    a('s_mul_i32 s26, s23, 14')
    a('s_cmp_eq_u32 s23, 3')
    a('s_cselect_b32 s27, 1, 0')
    a('s_sub_u32 s26, s26, s27')
    a('s_mul_i32 s47, s21, 276480')
    a(f's_add_u32 s47, s47, {WS_W2}')
    a('s_add_u32 s48, s26, s22')
    a('s_lshl_b32 s48, s48, 10')
    a('s_add_u32 s47, s47, s48')
    a('s_lshl_b32 s48, s23, 1')
    a('s_add_u32 s48, s48, s22')
    a('s_mul_i32 s48, s48, 5120')
def w2_dma(st, ft):
    return [f's_add_u32 m0, s48, {F2_SLOT[st] + ft*1024}', f's_add_u32 s49, s47, {st*2048 + ft*55296}',
            'buffer_load_dwordx4 v10, s[8:11], s49 offen lds']

def phase_ffn1(a, vm_pre):
    ACC, FB = 72, 104
    CS, B1, ST = 152, 168, 128
    NS = 5
    w2_setup(a)
    a(f's_and_b32 s13, s{SJ}, 1')
    a(f's_lshl_b32 s15, s{SG}, 1')
    a('s_add_u32 s13, s13, s15')
    a(f's_lshr_b32 s14, s{SJ}, 1')
    a('s_and_b32 s23, s12, 3')
    a('s_lshr_b32 s26, s12, 2')
    a('v_lshrrev_b32 v7, 4, v3')
    a('s_movk_i32 s17, 20480')
    a('v_mul_lo_u32 v7, v7, s17')
    a('v_and_b32 v6, 15, v3')
    a('v_lshl_add_u32 v7, v6, 4, v7')
    a('v_lshl_add_u32 v7, v4, 8, v7')
    a('s_lshl_b32 s20, s13, 3')
    a('s_lshl_b32 s19, s23, 1')
    a('s_add_u32 s20, s20, s19')
    a('s_mul_i32 s20, s20, 20480')
    a('s_lshl_b32 s19, s26, 10')
    a('s_add_u32 s20, s20, s19')
    a(f's_add_u32 s20, s20, {WS_H}')
    a('s_lshl_b32 s22, s23, 10')
    a('s_lshl_b32 s19, s26, 13')
    a('s_add_u32 s22, s22, s19')
    a('s_lshl_b32 s17, s26, 11')
    a('v_add_u32 v12, s17, v10')
    a('v_add_u32 v13, 0x10000, v12')
    vm = VM()
    def pre(): pass
    def mask():
        a(f's_and_b32 s40, s{SJ}, 1')
        a('s_cmp_eq_u32 s40, 0')
        a('s_mov_b32 s44, 0xcccccccc')
        a('s_cselect_b32 s44, 0x33333333, s44')
        a('s_mov_b32 s45, 0')
    sync(a, 1, 1, mask, pre)
    stamp(a, 10)
    nst = 10
    pend = [(st, i) for st in range(nst) for i in range(2)]
    def dma_one():
        st, i = pend.pop(0)
        a(f's_add_u32 m0, s22, {(st % NS)*16384 + i*4096}')
        a(f's_add_u32 s21, s20, {st*2048 + i*512}')
        a('buffer_load_dwordx4 v7, s[8:11], s21 offen sc1 lds')
        vm.issue(('h', st))
    for _ in range(2 * 3): dma_one()
    a('s_lshl_b32 s27, s13, 7')
    a('s_lshl_b32 s28, s26, 6')
    a('s_add_u32 s27, s27, s28')
    a('s_lshl_b32 s28, s13, 7')
    a('s_lshl_b32 s29, s23, 5')
    a('s_add_u32 s28, s28, s29')
    a('s_lshl_b32 s28, s28, 3')
    a(f's_add_u32 s28, s28, {WS_ST2}')
    a('v_lshlrev_b32 v14, 3, v3')
    a('v_lshl_add_u32 v14, v4, 17, v14')
    def st_load(q):
        a(f's_add_u32 s29, s28, {q*16384}')
        a(f'buffer_load_dwordx2 {v(ST+2*q,2)}, v14, s[8:11], s29 offen sc1')
        vm.issue('st')
    w1q = list(range(26, 40))
    def w1_load():
        s_ = w1q.pop(0)
        a(f's_add_u32 s40, s{S_W1}, {s_*512}')
        a(f'buffer_load_dwordx4 {v(w1reg(s_),4)}, v{V_W1}, s[8:11], s40 offen')
        vm.issue(('w1', s_))
    def reads(st, ks, buf):
        off = (st % NS) * 16384 + ks * 4096
        base = 12
        if off + 1024 >= 65536: off -= 65536; base = 13
        a(f'ds_read_b128 {v(FB+8*buf,4)}, v{base} offset:{off}')
        a(f'ds_read_b128 {v(FB+8*buf+4,4)}, v{base} offset:{off+1024}')
    def mfmas(s_, buf):
        for j in range(2):
            c = '0' if s_ == 0 else v(ACC+16*j, 16)
            a(f'v_mfma_f32_32x32x16_bf16 {v(ACC+16*j,16)}, {v(w1reg(s_),4)}, {v(FB+8*buf+4*j,4)}, {c}')
    F1S = 'f1stamp' in gen.EXP
    if F1S: stamp(a, 2)
    vm.wait(a, lambda x: x == ('h', 0))
    a('s_barrier')
    if F1S: stamp(a, 3)
    reads(0, 0, 0)
    buf = 0
    for st in range(nst):
        for ks in range(4):
            s_ = 4 * st + ks
            if ks < 3:
                reads(st, ks + 1, buf ^ 1)
                if s_ >= 26: vm.wait(a, lambda x: x == ('w1', s_), ' lgkmcnt(2)')
                else: a('s_waitcnt lgkmcnt(2)')
                mfmas(s_, buf)
            else:
                if st + 1 < nst:
                    a('s_waitcnt lgkmcnt(0)')
                    if F1S and st in (0, 2, 4, 6): stamp(a, {0: 4, 2: 7, 4: 9, 6: 13}[st])
                    vm.wait(a, lambda x: x == ('h', st + 1))
                    a('s_barrier')
                    if F1S and st in (0, 2, 4, 6): stamp(a, {0: 5, 2: 8, 4: 12, 6: 14}[st])
                    reads(st + 1, 0, buf ^ 1)
                else:
                    a('s_waitcnt lgkmcnt(0)')
                if s_ >= 26: vm.wait(a, lambda x: x == ('w1', s_))
                mfmas(s_, buf)
            lim = st + NS - 1 + (1 if ks == 3 else 0)
            if pend and pend[0][0] <= lim and (ks in (1, 3) or st == 0): dma_one()
            if ks in (0, 2) and w1q and st <= 6: w1_load()
            if st == 7 and ks < 4:
                st_load(2 * ks); st_load(2 * ks + 1)
            if st == 8 and ks == 0:
                a('s_lshl_b32 s29, s14, 7')
                a('s_lshl_b32 s30, s23, 5')
                a('s_add_u32 s29, s29, s30')
                a('s_lshl_b32 s29, s29, 2')
                a('v_lshlrev_b32 v15, 5, v4')
                a(f's_add_u32 s30, s29, {WS_CS1}')
                a(f's_add_u32 s31, s29, {WS_B1F}')
                for q, off in enumerate((0, 16, 64, 80)):
                    a(f'buffer_load_dwordx4 {v(CS+4*q,4)}, v15, s[8:11], s30 offen offset:{off}'); vm.issue('cs')
                    a(f'buffer_load_dwordx4 {v(B1+4*q,4)}, v15, s[8:11], s31 offen offset:{off}'); vm.issue('cs')
            buf ^= 1
    stamp(a, 11)
    LST = 0
    l2 = lab('st')
    vm.wait(a, lambda x: x == 'cs')
    a('s_cmp_ge_u32 s12, 4')
    a(f's_cbranch_scc1 {l2}')
    b = ST
    for q in range(1, 8):
        a(f'v_add_f32 v{b}, v{b}, v{b+2*q}')
        a(f'v_add_f32 v{b+1}, v{b+1}, v{b+2*q+1}')
    for r in range(2):
        a(f'v_mov_b32 v{b+2}, v{b+r}'); a(f'v_mov_b32 v{b+3}, v{b+r}')
        a(f'v_permlane32_swap_b32 v{b+2}, v{b+3}')
        a(f'v_add_f32 v{b+r}, v{b+2}, v{b+3}')
    a(f'v_mul_f32 v{b}, {f2hex(1.0/640)}, v{b}')
    a(f'v_mul_f32 v{b+1}, {f2hex(1.0/640)}, v{b+1}')
    a(f'v_fma_f32 v{b+1}, -v{b}, v{b}, v{b+1}')
    a(f'v_add_f32 v{b+1}, 0x3727c5ac, v{b+1}')
    a(f'v_rsq_f32 v{b+1}, v{b+1}')
    a(f'v_mul_f32 v{b}, v{b}, v{b+1}')
    a('s_lshl_b32 s28, s12, 8')
    a('v_lshlrev_b32 v14, 3, v3')
    a('v_add_u32 v14, s28, v14')
    a(f'ds_write_b64 v14, {v(b,2)} offset:{LST}')
    a.label(l2)
    a('s_waitcnt lgkmcnt(0)')
    a('s_barrier')
    a('s_lshl_b32 s28, s26, 9')
    a('v_lshlrev_b32 v14, 3, v3')
    a('v_add_u32 v14, s28, v14')
    a(f'ds_read_b64 {v(ST,2)}, v14 offset:{LST}')
    a(f'ds_read_b64 {v(ST+4,2)}, v14 offset:{LST+256}')
    a('s_waitcnt lgkmcnt(0)')
    for j in range(2):
        b = ST + 4 * j
        for r in range(16):
            a(f'v_fma_f32 v{b+2}, -v{b}, v{CS+r}, v{B1+r}')
            a(f'v_fma_f32 v{ACC+16*j+r}, v{b+1}, v{ACC+16*j+r}, v{b+2}')
            a(f'v_max_f32 v{ACC+16*j+r}, 0, v{ACC+16*j+r}')
            a(f'v_mul_f32 v{ACC+16*j+r}, v{ACC+16*j+r}, v{ACC+16*j+r}')
    PK = 104
    for r in range(16):
        a(f'v_cvt_pk_bf16_f32 v{PK+r}, v{ACC+2*r}, v{ACC+2*r+1}')
    a('v_lshrrev_b32 v13, 4, v3')
    a('s_mov_b32 s18, 55296')
    a('v_mul_lo_u32 v13, v13, s18')
    a('v_and_b32 v14, 15, v3')
    a('v_lshl_add_u32 v13, v14, 4, v13')
    a('v_lshl_add_u32 v13, v4, 8, v13')
    a('s_lshr_b32 s18, s27, 4')
    a('s_mul_i32 s18, s18, 55296')
    a('s_lshl_b32 s17, s14, 2')
    a('s_add_u32 s17, s17, s23')
    a('s_cmp_ge_u32 s17, 54')
    a('s_cselect_b32 s19, 0x40000000, 0')
    a('s_lshl_b32 s17, s17, 10')
    a('s_add_u32 s17, s17, s18')
    a(f's_add_u32 s17, s17, {WS_G}')
    a('s_add_u32 s17, s17, s19')
    a(f's_add_u32 s18, s17, {2*55296}')
    stores2(a, [f'buffer_store_dwordx4 {v(PK,4)}, v13, s[8:11], s17 offen',
                f'buffer_store_dwordx4 {v(PK+4,4)}, v13, s[8:11], s17 offen offset:512',
                f'buffer_store_dwordx4 {v(PK+8,4)}, v13, s[8:11], s18 offen',
                f'buffer_store_dwordx4 {v(PK+12,4)}, v13, s[8:11], s18 offen offset:512'])

def phase_ffn2(a, L, published):
    NST = 7
    vm = VM()
    BF, ACC, AF, T = 16, 128, 168, 16
    def pre():
        for st in (0, 1):
            for ft in range(5):
                for x in w2_dma(st, ft): a(x)
    def mask():
        a(f's_and_b32 s40, s{SJ}, 2')
        a('s_cmp_eq_u32 s40, 0')
        a('s_mov_b32 s44, 0x0aaaaaaa')
        a('s_cselect_b32 s44, 0x05555555, s44')
        a('s_mov_b32 s45, 0')
    sync(a, 2 if published else None, 2, mask, pre)
    return vm

def ffn2_body(a, L):
    NST = 7
    vm = VM()
    for st in (0, 1):
        for ft in range(5): vm.issue(('w', st))
    BF, ACC, AF, T = 16, 128, 168, 16
    if 'f1stamp' not in gen.EXP: stamp(a, 12)
    a(f's_and_b32 s20, s{SJ}, 3')
    a(f's_lshr_b32 s21, s{SJ}, 2')
    a('s_lshr_b32 s22, s12, 2')
    a('s_and_b32 s23, s12, 3')
    a('s_mul_i32 s26, s23, 14')
    a('s_cmp_eq_u32 s23, 3')
    a('s_cselect_b32 s27, 1, 0')
    a('s_sub_u32 s26, s26, s27')
    a(f's_lshl_b32 s31, s{SG}, 4')
    a('s_lshl_b32 s32, s20, 2')
    a('s_add_u32 s31, s31, s32')
    a('s_lshl_b32 s32, s22, 1')
    a('s_add_u32 s32, s32, s31')
    a('s_mul_i32 s32, s32, 55296')
    a('s_lshl_b32 s33, s26, 10')
    a('s_add_u32 s32, s32, s33')
    a(f's_add_u32 s32, s32, {WS_G}')
    def bload(i):
        for j in range(2):
            a(f's_add_u32 s33, s32, {j*55296 + i*1024}')
            a(f'buffer_load_dwordx4 {v(BF+8*i+4*j,4)}, v10, s[8:11], s33 offen sc1')
            vm.issue(('b', i))
    for i in range(2): bload(i)
    bq = list(range(2, 14))
    wq = [(st, ft) for st in range(2, 7) for ft in range(5)]
    a('s_mul_i32 s34, s23, 10240')
    a('v_add_u32 v8, s34, v10')
    a('v_add_u32 v9, 0x10000, v8')
    a('v_add_u32 v11, 0x20000, v8')
    def areads(st, i, buf):
        for ft in range(5):
            off = F2_SLOT[st] + i * 5120 + ft * 1024
            base = {0: 8, 1: 9, 2: 11}[off >> 16]
            a(f'ds_read_b128 {v(AF+20*buf+4*ft,4)}, v{base} offset:{off & 65535}')
    for st in range(NST):
        vm.wait(a, lambda x: x == ('w', st) or x == ('b', min(2*st+1, 13)))
        a('s_barrier')
        areads(st, 0, 0)
        areads(st, 1, 1)
        for i in range(2):
            ks = 2 * st + i
            a(f's_waitcnt lgkmcnt({5 if i == 0 else 0})')
            last = (ks == 13)
            if last:
                a('s_cmp_ge_u32 s23, 2')
                a(f's_cbranch_scc1 {L}_skip')
            for ft in range(5):
                for j in range(2):
                    acc = v(ACC + 4 * (2 * ft + j), 4)
                    a(f'v_mfma_f32_16x16x32_bf16 {acc}, {v(AF+20*i+4*ft,4)}, {v(BF+8*ks+4*j,4)}, {"0" if ks == 0 else acc}')
                if not last:
                    nb = 1 if ft in (0, 3) else 0
                    if st == 0 and ft == 4: nb = 1
                    for _ in range(nb):
                        if bq and bq[0] <= ks + 6: bload(bq.pop(0))
                    nw = 2 if st <= 1 else 1
                    for _ in range(nw):
                        if wq and wq[0][0] - 3 <= st and (wq[0][0] <= 3 or wq[0][0] - 3 <= st):
                            x_ = wq.pop(0)
                            for x in w2_dma(*x_): a(x)
                            vm.issue(('w', x_[0]))
            if last: a.label(f'{L}_skip')
    if 'f1stamp' not in gen.EXP: stamp(a, 13)
    a('v_and_b32 v5, 15, v2')
    a('v_lshrrev_b32 v6, 4, v2')
    HR, BB = 228, 208
    a('s_and_b32 s33, s12, 3')
    a('s_add_u32 s33, s31, s33')
    a('s_mul_i32 s34, s33, 20480')
    a('s_mul_i32 s35, s21, 2560')
    a('s_add_u32 s34, s34, s35')
    a(f's_add_u32 s34, s34, {WS_H}')
    a('v_lshrrev_b32 v12, 1, v6')
    a('v_lshlrev_b32 v12, 8, v12')
    a('v_lshl_add_u32 v12, v5, 4, v12')
    a('v_and_b32 v13, 1, v6')
    a('v_lshl_add_u32 v12, v13, 3, v12')
    a('s_nop 7')
    for ft in range(5):
        a(f'buffer_load_dwordx2 {v(HR+2*ft,2)}, v12, s[8:11], s34 offen offset:{512*ft} sc1')
    a('s_mul_i32 s35, s21, 320')
    a(f's_add_u32 s35, s35, {WS_B2F}')
    a('v_lshlrev_b32 v13, 4, v6')
    for ft in range(5):
        a(f'buffer_load_dwordx4 {v(BB+4*ft,4)}, v13, s[8:11], s35 offen offset:{64*ft}')
    a('s_barrier')
    ksplit_reduce(a, ACC, T, 12, 22, 23, 10, 14)
    a('s_cmp_ge_u32 s12, 4')
    a(f's_cbranch_scc1 {L}_fin')
    ksplit_gather(a, T, 12, 10, 14)
    a('s_waitcnt vmcnt(0)')
    for ft in range(5):
        for h2 in range(2):
            a(f'v_lshlrev_b32 v{T+20}, 16, v{HR+2*ft+h2}')
            a(f'v_and_b32 v{T+21}, 0xffff0000, v{HR+2*ft+h2}')
            a(f'v_add_f32 v{T+4*ft+2*h2}, v{T+4*ft+2*h2}, v{BB+4*ft+2*h2}')
            a(f'v_add_f32 v{T+4*ft+2*h2+1}, v{T+4*ft+2*h2+1}, v{BB+4*ft+2*h2+1}')
            a(f'v_add_f32 v{T+4*ft+2*h2}, v{T+4*ft+2*h2}, v{T+20}')
            a(f'v_add_f32 v{T+4*ft+2*h2+1}, v{T+4*ft+2*h2+1}, v{T+21}')
    for i in range(10):
        a(f'v_cvt_pk_bf16_f32 v{T+24+i}, v{T+2*i}, v{T+2*i+1}')
    a('s_lshl_b32 s33, s33, 4')
    a('v_add_u32 v7, s33, v5')
    a('s_movk_i32 s34, 1280')
    a('v_mul_lo_u32 v7, v7, s34')
    a('v_lshl_add_u32 v7, v6, 3, v7')
    a('s_mul_i32 s34, s21, 160')
    for ft in range(5):
        a(f'buffer_store_dwordx2 {v(T+24+2*ft,2)}, v7, s[76:79], s34 offen offset:{32*ft}')

def kf():
    a = Asm()
    L = 'kf_kernel'
    kernel_begin(a, L)
    a('s_cmp_ge_u32 s2, 256')
    a(f's_cbranch_scc1 {L}_end')
    stamp(a, 0, True); stamp(a, 1)
    a(f's_load_dwordx2 s[4:5], s[0:1], {A_WS}')
    a(f's_load_dwordx2 s[68:69], s[0:1], {A_X}')
    a(f's_load_dwordx2 s[70:71], s[0:1], {A_OUT}')
    a(f's_and_b32 s{SG}, s2, 7')
    a(f's_lshr_b32 s{SJ}, s2, 3')
    a('v_lshrrev_b32 v1, 6, v0')
    a('v_and_b32 v2, 63, v0')
    a('v_readfirstlane_b32 s12, v1')
    a('v_and_b32 v3, 31, v2')
    a('v_lshrrev_b32 v4, 5, v2')
    a(f's_getreg_b32 s{SPURE}, hwreg(HW_REG_XCC_ID, 0, 4)')
    a(f's_add_u32 s{SPURE}, s{SPURE}, 1')
    a('s_waitcnt lgkmcnt(0)')
    srd(a, 8, 4, WS_END)
    srd(a, 72, 68, S * D * 2)
    srd(a, 76, 70, S * D * 2)
    l = lab('xp')
    a('s_cmp_lg_u32 s12, 0')
    a(f's_cbranch_scc1 {l}')
    a(f's_lshl_b32 s40, s{SG}, 7')
    a(f's_lshl_b32 s41, s{SJ}, 2')
    a('s_add_u32 s40, s40, s41')
    a(f's_add_u32 s40, s40, {WS_XT}')
    a('v_mov_b32 v14, 0')
    a(f'v_mov_b32 v15, s{SPURE}')
    a('s_mov_b64 exec, 1')
    a('buffer_store_dword v15, v14, s[8:11], s40 offen sc1')
    a('s_mov_b64 exec, -1')
    a.label(l)
    if 'nocodepf' not in gen.EXP:
        a('s_getpc_b64 s[40:41]')
        a.label('.Lpc_here')
        a(f's_sub_u32 s40, s40, (.Lpc_here - {L})')
        a('s_subb_u32 s41, s41, 0')
        a('s_lshl_b32 s42, s12, 12')
        a('v_lshlrev_b32 v14, 6, v2')
        a('v_add_u32 v14, s42, v14')
        a(f's_mov_b32 s42, (.Lkf_last - {L})')
        a('v_add_u32 v16, 0x8000, v14')
        a('v_min_u32 v14, s42, v14')
        a('v_min_u32 v16, s42, v16')
        a('v_mov_b32 v15, s41')
        a('v_mov_b32 v17, s41')
        a('v_add_co_u32 v14, vcc, s40, v14')
        a('v_addc_co_u32 v15, vcc, 0, v15, vcc')
        a('v_add_co_u32 v16, vcc, s40, v16')
        a('v_addc_co_u32 v17, vcc, 0, v17, vcc')
        a('global_load_dword v151, v[14:15], off')
        a('global_load_dword v151, v[16:17], off')
    stamp(a, 2)
    phase_attn(a)
    stamp(a, 4)
    phase_oproj(a)
    stamp(a, 5)
    a(f's_cmp_ge_u32 s{SJ}, 28')
    a(f's_cbranch_scc1 {L}_idle')
    phase_ffn1(a, None)
    phase_ffn2(a, L, True)
    a(f's_branch {L}_f2')
    a.label(f'{L}_idle')
    a('s_waitcnt vmcnt(0)')
    a('s_barrier')
    li = lab('id')
    a('s_cmp_lg_u32 s12, 0')
    a(f's_cbranch_scc1 {li}')
    flag_store(a, 1, 14)
    a.label(li)
    w2_setup(a)
    a('v_lshlrev_b32 v20, 6, v2')
    a(f's_sub_u32 s56, s{SJ}, 28')
    a('s_lshl_b32 s56, s56, 3')
    a('s_add_u32 s56, s56, s12')
    a('s_mul_i32 s56, s56, 69120')
    a(f's_add_u32 s56, s56, {WS_W2}')
    for i in range(17):
        a('buffer_load_dword v21, v20, s[8:11], s56 offen')
        a('s_add_u32 s56, s56, 4096')
    a('s_waitcnt vmcnt(0)')
    phase_ffn2(a, L, False)
    a.label(f'{L}_f2')
    ffn2_body(a, L)
    a.label(f'{L}_fin')
    if 'f1stamp' not in gen.EXP: stamp(a, 14)
    if gen.PROF: a('s_waitcnt vmcnt(0)')
    stamp(a, 6, True)
    stamp_flush(a, 2, 15, 8, 12)
    a.label(f'{L}_end')
    a.label('.Lkf_last')
    a('s_endpgm')
    return a, descriptor(L, 256, 102), f'; @launch kernel={L} grid=(256,1,1) block=(512,1,1) lds=163840'

if __name__ == '__main__':
    if 'prof' in sys.argv: gen.PROF = True
    for x in sys.argv[2:]:
        if x.startswith('x:'): gen.EXP.add(x[2:])
    out = sys.argv[1]
    open(out, 'w').write(build([k0, k1, kf]))
    print('wrote', out)
```

```python
import sys
sys.path.insert(0, 'dev')
import gen, gen2
from gen import *
from gen2 import lab, stores2, attn_units, wo_dma, WS_XT, SG, SJ, SPURE, LDS_WO, SPIN_MAX
from asmlib import *

class VM:
    def __init__(self): self.ops = []
    def issue(self, tag): self.ops.append(tag)
    def count_after(self, pred):
        n = 0
        for x in reversed(self.ops):
            if pred(x): return n
            n += 1
        raise Exception('no op matches')
    def wait(self, a, pred, extra=''):
        a(f's_waitcnt vmcnt({min(self.count_after(pred), 63)}){extra}')

XR0 = 136
W1A, W1B = 152, 16
def w1reg(s): return W1A + 4 * s if s < 26 else W1B + 4 * (s - 26)
SH, SR = 36, 37
S_OOB = 38
S_W1 = 98
V_W1 = 1

def flag_store(a, p, vt):
    g_, j_ = (SR, SH) if p == 0 else (SG, SJ)
    a(f's_lshl_b32 s40, s{g_}, 7')
    a(f's_lshl_b32 s41, s{j_}, 2')
    a('s_add_u32 s40, s40, s41')
    a(f's_add_u32 s40, s40, {WS_FLAG + p*1024}')
    a(f'v_mov_b32 v{vt}, 0')
    a(f'v_mov_b32 v{vt+1}, 1')
    a('s_mov_b64 exec, 1')
    stores2(a, [f'buffer_store_dword v{vt+1}, v{vt}, s[8:11], s40 offen'])
    a('s_mov_b64 exec, -1')

def sync(a, p_pub, p_wait, smask_setup, prefetch, vt=14):
    if p_pub is not None:
        a('s_waitcnt vmcnt(0)')
        a('s_barrier')
    l0, l1, lp, ld, l3 = lab('sy'), lab('sy'), lab('sy'), lab('sy'), lab('sy')
    a('s_cmp_lg_u32 s12, 0')
    a(f's_cbranch_scc1 {l0}')
    if p_pub is not None: flag_store(a, p_pub, vt)
    smask_setup()
    a(f's_lshl_b32 s40, s{SG}, 7')
    a(f's_add_u32 s40, s40, {WS_FLAG + p_wait*1024}')
    a(f'v_lshlrev_b32 v{vt}, 2, v2')
    a('s_mov_b64 exec, s[44:45]')
    a('s_mov_b32 s41, 0')
    a.label(lp)
    a(f'buffer_load_dword v{vt+1}, v{vt}, s[8:11], s40 offen sc1')
    a('s_add_u32 s41, s41, 1')
    a('s_waitcnt vmcnt(0)')
    a(f'v_cmp_eq_u32 vcc, 0, v{vt+1}')
    a(f's_cbranch_vccz {ld}')
    a(f's_cmp_lt_u32 s41, {SPIN_MAX}')
    a(f's_cbranch_scc1 {lp}')
    a.label(ld)
    a('s_mov_b64 exec, -1')
    a(f's_cmp_eq_u32 s{SPURE}, 1')
    a(f's_cbranch_scc1 {l3}')
    a('buffer_inv sc1')
    a('s_waitcnt vmcnt(0)')
    a.label(l3)
    a('s_barrier')
    prefetch()
    a(f's_branch {l1}')
    a.label(l0)
    prefetch()
    a('s_barrier')
    a.label(l1)

def phase_attn(a):
    R = AR
    attn_setup(a, SH, SR, 12, 8)
    a(f's_lshr_b32 s62, s{SJ}, 2')
    a('s_mul_i32 s62, s62, 102400')
    a(f's_add_u32 s62, s62, {WS_WO}')
    a('s_lshl_b32 s61, s12, 10')
    a('s_add_u32 s62, s62, s61')
    a('s_cmp_lt_u32 s12, 4')
    a(f's_mov_b32 s63, {11*8192}')
    a(f's_cselect_b32 s63, {12*8192}, s63')
    a('s_add_u32 s63, s63, s62')
    a(f's_add_u32 s61, s61, {LDS_WO}')
    for r in range(32): a(f'v_mov_b32 v{R.O+r}, 0')
    for r in range(16): a(f'v_mov_b32 v{R.P+r}, 0')
    for r in range(16): a(f'v_mov_b32 v{R.VV+r}, 0')
    vm = VM()
    attn_dma(a, 0, 8)
    lane_swap23(a, 14, 3, 15)
    a('v_lshrrev_b32 v15, 4, v14')
    a('s_movk_i32 s40, 20480')
    a('v_mul_lo_u32 v15, v15, s40')
    a('v_and_b32 v14, 15, v14')
    a('v_lshl_add_u32 v15, v14, 4, v15')
    a(f'v_lshl_add_u32 v{V_W1}, v4, 8, v15')
    a(f's_lshr_b32 s40, s{SJ}, 1')
    a('s_lshl_b32 s40, s40, 2')
    a('s_and_b32 s41, s12, 3')
    a('s_add_u32 s40, s40, s41')
    a('s_mul_i32 s41, s40, 40960')
    a(f's_add_u32 s41, s41, {WS_W1}')
    a('s_cmp_lt_u32 s40, 54')
    a(f's_cselect_b32 s{S_W1}, s41, 0x7ff00000')
    a(f's_mov_b32 s{S_OOB}, 0x7ff00000')
    lt1, lt2 = lab('tc'), lab('tc')
    a('v_lshlrev_b32 v148, 7, v2')
    a('s_cmp_ge_u32 s12, 4')
    a(f's_cbranch_scc1 {lt1}')
    a(f's_mul_i32 s50, s{SG}, {16*20480}')
    a(f's_mul_i32 s40, s{SJ}, 10240')
    a('s_add_u32 s50, s50, s40')
    a('s_and_b32 s40, s12, 1')
    a('s_mul_i32 s40, s40, 5120')
    a('s_add_u32 s50, s50, s40')
    a('s_lshr_b32 s40, s12, 1')
    a(f's_mul_i32 s40, s40, {WS_H - WS_O}')
    a('s_add_u32 s50, s50, s40')
    a(f's_add_u32 s50, s50, {WS_O}')
    a('v_add_u32 v148, s50, v148')
    a(f's_lshr_b32 s40, s{SJ}, 1')
    a('s_lshl_b32 s40, s40, 14')
    a(f's_lshl_b32 s41, s{SG}, 11')
    a('s_add_u32 s40, s40, s41')
    a(f's_and_b32 s41, s{SJ}, 1')
    a('s_lshl_b32 s41, s41, 10')
    a('s_add_u32 s40, s40, s41')
    a(f's_add_u32 s40, s40, {WS_ST2 - 40*128}')
    a('s_cmp_eq_u32 s12, 2')
    a('s_cselect_b32 s40, s40, 0x7ff00000')
    a('v_lshlrev_b32 v149, 7, v2')
    a('v_add_u32 v149, s40, v149')
    a('v_mov_b32 v14, 0x7ff00000')
    a('v_cmp_gt_u32 vcc, 48, v2')
    a('v_cndmask_b32 v149, v14, v149, vcc')
    a('v_cmp_gt_u32 vcc, 40, v2')
    a('v_cndmask_b32 v148, v149, v148, vcc')
    a(f's_branch {lt2}')
    a.label(lt1)
    a('s_sub_u32 s40, s12, 4')
    a('s_lshl_b32 s40, s40, 5')
    a(f's_add_u32 s40, s40, s{SJ}')
    a('s_mul_i32 s50, s40, 20480')
    a(f's_add_u32 s50, s50, {WS_W1 + 13312}')
    a('s_cmp_lt_u32 s40, 108')
    a('s_cselect_b32 s50, s50, 0x7ff00000')
    a('v_add_u32 v148, s50, v148')
    a('v_mov_b32 v14, 0x7ff00000')
    a('v_cmp_gt_u32 vcc, 56, v2')
    a('v_cndmask_b32 v148, v14, v148, vcc')
    a.label(lt2)
    a('v_lshlrev_b32 v147, 7, v2')
    a('s_lshl_b32 s40, s12, 13')
    a(f's_mul_i32 s51, s{SG}, {16*55296}')
    a(f's_mul_i32 s41, s{SJ}, 27648')
    a('s_add_u32 s51, s51, s41')
    a('s_add_u32 s51, s51, s40')
    a(f's_add_u32 s51, s51, {WS_G}')
    a('s_cmp_ge_u32 s12, 4')
    a('s_cselect_b32 s51, 0x7ff00000, s51')
    a(f's_and_b32 s40, s{SJ}, 3')
    a('s_lshl_b32 s40, s40, 2')
    a(f's_lshl_b32 s41, s{SG}, 4')
    a('s_add_u32 s40, s40, s41')
    a('s_and_b32 s41, s12, 3')
    a('s_add_u32 s40, s40, s41')
    a('s_lshl_b32 s40, s40, 4')
    a('v_and_b32 v0, 15, v2')
    a('v_add_u32 v0, s40, v0')
    a('s_movk_i32 s41, 1280')
    a('v_mul_lo_u32 v0, v0, s41')
    a('v_lshrrev_b32 v14, 4, v2')
    a('v_lshl_add_u32 v0, v14, 3, v0')
    a(f's_lshr_b32 s57, s{SJ}, 2')
    a('s_mul_i32 s57, s57, 160')
    a('s_lshr_b32 s40, s12, 2')
    a('s_mul_i32 s40, s40, 96')
    a('s_add_u32 s57, s57, s40')
    a('s_waitcnt vmcnt(0)')
    for st in (1, 2):
        attn_dma(a, st, 8); vm.issue(('kv', st)); vm.issue(('kv', st))
    for x in wo_dma(): a(x)
    vm.issue('wo')
    if 'notlb' not in gen.EXP:
        a('v_lshlrev_b32 v149, 16, v2')
        a('s_lshl_b32 s40, s12, 22')
        a('buffer_load_dword v149, v149, s[8:11], s40 offen')
        a('v_lshlrev_b32 v148, 16, v2')
        a('buffer_load_dword v148, v148, s[76:79], 0 offen')
    a('v_cmp_gt_u32 vcc, 32, v2')
    for r in range(4): a(f'v_cndmask_b32 v{R.QC+r}, 0, v{R.QC+r}, vcc')
    a('s_waitcnt lgkmcnt(0)')
    a('s_barrier')
    a(f'ds_read_b128 {v(R.KA,4)}, v11 offset:0')
    a(f'ds_read_b64 {v(R.KC,2)}, v12 offset:0')
    a('s_waitcnt lgkmcnt(0)')
    a(f'v_mfma_f32_32x32x16_bf16 {v(R.S,16)}, {v(R.KA,4)}, {v(R.QA,4)}, 0')
    a(f'v_mfma_f32_32x32x8bf16_1k {v(R.S,16)}, {v(R.KC,2)}, {v(R.QC,2)}, {v(R.S,16)}')
    stamp(a, 7)
    wnext = [0]
    def w1load():
        s_ = wnext[0]; wnext[0] += 1
        return [f's_add_u32 s40, s{S_W1}, {s_*512}', f'buffer_load_dwordx4 {v(w1reg(s_),4)}, v{V_W1}, s[8:11], s40 offen']
    plan = {}
    waits = {}
    nW = {2: 3, 3: 3, 4: 3, 5: 3, 6: 4, 7: 4, 8: 3, 9: 3}
    if 'now1a' in gen.EXP: nW = {}
    def masked(sreg, cond_lo, cond_hi, vreg):
        return [f's_sub_u32 s40, s12, {cond_lo}', f's_cmp_lt_u32 s40, {cond_hi - cond_lo}', f's_cselect_b32 s40, {sreg}, s{S_OOB}',
                f'buffer_load_dword v149, v{vreg}, s[8:11], s40 offen']
    for g in range(16):
        ex = {}
        k = nW.get(g, 0)
        slots = sorted([(0, 20), (1, 8), (1, 20), (2, 20)][:k])
        if g <= 11:
            ex.setdefault(0, {})[8] = wo_dma(); vm.issue('wo')
        if g == 12:
            ex.setdefault(0, {})[8] = [f's_lshl_b32 s40, s{SG}, 7', f's_add_u32 s40, s40, {WS_XT}', 'v_lshlrev_b32 v150, 2, v3',
                                       'buffer_load_dword v150, v150, s[8:11], s40 offen sc1']
            vm.issue('xt')
        tl = None
        if g == 10: tl = masked('0', 4, 6, 148)
        if g == 11: tl = masked('0', 6, 8, 148)
        if g == 12: tl = masked('0', 0, 4, 148)
        if g == 13: tl = ['buffer_load_dword v149, v147, s[8:11], s51 offen']
        if tl and 'notouch' not in gen.EXP:
            ex.setdefault(1, {})[14] = tl; vm.issue('touch')
        post = []
        pre_ops = []
        for (u, pos) in slots:
            if u < 2: ex.setdefault(u, {})[pos] = w1load(); vm.issue('w1')
            else: post.append((u, pos))
        if g < 15: waits[g] = vm.count_after(lambda x: x == ('kv', g + 1))
        for (u, pos) in post:
            ex.setdefault(u, {})[pos] = w1load(); vm.issue('w1')
        if g <= 12:
            vm.issue(('kv', g + 3)); vm.issue(('kv', g + 3))
        if g == 13:
            ex.setdefault(3, {})[20] = [f'buffer_load_dwordx2 {v(XR0+2*i,2)}, v0, s[72:75], s57 offen offset:{32*i}' for i in range(3)]
            for i in range(3): vm.issue('xr')
        plan[g] = ex
    assert wnext[0] == 26 or 'now1a' in gen.EXP, wnext
    def run(stages_g):
        loc = {g % 4: g for g in stages_g}
        def prio(st, u):
            g = loc[st]
            if g == 15: return {0: 2, 1: 1, 2: 1, 3: 0}[u]
            if g == 14 and u >= 2: return 3
            return {2: 3, 3: 2, 0: 1, 1: 0}[u]
        return attn_units(a, 8, [(g % 4, g == 15) for g in stages_g], lambda st: loc[st] <= 12,
                          lambda st, u: plan[loc[st]].get(u, {}), lambda st: waits[loc[st]], prio)
    for b_ in range(3): run([4*b_ + i for i in range(4)])
    m1, m2, m3, m4, _ = run([12, 13, 14, 15])
    a(m3(1, 1, 1)); a(m4(1, 1, 1))
    a('s_setprio 0')
    stamp(a, 3)
    a('s_cmp_eq_u32 s46, 0')
    a('s_cbranch_scc1 .Lat_noswap')
    a('s_nop 7')
    for r in range(12): a(f'v_swap_b32 v{R.O+r}, v{R.O+16+r}')
    a.label('.Lat_noswap')
    a('s_nop 7')
    a(f's_mul_i32 s40, s12, 3072')
    a('v_add_u32 v14, s40, v10')
    for i in range(3): a(f'ds_write_b128 v14, {v(R.O+16+4*i,4)} offset:{1024*i}')
    a('s_xor_b32 s40, s12, 4')
    a('s_mul_i32 s40, s40, 3072')
    a('v_add_u32 v14, s40, v10')
    a('s_waitcnt lgkmcnt(0)')
    a('s_barrier')
    TT = R.S
    for i in range(3): a(f'ds_read_b128 {v(TT+4*i,4)}, v14 offset:{1024*i}')
    lp, ld = lab('xt'), lab('xt')
    a('s_mov_b32 s41, 0')
    a('v_cmp_eq_u32 vcc, 0, v150')
    a(f's_cbranch_vccz {ld}')
    a.label(lp)
    a(f's_lshl_b32 s40, s{SG}, 7')
    a(f's_add_u32 s40, s40, {WS_XT}')
    a('v_lshlrev_b32 v14, 2, v3')
    a('buffer_load_dword v150, v14, s[8:11], s40 offen sc1')
    a('s_add_u32 s41, s41, 1')
    a('s_waitcnt vmcnt(0)')
    a('v_cmp_eq_u32 vcc, 0, v150')
    a(f's_cbranch_vccz {ld}')
    a(f's_cmp_lt_u32 s41, {SPIN_MAX}')
    a(f's_cbranch_scc1 {lp}')
    a.label(ld)
    a(f'v_cmp_ne_u32 vcc, s{SPURE}, v150')
    a('s_cmp_eq_u64 vcc, 0')
    a(f's_cselect_b32 s{SPURE}, 1, 0')
    if 'slow' in gen.EXP: a(f's_mov_b32 s{SPURE}, 0')
    a('s_waitcnt lgkmcnt(0)')
    for r in range(12): a(f'v_add_f32 v{R.O+r}, v{R.O+r}, v{TT+r}')
    a(f'v_mov_b32 v{TT}, v{R.O+8}')
    a(f'v_mov_b32 v{TT+1}, v{R.O+8}')
    a(f'v_permlane32_swap_b32 v{TT}, v{TT+1}')
    a(f'v_rcp_f32 v{TT+1}, v{TT+1}')
    for r in range(12): a(f'v_mul_f32 v{R.O+r}, v{R.O+r}, v{TT+1}')
    for i in range(6): a(f'v_cvt_pk_bf16_f32 v{TT+4+i}, v{R.O+2*i}, v{R.O+2*i+1}')
    a('s_mul_i32 s61, s46, 40960')
    a('s_add_u32 s61, s61, s47')
    a(f's_add_u32 s61, s61, {WS_O}')
    a('s_lshl_b32 s62, s42, 8')
    a('s_add_u32 s62, s62, s61')
    a('s_lshl_b32 s63, s43, 8')
    a('s_add_u32 s63, s63, s61')
    a(f's_and_b32 s61, s{SH}, 1')
    a('s_lshl_b32 s61, s61, 3')
    a('s_add_u32 s63, s63, s61')
    stores2(a, [f'buffer_store_dwordx4 {v(TT+4,4)}, v7, s[8:11], s62 offen',
                's_mov_b64 exec, 0xffffffff',
                f'buffer_store_dwordx2 {v(TT+8,2)}, v5, s[8:11], s63 offen',
                's_mov_b64 exec, -1'])

def phase_oproj(a):
    BF, AF, ACC, XR, T = 16, 56, 96, XR0, 116
    a(f's_and_b32 s20, s{SJ}, 3')
    a(f's_lshr_b32 s21, s{SJ}, 2')
    a('s_and_b32 s22, s12, 3')
    a('s_lshr_b32 s23, s12, 2')
    a(f's_lshl_b32 s29, s{SG}, 4')
    a('s_lshl_b32 s30, s20, 2')
    a('s_add_u32 s29, s29, s30')
    a('s_add_u32 s29, s29, s22')
    a('v_and_b32 v5, 15, v2')
    a('v_lshrrev_b32 v6, 4, v2')
    a('s_mul_i32 s30, s29, 20480')
    a('s_mul_i32 s31, s23, 10240')
    a('s_add_u32 s30, s30, s31')
    a(f's_add_u32 s30, s30, {WS_O}')
    a('s_mul_i32 s33, s23, 10240')
    a(f's_add_u32 s33, s33, {LDS_WO}')
    a('v_add_u32 v8, s33, v10')
    a(f'v_add_u32 v9, {3*20480}, v8')
    def pre(): pass
    def mask():
        a('s_mov_b32 s44, -1'); a('s_mov_b32 s45, 0')
    sync(a, 0, 0, mask, pre)
    stamp(a, 8)
    for i in range(10):
        if i % 4 == 0: a(f's_add_u32 s31, s30, {i*1024}')
        a(f'buffer_load_dwordx4 {v(BF+4*i,4)}, v10, s[8:11], s31 offen offset:{(i%4)*1024} sc1')
    def areads(i, buf):
        for ft in range(5):
            off = ft * 20480 + i * 1024
            base = 8
            if ft >= 3: off -= 3 * 20480; base = 9
            a(f'ds_read_b128 {v(AF+20*buf+4*ft,4)}, v{base} offset:{off}')
    areads(0, 0)
    for i in range(10):
        if i < 9:
            areads(i + 1, (i + 1) & 1)
            a(f's_waitcnt vmcnt({9-i}) lgkmcnt(5)')
        else:
            a('s_waitcnt vmcnt(0) lgkmcnt(0)')
        for ft in range(5):
            acc = v(ACC + 4 * ft, 4)
            a(f'v_mfma_f32_16x16x32_bf16 {acc}, {v(AF+20*(i&1)+4*ft,4)}, {v(BF+4*i,4)}, {"0" if i == 0 else acc}')
    stamp(a, 9)
    a('s_mul_i32 s40, s12, 3072')
    a('s_add_u32 s40, s40, 32768')
    a('v_add_u32 v14, s40, v10')
    l1, l2 = lab('ox'), lab('ox')
    a('s_nop 7')
    a('s_cmp_eq_u32 s23, 0')
    a(f's_cbranch_scc0 {l1}')
    for i, ft in enumerate((3, 4)): a(f'ds_write_b128 v14, {v(ACC+4*ft,4)} offset:{1024*i}')
    a(f's_branch {l2}')
    a.label(l1)
    for ft in range(3): a(f'ds_write_b128 v14, {v(ACC+4*ft,4)} offset:{1024*ft}')
    a('s_waitcnt lgkmcnt(0)')
    for r in range(8): a(f'v_mov_b32 v{ACC+r}, v{ACC+12+r}')
    for r in range(8, 12): a(f'v_mov_b32 v{ACC+r}, 0')
    a.label(l2)
    a('s_xor_b32 s40, s12, 4')
    a('s_mul_i32 s40, s40, 3072')
    a('s_add_u32 s40, s40, 32768')
    a('v_add_u32 v14, s40, v10')
    a('s_waitcnt lgkmcnt(0)')
    a('s_barrier')
    for i in range(3): a(f'ds_read_b128 {v(T+4*i,4)}, v14 offset:{1024*i}')
    a('s_waitcnt lgkmcnt(0)')
    for r in range(12): a(f'v_add_f32 v{ACC+r}, v{ACC+r}, v{T+r}')
    for i in range(3):
        for h2 in range(2):
            a(f'v_lshlrev_b32 v{T}, 16, v{XR+2*i+h2}')
            a(f'v_and_b32 v{T+1}, 0xffff0000, v{XR+2*i+h2}')
            a(f'v_add_f32 v{ACC+4*i+2*h2}, v{ACC+4*i+2*h2}, v{T}')
            a(f'v_add_f32 v{ACC+4*i+2*h2+1}, v{ACC+4*i+2*h2+1}, v{T+1}')
    l3 = lab('ox')
    a('s_cmp_eq_u32 s23, 0')
    a(f's_cbranch_scc1 {l3}')
    for r in range(8, 12): a(f'v_mov_b32 v{ACC+r}, 0')
    a.label(l3)
    a(f'v_mov_b32 v{T}, v{ACC}')
    a(f'v_mul_f32 v{T+1}, v{ACC}, v{ACC}')
    for r in range(1, 12):
        a(f'v_add_f32 v{T}, v{T}, v{ACC+r}')
        a(f'v_fmac_f32 v{T+1}, v{ACC+r}, v{ACC+r}')
    sum_q4(a, T, T+2, T+3)
    sum_q4(a, T+1, T+2, T+3)
    for i in range(6): a(f'v_cvt_pk_bf16_f32 v{T+4+i}, v{ACC+2*i}, v{ACC+2*i+1}')
    a('s_mul_i32 s34, s29, 20480')
    a('s_mul_i32 s35, s21, 2560')
    a('s_add_u32 s34, s34, s35')
    a('s_mul_i32 s35, s23, 1536')
    a('s_add_u32 s34, s34, s35')
    a(f's_add_u32 s34, s34, {WS_H}')
    a('v_lshrrev_b32 v11, 1, v6')
    a('v_lshlrev_b32 v11, 8, v11')
    a('v_lshl_add_u32 v11, v5, 4, v11')
    a('v_and_b32 v12, 1, v6')
    a('v_lshl_add_u32 v11, v12, 3, v11')
    a('s_lshl_b32 s33, s29, 7')
    a('s_lshl_b32 s35, s21, 1')
    a('s_add_u32 s35, s35, s23')
    a('s_lshl_b32 s35, s35, 14')
    a('s_add_u32 s33, s33, s35')
    a(f's_add_u32 s33, s33, {WS_ST2}')
    a('v_lshlrev_b32 v12, 3, v5')
    a('s_cmp_eq_u32 s23, 0')
    a(f's_cselect_b32 s35, s34, {0x7ffff000}')
    stores2(a, [f'buffer_store_dwordx2 {v(T+4,2)}, v11, s[8:11], s34 offen',
                f'buffer_store_dwordx2 {v(T+6,2)}, v11, s[8:11], s34 offen offset:512',
                f'buffer_store_dwordx2 {v(T+8,2)}, v11, s[8:11], s35 offen offset:1024',
                's_mov_b64 exec, 0xffff',
                f'buffer_store_dwordx2 {v(T,2)}, v12, s[8:11], s33 offen',
                's_mov_b64 exec, -1'])

F2_SLOT = {0: 81920, 1: 122880, 2: 0, 3: 40960, 4: 81920, 5: 122880, 6: 0}
def w2_setup(a):
    a(f's_lshr_b32 s21, s{SJ}, 2')
    a('s_lshr_b32 s22, s12, 2')
    a('s_and_b32 s23, s12, 3')
    a('s_mul_i32 s26, s23, 14')
    a('s_cmp_eq_u32 s23, 3')
    a('s_cselect_b32 s27, 1, 0')
    a('s_sub_u32 s26, s26, s27')
    a('s_mul_i32 s47, s21, 276480')
    a(f's_add_u32 s47, s47, {WS_W2}')
    a('s_add_u32 s48, s26, s22')
    a('s_lshl_b32 s48, s48, 10')
    a('s_add_u32 s47, s47, s48')
    a('s_lshl_b32 s48, s23, 1')
    a('s_add_u32 s48, s48, s22')
    a('s_mul_i32 s48, s48, 5120')
def w2_dma(st, ft):
    return [f's_add_u32 m0, s48, {F2_SLOT[st] + ft*1024}', f's_add_u32 s49, s47, {st*2048 + ft*55296}',
            'buffer_load_dwordx4 v10, s[8:11], s49 offen lds']

def far_touch(a, vt, vd):
    a(f'v_lshlrev_b32 v{vt}, 7, v2')
    a(f's_mul_i32 s56, s{SJ}, 69120')
    a('s_lshl_b32 s57, s12, 13')
    a('s_add_u32 s56, s56, s57')
    a(f's_add_u32 s56, s56, {WS_W2}')
    a(f'buffer_load_dword v{vd}, v{vt}, s[8:11], s56 offen')
    a(f's_mul_i32 s56, s{SG}, {16*55296}')
    a(f's_mul_i32 s57, s{SJ}, 27648')
    a('s_add_u32 s56, s56, s57')
    a('s_lshl_b32 s57, s12, 13')
    a('s_add_u32 s56, s56, s57')
    a(f's_add_u32 s56, s56, {WS_G}')
    a(f's_mul_i32 s57, s{SJ}, 69120')
    a(f's_add_u32 s57, s57, {WS_W2 + 65536}')
    a('s_cmp_eq_u32 s12, 4')
    a('s_cselect_b32 s56, s57, s56')
    a('s_cmp_gt_u32 s12, 4')
    a('s_cselect_b32 s56, 0x7ff00000, s56')
    a(f'buffer_load_dword v{vd}, v{vt}, s[8:11], s56 offen')

def phase_ffn1(a, vm_pre):
    ACC, FB = 72, 104
    CS, B1, ST = 152, 168, 128
    NS = 5
    w2_setup(a)
    a(f's_and_b32 s13, s{SJ}, 1')
    a(f's_lshl_b32 s15, s{SG}, 1')
    a('s_add_u32 s13, s13, s15')
    a(f's_lshr_b32 s14, s{SJ}, 1')
    a('s_and_b32 s23, s12, 3')
    a('s_lshr_b32 s26, s12, 2')
    a('v_lshrrev_b32 v7, 4, v3')
    a('s_movk_i32 s17, 20480')
    a('v_mul_lo_u32 v7, v7, s17')
    a('v_and_b32 v6, 15, v3')
    a('v_lshl_add_u32 v7, v6, 4, v7')
    a('v_lshl_add_u32 v7, v4, 8, v7')
    a('s_lshl_b32 s20, s13, 3')
    a('s_lshl_b32 s19, s23, 1')
    a('s_add_u32 s20, s20, s19')
    a('s_mul_i32 s20, s20, 20480')
    a('s_lshl_b32 s19, s26, 10')
    a('s_add_u32 s20, s20, s19')
    a(f's_add_u32 s20, s20, {WS_H}')
    a('s_lshl_b32 s22, s23, 10')
    a('s_lshl_b32 s19, s26, 13')
    a('s_add_u32 s22, s22, s19')
    a('s_lshl_b32 s17, s26, 11')
    a('v_add_u32 v12, s17, v10')
    a('v_add_u32 v13, 0x10000, v12')
    vm = VM()
    def pre(): pass
    def mask():
        a(f's_and_b32 s40, s{SJ}, 1')
        a('s_cmp_eq_u32 s40, 0')
        a('s_mov_b32 s44, 0xcccccccc')
        a('s_cselect_b32 s44, 0x33333333, s44')
        a('s_mov_b32 s45, 0')
    sync(a, 1, 1, mask, pre)
    stamp(a, 10)
    nst = 10
    pend = [(st, i) for st in range(nst) for i in range(2)]
    def dma_one():
        st, i = pend.pop(0)
        a(f's_add_u32 m0, s22, {(st % NS)*16384 + i*4096}')
        a(f's_add_u32 s21, s20, {st*2048 + i*512}')
        a('buffer_load_dwordx4 v7, s[8:11], s21 offen sc1 lds')
        vm.issue(('h', st))
    for _ in range(2 * 3): dma_one()
    a('s_lshl_b32 s27, s13, 7')
    a('s_lshl_b32 s28, s26, 6')
    a('s_add_u32 s27, s27, s28')
    a('s_lshl_b32 s28, s13, 7')
    a('s_lshl_b32 s29, s23, 5')
    a('s_add_u32 s28, s28, s29')
    a('s_lshl_b32 s28, s28, 3')
    a(f's_add_u32 s28, s28, {WS_ST2}')
    a('v_lshlrev_b32 v14, 3, v3')
    a('v_lshl_add_u32 v14, v4, 17, v14')
    def st_load(q):
        a(f's_add_u32 s29, s28, {q*16384}')
        a(f'buffer_load_dwordx2 {v(ST+2*q,2)}, v14, s[8:11], s29 offen sc1')
        vm.issue('st')
    w1q = list(range(26, 40))
    def w1_load():
        s_ = w1q.pop(0)
        a(f's_add_u32 s40, s{S_W1}, {s_*512}')
        a(f'buffer_load_dwordx4 {v(w1reg(s_),4)}, v{V_W1}, s[8:11], s40 offen')
        vm.issue(('w1', s_))
    def reads(st, ks, buf):
        off = (st % NS) * 16384 + ks * 4096
        base = 12
        if off + 1024 >= 65536: off -= 65536; base = 13
        a(f'ds_read_b128 {v(FB+8*buf,4)}, v{base} offset:{off}')
        a(f'ds_read_b128 {v(FB+8*buf+4,4)}, v{base} offset:{off+1024}')
    def mfmas(s_, buf):
        for j in range(2):
            c = '0' if s_ == 0 else v(ACC+16*j, 16)
            a(f'v_mfma_f32_32x32x16_bf16 {v(ACC+16*j,16)}, {v(w1reg(s_),4)}, {v(FB+8*buf+4*j,4)}, {c}')
    F1S = 'f1stamp' in gen.EXP
    if F1S: stamp(a, 2)
    vm.wait(a, lambda x: x == ('h', 0))
    a('s_barrier')
    if F1S: stamp(a, 3)
    reads(0, 0, 0)
    buf = 0
    for st in range(nst):
        for ks in range(4):
            s_ = 4 * st + ks
            if ks < 3:
                reads(st, ks + 1, buf ^ 1)
                if s_ >= 26: vm.wait(a, lambda x: x == ('w1', s_), ' lgkmcnt(2)')
                else: a('s_waitcnt lgkmcnt(2)')
                mfmas(s_, buf)
            else:
                if st + 1 < nst:
                    a('s_waitcnt lgkmcnt(0)')
                    if F1S and st in (0, 2, 4, 6): stamp(a, {0: 4, 2: 7, 4: 9, 6: 13}[st])
                    vm.wait(a, lambda x: x == ('h', st + 1))
                    a('s_barrier')
                    if F1S and st in (0, 2, 4, 6): stamp(a, {0: 5, 2: 8, 4: 12, 6: 14}[st])
                    reads(st + 1, 0, buf ^ 1)
                else:
                    a('s_waitcnt lgkmcnt(0)')
                if s_ >= 26: vm.wait(a, lambda x: x == ('w1', s_))
                mfmas(s_, buf)
            lim = st + NS - 1 + (1 if ks == 3 else 0)
            if pend and pend[0][0] <= lim and (ks in (1, 3) or st == 0): dma_one()
            if ks in (0, 2) and w1q and st <= 6: w1_load()
            if st == 7 and ks < 4:
                st_load(2 * ks); st_load(2 * ks + 1)
            if st == 8 and ks == 0:
                a('s_lshl_b32 s29, s14, 7')
                a('s_lshl_b32 s30, s23, 5')
                a('s_add_u32 s29, s29, s30')
                a('s_lshl_b32 s29, s29, 2')
                a('v_lshlrev_b32 v15, 5, v4')
                a(f's_add_u32 s30, s29, {WS_CS1}')
                a(f's_add_u32 s31, s29, {WS_B1F}')
                for q, off in enumerate((0, 16, 64, 80)):
                    a(f'buffer_load_dwordx4 {v(CS+4*q,4)}, v15, s[8:11], s30 offen offset:{off}'); vm.issue('cs')
                    a(f'buffer_load_dwordx4 {v(B1+4*q,4)}, v15, s[8:11], s31 offen offset:{off}'); vm.issue('cs')
            buf ^= 1
    stamp(a, 11)
    LST = 0
    l2 = lab('st')
    vm.wait(a, lambda x: x == 'cs')
    a('s_cmp_ge_u32 s12, 4')
    a(f's_cbranch_scc1 {l2}')
    b = ST
    for q in range(1, 8):
        a(f'v_add_f32 v{b}, v{b}, v{b+2*q}')
        a(f'v_add_f32 v{b+1}, v{b+1}, v{b+2*q+1}')
    for r in range(2):
        a(f'v_mov_b32 v{b+2}, v{b+r}'); a(f'v_mov_b32 v{b+3}, v{b+r}')
        a(f'v_permlane32_swap_b32 v{b+2}, v{b+3}')
        a(f'v_add_f32 v{b+r}, v{b+2}, v{b+3}')
    a(f'v_mul_f32 v{b}, {f2hex(1.0/640)}, v{b}')
    a(f'v_mul_f32 v{b+1}, {f2hex(1.0/640)}, v{b+1}')
    a(f'v_fma_f32 v{b+1}, -v{b}, v{b}, v{b+1}')
    a(f'v_add_f32 v{b+1}, 0x3727c5ac, v{b+1}')
    a(f'v_rsq_f32 v{b+1}, v{b+1}')
    a(f'v_mul_f32 v{b}, v{b}, v{b+1}')
    a('s_lshl_b32 s28, s12, 8')
    a('v_lshlrev_b32 v14, 3, v3')
    a('v_add_u32 v14, s28, v14')
    a(f'ds_write_b64 v14, {v(b,2)} offset:{LST}')
    a.label(l2)
    a('s_waitcnt lgkmcnt(0)')
    a('s_barrier')
    a('s_lshl_b32 s28, s26, 9')
    a('v_lshlrev_b32 v14, 3, v3')
    a('v_add_u32 v14, s28, v14')
    a(f'ds_read_b64 {v(ST,2)}, v14 offset:{LST}')
    a(f'ds_read_b64 {v(ST+4,2)}, v14 offset:{LST+256}')
    a('s_waitcnt lgkmcnt(0)')
    for j in range(2):
        b = ST + 4 * j
        for r in range(16):
            a(f'v_fma_f32 v{b+2}, -v{b}, v{CS+r}, v{B1+r}')
            a(f'v_fma_f32 v{ACC+16*j+r}, v{b+1}, v{ACC+16*j+r}, v{b+2}')
            a(f'v_max_f32 v{ACC+16*j+r}, 0, v{ACC+16*j+r}')
            a(f'v_mul_f32 v{ACC+16*j+r}, v{ACC+16*j+r}, v{ACC+16*j+r}')
    PK = 104
    for r in range(16):
        a(f'v_cvt_pk_bf16_f32 v{PK+r}, v{ACC+2*r}, v{ACC+2*r+1}')
    a('v_lshrrev_b32 v13, 4, v3')
    a('s_mov_b32 s18, 55296')
    a('v_mul_lo_u32 v13, v13, s18')
    a('v_and_b32 v14, 15, v3')
    a('v_lshl_add_u32 v13, v14, 4, v13')
    a('v_lshl_add_u32 v13, v4, 8, v13')
    a('s_lshr_b32 s18, s27, 4')
    a('s_mul_i32 s18, s18, 55296')
    a('s_lshl_b32 s17, s14, 2')
    a('s_add_u32 s17, s17, s23')
    a('s_cmp_ge_u32 s17, 54')
    a('s_cselect_b32 s19, 0x40000000, 0')
    a('s_lshl_b32 s17, s17, 10')
    a('s_add_u32 s17, s17, s18')
    a(f's_add_u32 s17, s17, {WS_G}')
    a('s_add_u32 s17, s17, s19')
    a(f's_add_u32 s18, s17, {2*55296}')
    stores2(a, [f'buffer_store_dwordx4 {v(PK,4)}, v13, s[8:11], s17 offen',
                f'buffer_store_dwordx4 {v(PK+4,4)}, v13, s[8:11], s17 offen offset:512',
                f'buffer_store_dwordx4 {v(PK+8,4)}, v13, s[8:11], s18 offen',
                f'buffer_store_dwordx4 {v(PK+12,4)}, v13, s[8:11], s18 offen offset:512'])

def phase_ffn2(a, L, published):
    NST = 7
    vm = VM()
    BF, ACC, AF, T = 16, 128, 168, 16
    def pre():
        for st in (0, 1):
            for ft in range(5):
                for x in w2_dma(st, ft): a(x)
    def mask():
        a(f's_and_b32 s40, s{SJ}, 2')
        a('s_cmp_eq_u32 s40, 0')
        a('s_mov_b32 s44, 0x0aaaaaaa')
        a('s_cselect_b32 s44, 0x05555555, s44')
        a('s_mov_b32 s45, 0')
    sync(a, 2 if published else None, 2, mask, pre)
    return vm

def ffn2_body(a, L):
    NST = 7
    vm = VM()
    for st in (0, 1):
        for ft in range(5): vm.issue(('w', st))
    BF, ACC, AF, T = 16, 128, 168, 16
    if 'f1stamp' not in gen.EXP: stamp(a, 12)
    a(f's_and_b32 s20, s{SJ}, 3')
    a(f's_lshr_b32 s21, s{SJ}, 2')
    a('s_lshr_b32 s22, s12, 2')
    a('s_and_b32 s23, s12, 3')
    a('s_mul_i32 s26, s23, 14')
    a('s_cmp_eq_u32 s23, 3')
    a('s_cselect_b32 s27, 1, 0')
    a('s_sub_u32 s26, s26, s27')
    a(f's_lshl_b32 s31, s{SG}, 4')
    a('s_lshl_b32 s32, s20, 2')
    a('s_add_u32 s31, s31, s32')
    a('s_lshl_b32 s32, s22, 1')
    a('s_add_u32 s32, s32, s31')
    a('s_mul_i32 s32, s32, 55296')
    a('s_lshl_b32 s33, s26, 10')
    a('s_add_u32 s32, s32, s33')
    a(f's_add_u32 s32, s32, {WS_G}')
    def bload(i):
        for j in range(2):
            a(f's_add_u32 s33, s32, {j*55296 + i*1024}')
            a(f'buffer_load_dwordx4 {v(BF+8*i+4*j,4)}, v10, s[8:11], s33 offen sc1')
            vm.issue(('b', i))
    for i in range(2): bload(i)
    bq = list(range(2, 14))
    wq = [(st, ft) for st in range(2, 7) for ft in range(5)]
    a('s_mul_i32 s34, s23, 10240')
    a('v_add_u32 v8, s34, v10')
    a('v_add_u32 v9, 0x10000, v8')
    a('v_add_u32 v11, 0x20000, v8')
    def areads(st, i, buf):
        for ft in range(5):
            off = F2_SLOT[st] + i * 5120 + ft * 1024
            base = {0: 8, 1: 9, 2: 11}[off >> 16]
            a(f'ds_read_b128 {v(AF+20*buf+4*ft,4)}, v{base} offset:{off & 65535}')
    for st in range(NST):
        vm.wait(a, lambda x: x == ('w', st) or x == ('b', min(2*st+1, 13)))
        a('s_barrier')
        areads(st, 0, 0)
        areads(st, 1, 1)
        for i in range(2):
            ks = 2 * st + i
            a(f's_waitcnt lgkmcnt({5 if i == 0 else 0})')
            last = (ks == 13)
            if last:
                a('s_cmp_ge_u32 s23, 2')
                a(f's_cbranch_scc1 {L}_skip')
            for ft in range(5):
                for j in range(2):
                    acc = v(ACC + 4 * (2 * ft + j), 4)
                    a(f'v_mfma_f32_16x16x32_bf16 {acc}, {v(AF+20*i+4*ft,4)}, {v(BF+8*ks+4*j,4)}, {"0" if ks == 0 else acc}')
                if not last:
                    nb = 1 if ft in (0, 3) else 0
                    if st == 0 and ft == 4: nb = 1
                    for _ in range(nb):
                        if bq and bq[0] <= ks + 6: bload(bq.pop(0))
                    nw = 2 if st <= 1 else 1
                    for _ in range(nw):
                        if wq and wq[0][0] - 3 <= st and (wq[0][0] <= 3 or wq[0][0] - 3 <= st):
                            x_ = wq.pop(0)
                            for x in w2_dma(*x_): a(x)
                            vm.issue(('w', x_[0]))
            if last: a.label(f'{L}_skip')
    if 'f1stamp' not in gen.EXP: stamp(a, 13)
    a('v_and_b32 v5, 15, v2')
    a('v_lshrrev_b32 v6, 4, v2')
    HR, BB = 228, 208
    a('s_and_b32 s33, s12, 3')
    a('s_add_u32 s33, s31, s33')
    a('s_mul_i32 s34, s33, 20480')
    a('s_mul_i32 s35, s21, 2560')
    a('s_add_u32 s34, s34, s35')
    a(f's_add_u32 s34, s34, {WS_H}')
    a('v_lshrrev_b32 v12, 1, v6')
    a('v_lshlrev_b32 v12, 8, v12')
    a('v_lshl_add_u32 v12, v5, 4, v12')
    a('v_and_b32 v13, 1, v6')
    a('v_lshl_add_u32 v12, v13, 3, v12')
    a('s_nop 7')
    for ft in range(5):
        a(f'buffer_load_dwordx2 {v(HR+2*ft,2)}, v12, s[8:11], s34 offen offset:{512*ft} sc1')
    a('s_mul_i32 s35, s21, 320')
    a(f's_add_u32 s35, s35, {WS_B2F}')
    a('v_lshlrev_b32 v13, 4, v6')
    for ft in range(5):
        a(f'buffer_load_dwordx4 {v(BB+4*ft,4)}, v13, s[8:11], s35 offen offset:{64*ft}')
    a('s_barrier')
    ksplit_reduce(a, ACC, T, 12, 22, 23, 10, 14)
    a('s_cmp_ge_u32 s12, 4')
    a(f's_cbranch_scc1 {L}_fin')
    ksplit_gather(a, T, 12, 10, 14)
    a('s_waitcnt vmcnt(0)')
    for ft in range(5):
        for h2 in range(2):
            a(f'v_lshlrev_b32 v{T+20}, 16, v{HR+2*ft+h2}')
            a(f'v_and_b32 v{T+21}, 0xffff0000, v{HR+2*ft+h2}')
            a(f'v_add_f32 v{T+4*ft+2*h2}, v{T+4*ft+2*h2}, v{BB+4*ft+2*h2}')
            a(f'v_add_f32 v{T+4*ft+2*h2+1}, v{T+4*ft+2*h2+1}, v{BB+4*ft+2*h2+1}')
            a(f'v_add_f32 v{T+4*ft+2*h2}, v{T+4*ft+2*h2}, v{T+20}')
            a(f'v_add_f32 v{T+4*ft+2*h2+1}, v{T+4*ft+2*h2+1}, v{T+21}')
    for i in range(10):
        a(f'v_cvt_pk_bf16_f32 v{T+24+i}, v{T+2*i}, v{T+2*i+1}')
    a('s_lshl_b32 s33, s33, 4')
    a('v_add_u32 v7, s33, v5')
    a('s_movk_i32 s34, 1280')
    a('v_mul_lo_u32 v7, v7, s34')
    a('v_lshl_add_u32 v7, v6, 3, v7')
    a('s_mul_i32 s34, s21, 160')
    for ft in range(5):
        a(f'buffer_store_dwordx2 {v(T+24+2*ft,2)}, v7, s[76:79], s34 offen offset:{32*ft}')

def kf():
    a = Asm()
    L = 'kf_kernel'
    kernel_begin(a, L)
    a('s_cmp_ge_u32 s2, 256')
    a(f's_cbranch_scc1 {L}_end')
    stamp(a, 0, True); stamp(a, 1)
    a(f's_load_dwordx2 s[4:5], s[0:1], {A_WS}')
    a(f's_load_dwordx2 s[68:69], s[0:1], {A_X}')
    a(f's_load_dwordx2 s[70:71], s[0:1], {A_OUT}')
    a(f's_and_b32 s{SG}, s2, 7')
    a(f's_lshr_b32 s{SJ}, s2, 3')
    a(f's_mov_b32 s{SH}, s{SJ}')
    a(f's_mov_b32 s{SR}, s{SG}')
    a('v_lshrrev_b32 v1, 6, v0')
    a('v_and_b32 v2, 63, v0')
    a('v_readfirstlane_b32 s12, v1')
    a('v_and_b32 v3, 31, v2')
    a('v_lshrrev_b32 v4, 5, v2')
    a(f's_getreg_b32 s{SPURE}, hwreg(HW_REG_XCC_ID, 0, 4)')
    a(f's_add_u32 s{SPURE}, s{SPURE}, 1')
    a('s_waitcnt lgkmcnt(0)')
    srd(a, 8, 4, WS_END)
    srd(a, 72, 68, S * D * 2)
    srd(a, 76, 70, S * D * 2)
    l = lab('xp')
    a('s_cmp_lg_u32 s12, 0')
    a(f's_cbranch_scc1 {l}')
    a(f's_lshl_b32 s40, s{SG}, 7')
    a(f's_lshl_b32 s41, s{SJ}, 2')
    a('s_add_u32 s40, s40, s41')
    a(f's_add_u32 s40, s40, {WS_XT}')
    a('v_mov_b32 v14, 0')
    a(f'v_mov_b32 v15, s{SPURE}')
    a('s_mov_b64 exec, 1')
    a('buffer_store_dword v15, v14, s[8:11], s40 offen sc1')
    a('s_mov_b64 exec, -1')
    a.label(l)
    if 'nocodepf' not in gen.EXP:
        a('s_getpc_b64 s[40:41]')
        a.label('.Lpc_here')
        a(f's_sub_u32 s40, s40, (.Lpc_here - {L})')
        a('s_subb_u32 s41, s41, 0')
        a('s_lshl_b32 s42, s12, 12')
        a('v_lshlrev_b32 v14, 6, v2')
        a('v_add_u32 v14, s42, v14')
        a(f's_mov_b32 s42, (.Lkf_last - {L})')
        a('v_add_u32 v16, 0x8000, v14')
        a('v_min_u32 v14, s42, v14')
        a('v_min_u32 v16, s42, v16')
        a('v_mov_b32 v15, s41')
        a('v_mov_b32 v17, s41')
        a('v_add_co_u32 v14, vcc, s40, v14')
        a('v_addc_co_u32 v15, vcc, 0, v15, vcc')
        a('v_add_co_u32 v16, vcc, s40, v16')
        a('v_addc_co_u32 v17, vcc, 0, v17, vcc')
        a('global_load_dword v151, v[14:15], off')
        a('global_load_dword v151, v[16:17], off')
    stamp(a, 2)
    phase_attn(a)
    stamp(a, 4)
    phase_oproj(a)
    stamp(a, 5)
    a(f's_cmp_ge_u32 s{SJ}, 28')
    a(f's_cbranch_scc1 {L}_idle')
    phase_ffn1(a, None)
    phase_ffn2(a, L, True)
    a(f's_branch {L}_f2')
    a.label(f'{L}_idle')
    a('s_waitcnt vmcnt(0)')
    a('s_barrier')
    li = lab('id')
    a('s_cmp_lg_u32 s12, 0')
    a(f's_cbranch_scc1 {li}')
    flag_store(a, 1, 14)
    a.label(li)
    w2_setup(a)
    a('s_waitcnt vmcnt(0)')
    phase_ffn2(a, L, False)
    a.label(f'{L}_f2')
    ffn2_body(a, L)
    a.label(f'{L}_fin')
    if 'f1stamp' not in gen.EXP: stamp(a, 14)
    if gen.PROF: a('s_waitcnt vmcnt(0)')
    stamp(a, 6, True)
    stamp_flush(a, 2, 15, 8, 12)
    a.label(f'{L}_end')
    a.label('.Lkf_last')
    a('s_endpgm')
    return a, descriptor(L, 256, 102), f'; @launch kernel={L} grid=(256,1,1) block=(512,1,1) lds=163840'

if __name__ == '__main__':
    if 'prof' in sys.argv: gen.PROF = True
    for x in sys.argv[2:]:
        if x.startswith('x:'): gen.EXP.add(x[2:])
    out = sys.argv[1]
    open(out, 'w').write(build([k0, k1, kf]))
    print('wrote', out)
```

```python
import sys
sys.path.insert(0, 'dev')
import gen
from gen import *
from gen2 import lab
from gen3 import VM
from asmlib import *

PK_LDS = 131072
TB_LDS = PK_LDS + 24576
ST_T = TB_LDS
CS_T = TB_LDS + 4096
VT_T = PK_LDS

def k1p():
    a = Asm()
    L = 'k1_kernel'
    kernel_begin(a, L)
    a('s_cmp_ge_u32 s2, 256')
    a(f's_cbranch_scc1 {L}_end')
    stamp(a, 0, True); stamp(a, 1)
    a(f's_load_dwordx2 s[4:5], s[0:1], {A_WS}')
    a(f's_load_dwordx2 s[24:25], s[0:1], {A_X}')
    a(f's_load_dwordx2 s[26:27], s[0:1], {A_WQKV}')
    a(f's_load_dwordx2 s[28:29], s[0:1], {A_WO}')
    a(f's_load_dwordx2 s[30:31], s[0:1], {A_W1}')
    a(f's_load_dwordx2 s[32:33], s[0:1], {A_W2}')
    a('s_and_b32 s15, s2, 7')
    a('s_lshr_b32 s16, s2, 3')
    a('s_and_b32 s13, s15, 3')
    a('s_lshl_b32 s13, s13, 2')
    a('s_and_b32 s17, s16, 3')
    a('s_add_u32 s13, s13, s17')
    a('s_lshr_b32 s14, s15, 2')
    a('s_lshl_b32 s14, s14, 3')
    a('s_lshr_b32 s17, s16, 2')
    a('s_add_u32 s14, s14, s17')
    a('v_lshrrev_b32 v1, 6, v0')
    a('v_and_b32 v2, 63, v0')
    a('v_readfirstlane_b32 s12, v1')
    a('v_and_b32 v3, 31, v2')
    a('v_lshrrev_b32 v4, 5, v2')
    a('v_lshlrev_b32 v10, 4, v2')
    a('s_and_b32 s23, s12, 3')
    a('s_lshr_b32 s34, s12, 2')
    a('s_waitcnt lgkmcnt(0)')
    srd(a, 8, 4, WS_END)
    srd(a, 16 + 40, 24, S * D * 2)
    srd(a, 60, 26, D * 3 * D * 2)
    a('v_lshrrev_b32 v5, 3, v2')
    a('s_lshl_b32 s40, s12, 3')
    a('v_add_u32 v5, s40, v5')
    a('v_lshrrev_b32 v6, 4, v2')
    a('s_lshl_b32 s40, s12, 2')
    a('v_add_u32 v7, s40, v6')
    a('v_and_b32 v7, 7, v7')
    a('v_and_b32 v8, 7, v2')
    a('v_xor_b32 v7, v7, v8')
    a('s_movk_i32 s40, 1280')
    a('v_mul_lo_u32 v5, v5, s40')
    a('v_lshl_add_u32 v5, v7, 4, v5')
    a('s_mul_i32 s35, s13, 163840')
    a('s_lshl_b32 s40, s12, 2')
    a('v_add_u32 v7, s40, v6')
    a('s_movk_i32 s40, 3840')
    a('v_mul_lo_u32 v7, v7, s40')
    a('v_and_b32 v8, 15, v2')
    a('v_lshlrev_b32 v9, 2, v6')
    a('v_xor_b32 v8, v8, v9')
    a('v_lshl_add_u32 v6, v8, 4, v7')
    a('s_lshl_b32 s36, s14, 8')
    a('s_lshl_b32 s37, s12, 10')
    def decode():
        lo, l1_, l2_, ld = lab('pk'), lab('pk'), lab('pk'), lab('pk')
        a('s_cmp_lt_u32 s2, 40')
        a(f's_cbranch_scc0 {l1_}')
        srd(a, 64, 28, D * D * 2)
        a(f's_mul_hi_u32 s46, s2, {magic(10)}')
        a('s_mul_i32 s47, s46, 10')
        a('s_sub_u32 s47, s2, s47')
        a('s_movk_i32 s41, 160'); a('s_movk_i32 s42, 1280'); a(f's_mov_b32 s44, {WS_WO}'); a('s_movk_i32 s45, 20480')
        a(f's_branch {ld}')
        a.label(l1_)
        a('s_cmp_lt_u32 s2, 148')
        a(f's_cbranch_scc0 {l2_}')
        srd(a, 64, 30, D * F * 2)
        a('s_sub_u32 s40, s2, 40')
        a(f's_mul_hi_u32 s46, s40, {magic(27)}')
        a('s_mul_i32 s47, s46, 27')
        a('s_sub_u32 s47, s40, s47')
        a('s_movk_i32 s41, 160'); a('s_movk_i32 s42, 3456'); a(f's_mov_b32 s44, {WS_W1}'); a('s_movk_i32 s45, 20480')
        a(f's_branch {ld}')
        a.label(l2_)
        srd(a, 64, 32, F * D * 2)
        a('s_sub_u32 s40, s2, 148')
        a(f's_mul_hi_u32 s46, s40, {magic(10)}')
        a('s_mul_i32 s47, s46, 10')
        a('s_sub_u32 s47, s40, s47')
        a('s_movk_i32 s41, 192'); a('s_movk_i32 s42, 1280'); a(f's_mov_b32 s44, {WS_W2}'); a('s_mov_b32 s45, 55296')
        a.label(ld)
        a('s_mul_i32 s43, s46, s41')
        a('s_lshr_b32 s48, s43, 3')
        a('s_mul_i32 s43, s43, s42')
        a('s_lshl_b32 s40, s47, 7')
        a('s_add_u32 s43, s43, s40')
        a('s_lshl_b32 s40, s47, 2')
        a('s_mul_i32 s40, s40, s45')
        a('s_add_u32 s44, s44, s40')
        a('s_lshl_b32 s40, s48, 8')
        a('s_add_u32 s44, s44, s40')
    vm = VM()
    NS = 4
    def dma(st, k):
        slot = (st % NS) * 32768
        if k < 2:
            a(f's_add_u32 m0, s37, {slot + k*8192}')
            a(f's_add_u32 s38, s35, {st*128 + k*64*1280}')
            a('buffer_load_dwordx4 v5, s[56:59], s38 offen lds')
        else:
            a(f's_add_u32 m0, s37, {slot + 16384 + (k-2)*8192}')
            a(f's_add_u32 s38, s36, {(st*64 + (k-2)*32)*3840}')
            a('buffer_load_dwordx4 v6, s[60:63], s38 offen lds')
        vm.issue(('r', st))
    lz = f'{L}_nogemm'
    a('s_cmp_ge_u32 s14, 15')
    a(f's_cbranch_scc1 {lz}')
    for st in range(2):
        for k in range(4): dma(st, k)
    def pack_dma():
        a('v_lshrrev_b32 v11, 3, v2')
        a('s_lshl_b32 s40, s12, 3')
        a('v_add_u32 v11, s40, v11')
        a('v_mul_lo_u32 v11, v11, s42')
        a('v_and_b32 v12, 7, v2')
        a('v_lshl_add_u32 v11, v12, 4, v11')
        a('s_cmp_lt_u32 s2, 238')
        a('s_cselect_b32 s49, s43, 0x7ff00000')
        a('s_lshl_b32 s50, s42, 6')
        for i in range(3):
            a(f's_add_u32 m0, s37, {PK_LDS + i*8192}')
            a('s_nop 0')
            a('buffer_load_dwordx4 v11, s[64:67], s49 offen lds')
            if i < 2: a('s_add_u32 s49, s49, s50')
    def pack_work(T):
        a('v_lshrrev_b32 v12, 4, v2')
        a('v_lshrrev_b32 v13, 2, v2')
        a('v_and_b32 v13, 3, v13')
        a('v_lshl_add_u32 v12, v12, 3, v13')
        a('v_lshlrev_b32 v12, 7, v12')
        a('v_and_b32 v13, 3, v2')
        a('v_lshl_add_u32 v12, v13, 3, v12')
        a('s_and_b32 s40, s12, 3')
        a('s_lshl_b32 s49, s40, 5')
        a('s_lshr_b32 s50, s12, 2')
        a('s_lshl_b32 s51, s50, 12')
        a('s_add_u32 s49, s49, s51')
        a(f's_add_u32 s49, s49, {PK_LDS}')
        a('v_add_u32 v12, s49, v12')
        for i in range(3):
            a(f'ds_read_b64_tr_b16 {v(T+4*i,2)}, v12 offset:{i*8192}')
            a(f'ds_read_b64_tr_b16 {v(T+4*i+2,2)}, v12 offset:{i*8192 + 512}')
        a('s_mul_i32 s49, s40, s45')
        a('s_add_u32 s49, s49, s44')
        a('s_waitcnt lgkmcnt(0)')
        for i in range(3):
            a(f's_add_u32 s51, s50, {2*i}')
            a('s_lshl_b32 s52, s51, 5')
            a('s_cmp_lt_u32 s52, s41')
            a('s_cselect_b32 s53, 1, 0')
            a('s_cmp_lt_u32 s2, 238')
            a('s_cselect_b32 s53, s53, 0')
            a('s_lshl_b32 s51, s51, 10')
            a('s_add_u32 s51, s51, s49')
            a('s_cmp_eq_u32 s53, 1')
            a('s_cselect_b32 s51, s51, 0x7ff00000')
            a(f'buffer_store_dwordx4 {v(T+4*i,4)}, v10, s[8:11], s51 offen')
    VB = 14
    a('v_lshrrev_b32 v7, 1, v3')
    a('v_and_b32 v7, 7, v7')
    a('s_lshl_b32 s40, s34, 13')
    a('v_lshlrev_b32 v8, 7, v3')
    a('v_add_u32 v8, s40, v8')
    for ks in range(4):
        a(f'v_or_b32 v9, {2*ks}, v4')
        a('v_xor_b32 v9, v9, v7')
        a(f'v_lshl_add_u32 v{VB+ks}, v9, 4, v8')
    VA = 18
    a('v_lshrrev_b32 v7, 2, v2')
    a('v_and_b32 v7, 3, v7')
    a('v_and_b32 v8, 3, v2')
    a('v_and_b32 v9, 1, v8')
    a('v_lshlrev_b32 v9, 1, v9')
    a('v_lshrrev_b32 v11, 1, v8')
    a('v_or_b32 v9, v9, v11')
    a('s_cmp_lt_u32 s14, 10')
    a('s_cselect_b64 vcc, -1, 0')
    a('v_cndmask_b32 v8, v8, v9, vcc')
    a('v_lshrrev_b32 v9, 4, v2')
    a('v_and_b32 v9, 1, v9')
    a('v_lshl_add_u32 v8, v9, 2, v8')
    a('v_lshrrev_b32 v9, 1, v8')
    a('s_lshl_b32 s40, s23, 2')
    a('v_add_u32 v9, s40, v9')
    a('v_lshlrev_b32 v11, 2, v7')
    a('v_xor_b32 v9, v9, v11')
    a('v_lshlrev_b32 v9, 4, v9')
    a('v_and_b32 v8, 1, v8')
    a('v_lshl_add_u32 v9, v8, 3, v9')
    a('v_lshl_add_u32 v8, v4, 3, v7')
    a(f'v_lshl_add_u32 v{VA}, v8, 8, v9')
    a(f'v_add_u32 v{VA}, 16384, v{VA}')
    a(f'v_add_u32 v{VA+1}, 0x10000, v{VA}')
    for ks in range(4): a(f'v_add_u32 v{20+ks}, 0x10000, v{VB+ks}')
    SEL, CSA, S1 = 24, 28, 32
    a(f'v_mov_b32 v{SEL}, 0')
    a('s_mov_b32 s52, 0x00020001')
    a('s_mov_b32 s53, 0x00020001')
    a('v_mov_b32 v7, 0x3f803f80')
    a(f'v_cndmask_b32 v{SEL}, v{SEL}, v7, s[52:53]')
    for r in range(1, 4): a(f'v_mov_b32 v{SEL+r}, v{SEL}')
    for r in range(4): a(f'v_mov_b32 v{CSA+r}, 0')
    for r in range(4): a(f'v_mov_b32 v{S1+r}, 0')
    ACC, FA, FB, T = 40, 72, 80, 96
    XS = 136
    a('s_cmp_eq_u32 s23, 1'); a('s_cselect_b64 vcc, -1, 0'); a(f'v_cndmask_b32 v144, v{VB}, v{VB+1}, vcc')
    a('s_cmp_eq_u32 s23, 2'); a('s_cselect_b64 vcc, -1, 0'); a(f'v_cndmask_b32 v144, v144, v{VB+2}, vcc')
    a('s_cmp_eq_u32 s23, 3'); a('s_cselect_b64 vcc, -1, 0'); a(f'v_cndmask_b32 v144, v144, v{VB+3}, vcc')
    a('v_add_u32 v145, 0x10000, v144')
    def reads(st, ks, buf):
        off = (st % NS) * 32768
        hi = off >= 65536
        if hi: off -= 65536
        TR = 'ds_read_b64' if 'k1notr' in gen.EXP else 'ds_read_b64_tr_b16'
        a(f'{TR} {v(FA+4*buf,2)}, v{VA+1 if hi else VA} offset:{off + ks*4096}')
        a(f'{TR} {v(FA+4*buf+2,2)}, v{VA+1 if hi else VA} offset:{off + ks*4096 + 1024}')
        bb = (20 if hi else VB) + ks
        a(f'ds_read_b128 {v(FB+8*buf,4)}, v{bb} offset:{off}')
        a(f'ds_read_b128 {v(FB+8*buf+4,4)}, v{bb} offset:{off + 4096}')
    def stats_ops():
        out = []
        for j in range(2):
            for r in range(4):
                src = XS + 4 * j + r
                t = T + 2 * (r & 1)
                out += [f'v_lshlrev_b32 v{t}, 16, v{src}', f'v_and_b32 v{t+1}, 0xffff0000, v{src}',
                        f'v_add_f32 v{S1+j}, v{S1+j}, v{t}', f'v_fmac_f32 v{S1+2+j}, v{t}, v{t}',
                        f'v_add_f32 v{S1+j}, v{S1+j}, v{t+1}', f'v_fmac_f32 v{S1+2+j}, v{t+1}, v{t+1}']
        return out
    def xs_reads(st):
        off = (st % NS) * 32768
        hi = off >= 65536
        if hi: off -= 65536
        a(f'ds_read_b128 {v(XS,4)}, v{145 if hi else 144} offset:{off}')
        a(f'ds_read_b128 {v(XS+4,4)}, v{145 if hi else 144} offset:{off + 4096}')
    def main(swap):
        pend = [(st, k) for st in range(2, 10) for k in range(4)]
        vm2 = VM(); vm2.ops = list(vm.ops)
        def dma_next():
            st, k = pend.pop(0)
            slot = (st % NS) * 32768
            if k < 2:
                a(f's_add_u32 m0, s37, {slot + k*8192}')
                a(f's_add_u32 s38, s35, {st*128 + k*64*1280}')
                a('buffer_load_dwordx4 v5, s[56:59], s38 offen lds')
            else:
                a(f's_add_u32 m0, s37, {slot + 16384 + (k-2)*8192}')
                a(f's_add_u32 s38, s36, {(st*64 + (k-2)*32)*3840}')
                a('buffer_load_dwordx4 v6, s[60:63], s38 offen lds')
            vm2.issue(('r', st))
        stamp(a, 2)
        vm2.wait(a, lambda x: x == ('r', 0))
        a('s_barrier')
        stamp(a, 3)
        reads(0, 0, 0)
        buf = 0
        for st in range(10):
            so = stats_ops()
            for ks in range(4):
                if ks == 0:
                    xs_reads(st)
                    reads(st, 1, buf ^ 1)
                    a('s_waitcnt lgkmcnt(6)')
                elif ks < 3:
                    reads(st, ks + 1, buf ^ 1)
                    a('s_waitcnt lgkmcnt(4)')
                else:
                    a('s_waitcnt lgkmcnt(0)')
                    if st + 1 < 10:
                        if st == 3 and 'k1nopk' not in gen.EXP: vm2.wait(a, lambda x: x == ('r', 4) or x == 'pk')
                        else: vm2.wait(a, lambda x: x == ('r', st + 1))
                        a('s_barrier')
                        reads(st + 1, 0, buf ^ 1)
                part = so[(ks - 1) * 16:ks * 16] if ks >= 1 else []
                if 'k1nostat' in gen.EXP: part = []
                for j in range(2):
                    A_ = v(FA+4*buf, 4); B_ = v(FB+8*buf+4*j, 4)
                    c = '0' if (st == 0 and ks == 0) else v(ACC+16*j, 16)
                    if swap: a(f'v_mfma_f32_32x32x16_bf16 {v(ACC+16*j,16)}, {B_}, {A_}, {c}')
                    else: a(f'v_mfma_f32_32x32x16_bf16 {v(ACC+16*j,16)}, {A_}, {B_}, {c}')
                    for x in part[j*6:j*6+6]: a(x)
                if 'k1nocs' not in gen.EXP: a(f'v_mfma_f32_16x16x32_bf16 {v(CSA,4)}, {v(FA+4*buf,4)}, {v(SEL,4)}, {v(CSA,4)}')
                for x in part[12:]: a(x)
                lim = st + NS - 1 + (1 if ks == 3 else 0)
                nq = 2 if st == 0 else 1
                for _ in range(nq):
                    if pend and pend[0][0] <= lim: dma_next()
                if st == 1 and ks == 0 and 'k1nopk' not in gen.EXP:
                    decode()
                    pack_dma()
                    for _ in range(3): vm2.issue('pk')
                if st == 4 and ks == 1 and 'k1nopk' not in gen.EXP:
                    pack_work(T + 4)
                    for _ in range(3): vm2.issue('pks')
                buf ^= 1
        a('s_nop 15')
        stamp(a, 4)
        for r in range(4):
            a(f'v_mov_b32 v{T}, v{S1+r}'); a(f'v_mov_b32 v{T+1}, v{S1+r}')
            a(f'v_permlane32_swap_b32 v{T}, v{T+1}')
            a(f'v_add_f32 v{S1+r}, v{T}, v{T+1}')
        a('s_lshl_b32 s40, s34, 11')
        a('s_lshl_b32 s41, s23, 8')
        a('s_add_u32 s40, s40, s41')
        a(f's_add_u32 s40, s40, {ST_T}')
        a('v_lshlrev_b32 v7, 3, v3')
        a('v_add_u32 v7, s40, v7')
        for j in range(2):
            a(f'v_mov_b32 v{T+2*j}, v{S1+j}'); a(f'v_mov_b32 v{T+2*j+1}, v{S1+2+j}')
            a(f'ds_write_b64 v7, {v(T+2*j,2)} offset:{j*1024}')
        a('s_lshl_b32 s40, s23, 8')
        a('s_lshl_b32 s41, s34, 7')
        a('s_add_u32 s40, s40, s41')
        a(f's_add_u32 s40, s40, {CS_T}')
        a('v_and_b32 v8, 1, v2')
        a('v_lshlrev_b32 v8, 6, v8')
        a('v_lshrrev_b32 v9, 4, v2')
        a('v_lshl_add_u32 v8, v9, 4, v8')
        a('v_add_u32 v8, s40, v8')
        a('s_mov_b32 s52, 0x00030003')
        a('s_mov_b32 s53, 0x00030003')
        a('s_mov_b64 exec, s[52:53]')
        a(f'ds_write_b128 v8, {v(CSA,4)}')
        a('s_mov_b64 exec, -1')
        a('s_waitcnt lgkmcnt(0)')
        a('s_barrier')
        a('s_lshl_b32 s40, s34, 11')
        a(f's_add_u32 s40, s40, {ST_T}')
        a('v_lshlrev_b32 v7, 3, v3')
        a('v_add_u32 v7, s40, v7')
        P = T + 4
        for j in range(2):
            for f_ in range(4):
                a(f'ds_read_b64 {v(P+8*j+2*f_,2)}, v7 offset:{j*1024 + f_*256}')
        a('s_waitcnt lgkmcnt(0)')
        for j in range(2):
            b = P + 8 * j
            for f_ in range(1, 4):
                a(f'v_add_f32 v{b}, v{b}, v{b+2*f_}')
                a(f'v_add_f32 v{b+1}, v{b+1}, v{b+2*f_+1}')
            a(f'v_mul_f32 v{b}, {f2hex(1.0/640)}, v{b}')
            a(f'v_mul_f32 v{b+1}, {f2hex(1.0/640)}, v{b+1}')
            a(f'v_fma_f32 v{b+1}, -v{b}, v{b}, v{b+1}')
            a(f'v_add_f32 v{b+1}, 0x3727c5ac, v{b+1}')
            a(f'v_rsq_f32 v{b+1}, v{b+1}')
            a(f'v_mul_f32 v{b}, v{b}, v{b+1}')
        return P
    a('s_cmp_ge_u32 s14, 10')
    a(f's_cbranch_scc1 {L}_v')
    P = main(False)
    C = 120
    a('s_lshl_b32 s40, s23, 8')
    a(f's_add_u32 s40, s40, {CS_T}')
    a('v_lshlrev_b32 v7, 4, v4')
    a('v_add_u32 v7, s40, v7')
    for g in range(4):
        a(f'ds_read_b128 {v(C+4*g,4)}, v7 offset:{g*32}')
    a('s_waitcnt lgkmcnt(0)')
    a(f's_mov_b32 s40, {f2hex(QSCALE)}')
    a('s_cmp_lt_u32 s14, 5')
    a('s_cselect_b32 s40, s40, 1.0')
    for j in range(2):
        a(f'v_mul_f32 v{P+8*j}, s40, v{P+8*j}')
        a(f'v_mul_f32 v{P+8*j+1}, s40, v{P+8*j+1}')
    for j in range(2):
        for r in range(16):
            a(f'v_mul_f32 v{T}, v{P+8*j}, v{C+r}')
            a(f'v_fma_f32 v{ACC+16*j+r}, v{P+8*j+1}, v{ACC+16*j+r}, -v{T}')
    PK = 72
    for r in range(16):
        a(f'v_cvt_pk_bf16_f32 v{PK+r}, v{ACC+2*r}, v{ACC+2*r+1}')
    a('v_lshrrev_b32 v13, 4, v3')
    a('s_movk_i32 s17, 20480')
    a('v_mul_lo_u32 v13, v13, s17')
    a('v_and_b32 v14, 15, v3')
    a('v_lshl_add_u32 v13, v14, 4, v13')
    a('v_lshl_add_u32 v13, v4, 8, v13')
    a('s_lshl_b32 s17, s13, 3')
    a('s_lshl_b32 s18, s34, 2')
    a('s_add_u32 s17, s17, s18')
    a('s_mul_i32 s17, s17, 20480')
    a(f's_mov_b32 s18, {WS_Q}')
    a(f's_mov_b32 s19, {WS_K - 80*256}')
    a('s_cmp_lt_u32 s14, 5')
    a('s_cselect_b32 s18, s18, s19')
    a('s_add_u32 s17, s17, s18')
    a('s_lshl_b32 s18, s14, 12')
    a('s_add_u32 s17, s17, s18')
    a('s_lshl_b32 s18, s23, 10')
    a('s_add_u32 s17, s17, s18')
    for j in range(2):
        a(f'buffer_store_dwordx4 {v(PK+8*j,4)}, v13, s[8:11], s17 offen')
        a(f'buffer_store_dwordx4 {v(PK+8*j+4,4)}, v13, s[8:11], s17 offen offset:512')
        if j == 0: a(f's_add_u32 s17, s17, {2*20480}')
    stamp(a, 5)
    if gen.PROF: a('s_waitcnt vmcnt(0)')
    stamp(a, 6); stamp(a, 7, True)
    stamp_flush(a, 1, 8, 8, 12)
    a('s_endpgm')
    a.label(f'{L}_v')
    P = main(True)
    a('s_lshl_b32 s40, s12, 9')
    a(f's_add_u32 s40, s40, {VT_T}')
    a('v_lshlrev_b32 v7, 2, v3')
    a('v_add_u32 v7, s40, v7')
    for j in range(2):
        a(f'ds_write_b32 v7, v{P+8*j} offset:{j*256}')
        a(f'ds_write_b32 v7, v{P+8*j+1} offset:{j*256 + 128}')
    a('s_lshl_b32 s41, s23, 8')
    a(f's_add_u32 s41, s41, {CS_T}')
    a('v_lshlrev_b32 v8, 2, v3')
    a('v_add_u32 v8, s41, v8')
    a(f'ds_read_b32 v{T}, v8')
    a('s_waitcnt lgkmcnt(0)')
    a('v_lshlrev_b32 v7, 4, v4')
    a('v_add_u32 v7, s40, v7')
    C = 120
    for j in range(2):
        for g in range(4):
            a(f'ds_read_b128 {v(C+4*g,4)}, v7 offset:{j*256 + g*32}')
            a(f'ds_read_b128 {v(C+16+4*g,4)}, v7 offset:{j*256 + 128 + g*32}')
        a('s_waitcnt lgkmcnt(0)')
        for r in range(16):
            a(f'v_mul_f32 v{T+1}, v{C+r}, v{T}')
            a(f'v_fma_f32 v{ACC+16*j+r}, v{C+16+r}, v{ACC+16*j+r}, -v{T+1}')
    PK = 72
    for r in range(16):
        a(f'v_cvt_pk_bf16_f32 v{PK+r}, v{ACC+2*r}, v{ACC+2*r+1}')
    a('s_sub_u32 s17, s14, 10')
    a('s_lshl_b32 s17, s17, 7')
    a('s_lshl_b32 s18, s23, 5')
    a('s_add_u32 s17, s17, s18')
    a('v_add_u32 v13, s17, v3')
    a(f's_mov_b32 s17, {magic(20)}')
    a('v_mul_hi_u32 v14, v13, s17')
    a('v_mul_u32_u24 v15, 20, v14')
    a('v_sub_u32 v15, v13, v15')
    a('s_mov_b32 s17, 81920')
    a('v_mul_lo_u32 v14, v14, s17')
    a('v_lshl_add_u32 v14, v15, 4, v14')
    a('v_mul_u32_u24 v15, 320, v4')
    a('v_add_u32 v14, v14, v15')
    a('s_lshl_b32 s17, s13, 3')
    a('s_lshl_b32 s18, s34, 2')
    a('s_add_u32 s17, s17, s18')
    a('s_mul_i32 s17, s17, 640')
    a(f's_add_u32 s17, s17, {WS_VT}')
    for j in range(2):
        for gg in range(2):
            a(f'buffer_store_dwordx4 {v(PK+8*j+4*gg,4)}, v14, s[8:11], s17 offen offset:{(2*j+gg)*640}')
    stamp(a, 5)
    if gen.PROF: a('s_waitcnt vmcnt(0)')
    stamp(a, 6); stamp(a, 7, True)
    stamp_flush(a, 1, 8, 8, 12)
    a('s_endpgm')
    a.label(lz)
    decode()
    pack_dma()
    a('v_lshlrev_b32 v1, 4, v0')
    for r in range(4, 8): a(f'v_mov_b32 v{r+100}, 0')
    a(f's_mov_b32 s17, {WS_FLAG}')
    a('buffer_store_dwordx4 v[104:107], v1, s[8:11], s17 offen')
    a('s_waitcnt vmcnt(0)')
    a('s_barrier')
    pack_work(100 + 12)
    a.label(f'{L}_end')
    a('s_endpgm')
    return a, descriptor(L, 160, 102), f'; @launch kernel={L} grid=(256,1,1) block=(512,1,1) lds=163840'
```

```python
import sys
sys.path.insert(0, 'dev')
import gen, gen2
from gen import *
from gen2 import lab, stores2, attn_units, wo_dma, WS_XT, SG, SJ, SPURE, LDS_WO, SPIN_MAX
from asmlib import *

class VM:
    def __init__(self): self.ops = []
    def issue(self, tag): self.ops.append(tag)
    def count_after(self, pred):
        n = 0
        for x in reversed(self.ops):
            if pred(x): return n
            n += 1
        raise Exception('no op matches')
    def wait(self, a, pred, extra=''):
        a(f's_waitcnt vmcnt({min(self.count_after(pred), 63)}){extra}')

XR0 = 136
W1A, W1B = 152, 16
def w1reg(s): return W1A + 4 * s if s < 26 else W1B + 4 * (s - 26)
SH, SR = 36, 37
S_OOB = 38
S_W1 = 98
V_W1 = 1

def flag_store(a, p, vt):
    g_, j_ = (SR, SH) if p == 0 else (SG, SJ)
    a(f's_lshl_b32 s40, s{g_}, 7')
    a(f's_lshl_b32 s41, s{j_}, 2')
    a('s_add_u32 s40, s40, s41')
    a(f's_add_u32 s40, s40, {WS_FLAG + p*1024}')
    a(f'v_mov_b32 v{vt}, 0')
    a(f'v_mov_b32 v{vt+1}, 1')
    a('s_mov_b64 exec, 1')
    stores2(a, [f'buffer_store_dword v{vt+1}, v{vt}, s[8:11], s40 offen'])
    a('s_mov_b64 exec, -1')

def sync(a, p_pub, p_wait, smask_setup, prefetch, vt=14):
    if p_pub is not None:
        a('s_waitcnt vmcnt(0)')
        a('s_barrier')
    l0, l1, lp, ld, l3 = lab('sy'), lab('sy'), lab('sy'), lab('sy'), lab('sy')
    a('s_cmp_lg_u32 s12, 0')
    a(f's_cbranch_scc1 {l0}')
    if p_pub is not None: flag_store(a, p_pub, vt)
    smask_setup()
    a(f's_lshl_b32 s40, s{SG}, 7')
    a(f's_add_u32 s40, s40, {WS_FLAG + p_wait*1024}')
    a(f'v_lshlrev_b32 v{vt}, 2, v2')
    a('s_mov_b64 exec, s[44:45]')
    a('s_mov_b32 s41, 0')
    a.label(lp)
    a(f'buffer_load_dword v{vt+1}, v{vt}, s[8:11], s40 offen sc1')
    a('s_add_u32 s41, s41, 1')
    a('s_waitcnt vmcnt(0)')
    a(f'v_cmp_eq_u32 vcc, 0, v{vt+1}')
    a(f's_cbranch_vccz {ld}')
    a(f's_cmp_lt_u32 s41, {SPIN_MAX}')
    a(f's_cbranch_scc1 {lp}')
    a.label(ld)
    a('s_mov_b64 exec, -1')
    a(f's_cmp_eq_u32 s{SPURE}, 1')
    a(f's_cbranch_scc1 {l3}')
    a('buffer_inv sc1')
    a('s_waitcnt vmcnt(0)')
    a.label(l3)
    a('s_barrier')
    prefetch()
    a(f's_branch {l1}')
    a.label(l0)
    prefetch()
    a('s_barrier')
    a.label(l1)

def phase_attn(a):
    R = AR
    attn_setup(a, SH, SR, 12, 8)
    a(f's_lshr_b32 s62, s{SJ}, 2')
    a('s_mul_i32 s62, s62, 102400')
    a(f's_add_u32 s62, s62, {WS_WO}')
    a('s_lshl_b32 s61, s12, 10')
    a('s_add_u32 s62, s62, s61')
    a('s_cmp_lt_u32 s12, 4')
    a(f's_mov_b32 s63, {11*8192}')
    a(f's_cselect_b32 s63, {12*8192}, s63')
    a('s_add_u32 s63, s63, s62')
    a(f's_add_u32 s61, s61, {LDS_WO}')
    for r in range(32): a(f'v_mov_b32 v{R.O+r}, 0')
    for r in range(16): a(f'v_mov_b32 v{R.P+r}, 0')
    for r in range(16): a(f'v_mov_b32 v{R.VV+r}, 0')
    vm = VM()
    attn_dma(a, 0, 8)
    lane_swap23(a, 14, 3, 15)
    a('v_lshrrev_b32 v15, 4, v14')
    a('s_movk_i32 s40, 20480')
    a('v_mul_lo_u32 v15, v15, s40')
    a('v_and_b32 v14, 15, v14')
    a('v_lshl_add_u32 v15, v14, 4, v15')
    a(f'v_lshl_add_u32 v{V_W1}, v4, 8, v15')
    a(f's_lshr_b32 s40, s{SJ}, 1')
    a('s_lshl_b32 s40, s40, 2')
    a('s_and_b32 s41, s12, 3')
    a('s_add_u32 s40, s40, s41')
    a('s_mul_i32 s41, s40, 40960')
    a(f's_add_u32 s41, s41, {WS_W1}')
    a('s_cmp_lt_u32 s40, 54')
    a(f's_cselect_b32 s{S_W1}, s41, 0x7ff00000')
    a(f's_mov_b32 s{S_OOB}, 0x7ff00000')
    lt1, lt2 = lab('tc'), lab('tc')
    a('v_lshlrev_b32 v148, 7, v2')
    a('s_cmp_ge_u32 s12, 4')
    a(f's_cbranch_scc1 {lt1}')
    a(f's_mul_i32 s50, s{SG}, {16*20480}')
    a(f's_mul_i32 s40, s{SJ}, 10240')
    a('s_add_u32 s50, s50, s40')
    a('s_and_b32 s40, s12, 1')
    a('s_mul_i32 s40, s40, 5120')
    a('s_add_u32 s50, s50, s40')
    a('s_lshr_b32 s40, s12, 1')
    a(f's_mul_i32 s40, s40, {WS_H - WS_O}')
    a('s_add_u32 s50, s50, s40')
    a(f's_add_u32 s50, s50, {WS_O}')
    a('v_add_u32 v148, s50, v148')
    a(f's_lshr_b32 s40, s{SJ}, 1')
    a('s_lshl_b32 s40, s40, 14')
    a(f's_lshl_b32 s41, s{SG}, 11')
    a('s_add_u32 s40, s40, s41')
    a(f's_and_b32 s41, s{SJ}, 1')
    a('s_lshl_b32 s41, s41, 10')
    a('s_add_u32 s40, s40, s41')
    a(f's_add_u32 s40, s40, {WS_ST2 - 40*128}')
    a('s_cmp_eq_u32 s12, 2')
    a('s_cselect_b32 s40, s40, 0x7ff00000')
    a('v_lshlrev_b32 v149, 7, v2')
    a('v_add_u32 v149, s40, v149')
    a('v_mov_b32 v14, 0x7ff00000')
    a('v_cmp_gt_u32 vcc, 48, v2')
    a('v_cndmask_b32 v149, v14, v149, vcc')
    a('v_cmp_gt_u32 vcc, 40, v2')
    a('v_cndmask_b32 v148, v149, v148, vcc')
    a(f's_branch {lt2}')
    a.label(lt1)
    a('s_sub_u32 s40, s12, 4')
    a('s_lshl_b32 s40, s40, 5')
    a(f's_add_u32 s40, s40, s{SJ}')
    a('s_mul_i32 s50, s40, 20480')
    a(f's_add_u32 s50, s50, {WS_W1 + 13312}')
    a('s_cmp_lt_u32 s40, 108')
    a('s_cselect_b32 s50, s50, 0x7ff00000')
    a('v_add_u32 v148, s50, v148')
    a('v_mov_b32 v14, 0x7ff00000')
    a('v_cmp_gt_u32 vcc, 56, v2')
    a('v_cndmask_b32 v148, v14, v148, vcc')
    a.label(lt2)
    a('v_lshlrev_b32 v147, 7, v2')
    a('s_lshl_b32 s40, s12, 13')
    a(f's_mul_i32 s51, s{SG}, {16*55296}')
    a(f's_mul_i32 s41, s{SJ}, 27648')
    a('s_add_u32 s51, s51, s41')
    a('s_add_u32 s51, s51, s40')
    a(f's_add_u32 s51, s51, {WS_G}')
    a('s_cmp_ge_u32 s12, 4')
    a('s_cselect_b32 s51, 0x7ff00000, s51')
    a(f's_and_b32 s40, s{SJ}, 3')
    a('s_lshl_b32 s40, s40, 2')
    a(f's_lshl_b32 s41, s{SG}, 4')
    a('s_add_u32 s40, s40, s41')
    a('s_and_b32 s41, s12, 3')
    a('s_add_u32 s40, s40, s41')
    a('s_lshl_b32 s40, s40, 4')
    a('v_and_b32 v0, 15, v2')
    a('v_add_u32 v0, s40, v0')
    a('s_movk_i32 s41, 1280')
    a('v_mul_lo_u32 v0, v0, s41')
    a('v_lshrrev_b32 v14, 4, v2')
    a('v_lshl_add_u32 v0, v14, 3, v0')
    a(f's_lshr_b32 s57, s{SJ}, 2')
    a('s_mul_i32 s57, s57, 160')
    a('s_lshr_b32 s40, s12, 2')
    a('s_mul_i32 s40, s40, 96')
    a('s_add_u32 s57, s57, s40')
    a('s_waitcnt vmcnt(0)')
    for st in (1, 2):
        attn_dma(a, st, 8); vm.issue(('kv', st)); vm.issue(('kv', st))
    for x in wo_dma(): a(x)
    vm.issue('wo')
    if 'notlb' not in gen.EXP:
        a('v_lshlrev_b32 v149, 16, v2')
        a('s_lshl_b32 s40, s12, 22')
        a('buffer_load_dword v149, v149, s[8:11], s40 offen')
        a('v_lshlrev_b32 v148, 16, v2')
        a('buffer_load_dword v148, v148, s[76:79], 0 offen')
    a('v_cmp_gt_u32 vcc, 32, v2')
    for r in range(4): a(f'v_cndmask_b32 v{R.QC+r}, 0, v{R.QC+r}, vcc')
    a('s_waitcnt lgkmcnt(0)')
    a('s_barrier')
    a(f'ds_read_b128 {v(R.KA,4)}, v11 offset:0')
    a(f'ds_read_b64 {v(R.KC,2)}, v12 offset:0')
    a('s_waitcnt lgkmcnt(0)')
    a(f'v_mfma_f32_32x32x16_bf16 {v(R.S,16)}, {v(R.KA,4)}, {v(R.QA,4)}, 0')
    a(f'v_mfma_f32_32x32x8bf16_1k {v(R.S,16)}, {v(R.KC,2)}, {v(R.QC,2)}, {v(R.S,16)}')
    stamp(a, 7)
    wnext = [0]
    def w1load():
        s_ = wnext[0]; wnext[0] += 1
        return [f's_add_u32 s40, s{S_W1}, {s_*512}', f'buffer_load_dwordx4 {v(w1reg(s_),4)}, v{V_W1}, s[8:11], s40 offen']
    plan = {}
    waits = {}
    nW = {2: 3, 3: 3, 4: 3, 5: 3, 6: 4, 7: 4, 8: 3, 9: 3}
    if 'now1a' in gen.EXP: nW = {}
    def masked(sreg, cond_lo, cond_hi, vreg):
        return [f's_sub_u32 s40, s12, {cond_lo}', f's_cmp_lt_u32 s40, {cond_hi - cond_lo}', f's_cselect_b32 s40, {sreg}, s{S_OOB}',
                f'buffer_load_dword v149, v{vreg}, s[8:11], s40 offen']
    for g in range(16):
        ex = {}
        k = nW.get(g, 0)
        slots = sorted([(0, 20), (1, 8), (1, 20), (2, 20)][:k])
        if g <= 11:
            ex.setdefault(0, {})[8] = wo_dma(); vm.issue('wo')
        if g == 12:
            ex.setdefault(0, {})[8] = [f's_lshl_b32 s40, s{SG}, 7', f's_add_u32 s40, s40, {WS_XT}', 'v_lshlrev_b32 v150, 2, v3',
                                       'buffer_load_dword v150, v150, s[8:11], s40 offen sc1']
            vm.issue('xt')
        tl = None
        if g == 10: tl = masked('0', 4, 6, 148)
        if g == 11: tl = masked('0', 6, 8, 148)
        if g == 12: tl = masked('0', 0, 4, 148)
        if g == 13: tl = ['buffer_load_dword v149, v147, s[8:11], s51 offen']
        if tl and 'notouch' not in gen.EXP:
            ex.setdefault(1, {})[14] = tl; vm.issue('touch')
        post = []
        pre_ops = []
        for (u, pos) in slots:
            if u < 2: ex.setdefault(u, {})[pos] = w1load(); vm.issue('w1')
            else: post.append((u, pos))
        if g < 15: waits[g] = vm.count_after(lambda x: x == ('kv', g + 1))
        for (u, pos) in post:
            ex.setdefault(u, {})[pos] = w1load(); vm.issue('w1')
        if g <= 12:
            vm.issue(('kv', g + 3)); vm.issue(('kv', g + 3))
        if g == 13:
            ex.setdefault(3, {})[20] = [f'buffer_load_dwordx2 {v(XR0+2*i,2)}, v0, s[72:75], s57 offen offset:{32*i}' for i in range(3)]
            for i in range(3): vm.issue('xr')
        plan[g] = ex
    assert wnext[0] == 26 or 'now1a' in gen.EXP, wnext
    def run(stages_g):
        loc = {g % 4: g for g in stages_g}
        def prio(st, u):
            g = loc[st]
            if g == 15: return {0: 2, 1: 1, 2: 1, 3: 0}[u]
            if g == 14 and u >= 2: return 3
            return {2: 3, 3: 2, 0: 1, 1: 0}[u]
        return attn_units(a, 8, [(g % 4, g == 15) for g in stages_g], lambda st: loc[st] <= 12,
                          lambda st, u: plan[loc[st]].get(u, {}), lambda st: waits[loc[st]], prio)
    for b_ in range(3): run([4*b_ + i for i in range(4)])
    m1, m2, m3, m4, _ = run([12, 13, 14, 15])
    a(m3(1, 1, 1)); a(m4(1, 1, 1))
    a('s_setprio 0')
    stamp(a, 3)
    a('s_cmp_eq_u32 s46, 0')
    a('s_cbranch_scc1 .Lat_noswap')
    a('s_nop 7')
    for r in range(12): a(f'v_swap_b32 v{R.O+r}, v{R.O+16+r}')
    a.label('.Lat_noswap')
    a('s_nop 7')
    a(f's_mul_i32 s40, s12, 3072')
    a('v_add_u32 v14, s40, v10')
    for i in range(3): a(f'ds_write_b128 v14, {v(R.O+16+4*i,4)} offset:{1024*i}')
    a('s_xor_b32 s40, s12, 4')
    a('s_mul_i32 s40, s40, 3072')
    a('v_add_u32 v14, s40, v10')
    a('s_waitcnt lgkmcnt(0)')
    a('s_barrier')
    TT = R.S
    for i in range(3): a(f'ds_read_b128 {v(TT+4*i,4)}, v14 offset:{1024*i}')
    lp, ld = lab('xt'), lab('xt')
    a('s_mov_b32 s41, 0')
    a('v_cmp_eq_u32 vcc, 0, v150')
    a(f's_cbranch_vccz {ld}')
    a.label(lp)
    a(f's_lshl_b32 s40, s{SG}, 7')
    a(f's_add_u32 s40, s40, {WS_XT}')
    a('v_lshlrev_b32 v14, 2, v3')
    a('buffer_load_dword v150, v14, s[8:11], s40 offen sc1')
    a('s_add_u32 s41, s41, 1')
    a('s_waitcnt vmcnt(0)')
    a('v_cmp_eq_u32 vcc, 0, v150')
    a(f's_cbranch_vccz {ld}')
    a(f's_cmp_lt_u32 s41, {SPIN_MAX}')
    a(f's_cbranch_scc1 {lp}')
    a.label(ld)
    a(f'v_cmp_ne_u32 vcc, s{SPURE}, v150')
    a('s_cmp_eq_u64 vcc, 0')
    a(f's_cselect_b32 s{SPURE}, 1, 0')
    if 'slow' in gen.EXP: a(f's_mov_b32 s{SPURE}, 0')
    a('s_waitcnt lgkmcnt(0)')
    for r in range(12): a(f'v_add_f32 v{R.O+r}, v{R.O+r}, v{TT+r}')
    a(f'v_mov_b32 v{TT}, v{R.O+8}')
    a(f'v_mov_b32 v{TT+1}, v{R.O+8}')
    a(f'v_permlane32_swap_b32 v{TT}, v{TT+1}')
    a(f'v_rcp_f32 v{TT+1}, v{TT+1}')
    for r in range(12): a(f'v_mul_f32 v{R.O+r}, v{R.O+r}, v{TT+1}')
    for i in range(6): a(f'v_cvt_pk_bf16_f32 v{TT+4+i}, v{R.O+2*i}, v{R.O+2*i+1}')
    a('s_mul_i32 s61, s46, 40960')
    a('s_add_u32 s61, s61, s47')
    a(f's_add_u32 s61, s61, {WS_O}')
    a('s_lshl_b32 s62, s42, 8')
    a('s_add_u32 s62, s62, s61')
    a('s_lshl_b32 s63, s43, 8')
    a('s_add_u32 s63, s63, s61')
    a(f's_and_b32 s61, s{SH}, 1')
    a('s_lshl_b32 s61, s61, 3')
    a('s_add_u32 s63, s63, s61')
    stores2(a, [f'buffer_store_dwordx4 {v(TT+4,4)}, v7, s[8:11], s62 offen',
                's_mov_b64 exec, 0xffffffff',
                f'buffer_store_dwordx2 {v(TT+8,2)}, v5, s[8:11], s63 offen',
                's_mov_b64 exec, -1'])

def phase_oproj(a):
    BF, AF, ACC, XR, T = 16, 56, 96, XR0, 116
    a(f's_and_b32 s20, s{SJ}, 3')
    a(f's_lshr_b32 s21, s{SJ}, 2')
    a('s_and_b32 s22, s12, 3')
    a('s_lshr_b32 s23, s12, 2')
    a(f's_lshl_b32 s29, s{SG}, 4')
    a('s_lshl_b32 s30, s20, 2')
    a('s_add_u32 s29, s29, s30')
    a('s_add_u32 s29, s29, s22')
    a('v_and_b32 v5, 15, v2')
    a('v_lshrrev_b32 v6, 4, v2')
    a('s_mul_i32 s30, s29, 20480')
    a('s_mul_i32 s31, s23, 10240')
    a('s_add_u32 s30, s30, s31')
    a(f's_add_u32 s30, s30, {WS_O}')
    a('s_mul_i32 s33, s23, 10240')
    a(f's_add_u32 s33, s33, {LDS_WO}')
    a('v_add_u32 v8, s33, v10')
    a(f'v_add_u32 v9, {3*20480}, v8')
    def pre(): pass
    def mask():
        a('s_mov_b32 s44, -1'); a('s_mov_b32 s45, 0')
    sync(a, 0, 0, mask, pre)
    stamp(a, 8)
    for i in range(10):
        if i % 4 == 0: a(f's_add_u32 s31, s30, {i*1024}')
        a(f'buffer_load_dwordx4 {v(BF+4*i,4)}, v10, s[8:11], s31 offen offset:{(i%4)*1024} sc1')
    def areads(i, buf):
        for ft in range(5):
            off = ft * 20480 + i * 1024
            base = 8
            if ft >= 3: off -= 3 * 20480; base = 9
            a(f'ds_read_b128 {v(AF+20*buf+4*ft,4)}, v{base} offset:{off}')
    areads(0, 0)
    for i in range(10):
        if i < 9:
            areads(i + 1, (i + 1) & 1)
            a(f's_waitcnt vmcnt({9-i}) lgkmcnt(5)')
        else:
            a('s_waitcnt vmcnt(0) lgkmcnt(0)')
        for ft in range(5):
            acc = v(ACC + 4 * ft, 4)
            a(f'v_mfma_f32_16x16x32_bf16 {acc}, {v(AF+20*(i&1)+4*ft,4)}, {v(BF+4*i,4)}, {"0" if i == 0 else acc}')
    stamp(a, 9)
    a('s_mul_i32 s40, s12, 3072')
    a('s_add_u32 s40, s40, 32768')
    a('v_add_u32 v14, s40, v10')
    l1, l2 = lab('ox'), lab('ox')
    a('s_nop 7')
    a('s_cmp_eq_u32 s23, 0')
    a(f's_cbranch_scc0 {l1}')
    for i, ft in enumerate((3, 4)): a(f'ds_write_b128 v14, {v(ACC+4*ft,4)} offset:{1024*i}')
    a(f's_branch {l2}')
    a.label(l1)
    for ft in range(3): a(f'ds_write_b128 v14, {v(ACC+4*ft,4)} offset:{1024*ft}')
    a('s_waitcnt lgkmcnt(0)')
    for r in range(8): a(f'v_mov_b32 v{ACC+r}, v{ACC+12+r}')
    for r in range(8, 12): a(f'v_mov_b32 v{ACC+r}, 0')
    a.label(l2)
    a('s_xor_b32 s40, s12, 4')
    a('s_mul_i32 s40, s40, 3072')
    a('s_add_u32 s40, s40, 32768')
    a('v_add_u32 v14, s40, v10')
    a('s_waitcnt lgkmcnt(0)')
    a('s_barrier')
    for i in range(3): a(f'ds_read_b128 {v(T+4*i,4)}, v14 offset:{1024*i}')
    a('s_waitcnt lgkmcnt(0)')
    for r in range(12): a(f'v_add_f32 v{ACC+r}, v{ACC+r}, v{T+r}')
    for i in range(3):
        for h2 in range(2):
            a(f'v_lshlrev_b32 v{T}, 16, v{XR+2*i+h2}')
            a(f'v_and_b32 v{T+1}, 0xffff0000, v{XR+2*i+h2}')
            a(f'v_add_f32 v{ACC+4*i+2*h2}, v{ACC+4*i+2*h2}, v{T}')
            a(f'v_add_f32 v{ACC+4*i+2*h2+1}, v{ACC+4*i+2*h2+1}, v{T+1}')
    l3 = lab('ox')
    a('s_cmp_eq_u32 s23, 0')
    a(f's_cbranch_scc1 {l3}')
    for r in range(8, 12): a(f'v_mov_b32 v{ACC+r}, 0')
    a.label(l3)
    a(f'v_mov_b32 v{T}, v{ACC}')
    a(f'v_mul_f32 v{T+1}, v{ACC}, v{ACC}')
    for r in range(1, 12):
        a(f'v_add_f32 v{T}, v{T}, v{ACC+r}')
        a(f'v_fmac_f32 v{T+1}, v{ACC+r}, v{ACC+r}')
    sum_q4(a, T, T+2, T+3)
    sum_q4(a, T+1, T+2, T+3)
    for i in range(6): a(f'v_cvt_pk_bf16_f32 v{T+4+i}, v{ACC+2*i}, v{ACC+2*i+1}')
    a('s_mul_i32 s34, s29, 20480')
    a('s_mul_i32 s35, s21, 2560')
    a('s_add_u32 s34, s34, s35')
    a('s_mul_i32 s35, s23, 1536')
    a('s_add_u32 s34, s34, s35')
    a(f's_add_u32 s34, s34, {WS_H}')
    a('v_lshrrev_b32 v11, 1, v6')
    a('v_lshlrev_b32 v11, 8, v11')
    a('v_lshl_add_u32 v11, v5, 4, v11')
    a('v_and_b32 v12, 1, v6')
    a('v_lshl_add_u32 v11, v12, 3, v11')
    a('s_lshl_b32 s33, s29, 7')
    a('s_lshl_b32 s35, s21, 1')
    a('s_add_u32 s35, s35, s23')
    a('s_lshl_b32 s35, s35, 14')
    a('s_add_u32 s33, s33, s35')
    a(f's_add_u32 s33, s33, {WS_ST2}')
    a('v_lshlrev_b32 v12, 3, v5')
    a('s_cmp_eq_u32 s23, 0')
    a(f's_cselect_b32 s35, s34, {0x7ffff000}')
    stores2(a, [f'buffer_store_dwordx2 {v(T+4,2)}, v11, s[8:11], s34 offen',
                f'buffer_store_dwordx2 {v(T+6,2)}, v11, s[8:11], s34 offen offset:512',
                f'buffer_store_dwordx2 {v(T+8,2)}, v11, s[8:11], s35 offen offset:1024',
                's_mov_b64 exec, 0xffff',
                f'buffer_store_dwordx2 {v(T,2)}, v12, s[8:11], s33 offen',
                's_mov_b64 exec, -1'])

F2_SLOT = {0: 81920, 1: 122880, 2: 0, 3: 40960, 4: 81920, 5: 122880, 6: 0}
def w2_setup(a):
    a(f's_lshr_b32 s21, s{SJ}, 2')
    a('s_lshr_b32 s22, s12, 2')
    a('s_and_b32 s23, s12, 3')
    a('s_mul_i32 s26, s23, 14')
    a('s_cmp_eq_u32 s23, 3')
    a('s_cselect_b32 s27, 1, 0')
    a('s_sub_u32 s26, s26, s27')
    a('s_mul_i32 s47, s21, 276480')
    a(f's_add_u32 s47, s47, {WS_W2}')
    a('s_add_u32 s48, s26, s22')
    a('s_lshl_b32 s48, s48, 10')
    a('s_add_u32 s47, s47, s48')
    a('s_lshl_b32 s48, s23, 1')
    a('s_add_u32 s48, s48, s22')
    a('s_mul_i32 s48, s48, 5120')
def w2_dma(st, ft):
    return [f's_add_u32 m0, s48, {F2_SLOT[st] + ft*1024}', f's_add_u32 s49, s47, {st*2048 + ft*55296}',
            'buffer_load_dwordx4 v10, s[8:11], s49 offen lds']

def far_touch(a, vt, vd):
    a(f'v_lshlrev_b32 v{vt}, 7, v2')
    a(f's_mul_i32 s56, s{SJ}, 69120')
    a('s_lshl_b32 s57, s12, 13')
    a('s_add_u32 s56, s56, s57')
    a(f's_add_u32 s56, s56, {WS_W2}')
    a(f'buffer_load_dword v{vd}, v{vt}, s[8:11], s56 offen')
    a(f's_mul_i32 s56, s{SG}, {16*55296}')
    a(f's_mul_i32 s57, s{SJ}, 27648')
    a('s_add_u32 s56, s56, s57')
    a('s_lshl_b32 s57, s12, 13')
    a('s_add_u32 s56, s56, s57')
    a(f's_add_u32 s56, s56, {WS_G}')
    a(f's_mul_i32 s57, s{SJ}, 69120')
    a(f's_add_u32 s57, s57, {WS_W2 + 65536}')
    a('s_cmp_eq_u32 s12, 4')
    a('s_cselect_b32 s56, s57, s56')
    a('s_cmp_gt_u32 s12, 4')
    a('s_cselect_b32 s56, 0x7ff00000, s56')
    a(f'buffer_load_dword v{vd}, v{vt}, s[8:11], s56 offen')

def phase_ffn1(a, vm_pre):
    ACC, FB = 72, 104
    CS, B1, ST = 192, 168, 128
    SEL, CSA, B1R = 120, 124, 184
    NS = 5
    a(f's_load_dwordx2 s[50:51], s[0:1], {A_B1}')
    a(f'v_mov_b32 v{SEL}, 0')
    a('s_mov_b32 s52, 0x00020001')
    a('s_mov_b32 s53, 0x00020001')
    a('v_mov_b32 v15, 0x3f803f80')
    a(f'v_cndmask_b32 v{SEL}, v{SEL}, v15, s[52:53]')
    for r in range(1, 4): a(f'v_mov_b32 v{SEL+r}, v{SEL}')
    for r in range(4): a(f'v_mov_b32 v{CSA+r}, 0')
    a('s_waitcnt lgkmcnt(0)')
    srd(a, 52, 50, F * 2)
    w2_setup(a)
    a(f's_and_b32 s13, s{SJ}, 1')
    a(f's_lshl_b32 s15, s{SG}, 1')
    a('s_add_u32 s13, s13, s15')
    a(f's_lshr_b32 s14, s{SJ}, 1')
    a('s_and_b32 s23, s12, 3')
    a('s_lshr_b32 s26, s12, 2')
    a('v_lshrrev_b32 v7, 4, v3')
    a('s_movk_i32 s17, 20480')
    a('v_mul_lo_u32 v7, v7, s17')
    a('v_and_b32 v6, 15, v3')
    a('v_lshl_add_u32 v7, v6, 4, v7')
    a('v_lshl_add_u32 v7, v4, 8, v7')
    a('s_lshl_b32 s20, s13, 3')
    a('s_lshl_b32 s19, s23, 1')
    a('s_add_u32 s20, s20, s19')
    a('s_mul_i32 s20, s20, 20480')
    a('s_lshl_b32 s19, s26, 10')
    a('s_add_u32 s20, s20, s19')
    a(f's_add_u32 s20, s20, {WS_H}')
    a('s_lshl_b32 s22, s23, 10')
    a('s_lshl_b32 s19, s26, 13')
    a('s_add_u32 s22, s22, s19')
    a('s_lshl_b32 s17, s26, 11')
    a('v_add_u32 v12, s17, v10')
    a('v_add_u32 v13, 0x10000, v12')
    vm = VM()
    def pre(): pass
    def mask():
        a(f's_and_b32 s40, s{SJ}, 1')
        a('s_cmp_eq_u32 s40, 0')
        a('s_mov_b32 s44, 0xcccccccc')
        a('s_cselect_b32 s44, 0x33333333, s44')
        a('s_mov_b32 s45, 0')
    sync(a, 1, 1, mask, pre)
    stamp(a, 10)
    nst = 10
    pend = [(st, i) for st in range(nst) for i in range(2)]
    def dma_one():
        st, i = pend.pop(0)
        a(f's_add_u32 m0, s22, {(st % NS)*16384 + i*4096}')
        a(f's_add_u32 s21, s20, {st*2048 + i*512}')
        a('buffer_load_dwordx4 v7, s[8:11], s21 offen sc1 lds')
        vm.issue(('h', st))
    for _ in range(2 * 3): dma_one()
    a('s_lshl_b32 s27, s13, 7')
    a('s_lshl_b32 s28, s26, 6')
    a('s_add_u32 s27, s27, s28')
    a('s_lshl_b32 s28, s13, 7')
    a('s_lshl_b32 s29, s23, 5')
    a('s_add_u32 s28, s28, s29')
    a('s_lshl_b32 s28, s28, 3')
    a(f's_add_u32 s28, s28, {WS_ST2}')
    a('v_lshlrev_b32 v14, 3, v3')
    a('v_lshl_add_u32 v14, v4, 17, v14')
    def st_load(q):
        a(f's_add_u32 s29, s28, {q*16384}')
        a(f'buffer_load_dwordx2 {v(ST+2*q,2)}, v14, s[8:11], s29 offen sc1')
        vm.issue('st')
    w1q = list(range(26, 40))
    def w1_load():
        s_ = w1q.pop(0)
        a(f's_add_u32 s40, s{S_W1}, {s_*512}')
        a(f'buffer_load_dwordx4 {v(w1reg(s_),4)}, v{V_W1}, s[8:11], s40 offen')
        vm.issue(('w1', s_))
    def reads(st, ks, buf):
        off = (st % NS) * 16384 + ks * 4096
        base = 12
        if off + 1024 >= 65536: off -= 65536; base = 13
        a(f'ds_read_b128 {v(FB+8*buf,4)}, v{base} offset:{off}')
        a(f'ds_read_b128 {v(FB+8*buf+4,4)}, v{base} offset:{off+1024}')
    def mfmas(s_, buf):
        for j in range(2):
            c = '0' if s_ == 0 else v(ACC+16*j, 16)
            a(f'v_mfma_f32_32x32x16_bf16 {v(ACC+16*j,16)}, {v(w1reg(s_),4)}, {v(FB+8*buf+4*j,4)}, {c}')
    F1S = 'f1stamp' in gen.EXP
    if F1S: stamp(a, 2)
    vm.wait(a, lambda x: x == ('h', 0))
    a('s_barrier')
    if F1S: stamp(a, 3)
    reads(0, 0, 0)
    buf = 0
    for st in range(nst):
        for ks in range(4):
            s_ = 4 * st + ks
            if ks < 3:
                reads(st, ks + 1, buf ^ 1)
                if s_ >= 26: vm.wait(a, lambda x: x == ('w1', s_), ' lgkmcnt(2)')
                else: a('s_waitcnt lgkmcnt(2)')
                mfmas(s_, buf)
            else:
                if st + 1 < nst:
                    a('s_waitcnt lgkmcnt(0)')
                    if F1S and st in (0, 2, 4, 6): stamp(a, {0: 4, 2: 7, 4: 9, 6: 13}[st])
                    vm.wait(a, lambda x: x == ('h', st + 1))
                    a('s_barrier')
                    if F1S and st in (0, 2, 4, 6): stamp(a, {0: 5, 2: 8, 4: 12, 6: 14}[st])
                    reads(st + 1, 0, buf ^ 1)
                else:
                    a('s_waitcnt lgkmcnt(0)')
                if s_ >= 26: vm.wait(a, lambda x: x == ('w1', s_))
                mfmas(s_, buf)
            lim = st + NS - 1 + (1 if ks == 3 else 0)
            if pend and pend[0][0] <= lim and (ks in (1, 3) or st == 0): dma_one()
            if ks in (0, 2) and w1q and st <= 6: w1_load()
            if st == 7 and ks < 4:
                st_load(2 * ks); st_load(2 * ks + 1)
            lc = lab('cs')
            a(f's_cmp_eq_u32 s26, {s_ & 1}')
            a(f's_cbranch_scc0 {lc}')
            a(f'v_mfma_f32_16x16x32_bf16 {v(CSA,4)}, {v(w1reg(s_),4)}, {v(SEL,4)}, {v(CSA,4)}')
            a.label(lc)
            if st == 8 and ks == 0:
                a('s_lshl_b32 s29, s14, 7')
                a('s_lshl_b32 s30, s23, 5')
                a('s_add_u32 s29, s29, s30')
                a('s_lshl_b32 s29, s29, 1')
                a('v_lshlrev_b32 v15, 4, v4')
                a(f'buffer_load_dwordx4 {v(B1R,4)}, v15, s[52:55], s29 offen'); vm.issue('cs')
                a(f'buffer_load_dwordx4 {v(B1R+4,4)}, v15, s[52:55], s29 offen offset:32'); vm.issue('cs')
            buf ^= 1
    stamp(a, 11)
    LST = 0
    l2 = lab('st')
    vm.wait(a, lambda x: x == 'cs')
    a('s_cmp_ge_u32 s12, 4')
    a(f's_cbranch_scc1 {l2}')
    b = ST
    for q in range(1, 8):
        a(f'v_add_f32 v{b}, v{b}, v{b+2*q}')
        a(f'v_add_f32 v{b+1}, v{b+1}, v{b+2*q+1}')
    for r in range(2):
        a(f'v_mov_b32 v{b+2}, v{b+r}'); a(f'v_mov_b32 v{b+3}, v{b+r}')
        a(f'v_permlane32_swap_b32 v{b+2}, v{b+3}')
        a(f'v_add_f32 v{b+r}, v{b+2}, v{b+3}')
    a(f'v_mul_f32 v{b}, {f2hex(1.0/640)}, v{b}')
    a(f'v_mul_f32 v{b+1}, {f2hex(1.0/640)}, v{b+1}')
    a(f'v_fma_f32 v{b+1}, -v{b}, v{b}, v{b+1}')
    a(f'v_add_f32 v{b+1}, 0x3727c5ac, v{b+1}')
    a(f'v_rsq_f32 v{b+1}, v{b+1}')
    a(f'v_mul_f32 v{b}, v{b}, v{b+1}')
    a('s_lshl_b32 s28, s12, 8')
    a('v_lshlrev_b32 v14, 3, v3')
    a('v_add_u32 v14, s28, v14')
    a(f'ds_write_b64 v14, {v(b,2)} offset:{LST}')
    a.label(l2)
    a('s_lshl_b32 s28, s23, 8')
    a('s_lshl_b32 s29, s26, 7')
    a('s_add_u32 s28, s28, s29')
    a('v_and_b32 v14, 1, v2')
    a('v_lshlrev_b32 v14, 6, v14')
    a('v_lshrrev_b32 v15, 4, v2')
    a('v_lshl_add_u32 v14, v15, 4, v14')
    a('v_add_u32 v14, s28, v14')
    a('s_mov_b32 s44, 0x00030003')
    a('s_mov_b32 s45, 0x00030003')
    a('s_mov_b64 exec, s[44:45]')
    a(f'ds_write_b128 v14, {v(CSA,4)} offset:{LST+1024}')
    a('s_mov_b64 exec, -1')
    a('s_waitcnt lgkmcnt(0)')
    a('s_barrier')
    a('s_lshl_b32 s28, s26, 9')
    a('v_lshlrev_b32 v14, 3, v3')
    a('v_add_u32 v14, s28, v14')
    a(f'ds_read_b64 {v(ST,2)}, v14 offset:{LST}')
    a(f'ds_read_b64 {v(ST+4,2)}, v14 offset:{LST+256}')
    a('s_lshl_b32 s28, s23, 8')
    a('v_lshlrev_b32 v14, 4, v4')
    a('v_add_u32 v14, s28, v14')
    for th_ in range(2):
        for g in range(4):
            a(f'ds_read_b128 {v(CS+32*th_+4*g,4)}, v14 offset:{LST + 1024 + th_*128 + g*32}')
    for q in range(8):
        a(f'v_lshlrev_b32 v{B1+2*q}, 16, v{B1R+q}')
        a(f'v_and_b32 v{B1+2*q+1}, 0xffff0000, v{B1R+q}')
    a('s_waitcnt lgkmcnt(0)')
    for r in range(16): a(f'v_add_f32 v{CS+r}, v{CS+r}, v{CS+32+r}')
    for j in range(2):
        b = ST + 4 * j
        for r in range(16):
            a(f'v_fma_f32 v{b+2}, -v{b}, v{CS+r}, v{B1+r}')
            a(f'v_fma_f32 v{ACC+16*j+r}, v{b+1}, v{ACC+16*j+r}, v{b+2}')
            a(f'v_max_f32 v{ACC+16*j+r}, 0, v{ACC+16*j+r}')
            a(f'v_mul_f32 v{ACC+16*j+r}, v{ACC+16*j+r}, v{ACC+16*j+r}')
    PK = 104
    for r in range(16):
        a(f'v_cvt_pk_bf16_f32 v{PK+r}, v{ACC+2*r}, v{ACC+2*r+1}')
    a('v_lshrrev_b32 v13, 4, v3')
    a('s_mov_b32 s18, 55296')
    a('v_mul_lo_u32 v13, v13, s18')
    a('v_and_b32 v14, 15, v3')
    a('v_lshl_add_u32 v13, v14, 4, v13')
    a('v_lshl_add_u32 v13, v4, 8, v13')
    a('s_lshr_b32 s18, s27, 4')
    a('s_mul_i32 s18, s18, 55296')
    a('s_lshl_b32 s17, s14, 2')
    a('s_add_u32 s17, s17, s23')
    a('s_cmp_ge_u32 s17, 54')
    a('s_cselect_b32 s19, 0x40000000, 0')
    a('s_lshl_b32 s17, s17, 10')
    a('s_add_u32 s17, s17, s18')
    a(f's_add_u32 s17, s17, {WS_G}')
    a('s_add_u32 s17, s17, s19')
    a(f's_add_u32 s18, s17, {2*55296}')
    stores2(a, [f'buffer_store_dwordx4 {v(PK,4)}, v13, s[8:11], s17 offen',
                f'buffer_store_dwordx4 {v(PK+4,4)}, v13, s[8:11], s17 offen offset:512',
                f'buffer_store_dwordx4 {v(PK+8,4)}, v13, s[8:11], s18 offen',
                f'buffer_store_dwordx4 {v(PK+12,4)}, v13, s[8:11], s18 offen offset:512'])

def phase_ffn2(a, L, published):
    NST = 7
    vm = VM()
    BF, ACC, AF, T = 16, 128, 168, 16
    def pre():
        for st in (0, 1):
            for ft in range(5):
                for x in w2_dma(st, ft): a(x)
    def mask():
        a(f's_and_b32 s40, s{SJ}, 2')
        a('s_cmp_eq_u32 s40, 0')
        a('s_mov_b32 s44, 0x0aaaaaaa')
        a('s_cselect_b32 s44, 0x05555555, s44')
        a('s_mov_b32 s45, 0')
    sync(a, 2 if published else None, 2, mask, pre)
    return vm

def ffn2_body(a, L):
    NST = 7
    vm = VM()
    for st in (0, 1):
        for ft in range(5): vm.issue(('w', st))
    BF, ACC, AF, T = 16, 128, 168, 16
    if 'f1stamp' not in gen.EXP: stamp(a, 12)
    a(f's_load_dwordx2 s[50:51], s[0:1], {A_B2}')
    a('s_waitcnt lgkmcnt(0)')
    srd(a, 52, 50, D * 2)
    a(f's_and_b32 s20, s{SJ}, 3')
    a(f's_lshr_b32 s21, s{SJ}, 2')
    a('s_lshr_b32 s22, s12, 2')
    a('s_and_b32 s23, s12, 3')
    a('s_mul_i32 s26, s23, 14')
    a('s_cmp_eq_u32 s23, 3')
    a('s_cselect_b32 s27, 1, 0')
    a('s_sub_u32 s26, s26, s27')
    a(f's_lshl_b32 s31, s{SG}, 4')
    a('s_lshl_b32 s32, s20, 2')
    a('s_add_u32 s31, s31, s32')
    a('s_lshl_b32 s32, s22, 1')
    a('s_add_u32 s32, s32, s31')
    a('s_mul_i32 s32, s32, 55296')
    a('s_lshl_b32 s33, s26, 10')
    a('s_add_u32 s32, s32, s33')
    a(f's_add_u32 s32, s32, {WS_G}')
    def bload(i):
        for j in range(2):
            a(f's_add_u32 s33, s32, {j*55296 + i*1024}')
            a(f'buffer_load_dwordx4 {v(BF+8*i+4*j,4)}, v10, s[8:11], s33 offen sc1')
            vm.issue(('b', i))
    for i in range(2): bload(i)
    bq = list(range(2, 14))
    wq = [(st, ft) for st in range(2, 7) for ft in range(5)]
    a('s_mul_i32 s34, s23, 10240')
    a('v_add_u32 v8, s34, v10')
    a('v_add_u32 v9, 0x10000, v8')
    a('v_add_u32 v11, 0x20000, v8')
    def areads(st, i, buf):
        for ft in range(5):
            off = F2_SLOT[st] + i * 5120 + ft * 1024
            base = {0: 8, 1: 9, 2: 11}[off >> 16]
            a(f'ds_read_b128 {v(AF+20*buf+4*ft,4)}, v{base} offset:{off & 65535}')
    for st in range(NST):
        vm.wait(a, lambda x: x == ('w', st) or x == ('b', min(2*st+1, 13)))
        a('s_barrier')
        areads(st, 0, 0)
        areads(st, 1, 1)
        for i in range(2):
            ks = 2 * st + i
            a(f's_waitcnt lgkmcnt({5 if i == 0 else 0})')
            last = (ks == 13)
            if last:
                a('s_cmp_ge_u32 s23, 2')
                a(f's_cbranch_scc1 {L}_skip')
            for ft in range(5):
                for j in range(2):
                    acc = v(ACC + 4 * (2 * ft + j), 4)
                    a(f'v_mfma_f32_16x16x32_bf16 {acc}, {v(AF+20*i+4*ft,4)}, {v(BF+8*ks+4*j,4)}, {"0" if ks == 0 else acc}')
                if not last:
                    nb = 1 if ft in (0, 3) else 0
                    if st == 0 and ft == 4: nb = 1
                    for _ in range(nb):
                        if bq and bq[0] <= ks + 6: bload(bq.pop(0))
                    nw = 2 if st <= 1 else 1
                    for _ in range(nw):
                        if wq and wq[0][0] - 3 <= st and (wq[0][0] <= 3 or wq[0][0] - 3 <= st):
                            x_ = wq.pop(0)
                            for x in w2_dma(*x_): a(x)
                            vm.issue(('w', x_[0]))
            if last: a.label(f'{L}_skip')
    if 'f1stamp' not in gen.EXP: stamp(a, 13)
    a('v_and_b32 v5, 15, v2')
    a('v_lshrrev_b32 v6, 4, v2')
    HR, BB = 228, 208
    a('s_and_b32 s33, s12, 3')
    a('s_add_u32 s33, s31, s33')
    a('s_mul_i32 s34, s33, 20480')
    a('s_mul_i32 s35, s21, 2560')
    a('s_add_u32 s34, s34, s35')
    a(f's_add_u32 s34, s34, {WS_H}')
    a('v_lshrrev_b32 v12, 1, v6')
    a('v_lshlrev_b32 v12, 8, v12')
    a('v_lshl_add_u32 v12, v5, 4, v12')
    a('v_and_b32 v13, 1, v6')
    a('v_lshl_add_u32 v12, v13, 3, v12')
    a('s_nop 7')
    for ft in range(5):
        a(f'buffer_load_dwordx2 {v(HR+2*ft,2)}, v12, s[8:11], s34 offen offset:{512*ft} sc1')
    a('s_mul_i32 s35, s21, 160')
    a('v_lshlrev_b32 v13, 3, v6')
    for ft in range(5):
        a(f'buffer_load_dwordx2 {v(BB+2*ft,2)}, v13, s[52:55], s35 offen offset:{32*ft}')
    a('s_barrier')
    ksplit_reduce(a, ACC, T, 12, 22, 23, 10, 14)
    a('s_cmp_ge_u32 s12, 4')
    a(f's_cbranch_scc1 {L}_fin')
    ksplit_gather(a, T, 12, 10, 14)
    a('s_waitcnt vmcnt(0)')
    for ft in range(5):
        for h2 in range(2):
            a(f'v_lshlrev_b32 v{T+20}, 16, v{HR+2*ft+h2}')
            a(f'v_and_b32 v{T+21}, 0xffff0000, v{HR+2*ft+h2}')
            a(f'v_lshlrev_b32 v{T+22}, 16, v{BB+2*ft+h2}')
            a(f'v_and_b32 v{T+23}, 0xffff0000, v{BB+2*ft+h2}')
            a(f'v_add_f32 v{T+4*ft+2*h2}, v{T+4*ft+2*h2}, v{T+22}')
            a(f'v_add_f32 v{T+4*ft+2*h2+1}, v{T+4*ft+2*h2+1}, v{T+23}')
            a(f'v_add_f32 v{T+4*ft+2*h2}, v{T+4*ft+2*h2}, v{T+20}')
            a(f'v_add_f32 v{T+4*ft+2*h2+1}, v{T+4*ft+2*h2+1}, v{T+21}')
    for i in range(10):
        a(f'v_cvt_pk_bf16_f32 v{T+24+i}, v{T+2*i}, v{T+2*i+1}')
    a('s_lshl_b32 s33, s33, 4')
    a('v_add_u32 v7, s33, v5')
    a('s_movk_i32 s34, 1280')
    a('v_mul_lo_u32 v7, v7, s34')
    a('v_lshl_add_u32 v7, v6, 3, v7')
    a('s_mul_i32 s34, s21, 160')
    for ft in range(5):
        a(f'buffer_store_dwordx2 {v(T+24+2*ft,2)}, v7, s[76:79], s34 offen offset:{32*ft}')

def kf():
    a = Asm()
    L = 'kf_kernel'
    kernel_begin(a, L)
    a('s_cmp_ge_u32 s2, 256')
    a(f's_cbranch_scc1 {L}_end')
    stamp(a, 0, True); stamp(a, 1)
    a(f's_load_dwordx2 s[4:5], s[0:1], {A_WS}')
    a(f's_load_dwordx2 s[68:69], s[0:1], {A_X}')
    a(f's_load_dwordx2 s[70:71], s[0:1], {A_OUT}')
    a(f's_and_b32 s{SG}, s2, 7')
    a(f's_lshr_b32 s{SJ}, s2, 3')
    a(f's_mov_b32 s{SH}, s{SJ}')
    a(f's_mov_b32 s{SR}, s{SG}')
    a('v_lshrrev_b32 v1, 6, v0')
    a('v_and_b32 v2, 63, v0')
    a('v_readfirstlane_b32 s12, v1')
    a('v_and_b32 v3, 31, v2')
    a('v_lshrrev_b32 v4, 5, v2')
    a(f's_getreg_b32 s{SPURE}, hwreg(HW_REG_XCC_ID, 0, 4)')
    a(f's_add_u32 s{SPURE}, s{SPURE}, 1')
    a('s_waitcnt lgkmcnt(0)')
    srd(a, 8, 4, WS_END)
    srd(a, 72, 68, S * D * 2)
    srd(a, 76, 70, S * D * 2)
    l = lab('xp')
    a('s_cmp_lg_u32 s12, 0')
    a(f's_cbranch_scc1 {l}')
    a(f's_lshl_b32 s40, s{SG}, 7')
    a(f's_lshl_b32 s41, s{SJ}, 2')
    a('s_add_u32 s40, s40, s41')
    a(f's_add_u32 s40, s40, {WS_XT}')
    a('v_mov_b32 v14, 0')
    a(f'v_mov_b32 v15, s{SPURE}')
    a('s_mov_b64 exec, 1')
    a('buffer_store_dword v15, v14, s[8:11], s40 offen sc1')
    a('s_mov_b64 exec, -1')
    a.label(l)
    if 'nocodepf' not in gen.EXP:
        a('s_getpc_b64 s[40:41]')
        a.label('.Lpc_here')
        a(f's_sub_u32 s40, s40, (.Lpc_here - {L})')
        a('s_subb_u32 s41, s41, 0')
        a('s_lshl_b32 s42, s12, 12')
        a('v_lshlrev_b32 v14, 6, v2')
        a('v_add_u32 v14, s42, v14')
        a(f's_mov_b32 s42, (.Lkf_last - {L})')
        a('v_add_u32 v16, 0x8000, v14')
        a('v_min_u32 v14, s42, v14')
        a('v_min_u32 v16, s42, v16')
        a('v_mov_b32 v15, s41')
        a('v_mov_b32 v17, s41')
        a('v_add_co_u32 v14, vcc, s40, v14')
        a('v_addc_co_u32 v15, vcc, 0, v15, vcc')
        a('v_add_co_u32 v16, vcc, s40, v16')
        a('v_addc_co_u32 v17, vcc, 0, v17, vcc')
        a('global_load_dword v151, v[14:15], off')
        a('global_load_dword v151, v[16:17], off')
    stamp(a, 2)
    phase_attn(a)
    stamp(a, 4)
    phase_oproj(a)
    stamp(a, 5)
    a(f's_cmp_ge_u32 s{SJ}, 28')
    a(f's_cbranch_scc1 {L}_idle')
    phase_ffn1(a, None)
    phase_ffn2(a, L, True)
    a(f's_branch {L}_f2')
    a.label(f'{L}_idle')
    a('s_waitcnt vmcnt(0)')
    a('s_barrier')
    li = lab('id')
    a('s_cmp_lg_u32 s12, 0')
    a(f's_cbranch_scc1 {li}')
    flag_store(a, 1, 14)
    a.label(li)
    w2_setup(a)
    a('s_waitcnt vmcnt(0)')
    phase_ffn2(a, L, False)
    a.label(f'{L}_f2')
    ffn2_body(a, L)
    a.label(f'{L}_fin')
    if 'f1stamp' not in gen.EXP: stamp(a, 14)
    if gen.PROF: a('s_waitcnt vmcnt(0)')
    stamp(a, 6, True)
    stamp_flush(a, 2, 15, 8, 12)
    a.label(f'{L}_end')
    a.label('.Lkf_last')
    a('s_endpgm')
    return a, descriptor(L, 256, 102), f'; @launch kernel={L} grid=(256,1,1) block=(512,1,1) lds=163840'

if __name__ == '__main__':
    if 'prof' in sys.argv: gen.PROF = True
    for x in sys.argv[2:]:
        if x.startswith('x:'): gen.EXP.add(x[2:])
    out = sys.argv[1]
    import gen4
    open(out, 'w').write(build([k0, k1, kf] if 'old' in gen.EXP else [gen4.k1p, kf]))
    print('wrote', out)
```

```python
import sys
sys.path.insert(0, 'dev')
import gen
from gen import *
from gen2 import lab
from gen3 import VM
from asmlib import *

PK_LDS = 131072
TB_LDS = PK_LDS + 24576
ST_T = TB_LDS
CS_T = TB_LDS + 4096
VT_T = PK_LDS

def k1p():
    a = Asm()
    L = 'k1_kernel'
    kernel_begin(a, L)
    a('s_cmp_ge_u32 s2, 256')
    a(f's_cbranch_scc1 {L}_end')
    stamp(a, 0, True); stamp(a, 1)
    if 'dbg' in gen.EXP:
        a('s_memrealtime s[90:91]'); a('s_memtime s[92:93]'); a(f's_load_dwordx2 s[94:95], s[0:1], {A_DBG}')
    a(f's_load_dwordx2 s[4:5], s[0:1], {A_WS}')
    a(f's_load_dwordx2 s[24:25], s[0:1], {A_X}')
    a(f's_load_dwordx2 s[26:27], s[0:1], {A_WQKV}')
    a(f's_load_dwordx2 s[28:29], s[0:1], {A_WO}')
    a(f's_load_dwordx2 s[30:31], s[0:1], {A_W1}')
    a(f's_load_dwordx2 s[32:33], s[0:1], {A_W2}')
    a('s_and_b32 s15, s2, 7')
    a('s_lshr_b32 s16, s2, 3')
    a('s_and_b32 s13, s15, 3')
    a('s_lshl_b32 s13, s13, 2')
    a('s_and_b32 s17, s16, 3')
    a('s_add_u32 s13, s13, s17')
    a('s_lshr_b32 s14, s15, 2')
    a('s_lshl_b32 s14, s14, 3')
    a('s_lshr_b32 s17, s16, 2')
    a('s_add_u32 s14, s14, s17')
    a('v_lshrrev_b32 v1, 6, v0')
    a('v_and_b32 v2, 63, v0')
    a('v_readfirstlane_b32 s12, v1')
    a('v_and_b32 v3, 31, v2')
    a('v_lshrrev_b32 v4, 5, v2')
    a('v_lshlrev_b32 v10, 4, v2')
    a('s_and_b32 s23, s12, 3')
    a('s_lshr_b32 s34, s12, 2')
    a('s_waitcnt lgkmcnt(0)')
    srd(a, 8, 4, WS_END)
    srd(a, 16 + 40, 24, S * D * 2)
    srd(a, 60, 26, D * 3 * D * 2)
    a('v_lshrrev_b32 v5, 3, v2')
    a('s_lshl_b32 s40, s12, 3')
    a('v_add_u32 v5, s40, v5')
    a('v_lshrrev_b32 v6, 4, v2')
    a('s_lshl_b32 s40, s12, 2')
    a('v_add_u32 v7, s40, v6')
    a('v_and_b32 v7, 7, v7')
    a('v_and_b32 v8, 7, v2')
    a('v_xor_b32 v7, v7, v8')
    a('s_movk_i32 s40, 1280')
    a('v_mul_lo_u32 v5, v5, s40')
    a('v_lshl_add_u32 v5, v7, 4, v5')
    a('s_mul_i32 s35, s13, 163840')
    a('s_lshl_b32 s40, s12, 2')
    a('v_add_u32 v7, s40, v6')
    a('s_movk_i32 s40, 3840')
    a('v_mul_lo_u32 v7, v7, s40')
    a('v_and_b32 v8, 15, v2')
    a('v_lshlrev_b32 v9, 2, v6')
    a('v_xor_b32 v8, v8, v9')
    a('v_lshl_add_u32 v6, v8, 4, v7')
    a('s_lshl_b32 s36, s14, 8')
    a('s_lshl_b32 s37, s12, 10')
    def decode():
        lo, l1_, l2_, ld = lab('pk'), lab('pk'), lab('pk'), lab('pk')
        a('s_cmp_lt_u32 s2, 40')
        a(f's_cbranch_scc0 {l1_}')
        srd(a, 64, 28, D * D * 2)
        a(f's_mul_hi_u32 s46, s2, {magic(10)}')
        a('s_mul_i32 s47, s46, 10')
        a('s_sub_u32 s47, s2, s47')
        a('s_movk_i32 s41, 160'); a('s_movk_i32 s42, 1280'); a(f's_mov_b32 s44, {WS_WO}'); a('s_movk_i32 s45, 20480')
        a(f's_branch {ld}')
        a.label(l1_)
        a('s_cmp_lt_u32 s2, 148')
        a(f's_cbranch_scc0 {l2_}')
        srd(a, 64, 30, D * F * 2)
        a('s_sub_u32 s40, s2, 40')
        a(f's_mul_hi_u32 s46, s40, {magic(27)}')
        a('s_mul_i32 s47, s46, 27')
        a('s_sub_u32 s47, s40, s47')
        a('s_movk_i32 s41, 160'); a('s_movk_i32 s42, 3456'); a(f's_mov_b32 s44, {WS_W1}'); a('s_movk_i32 s45, 20480')
        a(f's_branch {ld}')
        a.label(l2_)
        srd(a, 64, 32, F * D * 2)
        a('s_sub_u32 s40, s2, 148')
        a(f's_mul_hi_u32 s46, s40, {magic(10)}')
        a('s_mul_i32 s47, s46, 10')
        a('s_sub_u32 s47, s40, s47')
        a('s_movk_i32 s41, 192'); a('s_movk_i32 s42, 1280'); a(f's_mov_b32 s44, {WS_W2}'); a('s_mov_b32 s45, 55296')
        a.label(ld)
        a('s_mul_i32 s43, s46, s41')
        a('s_lshr_b32 s48, s43, 3')
        a('s_mul_i32 s43, s43, s42')
        a('s_lshl_b32 s40, s47, 7')
        a('s_add_u32 s43, s43, s40')
        a('s_lshl_b32 s40, s47, 2')
        a('s_mul_i32 s40, s40, s45')
        a('s_add_u32 s44, s44, s40')
        a('s_lshl_b32 s40, s48, 8')
        a('s_add_u32 s44, s44, s40')
    vm = VM()
    NS = 4
    def dma(st, k):
        slot = (st % NS) * 32768
        if k < 2:
            a(f's_add_u32 m0, s37, {slot + k*8192}')
            a(f's_add_u32 s38, s35, {st*128 + k*64*1280}')
            a('buffer_load_dwordx4 v5, s[56:59], s38 offen lds')
        else:
            a(f's_add_u32 m0, s37, {slot + 16384 + (k-2)*8192}')
            a(f's_add_u32 s38, s36, {(st*64 + (k-2)*32)*3840}')
            a('buffer_load_dwordx4 v6, s[60:63], s38 offen lds')
        vm.issue(('r', st))
    lz = f'{L}_nogemm'
    a('s_cmp_ge_u32 s14, 15')
    a(f's_cbranch_scc1 {lz}')
    for st in range(2):
        for k in range(4): dma(st, k)
    def pack_dma():
        a('v_lshrrev_b32 v11, 3, v2')
        a('s_lshl_b32 s40, s12, 3')
        a('v_add_u32 v11, s40, v11')
        a('v_mul_lo_u32 v11, v11, s42')
        a('v_and_b32 v12, 7, v2')
        a('v_lshl_add_u32 v11, v12, 4, v11')
        a('s_cmp_lt_u32 s2, 238')
        a('s_cselect_b32 s49, s43, 0x7ff00000')
        a('s_lshl_b32 s50, s42, 6')
        for i in range(3):
            a(f's_add_u32 m0, s37, {PK_LDS + i*8192}')
            a('s_nop 0')
            a('buffer_load_dwordx4 v11, s[64:67], s49 offen lds')
            if i < 2: a('s_add_u32 s49, s49, s50')
    def pack_work(T):
        a('v_lshrrev_b32 v12, 4, v2')
        a('v_lshrrev_b32 v13, 2, v2')
        a('v_and_b32 v13, 3, v13')
        a('v_lshl_add_u32 v12, v12, 3, v13')
        a('v_lshlrev_b32 v12, 7, v12')
        a('v_and_b32 v13, 3, v2')
        a('v_lshl_add_u32 v12, v13, 3, v12')
        a('s_and_b32 s40, s12, 3')
        a('s_lshl_b32 s49, s40, 5')
        a('s_lshr_b32 s50, s12, 2')
        a('s_lshl_b32 s51, s50, 12')
        a('s_add_u32 s49, s49, s51')
        a(f's_add_u32 s49, s49, {PK_LDS}')
        a('v_add_u32 v12, s49, v12')
        for i in range(3):
            a(f'ds_read_b64_tr_b16 {v(T+4*i,2)}, v12 offset:{i*8192}')
            a(f'ds_read_b64_tr_b16 {v(T+4*i+2,2)}, v12 offset:{i*8192 + 512}')
        a('s_mul_i32 s49, s40, s45')
        a('s_add_u32 s49, s49, s44')
        a('s_waitcnt lgkmcnt(0)')
        for i in range(3):
            a(f's_add_u32 s51, s50, {2*i}')
            a('s_lshl_b32 s52, s51, 5')
            a('s_cmp_lt_u32 s52, s41')
            a('s_cselect_b32 s53, 1, 0')
            a('s_cmp_lt_u32 s2, 238')
            a('s_cselect_b32 s53, s53, 0')
            a('s_lshl_b32 s51, s51, 10')
            a('s_add_u32 s51, s51, s49')
            a('s_cmp_eq_u32 s53, 1')
            a('s_cselect_b32 s51, s51, 0x7ff00000')
            a(f'buffer_store_dwordx4 {v(T+4*i,4)}, v10, s[8:11], s51 offen')
    VB = 14
    a('v_lshrrev_b32 v7, 1, v3')
    a('v_and_b32 v7, 7, v7')
    a('s_lshl_b32 s40, s34, 13')
    a('v_lshlrev_b32 v8, 7, v3')
    a('v_add_u32 v8, s40, v8')
    for ks in range(4):
        a(f'v_or_b32 v9, {2*ks}, v4')
        a('v_xor_b32 v9, v9, v7')
        a(f'v_lshl_add_u32 v{VB+ks}, v9, 4, v8')
    VA = 18
    a('v_lshrrev_b32 v7, 2, v2')
    a('v_and_b32 v7, 3, v7')
    a('v_and_b32 v8, 3, v2')
    a('v_and_b32 v9, 1, v8')
    a('v_lshlrev_b32 v9, 1, v9')
    a('v_lshrrev_b32 v11, 1, v8')
    a('v_or_b32 v9, v9, v11')
    a('s_cmp_lt_u32 s14, 10')
    a('s_cselect_b64 vcc, -1, 0')
    a('v_cndmask_b32 v8, v8, v9, vcc')
    a('v_lshrrev_b32 v9, 4, v2')
    a('v_and_b32 v9, 1, v9')
    a('v_lshl_add_u32 v8, v9, 2, v8')
    a('v_lshrrev_b32 v9, 1, v8')
    a('s_lshl_b32 s40, s23, 2')
    a('v_add_u32 v9, s40, v9')
    a('v_lshlrev_b32 v11, 2, v7')
    a('v_xor_b32 v9, v9, v11')
    a('v_lshlrev_b32 v9, 4, v9')
    a('v_and_b32 v8, 1, v8')
    a('v_lshl_add_u32 v9, v8, 3, v9')
    a('v_lshl_add_u32 v8, v4, 3, v7')
    a(f'v_lshl_add_u32 v{VA}, v8, 8, v9')
    a(f'v_add_u32 v{VA}, 16384, v{VA}')
    a(f'v_add_u32 v{VA+1}, 0x10000, v{VA}')
    for ks in range(4): a(f'v_add_u32 v{20+ks}, 0x10000, v{VB+ks}')
    SEL, CSA, S1 = 24, 28, 32
    a(f'v_mov_b32 v{SEL}, 0')
    a('s_mov_b32 s52, 0x00020001')
    a('s_mov_b32 s53, 0x00020001')
    a('v_mov_b32 v7, 0x3f803f80')
    a(f'v_cndmask_b32 v{SEL}, v{SEL}, v7, s[52:53]')
    for r in range(1, 4): a(f'v_mov_b32 v{SEL+r}, v{SEL}')
    for r in range(4): a(f'v_mov_b32 v{CSA+r}, 0')
    for r in range(4): a(f'v_mov_b32 v{S1+r}, 0')
    ACC, FA, FB, T = 40, 72, 80, 96
    XS = 136
    a('s_cmp_eq_u32 s23, 1'); a('s_cselect_b64 vcc, -1, 0'); a(f'v_cndmask_b32 v144, v{VB}, v{VB+1}, vcc')
    a('s_cmp_eq_u32 s23, 2'); a('s_cselect_b64 vcc, -1, 0'); a(f'v_cndmask_b32 v144, v144, v{VB+2}, vcc')
    a('s_cmp_eq_u32 s23, 3'); a('s_cselect_b64 vcc, -1, 0'); a(f'v_cndmask_b32 v144, v144, v{VB+3}, vcc')
    a('v_add_u32 v145, 0x10000, v144')
    def reads(st, ks, buf):
        off = (st % NS) * 32768
        hi = off >= 65536
        if hi: off -= 65536
        TR = 'ds_read_b64' if 'k1notr' in gen.EXP else 'ds_read_b64_tr_b16'
        a(f'{TR} {v(FA+4*buf,2)}, v{VA+1 if hi else VA} offset:{off + ks*4096}')
        a(f'{TR} {v(FA+4*buf+2,2)}, v{VA+1 if hi else VA} offset:{off + ks*4096 + 1024}')
        bb = (20 if hi else VB) + ks
        a(f'ds_read_b128 {v(FB+8*buf,4)}, v{bb} offset:{off}')
        a(f'ds_read_b128 {v(FB+8*buf+4,4)}, v{bb} offset:{off + 4096}')
    def stats_ops():
        out = []
        for j in range(2):
            for r in range(4):
                src = XS + 4 * j + r
                t = T + 2 * (r & 1)
                out += [f'v_lshlrev_b32 v{t}, 16, v{src}', f'v_and_b32 v{t+1}, 0xffff0000, v{src}',
                        f'v_add_f32 v{S1+j}, v{S1+j}, v{t}', f'v_fmac_f32 v{S1+2+j}, v{t}, v{t}',
                        f'v_add_f32 v{S1+j}, v{S1+j}, v{t+1}', f'v_fmac_f32 v{S1+2+j}, v{t+1}, v{t+1}']
        return out
    def xs_reads(st):
        off = (st % NS) * 32768
        hi = off >= 65536
        if hi: off -= 65536
        a(f'ds_read_b128 {v(XS,4)}, v{145 if hi else 144} offset:{off}')
        a(f'ds_read_b128 {v(XS+4,4)}, v{145 if hi else 144} offset:{off + 4096}')
    def main(swap):
        pend = [(st, k) for st in range(2, 10) for k in range(4)]
        vm2 = VM(); vm2.ops = list(vm.ops)
        def dma_next():
            st, k = pend.pop(0)
            slot = (st % NS) * 32768
            if k < 2:
                a(f's_add_u32 m0, s37, {slot + k*8192}')
                a(f's_add_u32 s38, s35, {st*128 + k*64*1280}')
                a('buffer_load_dwordx4 v5, s[56:59], s38 offen lds')
            else:
                a(f's_add_u32 m0, s37, {slot + 16384 + (k-2)*8192}')
                a(f's_add_u32 s38, s36, {(st*64 + (k-2)*32)*3840}')
                a('buffer_load_dwordx4 v6, s[60:63], s38 offen lds')
            vm2.issue(('r', st))
        stamp(a, 2)
        vm2.wait(a, lambda x: x == ('r', 0))
        a('s_barrier')
        stamp(a, 3)
        reads(0, 0, 0)
        buf = 0
        for st in range(10):
            so = stats_ops()
            for ks in range(4):
                if ks == 0:
                    xs_reads(st)
                    reads(st, 1, buf ^ 1)
                    a('s_waitcnt lgkmcnt(6)')
                elif ks < 3:
                    reads(st, ks + 1, buf ^ 1)
                    a('s_waitcnt lgkmcnt(4)')
                else:
                    a('s_waitcnt lgkmcnt(0)')
                    if st + 1 < 10:
                        if st == 3 and 'k1nopk' not in gen.EXP: vm2.wait(a, lambda x: x == ('r', 4) or x == 'pk')
                        else: vm2.wait(a, lambda x: x == ('r', st + 1))
                        a('s_barrier')
                        reads(st + 1, 0, buf ^ 1)
                part = so[(ks - 1) * 16:ks * 16] if ks >= 1 else []
                if 'k1nostat' in gen.EXP: part = []
                for j in range(2):
                    A_ = v(FA+4*buf, 4); B_ = v(FB+8*buf+4*j, 4)
                    c = '0' if (st == 0 and ks == 0) else v(ACC+16*j, 16)
                    if swap: a(f'v_mfma_f32_32x32x16_bf16 {v(ACC+16*j,16)}, {B_}, {A_}, {c}')
                    else: a(f'v_mfma_f32_32x32x16_bf16 {v(ACC+16*j,16)}, {A_}, {B_}, {c}')
                    for x in part[j*6:j*6+6]: a(x)
                if 'k1nocs' not in gen.EXP: a(f'v_mfma_f32_16x16x32_bf16 {v(CSA,4)}, {v(FA+4*buf,4)}, {v(SEL,4)}, {v(CSA,4)}')
                for x in part[12:]: a(x)
                lim = st + NS - 1 + (1 if ks == 3 else 0)
                nq = 2 if st == 0 else 1
                for _ in range(nq):
                    if pend and pend[0][0] <= lim: dma_next()
                if st == 1 and ks == 0 and 'k1nopk' not in gen.EXP:
                    decode()
                    pack_dma()
                    for _ in range(3): vm2.issue('pk')
                if st == 4 and ks == 1 and 'k1nopk' not in gen.EXP:
                    pack_work(T + 4)
                    for _ in range(3): vm2.issue('pks')
                buf ^= 1
        a('s_nop 15')
        stamp(a, 4)
        for r in range(4):
            a(f'v_mov_b32 v{T}, v{S1+r}'); a(f'v_mov_b32 v{T+1}, v{S1+r}')
            a(f'v_permlane32_swap_b32 v{T}, v{T+1}')
            a(f'v_add_f32 v{S1+r}, v{T}, v{T+1}')
        a('s_lshl_b32 s40, s34, 11')
        a('s_lshl_b32 s41, s23, 8')
        a('s_add_u32 s40, s40, s41')
        a(f's_add_u32 s40, s40, {ST_T}')
        a('v_lshlrev_b32 v7, 3, v3')
        a('v_add_u32 v7, s40, v7')
        for j in range(2):
            a(f'v_mov_b32 v{T+2*j}, v{S1+j}'); a(f'v_mov_b32 v{T+2*j+1}, v{S1+2+j}')
            a(f'ds_write_b64 v7, {v(T+2*j,2)} offset:{j*1024}')
        a('s_lshl_b32 s40, s23, 8')
        a('s_lshl_b32 s41, s34, 7')
        a('s_add_u32 s40, s40, s41')
        a(f's_add_u32 s40, s40, {CS_T}')
        a('v_and_b32 v8, 1, v2')
        a('v_lshlrev_b32 v8, 6, v8')
        a('v_lshrrev_b32 v9, 4, v2')
        a('v_lshl_add_u32 v8, v9, 4, v8')
        a('v_add_u32 v8, s40, v8')
        a('s_mov_b32 s52, 0x00030003')
        a('s_mov_b32 s53, 0x00030003')
        a('s_mov_b64 exec, s[52:53]')
        a(f'ds_write_b128 v8, {v(CSA,4)}')
        a('s_mov_b64 exec, -1')
        a('s_waitcnt lgkmcnt(0)')
        a('s_barrier')
        a('s_lshl_b32 s40, s34, 11')
        a(f's_add_u32 s40, s40, {ST_T}')
        a('v_lshlrev_b32 v7, 3, v3')
        a('v_add_u32 v7, s40, v7')
        P = T + 4
        for j in range(2):
            for f_ in range(4):
                a(f'ds_read_b64 {v(P+8*j+2*f_,2)}, v7 offset:{j*1024 + f_*256}')
        a('s_waitcnt lgkmcnt(0)')
        for j in range(2):
            b = P + 8 * j
            for f_ in range(1, 4):
                a(f'v_add_f32 v{b}, v{b}, v{b+2*f_}')
                a(f'v_add_f32 v{b+1}, v{b+1}, v{b+2*f_+1}')
            a(f'v_mul_f32 v{b}, {f2hex(1.0/640)}, v{b}')
            a(f'v_mul_f32 v{b+1}, {f2hex(1.0/640)}, v{b+1}')
            a(f'v_fma_f32 v{b+1}, -v{b}, v{b}, v{b+1}')
            a(f'v_add_f32 v{b+1}, 0x3727c5ac, v{b+1}')
            a(f'v_rsq_f32 v{b+1}, v{b+1}')
            a(f'v_mul_f32 v{b}, v{b}, v{b+1}')
        return P
    a('s_cmp_ge_u32 s14, 10')
    a(f's_cbranch_scc1 {L}_v')
    P = main(False)
    C = 120
    a('s_lshl_b32 s40, s23, 8')
    a(f's_add_u32 s40, s40, {CS_T}')
    a('v_lshlrev_b32 v7, 4, v4')
    a('v_add_u32 v7, s40, v7')
    for g in range(4):
        a(f'ds_read_b128 {v(C+4*g,4)}, v7 offset:{g*32}')
    a('s_waitcnt lgkmcnt(0)')
    a(f's_mov_b32 s40, {f2hex(QSCALE)}')
    a('s_cmp_lt_u32 s14, 5')
    a('s_cselect_b32 s40, s40, 1.0')
    for j in range(2):
        a(f'v_mul_f32 v{P+8*j}, s40, v{P+8*j}')
        a(f'v_mul_f32 v{P+8*j+1}, s40, v{P+8*j+1}')
    for j in range(2):
        for r in range(16):
            a(f'v_mul_f32 v{T}, v{P+8*j}, v{C+r}')
            a(f'v_fma_f32 v{ACC+16*j+r}, v{P+8*j+1}, v{ACC+16*j+r}, -v{T}')
    PK = 72
    for r in range(16):
        a(f'v_cvt_pk_bf16_f32 v{PK+r}, v{ACC+2*r}, v{ACC+2*r+1}')
    a('v_lshrrev_b32 v13, 4, v3')
    a('s_movk_i32 s17, 20480')
    a('v_mul_lo_u32 v13, v13, s17')
    a('v_and_b32 v14, 15, v3')
    a('v_lshl_add_u32 v13, v14, 4, v13')
    a('v_lshl_add_u32 v13, v4, 8, v13')
    a('s_lshl_b32 s17, s13, 3')
    a('s_lshl_b32 s18, s34, 2')
    a('s_add_u32 s17, s17, s18')
    a('s_mul_i32 s17, s17, 20480')
    a(f's_mov_b32 s18, {WS_Q}')
    a(f's_mov_b32 s19, {WS_K - 80*256}')
    a('s_cmp_lt_u32 s14, 5')
    a('s_cselect_b32 s18, s18, s19')
    a('s_add_u32 s17, s17, s18')
    a('s_lshl_b32 s18, s14, 12')
    a('s_add_u32 s17, s17, s18')
    a('s_lshl_b32 s18, s23, 10')
    a('s_add_u32 s17, s17, s18')
    for j in range(2):
        a(f'buffer_store_dwordx4 {v(PK+8*j,4)}, v13, s[8:11], s17 offen')
        a(f'buffer_store_dwordx4 {v(PK+8*j+4,4)}, v13, s[8:11], s17 offen offset:512')
        if j == 0: a(f's_add_u32 s17, s17, {2*20480}')
    stamp(a, 5)
    if gen.PROF: a('s_waitcnt vmcnt(0)')
    stamp(a, 6); stamp(a, 7, True)
    stamp_flush(a, 1, 8, 8, 12)
    if 'dbg' in gen.EXP:
        a('s_waitcnt vmcnt(0)')
        a('s_memrealtime s[96:97]'); a('s_memtime s[98:99]'); a('s_waitcnt lgkmcnt(0)')
        ldb = lab('db')
        a('s_cmp_lg_u32 s2, 0'); a(f's_cbranch_scc1 {ldb}'); a('s_cmp_lg_u32 s12, 0'); a(f's_cbranch_scc1 {ldb}')
        a('s_sub_u32 s96, s96, s90'); a('s_sub_u32 s98, s98, s92')
        a('v_mov_b32 v0, 0'); a('v_mov_b32 v2, s96'); a('v_mov_b32 v3, s98'); a('v_mov_b32 v4, s90'); a('v_mov_b32 v5, 0')
        a(f's_mov_b32 s94, {WS_PROF}'); a('buffer_store_dwordx4 v[2:5], v0, s[8:11], s94 offen')
        a.label(ldb)
    a('s_endpgm')
    a.label(f'{L}_v')
    P = main(True)
    a('s_lshl_b32 s40, s12, 9')
    a(f's_add_u32 s40, s40, {VT_T}')
    a('v_lshlrev_b32 v7, 2, v3')
    a('v_add_u32 v7, s40, v7')
    for j in range(2):
        a(f'ds_write_b32 v7, v{P+8*j} offset:{j*256}')
        a(f'ds_write_b32 v7, v{P+8*j+1} offset:{j*256 + 128}')
    a('s_lshl_b32 s41, s23, 8')
    a(f's_add_u32 s41, s41, {CS_T}')
    a('v_lshlrev_b32 v8, 2, v3')
    a('v_add_u32 v8, s41, v8')
    a(f'ds_read_b32 v{T}, v8')
    a('s_waitcnt lgkmcnt(0)')
    a('v_lshlrev_b32 v7, 4, v4')
    a('v_add_u32 v7, s40, v7')
    C = 120
    for j in range(2):
        for g in range(4):
            a(f'ds_read_b128 {v(C+4*g,4)}, v7 offset:{j*256 + g*32}')
            a(f'ds_read_b128 {v(C+16+4*g,4)}, v7 offset:{j*256 + 128 + g*32}')
        a('s_waitcnt lgkmcnt(0)')
        for r in range(16):
            a(f'v_mul_f32 v{T+1}, v{C+r}, v{T}')
            a(f'v_fma_f32 v{ACC+16*j+r}, v{C+16+r}, v{ACC+16*j+r}, -v{T+1}')
    PK = 72
    for r in range(16):
        a(f'v_cvt_pk_bf16_f32 v{PK+r}, v{ACC+2*r}, v{ACC+2*r+1}')
    a('s_sub_u32 s17, s14, 10')
    a('s_lshl_b32 s17, s17, 7')
    a('s_lshl_b32 s18, s23, 5')
    a('s_add_u32 s17, s17, s18')
    a('v_add_u32 v13, s17, v3')
    a(f's_mov_b32 s17, {magic(20)}')
    a('v_mul_hi_u32 v14, v13, s17')
    a('v_mul_u32_u24 v15, 20, v14')
    a('v_sub_u32 v15, v13, v15')
    a('s_mov_b32 s17, 81920')
    a('v_mul_lo_u32 v14, v14, s17')
    a('v_lshl_add_u32 v14, v15, 4, v14')
    a('v_mul_u32_u24 v15, 320, v4')
    a('v_add_u32 v14, v14, v15')
    a('s_lshl_b32 s17, s13, 3')
    a('s_lshl_b32 s18, s34, 2')
    a('s_add_u32 s17, s17, s18')
    a('s_mul_i32 s17, s17, 640')
    a(f's_add_u32 s17, s17, {WS_VT}')
    for j in range(2):
        for gg in range(2):
            a(f'buffer_store_dwordx4 {v(PK+8*j+4*gg,4)}, v14, s[8:11], s17 offen offset:{(2*j+gg)*640}')
    stamp(a, 5)
    if gen.PROF: a('s_waitcnt vmcnt(0)')
    stamp(a, 6); stamp(a, 7, True)
    stamp_flush(a, 1, 8, 8, 12)
    a('s_endpgm')
    a.label(lz)
    decode()
    pack_dma()
    a('v_lshlrev_b32 v1, 4, v0')
    for r in range(4, 8): a(f'v_mov_b32 v{r+100}, 0')
    a(f's_mov_b32 s17, {WS_FLAG}')
    a('buffer_store_dwordx4 v[104:107], v1, s[8:11], s17 offen')
    a('s_waitcnt vmcnt(0)')
    a('s_barrier')
    pack_work(100 + 12)
    a.label(f'{L}_end')
    a('s_endpgm')
    return a, descriptor(L, 160, 102), f'; @launch kernel={L} grid=(256,1,1) block=(512,1,1) lds=163840'
```

```python
import sys
sys.path.insert(0, 'dev')
import gen, gen2
from gen import *
from gen2 import lab, stores2, attn_units, wo_dma, WS_XT, SG, SJ, SPURE, LDS_WO, SPIN_MAX
from asmlib import *

class VM:
    def __init__(self): self.ops = []
    def issue(self, tag): self.ops.append(tag)
    def count_after(self, pred):
        n = 0
        for x in reversed(self.ops):
            if pred(x): return n
            n += 1
        raise Exception('no op matches')
    def wait(self, a, pred, extra=''):
        a(f's_waitcnt vmcnt({min(self.count_after(pred), 63)}){extra}')

XR0 = 136
W1A, W1B = 152, 16
def w1reg(s): return W1A + 4 * s if s < 26 else W1B + 4 * (s - 26)
SH, SR = 36, 37
S_OOB = 38
S_W1 = 98
V_W1 = 1

def flag_store(a, p, vt):
    g_, j_ = (SR, SH) if p == 0 else (SG, SJ)
    a(f's_lshl_b32 s40, s{g_}, 7')
    a(f's_lshl_b32 s41, s{j_}, 2')
    a('s_add_u32 s40, s40, s41')
    a(f's_add_u32 s40, s40, {WS_FLAG + p*1024}')
    a(f'v_mov_b32 v{vt}, 0')
    a(f'v_mov_b32 v{vt+1}, 1')
    a('s_mov_b64 exec, 1')
    stores2(a, [f'buffer_store_dword v{vt+1}, v{vt}, s[8:11], s40 offen'])
    a('s_mov_b64 exec, -1')

def sync(a, p_pub, p_wait, smask_setup, prefetch, vt=14):
    if p_pub is not None:
        a('s_waitcnt vmcnt(0)')
        a('s_barrier')
    l0, l1, lp, ld, l3 = lab('sy'), lab('sy'), lab('sy'), lab('sy'), lab('sy')
    a('s_cmp_lg_u32 s12, 0')
    a(f's_cbranch_scc1 {l0}')
    if p_pub is not None: flag_store(a, p_pub, vt)
    smask_setup()
    a(f's_lshl_b32 s40, s{SG}, 7')
    a(f's_add_u32 s40, s40, {WS_FLAG + p_wait*1024}')
    a(f'v_lshlrev_b32 v{vt}, 2, v2')
    a('s_mov_b64 exec, s[44:45]')
    a('s_mov_b32 s41, 0')
    a.label(lp)
    a(f'buffer_load_dword v{vt+1}, v{vt}, s[8:11], s40 offen sc1')
    a('s_add_u32 s41, s41, 1')
    a('s_waitcnt vmcnt(0)')
    a(f'v_cmp_eq_u32 vcc, 0, v{vt+1}')
    a(f's_cbranch_vccz {ld}')
    a(f's_cmp_lt_u32 s41, {SPIN_MAX}')
    a(f's_cbranch_scc1 {lp}')
    a.label(ld)
    a('s_mov_b64 exec, -1')
    a(f's_cmp_eq_u32 s{SPURE}, 1')
    a(f's_cbranch_scc1 {l3}')
    a('buffer_inv sc1')
    a('s_waitcnt vmcnt(0)')
    a.label(l3)
    a('s_barrier')
    prefetch()
    a(f's_branch {l1}')
    a.label(l0)
    prefetch()
    a('s_barrier')
    a.label(l1)

def phase_attn(a):
    R = AR
    attn_setup(a, SH, SR, 12, 8)
    a(f's_lshr_b32 s62, s{SJ}, 2')
    a('s_mul_i32 s62, s62, 102400')
    a(f's_add_u32 s62, s62, {WS_WO}')
    a('s_lshl_b32 s61, s12, 10')
    a('s_add_u32 s62, s62, s61')
    a('s_cmp_lt_u32 s12, 4')
    a(f's_mov_b32 s63, {11*8192}')
    a(f's_cselect_b32 s63, {12*8192}, s63')
    a('s_add_u32 s63, s63, s62')
    a(f's_add_u32 s61, s61, {LDS_WO}')
    for r in range(32): a(f'v_mov_b32 v{R.O+r}, 0')
    for r in range(16): a(f'v_mov_b32 v{R.P+r}, 0')
    for r in range(16): a(f'v_mov_b32 v{R.VV+r}, 0')
    vm = VM()
    attn_dma(a, 0, 8)
    lane_swap23(a, 14, 3, 15)
    a('v_lshrrev_b32 v15, 4, v14')
    a('s_movk_i32 s40, 20480')
    a('v_mul_lo_u32 v15, v15, s40')
    a('v_and_b32 v14, 15, v14')
    a('v_lshl_add_u32 v15, v14, 4, v15')
    a(f'v_lshl_add_u32 v{V_W1}, v4, 8, v15')
    a(f's_lshr_b32 s40, s{SJ}, 1')
    a('s_lshl_b32 s40, s40, 2')
    a('s_and_b32 s41, s12, 3')
    a('s_add_u32 s40, s40, s41')
    a('s_mul_i32 s41, s40, 40960')
    a(f's_add_u32 s41, s41, {WS_W1}')
    a('s_cmp_lt_u32 s40, 54')
    a(f's_cselect_b32 s{S_W1}, s41, 0x7ff00000')
    a(f's_mov_b32 s{S_OOB}, 0x7ff00000')
    lt1, lt2 = lab('tc'), lab('tc')
    a('v_lshlrev_b32 v148, 7, v2')
    a('s_cmp_ge_u32 s12, 4')
    a(f's_cbranch_scc1 {lt1}')
    a(f's_mul_i32 s50, s{SG}, {16*20480}')
    a(f's_mul_i32 s40, s{SJ}, 10240')
    a('s_add_u32 s50, s50, s40')
    a('s_and_b32 s40, s12, 1')
    a('s_mul_i32 s40, s40, 5120')
    a('s_add_u32 s50, s50, s40')
    a('s_lshr_b32 s40, s12, 1')
    a(f's_mul_i32 s40, s40, {WS_H - WS_O}')
    a('s_add_u32 s50, s50, s40')
    a(f's_add_u32 s50, s50, {WS_O}')
    a('v_add_u32 v148, s50, v148')
    a(f's_lshr_b32 s40, s{SJ}, 1')
    a('s_lshl_b32 s40, s40, 14')
    a(f's_lshl_b32 s41, s{SG}, 11')
    a('s_add_u32 s40, s40, s41')
    a(f's_and_b32 s41, s{SJ}, 1')
    a('s_lshl_b32 s41, s41, 10')
    a('s_add_u32 s40, s40, s41')
    a(f's_add_u32 s40, s40, {WS_ST2 - 40*128}')
    a('s_cmp_eq_u32 s12, 2')
    a('s_cselect_b32 s40, s40, 0x7ff00000')
    a('v_lshlrev_b32 v149, 7, v2')
    a('v_add_u32 v149, s40, v149')
    a('v_mov_b32 v14, 0x7ff00000')
    a('v_cmp_gt_u32 vcc, 48, v2')
    a('v_cndmask_b32 v149, v14, v149, vcc')
    a('v_cmp_gt_u32 vcc, 40, v2')
    a('v_cndmask_b32 v148, v149, v148, vcc')
    a(f's_branch {lt2}')
    a.label(lt1)
    a('s_sub_u32 s40, s12, 4')
    a('s_lshl_b32 s40, s40, 5')
    a(f's_add_u32 s40, s40, s{SJ}')
    a('s_mul_i32 s50, s40, 20480')
    a(f's_add_u32 s50, s50, {WS_W1 + 13312}')
    a('s_cmp_lt_u32 s40, 108')
    a('s_cselect_b32 s50, s50, 0x7ff00000')
    a('v_add_u32 v148, s50, v148')
    a('v_mov_b32 v14, 0x7ff00000')
    a('v_cmp_gt_u32 vcc, 56, v2')
    a('v_cndmask_b32 v148, v14, v148, vcc')
    a.label(lt2)
    a('v_lshlrev_b32 v147, 7, v2')
    a('s_lshl_b32 s40, s12, 13')
    a(f's_mul_i32 s51, s{SG}, {16*55296}')
    a(f's_mul_i32 s41, s{SJ}, 27648')
    a('s_add_u32 s51, s51, s41')
    a('s_add_u32 s51, s51, s40')
    a(f's_add_u32 s51, s51, {WS_G}')
    a('s_cmp_ge_u32 s12, 4')
    a('s_cselect_b32 s51, 0x7ff00000, s51')
    a(f's_and_b32 s40, s{SJ}, 3')
    a('s_lshl_b32 s40, s40, 2')
    a(f's_lshl_b32 s41, s{SG}, 4')
    a('s_add_u32 s40, s40, s41')
    a('s_and_b32 s41, s12, 3')
    a('s_add_u32 s40, s40, s41')
    a('s_lshl_b32 s40, s40, 4')
    a('v_and_b32 v0, 15, v2')
    a('v_add_u32 v0, s40, v0')
    a('s_movk_i32 s41, 1280')
    a('v_mul_lo_u32 v0, v0, s41')
    a('v_lshrrev_b32 v14, 4, v2')
    a('v_lshl_add_u32 v0, v14, 3, v0')
    a(f's_lshr_b32 s57, s{SJ}, 2')
    a('s_mul_i32 s57, s57, 160')
    a('s_lshr_b32 s40, s12, 2')
    a('s_mul_i32 s40, s40, 96')
    a('s_add_u32 s57, s57, s40')
    a('s_waitcnt vmcnt(0)')
    for st in (1, 2):
        attn_dma(a, st, 8); vm.issue(('kv', st)); vm.issue(('kv', st))
    for x in wo_dma(): a(x)
    vm.issue('wo')
    if 'notlb' not in gen.EXP:
        a('v_lshlrev_b32 v149, 16, v2')
        a('s_lshl_b32 s40, s12, 22')
        a('buffer_load_dword v149, v149, s[8:11], s40 offen')
        a('v_lshlrev_b32 v148, 16, v2')
        a('buffer_load_dword v148, v148, s[76:79], 0 offen')
    a('v_cmp_gt_u32 vcc, 32, v2')
    for r in range(4): a(f'v_cndmask_b32 v{R.QC+r}, 0, v{R.QC+r}, vcc')
    a('s_waitcnt lgkmcnt(0)')
    a('s_barrier')
    a(f'ds_read_b128 {v(R.KA,4)}, v11 offset:0')
    a(f'ds_read_b64 {v(R.KC,2)}, v12 offset:0')
    a('s_waitcnt lgkmcnt(0)')
    a(f'v_mfma_f32_32x32x16_bf16 {v(R.S,16)}, {v(R.KA,4)}, {v(R.QA,4)}, 0')
    a(f'v_mfma_f32_32x32x8bf16_1k {v(R.S,16)}, {v(R.KC,2)}, {v(R.QC,2)}, {v(R.S,16)}')
    stamp(a, 7)
    wnext = [0]
    def w1load():
        s_ = wnext[0]; wnext[0] += 1
        return [f's_add_u32 s40, s{S_W1}, {s_*512}', f'buffer_load_dwordx4 {v(w1reg(s_),4)}, v{V_W1}, s[8:11], s40 offen']
    plan = {}
    waits = {}
    nW = {2: 3, 3: 3, 4: 3, 5: 3, 6: 4, 7: 4, 8: 3, 9: 3}
    if 'now1a' in gen.EXP: nW = {}
    def masked(sreg, cond_lo, cond_hi, vreg):
        return [f's_sub_u32 s40, s12, {cond_lo}', f's_cmp_lt_u32 s40, {cond_hi - cond_lo}', f's_cselect_b32 s40, {sreg}, s{S_OOB}',
                f'buffer_load_dword v149, v{vreg}, s[8:11], s40 offen']
    for g in range(16):
        ex = {}
        k = nW.get(g, 0)
        slots = sorted([(0, 20), (1, 8), (1, 20), (2, 20)][:k])
        if g <= 11:
            ex.setdefault(0, {})[8] = wo_dma(); vm.issue('wo')
        if g == 12:
            ex.setdefault(0, {})[8] = [f's_lshl_b32 s40, s{SG}, 7', f's_add_u32 s40, s40, {WS_XT}', 'v_lshlrev_b32 v150, 2, v3',
                                       'buffer_load_dword v150, v150, s[8:11], s40 offen sc1']
            vm.issue('xt')
        tl = None
        if g == 10: tl = masked('0', 4, 6, 148)
        if g == 11: tl = masked('0', 6, 8, 148)
        if g == 12: tl = masked('0', 0, 4, 148)
        if g == 13: tl = ['buffer_load_dword v149, v147, s[8:11], s51 offen']
        if tl and 'notouch' not in gen.EXP:
            ex.setdefault(1, {})[14] = tl; vm.issue('touch')
        post = []
        pre_ops = []
        for (u, pos) in slots:
            if u < 2: ex.setdefault(u, {})[pos] = w1load(); vm.issue('w1')
            else: post.append((u, pos))
        if g < 15: waits[g] = vm.count_after(lambda x: x == ('kv', g + 1))
        for (u, pos) in post:
            ex.setdefault(u, {})[pos] = w1load(); vm.issue('w1')
        if g <= 12:
            vm.issue(('kv', g + 3)); vm.issue(('kv', g + 3))
        if g == 13:
            ex.setdefault(3, {})[20] = [f'buffer_load_dwordx2 {v(XR0+2*i,2)}, v0, s[72:75], s57 offen offset:{32*i}' for i in range(3)]
            for i in range(3): vm.issue('xr')
        plan[g] = ex
    assert wnext[0] == 26 or 'now1a' in gen.EXP, wnext
    def run(stages_g):
        loc = {g % 4: g for g in stages_g}
        def prio(st, u):
            g = loc[st]
            if g == 15: return {0: 2, 1: 1, 2: 1, 3: 0}[u]
            if g == 14 and u >= 2: return 3
            return {2: 3, 3: 2, 0: 1, 1: 0}[u]
        return attn_units(a, 8, [(g % 4, g == 15) for g in stages_g], lambda st: loc[st] <= 12,
                          lambda st, u: plan[loc[st]].get(u, {}), lambda st: waits[loc[st]], prio)
    for b_ in range(3): run([4*b_ + i for i in range(4)])
    m1, m2, m3, m4, _ = run([12, 13, 14, 15])
    a(m3(1, 1, 1)); a(m4(1, 1, 1))
    a('s_setprio 0')
    stamp(a, 3)
    a('s_cmp_eq_u32 s46, 0')
    a('s_cbranch_scc1 .Lat_noswap')
    a('s_nop 7')
    for r in range(12): a(f'v_swap_b32 v{R.O+r}, v{R.O+16+r}')
    a.label('.Lat_noswap')
    a('s_nop 7')
    a(f's_mul_i32 s40, s12, 3072')
    a('v_add_u32 v14, s40, v10')
    for i in range(3): a(f'ds_write_b128 v14, {v(R.O+16+4*i,4)} offset:{1024*i}')
    a('s_xor_b32 s40, s12, 4')
    a('s_mul_i32 s40, s40, 3072')
    a('v_add_u32 v14, s40, v10')
    a('s_waitcnt lgkmcnt(0)')
    a('s_barrier')
    TT = R.S
    for i in range(3): a(f'ds_read_b128 {v(TT+4*i,4)}, v14 offset:{1024*i}')
    lp, ld = lab('xt'), lab('xt')
    a('s_mov_b32 s41, 0')
    a('v_cmp_eq_u32 vcc, 0, v150')
    a(f's_cbranch_vccz {ld}')
    a.label(lp)
    a(f's_lshl_b32 s40, s{SG}, 7')
    a(f's_add_u32 s40, s40, {WS_XT}')
    a('v_lshlrev_b32 v14, 2, v3')
    a('buffer_load_dword v150, v14, s[8:11], s40 offen sc1')
    a('s_add_u32 s41, s41, 1')
    a('s_waitcnt vmcnt(0)')
    a('v_cmp_eq_u32 vcc, 0, v150')
    a(f's_cbranch_vccz {ld}')
    a(f's_cmp_lt_u32 s41, {SPIN_MAX}')
    a(f's_cbranch_scc1 {lp}')
    a.label(ld)
    a(f'v_cmp_ne_u32 vcc, s{SPURE}, v150')
    a('s_cmp_eq_u64 vcc, 0')
    a(f's_cselect_b32 s{SPURE}, 1, 0')
    if 'slow' in gen.EXP: a(f's_mov_b32 s{SPURE}, 0')
    a('s_waitcnt lgkmcnt(0)')
    for r in range(12): a(f'v_add_f32 v{R.O+r}, v{R.O+r}, v{TT+r}')
    a(f'v_mov_b32 v{TT}, v{R.O+8}')
    a(f'v_mov_b32 v{TT+1}, v{R.O+8}')
    a(f'v_permlane32_swap_b32 v{TT}, v{TT+1}')
    a(f'v_rcp_f32 v{TT+1}, v{TT+1}')
    for r in range(12): a(f'v_mul_f32 v{R.O+r}, v{R.O+r}, v{TT+1}')
    for i in range(6): a(f'v_cvt_pk_bf16_f32 v{TT+4+i}, v{R.O+2*i}, v{R.O+2*i+1}')
    a('s_mul_i32 s61, s46, 40960')
    a('s_add_u32 s61, s61, s47')
    a(f's_add_u32 s61, s61, {WS_O}')
    a('s_lshl_b32 s62, s42, 8')
    a('s_add_u32 s62, s62, s61')
    a('s_lshl_b32 s63, s43, 8')
    a('s_add_u32 s63, s63, s61')
    a(f's_and_b32 s61, s{SH}, 1')
    a('s_lshl_b32 s61, s61, 3')
    a('s_add_u32 s63, s63, s61')
    stores2(a, [f'buffer_store_dwordx4 {v(TT+4,4)}, v7, s[8:11], s62 offen',
                's_mov_b64 exec, 0xffffffff',
                f'buffer_store_dwordx2 {v(TT+8,2)}, v5, s[8:11], s63 offen',
                's_mov_b64 exec, -1'])

def phase_oproj(a):
    BF, AF, ACC, XR, T = 16, 56, 96, XR0, 116
    a(f's_and_b32 s20, s{SJ}, 3')
    a(f's_lshr_b32 s21, s{SJ}, 2')
    a('s_and_b32 s22, s12, 3')
    a('s_lshr_b32 s23, s12, 2')
    a(f's_lshl_b32 s29, s{SG}, 4')
    a('s_lshl_b32 s30, s20, 2')
    a('s_add_u32 s29, s29, s30')
    a('s_add_u32 s29, s29, s22')
    a('v_and_b32 v5, 15, v2')
    a('v_lshrrev_b32 v6, 4, v2')
    a('s_mul_i32 s30, s29, 20480')
    a('s_mul_i32 s31, s23, 10240')
    a('s_add_u32 s30, s30, s31')
    a(f's_add_u32 s30, s30, {WS_O}')
    a('s_mul_i32 s33, s23, 10240')
    a(f's_add_u32 s33, s33, {LDS_WO}')
    a('v_add_u32 v8, s33, v10')
    a(f'v_add_u32 v9, {3*20480}, v8')
    def pre(): pass
    def mask():
        a('s_mov_b32 s44, -1'); a('s_mov_b32 s45, 0')
    sync(a, 0, 0, mask, pre)
    stamp(a, 8)
    for i in range(10):
        if i % 4 == 0: a(f's_add_u32 s31, s30, {i*1024}')
        a(f'buffer_load_dwordx4 {v(BF+4*i,4)}, v10, s[8:11], s31 offen offset:{(i%4)*1024} sc1')
    def areads(i, buf):
        for ft in range(5):
            off = ft * 20480 + i * 1024
            base = 8
            if ft >= 3: off -= 3 * 20480; base = 9
            a(f'ds_read_b128 {v(AF+20*buf+4*ft,4)}, v{base} offset:{off}')
    areads(0, 0)
    for i in range(10):
        if i < 9:
            areads(i + 1, (i + 1) & 1)
            a(f's_waitcnt vmcnt({9-i}) lgkmcnt(5)')
        else:
            a('s_waitcnt vmcnt(0) lgkmcnt(0)')
        for ft in range(5):
            acc = v(ACC + 4 * ft, 4)
            a(f'v_mfma_f32_16x16x32_bf16 {acc}, {v(AF+20*(i&1)+4*ft,4)}, {v(BF+4*i,4)}, {"0" if i == 0 else acc}')
    stamp(a, 9)
    a('s_mul_i32 s40, s12, 3072')
    a('s_add_u32 s40, s40, 32768')
    a('v_add_u32 v14, s40, v10')
    l1, l2 = lab('ox'), lab('ox')
    a('s_nop 7')
    a('s_cmp_eq_u32 s23, 0')
    a(f's_cbranch_scc0 {l1}')
    for i, ft in enumerate((3, 4)): a(f'ds_write_b128 v14, {v(ACC+4*ft,4)} offset:{1024*i}')
    a(f's_branch {l2}')
    a.label(l1)
    for ft in range(3): a(f'ds_write_b128 v14, {v(ACC+4*ft,4)} offset:{1024*ft}')
    a('s_waitcnt lgkmcnt(0)')
    for r in range(8): a(f'v_mov_b32 v{ACC+r}, v{ACC+12+r}')
    for r in range(8, 12): a(f'v_mov_b32 v{ACC+r}, 0')
    a.label(l2)
    a('s_xor_b32 s40, s12, 4')
    a('s_mul_i32 s40, s40, 3072')
    a('s_add_u32 s40, s40, 32768')
    a('v_add_u32 v14, s40, v10')
    a('s_waitcnt lgkmcnt(0)')
    a('s_barrier')
    for i in range(3): a(f'ds_read_b128 {v(T+4*i,4)}, v14 offset:{1024*i}')
    a('s_waitcnt lgkmcnt(0)')
    for r in range(12): a(f'v_add_f32 v{ACC+r}, v{ACC+r}, v{T+r}')
    for i in range(3):
        for h2 in range(2):
            a(f'v_lshlrev_b32 v{T}, 16, v{XR+2*i+h2}')
            a(f'v_and_b32 v{T+1}, 0xffff0000, v{XR+2*i+h2}')
            a(f'v_add_f32 v{ACC+4*i+2*h2}, v{ACC+4*i+2*h2}, v{T}')
            a(f'v_add_f32 v{ACC+4*i+2*h2+1}, v{ACC+4*i+2*h2+1}, v{T+1}')
    l3 = lab('ox')
    a('s_cmp_eq_u32 s23, 0')
    a(f's_cbranch_scc1 {l3}')
    for r in range(8, 12): a(f'v_mov_b32 v{ACC+r}, 0')
    a.label(l3)
    a(f'v_mov_b32 v{T}, v{ACC}')
    a(f'v_mul_f32 v{T+1}, v{ACC}, v{ACC}')
    for r in range(1, 12):
        a(f'v_add_f32 v{T}, v{T}, v{ACC+r}')
        a(f'v_fmac_f32 v{T+1}, v{ACC+r}, v{ACC+r}')
    sum_q4(a, T, T+2, T+3)
    sum_q4(a, T+1, T+2, T+3)
    for i in range(6): a(f'v_cvt_pk_bf16_f32 v{T+4+i}, v{ACC+2*i}, v{ACC+2*i+1}')
    a('s_mul_i32 s34, s29, 20480')
    a('s_mul_i32 s35, s21, 2560')
    a('s_add_u32 s34, s34, s35')
    a('s_mul_i32 s35, s23, 1536')
    a('s_add_u32 s34, s34, s35')
    a(f's_add_u32 s34, s34, {WS_H}')
    a('v_lshrrev_b32 v11, 1, v6')
    a('v_lshlrev_b32 v11, 8, v11')
    a('v_lshl_add_u32 v11, v5, 4, v11')
    a('v_and_b32 v12, 1, v6')
    a('v_lshl_add_u32 v11, v12, 3, v11')
    a('s_lshl_b32 s33, s29, 7')
    a('s_lshl_b32 s35, s21, 1')
    a('s_add_u32 s35, s35, s23')
    a('s_lshl_b32 s35, s35, 14')
    a('s_add_u32 s33, s33, s35')
    a(f's_add_u32 s33, s33, {WS_ST2}')
    a('v_lshlrev_b32 v12, 3, v5')
    a('s_cmp_eq_u32 s23, 0')
    a(f's_cselect_b32 s35, s34, {0x7ffff000}')
    stores2(a, [f'buffer_store_dwordx2 {v(T+4,2)}, v11, s[8:11], s34 offen',
                f'buffer_store_dwordx2 {v(T+6,2)}, v11, s[8:11], s34 offen offset:512',
                f'buffer_store_dwordx2 {v(T+8,2)}, v11, s[8:11], s35 offen offset:1024',
                's_mov_b64 exec, 0xffff',
                f'buffer_store_dwordx2 {v(T,2)}, v12, s[8:11], s33 offen',
                's_mov_b64 exec, -1'])

F2_SLOT = {0: 81920, 1: 122880, 2: 0, 3: 40960, 4: 81920, 5: 122880, 6: 0}
def w2_setup(a):
    a(f's_lshr_b32 s21, s{SJ}, 2')
    a('s_lshr_b32 s22, s12, 2')
    a('s_and_b32 s23, s12, 3')
    a('s_mul_i32 s26, s23, 14')
    a('s_cmp_eq_u32 s23, 3')
    a('s_cselect_b32 s27, 1, 0')
    a('s_sub_u32 s26, s26, s27')
    a('s_mul_i32 s47, s21, 276480')
    a(f's_add_u32 s47, s47, {WS_W2}')
    a('s_add_u32 s48, s26, s22')
    a('s_lshl_b32 s48, s48, 10')
    a('s_add_u32 s47, s47, s48')
    a('s_lshl_b32 s48, s23, 1')
    a('s_add_u32 s48, s48, s22')
    a('s_mul_i32 s48, s48, 5120')
def w2_dma(st, ft):
    return [f's_add_u32 m0, s48, {F2_SLOT[st] + ft*1024}', f's_add_u32 s49, s47, {st*2048 + ft*55296}',
            'buffer_load_dwordx4 v10, s[8:11], s49 offen lds']

def far_touch(a, vt, vd):
    a(f'v_lshlrev_b32 v{vt}, 7, v2')
    a(f's_mul_i32 s56, s{SJ}, 69120')
    a('s_lshl_b32 s57, s12, 13')
    a('s_add_u32 s56, s56, s57')
    a(f's_add_u32 s56, s56, {WS_W2}')
    a(f'buffer_load_dword v{vd}, v{vt}, s[8:11], s56 offen')
    a(f's_mul_i32 s56, s{SG}, {16*55296}')
    a(f's_mul_i32 s57, s{SJ}, 27648')
    a('s_add_u32 s56, s56, s57')
    a('s_lshl_b32 s57, s12, 13')
    a('s_add_u32 s56, s56, s57')
    a(f's_add_u32 s56, s56, {WS_G}')
    a(f's_mul_i32 s57, s{SJ}, 69120')
    a(f's_add_u32 s57, s57, {WS_W2 + 65536}')
    a('s_cmp_eq_u32 s12, 4')
    a('s_cselect_b32 s56, s57, s56')
    a('s_cmp_gt_u32 s12, 4')
    a('s_cselect_b32 s56, 0x7ff00000, s56')
    a(f'buffer_load_dword v{vd}, v{vt}, s[8:11], s56 offen')

def phase_ffn1(a, vm_pre):
    ACC, FB = 72, 104
    CS, B1, ST = 192, 168, 128
    SEL, CSA, B1R = 120, 124, 184
    NS = 5
    a(f's_load_dwordx2 s[50:51], s[0:1], {A_B1}')
    a(f'v_mov_b32 v{SEL}, 0')
    a('s_mov_b32 s52, 0x00020001')
    a('s_mov_b32 s53, 0x00020001')
    a('v_mov_b32 v15, 0x3f803f80')
    a(f'v_cndmask_b32 v{SEL}, v{SEL}, v15, s[52:53]')
    for r in range(1, 4): a(f'v_mov_b32 v{SEL+r}, v{SEL}')
    for r in range(4): a(f'v_mov_b32 v{CSA+r}, 0')
    a('s_waitcnt lgkmcnt(0)')
    srd(a, 52, 50, F * 2)
    w2_setup(a)
    a(f's_and_b32 s13, s{SJ}, 1')
    a(f's_lshl_b32 s15, s{SG}, 1')
    a('s_add_u32 s13, s13, s15')
    a(f's_lshr_b32 s14, s{SJ}, 1')
    a('s_and_b32 s23, s12, 3')
    a('s_lshr_b32 s26, s12, 2')
    a('v_lshrrev_b32 v7, 4, v3')
    a('s_movk_i32 s17, 20480')
    a('v_mul_lo_u32 v7, v7, s17')
    a('v_and_b32 v6, 15, v3')
    a('v_lshl_add_u32 v7, v6, 4, v7')
    a('v_lshl_add_u32 v7, v4, 8, v7')
    a('s_lshl_b32 s20, s13, 3')
    a('s_lshl_b32 s19, s23, 1')
    a('s_add_u32 s20, s20, s19')
    a('s_mul_i32 s20, s20, 20480')
    a('s_lshl_b32 s19, s26, 10')
    a('s_add_u32 s20, s20, s19')
    a(f's_add_u32 s20, s20, {WS_H}')
    a('s_lshl_b32 s22, s23, 10')
    a('s_lshl_b32 s19, s26, 13')
    a('s_add_u32 s22, s22, s19')
    a('s_lshl_b32 s17, s26, 11')
    a('v_add_u32 v12, s17, v10')
    a('v_add_u32 v13, 0x10000, v12')
    vm = VM()
    def pre(): pass
    def mask():
        a(f's_and_b32 s40, s{SJ}, 1')
        a('s_cmp_eq_u32 s40, 0')
        a('s_mov_b32 s44, 0xcccccccc')
        a('s_cselect_b32 s44, 0x33333333, s44')
        a('s_mov_b32 s45, 0')
    sync(a, 1, 1, mask, pre)
    stamp(a, 10)
    nst = 10
    pend = [(st, i) for st in range(nst) for i in range(2)]
    def dma_one():
        st, i = pend.pop(0)
        a(f's_add_u32 m0, s22, {(st % NS)*16384 + i*4096}')
        a(f's_add_u32 s21, s20, {st*2048 + i*512}')
        a('buffer_load_dwordx4 v7, s[8:11], s21 offen sc1 lds')
        vm.issue(('h', st))
    for _ in range(2 * 3): dma_one()
    a('s_lshl_b32 s27, s13, 7')
    a('s_lshl_b32 s28, s26, 6')
    a('s_add_u32 s27, s27, s28')
    a('s_lshl_b32 s28, s13, 7')
    a('s_lshl_b32 s29, s23, 5')
    a('s_add_u32 s28, s28, s29')
    a('s_lshl_b32 s28, s28, 3')
    a(f's_add_u32 s28, s28, {WS_ST2}')
    a('v_lshlrev_b32 v14, 3, v3')
    a('v_lshl_add_u32 v14, v4, 17, v14')
    def st_load(q):
        a(f's_add_u32 s29, s28, {q*16384}')
        a(f'buffer_load_dwordx2 {v(ST+2*q,2)}, v14, s[8:11], s29 offen sc1')
        vm.issue('st')
    w1q = list(range(26, 40))
    def w1_load():
        s_ = w1q.pop(0)
        a(f's_add_u32 s40, s{S_W1}, {s_*512}')
        a(f'buffer_load_dwordx4 {v(w1reg(s_),4)}, v{V_W1}, s[8:11], s40 offen')
        vm.issue(('w1', s_))
    def reads(st, ks, buf):
        off = (st % NS) * 16384 + ks * 4096
        base = 12
        if off + 1024 >= 65536: off -= 65536; base = 13
        a(f'ds_read_b128 {v(FB+8*buf,4)}, v{base} offset:{off}')
        a(f'ds_read_b128 {v(FB+8*buf+4,4)}, v{base} offset:{off+1024}')
    def mfmas(s_, buf):
        for j in range(2):
            c = '0' if s_ == 0 else v(ACC+16*j, 16)
            a(f'v_mfma_f32_32x32x16_bf16 {v(ACC+16*j,16)}, {v(w1reg(s_),4)}, {v(FB+8*buf+4*j,4)}, {c}')
    F1S = 'f1stamp' in gen.EXP
    if F1S: stamp(a, 2)
    vm.wait(a, lambda x: x == ('h', 0))
    a('s_barrier')
    if F1S: stamp(a, 3)
    reads(0, 0, 0)
    buf = 0
    for st in range(nst):
        for ks in range(4):
            s_ = 4 * st + ks
            if ks < 3:
                reads(st, ks + 1, buf ^ 1)
                if s_ >= 26: vm.wait(a, lambda x: x == ('w1', s_), ' lgkmcnt(2)')
                else: a('s_waitcnt lgkmcnt(2)')
                mfmas(s_, buf)
            else:
                if st + 1 < nst:
                    a('s_waitcnt lgkmcnt(0)')
                    if F1S and st in (0, 2, 4, 6): stamp(a, {0: 4, 2: 7, 4: 9, 6: 13}[st])
                    vm.wait(a, lambda x: x == ('h', st + 1))
                    a('s_barrier')
                    if F1S and st in (0, 2, 4, 6): stamp(a, {0: 5, 2: 8, 4: 12, 6: 14}[st])
                    reads(st + 1, 0, buf ^ 1)
                else:
                    a('s_waitcnt lgkmcnt(0)')
                if s_ >= 26: vm.wait(a, lambda x: x == ('w1', s_))
                mfmas(s_, buf)
            lim = st + NS - 1 + (1 if ks == 3 else 0)
            if pend and pend[0][0] <= lim and (ks in (1, 3) or st == 0): dma_one()
            if ks in (0, 2) and w1q and st <= 6: w1_load()
            if st == 7 and ks < 4:
                st_load(2 * ks); st_load(2 * ks + 1)
            lc = lab('cs')
            a(f's_cmp_eq_u32 s26, {s_ & 1}')
            a(f's_cbranch_scc0 {lc}')
            a(f'v_mfma_f32_16x16x32_bf16 {v(CSA,4)}, {v(w1reg(s_),4)}, {v(SEL,4)}, {v(CSA,4)}')
            a.label(lc)
            if st == 8 and ks == 0:
                a('s_lshl_b32 s29, s14, 7')
                a('s_lshl_b32 s30, s23, 5')
                a('s_add_u32 s29, s29, s30')
                a('s_lshl_b32 s29, s29, 1')
                a('v_lshlrev_b32 v15, 4, v4')
                a(f'buffer_load_dwordx4 {v(B1R,4)}, v15, s[52:55], s29 offen'); vm.issue('cs')
                a(f'buffer_load_dwordx4 {v(B1R+4,4)}, v15, s[52:55], s29 offen offset:32'); vm.issue('cs')
            buf ^= 1
    stamp(a, 11)
    LST = 0
    l2 = lab('st')
    vm.wait(a, lambda x: x == 'cs')
    a('s_cmp_ge_u32 s12, 4')
    a(f's_cbranch_scc1 {l2}')
    b = ST
    for q in range(1, 8):
        a(f'v_add_f32 v{b}, v{b}, v{b+2*q}')
        a(f'v_add_f32 v{b+1}, v{b+1}, v{b+2*q+1}')
    for r in range(2):
        a(f'v_mov_b32 v{b+2}, v{b+r}'); a(f'v_mov_b32 v{b+3}, v{b+r}')
        a(f'v_permlane32_swap_b32 v{b+2}, v{b+3}')
        a(f'v_add_f32 v{b+r}, v{b+2}, v{b+3}')
    a(f'v_mul_f32 v{b}, {f2hex(1.0/640)}, v{b}')
    a(f'v_mul_f32 v{b+1}, {f2hex(1.0/640)}, v{b+1}')
    a(f'v_fma_f32 v{b+1}, -v{b}, v{b}, v{b+1}')
    a(f'v_add_f32 v{b+1}, 0x3727c5ac, v{b+1}')
    a(f'v_rsq_f32 v{b+1}, v{b+1}')
    a(f'v_mul_f32 v{b}, v{b}, v{b+1}')
    a('s_lshl_b32 s28, s12, 8')
    a('v_lshlrev_b32 v14, 3, v3')
    a('v_add_u32 v14, s28, v14')
    a(f'ds_write_b64 v14, {v(b,2)} offset:{LST}')
    a.label(l2)
    a('s_lshl_b32 s28, s23, 8')
    a('s_lshl_b32 s29, s26, 7')
    a('s_add_u32 s28, s28, s29')
    a('v_and_b32 v14, 1, v2')
    a('v_lshlrev_b32 v14, 6, v14')
    a('v_lshrrev_b32 v15, 4, v2')
    a('v_lshl_add_u32 v14, v15, 4, v14')
    a('v_add_u32 v14, s28, v14')
    a('s_mov_b32 s44, 0x00030003')
    a('s_mov_b32 s45, 0x00030003')
    a('s_mov_b64 exec, s[44:45]')
    a(f'ds_write_b128 v14, {v(CSA,4)} offset:{LST+1024}')
    a('s_mov_b64 exec, -1')
    a('s_waitcnt lgkmcnt(0)')
    a('s_barrier')
    a('s_lshl_b32 s28, s26, 9')
    a('v_lshlrev_b32 v14, 3, v3')
    a('v_add_u32 v14, s28, v14')
    a(f'ds_read_b64 {v(ST,2)}, v14 offset:{LST}')
    a(f'ds_read_b64 {v(ST+4,2)}, v14 offset:{LST+256}')
    a('s_lshl_b32 s28, s23, 8')
    a('v_lshlrev_b32 v14, 4, v4')
    a('v_add_u32 v14, s28, v14')
    for th_ in range(2):
        for g in range(4):
            a(f'ds_read_b128 {v(CS+32*th_+4*g,4)}, v14 offset:{LST + 1024 + th_*128 + g*32}')
    for q in range(8):
        a(f'v_lshlrev_b32 v{B1+2*q}, 16, v{B1R+q}')
        a(f'v_and_b32 v{B1+2*q+1}, 0xffff0000, v{B1R+q}')
    a('s_waitcnt lgkmcnt(0)')
    for r in range(16): a(f'v_add_f32 v{CS+r}, v{CS+r}, v{CS+32+r}')
    for j in range(2):
        b = ST + 4 * j
        for r in range(16):
            a(f'v_fma_f32 v{b+2}, -v{b}, v{CS+r}, v{B1+r}')
            a(f'v_fma_f32 v{ACC+16*j+r}, v{b+1}, v{ACC+16*j+r}, v{b+2}')
            a(f'v_max_f32 v{ACC+16*j+r}, 0, v{ACC+16*j+r}')
            a(f'v_mul_f32 v{ACC+16*j+r}, v{ACC+16*j+r}, v{ACC+16*j+r}')
    PK = 104
    for r in range(16):
        a(f'v_cvt_pk_bf16_f32 v{PK+r}, v{ACC+2*r}, v{ACC+2*r+1}')
    a('v_lshrrev_b32 v13, 4, v3')
    a('s_mov_b32 s18, 55296')
    a('v_mul_lo_u32 v13, v13, s18')
    a('v_and_b32 v14, 15, v3')
    a('v_lshl_add_u32 v13, v14, 4, v13')
    a('v_lshl_add_u32 v13, v4, 8, v13')
    a('s_lshr_b32 s18, s27, 4')
    a('s_mul_i32 s18, s18, 55296')
    a('s_lshl_b32 s17, s14, 2')
    a('s_add_u32 s17, s17, s23')
    a('s_cmp_ge_u32 s17, 54')
    a('s_cselect_b32 s19, 0x40000000, 0')
    a('s_lshl_b32 s17, s17, 10')
    a('s_add_u32 s17, s17, s18')
    a(f's_add_u32 s17, s17, {WS_G}')
    a('s_add_u32 s17, s17, s19')
    a(f's_add_u32 s18, s17, {2*55296}')
    stores2(a, [f'buffer_store_dwordx4 {v(PK,4)}, v13, s[8:11], s17 offen',
                f'buffer_store_dwordx4 {v(PK+4,4)}, v13, s[8:11], s17 offen offset:512',
                f'buffer_store_dwordx4 {v(PK+8,4)}, v13, s[8:11], s18 offen',
                f'buffer_store_dwordx4 {v(PK+12,4)}, v13, s[8:11], s18 offen offset:512'])

def phase_ffn2(a, L, published):
    NST = 7
    vm = VM()
    BF, ACC, AF, T = 16, 128, 168, 16
    def pre():
        for st in (0, 1):
            for ft in range(5):
                for x in w2_dma(st, ft): a(x)
    def mask():
        a(f's_and_b32 s40, s{SJ}, 2')
        a('s_cmp_eq_u32 s40, 0')
        a('s_mov_b32 s44, 0x0aaaaaaa')
        a('s_cselect_b32 s44, 0x05555555, s44')
        a('s_mov_b32 s45, 0')
    sync(a, 2 if published else None, 2, mask, pre)
    return vm

def ffn2_body(a, L):
    NST = 7
    vm = VM()
    for st in (0, 1):
        for ft in range(5): vm.issue(('w', st))
    BF, ACC, AF, T = 16, 128, 168, 16
    if 'f1stamp' not in gen.EXP: stamp(a, 12)
    a(f's_load_dwordx2 s[50:51], s[0:1], {A_B2}')
    a('s_waitcnt lgkmcnt(0)')
    srd(a, 52, 50, D * 2)
    a(f's_and_b32 s20, s{SJ}, 3')
    a(f's_lshr_b32 s21, s{SJ}, 2')
    a('s_lshr_b32 s22, s12, 2')
    a('s_and_b32 s23, s12, 3')
    a('s_mul_i32 s26, s23, 14')
    a('s_cmp_eq_u32 s23, 3')
    a('s_cselect_b32 s27, 1, 0')
    a('s_sub_u32 s26, s26, s27')
    a(f's_lshl_b32 s31, s{SG}, 4')
    a('s_lshl_b32 s32, s20, 2')
    a('s_add_u32 s31, s31, s32')
    a('s_lshl_b32 s32, s22, 1')
    a('s_add_u32 s32, s32, s31')
    a('s_mul_i32 s32, s32, 55296')
    a('s_lshl_b32 s33, s26, 10')
    a('s_add_u32 s32, s32, s33')
    a(f's_add_u32 s32, s32, {WS_G}')
    def bload(i):
        for j in range(2):
            a(f's_add_u32 s33, s32, {j*55296 + i*1024}')
            a(f'buffer_load_dwordx4 {v(BF+8*i+4*j,4)}, v10, s[8:11], s33 offen sc1')
            vm.issue(('b', i))
    for i in range(2): bload(i)
    bq = list(range(2, 14))
    wq = [(st, ft) for st in range(2, 7) for ft in range(5)]
    a('s_mul_i32 s34, s23, 10240')
    a('v_add_u32 v8, s34, v10')
    a('v_add_u32 v9, 0x10000, v8')
    a('v_add_u32 v11, 0x20000, v8')
    def areads(st, i, buf):
        for ft in range(5):
            off = F2_SLOT[st] + i * 5120 + ft * 1024
            base = {0: 8, 1: 9, 2: 11}[off >> 16]
            a(f'ds_read_b128 {v(AF+20*buf+4*ft,4)}, v{base} offset:{off & 65535}')
    for st in range(NST):
        vm.wait(a, lambda x: x == ('w', st) or x == ('b', min(2*st+1, 13)))
        a('s_barrier')
        areads(st, 0, 0)
        areads(st, 1, 1)
        for i in range(2):
            ks = 2 * st + i
            a(f's_waitcnt lgkmcnt({5 if i == 0 else 0})')
            last = (ks == 13)
            if last:
                a('s_cmp_ge_u32 s23, 2')
                a(f's_cbranch_scc1 {L}_skip')
            for ft in range(5):
                for j in range(2):
                    acc = v(ACC + 4 * (2 * ft + j), 4)
                    a(f'v_mfma_f32_16x16x32_bf16 {acc}, {v(AF+20*i+4*ft,4)}, {v(BF+8*ks+4*j,4)}, {"0" if ks == 0 else acc}')
                if not last:
                    nb = 1 if ft in (0, 3) else 0
                    if st == 0 and ft == 4: nb = 1
                    for _ in range(nb):
                        if bq and bq[0] <= ks + 6: bload(bq.pop(0))
                    nw = 2 if st <= 1 else 1
                    for _ in range(nw):
                        if wq and wq[0][0] - 3 <= st and (wq[0][0] <= 3 or wq[0][0] - 3 <= st):
                            x_ = wq.pop(0)
                            for x in w2_dma(*x_): a(x)
                            vm.issue(('w', x_[0]))
            if last: a.label(f'{L}_skip')
    if 'f1stamp' not in gen.EXP: stamp(a, 13)
    a('v_and_b32 v5, 15, v2')
    a('v_lshrrev_b32 v6, 4, v2')
    HR, BB = 228, 208
    a('s_and_b32 s33, s12, 3')
    a('s_add_u32 s33, s31, s33')
    a('s_mul_i32 s34, s33, 20480')
    a('s_mul_i32 s35, s21, 2560')
    a('s_add_u32 s34, s34, s35')
    a(f's_add_u32 s34, s34, {WS_H}')
    a('v_lshrrev_b32 v12, 1, v6')
    a('v_lshlrev_b32 v12, 8, v12')
    a('v_lshl_add_u32 v12, v5, 4, v12')
    a('v_and_b32 v13, 1, v6')
    a('v_lshl_add_u32 v12, v13, 3, v12')
    a('s_nop 7')
    for ft in range(5):
        a(f'buffer_load_dwordx2 {v(HR+2*ft,2)}, v12, s[8:11], s34 offen offset:{512*ft} sc1')
    a('s_mul_i32 s35, s21, 160')
    a('v_lshlrev_b32 v13, 3, v6')
    for ft in range(5):
        a(f'buffer_load_dwordx2 {v(BB+2*ft,2)}, v13, s[52:55], s35 offen offset:{32*ft}')
    a('s_barrier')
    ksplit_reduce(a, ACC, T, 12, 22, 23, 10, 14)
    a('s_cmp_ge_u32 s12, 4')
    a(f's_cbranch_scc1 {L}_fin')
    ksplit_gather(a, T, 12, 10, 14)
    a('s_waitcnt vmcnt(0)')
    for ft in range(5):
        for h2 in range(2):
            a(f'v_lshlrev_b32 v{T+20}, 16, v{HR+2*ft+h2}')
            a(f'v_and_b32 v{T+21}, 0xffff0000, v{HR+2*ft+h2}')
            a(f'v_lshlrev_b32 v{T+22}, 16, v{BB+2*ft+h2}')
            a(f'v_and_b32 v{T+23}, 0xffff0000, v{BB+2*ft+h2}')
            a(f'v_add_f32 v{T+4*ft+2*h2}, v{T+4*ft+2*h2}, v{T+22}')
            a(f'v_add_f32 v{T+4*ft+2*h2+1}, v{T+4*ft+2*h2+1}, v{T+23}')
            a(f'v_add_f32 v{T+4*ft+2*h2}, v{T+4*ft+2*h2}, v{T+20}')
            a(f'v_add_f32 v{T+4*ft+2*h2+1}, v{T+4*ft+2*h2+1}, v{T+21}')
    for i in range(10):
        a(f'v_cvt_pk_bf16_f32 v{T+24+i}, v{T+2*i}, v{T+2*i+1}')
    a('s_lshl_b32 s33, s33, 4')
    a('v_add_u32 v7, s33, v5')
    a('s_movk_i32 s34, 1280')
    a('v_mul_lo_u32 v7, v7, s34')
    a('v_lshl_add_u32 v7, v6, 3, v7')
    a('s_mul_i32 s34, s21, 160')
    for ft in range(5):
        a(f'buffer_store_dwordx2 {v(T+24+2*ft,2)}, v7, s[76:79], s34 offen offset:{32*ft}')

def kf():
    a = Asm()
    L = 'kf_kernel'
    kernel_begin(a, L)
    a('s_cmp_ge_u32 s2, 256')
    a(f's_cbranch_scc1 {L}_end')
    stamp(a, 0, True); stamp(a, 1)
    if 'dbg' in gen.EXP:
        a('s_memrealtime s[90:91]'); a('s_memtime s[92:93]'); a(f's_load_dwordx2 s[94:95], s[0:1], {A_DBG}')
    a(f's_load_dwordx2 s[4:5], s[0:1], {A_WS}')
    a(f's_load_dwordx2 s[68:69], s[0:1], {A_X}')
    a(f's_load_dwordx2 s[70:71], s[0:1], {A_OUT}')
    a(f's_and_b32 s{SG}, s2, 7')
    a(f's_lshr_b32 s{SJ}, s2, 3')
    a(f's_mov_b32 s{SH}, s{SJ}')
    a(f's_mov_b32 s{SR}, s{SG}')
    a('v_lshrrev_b32 v1, 6, v0')
    a('v_and_b32 v2, 63, v0')
    a('v_readfirstlane_b32 s12, v1')
    a('v_and_b32 v3, 31, v2')
    a('v_lshrrev_b32 v4, 5, v2')
    a(f's_getreg_b32 s{SPURE}, hwreg(HW_REG_XCC_ID, 0, 4)')
    a(f's_add_u32 s{SPURE}, s{SPURE}, 1')
    a('s_waitcnt lgkmcnt(0)')
    srd(a, 8, 4, WS_END)
    srd(a, 72, 68, S * D * 2)
    srd(a, 76, 70, S * D * 2)
    l = lab('xp')
    a('s_cmp_lg_u32 s12, 0')
    a(f's_cbranch_scc1 {l}')
    a(f's_lshl_b32 s40, s{SG}, 7')
    a(f's_lshl_b32 s41, s{SJ}, 2')
    a('s_add_u32 s40, s40, s41')
    a(f's_add_u32 s40, s40, {WS_XT}')
    a('v_mov_b32 v14, 0')
    a(f'v_mov_b32 v15, s{SPURE}')
    a('s_mov_b64 exec, 1')
    a('buffer_store_dword v15, v14, s[8:11], s40 offen sc1')
    a('s_mov_b64 exec, -1')
    a.label(l)
    if 'nocodepf' not in gen.EXP:
        a('s_getpc_b64 s[40:41]')
        a.label('.Lpc_here')
        a(f's_sub_u32 s40, s40, (.Lpc_here - {L})')
        a('s_subb_u32 s41, s41, 0')
        a('s_lshl_b32 s42, s12, 12')
        a('v_lshlrev_b32 v14, 6, v2')
        a('v_add_u32 v14, s42, v14')
        a(f's_mov_b32 s42, (.Lkf_last - {L})')
        a('v_add_u32 v16, 0x8000, v14')
        a('v_min_u32 v14, s42, v14')
        a('v_min_u32 v16, s42, v16')
        a('v_mov_b32 v15, s41')
        a('v_mov_b32 v17, s41')
        a('v_add_co_u32 v14, vcc, s40, v14')
        a('v_addc_co_u32 v15, vcc, 0, v15, vcc')
        a('v_add_co_u32 v16, vcc, s40, v16')
        a('v_addc_co_u32 v17, vcc, 0, v17, vcc')
        a('global_load_dword v151, v[14:15], off')
        a('global_load_dword v151, v[16:17], off')
    stamp(a, 2)
    phase_attn(a)
    stamp(a, 4)
    phase_oproj(a)
    stamp(a, 5)
    a(f's_cmp_ge_u32 s{SJ}, 28')
    a(f's_cbranch_scc1 {L}_idle')
    phase_ffn1(a, None)
    phase_ffn2(a, L, True)
    a(f's_branch {L}_f2')
    a.label(f'{L}_idle')
    a('s_waitcnt vmcnt(0)')
    a('s_barrier')
    li = lab('id')
    a('s_cmp_lg_u32 s12, 0')
    a(f's_cbranch_scc1 {li}')
    flag_store(a, 1, 14)
    a.label(li)
    w2_setup(a)
    a('s_waitcnt vmcnt(0)')
    phase_ffn2(a, L, False)
    a.label(f'{L}_f2')
    ffn2_body(a, L)
    a.label(f'{L}_fin')
    if 'f1stamp' not in gen.EXP: stamp(a, 14)
    if 'dbg' in gen.EXP:
        a('s_waitcnt vmcnt(0)')
        a('s_memrealtime s[96:97]'); a('s_memtime s[86:87]'); a('s_waitcnt lgkmcnt(0)')
        ldb = lab('db')
        a('s_cmp_lg_u32 s2, 0'); a(f's_cbranch_scc1 {ldb}'); a('s_cmp_lg_u32 s12, 0'); a(f's_cbranch_scc1 {ldb}')
        a('s_sub_u32 s96, s96, s90'); a('s_sub_u32 s86, s86, s92')
        a('v_mov_b32 v0, 0'); a('v_mov_b32 v2, s96'); a('v_mov_b32 v3, s86'); a('v_mov_b32 v4, s90'); a('v_mov_b32 v5, 0')
        a('s_sub_u32 s94, s94, 512'); a('s_subb_u32 s95, s95, 0')
        a('global_store_dwordx4 v0, v[2:5], s[94:95] offset:16')
        a.label(ldb)
    if gen.PROF: a('s_waitcnt vmcnt(0)')
    stamp(a, 6, True)
    stamp_flush(a, 2, 15, 8, 12)
    a.label(f'{L}_end')
    a.label('.Lkf_last')
    a('s_endpgm')
    return a, descriptor(L, 256, 102), f'; @launch kernel={L} grid=(256,1,1) block=(512,1,1) lds=163840'

if __name__ == '__main__':
    if 'prof' in sys.argv: gen.PROF = True
    for x in sys.argv[2:]:
        if x.startswith('x:'): gen.EXP.add(x[2:])
    out = sys.argv[1]
    import gen4
    open(out, 'w').write(build([k0, k1, kf] if 'old' in gen.EXP else [gen4.k1p, kf]))
    print('wrote', out)
```

```python
import sys
sys.path.insert(0, 'dev')
import gen, gen2
from gen import *
from gen2 import lab, stores2, attn_units, wo_dma, WS_XT, SG, SJ, SPURE, LDS_WO, SPIN_MAX
from asmlib import *

class VM:
    def __init__(self): self.ops = []
    def issue(self, tag): self.ops.append(tag)
    def count_after(self, pred):
        n = 0
        for x in reversed(self.ops):
            if pred(x): return n
            n += 1
        raise Exception('no op matches')
    def wait(self, a, pred, extra=''):
        a(f's_waitcnt vmcnt({min(self.count_after(pred), 63)}){extra}')

XR0 = 136
W1A, W1B = 152, 16
def w1reg(s): return W1A + 4 * s if s < 26 else W1B + 4 * (s - 26)
SH, SR = 36, 37
S_OOB = 38
S_W1 = 98
V_W1 = 1

def flag_store(a, p, vt):
    g_, j_ = (SR, SH) if p == 0 else (SG, SJ)
    a(f's_lshl_b32 s40, s{g_}, 7')
    a(f's_lshl_b32 s41, s{j_}, 2')
    a('s_add_u32 s40, s40, s41')
    a(f's_add_u32 s40, s40, {WS_FLAG + p*1024}')
    a(f'v_mov_b32 v{vt}, 0')
    a(f'v_mov_b32 v{vt+1}, 1')
    a('s_mov_b64 exec, 1')
    stores2(a, [f'buffer_store_dword v{vt+1}, v{vt}, s[8:11], s40 offen'])
    a('s_mov_b64 exec, -1')

def sync(a, p_pub, p_wait, smask_setup, prefetch, vt=14):
    if p_pub is not None:
        a('s_waitcnt vmcnt(0)')
        a('s_barrier')
    l0, l1, lp, ld, l3 = lab('sy'), lab('sy'), lab('sy'), lab('sy'), lab('sy')
    a('s_cmp_lg_u32 s12, 0')
    a(f's_cbranch_scc1 {l0}')
    if p_pub is not None: flag_store(a, p_pub, vt)
    smask_setup()
    a(f's_lshl_b32 s40, s{SG}, 7')
    a(f's_add_u32 s40, s40, {WS_FLAG + p_wait*1024}')
    a(f'v_lshlrev_b32 v{vt}, 2, v2')
    a('s_mov_b64 exec, s[44:45]')
    a('s_mov_b32 s41, 0')
    a.label(lp)
    a(f'buffer_load_dword v{vt+1}, v{vt}, s[8:11], s40 offen sc1')
    a('s_add_u32 s41, s41, 1')
    a('s_waitcnt vmcnt(0)')
    a(f'v_cmp_eq_u32 vcc, 0, v{vt+1}')
    a(f's_cbranch_vccz {ld}')
    a(f's_cmp_lt_u32 s41, {SPIN_MAX}')
    a(f's_cbranch_scc1 {lp}')
    a.label(ld)
    a('s_mov_b64 exec, -1')
    a(f's_cmp_eq_u32 s{SPURE}, 1')
    a(f's_cbranch_scc1 {l3}')
    a('buffer_inv sc1')
    a('s_waitcnt vmcnt(0)')
    a.label(l3)
    a('s_barrier')
    prefetch()
    a(f's_branch {l1}')
    a.label(l0)
    prefetch()
    a('s_barrier')
    a.label(l1)

def phase_attn(a):
    R = AR
    attn_setup(a, SH, SR, 12, 8)
    a(f's_lshr_b32 s62, s{SJ}, 2')
    a('s_mul_i32 s62, s62, 102400')
    a(f's_add_u32 s62, s62, {WS_WO}')
    a('s_lshl_b32 s61, s12, 10')
    a('s_add_u32 s62, s62, s61')
    a('s_cmp_lt_u32 s12, 4')
    a(f's_mov_b32 s63, {11*8192}')
    a(f's_cselect_b32 s63, {12*8192}, s63')
    a('s_add_u32 s63, s63, s62')
    a(f's_add_u32 s61, s61, {LDS_WO}')
    for r in range(32): a(f'v_mov_b32 v{R.O+r}, 0')
    for r in range(16): a(f'v_mov_b32 v{R.P+r}, 0')
    for r in range(16): a(f'v_mov_b32 v{R.VV+r}, 0')
    vm = VM()
    attn_dma(a, 0, 8)
    lane_swap23(a, 14, 3, 15)
    a('v_lshrrev_b32 v15, 4, v14')
    a('s_movk_i32 s40, 20480')
    a('v_mul_lo_u32 v15, v15, s40')
    a('v_and_b32 v14, 15, v14')
    a('v_lshl_add_u32 v15, v14, 4, v15')
    a(f'v_lshl_add_u32 v{V_W1}, v4, 8, v15')
    a(f's_lshr_b32 s40, s{SJ}, 1')
    a('s_lshl_b32 s40, s40, 2')
    a('s_and_b32 s41, s12, 3')
    a('s_add_u32 s40, s40, s41')
    a('s_mul_i32 s41, s40, 40960')
    a(f's_add_u32 s41, s41, {WS_W1}')
    a('s_cmp_lt_u32 s40, 54')
    a(f's_cselect_b32 s{S_W1}, s41, 0x7ff00000')
    a(f's_mov_b32 s{S_OOB}, 0x7ff00000')
    lt1, lt2 = lab('tc'), lab('tc')
    a('v_lshlrev_b32 v148, 7, v2')
    a('s_cmp_ge_u32 s12, 4')
    a(f's_cbranch_scc1 {lt1}')
    a(f's_mul_i32 s50, s{SG}, {16*20480}')
    a(f's_mul_i32 s40, s{SJ}, 10240')
    a('s_add_u32 s50, s50, s40')
    a('s_and_b32 s40, s12, 1')
    a('s_mul_i32 s40, s40, 5120')
    a('s_add_u32 s50, s50, s40')
    a('s_lshr_b32 s40, s12, 1')
    a(f's_mul_i32 s40, s40, {WS_H - WS_O}')
    a('s_add_u32 s50, s50, s40')
    a(f's_add_u32 s50, s50, {WS_O}')
    a('v_add_u32 v148, s50, v148')
    a(f's_lshr_b32 s40, s{SJ}, 1')
    a('s_lshl_b32 s40, s40, 14')
    a(f's_lshl_b32 s41, s{SG}, 11')
    a('s_add_u32 s40, s40, s41')
    a(f's_and_b32 s41, s{SJ}, 1')
    a('s_lshl_b32 s41, s41, 10')
    a('s_add_u32 s40, s40, s41')
    a(f's_add_u32 s40, s40, {WS_ST2 - 40*128}')
    a('s_cmp_eq_u32 s12, 2')
    a('s_cselect_b32 s40, s40, 0x7ff00000')
    a('v_lshlrev_b32 v149, 7, v2')
    a('v_add_u32 v149, s40, v149')
    a('v_mov_b32 v14, 0x7ff00000')
    a('v_cmp_gt_u32 vcc, 48, v2')
    a('v_cndmask_b32 v149, v14, v149, vcc')
    a('v_cmp_gt_u32 vcc, 40, v2')
    a('v_cndmask_b32 v148, v149, v148, vcc')
    a(f's_branch {lt2}')
    a.label(lt1)
    a('s_sub_u32 s40, s12, 4')
    a('s_lshl_b32 s40, s40, 5')
    a(f's_add_u32 s40, s40, s{SJ}')
    a('s_mul_i32 s50, s40, 20480')
    a(f's_add_u32 s50, s50, {WS_W1 + 13312}')
    a('s_cmp_lt_u32 s40, 108')
    a('s_cselect_b32 s50, s50, 0x7ff00000')
    a('v_add_u32 v148, s50, v148')
    a('v_mov_b32 v14, 0x7ff00000')
    a('v_cmp_gt_u32 vcc, 56, v2')
    a('v_cndmask_b32 v148, v14, v148, vcc')
    a.label(lt2)
    a('v_lshlrev_b32 v147, 7, v2')
    a('s_lshl_b32 s40, s12, 13')
    a(f's_mul_i32 s51, s{SG}, {16*55296}')
    a(f's_mul_i32 s41, s{SJ}, 27648')
    a('s_add_u32 s51, s51, s41')
    a('s_add_u32 s51, s51, s40')
    a(f's_add_u32 s51, s51, {WS_G}')
    a('s_cmp_ge_u32 s12, 4')
    a('s_cselect_b32 s51, 0x7ff00000, s51')
    a(f's_and_b32 s40, s{SJ}, 3')
    a('s_lshl_b32 s40, s40, 2')
    a(f's_lshl_b32 s41, s{SG}, 4')
    a('s_add_u32 s40, s40, s41')
    a('s_and_b32 s41, s12, 3')
    a('s_add_u32 s40, s40, s41')
    a('s_lshl_b32 s40, s40, 4')
    a('v_and_b32 v0, 15, v2')
    a('v_add_u32 v0, s40, v0')
    a('s_movk_i32 s41, 1280')
    a('v_mul_lo_u32 v0, v0, s41')
    a('v_lshrrev_b32 v14, 4, v2')
    a('v_lshl_add_u32 v0, v14, 3, v0')
    a(f's_lshr_b32 s57, s{SJ}, 2')
    a('s_mul_i32 s57, s57, 160')
    a('s_lshr_b32 s40, s12, 2')
    a('s_mul_i32 s40, s40, 96')
    a('s_add_u32 s57, s57, s40')
    a('s_waitcnt vmcnt(0)')
    for st in (1, 2):
        attn_dma(a, st, 8); vm.issue(('kv', st)); vm.issue(('kv', st))
    for x in wo_dma(): a(x)
    vm.issue('wo')
    if 'notlb' not in gen.EXP:
        a('v_lshlrev_b32 v149, 16, v2')
        a('s_lshl_b32 s40, s12, 22')
        a('buffer_load_dword v149, v149, s[8:11], s40 offen')
        a('v_lshlrev_b32 v148, 16, v2')
        a('buffer_load_dword v148, v148, s[76:79], 0 offen')
    a('v_cmp_gt_u32 vcc, 32, v2')
    for r in range(4): a(f'v_cndmask_b32 v{R.QC+r}, 0, v{R.QC+r}, vcc')
    a('s_waitcnt lgkmcnt(0)')
    a('s_barrier')
    a(f'ds_read_b128 {v(R.KA,4)}, v11 offset:0')
    a(f'ds_read_b64 {v(R.KC,2)}, v12 offset:0')
    a('s_waitcnt lgkmcnt(0)')
    a(f'v_mfma_f32_32x32x16_bf16 {v(R.S,16)}, {v(R.KA,4)}, {v(R.QA,4)}, 0')
    a(f'v_mfma_f32_32x32x8bf16_1k {v(R.S,16)}, {v(R.KC,2)}, {v(R.QC,2)}, {v(R.S,16)}')
    stamp(a, 7)
    wnext = [0]
    def w1load():
        s_ = wnext[0]; wnext[0] += 1
        return [f's_add_u32 s40, s{S_W1}, {s_*512}', f'buffer_load_dwordx4 {v(w1reg(s_),4)}, v{V_W1}, s[8:11], s40 offen']
    plan = {}
    waits = {}
    nW = {2: 3, 3: 3, 4: 3, 5: 3, 6: 4, 7: 4, 8: 3, 9: 3}
    if 'now1a' in gen.EXP: nW = {}
    def masked(sreg, cond_lo, cond_hi, vreg):
        return [f's_sub_u32 s40, s12, {cond_lo}', f's_cmp_lt_u32 s40, {cond_hi - cond_lo}', f's_cselect_b32 s40, {sreg}, s{S_OOB}',
                f'buffer_load_dword v149, v{vreg}, s[8:11], s40 offen']
    for g in range(16):
        ex = {}
        k = nW.get(g, 0)
        slots = sorted([(0, 20), (1, 8), (1, 20), (2, 20)][:k])
        if g <= 11:
            ex.setdefault(0, {})[8] = wo_dma(); vm.issue('wo')
        if g == 12:
            ex.setdefault(0, {})[8] = [f's_lshl_b32 s40, s{SG}, 7', f's_add_u32 s40, s40, {WS_XT}', 'v_lshlrev_b32 v150, 2, v3',
                                       'buffer_load_dword v150, v150, s[8:11], s40 offen sc1']
            vm.issue('xt')
        tl = None
        if g == 10: tl = masked('0', 4, 6, 148)
        if g == 11: tl = masked('0', 6, 8, 148)
        if g == 12: tl = masked('0', 0, 4, 148)
        if g == 13: tl = ['buffer_load_dword v149, v147, s[8:11], s51 offen']
        if tl and 'notouch' not in gen.EXP:
            ex.setdefault(1, {})[14] = tl; vm.issue('touch')
        post = []
        pre_ops = []
        for (u, pos) in slots:
            if u < 2: ex.setdefault(u, {})[pos] = w1load(); vm.issue('w1')
            else: post.append((u, pos))
        if g < 15: waits[g] = vm.count_after(lambda x: x == ('kv', g + 1))
        for (u, pos) in post:
            ex.setdefault(u, {})[pos] = w1load(); vm.issue('w1')
        if g <= 12:
            vm.issue(('kv', g + 3)); vm.issue(('kv', g + 3))
        if g == 13:
            ex.setdefault(3, {})[20] = [f'buffer_load_dwordx2 {v(XR0+2*i,2)}, v0, s[72:75], s57 offen offset:{32*i}' for i in range(3)]
            for i in range(3): vm.issue('xr')
        plan[g] = ex
    assert wnext[0] == 26 or 'now1a' in gen.EXP, wnext
    def run(stages_g):
        loc = {g % 4: g for g in stages_g}
        def prio(st, u):
            g = loc[st]
            if g == 15: return {0: 2, 1: 1, 2: 1, 3: 0}[u]
            if g == 14 and u >= 2: return 3
            return {2: 3, 3: 2, 0: 1, 1: 0}[u]
        return attn_units(a, 8, [(g % 4, g == 15) for g in stages_g], lambda st: loc[st] <= 12,
                          lambda st, u: plan[loc[st]].get(u, {}), lambda st: waits[loc[st]], prio)
    for b_ in range(3): run([4*b_ + i for i in range(4)])
    m1, m2, m3, m4, _ = run([12, 13, 14, 15])
    a(m3(1, 1, 1)); a(m4(1, 1, 1))
    a('s_setprio 0')
    stamp(a, 3)
    a('s_cmp_eq_u32 s46, 0')
    a('s_cbranch_scc1 .Lat_noswap')
    a('s_nop 7')
    for r in range(12): a(f'v_swap_b32 v{R.O+r}, v{R.O+16+r}')
    a.label('.Lat_noswap')
    a('s_nop 7')
    a(f's_mul_i32 s40, s12, 3072')
    a('v_add_u32 v14, s40, v10')
    for i in range(3): a(f'ds_write_b128 v14, {v(R.O+16+4*i,4)} offset:{1024*i}')
    a('s_xor_b32 s40, s12, 4')
    a('s_mul_i32 s40, s40, 3072')
    a('v_add_u32 v14, s40, v10')
    a('s_waitcnt lgkmcnt(0)')
    a('s_barrier')
    TT = R.S
    for i in range(3): a(f'ds_read_b128 {v(TT+4*i,4)}, v14 offset:{1024*i}')
    lp, ld = lab('xt'), lab('xt')
    a('s_mov_b32 s41, 0')
    a('v_cmp_eq_u32 vcc, 0, v150')
    a(f's_cbranch_vccz {ld}')
    a.label(lp)
    a(f's_lshl_b32 s40, s{SG}, 7')
    a(f's_add_u32 s40, s40, {WS_XT}')
    a('v_lshlrev_b32 v14, 2, v3')
    a('buffer_load_dword v150, v14, s[8:11], s40 offen sc1')
    a('s_add_u32 s41, s41, 1')
    a('s_waitcnt vmcnt(0)')
    a('v_cmp_eq_u32 vcc, 0, v150')
    a(f's_cbranch_vccz {ld}')
    a(f's_cmp_lt_u32 s41, {SPIN_MAX}')
    a(f's_cbranch_scc1 {lp}')
    a.label(ld)
    a(f'v_cmp_ne_u32 vcc, s{SPURE}, v150')
    a('s_cmp_eq_u64 vcc, 0')
    a(f's_cselect_b32 s{SPURE}, 1, 0')
    if 'slow' in gen.EXP: a(f's_mov_b32 s{SPURE}, 0')
    a('s_waitcnt lgkmcnt(0)')
    for r in range(12): a(f'v_add_f32 v{R.O+r}, v{R.O+r}, v{TT+r}')
    a(f'v_mov_b32 v{TT}, v{R.O+8}')
    a(f'v_mov_b32 v{TT+1}, v{R.O+8}')
    a(f'v_permlane32_swap_b32 v{TT}, v{TT+1}')
    a(f'v_rcp_f32 v{TT+1}, v{TT+1}')
    for r in range(12): a(f'v_mul_f32 v{R.O+r}, v{R.O+r}, v{TT+1}')
    for i in range(6): a(f'v_cvt_pk_bf16_f32 v{TT+4+i}, v{R.O+2*i}, v{R.O+2*i+1}')
    a('s_mul_i32 s61, s46, 40960')
    a('s_add_u32 s61, s61, s47')
    a(f's_add_u32 s61, s61, {WS_O}')
    a('s_lshl_b32 s62, s42, 8')
    a('s_add_u32 s62, s62, s61')
    a('s_lshl_b32 s63, s43, 8')
    a('s_add_u32 s63, s63, s61')
    a(f's_and_b32 s61, s{SH}, 1')
    a('s_lshl_b32 s61, s61, 3')
    a('s_add_u32 s63, s63, s61')
    stores2(a, [f'buffer_store_dwordx4 {v(TT+4,4)}, v7, s[8:11], s62 offen',
                's_mov_b64 exec, 0xffffffff',
                f'buffer_store_dwordx2 {v(TT+8,2)}, v5, s[8:11], s63 offen',
                's_mov_b64 exec, -1'])

def phase_oproj(a):
    BF, AF, ACC, XR, T = 16, 56, 96, XR0, 116
    a(f's_and_b32 s20, s{SJ}, 3')
    a(f's_lshr_b32 s21, s{SJ}, 2')
    a('s_and_b32 s22, s12, 3')
    a('s_lshr_b32 s23, s12, 2')
    a(f's_lshl_b32 s29, s{SG}, 4')
    a('s_lshl_b32 s30, s20, 2')
    a('s_add_u32 s29, s29, s30')
    a('s_add_u32 s29, s29, s22')
    a('v_and_b32 v5, 15, v2')
    a('v_lshrrev_b32 v6, 4, v2')
    a('s_mul_i32 s30, s29, 20480')
    a('s_mul_i32 s31, s23, 10240')
    a('s_add_u32 s30, s30, s31')
    a(f's_add_u32 s30, s30, {WS_O}')
    a('s_mul_i32 s33, s23, 10240')
    a(f's_add_u32 s33, s33, {LDS_WO}')
    a('v_add_u32 v8, s33, v10')
    a(f'v_add_u32 v9, {3*20480}, v8')
    def pre(): pass
    def mask():
        a('s_mov_b32 s44, -1'); a('s_mov_b32 s45, 0')
    sync(a, 0, 0, mask, pre)
    stamp(a, 8)
    for i in range(10):
        if i % 4 == 0: a(f's_add_u32 s31, s30, {i*1024}')
        a(f'buffer_load_dwordx4 {v(BF+4*i,4)}, v10, s[8:11], s31 offen offset:{(i%4)*1024} sc1')
    def areads(i, buf):
        for ft in range(5):
            off = ft * 20480 + i * 1024
            base = 8
            if ft >= 3: off -= 3 * 20480; base = 9
            a(f'ds_read_b128 {v(AF+20*buf+4*ft,4)}, v{base} offset:{off}')
    areads(0, 0)
    for i in range(10):
        if i < 9:
            areads(i + 1, (i + 1) & 1)
            a(f's_waitcnt vmcnt({9-i}) lgkmcnt(5)')
        else:
            a('s_waitcnt vmcnt(0) lgkmcnt(0)')
        for ft in range(5):
            acc = v(ACC + 4 * ft, 4)
            a(f'v_mfma_f32_16x16x32_bf16 {acc}, {v(AF+20*(i&1)+4*ft,4)}, {v(BF+4*i,4)}, {"0" if i == 0 else acc}')
    stamp(a, 9)
    a('s_mul_i32 s40, s12, 3072')
    a('s_add_u32 s40, s40, 32768')
    a('v_add_u32 v14, s40, v10')
    l1, l2 = lab('ox'), lab('ox')
    a('s_nop 7')
    a('s_cmp_eq_u32 s23, 0')
    a(f's_cbranch_scc0 {l1}')
    for i, ft in enumerate((3, 4)): a(f'ds_write_b128 v14, {v(ACC+4*ft,4)} offset:{1024*i}')
    a(f's_branch {l2}')
    a.label(l1)
    for ft in range(3): a(f'ds_write_b128 v14, {v(ACC+4*ft,4)} offset:{1024*ft}')
    a('s_waitcnt lgkmcnt(0)')
    for r in range(8): a(f'v_mov_b32 v{ACC+r}, v{ACC+12+r}')
    for r in range(8, 12): a(f'v_mov_b32 v{ACC+r}, 0')
    a.label(l2)
    a('s_xor_b32 s40, s12, 4')
    a('s_mul_i32 s40, s40, 3072')
    a('s_add_u32 s40, s40, 32768')
    a('v_add_u32 v14, s40, v10')
    a('s_waitcnt lgkmcnt(0)')
    a('s_barrier')
    for i in range(3): a(f'ds_read_b128 {v(T+4*i,4)}, v14 offset:{1024*i}')
    a('s_waitcnt lgkmcnt(0)')
    for r in range(12): a(f'v_add_f32 v{ACC+r}, v{ACC+r}, v{T+r}')
    for i in range(3):
        for h2 in range(2):
            a(f'v_lshlrev_b32 v{T}, 16, v{XR+2*i+h2}')
            a(f'v_and_b32 v{T+1}, 0xffff0000, v{XR+2*i+h2}')
            a(f'v_add_f32 v{ACC+4*i+2*h2}, v{ACC+4*i+2*h2}, v{T}')
            a(f'v_add_f32 v{ACC+4*i+2*h2+1}, v{ACC+4*i+2*h2+1}, v{T+1}')
    l3 = lab('ox')
    a('s_cmp_eq_u32 s23, 0')
    a(f's_cbranch_scc1 {l3}')
    for r in range(8, 12): a(f'v_mov_b32 v{ACC+r}, 0')
    a.label(l3)
    a(f'v_mov_b32 v{T}, v{ACC}')
    a(f'v_mul_f32 v{T+1}, v{ACC}, v{ACC}')
    for r in range(1, 12):
        a(f'v_add_f32 v{T}, v{T}, v{ACC+r}')
        a(f'v_fmac_f32 v{T+1}, v{ACC+r}, v{ACC+r}')
    sum_q4(a, T, T+2, T+3)
    sum_q4(a, T+1, T+2, T+3)
    for i in range(6): a(f'v_cvt_pk_bf16_f32 v{T+4+i}, v{ACC+2*i}, v{ACC+2*i+1}')
    a('s_mul_i32 s34, s29, 20480')
    a('s_mul_i32 s35, s21, 2560')
    a('s_add_u32 s34, s34, s35')
    a('s_mul_i32 s35, s23, 1536')
    a('s_add_u32 s34, s34, s35')
    a(f's_add_u32 s34, s34, {WS_H}')
    a('v_lshrrev_b32 v11, 1, v6')
    a('v_lshlrev_b32 v11, 8, v11')
    a('v_lshl_add_u32 v11, v5, 4, v11')
    a('v_and_b32 v12, 1, v6')
    a('v_lshl_add_u32 v11, v12, 3, v11')
    a('s_lshl_b32 s33, s29, 7')
    a('s_lshl_b32 s35, s21, 1')
    a('s_add_u32 s35, s35, s23')
    a('s_lshl_b32 s35, s35, 14')
    a('s_add_u32 s33, s33, s35')
    a(f's_add_u32 s33, s33, {WS_ST2}')
    a('v_lshlrev_b32 v12, 3, v5')
    a('s_cmp_eq_u32 s23, 0')
    a(f's_cselect_b32 s35, s34, {0x7ffff000}')
    stores2(a, [f'buffer_store_dwordx2 {v(T+4,2)}, v11, s[8:11], s34 offen',
                f'buffer_store_dwordx2 {v(T+6,2)}, v11, s[8:11], s34 offen offset:512',
                f'buffer_store_dwordx2 {v(T+8,2)}, v11, s[8:11], s35 offen offset:1024',
                's_mov_b64 exec, 0xffff',
                f'buffer_store_dwordx2 {v(T,2)}, v12, s[8:11], s33 offen',
                's_mov_b64 exec, -1'])

F2_SLOT = {0: 81920, 1: 122880, 2: 0, 3: 40960, 4: 81920, 5: 122880, 6: 0}
def w2_setup(a):
    a(f's_lshr_b32 s21, s{SJ}, 2')
    a('s_lshr_b32 s22, s12, 2')
    a('s_and_b32 s23, s12, 3')
    a('s_mul_i32 s26, s23, 14')
    a('s_cmp_eq_u32 s23, 3')
    a('s_cselect_b32 s27, 1, 0')
    a('s_sub_u32 s26, s26, s27')
    a('s_mul_i32 s47, s21, 276480')
    a(f's_add_u32 s47, s47, {WS_W2}')
    a('s_add_u32 s48, s26, s22')
    a('s_lshl_b32 s48, s48, 10')
    a('s_add_u32 s47, s47, s48')
    a('s_lshl_b32 s48, s23, 1')
    a('s_add_u32 s48, s48, s22')
    a('s_mul_i32 s48, s48, 5120')
def w2_dma(st, ft):
    return [f's_add_u32 m0, s48, {F2_SLOT[st] + ft*1024}', f's_add_u32 s49, s47, {st*2048 + ft*55296}',
            'buffer_load_dwordx4 v10, s[8:11], s49 offen lds']

def far_touch(a, vt, vd):
    a(f'v_lshlrev_b32 v{vt}, 7, v2')
    a(f's_mul_i32 s56, s{SJ}, 69120')
    a('s_lshl_b32 s57, s12, 13')
    a('s_add_u32 s56, s56, s57')
    a(f's_add_u32 s56, s56, {WS_W2}')
    a(f'buffer_load_dword v{vd}, v{vt}, s[8:11], s56 offen')
    a(f's_mul_i32 s56, s{SG}, {16*55296}')
    a(f's_mul_i32 s57, s{SJ}, 27648')
    a('s_add_u32 s56, s56, s57')
    a('s_lshl_b32 s57, s12, 13')
    a('s_add_u32 s56, s56, s57')
    a(f's_add_u32 s56, s56, {WS_G}')
    a(f's_mul_i32 s57, s{SJ}, 69120')
    a(f's_add_u32 s57, s57, {WS_W2 + 65536}')
    a('s_cmp_eq_u32 s12, 4')
    a('s_cselect_b32 s56, s57, s56')
    a('s_cmp_gt_u32 s12, 4')
    a('s_cselect_b32 s56, 0x7ff00000, s56')
    a(f'buffer_load_dword v{vd}, v{vt}, s[8:11], s56 offen')

def phase_ffn1(a, vm_pre):
    ACC, FB = 72, 104
    CS, B1, ST = 192, 168, 128
    SEL, CSA, B1R = 120, 124, 184
    NS = 5
    a(f's_load_dwordx2 s[50:51], s[0:1], {A_B1}')
    a(f'v_mov_b32 v{SEL}, 0')
    a('s_mov_b32 s52, 0x00020001')
    a('s_mov_b32 s53, 0x00020001')
    a('v_mov_b32 v15, 0x3f803f80')
    a(f'v_cndmask_b32 v{SEL}, v{SEL}, v15, s[52:53]')
    for r in range(1, 4): a(f'v_mov_b32 v{SEL+r}, v{SEL}')
    for r in range(4): a(f'v_mov_b32 v{CSA+r}, 0')
    a('s_waitcnt lgkmcnt(0)')
    srd(a, 52, 50, F * 2)
    w2_setup(a)
    a(f's_and_b32 s13, s{SJ}, 1')
    a(f's_lshl_b32 s15, s{SG}, 1')
    a('s_add_u32 s13, s13, s15')
    a(f's_lshr_b32 s14, s{SJ}, 1')
    a('s_and_b32 s23, s12, 3')
    a('s_lshr_b32 s26, s12, 2')
    a('v_lshrrev_b32 v7, 4, v3')
    a('s_movk_i32 s17, 20480')
    a('v_mul_lo_u32 v7, v7, s17')
    a('v_and_b32 v6, 15, v3')
    a('v_lshl_add_u32 v7, v6, 4, v7')
    a('v_lshl_add_u32 v7, v4, 8, v7')
    a('s_lshl_b32 s20, s13, 3')
    a('s_lshl_b32 s19, s23, 1')
    a('s_add_u32 s20, s20, s19')
    a('s_mul_i32 s20, s20, 20480')
    a('s_lshl_b32 s19, s26, 10')
    a('s_add_u32 s20, s20, s19')
    a(f's_add_u32 s20, s20, {WS_H}')
    a('s_lshl_b32 s22, s23, 10')
    a('s_lshl_b32 s19, s26, 13')
    a('s_add_u32 s22, s22, s19')
    a('s_lshl_b32 s17, s26, 11')
    a('v_add_u32 v12, s17, v10')
    a('v_add_u32 v13, 0x10000, v12')
    vm = VM()
    def pre(): pass
    def mask():
        a(f's_and_b32 s40, s{SJ}, 1')
        a('s_cmp_eq_u32 s40, 0')
        a('s_mov_b32 s44, 0xcccccccc')
        a('s_cselect_b32 s44, 0x33333333, s44')
        a('s_mov_b32 s45, 0')
    sync(a, 1, 1, mask, pre)
    stamp(a, 10)
    nst = 10
    pend = [(st, i) for st in range(nst) for i in range(2)]
    def dma_one():
        st, i = pend.pop(0)
        a(f's_add_u32 m0, s22, {(st % NS)*16384 + i*4096}')
        a(f's_add_u32 s21, s20, {st*2048 + i*512}')
        a('buffer_load_dwordx4 v7, s[8:11], s21 offen sc1 lds')
        vm.issue(('h', st))
    for _ in range(2 * 3): dma_one()
    a('s_lshl_b32 s27, s13, 7')
    a('s_lshl_b32 s28, s26, 6')
    a('s_add_u32 s27, s27, s28')
    a('s_lshl_b32 s28, s13, 7')
    a('s_lshl_b32 s29, s23, 5')
    a('s_add_u32 s28, s28, s29')
    a('s_lshl_b32 s28, s28, 3')
    a(f's_add_u32 s28, s28, {WS_ST2}')
    a('v_lshlrev_b32 v14, 3, v3')
    a('v_lshl_add_u32 v14, v4, 17, v14')
    def st_load(q):
        a(f's_add_u32 s29, s28, {q*16384}')
        a(f'buffer_load_dwordx2 {v(ST+2*q,2)}, v14, s[8:11], s29 offen sc1')
        vm.issue('st')
    w1q = list(range(26, 40))
    def w1_load():
        s_ = w1q.pop(0)
        a(f's_add_u32 s40, s{S_W1}, {s_*512}')
        a(f'buffer_load_dwordx4 {v(w1reg(s_),4)}, v{V_W1}, s[8:11], s40 offen')
        vm.issue(('w1', s_))
    def reads(st, ks, buf):
        off = (st % NS) * 16384 + ks * 4096
        base = 12
        if off + 1024 >= 65536: off -= 65536; base = 13
        a(f'ds_read_b128 {v(FB+8*buf,4)}, v{base} offset:{off}')
        a(f'ds_read_b128 {v(FB+8*buf+4,4)}, v{base} offset:{off+1024}')
    def mfmas(s_, buf):
        for j in range(2):
            c = '0' if s_ == 0 else v(ACC+16*j, 16)
            a(f'v_mfma_f32_32x32x16_bf16 {v(ACC+16*j,16)}, {v(w1reg(s_),4)}, {v(FB+8*buf+4*j,4)}, {c}')
    F1S = 'f1stamp' in gen.EXP
    if F1S: stamp(a, 2)
    vm.wait(a, lambda x: x == ('h', 0))
    a('s_barrier')
    if F1S: stamp(a, 3)
    reads(0, 0, 0)
    buf = 0
    for st in range(nst):
        for ks in range(4):
            s_ = 4 * st + ks
            if ks < 3:
                reads(st, ks + 1, buf ^ 1)
                if s_ >= 26: vm.wait(a, lambda x: x == ('w1', s_), ' lgkmcnt(2)')
                else: a('s_waitcnt lgkmcnt(2)')
                mfmas(s_, buf)
            else:
                if st + 1 < nst:
                    a('s_waitcnt lgkmcnt(0)')
                    if F1S and st in (0, 2, 4, 6): stamp(a, {0: 4, 2: 7, 4: 9, 6: 13}[st])
                    vm.wait(a, lambda x: x == ('h', st + 1))
                    a('s_barrier')
                    if F1S and st in (0, 2, 4, 6): stamp(a, {0: 5, 2: 8, 4: 12, 6: 14}[st])
                    reads(st + 1, 0, buf ^ 1)
                else:
                    a('s_waitcnt lgkmcnt(0)')
                if s_ >= 26: vm.wait(a, lambda x: x == ('w1', s_))
                mfmas(s_, buf)
            lim = st + NS - 1 + (1 if ks == 3 else 0)
            if pend and pend[0][0] <= lim and (ks in (1, 3) or st == 0): dma_one()
            if ks in (0, 2) and w1q and st <= 6: w1_load()
            if st == 7 and ks < 4:
                st_load(2 * ks); st_load(2 * ks + 1)
            lc = lab('cs')
            a(f's_cmp_eq_u32 s26, {s_ & 1}')
            a(f's_cbranch_scc0 {lc}')
            a(f'v_mfma_f32_16x16x32_bf16 {v(CSA,4)}, {v(w1reg(s_),4)}, {v(SEL,4)}, {v(CSA,4)}')
            a.label(lc)
            if st == 8 and ks == 0:
                a('s_lshl_b32 s29, s14, 7')
                a('s_lshl_b32 s30, s23, 5')
                a('s_add_u32 s29, s29, s30')
                a('s_lshl_b32 s29, s29, 1')
                a('v_lshlrev_b32 v15, 4, v4')
                a(f'buffer_load_dwordx4 {v(B1R,4)}, v15, s[52:55], s29 offen'); vm.issue('cs')
                a(f'buffer_load_dwordx4 {v(B1R+4,4)}, v15, s[52:55], s29 offen offset:32'); vm.issue('cs')
            buf ^= 1
    stamp(a, 11)
    LST = 0
    l2 = lab('st')
    vm.wait(a, lambda x: x == 'cs')
    a('s_cmp_ge_u32 s12, 4')
    a(f's_cbranch_scc1 {l2}')
    b = ST
    for q in range(1, 8):
        a(f'v_add_f32 v{b}, v{b}, v{b+2*q}')
        a(f'v_add_f32 v{b+1}, v{b+1}, v{b+2*q+1}')
    for r in range(2):
        a(f'v_mov_b32 v{b+2}, v{b+r}'); a(f'v_mov_b32 v{b+3}, v{b+r}')
        a(f'v_permlane32_swap_b32 v{b+2}, v{b+3}')
        a(f'v_add_f32 v{b+r}, v{b+2}, v{b+3}')
    a(f'v_mul_f32 v{b}, {f2hex(1.0/640)}, v{b}')
    a(f'v_mul_f32 v{b+1}, {f2hex(1.0/640)}, v{b+1}')
    a(f'v_fma_f32 v{b+1}, -v{b}, v{b}, v{b+1}')
    a(f'v_add_f32 v{b+1}, 0x3727c5ac, v{b+1}')
    a(f'v_rsq_f32 v{b+1}, v{b+1}')
    a(f'v_mul_f32 v{b}, v{b}, v{b+1}')
    a('s_lshl_b32 s28, s12, 8')
    a('v_lshlrev_b32 v14, 3, v3')
    a('v_add_u32 v14, s28, v14')
    a(f'ds_write_b64 v14, {v(b,2)} offset:{LST}')
    a.label(l2)
    a('s_lshl_b32 s28, s23, 8')
    a('s_lshl_b32 s29, s26, 7')
    a('s_add_u32 s28, s28, s29')
    a('v_and_b32 v14, 1, v2')
    a('v_lshlrev_b32 v14, 6, v14')
    a('v_lshrrev_b32 v15, 4, v2')
    a('v_lshl_add_u32 v14, v15, 4, v14')
    a('v_add_u32 v14, s28, v14')
    a('s_mov_b32 s44, 0x00030003')
    a('s_mov_b32 s45, 0x00030003')
    a('s_mov_b64 exec, s[44:45]')
    a(f'ds_write_b128 v14, {v(CSA,4)} offset:{LST+1024}')
    a('s_mov_b64 exec, -1')
    a('s_waitcnt lgkmcnt(0)')
    a('s_barrier')
    a('s_lshl_b32 s28, s26, 9')
    a('v_lshlrev_b32 v14, 3, v3')
    a('v_add_u32 v14, s28, v14')
    a(f'ds_read_b64 {v(ST,2)}, v14 offset:{LST}')
    a(f'ds_read_b64 {v(ST+4,2)}, v14 offset:{LST+256}')
    a('s_lshl_b32 s28, s23, 8')
    a('v_lshlrev_b32 v14, 4, v4')
    a('v_add_u32 v14, s28, v14')
    for th_ in range(2):
        for g in range(4):
            a(f'ds_read_b128 {v(CS+32*th_+4*g,4)}, v14 offset:{LST + 1024 + th_*128 + g*32}')
    for q in range(8):
        a(f'v_lshlrev_b32 v{B1+2*q}, 16, v{B1R+q}')
        a(f'v_and_b32 v{B1+2*q+1}, 0xffff0000, v{B1R+q}')
    a('s_waitcnt lgkmcnt(0)')
    for r in range(16): a(f'v_add_f32 v{CS+r}, v{CS+r}, v{CS+32+r}')
    for j in range(2):
        b = ST + 4 * j
        for r in range(16):
            a(f'v_fma_f32 v{b+2}, -v{b}, v{CS+r}, v{B1+r}')
            a(f'v_fma_f32 v{ACC+16*j+r}, v{b+1}, v{ACC+16*j+r}, v{b+2}')
            a(f'v_max_f32 v{ACC+16*j+r}, 0, v{ACC+16*j+r}')
            a(f'v_mul_f32 v{ACC+16*j+r}, v{ACC+16*j+r}, v{ACC+16*j+r}')
    PK = 104
    for r in range(16):
        a(f'v_cvt_pk_bf16_f32 v{PK+r}, v{ACC+2*r}, v{ACC+2*r+1}')
    a('v_lshrrev_b32 v13, 4, v3')
    a('s_mov_b32 s18, 55296')
    a('v_mul_lo_u32 v13, v13, s18')
    a('v_and_b32 v14, 15, v3')
    a('v_lshl_add_u32 v13, v14, 4, v13')
    a('v_lshl_add_u32 v13, v4, 8, v13')
    a('s_lshr_b32 s18, s27, 4')
    a('s_mul_i32 s18, s18, 55296')
    a('s_lshl_b32 s17, s14, 2')
    a('s_add_u32 s17, s17, s23')
    a('s_cmp_ge_u32 s17, 54')
    a('s_cselect_b32 s19, 0x40000000, 0')
    a('s_lshl_b32 s17, s17, 10')
    a('s_add_u32 s17, s17, s18')
    a(f's_add_u32 s17, s17, {WS_G}')
    a('s_add_u32 s17, s17, s19')
    a(f's_add_u32 s18, s17, {2*55296}')
    stores2(a, [f'buffer_store_dwordx4 {v(PK,4)}, v13, s[8:11], s17 offen',
                f'buffer_store_dwordx4 {v(PK+4,4)}, v13, s[8:11], s17 offen offset:512',
                f'buffer_store_dwordx4 {v(PK+8,4)}, v13, s[8:11], s18 offen',
                f'buffer_store_dwordx4 {v(PK+12,4)}, v13, s[8:11], s18 offen offset:512'])

def phase_ffn2(a, L, published):
    NST = 7
    vm = VM()
    BF, ACC, AF, T = 16, 128, 168, 16
    def pre():
        for st in (0, 1):
            for ft in range(5):
                for x in w2_dma(st, ft): a(x)
    def mask():
        a(f's_and_b32 s40, s{SJ}, 2')
        a('s_cmp_eq_u32 s40, 0')
        a('s_mov_b32 s44, 0x0aaaaaaa')
        a('s_cselect_b32 s44, 0x05555555, s44')
        a('s_mov_b32 s45, 0')
    sync(a, 2 if published else None, 2, mask, pre)
    return vm

def ffn2_body(a, L):
    NST = 7
    vm = VM()
    for st in (0, 1):
        for ft in range(5): vm.issue(('w', st))
    BF, ACC, AF, T = 16, 128, 168, 16
    if 'f1stamp' not in gen.EXP: stamp(a, 12)
    a(f's_load_dwordx2 s[50:51], s[0:1], {A_B2}')
    a('s_waitcnt lgkmcnt(0)')
    srd(a, 52, 50, D * 2)
    a(f's_and_b32 s20, s{SJ}, 3')
    a(f's_lshr_b32 s21, s{SJ}, 2')
    a('s_lshr_b32 s22, s12, 2')
    a('s_and_b32 s23, s12, 3')
    a('s_mul_i32 s26, s23, 14')
    a('s_cmp_eq_u32 s23, 3')
    a('s_cselect_b32 s27, 1, 0')
    a('s_sub_u32 s26, s26, s27')
    a(f's_lshl_b32 s31, s{SG}, 4')
    a('s_lshl_b32 s32, s20, 2')
    a('s_add_u32 s31, s31, s32')
    a('s_lshl_b32 s32, s22, 1')
    a('s_add_u32 s32, s32, s31')
    a('s_mul_i32 s32, s32, 55296')
    a('s_lshl_b32 s33, s26, 10')
    a('s_add_u32 s32, s32, s33')
    a(f's_add_u32 s32, s32, {WS_G}')
    def bload(i):
        for j in range(2):
            a(f's_add_u32 s33, s32, {j*55296 + i*1024}')
            a(f'buffer_load_dwordx4 {v(BF+8*i+4*j,4)}, v10, s[8:11], s33 offen sc1')
            vm.issue(('b', i))
    for i in range(2): bload(i)
    bq = list(range(2, 14))
    wq = [(st, ft) for st in range(2, 7) for ft in range(5)]
    a('s_mul_i32 s34, s23, 10240')
    a('v_add_u32 v8, s34, v10')
    a('v_add_u32 v9, 0x10000, v8')
    a('v_add_u32 v11, 0x20000, v8')
    def areads(st, i, buf):
        for ft in range(5):
            off = F2_SLOT[st] + i * 5120 + ft * 1024
            base = {0: 8, 1: 9, 2: 11}[off >> 16]
            a(f'ds_read_b128 {v(AF+20*buf+4*ft,4)}, v{base} offset:{off & 65535}')
    for st in range(NST):
        vm.wait(a, lambda x: x == ('w', st) or x == ('b', min(2*st+1, 13)))
        a('s_barrier')
        areads(st, 0, 0)
        areads(st, 1, 1)
        for i in range(2):
            ks = 2 * st + i
            a(f's_waitcnt lgkmcnt({5 if i == 0 else 0})')
            last = (ks == 13)
            if last:
                a('s_cmp_ge_u32 s23, 2')
                a(f's_cbranch_scc1 {L}_skip')
            for ft in range(5):
                for j in range(2):
                    acc = v(ACC + 4 * (2 * ft + j), 4)
                    a(f'v_mfma_f32_16x16x32_bf16 {acc}, {v(AF+20*i+4*ft,4)}, {v(BF+8*ks+4*j,4)}, {"0" if ks == 0 else acc}')
                if not last:
                    nb = 1 if ft in (0, 3) else 0
                    if st == 0 and ft == 4: nb = 1
                    for _ in range(nb):
                        if bq and bq[0] <= ks + 6: bload(bq.pop(0))
                    nw = 2 if st <= 1 else 1
                    for _ in range(nw):
                        if wq and wq[0][0] - 3 <= st and (wq[0][0] <= 3 or wq[0][0] - 3 <= st):
                            x_ = wq.pop(0)
                            for x in w2_dma(*x_): a(x)
                            vm.issue(('w', x_[0]))
            if last: a.label(f'{L}_skip')
    if 'f1stamp' not in gen.EXP: stamp(a, 13)
    a('v_and_b32 v5, 15, v2')
    a('v_lshrrev_b32 v6, 4, v2')
    HR, BB = 228, 208
    a('s_and_b32 s33, s12, 3')
    a('s_add_u32 s33, s31, s33')
    a('s_mul_i32 s34, s33, 20480')
    a('s_mul_i32 s35, s21, 2560')
    a('s_add_u32 s34, s34, s35')
    a(f's_add_u32 s34, s34, {WS_H}')
    a('v_lshrrev_b32 v12, 1, v6')
    a('v_lshlrev_b32 v12, 8, v12')
    a('v_lshl_add_u32 v12, v5, 4, v12')
    a('v_and_b32 v13, 1, v6')
    a('v_lshl_add_u32 v12, v13, 3, v12')
    a('s_nop 7')
    for ft in range(5):
        a(f'buffer_load_dwordx2 {v(HR+2*ft,2)}, v12, s[8:11], s34 offen offset:{512*ft} sc1')
    a('s_mul_i32 s35, s21, 160')
    a('v_lshlrev_b32 v13, 3, v6')
    for ft in range(5):
        a(f'buffer_load_dwordx2 {v(BB+2*ft,2)}, v13, s[52:55], s35 offen offset:{32*ft}')
    a('s_barrier')
    ksplit_reduce(a, ACC, T, 12, 22, 23, 10, 14)
    a('s_cmp_ge_u32 s12, 4')
    a(f's_cbranch_scc1 {L}_fin')
    ksplit_gather(a, T, 12, 10, 14)
    a('s_waitcnt vmcnt(0)')
    for ft in range(5):
        for h2 in range(2):
            a(f'v_lshlrev_b32 v{T+20}, 16, v{HR+2*ft+h2}')
            a(f'v_and_b32 v{T+21}, 0xffff0000, v{HR+2*ft+h2}')
            a(f'v_lshlrev_b32 v{T+22}, 16, v{BB+2*ft+h2}')
            a(f'v_and_b32 v{T+23}, 0xffff0000, v{BB+2*ft+h2}')
            a(f'v_add_f32 v{T+4*ft+2*h2}, v{T+4*ft+2*h2}, v{T+22}')
            a(f'v_add_f32 v{T+4*ft+2*h2+1}, v{T+4*ft+2*h2+1}, v{T+23}')
            a(f'v_add_f32 v{T+4*ft+2*h2}, v{T+4*ft+2*h2}, v{T+20}')
            a(f'v_add_f32 v{T+4*ft+2*h2+1}, v{T+4*ft+2*h2+1}, v{T+21}')
    for i in range(10):
        a(f'v_cvt_pk_bf16_f32 v{T+24+i}, v{T+2*i}, v{T+2*i+1}')
    a('s_lshl_b32 s33, s33, 4')
    a('v_add_u32 v7, s33, v5')
    a('s_movk_i32 s34, 1280')
    a('v_mul_lo_u32 v7, v7, s34')
    a('v_lshl_add_u32 v7, v6, 3, v7')
    a('s_mul_i32 s34, s21, 160')
    for ft in range(5):
        a(f'buffer_store_dwordx2 {v(T+24+2*ft,2)}, v7, s[76:79], s34 offen offset:{32*ft}')

def kf():
    a = Asm()
    L = 'kf_kernel'
    kernel_begin(a, L)
    a('s_cmp_ge_u32 s2, 256')
    a(f's_cbranch_scc1 {L}_end')
    stamp(a, 0, True); stamp(a, 1)
    if 'dbg' in gen.EXP:
        a('s_memrealtime s[90:91]'); a('s_memtime s[92:93]'); a(f's_load_dwordx2 s[94:95], s[0:1], {A_DBG}')
    a(f's_load_dwordx2 s[4:5], s[0:1], {A_WS}')
    a(f's_load_dwordx2 s[68:69], s[0:1], {A_X}')
    a(f's_load_dwordx2 s[70:71], s[0:1], {A_OUT}')
    a(f's_and_b32 s{SG}, s2, 7')
    a(f's_lshr_b32 s{SJ}, s2, 3')
    a(f's_mov_b32 s{SH}, s{SJ}')
    a(f's_mov_b32 s{SR}, s{SG}')
    a('v_lshrrev_b32 v1, 6, v0')
    a('v_and_b32 v2, 63, v0')
    a('v_readfirstlane_b32 s12, v1')
    a('v_and_b32 v3, 31, v2')
    a('v_lshrrev_b32 v4, 5, v2')
    a(f's_getreg_b32 s{SPURE}, hwreg(HW_REG_XCC_ID, 0, 4)')
    a(f's_add_u32 s{SPURE}, s{SPURE}, 1')
    a('s_waitcnt lgkmcnt(0)')
    srd(a, 8, 4, WS_END)
    srd(a, 72, 68, S * D * 2)
    srd(a, 76, 70, S * D * 2)
    l = lab('xp')
    a('s_cmp_lg_u32 s12, 0')
    a(f's_cbranch_scc1 {l}')
    a(f's_lshl_b32 s40, s{SG}, 7')
    a(f's_lshl_b32 s41, s{SJ}, 2')
    a('s_add_u32 s40, s40, s41')
    a(f's_add_u32 s40, s40, {WS_XT}')
    a('v_mov_b32 v14, 0')
    a(f'v_mov_b32 v15, s{SPURE}')
    a('s_mov_b64 exec, 1')
    a('buffer_store_dword v15, v14, s[8:11], s40 offen sc1')
    a('s_mov_b64 exec, -1')
    a.label(l)
    if 'nocodepf' not in gen.EXP:
        a('s_getpc_b64 s[40:41]')
        a.label('.Lpc_here')
        a(f's_sub_u32 s40, s40, (.Lpc_here - {L})')
        a('s_subb_u32 s41, s41, 0')
        a('s_lshl_b32 s42, s12, 12')
        a('v_lshlrev_b32 v14, 6, v2')
        a('v_add_u32 v14, s42, v14')
        a(f's_mov_b32 s42, (.Lkf_last - {L})')
        a('v_add_u32 v16, 0x8000, v14')
        a('v_min_u32 v14, s42, v14')
        a('v_min_u32 v16, s42, v16')
        a('v_mov_b32 v15, s41')
        a('v_mov_b32 v17, s41')
        a('v_add_co_u32 v14, vcc, s40, v14')
        a('v_addc_co_u32 v15, vcc, 0, v15, vcc')
        a('v_add_co_u32 v16, vcc, s40, v16')
        a('v_addc_co_u32 v17, vcc, 0, v17, vcc')
        a('global_load_dword v151, v[14:15], off')
        a('global_load_dword v151, v[16:17], off')
    stamp(a, 2)
    phase_attn(a)
    stamp(a, 4)
    phase_oproj(a)
    stamp(a, 5)
    a(f's_cmp_ge_u32 s{SJ}, 28')
    a(f's_cbranch_scc1 {L}_idle')
    phase_ffn1(a, None)
    phase_ffn2(a, L, True)
    a(f's_branch {L}_f2')
    a.label(f'{L}_idle')
    a('s_waitcnt vmcnt(0)')
    a('s_barrier')
    li = lab('id')
    a('s_cmp_lg_u32 s12, 0')
    a(f's_cbranch_scc1 {li}')
    flag_store(a, 1, 14)
    a.label(li)
    w2_setup(a)
    a('s_waitcnt vmcnt(0)')
    phase_ffn2(a, L, False)
    a.label(f'{L}_f2')
    ffn2_body(a, L)
    a.label(f'{L}_fin')
    if 'f1stamp' not in gen.EXP: stamp(a, 14)
    if 'dbg' in gen.EXP:
        a('s_waitcnt vmcnt(0)')
        a('s_memrealtime s[96:97]'); a('s_memtime s[86:87]'); a('s_waitcnt lgkmcnt(0)')
        ldb = lab('db')
        a('s_cmp_lg_u32 s2, 0'); a(f's_cbranch_scc1 {ldb}'); a('s_cmp_lg_u32 s12, 0'); a(f's_cbranch_scc1 {ldb}')
        a('s_sub_u32 s96, s96, s90'); a('s_sub_u32 s86, s86, s92')
        a('v_mov_b32 v0, 0'); a('v_mov_b32 v2, s96'); a('v_mov_b32 v3, s86'); a('v_mov_b32 v4, s90'); a('v_mov_b32 v5, 0')
        a('global_store_dwordx4 v0, v[2:5], s[94:95] offset:16')
        a(f's_mov_b32 s86, {WS_PROF}')
        a('buffer_load_dwordx4 v[6:9], v0, s[8:11], s86 offen')
        a('s_waitcnt vmcnt(0)')
        a('global_store_dwordx4 v0, v[6:9], s[94:95]')
        a.label(ldb)
    if gen.PROF: a('s_waitcnt vmcnt(0)')
    stamp(a, 6, True)
    stamp_flush(a, 2, 15, 8, 12)
    a.label(f'{L}_end')
    a.label('.Lkf_last')
    a('s_endpgm')
    return a, descriptor(L, 256, 102), f'; @launch kernel={L} grid=(256,1,1) block=(512,1,1) lds=163840'

if __name__ == '__main__':
    if 'prof' in sys.argv: gen.PROF = True
    for x in sys.argv[2:]:
        if x.startswith('x:'): gen.EXP.add(x[2:])
    out = sys.argv[1]
    import gen4
    open(out, 'w').write(build([k0, k1, kf] if 'old' in gen.EXP else [gen4.k1p, kf]))
    print('wrote', out)
```

```python
import sys
sys.path.insert(0, 'dev')
import gen
from gen import *
from gen2 import lab
from gen3 import VM
from asmlib import *

PK_LDS = 131072
TB_LDS = PK_LDS + 24576
ST_T = TB_LDS
CS_T = TB_LDS + 4096
VT_T = PK_LDS

def k1p():
    WT = ' sc1' if 'k1sc1' in gen.EXP else (' nt' if 'k1nt' in gen.EXP else (' sc0 sc1' if 'k1sc01' in gen.EXP else ''))
    WP = ' sc1' if ('k1sc1' in gen.EXP or 'k1psc1' in gen.EXP) else ''
    a = Asm()
    L = 'k1_kernel'
    kernel_begin(a, L)
    a('s_cmp_ge_u32 s2, 256')
    a(f's_cbranch_scc1 {L}_end')
    stamp(a, 0, True); stamp(a, 1)
    if 'dbg' in gen.EXP:
        a('s_memrealtime s[90:91]'); a('s_memtime s[92:93]'); a(f's_load_dwordx2 s[94:95], s[0:1], {A_DBG}')
    a(f's_load_dwordx2 s[4:5], s[0:1], {A_WS}')
    a(f's_load_dwordx2 s[24:25], s[0:1], {A_X}')
    a(f's_load_dwordx2 s[26:27], s[0:1], {A_WQKV}')
    a(f's_load_dwordx2 s[28:29], s[0:1], {A_WO}')
    a(f's_load_dwordx2 s[30:31], s[0:1], {A_W1}')
    a(f's_load_dwordx2 s[32:33], s[0:1], {A_W2}')
    a('s_and_b32 s15, s2, 7')
    a('s_lshr_b32 s16, s2, 3')
    a('s_and_b32 s13, s15, 3')
    a('s_lshl_b32 s13, s13, 2')
    a('s_and_b32 s17, s16, 3')
    a('s_add_u32 s13, s13, s17')
    a('s_lshr_b32 s14, s15, 2')
    a('s_lshl_b32 s14, s14, 3')
    a('s_lshr_b32 s17, s16, 2')
    a('s_add_u32 s14, s14, s17')
    a('v_lshrrev_b32 v1, 6, v0')
    a('v_and_b32 v2, 63, v0')
    a('v_readfirstlane_b32 s12, v1')
    a('v_and_b32 v3, 31, v2')
    a('v_lshrrev_b32 v4, 5, v2')
    a('v_lshlrev_b32 v10, 4, v2')
    a('s_and_b32 s23, s12, 3')
    a('s_lshr_b32 s34, s12, 2')
    a('s_waitcnt lgkmcnt(0)')
    srd(a, 8, 4, WS_END)
    srd(a, 16 + 40, 24, S * D * 2)
    srd(a, 60, 26, D * 3 * D * 2)
    a('v_lshrrev_b32 v5, 3, v2')
    a('s_lshl_b32 s40, s12, 3')
    a('v_add_u32 v5, s40, v5')
    a('v_lshrrev_b32 v6, 4, v2')
    a('s_lshl_b32 s40, s12, 2')
    a('v_add_u32 v7, s40, v6')
    a('v_and_b32 v7, 7, v7')
    a('v_and_b32 v8, 7, v2')
    a('v_xor_b32 v7, v7, v8')
    a('s_movk_i32 s40, 1280')
    a('v_mul_lo_u32 v5, v5, s40')
    a('v_lshl_add_u32 v5, v7, 4, v5')
    a('s_mul_i32 s35, s13, 163840')
    a('s_lshl_b32 s40, s12, 2')
    a('v_add_u32 v7, s40, v6')
    a('s_movk_i32 s40, 3840')
    a('v_mul_lo_u32 v7, v7, s40')
    a('v_and_b32 v8, 15, v2')
    a('v_lshlrev_b32 v9, 2, v6')
    a('v_xor_b32 v8, v8, v9')
    a('v_lshl_add_u32 v6, v8, 4, v7')
    a('s_lshl_b32 s36, s14, 8')
    a('s_lshl_b32 s37, s12, 10')
    def decode():
        lo, l1_, l2_, ld = lab('pk'), lab('pk'), lab('pk'), lab('pk')
        a('s_cmp_lt_u32 s2, 40')
        a(f's_cbranch_scc0 {l1_}')
        srd(a, 64, 28, D * D * 2)
        a(f's_mul_hi_u32 s46, s2, {magic(10)}')
        a('s_mul_i32 s47, s46, 10')
        a('s_sub_u32 s47, s2, s47')
        a('s_movk_i32 s41, 160'); a('s_movk_i32 s42, 1280'); a(f's_mov_b32 s44, {WS_WO}'); a('s_movk_i32 s45, 20480')
        a(f's_branch {ld}')
        a.label(l1_)
        a('s_cmp_lt_u32 s2, 148')
        a(f's_cbranch_scc0 {l2_}')
        srd(a, 64, 30, D * F * 2)
        a('s_sub_u32 s40, s2, 40')
        a(f's_mul_hi_u32 s46, s40, {magic(27)}')
        a('s_mul_i32 s47, s46, 27')
        a('s_sub_u32 s47, s40, s47')
        a('s_movk_i32 s41, 160'); a('s_movk_i32 s42, 3456'); a(f's_mov_b32 s44, {WS_W1}'); a('s_movk_i32 s45, 20480')
        a(f's_branch {ld}')
        a.label(l2_)
        srd(a, 64, 32, F * D * 2)
        a('s_sub_u32 s40, s2, 148')
        a(f's_mul_hi_u32 s46, s40, {magic(10)}')
        a('s_mul_i32 s47, s46, 10')
        a('s_sub_u32 s47, s40, s47')
        a('s_movk_i32 s41, 192'); a('s_movk_i32 s42, 1280'); a(f's_mov_b32 s44, {WS_W2}'); a('s_mov_b32 s45, 55296')
        a.label(ld)
        a('s_mul_i32 s43, s46, s41')
        a('s_lshr_b32 s48, s43, 3')
        a('s_mul_i32 s43, s43, s42')
        a('s_lshl_b32 s40, s47, 7')
        a('s_add_u32 s43, s43, s40')
        a('s_lshl_b32 s40, s47, 2')
        a('s_mul_i32 s40, s40, s45')
        a('s_add_u32 s44, s44, s40')
        a('s_lshl_b32 s40, s48, 8')
        a('s_add_u32 s44, s44, s40')
    vm = VM()
    NS = 4
    def dma(st, k):
        slot = (st % NS) * 32768
        if k < 2:
            a(f's_add_u32 m0, s37, {slot + k*8192}')
            a(f's_add_u32 s38, s35, {st*128 + k*64*1280}')
            a('buffer_load_dwordx4 v5, s[56:59], s38 offen lds')
        else:
            a(f's_add_u32 m0, s37, {slot + 16384 + (k-2)*8192}')
            a(f's_add_u32 s38, s36, {(st*64 + (k-2)*32)*3840}')
            a('buffer_load_dwordx4 v6, s[60:63], s38 offen lds')
        vm.issue(('r', st))
    lz = f'{L}_nogemm'
    a('s_cmp_ge_u32 s14, 15')
    a(f's_cbranch_scc1 {lz}')
    for st in range(2):
        for k in range(4): dma(st, k)
    def pack_dma():
        a('v_lshrrev_b32 v11, 3, v2')
        a('s_lshl_b32 s40, s12, 3')
        a('v_add_u32 v11, s40, v11')
        a('v_mul_lo_u32 v11, v11, s42')
        a('v_and_b32 v12, 7, v2')
        a('v_lshl_add_u32 v11, v12, 4, v11')
        a('s_cmp_lt_u32 s2, 238')
        a('s_cselect_b32 s49, s43, 0x7ff00000')
        a('s_lshl_b32 s50, s42, 6')
        for i in range(3):
            a(f's_add_u32 m0, s37, {PK_LDS + i*8192}')
            a('s_nop 0')
            a('buffer_load_dwordx4 v11, s[64:67], s49 offen lds')
            if i < 2: a('s_add_u32 s49, s49, s50')
    def pack_work(T):
        a('v_lshrrev_b32 v12, 4, v2')
        a('v_lshrrev_b32 v13, 2, v2')
        a('v_and_b32 v13, 3, v13')
        a('v_lshl_add_u32 v12, v12, 3, v13')
        a('v_lshlrev_b32 v12, 7, v12')
        a('v_and_b32 v13, 3, v2')
        a('v_lshl_add_u32 v12, v13, 3, v12')
        a('s_and_b32 s40, s12, 3')
        a('s_lshl_b32 s49, s40, 5')
        a('s_lshr_b32 s50, s12, 2')
        a('s_lshl_b32 s51, s50, 12')
        a('s_add_u32 s49, s49, s51')
        a(f's_add_u32 s49, s49, {PK_LDS}')
        a('v_add_u32 v12, s49, v12')
        for i in range(3):
            a(f'ds_read_b64_tr_b16 {v(T+4*i,2)}, v12 offset:{i*8192}')
            a(f'ds_read_b64_tr_b16 {v(T+4*i+2,2)}, v12 offset:{i*8192 + 512}')
        a('s_mul_i32 s49, s40, s45')
        a('s_add_u32 s49, s49, s44')
        a('s_waitcnt lgkmcnt(0)')
        for i in range(3):
            a(f's_add_u32 s51, s50, {2*i}')
            a('s_lshl_b32 s52, s51, 5')
            a('s_cmp_lt_u32 s52, s41')
            a('s_cselect_b32 s53, 1, 0')
            a('s_cmp_lt_u32 s2, 238')
            a('s_cselect_b32 s53, s53, 0')
            a('s_lshl_b32 s51, s51, 10')
            a('s_add_u32 s51, s51, s49')
            a('s_cmp_eq_u32 s53, 1')
            a('s_cselect_b32 s51, s51, 0x7ff00000')
            a(f'buffer_store_dwordx4 {v(T+4*i,4)}, v10, s[8:11], s51 offen' + WP)
    VB = 14
    a('v_lshrrev_b32 v7, 1, v3')
    a('v_and_b32 v7, 7, v7')
    a('s_lshl_b32 s40, s34, 13')
    a('v_lshlrev_b32 v8, 7, v3')
    a('v_add_u32 v8, s40, v8')
    for ks in range(4):
        a(f'v_or_b32 v9, {2*ks}, v4')
        a('v_xor_b32 v9, v9, v7')
        a(f'v_lshl_add_u32 v{VB+ks}, v9, 4, v8')
    VA = 18
    a('v_lshrrev_b32 v7, 2, v2')
    a('v_and_b32 v7, 3, v7')
    a('v_and_b32 v8, 3, v2')
    a('v_and_b32 v9, 1, v8')
    a('v_lshlrev_b32 v9, 1, v9')
    a('v_lshrrev_b32 v11, 1, v8')
    a('v_or_b32 v9, v9, v11')
    a('s_cmp_lt_u32 s14, 10')
    a('s_cselect_b64 vcc, -1, 0')
    a('v_cndmask_b32 v8, v8, v9, vcc')
    a('v_lshrrev_b32 v9, 4, v2')
    a('v_and_b32 v9, 1, v9')
    a('v_lshl_add_u32 v8, v9, 2, v8')
    a('v_lshrrev_b32 v9, 1, v8')
    a('s_lshl_b32 s40, s23, 2')
    a('v_add_u32 v9, s40, v9')
    a('v_lshlrev_b32 v11, 2, v7')
    a('v_xor_b32 v9, v9, v11')
    a('v_lshlrev_b32 v9, 4, v9')
    a('v_and_b32 v8, 1, v8')
    a('v_lshl_add_u32 v9, v8, 3, v9')
    a('v_lshl_add_u32 v8, v4, 3, v7')
    a(f'v_lshl_add_u32 v{VA}, v8, 8, v9')
    a(f'v_add_u32 v{VA}, 16384, v{VA}')
    a(f'v_add_u32 v{VA+1}, 0x10000, v{VA}')
    for ks in range(4): a(f'v_add_u32 v{20+ks}, 0x10000, v{VB+ks}')
    SEL, CSA, S1 = 24, 28, 32
    a(f'v_mov_b32 v{SEL}, 0')
    a('s_mov_b32 s52, 0x00020001')
    a('s_mov_b32 s53, 0x00020001')
    a('v_mov_b32 v7, 0x3f803f80')
    a(f'v_cndmask_b32 v{SEL}, v{SEL}, v7, s[52:53]')
    for r in range(1, 4): a(f'v_mov_b32 v{SEL+r}, v{SEL}')
    for r in range(4): a(f'v_mov_b32 v{CSA+r}, 0')
    for r in range(4): a(f'v_mov_b32 v{S1+r}, 0')
    ACC, FA, FB, T = 40, 72, 80, 96
    XS = 136
    a('s_cmp_eq_u32 s23, 1'); a('s_cselect_b64 vcc, -1, 0'); a(f'v_cndmask_b32 v144, v{VB}, v{VB+1}, vcc')
    a('s_cmp_eq_u32 s23, 2'); a('s_cselect_b64 vcc, -1, 0'); a(f'v_cndmask_b32 v144, v144, v{VB+2}, vcc')
    a('s_cmp_eq_u32 s23, 3'); a('s_cselect_b64 vcc, -1, 0'); a(f'v_cndmask_b32 v144, v144, v{VB+3}, vcc')
    a('v_add_u32 v145, 0x10000, v144')
    def reads(st, ks, buf):
        off = (st % NS) * 32768
        hi = off >= 65536
        if hi: off -= 65536
        TR = 'ds_read_b64' if 'k1notr' in gen.EXP else 'ds_read_b64_tr_b16'
        a(f'{TR} {v(FA+4*buf,2)}, v{VA+1 if hi else VA} offset:{off + ks*4096}')
        a(f'{TR} {v(FA+4*buf+2,2)}, v{VA+1 if hi else VA} offset:{off + ks*4096 + 1024}')
        bb = (20 if hi else VB) + ks
        a(f'ds_read_b128 {v(FB+8*buf,4)}, v{bb} offset:{off}')
        a(f'ds_read_b128 {v(FB+8*buf+4,4)}, v{bb} offset:{off + 4096}')
    def stats_ops():
        out = []
        for j in range(2):
            for r in range(4):
                src = XS + 4 * j + r
                t = T + 2 * (r & 1)
                out += [f'v_lshlrev_b32 v{t}, 16, v{src}', f'v_and_b32 v{t+1}, 0xffff0000, v{src}',
                        f'v_add_f32 v{S1+j}, v{S1+j}, v{t}', f'v_fmac_f32 v{S1+2+j}, v{t}, v{t}',
                        f'v_add_f32 v{S1+j}, v{S1+j}, v{t+1}', f'v_fmac_f32 v{S1+2+j}, v{t+1}, v{t+1}']
        return out
    def xs_reads(st):
        off = (st % NS) * 32768
        hi = off >= 65536
        if hi: off -= 65536
        a(f'ds_read_b128 {v(XS,4)}, v{145 if hi else 144} offset:{off}')
        a(f'ds_read_b128 {v(XS+4,4)}, v{145 if hi else 144} offset:{off + 4096}')
    def main(swap):
        pend = [(st, k) for st in range(2, 10) for k in range(4)]
        vm2 = VM(); vm2.ops = list(vm.ops)
        def dma_next():
            st, k = pend.pop(0)
            slot = (st % NS) * 32768
            if k < 2:
                a(f's_add_u32 m0, s37, {slot + k*8192}')
                a(f's_add_u32 s38, s35, {st*128 + k*64*1280}')
                a('buffer_load_dwordx4 v5, s[56:59], s38 offen lds')
            else:
                a(f's_add_u32 m0, s37, {slot + 16384 + (k-2)*8192}')
                a(f's_add_u32 s38, s36, {(st*64 + (k-2)*32)*3840}')
                a('buffer_load_dwordx4 v6, s[60:63], s38 offen lds')
            vm2.issue(('r', st))
        stamp(a, 2)
        vm2.wait(a, lambda x: x == ('r', 0))
        a('s_barrier')
        stamp(a, 3)
        reads(0, 0, 0)
        buf = 0
        for st in range(10):
            so = stats_ops()
            for ks in range(4):
                if ks == 0:
                    xs_reads(st)
                    reads(st, 1, buf ^ 1)
                    a('s_waitcnt lgkmcnt(6)')
                elif ks < 3:
                    reads(st, ks + 1, buf ^ 1)
                    a('s_waitcnt lgkmcnt(4)')
                else:
                    a('s_waitcnt lgkmcnt(0)')
                    if st + 1 < 10:
                        if st == 3 and 'k1nopk' not in gen.EXP: vm2.wait(a, lambda x: x == ('r', 4) or x == 'pk')
                        else: vm2.wait(a, lambda x: x == ('r', st + 1))
                        a('s_barrier')
                        reads(st + 1, 0, buf ^ 1)
                part = so[(ks - 1) * 16:ks * 16] if ks >= 1 else []
                if 'k1nostat' in gen.EXP: part = []
                for j in range(2):
                    A_ = v(FA+4*buf, 4); B_ = v(FB+8*buf+4*j, 4)
                    c = '0' if (st == 0 and ks == 0) else v(ACC+16*j, 16)
                    if swap: a(f'v_mfma_f32_32x32x16_bf16 {v(ACC+16*j,16)}, {B_}, {A_}, {c}')
                    else: a(f'v_mfma_f32_32x32x16_bf16 {v(ACC+16*j,16)}, {A_}, {B_}, {c}')
                    for x in part[j*6:j*6+6]: a(x)
                if 'k1nocs' not in gen.EXP: a(f'v_mfma_f32_16x16x32_bf16 {v(CSA,4)}, {v(FA+4*buf,4)}, {v(SEL,4)}, {v(CSA,4)}')
                for x in part[12:]: a(x)
                lim = st + NS - 1 + (1 if ks == 3 else 0)
                nq = 2 if st == 0 else 1
                for _ in range(nq):
                    if pend and pend[0][0] <= lim: dma_next()
                if st == 1 and ks == 0 and 'k1nopk' not in gen.EXP:
                    decode()
                    pack_dma()
                    for _ in range(3): vm2.issue('pk')
                if st == 4 and ks == 1 and 'k1nopk' not in gen.EXP:
                    pack_work(T + 4)
                    for _ in range(3): vm2.issue('pks')
                buf ^= 1
        a('s_nop 15')
        stamp(a, 4)
        for r in range(4):
            a(f'v_mov_b32 v{T}, v{S1+r}'); a(f'v_mov_b32 v{T+1}, v{S1+r}')
            a(f'v_permlane32_swap_b32 v{T}, v{T+1}')
            a(f'v_add_f32 v{S1+r}, v{T}, v{T+1}')
        a('s_lshl_b32 s40, s34, 11')
        a('s_lshl_b32 s41, s23, 8')
        a('s_add_u32 s40, s40, s41')
        a(f's_add_u32 s40, s40, {ST_T}')
        a('v_lshlrev_b32 v7, 3, v3')
        a('v_add_u32 v7, s40, v7')
        for j in range(2):
            a(f'v_mov_b32 v{T+2*j}, v{S1+j}'); a(f'v_mov_b32 v{T+2*j+1}, v{S1+2+j}')
            a(f'ds_write_b64 v7, {v(T+2*j,2)} offset:{j*1024}')
        a('s_lshl_b32 s40, s23, 8')
        a('s_lshl_b32 s41, s34, 7')
        a('s_add_u32 s40, s40, s41')
        a(f's_add_u32 s40, s40, {CS_T}')
        a('v_and_b32 v8, 1, v2')
        a('v_lshlrev_b32 v8, 6, v8')
        a('v_lshrrev_b32 v9, 4, v2')
        a('v_lshl_add_u32 v8, v9, 4, v8')
        a('v_add_u32 v8, s40, v8')
        a('s_mov_b32 s52, 0x00030003')
        a('s_mov_b32 s53, 0x00030003')
        a('s_mov_b64 exec, s[52:53]')
        a(f'ds_write_b128 v8, {v(CSA,4)}')
        a('s_mov_b64 exec, -1')
        a('s_waitcnt lgkmcnt(0)')
        a('s_barrier')
        a('s_lshl_b32 s40, s34, 11')
        a(f's_add_u32 s40, s40, {ST_T}')
        a('v_lshlrev_b32 v7, 3, v3')
        a('v_add_u32 v7, s40, v7')
        P = T + 4
        for j in range(2):
            for f_ in range(4):
                a(f'ds_read_b64 {v(P+8*j+2*f_,2)}, v7 offset:{j*1024 + f_*256}')
        a('s_waitcnt lgkmcnt(0)')
        for j in range(2):
            b = P + 8 * j
            for f_ in range(1, 4):
                a(f'v_add_f32 v{b}, v{b}, v{b+2*f_}')
                a(f'v_add_f32 v{b+1}, v{b+1}, v{b+2*f_+1}')
            a(f'v_mul_f32 v{b}, {f2hex(1.0/640)}, v{b}')
            a(f'v_mul_f32 v{b+1}, {f2hex(1.0/640)}, v{b+1}')
            a(f'v_fma_f32 v{b+1}, -v{b}, v{b}, v{b+1}')
            a(f'v_add_f32 v{b+1}, 0x3727c5ac, v{b+1}')
            a(f'v_rsq_f32 v{b+1}, v{b+1}')
            a(f'v_mul_f32 v{b}, v{b}, v{b+1}')
        return P
    a('s_cmp_ge_u32 s14, 10')
    a(f's_cbranch_scc1 {L}_v')
    P = main(False)
    C = 120
    a('s_lshl_b32 s40, s23, 8')
    a(f's_add_u32 s40, s40, {CS_T}')
    a('v_lshlrev_b32 v7, 4, v4')
    a('v_add_u32 v7, s40, v7')
    for g in range(4):
        a(f'ds_read_b128 {v(C+4*g,4)}, v7 offset:{g*32}')
    a('s_waitcnt lgkmcnt(0)')
    a(f's_mov_b32 s40, {f2hex(QSCALE)}')
    a('s_cmp_lt_u32 s14, 5')
    a('s_cselect_b32 s40, s40, 1.0')
    for j in range(2):
        a(f'v_mul_f32 v{P+8*j}, s40, v{P+8*j}')
        a(f'v_mul_f32 v{P+8*j+1}, s40, v{P+8*j+1}')
    for j in range(2):
        for r in range(16):
            a(f'v_mul_f32 v{T}, v{P+8*j}, v{C+r}')
            a(f'v_fma_f32 v{ACC+16*j+r}, v{P+8*j+1}, v{ACC+16*j+r}, -v{T}')
    PK = 72
    for r in range(16):
        a(f'v_cvt_pk_bf16_f32 v{PK+r}, v{ACC+2*r}, v{ACC+2*r+1}')
    a('v_lshrrev_b32 v13, 4, v3')
    a('s_movk_i32 s17, 20480')
    a('v_mul_lo_u32 v13, v13, s17')
    a('v_and_b32 v14, 15, v3')
    a('v_lshl_add_u32 v13, v14, 4, v13')
    a('v_lshl_add_u32 v13, v4, 8, v13')
    a('s_lshl_b32 s17, s13, 3')
    a('s_lshl_b32 s18, s34, 2')
    a('s_add_u32 s17, s17, s18')
    a('s_mul_i32 s17, s17, 20480')
    a(f's_mov_b32 s18, {WS_Q}')
    a(f's_mov_b32 s19, {WS_K - 80*256}')
    a('s_cmp_lt_u32 s14, 5')
    a('s_cselect_b32 s18, s18, s19')
    a('s_add_u32 s17, s17, s18')
    a('s_lshl_b32 s18, s14, 12')
    a('s_add_u32 s17, s17, s18')
    a('s_lshl_b32 s18, s23, 10')
    a('s_add_u32 s17, s17, s18')
    for j in range(2):
        a(f'buffer_store_dwordx4 {v(PK+8*j,4)}, v13, s[8:11], s17 offen' + WT)
        a(f'buffer_store_dwordx4 {v(PK+8*j+4,4)}, v13, s[8:11], s17 offen offset:512' + WT)
        if j == 0: a(f's_add_u32 s17, s17, {2*20480}')
    stamp(a, 5)
    if gen.PROF: a('s_waitcnt vmcnt(0)')
    stamp(a, 6); stamp(a, 7, True)
    stamp_flush(a, 1, 8, 8, 12)
    if 'dbg' in gen.EXP:
        a('s_waitcnt vmcnt(0)')
        a('s_memrealtime s[96:97]'); a('s_memtime s[98:99]'); a('s_waitcnt lgkmcnt(0)')
        ldb = lab('db')
        a('s_cmp_lg_u32 s2, 0'); a(f's_cbranch_scc1 {ldb}'); a('s_cmp_lg_u32 s12, 0'); a(f's_cbranch_scc1 {ldb}')
        a('s_sub_u32 s96, s96, s90'); a('s_sub_u32 s98, s98, s92')
        a('v_mov_b32 v0, 0'); a('v_mov_b32 v2, s96'); a('v_mov_b32 v3, s98'); a('v_mov_b32 v4, s90'); a('v_mov_b32 v5, 0')
        a(f's_mov_b32 s94, {WS_PROF}'); a('buffer_store_dwordx4 v[2:5], v0, s[8:11], s94 offen')
        a.label(ldb)
    a('s_endpgm')
    a.label(f'{L}_v')
    P = main(True)
    a('s_lshl_b32 s40, s12, 9')
    a(f's_add_u32 s40, s40, {VT_T}')
    a('v_lshlrev_b32 v7, 2, v3')
    a('v_add_u32 v7, s40, v7')
    for j in range(2):
        a(f'ds_write_b32 v7, v{P+8*j} offset:{j*256}')
        a(f'ds_write_b32 v7, v{P+8*j+1} offset:{j*256 + 128}')
    a('s_lshl_b32 s41, s23, 8')
    a(f's_add_u32 s41, s41, {CS_T}')
    a('v_lshlrev_b32 v8, 2, v3')
    a('v_add_u32 v8, s41, v8')
    a(f'ds_read_b32 v{T}, v8')
    a('s_waitcnt lgkmcnt(0)')
    a('v_lshlrev_b32 v7, 4, v4')
    a('v_add_u32 v7, s40, v7')
    C = 120
    for j in range(2):
        for g in range(4):
            a(f'ds_read_b128 {v(C+4*g,4)}, v7 offset:{j*256 + g*32}')
            a(f'ds_read_b128 {v(C+16+4*g,4)}, v7 offset:{j*256 + 128 + g*32}')
        a('s_waitcnt lgkmcnt(0)')
        for r in range(16):
            a(f'v_mul_f32 v{T+1}, v{C+r}, v{T}')
            a(f'v_fma_f32 v{ACC+16*j+r}, v{C+16+r}, v{ACC+16*j+r}, -v{T+1}')
    PK = 72
    for r in range(16):
        a(f'v_cvt_pk_bf16_f32 v{PK+r}, v{ACC+2*r}, v{ACC+2*r+1}')
    a('s_sub_u32 s17, s14, 10')
    a('s_lshl_b32 s17, s17, 7')
    a('s_lshl_b32 s18, s23, 5')
    a('s_add_u32 s17, s17, s18')
    a('v_add_u32 v13, s17, v3')
    a(f's_mov_b32 s17, {magic(20)}')
    a('v_mul_hi_u32 v14, v13, s17')
    a('v_mul_u32_u24 v15, 20, v14')
    a('v_sub_u32 v15, v13, v15')
    a('s_mov_b32 s17, 81920')
    a('v_mul_lo_u32 v14, v14, s17')
    a('v_lshl_add_u32 v14, v15, 4, v14')
    a('v_mul_u32_u24 v15, 320, v4')
    a('v_add_u32 v14, v14, v15')
    a('s_lshl_b32 s17, s13, 3')
    a('s_lshl_b32 s18, s34, 2')
    a('s_add_u32 s17, s17, s18')
    a('s_mul_i32 s17, s17, 640')
    a(f's_add_u32 s17, s17, {WS_VT}')
    for j in range(2):
        for gg in range(2):
            a(f'buffer_store_dwordx4 {v(PK+8*j+4*gg,4)}, v14, s[8:11], s17 offen offset:{(2*j+gg)*640}' + WT)
    stamp(a, 5)
    if gen.PROF: a('s_waitcnt vmcnt(0)')
    stamp(a, 6); stamp(a, 7, True)
    stamp_flush(a, 1, 8, 8, 12)
    a('s_endpgm')
    a.label(lz)
    decode()
    pack_dma()
    a('v_lshlrev_b32 v1, 4, v0')
    for r in range(4, 8): a(f'v_mov_b32 v{r+100}, 0')
    a(f's_mov_b32 s17, {WS_FLAG}')
    a('buffer_store_dwordx4 v[104:107], v1, s[8:11], s17 offen')
    a('s_waitcnt vmcnt(0)')
    a('s_barrier')
    pack_work(100 + 12)
    a.label(f'{L}_end')
    a('s_endpgm')
    return a, descriptor(L, 160, 102), f'; @launch kernel={L} grid=(256,1,1) block=(512,1,1) lds=163840'
```

```python
import sys
sys.path.insert(0, 'dev')
import gen, gen2
from gen import *
from gen2 import lab, stores2, attn_units, wo_dma, WS_XT, SG, SJ, SPURE, LDS_WO, SPIN_MAX
from asmlib import *

class VM:
    def __init__(self): self.ops = []
    def issue(self, tag): self.ops.append(tag)
    def count_after(self, pred):
        n = 0
        for x in reversed(self.ops):
            if pred(x): return n
            n += 1
        raise Exception('no op matches')
    def wait(self, a, pred, extra=''):
        a(f's_waitcnt vmcnt({min(self.count_after(pred), 63)}){extra}')

XR0 = 136
W1A, W1B = 152, 16
def w1reg(s): return W1A + 4 * s if s < 26 else W1B + 4 * (s - 26)
SH, SR = 36, 37
S_OOB = 38
S_DONE = 39
FB_LDS = 159744
S_W1 = 98
V_W1 = 1

def flag_store(a, p, vt):
    g_, j_ = (SR, SH) if p == 0 else (SG, SJ)
    a(f's_lshl_b32 s40, s{g_}, 7')
    a(f's_lshl_b32 s41, s{j_}, 2')
    a('s_add_u32 s40, s40, s41')
    a(f's_add_u32 s40, s40, {WS_FLAG + p*1024}')
    a(f'v_mov_b32 v{vt}, 0')
    a(f'v_mov_b32 v{vt+1}, 1')
    a('s_mov_b64 exec, 1')
    stores2(a, [f'buffer_store_dword v{vt+1}, v{vt}, s[8:11], s40 offen'])
    a('s_mov_b64 exec, -1')

def sync(a, p_pub, p_wait, smask_setup, prefetch, vt=14, drained=False):
    if p_pub is not None and not drained:
        a('s_waitcnt vmcnt(0)')
        a('s_barrier')
    l0, l1, lp, ld, l3 = lab('sy'), lab('sy'), lab('sy'), lab('sy'), lab('sy')
    a('s_cmp_lg_u32 s12, 0')
    a(f's_cbranch_scc1 {l0}')
    if p_pub is not None: flag_store(a, p_pub, vt)
    smask_setup()
    a(f's_lshl_b32 s40, s{SG}, 7')
    a(f's_add_u32 s40, s40, {WS_FLAG + p_wait*1024}')
    a(f'v_lshlrev_b32 v{vt}, 2, v2')
    a('s_mov_b64 exec, s[44:45]')
    a('s_mov_b32 s41, 0')
    a.label(lp)
    a(f'buffer_load_dword v{vt+1}, v{vt}, s[8:11], s40 offen sc1')
    a('s_add_u32 s41, s41, 1')
    a('s_waitcnt vmcnt(0)')
    a(f'v_cmp_eq_u32 vcc, 0, v{vt+1}')
    a(f's_cbranch_vccz {ld}')
    a(f's_cmp_lt_u32 s41, {SPIN_MAX}')
    a(f's_cbranch_scc1 {lp}')
    a.label(ld)
    a('s_mov_b64 exec, -1')
    a(f's_cmp_eq_u32 s{SPURE}, 1')
    a(f's_cbranch_scc1 {l3}')
    a('buffer_inv sc1')
    a('s_waitcnt vmcnt(0)')
    a.label(l3)
    a('s_barrier')
    prefetch()
    a(f's_branch {l1}')
    a.label(l0)
    prefetch()
    a('s_barrier')
    a.label(l1)

def phase_attn(a):
    R = AR
    attn_setup(a, SH, SR, 12, 8)
    a(f's_lshr_b32 s62, s{SJ}, 2')
    a('s_mul_i32 s62, s62, 102400')
    a(f's_add_u32 s62, s62, {WS_WO}')
    a('s_lshl_b32 s61, s12, 10')
    a('s_add_u32 s62, s62, s61')
    a('s_cmp_lt_u32 s12, 4')
    a(f's_mov_b32 s63, {11*8192}')
    a(f's_cselect_b32 s63, {12*8192}, s63')
    a('s_add_u32 s63, s63, s62')
    a(f's_add_u32 s61, s61, {LDS_WO}')
    for r in range(32): a(f'v_mov_b32 v{R.O+r}, 0')
    for r in range(16): a(f'v_mov_b32 v{R.P+r}, 0')
    for r in range(16): a(f'v_mov_b32 v{R.VV+r}, 0')
    vm = VM()
    attn_dma(a, 0, 8)
    a(f's_mov_b32 s{S_DONE}, 0')
    a(f'v_mov_b32 v14, {FB_LDS}')
    a('v_mov_b32 v15, 0')
    a('ds_write_b32 v14, v15')
    lane_swap23(a, 14, 3, 15)
    a('v_lshrrev_b32 v15, 4, v14')
    a('s_movk_i32 s40, 20480')
    a('v_mul_lo_u32 v15, v15, s40')
    a('v_and_b32 v14, 15, v14')
    a('v_lshl_add_u32 v15, v14, 4, v15')
    a(f'v_lshl_add_u32 v{V_W1}, v4, 8, v15')
    a(f's_lshr_b32 s40, s{SJ}, 1')
    a('s_lshl_b32 s40, s40, 2')
    a('s_and_b32 s41, s12, 3')
    a('s_add_u32 s40, s40, s41')
    a('s_mul_i32 s41, s40, 40960')
    a(f's_add_u32 s41, s41, {WS_W1}')
    a('s_cmp_lt_u32 s40, 54')
    a(f's_cselect_b32 s{S_W1}, s41, 0x7ff00000')
    a(f's_mov_b32 s{S_OOB}, 0x7ff00000')
    lt1, lt2 = lab('tc'), lab('tc')
    a('v_lshlrev_b32 v148, 7, v2')
    a('s_cmp_ge_u32 s12, 4')
    a(f's_cbranch_scc1 {lt1}')
    a(f's_mul_i32 s50, s{SG}, {16*20480}')
    a(f's_mul_i32 s40, s{SJ}, 10240')
    a('s_add_u32 s50, s50, s40')
    a('s_and_b32 s40, s12, 1')
    a('s_mul_i32 s40, s40, 5120')
    a('s_add_u32 s50, s50, s40')
    a('s_lshr_b32 s40, s12, 1')
    a(f's_mul_i32 s40, s40, {WS_H - WS_O}')
    a('s_add_u32 s50, s50, s40')
    a(f's_add_u32 s50, s50, {WS_O}')
    a('v_add_u32 v148, s50, v148')
    a(f's_lshr_b32 s40, s{SJ}, 1')
    a('s_lshl_b32 s40, s40, 14')
    a(f's_lshl_b32 s41, s{SG}, 11')
    a('s_add_u32 s40, s40, s41')
    a(f's_and_b32 s41, s{SJ}, 1')
    a('s_lshl_b32 s41, s41, 10')
    a('s_add_u32 s40, s40, s41')
    a(f's_add_u32 s40, s40, {WS_ST2 - 40*128}')
    a('s_cmp_eq_u32 s12, 2')
    a('s_cselect_b32 s40, s40, 0x7ff00000')
    a('v_lshlrev_b32 v149, 7, v2')
    a('v_add_u32 v149, s40, v149')
    a('v_mov_b32 v14, 0x7ff00000')
    a('v_cmp_gt_u32 vcc, 48, v2')
    a('v_cndmask_b32 v149, v14, v149, vcc')
    a('v_cmp_gt_u32 vcc, 40, v2')
    a('v_cndmask_b32 v148, v149, v148, vcc')
    a(f's_branch {lt2}')
    a.label(lt1)
    a('s_sub_u32 s40, s12, 4')
    a('s_lshl_b32 s40, s40, 5')
    a(f's_add_u32 s40, s40, s{SJ}')
    a('s_mul_i32 s50, s40, 20480')
    a(f's_add_u32 s50, s50, {WS_W1 + 13312}')
    a('s_cmp_lt_u32 s40, 108')
    a('s_cselect_b32 s50, s50, 0x7ff00000')
    a('v_add_u32 v148, s50, v148')
    a('v_mov_b32 v14, 0x7ff00000')
    a('v_cmp_gt_u32 vcc, 56, v2')
    a('v_cndmask_b32 v148, v14, v148, vcc')
    a.label(lt2)
    a('v_lshlrev_b32 v147, 7, v2')
    a('s_lshl_b32 s40, s12, 13')
    a(f's_mul_i32 s51, s{SG}, {16*55296}')
    a(f's_mul_i32 s41, s{SJ}, 27648')
    a('s_add_u32 s51, s51, s41')
    a('s_add_u32 s51, s51, s40')
    a(f's_add_u32 s51, s51, {WS_G}')
    a('s_cmp_ge_u32 s12, 4')
    a('s_cselect_b32 s51, 0x7ff00000, s51')
    a(f's_and_b32 s40, s{SJ}, 3')
    a('s_lshl_b32 s40, s40, 2')
    a(f's_lshl_b32 s41, s{SG}, 4')
    a('s_add_u32 s40, s40, s41')
    a('s_and_b32 s41, s12, 3')
    a('s_add_u32 s40, s40, s41')
    a('s_lshl_b32 s40, s40, 4')
    a('v_and_b32 v0, 15, v2')
    a('v_add_u32 v0, s40, v0')
    a('s_movk_i32 s41, 1280')
    a('v_mul_lo_u32 v0, v0, s41')
    a('v_lshrrev_b32 v14, 4, v2')
    a('v_lshl_add_u32 v0, v14, 3, v0')
    a(f's_lshr_b32 s57, s{SJ}, 2')
    a('s_mul_i32 s57, s57, 160')
    a('s_lshr_b32 s40, s12, 2')
    a('s_mul_i32 s40, s40, 96')
    a('s_add_u32 s57, s57, s40')
    a('s_waitcnt vmcnt(0)')
    for st in (1, 2):
        attn_dma(a, st, 8); vm.issue(('kv', st)); vm.issue(('kv', st))
    for x in wo_dma(): a(x)
    vm.issue('wo')
    if 'notlb' not in gen.EXP:
        a('v_lshlrev_b32 v149, 16, v2')
        a('s_lshl_b32 s40, s12, 22')
        a('buffer_load_dword v149, v149, s[8:11], s40 offen')
        a('v_lshlrev_b32 v148, 16, v2')
        a('buffer_load_dword v148, v148, s[76:79], 0 offen')
    a('v_cmp_gt_u32 vcc, 32, v2')
    for r in range(4): a(f'v_cndmask_b32 v{R.QC+r}, 0, v{R.QC+r}, vcc')
    a('s_waitcnt lgkmcnt(0)')
    a('s_barrier')
    a(f'ds_read_b128 {v(R.KA,4)}, v11 offset:0')
    a(f'ds_read_b64 {v(R.KC,2)}, v12 offset:0')
    a('s_waitcnt lgkmcnt(0)')
    a(f'v_mfma_f32_32x32x16_bf16 {v(R.S,16)}, {v(R.KA,4)}, {v(R.QA,4)}, 0')
    a(f'v_mfma_f32_32x32x8bf16_1k {v(R.S,16)}, {v(R.KC,2)}, {v(R.QC,2)}, {v(R.S,16)}')
    stamp(a, 7)
    wnext = [0]
    def w1load():
        s_ = wnext[0]; wnext[0] += 1
        return [f's_add_u32 s40, s{S_W1}, {s_*512}', f'buffer_load_dwordx4 {v(w1reg(s_),4)}, v{V_W1}, s[8:11], s40 offen']
    plan = {}
    waits = {}
    nW = {2: 3, 3: 3, 4: 3, 5: 3, 6: 4, 7: 4, 8: 3, 9: 3}
    if 'now1a' in gen.EXP: nW = {}
    def masked(sreg, cond_lo, cond_hi, vreg):
        return [f's_sub_u32 s40, s12, {cond_lo}', f's_cmp_lt_u32 s40, {cond_hi - cond_lo}', f's_cselect_b32 s40, {sreg}, s{S_OOB}',
                f'buffer_load_dword v149, v{vreg}, s[8:11], s40 offen']
    for g in range(16):
        ex = {}
        k = nW.get(g, 0)
        slots = sorted([(0, 20), (1, 8), (1, 20), (2, 20)][:k])
        if g <= 11:
            ex.setdefault(0, {})[8] = wo_dma(); vm.issue('wo')
        if g == 12:
            ex.setdefault(0, {})[8] = [f's_lshl_b32 s40, s{SG}, 7', f's_add_u32 s40, s40, {WS_XT}', 'v_lshlrev_b32 v150, 2, v3',
                                       'buffer_load_dword v150, v150, s[8:11], s40 offen sc1']
            vm.issue('xt')
        tl = None
        if g == 10: tl = masked('0', 4, 6, 148)
        if g == 11: tl = masked('0', 6, 8, 148)
        if g == 12: tl = masked('0', 0, 4, 148)
        if g == 13: tl = ['buffer_load_dword v149, v147, s[8:11], s51 offen']
        if tl and 'notouch' not in gen.EXP:
            ex.setdefault(1, {})[14] = tl; vm.issue('touch')
        post = []
        pre_ops = []
        for (u, pos) in slots:
            if u < 2: ex.setdefault(u, {})[pos] = w1load(); vm.issue('w1')
            else: post.append((u, pos))
        if g < 15: waits[g] = vm.count_after(lambda x: x == ('kv', g + 1))
        for (u, pos) in post:
            ex.setdefault(u, {})[pos] = w1load(); vm.issue('w1')
        if g <= 12:
            vm.issue(('kv', g + 3)); vm.issue(('kv', g + 3))
        if g == 13:
            ex.setdefault(3, {})[20] = [f'buffer_load_dwordx2 {v(XR0+2*i,2)}, v0, s[72:75], s57 offen offset:{32*i}' for i in range(3)]
            for i in range(3): vm.issue('xr')
        plan[g] = ex
    assert wnext[0] == 26 or 'now1a' in gen.EXP, wnext
    def run(stages_g):
        loc = {g % 4: g for g in stages_g}
        def prio(st, u):
            g = loc[st]
            if g == 15: return {0: 2, 1: 1, 2: 1, 3: 0}[u]
            if g == 14 and u >= 2: return 3
            return {2: 3, 3: 2, 0: 1, 1: 0}[u]
        return attn_units(a, 8, [(g % 4, g == 15) for g in stages_g], lambda st: loc[st] <= 12,
                          lambda st, u: plan[loc[st]].get(u, {}), lambda st: waits[loc[st]], prio)
    for b_ in range(3): run([4*b_ + i for i in range(4)])
    m1, m2, m3, m4, _ = run([12, 13, 14, 15])
    a(m3(1, 1, 1)); a(m4(1, 1, 1))
    a('s_setprio 0')
    stamp(a, 3)
    lp, ld = lab('xt'), lab('xt')
    a('s_mov_b32 s41, 0')
    a('v_cmp_eq_u32 vcc, 0, v150')
    a(f's_cbranch_vccz {ld}')
    a.label(lp)
    a(f's_lshl_b32 s40, s{SG}, 7')
    a(f's_add_u32 s40, s40, {WS_XT}')
    a('v_lshlrev_b32 v14, 2, v3')
    a('buffer_load_dword v150, v14, s[8:11], s40 offen sc1')
    a('s_add_u32 s41, s41, 1')
    a('s_waitcnt vmcnt(0)')
    a('v_cmp_eq_u32 vcc, 0, v150')
    a(f's_cbranch_vccz {ld}')
    a(f's_cmp_lt_u32 s41, {SPIN_MAX}')
    a(f's_cbranch_scc1 {lp}')
    a.label(ld)
    a(f'v_cmp_ne_u32 vcc, s{SPURE}, v150')
    a('s_cmp_eq_u64 vcc, 0')
    a(f's_cselect_b32 s{SPURE}, 1, 0')
    if 'slow' in gen.EXP: a(f's_mov_b32 s{SPURE}, 0')
    TT = R.S
    a.label('.Lat_combine')
    a('s_cmp_eq_u32 s46, 0')
    a('s_cbranch_scc1 .Lat_noswap')
    a('s_nop 7')
    for r in range(12): a(f'v_swap_b32 v{R.O+r}, v{R.O+16+r}')
    a.label('.Lat_noswap')
    a('s_nop 7')
    a(f's_mul_i32 s40, s12, 3072')
    a('v_add_u32 v14, s40, v10')
    for i in range(3): a(f'ds_write_b128 v14, {v(R.O+16+4*i,4)} offset:{1024*i}')
    a('s_xor_b32 s40, s12, 4')
    a('s_mul_i32 s40, s40, 3072')
    a('v_add_u32 v14, s40, v10')
    a('s_waitcnt lgkmcnt(0)')
    a('s_barrier')
    for i in range(3): a(f'ds_read_b128 {v(TT+4*i,4)}, v14 offset:{1024*i}')
    a('s_waitcnt lgkmcnt(0)')
    for r in range(12): a(f'v_add_f32 v{R.O+r}, v{R.O+r}, v{TT+r}')
    a(f'v_mov_b32 v{TT}, v{R.O+8}')
    a(f'v_mov_b32 v{TT+1}, v{R.O+8}')
    a(f'v_permlane32_swap_b32 v{TT}, v{TT+1}')
    a(f'v_mov_b32 v{TT+2}, 0')
    for r in range(12): a(f'v_fmac_f32 v{TT+2}, 0, v{R.O+r}')
    a('s_mov_b32 s40, 0x1f800000')
    a(f'v_cmp_nle_f32 vcc, s40, v{TT+1}')
    a('s_mov_b32 s40, 0x5f800000')
    a(f'v_cmp_nge_f32 s[44:45], s40, v{TT+1}')
    a('s_or_b64 s[44:45], s[44:45], vcc')
    a(f'v_cmp_u_f32 vcc, v{TT+2}, v{TT+2}')
    a('s_or_b64 s[44:45], s[44:45], vcc')
    if 'forcefb' in gen.EXP: a('s_mov_b64 s[44:45], -1')
    lok = lab('ok')
    a('s_cmp_eq_u64 s[44:45], 0')
    a(f's_cbranch_scc1 {lok}')
    a(f'v_mov_b32 v{TT+2}, {FB_LDS}')
    a(f'v_mov_b32 v{TT+3}, 1')
    a(f'ds_write_b32 v{TT+2}, v{TT+3}')
    a.label(lok)
    a(f'v_rcp_f32 v{TT+1}, v{TT+1}')
    for r in range(12): a(f'v_mul_f32 v{R.O+r}, v{R.O+r}, v{TT+1}')
    for i in range(6): a(f'v_cvt_pk_bf16_f32 v{TT+4+i}, v{R.O+2*i}, v{R.O+2*i+1}')
    a('s_mul_i32 s61, s46, 40960')
    a('s_add_u32 s61, s61, s47')
    a(f's_add_u32 s61, s61, {WS_O}')
    a('s_lshl_b32 s62, s42, 8')
    a('s_add_u32 s62, s62, s61')
    a('s_lshl_b32 s63, s43, 8')
    a('s_add_u32 s63, s63, s61')
    a(f's_and_b32 s61, s{SH}, 1')
    a('s_lshl_b32 s61, s61, 3')
    a('s_add_u32 s63, s63, s61')
    stores2(a, [f'buffer_store_dwordx4 {v(TT+4,4)}, v7, s[8:11], s62 offen',
                's_mov_b64 exec, 0xffffffff',
                f'buffer_store_dwordx2 {v(TT+8,2)}, v5, s[8:11], s63 offen',
                's_mov_b64 exec, -1'])
    stamp(a, 4)
    a('s_waitcnt vmcnt(0) lgkmcnt(0)')
    a('s_barrier')
    a(f'v_mov_b32 v14, {FB_LDS}')
    a('ds_read_b32 v15, v14')
    a('s_waitcnt lgkmcnt(0)')
    a('v_readfirstlane_b32 s40, v15')
    a(f's_sub_u32 s40, s40, s{S_DONE}')
    a('s_cmp_eq_u32 s40, 1')
    a('s_cbranch_scc1 .Lat_fallback')
    a.label('.Lat_done')

def attn_fallback(a):
    R = AR
    SL = 2 * AT_SLOT
    S_, M0_, M1_ = R.S, R.S + 16, R.S + 17
    a.label('.Lat_fallback')
    a(f's_mov_b32 s{S_DONE}, 1')
    def load_stage():
        a('s_barrier')
        for x in attn_dma_parts(2, 8)[0] + attn_dma_parts(2, 8)[1]: a(x)
        a('s_waitcnt vmcnt(0)')
        a('s_barrier')
    def rewind():
        a(f's_sub_u32 s52, s52, {16*5120}')
        a(f's_sub_u32 s53, s53, {16*163840}')
    def scores(t, j):
        a(f'v_mfma_f32_32x32x16_bf16 {v(S_,16)}, {v(R.KA,4)}, {v(R.QA+4*j,4)}, 0')
        a(f'v_mfma_f32_32x32x8bf16_1k {v(S_,16)}, {v(R.KC,2)}, {v(R.QC+2*j,2)}, {v(S_,16)}')
    def kread(t):
        a(f'ds_read_b128 {v(R.KA,4)}, v11 offset:{SL + t*1024}')
        a(f'ds_read_b64 {v(R.KC,2)}, v12 offset:{SL + t*512}')
    rewind()
    a(f'v_mov_b32 v{M0_}, 0xff7fffff'); a(f'v_mov_b32 v{M1_}, 0xff7fffff')
    a('s_mov_b32 s60, 16')
    a.label('.Lat_fb1')
    load_stage()
    for t in range(2):
        kread(t)
        a('s_waitcnt lgkmcnt(0)')
        for j in range(2):
            scores(t, j)
            m = M0_ + j
            for r in range(0, 16, 2): a(f'v_max3_f32 v{m}, v{S_+r}, v{S_+r+1}, v{m}')
    a('s_sub_u32 s60, s60, 1')
    a('s_cmp_lg_u32 s60, 0')
    a('s_cbranch_scc1 .Lat_fb1')
    for j in range(2):
        m = M0_ + j
        a(f'v_mov_b32 v{S_}, v{m}'); a(f'v_mov_b32 v{S_+1}, v{m}')
        a(f'v_permlane32_swap_b32 v{S_}, v{S_+1}')
        a(f'v_max_f32 v{m}, v{S_}, v{S_+1}')
    a('s_barrier')
    a('s_lshl_b32 s40, s12, 9')
    a('v_lshlrev_b32 v14, 3, v2')
    a('v_add_u32 v14, s40, v14')
    a(f'ds_write_b64 v14, {v(M0_,2)}')
    a('s_xor_b32 s40, s12, 4')
    a('s_lshl_b32 s40, s40, 9')
    a('v_lshlrev_b32 v14, 3, v2')
    a('v_add_u32 v14, s40, v14')
    a('s_waitcnt lgkmcnt(0)')
    a('s_barrier')
    a(f'ds_read_b64 {v(S_,2)}, v14')
    a('s_waitcnt lgkmcnt(0)')
    a(f'v_max_f32 v{M0_}, v{M0_}, v{S_}')
    a(f'v_max_f32 v{M1_}, v{M1_}, v{S_+1}')
    rewind()
    for r in range(32): a(f'v_mov_b32 v{R.O+r}, 0')
    a('s_mov_b32 s60, 16')
    a.label('.Lat_fb2')
    load_stage()
    for t in range(2):
        kread(t)
        a(f'ds_read_b128 {v(R.VV,4)}, v13 offset:{SL + t*2048}')
        a(f'ds_read_b128 {v(R.VV+4,4)}, v13 offset:{SL + t*2048 + 1024}')
        a('s_waitcnt lgkmcnt(0)')
        for j in range(2):
            scores(t, j)
            for r in range(16): a(f'v_sub_f32 v{S_+r}, v{S_+r}, v{M0_+j}')
            for r in range(16): a(f'v_exp_f32 v{S_+r}, v{S_+r}')
            for i in range(8): a(f'v_cvt_pk_bf16_f32 v{R.P+i}, v{S_+2*i}, v{S_+2*i+1}')
            a(f'v_mfma_f32_32x32x16_bf16 {v(R.O+16*j,16)}, {v(R.VV,4)}, {v(R.P,4)}, {v(R.O+16*j,16)}')
            a(f'v_mfma_f32_32x32x16_bf16 {v(R.O+16*j,16)}, {v(R.VV+4,4)}, {v(R.P+4,4)}, {v(R.O+16*j,16)}')
    a('s_sub_u32 s60, s60, 1')
    a('s_cmp_lg_u32 s60, 0')
    a('s_cbranch_scc1 .Lat_fb2')
    a('s_nop 15')
    a('s_barrier')
    a('s_branch .Lat_combine')

def phase_oproj(a):
    BF, AF, ACC, XR, T = 16, 56, 96, XR0, 116
    a(f's_and_b32 s20, s{SJ}, 3')
    a(f's_lshr_b32 s21, s{SJ}, 2')
    a('s_and_b32 s22, s12, 3')
    a('s_lshr_b32 s23, s12, 2')
    a(f's_lshl_b32 s29, s{SG}, 4')
    a('s_lshl_b32 s30, s20, 2')
    a('s_add_u32 s29, s29, s30')
    a('s_add_u32 s29, s29, s22')
    a('v_and_b32 v5, 15, v2')
    a('v_lshrrev_b32 v6, 4, v2')
    a('s_mul_i32 s30, s29, 20480')
    a('s_mul_i32 s31, s23, 10240')
    a('s_add_u32 s30, s30, s31')
    a(f's_add_u32 s30, s30, {WS_O}')
    a('s_mul_i32 s33, s23, 10240')
    a(f's_add_u32 s33, s33, {LDS_WO}')
    a('v_add_u32 v8, s33, v10')
    a(f'v_add_u32 v9, {3*20480}, v8')
    def pre(): pass
    def mask():
        a('s_mov_b32 s44, -1'); a('s_mov_b32 s45, 0')
    sync(a, 0, 0, mask, pre, drained=True)
    stamp(a, 8)
    for i in range(10):
        if i % 4 == 0: a(f's_add_u32 s31, s30, {i*1024}')
        a(f'buffer_load_dwordx4 {v(BF+4*i,4)}, v10, s[8:11], s31 offen offset:{(i%4)*1024} sc1')
    def areads(i, buf):
        for ft in range(5):
            off = ft * 20480 + i * 1024
            base = 8
            if ft >= 3: off -= 3 * 20480; base = 9
            a(f'ds_read_b128 {v(AF+20*buf+4*ft,4)}, v{base} offset:{off}')
    areads(0, 0)
    for i in range(10):
        if i < 9:
            areads(i + 1, (i + 1) & 1)
            a(f's_waitcnt vmcnt({9-i}) lgkmcnt(5)')
        else:
            a('s_waitcnt vmcnt(0) lgkmcnt(0)')
        for ft in range(5):
            acc = v(ACC + 4 * ft, 4)
            a(f'v_mfma_f32_16x16x32_bf16 {acc}, {v(AF+20*(i&1)+4*ft,4)}, {v(BF+4*i,4)}, {"0" if i == 0 else acc}')
    stamp(a, 9)
    a('s_mul_i32 s40, s12, 3072')
    a('s_add_u32 s40, s40, 32768')
    a('v_add_u32 v14, s40, v10')
    l1, l2 = lab('ox'), lab('ox')
    a('s_nop 7')
    a('s_cmp_eq_u32 s23, 0')
    a(f's_cbranch_scc0 {l1}')
    for i, ft in enumerate((3, 4)): a(f'ds_write_b128 v14, {v(ACC+4*ft,4)} offset:{1024*i}')
    a(f's_branch {l2}')
    a.label(l1)
    for ft in range(3): a(f'ds_write_b128 v14, {v(ACC+4*ft,4)} offset:{1024*ft}')
    a('s_waitcnt lgkmcnt(0)')
    for r in range(8): a(f'v_mov_b32 v{ACC+r}, v{ACC+12+r}')
    for r in range(8, 12): a(f'v_mov_b32 v{ACC+r}, 0')
    a.label(l2)
    a('s_xor_b32 s40, s12, 4')
    a('s_mul_i32 s40, s40, 3072')
    a('s_add_u32 s40, s40, 32768')
    a('v_add_u32 v14, s40, v10')
    a('s_waitcnt lgkmcnt(0)')
    a('s_barrier')
    for i in range(3): a(f'ds_read_b128 {v(T+4*i,4)}, v14 offset:{1024*i}')
    a('s_waitcnt lgkmcnt(0)')
    for r in range(12): a(f'v_add_f32 v{ACC+r}, v{ACC+r}, v{T+r}')
    for i in range(3):
        for h2 in range(2):
            a(f'v_lshlrev_b32 v{T}, 16, v{XR+2*i+h2}')
            a(f'v_and_b32 v{T+1}, 0xffff0000, v{XR+2*i+h2}')
            a(f'v_add_f32 v{ACC+4*i+2*h2}, v{ACC+4*i+2*h2}, v{T}')
            a(f'v_add_f32 v{ACC+4*i+2*h2+1}, v{ACC+4*i+2*h2+1}, v{T+1}')
    l3 = lab('ox')
    a('s_cmp_eq_u32 s23, 0')
    a(f's_cbranch_scc1 {l3}')
    for r in range(8, 12): a(f'v_mov_b32 v{ACC+r}, 0')
    a.label(l3)
    a(f'v_mov_b32 v{T}, v{ACC}')
    a(f'v_mul_f32 v{T+1}, v{ACC}, v{ACC}')
    for r in range(1, 12):
        a(f'v_add_f32 v{T}, v{T}, v{ACC+r}')
        a(f'v_fmac_f32 v{T+1}, v{ACC+r}, v{ACC+r}')
    sum_q4(a, T, T+2, T+3)
    sum_q4(a, T+1, T+2, T+3)
    for i in range(6): a(f'v_cvt_pk_bf16_f32 v{T+4+i}, v{ACC+2*i}, v{ACC+2*i+1}')
    a('s_mul_i32 s34, s29, 20480')
    a('s_mul_i32 s35, s21, 2560')
    a('s_add_u32 s34, s34, s35')
    a('s_mul_i32 s35, s23, 1536')
    a('s_add_u32 s34, s34, s35')
    a(f's_add_u32 s34, s34, {WS_H}')
    a('v_lshrrev_b32 v11, 1, v6')
    a('v_lshlrev_b32 v11, 8, v11')
    a('v_lshl_add_u32 v11, v5, 4, v11')
    a('v_and_b32 v12, 1, v6')
    a('v_lshl_add_u32 v11, v12, 3, v11')
    a('s_lshl_b32 s33, s29, 7')
    a('s_lshl_b32 s35, s21, 1')
    a('s_add_u32 s35, s35, s23')
    a('s_lshl_b32 s35, s35, 14')
    a('s_add_u32 s33, s33, s35')
    a(f's_add_u32 s33, s33, {WS_ST2}')
    a('v_lshlrev_b32 v12, 3, v5')
    a('s_cmp_eq_u32 s23, 0')
    a(f's_cselect_b32 s35, s34, {0x7ffff000}')
    stores2(a, [f'buffer_store_dwordx2 {v(T+4,2)}, v11, s[8:11], s34 offen',
                f'buffer_store_dwordx2 {v(T+6,2)}, v11, s[8:11], s34 offen offset:512',
                f'buffer_store_dwordx2 {v(T+8,2)}, v11, s[8:11], s35 offen offset:1024',
                's_mov_b64 exec, 0xffff',
                f'buffer_store_dwordx2 {v(T,2)}, v12, s[8:11], s33 offen',
                's_mov_b64 exec, -1'])

F2_SLOT = {0: 81920, 1: 122880, 2: 0, 3: 40960, 4: 81920, 5: 122880, 6: 0}
def w2_setup(a):
    a(f's_lshr_b32 s21, s{SJ}, 2')
    a('s_lshr_b32 s22, s12, 2')
    a('s_mul_i32 s22, s22, 27')
    a('s_and_b32 s23, s12, 3')
    a('s_add_u32 s22, s22, s23')
    a('s_lshl_b32 s22, s22, 10')
    a('s_mul_i32 s47, s21, 276480')
    a(f's_add_u32 s47, s47, {WS_W2}')
    a('s_add_u32 s47, s47, s22')
    a('s_mul_i32 s48, s12, 5120')
def w2_dma(st, ft):
    return [f's_add_u32 m0, s48, {F2_SLOT[st] + ft*1024}', f's_add_u32 s49, s47, {st*4096 + ft*55296}',
            'buffer_load_dwordx4 v10, s[8:11], s49 offen lds']

def far_touch(a, vt, vd):
    a(f'v_lshlrev_b32 v{vt}, 7, v2')
    a(f's_mul_i32 s56, s{SJ}, 69120')
    a('s_lshl_b32 s57, s12, 13')
    a('s_add_u32 s56, s56, s57')
    a(f's_add_u32 s56, s56, {WS_W2}')
    a(f'buffer_load_dword v{vd}, v{vt}, s[8:11], s56 offen')
    a(f's_mul_i32 s56, s{SG}, {16*55296}')
    a(f's_mul_i32 s57, s{SJ}, 27648')
    a('s_add_u32 s56, s56, s57')
    a('s_lshl_b32 s57, s12, 13')
    a('s_add_u32 s56, s56, s57')
    a(f's_add_u32 s56, s56, {WS_G}')
    a(f's_mul_i32 s57, s{SJ}, 69120')
    a(f's_add_u32 s57, s57, {WS_W2 + 65536}')
    a('s_cmp_eq_u32 s12, 4')
    a('s_cselect_b32 s56, s57, s56')
    a('s_cmp_gt_u32 s12, 4')
    a('s_cselect_b32 s56, 0x7ff00000, s56')
    a(f'buffer_load_dword v{vd}, v{vt}, s[8:11], s56 offen')

def phase_ffn1(a, vm_pre):
    ACC, FB = 72, 104
    CS, B1, ST = 192, 168, 128
    SEL, CSA, B1R = 120, 124, 184
    NS = 5
    a(f's_load_dwordx2 s[50:51], s[0:1], {A_B1}')
    a(f'v_mov_b32 v{SEL}, 0')
    a('s_mov_b32 s52, 0x00020001')
    a('s_mov_b32 s53, 0x00020001')
    a('v_mov_b32 v15, 0x3f803f80')
    a(f'v_cndmask_b32 v{SEL}, v{SEL}, v15, s[52:53]')
    for r in range(1, 4): a(f'v_mov_b32 v{SEL+r}, v{SEL}')
    for r in range(4): a(f'v_mov_b32 v{CSA+r}, 0')
    a('s_waitcnt lgkmcnt(0)')
    srd(a, 52, 50, F * 2)
    w2_setup(a)
    a(f's_and_b32 s13, s{SJ}, 1')
    a(f's_lshl_b32 s15, s{SG}, 1')
    a('s_add_u32 s13, s13, s15')
    a(f's_lshr_b32 s14, s{SJ}, 1')
    a('s_and_b32 s23, s12, 3')
    a('s_lshr_b32 s26, s12, 2')
    a('v_lshrrev_b32 v7, 4, v3')
    a('s_movk_i32 s17, 20480')
    a('v_mul_lo_u32 v7, v7, s17')
    a('v_and_b32 v6, 15, v3')
    a('v_lshl_add_u32 v7, v6, 4, v7')
    a('v_lshl_add_u32 v7, v4, 8, v7')
    a('s_lshl_b32 s20, s13, 3')
    a('s_lshl_b32 s19, s23, 1')
    a('s_add_u32 s20, s20, s19')
    a('s_mul_i32 s20, s20, 20480')
    a('s_lshl_b32 s19, s26, 10')
    a('s_add_u32 s20, s20, s19')
    a(f's_add_u32 s20, s20, {WS_H}')
    a('s_lshl_b32 s22, s23, 10')
    a('s_lshl_b32 s19, s26, 13')
    a('s_add_u32 s22, s22, s19')
    a('s_lshl_b32 s17, s26, 11')
    a('v_add_u32 v12, s17, v10')
    a('v_add_u32 v13, 0x10000, v12')
    vm = VM()
    def pre(): pass
    def mask():
        a(f's_and_b32 s40, s{SJ}, 1')
        a('s_cmp_eq_u32 s40, 0')
        a('s_mov_b32 s44, 0xcccccccc')
        a('s_cselect_b32 s44, 0x33333333, s44')
        a('s_mov_b32 s45, 0')
    sync(a, 1, 1, mask, pre)
    stamp(a, 10)
    nst = 10
    pend = [(st, i) for st in range(nst) for i in range(2)]
    def dma_one():
        st, i = pend.pop(0)
        a(f's_add_u32 m0, s22, {(st % NS)*16384 + i*4096}')
        a(f's_add_u32 s21, s20, {st*2048 + i*512}')
        a('buffer_load_dwordx4 v7, s[8:11], s21 offen sc1 lds')
        vm.issue(('h', st))
    for _ in range(2 * 3): dma_one()
    a('s_lshl_b32 s27, s13, 7')
    a('s_lshl_b32 s28, s26, 6')
    a('s_add_u32 s27, s27, s28')
    a('s_lshl_b32 s28, s13, 7')
    a('s_lshl_b32 s29, s23, 5')
    a('s_add_u32 s28, s28, s29')
    a('s_lshl_b32 s28, s28, 3')
    a(f's_add_u32 s28, s28, {WS_ST2}')
    a('v_lshlrev_b32 v14, 3, v3')
    a('v_lshl_add_u32 v14, v4, 17, v14')
    def st_load(q):
        a(f's_add_u32 s29, s28, {q*16384}')
        a(f'buffer_load_dwordx2 {v(ST+2*q,2)}, v14, s[8:11], s29 offen sc1')
        vm.issue('st')
    w1q = list(range(26, 40))
    def w1_load():
        s_ = w1q.pop(0)
        a(f's_add_u32 s40, s{S_W1}, {s_*512}')
        a(f'buffer_load_dwordx4 {v(w1reg(s_),4)}, v{V_W1}, s[8:11], s40 offen')
        vm.issue(('w1', s_))
    def reads(st, ks, buf):
        off = (st % NS) * 16384 + ks * 4096
        base = 12
        if off + 1024 >= 65536: off -= 65536; base = 13
        a(f'ds_read_b128 {v(FB+8*buf,4)}, v{base} offset:{off}')
        a(f'ds_read_b128 {v(FB+8*buf+4,4)}, v{base} offset:{off+1024}')
    def mfmas(s_, buf):
        for j in range(2):
            c = '0' if s_ == 0 else v(ACC+16*j, 16)
            a(f'v_mfma_f32_32x32x16_bf16 {v(ACC+16*j,16)}, {v(w1reg(s_),4)}, {v(FB+8*buf+4*j,4)}, {c}')
    F1S = 'f1stamp' in gen.EXP
    w2q = [(st, ft) for st in (0, 1) for ft in range(5)]
    if F1S: stamp(a, 2)
    vm.wait(a, lambda x: x == ('h', 0))
    a('s_barrier')
    if F1S: stamp(a, 3)
    reads(0, 0, 0)
    buf = 0
    for st in range(nst):
        for ks in range(4):
            s_ = 4 * st + ks
            if ks < 3:
                reads(st, ks + 1, buf ^ 1)
                if s_ >= 26: vm.wait(a, lambda x: x == ('w1', s_), ' lgkmcnt(2)')
                else: a('s_waitcnt lgkmcnt(2)')
                mfmas(s_, buf)
            else:
                if st + 1 < nst:
                    a('s_waitcnt lgkmcnt(0)')
                    if F1S and st in (0, 2, 4, 6): stamp(a, {0: 4, 2: 7, 4: 9, 6: 13}[st])
                    vm.wait(a, lambda x: x == ('h', st + 1))
                    a('s_barrier')
                    if F1S and st in (0, 2, 4, 6): stamp(a, {0: 5, 2: 8, 4: 12, 6: 14}[st])
                    reads(st + 1, 0, buf ^ 1)
                else:
                    a('s_waitcnt lgkmcnt(0)')
                if s_ >= 26: vm.wait(a, lambda x: x == ('w1', s_))
                mfmas(s_, buf)
            lim = st + NS - 1 + (1 if ks == 3 else 0)
            if pend and pend[0][0] <= lim and (ks in (1, 3) or st == 0): dma_one()
            if ks in (0, 2) and w1q and st <= 6: w1_load()
            if st == 7 and ks < 4:
                st_load(2 * ks); st_load(2 * ks + 1)
            if st >= 8 and not (st == 8 and ks == 0):
                for _ in range(2 if (st == 9 or ks >= 2) else 1):
                    if w2q:
                        for x in w2_dma(*w2q.pop(0)): a(x)
                        vm.issue('w2')
            lc = lab('cs')
            a(f's_cmp_eq_u32 s26, {s_ & 1}')
            a(f's_cbranch_scc0 {lc}')
            a(f'v_mfma_f32_16x16x32_bf16 {v(CSA,4)}, {v(w1reg(s_),4)}, {v(SEL,4)}, {v(CSA,4)}')
            a.label(lc)
            if st == 8 and ks == 0:
                a('s_lshl_b32 s29, s14, 7')
                a('s_lshl_b32 s30, s23, 5')
                a('s_add_u32 s29, s29, s30')
                a('s_lshl_b32 s29, s29, 1')
                a('v_lshlrev_b32 v15, 4, v4')
                a(f'buffer_load_dwordx4 {v(B1R,4)}, v15, s[52:55], s29 offen'); vm.issue('cs')
                a(f'buffer_load_dwordx4 {v(B1R+4,4)}, v15, s[52:55], s29 offen offset:32'); vm.issue('cs')
            buf ^= 1
    assert not w2q, w2q
    stamp(a, 11)
    LST = 0
    l2 = lab('st')
    vm.wait(a, lambda x: x == 'cs')
    a('s_cmp_ge_u32 s12, 4')
    a(f's_cbranch_scc1 {l2}')
    b = ST
    for q in range(1, 8):
        a(f'v_add_f32 v{b}, v{b}, v{b+2*q}')
        a(f'v_add_f32 v{b+1}, v{b+1}, v{b+2*q+1}')
    for r in range(2):
        a(f'v_mov_b32 v{b+2}, v{b+r}'); a(f'v_mov_b32 v{b+3}, v{b+r}')
        a(f'v_permlane32_swap_b32 v{b+2}, v{b+3}')
        a(f'v_add_f32 v{b+r}, v{b+2}, v{b+3}')
    a(f'v_mul_f32 v{b}, {f2hex(1.0/640)}, v{b}')
    a(f'v_mul_f32 v{b+1}, {f2hex(1.0/640)}, v{b+1}')
    a(f'v_fma_f32 v{b+1}, -v{b}, v{b}, v{b+1}')
    a(f'v_add_f32 v{b+1}, 0x3727c5ac, v{b+1}')
    a(f'v_rsq_f32 v{b+1}, v{b+1}')
    a(f'v_mul_f32 v{b}, v{b}, v{b+1}')
    a('s_lshl_b32 s28, s12, 8')
    a('v_lshlrev_b32 v14, 3, v3')
    a('v_add_u32 v14, s28, v14')
    a(f'ds_write_b64 v14, {v(b,2)} offset:{LST}')
    a.label(l2)
    a('s_lshl_b32 s28, s23, 8')
    a('s_lshl_b32 s29, s26, 7')
    a('s_add_u32 s28, s28, s29')
    a('v_and_b32 v14, 1, v2')
    a('v_lshlrev_b32 v14, 6, v14')
    a('v_lshrrev_b32 v15, 4, v2')
    a('v_lshl_add_u32 v14, v15, 4, v14')
    a('v_add_u32 v14, s28, v14')
    a('s_mov_b32 s44, 0x00030003')
    a('s_mov_b32 s45, 0x00030003')
    a('s_mov_b64 exec, s[44:45]')
    a(f'ds_write_b128 v14, {v(CSA,4)} offset:{LST+1024}')
    a('s_mov_b64 exec, -1')
    a('s_waitcnt lgkmcnt(0)')
    a('s_barrier')
    a('s_lshl_b32 s28, s26, 9')
    a('v_lshlrev_b32 v14, 3, v3')
    a('v_add_u32 v14, s28, v14')
    a(f'ds_read_b64 {v(ST,2)}, v14 offset:{LST}')
    a(f'ds_read_b64 {v(ST+4,2)}, v14 offset:{LST+256}')
    a('s_lshl_b32 s28, s23, 8')
    a('v_lshlrev_b32 v14, 4, v4')
    a('v_add_u32 v14, s28, v14')
    for th_ in range(2):
        for g in range(4):
            a(f'ds_read_b128 {v(CS+32*th_+4*g,4)}, v14 offset:{LST + 1024 + th_*128 + g*32}')
    for q in range(8):
        a(f'v_lshlrev_b32 v{B1+2*q}, 16, v{B1R+q}')
        a(f'v_and_b32 v{B1+2*q+1}, 0xffff0000, v{B1R+q}')
    a('s_waitcnt lgkmcnt(0)')
    for r in range(16): a(f'v_add_f32 v{CS+r}, v{CS+r}, v{CS+32+r}')
    for j in range(2):
        b = ST + 4 * j
        for r in range(16):
            a(f'v_fma_f32 v{b+2}, -v{b}, v{CS+r}, v{B1+r}')
            a(f'v_fma_f32 v{ACC+16*j+r}, v{b+1}, v{ACC+16*j+r}, v{b+2}')
            a(f'v_max_f32 v{ACC+16*j+r}, 0, v{ACC+16*j+r}')
            a(f'v_mul_f32 v{ACC+16*j+r}, v{ACC+16*j+r}, v{ACC+16*j+r}')
    PK = 104
    for r in range(16):
        a(f'v_cvt_pk_bf16_f32 v{PK+r}, v{ACC+2*r}, v{ACC+2*r+1}')
    a('v_lshrrev_b32 v13, 4, v3')
    a('s_mov_b32 s18, 55296')
    a('v_mul_lo_u32 v13, v13, s18')
    a('v_and_b32 v14, 15, v3')
    a('v_lshl_add_u32 v13, v14, 4, v13')
    a('v_lshl_add_u32 v13, v4, 8, v13')
    a('s_lshr_b32 s18, s27, 4')
    a('s_mul_i32 s18, s18, 55296')
    a('s_lshl_b32 s17, s14, 2')
    a('s_add_u32 s17, s17, s23')
    a('s_cmp_ge_u32 s17, 54')
    a('s_cselect_b32 s19, 0x40000000, 0')
    a('s_lshl_b32 s17, s17, 10')
    a('s_add_u32 s17, s17, s18')
    a(f's_add_u32 s17, s17, {WS_G}')
    a('s_add_u32 s17, s17, s19')
    a(f's_add_u32 s18, s17, {2*55296}')
    stores2(a, [f'buffer_store_dwordx4 {v(PK,4)}, v13, s[8:11], s17 offen',
                f'buffer_store_dwordx4 {v(PK+4,4)}, v13, s[8:11], s17 offen offset:512',
                f'buffer_store_dwordx4 {v(PK+8,4)}, v13, s[8:11], s18 offen',
                f'buffer_store_dwordx4 {v(PK+12,4)}, v13, s[8:11], s18 offen offset:512'])

def phase_ffn2(a, L, published):
    NST = 7
    vm = VM()
    BF, ACC, AF, T = 16, 128, 168, 16
    def pre():
        for st in (2, 3):
            for ft in range(5):
                for x in w2_dma(st, ft): a(x)
    def mask():
        a(f's_and_b32 s40, s{SJ}, 2')
        a('s_cmp_eq_u32 s40, 0')
        a('s_mov_b32 s44, 0x0aaaaaaa')
        a('s_cselect_b32 s44, 0x05555555, s44')
        a('s_mov_b32 s45, 0')
    sync(a, 2 if published else None, 2, mask, pre)
    return vm

def ffn2_body(a, L):
    NST = 7
    vm = VM()
    for st in (0, 1, 2, 3):
        for ft in range(5): vm.issue(('w', st))
    BF, ACC, AF, T, HR, BB = 16, 124, 144, 184, 200, 208
    if 'f1stamp' not in gen.EXP: stamp(a, 12)
    a(f's_and_b32 s20, s{SJ}, 3')
    a(f's_lshr_b32 s21, s{SJ}, 2')
    a('s_and_b32 s22, s12, 3')
    a('s_lshr_b32 s23, s12, 2')
    a(f's_lshl_b32 s29, s{SG}, 4')
    a('s_lshl_b32 s30, s20, 2')
    a('s_add_u32 s29, s29, s30')
    a('s_add_u32 s29, s29, s22')
    a('s_mul_i32 s32, s29, 55296')
    a('s_mul_i32 s33, s23, 27648')
    a('s_add_u32 s32, s32, s33')
    a(f's_add_u32 s32, s32, {WS_G}')
    def bload(i):
        a(f's_add_u32 s33, s32, {i*1024}')
        a(f'buffer_load_dwordx4 {v(BF+4*i,4)}, v10, s[8:11], s33 offen sc1')
        vm.issue(('b', i))
    for i in range(6): bload(i)
    bq = list(range(6, 27))
    wq = [(st, ft) for st in range(4, 7) for ft in range(5)]
    a(f's_load_dwordx2 s[50:51], s[0:1], {A_B2}')
    a('s_mul_i32 s34, s23, 20480')
    a('v_add_u32 v8, s34, v10')
    a('v_add_u32 v9, 0x10000, v8')
    a('v_add_u32 v11, 0x20000, v8')
    a('s_waitcnt lgkmcnt(0)')
    srd(a, 52, 50, D * 2)
    def areads(ks, buf):
        st, i = ks >> 2, ks & 3
        for ft in range(5):
            off = F2_SLOT[st] + i * 5120 + ft * 1024
            base = {0: 8, 1: 9, 2: 11}[off >> 16]
            a(f'ds_read_b128 {v(AF+20*buf+4*ft,4)}, v{base} offset:{off & 65535}')
    vm.wait(a, lambda x: x == ('w', 0))
    a('s_barrier')
    areads(0, 0)
    for ks in range(27):
        st, i = ks >> 2, ks & 3
        buf = ks & 1
        nxt = ks + 1
        if nxt < 27:
            if (nxt & 3) == 0:
                a('s_waitcnt lgkmcnt(0)')
                vm.wait(a, lambda x: x == ('w', nxt >> 2))
                a('s_barrier')
                areads(nxt, buf ^ 1)
                vm.wait(a, lambda x: x == ('b', ks))
            else:
                areads(nxt, buf ^ 1)
                vm.wait(a, lambda x: x == ('b', ks), ' lgkmcnt(5)')
        else:
            vm.wait(a, lambda x: x == ('b', ks), ' lgkmcnt(0)')
        for ft in range(5):
            acc = v(ACC + 4 * ft, 4)
            a(f'v_mfma_f32_16x16x32_bf16 {acc}, {v(AF+20*buf+4*ft,4)}, {v(BF+4*ks,4)}, {"0" if ks == 0 else acc}')
            if ft in (1, 3) and bq and bq[0] <= ks + 12: bload(bq.pop(0))
            if ft in (0, 2, 4) and wq and (wq[0][0] - 4) < st + (1 if (nxt & 3) == 0 and nxt < 27 else 0):
                x_ = wq.pop(0)
                for x in w2_dma(*x_): a(x)
                vm.issue(('w', x_[0]))
        if ks == 20:
            a('v_and_b32 v5, 15, v2')
            a('v_lshrrev_b32 v6, 4, v2')
            a('s_mul_i32 s34, s29, 20480')
            a('s_mul_i32 s35, s21, 2560')
            a('s_add_u32 s34, s34, s35')
            a('s_mul_i32 s35, s23, 1536')
            a('s_add_u32 s34, s34, s35')
            a(f's_add_u32 s34, s34, {WS_H}')
            a('v_lshrrev_b32 v12, 1, v6')
            a('v_lshlrev_b32 v12, 8, v12')
            a('v_lshl_add_u32 v12, v5, 4, v12')
            a('v_and_b32 v13, 1, v6')
            a('v_lshl_add_u32 v12, v13, 3, v12')
            for i_ in range(3):
                a(f'buffer_load_dwordx2 {v(HR+2*i_,2)}, v12, s[8:11], s34 offen offset:{512*i_} sc1'); vm.issue('hr')
            a('s_mul_i32 s35, s21, 160')
            a('s_mul_i32 s36, s23, 96')
            a('s_add_u32 s35, s35, s36')
            a('v_lshlrev_b32 v13, 3, v6')
            for i_ in range(3):
                a(f'buffer_load_dwordx2 {v(BB+2*i_,2)}, v13, s[52:55], s35 offen offset:{32*i_}'); vm.issue('hr')
    assert not bq and not wq, (bq, wq)
    if 'f1stamp' not in gen.EXP: stamp(a, 13)
    XB = 81920
    a('s_mul_i32 s40, s12, 3072')
    a(f's_add_u32 s40, s40, {XB}')
    a('v_add_u32 v14, s40, v10')
    l1, l2 = lab('fx'), lab('fx')
    a('s_nop 7')
    a('s_cmp_eq_u32 s23, 0')
    a(f's_cbranch_scc0 {l1}')
    for i_, ft in enumerate((3, 4)): a(f'ds_write_b128 v14, {v(ACC+4*ft,4)} offset:{1024*i_}')
    a(f's_branch {l2}')
    a.label(l1)
    for ft in range(3): a(f'ds_write_b128 v14, {v(ACC+4*ft,4)} offset:{1024*ft}')
    a('s_waitcnt lgkmcnt(0)')
    for r in range(8): a(f'v_mov_b32 v{ACC+r}, v{ACC+12+r}')
    a.label(l2)
    a('s_xor_b32 s40, s12, 4')
    a('s_mul_i32 s40, s40, 3072')
    a(f's_add_u32 s40, s40, {XB}')
    a('v_add_u32 v14, s40, v10')
    a('s_waitcnt lgkmcnt(0)')
    a('s_barrier')
    for i_ in range(3): a(f'ds_read_b128 {v(T+4*i_,4)}, v14 offset:{1024*i_}')
    a('s_waitcnt vmcnt(0) lgkmcnt(0)')
    for r in range(12): a(f'v_add_f32 v{ACC+r}, v{ACC+r}, v{T+r}')
    for i_ in range(3):
        for h2 in range(2):
            a(f'v_lshlrev_b32 v{T}, 16, v{HR+2*i_+h2}')
            a(f'v_and_b32 v{T+1}, 0xffff0000, v{HR+2*i_+h2}')
            a(f'v_lshlrev_b32 v{T+2}, 16, v{BB+2*i_+h2}')
            a(f'v_and_b32 v{T+3}, 0xffff0000, v{BB+2*i_+h2}')
            a(f'v_add_f32 v{ACC+4*i_+2*h2}, v{ACC+4*i_+2*h2}, v{T+2}')
            a(f'v_add_f32 v{ACC+4*i_+2*h2+1}, v{ACC+4*i_+2*h2+1}, v{T+3}')
            a(f'v_add_f32 v{ACC+4*i_+2*h2}, v{ACC+4*i_+2*h2}, v{T}')
            a(f'v_add_f32 v{ACC+4*i_+2*h2+1}, v{ACC+4*i_+2*h2+1}, v{T+1}')
    for i_ in range(6): a(f'v_cvt_pk_bf16_f32 v{T+4+i_}, v{ACC+2*i_}, v{ACC+2*i_+1}')
    a('s_lshl_b32 s33, s29, 4')
    a('v_add_u32 v7, s33, v5')
    a('s_movk_i32 s34, 1280')
    a('v_mul_lo_u32 v7, v7, s34')
    a('v_lshl_add_u32 v7, v6, 3, v7')
    a('s_mul_i32 s34, s21, 160')
    a('s_mul_i32 s35, s23, 96')
    a('s_add_u32 s34, s34, s35')
    a('s_cmp_eq_u32 s23, 0')
    a('s_cselect_b32 s35, s34, 0x7ff00000')
    a(f'buffer_store_dwordx2 {v(T+4,2)}, v7, s[76:79], s34 offen')
    a(f'buffer_store_dwordx2 {v(T+6,2)}, v7, s[76:79], s34 offen offset:32')
    a(f'buffer_store_dwordx2 {v(T+8,2)}, v7, s[76:79], s35 offen offset:64')

def kf():
    a = Asm()
    L = 'kf_kernel'
    kernel_begin(a, L)
    a('s_cmp_ge_u32 s2, 256')
    a(f's_cbranch_scc1 {L}_end')
    stamp(a, 0, True); stamp(a, 1)
    if 'dbg' in gen.EXP:
        a('s_memrealtime s[90:91]'); a('s_memtime s[92:93]'); a(f's_load_dwordx2 s[94:95], s[0:1], {A_DBG}')
    a(f's_load_dwordx2 s[4:5], s[0:1], {A_WS}')
    a(f's_load_dwordx2 s[68:69], s[0:1], {A_X}')
    a(f's_load_dwordx2 s[70:71], s[0:1], {A_OUT}')
    a(f's_and_b32 s{SG}, s2, 7')
    a(f's_lshr_b32 s{SJ}, s2, 3')
    a(f's_mov_b32 s{SH}, s{SJ}')
    a(f's_mov_b32 s{SR}, s{SG}')
    a('v_lshrrev_b32 v1, 6, v0')
    a('v_and_b32 v2, 63, v0')
    a('v_readfirstlane_b32 s12, v1')
    a('v_and_b32 v3, 31, v2')
    a('v_lshrrev_b32 v4, 5, v2')
    a(f's_getreg_b32 s{SPURE}, hwreg(HW_REG_XCC_ID, 0, 4)')
    a(f's_add_u32 s{SPURE}, s{SPURE}, 1')
    a('s_waitcnt lgkmcnt(0)')
    srd(a, 8, 4, WS_END)
    srd(a, 72, 68, S * D * 2)
    srd(a, 76, 70, S * D * 2)
    l = lab('xp')
    a('s_cmp_lg_u32 s12, 0')
    a(f's_cbranch_scc1 {l}')
    a(f's_lshl_b32 s40, s{SG}, 7')
    a(f's_lshl_b32 s41, s{SJ}, 2')
    a('s_add_u32 s40, s40, s41')
    a(f's_add_u32 s40, s40, {WS_XT}')
    a('v_mov_b32 v14, 0')
    a(f'v_mov_b32 v15, s{SPURE}')
    a('s_mov_b64 exec, 1')
    a('buffer_store_dword v15, v14, s[8:11], s40 offen sc1')
    a('s_mov_b64 exec, -1')
    a.label(l)
    if 'nocodepf' not in gen.EXP:
        a('s_getpc_b64 s[40:41]')
        a.label('.Lpc_here')
        a(f's_sub_u32 s40, s40, (.Lpc_here - {L})')
        a('s_subb_u32 s41, s41, 0')
        a('s_lshl_b32 s42, s12, 12')
        a('v_lshlrev_b32 v14, 6, v2')
        a('v_add_u32 v14, s42, v14')
        a(f's_mov_b32 s42, (.Lkf_last - {L})')
        a('v_add_u32 v16, 0x8000, v14')
        a('v_min_u32 v14, s42, v14')
        a('v_min_u32 v16, s42, v16')
        a('v_mov_b32 v15, s41')
        a('v_mov_b32 v17, s41')
        a('v_add_co_u32 v14, vcc, s40, v14')
        a('v_addc_co_u32 v15, vcc, 0, v15, vcc')
        a('v_add_co_u32 v16, vcc, s40, v16')
        a('v_addc_co_u32 v17, vcc, 0, v17, vcc')
        a('global_load_dword v151, v[14:15], off')
        a('global_load_dword v151, v[16:17], off')
    stamp(a, 2)
    phase_attn(a)
    phase_oproj(a)
    stamp(a, 5)
    a(f's_cmp_ge_u32 s{SJ}, 28')
    a(f's_cbranch_scc1 {L}_idle')
    phase_ffn1(a, None)
    phase_ffn2(a, L, True)
    a(f's_branch {L}_f2')
    a.label(f'{L}_idle')
    a('s_waitcnt vmcnt(0)')
    a('s_barrier')
    li = lab('id')
    a('s_cmp_lg_u32 s12, 0')
    a(f's_cbranch_scc1 {li}')
    flag_store(a, 1, 14)
    a.label(li)
    w2_setup(a)
    for st in (0, 1):
        for ft in range(5):
            for x in w2_dma(st, ft): a(x)
    a('s_waitcnt vmcnt(0)')
    phase_ffn2(a, L, False)
    a.label(f'{L}_f2')
    ffn2_body(a, L)
    a.label(f'{L}_fin')
    if 'f1stamp' not in gen.EXP: stamp(a, 14)
    if 'dbg' in gen.EXP:
        a('s_waitcnt vmcnt(0)')
        a('s_memrealtime s[96:97]'); a('s_memtime s[86:87]'); a('s_waitcnt lgkmcnt(0)')
        ldb = lab('db')
        a('s_cmp_lg_u32 s2, 0'); a(f's_cbranch_scc1 {ldb}'); a('s_cmp_lg_u32 s12, 0'); a(f's_cbranch_scc1 {ldb}')
        a('s_sub_u32 s96, s96, s90'); a('s_sub_u32 s86, s86, s92')
        a('v_mov_b32 v0, 0'); a('v_mov_b32 v2, s96'); a('v_mov_b32 v3, s86'); a('v_mov_b32 v4, s90'); a('v_mov_b32 v5, 0')
        a('global_store_dwordx4 v0, v[2:5], s[94:95] offset:16')
        a(f's_mov_b32 s86, {WS_PROF}')
        a('buffer_load_dwordx4 v[6:9], v0, s[8:11], s86 offen')
        a('s_waitcnt vmcnt(0)')
        a('global_store_dwordx4 v0, v[6:9], s[94:95]')
        a.label(ldb)
    if gen.PROF: a('s_waitcnt vmcnt(0)')
    stamp(a, 6, True)
    stamp_flush(a, 2, 15, 8, 12)
    a.label(f'{L}_end')
    a('s_endpgm')
    attn_fallback(a)
    a.label('.Lkf_last')
    a('s_endpgm')
    return a, descriptor(L, 256, 102), f'; @launch kernel={L} grid=(256,1,1) block=(512,1,1) lds=163840'

if __name__ == '__main__':
    if 'prof' in sys.argv: gen.PROF = True
    for x in sys.argv[2:]:
        if x.startswith('x:'): gen.EXP.add(x[2:])
    out = sys.argv[1]
    import gen4
    open(out, 'w').write(build([k0, k1, kf] if 'old' in gen.EXP else [gen4.k1p, kf]))
    print('wrote', out)
```

```python
import sys
sys.path.insert(0, 'dev')
import gen
from gen import *
from gen2 import lab
from gen3 import VM
from asmlib import *

PK_LDS = 131072
TB_LDS = PK_LDS + 24576
ST_T = TB_LDS
CS_T = TB_LDS + 1024

def k1s():
    WT = '' if 'k1plain' in gen.EXP else ' sc1'
    a = Asm()
    L = 'k1_kernel'
    NS = 4
    kernel_begin(a, L)
    a('s_cmp_ge_u32 s2, 256')
    a(f's_cbranch_scc1 {L}_end')
    stamp(a, 0, True); stamp(a, 1)
    a(f's_load_dwordx2 s[24:25], s[0:1], {A_X}')
    a(f's_load_dwordx2 s[26:27], s[0:1], {A_WQKV}')
    a(f's_load_dwordx2 s[4:5], s[0:1], {A_WS}')
    a(f's_load_dwordx2 s[28:29], s[0:1], {A_WO}')
    a(f's_load_dwordx2 s[30:31], s[0:1], {A_W1}')
    a(f's_load_dwordx2 s[32:33], s[0:1], {A_W2}')
    a('s_and_b32 s15, s2, 7')
    a('s_lshr_b32 s16, s2, 3')
    a('s_and_b32 s13, s15, 3')
    a('s_lshl_b32 s13, s13, 2')
    a('s_and_b32 s17, s16, 3')
    a('s_add_u32 s13, s13, s17')
    a('s_lshr_b32 s14, s15, 2')
    a('s_lshl_b32 s14, s14, 3')
    a('s_lshr_b32 s17, s16, 2')
    a('s_add_u32 s14, s14, s17')
    a('v_lshrrev_b32 v1, 6, v0')
    a('v_and_b32 v2, 63, v0')
    a('v_readfirstlane_b32 s12, v1')
    a('v_and_b32 v3, 31, v2')
    a('v_lshrrev_b32 v4, 5, v2')
    a('v_lshlrev_b32 v10, 4, v2')
    a('s_and_b32 s23, s12, 3')
    a('s_cmp_lt_u32 s12, 4')
    a(f's_cbranch_scc1 {L}_compute')
    a('v_lshrrev_b32 v5, 3, v2')
    a('s_lshl_b32 s40, s23, 3')
    a('v_add_u32 v5, s40, v5')
    a('v_lshrrev_b32 v6, 4, v2')
    a('s_lshl_b32 s40, s23, 2')
    a('v_add_u32 v7, s40, v6')
    a('v_and_b32 v7, 7, v7')
    a('v_and_b32 v8, 7, v2')
    a('v_xor_b32 v7, v7, v8')
    a('s_movk_i32 s40, 1280')
    a('v_mul_lo_u32 v5, v5, s40')
    a('v_lshl_add_u32 v5, v7, 4, v5')
    a('s_mul_i32 s35, s13, 163840')
    a('s_lshl_b32 s40, s23, 2')
    a('v_add_u32 v7, s40, v6')
    a('s_movk_i32 s40, 3840')
    a('v_mul_lo_u32 v7, v7, s40')
    a('v_and_b32 v8, 15, v2')
    a('v_lshlrev_b32 v9, 2, v6')
    a('v_xor_b32 v8, v8, v9')
    a('v_lshl_add_u32 v6, v8, 4, v7')
    a('s_lshl_b32 s36, s14, 8')
    a('s_lshl_b32 s37, s23, 10')
    a('s_waitcnt lgkmcnt(0)')
    srd(a, 56, 24, S * D * 2)
    srd(a, 60, 26, D * 3 * D * 2)
    srd(a, 8, 4, WS_END)
    vm = VM()
    def dma(st, k):
        slot = (st % NS) * 32768
        if k < 4:
            a(f's_add_u32 m0, s37, {slot + k*4096}')
            a(f's_add_u32 s38, s35, {st*128 + k*32*1280}')
            a('buffer_load_dwordx4 v5, s[56:59], s38 offen lds')
        else:
            a(f's_add_u32 m0, s37, {slot + 16384 + (k-4)*4096}')
            a(f's_add_u32 s38, s36, {(st*64 + (k-4)*16)*3840}')
            a('buffer_load_dwordx4 v6, s[60:63], s38 offen lds')
        vm.issue(('r', st))
    def decode():
        l1_, l2_, ld = lab('pk'), lab('pk'), lab('pk')
        a('s_cmp_lt_u32 s2, 40')
        a(f's_cbranch_scc0 {l1_}')
        srd(a, 64, 28, D * D * 2)
        a(f's_mul_hi_u32 s46, s2, {magic(10)}')
        a('s_mul_i32 s47, s46, 10')
        a('s_sub_u32 s47, s2, s47')
        a('s_movk_i32 s41, 160'); a('s_movk_i32 s42, 1280'); a(f's_mov_b32 s44, {WS_WO}'); a('s_movk_i32 s45, 20480')
        a(f's_branch {ld}')
        a.label(l1_)
        a('s_cmp_lt_u32 s2, 148')
        a(f's_cbranch_scc0 {l2_}')
        srd(a, 64, 30, D * F * 2)
        a('s_sub_u32 s40, s2, 40')
        a(f's_mul_hi_u32 s46, s40, {magic(27)}')
        a('s_mul_i32 s47, s46, 27')
        a('s_sub_u32 s47, s40, s47')
        a('s_movk_i32 s41, 160'); a('s_movk_i32 s42, 3456'); a(f's_mov_b32 s44, {WS_W1}'); a('s_movk_i32 s45, 20480')
        a(f's_branch {ld}')
        a.label(l2_)
        srd(a, 64, 32, F * D * 2)
        a('s_sub_u32 s40, s2, 148')
        a(f's_mul_hi_u32 s46, s40, {magic(10)}')
        a('s_mul_i32 s47, s46, 10')
        a('s_sub_u32 s47, s40, s47')
        a('s_movk_i32 s41, 192'); a('s_movk_i32 s42, 1280'); a(f's_mov_b32 s44, {WS_W2}'); a('s_mov_b32 s45, 55296')
        a.label(ld)
        a('s_mul_i32 s43, s46, s41')
        a('s_lshr_b32 s48, s43, 3')
        a('s_mul_i32 s43, s43, s42')
        a('s_lshl_b32 s40, s47, 7')
        a('s_add_u32 s43, s43, s40')
        a('s_lshl_b32 s40, s47, 2')
        a('s_mul_i32 s40, s40, s45')
        a('s_add_u32 s44, s44, s40')
        a('s_lshl_b32 s40, s48, 8')
        a('s_add_u32 s44, s44, s40')
    def pack_dma_setup():
        a('v_lshrrev_b32 v11, 3, v2')
        a('s_lshl_b32 s40, s23, 3')
        a('v_add_u32 v11, s40, v11')
        a('v_mul_lo_u32 v11, v11, s42')
        a('v_and_b32 v12, 7, v2')
        a('v_lshl_add_u32 v11, v12, 4, v11')
        a('s_cmp_lt_u32 s2, 238')
        a('s_cselect_b32 s49, s43, 0x7ff00000')
        a('s_lshl_b32 s50, s42, 5')
    def pack_dma_one(i):
        a(f's_add_u32 m0, s37, {PK_LDS + i*4096}')
        a('s_nop 0')
        a('buffer_load_dwordx4 v11, s[64:67], s49 offen lds')
        a('s_add_u32 s49, s49, s50')
    def pack_dma():
        pack_dma_setup()
        for i in range(6): pack_dma_one(i)
    def pack_setup():
        a('v_lshrrev_b32 v12, 4, v2')
        a('v_lshrrev_b32 v13, 2, v2')
        a('v_and_b32 v13, 3, v13')
        a('v_lshl_add_u32 v12, v12, 3, v13')
        a('v_lshlrev_b32 v12, 7, v12')
        a('v_and_b32 v13, 3, v2')
        a('v_lshl_add_u32 v12, v13, 3, v12')
        a('s_lshl_b32 s49, s23, 5')
        a(f's_add_u32 s49, s49, {PK_LDS}')
        a('v_add_u32 v12, s49, v12')
        a('s_mul_i32 s54, s23, s45')
        a('s_add_u32 s54, s54, s44')
        a('s_cmp_lt_u32 s2, 238')
        a('s_cselect_b32 s54, s54, 0x7ff00000')
        a('s_cmp_gt_u32 s41, 160')
        a('s_cselect_b32 s55, s54, 0x7ff00000')
    def pack_read(i, T):
        a(f'ds_read_b64_tr_b16 {v(T,2)}, v12 offset:{i*4096}')
        a(f'ds_read_b64_tr_b16 {v(T+2,2)}, v12 offset:{i*4096 + 512}')
    def pack_store(i, T):
        a(f's_add_u32 s49, {"s54" if i < 5 else "s55"}, {i*1024}')
        a(f'buffer_store_dwordx4 {v(T,4)}, v10, s[8:11], s49 offen' + WT)
    def pack_work(T):
        pack_setup()
        for i in range(6): pack_read(i, T + 4*i)
        a('s_waitcnt lgkmcnt(0)')
        for i in range(6): pack_store(i, T + 4*i)
    lz = f'{L}_nogemm'
    a('s_cmp_ge_u32 s14, 15')
    a(f's_cbranch_scc1 {lz}')
    for st in range(2):
        for k in range(4): dma(st, k)
    decode()
    pack_dma_setup()
    VB = 14
    a('v_lshrrev_b32 v7, 1, v3')
    a('v_and_b32 v7, 7, v7')
    a('s_lshl_b32 s40, s23, 12')
    a('v_lshlrev_b32 v8, 7, v3')
    a('v_add_u32 v8, s40, v8')
    for ks in range(4):
        a(f'v_or_b32 v9, {2*ks}, v4')
        a('v_xor_b32 v9, v9, v7')
        a(f'v_lshl_add_u32 v{VB+ks}, v9, 4, v8')
        a(f'v_add_u32 v{VB+4+ks}, 0x10000, v{VB+ks}')
    XS, S1, T = 24, 40, 44
    for r in range(4): a(f'v_mov_b32 v{S1+r}, 0')
    pend = [(st, k) for st in range(2, 10) for k in range(4)]
    stamp(a, 2)
    vm.wait(a, lambda x: x == ('r', 0))
    a('s_barrier')
    stamp(a, 3)
    for st in range(10):
        off = (st % NS) * 32768
        hi = off >= 65536
        if hi: off -= 65536
        for ks in range(4): a(f'ds_read_b128 {v(XS+4*ks,4)}, v{VB+(4 if hi else 0)+ks} offset:{off}')
        n_iss = 8 if st == 0 else 4
        todo = []
        while pend and pend[0][0] <= st + NS - 1 and len(todo) < n_iss: todo.append(pend.pop(0))
        if todo: dma(*todo.pop(0))
        a('s_waitcnt lgkmcnt(0)')
        for r in range(16):
            src = XS + r; t = T + 2 * (r & 1); acc = S1 + (r & 1)
            if 'k1nostat' not in gen.EXP:
                a(f'v_lshlrev_b32 v{t}, 16, v{src}'); a(f'v_and_b32 v{t+1}, 0xffff0000, v{src}')
                a(f'v_add_f32 v{acc}, v{acc}, v{t}'); a(f'v_fmac_f32 v{acc+2}, v{t}, v{t}')
                a(f'v_add_f32 v{acc}, v{acc}, v{t+1}'); a(f'v_fmac_f32 v{acc+2}, v{t+1}, v{t+1}')
            if todo and ((r & 3) == 3 or (st == 0 and (r & 1))): dma(*todo.pop(0))
        while todo: dma(*todo.pop(0))
        if st <= 2 and 'k1nopk' not in gen.EXP:
            for i in (2*st, 2*st+1):
                pack_dma_one(i); vm.issue('pk')
        if st + 1 < 10:
            if st == 3 and 'k1nopk' not in gen.EXP: vm.wait(a, lambda x: x == ('r', 4) or x == 'pk')
            else: vm.wait(a, lambda x: x == ('r', st + 1))
            a('s_barrier')
    a(f'v_add_f32 v{S1}, v{S1}, v{S1+1}')
    a(f'v_add_f32 v{S1+2}, v{S1+2}, v{S1+3}')
    for r in (0, 2):
        a(f'v_mov_b32 v{T}, v{S1+r}'); a(f'v_mov_b32 v{T+1}, v{S1+r}')
        a(f'v_permlane32_swap_b32 v{T}, v{T+1}')
        a(f'v_add_f32 v{S1+r}, v{T}, v{T+1}')
    a(f'v_mul_f32 v{S1}, {f2hex(1.0/640)}, v{S1}')
    a(f'v_mul_f32 v{S1+1}, {f2hex(1.0/640)}, v{S1+2}')
    a(f'v_fma_f32 v{S1+1}, -v{S1}, v{S1}, v{S1+1}')
    a(f'v_add_f32 v{S1+1}, 0x3727c5ac, v{S1+1}')
    a(f'v_rsq_f32 v{S1+1}, v{S1+1}')
    a(f'v_mul_f32 v{S1}, v{S1}, v{S1+1}')
    a('s_lshl_b32 s40, s23, 7')
    a(f's_add_u32 s40, s40, {ST_T}')
    a('v_lshlrev_b32 v7, 2, v3')
    a('v_add_u32 v7, s40, v7')
    a(f'ds_write_b32 v7, v{S1}')
    a(f'ds_write_b32 v7, v{S1+1} offset:512')
    a('s_waitcnt lgkmcnt(0)')
    a('s_barrier')
    a('s_endpgm')
    a.label(lz)
    decode()
    pack_dma()
    a('v_lshlrev_b32 v1, 4, v2')
    a('s_lshl_b32 s40, s23, 10')
    a('v_add_u32 v1, s40, v1')
    for r in range(4): a(f'v_mov_b32 v{100+r}, 0')
    a(f's_mov_b32 s17, {WS_FLAG}')
    a('buffer_store_dwordx4 v[100:103], v1, s[8:11], s17 offen')
    a('buffer_store_dwordx4 v[100:103], v1, s[8:11], s17 offen offset:4095' if False else 's_add_u32 s17, s17, 4096')
    a('buffer_store_dwordx4 v[100:103], v1, s[8:11], s17 offen')
    a('s_waitcnt vmcnt(0)')
    a('s_barrier')
    pack_work(48)
    a('s_endpgm')
    a.label(f'{L}_compute')
    a('s_cmp_ge_u32 s14, 15')
    a(f's_cbranch_scc1 {L}_end')
    a('s_and_b32 s21, s12, 1')
    a('s_lshr_b32 s22, s12, 1')
    a('v_lshrrev_b32 v6, 4, v2')
    a('s_lshl_b32 s40, s23, 2')
    a('v_add_u32 v7, s40, v6')
    a('s_movk_i32 s40, 3840')
    a('v_mul_lo_u32 v7, v7, s40')
    a('v_and_b32 v8, 15, v2')
    a('v_lshlrev_b32 v9, 2, v6')
    a('v_xor_b32 v8, v8, v9')
    a('v_lshl_add_u32 v6, v8, 4, v7')
    a('s_lshl_b32 s36, s14, 8')
    a('s_lshl_b32 s37, s23, 10')
    a('s_waitcnt lgkmcnt(0)')
    srd(a, 60, 26, D * 3 * D * 2)
    vc = VM()
    def wdma(st, k):
        slot = (st % NS) * 32768
        a(f's_add_u32 m0, s37, {slot + 16384 + k*4096}')
        a(f's_add_u32 s38, s36, {(st*64 + k*16)*3840}')
        a('buffer_load_dwordx4 v6, s[60:63], s38 offen lds')
        vc.issue(('r', st))
    for st in range(2):
        for k in range(4): wdma(st, k)
    base_ops = list(vc.ops)
    VB, VA = 14, 22
    a('v_lshrrev_b32 v7, 1, v3')
    a('v_and_b32 v7, 7, v7')
    a('s_lshl_b32 s40, s22, 13')
    a('v_lshlrev_b32 v8, 7, v3')
    a('v_add_u32 v8, s40, v8')
    for ks in range(4):
        a(f'v_or_b32 v9, {2*ks}, v4')
        a('v_xor_b32 v9, v9, v7')
        a(f'v_lshl_add_u32 v{VB+ks}, v9, 4, v8')
        a(f'v_add_u32 v{VB+4+ks}, 0x10000, v{VB+ks}')
    a('v_lshrrev_b32 v7, 2, v2')
    a('v_and_b32 v7, 3, v7')
    a('v_and_b32 v8, 3, v2')
    a('v_and_b32 v9, 1, v8')
    a('v_lshlrev_b32 v9, 1, v9')
    a('v_lshrrev_b32 v11, 1, v8')
    a('v_or_b32 v9, v9, v11')
    a('s_cmp_lt_u32 s14, 10')
    a('s_cselect_b64 vcc, -1, 0')
    a('v_cndmask_b32 v8, v8, v9, vcc')
    a('v_lshrrev_b32 v9, 4, v2')
    a('v_and_b32 v9, 1, v9')
    a('v_lshl_add_u32 v8, v9, 2, v8')
    a('v_lshl_add_u32 v12, v4, 3, v7')
    a('v_lshlrev_b32 v12, 8, v12')
    a('v_and_b32 v13, 1, v8')
    a('v_lshl_add_u32 v12, v13, 3, v12')
    a('v_lshrrev_b32 v8, 1, v8')
    a('v_lshlrev_b32 v11, 2, v7')
    for aa in range(2):
        a(f's_xor_b32 s40, s22, {aa}')
        a('s_lshl_b32 s41, s21, 1')
        a('s_add_u32 s40, s40, s41')
        a(f's_mov_b32 s{50+aa}, s40')
        a('s_lshl_b32 s40, s40, 2')
        a('v_add_u32 v9, s40, v8')
        a('v_xor_b32 v9, v9, v11')
        a(f'v_lshl_add_u32 v{VA+2*aa}, v9, 4, v12')
        a(f'v_add_u32 v{VA+2*aa}, 16384, v{VA+2*aa}')
        a(f'v_add_u32 v{VA+2*aa+1}, 0x10000, v{VA+2*aa}')
    SEL, CSA = 28, 32
    a(f'v_mov_b32 v{SEL}, 0')
    a('s_mov_b32 s52, 0x00020001')
    a('s_mov_b32 s53, 0x00020001')
    a('v_mov_b32 v7, 0x3f803f80')
    a(f'v_cndmask_b32 v{SEL}, v{SEL}, v7, s[52:53]')
    for r in range(1, 4): a(f'v_mov_b32 v{SEL+r}, v{SEL}')
    for r in range(4): a(f'v_mov_b32 v{CSA+r}, 0')
    ACC, FA, FB, T = 40, 104, 120, 136
    a('s_waitcnt lgkmcnt(0)')
    srd(a, 8, 4, WS_END)
    a('s_mov_b32 s56, s50'); a('s_mov_b32 s57, s51')
    decode()
    pack_setup()
    PKT = 140
    def reads(st, ks, buf):
        off = (st % NS) * 32768
        hi = 1 if off >= 65536 else 0
        off -= hi * 65536
        for aa in range(2):
            a(f'ds_read_b64_tr_b16 {v(FA+8*buf+4*aa,2)}, v{VA+2*aa+hi} offset:{off + ks*4096}')
            a(f'ds_read_b64_tr_b16 {v(FA+8*buf+4*aa+2,2)}, v{VA+2*aa+hi} offset:{off + ks*4096 + 1024}')
        bb = VB + 4 * hi + ks
        a(f'ds_read_b128 {v(FB+8*buf,4)}, v{bb} offset:{off}')
        a(f'ds_read_b128 {v(FB+8*buf+4,4)}, v{bb} offset:{off + 4096}')
    def main(swap):
        vc.ops = list(base_ops)
        pend = [(st, k) for st in range(2, 10) for k in range(4)]
        vc.wait(a, lambda x: x == ('r', 0))
        a('s_barrier')
        stamp(a, 3)
        reads(0, 0, 0)
        buf = 0
        for st in range(10):
            for ks in range(4):
                if ks < 3:
                    if st >= 4 and ks == 0 and 'k1nopk' not in gen.EXP: pack_read(st - 4, PKT)
                    reads(st, ks + 1, buf ^ 1)
                    a('s_waitcnt lgkmcnt(%d)' % (8 if (st >= 4 and ks == 0 and 'k1nopk' not in gen.EXP) else 6))
                else:
                    a('s_waitcnt lgkmcnt(0)')
                    if st + 1 < 10:
                        if 'k1stamp' in gen.EXP and st in (2, 5): stamp(a, {2: 8, 5: 10}[st])
                        vc.wait(a, lambda x: x == ('r', st + 1))
                        a('s_barrier')
                        if 'k1stamp' in gen.EXP and st in (2, 5): stamp(a, {2: 9, 5: 11}[st])
                        reads(st + 1, 0, buf ^ 1)
                for aa in range(2):
                    for j in range(2):
                        A_ = v(FA+8*buf+4*aa, 4); B_ = v(FB+8*buf+4*j, 4)
                        acc = v(ACC+32*aa+16*j, 16)
                        c = '0' if (st == 0 and ks == 0) else acc
                        if swap: a(f'v_mfma_f32_32x32x16_bf16 {acc}, {B_}, {A_}, {c}')
                        else: a(f'v_mfma_f32_32x32x16_bf16 {acc}, {A_}, {B_}, {c}')
                if 'k1nocs' not in gen.EXP: a(f'v_mfma_f32_16x16x32_bf16 {v(CSA,4)}, {v(FA+8*buf,4)}, {v(SEL,4)}, {v(CSA,4)}')
                if st >= 4 and ks == 1 and 'k1nopk' not in gen.EXP:
                    pack_store(st - 4, PKT); vc.issue('pks')
                lim = st + NS - 1 + (1 if ks == 3 else 0)
                for _ in range(2 if st == 0 else 1):
                    if pend and pend[0][0] <= lim: wdma(*pend.pop(0))
                buf ^= 1
        stamp(a, 4)
        a('s_lshl_b32 s40, s56, 7')
        a(f's_add_u32 s40, s40, {CS_T}')
        a('v_and_b32 v8, 1, v2')
        a('v_lshlrev_b32 v8, 6, v8')
        a('v_lshrrev_b32 v9, 4, v2')
        a('v_lshl_add_u32 v8, v9, 4, v8')
        a('v_add_u32 v8, s40, v8')
        a('s_mov_b32 s52, 0x00030003')
        a('s_mov_b32 s53, 0x00030003')
        a('s_nop 7')
        a('s_mov_b64 exec, s[52:53]')
        a(f'ds_write_b128 v8, {v(CSA,4)}')
        a('s_mov_b64 exec, -1')
        a('s_waitcnt lgkmcnt(0)')
        a('s_barrier')
    a('s_cmp_ge_u32 s14, 10')
    a(f's_cbranch_scc1 {L}_v')
    main(False)
    C, P = 104, 136
    a('s_lshl_b32 s40, s22, 8')
    a(f's_add_u32 s40, s40, {ST_T}')
    a('v_lshlrev_b32 v7, 2, v3')
    a('v_add_u32 v7, s40, v7')
    for j in range(2):
        a(f'ds_read_b32 v{P+2*j}, v7 offset:{j*128}')
        a(f'ds_read_b32 v{P+2*j+1}, v7 offset:{512 + j*128}')
    for aa in range(2):
        a(f's_lshl_b32 s40, s{56+aa}, 7')
        a(f's_add_u32 s40, s40, {CS_T}')
        a('v_lshlrev_b32 v7, 4, v4')
        a('v_add_u32 v7, s40, v7')
        for g in range(4): a(f'ds_read_b128 {v(C+16*aa+4*g,4)}, v7 offset:{g*32}')
    a(f's_mov_b32 s40, {f2hex(QSCALE)}')
    a('s_cmp_lt_u32 s14, 5')
    a('s_cselect_b32 s40, s40, 1.0')
    a('s_waitcnt lgkmcnt(0)')
    for r in range(4): a(f'v_mul_f32 v{P+r}, s40, v{P+r}')
    a('v_lshrrev_b32 v13, 4, v3')
    a('s_movk_i32 s17, 20480')
    a('v_mul_lo_u32 v13, v13, s17')
    a('v_and_b32 v14, 15, v3')
    a('v_lshl_add_u32 v13, v14, 4, v13')
    a('v_lshl_add_u32 v13, v4, 8, v13')
    a('s_lshl_b32 s17, s13, 3')
    a('s_lshl_b32 s18, s22, 2')
    a('s_add_u32 s17, s17, s18')
    a('s_mul_i32 s17, s17, 20480')
    a(f's_mov_b32 s18, {WS_Q}')
    a(f's_mov_b32 s19, {WS_K - 80*256}')
    a('s_cmp_lt_u32 s14, 5')
    a('s_cselect_b32 s18, s18, s19')
    a('s_add_u32 s17, s17, s18')
    a('s_lshl_b32 s18, s14, 12')
    a('s_add_u32 s17, s17, s18')
    PK = 144
    for aa in range(2):
        for j in range(2):
            acc = ACC + 32 * aa + 16 * j
            for r in range(16):
                a(f'v_mul_f32 v{P+4}, v{P+2*j}, v{C+16*aa+r}')
                a(f'v_fma_f32 v{acc+r}, v{P+2*j+1}, v{acc+r}, -v{P+4}')
            pk = PK + 8 * ((2 * aa + j) & 1)
            for r in range(8): a(f'v_cvt_pk_bf16_f32 v{pk+r}, v{acc+2*r}, v{acc+2*r+1}')
            a(f's_lshl_b32 s18, s{56+aa}, 10')
            a('s_add_u32 s18, s18, s17')
            if j: a(f's_add_u32 s18, s18, {2*20480}')
            a(f'buffer_store_dwordx4 {v(pk,4)}, v13, s[8:11], s18 offen' + WT)
            a(f'buffer_store_dwordx4 {v(pk+4,4)}, v13, s[8:11], s18 offen offset:512' + WT)
    stamp(a, 5)
    if gen.PROF: a('s_waitcnt vmcnt(0)')
    stamp(a, 6); stamp(a, 7, True)
    stamp_flush(a, 1, 12, 8, 12)
    a('s_endpgm')
    a.label(f'{L}_v')
    main(True)
    C = 104
    TT = 136
    for aa in range(2):
        a(f's_lshl_b32 s40, s{56+aa}, 7')
        a(f's_add_u32 s40, s40, {CS_T}')
        a('v_lshlrev_b32 v8, 2, v3')
        a('v_add_u32 v8, s40, v8')
        a(f'ds_read_b32 v{TT+aa}, v8')
    a('s_lshl_b32 s40, s22, 8')
    a(f's_add_u32 s40, s40, {ST_T}')
    a('v_lshlrev_b32 v7, 4, v4')
    a('v_add_u32 v7, s40, v7')
    for aa in range(2):
        a('s_sub_u32 s17, s14, 10')
        a('s_lshl_b32 s17, s17, 7')
        a(f's_lshl_b32 s18, s{56+aa}, 5')
        a('s_add_u32 s17, s17, s18')
        a('v_add_u32 v13, s17, v3')
        a(f's_mov_b32 s17, {magic(20)}')
        a('v_mul_hi_u32 v14, v13, s17')
        a('v_mul_u32_u24 v15, 20, v14')
        a('v_sub_u32 v15, v13, v15')
        a('s_mov_b32 s17, 81920')
        a('v_mul_lo_u32 v14, v14, s17')
        a('v_lshl_add_u32 v14, v15, 4, v14')
        a('v_mul_u32_u24 v15, 320, v4')
        a(f'v_add_u32 v{TT+2+aa}, v14, v15')
    a('s_lshl_b32 s17, s13, 3')
    a('s_lshl_b32 s18, s22, 2')
    a('s_add_u32 s17, s17, s18')
    a('s_mul_i32 s17, s17, 640')
    a(f's_add_u32 s17, s17, {WS_VT}')
    PK = 144
    for j in range(2):
        for g in range(4):
            a(f'ds_read_b128 {v(C+4*g,4)}, v7 offset:{j*128 + g*32}')
            a(f'ds_read_b128 {v(C+16+4*g,4)}, v7 offset:{512 + j*128 + g*32}')
        a('s_waitcnt lgkmcnt(0)')
        for aa in range(2):
            acc = ACC + 32 * aa + 16 * j
            for r in range(16):
                a(f'v_mul_f32 v{TT+4}, v{C+r}, v{TT+aa}')
                a(f'v_fma_f32 v{acc+r}, v{C+16+r}, v{acc+r}, -v{TT+4}')
            pk = PK + 8 * aa
            for r in range(8): a(f'v_cvt_pk_bf16_f32 v{pk+r}, v{acc+2*r}, v{acc+2*r+1}')
            for gg in range(2):
                a(f'buffer_store_dwordx4 {v(pk+4*gg,4)}, v{TT+2+aa}, s[8:11], s17 offen offset:{(2*j+gg)*640}' + WT)
    stamp(a, 5)
    if gen.PROF: a('s_waitcnt vmcnt(0)')
    stamp(a, 6); stamp(a, 7, True)
    stamp_flush(a, 1, 12, 8, 12)
    a.label(f'{L}_end')
    a('s_endpgm')
    return a, descriptor(L, 160, 102), f'; @launch kernel={L} grid=(256,1,1) block=(512,1,1) lds=163840'
```

```python
import sys
sys.path.insert(0, 'dev')
import gen, gen2
from gen import *
from gen2 import lab, stores2, attn_units, wo_dma, WS_XT, SG, SJ, SPURE, LDS_WO, SPIN_MAX
from asmlib import *

class VM:
    def __init__(self): self.ops = []
    def issue(self, tag): self.ops.append(tag)
    def count_after(self, pred):
        n = 0
        for x in reversed(self.ops):
            if pred(x): return n
            n += 1
        raise Exception('no op matches')
    def wait(self, a, pred, extra=''):
        a(f's_waitcnt vmcnt({min(self.count_after(pred), 63)}){extra}')

XR0 = 136
W1A, W1B = 152, 16
def w1reg(s): return W1A + 4 * s if s < 26 else W1B + 4 * (s - 26)
SH, SR = 36, 37
S_OOB = 38
S_DONE = 39
FB_LDS = 159744
S_W1 = 98
V_W1 = 1

def flag_store(a, p, vt):
    g_, j_ = (SR, SH) if p == 0 else (SG, SJ)
    a(f's_lshl_b32 s40, s{g_}, 7')
    a(f's_lshl_b32 s41, s{j_}, 2')
    a('s_add_u32 s40, s40, s41')
    a(f's_add_u32 s40, s40, {WS_FLAG + p*1024}')
    a(f'v_mov_b32 v{vt}, 0')
    a(f'v_mov_b32 v{vt+1}, 1')
    a('s_mov_b64 exec, 1')
    stores2(a, [f'buffer_store_dword v{vt+1}, v{vt}, s[8:11], s40 offen'])
    a('s_mov_b64 exec, -1')

def sync(a, p_pub, p_wait, smask_setup, prefetch, vt=14, drained=False):
    if p_pub is not None and not drained:
        a('s_waitcnt vmcnt(0)')
        a('s_barrier')
    l0, l1, lp, ld, l3 = lab('sy'), lab('sy'), lab('sy'), lab('sy'), lab('sy')
    a('s_cmp_lg_u32 s12, 0')
    a(f's_cbranch_scc1 {l0}')
    if p_pub is not None: flag_store(a, p_pub, vt)
    smask_setup()
    a(f's_lshl_b32 s40, s{SG}, 7')
    a(f's_add_u32 s40, s40, {WS_FLAG + p_wait*1024}')
    a(f'v_lshlrev_b32 v{vt}, 2, v2')
    a('s_mov_b64 exec, s[44:45]')
    a('s_mov_b32 s41, 0')
    a.label(lp)
    a(f'buffer_load_dword v{vt+1}, v{vt}, s[8:11], s40 offen sc1')
    a('s_add_u32 s41, s41, 1')
    a('s_waitcnt vmcnt(0)')
    a(f'v_cmp_eq_u32 vcc, 0, v{vt+1}')
    a(f's_cbranch_vccz {ld}')
    a(f's_cmp_lt_u32 s41, {SPIN_MAX}')
    a(f's_cbranch_scc1 {lp}')
    a.label(ld)
    a('s_mov_b64 exec, -1')
    a(f's_cmp_eq_u32 s{SPURE}, 1')
    a(f's_cbranch_scc1 {l3}')
    a('buffer_inv sc1')
    a('s_waitcnt vmcnt(0)')
    a.label(l3)
    a('s_barrier')
    prefetch()
    a(f's_branch {l1}')
    a.label(l0)
    prefetch()
    a('s_barrier')
    a.label(l1)

def phase_attn(a):
    R = AR
    attn_setup(a, SH, SR, 12, 8)
    a(f's_lshr_b32 s62, s{SJ}, 2')
    a('s_mul_i32 s62, s62, 102400')
    a(f's_add_u32 s62, s62, {WS_WO}')
    a('s_lshl_b32 s61, s12, 10')
    a('s_add_u32 s62, s62, s61')
    a('s_cmp_lt_u32 s12, 4')
    a(f's_mov_b32 s63, {11*8192}')
    a(f's_cselect_b32 s63, {12*8192}, s63')
    a('s_add_u32 s63, s63, s62')
    a(f's_add_u32 s61, s61, {LDS_WO}')
    for r in range(32): a(f'v_mov_b32 v{R.O+r}, 0')
    for r in range(16): a(f'v_mov_b32 v{R.P+r}, 0')
    for r in range(16): a(f'v_mov_b32 v{R.VV+r}, 0')
    vm = VM()
    attn_dma(a, 0, 8)
    a(f's_mov_b32 s{S_DONE}, 0')
    a(f'v_mov_b32 v14, {FB_LDS}')
    a('v_mov_b32 v15, 0')
    a('ds_write_b32 v14, v15')
    lane_swap23(a, 14, 3, 15)
    a('v_lshrrev_b32 v15, 4, v14')
    a('s_movk_i32 s40, 20480')
    a('v_mul_lo_u32 v15, v15, s40')
    a('v_and_b32 v14, 15, v14')
    a('v_lshl_add_u32 v15, v14, 4, v15')
    a(f'v_lshl_add_u32 v{V_W1}, v4, 8, v15')
    a(f's_lshr_b32 s40, s{SJ}, 1')
    a('s_lshl_b32 s40, s40, 2')
    a('s_and_b32 s41, s12, 3')
    a('s_add_u32 s40, s40, s41')
    a('s_mul_i32 s41, s40, 40960')
    a(f's_add_u32 s41, s41, {WS_W1}')
    a('s_cmp_lt_u32 s40, 54')
    a(f's_cselect_b32 s{S_W1}, s41, 0x7ff00000')
    a(f's_mov_b32 s{S_OOB}, 0x7ff00000')
    lt1, lt2 = lab('tc'), lab('tc')
    a('v_lshlrev_b32 v148, 7, v2')
    a('s_cmp_ge_u32 s12, 4')
    a(f's_cbranch_scc1 {lt1}')
    a(f's_mul_i32 s50, s{SG}, {16*20480}')
    a(f's_mul_i32 s40, s{SJ}, 10240')
    a('s_add_u32 s50, s50, s40')
    a('s_and_b32 s40, s12, 1')
    a('s_mul_i32 s40, s40, 5120')
    a('s_add_u32 s50, s50, s40')
    a('s_lshr_b32 s40, s12, 1')
    a(f's_mul_i32 s40, s40, {WS_H - WS_O}')
    a('s_add_u32 s50, s50, s40')
    a(f's_add_u32 s50, s50, {WS_O}')
    a('v_add_u32 v148, s50, v148')
    a(f's_lshr_b32 s40, s{SJ}, 1')
    a('s_lshl_b32 s40, s40, 14')
    a(f's_lshl_b32 s41, s{SG}, 11')
    a('s_add_u32 s40, s40, s41')
    a(f's_and_b32 s41, s{SJ}, 1')
    a('s_lshl_b32 s41, s41, 10')
    a('s_add_u32 s40, s40, s41')
    a(f's_add_u32 s40, s40, {WS_ST2 - 40*128}')
    a('s_cmp_eq_u32 s12, 2')
    a('s_cselect_b32 s40, s40, 0x7ff00000')
    a('v_lshlrev_b32 v149, 7, v2')
    a('v_add_u32 v149, s40, v149')
    a('v_mov_b32 v14, 0x7ff00000')
    a('v_cmp_gt_u32 vcc, 48, v2')
    a('v_cndmask_b32 v149, v14, v149, vcc')
    a('v_cmp_gt_u32 vcc, 40, v2')
    a('v_cndmask_b32 v148, v149, v148, vcc')
    a(f's_branch {lt2}')
    a.label(lt1)
    a('s_sub_u32 s40, s12, 4')
    a('s_lshl_b32 s40, s40, 5')
    a(f's_add_u32 s40, s40, s{SJ}')
    a('s_mul_i32 s50, s40, 20480')
    a(f's_add_u32 s50, s50, {WS_W1 + 13312}')
    a('s_cmp_lt_u32 s40, 108')
    a('s_cselect_b32 s50, s50, 0x7ff00000')
    a('v_add_u32 v148, s50, v148')
    a('v_mov_b32 v14, 0x7ff00000')
    a('v_cmp_gt_u32 vcc, 56, v2')
    a('v_cndmask_b32 v148, v14, v148, vcc')
    a.label(lt2)
    a('v_lshlrev_b32 v147, 7, v2')
    a('s_lshl_b32 s40, s12, 13')
    a(f's_mul_i32 s51, s{SG}, {16*55296}')
    a(f's_mul_i32 s41, s{SJ}, 27648')
    a('s_add_u32 s51, s51, s41')
    a('s_add_u32 s51, s51, s40')
    a(f's_add_u32 s51, s51, {WS_G}')
    a('s_cmp_ge_u32 s12, 4')
    a('s_cselect_b32 s51, 0x7ff00000, s51')
    a(f's_and_b32 s40, s{SJ}, 3')
    a('s_lshl_b32 s40, s40, 2')
    a(f's_lshl_b32 s41, s{SG}, 4')
    a('s_add_u32 s40, s40, s41')
    a('s_and_b32 s41, s12, 3')
    a('s_add_u32 s40, s40, s41')
    a('s_lshl_b32 s40, s40, 4')
    a('v_and_b32 v0, 15, v2')
    a('v_add_u32 v0, s40, v0')
    a('s_movk_i32 s41, 1280')
    a('v_mul_lo_u32 v0, v0, s41')
    a('v_lshrrev_b32 v14, 4, v2')
    a('v_lshl_add_u32 v0, v14, 3, v0')
    a(f's_lshr_b32 s57, s{SJ}, 2')
    a('s_mul_i32 s57, s57, 160')
    a('s_lshr_b32 s40, s12, 2')
    a('s_mul_i32 s40, s40, 96')
    a('s_add_u32 s57, s57, s40')
    a('s_waitcnt vmcnt(0)')
    for st in (1, 2):
        attn_dma(a, st, 8); vm.issue(('kv', st)); vm.issue(('kv', st))
    for x in wo_dma(): a(x)
    vm.issue('wo')
    if 'notlb' not in gen.EXP:
        a('v_lshlrev_b32 v149, 16, v2')
        a('s_lshl_b32 s40, s12, 22')
        a('buffer_load_dword v149, v149, s[8:11], s40 offen')
        a('v_lshlrev_b32 v148, 16, v2')
        a('buffer_load_dword v148, v148, s[76:79], 0 offen')
    a('v_cmp_gt_u32 vcc, 32, v2')
    for r in range(4): a(f'v_cndmask_b32 v{R.QC+r}, 0, v{R.QC+r}, vcc')
    a('s_waitcnt lgkmcnt(0)')
    a('s_barrier')
    a(f'ds_read_b128 {v(R.KA,4)}, v11 offset:0')
    a(f'ds_read_b64 {v(R.KC,2)}, v12 offset:0')
    a('s_waitcnt lgkmcnt(0)')
    a(f'v_mfma_f32_32x32x16_bf16 {v(R.S,16)}, {v(R.KA,4)}, {v(R.QA,4)}, 0')
    a(f'v_mfma_f32_32x32x8bf16_1k {v(R.S,16)}, {v(R.KC,2)}, {v(R.QC,2)}, {v(R.S,16)}')
    stamp(a, 7)
    wnext = [0]
    def w1load():
        s_ = wnext[0]; wnext[0] += 1
        return [f's_add_u32 s40, s{S_W1}, {s_*512}', f'buffer_load_dwordx4 {v(w1reg(s_),4)}, v{V_W1}, s[8:11], s40 offen']
    plan = {}
    waits = {}
    nW = {2: 3, 3: 3, 4: 3, 5: 3, 6: 4, 7: 4, 8: 3, 9: 3}
    if 'now1a' in gen.EXP: nW = {}
    def masked(sreg, cond_lo, cond_hi, vreg):
        return [f's_sub_u32 s40, s12, {cond_lo}', f's_cmp_lt_u32 s40, {cond_hi - cond_lo}', f's_cselect_b32 s40, {sreg}, s{S_OOB}',
                f'buffer_load_dword v149, v{vreg}, s[8:11], s40 offen']
    for g in range(16):
        ex = {}
        k = nW.get(g, 0)
        slots = sorted([(0, 20), (1, 8), (1, 20), (2, 20)][:k])
        if g <= 11:
            ex.setdefault(0, {})[8] = wo_dma(); vm.issue('wo')
        if g == 12:
            ex.setdefault(0, {})[8] = [f's_lshl_b32 s40, s{SG}, 7', f's_add_u32 s40, s40, {WS_XT}', 'v_lshlrev_b32 v150, 2, v3',
                                       'buffer_load_dword v150, v150, s[8:11], s40 offen sc1']
            vm.issue('xt')
        tl = None
        if g == 10: tl = masked('0', 4, 6, 148)
        if g == 11: tl = masked('0', 6, 8, 148)
        if g == 12: tl = masked('0', 0, 4, 148)
        if g == 13: tl = ['buffer_load_dword v149, v147, s[8:11], s51 offen']
        if tl and 'notouch' not in gen.EXP:
            ex.setdefault(1, {})[14] = tl; vm.issue('touch')
        post = []
        pre_ops = []
        for (u, pos) in slots:
            if u < 2: ex.setdefault(u, {})[pos] = w1load(); vm.issue('w1')
            else: post.append((u, pos))
        if g < 15: waits[g] = vm.count_after(lambda x: x == ('kv', g + 1))
        for (u, pos) in post:
            ex.setdefault(u, {})[pos] = w1load(); vm.issue('w1')
        if g <= 12:
            vm.issue(('kv', g + 3)); vm.issue(('kv', g + 3))
        if g == 13:
            ex.setdefault(3, {})[20] = [f'buffer_load_dwordx2 {v(XR0+2*i,2)}, v0, s[72:75], s57 offen offset:{32*i}' for i in range(3)]
            for i in range(3): vm.issue('xr')
        plan[g] = ex
    assert wnext[0] == 26 or 'now1a' in gen.EXP, wnext
    def run(stages_g):
        loc = {g % 4: g for g in stages_g}
        def prio(st, u):
            g = loc[st]
            if g == 15: return {0: 2, 1: 1, 2: 1, 3: 0}[u]
            if g == 14 and u >= 2: return 3
            return {2: 3, 3: 2, 0: 1, 1: 0}[u]
        return attn_units(a, 8, [(g % 4, g == 15) for g in stages_g], lambda st: loc[st] <= 12,
                          lambda st, u: plan[loc[st]].get(u, {}), lambda st: waits[loc[st]], prio)
    for b_ in range(3): run([4*b_ + i for i in range(4)])
    m1, m2, m3, m4, _ = run([12, 13, 14, 15])
    a(m3(1, 1, 1)); a(m4(1, 1, 1))
    a('s_setprio 0')
    stamp(a, 3)
    lp, ld = lab('xt'), lab('xt')
    a('s_mov_b32 s41, 0')
    a('v_cmp_eq_u32 vcc, 0, v150')
    a(f's_cbranch_vccz {ld}')
    a.label(lp)
    a(f's_lshl_b32 s40, s{SG}, 7')
    a(f's_add_u32 s40, s40, {WS_XT}')
    a('v_lshlrev_b32 v14, 2, v3')
    a('buffer_load_dword v150, v14, s[8:11], s40 offen sc1')
    a('s_add_u32 s41, s41, 1')
    a('s_waitcnt vmcnt(0)')
    a('v_cmp_eq_u32 vcc, 0, v150')
    a(f's_cbranch_vccz {ld}')
    a(f's_cmp_lt_u32 s41, {SPIN_MAX}')
    a(f's_cbranch_scc1 {lp}')
    a.label(ld)
    a(f'v_cmp_ne_u32 vcc, s{SPURE}, v150')
    a('s_cmp_eq_u64 vcc, 0')
    a(f's_cselect_b32 s{SPURE}, 1, 0')
    if 'slow' in gen.EXP: a(f's_mov_b32 s{SPURE}, 0')
    TT = R.S
    a.label('.Lat_combine')
    a('s_cmp_eq_u32 s46, 0')
    a('s_cbranch_scc1 .Lat_noswap')
    a('s_nop 7')
    for r in range(12): a(f'v_swap_b32 v{R.O+r}, v{R.O+16+r}')
    a.label('.Lat_noswap')
    a('s_nop 7')
    a(f's_mul_i32 s40, s12, 3072')
    a('v_add_u32 v14, s40, v10')
    for i in range(3): a(f'ds_write_b128 v14, {v(R.O+16+4*i,4)} offset:{1024*i}')
    a('s_xor_b32 s40, s12, 4')
    a('s_mul_i32 s40, s40, 3072')
    a('v_add_u32 v14, s40, v10')
    a('s_waitcnt lgkmcnt(0)')
    a('s_barrier')
    for i in range(3): a(f'ds_read_b128 {v(TT+4*i,4)}, v14 offset:{1024*i}')
    a('s_waitcnt lgkmcnt(0)')
    for r in range(12): a(f'v_add_f32 v{R.O+r}, v{R.O+r}, v{TT+r}')
    a(f'v_mov_b32 v{TT}, v{R.O+8}')
    a(f'v_mov_b32 v{TT+1}, v{R.O+8}')
    a(f'v_permlane32_swap_b32 v{TT}, v{TT+1}')
    a(f'v_mov_b32 v{TT+2}, 0')
    for r in range(12): a(f'v_fmac_f32 v{TT+2}, 0, v{R.O+r}')
    a('s_mov_b32 s40, 0x1f800000')
    a(f'v_cmp_nle_f32 vcc, s40, v{TT+1}')
    a('s_mov_b32 s40, 0x5f800000')
    a(f'v_cmp_nge_f32 s[44:45], s40, v{TT+1}')
    a('s_or_b64 s[44:45], s[44:45], vcc')
    a(f'v_cmp_u_f32 vcc, v{TT+2}, v{TT+2}')
    a('s_or_b64 s[44:45], s[44:45], vcc')
    if 'forcefb' in gen.EXP: a('s_mov_b64 s[44:45], -1')
    lok = lab('ok')
    a('s_cmp_eq_u64 s[44:45], 0')
    a(f's_cbranch_scc1 {lok}')
    a(f'v_mov_b32 v{TT+2}, {FB_LDS}')
    a(f'v_mov_b32 v{TT+3}, 1')
    a(f'ds_write_b32 v{TT+2}, v{TT+3}')
    a.label(lok)
    a(f'v_rcp_f32 v{TT+1}, v{TT+1}')
    for r in range(12): a(f'v_mul_f32 v{R.O+r}, v{R.O+r}, v{TT+1}')
    for i in range(6): a(f'v_cvt_pk_bf16_f32 v{TT+4+i}, v{R.O+2*i}, v{R.O+2*i+1}')
    a('s_mul_i32 s61, s46, 40960')
    a('s_add_u32 s61, s61, s47')
    a(f's_add_u32 s61, s61, {WS_O}')
    a('s_lshl_b32 s62, s42, 8')
    a('s_add_u32 s62, s62, s61')
    a('s_lshl_b32 s63, s43, 8')
    a('s_add_u32 s63, s63, s61')
    a(f's_and_b32 s61, s{SH}, 1')
    a('s_lshl_b32 s61, s61, 3')
    a('s_add_u32 s63, s63, s61')
    stores2(a, [f'buffer_store_dwordx4 {v(TT+4,4)}, v7, s[8:11], s62 offen',
                's_mov_b64 exec, 0xffffffff',
                f'buffer_store_dwordx2 {v(TT+8,2)}, v5, s[8:11], s63 offen',
                's_mov_b64 exec, -1'])
    stamp(a, 4)
    a('s_waitcnt vmcnt(0) lgkmcnt(0)')
    a('s_barrier')
    a(f'v_mov_b32 v14, {FB_LDS}')
    a('ds_read_b32 v15, v14')
    a('s_waitcnt lgkmcnt(0)')
    a('v_readfirstlane_b32 s40, v15')
    a(f's_sub_u32 s40, s40, s{S_DONE}')
    a('s_cmp_eq_u32 s40, 1')
    a('s_cbranch_scc1 .Lat_fallback')
    a.label('.Lat_done')

def attn_fallback(a):
    R = AR
    SL = 2 * AT_SLOT
    S_, M0_, M1_ = R.S, R.S + 16, R.S + 17
    a.label('.Lat_fallback')
    a(f's_mov_b32 s{S_DONE}, 1')
    def load_stage():
        a('s_barrier')
        for x in attn_dma_parts(2, 8)[0] + attn_dma_parts(2, 8)[1]: a(x)
        a('s_waitcnt vmcnt(0)')
        a('s_barrier')
    def rewind():
        a(f's_sub_u32 s52, s52, {16*5120}')
        a(f's_sub_u32 s53, s53, {16*163840}')
    def scores(t, j):
        a(f'v_mfma_f32_32x32x16_bf16 {v(S_,16)}, {v(R.KA,4)}, {v(R.QA+4*j,4)}, 0')
        a(f'v_mfma_f32_32x32x8bf16_1k {v(S_,16)}, {v(R.KC,2)}, {v(R.QC+2*j,2)}, {v(S_,16)}')
    def kread(t):
        a(f'ds_read_b128 {v(R.KA,4)}, v11 offset:{SL + t*1024}')
        a(f'ds_read_b64 {v(R.KC,2)}, v12 offset:{SL + t*512}')
    rewind()
    a(f'v_mov_b32 v{M0_}, 0xff7fffff'); a(f'v_mov_b32 v{M1_}, 0xff7fffff')
    a('s_mov_b32 s60, 16')
    a.label('.Lat_fb1')
    load_stage()
    for t in range(2):
        kread(t)
        a('s_waitcnt lgkmcnt(0)')
        for j in range(2):
            scores(t, j)
            m = M0_ + j
            for r in range(0, 16, 2): a(f'v_max3_f32 v{m}, v{S_+r}, v{S_+r+1}, v{m}')
    a('s_sub_u32 s60, s60, 1')
    a('s_cmp_lg_u32 s60, 0')
    a('s_cbranch_scc1 .Lat_fb1')
    for j in range(2):
        m = M0_ + j
        a(f'v_mov_b32 v{S_}, v{m}'); a(f'v_mov_b32 v{S_+1}, v{m}')
        a(f'v_permlane32_swap_b32 v{S_}, v{S_+1}')
        a(f'v_max_f32 v{m}, v{S_}, v{S_+1}')
    a('s_barrier')
    a('s_lshl_b32 s40, s12, 9')
    a('v_lshlrev_b32 v14, 3, v2')
    a('v_add_u32 v14, s40, v14')
    a(f'ds_write_b64 v14, {v(M0_,2)}')
    a('s_xor_b32 s40, s12, 4')
    a('s_lshl_b32 s40, s40, 9')
    a('v_lshlrev_b32 v14, 3, v2')
    a('v_add_u32 v14, s40, v14')
    a('s_waitcnt lgkmcnt(0)')
    a('s_barrier')
    a(f'ds_read_b64 {v(S_,2)}, v14')
    a('s_waitcnt lgkmcnt(0)')
    a(f'v_max_f32 v{M0_}, v{M0_}, v{S_}')
    a(f'v_max_f32 v{M1_}, v{M1_}, v{S_+1}')
    rewind()
    for r in range(32): a(f'v_mov_b32 v{R.O+r}, 0')
    a('s_mov_b32 s60, 16')
    a.label('.Lat_fb2')
    load_stage()
    for t in range(2):
        kread(t)
        a(f'ds_read_b128 {v(R.VV,4)}, v13 offset:{SL + t*2048}')
        a(f'ds_read_b128 {v(R.VV+4,4)}, v13 offset:{SL + t*2048 + 1024}')
        a('s_waitcnt lgkmcnt(0)')
        for j in range(2):
            scores(t, j)
            for r in range(16): a(f'v_sub_f32 v{S_+r}, v{S_+r}, v{M0_+j}')
            for r in range(16): a(f'v_exp_f32 v{S_+r}, v{S_+r}')
            for i in range(8): a(f'v_cvt_pk_bf16_f32 v{R.P+i}, v{S_+2*i}, v{S_+2*i+1}')
            a(f'v_mfma_f32_32x32x16_bf16 {v(R.O+16*j,16)}, {v(R.VV,4)}, {v(R.P,4)}, {v(R.O+16*j,16)}')
            a(f'v_mfma_f32_32x32x16_bf16 {v(R.O+16*j,16)}, {v(R.VV+4,4)}, {v(R.P+4,4)}, {v(R.O+16*j,16)}')
    a('s_sub_u32 s60, s60, 1')
    a('s_cmp_lg_u32 s60, 0')
    a('s_cbranch_scc1 .Lat_fb2')
    a('s_nop 15')
    a('s_barrier')
    a('s_branch .Lat_combine')

def phase_oproj(a):
    BF, AF, ACC, XR, T = 16, 56, 96, XR0, 116
    a(f's_and_b32 s20, s{SJ}, 3')
    a(f's_lshr_b32 s21, s{SJ}, 2')
    a('s_and_b32 s22, s12, 3')
    a('s_lshr_b32 s23, s12, 2')
    a(f's_lshl_b32 s29, s{SG}, 4')
    a('s_lshl_b32 s30, s20, 2')
    a('s_add_u32 s29, s29, s30')
    a('s_add_u32 s29, s29, s22')
    a('v_and_b32 v5, 15, v2')
    a('v_lshrrev_b32 v6, 4, v2')
    a('s_mul_i32 s30, s29, 20480')
    a('s_mul_i32 s31, s23, 10240')
    a('s_add_u32 s30, s30, s31')
    a(f's_add_u32 s30, s30, {WS_O}')
    a('s_mul_i32 s33, s23, 10240')
    a(f's_add_u32 s33, s33, {LDS_WO}')
    a('v_add_u32 v8, s33, v10')
    a(f'v_add_u32 v9, {3*20480}, v8')
    def pre(): pass
    def mask():
        a('s_mov_b32 s44, -1'); a('s_mov_b32 s45, 0')
    sync(a, 0, 0, mask, pre, drained=True)
    stamp(a, 8)
    for i in range(10):
        if i % 4 == 0: a(f's_add_u32 s31, s30, {i*1024}')
        a(f'buffer_load_dwordx4 {v(BF+4*i,4)}, v10, s[8:11], s31 offen offset:{(i%4)*1024} sc1')
    def areads(i, buf):
        for ft in range(5):
            off = ft * 20480 + i * 1024
            base = 8
            if ft >= 3: off -= 3 * 20480; base = 9
            a(f'ds_read_b128 {v(AF+20*buf+4*ft,4)}, v{base} offset:{off}')
    areads(0, 0)
    for i in range(10):
        if i < 9:
            areads(i + 1, (i + 1) & 1)
            a(f's_waitcnt vmcnt({9-i}) lgkmcnt(5)')
        else:
            a('s_waitcnt vmcnt(0) lgkmcnt(0)')
        for ft in range(5):
            acc = v(ACC + 4 * ft, 4)
            a(f'v_mfma_f32_16x16x32_bf16 {acc}, {v(AF+20*(i&1)+4*ft,4)}, {v(BF+4*i,4)}, {"0" if i == 0 else acc}')
    stamp(a, 9)
    a('s_mul_i32 s40, s12, 3072')
    a('s_add_u32 s40, s40, 32768')
    a('v_add_u32 v14, s40, v10')
    l1, l2 = lab('ox'), lab('ox')
    a('s_nop 7')
    a('s_cmp_eq_u32 s23, 0')
    a(f's_cbranch_scc0 {l1}')
    for i, ft in enumerate((3, 4)): a(f'ds_write_b128 v14, {v(ACC+4*ft,4)} offset:{1024*i}')
    a(f's_branch {l2}')
    a.label(l1)
    for ft in range(3): a(f'ds_write_b128 v14, {v(ACC+4*ft,4)} offset:{1024*ft}')
    a('s_waitcnt lgkmcnt(0)')
    for r in range(8): a(f'v_mov_b32 v{ACC+r}, v{ACC+12+r}')
    for r in range(8, 12): a(f'v_mov_b32 v{ACC+r}, 0')
    a.label(l2)
    a('s_xor_b32 s40, s12, 4')
    a('s_mul_i32 s40, s40, 3072')
    a('s_add_u32 s40, s40, 32768')
    a('v_add_u32 v14, s40, v10')
    a('s_waitcnt lgkmcnt(0)')
    a('s_barrier')
    for i in range(3): a(f'ds_read_b128 {v(T+4*i,4)}, v14 offset:{1024*i}')
    a('s_waitcnt lgkmcnt(0)')
    for r in range(12): a(f'v_add_f32 v{ACC+r}, v{ACC+r}, v{T+r}')
    for i in range(3):
        for h2 in range(2):
            a(f'v_lshlrev_b32 v{T}, 16, v{XR+2*i+h2}')
            a(f'v_and_b32 v{T+1}, 0xffff0000, v{XR+2*i+h2}')
            a(f'v_add_f32 v{ACC+4*i+2*h2}, v{ACC+4*i+2*h2}, v{T}')
            a(f'v_add_f32 v{ACC+4*i+2*h2+1}, v{ACC+4*i+2*h2+1}, v{T+1}')
    l3 = lab('ox')
    a('s_cmp_eq_u32 s23, 0')
    a(f's_cbranch_scc1 {l3}')
    for r in range(8, 12): a(f'v_mov_b32 v{ACC+r}, 0')
    a.label(l3)
    a(f'v_mov_b32 v{T}, v{ACC}')
    a(f'v_mul_f32 v{T+1}, v{ACC}, v{ACC}')
    for r in range(1, 12):
        a(f'v_add_f32 v{T}, v{T}, v{ACC+r}')
        a(f'v_fmac_f32 v{T+1}, v{ACC+r}, v{ACC+r}')
    sum_q4(a, T, T+2, T+3)
    sum_q4(a, T+1, T+2, T+3)
    for i in range(6): a(f'v_cvt_pk_bf16_f32 v{T+4+i}, v{ACC+2*i}, v{ACC+2*i+1}')
    a('s_mul_i32 s34, s29, 20480')
    a('s_mul_i32 s35, s21, 2560')
    a('s_add_u32 s34, s34, s35')
    a('s_mul_i32 s35, s23, 1536')
    a('s_add_u32 s34, s34, s35')
    a(f's_add_u32 s34, s34, {WS_H}')
    a('v_lshrrev_b32 v11, 1, v6')
    a('v_lshlrev_b32 v11, 8, v11')
    a('v_lshl_add_u32 v11, v5, 4, v11')
    a('v_and_b32 v12, 1, v6')
    a('v_lshl_add_u32 v11, v12, 3, v11')
    a('s_lshl_b32 s33, s29, 7')
    a('s_lshl_b32 s35, s21, 1')
    a('s_add_u32 s35, s35, s23')
    a('s_lshl_b32 s35, s35, 14')
    a('s_add_u32 s33, s33, s35')
    a(f's_add_u32 s33, s33, {WS_ST2}')
    a('v_lshlrev_b32 v12, 3, v5')
    a('s_cmp_eq_u32 s23, 0')
    a(f's_cselect_b32 s35, s34, {0x7ffff000}')
    stores2(a, [f'buffer_store_dwordx2 {v(T+4,2)}, v11, s[8:11], s34 offen',
                f'buffer_store_dwordx2 {v(T+6,2)}, v11, s[8:11], s34 offen offset:512',
                f'buffer_store_dwordx2 {v(T+8,2)}, v11, s[8:11], s35 offen offset:1024',
                's_mov_b64 exec, 0xffff',
                f'buffer_store_dwordx2 {v(T,2)}, v12, s[8:11], s33 offen',
                's_mov_b64 exec, -1'])

F2_SLOT = {0: 81920, 1: 122880, 2: 0, 3: 40960, 4: 81920, 5: 122880, 6: 0}
def w2_setup(a):
    a(f's_lshr_b32 s21, s{SJ}, 2')
    a('s_lshr_b32 s22, s12, 2')
    a('s_mul_i32 s22, s22, 27')
    a('s_and_b32 s23, s12, 3')
    a('s_add_u32 s22, s22, s23')
    a('s_lshl_b32 s22, s22, 10')
    a('s_mul_i32 s47, s21, 276480')
    a(f's_add_u32 s47, s47, {WS_W2}')
    a('s_add_u32 s47, s47, s22')
    a('s_mul_i32 s48, s12, 5120')
def w2_dma(st, ft):
    return [f's_add_u32 m0, s48, {F2_SLOT[st] + ft*1024}', f's_add_u32 s49, s47, {st*4096 + ft*55296}',
            'buffer_load_dwordx4 v10, s[8:11], s49 offen lds']

def far_touch(a, vt, vd):
    a(f'v_lshlrev_b32 v{vt}, 7, v2')
    a(f's_mul_i32 s56, s{SJ}, 69120')
    a('s_lshl_b32 s57, s12, 13')
    a('s_add_u32 s56, s56, s57')
    a(f's_add_u32 s56, s56, {WS_W2}')
    a(f'buffer_load_dword v{vd}, v{vt}, s[8:11], s56 offen')
    a(f's_mul_i32 s56, s{SG}, {16*55296}')
    a(f's_mul_i32 s57, s{SJ}, 27648')
    a('s_add_u32 s56, s56, s57')
    a('s_lshl_b32 s57, s12, 13')
    a('s_add_u32 s56, s56, s57')
    a(f's_add_u32 s56, s56, {WS_G}')
    a(f's_mul_i32 s57, s{SJ}, 69120')
    a(f's_add_u32 s57, s57, {WS_W2 + 65536}')
    a('s_cmp_eq_u32 s12, 4')
    a('s_cselect_b32 s56, s57, s56')
    a('s_cmp_gt_u32 s12, 4')
    a('s_cselect_b32 s56, 0x7ff00000, s56')
    a(f'buffer_load_dword v{vd}, v{vt}, s[8:11], s56 offen')

def phase_ffn1(a, vm_pre):
    ACC, FB = 72, 104
    CS, B1, ST = 192, 168, 128
    SEL, CSA, B1R = 120, 124, 184
    NS = 5
    a(f's_load_dwordx2 s[50:51], s[0:1], {A_B1}')
    a(f'v_mov_b32 v{SEL}, 0')
    a('s_mov_b32 s52, 0x00020001')
    a('s_mov_b32 s53, 0x00020001')
    a('v_mov_b32 v15, 0x3f803f80')
    a(f'v_cndmask_b32 v{SEL}, v{SEL}, v15, s[52:53]')
    for r in range(1, 4): a(f'v_mov_b32 v{SEL+r}, v{SEL}')
    for r in range(4): a(f'v_mov_b32 v{CSA+r}, 0')
    a('s_waitcnt lgkmcnt(0)')
    srd(a, 52, 50, F * 2)
    w2_setup(a)
    a(f's_and_b32 s13, s{SJ}, 1')
    a(f's_lshl_b32 s15, s{SG}, 1')
    a('s_add_u32 s13, s13, s15')
    a(f's_lshr_b32 s14, s{SJ}, 1')
    a('s_and_b32 s23, s12, 3')
    a('s_lshr_b32 s26, s12, 2')
    a('v_lshrrev_b32 v7, 4, v3')
    a('s_movk_i32 s17, 20480')
    a('v_mul_lo_u32 v7, v7, s17')
    a('v_and_b32 v6, 15, v3')
    a('v_lshl_add_u32 v7, v6, 4, v7')
    a('v_lshl_add_u32 v7, v4, 8, v7')
    a('s_lshl_b32 s20, s13, 3')
    a('s_lshl_b32 s19, s23, 1')
    a('s_add_u32 s20, s20, s19')
    a('s_mul_i32 s20, s20, 20480')
    a('s_lshl_b32 s19, s26, 10')
    a('s_add_u32 s20, s20, s19')
    a(f's_add_u32 s20, s20, {WS_H}')
    a('s_lshl_b32 s22, s23, 10')
    a('s_lshl_b32 s19, s26, 13')
    a('s_add_u32 s22, s22, s19')
    a('s_lshl_b32 s17, s26, 11')
    a('v_add_u32 v12, s17, v10')
    a('v_add_u32 v13, 0x10000, v12')
    vm = VM()
    def pre(): pass
    def mask():
        a(f's_and_b32 s40, s{SJ}, 1')
        a('s_cmp_eq_u32 s40, 0')
        a('s_mov_b32 s44, 0xcccccccc')
        a('s_cselect_b32 s44, 0x33333333, s44')
        a('s_mov_b32 s45, 0')
    sync(a, 1, 1, mask, pre)
    stamp(a, 10)
    nst = 10
    pend = [(st, i) for st in range(nst) for i in range(2)]
    def dma_one():
        st, i = pend.pop(0)
        a(f's_add_u32 m0, s22, {(st % NS)*16384 + i*4096}')
        a(f's_add_u32 s21, s20, {st*2048 + i*512}')
        a('buffer_load_dwordx4 v7, s[8:11], s21 offen sc1 lds')
        vm.issue(('h', st))
    for _ in range(2 * 3): dma_one()
    a('s_lshl_b32 s27, s13, 7')
    a('s_lshl_b32 s28, s26, 6')
    a('s_add_u32 s27, s27, s28')
    a('s_lshl_b32 s28, s13, 7')
    a('s_lshl_b32 s29, s23, 5')
    a('s_add_u32 s28, s28, s29')
    a('s_lshl_b32 s28, s28, 3')
    a(f's_add_u32 s28, s28, {WS_ST2}')
    a('v_lshlrev_b32 v14, 3, v3')
    a('v_lshl_add_u32 v14, v4, 17, v14')
    def st_load(q):
        a(f's_add_u32 s29, s28, {q*16384}')
        a(f'buffer_load_dwordx2 {v(ST+2*q,2)}, v14, s[8:11], s29 offen sc1')
        vm.issue('st')
    w1q = list(range(26, 40))
    def w1_load():
        s_ = w1q.pop(0)
        a(f's_add_u32 s40, s{S_W1}, {s_*512}')
        a(f'buffer_load_dwordx4 {v(w1reg(s_),4)}, v{V_W1}, s[8:11], s40 offen')
        vm.issue(('w1', s_))
    def reads(st, ks, buf):
        off = (st % NS) * 16384 + ks * 4096
        base = 12
        if off + 1024 >= 65536: off -= 65536; base = 13
        a(f'ds_read_b128 {v(FB+8*buf,4)}, v{base} offset:{off}')
        a(f'ds_read_b128 {v(FB+8*buf+4,4)}, v{base} offset:{off+1024}')
    def mfmas(s_, buf):
        for j in range(2):
            c = '0' if s_ == 0 else v(ACC+16*j, 16)
            a(f'v_mfma_f32_32x32x16_bf16 {v(ACC+16*j,16)}, {v(w1reg(s_),4)}, {v(FB+8*buf+4*j,4)}, {c}')
    F1S = 'f1stamp' in gen.EXP
    w2q = [(st, ft) for st in (0, 1) for ft in range(5)]
    if F1S: stamp(a, 2)
    vm.wait(a, lambda x: x == ('h', 0))
    a('s_barrier')
    if F1S: stamp(a, 3)
    reads(0, 0, 0)
    buf = 0
    for st in range(nst):
        for ks in range(4):
            s_ = 4 * st + ks
            if ks < 3:
                reads(st, ks + 1, buf ^ 1)
                if s_ >= 26: vm.wait(a, lambda x: x == ('w1', s_), ' lgkmcnt(2)')
                else: a('s_waitcnt lgkmcnt(2)')
                mfmas(s_, buf)
            else:
                if st + 1 < nst:
                    a('s_waitcnt lgkmcnt(0)')
                    if F1S and st in (0, 2, 4, 6): stamp(a, {0: 4, 2: 7, 4: 9, 6: 13}[st])
                    vm.wait(a, lambda x: x == ('h', st + 1))
                    a('s_barrier')
                    if F1S and st in (0, 2, 4, 6): stamp(a, {0: 5, 2: 8, 4: 12, 6: 14}[st])
                    reads(st + 1, 0, buf ^ 1)
                else:
                    a('s_waitcnt lgkmcnt(0)')
                if s_ >= 26: vm.wait(a, lambda x: x == ('w1', s_))
                mfmas(s_, buf)
            lim = st + NS - 1 + (1 if ks == 3 else 0)
            if pend and pend[0][0] <= lim and (ks in (1, 3) or st == 0): dma_one()
            if ks in (0, 2) and w1q and st <= 6: w1_load()
            if st == 7 and ks < 4:
                st_load(2 * ks); st_load(2 * ks + 1)
            if st >= 8 and not (st == 8 and ks == 0):
                for _ in range(2 if (st == 9 or ks >= 2) else 1):
                    if w2q:
                        for x in w2_dma(*w2q.pop(0)): a(x)
                        vm.issue('w2')
            lc = lab('cs')
            a(f's_cmp_eq_u32 s26, {s_ & 1}')
            a(f's_cbranch_scc0 {lc}')
            a(f'v_mfma_f32_16x16x32_bf16 {v(CSA,4)}, {v(w1reg(s_),4)}, {v(SEL,4)}, {v(CSA,4)}')
            a.label(lc)
            if st == 8 and ks == 0:
                a('s_lshl_b32 s29, s14, 7')
                a('s_lshl_b32 s30, s23, 5')
                a('s_add_u32 s29, s29, s30')
                a('s_lshl_b32 s29, s29, 1')
                a('v_lshlrev_b32 v15, 4, v4')
                a(f'buffer_load_dwordx4 {v(B1R,4)}, v15, s[52:55], s29 offen'); vm.issue('cs')
                a(f'buffer_load_dwordx4 {v(B1R+4,4)}, v15, s[52:55], s29 offen offset:32'); vm.issue('cs')
            buf ^= 1
    assert not w2q, w2q
    stamp(a, 11)
    LST = 0
    l2 = lab('st')
    vm.wait(a, lambda x: x == 'cs')
    a('s_cmp_ge_u32 s12, 4')
    a(f's_cbranch_scc1 {l2}')
    b = ST
    for q in range(1, 8):
        a(f'v_add_f32 v{b}, v{b}, v{b+2*q}')
        a(f'v_add_f32 v{b+1}, v{b+1}, v{b+2*q+1}')
    for r in range(2):
        a(f'v_mov_b32 v{b+2}, v{b+r}'); a(f'v_mov_b32 v{b+3}, v{b+r}')
        a(f'v_permlane32_swap_b32 v{b+2}, v{b+3}')
        a(f'v_add_f32 v{b+r}, v{b+2}, v{b+3}')
    a(f'v_mul_f32 v{b}, {f2hex(1.0/640)}, v{b}')
    a(f'v_mul_f32 v{b+1}, {f2hex(1.0/640)}, v{b+1}')
    a(f'v_fma_f32 v{b+1}, -v{b}, v{b}, v{b+1}')
    a(f'v_add_f32 v{b+1}, 0x3727c5ac, v{b+1}')
    a(f'v_rsq_f32 v{b+1}, v{b+1}')
    a(f'v_mul_f32 v{b}, v{b}, v{b+1}')
    a('s_lshl_b32 s28, s12, 8')
    a('v_lshlrev_b32 v14, 3, v3')
    a('v_add_u32 v14, s28, v14')
    a(f'ds_write_b64 v14, {v(b,2)} offset:{LST}')
    a.label(l2)
    a('s_lshl_b32 s28, s23, 8')
    a('s_lshl_b32 s29, s26, 7')
    a('s_add_u32 s28, s28, s29')
    a('v_and_b32 v14, 1, v2')
    a('v_lshlrev_b32 v14, 6, v14')
    a('v_lshrrev_b32 v15, 4, v2')
    a('v_lshl_add_u32 v14, v15, 4, v14')
    a('v_add_u32 v14, s28, v14')
    a('s_mov_b32 s44, 0x00030003')
    a('s_mov_b32 s45, 0x00030003')
    a('s_mov_b64 exec, s[44:45]')
    a(f'ds_write_b128 v14, {v(CSA,4)} offset:{LST+1024}')
    a('s_mov_b64 exec, -1')
    a('s_waitcnt lgkmcnt(0)')
    a('s_barrier')
    a('s_lshl_b32 s28, s26, 9')
    a('v_lshlrev_b32 v14, 3, v3')
    a('v_add_u32 v14, s28, v14')
    a(f'ds_read_b64 {v(ST,2)}, v14 offset:{LST}')
    a(f'ds_read_b64 {v(ST+4,2)}, v14 offset:{LST+256}')
    a('s_lshl_b32 s28, s23, 8')
    a('v_lshlrev_b32 v14, 4, v4')
    a('v_add_u32 v14, s28, v14')
    for th_ in range(2):
        for g in range(4):
            a(f'ds_read_b128 {v(CS+32*th_+4*g,4)}, v14 offset:{LST + 1024 + th_*128 + g*32}')
    for q in range(8):
        a(f'v_lshlrev_b32 v{B1+2*q}, 16, v{B1R+q}')
        a(f'v_and_b32 v{B1+2*q+1}, 0xffff0000, v{B1R+q}')
    a('s_waitcnt lgkmcnt(0)')
    for r in range(16): a(f'v_add_f32 v{CS+r}, v{CS+r}, v{CS+32+r}')
    for j in range(2):
        b = ST + 4 * j
        for r in range(16):
            a(f'v_fma_f32 v{b+2}, -v{b}, v{CS+r}, v{B1+r}')
            a(f'v_fma_f32 v{ACC+16*j+r}, v{b+1}, v{ACC+16*j+r}, v{b+2}')
            a(f'v_max_f32 v{ACC+16*j+r}, 0, v{ACC+16*j+r}')
            a(f'v_mul_f32 v{ACC+16*j+r}, v{ACC+16*j+r}, v{ACC+16*j+r}')
    PK = 104
    for r in range(16):
        a(f'v_cvt_pk_bf16_f32 v{PK+r}, v{ACC+2*r}, v{ACC+2*r+1}')
    a('v_lshrrev_b32 v13, 4, v3')
    a('s_mov_b32 s18, 55296')
    a('v_mul_lo_u32 v13, v13, s18')
    a('v_and_b32 v14, 15, v3')
    a('v_lshl_add_u32 v13, v14, 4, v13')
    a('v_lshl_add_u32 v13, v4, 8, v13')
    a('s_lshr_b32 s18, s27, 4')
    a('s_mul_i32 s18, s18, 55296')
    a('s_lshl_b32 s17, s14, 2')
    a('s_add_u32 s17, s17, s23')
    a('s_cmp_ge_u32 s17, 54')
    a('s_cselect_b32 s19, 0x40000000, 0')
    a('s_lshl_b32 s17, s17, 10')
    a('s_add_u32 s17, s17, s18')
    a(f's_add_u32 s17, s17, {WS_G}')
    a('s_add_u32 s17, s17, s19')
    a(f's_add_u32 s18, s17, {2*55296}')
    stores2(a, [f'buffer_store_dwordx4 {v(PK,4)}, v13, s[8:11], s17 offen',
                f'buffer_store_dwordx4 {v(PK+4,4)}, v13, s[8:11], s17 offen offset:512',
                f'buffer_store_dwordx4 {v(PK+8,4)}, v13, s[8:11], s18 offen',
                f'buffer_store_dwordx4 {v(PK+12,4)}, v13, s[8:11], s18 offen offset:512'])

def phase_ffn2(a, L, published):
    NST = 7
    vm = VM()
    BF, ACC, AF, T = 16, 128, 168, 16
    def pre():
        for st in (2, 3):
            for ft in range(5):
                for x in w2_dma(st, ft): a(x)
    def mask():
        a(f's_and_b32 s40, s{SJ}, 2')
        a('s_cmp_eq_u32 s40, 0')
        a('s_mov_b32 s44, 0x0aaaaaaa')
        a('s_cselect_b32 s44, 0x05555555, s44')
        a('s_mov_b32 s45, 0')
    sync(a, 2 if published else None, 2, mask, pre)
    return vm

def ffn2_body(a, L):
    NST = 7
    vm = VM()
    for st in (0, 1, 2, 3):
        for ft in range(5): vm.issue(('w', st))
    BF, ACC, AF, T, HR, BB = 16, 124, 144, 184, 200, 208
    if 'f1stamp' not in gen.EXP: stamp(a, 12)
    a(f's_and_b32 s20, s{SJ}, 3')
    a(f's_lshr_b32 s21, s{SJ}, 2')
    a('s_and_b32 s22, s12, 3')
    a('s_lshr_b32 s23, s12, 2')
    a(f's_lshl_b32 s29, s{SG}, 4')
    a('s_lshl_b32 s30, s20, 2')
    a('s_add_u32 s29, s29, s30')
    a('s_add_u32 s29, s29, s22')
    a('s_mul_i32 s32, s29, 55296')
    a('s_mul_i32 s33, s23, 27648')
    a('s_add_u32 s32, s32, s33')
    a(f's_add_u32 s32, s32, {WS_G}')
    def bload(i):
        a(f's_add_u32 s33, s32, {i*1024}')
        a(f'buffer_load_dwordx4 {v(BF+4*i,4)}, v10, s[8:11], s33 offen sc1')
        vm.issue(('b', i))
    for i in range(6): bload(i)
    bq = list(range(6, 27))
    wq = [(st, ft) for st in range(4, 7) for ft in range(5)]
    a(f's_load_dwordx2 s[50:51], s[0:1], {A_B2}')
    a('s_mul_i32 s34, s23, 20480')
    a('v_add_u32 v8, s34, v10')
    a('v_add_u32 v9, 0x10000, v8')
    a('v_add_u32 v11, 0x20000, v8')
    a('s_waitcnt lgkmcnt(0)')
    srd(a, 52, 50, D * 2)
    def areads(ks, buf):
        st, i = ks >> 2, ks & 3
        for ft in range(5):
            off = F2_SLOT[st] + i * 5120 + ft * 1024
            base = {0: 8, 1: 9, 2: 11}[off >> 16]
            a(f'ds_read_b128 {v(AF+20*buf+4*ft,4)}, v{base} offset:{off & 65535}')
    F2S = 'f2stamp' in gen.EXP
    if F2S: stamp(a, 2)
    vm.wait(a, lambda x: x == ('w', 0))
    a('s_barrier')
    if F2S: stamp(a, 3)
    areads(0, 0)
    for ks in range(27):
        if F2S and ks in (1, 4, 8, 12, 16, 20, 24): stamp(a, {1: 4, 4: 5, 8: 7, 12: 8, 16: 9, 20: 10, 24: 11}[ks])
        st, i = ks >> 2, ks & 3
        buf = ks & 1
        nxt = ks + 1
        if nxt < 27:
            if (nxt & 3) == 0:
                a('s_waitcnt lgkmcnt(0)')
                vm.wait(a, lambda x: x == ('w', nxt >> 2))
                a('s_barrier')
                areads(nxt, buf ^ 1)
                vm.wait(a, lambda x: x == ('b', ks))
            else:
                areads(nxt, buf ^ 1)
                vm.wait(a, lambda x: x == ('b', ks), ' lgkmcnt(5)')
        else:
            vm.wait(a, lambda x: x == ('b', ks), ' lgkmcnt(0)')
        for ft in range(5):
            acc = v(ACC + 4 * ft, 4)
            a(f'v_mfma_f32_16x16x32_bf16 {acc}, {v(AF+20*buf+4*ft,4)}, {v(BF+4*ks,4)}, {"0" if ks == 0 else acc}')
            if ft in (1, 3) and bq and bq[0] <= ks + 12: bload(bq.pop(0))
            if ft in (0, 2, 4) and wq and (wq[0][0] - 4) < st + (1 if (nxt & 3) == 0 and nxt < 27 else 0):
                x_ = wq.pop(0)
                for x in w2_dma(*x_): a(x)
                vm.issue(('w', x_[0]))
        if ks == 20:
            a('v_and_b32 v5, 15, v2')
            a('v_lshrrev_b32 v6, 4, v2')
            a('s_mul_i32 s34, s29, 20480')
            a('s_mul_i32 s35, s21, 2560')
            a('s_add_u32 s34, s34, s35')
            a('s_mul_i32 s35, s23, 1536')
            a('s_add_u32 s34, s34, s35')
            a(f's_add_u32 s34, s34, {WS_H}')
            a('v_lshrrev_b32 v12, 1, v6')
            a('v_lshlrev_b32 v12, 8, v12')
            a('v_lshl_add_u32 v12, v5, 4, v12')
            a('v_and_b32 v13, 1, v6')
            a('v_lshl_add_u32 v12, v13, 3, v12')
            for i_ in range(3):
                a(f'buffer_load_dwordx2 {v(HR+2*i_,2)}, v12, s[8:11], s34 offen offset:{512*i_} sc1'); vm.issue('hr')
            a('s_mul_i32 s35, s21, 160')
            a('s_mul_i32 s36, s23, 96')
            a('s_add_u32 s35, s35, s36')
            a('v_lshlrev_b32 v13, 3, v6')
            for i_ in range(3):
                a(f'buffer_load_dwordx2 {v(BB+2*i_,2)}, v13, s[52:55], s35 offen offset:{32*i_}'); vm.issue('hr')
    assert not bq and not wq, (bq, wq)
    if 'f1stamp' not in gen.EXP: stamp(a, 13)
    XB = 81920
    a('s_mul_i32 s40, s12, 3072')
    a(f's_add_u32 s40, s40, {XB}')
    a('v_add_u32 v14, s40, v10')
    l1, l2 = lab('fx'), lab('fx')
    a('s_nop 7')
    a('s_cmp_eq_u32 s23, 0')
    a(f's_cbranch_scc0 {l1}')
    for i_, ft in enumerate((3, 4)): a(f'ds_write_b128 v14, {v(ACC+4*ft,4)} offset:{1024*i_}')
    a(f's_branch {l2}')
    a.label(l1)
    for ft in range(3): a(f'ds_write_b128 v14, {v(ACC+4*ft,4)} offset:{1024*ft}')
    a('s_waitcnt lgkmcnt(0)')
    for r in range(8): a(f'v_mov_b32 v{ACC+r}, v{ACC+12+r}')
    a.label(l2)
    a('s_xor_b32 s40, s12, 4')
    a('s_mul_i32 s40, s40, 3072')
    a(f's_add_u32 s40, s40, {XB}')
    a('v_add_u32 v14, s40, v10')
    a('s_waitcnt lgkmcnt(0)')
    a('s_barrier')
    for i_ in range(3): a(f'ds_read_b128 {v(T+4*i_,4)}, v14 offset:{1024*i_}')
    a('s_waitcnt vmcnt(0) lgkmcnt(0)')
    for r in range(12): a(f'v_add_f32 v{ACC+r}, v{ACC+r}, v{T+r}')
    for i_ in range(3):
        for h2 in range(2):
            a(f'v_lshlrev_b32 v{T}, 16, v{HR+2*i_+h2}')
            a(f'v_and_b32 v{T+1}, 0xffff0000, v{HR+2*i_+h2}')
            a(f'v_lshlrev_b32 v{T+2}, 16, v{BB+2*i_+h2}')
            a(f'v_and_b32 v{T+3}, 0xffff0000, v{BB+2*i_+h2}')
            a(f'v_add_f32 v{ACC+4*i_+2*h2}, v{ACC+4*i_+2*h2}, v{T+2}')
            a(f'v_add_f32 v{ACC+4*i_+2*h2+1}, v{ACC+4*i_+2*h2+1}, v{T+3}')
            a(f'v_add_f32 v{ACC+4*i_+2*h2}, v{ACC+4*i_+2*h2}, v{T}')
            a(f'v_add_f32 v{ACC+4*i_+2*h2+1}, v{ACC+4*i_+2*h2+1}, v{T+1}')
    for i_ in range(6): a(f'v_cvt_pk_bf16_f32 v{T+4+i_}, v{ACC+2*i_}, v{ACC+2*i_+1}')
    a('s_lshl_b32 s33, s29, 4')
    a('v_add_u32 v7, s33, v5')
    a('s_movk_i32 s34, 1280')
    a('v_mul_lo_u32 v7, v7, s34')
    a('v_lshl_add_u32 v7, v6, 3, v7')
    a('s_mul_i32 s34, s21, 160')
    a('s_mul_i32 s35, s23, 96')
    a('s_add_u32 s34, s34, s35')
    a('s_cmp_eq_u32 s23, 0')
    a('s_cselect_b32 s35, s34, 0x7ff00000')
    a(f'buffer_store_dwordx2 {v(T+4,2)}, v7, s[76:79], s34 offen')
    a(f'buffer_store_dwordx2 {v(T+6,2)}, v7, s[76:79], s34 offen offset:32')
    a(f'buffer_store_dwordx2 {v(T+8,2)}, v7, s[76:79], s35 offen offset:64')

def kf():
    a = Asm()
    L = 'kf_kernel'
    kernel_begin(a, L)
    a('s_cmp_ge_u32 s2, 256')
    a(f's_cbranch_scc1 {L}_end')
    stamp(a, 0, True); stamp(a, 1)
    if 'dbg' in gen.EXP:
        a('s_memrealtime s[90:91]'); a('s_memtime s[92:93]'); a(f's_load_dwordx2 s[94:95], s[0:1], {A_DBG}')
    a(f's_load_dwordx2 s[4:5], s[0:1], {A_WS}')
    a(f's_load_dwordx2 s[68:69], s[0:1], {A_X}')
    a(f's_load_dwordx2 s[70:71], s[0:1], {A_OUT}')
    a(f's_and_b32 s{SG}, s2, 7')
    a(f's_lshr_b32 s{SJ}, s2, 3')
    a(f's_mov_b32 s{SH}, s{SJ}')
    a(f's_mov_b32 s{SR}, s{SG}')
    a('v_lshrrev_b32 v1, 6, v0')
    a('v_and_b32 v2, 63, v0')
    a('v_readfirstlane_b32 s12, v1')
    a('v_and_b32 v3, 31, v2')
    a('v_lshrrev_b32 v4, 5, v2')
    a(f's_getreg_b32 s{SPURE}, hwreg(HW_REG_XCC_ID, 0, 4)')
    a(f's_add_u32 s{SPURE}, s{SPURE}, 1')
    a('s_waitcnt lgkmcnt(0)')
    srd(a, 8, 4, WS_END)
    srd(a, 72, 68, S * D * 2)
    srd(a, 76, 70, S * D * 2)
    l = lab('xp')
    a('s_cmp_lg_u32 s12, 0')
    a(f's_cbranch_scc1 {l}')
    a(f's_lshl_b32 s40, s{SG}, 7')
    a(f's_lshl_b32 s41, s{SJ}, 2')
    a('s_add_u32 s40, s40, s41')
    a(f's_add_u32 s40, s40, {WS_XT}')
    a('v_mov_b32 v14, 0')
    a(f'v_mov_b32 v15, s{SPURE}')
    a('s_mov_b64 exec, 1')
    a('buffer_store_dword v15, v14, s[8:11], s40 offen sc1')
    a('s_mov_b64 exec, -1')
    a.label(l)
    if 'nocodepf' not in gen.EXP:
        a('s_getpc_b64 s[40:41]')
        a.label('.Lpc_here')
        a(f's_sub_u32 s40, s40, (.Lpc_here - {L})')
        a('s_subb_u32 s41, s41, 0')
        a('s_lshl_b32 s42, s12, 12')
        a('v_lshlrev_b32 v14, 6, v2')
        a('v_add_u32 v14, s42, v14')
        a(f's_mov_b32 s42, (.Lkf_last - {L})')
        a('v_add_u32 v16, 0x8000, v14')
        a('v_min_u32 v14, s42, v14')
        a('v_min_u32 v16, s42, v16')
        a('v_mov_b32 v15, s41')
        a('v_mov_b32 v17, s41')
        a('v_add_co_u32 v14, vcc, s40, v14')
        a('v_addc_co_u32 v15, vcc, 0, v15, vcc')
        a('v_add_co_u32 v16, vcc, s40, v16')
        a('v_addc_co_u32 v17, vcc, 0, v17, vcc')
        a('global_load_dword v151, v[14:15], off')
        a('global_load_dword v151, v[16:17], off')
    stamp(a, 2)
    phase_attn(a)
    phase_oproj(a)
    stamp(a, 5)
    a(f's_cmp_ge_u32 s{SJ}, 28')
    a(f's_cbranch_scc1 {L}_idle')
    phase_ffn1(a, None)
    phase_ffn2(a, L, True)
    a(f's_branch {L}_f2')
    a.label(f'{L}_idle')
    a('s_waitcnt vmcnt(0)')
    a('s_barrier')
    li = lab('id')
    a('s_cmp_lg_u32 s12, 0')
    a(f's_cbranch_scc1 {li}')
    flag_store(a, 1, 14)
    a.label(li)
    w2_setup(a)
    for st in (0, 1):
        for ft in range(5):
            for x in w2_dma(st, ft): a(x)
    a('s_waitcnt vmcnt(0)')
    phase_ffn2(a, L, False)
    a.label(f'{L}_f2')
    ffn2_body(a, L)
    a.label(f'{L}_fin')
    if 'f1stamp' not in gen.EXP: stamp(a, 14)
    if 'dbg' in gen.EXP:
        a('s_waitcnt vmcnt(0)')
        a('s_memrealtime s[96:97]'); a('s_memtime s[86:87]'); a('s_waitcnt lgkmcnt(0)')
        ldb = lab('db')
        a('s_cmp_lg_u32 s2, 0'); a(f's_cbranch_scc1 {ldb}'); a('s_cmp_lg_u32 s12, 0'); a(f's_cbranch_scc1 {ldb}')
        a('s_sub_u32 s96, s96, s90'); a('s_sub_u32 s86, s86, s92')
        a('v_mov_b32 v0, 0'); a('v_mov_b32 v2, s96'); a('v_mov_b32 v3, s86'); a('v_mov_b32 v4, s90'); a('v_mov_b32 v5, 0')
        a('global_store_dwordx4 v0, v[2:5], s[94:95] offset:16')
        a(f's_mov_b32 s86, {WS_PROF}')
        a('buffer_load_dwordx4 v[6:9], v0, s[8:11], s86 offen')
        a('s_waitcnt vmcnt(0)')
        a('global_store_dwordx4 v0, v[6:9], s[94:95]')
        a.label(ldb)
    if gen.PROF: a('s_waitcnt vmcnt(0)')
    stamp(a, 6, True)
    stamp_flush(a, 2, 15, 8, 12)
    a.label(f'{L}_end')
    a('s_endpgm')
    attn_fallback(a)
    a.label('.Lkf_last')
    a('s_endpgm')
    return a, descriptor(L, 256, 102), f'; @launch kernel={L} grid=(256,1,1) block=(512,1,1) lds=163840'

if __name__ == '__main__':
    if 'prof' in sys.argv: gen.PROF = True
    for x in sys.argv[2:]:
        if x.startswith('x:'): gen.EXP.add(x[2:])
    out = sys.argv[1]
    import gen4, gen5
    open(out, 'w').write(build([k0, k1, kf] if 'old' in gen.EXP else [gen4.k1p if 'k1p' in gen.EXP else gen5.k1s, kf]))
    print('wrote', out)
```

```python
import sys
sys.path.insert(0, 'dev')
import gen
from gen import *
from gen2 import lab
from gen3 import VM
from asmlib import *

PK_LDS = 131072
TB_LDS = PK_LDS + 24576
ST_T = TB_LDS
CS_T = TB_LDS + 1024

def k1s(a=None, join=None):
    WT = '' if 'k1plain' in gen.EXP else ' sc1'
    merged = a is not None
    L = 'k1_kernel' if not merged else '.Lk1'
    NS = 4
    if not merged:
        a = Asm()
        kernel_begin(a, L)
        a('s_cmp_ge_u32 s2, 256')
        a(f's_cbranch_scc1 {L}_end')
    def finish():
        if merged: a(f's_branch {join}')
        else: a('s_endpgm')
    stamp(a, 0, True); stamp(a, 1)
    if not merged and 'nok1pf' not in gen.EXP:
        code_touch(a, L, '.Lkf_last' if 'k1pfall' in gen.EXP else f'{L}_end', '.Lpc_k1', 152, 159, 2 if 'k1pfall' in gen.EXP else 1)
    a(f's_load_dwordx2 s[24:25], s[0:1], {A_X}')
    a(f's_load_dwordx2 s[26:27], s[0:1], {A_WQKV}')
    a(f's_load_dwordx2 s[4:5], s[0:1], {A_WS}')
    a(f's_load_dwordx2 s[28:29], s[0:1], {A_WO}')
    a(f's_load_dwordx2 s[30:31], s[0:1], {A_W1}')
    a(f's_load_dwordx2 s[32:33], s[0:1], {A_W2}')
    a('s_and_b32 s15, s2, 7')
    a('s_lshr_b32 s16, s2, 3')
    a('s_and_b32 s13, s15, 3')
    a('s_lshl_b32 s13, s13, 2')
    a('s_and_b32 s17, s16, 3')
    a('s_add_u32 s13, s13, s17')
    a('s_lshr_b32 s14, s15, 2')
    a('s_lshl_b32 s14, s14, 3')
    a('s_lshr_b32 s17, s16, 2')
    a('s_add_u32 s14, s14, s17')
    a('v_lshrrev_b32 v1, 6, v0')
    a('v_and_b32 v2, 63, v0')
    a('v_readfirstlane_b32 s12, v1')
    a('v_and_b32 v3, 31, v2')
    a('v_lshrrev_b32 v4, 5, v2')
    a('v_lshlrev_b32 v10, 4, v2')
    a('s_and_b32 s23, s12, 3')
    if merged:
        from gen2 import WS_XT
        li = lab('in')
        a('s_cmp_lg_u32 s12, 0')
        a(f's_cbranch_scc1 {li}')
        a('s_waitcnt lgkmcnt(0)')
        srd(a, 8, 4, WS_END)
        a('s_and_b32 s40, s2, 7')
        a('s_lshl_b32 s40, s40, 7')
        a('s_lshr_b32 s41, s2, 3')
        a('s_lshl_b32 s41, s41, 2')
        a('s_add_u32 s40, s40, s41')
        a(f's_add_u32 s40, s40, {WS_FLAG}')
        a('v_lshlrev_b32 v5, 10, v2')
        a(f'v_mov_b32 v6, {WS_XT - WS_FLAG}')
        a('v_cmp_eq_u32 vcc, 3, v2')
        a('v_cndmask_b32 v5, v5, v6, vcc')
        a('s_getreg_b32 s41, hwreg(HW_REG_XCC_ID, 0, 4)')
        a('s_add_u32 s41, s41, 1')
        a('v_mov_b32 v6, 0')
        a('v_mov_b32 v7, s41')
        a('v_cndmask_b32 v6, v6, v7, vcc')
        a('s_mov_b64 exec, 15')
        a('buffer_store_dword v6, v5, s[8:11], s40 offen sc1')
        a('s_mov_b64 exec, -1')
        a.label(li)
    a('s_cmp_lt_u32 s12, 4')
    a(f's_cbranch_scc1 {L}_compute')
    a('v_lshrrev_b32 v5, 3, v2')
    a('s_lshl_b32 s40, s23, 3')
    a('v_add_u32 v5, s40, v5')
    a('v_lshrrev_b32 v6, 4, v2')
    a('s_lshl_b32 s40, s23, 2')
    a('v_add_u32 v7, s40, v6')
    a('v_and_b32 v7, 7, v7')
    a('v_and_b32 v8, 7, v2')
    a('v_xor_b32 v7, v7, v8')
    a('s_movk_i32 s40, 1280')
    a('v_mul_lo_u32 v5, v5, s40')
    a('v_lshl_add_u32 v5, v7, 4, v5')
    a('s_mul_i32 s35, s13, 163840')
    a('s_lshl_b32 s40, s23, 2')
    a('v_add_u32 v7, s40, v6')
    a('s_movk_i32 s40, 3840')
    a('v_mul_lo_u32 v7, v7, s40')
    a('v_and_b32 v8, 15, v2')
    a('v_lshlrev_b32 v9, 2, v6')
    a('v_xor_b32 v8, v8, v9')
    a('v_lshl_add_u32 v6, v8, 4, v7')
    a('s_lshl_b32 s36, s14, 8')
    a('s_lshl_b32 s37, s23, 10')
    a('s_waitcnt lgkmcnt(0)')
    srd(a, 56, 24, S * D * 2)
    srd(a, 60, 26, D * 3 * D * 2)
    srd(a, 8, 4, WS_END)
    vm = VM()
    def dma(st, k):
        slot = (st % NS) * 32768
        if k < 4:
            a(f's_add_u32 m0, s37, {slot + k*4096}')
            a(f's_add_u32 s38, s35, {st*128 + k*32*1280}')
            a('buffer_load_dwordx4 v5, s[56:59], s38 offen lds')
        else:
            a(f's_add_u32 m0, s37, {slot + 16384 + (k-4)*4096}')
            a(f's_add_u32 s38, s36, {(st*64 + (k-4)*16)*3840}')
            a('buffer_load_dwordx4 v6, s[60:63], s38 offen lds')
        vm.issue(('r', st))
    def decode():
        l1_, l2_, ld = lab('pk'), lab('pk'), lab('pk')
        a('s_cmp_lt_u32 s2, 40')
        a(f's_cbranch_scc0 {l1_}')
        srd(a, 64, 28, D * D * 2)
        a(f's_mul_hi_u32 s46, s2, {magic(10)}')
        a('s_mul_i32 s47, s46, 10')
        a('s_sub_u32 s47, s2, s47')
        a('s_movk_i32 s41, 160'); a('s_movk_i32 s42, 1280'); a(f's_mov_b32 s44, {WS_WO}'); a('s_movk_i32 s45, 20480')
        a(f's_branch {ld}')
        a.label(l1_)
        a('s_cmp_lt_u32 s2, 148')
        a(f's_cbranch_scc0 {l2_}')
        srd(a, 64, 30, D * F * 2)
        a('s_sub_u32 s40, s2, 40')
        a(f's_mul_hi_u32 s46, s40, {magic(27)}')
        a('s_mul_i32 s47, s46, 27')
        a('s_sub_u32 s47, s40, s47')
        a('s_movk_i32 s41, 160'); a('s_movk_i32 s42, 3456'); a(f's_mov_b32 s44, {WS_W1}'); a('s_movk_i32 s45, 20480')
        a(f's_branch {ld}')
        a.label(l2_)
        srd(a, 64, 32, F * D * 2)
        a('s_sub_u32 s40, s2, 148')
        a(f's_mul_hi_u32 s46, s40, {magic(10)}')
        a('s_mul_i32 s47, s46, 10')
        a('s_sub_u32 s47, s40, s47')
        a('s_movk_i32 s41, 192'); a('s_movk_i32 s42, 1280'); a(f's_mov_b32 s44, {WS_W2}'); a('s_mov_b32 s45, 55296')
        a.label(ld)
        a('s_mul_i32 s43, s46, s41')
        a('s_lshr_b32 s48, s43, 3')
        a('s_mul_i32 s43, s43, s42')
        a('s_lshl_b32 s40, s47, 7')
        a('s_add_u32 s43, s43, s40')
        a('s_lshl_b32 s40, s47, 2')
        a('s_mul_i32 s40, s40, s45')
        a('s_add_u32 s44, s44, s40')
        a('s_lshl_b32 s40, s48, 8')
        a('s_add_u32 s44, s44, s40')
    def pack_dma_setup():
        a('v_lshrrev_b32 v11, 3, v2')
        a('s_lshl_b32 s40, s23, 3')
        a('v_add_u32 v11, s40, v11')
        a('v_mul_lo_u32 v11, v11, s42')
        a('v_and_b32 v12, 7, v2')
        a('v_lshl_add_u32 v11, v12, 4, v11')
        a('s_cmp_lt_u32 s2, 238')
        a('s_cselect_b32 s49, s43, 0x7ff00000')
        a('s_lshl_b32 s50, s42, 5')
    def pack_dma_one(i):
        a(f's_add_u32 m0, s37, {PK_LDS + i*4096}')
        a('s_nop 0')
        a('buffer_load_dwordx4 v11, s[64:67], s49 offen lds')
        a('s_add_u32 s49, s49, s50')
    def pack_dma():
        pack_dma_setup()
        for i in range(6): pack_dma_one(i)
    def pack_setup():
        a('v_lshrrev_b32 v12, 4, v2')
        a('v_lshrrev_b32 v13, 2, v2')
        a('v_and_b32 v13, 3, v13')
        a('v_lshl_add_u32 v12, v12, 3, v13')
        a('v_lshlrev_b32 v12, 7, v12')
        a('v_and_b32 v13, 3, v2')
        a('v_lshl_add_u32 v12, v13, 3, v12')
        a('s_lshl_b32 s49, s23, 5')
        a(f's_add_u32 s49, s49, {PK_LDS}')
        a('v_add_u32 v12, s49, v12')
        a('s_mul_i32 s54, s23, s45')
        a('s_add_u32 s54, s54, s44')
        a('s_cmp_lt_u32 s2, 238')
        a('s_cselect_b32 s54, s54, 0x7ff00000')
        a('s_cmp_gt_u32 s41, 160')
        a('s_cselect_b32 s55, s54, 0x7ff00000')
    def pack_read(i, T):
        a(f'ds_read_b64_tr_b16 {v(T,2)}, v12 offset:{i*4096}')
        a(f'ds_read_b64_tr_b16 {v(T+2,2)}, v12 offset:{i*4096 + 512}')
    def pack_store(i, T):
        a(f's_add_u32 s49, {"s54" if i < 5 else "s55"}, {i*1024}')
        a(f'buffer_store_dwordx4 {v(T,4)}, v10, s[8:11], s49 offen' + WT)
    def pack_work(T):
        pack_setup()
        for i in range(6): pack_read(i, T + 4*i)
        a('s_waitcnt lgkmcnt(0)')
        for i in range(6): pack_store(i, T + 4*i)
    lz = f'{L}_nogemm'
    a('s_cmp_ge_u32 s14, 15')
    a(f's_cbranch_scc1 {lz}')
    for st in range(2):
        for k in range(4): dma(st, k)
    decode()
    pack_dma_setup()
    VB = 14
    a('v_lshrrev_b32 v7, 1, v3')
    a('v_and_b32 v7, 7, v7')
    a('s_lshl_b32 s40, s23, 12')
    a('v_lshlrev_b32 v8, 7, v3')
    a('v_add_u32 v8, s40, v8')
    for ks in range(4):
        a(f'v_or_b32 v9, {2*ks}, v4')
        a('v_xor_b32 v9, v9, v7')
        a(f'v_lshl_add_u32 v{VB+ks}, v9, 4, v8')
        a(f'v_add_u32 v{VB+4+ks}, 0x10000, v{VB+ks}')
    XS, S1, T = 24, 40, 44
    for r in range(4): a(f'v_mov_b32 v{S1+r}, 0')
    pend = [(st, k) for st in range(2, 10) for k in range(4)]
    stamp(a, 2)
    vm.wait(a, lambda x: x == ('r', 0))
    a('s_barrier')
    stamp(a, 3)
    for st in range(10):
        off = (st % NS) * 32768
        hi = off >= 65536
        if hi: off -= 65536
        for ks in range(4): a(f'ds_read_b128 {v(XS+4*ks,4)}, v{VB+(4 if hi else 0)+ks} offset:{off}')
        n_iss = 8 if st == 0 else 4
        todo = []
        while pend and pend[0][0] <= st + NS - 1 and len(todo) < n_iss: todo.append(pend.pop(0))
        if todo: dma(*todo.pop(0))
        a('s_waitcnt lgkmcnt(0)')
        for r in range(16):
            src = XS + r; t = T + 2 * (r & 1); acc = S1 + (r & 1)
            if 'k1nostat' not in gen.EXP:
                a(f'v_lshlrev_b32 v{t}, 16, v{src}'); a(f'v_and_b32 v{t+1}, 0xffff0000, v{src}')
                a(f'v_add_f32 v{acc}, v{acc}, v{t}'); a(f'v_fmac_f32 v{acc+2}, v{t}, v{t}')
                a(f'v_add_f32 v{acc}, v{acc}, v{t+1}'); a(f'v_fmac_f32 v{acc+2}, v{t+1}, v{t+1}')
            if todo and ((r & 3) == 3 or (st == 0 and (r & 1))): dma(*todo.pop(0))
        while todo: dma(*todo.pop(0))
        if st <= 2 and 'k1nopk' not in gen.EXP:
            for i in (2*st, 2*st+1):
                pack_dma_one(i); vm.issue('pk')
        if st + 1 < 10:
            if st == 3 and 'k1nopk' not in gen.EXP: vm.wait(a, lambda x: x == ('r', 4) or x == 'pk')
            else: vm.wait(a, lambda x: x == ('r', st + 1))
            a('s_barrier')
    a(f'v_add_f32 v{S1}, v{S1}, v{S1+1}')
    a(f'v_add_f32 v{S1+2}, v{S1+2}, v{S1+3}')
    for r in (0, 2):
        a(f'v_mov_b32 v{T}, v{S1+r}'); a(f'v_mov_b32 v{T+1}, v{S1+r}')
        a(f'v_permlane32_swap_b32 v{T}, v{T+1}')
        a(f'v_add_f32 v{S1+r}, v{T}, v{T+1}')
    a(f'v_mul_f32 v{S1}, {f2hex(1.0/640)}, v{S1}')
    a(f'v_mul_f32 v{S1+1}, {f2hex(1.0/640)}, v{S1+2}')
    a(f'v_fma_f32 v{S1+1}, -v{S1}, v{S1}, v{S1+1}')
    a(f'v_add_f32 v{S1+1}, 0x3727c5ac, v{S1+1}')
    a(f'v_rsq_f32 v{S1+1}, v{S1+1}')
    a(f'v_mul_f32 v{S1}, v{S1}, v{S1+1}')
    a('s_lshl_b32 s40, s23, 7')
    a(f's_add_u32 s40, s40, {ST_T}')
    a('v_lshlrev_b32 v7, 2, v3')
    a('v_add_u32 v7, s40, v7')
    a(f'ds_write_b32 v7, v{S1}')
    a(f'ds_write_b32 v7, v{S1+1} offset:512')
    a('s_waitcnt lgkmcnt(0)')
    a('s_barrier')
    finish()
    a.label(lz)
    decode()
    pack_dma()
    if not merged:
        a('v_lshlrev_b32 v1, 4, v2')
        a('s_lshl_b32 s40, s23, 10')
        a('v_add_u32 v1, s40, v1')
        for r in range(4): a(f'v_mov_b32 v{100+r}, 0')
        a(f's_mov_b32 s17, {WS_FLAG}')
        a('buffer_store_dwordx4 v[100:103], v1, s[8:11], s17 offen')
        a('buffer_store_dwordx4 v[100:103], v1, s[8:11], s17 offen offset:4095' if False else 's_add_u32 s17, s17, 4096')
        a('buffer_store_dwordx4 v[100:103], v1, s[8:11], s17 offen')
    a('s_waitcnt vmcnt(0)')
    a('s_barrier')
    pack_work(48)
    finish()
    a.label(f'{L}_compute')
    a('s_cmp_ge_u32 s14, 15')
    if merged:
        lq = lab('ng')
        a(f's_cbranch_scc0 {lq}')
        a('s_barrier')
        finish()
        a.label(lq)
    else:
        a(f's_cbranch_scc1 {L}_end')
    a('s_and_b32 s21, s12, 1')
    a('s_lshr_b32 s22, s12, 1')
    a('v_lshrrev_b32 v6, 4, v2')
    a('s_lshl_b32 s40, s23, 2')
    a('v_add_u32 v7, s40, v6')
    a('s_movk_i32 s40, 3840')
    a('v_mul_lo_u32 v7, v7, s40')
    a('v_and_b32 v8, 15, v2')
    a('v_lshlrev_b32 v9, 2, v6')
    a('v_xor_b32 v8, v8, v9')
    a('v_lshl_add_u32 v6, v8, 4, v7')
    a('s_lshl_b32 s36, s14, 8')
    a('s_lshl_b32 s37, s23, 10')
    a('s_waitcnt lgkmcnt(0)')
    srd(a, 60, 26, D * 3 * D * 2)
    vc = VM()
    def wdma(st, k):
        slot = (st % NS) * 32768
        a(f's_add_u32 m0, s37, {slot + 16384 + k*4096}')
        a(f's_add_u32 s38, s36, {(st*64 + k*16)*3840}')
        a('buffer_load_dwordx4 v6, s[60:63], s38 offen lds')
        vc.issue(('r', st))
    for st in range(2):
        for k in range(4): wdma(st, k)
    base_ops = list(vc.ops)
    VB, VA = 14, 22
    a('v_lshrrev_b32 v7, 1, v3')
    a('v_and_b32 v7, 7, v7')
    a('s_lshl_b32 s40, s22, 13')
    a('v_lshlrev_b32 v8, 7, v3')
    a('v_add_u32 v8, s40, v8')
    for ks in range(4):
        a(f'v_or_b32 v9, {2*ks}, v4')
        a('v_xor_b32 v9, v9, v7')
        a(f'v_lshl_add_u32 v{VB+ks}, v9, 4, v8')
        a(f'v_add_u32 v{VB+4+ks}, 0x10000, v{VB+ks}')
    a('v_lshrrev_b32 v7, 2, v2')
    a('v_and_b32 v7, 3, v7')
    a('v_and_b32 v8, 3, v2')
    a('v_and_b32 v9, 1, v8')
    a('v_lshlrev_b32 v9, 1, v9')
    a('v_lshrrev_b32 v11, 1, v8')
    a('v_or_b32 v9, v9, v11')
    a('s_cmp_lt_u32 s14, 10')
    a('s_cselect_b64 vcc, -1, 0')
    a('v_cndmask_b32 v8, v8, v9, vcc')
    a('v_lshrrev_b32 v9, 4, v2')
    a('v_and_b32 v9, 1, v9')
    a('v_lshl_add_u32 v8, v9, 2, v8')
    a('v_lshl_add_u32 v12, v4, 3, v7')
    a('v_lshlrev_b32 v12, 8, v12')
    a('v_and_b32 v13, 1, v8')
    a('v_lshl_add_u32 v12, v13, 3, v12')
    a('v_lshrrev_b32 v8, 1, v8')
    a('v_lshlrev_b32 v11, 2, v7')
    for aa in range(2):
        a(f's_xor_b32 s40, s22, {aa}')
        a('s_lshl_b32 s41, s21, 1')
        a('s_add_u32 s40, s40, s41')
        a(f's_mov_b32 s{50+aa}, s40')
        a('s_lshl_b32 s40, s40, 2')
        a('v_add_u32 v9, s40, v8')
        a('v_xor_b32 v9, v9, v11')
        a(f'v_lshl_add_u32 v{VA+2*aa}, v9, 4, v12')
        a(f'v_add_u32 v{VA+2*aa}, 16384, v{VA+2*aa}')
        a(f'v_add_u32 v{VA+2*aa+1}, 0x10000, v{VA+2*aa}')
    SEL, CSA = 28, 32
    a(f'v_mov_b32 v{SEL}, 0')
    a('s_mov_b32 s52, 0x00020001')
    a('s_mov_b32 s53, 0x00020001')
    a('v_mov_b32 v7, 0x3f803f80')
    a(f'v_cndmask_b32 v{SEL}, v{SEL}, v7, s[52:53]')
    for r in range(1, 4): a(f'v_mov_b32 v{SEL+r}, v{SEL}')
    for r in range(4): a(f'v_mov_b32 v{CSA+r}, 0')
    ACC, FA, FB, T = 40, 104, 120, 136
    a('s_waitcnt lgkmcnt(0)')
    srd(a, 8, 4, WS_END)
    a('s_mov_b32 s56, s50'); a('s_mov_b32 s57, s51')
    decode()
    pack_setup()
    PKT = 140
    def reads(st, ks, buf):
        off = (st % NS) * 32768
        hi = 1 if off >= 65536 else 0
        off -= hi * 65536
        for aa in range(2):
            a(f'ds_read_b64_tr_b16 {v(FA+8*buf+4*aa,2)}, v{VA+2*aa+hi} offset:{off + ks*4096}')
            a(f'ds_read_b64_tr_b16 {v(FA+8*buf+4*aa+2,2)}, v{VA+2*aa+hi} offset:{off + ks*4096 + 1024}')
        bb = VB + 4 * hi + ks
        a(f'ds_read_b128 {v(FB+8*buf,4)}, v{bb} offset:{off}')
        a(f'ds_read_b128 {v(FB+8*buf+4,4)}, v{bb} offset:{off + 4096}')
    def main(swap):
        vc.ops = list(base_ops)
        pend = [(st, k) for st in range(2, 10) for k in range(4)]
        vc.wait(a, lambda x: x == ('r', 0))
        a('s_barrier')
        stamp(a, 3)
        reads(0, 0, 0)
        buf = 0
        for st in range(10):
            for ks in range(4):
                if ks < 3:
                    if st >= 4 and ks == 0 and 'k1nopk' not in gen.EXP: pack_read(st - 4, PKT)
                    reads(st, ks + 1, buf ^ 1)
                    a('s_waitcnt lgkmcnt(%d)' % (8 if (st >= 4 and ks == 0 and 'k1nopk' not in gen.EXP) else 6))
                else:
                    a('s_waitcnt lgkmcnt(0)')
                    if st + 1 < 10:
                        if 'k1stamp' in gen.EXP and st in (2, 5): stamp(a, {2: 8, 5: 10}[st])
                        vc.wait(a, lambda x: x == ('r', st + 1))
                        a('s_barrier')
                        if 'k1stamp' in gen.EXP and st in (2, 5): stamp(a, {2: 9, 5: 11}[st])
                        reads(st + 1, 0, buf ^ 1)
                for aa in range(2):
                    for j in range(2):
                        A_ = v(FA+8*buf+4*aa, 4); B_ = v(FB+8*buf+4*j, 4)
                        acc = v(ACC+32*aa+16*j, 16)
                        c = '0' if (st == 0 and ks == 0) else acc
                        if swap: a(f'v_mfma_f32_32x32x16_bf16 {acc}, {B_}, {A_}, {c}')
                        else: a(f'v_mfma_f32_32x32x16_bf16 {acc}, {A_}, {B_}, {c}')
                if 'k1nocs' not in gen.EXP: a(f'v_mfma_f32_16x16x32_bf16 {v(CSA,4)}, {v(FA+8*buf,4)}, {v(SEL,4)}, {v(CSA,4)}')
                if st >= 4 and ks == 1 and 'k1nopk' not in gen.EXP:
                    pack_store(st - 4, PKT); vc.issue('pks')
                lim = st + NS - 1 + (1 if ks == 3 else 0)
                for _ in range(2 if st == 0 else 1):
                    if pend and pend[0][0] <= lim: wdma(*pend.pop(0))
                buf ^= 1
        stamp(a, 4)
        a('s_lshl_b32 s40, s56, 7')
        a(f's_add_u32 s40, s40, {CS_T}')
        a('v_and_b32 v8, 1, v2')
        a('v_lshlrev_b32 v8, 6, v8')
        a('v_lshrrev_b32 v9, 4, v2')
        a('v_lshl_add_u32 v8, v9, 4, v8')
        a('v_add_u32 v8, s40, v8')
        a('s_mov_b32 s52, 0x00030003')
        a('s_mov_b32 s53, 0x00030003')
        a('s_nop 7')
        a('s_mov_b64 exec, s[52:53]')
        a(f'ds_write_b128 v8, {v(CSA,4)}')
        a('s_mov_b64 exec, -1')
        a('s_waitcnt lgkmcnt(0)')
        a('s_barrier')
    a('s_cmp_ge_u32 s14, 10')
    a(f's_cbranch_scc1 {L}_v')
    main(False)
    C, P = 104, 136
    a('s_lshl_b32 s40, s22, 8')
    a(f's_add_u32 s40, s40, {ST_T}')
    a('v_lshlrev_b32 v7, 2, v3')
    a('v_add_u32 v7, s40, v7')
    for j in range(2):
        a(f'ds_read_b32 v{P+2*j}, v7 offset:{j*128}')
        a(f'ds_read_b32 v{P+2*j+1}, v7 offset:{512 + j*128}')
    for aa in range(2):
        a(f's_lshl_b32 s40, s{56+aa}, 7')
        a(f's_add_u32 s40, s40, {CS_T}')
        a('v_lshlrev_b32 v7, 4, v4')
        a('v_add_u32 v7, s40, v7')
        for g in range(4): a(f'ds_read_b128 {v(C+16*aa+4*g,4)}, v7 offset:{g*32}')
    a(f's_mov_b32 s40, {f2hex(QSCALE)}')
    a('s_cmp_lt_u32 s14, 5')
    a('s_cselect_b32 s40, s40, 1.0')
    a('s_waitcnt lgkmcnt(0)')
    for r in range(4): a(f'v_mul_f32 v{P+r}, s40, v{P+r}')
    a('v_lshrrev_b32 v13, 4, v3')
    a('s_movk_i32 s17, 20480')
    a('v_mul_lo_u32 v13, v13, s17')
    a('v_and_b32 v14, 15, v3')
    a('v_lshl_add_u32 v13, v14, 4, v13')
    a('v_lshl_add_u32 v13, v4, 8, v13')
    a('s_lshl_b32 s17, s13, 3')
    a('s_lshl_b32 s18, s22, 2')
    a('s_add_u32 s17, s17, s18')
    a('s_mul_i32 s17, s17, 20480')
    a(f's_mov_b32 s18, {WS_Q}')
    a(f's_mov_b32 s19, {WS_K - 80*256}')
    a('s_cmp_lt_u32 s14, 5')
    a('s_cselect_b32 s18, s18, s19')
    a('s_add_u32 s17, s17, s18')
    a('s_lshl_b32 s18, s14, 12')
    a('s_add_u32 s17, s17, s18')
    PK = 144
    for aa in range(2):
        for j in range(2):
            acc = ACC + 32 * aa + 16 * j
            for r in range(16):
                a(f'v_mul_f32 v{P+4}, v{P+2*j}, v{C+16*aa+r}')
                a(f'v_fma_f32 v{acc+r}, v{P+2*j+1}, v{acc+r}, -v{P+4}')
            pk = PK + 8 * ((2 * aa + j) & 1)
            for r in range(8): a(f'v_cvt_pk_bf16_f32 v{pk+r}, v{acc+2*r}, v{acc+2*r+1}')
            a(f's_lshl_b32 s18, s{56+aa}, 10')
            a('s_add_u32 s18, s18, s17')
            if j: a(f's_add_u32 s18, s18, {2*20480}')
            a(f'buffer_store_dwordx4 {v(pk,4)}, v13, s[8:11], s18 offen' + WT)
            a(f'buffer_store_dwordx4 {v(pk+4,4)}, v13, s[8:11], s18 offen offset:512' + WT)
    stamp(a, 5)
    if gen.PROF: a('s_waitcnt vmcnt(0)')
    stamp(a, 6); stamp(a, 7, True)
    if not merged: stamp_flush(a, 1, 12, 8, 12)
    finish()
    a.label(f'{L}_v')
    main(True)
    C = 104
    TT = 136
    for aa in range(2):
        a(f's_lshl_b32 s40, s{56+aa}, 7')
        a(f's_add_u32 s40, s40, {CS_T}')
        a('v_lshlrev_b32 v8, 2, v3')
        a('v_add_u32 v8, s40, v8')
        a(f'ds_read_b32 v{TT+aa}, v8')
    a('s_lshl_b32 s40, s22, 8')
    a(f's_add_u32 s40, s40, {ST_T}')
    a('v_lshlrev_b32 v7, 4, v4')
    a('v_add_u32 v7, s40, v7')
    for aa in range(2):
        a('s_sub_u32 s17, s14, 10')
        a('s_lshl_b32 s17, s17, 7')
        a(f's_lshl_b32 s18, s{56+aa}, 5')
        a('s_add_u32 s17, s17, s18')
        a('v_add_u32 v13, s17, v3')
        a(f's_mov_b32 s17, {magic(20)}')
        a('v_mul_hi_u32 v14, v13, s17')
        a('v_mul_u32_u24 v15, 20, v14')
        a('v_sub_u32 v15, v13, v15')
        a('s_mov_b32 s17, 81920')
        a('v_mul_lo_u32 v14, v14, s17')
        a('v_lshl_add_u32 v14, v15, 4, v14')
        a('v_mul_u32_u24 v15, 320, v4')
        a(f'v_add_u32 v{TT+2+aa}, v14, v15')
    a('s_lshl_b32 s17, s13, 3')
    a('s_lshl_b32 s18, s22, 2')
    a('s_add_u32 s17, s17, s18')
    a('s_mul_i32 s17, s17, 640')
    a(f's_add_u32 s17, s17, {WS_VT}')
    PK = 144
    for j in range(2):
        for g in range(4):
            a(f'ds_read_b128 {v(C+4*g,4)}, v7 offset:{j*128 + g*32}')
            a(f'ds_read_b128 {v(C+16+4*g,4)}, v7 offset:{512 + j*128 + g*32}')
        a('s_waitcnt lgkmcnt(0)')
        for aa in range(2):
            acc = ACC + 32 * aa + 16 * j
            for r in range(16):
                a(f'v_mul_f32 v{TT+4}, v{C+r}, v{TT+aa}')
                a(f'v_fma_f32 v{acc+r}, v{C+16+r}, v{acc+r}, -v{TT+4}')
            pk = PK + 8 * aa
            for r in range(8): a(f'v_cvt_pk_bf16_f32 v{pk+r}, v{acc+2*r}, v{acc+2*r+1}')
            for gg in range(2):
                a(f'buffer_store_dwordx4 {v(pk+4*gg,4)}, v{TT+2+aa}, s[8:11], s17 offen offset:{(2*j+gg)*640}' + WT)
    stamp(a, 5)
    if gen.PROF: a('s_waitcnt vmcnt(0)')
    stamp(a, 6); stamp(a, 7, True)
    if merged:
        finish()
        return
    stamp_flush(a, 1, 12, 8, 12)
    a.label(f'{L}_end')
    a('s_endpgm')
    return a, descriptor(L, 160, 102), f'; @launch kernel={L} grid=(256,1,1) block=(512,1,1) lds=163840'
```

```python
import sys
sys.path.insert(0, 'dev')
import gen, gen2
from gen import *
from gen2 import lab, stores2, attn_units, wo_dma, WS_XT, SG, SJ, SPURE, LDS_WO, SPIN_MAX
from asmlib import *

class VM:
    def __init__(self): self.ops = []
    def issue(self, tag): self.ops.append(tag)
    def count_after(self, pred):
        n = 0
        for x in reversed(self.ops):
            if pred(x): return n
            n += 1
        raise Exception('no op matches')
    def wait(self, a, pred, extra=''):
        a(f's_waitcnt vmcnt({min(self.count_after(pred), 63)}){extra}')

XR0 = 136
W1A, W1B = 152, 16
def w1reg(s): return W1A + 4 * s if s < 26 else W1B + 4 * (s - 26)
SH, SR = 36, 37
S_OOB = 38
S_DONE = 39
FB_LDS = 159744
S_W1 = 98
V_W1 = 1

def flag_store(a, p, vt):
    g_, j_ = (SR, SH) if p == 0 else (SG, SJ)
    a(f's_lshl_b32 s40, s{g_}, 7')
    a(f's_lshl_b32 s41, s{j_}, 2')
    a('s_add_u32 s40, s40, s41')
    a(f's_add_u32 s40, s40, {WS_FLAG + p*1024}')
    a(f'v_mov_b32 v{vt}, 0')
    a(f'v_mov_b32 v{vt+1}, 1')
    a('s_mov_b64 exec, 1')
    stores2(a, [f'buffer_store_dword v{vt+1}, v{vt}, s[8:11], s40 offen'])
    a('s_mov_b64 exec, -1')

def sync(a, p_pub, p_wait, smask_setup, prefetch, vt=14, drained=False):
    if p_pub is not None and not drained:
        a('s_waitcnt vmcnt(0)')
        a('s_barrier')
    l0, l1, lp, ld, l3 = lab('sy'), lab('sy'), lab('sy'), lab('sy'), lab('sy')
    a('s_cmp_lg_u32 s12, 0')
    a(f's_cbranch_scc1 {l0}')
    if p_pub is not None: flag_store(a, p_pub, vt)
    smask_setup()
    a(f's_lshl_b32 s40, s{SG}, 7')
    a(f's_add_u32 s40, s40, {WS_FLAG + p_wait*1024}')
    a(f'v_lshlrev_b32 v{vt}, 2, v2')
    a('s_mov_b64 exec, s[44:45]')
    a('s_mov_b32 s41, 0')
    a.label(lp)
    a(f'buffer_load_dword v{vt+1}, v{vt}, s[8:11], s40 offen sc1')
    a('s_add_u32 s41, s41, 1')
    a('s_waitcnt vmcnt(0)')
    a(f'v_cmp_eq_u32 vcc, 0, v{vt+1}')
    a(f's_cbranch_vccz {ld}')
    a(f's_cmp_lt_u32 s41, {SPIN_MAX}')
    a(f's_cbranch_scc1 {lp}')
    a.label(ld)
    a('s_mov_b64 exec, -1')
    a(f's_cmp_eq_u32 s{SPURE}, 1')
    a(f's_cbranch_scc1 {l3}')
    a('buffer_inv sc1')
    a('s_waitcnt vmcnt(0)')
    a.label(l3)
    a('s_barrier')
    prefetch()
    a(f's_branch {l1}')
    a.label(l0)
    prefetch()
    a('s_barrier')
    a.label(l1)

def phase_attn(a):
    R = AR
    attn_setup(a, SH, SR, 12, 8)
    a(f's_lshr_b32 s62, s{SJ}, 2')
    a('s_mul_i32 s62, s62, 102400')
    a(f's_add_u32 s62, s62, {WS_WO}')
    a('s_lshl_b32 s61, s12, 10')
    a('s_add_u32 s62, s62, s61')
    a('s_cmp_lt_u32 s12, 4')
    a(f's_mov_b32 s63, {11*8192}')
    a(f's_cselect_b32 s63, {12*8192}, s63')
    a('s_add_u32 s63, s63, s62')
    a(f's_add_u32 s61, s61, {LDS_WO}')
    for r in range(32): a(f'v_mov_b32 v{R.O+r}, 0')
    for r in range(16): a(f'v_mov_b32 v{R.P+r}, 0')
    for r in range(16): a(f'v_mov_b32 v{R.VV+r}, 0')
    vm = VM()
    attn_dma(a, 0, 8)
    a(f's_mov_b32 s{S_DONE}, 0')
    a(f'v_mov_b32 v14, {FB_LDS}')
    a('v_mov_b32 v15, 0')
    a('ds_write_b32 v14, v15')
    lane_swap23(a, 14, 3, 15)
    a('v_lshrrev_b32 v15, 4, v14')
    a('s_movk_i32 s40, 20480')
    a('v_mul_lo_u32 v15, v15, s40')
    a('v_and_b32 v14, 15, v14')
    a('v_lshl_add_u32 v15, v14, 4, v15')
    a(f'v_lshl_add_u32 v{V_W1}, v4, 8, v15')
    a(f's_lshr_b32 s40, s{SJ}, 1')
    a('s_lshl_b32 s40, s40, 2')
    a('s_and_b32 s41, s12, 3')
    a('s_add_u32 s40, s40, s41')
    a('s_mul_i32 s41, s40, 40960')
    a(f's_add_u32 s41, s41, {WS_W1}')
    a('s_cmp_lt_u32 s40, 54')
    a(f's_cselect_b32 s{S_W1}, s41, 0x7ff00000')
    a(f's_mov_b32 s{S_OOB}, 0x7ff00000')
    lt1, lt2 = lab('tc'), lab('tc')
    a('v_lshlrev_b32 v148, 7, v2')
    a('s_cmp_ge_u32 s12, 4')
    a(f's_cbranch_scc1 {lt1}')
    a(f's_mul_i32 s50, s{SG}, {16*20480}')
    a(f's_mul_i32 s40, s{SJ}, 10240')
    a('s_add_u32 s50, s50, s40')
    a('s_and_b32 s40, s12, 1')
    a('s_mul_i32 s40, s40, 5120')
    a('s_add_u32 s50, s50, s40')
    a('s_lshr_b32 s40, s12, 1')
    a(f's_mul_i32 s40, s40, {WS_H - WS_O}')
    a('s_add_u32 s50, s50, s40')
    a(f's_add_u32 s50, s50, {WS_O}')
    a('v_add_u32 v148, s50, v148')
    a(f's_lshr_b32 s40, s{SJ}, 1')
    a('s_lshl_b32 s40, s40, 14')
    a(f's_lshl_b32 s41, s{SG}, 11')
    a('s_add_u32 s40, s40, s41')
    a(f's_and_b32 s41, s{SJ}, 1')
    a('s_lshl_b32 s41, s41, 10')
    a('s_add_u32 s40, s40, s41')
    a(f's_add_u32 s40, s40, {WS_ST2 - 40*128}')
    a('s_cmp_eq_u32 s12, 2')
    a('s_cselect_b32 s40, s40, 0x7ff00000')
    a('v_lshlrev_b32 v149, 7, v2')
    a('v_add_u32 v149, s40, v149')
    a('v_mov_b32 v14, 0x7ff00000')
    a('v_cmp_gt_u32 vcc, 48, v2')
    a('v_cndmask_b32 v149, v14, v149, vcc')
    a('v_cmp_gt_u32 vcc, 40, v2')
    a('v_cndmask_b32 v148, v149, v148, vcc')
    a(f's_branch {lt2}')
    a.label(lt1)
    a('s_sub_u32 s40, s12, 4')
    a('s_lshl_b32 s40, s40, 5')
    a(f's_add_u32 s40, s40, s{SJ}')
    a('s_mul_i32 s50, s40, 20480')
    a(f's_add_u32 s50, s50, {WS_W1 + 13312}')
    a('s_cmp_lt_u32 s40, 108')
    a('s_cselect_b32 s50, s50, 0x7ff00000')
    a('v_add_u32 v148, s50, v148')
    a('v_mov_b32 v14, 0x7ff00000')
    a('v_cmp_gt_u32 vcc, 56, v2')
    a('v_cndmask_b32 v148, v14, v148, vcc')
    a.label(lt2)
    a('v_lshlrev_b32 v147, 7, v2')
    a('s_lshl_b32 s40, s12, 13')
    a(f's_mul_i32 s51, s{SG}, {16*55296}')
    a(f's_mul_i32 s41, s{SJ}, 27648')
    a('s_add_u32 s51, s51, s41')
    a('s_add_u32 s51, s51, s40')
    a(f's_add_u32 s51, s51, {WS_G}')
    a('s_cmp_ge_u32 s12, 4')
    a('s_cselect_b32 s51, 0x7ff00000, s51')
    a(f's_and_b32 s40, s{SJ}, 3')
    a('s_lshl_b32 s40, s40, 2')
    a(f's_lshl_b32 s41, s{SG}, 4')
    a('s_add_u32 s40, s40, s41')
    a('s_and_b32 s41, s12, 3')
    a('s_add_u32 s40, s40, s41')
    a('s_lshl_b32 s40, s40, 4')
    a('v_and_b32 v0, 15, v2')
    a('v_add_u32 v0, s40, v0')
    a('s_movk_i32 s41, 1280')
    a('v_mul_lo_u32 v0, v0, s41')
    a('v_lshrrev_b32 v14, 4, v2')
    a('v_lshl_add_u32 v0, v14, 3, v0')
    a(f's_lshr_b32 s57, s{SJ}, 2')
    a('s_mul_i32 s57, s57, 160')
    a('s_lshr_b32 s40, s12, 2')
    a('s_mul_i32 s40, s40, 96')
    a('s_add_u32 s57, s57, s40')
    a('s_waitcnt vmcnt(0)')
    for st in (1, 2):
        attn_dma(a, st, 8); vm.issue(('kv', st)); vm.issue(('kv', st))
    for x in wo_dma(): a(x)
    vm.issue('wo')
    if 'notlb' not in gen.EXP:
        a('v_lshlrev_b32 v149, 16, v2')
        a('s_lshl_b32 s40, s12, 22')
        a('buffer_load_dword v149, v149, s[8:11], s40 offen')
        a('v_lshlrev_b32 v148, 16, v2')
        a('buffer_load_dword v148, v148, s[76:79], 0 offen')
    a('v_cmp_gt_u32 vcc, 32, v2')
    for r in range(4): a(f'v_cndmask_b32 v{R.QC+r}, 0, v{R.QC+r}, vcc')
    a('s_waitcnt lgkmcnt(0)')
    a('s_barrier')
    a(f'ds_read_b128 {v(R.KA,4)}, v11 offset:0')
    a(f'ds_read_b64 {v(R.KC,2)}, v12 offset:0')
    a('s_waitcnt lgkmcnt(0)')
    a(f'v_mfma_f32_32x32x16_bf16 {v(R.S,16)}, {v(R.KA,4)}, {v(R.QA,4)}, 0')
    a(f'v_mfma_f32_32x32x8bf16_1k {v(R.S,16)}, {v(R.KC,2)}, {v(R.QC,2)}, {v(R.S,16)}')
    stamp(a, 7)
    wnext = [0]
    def w1load():
        s_ = wnext[0]; wnext[0] += 1
        return [f's_add_u32 s40, s{S_W1}, {s_*512}', f'buffer_load_dwordx4 {v(w1reg(s_),4)}, v{V_W1}, s[8:11], s40 offen']
    plan = {}
    waits = {}
    nW = {2: 3, 3: 3, 4: 3, 5: 3, 6: 4, 7: 4, 8: 3, 9: 3}
    if 'now1a' in gen.EXP: nW = {}
    def masked(sreg, cond_lo, cond_hi, vreg):
        return [f's_sub_u32 s40, s12, {cond_lo}', f's_cmp_lt_u32 s40, {cond_hi - cond_lo}', f's_cselect_b32 s40, {sreg}, s{S_OOB}',
                f'buffer_load_dword v149, v{vreg}, s[8:11], s40 offen']
    for g in range(16):
        ex = {}
        k = nW.get(g, 0)
        slots = sorted([(0, 20), (1, 8), (1, 20), (2, 20)][:k])
        if g <= 11:
            ex.setdefault(0, {})[8] = wo_dma(); vm.issue('wo')
        if g == 12:
            ex.setdefault(0, {})[8] = [f's_lshl_b32 s40, s{SG}, 7', f's_add_u32 s40, s40, {WS_XT}', 'v_lshlrev_b32 v150, 2, v3',
                                       'buffer_load_dword v150, v150, s[8:11], s40 offen sc1']
            vm.issue('xt')
        tl = None
        if g == 10: tl = masked('0', 4, 6, 148)
        if g == 11: tl = masked('0', 6, 8, 148)
        if g == 12: tl = masked('0', 0, 4, 148)
        if g == 13: tl = ['buffer_load_dword v149, v147, s[8:11], s51 offen']
        if tl and 'notouch' not in gen.EXP:
            ex.setdefault(1, {})[14] = tl; vm.issue('touch')
        post = []
        pre_ops = []
        for (u, pos) in slots:
            if u < 2: ex.setdefault(u, {})[pos] = w1load(); vm.issue('w1')
            else: post.append((u, pos))
        if g < 15: waits[g] = vm.count_after(lambda x: x == ('kv', g + 1))
        for (u, pos) in post:
            ex.setdefault(u, {})[pos] = w1load(); vm.issue('w1')
        if g <= 12:
            vm.issue(('kv', g + 3)); vm.issue(('kv', g + 3))
        if g == 13:
            ex.setdefault(3, {})[20] = [f'buffer_load_dwordx2 {v(XR0+2*i,2)}, v0, s[72:75], s57 offen offset:{32*i}' for i in range(3)]
            for i in range(3): vm.issue('xr')
        plan[g] = ex
    assert wnext[0] == 26 or 'now1a' in gen.EXP, wnext
    def run(stages_g):
        loc = {g % 4: g for g in stages_g}
        def prio(st, u):
            g = loc[st]
            if g == 15: return {0: 2, 1: 1, 2: 1, 3: 0}[u]
            if g == 14 and u >= 2: return 3
            return {2: 3, 3: 2, 0: 1, 1: 0}[u]
        return attn_units(a, 8, [(g % 4, g == 15) for g in stages_g], lambda st: loc[st] <= 12,
                          lambda st, u: plan[loc[st]].get(u, {}), lambda st: waits[loc[st]], prio)
    for b_ in range(3): run([4*b_ + i for i in range(4)])
    m1, m2, m3, m4, _ = run([12, 13, 14, 15])
    a(m3(1, 1, 1)); a(m4(1, 1, 1))
    a('s_setprio 0')
    stamp(a, 3)
    lp, ld = lab('xt'), lab('xt')
    a('s_mov_b32 s41, 0')
    a('v_cmp_eq_u32 vcc, 0, v150')
    a(f's_cbranch_vccz {ld}')
    a.label(lp)
    a(f's_lshl_b32 s40, s{SG}, 7')
    a(f's_add_u32 s40, s40, {WS_XT}')
    a('v_lshlrev_b32 v14, 2, v3')
    a('buffer_load_dword v150, v14, s[8:11], s40 offen sc1')
    a('s_add_u32 s41, s41, 1')
    a('s_waitcnt vmcnt(0)')
    a('v_cmp_eq_u32 vcc, 0, v150')
    a(f's_cbranch_vccz {ld}')
    a(f's_cmp_lt_u32 s41, {SPIN_MAX}')
    a(f's_cbranch_scc1 {lp}')
    a.label(ld)
    a(f'v_cmp_ne_u32 vcc, s{SPURE}, v150')
    a('s_cmp_eq_u64 vcc, 0')
    a(f's_cselect_b32 s{SPURE}, 1, 0')
    if 'slow' in gen.EXP: a(f's_mov_b32 s{SPURE}, 0')
    TT = R.S
    a.label('.Lat_combine')
    a('s_cmp_eq_u32 s46, 0')
    a('s_cbranch_scc1 .Lat_noswap')
    a('s_nop 7')
    for r in range(12): a(f'v_swap_b32 v{R.O+r}, v{R.O+16+r}')
    a.label('.Lat_noswap')
    a('s_nop 7')
    a(f's_mul_i32 s40, s12, 3072')
    a('v_add_u32 v14, s40, v10')
    for i in range(3): a(f'ds_write_b128 v14, {v(R.O+16+4*i,4)} offset:{1024*i}')
    a('s_xor_b32 s40, s12, 4')
    a('s_mul_i32 s40, s40, 3072')
    a('v_add_u32 v14, s40, v10')
    a('s_waitcnt lgkmcnt(0)')
    a('s_barrier')
    for i in range(3): a(f'ds_read_b128 {v(TT+4*i,4)}, v14 offset:{1024*i}')
    a('s_waitcnt lgkmcnt(0)')
    for r in range(12): a(f'v_add_f32 v{R.O+r}, v{R.O+r}, v{TT+r}')
    a(f'v_mov_b32 v{TT}, v{R.O+8}')
    a(f'v_mov_b32 v{TT+1}, v{R.O+8}')
    a(f'v_permlane32_swap_b32 v{TT}, v{TT+1}')
    a(f'v_mov_b32 v{TT+2}, 0')
    for r in range(12): a(f'v_fmac_f32 v{TT+2}, 0, v{R.O+r}')
    a('s_mov_b32 s40, 0x1f800000')
    a(f'v_cmp_nle_f32 vcc, s40, v{TT+1}')
    a('s_mov_b32 s40, 0x5f800000')
    a(f'v_cmp_nge_f32 s[44:45], s40, v{TT+1}')
    a('s_or_b64 s[44:45], s[44:45], vcc')
    a(f'v_cmp_u_f32 vcc, v{TT+2}, v{TT+2}')
    a('s_or_b64 s[44:45], s[44:45], vcc')
    if 'forcefb' in gen.EXP: a('s_mov_b64 s[44:45], -1')
    lok = lab('ok')
    a('s_cmp_eq_u64 s[44:45], 0')
    a(f's_cbranch_scc1 {lok}')
    a(f'v_mov_b32 v{TT+2}, {FB_LDS}')
    a(f'v_mov_b32 v{TT+3}, 1')
    a(f'ds_write_b32 v{TT+2}, v{TT+3}')
    a.label(lok)
    a(f'v_rcp_f32 v{TT+1}, v{TT+1}')
    for r in range(12): a(f'v_mul_f32 v{R.O+r}, v{R.O+r}, v{TT+1}')
    for i in range(6): a(f'v_cvt_pk_bf16_f32 v{TT+4+i}, v{R.O+2*i}, v{R.O+2*i+1}')
    a('s_mul_i32 s61, s46, 40960')
    a('s_add_u32 s61, s61, s47')
    a(f's_add_u32 s61, s61, {WS_O}')
    a('s_lshl_b32 s62, s42, 8')
    a('s_add_u32 s62, s62, s61')
    a('s_lshl_b32 s63, s43, 8')
    a('s_add_u32 s63, s63, s61')
    a(f's_and_b32 s61, s{SH}, 1')
    a('s_lshl_b32 s61, s61, 3')
    a('s_add_u32 s63, s63, s61')
    stores2(a, [f'buffer_store_dwordx4 {v(TT+4,4)}, v7, s[8:11], s62 offen',
                's_mov_b64 exec, 0xffffffff',
                f'buffer_store_dwordx2 {v(TT+8,2)}, v5, s[8:11], s63 offen',
                's_mov_b64 exec, -1'])
    stamp(a, 4)
    a('s_waitcnt vmcnt(0) lgkmcnt(0)')
    a('s_barrier')
    a(f'v_mov_b32 v14, {FB_LDS}')
    a('ds_read_b32 v15, v14')
    a('s_waitcnt lgkmcnt(0)')
    a('v_readfirstlane_b32 s40, v15')
    a(f's_sub_u32 s40, s40, s{S_DONE}')
    a('s_cmp_eq_u32 s40, 1')
    a('s_cbranch_scc1 .Lat_fallback')
    a.label('.Lat_done')

def attn_fallback(a):
    R = AR
    SL = 2 * AT_SLOT
    S_, M0_, M1_ = R.S, R.S + 16, R.S + 17
    a.label('.Lat_fallback')
    a(f's_mov_b32 s{S_DONE}, 1')
    def load_stage():
        a('s_barrier')
        for x in attn_dma_parts(2, 8)[0] + attn_dma_parts(2, 8)[1]: a(x)
        a('s_waitcnt vmcnt(0)')
        a('s_barrier')
    def rewind():
        a(f's_sub_u32 s52, s52, {16*5120}')
        a(f's_sub_u32 s53, s53, {16*163840}')
    def scores(t, j):
        a(f'v_mfma_f32_32x32x16_bf16 {v(S_,16)}, {v(R.KA,4)}, {v(R.QA+4*j,4)}, 0')
        a(f'v_mfma_f32_32x32x8bf16_1k {v(S_,16)}, {v(R.KC,2)}, {v(R.QC+2*j,2)}, {v(S_,16)}')
    def kread(t):
        a(f'ds_read_b128 {v(R.KA,4)}, v11 offset:{SL + t*1024}')
        a(f'ds_read_b64 {v(R.KC,2)}, v12 offset:{SL + t*512}')
    rewind()
    a(f'v_mov_b32 v{M0_}, 0xff7fffff'); a(f'v_mov_b32 v{M1_}, 0xff7fffff')
    a('s_mov_b32 s60, 16')
    a.label('.Lat_fb1')
    load_stage()
    for t in range(2):
        kread(t)
        a('s_waitcnt lgkmcnt(0)')
        for j in range(2):
            scores(t, j)
            m = M0_ + j
            for r in range(0, 16, 2): a(f'v_max3_f32 v{m}, v{S_+r}, v{S_+r+1}, v{m}')
    a('s_sub_u32 s60, s60, 1')
    a('s_cmp_lg_u32 s60, 0')
    a('s_cbranch_scc1 .Lat_fb1')
    for j in range(2):
        m = M0_ + j
        a(f'v_mov_b32 v{S_}, v{m}'); a(f'v_mov_b32 v{S_+1}, v{m}')
        a(f'v_permlane32_swap_b32 v{S_}, v{S_+1}')
        a(f'v_max_f32 v{m}, v{S_}, v{S_+1}')
    a('s_barrier')
    a('s_lshl_b32 s40, s12, 9')
    a('v_lshlrev_b32 v14, 3, v2')
    a('v_add_u32 v14, s40, v14')
    a(f'ds_write_b64 v14, {v(M0_,2)}')
    a('s_xor_b32 s40, s12, 4')
    a('s_lshl_b32 s40, s40, 9')
    a('v_lshlrev_b32 v14, 3, v2')
    a('v_add_u32 v14, s40, v14')
    a('s_waitcnt lgkmcnt(0)')
    a('s_barrier')
    a(f'ds_read_b64 {v(S_,2)}, v14')
    a('s_waitcnt lgkmcnt(0)')
    a(f'v_max_f32 v{M0_}, v{M0_}, v{S_}')
    a(f'v_max_f32 v{M1_}, v{M1_}, v{S_+1}')
    rewind()
    for r in range(32): a(f'v_mov_b32 v{R.O+r}, 0')
    a('s_mov_b32 s60, 16')
    a.label('.Lat_fb2')
    load_stage()
    for t in range(2):
        kread(t)
        a(f'ds_read_b128 {v(R.VV,4)}, v13 offset:{SL + t*2048}')
        a(f'ds_read_b128 {v(R.VV+4,4)}, v13 offset:{SL + t*2048 + 1024}')
        a('s_waitcnt lgkmcnt(0)')
        for j in range(2):
            scores(t, j)
            for r in range(16): a(f'v_sub_f32 v{S_+r}, v{S_+r}, v{M0_+j}')
            for r in range(16): a(f'v_exp_f32 v{S_+r}, v{S_+r}')
            for i in range(8): a(f'v_cvt_pk_bf16_f32 v{R.P+i}, v{S_+2*i}, v{S_+2*i+1}')
            a(f'v_mfma_f32_32x32x16_bf16 {v(R.O+16*j,16)}, {v(R.VV,4)}, {v(R.P,4)}, {v(R.O+16*j,16)}')
            a(f'v_mfma_f32_32x32x16_bf16 {v(R.O+16*j,16)}, {v(R.VV+4,4)}, {v(R.P+4,4)}, {v(R.O+16*j,16)}')
    a('s_sub_u32 s60, s60, 1')
    a('s_cmp_lg_u32 s60, 0')
    a('s_cbranch_scc1 .Lat_fb2')
    a('s_nop 15')
    a('s_barrier')
    a('s_branch .Lat_combine')

def phase_oproj(a):
    BF, AF, ACC, XR, T = 16, 56, 96, XR0, 116
    a(f's_and_b32 s20, s{SJ}, 3')
    a(f's_lshr_b32 s21, s{SJ}, 2')
    a('s_and_b32 s22, s12, 3')
    a('s_lshr_b32 s23, s12, 2')
    a(f's_lshl_b32 s29, s{SG}, 4')
    a('s_lshl_b32 s30, s20, 2')
    a('s_add_u32 s29, s29, s30')
    a('s_add_u32 s29, s29, s22')
    a('v_and_b32 v5, 15, v2')
    a('v_lshrrev_b32 v6, 4, v2')
    a('s_mul_i32 s30, s29, 20480')
    a('s_mul_i32 s31, s23, 10240')
    a('s_add_u32 s30, s30, s31')
    a(f's_add_u32 s30, s30, {WS_O}')
    a('s_mul_i32 s33, s23, 10240')
    a(f's_add_u32 s33, s33, {LDS_WO}')
    a('v_add_u32 v8, s33, v10')
    a(f'v_add_u32 v9, {3*20480}, v8')
    def pre(): pass
    def mask():
        a('s_mov_b32 s44, -1'); a('s_mov_b32 s45, 0')
    sync(a, 0, 0, mask, pre, drained=True)
    stamp(a, 8)
    for i in range(10):
        if i % 4 == 0: a(f's_add_u32 s31, s30, {i*1024}')
        a(f'buffer_load_dwordx4 {v(BF+4*i,4)}, v10, s[8:11], s31 offen offset:{(i%4)*1024} sc1')
    def areads(i, buf):
        for ft in range(5):
            off = ft * 20480 + i * 1024
            base = 8
            if ft >= 3: off -= 3 * 20480; base = 9
            a(f'ds_read_b128 {v(AF+20*buf+4*ft,4)}, v{base} offset:{off}')
    areads(0, 0)
    for i in range(10):
        if i < 9:
            areads(i + 1, (i + 1) & 1)
            a(f's_waitcnt vmcnt({9-i}) lgkmcnt(5)')
        else:
            a('s_waitcnt vmcnt(0) lgkmcnt(0)')
        for ft in range(5):
            acc = v(ACC + 4 * ft, 4)
            a(f'v_mfma_f32_16x16x32_bf16 {acc}, {v(AF+20*(i&1)+4*ft,4)}, {v(BF+4*i,4)}, {"0" if i == 0 else acc}')
    stamp(a, 9)
    a('s_mul_i32 s40, s12, 3072')
    a('s_add_u32 s40, s40, 32768')
    a('v_add_u32 v14, s40, v10')
    l1, l2 = lab('ox'), lab('ox')
    a('s_nop 7')
    a('s_cmp_eq_u32 s23, 0')
    a(f's_cbranch_scc0 {l1}')
    for i, ft in enumerate((3, 4)): a(f'ds_write_b128 v14, {v(ACC+4*ft,4)} offset:{1024*i}')
    a(f's_branch {l2}')
    a.label(l1)
    for ft in range(3): a(f'ds_write_b128 v14, {v(ACC+4*ft,4)} offset:{1024*ft}')
    a('s_waitcnt lgkmcnt(0)')
    for r in range(8): a(f'v_mov_b32 v{ACC+r}, v{ACC+12+r}')
    for r in range(8, 12): a(f'v_mov_b32 v{ACC+r}, 0')
    a.label(l2)
    a('s_xor_b32 s40, s12, 4')
    a('s_mul_i32 s40, s40, 3072')
    a('s_add_u32 s40, s40, 32768')
    a('v_add_u32 v14, s40, v10')
    a('s_waitcnt lgkmcnt(0)')
    a('s_barrier')
    for i in range(3): a(f'ds_read_b128 {v(T+4*i,4)}, v14 offset:{1024*i}')
    a('s_waitcnt lgkmcnt(0)')
    for r in range(12): a(f'v_add_f32 v{ACC+r}, v{ACC+r}, v{T+r}')
    for i in range(3):
        for h2 in range(2):
            a(f'v_lshlrev_b32 v{T}, 16, v{XR+2*i+h2}')
            a(f'v_and_b32 v{T+1}, 0xffff0000, v{XR+2*i+h2}')
            a(f'v_add_f32 v{ACC+4*i+2*h2}, v{ACC+4*i+2*h2}, v{T}')
            a(f'v_add_f32 v{ACC+4*i+2*h2+1}, v{ACC+4*i+2*h2+1}, v{T+1}')
    l3 = lab('ox')
    a('s_cmp_eq_u32 s23, 0')
    a(f's_cbranch_scc1 {l3}')
    for r in range(8, 12): a(f'v_mov_b32 v{ACC+r}, 0')
    a.label(l3)
    a(f'v_mov_b32 v{T}, v{ACC}')
    a(f'v_mul_f32 v{T+1}, v{ACC}, v{ACC}')
    for r in range(1, 12):
        a(f'v_add_f32 v{T}, v{T}, v{ACC+r}')
        a(f'v_fmac_f32 v{T+1}, v{ACC+r}, v{ACC+r}')
    sum_q4(a, T, T+2, T+3)
    sum_q4(a, T+1, T+2, T+3)
    for i in range(6): a(f'v_cvt_pk_bf16_f32 v{T+4+i}, v{ACC+2*i}, v{ACC+2*i+1}')
    a('s_mul_i32 s34, s29, 20480')
    a('s_mul_i32 s35, s21, 2560')
    a('s_add_u32 s34, s34, s35')
    a('s_mul_i32 s35, s23, 1536')
    a('s_add_u32 s34, s34, s35')
    a(f's_add_u32 s34, s34, {WS_H}')
    a('v_lshrrev_b32 v11, 1, v6')
    a('v_lshlrev_b32 v11, 8, v11')
    a('v_lshl_add_u32 v11, v5, 4, v11')
    a('v_and_b32 v12, 1, v6')
    a('v_lshl_add_u32 v11, v12, 3, v11')
    a('s_lshl_b32 s33, s29, 7')
    a('s_lshl_b32 s35, s21, 1')
    a('s_add_u32 s35, s35, s23')
    a('s_lshl_b32 s35, s35, 14')
    a('s_add_u32 s33, s33, s35')
    a(f's_add_u32 s33, s33, {WS_ST2}')
    a('v_lshlrev_b32 v12, 3, v5')
    a('s_cmp_eq_u32 s23, 0')
    a(f's_cselect_b32 s35, s34, {0x7ffff000}')
    stores2(a, [f'buffer_store_dwordx2 {v(T+4,2)}, v11, s[8:11], s34 offen',
                f'buffer_store_dwordx2 {v(T+6,2)}, v11, s[8:11], s34 offen offset:512',
                f'buffer_store_dwordx2 {v(T+8,2)}, v11, s[8:11], s35 offen offset:1024',
                's_mov_b64 exec, 0xffff',
                f'buffer_store_dwordx2 {v(T,2)}, v12, s[8:11], s33 offen',
                's_mov_b64 exec, -1'])

F2_SLOT = {0: 81920, 1: 122880, 2: 0, 3: 40960, 4: 81920, 5: 122880, 6: 0}
def w2_setup(a):
    a(f's_lshr_b32 s21, s{SJ}, 2')
    a('s_lshr_b32 s22, s12, 2')
    a('s_mul_i32 s22, s22, 27')
    a('s_and_b32 s23, s12, 3')
    a('s_add_u32 s22, s22, s23')
    a('s_lshl_b32 s22, s22, 10')
    a('s_mul_i32 s47, s21, 276480')
    a(f's_add_u32 s47, s47, {WS_W2}')
    a('s_add_u32 s47, s47, s22')
    a('s_mul_i32 s48, s12, 5120')
def w2_dma(st, ft):
    return [f's_add_u32 m0, s48, {F2_SLOT[st] + ft*1024}', f's_add_u32 s49, s47, {st*4096 + ft*55296}',
            'buffer_load_dwordx4 v10, s[8:11], s49 offen lds']

def far_touch(a, vt, vd):
    a(f'v_lshlrev_b32 v{vt}, 7, v2')
    a(f's_mul_i32 s56, s{SJ}, 69120')
    a('s_lshl_b32 s57, s12, 13')
    a('s_add_u32 s56, s56, s57')
    a(f's_add_u32 s56, s56, {WS_W2}')
    a(f'buffer_load_dword v{vd}, v{vt}, s[8:11], s56 offen')
    a(f's_mul_i32 s56, s{SG}, {16*55296}')
    a(f's_mul_i32 s57, s{SJ}, 27648')
    a('s_add_u32 s56, s56, s57')
    a('s_lshl_b32 s57, s12, 13')
    a('s_add_u32 s56, s56, s57')
    a(f's_add_u32 s56, s56, {WS_G}')
    a(f's_mul_i32 s57, s{SJ}, 69120')
    a(f's_add_u32 s57, s57, {WS_W2 + 65536}')
    a('s_cmp_eq_u32 s12, 4')
    a('s_cselect_b32 s56, s57, s56')
    a('s_cmp_gt_u32 s12, 4')
    a('s_cselect_b32 s56, 0x7ff00000, s56')
    a(f'buffer_load_dword v{vd}, v{vt}, s[8:11], s56 offen')

def phase_ffn1(a, vm_pre):
    ACC, FB = 72, 104
    CS, B1, ST = 192, 168, 128
    SEL, CSA, B1R = 120, 124, 184
    NS = 5
    a(f's_load_dwordx2 s[50:51], s[0:1], {A_B1}')
    a(f'v_mov_b32 v{SEL}, 0')
    a('s_mov_b32 s52, 0x00020001')
    a('s_mov_b32 s53, 0x00020001')
    a('v_mov_b32 v15, 0x3f803f80')
    a(f'v_cndmask_b32 v{SEL}, v{SEL}, v15, s[52:53]')
    for r in range(1, 4): a(f'v_mov_b32 v{SEL+r}, v{SEL}')
    for r in range(4): a(f'v_mov_b32 v{CSA+r}, 0')
    a('s_waitcnt lgkmcnt(0)')
    srd(a, 52, 50, F * 2)
    w2_setup(a)
    a(f's_and_b32 s13, s{SJ}, 1')
    a(f's_lshl_b32 s15, s{SG}, 1')
    a('s_add_u32 s13, s13, s15')
    a(f's_lshr_b32 s14, s{SJ}, 1')
    a('s_and_b32 s23, s12, 3')
    a('s_lshr_b32 s26, s12, 2')
    a('v_lshrrev_b32 v7, 4, v3')
    a('s_movk_i32 s17, 20480')
    a('v_mul_lo_u32 v7, v7, s17')
    a('v_and_b32 v6, 15, v3')
    a('v_lshl_add_u32 v7, v6, 4, v7')
    a('v_lshl_add_u32 v7, v4, 8, v7')
    a('s_lshl_b32 s20, s13, 3')
    a('s_lshl_b32 s19, s23, 1')
    a('s_add_u32 s20, s20, s19')
    a('s_mul_i32 s20, s20, 20480')
    a('s_lshl_b32 s19, s26, 10')
    a('s_add_u32 s20, s20, s19')
    a(f's_add_u32 s20, s20, {WS_H}')
    a('s_lshl_b32 s22, s23, 10')
    a('s_lshl_b32 s19, s26, 13')
    a('s_add_u32 s22, s22, s19')
    a('s_lshl_b32 s17, s26, 11')
    a('v_add_u32 v12, s17, v10')
    a('v_add_u32 v13, 0x10000, v12')
    vm = VM()
    def pre(): pass
    def mask():
        a(f's_and_b32 s40, s{SJ}, 1')
        a('s_cmp_eq_u32 s40, 0')
        a('s_mov_b32 s44, 0xcccccccc')
        a('s_cselect_b32 s44, 0x33333333, s44')
        a('s_mov_b32 s45, 0')
    sync(a, 1, 1, mask, pre)
    stamp(a, 10)
    nst = 10
    pend = [(st, i) for st in range(nst) for i in range(2)]
    def dma_one():
        st, i = pend.pop(0)
        a(f's_add_u32 m0, s22, {(st % NS)*16384 + i*4096}')
        a(f's_add_u32 s21, s20, {st*2048 + i*512}')
        a('buffer_load_dwordx4 v7, s[8:11], s21 offen sc1 lds')
        vm.issue(('h', st))
    for _ in range(2 * 3): dma_one()
    a('s_lshl_b32 s27, s13, 7')
    a('s_lshl_b32 s28, s26, 6')
    a('s_add_u32 s27, s27, s28')
    a('s_lshl_b32 s28, s13, 7')
    a('s_lshl_b32 s29, s23, 5')
    a('s_add_u32 s28, s28, s29')
    a('s_lshl_b32 s28, s28, 3')
    a(f's_add_u32 s28, s28, {WS_ST2}')
    a('v_lshlrev_b32 v14, 3, v3')
    a('v_lshl_add_u32 v14, v4, 17, v14')
    def st_load(q):
        a(f's_add_u32 s29, s28, {q*16384}')
        a(f'buffer_load_dwordx2 {v(ST+2*q,2)}, v14, s[8:11], s29 offen sc1')
        vm.issue('st')
    w1q = list(range(26, 40))
    def w1_load():
        s_ = w1q.pop(0)
        a(f's_add_u32 s40, s{S_W1}, {s_*512}')
        a(f'buffer_load_dwordx4 {v(w1reg(s_),4)}, v{V_W1}, s[8:11], s40 offen')
        vm.issue(('w1', s_))
    def reads(st, ks, buf):
        off = (st % NS) * 16384 + ks * 4096
        base = 12
        if off + 1024 >= 65536: off -= 65536; base = 13
        a(f'ds_read_b128 {v(FB+8*buf,4)}, v{base} offset:{off}')
        a(f'ds_read_b128 {v(FB+8*buf+4,4)}, v{base} offset:{off+1024}')
    def mfmas(s_, buf):
        for j in range(2):
            c = '0' if s_ == 0 else v(ACC+16*j, 16)
            a(f'v_mfma_f32_32x32x16_bf16 {v(ACC+16*j,16)}, {v(w1reg(s_),4)}, {v(FB+8*buf+4*j,4)}, {c}')
    F1S = 'f1stamp' in gen.EXP
    w2q = [(st, ft) for st in (0, 1) for ft in range(5)]
    if F1S: stamp(a, 2)
    vm.wait(a, lambda x: x == ('h', 0))
    a('s_barrier')
    if F1S: stamp(a, 3)
    reads(0, 0, 0)
    buf = 0
    for st in range(nst):
        for ks in range(4):
            s_ = 4 * st + ks
            if ks < 3:
                reads(st, ks + 1, buf ^ 1)
                if s_ >= 26: vm.wait(a, lambda x: x == ('w1', s_), ' lgkmcnt(2)')
                else: a('s_waitcnt lgkmcnt(2)')
                mfmas(s_, buf)
            else:
                if st + 1 < nst:
                    a('s_waitcnt lgkmcnt(0)')
                    if F1S and st in (0, 2, 4, 6): stamp(a, {0: 4, 2: 7, 4: 9, 6: 13}[st])
                    vm.wait(a, lambda x: x == ('h', st + 1))
                    a('s_barrier')
                    if F1S and st in (0, 2, 4, 6): stamp(a, {0: 5, 2: 8, 4: 12, 6: 14}[st])
                    reads(st + 1, 0, buf ^ 1)
                else:
                    a('s_waitcnt lgkmcnt(0)')
                if s_ >= 26: vm.wait(a, lambda x: x == ('w1', s_))
                mfmas(s_, buf)
            lim = st + NS - 1 + (1 if ks == 3 else 0)
            if pend and pend[0][0] <= lim and (ks in (1, 3) or st == 0): dma_one()
            if ks in (0, 2) and w1q and st <= 6: w1_load()
            if st == 7 and ks < 4:
                st_load(2 * ks); st_load(2 * ks + 1)
            if st >= 8 and not (st == 8 and ks == 0):
                for _ in range(2 if (st == 9 or ks >= 2) else 1):
                    if w2q:
                        for x in w2_dma(*w2q.pop(0)): a(x)
                        vm.issue('w2')
            lc = lab('cs')
            a(f's_cmp_eq_u32 s26, {s_ & 1}')
            a(f's_cbranch_scc0 {lc}')
            a(f'v_mfma_f32_16x16x32_bf16 {v(CSA,4)}, {v(w1reg(s_),4)}, {v(SEL,4)}, {v(CSA,4)}')
            a.label(lc)
            if st == 8 and ks == 0:
                a('s_lshl_b32 s29, s14, 7')
                a('s_lshl_b32 s30, s23, 5')
                a('s_add_u32 s29, s29, s30')
                a('s_lshl_b32 s29, s29, 1')
                a('v_lshlrev_b32 v15, 4, v4')
                a(f'buffer_load_dwordx4 {v(B1R,4)}, v15, s[52:55], s29 offen'); vm.issue('cs')
                a(f'buffer_load_dwordx4 {v(B1R+4,4)}, v15, s[52:55], s29 offen offset:32'); vm.issue('cs')
            buf ^= 1
    assert not w2q, w2q
    stamp(a, 11)
    LST = 0
    l2 = lab('st')
    vm.wait(a, lambda x: x == 'cs')
    a('s_cmp_ge_u32 s12, 4')
    a(f's_cbranch_scc1 {l2}')
    b = ST
    for q in range(1, 8):
        a(f'v_add_f32 v{b}, v{b}, v{b+2*q}')
        a(f'v_add_f32 v{b+1}, v{b+1}, v{b+2*q+1}')
    for r in range(2):
        a(f'v_mov_b32 v{b+2}, v{b+r}'); a(f'v_mov_b32 v{b+3}, v{b+r}')
        a(f'v_permlane32_swap_b32 v{b+2}, v{b+3}')
        a(f'v_add_f32 v{b+r}, v{b+2}, v{b+3}')
    a(f'v_mul_f32 v{b}, {f2hex(1.0/640)}, v{b}')
    a(f'v_mul_f32 v{b+1}, {f2hex(1.0/640)}, v{b+1}')
    a(f'v_fma_f32 v{b+1}, -v{b}, v{b}, v{b+1}')
    a(f'v_add_f32 v{b+1}, 0x3727c5ac, v{b+1}')
    a(f'v_rsq_f32 v{b+1}, v{b+1}')
    a(f'v_mul_f32 v{b}, v{b}, v{b+1}')
    a('s_lshl_b32 s28, s12, 8')
    a('v_lshlrev_b32 v14, 3, v3')
    a('v_add_u32 v14, s28, v14')
    a(f'ds_write_b64 v14, {v(b,2)} offset:{LST}')
    a.label(l2)
    a('s_lshl_b32 s28, s23, 8')
    a('s_lshl_b32 s29, s26, 7')
    a('s_add_u32 s28, s28, s29')
    a('v_and_b32 v14, 1, v2')
    a('v_lshlrev_b32 v14, 6, v14')
    a('v_lshrrev_b32 v15, 4, v2')
    a('v_lshl_add_u32 v14, v15, 4, v14')
    a('v_add_u32 v14, s28, v14')
    a('s_mov_b32 s44, 0x00030003')
    a('s_mov_b32 s45, 0x00030003')
    a('s_mov_b64 exec, s[44:45]')
    a(f'ds_write_b128 v14, {v(CSA,4)} offset:{LST+1024}')
    a('s_mov_b64 exec, -1')
    a('s_waitcnt lgkmcnt(0)')
    a('s_barrier')
    a('s_lshl_b32 s28, s26, 9')
    a('v_lshlrev_b32 v14, 3, v3')
    a('v_add_u32 v14, s28, v14')
    a(f'ds_read_b64 {v(ST,2)}, v14 offset:{LST}')
    a(f'ds_read_b64 {v(ST+4,2)}, v14 offset:{LST+256}')
    a('s_lshl_b32 s28, s23, 8')
    a('v_lshlrev_b32 v14, 4, v4')
    a('v_add_u32 v14, s28, v14')
    for th_ in range(2):
        for g in range(4):
            a(f'ds_read_b128 {v(CS+32*th_+4*g,4)}, v14 offset:{LST + 1024 + th_*128 + g*32}')
    for q in range(8):
        a(f'v_lshlrev_b32 v{B1+2*q}, 16, v{B1R+q}')
        a(f'v_and_b32 v{B1+2*q+1}, 0xffff0000, v{B1R+q}')
    a('s_waitcnt lgkmcnt(0)')
    for r in range(16): a(f'v_add_f32 v{CS+r}, v{CS+r}, v{CS+32+r}')
    for j in range(2):
        b = ST + 4 * j
        for r in range(16):
            a(f'v_fma_f32 v{b+2}, -v{b}, v{CS+r}, v{B1+r}')
            a(f'v_fma_f32 v{ACC+16*j+r}, v{b+1}, v{ACC+16*j+r}, v{b+2}')
            a(f'v_max_f32 v{ACC+16*j+r}, 0, v{ACC+16*j+r}')
            a(f'v_mul_f32 v{ACC+16*j+r}, v{ACC+16*j+r}, v{ACC+16*j+r}')
    PK = 104
    for r in range(16):
        a(f'v_cvt_pk_bf16_f32 v{PK+r}, v{ACC+2*r}, v{ACC+2*r+1}')
    a('v_lshrrev_b32 v13, 4, v3')
    a('s_mov_b32 s18, 55296')
    a('v_mul_lo_u32 v13, v13, s18')
    a('v_and_b32 v14, 15, v3')
    a('v_lshl_add_u32 v13, v14, 4, v13')
    a('v_lshl_add_u32 v13, v4, 8, v13')
    a('s_lshr_b32 s18, s27, 4')
    a('s_mul_i32 s18, s18, 55296')
    a('s_lshl_b32 s17, s14, 2')
    a('s_add_u32 s17, s17, s23')
    a('s_cmp_ge_u32 s17, 54')
    a('s_cselect_b32 s19, 0x40000000, 0')
    a('s_lshl_b32 s17, s17, 10')
    a('s_add_u32 s17, s17, s18')
    a(f's_add_u32 s17, s17, {WS_G}')
    a('s_add_u32 s17, s17, s19')
    a(f's_add_u32 s18, s17, {2*55296}')
    stores2(a, [f'buffer_store_dwordx4 {v(PK,4)}, v13, s[8:11], s17 offen',
                f'buffer_store_dwordx4 {v(PK+4,4)}, v13, s[8:11], s17 offen offset:512',
                f'buffer_store_dwordx4 {v(PK+8,4)}, v13, s[8:11], s18 offen',
                f'buffer_store_dwordx4 {v(PK+12,4)}, v13, s[8:11], s18 offen offset:512'])

def phase_ffn2(a, L, published):
    NST = 7
    vm = VM()
    BF, ACC, AF, T = 16, 128, 168, 16
    def pre():
        for st in (2, 3):
            for ft in range(5):
                for x in w2_dma(st, ft): a(x)
    def mask():
        a(f's_and_b32 s40, s{SJ}, 2')
        a('s_cmp_eq_u32 s40, 0')
        a('s_mov_b32 s44, 0x0aaaaaaa')
        a('s_cselect_b32 s44, 0x05555555, s44')
        a('s_mov_b32 s45, 0')
    sync(a, 2 if published else None, 2, mask, pre)
    return vm

def ffn2_body(a, L):
    NST = 7
    vm = VM()
    for st in (0, 1, 2, 3):
        for ft in range(5): vm.issue(('w', st))
    BF, ACC, AF, T, HR, BB = 16, 124, 144, 184, 200, 208
    if 'f1stamp' not in gen.EXP: stamp(a, 12)
    a(f's_and_b32 s20, s{SJ}, 3')
    a(f's_lshr_b32 s21, s{SJ}, 2')
    a('s_and_b32 s22, s12, 3')
    a('s_lshr_b32 s23, s12, 2')
    a(f's_lshl_b32 s29, s{SG}, 4')
    a('s_lshl_b32 s30, s20, 2')
    a('s_add_u32 s29, s29, s30')
    a('s_add_u32 s29, s29, s22')
    a('s_mul_i32 s32, s29, 55296')
    a('s_mul_i32 s33, s23, 27648')
    a('s_add_u32 s32, s32, s33')
    a(f's_add_u32 s32, s32, {WS_G}')
    def bload(i):
        a(f's_add_u32 s33, s32, {i*1024}')
        a(f'buffer_load_dwordx4 {v(BF+4*i,4)}, v10, s[8:11], s33 offen sc1')
        vm.issue(('b', i))
    for i in range(6): bload(i)
    bq = list(range(6, 27))
    wq = [(st, ft) for st in range(4, 7) for ft in range(5)]
    a(f's_load_dwordx2 s[50:51], s[0:1], {A_B2}')
    a('s_mul_i32 s34, s23, 20480')
    a('v_add_u32 v8, s34, v10')
    a('v_add_u32 v9, 0x10000, v8')
    a('v_add_u32 v11, 0x20000, v8')
    a('s_waitcnt lgkmcnt(0)')
    srd(a, 52, 50, D * 2)
    def areads(ks, buf):
        st, i = ks >> 2, ks & 3
        for ft in range(5):
            off = F2_SLOT[st] + i * 5120 + ft * 1024
            base = {0: 8, 1: 9, 2: 11}[off >> 16]
            a(f'ds_read_b128 {v(AF+20*buf+4*ft,4)}, v{base} offset:{off & 65535}')
    F2S = 'f2stamp' in gen.EXP
    if F2S: stamp(a, 2)
    vm.wait(a, lambda x: x == ('w', 0))
    a('s_barrier')
    if F2S: stamp(a, 3)
    areads(0, 0)
    for ks in range(27):
        if F2S and ks in (1, 4, 8, 12, 16, 20, 24): stamp(a, {1: 4, 4: 5, 8: 7, 12: 8, 16: 9, 20: 10, 24: 11}[ks])
        st, i = ks >> 2, ks & 3
        buf = ks & 1
        nxt = ks + 1
        if nxt < 27:
            if (nxt & 3) == 0:
                a('s_waitcnt lgkmcnt(0)')
                vm.wait(a, lambda x: x == ('w', nxt >> 2))
                a('s_barrier')
                areads(nxt, buf ^ 1)
                vm.wait(a, lambda x: x == ('b', ks))
            else:
                areads(nxt, buf ^ 1)
                vm.wait(a, lambda x: x == ('b', ks), ' lgkmcnt(5)')
        else:
            vm.wait(a, lambda x: x == ('b', ks), ' lgkmcnt(0)')
        for ft in range(5):
            acc = v(ACC + 4 * ft, 4)
            a(f'v_mfma_f32_16x16x32_bf16 {acc}, {v(AF+20*buf+4*ft,4)}, {v(BF+4*ks,4)}, {"0" if ks == 0 else acc}')
            if ft in (1, 3) and bq and bq[0] <= ks + 12: bload(bq.pop(0))
            if ft in (0, 2, 4) and wq and (wq[0][0] - 4) < st + (1 if (nxt & 3) == 0 and nxt < 27 else 0):
                x_ = wq.pop(0)
                for x in w2_dma(*x_): a(x)
                vm.issue(('w', x_[0]))
        if ks == 20:
            a('v_and_b32 v5, 15, v2')
            a('v_lshrrev_b32 v6, 4, v2')
            a('s_mul_i32 s34, s29, 20480')
            a('s_mul_i32 s35, s21, 2560')
            a('s_add_u32 s34, s34, s35')
            a('s_mul_i32 s35, s23, 1536')
            a('s_add_u32 s34, s34, s35')
            a(f's_add_u32 s34, s34, {WS_H}')
            a('v_lshrrev_b32 v12, 1, v6')
            a('v_lshlrev_b32 v12, 8, v12')
            a('v_lshl_add_u32 v12, v5, 4, v12')
            a('v_and_b32 v13, 1, v6')
            a('v_lshl_add_u32 v12, v13, 3, v12')
            for i_ in range(3):
                a(f'buffer_load_dwordx2 {v(HR+2*i_,2)}, v12, s[8:11], s34 offen offset:{512*i_} sc1'); vm.issue('hr')
            a('s_mul_i32 s35, s21, 160')
            a('s_mul_i32 s36, s23, 96')
            a('s_add_u32 s35, s35, s36')
            a('v_lshlrev_b32 v13, 3, v6')
            for i_ in range(3):
                a(f'buffer_load_dwordx2 {v(BB+2*i_,2)}, v13, s[52:55], s35 offen offset:{32*i_}'); vm.issue('hr')
    assert not bq and not wq, (bq, wq)
    if 'f1stamp' not in gen.EXP: stamp(a, 13)
    XB = 81920
    a('s_mul_i32 s40, s12, 3072')
    a(f's_add_u32 s40, s40, {XB}')
    a('v_add_u32 v14, s40, v10')
    l1, l2 = lab('fx'), lab('fx')
    a('s_nop 7')
    a('s_cmp_eq_u32 s23, 0')
    a(f's_cbranch_scc0 {l1}')
    for i_, ft in enumerate((3, 4)): a(f'ds_write_b128 v14, {v(ACC+4*ft,4)} offset:{1024*i_}')
    a(f's_branch {l2}')
    a.label(l1)
    for ft in range(3): a(f'ds_write_b128 v14, {v(ACC+4*ft,4)} offset:{1024*ft}')
    a('s_waitcnt lgkmcnt(0)')
    for r in range(8): a(f'v_mov_b32 v{ACC+r}, v{ACC+12+r}')
    a.label(l2)
    a('s_xor_b32 s40, s12, 4')
    a('s_mul_i32 s40, s40, 3072')
    a(f's_add_u32 s40, s40, {XB}')
    a('v_add_u32 v14, s40, v10')
    a('s_waitcnt lgkmcnt(0)')
    a('s_barrier')
    for i_ in range(3): a(f'ds_read_b128 {v(T+4*i_,4)}, v14 offset:{1024*i_}')
    a('s_waitcnt vmcnt(0) lgkmcnt(0)')
    for r in range(12): a(f'v_add_f32 v{ACC+r}, v{ACC+r}, v{T+r}')
    for i_ in range(3):
        for h2 in range(2):
            a(f'v_lshlrev_b32 v{T}, 16, v{HR+2*i_+h2}')
            a(f'v_and_b32 v{T+1}, 0xffff0000, v{HR+2*i_+h2}')
            a(f'v_lshlrev_b32 v{T+2}, 16, v{BB+2*i_+h2}')
            a(f'v_and_b32 v{T+3}, 0xffff0000, v{BB+2*i_+h2}')
            a(f'v_add_f32 v{ACC+4*i_+2*h2}, v{ACC+4*i_+2*h2}, v{T+2}')
            a(f'v_add_f32 v{ACC+4*i_+2*h2+1}, v{ACC+4*i_+2*h2+1}, v{T+3}')
            a(f'v_add_f32 v{ACC+4*i_+2*h2}, v{ACC+4*i_+2*h2}, v{T}')
            a(f'v_add_f32 v{ACC+4*i_+2*h2+1}, v{ACC+4*i_+2*h2+1}, v{T+1}')
    for i_ in range(6): a(f'v_cvt_pk_bf16_f32 v{T+4+i_}, v{ACC+2*i_}, v{ACC+2*i_+1}')
    a('s_lshl_b32 s33, s29, 4')
    a('v_add_u32 v7, s33, v5')
    a('s_movk_i32 s34, 1280')
    a('v_mul_lo_u32 v7, v7, s34')
    a('v_lshl_add_u32 v7, v6, 3, v7')
    a('s_mul_i32 s34, s21, 160')
    a('s_mul_i32 s35, s23, 96')
    a('s_add_u32 s34, s34, s35')
    a('s_cmp_eq_u32 s23, 0')
    a('s_cselect_b32 s35, s34, 0x7ff00000')
    a(f'buffer_store_dwordx2 {v(T+4,2)}, v7, s[76:79], s34 offen')
    a(f'buffer_store_dwordx2 {v(T+6,2)}, v7, s[76:79], s34 offen offset:32')
    a(f'buffer_store_dwordx2 {v(T+8,2)}, v7, s[76:79], s35 offen offset:64')

def kf():
    a = Asm()
    merged = 'merge' in gen.EXP
    L = NAME + '_kernel' if merged else 'kf_kernel'
    kernel_begin(a, L)
    a('s_cmp_ge_u32 s2, 256')
    a(f's_cbranch_scc1 {L}_end')
    if merged:
        import gen5
        if gen.PROF: a('v_mov_b32 v254, v0')
        gen5.k1s(a, '.Ljoin')
        a.label('.Ljoin')
        a('s_waitcnt vmcnt(0) lgkmcnt(0)')
        a('s_barrier')
        if gen.PROF:
            srd(a, 8, 4, WS_END)
            stamp_flush(a, 1, 12, 8, 12)
            a('v_mov_b32 v0, v254')
            a('s_waitcnt vmcnt(0)')
        lj, lp, ld = lab('gb'), lab('gb'), lab('gb')
        a('s_cmp_lg_u32 s12, 0')
        a(f's_cbranch_scc1 {lj}')
        a(f's_load_dwordx2 s[20:21], s[0:1], {A_DBG}')
        a('s_and_b32 s40, s2, 7')
        a('s_lshl_b32 s40, s40, 5')
        a('v_mov_b32 v5, s40')
        a('v_mov_b32 v6, 1')
        a('v_and_b32 v7, 7, v0')
        a('v_lshlrev_b32 v7, 5, v7')
        a('s_waitcnt lgkmcnt(0)')
        a('s_mov_b64 exec, 1')
        a('global_atomic_add v5, v6, s[20:21] sc1')
        a('s_mov_b64 exec, 0xff')
        a('s_mov_b32 s41, 0')
        a.label(lp)
        a('global_load_dword v8, v7, s[20:21] sc1')
        a('s_add_u32 s41, s41, 1')
        a('s_waitcnt vmcnt(0)')
        a('v_cmp_ne_u32 vcc, 32, v8')
        a(f's_cbranch_vccz {ld}')
        a(f's_cmp_lt_u32 s41, {SPIN_MAX}')
        a(f's_cbranch_scc1 {lp}')
        a.label(ld)
        a('s_mov_b64 exec, -1')
        a.label(lj)
        a('s_barrier')
    stamp(a, 0, True); stamp(a, 1)
    if 'dbg' in gen.EXP:
        a('s_memrealtime s[90:91]'); a('s_memtime s[92:93]'); a(f's_load_dwordx2 s[94:95], s[0:1], {A_DBG}')
    a(f's_load_dwordx2 s[4:5], s[0:1], {A_WS}')
    a(f's_load_dwordx2 s[68:69], s[0:1], {A_X}')
    a(f's_load_dwordx2 s[70:71], s[0:1], {A_OUT}')
    a(f's_and_b32 s{SG}, s2, 7')
    a(f's_lshr_b32 s{SJ}, s2, 3')
    a(f's_mov_b32 s{SH}, s{SJ}')
    a(f's_mov_b32 s{SR}, s{SG}')
    a('v_lshrrev_b32 v1, 6, v0')
    a('v_and_b32 v2, 63, v0')
    a('v_readfirstlane_b32 s12, v1')
    a('v_and_b32 v3, 31, v2')
    a('v_lshrrev_b32 v4, 5, v2')
    a(f's_getreg_b32 s{SPURE}, hwreg(HW_REG_XCC_ID, 0, 4)')
    a(f's_add_u32 s{SPURE}, s{SPURE}, 1')
    a('s_waitcnt lgkmcnt(0)')
    srd(a, 8, 4, WS_END)
    srd(a, 72, 68, S * D * 2)
    srd(a, 76, 70, S * D * 2)
    if not merged:
        l = lab('xp')
        a('s_cmp_lg_u32 s12, 0')
        a(f's_cbranch_scc1 {l}')
        a(f's_lshl_b32 s40, s{SG}, 7')
        a(f's_lshl_b32 s41, s{SJ}, 2')
        a('s_add_u32 s40, s40, s41')
        a(f's_add_u32 s40, s40, {WS_XT}')
        a('v_mov_b32 v14, 0')
        a(f'v_mov_b32 v15, s{SPURE}')
        a('s_mov_b64 exec, 1')
        a('buffer_store_dword v15, v14, s[8:11], s40 offen sc1')
        a('s_mov_b64 exec, -1')
        a.label(l)
    if 'nocodepf' not in gen.EXP and not merged:
        a('s_getpc_b64 s[40:41]')
        a.label('.Lpc_here')
        a(f's_sub_u32 s40, s40, (.Lpc_here - {L})')
        a('s_subb_u32 s41, s41, 0')
        a('s_lshl_b32 s42, s12, 12')
        a('v_lshlrev_b32 v14, 6, v2')
        a('v_add_u32 v14, s42, v14')
        a(f's_mov_b32 s42, (.Lkf_last - {L})')
        a('v_add_u32 v16, 0x8000, v14')
        a('v_min_u32 v14, s42, v14')
        a('v_min_u32 v16, s42, v16')
        a('v_mov_b32 v15, s41')
        a('v_mov_b32 v17, s41')
        a('v_add_co_u32 v14, vcc, s40, v14')
        a('v_addc_co_u32 v15, vcc, 0, v15, vcc')
        a('v_add_co_u32 v16, vcc, s40, v16')
        a('v_addc_co_u32 v17, vcc, 0, v17, vcc')
        a('global_load_dword v151, v[14:15], off')
        a('global_load_dword v151, v[16:17], off')
    stamp(a, 2)
    phase_attn(a)
    phase_oproj(a)
    stamp(a, 5)
    a(f's_cmp_ge_u32 s{SJ}, 28')
    a(f's_cbranch_scc1 {L}_idle')
    phase_ffn1(a, None)
    phase_ffn2(a, L, True)
    a(f's_branch {L}_f2')
    a.label(f'{L}_idle')
    a('s_waitcnt vmcnt(0)')
    a('s_barrier')
    li = lab('id')
    a('s_cmp_lg_u32 s12, 0')
    a(f's_cbranch_scc1 {li}')
    flag_store(a, 1, 14)
    a.label(li)
    w2_setup(a)
    for st in (0, 1):
        for ft in range(5):
            for x in w2_dma(st, ft): a(x)
    a('s_waitcnt vmcnt(0)')
    phase_ffn2(a, L, False)
    a.label(f'{L}_f2')
    ffn2_body(a, L)
    a.label(f'{L}_fin')
    if 'f1stamp' not in gen.EXP: stamp(a, 14)
    if 'dbg' in gen.EXP:
        a('s_waitcnt vmcnt(0)')
        a('s_memrealtime s[96:97]'); a('s_memtime s[86:87]'); a('s_waitcnt lgkmcnt(0)')
        ldb = lab('db')
        a('s_cmp_lg_u32 s2, 0'); a(f's_cbranch_scc1 {ldb}'); a('s_cmp_lg_u32 s12, 0'); a(f's_cbranch_scc1 {ldb}')
        a('s_sub_u32 s96, s96, s90'); a('s_sub_u32 s86, s86, s92')
        a('v_mov_b32 v0, 0'); a('v_mov_b32 v2, s96'); a('v_mov_b32 v3, s86'); a('v_mov_b32 v4, s90'); a('v_mov_b32 v5, 0')
        a('global_store_dwordx4 v0, v[2:5], s[94:95] offset:16')
        a(f's_mov_b32 s86, {WS_PROF}')
        a('buffer_load_dwordx4 v[6:9], v0, s[8:11], s86 offen')
        a('s_waitcnt vmcnt(0)')
        a('global_store_dwordx4 v0, v[6:9], s[94:95]')
        a.label(ldb)
    if gen.PROF: a('s_waitcnt vmcnt(0)')
    stamp(a, 6, True)
    stamp_flush(a, 2, 15, 8, 12)
    a.label(f'{L}_end')
    a('s_endpgm')
    attn_fallback(a)
    a.label('.Lkf_last')
    a('s_endpgm')
    if merged: return a, descriptor(L, 256, 102), '; @launch grid=(256,1,1) block=(512,1,1) lds=163840'
    return a, descriptor(L, 256, 102), f'; @launch kernel={L} grid=(256,1,1) block=(512,1,1) lds=163840'

if __name__ == '__main__':
    if 'prof' in sys.argv: gen.PROF = True
    for x in sys.argv[2:]:
        if x.startswith('x:'): gen.EXP.add(x[2:])
    out = sys.argv[1]
    import gen4, gen5
    ks_ = [kf] if 'merge' in gen.EXP else ([k0, k1, kf] if 'old' in gen.EXP else [gen4.k1p if 'k1p' in gen.EXP else gen5.k1s, kf])
    open(out, 'w').write(build(ks_))
    print('wrote', out)
```

```python
import sys, math
sys.path.insert(0, 'dev')
from asmlib import *

NAME = 'sequential_preLN__mha_block__dense_activation_squared_relu__prompt'
S, D, H, DH, F = 2048, 640, 32, 20, 1728
A_X, A_WQKV, A_WO, A_BX, A_W1, A_B1, A_W2, A_B2, A_OUT, A_DBG, A_WS = [8 * i for i in range(11)]
WS_XN = 0
WS_WQKV = WS_XN + S * D * 2
WS_WO = WS_WQKV + D * 3 * D * 2
WS_W1 = WS_WO + D * D * 2
WS_W2 = WS_W1 + D * F * 2
WS_Q = WS_W2 + F * D * 2
WS_K = WS_Q + S * D * 2
WS_VT = WS_K + S * D * 2
WS_O = WS_VT + S * D * 2
WS_H = WS_O + S * D * 2
WS_G = WS_H + S * D * 2
WS_CS1 = WS_G + S * F * 2
WS_B1F = WS_CS1 + 32768
WS_B2F = WS_B1F + 8192
WS_ST2 = WS_B2F + 8192
WS_FLAG = WS_ST2 + S * 16 * 8
WS_PROF = WS_FLAG + 65536
WS_END = WS_PROF + 8 * 256 * 8 * 64
PROF = False
EXP = set()
PS = 80

def code_touch(a, first, last, here, vt, vd, nrounds, swave_v=None):
    a('s_getpc_b64 s[40:41]')
    a.label(here)
    a(f's_add_u32 s40, s40, ({first} - {here})') if False else None
    a(f's_sub_u32 s40, s40, ({here} - {first})')
    a('s_subb_u32 s41, s41, 0')
    a(f'v_lshlrev_b32 v{vt}, 6, v0')
    a(f's_mov_b32 s42, ({last} - {first} - 4)')
    for r in range(nrounds):
        a(f'v_add_u32 v{vt+2}, {r*32768}, v{vt}')
        a(f'v_min_u32 v{vt+2}, s42, v{vt+2}')
        a(f'v_mov_b32 v{vt+3}, s41')
        a(f'v_add_co_u32 v{vt+2}, vcc, s40, v{vt+2}')
        a(f'v_addc_co_u32 v{vt+3}, vcc, 0, v{vt+3}, vcc')
        a(f'global_load_dword v{vd}, v[{vt+2}:{vt+3}], off')

def magic(d):
    return (2 ** 32 + d - 1) // d

def srd(a, base_s, ptr_lo, nbytes):
    a(f's_mov_b32 s{base_s}, s{ptr_lo}')
    a(f's_and_b32 s{base_s+1}, s{ptr_lo+1}, 0xffff')
    a(f's_mov_b32 s{base_s+2}, {nbytes}')
    a(f's_mov_b32 s{base_s+3}, 0x20000')

def kernel_begin(a, label):
    a.raw(f'.globl {label}')
    a.raw('.p2align 8')
    a.raw(f'.type {label},@function')
    a.label(label)

def descriptor(label, nvgpr, nsgpr, accum=None):
    if accum is None: accum = (nvgpr + 3) // 4 * 4
    return f""".amdhsa_kernel {label}
  .amdhsa_next_free_vgpr {nvgpr}
  .amdhsa_next_free_sgpr {nsgpr}
  .amdhsa_accum_offset {accum}
  .amdhsa_group_segment_fixed_size 0
  .amdhsa_kernarg_size 88
  .amdhsa_user_sgpr_count 2
  .amdhsa_user_sgpr_kernarg_segment_ptr 1
  .amdhsa_system_sgpr_workgroup_id_x 1
.end_amdhsa_kernel
"""


def stamp(a, i, real=False):
    if not PROF: return
    a(f's_{"memrealtime" if real else "memtime"} s[{PS+16}:{PS+17}]')
    a('s_waitcnt lgkmcnt(0)')
    a(f's_mov_b32 s{PS+i}, s{PS+16}')

def stamp_flush(a, kidx, n, ssrd, swave):
    if not PROF: return
    a(f's_lshl_b32 s{PS+18}, s2, 3')
    a(f's_add_u32 s{PS+18}, s{PS+18}, s{swave}')
    a(f's_lshl_b32 s{PS+18}, s{PS+18}, 6')
    a(f's_add_u32 s{PS+18}, s{PS+18}, {WS_PROF + kidx*256*8*64}')
    a(f'v_mbcnt_lo_u32_b32 v0, -1, 0')
    a(f'v_mbcnt_hi_u32_b32 v0, -1, v0')
    a('v_lshlrev_b32 v0, 2, v0')
    a('v_mov_b32 v1, 0')
    for i in range(n):
        a(f'v_mov_b32 v2, s{PS+i}')
        a(f'v_cmp_eq_u32 vcc, {4*i}, v0')
        a('v_cndmask_b32 v1, v1, v2, vcc')
    a(f'v_cmp_gt_u32 vcc, {4*n}, v0')
    a(f's_and_saveexec_b64 s[{PS+20}:{PS+21}], vcc')
    a(f'buffer_store_dword v1, v0, s[{ssrd}:{ssrd+3}], s{PS+18} offen')
    a(f's_mov_b64 exec, s[{PS+20}:{PS+21}]')

K0_LN = 128
K0_PK = 470
K0_CS = 27
K0_GRID = K0_LN + K0_PK + K0_CS + 1

def k0():
    a = Asm()
    L = 'k0_kernel'
    kernel_begin(a, L)
    a(f's_cmp_ge_u32 s2, {K0_GRID}')
    a(f's_cbranch_scc1 {L}_end')
    a(f's_load_dwordx2 s[4:5], s[0:1], {A_X}')
    a(f's_load_dwordx2 s[6:7], s[0:1], {A_WQKV}')
    a(f's_load_dwordx2 s[8:9], s[0:1], {A_WO}')
    a(f's_load_dwordx2 s[10:11], s[0:1], {A_W1}')
    a(f's_load_dwordx2 s[12:13], s[0:1], {A_W2}')
    a(f's_load_dwordx2 s[14:15], s[0:1], {A_WS}')
    a(f's_load_dwordx2 s[16:17], s[0:1], {A_B1}')
    a(f's_load_dwordx2 s[18:19], s[0:1], {A_B2}')
    a('v_lshrrev_b32 v1, 6, v0')
    a('v_and_b32 v2, 63, v0')
    a('s_nop 0')
    a('v_readfirstlane_b32 s3, v1')
    a('s_waitcnt lgkmcnt(0)')
    srd(a, 20, 14, WS_END)
    a(f's_cmp_ge_u32 s2, {K0_LN}')
    a(f's_cbranch_scc1 {L}_pk')
    srd(a, 24, 4, S * D * 2)
    a('v_lshrrev_b32 v3, 4, v2')
    a('v_and_b32 v4, 15, v2')
    a('s_lshl_b32 s28, s2, 4')
    a('s_lshl_b32 s29, s3, 2')
    a('s_add_u32 s28, s28, s29')
    a('v_add_u32 v5, s28, v3')
    a('s_movk_i32 s30, 1280')
    a('v_mul_lo_u32 v5, v5, s30')
    a('v_lshl_add_u32 v5, v4, 4, v5')
    for i in range(5):
        a(f'buffer_load_dwordx4 v[{8+4*i}:{11+4*i}], v5, s[24:27], 0 offen offset:{256*i}')
    for i in range(20):
        if i % 4 == 0: a(f's_waitcnt vmcnt({4 - i // 4})')
        a(f'v_lshlrev_b32 v{32+2*i}, 16, v{8+i}')
        a(f'v_and_b32 v{33+2*i}, 0xffff0000, v{8+i}')
    a('v_add_f32 v6, v32, v33')
    for i in range(2, 40):
        a(f'v_add_f32 v6, v6, v{32+i}')
    for r in (8, 4, 2, 1):
        a(f'v_add_f32_dpp v7, v6, v6 row_ror:{r} row_mask:0xf bank_mask:0xf')
        a('v_mov_b32 v6, v7')
    a(f'v_mul_f32 v6, {1.0/640:.9e}, v6'.replace('e-03', 'e-03'))
    for i in range(40):
        a(f'v_sub_f32 v{32+i}, v{32+i}, v6')
    a('v_mul_f32 v7, v32, v32')
    for i in range(1, 40):
        a(f'v_fmac_f32 v7, v{32+i}, v{32+i}')
    for r in (8, 4, 2, 1):
        a(f'v_add_f32_dpp v6, v7, v7 row_ror:{r} row_mask:0xf bank_mask:0xf')
        a('v_mov_b32 v7, v6')
    a('v_mov_b32 v6, 0x3727c5ac')
    a(f'v_fmac_f32 v6, {f2hex(1.0/640)}, v7')
    a('v_rsq_f32 v6, v6')
    for i in range(40):
        a(f'v_mul_f32 v{32+i}, v{32+i}, v6')
    for i in range(20):
        a(f'v_cvt_pk_bf16_f32 v{8+i}, v{32+2*i}, v{33+2*i}')
    a('s_mul_i32 s28, s2, 20480')
    a('s_lshl_b32 s29, s3, 6')
    a('s_add_u32 s28, s28, s29')
    a('v_lshlrev_b32 v5, 8, v4')
    a('v_lshl_add_u32 v5, v3, 4, v5')
    a('v_add_u32 v5, s28, v5')
    for i in range(5):
        a(f's_mov_b32 s29, {WS_XN + 4096*i}')
        a(f'buffer_store_dwordx4 v[{8+4*i}:{11+4*i}], v5, s[20:23], s29 offen')
    a('s_endpgm')
    a.label(f'{L}_pk')
    a(f's_cmp_ge_u32 s2, {K0_LN + K0_PK}')
    a(f's_cbranch_scc1 {L}_cs')
    a(f's_sub_u32 s28, s2, {K0_LN}')
    a('s_lshl_b32 s28, s28, 2')
    a('s_add_u32 s28, s28, s3')
    mats = [(600, 6, 1920, 640, WS_WQKV, 30), (200, 8, 640, 640, WS_WO, 10), (540, 10, 1728, 640, WS_W1, 27), (540, 12, 640, 1728, WS_W2, 10)]
    start = 0
    for mi, (cnt, ptr, N, K, off, ncb) in enumerate(mats):
        if mi < len(mats) - 1:
            a(f's_cmp_lt_u32 s28, {start + cnt}')
            a(f's_cbranch_scc0 {L}_m{mi+1}')
        srd(a, 24, ptr, N * K * 2)
        a(f's_mov_b32 s30, {N*2}')
        a(f's_mov_b32 s31, {K//8*256}')
        a(f's_mov_b32 s32, {off}')
        a(f's_sub_u32 s28, s28, {start}')
        a(f's_mul_hi_u32 s34, s28, {magic(ncb)}')
        a(f's_mul_i32 s35, s34, {ncb}')
        a('s_sub_u32 s35, s28, s35')
        a(f's_branch {L}_go')
        if mi < len(mats) - 1: a.label(f'{L}_m{mi+1}')
        start += cnt
    a.label(f'{L}_go')
    a('s_lshl_b32 s36, s34, 5')
    a('s_mul_i32 s36, s36, s30')
    a('s_lshl_b32 s37, s35, 7')
    a('s_add_u32 s36, s36, s37')
    a('v_lshlrev_b32 v5, 1, v2')
    for r in range(32):
        a(f'buffer_load_ushort v{40+r}, v5, s[24:27], s36 offen')
        a('s_add_u32 s36, s36, s30')
    a('v_lshrrev_b32 v6, 4, v2')
    a('s_lshl_b32 s37, s35, 2')
    a('v_add_u32 v6, s37, v6')
    a('v_mul_lo_u32 v6, v6, s31')
    a('v_and_b32 v7, 15, v2')
    a('v_lshl_add_u32 v6, v7, 4, v6')
    a('s_lshl_b32 s37, s34, 10')
    a('s_add_u32 s37, s37, s32')
    a('s_waitcnt vmcnt(0)')
    for r in range(16):
        a(f'v_lshl_or_b32 v{8+r}, v{41+2*r}, 16, v{40+2*r}')
    for oc in range(4):
        a(f'buffer_store_dwordx4 v[{8+4*oc}:{11+4*oc}], v6, s[20:23], s37 offen offset:{256*oc}')
    a('s_endpgm')
    a.label(f'{L}_cs')
    a(f's_cmp_ge_u32 s2, {K0_LN + K0_PK + K0_CS}')
    a(f's_cbranch_scc1 {L}_bias')
    srd(a, 24, 10, D * F * 2)
    a(f's_sub_u32 s28, s2, {K0_LN + K0_PK}')
    a('v_lshrrev_b32 v3, 5, v2')
    a('v_and_b32 v4, 31, v2')
    a('s_mul_i32 s29, s3, 160')
    a('v_add_u32 v3, s29, v3')
    a('s_movk_i32 s30, 3456')
    a('v_mul_lo_u32 v5, v3, s30')
    a('v_lshl_add_u32 v5, v4, 2, v5')
    a('s_lshl_b32 s29, s28, 7')
    a('v_mov_b32 v6, 0')
    a('v_mov_b32 v7, 0')
    a('s_mov_b32 s31, 5')
    a.label(f'{L}_csl')
    for i in range(16):
        a(f'buffer_load_dword v{8+i}, v5, s[24:27], s29 offen')
        a(f's_add_u32 s29, s29, {2*3456}')
    a('s_waitcnt vmcnt(0)')
    for i in range(16):
        a(f'v_lshlrev_b32 v24, 16, v{8+i}')
        a(f'v_and_b32 v25, 0xffff0000, v{8+i}')
        a('v_add_f32 v6, v6, v24')
        a('v_add_f32 v7, v7, v25')
    a('s_sub_u32 s31, s31, 1')
    a('s_cmp_lg_u32 s31, 0')
    a(f's_cbranch_scc1 {L}_csl')
    a('v_lshlrev_b32 v8, 3, v0')
    a('ds_write_b64 v8, v[6:7]')
    a('s_waitcnt lgkmcnt(0)')
    a('s_barrier')
    a('v_cmp_gt_u32 vcc, 32, v0')
    a('s_and_saveexec_b64 s[40:41], vcc')
    a(f's_cbranch_execz {L}_end')
    for i in range(8):
        a(f'ds_read_b64 v[{10+2*i}:{11+2*i}], v8 offset:{256*i}')
    a('s_waitcnt lgkmcnt(0)')
    for i in range(1, 8):
        a(f'v_add_f32 v10, v10, v{10+2*i}')
        a(f'v_add_f32 v11, v11, v{11+2*i}')
    a('s_lshl_b32 s29, s28, 8')
    a(f's_add_u32 s29, s29, {WS_CS1}')
    a('buffer_store_dwordx2 v[10:11], v8, s[20:23], s29 offen')
    a('s_endpgm')
    a.label(f'{L}_bias')
    srd(a, 24, 16, F * 2)
    srd(a, 28, 18, D * 2)
    a('v_lshlrev_b32 v5, 1, v0')
    a('v_lshlrev_b32 v6, 2, v0')
    for i in range(7):
        a(f'buffer_load_ushort v{8+i}, v5, s[24:27], 0 offen offset:{512*i}')
    for i in range(3):
        a(f'buffer_load_ushort v{16+i}, v5, s[28:31], 0 offen offset:{512*i}')
    a('s_waitcnt vmcnt(0)')
    for i in range(7):
        a(f'v_lshlrev_b32 v{8+i}, 16, v{8+i}')
        a(f's_mov_b32 s32, {WS_B1F + 1024*i}')
        a(f'buffer_store_dword v{8+i}, v6, s[20:23], s32 offen')
    for i in range(3):
        a(f'v_lshlrev_b32 v{16+i}, 16, v{16+i}')
        a(f's_mov_b32 s32, {WS_B2F + 1024*i}')
        a(f'buffer_store_dword v{16+i}, v6, s[20:23], s32 offen')
    a.label(f'{L}_end')
    a('s_endpgm')
    return a, descriptor(L, 80, 48), f'; @launch kernel={L} grid=({K0_GRID},1,1) block=(256,1,1) lds=4096'


def ring_gemm(a, nst, ACC, FA, FB, vdma, vrdA, vrdB, ssrd, sdma, sm0, swap, tag, pro=2, NSLOT=4, pre=0):
    pend = [(st, ks) for st in range(nst) for ks in range(4)]
    issued = []
    def dma_one():
        st, ks = pend.pop(0)
        slot = st % NSLOT
        a(f's_add_u32 m0, s{sm0}, {slot*32768 + ks*8192}')
        a(f's_add_u32 s{sdma+1}, s{sdma}, {st*2048 + ks*512}')
        a(f'buffer_load_dwordx4 v{vdma}, s[{ssrd}:{ssrd+3}], s{sdma+1} offen lds')
        issued.append(st)
    def wait_stage(st):
        n = 0
        for x in reversed(issued):
            if x <= st: break
            n += 1
        assert issued.count(st) == 4
        a(f's_waitcnt vmcnt({n})')
    def reads(st, ks, buf):
        slot = st % NSLOT
        off = slot * 32768 + ks * 8192
        hi = 1 if off >= 65536 else 0
        off -= hi * 65536
        a(f'ds_read_b128 {v(FA+4*buf,4)}, v{vrdA[hi]} offset:{off}')
        a(f'ds_read_b128 {v(FB+8*buf,4)}, v{vrdB[hi]} offset:{off}')
        a(f'ds_read_b128 {v(FB+8*buf+4,4)}, v{vrdB[hi]} offset:{off+1024}')
    def mfmas(buf, first):
        for j in range(2):
            A = v(FA+4*buf, 4); B = v(FB+8*buf+4*j, 4)
            c = '0' if first else v(ACC+16*j, 16)
            if swap: a(f'v_mfma_f32_32x32x16_bf16 {v(ACC+16*j,16)}, {B}, {A}, {c}')
            else: a(f'v_mfma_f32_32x32x16_bf16 {v(ACC+16*j,16)}, {A}, {B}, {c}')
    for _ in range(4 * pro): dma_one()
    stamp(a, 2)
    wait_stage(0)
    a('s_barrier')
    stamp(a, 3)
    reads(0, 0, 0)
    buf = 0
    for st in range(nst):
        for ks in range(4):
            if ks < 3:
                reads(st, ks + 1, buf ^ 1)
                a('s_waitcnt lgkmcnt(3)')
                mfmas(buf, st == 0 and ks == 0)
            else:
                if st + 1 < nst:
                    a('s_waitcnt lgkmcnt(0)')
                    wait_stage(st + 1)
                    a('s_barrier')
                    reads(st + 1, 0, buf ^ 1)
                else:
                    a('s_waitcnt lgkmcnt(0)')
                mfmas(buf, False)
            lim = st + NSLOT - 1 + (1 if ks == 3 else 0)
            nq = 2 if (pend and pend[0][0] < lim and st == 0) else 1
            for _ in range(nq):
                if pend and pend[0][0] <= lim: dma_one()
            buf ^= 1
    a('s_nop 15')
    stamp(a, 4)

def lane_swap23(a, dst, src, tmp):
    a(f'v_and_b32 v{dst}, 0x13, v{src}')
    a(f'v_and_b32 v{tmp}, 4, v{src}')
    a(f'v_lshl_or_b32 v{dst}, v{tmp}, 1, v{dst}')
    a(f'v_and_b32 v{tmp}, 8, v{src}')
    a(f'v_lshrrev_b32 v{tmp}, 1, v{tmp}')
    a(f'v_or_b32 v{dst}, v{dst}, v{tmp}')

QSCALE = (DH ** -0.5) * 1.4426950408889634

def k1():
    a = Asm()
    L = 'k1_kernel'
    kernel_begin(a, L)
    a('s_cmp_ge_u32 s2, 256')
    a(f's_cbranch_scc1 {L}_end')
    stamp(a, 0, True); stamp(a, 1)
    a(f's_load_dwordx2 s[4:5], s[0:1], {A_WS}')
    a('s_and_b32 s15, s2, 7')
    a('s_lshr_b32 s16, s2, 3')
    a('s_and_b32 s13, s15, 3')
    a('s_lshl_b32 s13, s13, 2')
    a('s_and_b32 s17, s16, 3')
    a('s_add_u32 s13, s13, s17')
    a('s_lshr_b32 s14, s15, 2')
    a('s_lshl_b32 s14, s14, 3')
    a('s_lshr_b32 s17, s16, 2')
    a('s_add_u32 s14, s14, s17')
    a('s_cmp_ge_u32 s14, 15')
    a(f's_cbranch_scc1 {L}_zero')
    a('v_lshrrev_b32 v1, 6, v0')
    a('v_and_b32 v2, 63, v0')
    a('v_readfirstlane_b32 s12, v1')
    a('v_and_b32 v3, 31, v2')
    a('v_lshrrev_b32 v4, 5, v2')
    lane_swap23(a, 5, 3, 6)
    a('s_waitcnt lgkmcnt(0)')
    srd(a, 8, 4, WS_END)
    a('s_cmp_lt_u32 s12, 4')
    a('s_cselect_b32 s17, 1, 0')
    a('s_cmp_lt_u32 s14, 10')
    a('s_cselect_b32 s18, s17, 0')
    a('s_cmp_eq_u32 s18, 1')
    a('s_cselect_b64 vcc, -1, 0')
    a('v_cndmask_b32 v6, v3, v5, vcc')
    a('v_lshrrev_b32 v7, 4, v6')
    a('s_movk_i32 s17, 20480')
    a('v_mul_lo_u32 v7, v7, s17')
    a('v_and_b32 v6, 15, v6')
    a('v_lshl_add_u32 v7, v6, 4, v7')
    a('v_lshl_add_u32 v7, v4, 8, v7')
    a('s_lshl_b32 s18, s14, 3')
    a('s_lshl_b32 s19, s12, 1')
    a('s_add_u32 s18, s18, s19')
    a('s_mul_i32 s18, s18, 20480')
    a(f's_add_u32 s18, s18, {WS_WQKV}')
    a('s_lshl_b32 s20, s13, 3')
    a('s_add_u32 s20, s20, s19')
    a('s_sub_u32 s20, s20, 8')
    a('s_mul_i32 s20, s20, 20480')
    a(f's_add_u32 s20, s20, {WS_XN}')
    a('s_cmp_lt_u32 s12, 4')
    a('s_cselect_b32 s20, s18, s20')
    a('s_lshl_b32 s22, s12, 10')
    a('s_and_b32 s23, s12, 3')
    a('s_lshr_b32 s24, s12, 2')
    a('v_lshlrev_b32 v8, 4, v2')
    a('s_lshl_b32 s17, s23, 10')
    a('v_add_u32 v9, s17, v8')
    a('v_add_u32 v10, 0x10000, v9')
    a('s_lshl_b32 s17, s24, 11')
    a('s_add_u32 s17, s17, 4096')
    a('v_add_u32 v11, s17, v8')
    a('v_add_u32 v12, 0x10000, v11')
    ACC, FA, FB = 32, 16, 64
    a('s_cmp_ge_u32 s14, 10')
    a(f's_cbranch_scc1 {L}_v')
    ring_gemm(a, 10, ACC, FA, FB, 7, (9, 10), (11, 12), 8, 20, 22, False, 'qk')
    a('s_cmp_ge_u32 s14, 5')
    a(f's_cbranch_scc1 {L}_noscale')
    a(f's_mov_b32 s17, {f2hex(QSCALE)}')
    for r in range(32):
        a(f'v_mul_f32 v{ACC+r}, s17, v{ACC+r}')
    a.label(f'{L}_noscale')
    for r in range(16):
        a(f'v_cvt_pk_bf16_f32 v{64+r}, v{ACC+2*r}, v{ACC+2*r+1}')
    a('v_lshrrev_b32 v13, 4, v3')
    a('s_movk_i32 s17, 20480')
    a('v_mul_lo_u32 v13, v13, s17')
    a('v_and_b32 v14, 15, v3')
    a('v_lshl_add_u32 v13, v14, 4, v13')
    a('v_lshl_add_u32 v13, v4, 8, v13')
    a('s_lshl_b32 s17, s13, 3')
    a('s_lshl_b32 s18, s24, 2')
    a('s_add_u32 s17, s17, s18')
    a('s_mul_i32 s17, s17, 20480')
    a(f's_mov_b32 s18, {WS_Q}')
    a(f's_mov_b32 s19, {WS_K - 80*256}')
    a('s_cmp_lt_u32 s14, 5')
    a('s_cselect_b32 s18, s18, s19')
    a('s_add_u32 s17, s17, s18')
    a('s_lshl_b32 s18, s14, 12')
    a('s_add_u32 s17, s17, s18')
    a('s_lshl_b32 s18, s23, 10')
    a('s_add_u32 s17, s17, s18')
    for j in range(2):
        a(f'buffer_store_dwordx4 {v(64+8*j,4)}, v13, s[8:11], s17 offen')
        a(f'buffer_store_dwordx4 {v(68+8*j,4)}, v13, s[8:11], s17 offen offset:512')
        if j == 0: a(f's_add_u32 s17, s17, {2*20480}')
    stamp(a, 5)
    if PROF: a('s_waitcnt vmcnt(0)')
    stamp(a, 6); stamp(a, 7, True)
    stamp_flush(a, 1, 8, 8, 12)
    a('s_endpgm')
    a.label(f'{L}_v')
    ring_gemm(a, 10, ACC, FA, FB, 7, (9, 10), (11, 12), 8, 20, 22, True, 'v')
    for r in range(16):
        a(f'v_cvt_pk_bf16_f32 v{64+r}, v{ACC+2*r}, v{ACC+2*r+1}')
    a('s_sub_u32 s17, s14, 10')
    a('s_lshl_b32 s17, s17, 7')
    a('s_lshl_b32 s18, s23, 5')
    a('s_add_u32 s17, s17, s18')
    a('v_add_u32 v13, s17, v3')
    a(f's_mov_b32 s17, {magic(20)}')
    a('v_mul_hi_u32 v14, v13, s17')
    a('v_mul_u32_u24 v15, 20, v14')
    a('v_sub_u32 v15, v13, v15')
    a('s_mov_b32 s17, 81920')
    a('v_mul_lo_u32 v14, v14, s17')
    a('v_lshl_add_u32 v14, v15, 4, v14')
    a('v_mul_u32_u24 v15, 320, v4')
    a('v_add_u32 v14, v14, v15')
    a('s_lshl_b32 s17, s13, 3')
    a('s_lshl_b32 s18, s24, 2')
    a('s_add_u32 s17, s17, s18')
    a('s_mul_i32 s17, s17, 640')
    a(f's_add_u32 s17, s17, {WS_VT}')
    for j in range(2):
        for gg in range(2):
            a(f'buffer_store_dwordx4 {v(64+8*j+4*gg,4)}, v14, s[8:11], s17 offen offset:{(2*j+gg)*640}')
    stamp(a, 5)
    if PROF: a('s_waitcnt vmcnt(0)')
    stamp(a, 6); stamp(a, 7, True)
    stamp_flush(a, 1, 8, 8, 12)
    a('s_endpgm')
    a.label(f'{L}_zero')
    a('s_waitcnt lgkmcnt(0)')
    srd(a, 8, 4, WS_END)
    a('v_lshlrev_b32 v1, 4, v0')
    for r in range(4, 8): a(f'v_mov_b32 v{r}, 0')
    a(f's_mov_b32 s17, {WS_FLAG}')
    a('buffer_store_dwordx4 v[4:7], v1, s[8:11], s17 offen')
    a.label(f'{L}_end')
    a('s_endpgm')
    return a, descriptor(L, 96, 102), f'; @launch kernel={L} grid=(256,1,1) block=(512,1,1) lds=131072'


AT_SLOT = 14336
class AR:
    QA = 16
    QC = 24
    KA = 28
    KC = 36
    VV = 40
    S = 56
    P = 88
    O = 104
    T = 136

def attn_setup(a, s_h, s_r, s_w, ssrd, defer=False):
    a(f's_lshr_b32 s40, s{s_h}, 1')
    a(f's_and_b32 s41, s{s_h}, 1')
    a('s_mul_i32 s42, s40, 5')
    a('s_add_u32 s43, s42, 2')
    a('s_mul_i32 s44, s41, 3')
    a('s_add_u32 s42, s42, s44')
    a(f's_and_b32 s45, s{s_w}, 3')
    a(f's_lshr_b32 s46, s{s_w}, 2')
    a('v_lshrrev_b32 v5, 4, v3')
    a('s_movk_i32 s47, 20480')
    a('v_mul_lo_u32 v5, v5, s47')
    a('v_and_b32 v6, 15, v3')
    a('v_lshl_add_u32 v5, v6, 4, v5')
    a('v_lshl_add_u32 v7, v4, 8, v5')
    a(f's_lshl_b32 s47, s{s_r}, 4')
    a('s_lshl_b32 s48, s45, 2')
    a('s_add_u32 s47, s47, s48')
    a('s_mul_i32 s47, s47, 20480')
    a(f's_add_u32 s48, s47, {WS_Q}')
    a('s_lshl_b32 s49, s42, 8')
    a('s_add_u32 s49, s49, s48')
    a('s_lshl_b32 s50, s43, 8')
    a('s_add_u32 s50, s50, s48')
    a('s_lshl_b32 s51, s41, 3')
    a('s_add_u32 s50, s50, s51')
    if not defer: attn_qloads(a, ssrd)
    lane_swap23(a, 8, 3, 9)
    a('v_cmp_gt_u32 vcc, 16, v3')
    a('v_cndmask_b32 v8, v3, v8, vcc')
    a('s_lshl_b32 s51, s41, 2')
    a('v_add_u32 v8, s51, v8')
    a('v_subrev_u32 v9, 20, v8')
    a('v_cmp_le_u32 vcc, 20, v8')
    a('v_cndmask_b32 v8, v8, v9, vcc')
    a('v_mul_u32_u24 v9, 320, v4')
    a('v_lshl_add_u32 v8, v8, 4, v9')
    a(f's_mul_i32 s52, s{s_h}, 81920')
    a(f's_mul_i32 s53, s{s_w}, 640')
    a('s_add_u32 s52, s52, s53')
    a(f's_add_u32 s52, s52, {WS_VT}')
    a(f's_cmp_lt_u32 s{s_w}, 4')
    a(f's_cbranch_scc0 .Lat_kc')
    a('v_mov_b32 v9, v7')
    a(f's_lshl_b32 s53, s{s_w}, 1')
    a('s_mul_i32 s53, s53, 20480')
    a('s_lshl_b32 s54, s42, 8')
    a('s_add_u32 s53, s53, s54')
    a(f's_lshl_b32 s55, s{s_w}, 10')
    a('s_branch .Lat_kd')
    a.label('.Lat_kc')
    a('v_lshrrev_b32 v9, 4, v2')
    a('s_movk_i32 s53, 20480')
    a('v_mul_lo_u32 v9, v9, s53')
    a('v_lshl_add_u32 v9, v6, 4, v9')
    a(f's_and_b32 s55, s{s_w}, 1')
    a('s_lshl_b32 s53, s55, 2')
    a('s_mul_i32 s53, s53, 20480')
    a('s_lshl_b32 s54, s43, 8')
    a('s_add_u32 s53, s53, s54')
    a('s_lshl_b32 s55, s55, 10')
    a('s_add_u32 s55, s55, 4096')
    a.label('.Lat_kd')
    a(f's_add_u32 s53, s53, {WS_K}')
    a(f's_lshl_b32 s54, s{s_w}, 10')
    a('s_add_u32 s54, s54, 6144')
    a('v_lshlrev_b32 v10, 4, v2')
    a('s_lshl_b32 s56, s46, 11')
    a('v_add_u32 v11, s56, v10')
    a('v_lshlrev_b32 v12, 4, v3')
    a('s_lshl_b32 s56, s46, 10')
    a('s_lshl_b32 s57, s41, 3')
    a('s_add_u32 s56, s56, s57')
    a('s_add_u32 s56, s56, 4096')
    a('v_add_u32 v12, s56, v12')
    a('s_lshl_b32 s56, s46, 12')
    a('s_add_u32 s56, s56, 6144')
    a('v_add_u32 v13, s56, v10')
    a('s_mov_b32 s58, 0x000fffff')
    a('s_mov_b32 s59, 0x000fffff')
    if not defer: attn_ones(a)

def attn_qloads(a, ssrd):
    for j in range(2):
        a(f'buffer_load_dwordx4 {v(AR.QA+4*j,4)}, v7, s[{ssrd}:{ssrd+3}], s49 offen')
        a(f'buffer_load_dwordx2 {v(AR.QC+2*j,2)}, v5, s[{ssrd}:{ssrd+3}], s50 offen')
        if j == 0:
            a(f's_add_u32 s49, s49, {2*20480}')
            a(f's_add_u32 s50, s50, {2*20480}')

def attn_ones(a):
    a('v_mov_b32 v132, 0x3f803f80')
    a('v_cmp_eq_u32 vcc, 20, v3')
    if 'allones' not in EXP: a('v_cndmask_b32 v132, 0, v132, vcc')
    for r in (133, 134, 135): a(f'v_mov_b32 v{r}, v132')
    a('v_add_u32 v14, s54, v10')
    a('s_mov_b32 s40, 0xfff00000')
    a('s_mov_b32 s41, 0xfff00000')
    a('s_mov_b64 exec, s[40:41]')
    for sl in range(4):
        a(f'ds_write_b128 v14, v[132:135] offset:{sl*AT_SLOT}')
    a('s_mov_b64 exec, -1')

def attn_dma(a, slot, ssrd):
    a(f's_add_u32 m0, s54, {slot*AT_SLOT}')
    a('s_mov_b64 exec, s[58:59]')
    a(f'buffer_load_dwordx4 v8, s[{ssrd}:{ssrd+3}], s52 offen lds')
    a('s_mov_b64 exec, -1')
    a(f's_add_u32 m0, s55, {slot*AT_SLOT}')
    a('s_add_u32 s52, s52, 5120')
    a(f'buffer_load_dwordx4 v9, s[{ssrd}:{ssrd+3}], s53 offen lds')
    a('s_add_u32 s53, s53, 163840')

def attn_dma_parts(slot, ssrd):
    NT = 'nt ' if 'nt' in EXP else ''
    return ([f's_add_u32 m0, s54, {slot*AT_SLOT}', 's_mov_b64 exec, s[58:59]',
             f'buffer_load_dwordx4 v8, s[{ssrd}:{ssrd+3}], s52 offen {NT}lds', 's_mov_b64 exec, -1', 's_add_u32 s52, s52, 5120'],
            [f's_add_u32 m0, s55, {slot*AT_SLOT}', 's_nop 0',
             f'buffer_load_dwordx4 v9, s[{ssrd}:{ssrd+3}], s53 offen {NT}lds', 's_add_u32 s53, s53, 163840'])

def attn_main(a, ssrd, tag):
    R = AR
    def kreads(slot, t, buf):
        return [f'ds_read_b128 {v(R.KA+4*buf,4)}, v11 offset:{slot*AT_SLOT + t*1024}',
                f'ds_read_b64 {v(R.KC+2*buf,2)}, v12 offset:{slot*AT_SLOT + t*512}']
    def vreads(slot, t, buf):
        return [f'ds_read_b128 {v(R.VV+8*buf,4)}, v13 offset:{slot*AT_SLOT + t*2048}',
                f'ds_read_b128 {v(R.VV+8*buf+4,4)}, v13 offset:{slot*AT_SLOT + t*2048 + 1024}']
    def m1(sb, kb, j): return f'v_mfma_f32_32x32x16_bf16 {v(R.S+16*sb,16)}, {v(R.KA+4*kb,4)}, {v(R.QA+4*j,4)}, 0'
    def m2(sb, kb, j): return f'v_mfma_f32_32x32x8bf16_1k {v(R.S+16*sb,16)}, {v(R.KC+2*kb,2)}, {v(R.QC+2*j,2)}, {v(R.S+16*sb,16)}'
    def m3(j, vb, pb): return f'v_mfma_f32_32x32x16_bf16 {v(R.O+16*j,16)}, {v(R.VV+8*vb,4)}, {v(R.P+8*pb,4)}, {v(R.O+16*j,16)}'
    def m4(j, vb, pb): return f'v_mfma_f32_32x32x16_bf16 {v(R.O+16*j,16)}, {v(R.VV+8*vb+4,4)}, {v(R.P+8*pb+4,4)}, {v(R.O+16*j,16)}'
    for r in range(32): a(f'v_mov_b32 v{R.O+r}, 0')
    for r in range(16): a(f'v_mov_b32 v{R.P+r}, 0')
    for r in range(16): a(f'v_mov_b32 v{R.VV+r}, 0')
    attn_dma(a, 0, ssrd)
    if 'pro3' in EXP:
        for st in range(1, 3): attn_dma(a, st, ssrd)
        a('s_waitcnt vmcnt(4)')
    else:
        a('s_waitcnt vmcnt(0)')
        for st in range(1, 3): attn_dma(a, st, ssrd)
    a('v_cmp_gt_u32 vcc, 32, v2')
    for r in range(4): a(f'v_cndmask_b32 v{R.QC+r}, 0, v{R.QC+r}, vcc')
    a('s_waitcnt lgkmcnt(0)')
    a('s_barrier')
    for x in kreads(0, 0, 0): a(x)
    a('s_waitcnt lgkmcnt(0)')
    a(m1(0, 0, 0)); a(m2(0, 0, 0))
    a('s_mov_b32 s60, 4')
    if 'barstamp' not in EXP: stamp(a, 7)
    if 'align' in EXP: a.raw('.p2align 6')
    a.label(f'.Lat_loop{tag}')
    for st in range(4):
        for u in range(4):
            n = st * 4 + u
            T = n >> 1; j = n & 1
            sb = n & 1; Tn = (n + 1) >> 1; jn = (n + 1) & 1
            Tp = (n - 1) >> 1; jp = (n - 1) & 1
            if 'prio' in EXP: a(f's_setprio {3-u}')
            extras = {}
            if u == 2 and 'nobar' not in EXP:
                if 'barstamp' in EXP: stamp(a, 7 + 2*st)
                a('s_waitcnt vmcnt(2)')
                a('s_barrier')
                if 'barstamp' in EXP: stamp(a, 8 + 2*st)
            if u == 3 and 'nodma' not in EXP:
                d = attn_dma_parts((st + 3) % 4, ssrd)
                extras.setdefault(3, []).extend(d[0])
                extras.setdefault(15, []).extend(d[1])
            if n % 2 == 0:
                T1 = T + 1
                if 'nods' not in EXP:
                    kr = kreads((T1 >> 1) % 4, T1 & 1, T1 & 1)
                    vr = vreads((T >> 1) % 4, T & 1, T & 1)
                    for pos, x in zip((2, 6, 11, 16), kr + vr): extras.setdefault(pos, []).append(x)
            else:
                a('s_waitcnt lgkmcnt(0)')
            S = R.S + 16 * sb
            ex = [f'v_exp_f32 v{S+i}, v{S+i}' for i in range(16)]
            cv = [f'v_cvt_pk_bf16_f32 v{R.P+8*sb+i}, v{S+2*i}, v{S+2*i+1}' for i in range(8)]
            M = [m1(sb ^ 1, Tn & 1, jn), m2(sb ^ 1, Tn & 1, jn), m3(jp, Tp & 1, (n - 1) & 1), m4(jp, Tp & 1, (n - 1) & 1)]
            seq = [M[0], ex[0], ex[1], ex[2], ex[3], cv[0], ex[4], M[1], ex[5], cv[1], ex[6], ex[7], cv[2],
                   M[2], ex[8], ex[9], cv[3], ex[10], ex[11], cv[4], M[3], ex[12], ex[13], cv[5], ex[14], ex[15], cv[6], cv[7]]
            for i, x in enumerate(seq):
                for y in extras.get(i, []): a(y)
                a(x)
    a('s_sub_u32 s60, s60, 1')
    a('s_cmp_lg_u32 s60, 0')
    a(f's_cbranch_scc1 .Lat_loop{tag}')
    a(m3(1, 1, 1)); a(m4(1, 1, 1))

def attn_stage_wrap_note(): pass

def k2():
    a = Asm()
    L = 'k2_kernel'
    kernel_begin(a, L)
    a('s_cmp_ge_u32 s2, 256')
    a(f's_cbranch_scc1 {L}_end')
    stamp(a, 0, True); stamp(a, 1)
    a(f's_load_dwordx2 s[4:5], s[0:1], {A_WS}')
    a('s_and_b32 s13, s2, 7')
    a('s_lshr_b32 s14, s2, 3')
    a('v_lshrrev_b32 v1, 6, v0')
    a('v_and_b32 v2, 63, v0')
    a('v_readfirstlane_b32 s12, v1')
    a('v_and_b32 v3, 31, v2')
    a('v_lshrrev_b32 v4, 5, v2')
    a('s_waitcnt lgkmcnt(0)')
    srd(a, 8, 4, WS_END)
    attn_setup(a, 14, 13, 12, 8)
    stamp(a, 2)
    attn_main(a, 8, '')
    stamp(a, 3)
    R = AR
    a('s_waitcnt vmcnt(0)')
    a('s_barrier')
    a('s_cmp_eq_u32 s46, 0')
    a('s_cbranch_scc1 .Lat_noswap')
    a('s_nop 7')
    for r in range(12): a(f'v_swap_b32 v{R.O+r}, v{R.O+16+r}')
    a.label('.Lat_noswap')
    a('s_nop 7')
    a(f's_mul_i32 s61, s12, 3072')
    a('v_add_u32 v14, s61, v10')
    for i in range(3): a(f'ds_write_b128 v14, {v(R.O+16+4*i,4)} offset:{1024*i}')
    a('s_xor_b32 s61, s12, 4')
    a('s_mul_i32 s61, s61, 3072')
    a('v_add_u32 v14, s61, v10')
    a('s_waitcnt lgkmcnt(0)')
    a('s_barrier')
    for i in range(3): a(f'ds_read_b128 {v(R.T+4*i,4)}, v14 offset:{1024*i}')
    a('s_waitcnt lgkmcnt(0)')
    for r in range(12): a(f'v_add_f32 v{R.O+r}, v{R.O+r}, v{R.T+r}')
    a(f'v_mov_b32 v{R.T}, v{R.O+8}')
    a(f'v_mov_b32 v{R.T+1}, v{R.O+8}')
    a(f'v_permlane32_swap_b32 v{R.T}, v{R.T+1}')
    a(f'v_rcp_f32 v{R.T+1}, v{R.T+1}')
    for r in range(12): a(f'v_mul_f32 v{R.O+r}, v{R.O+r}, v{R.T+1}')
    for i in range(6): a(f'v_cvt_pk_bf16_f32 v{R.T+4+i}, v{R.O+2*i}, v{R.O+2*i+1}')
    a('s_mul_i32 s61, s46, 40960')
    a('s_add_u32 s61, s61, s47')
    a(f's_add_u32 s61, s61, {WS_O}')
    a('s_lshl_b32 s62, s42, 8')
    a('s_add_u32 s62, s62, s61')
    a(f'buffer_store_dwordx4 {v(R.T+4,4)}, v7, s[8:11], s62 offen')
    a('s_lshl_b32 s62, s43, 8')
    a('s_add_u32 s62, s62, s61')
    a('s_lshl_b32 s63, s41, 3')
    a('s_add_u32 s62, s62, s63')
    a('s_mov_b64 exec, 0xffffffff')
    a(f'buffer_store_dwordx2 {v(R.T+8,2)}, v5, s[8:11], s62 offen')
    a('s_mov_b64 exec, -1')
    stamp(a, 4)
    if PROF: a('s_waitcnt vmcnt(0)')
    stamp(a, 5); stamp(a, 6, True)
    stamp_flush(a, 2, 15, 8, 12)
    a.label(f'{L}_end')
    a('s_endpgm')
    return a, descriptor(L, 160, 102), f'; @launch kernel={L} grid=(256,1,1) block=(512,1,1) lds={4*AT_SLOT}'


def common_prologue(a, L, kidx):
    a('s_cmp_ge_u32 s2, 256')
    a(f's_cbranch_scc1 {L}_end')
    stamp(a, 0, True); stamp(a, 1)
    a(f's_load_dwordx2 s[4:5], s[0:1], {A_WS}')
    a(f's_load_dwordx2 s[6:7], s[0:1], {A_X}')
    a(f's_load_dwordx2 s[24:25], s[0:1], {A_OUT}')
    a('s_and_b32 s13, s2, 7')
    a('s_lshr_b32 s14, s2, 3')
    a('v_lshrrev_b32 v1, 6, v0')
    a('v_and_b32 v2, 63, v0')
    a('v_readfirstlane_b32 s12, v1')
    a('v_and_b32 v3, 31, v2')
    a('v_lshrrev_b32 v4, 5, v2')
    a('v_lshlrev_b32 v10, 4, v2')
    a('s_waitcnt lgkmcnt(0)')
    srd(a, 8, 4, WS_END)

def ksplit_reduce(a, ACC, T, sw, sth, skq, vl16, vtmp):
    a(f's_lshl_b32 s40, s{skq}, 1')
    a(f's_add_u32 s40, s40, s{sth}')
    a('s_mul_i32 s40, s40, 10240')
    a(f'v_add_u32 v{vtmp}, s40, v{vl16}')
    for j in range(2):
        for ft in range(5):
            a(f'ds_write_b128 v{vtmp}, {v(ACC+4*(2*ft+j),4)} offset:{(j*5+ft)*1024}')
    a('s_waitcnt lgkmcnt(0)')
    a('s_barrier')

def ksplit_gather(a, T, sw, vl16, vtmp):
    a(f's_mul_i32 s40, s{sw}, 5120')
    a(f'v_add_u32 v{vtmp}, s40, v{vl16}')
    for kq in range(4):
        if kq == 2: a(f'v_add_u32 v{vtmp}, 40960, v{vtmp}')
        for ft in range(5):
            a(f'ds_read_b128 {v(T+20*kq+4*ft,4)}, v{vtmp} offset:{(kq&1)*20480 + ft*1024}')
    a('s_waitcnt lgkmcnt(0)')
    for r in range(20):
        a(f'v_add_f32 v{T+r}, v{T+r}, v{T+20+r}')
        a(f'v_add_f32 v{T+40+r}, v{T+40+r}, v{T+60+r}')
    for r in range(20):
        a(f'v_add_f32 v{T+r}, v{T+r}, v{T+40+r}')

def sum_q4(a, x, t1, t2):
    a(f'v_mov_b32 v{t1}, v{x}'); a(f'v_mov_b32 v{t2}, v{x}')
    a(f'v_permlane16_swap_b32 v{t1}, v{t2}')
    a(f'v_add_f32 v{x}, v{t1}, v{t2}')
    a(f'v_mov_b32 v{t1}, v{x}'); a(f'v_mov_b32 v{t2}, v{x}')
    a(f'v_permlane32_swap_b32 v{t1}, v{t2}')
    a(f'v_add_f32 v{x}, v{t1}, v{t2}')

def k3():
    a = Asm()
    L = 'k3_kernel'
    kernel_begin(a, L)
    common_prologue(a, L, 3)
    srd(a, 16, 6, S * D * 2)
    a('s_and_b32 s20, s14, 3')
    a('s_lshr_b32 s21, s14, 2')
    a('s_lshr_b32 s22, s12, 2')
    a('s_and_b32 s23, s12, 3')
    a('s_mul_i32 s26, s21, 102400')
    a(f's_add_u32 s26, s26, {WS_WO}')
    a('s_lshl_b32 s27, s12, 10')
    a('s_add_u32 s26, s26, s27')
    for i in range(13):
        if i == 12:
            a('s_cmp_ge_u32 s12, 4')
            a(f's_cbranch_scc1 {L}_nod')
        a(f's_add_u32 m0, s27, {i*8192}')
        a(f's_add_u32 s28, s26, {i*8192}')
        a('buffer_load_dwordx4 v10, s[8:11], s28 offen lds')
    a.label(f'{L}_nod')
    BF, AF, ACC, T, XR = 16, 56, 96, 136, 216
    a('s_lshl_b32 s29, s13, 4')
    a('s_lshl_b32 s30, s20, 2')
    a('s_add_u32 s29, s29, s30')
    a('s_lshl_b32 s30, s22, 1')
    a('s_add_u32 s30, s30, s29')
    a('s_mul_i32 s30, s30, 20480')
    a('s_mul_i32 s31, s23, 5120')
    a('s_add_u32 s30, s30, s31')
    a(f's_add_u32 s30, s30, {WS_O}')
    for j in range(2):
        for i in range(5):
            a(f's_add_u32 s31, s30, {j*20480 + i*1024}')
            a(f'buffer_load_dwordx4 {v(BF+4*(5*j+i),4)}, v10, s[8:11], s31 offen')
    a('v_and_b32 v5, 15, v2')
    a('v_lshrrev_b32 v6, 4, v2')
    a('s_and_b32 s31, s12, 3')
    a('s_add_u32 s31, s31, s29')
    a('s_lshl_b32 s31, s31, 4')
    a('v_add_u32 v7, s31, v5')
    a('s_movk_i32 s32, 1280')
    a('v_mul_lo_u32 v7, v7, s32')
    a('v_lshl_add_u32 v7, v6, 3, v7')
    a('s_mul_i32 s32, s21, 160')
    for ft in range(5):
        a(f'buffer_load_dwordx2 {v(XR+2*ft,2)}, v7, s[16:19], s32 offen offset:{32*ft}')
    stamp(a, 2)
    a('s_waitcnt vmcnt(0)')
    a('s_barrier')
    stamp(a, 3)
    a('s_mul_i32 s33, s23, 5120')
    a('v_add_u32 v8, s33, v10')
    a('v_add_u32 v9, 0x10000, v8')
    def areads(i, buf):
        for ft in range(5):
            off = ft * 20480 + i * 1024
            base = 8
            if off >= 65536: off -= 65536; base = 9
            a(f'ds_read_b128 {v(AF+20*buf+4*ft,4)}, v{base} offset:{off}')
    areads(0, 0)
    for i in range(5):
        if i < 4:
            areads(i + 1, (i + 1) & 1)
            a('s_waitcnt lgkmcnt(5)')
        else:
            a('s_waitcnt lgkmcnt(0)')
        for ft in range(5):
            for j in range(2):
                acc = v(ACC + 4 * (2 * ft + j), 4)
                a(f'v_mfma_f32_16x16x32_bf16 {acc}, {v(AF+20*(i&1)+4*ft,4)}, {v(BF+4*(5*j+i),4)}, {"0" if i == 0 else acc}')
    stamp(a, 4)
    a('s_barrier')
    ksplit_reduce(a, ACC, T, 12, 22, 23, 10, 11)
    a('s_cmp_ge_u32 s12, 4')
    a(f's_cbranch_scc1 {L}_end')
    ksplit_gather(a, T, 12, 10, 11)
    for ft in range(5):
        for h2 in range(2):
            a(f'v_lshlrev_b32 v{T+20}, 16, v{XR+2*ft+h2}')
            a(f'v_and_b32 v{T+21}, 0xffff0000, v{XR+2*ft+h2}')
            a(f'v_add_f32 v{T+4*ft+2*h2}, v{T+4*ft+2*h2}, v{T+20}')
            a(f'v_add_f32 v{T+4*ft+2*h2+1}, v{T+4*ft+2*h2+1}, v{T+21}')
    a(f'v_mov_b32 v{T+20}, v{T}')
    a(f'v_mul_f32 v{T+21}, v{T}, v{T}')
    for r in range(1, 20):
        a(f'v_add_f32 v{T+20}, v{T+20}, v{T+r}')
        a(f'v_fmac_f32 v{T+21}, v{T+r}, v{T+r}')
    sum_q4(a, T+20, T+22, T+23)
    sum_q4(a, T+21, T+22, T+23)
    for i in range(10):
        a(f'v_cvt_pk_bf16_f32 v{T+24+i}, v{T+2*i}, v{T+2*i+1}')
    a('s_add_u32 s33, s29, s12')
    a('s_mul_i32 s34, s33, 20480')
    a('s_mul_i32 s35, s21, 2560')
    a('s_add_u32 s34, s34, s35')
    a(f's_add_u32 s34, s34, {WS_H}')
    a('v_lshrrev_b32 v11, 1, v6')
    a('v_lshlrev_b32 v11, 8, v11')
    a('v_lshl_add_u32 v11, v5, 4, v11')
    a('v_and_b32 v12, 1, v6')
    a('v_lshl_add_u32 v11, v12, 3, v11')
    for ft in range(5):
        a(f'buffer_store_dwordx2 {v(T+24+2*ft,2)}, v11, s[8:11], s34 offen offset:{512*ft}')
    a('s_lshl_b32 s33, s33, 10')
    a('s_lshl_b32 s35, s21, 3')
    a('s_add_u32 s33, s33, s35')
    a(f's_add_u32 s33, s33, {WS_ST2}')
    a('v_lshlrev_b32 v12, 6, v5')
    a('s_mov_b64 exec, 0xffff')
    a(f'buffer_store_dwordx2 {v(T+20,2)}, v12, s[8:11], s33 offen')
    a('s_mov_b64 exec, -1')
    stamp(a, 5)
    if PROF: a('s_waitcnt vmcnt(0)')
    stamp(a, 6, True)
    stamp_flush(a, 3, 7, 8, 12)
    a.label(f'{L}_end')
    a('s_endpgm')
    return a, descriptor(L, 232, 102), f'; @launch kernel={L} grid=(256,1,1) block=(512,1,1) lds=102400'

def k4():
    a = Asm()
    L = 'k4_kernel'
    kernel_begin(a, L)
    common_prologue(a, L, 4)
    a('s_cmp_ge_u32 s14, 28')
    a(f's_cbranch_scc1 {L}_end')
    a('s_and_b32 s13, s14, 1')
    a('s_and_b32 s15, s2, 7')
    a('s_lshl_b32 s15, s15, 1')
    a('s_add_u32 s13, s13, s15')
    a('s_lshr_b32 s14, s14, 1')
    lane_swap23(a, 5, 3, 6)
    a('s_cmp_lt_u32 s12, 4')
    a('s_cselect_b64 vcc, -1, 0')
    a('v_cndmask_b32 v6, v3, v5, vcc')
    a('v_lshrrev_b32 v7, 4, v6')
    a('s_movk_i32 s17, 20480')
    a('v_mul_lo_u32 v7, v7, s17')
    a('v_and_b32 v6, 15, v6')
    a('v_lshl_add_u32 v7, v6, 4, v7')
    a('v_lshl_add_u32 v7, v4, 8, v7')
    a('s_lshl_b32 s18, s14, 3')
    a('s_lshl_b32 s19, s12, 1')
    a('s_add_u32 s18, s18, s19')
    a('s_mul_i32 s18, s18, 20480')
    a(f's_add_u32 s18, s18, {WS_W1}')
    a('s_lshl_b32 s20, s13, 3')
    a('s_add_u32 s20, s20, s19')
    a('s_sub_u32 s20, s20, 8')
    a('s_mul_i32 s20, s20, 20480')
    a(f's_add_u32 s20, s20, {WS_H}')
    a('s_cmp_lt_u32 s12, 4')
    a('s_cselect_b32 s20, s18, s20')
    a('s_lshl_b32 s22, s12, 10')
    a('s_and_b32 s23, s12, 3')
    a('s_lshr_b32 s26, s12, 2')
    a('s_lshl_b32 s17, s23, 10')
    a('v_add_u32 v9, s17, v10')
    a('v_add_u32 v11, 0x10000, v9')
    a('s_lshl_b32 s17, s26, 11')
    a('s_add_u32 s17, s17, 4096')
    a('v_add_u32 v12, s17, v10')
    a('v_add_u32 v13, 0x10000, v12')
    ST, CS, B1 = 96, 128, 144
    a('s_lshl_b32 s27, s13, 7')
    a('s_lshl_b32 s28, s26, 6')
    a('s_add_u32 s27, s27, s28')
    a('v_add_u32 v14, s27, v3')
    a('v_lshlrev_b32 v14, 6, v14')
    a(f's_mov_b32 s28, {WS_ST2}')
    for j in range(2):
        for q in range(4):
            a(f'buffer_load_dwordx4 {v(ST+16*j+4*q,4)}, v14, s[8:11], s28 offen offset:{j*2048 + 16*q}')
    a('s_lshl_b32 s29, s14, 7')
    a('s_lshl_b32 s30, s23, 5')
    a('s_add_u32 s29, s29, s30')
    a('s_lshl_b32 s29, s29, 2')
    a('v_lshlrev_b32 v15, 5, v4')
    a(f's_add_u32 s30, s29, {WS_CS1}')
    a(f's_add_u32 s31, s29, {WS_B1F}')
    for q, off in enumerate((0, 16, 64, 80)):
        a(f'buffer_load_dwordx4 {v(CS+4*q,4)}, v15, s[8:11], s30 offen offset:{off}')
        a(f'buffer_load_dwordx4 {v(B1+4*q,4)}, v15, s[8:11], s31 offen offset:{off}')
    ACC, FA, FB = 32, 16, 64
    ring_gemm(a, 10, ACC, FA, FB, 7, (9, 11), (12, 13), 8, 20, 22, False, 'f1', pre=16)
    for j in range(2):
        b = ST + 16 * j
        for q in range(1, 8):
            a(f'v_add_f32 v{b}, v{b}, v{b+2*q}')
            a(f'v_add_f32 v{b+1}, v{b+1}, v{b+2*q+1}')
        a(f'v_mul_f32 v{b}, {f2hex(1.0/640)}, v{b}')
        a(f'v_mul_f32 v{b+1}, {f2hex(1.0/640)}, v{b+1}')
        a(f'v_fma_f32 v{b+1}, -v{b}, v{b}, v{b+1}')
        a(f'v_add_f32 v{b+1}, 0x3727c5ac, v{b+1}')
        a(f'v_rsq_f32 v{b+1}, v{b+1}')
        a(f'v_mul_f32 v{b}, v{b}, v{b+1}')
    for j in range(2):
        b = ST + 16 * j
        for r in range(16):
            a(f'v_fma_f32 v{b+2}, -v{b}, v{CS+r}, v{B1+r}')
            a(f'v_fma_f32 v{ACC+16*j+r}, v{b+1}, v{ACC+16*j+r}, v{b+2}')
            a(f'v_max_f32 v{ACC+16*j+r}, 0, v{ACC+16*j+r}')
            a(f'v_mul_f32 v{ACC+16*j+r}, v{ACC+16*j+r}, v{ACC+16*j+r}')
    for r in range(16):
        a(f'v_cvt_pk_bf16_f32 v{64+r}, v{ACC+2*r}, v{ACC+2*r+1}')
    a('s_lshl_b32 s17, s14, 2')
    a('s_add_u32 s17, s17, s23')
    a('s_cmp_ge_u32 s17, 54')
    a(f's_cbranch_scc1 {L}_end')
    a('v_lshrrev_b32 v13, 4, v3')
    a('s_mov_b32 s18, 55296')
    a('v_mul_lo_u32 v13, v13, s18')
    a('v_and_b32 v14, 15, v3')
    a('v_lshl_add_u32 v13, v14, 4, v13')
    a('v_lshl_add_u32 v13, v4, 8, v13')
    a('s_lshr_b32 s18, s27, 4')
    a('s_mul_i32 s18, s18, 55296')
    a('s_lshl_b32 s17, s17, 10')
    a('s_add_u32 s17, s17, s18')
    a(f's_add_u32 s17, s17, {WS_G}')
    for j in range(2):
        a(f'buffer_store_dwordx4 {v(64+8*j,4)}, v13, s[8:11], s17 offen')
        a(f'buffer_store_dwordx4 {v(68+8*j,4)}, v13, s[8:11], s17 offen offset:512')
        if j == 0: a(f's_add_u32 s17, s17, {2*55296}')
    stamp(a, 5)
    if PROF: a('s_waitcnt vmcnt(0)')
    stamp(a, 6, True)
    stamp_flush(a, 4, 7, 8, 12)
    a.label(f'{L}_end')
    a('s_endpgm')
    return a, descriptor(L, 160, 102), f'; @launch kernel={L} grid=(256,1,1) block=(512,1,1) lds=131072'

F2_KS = (14, 14, 13, 13)
F2_K0 = (0, 14, 28, 41)
def k5():
    a = Asm()
    L = 'k5_kernel'
    kernel_begin(a, L)
    common_prologue(a, L, 5)
    srd(a, 16, 24, S * D * 2)
    a('s_and_b32 s20, s14, 3')
    a('s_lshr_b32 s21, s14, 2')
    a('s_lshr_b32 s22, s12, 2')
    a('s_and_b32 s23, s12, 3')
    a('s_mul_i32 s26, s23, 14')
    a('s_cmp_eq_u32 s23, 3')
    a('s_cselect_b32 s27, 1, 0')
    a('s_sub_u32 s26, s26, s27')
    a('s_mul_i32 s28, s21, 276480')
    a(f's_add_u32 s28, s28, {WS_W2}')
    a('s_add_u32 s29, s26, s22')
    a('s_lshl_b32 s29, s29, 10')
    a('s_add_u32 s28, s28, s29')
    a('s_lshl_b32 s29, s23, 1')
    a('s_add_u32 s29, s29, s22')
    a('s_mul_i32 s29, s29, 5120')
    NST = 7
    issued = []
    def dma_stage(st):
        slot = st % 3
        for ft in range(5):
            a(f's_add_u32 m0, s29, {slot*40960 + ft*1024}')
            a(f's_add_u32 s30, s28, {st*2048 + ft*55296}')
            a('buffer_load_dwordx4 v10, s[8:11], s30 offen lds')
            issued.append(('w', st))
    BF, ACC, AF, T = 16, 128, 168, 16
    dma_stage(0)
    a('s_lshl_b32 s31, s13, 4')
    a('s_lshl_b32 s32, s20, 2')
    a('s_add_u32 s31, s31, s32')
    a('s_lshl_b32 s32, s22, 1')
    a('s_add_u32 s32, s32, s31')
    a('s_mul_i32 s32, s32, 55296')
    a('s_lshl_b32 s33, s26, 10')
    a('s_add_u32 s32, s32, s33')
    a(f's_add_u32 s32, s32, {WS_G}')
    def bload(i):
        for j in range(2):
            a(f's_add_u32 s33, s32, {j*55296 + i*1024}')
            a(f'buffer_load_dwordx4 {v(BF+8*i+4*j,4)}, v10, s[8:11], s33 offen')
            issued.append(('b', i))
    for i in range(4): bload(i)
    dma_stage(1)
    for i in range(4, 8): bload(i)
    dma_stage(2)
    for i in range(8, 14): bload(i)
    def wait_for(pred):
        n = 0
        for x in reversed(issued):
            if pred(x): break
            n += 1
        a(f's_waitcnt vmcnt({min(n, 63)})')
    a('s_mul_i32 s34, s23, 10240')
    a('v_add_u32 v8, s34, v10')
    a('v_add_u32 v9, 0x10000, v8')
    def areads(st, i, buf):
        for ft in range(5):
            off = (st % 3) * 40960 + i * 5120 + ft * 1024
            base = 8
            if off >= 65536: off -= 65536; base = 9
            a(f'ds_read_b128 {v(AF+20*buf+4*ft,4)}, v{base} offset:{off}')
    stamp(a, 2)
    for st in range(NST):
        wait_for(lambda x: x == ('w', st) or x == ('b', min(2*st+1, 13)))
        a('s_barrier')
        if st == 0: stamp(a, 3)
        if st >= 1 and st + 2 < NST: dma_stage(st + 2)
        areads(st, 0, 0)
        areads(st, 1, 1)
        for i in range(2):
            ks = 2 * st + i
            a(f's_waitcnt lgkmcnt({5 if i == 0 else 0})')
            last = (ks == 13)
            if last:
                a('s_cmp_ge_u32 s23, 2')
                a(f's_cbranch_scc1 {L}_skip')
            for ft in range(5):
                for j in range(2):
                    acc = v(ACC + 4 * (2 * ft + j), 4)
                    a(f'v_mfma_f32_16x16x32_bf16 {acc}, {v(AF+20*i+4*ft,4)}, {v(BF+8*ks+4*j,4)}, {"0" if ks == 0 else acc}')
            if last: a.label(f'{L}_skip')
    stamp(a, 4)
    a('s_nop 7')
    a('s_barrier')
    ksplit_reduce(a, ACC, T, 12, 22, 23, 10, 11)
    a('s_cmp_ge_u32 s12, 4')
    a(f's_cbranch_scc1 {L}_end')
    a('v_and_b32 v5, 15, v2')
    a('v_lshrrev_b32 v6, 4, v2')
    HR, BB = 100, 112
    a('s_add_u32 s33, s31, s12')
    a('s_mul_i32 s34, s33, 20480')
    a('s_mul_i32 s35, s21, 2560')
    a('s_add_u32 s34, s34, s35')
    a(f's_add_u32 s34, s34, {WS_H}')
    a('v_lshrrev_b32 v11, 1, v6')
    a('v_lshlrev_b32 v11, 8, v11')
    a('v_lshl_add_u32 v11, v5, 4, v11')
    a('v_and_b32 v12, 1, v6')
    a('v_lshl_add_u32 v11, v12, 3, v11')
    for ft in range(5):
        a(f'buffer_load_dwordx2 {v(HR+2*ft,2)}, v11, s[8:11], s34 offen offset:{512*ft}')
    a('s_mul_i32 s35, s21, 320')
    a(f's_add_u32 s35, s35, {WS_B2F}')
    a('v_lshlrev_b32 v12, 4, v6')
    for ft in range(5):
        a(f'buffer_load_dwordx4 {v(BB+4*ft,4)}, v12, s[8:11], s35 offen offset:{64*ft}')
    ksplit_gather(a, T, 12, 10, 13)
    a('s_waitcnt vmcnt(0)')
    for ft in range(5):
        for h2 in range(2):
            a(f'v_lshlrev_b32 v{T+20}, 16, v{HR+2*ft+h2}')
            a(f'v_and_b32 v{T+21}, 0xffff0000, v{HR+2*ft+h2}')
            a(f'v_add_f32 v{T+4*ft+2*h2}, v{T+4*ft+2*h2}, v{BB+4*ft+2*h2}')
            a(f'v_add_f32 v{T+4*ft+2*h2+1}, v{T+4*ft+2*h2+1}, v{BB+4*ft+2*h2+1}')
            a(f'v_add_f32 v{T+4*ft+2*h2}, v{T+4*ft+2*h2}, v{T+20}')
            a(f'v_add_f32 v{T+4*ft+2*h2+1}, v{T+4*ft+2*h2+1}, v{T+21}')
    for i in range(10):
        a(f'v_cvt_pk_bf16_f32 v{T+24+i}, v{T+2*i}, v{T+2*i+1}')
    a('s_lshl_b32 s33, s33, 4')
    a('v_add_u32 v7, s33, v5')
    a('s_movk_i32 s34, 1280')
    a('v_mul_lo_u32 v7, v7, s34')
    a('v_lshl_add_u32 v7, v6, 3, v7')
    a('s_mul_i32 s34, s21, 160')
    for ft in range(5):
        a(f'buffer_store_dwordx2 {v(T+24+2*ft,2)}, v7, s[16:19], s34 offen offset:{32*ft}')
    stamp(a, 5)
    if PROF: a('s_waitcnt vmcnt(0)')
    stamp(a, 6, True)
    stamp_flush(a, 5, 7, 8, 12)
    a.label(f'{L}_end')
    a('s_endpgm')
    return a, descriptor(L, 232, 102), f'; @launch kernel={L} grid=(256,1,1) block=(512,1,1) lds=122880'

import struct
def f2hex(x):
    return '0x%08x' % struct.unpack('<I', struct.pack('<f', x))[0]

HEADER = """; Kernarg layout (88 bytes): x, wqkv, wo, B_x(unused), w1, b1, w2, b2, out, debug, ws
"""

def build(kernels):
    txt = HEADER
    bodies = []; descs = []
    for k in kernels:
        a, d, launch = k()
        txt += launch + '\n'
        lines, probs = fix_hazards(a.lines)
        if probs:
            for p in probs: print('HAZARD on branch edge:', p, file=sys.stderr)
        for p in check_async(lines)[:20]: print('ASYNC:', p, file=sys.stderr)
        bodies.append(render(lines)); descs.append(d)
    txt += '.amdgcn_target "amdgcn-amd-amdhsa--gfx950"\n.text\n'
    txt += '\n'.join(bodies)
    txt += '.section .rodata,"a"\n.p2align 6\n' + '\n.p2align 6\n'.join(descs)
    return txt

if __name__ == '__main__':
    if 'prof' in sys.argv: PROF = True
    for x in sys.argv[2:]:
        if x.startswith('x:'): EXP.add(x[2:])
    ks = [k0, k1, k2, k3, k4, k5]
    out = sys.argv[1] if len(sys.argv) > 1 else 'test.s'
    open(out, 'w').write(build(ks))
    print('wrote', out)
```

```python
import sys
sys.path.insert(0, 'dev')
import gen, gen2
from gen import *
from gen2 import lab, stores2, attn_units, wo_dma, WS_XT, SG, SJ, SPURE, LDS_WO, SPIN_MAX
from asmlib import *

class VM:
    def __init__(self): self.ops = []
    def issue(self, tag): self.ops.append(tag)
    def count_after(self, pred):
        n = 0
        for x in reversed(self.ops):
            if pred(x): return n
            n += 1
        raise Exception('no op matches')
    def wait(self, a, pred, extra=''):
        a(f's_waitcnt vmcnt({min(self.count_after(pred), 63)}){extra}')

XR0 = 136
W1A, W1B = 152, 16
def w1reg(s): return W1A + 4 * s if s < 26 else W1B + 4 * (s - 26)
SH, SR = 36, 37
S_OOB = 38
S_DONE = 39
FB_LDS = 159744
S_W1 = 98
V_W1 = 1

def flag_store(a, p, vt):
    g_, j_ = (SR, SH) if p == 0 else (SG, SJ)
    a(f's_lshl_b32 s40, s{g_}, 7')
    a(f's_lshl_b32 s41, s{j_}, 2')
    a('s_add_u32 s40, s40, s41')
    a(f's_add_u32 s40, s40, {WS_FLAG + p*1024}')
    a(f'v_mov_b32 v{vt}, 0')
    a(f'v_mov_b32 v{vt+1}, 1')
    a('s_mov_b64 exec, 1')
    stores2(a, [f'buffer_store_dword v{vt+1}, v{vt}, s[8:11], s40 offen'])
    a('s_mov_b64 exec, -1')

def sync(a, p_pub, p_wait, smask_setup, prefetch, vt=14, drained=False):
    if p_pub is not None and not drained:
        a('s_waitcnt vmcnt(0)')
        a('s_barrier')
    l0, l1, lp, ld, l3 = lab('sy'), lab('sy'), lab('sy'), lab('sy'), lab('sy')
    a('s_cmp_lg_u32 s12, 0')
    a(f's_cbranch_scc1 {l0}')
    if p_pub is not None: flag_store(a, p_pub, vt)
    smask_setup()
    a(f's_lshl_b32 s40, s{SG}, 7')
    a(f's_add_u32 s40, s40, {WS_FLAG + p_wait*1024}')
    a(f'v_lshlrev_b32 v{vt}, 2, v2')
    a('s_mov_b64 exec, s[44:45]')
    a('s_mov_b32 s41, 0')
    a.label(lp)
    a(f'buffer_load_dword v{vt+1}, v{vt}, s[8:11], s40 offen sc1')
    a('s_add_u32 s41, s41, 1')
    a('s_waitcnt vmcnt(0)')
    a(f'v_cmp_eq_u32 vcc, 0, v{vt+1}')
    a(f's_cbranch_vccz {ld}')
    a(f's_cmp_lt_u32 s41, {SPIN_MAX}')
    a(f's_cbranch_scc1 {lp}')
    a.label(ld)
    a('s_mov_b64 exec, -1')
    a(f's_cmp_eq_u32 s{SPURE}, 1')
    a(f's_cbranch_scc1 {l3}')
    a('buffer_inv sc1')
    a('s_waitcnt vmcnt(0)')
    a.label(l3)
    a('s_barrier')
    prefetch()
    a(f's_branch {l1}')
    a.label(l0)
    prefetch()
    a('s_barrier')
    a.label(l1)

def late_init(a, vm, L):
    merged = 'merge' in gen.EXP
    if not merged:
        a(f's_lshl_b32 s40, s{SG}, 7')
        a(f's_lshl_b32 s41, s{SJ}, 2')
        a('s_add_u32 s40, s40, s41')
        a(f's_add_u32 s40, s40, {WS_XT}')
        a('s_cmp_eq_u32 s12, 0')
        a('s_cselect_b32 s40, s40, 0x7ff00000')
        a('v_mov_b32 v14, 0')
        a(f'v_mov_b32 v15, s{SPURE}')
        a('s_mov_b64 exec, 1')
        a('buffer_store_dword v15, v14, s[8:11], s40 offen sc1')
        a('s_mov_b64 exec, -1')
        vm.issue('xts')

def phase_attn(a, L):
    R = AR
    attn_ones(a)
    a(f's_lshr_b32 s62, s{SJ}, 2')
    a('s_mul_i32 s62, s62, 102400')
    a(f's_add_u32 s62, s62, {WS_WO}')
    a('s_lshl_b32 s61, s12, 10')
    a('s_add_u32 s62, s62, s61')
    a('s_cmp_lt_u32 s12, 4')
    a(f's_mov_b32 s63, {11*8192}')
    a(f's_cselect_b32 s63, {12*8192}, s63')
    a('s_add_u32 s63, s63, s62')
    a(f's_add_u32 s61, s61, {LDS_WO}')
    for r in range(32): a(f'v_mov_b32 v{R.O+r}, 0')
    for r in range(16): a(f'v_mov_b32 v{R.P+r}, 0')
    for r in range(16): a(f'v_mov_b32 v{R.VV+r}, 0')
    vm = VM()
    a(f's_mov_b32 s{S_DONE}, 0')
    a(f'v_mov_b32 v14, {FB_LDS}')
    a('v_mov_b32 v15, 0')
    a('ds_write_b32 v14, v15')
    lane_swap23(a, 14, 3, 15)
    a('v_lshrrev_b32 v15, 4, v14')
    a('s_movk_i32 s40, 20480')
    a('v_mul_lo_u32 v15, v15, s40')
    a('v_and_b32 v14, 15, v14')
    a('v_lshl_add_u32 v15, v14, 4, v15')
    a(f'v_lshl_add_u32 v{V_W1}, v4, 8, v15')
    a(f's_lshr_b32 s40, s{SJ}, 1')
    a('s_lshl_b32 s40, s40, 2')
    a('s_and_b32 s41, s12, 3')
    a('s_add_u32 s40, s40, s41')
    a('s_mul_i32 s41, s40, 40960')
    a(f's_add_u32 s41, s41, {WS_W1}')
    a('s_cmp_lt_u32 s40, 54')
    a(f's_cselect_b32 s{S_W1}, s41, 0x7ff00000')
    a(f's_mov_b32 s{S_OOB}, 0x7ff00000')
    lt1, lt2 = lab('tc'), lab('tc')
    a('v_lshlrev_b32 v148, 7, v2')
    a('s_cmp_ge_u32 s12, 4')
    a(f's_cbranch_scc1 {lt1}')
    a(f's_mul_i32 s50, s{SG}, {16*20480}')
    a(f's_mul_i32 s40, s{SJ}, 10240')
    a('s_add_u32 s50, s50, s40')
    a('s_and_b32 s40, s12, 1')
    a('s_mul_i32 s40, s40, 5120')
    a('s_add_u32 s50, s50, s40')
    a('s_lshr_b32 s40, s12, 1')
    a(f's_mul_i32 s40, s40, {WS_H - WS_O}')
    a('s_add_u32 s50, s50, s40')
    a(f's_add_u32 s50, s50, {WS_O}')
    a('v_add_u32 v148, s50, v148')
    a(f's_lshr_b32 s40, s{SJ}, 1')
    a('s_lshl_b32 s40, s40, 14')
    a(f's_lshl_b32 s41, s{SG}, 11')
    a('s_add_u32 s40, s40, s41')
    a(f's_and_b32 s41, s{SJ}, 1')
    a('s_lshl_b32 s41, s41, 10')
    a('s_add_u32 s40, s40, s41')
    a(f's_add_u32 s40, s40, {WS_ST2 - 40*128}')
    a('s_cmp_eq_u32 s12, 2')
    a('s_cselect_b32 s40, s40, 0x7ff00000')
    a('v_lshlrev_b32 v149, 7, v2')
    a('v_add_u32 v149, s40, v149')
    a('v_mov_b32 v14, 0x7ff00000')
    a('v_cmp_gt_u32 vcc, 48, v2')
    a('v_cndmask_b32 v149, v14, v149, vcc')
    a('v_cmp_gt_u32 vcc, 40, v2')
    a('v_cndmask_b32 v148, v149, v148, vcc')
    a(f's_branch {lt2}')
    a.label(lt1)
    a('s_sub_u32 s40, s12, 4')
    a('s_lshl_b32 s40, s40, 5')
    a(f's_add_u32 s40, s40, s{SJ}')
    a('s_mul_i32 s50, s40, 20480')
    a(f's_add_u32 s50, s50, {WS_W1 + 13312}')
    a('s_cmp_lt_u32 s40, 108')
    a('s_cselect_b32 s50, s50, 0x7ff00000')
    a('v_add_u32 v148, s50, v148')
    a('v_mov_b32 v14, 0x7ff00000')
    a('v_cmp_gt_u32 vcc, 56, v2')
    a('v_cndmask_b32 v148, v14, v148, vcc')
    a.label(lt2)
    a('v_lshlrev_b32 v147, 7, v2')
    a('s_lshl_b32 s40, s12, 13')
    a(f's_mul_i32 s51, s{SG}, {16*55296}')
    a(f's_mul_i32 s41, s{SJ}, 27648')
    a('s_add_u32 s51, s51, s41')
    a('s_add_u32 s51, s51, s40')
    a(f's_add_u32 s51, s51, {WS_G}')
    a('s_cmp_ge_u32 s12, 4')
    a('s_cselect_b32 s51, 0x7ff00000, s51')
    a(f's_and_b32 s40, s{SJ}, 3')
    a('s_lshl_b32 s40, s40, 2')
    a(f's_lshl_b32 s41, s{SG}, 4')
    a('s_add_u32 s40, s40, s41')
    a('s_and_b32 s41, s12, 3')
    a('s_add_u32 s40, s40, s41')
    a('s_lshl_b32 s40, s40, 4')
    a('v_and_b32 v0, 15, v2')
    a('v_add_u32 v0, s40, v0')
    a('s_movk_i32 s41, 1280')
    a('v_mul_lo_u32 v0, v0, s41')
    a('v_lshrrev_b32 v14, 4, v2')
    a('v_lshl_add_u32 v0, v14, 3, v0')
    a(f's_lshr_b32 s57, s{SJ}, 2')
    a('s_mul_i32 s57, s57, 160')
    a('s_lshr_b32 s40, s12, 2')
    a('s_mul_i32 s40, s40, 96')
    a('s_add_u32 s57, s57, s40')
    if 'earlyinit' in gen.EXP: late_init(a, VM(), L)
    a('s_waitcnt vmcnt(0)')
    for st in (1, 2):
        attn_dma(a, st, 8); vm.issue(('kv', st)); vm.issue(('kv', st))
    for x in wo_dma(): a(x)
    vm.issue('wo')
    if 'earlyinit' not in gen.EXP: late_init(a, vm, L)
    if 'notlb' not in gen.EXP:
        a('v_lshlrev_b32 v149, 16, v2')
        a('s_lshl_b32 s40, s12, 22')
        a('buffer_load_dword v149, v149, s[8:11], s40 offen')
        a('v_lshlrev_b32 v148, 16, v2')
        a('buffer_load_dword v148, v148, s[76:79], 0 offen')
    a('v_cmp_gt_u32 vcc, 32, v2')
    for r in range(4): a(f'v_cndmask_b32 v{R.QC+r}, 0, v{R.QC+r}, vcc')
    a('s_waitcnt lgkmcnt(0)')
    a('s_barrier')
    a(f'ds_read_b128 {v(R.KA,4)}, v11 offset:0')
    a(f'ds_read_b64 {v(R.KC,2)}, v12 offset:0')
    a('s_waitcnt lgkmcnt(0)')
    a(f'v_mfma_f32_32x32x16_bf16 {v(R.S,16)}, {v(R.KA,4)}, {v(R.QA,4)}, 0')
    a(f'v_mfma_f32_32x32x8bf16_1k {v(R.S,16)}, {v(R.KC,2)}, {v(R.QC,2)}, {v(R.S,16)}')
    stamp(a, 7)
    wnext = [0]
    def w1load():
        s_ = wnext[0]; wnext[0] += 1
        return [f's_add_u32 s40, s{S_W1}, {s_*512}', f'buffer_load_dwordx4 {v(w1reg(s_),4)}, v{V_W1}, s[8:11], s40 offen']
    plan = {}
    waits = {}
    nW = {2: 3, 3: 3, 4: 3, 5: 3, 6: 4, 7: 4, 8: 3, 9: 3}
    if 'now1a' in gen.EXP: nW = {}
    def masked(sreg, cond_lo, cond_hi, vreg):
        return [f's_sub_u32 s40, s12, {cond_lo}', f's_cmp_lt_u32 s40, {cond_hi - cond_lo}', f's_cselect_b32 s40, {sreg}, s{S_OOB}',
                f'buffer_load_dword v149, v{vreg}, s[8:11], s40 offen']
    for g in range(16):
        ex = {}
        k = nW.get(g, 0)
        slots = sorted([(0, 20), (1, 8), (1, 20), (2, 20)][:k])
        if g <= 11:
            ex.setdefault(0, {})[8] = wo_dma(); vm.issue('wo')
        if g == 12:
            ex.setdefault(0, {})[8] = [f's_lshl_b32 s40, s{SG}, 7', f's_add_u32 s40, s40, {WS_XT}', 'v_lshlrev_b32 v150, 2, v3',
                                       'buffer_load_dword v150, v150, s[8:11], s40 offen sc1']
            vm.issue('xt')
        tl = None
        if g == 10: tl = masked('0', 4, 6, 148)
        if g == 11: tl = masked('0', 6, 8, 148)
        if g == 12: tl = masked('0', 0, 4, 148)
        if g == 13: tl = ['buffer_load_dword v149, v147, s[8:11], s51 offen']
        if tl and 'notouch' not in gen.EXP:
            ex.setdefault(1, {})[14] = tl; vm.issue('touch')
        post = []
        pre_ops = []
        for (u, pos) in slots:
            if u < 2: ex.setdefault(u, {})[pos] = w1load(); vm.issue('w1')
            else: post.append((u, pos))
        if g < 15: waits[g] = vm.count_after(lambda x: x == ('kv', g + 1))
        for (u, pos) in post:
            ex.setdefault(u, {})[pos] = w1load(); vm.issue('w1')
        if g <= 12:
            vm.issue(('kv', g + 3)); vm.issue(('kv', g + 3))
        if g == 13:
            ex.setdefault(3, {})[20] = [f'buffer_load_dwordx2 {v(XR0+2*i,2)}, v0, s[72:75], s57 offen offset:{32*i}' for i in range(3)]
            for i in range(3): vm.issue('xr')
        plan[g] = ex
    assert wnext[0] == 26 or 'now1a' in gen.EXP, wnext
    def run(stages_g):
        loc = {g % 4: g for g in stages_g}
        def prio(st, u):
            g = loc[st]
            if g == 15: return {0: 2, 1: 1, 2: 1, 3: 0}[u]
            if g == 14 and u >= 2: return 3
            return {2: 3, 3: 2, 0: 1, 1: 0}[u]
        return attn_units(a, 8, [(g % 4, g == 15) for g in stages_g], lambda st: loc[st] <= 12,
                          lambda st, u: plan[loc[st]].get(u, {}), lambda st: waits[loc[st]], prio)
    for b_ in range(3): run([4*b_ + i for i in range(4)])
    m1, m2, m3, m4, _ = run([12, 13, 14, 15])
    a(m3(1, 1, 1)); a(m4(1, 1, 1))
    a('s_setprio 0')
    stamp(a, 3)
    lp, ld = lab('xt'), lab('xt')
    a('s_mov_b32 s41, 0')
    a('v_cmp_eq_u32 vcc, 0, v150')
    a(f's_cbranch_vccz {ld}')
    a.label(lp)
    a(f's_lshl_b32 s40, s{SG}, 7')
    a(f's_add_u32 s40, s40, {WS_XT}')
    a('v_lshlrev_b32 v14, 2, v3')
    a('buffer_load_dword v150, v14, s[8:11], s40 offen sc1')
    a('s_add_u32 s41, s41, 1')
    a('s_waitcnt vmcnt(0)')
    a('v_cmp_eq_u32 vcc, 0, v150')
    a(f's_cbranch_vccz {ld}')
    a(f's_cmp_lt_u32 s41, {SPIN_MAX}')
    a(f's_cbranch_scc1 {lp}')
    a.label(ld)
    a(f'v_cmp_ne_u32 vcc, s{SPURE}, v150')
    a('s_cmp_eq_u64 vcc, 0')
    a(f's_cselect_b32 s{SPURE}, 1, 0')
    if 'slow' in gen.EXP: a(f's_mov_b32 s{SPURE}, 0')
    TT = R.S
    a.label('.Lat_combine')
    a('s_cmp_eq_u32 s46, 0')
    a('s_cbranch_scc1 .Lat_noswap')
    a('s_nop 7')
    for r in range(12): a(f'v_swap_b32 v{R.O+r}, v{R.O+16+r}')
    a.label('.Lat_noswap')
    a('s_nop 7')
    a(f's_mul_i32 s40, s12, 3072')
    a('v_add_u32 v14, s40, v10')
    for i in range(3): a(f'ds_write_b128 v14, {v(R.O+16+4*i,4)} offset:{1024*i}')
    a('s_xor_b32 s40, s12, 4')
    a('s_mul_i32 s40, s40, 3072')
    a('v_add_u32 v14, s40, v10')
    a('s_waitcnt lgkmcnt(0)')
    a('s_barrier')
    for i in range(3): a(f'ds_read_b128 {v(TT+4*i,4)}, v14 offset:{1024*i}')
    a('s_waitcnt lgkmcnt(0)')
    for r in range(12): a(f'v_add_f32 v{R.O+r}, v{R.O+r}, v{TT+r}')
    a(f'v_mov_b32 v{TT}, v{R.O+8}')
    a(f'v_mov_b32 v{TT+1}, v{R.O+8}')
    a(f'v_permlane32_swap_b32 v{TT}, v{TT+1}')
    a(f'v_mov_b32 v{TT+2}, 0')
    for r in range(12): a(f'v_fmac_f32 v{TT+2}, 0, v{R.O+r}')
    a('s_mov_b32 s40, 0x1f800000')
    a(f'v_cmp_nle_f32 vcc, s40, v{TT+1}')
    a('s_mov_b32 s40, 0x5f800000')
    a(f'v_cmp_nge_f32 s[44:45], s40, v{TT+1}')
    a('s_or_b64 s[44:45], s[44:45], vcc')
    a(f'v_cmp_u_f32 vcc, v{TT+2}, v{TT+2}')
    a('s_or_b64 s[44:45], s[44:45], vcc')
    if 'forcefb' in gen.EXP: a('s_mov_b64 s[44:45], -1')
    lok = lab('ok')
    a('s_cmp_eq_u64 s[44:45], 0')
    a(f's_cbranch_scc1 {lok}')
    a(f'v_mov_b32 v{TT+2}, {FB_LDS}')
    a(f'v_mov_b32 v{TT+3}, 1')
    a(f'ds_write_b32 v{TT+2}, v{TT+3}')
    a.label(lok)
    a(f'v_rcp_f32 v{TT+1}, v{TT+1}')
    for r in range(12): a(f'v_mul_f32 v{R.O+r}, v{R.O+r}, v{TT+1}')
    for i in range(6): a(f'v_cvt_pk_bf16_f32 v{TT+4+i}, v{R.O+2*i}, v{R.O+2*i+1}')
    a('s_mul_i32 s61, s46, 40960')
    a('s_add_u32 s61, s61, s47')
    a(f's_add_u32 s61, s61, {WS_O}')
    a('s_lshl_b32 s62, s42, 8')
    a('s_add_u32 s62, s62, s61')
    a('s_lshl_b32 s63, s43, 8')
    a('s_add_u32 s63, s63, s61')
    a(f's_and_b32 s61, s{SH}, 1')
    a('s_lshl_b32 s61, s61, 3')
    a('s_add_u32 s63, s63, s61')
    stores2(a, [f'buffer_store_dwordx4 {v(TT+4,4)}, v7, s[8:11], s62 offen',
                's_mov_b64 exec, 0xffffffff',
                f'buffer_store_dwordx2 {v(TT+8,2)}, v5, s[8:11], s63 offen',
                's_mov_b64 exec, -1'])
    stamp(a, 4)
    a('s_waitcnt vmcnt(0) lgkmcnt(0)')
    a('s_barrier')
    a(f'v_mov_b32 v14, {FB_LDS}')
    a('ds_read_b32 v15, v14')
    a('s_waitcnt lgkmcnt(0)')
    a('v_readfirstlane_b32 s40, v15')
    a(f's_sub_u32 s40, s40, s{S_DONE}')
    a('s_cmp_eq_u32 s40, 1')
    a('s_cbranch_scc1 .Lat_fallback')
    a.label('.Lat_done')

def attn_fallback(a):
    R = AR
    SL = 2 * AT_SLOT
    S_, M0_, M1_ = R.S, R.S + 16, R.S + 17
    a.label('.Lat_fallback')
    a(f's_mov_b32 s{S_DONE}, 1')
    def load_stage():
        a('s_barrier')
        for x in attn_dma_parts(2, 8)[0] + attn_dma_parts(2, 8)[1]: a(x)
        a('s_waitcnt vmcnt(0)')
        a('s_barrier')
    def rewind():
        a(f's_sub_u32 s52, s52, {16*5120}')
        a(f's_sub_u32 s53, s53, {16*163840}')
    def scores(t, j):
        a(f'v_mfma_f32_32x32x16_bf16 {v(S_,16)}, {v(R.KA,4)}, {v(R.QA+4*j,4)}, 0')
        a(f'v_mfma_f32_32x32x8bf16_1k {v(S_,16)}, {v(R.KC,2)}, {v(R.QC+2*j,2)}, {v(S_,16)}')
    def kread(t):
        a(f'ds_read_b128 {v(R.KA,4)}, v11 offset:{SL + t*1024}')
        a(f'ds_read_b64 {v(R.KC,2)}, v12 offset:{SL + t*512}')
    rewind()
    a(f'v_mov_b32 v{M0_}, 0xff7fffff'); a(f'v_mov_b32 v{M1_}, 0xff7fffff')
    a('s_mov_b32 s60, 16')
    a.label('.Lat_fb1')
    load_stage()
    for t in range(2):
        kread(t)
        a('s_waitcnt lgkmcnt(0)')
        for j in range(2):
            scores(t, j)
            m = M0_ + j
            for r in range(0, 16, 2): a(f'v_max3_f32 v{m}, v{S_+r}, v{S_+r+1}, v{m}')
    a('s_sub_u32 s60, s60, 1')
    a('s_cmp_lg_u32 s60, 0')
    a('s_cbranch_scc1 .Lat_fb1')
    for j in range(2):
        m = M0_ + j
        a(f'v_mov_b32 v{S_}, v{m}'); a(f'v_mov_b32 v{S_+1}, v{m}')
        a(f'v_permlane32_swap_b32 v{S_}, v{S_+1}')
        a(f'v_max_f32 v{m}, v{S_}, v{S_+1}')
    a('s_barrier')
    a('s_lshl_b32 s40, s12, 9')
    a('v_lshlrev_b32 v14, 3, v2')
    a('v_add_u32 v14, s40, v14')
    a(f'ds_write_b64 v14, {v(M0_,2)}')
    a('s_xor_b32 s40, s12, 4')
    a('s_lshl_b32 s40, s40, 9')
    a('v_lshlrev_b32 v14, 3, v2')
    a('v_add_u32 v14, s40, v14')
    a('s_waitcnt lgkmcnt(0)')
    a('s_barrier')
    a(f'ds_read_b64 {v(S_,2)}, v14')
    a('s_waitcnt lgkmcnt(0)')
    a(f'v_max_f32 v{M0_}, v{M0_}, v{S_}')
    a(f'v_max_f32 v{M1_}, v{M1_}, v{S_+1}')
    rewind()
    for r in range(32): a(f'v_mov_b32 v{R.O+r}, 0')
    a('s_mov_b32 s60, 16')
    a.label('.Lat_fb2')
    load_stage()
    for t in range(2):
        kread(t)
        a(f'ds_read_b128 {v(R.VV,4)}, v13 offset:{SL + t*2048}')
        a(f'ds_read_b128 {v(R.VV+4,4)}, v13 offset:{SL + t*2048 + 1024}')
        a('s_waitcnt lgkmcnt(0)')
        for j in range(2):
            scores(t, j)
            for r in range(16): a(f'v_sub_f32 v{S_+r}, v{S_+r}, v{M0_+j}')
            for r in range(16): a(f'v_exp_f32 v{S_+r}, v{S_+r}')
            for i in range(8): a(f'v_cvt_pk_bf16_f32 v{R.P+i}, v{S_+2*i}, v{S_+2*i+1}')
            a(f'v_mfma_f32_32x32x16_bf16 {v(R.O+16*j,16)}, {v(R.VV,4)}, {v(R.P,4)}, {v(R.O+16*j,16)}')
            a(f'v_mfma_f32_32x32x16_bf16 {v(R.O+16*j,16)}, {v(R.VV+4,4)}, {v(R.P+4,4)}, {v(R.O+16*j,16)}')
    a('s_sub_u32 s60, s60, 1')
    a('s_cmp_lg_u32 s60, 0')
    a('s_cbranch_scc1 .Lat_fb2')
    a('s_nop 15')
    a('s_barrier')
    a('s_branch .Lat_combine')

def phase_oproj(a):
    BF, AF, ACC, XR, T = 16, 56, 96, XR0, 116
    a(f's_and_b32 s20, s{SJ}, 3')
    a(f's_lshr_b32 s21, s{SJ}, 2')
    a('s_and_b32 s22, s12, 3')
    a('s_lshr_b32 s23, s12, 2')
    a(f's_lshl_b32 s29, s{SG}, 4')
    a('s_lshl_b32 s30, s20, 2')
    a('s_add_u32 s29, s29, s30')
    a('s_add_u32 s29, s29, s22')
    a('v_and_b32 v5, 15, v2')
    a('v_lshrrev_b32 v6, 4, v2')
    a('s_mul_i32 s30, s29, 20480')
    a('s_mul_i32 s31, s23, 10240')
    a('s_add_u32 s30, s30, s31')
    a(f's_add_u32 s30, s30, {WS_O}')
    a('s_mul_i32 s33, s23, 10240')
    a(f's_add_u32 s33, s33, {LDS_WO}')
    a('v_add_u32 v8, s33, v10')
    a(f'v_add_u32 v9, {3*20480}, v8')
    def pre(): pass
    def mask():
        a('s_mov_b32 s44, -1'); a('s_mov_b32 s45, 0')
    sync(a, 0, 0, mask, pre, drained=True)
    stamp(a, 8)
    for i in range(10):
        if i % 4 == 0: a(f's_add_u32 s31, s30, {i*1024}')
        a(f'buffer_load_dwordx4 {v(BF+4*i,4)}, v10, s[8:11], s31 offen offset:{(i%4)*1024} sc1')
    def areads(i, buf):
        for ft in range(5):
            off = ft * 20480 + i * 1024
            base = 8
            if ft >= 3: off -= 3 * 20480; base = 9
            a(f'ds_read_b128 {v(AF+20*buf+4*ft,4)}, v{base} offset:{off}')
    areads(0, 0)
    for i in range(10):
        if i < 9:
            areads(i + 1, (i + 1) & 1)
            a(f's_waitcnt vmcnt({9-i}) lgkmcnt(5)')
        else:
            a('s_waitcnt vmcnt(0) lgkmcnt(0)')
        for ft in range(5):
            acc = v(ACC + 4 * ft, 4)
            a(f'v_mfma_f32_16x16x32_bf16 {acc}, {v(AF+20*(i&1)+4*ft,4)}, {v(BF+4*i,4)}, {"0" if i == 0 else acc}')
    stamp(a, 9)
    a('s_mul_i32 s40, s12, 3072')
    a('s_add_u32 s40, s40, 32768')
    a('v_add_u32 v14, s40, v10')
    l1, l2 = lab('ox'), lab('ox')
    a('s_nop 7')
    a('s_cmp_eq_u32 s23, 0')
    a(f's_cbranch_scc0 {l1}')
    for i, ft in enumerate((3, 4)): a(f'ds_write_b128 v14, {v(ACC+4*ft,4)} offset:{1024*i}')
    a(f's_branch {l2}')
    a.label(l1)
    for ft in range(3): a(f'ds_write_b128 v14, {v(ACC+4*ft,4)} offset:{1024*ft}')
    a('s_waitcnt lgkmcnt(0)')
    for r in range(8): a(f'v_mov_b32 v{ACC+r}, v{ACC+12+r}')
    for r in range(8, 12): a(f'v_mov_b32 v{ACC+r}, 0')
    a.label(l2)
    a('s_xor_b32 s40, s12, 4')
    a('s_mul_i32 s40, s40, 3072')
    a('s_add_u32 s40, s40, 32768')
    a('v_add_u32 v14, s40, v10')
    a('s_waitcnt lgkmcnt(0)')
    a('s_barrier')
    for i in range(3): a(f'ds_read_b128 {v(T+4*i,4)}, v14 offset:{1024*i}')
    a('s_waitcnt lgkmcnt(0)')
    for r in range(12): a(f'v_add_f32 v{ACC+r}, v{ACC+r}, v{T+r}')
    for i in range(3):
        for h2 in range(2):
            a(f'v_lshlrev_b32 v{T}, 16, v{XR+2*i+h2}')
            a(f'v_and_b32 v{T+1}, 0xffff0000, v{XR+2*i+h2}')
            a(f'v_add_f32 v{ACC+4*i+2*h2}, v{ACC+4*i+2*h2}, v{T}')
            a(f'v_add_f32 v{ACC+4*i+2*h2+1}, v{ACC+4*i+2*h2+1}, v{T+1}')
    l3 = lab('ox')
    a('s_cmp_eq_u32 s23, 0')
    a(f's_cbranch_scc1 {l3}')
    for r in range(8, 12): a(f'v_mov_b32 v{ACC+r}, 0')
    a.label(l3)
    a(f'v_mov_b32 v{T}, v{ACC}')
    a(f'v_mul_f32 v{T+1}, v{ACC}, v{ACC}')
    for r in range(1, 12):
        a(f'v_add_f32 v{T}, v{T}, v{ACC+r}')
        a(f'v_fmac_f32 v{T+1}, v{ACC+r}, v{ACC+r}')
    sum_q4(a, T, T+2, T+3)
    sum_q4(a, T+1, T+2, T+3)
    for i in range(6): a(f'v_cvt_pk_bf16_f32 v{T+4+i}, v{ACC+2*i}, v{ACC+2*i+1}')
    a('s_mul_i32 s34, s29, 20480')
    a('s_mul_i32 s35, s21, 2560')
    a('s_add_u32 s34, s34, s35')
    a('s_mul_i32 s35, s23, 1536')
    a('s_add_u32 s34, s34, s35')
    a(f's_add_u32 s34, s34, {WS_H}')
    a('v_lshrrev_b32 v11, 1, v6')
    a('v_lshlrev_b32 v11, 8, v11')
    a('v_lshl_add_u32 v11, v5, 4, v11')
    a('v_and_b32 v12, 1, v6')
    a('v_lshl_add_u32 v11, v12, 3, v11')
    a('s_lshl_b32 s33, s29, 7')
    a('s_lshl_b32 s35, s21, 1')
    a('s_add_u32 s35, s35, s23')
    a('s_lshl_b32 s35, s35, 14')
    a('s_add_u32 s33, s33, s35')
    a(f's_add_u32 s33, s33, {WS_ST2}')
    a('v_lshlrev_b32 v12, 3, v5')
    a('s_cmp_eq_u32 s23, 0')
    a(f's_cselect_b32 s35, s34, {0x7ffff000}')
    stores2(a, [f'buffer_store_dwordx2 {v(T+4,2)}, v11, s[8:11], s34 offen',
                f'buffer_store_dwordx2 {v(T+6,2)}, v11, s[8:11], s34 offen offset:512',
                f'buffer_store_dwordx2 {v(T+8,2)}, v11, s[8:11], s35 offen offset:1024',
                's_mov_b64 exec, 0xffff',
                f'buffer_store_dwordx2 {v(T,2)}, v12, s[8:11], s33 offen',
                's_mov_b64 exec, -1'])

F2_SLOT = {0: 81920, 1: 122880, 2: 0, 3: 40960, 4: 81920, 5: 122880, 6: 0}
def w2_setup(a):
    a(f's_lshr_b32 s21, s{SJ}, 2')
    a('s_lshr_b32 s22, s12, 2')
    a('s_mul_i32 s22, s22, 27')
    a('s_and_b32 s23, s12, 3')
    a('s_add_u32 s22, s22, s23')
    a('s_lshl_b32 s22, s22, 10')
    a('s_mul_i32 s47, s21, 276480')
    a(f's_add_u32 s47, s47, {WS_W2}')
    a('s_add_u32 s47, s47, s22')
    a('s_mul_i32 s48, s12, 5120')
def w2_dma(st, ft):
    return [f's_add_u32 m0, s48, {F2_SLOT[st] + ft*1024}', f's_add_u32 s49, s47, {st*4096 + ft*55296}',
            'buffer_load_dwordx4 v10, s[8:11], s49 offen lds']

def far_touch(a, vt, vd):
    a(f'v_lshlrev_b32 v{vt}, 7, v2')
    a(f's_mul_i32 s56, s{SJ}, 69120')
    a('s_lshl_b32 s57, s12, 13')
    a('s_add_u32 s56, s56, s57')
    a(f's_add_u32 s56, s56, {WS_W2}')
    a(f'buffer_load_dword v{vd}, v{vt}, s[8:11], s56 offen')
    a(f's_mul_i32 s56, s{SG}, {16*55296}')
    a(f's_mul_i32 s57, s{SJ}, 27648')
    a('s_add_u32 s56, s56, s57')
    a('s_lshl_b32 s57, s12, 13')
    a('s_add_u32 s56, s56, s57')
    a(f's_add_u32 s56, s56, {WS_G}')
    a(f's_mul_i32 s57, s{SJ}, 69120')
    a(f's_add_u32 s57, s57, {WS_W2 + 65536}')
    a('s_cmp_eq_u32 s12, 4')
    a('s_cselect_b32 s56, s57, s56')
    a('s_cmp_gt_u32 s12, 4')
    a('s_cselect_b32 s56, 0x7ff00000, s56')
    a(f'buffer_load_dword v{vd}, v{vt}, s[8:11], s56 offen')

def phase_ffn1(a, vm_pre):
    ACC, FB = 72, 104
    CS, B1, ST = 192, 168, 128
    SEL, CSA, B1R = 120, 124, 184
    NS = 5
    a(f'v_mov_b32 v{SEL}, 0')
    a('s_mov_b32 s52, 0x00020001')
    a('s_mov_b32 s53, 0x00020001')
    a('v_mov_b32 v15, 0x3f803f80')
    a(f'v_cndmask_b32 v{SEL}, v{SEL}, v15, s[52:53]')
    for r in range(1, 4): a(f'v_mov_b32 v{SEL+r}, v{SEL}')
    for r in range(4): a(f'v_mov_b32 v{CSA+r}, 0')
    srd(a, 52, 68, F * 2)
    w2_setup(a)
    a(f's_and_b32 s13, s{SJ}, 1')
    a(f's_lshl_b32 s15, s{SG}, 1')
    a('s_add_u32 s13, s13, s15')
    a(f's_lshr_b32 s14, s{SJ}, 1')
    a('s_and_b32 s23, s12, 3')
    a('s_lshr_b32 s26, s12, 2')
    a('v_lshrrev_b32 v7, 4, v3')
    a('s_movk_i32 s17, 20480')
    a('v_mul_lo_u32 v7, v7, s17')
    a('v_and_b32 v6, 15, v3')
    a('v_lshl_add_u32 v7, v6, 4, v7')
    a('v_lshl_add_u32 v7, v4, 8, v7')
    a('s_lshl_b32 s20, s13, 3')
    a('s_lshl_b32 s19, s23, 1')
    a('s_add_u32 s20, s20, s19')
    a('s_mul_i32 s20, s20, 20480')
    a('s_lshl_b32 s19, s26, 10')
    a('s_add_u32 s20, s20, s19')
    a(f's_add_u32 s20, s20, {WS_H}')
    a('s_lshl_b32 s22, s23, 10')
    a('s_lshl_b32 s19, s26, 13')
    a('s_add_u32 s22, s22, s19')
    a('s_lshl_b32 s17, s26, 11')
    a('v_add_u32 v12, s17, v10')
    a('v_add_u32 v13, 0x10000, v12')
    vm = VM()
    def pre(): pass
    def mask():
        a(f's_and_b32 s40, s{SJ}, 1')
        a('s_cmp_eq_u32 s40, 0')
        a('s_mov_b32 s44, 0xcccccccc')
        a('s_cselect_b32 s44, 0x33333333, s44')
        a('s_mov_b32 s45, 0')
    sync(a, 1, 1, mask, pre)
    stamp(a, 10)
    nst = 10
    pend = [(st, i) for st in range(nst) for i in range(2)]
    def dma_one():
        st, i = pend.pop(0)
        a(f's_add_u32 m0, s22, {(st % NS)*16384 + i*4096}')
        a(f's_add_u32 s21, s20, {st*2048 + i*512}')
        a('buffer_load_dwordx4 v7, s[8:11], s21 offen sc1 lds')
        vm.issue(('h', st))
    for _ in range(2 * 3): dma_one()
    a('s_lshl_b32 s27, s13, 7')
    a('s_lshl_b32 s28, s26, 6')
    a('s_add_u32 s27, s27, s28')
    a('s_lshl_b32 s28, s13, 7')
    a('s_lshl_b32 s29, s23, 5')
    a('s_add_u32 s28, s28, s29')
    a('s_lshl_b32 s28, s28, 3')
    a(f's_add_u32 s28, s28, {WS_ST2}')
    a('v_lshlrev_b32 v14, 3, v3')
    a('v_lshl_add_u32 v14, v4, 17, v14')
    def st_load(q):
        a(f's_add_u32 s29, s28, {q*16384}')
        a(f'buffer_load_dwordx2 {v(ST+2*q,2)}, v14, s[8:11], s29 offen sc1')
        vm.issue('st')
    w1q = list(range(26, 40))
    def w1_load():
        s_ = w1q.pop(0)
        a(f's_add_u32 s40, s{S_W1}, {s_*512}')
        a(f'buffer_load_dwordx4 {v(w1reg(s_),4)}, v{V_W1}, s[8:11], s40 offen')
        vm.issue(('w1', s_))
    def reads(st, ks, buf):
        off = (st % NS) * 16384 + ks * 4096
        base = 12
        if off + 1024 >= 65536: off -= 65536; base = 13
        a(f'ds_read_b128 {v(FB+8*buf,4)}, v{base} offset:{off}')
        a(f'ds_read_b128 {v(FB+8*buf+4,4)}, v{base} offset:{off+1024}')
    def mfmas(s_, buf):
        for j in range(2):
            c = '0' if s_ == 0 else v(ACC+16*j, 16)
            a(f'v_mfma_f32_32x32x16_bf16 {v(ACC+16*j,16)}, {v(w1reg(s_),4)}, {v(FB+8*buf+4*j,4)}, {c}')
    F1S = 'f1stamp' in gen.EXP
    w2q = [(st, ft) for st in (0, 1) for ft in range(5)]
    if F1S: stamp(a, 2)
    vm.wait(a, lambda x: x == ('h', 0))
    a('s_barrier')
    if F1S: stamp(a, 3)
    reads(0, 0, 0)
    buf = 0
    for st in range(nst):
        for ks in range(4):
            s_ = 4 * st + ks
            if ks < 3:
                reads(st, ks + 1, buf ^ 1)
                if s_ >= 26: vm.wait(a, lambda x: x == ('w1', s_), ' lgkmcnt(2)')
                else: a('s_waitcnt lgkmcnt(2)')
                mfmas(s_, buf)
            else:
                if st + 1 < nst:
                    a('s_waitcnt lgkmcnt(0)')
                    if F1S and st in (0, 2, 4, 6): stamp(a, {0: 4, 2: 7, 4: 9, 6: 13}[st])
                    vm.wait(a, lambda x: x == ('h', st + 1))
                    a('s_barrier')
                    if F1S and st in (0, 2, 4, 6): stamp(a, {0: 5, 2: 8, 4: 12, 6: 14}[st])
                    reads(st + 1, 0, buf ^ 1)
                else:
                    a('s_waitcnt lgkmcnt(0)')
                if s_ >= 26: vm.wait(a, lambda x: x == ('w1', s_))
                mfmas(s_, buf)
            lim = st + NS - 1 + (1 if ks == 3 else 0)
            if pend and pend[0][0] <= lim and (ks in (1, 3) or st == 0): dma_one()
            if ks in (0, 2) and w1q and st <= 6: w1_load()
            if st == 7 and ks < 4:
                st_load(2 * ks); st_load(2 * ks + 1)
            if st >= 8 and not (st == 8 and ks == 0):
                for _ in range(2 if (st == 9 or ks >= 2) else 1):
                    if w2q:
                        for x in w2_dma(*w2q.pop(0)): a(x)
                        vm.issue('w2')
            lc = lab('cs')
            a(f's_cmp_eq_u32 s26, {s_ & 1}')
            a(f's_cbranch_scc0 {lc}')
            a(f'v_mfma_f32_16x16x32_bf16 {v(CSA,4)}, {v(w1reg(s_),4)}, {v(SEL,4)}, {v(CSA,4)}')
            a.label(lc)
            if st == 8 and ks == 0:
                a('s_lshl_b32 s29, s14, 7')
                a('s_lshl_b32 s30, s23, 5')
                a('s_add_u32 s29, s29, s30')
                a('s_lshl_b32 s29, s29, 1')
                a('v_lshlrev_b32 v15, 4, v4')
                a(f'buffer_load_dwordx4 {v(B1R,4)}, v15, s[52:55], s29 offen'); vm.issue('cs')
                a(f'buffer_load_dwordx4 {v(B1R+4,4)}, v15, s[52:55], s29 offen offset:32'); vm.issue('cs')
            buf ^= 1
    assert not w2q, w2q
    stamp(a, 11)
    LST = 0
    l2 = lab('st')
    vm.wait(a, lambda x: x == 'cs')
    a('s_cmp_ge_u32 s12, 4')
    a(f's_cbranch_scc1 {l2}')
    b = ST
    for q in range(1, 8):
        a(f'v_add_f32 v{b}, v{b}, v{b+2*q}')
        a(f'v_add_f32 v{b+1}, v{b+1}, v{b+2*q+1}')
    for r in range(2):
        a(f'v_mov_b32 v{b+2}, v{b+r}'); a(f'v_mov_b32 v{b+3}, v{b+r}')
        a(f'v_permlane32_swap_b32 v{b+2}, v{b+3}')
        a(f'v_add_f32 v{b+r}, v{b+2}, v{b+3}')
    a(f'v_mul_f32 v{b}, {f2hex(1.0/640)}, v{b}')
    a(f'v_mul_f32 v{b+1}, {f2hex(1.0/640)}, v{b+1}')
    a(f'v_fma_f32 v{b+1}, -v{b}, v{b}, v{b+1}')
    a(f'v_add_f32 v{b+1}, 0x3727c5ac, v{b+1}')
    a(f'v_rsq_f32 v{b+1}, v{b+1}')
    a(f'v_mul_f32 v{b}, v{b}, v{b+1}')
    a('s_lshl_b32 s28, s12, 8')
    a('v_lshlrev_b32 v14, 3, v3')
    a('v_add_u32 v14, s28, v14')
    a(f'ds_write_b64 v14, {v(b,2)} offset:{LST}')
    a.label(l2)
    a('s_lshl_b32 s28, s23, 8')
    a('s_lshl_b32 s29, s26, 7')
    a('s_add_u32 s28, s28, s29')
    a('v_and_b32 v14, 1, v2')
    a('v_lshlrev_b32 v14, 6, v14')
    a('v_lshrrev_b32 v15, 4, v2')
    a('v_lshl_add_u32 v14, v15, 4, v14')
    a('v_add_u32 v14, s28, v14')
    a('s_mov_b32 s44, 0x00030003')
    a('s_mov_b32 s45, 0x00030003')
    a('s_mov_b64 exec, s[44:45]')
    a(f'ds_write_b128 v14, {v(CSA,4)} offset:{LST+1024}')
    a('s_mov_b64 exec, -1')
    a('s_waitcnt lgkmcnt(0)')
    a('s_barrier')
    a('s_lshl_b32 s28, s26, 9')
    a('v_lshlrev_b32 v14, 3, v3')
    a('v_add_u32 v14, s28, v14')
    a(f'ds_read_b64 {v(ST,2)}, v14 offset:{LST}')
    a(f'ds_read_b64 {v(ST+4,2)}, v14 offset:{LST+256}')
    a('s_lshl_b32 s28, s23, 8')
    a('v_lshlrev_b32 v14, 4, v4')
    a('v_add_u32 v14, s28, v14')
    for th_ in range(2):
        for g in range(4):
            a(f'ds_read_b128 {v(CS+32*th_+4*g,4)}, v14 offset:{LST + 1024 + th_*128 + g*32}')
    for q in range(8):
        a(f'v_lshlrev_b32 v{B1+2*q}, 16, v{B1R+q}')
        a(f'v_and_b32 v{B1+2*q+1}, 0xffff0000, v{B1R+q}')
    a('s_waitcnt lgkmcnt(0)')
    for r in range(16): a(f'v_add_f32 v{CS+r}, v{CS+r}, v{CS+32+r}')
    for j in range(2):
        b = ST + 4 * j
        for r in range(16):
            a(f'v_fma_f32 v{b+2}, -v{b}, v{CS+r}, v{B1+r}')
            a(f'v_fma_f32 v{ACC+16*j+r}, v{b+1}, v{ACC+16*j+r}, v{b+2}')
            a(f'v_max_f32 v{ACC+16*j+r}, 0, v{ACC+16*j+r}')
            a(f'v_mul_f32 v{ACC+16*j+r}, v{ACC+16*j+r}, v{ACC+16*j+r}')
    PK = 104
    for r in range(16):
        a(f'v_cvt_pk_bf16_f32 v{PK+r}, v{ACC+2*r}, v{ACC+2*r+1}')
    a('v_lshrrev_b32 v13, 4, v3')
    a('s_mov_b32 s18, 55296')
    a('v_mul_lo_u32 v13, v13, s18')
    a('v_and_b32 v14, 15, v3')
    a('v_lshl_add_u32 v13, v14, 4, v13')
    a('v_lshl_add_u32 v13, v4, 8, v13')
    a('s_lshr_b32 s18, s27, 4')
    a('s_mul_i32 s18, s18, 55296')
    a('s_lshl_b32 s17, s14, 2')
    a('s_add_u32 s17, s17, s23')
    a('s_cmp_ge_u32 s17, 54')
    a('s_cselect_b32 s19, 0x40000000, 0')
    a('s_lshl_b32 s17, s17, 10')
    a('s_add_u32 s17, s17, s18')
    a(f's_add_u32 s17, s17, {WS_G}')
    a('s_add_u32 s17, s17, s19')
    a(f's_add_u32 s18, s17, {2*55296}')
    stores2(a, [f'buffer_store_dwordx4 {v(PK,4)}, v13, s[8:11], s17 offen',
                f'buffer_store_dwordx4 {v(PK+4,4)}, v13, s[8:11], s17 offen offset:512',
                f'buffer_store_dwordx4 {v(PK+8,4)}, v13, s[8:11], s18 offen',
                f'buffer_store_dwordx4 {v(PK+12,4)}, v13, s[8:11], s18 offen offset:512'])

def phase_ffn2(a, L, published):
    NST = 7
    vm = VM()
    BF, ACC, AF, T = 16, 128, 168, 16
    def pre():
        for st in (2, 3):
            for ft in range(5):
                for x in w2_dma(st, ft): a(x)
    def mask():
        a(f's_and_b32 s40, s{SJ}, 2')
        a('s_cmp_eq_u32 s40, 0')
        a('s_mov_b32 s44, 0x0aaaaaaa')
        a('s_cselect_b32 s44, 0x05555555, s44')
        a('s_mov_b32 s45, 0')
    a(f's_and_b32 s20, s{SJ}, 3')
    a(f's_lshr_b32 s21, s{SJ}, 2')
    a('s_and_b32 s22, s12, 3')
    a('s_lshr_b32 s23, s12, 2')
    a(f's_lshl_b32 s29, s{SG}, 4')
    a('s_lshl_b32 s30, s20, 2')
    a('s_add_u32 s29, s29, s30')
    a('s_add_u32 s29, s29, s22')
    a('s_mul_i32 s32, s29, 55296')
    a('s_mul_i32 s33, s23, 27648')
    a('s_add_u32 s32, s32, s33')
    a(f's_add_u32 s32, s32, {WS_G}')
    a('s_mul_i32 s34, s23, 20480')
    a('v_add_u32 v8, s34, v10')
    a('v_add_u32 v9, 0x10000, v8')
    a('v_add_u32 v11, 0x20000, v8')
    srd(a, 52, 70, D * 2)
    sync(a, 2 if published else None, 2, mask, pre)
    return vm

def ffn2_body(a, L):
    NST = 7
    vm = VM()
    for st in (0, 1, 2, 3):
        for ft in range(5): vm.issue(('w', st))
    BF, ACC, AF, T, HR, BB = 16, 124, 144, 184, 200, 208
    if 'f1stamp' not in gen.EXP: stamp(a, 12)
    def bload(i):
        a(f's_add_u32 s33, s32, {i*1024}')
        a(f'buffer_load_dwordx4 {v(BF+4*i,4)}, v10, s[8:11], s33 offen sc1')
        vm.issue(('b', i))
    NB0 = 6 if 'oldb' in gen.EXP else 4
    for i in range(NB0): bload(i)
    bq = list(range(NB0, 27))
    wq = [(st, ft) for st in range(4, 7) for ft in range(5)]
    def areads(ks, buf):
        st, i = ks >> 2, ks & 3
        for ft in range(5):
            off = F2_SLOT[st] + i * 5120 + ft * 1024
            base = {0: 8, 1: 9, 2: 11}[off >> 16]
            a(f'ds_read_b128 {v(AF+20*buf+4*ft,4)}, v{base} offset:{off & 65535}')
    F2S = 'f2stamp' in gen.EXP
    BX = 6
    if F2S: stamp(a, 2)
    vm.wait(a, lambda x: x == ('w', 0))
    a('s_barrier')
    if F2S: stamp(a, 3)
    areads(0, 0)
    for ks in range(27):
        if F2S and ks in (1, 4, 8, 12, 16, 20, 24): stamp(a, {1: 4, 4: 5, 8: 7, 12: 8, 16: 9, 20: 10, 24: 11}[ks])
        st, i = ks >> 2, ks & 3
        buf = ks & 1
        nxt = ks + 1
        if nxt < 27:
            if (nxt & 3) == 0:
                a('s_waitcnt lgkmcnt(0)')
                vm.wait(a, lambda x: x == ('w', nxt >> 2))
                a('s_barrier')
                areads(nxt, buf ^ 1)
                vm.wait(a, lambda x: x == ('b', ks))
            else:
                areads(nxt, buf ^ 1)
                vm.wait(a, lambda x: x == ('b', ks), ' lgkmcnt(5)')
        else:
            vm.wait(a, lambda x: x == ('b', ks), ' lgkmcnt(0)')
        for ft in range(5):
            acc = v(ACC + 4 * ft, 4)
            a(f'v_mfma_f32_16x16x32_bf16 {acc}, {v(AF+20*buf+4*ft,4)}, {v(BF+4*ks,4)}, {"0" if ks == 0 else acc}')
            if 'oldb' in gen.EXP:
                if ft in (1, 3) and bq and bq[0] <= ks + 12: bload(bq.pop(0))
            elif (ft == 1 or (ft == 3 and ks < BX)) and bq and bq[0] <= ks + 10: bload(bq.pop(0))
            if ft in (0, 2, 4) and wq and (wq[0][0] - 4) < st + (1 if (nxt & 3) == 0 and nxt < 27 else 0):
                x_ = wq.pop(0)
                for x in w2_dma(*x_): a(x)
                vm.issue(('w', x_[0]))
        if ks == 20:
            a('v_and_b32 v5, 15, v2')
            a('v_lshrrev_b32 v6, 4, v2')
            a('s_mul_i32 s34, s29, 20480')
            a('s_mul_i32 s35, s21, 2560')
            a('s_add_u32 s34, s34, s35')
            a('s_mul_i32 s35, s23, 1536')
            a('s_add_u32 s34, s34, s35')
            a(f's_add_u32 s34, s34, {WS_H}')
            a('v_lshrrev_b32 v12, 1, v6')
            a('v_lshlrev_b32 v12, 8, v12')
            a('v_lshl_add_u32 v12, v5, 4, v12')
            a('v_and_b32 v13, 1, v6')
            a('v_lshl_add_u32 v12, v13, 3, v12')
            for i_ in range(3):
                a(f'buffer_load_dwordx2 {v(HR+2*i_,2)}, v12, s[8:11], s34 offen offset:{512*i_} sc1'); vm.issue('hr')
            a('s_mul_i32 s35, s21, 160')
            a('s_mul_i32 s36, s23, 96')
            a('s_add_u32 s35, s35, s36')
            a('v_lshlrev_b32 v13, 3, v6')
            for i_ in range(3):
                a(f'buffer_load_dwordx2 {v(BB+2*i_,2)}, v13, s[52:55], s35 offen offset:{32*i_}'); vm.issue('hr')
    assert not bq and not wq, (bq, wq)
    if 'f1stamp' not in gen.EXP: stamp(a, 13)
    XB = 81920
    a('s_mul_i32 s40, s12, 3072')
    a(f's_add_u32 s40, s40, {XB}')
    a('v_add_u32 v14, s40, v10')
    l1, l2 = lab('fx'), lab('fx')
    a('s_nop 7')
    a('s_cmp_eq_u32 s23, 0')
    a(f's_cbranch_scc0 {l1}')
    for i_, ft in enumerate((3, 4)): a(f'ds_write_b128 v14, {v(ACC+4*ft,4)} offset:{1024*i_}')
    a(f's_branch {l2}')
    a.label(l1)
    for ft in range(3): a(f'ds_write_b128 v14, {v(ACC+4*ft,4)} offset:{1024*ft}')
    a('s_waitcnt lgkmcnt(0)')
    for r in range(8): a(f'v_mov_b32 v{ACC+r}, v{ACC+12+r}')
    a.label(l2)
    a('s_xor_b32 s40, s12, 4')
    a('s_mul_i32 s40, s40, 3072')
    a(f's_add_u32 s40, s40, {XB}')
    a('v_add_u32 v14, s40, v10')
    a('s_waitcnt lgkmcnt(0)')
    a('s_barrier')
    for i_ in range(3): a(f'ds_read_b128 {v(T+4*i_,4)}, v14 offset:{1024*i_}')
    a('s_waitcnt vmcnt(0) lgkmcnt(0)')
    for r in range(12): a(f'v_add_f32 v{ACC+r}, v{ACC+r}, v{T+r}')
    for i_ in range(3):
        for h2 in range(2):
            a(f'v_lshlrev_b32 v{T}, 16, v{HR+2*i_+h2}')
            a(f'v_and_b32 v{T+1}, 0xffff0000, v{HR+2*i_+h2}')
            a(f'v_lshlrev_b32 v{T+2}, 16, v{BB+2*i_+h2}')
            a(f'v_and_b32 v{T+3}, 0xffff0000, v{BB+2*i_+h2}')
            a(f'v_add_f32 v{ACC+4*i_+2*h2}, v{ACC+4*i_+2*h2}, v{T+2}')
            a(f'v_add_f32 v{ACC+4*i_+2*h2+1}, v{ACC+4*i_+2*h2+1}, v{T+3}')
            a(f'v_add_f32 v{ACC+4*i_+2*h2}, v{ACC+4*i_+2*h2}, v{T}')
            a(f'v_add_f32 v{ACC+4*i_+2*h2+1}, v{ACC+4*i_+2*h2+1}, v{T+1}')
    for i_ in range(6): a(f'v_cvt_pk_bf16_f32 v{T+4+i_}, v{ACC+2*i_}, v{ACC+2*i_+1}')
    a('s_lshl_b32 s33, s29, 4')
    a('v_add_u32 v7, s33, v5')
    a('s_movk_i32 s34, 1280')
    a('v_mul_lo_u32 v7, v7, s34')
    a('v_lshl_add_u32 v7, v6, 3, v7')
    a('s_mul_i32 s34, s21, 160')
    a('s_mul_i32 s35, s23, 96')
    a('s_add_u32 s34, s34, s35')
    a('s_cmp_eq_u32 s23, 0')
    a('s_cselect_b32 s35, s34, 0x7ff00000')
    a(f'buffer_store_dwordx2 {v(T+4,2)}, v7, s[76:79], s34 offen')
    a(f'buffer_store_dwordx2 {v(T+6,2)}, v7, s[76:79], s34 offen offset:32')
    a(f'buffer_store_dwordx2 {v(T+8,2)}, v7, s[76:79], s35 offen offset:64')

def kf():
    a = Asm()
    merged = 'merge' in gen.EXP
    L = NAME + '_kernel' if merged else 'kf_kernel'
    kernel_begin(a, L)
    a('s_cmp_ge_u32 s2, 256')
    a(f's_cbranch_scc1 {L}_end')
    if merged:
        import gen5
        if gen.PROF: a('v_mov_b32 v254, v0')
        gen5.k1s(a, '.Ljoin')
        a.label('.Ljoin')
        a('s_waitcnt vmcnt(0) lgkmcnt(0)')
        a('s_barrier')
        if gen.PROF:
            srd(a, 8, 4, WS_END)
            stamp_flush(a, 1, 12, 8, 12)
            a('v_mov_b32 v0, v254')
            a('s_waitcnt vmcnt(0)')
        lj, lp, ld = lab('gb'), lab('gb'), lab('gb')
        a('s_cmp_lg_u32 s12, 0')
        a(f's_cbranch_scc1 {lj}')
        a(f's_load_dwordx2 s[20:21], s[0:1], {A_DBG}')
        a('s_and_b32 s40, s2, 7')
        a('s_lshl_b32 s40, s40, 5')
        a('v_mov_b32 v5, s40')
        a('v_mov_b32 v6, 1')
        a('v_and_b32 v7, 7, v0')
        a('v_lshlrev_b32 v7, 5, v7')
        a('s_waitcnt lgkmcnt(0)')
        a('s_mov_b64 exec, 1')
        a('global_atomic_add v5, v6, s[20:21] sc1')
        a('s_mov_b64 exec, 0xff')
        a('s_mov_b32 s41, 0')
        a.label(lp)
        a('global_load_dword v8, v7, s[20:21] sc1')
        a('s_add_u32 s41, s41, 1')
        a('s_waitcnt vmcnt(0)')
        a('v_cmp_ne_u32 vcc, 32, v8')
        a(f's_cbranch_vccz {ld}')
        a(f's_cmp_lt_u32 s41, {SPIN_MAX}')
        a(f's_cbranch_scc1 {lp}')
        a.label(ld)
        a('s_mov_b64 exec, -1')
        a.label(lj)
        a('s_barrier')
    stamp(a, 0, True); stamp(a, 1)
    if 'dbg' in gen.EXP:
        a('s_memrealtime s[90:91]'); a('s_memtime s[92:93]'); a(f's_load_dwordx2 s[94:95], s[0:1], {A_DBG}')
    if 'nocodepf' not in gen.EXP and not merged:
        code_touch(a, L, '.Lkf_last', '.Lpc_kf', 144, 151, 2)
    a(f's_load_dwordx2 s[4:5], s[0:1], {A_WS}')
    a(f's_load_dwordx2 s[68:69], s[0:1], {A_X}')
    a(f's_load_dwordx2 s[70:71], s[0:1], {A_OUT}')
    a(f's_and_b32 s{SG}, s2, 7')
    a(f's_lshr_b32 s{SJ}, s2, 3')
    a(f's_mov_b32 s{SH}, s{SJ}')
    a(f's_mov_b32 s{SR}, s{SG}')
    a('v_lshrrev_b32 v1, 6, v0')
    a('v_and_b32 v2, 63, v0')
    a('v_readfirstlane_b32 s12, v1')
    a('v_and_b32 v3, 31, v2')
    a('v_lshrrev_b32 v4, 5, v2')
    a(f's_getreg_b32 s{SPURE}, hwreg(HW_REG_XCC_ID, 0, 4)')
    a(f's_add_u32 s{SPURE}, s{SPURE}, 1')
    attn_setup(a, SH, SR, 12, 8, defer=True)
    a('s_waitcnt lgkmcnt(0)')
    srd(a, 8, 4, WS_END)
    attn_dma(a, 0, 8)
    attn_qloads(a, 8)
    srd(a, 72, 68, S * D * 2)
    srd(a, 76, 70, S * D * 2)
    a(f's_load_dwordx2 s[68:69], s[0:1], {A_B1}')
    a(f's_load_dwordx2 s[70:71], s[0:1], {A_B2}')
    stamp(a, 2)
    phase_attn(a, L)
    phase_oproj(a)
    stamp(a, 5)
    a(f's_cmp_ge_u32 s{SJ}, 28')
    a(f's_cbranch_scc1 {L}_idle')
    phase_ffn1(a, None)
    phase_ffn2(a, L, True)
    a(f's_branch {L}_f2')
    a.label(f'{L}_idle')
    a('s_waitcnt vmcnt(0)')
    a('s_barrier')
    li = lab('id')
    a('s_cmp_lg_u32 s12, 0')
    a(f's_cbranch_scc1 {li}')
    flag_store(a, 1, 14)
    a.label(li)
    w2_setup(a)
    for st in (0, 1):
        for ft in range(5):
            for x in w2_dma(st, ft): a(x)
    a('s_waitcnt vmcnt(0)')
    phase_ffn2(a, L, False)
    a.label(f'{L}_f2')
    ffn2_body(a, L)
    a.label(f'{L}_fin')
    if 'f1stamp' not in gen.EXP: stamp(a, 14)
    if 'dbg' in gen.EXP:
        a('s_waitcnt vmcnt(0)')
        a('s_memrealtime s[96:97]'); a('s_memtime s[86:87]'); a('s_waitcnt lgkmcnt(0)')
        ldb = lab('db')
        a('s_cmp_lg_u32 s2, 0'); a(f's_cbranch_scc1 {ldb}'); a('s_cmp_lg_u32 s12, 0'); a(f's_cbranch_scc1 {ldb}')
        a('s_sub_u32 s96, s96, s90'); a('s_sub_u32 s86, s86, s92')
        a('v_mov_b32 v0, 0'); a('v_mov_b32 v2, s96'); a('v_mov_b32 v3, s86'); a('v_mov_b32 v4, s90'); a('v_mov_b32 v5, 0')
        a('global_store_dwordx4 v0, v[2:5], s[94:95] offset:16')
        a(f's_mov_b32 s86, {WS_PROF}')
        a('buffer_load_dwordx4 v[6:9], v0, s[8:11], s86 offen')
        a('s_waitcnt vmcnt(0)')
        a('global_store_dwordx4 v0, v[6:9], s[94:95]')
        a.label(ldb)
    if gen.PROF: a('s_waitcnt vmcnt(0)')
    stamp(a, 6, True)
    stamp_flush(a, 2, 15, 8, 12)
    a.label(f'{L}_end')
    a('s_endpgm')
    attn_fallback(a)
    a.label('.Lkf_last')
    a('s_endpgm')
    if merged: return a, descriptor(L, 256, 102), '; @launch grid=(256,1,1) block=(512,1,1) lds=163840'
    return a, descriptor(L, 256, 102), f'; @launch kernel={L} grid=(256,1,1) block=(512,1,1) lds=163840'

if __name__ == '__main__':
    if 'prof' in sys.argv: gen.PROF = True
    for x in sys.argv[2:]:
        if x.startswith('x:'): gen.EXP.add(x[2:])
    out = sys.argv[1]
    import gen4, gen5
    ks_ = [kf] if 'merge' in gen.EXP else ([k0, k1, kf] if 'old' in gen.EXP else [gen4.k1p if 'k1p' in gen.EXP else gen5.k1s, kf])
    open(out, 'w').write(build(ks_))
    print('wrote', out)
```

```python
import sys
sys.path.insert(0, 'dev')
import gen, gen2
from gen import *
from gen2 import lab, stores2, attn_units, wo_dma, WS_XT, SG, SJ, SPURE, LDS_WO, SPIN_MAX
from asmlib import *

class VM:
    def __init__(self): self.ops = []
    def issue(self, tag): self.ops.append(tag)
    def count_after(self, pred):
        n = 0
        for x in reversed(self.ops):
            if pred(x): return n
            n += 1
        raise Exception('no op matches')
    def wait(self, a, pred, extra=''):
        a(f's_waitcnt vmcnt({min(self.count_after(pred), 63)}){extra}')

XR0 = 136
W1A, W1B = 152, 16
def w1reg(s): return W1A + 4 * s if s < 26 else W1B + 4 * (s - 26)
SH, SR = 36, 37
S_OOB = 38
S_DONE = 39
FB_LDS = 159744
S_W1 = 98
V_W1 = 1

def flag_store(a, p, vt):
    g_, j_ = (SR, SH) if p == 0 else (SG, SJ)
    a(f's_lshl_b32 s40, s{g_}, 7')
    a(f's_lshl_b32 s41, s{j_}, 2')
    a('s_add_u32 s40, s40, s41')
    a(f's_add_u32 s40, s40, {WS_FLAG + p*1024}')
    a(f'v_mov_b32 v{vt}, 0')
    a(f'v_mov_b32 v{vt+1}, 1')
    a('s_mov_b64 exec, 1')
    stores2(a, [f'buffer_store_dword v{vt+1}, v{vt}, s[8:11], s40 offen'])
    a('s_mov_b64 exec, -1')

def sync(a, p_pub, p_wait, smask_setup, prefetch, vt=14, drained=False):
    if p_pub is not None and not drained:
        a('s_waitcnt vmcnt(0)')
        a('s_barrier')
    l0, l1, lp, ld, l3 = lab('sy'), lab('sy'), lab('sy'), lab('sy'), lab('sy')
    a('s_cmp_lg_u32 s12, 0')
    a(f's_cbranch_scc1 {l0}')
    if p_pub is not None: flag_store(a, p_pub, vt)
    smask_setup()
    a(f's_lshl_b32 s40, s{SG}, 7')
    a(f's_add_u32 s40, s40, {WS_FLAG + p_wait*1024}')
    a(f'v_lshlrev_b32 v{vt}, 2, v2')
    a('s_mov_b64 exec, s[44:45]')
    a('s_mov_b32 s41, 0')
    a.label(lp)
    a(f'buffer_load_dword v{vt+1}, v{vt}, s[8:11], s40 offen sc1')
    a('s_add_u32 s41, s41, 1')
    a('s_waitcnt vmcnt(0)')
    a(f'v_cmp_eq_u32 vcc, 0, v{vt+1}')
    a(f's_cbranch_vccz {ld}')
    a(f's_cmp_lt_u32 s41, {SPIN_MAX}')
    a(f's_cbranch_scc1 {lp}')
    a.label(ld)
    a('s_mov_b64 exec, -1')
    a(f's_cmp_eq_u32 s{SPURE}, 1')
    a(f's_cbranch_scc1 {l3}')
    a('buffer_inv sc1')
    a('s_waitcnt vmcnt(0)')
    a.label(l3)
    a('s_barrier')
    prefetch()
    a(f's_branch {l1}')
    a.label(l0)
    prefetch()
    a('s_barrier')
    a.label(l1)

def late_init(a, vm, L):
    merged = 'merge' in gen.EXP
    if not merged:
        a(f's_lshl_b32 s40, s{SG}, 7')
        a(f's_lshl_b32 s41, s{SJ}, 2')
        a('s_add_u32 s40, s40, s41')
        a(f's_add_u32 s40, s40, {WS_XT}')
        a('s_cmp_eq_u32 s12, 0')
        a('s_cselect_b32 s40, s40, 0x7ff00000')
        a('v_mov_b32 v14, 0')
        a(f'v_mov_b32 v15, s{SPURE}')
        a('s_mov_b64 exec, 1')
        a('buffer_store_dword v15, v14, s[8:11], s40 offen sc1')
        a('s_mov_b64 exec, -1')
        vm.issue('xts')

def phase_attn(a, L):
    R = AR
    attn_ones(a)
    a(f's_lshr_b32 s62, s{SJ}, 2')
    a('s_mul_i32 s62, s62, 102400')
    a(f's_add_u32 s62, s62, {WS_WO}')
    a('s_lshl_b32 s61, s12, 10')
    a('s_add_u32 s62, s62, s61')
    a('s_cmp_lt_u32 s12, 4')
    a(f's_mov_b32 s63, {11*8192}')
    a(f's_cselect_b32 s63, {12*8192}, s63')
    a('s_add_u32 s63, s63, s62')
    a(f's_add_u32 s61, s61, {LDS_WO}')
    for r in range(32): a(f'v_mov_b32 v{R.O+r}, 0')
    for r in range(16): a(f'v_mov_b32 v{R.P+r}, 0')
    for r in range(16): a(f'v_mov_b32 v{R.VV+r}, 0')
    vm = VM()
    a(f's_mov_b32 s{S_DONE}, 0')
    a(f'v_mov_b32 v14, {FB_LDS}')
    a('v_mov_b32 v15, 0')
    a('ds_write_b32 v14, v15')
    lane_swap23(a, 14, 3, 15)
    a('v_lshrrev_b32 v15, 4, v14')
    a('s_movk_i32 s40, 20480')
    a('v_mul_lo_u32 v15, v15, s40')
    a('v_and_b32 v14, 15, v14')
    a('v_lshl_add_u32 v15, v14, 4, v15')
    a(f'v_lshl_add_u32 v{V_W1}, v4, 8, v15')
    a(f's_lshr_b32 s40, s{SJ}, 1')
    a('s_lshl_b32 s40, s40, 2')
    a('s_and_b32 s41, s12, 3')
    a('s_add_u32 s40, s40, s41')
    a('s_mul_i32 s41, s40, 40960')
    a(f's_add_u32 s41, s41, {WS_W1}')
    a('s_cmp_lt_u32 s40, 54')
    a(f's_cselect_b32 s{S_W1}, s41, 0x7ff00000')
    a(f's_mov_b32 s{S_OOB}, 0x7ff00000')
    lt1, lt2 = lab('tc'), lab('tc')
    a('v_lshlrev_b32 v148, 7, v2')
    a('s_cmp_ge_u32 s12, 4')
    a(f's_cbranch_scc1 {lt1}')
    a(f's_mul_i32 s50, s{SG}, {16*20480}')
    a(f's_mul_i32 s40, s{SJ}, 10240')
    a('s_add_u32 s50, s50, s40')
    a('s_and_b32 s40, s12, 1')
    a('s_mul_i32 s40, s40, 5120')
    a('s_add_u32 s50, s50, s40')
    a('s_lshr_b32 s40, s12, 1')
    a(f's_mul_i32 s40, s40, {WS_H - WS_O}')
    a('s_add_u32 s50, s50, s40')
    a(f's_add_u32 s50, s50, {WS_O}')
    a('v_add_u32 v148, s50, v148')
    a(f's_lshr_b32 s40, s{SJ}, 1')
    a('s_lshl_b32 s40, s40, 14')
    a(f's_lshl_b32 s41, s{SG}, 11')
    a('s_add_u32 s40, s40, s41')
    a(f's_and_b32 s41, s{SJ}, 1')
    a('s_lshl_b32 s41, s41, 10')
    a('s_add_u32 s40, s40, s41')
    a(f's_add_u32 s40, s40, {WS_ST2 - 40*128}')
    a('s_cmp_eq_u32 s12, 2')
    a('s_cselect_b32 s40, s40, 0x7ff00000')
    a('v_lshlrev_b32 v149, 7, v2')
    a('v_add_u32 v149, s40, v149')
    a('v_mov_b32 v14, 0x7ff00000')
    a('v_cmp_gt_u32 vcc, 48, v2')
    a('v_cndmask_b32 v149, v14, v149, vcc')
    a('v_cmp_gt_u32 vcc, 40, v2')
    a('v_cndmask_b32 v148, v149, v148, vcc')
    a(f's_branch {lt2}')
    a.label(lt1)
    a('s_sub_u32 s40, s12, 4')
    a('s_lshl_b32 s40, s40, 5')
    a(f's_add_u32 s40, s40, s{SJ}')
    a('s_mul_i32 s50, s40, 20480')
    a(f's_add_u32 s50, s50, {WS_W1 + 13312}')
    a('s_cmp_lt_u32 s40, 108')
    a('s_cselect_b32 s50, s50, 0x7ff00000')
    a('v_add_u32 v148, s50, v148')
    a('v_mov_b32 v14, 0x7ff00000')
    a('v_cmp_gt_u32 vcc, 56, v2')
    a('v_cndmask_b32 v148, v14, v148, vcc')
    a.label(lt2)
    a('v_lshlrev_b32 v147, 7, v2')
    a('s_lshl_b32 s40, s12, 13')
    a(f's_mul_i32 s51, s{SG}, {16*55296}')
    a(f's_mul_i32 s41, s{SJ}, 27648')
    a('s_add_u32 s51, s51, s41')
    a('s_add_u32 s51, s51, s40')
    a(f's_add_u32 s51, s51, {WS_G}')
    a('s_cmp_ge_u32 s12, 4')
    a('s_cselect_b32 s51, 0x7ff00000, s51')
    a(f's_and_b32 s40, s{SJ}, 3')
    a('s_lshl_b32 s40, s40, 2')
    a(f's_lshl_b32 s41, s{SG}, 4')
    a('s_add_u32 s40, s40, s41')
    a('s_and_b32 s41, s12, 3')
    a('s_add_u32 s40, s40, s41')
    a('s_lshl_b32 s40, s40, 4')
    a('v_and_b32 v0, 15, v2')
    a('v_add_u32 v0, s40, v0')
    a('s_movk_i32 s41, 1280')
    a('v_mul_lo_u32 v0, v0, s41')
    a('v_lshrrev_b32 v14, 4, v2')
    a('v_lshl_add_u32 v0, v14, 3, v0')
    a(f's_lshr_b32 s57, s{SJ}, 2')
    a('s_mul_i32 s57, s57, 160')
    a('s_lshr_b32 s40, s12, 2')
    a('s_mul_i32 s40, s40, 96')
    a('s_add_u32 s57, s57, s40')
    if 'earlyinit' in gen.EXP: late_init(a, VM(), L)
    a('s_waitcnt vmcnt(0)')
    for st in (1, 2):
        attn_dma(a, st, 8); vm.issue(('kv', st)); vm.issue(('kv', st))
    for x in wo_dma(): a(x)
    vm.issue('wo')
    if 'earlyinit' not in gen.EXP: late_init(a, vm, L)
    if 'notlb' not in gen.EXP:
        a('v_lshlrev_b32 v149, 16, v2')
        a('s_lshl_b32 s40, s12, 22')
        a('buffer_load_dword v149, v149, s[8:11], s40 offen')
        a('v_lshlrev_b32 v148, 16, v2')
        a('buffer_load_dword v148, v148, s[76:79], 0 offen')
    a('v_cmp_gt_u32 vcc, 32, v2')
    for r in range(4): a(f'v_cndmask_b32 v{R.QC+r}, 0, v{R.QC+r}, vcc')
    a('s_waitcnt lgkmcnt(0)')
    a('s_barrier')
    a(f'ds_read_b128 {v(R.KA,4)}, v11 offset:0')
    a(f'ds_read_b64 {v(R.KC,2)}, v12 offset:0')
    a('s_waitcnt lgkmcnt(0)')
    a(f'v_mfma_f32_32x32x16_bf16 {v(R.S,16)}, {v(R.KA,4)}, {v(R.QA,4)}, 0')
    a(f'v_mfma_f32_32x32x8bf16_1k {v(R.S,16)}, {v(R.KC,2)}, {v(R.QC,2)}, {v(R.S,16)}')
    stamp(a, 7)
    wnext = [0]
    def w1load():
        s_ = wnext[0]; wnext[0] += 1
        return [f's_add_u32 s40, s{S_W1}, {s_*512}', f'buffer_load_dwordx4 {v(w1reg(s_),4)}, v{V_W1}, s[8:11], s40 offen']
    plan = {}
    waits = {}
    nW = {2: 3, 3: 3, 4: 3, 5: 3, 6: 4, 7: 4, 8: 3, 9: 3}
    if 'now1a' in gen.EXP: nW = {}
    ROLL = 'rolled' in gen.EXP
    if ROLL: nW = {8: 4, 9: 4, 10: 4, 11: 4, 12: 4, 13: 3, 14: 3}
    def masked(sreg, cond_lo, cond_hi, vreg):
        return [f's_sub_u32 s40, s12, {cond_lo}', f's_cmp_lt_u32 s40, {cond_hi - cond_lo}', f's_cselect_b32 s40, {sreg}, s{S_OOB}',
                f'buffer_load_dword v149, v{vreg}, s[8:11], s40 offen']
    for g in range(16):
        ex = {}
        k = nW.get(g, 0)
        slots = sorted([(0, 20), (1, 8), (1, 20), (2, 20)][:k])
        if g <= 11:
            ex.setdefault(0, {})[8] = wo_dma(); vm.issue('wo')
        if g == 12:
            ex.setdefault(0, {})[8] = [f's_lshl_b32 s40, s{SG}, 7', f's_add_u32 s40, s40, {WS_XT}', 'v_lshlrev_b32 v150, 2, v3',
                                       'buffer_load_dword v150, v150, s[8:11], s40 offen sc1']
            vm.issue('xt')
        tl = None
        if g == 10: tl = masked('0', 4, 6, 148)
        if g == 11: tl = masked('0', 6, 8, 148)
        if g == 12: tl = masked('0', 0, 4, 148)
        if g == 13: tl = ['buffer_load_dword v149, v147, s[8:11], s51 offen']
        if tl and 'notouch' not in gen.EXP:
            ex.setdefault(1, {})[14] = tl; vm.issue('touch')
        post = []
        pre_ops = []
        for (u, pos) in slots:
            if u < 2: ex.setdefault(u, {})[pos] = w1load(); vm.issue('w1')
            else: post.append((u, pos))
        if g < 15: waits[g] = vm.count_after(lambda x: x == ('kv', g + 1))
        if ROLL and g < 8: waits[g] = 4
        for (u, pos) in post:
            ex.setdefault(u, {})[pos] = w1load(); vm.issue('w1')
        if g <= 12:
            vm.issue(('kv', g + 3)); vm.issue(('kv', g + 3))
        if g == 13:
            ex.setdefault(3, {})[20] = [f'buffer_load_dwordx2 {v(XR0+2*i,2)}, v0, s[72:75], s57 offen offset:{32*i}' for i in range(3)]
            for i in range(3): vm.issue('xr')
        plan[g] = ex
    assert wnext[0] == 26 or 'now1a' in gen.EXP, wnext
    def run(stages_g):
        loc = {g % 4: g for g in stages_g}
        def prio(st, u):
            g = loc[st]
            if g == 15: return {0: 2, 1: 1, 2: 1, 3: 0}[u]
            if g == 14 and u >= 2: return 3
            return {2: 3, 3: 2, 0: 1, 1: 0}[u]
        return attn_units(a, 8, [(g % 4, g == 15) for g in stages_g], lambda st: loc[st] <= 12,
                          lambda st, u: plan[loc[st]].get(u, {}), lambda st: waits[loc[st]], prio)
    if ROLL:
        a('s_mov_b32 s60, 2')
        a.label('.Lat_loop')
        run([4, 5, 6, 7])
        a('s_sub_u32 s60, s60, 1')
        a('s_cmp_lg_u32 s60, 0')
        a('s_cbranch_scc1 .Lat_loop')
        run([8, 9, 10, 11])
    else:
        for b_ in range(3): run([4*b_ + i for i in range(4)])
    m1, m2, m3, m4, _ = run([12, 13, 14, 15])
    a(m3(1, 1, 1)); a(m4(1, 1, 1))
    a('s_setprio 0')
    stamp(a, 3)
    lp, ld = lab('xt'), lab('xt')
    a('s_mov_b32 s41, 0')
    a('v_cmp_eq_u32 vcc, 0, v150')
    a(f's_cbranch_vccz {ld}')
    a.label(lp)
    a(f's_lshl_b32 s40, s{SG}, 7')
    a(f's_add_u32 s40, s40, {WS_XT}')
    a('v_lshlrev_b32 v14, 2, v3')
    a('buffer_load_dword v150, v14, s[8:11], s40 offen sc1')
    a('s_add_u32 s41, s41, 1')
    a('s_waitcnt vmcnt(0)')
    a('v_cmp_eq_u32 vcc, 0, v150')
    a(f's_cbranch_vccz {ld}')
    a(f's_cmp_lt_u32 s41, {SPIN_MAX}')
    a(f's_cbranch_scc1 {lp}')
    a.label(ld)
    a(f'v_cmp_ne_u32 vcc, s{SPURE}, v150')
    a('s_cmp_eq_u64 vcc, 0')
    a(f's_cselect_b32 s{SPURE}, 1, 0')
    if 'slow' in gen.EXP: a(f's_mov_b32 s{SPURE}, 0')
    TT = R.S
    a.label('.Lat_combine')
    a('s_cmp_eq_u32 s46, 0')
    a('s_cbranch_scc1 .Lat_noswap')
    a('s_nop 7')
    for r in range(12): a(f'v_swap_b32 v{R.O+r}, v{R.O+16+r}')
    a.label('.Lat_noswap')
    a('s_nop 7')
    a(f's_mul_i32 s40, s12, 3072')
    a('v_add_u32 v14, s40, v10')
    for i in range(3): a(f'ds_write_b128 v14, {v(R.O+16+4*i,4)} offset:{1024*i}')
    a('s_xor_b32 s40, s12, 4')
    a('s_mul_i32 s40, s40, 3072')
    a('v_add_u32 v14, s40, v10')
    a('s_waitcnt lgkmcnt(0)')
    a('s_barrier')
    for i in range(3): a(f'ds_read_b128 {v(TT+4*i,4)}, v14 offset:{1024*i}')
    a('s_waitcnt lgkmcnt(0)')
    for r in range(12): a(f'v_add_f32 v{R.O+r}, v{R.O+r}, v{TT+r}')
    a(f'v_mov_b32 v{TT}, v{R.O+8}')
    a(f'v_mov_b32 v{TT+1}, v{R.O+8}')
    a(f'v_permlane32_swap_b32 v{TT}, v{TT+1}')
    a(f'v_mov_b32 v{TT+2}, 0')
    for r in range(12): a(f'v_fmac_f32 v{TT+2}, 0, v{R.O+r}')
    a('s_mov_b32 s40, 0x1f800000')
    a(f'v_cmp_nle_f32 vcc, s40, v{TT+1}')
    a('s_mov_b32 s40, 0x5f800000')
    a(f'v_cmp_nge_f32 s[44:45], s40, v{TT+1}')
    a('s_or_b64 s[44:45], s[44:45], vcc')
    a(f'v_cmp_u_f32 vcc, v{TT+2}, v{TT+2}')
    a('s_or_b64 s[44:45], s[44:45], vcc')
    if 'forcefb' in gen.EXP: a('s_mov_b64 s[44:45], -1')
    lok = lab('ok')
    a('s_cmp_eq_u64 s[44:45], 0')
    a(f's_cbranch_scc1 {lok}')
    a(f'v_mov_b32 v{TT+2}, {FB_LDS}')
    a(f'v_mov_b32 v{TT+3}, 1')
    a(f'ds_write_b32 v{TT+2}, v{TT+3}')
    a.label(lok)
    a(f'v_rcp_f32 v{TT+1}, v{TT+1}')
    for r in range(12): a(f'v_mul_f32 v{R.O+r}, v{R.O+r}, v{TT+1}')
    for i in range(6): a(f'v_cvt_pk_bf16_f32 v{TT+4+i}, v{R.O+2*i}, v{R.O+2*i+1}')
    a('s_mul_i32 s61, s46, 40960')
    a('s_add_u32 s61, s61, s47')
    a(f's_add_u32 s61, s61, {WS_O}')
    a('s_lshl_b32 s62, s42, 8')
    a('s_add_u32 s62, s62, s61')
    a('s_lshl_b32 s63, s43, 8')
    a('s_add_u32 s63, s63, s61')
    a(f's_and_b32 s61, s{SH}, 1')
    a('s_lshl_b32 s61, s61, 3')
    a('s_add_u32 s63, s63, s61')
    stores2(a, [f'buffer_store_dwordx4 {v(TT+4,4)}, v7, s[8:11], s62 offen',
                's_mov_b64 exec, 0xffffffff',
                f'buffer_store_dwordx2 {v(TT+8,2)}, v5, s[8:11], s63 offen',
                's_mov_b64 exec, -1'])
    stamp(a, 4)
    a('s_waitcnt vmcnt(0) lgkmcnt(0)')
    a('s_barrier')
    a(f'v_mov_b32 v14, {FB_LDS}')
    a('ds_read_b32 v15, v14')
    a('s_waitcnt lgkmcnt(0)')
    a('v_readfirstlane_b32 s40, v15')
    a(f's_sub_u32 s40, s40, s{S_DONE}')
    a('s_cmp_eq_u32 s40, 1')
    a('s_cbranch_scc1 .Lat_fallback')
    a.label('.Lat_done')

def attn_fallback(a):
    R = AR
    SL = 2 * AT_SLOT
    S_, M0_, M1_ = R.S, R.S + 16, R.S + 17
    a.label('.Lat_fallback')
    a(f's_mov_b32 s{S_DONE}, 1')
    def load_stage():
        a('s_barrier')
        for x in attn_dma_parts(2, 8)[0] + attn_dma_parts(2, 8)[1]: a(x)
        a('s_waitcnt vmcnt(0)')
        a('s_barrier')
    def rewind():
        a(f's_sub_u32 s52, s52, {16*5120}')
        a(f's_sub_u32 s53, s53, {16*163840}')
    def scores(t, j):
        a(f'v_mfma_f32_32x32x16_bf16 {v(S_,16)}, {v(R.KA,4)}, {v(R.QA+4*j,4)}, 0')
        a(f'v_mfma_f32_32x32x8bf16_1k {v(S_,16)}, {v(R.KC,2)}, {v(R.QC+2*j,2)}, {v(S_,16)}')
    def kread(t):
        a(f'ds_read_b128 {v(R.KA,4)}, v11 offset:{SL + t*1024}')
        a(f'ds_read_b64 {v(R.KC,2)}, v12 offset:{SL + t*512}')
    rewind()
    a(f'v_mov_b32 v{M0_}, 0xff7fffff'); a(f'v_mov_b32 v{M1_}, 0xff7fffff')
    a('s_mov_b32 s60, 16')
    a.label('.Lat_fb1')
    load_stage()
    for t in range(2):
        kread(t)
        a('s_waitcnt lgkmcnt(0)')
        for j in range(2):
            scores(t, j)
            m = M0_ + j
            for r in range(0, 16, 2): a(f'v_max3_f32 v{m}, v{S_+r}, v{S_+r+1}, v{m}')
    a('s_sub_u32 s60, s60, 1')
    a('s_cmp_lg_u32 s60, 0')
    a('s_cbranch_scc1 .Lat_fb1')
    for j in range(2):
        m = M0_ + j
        a(f'v_mov_b32 v{S_}, v{m}'); a(f'v_mov_b32 v{S_+1}, v{m}')
        a(f'v_permlane32_swap_b32 v{S_}, v{S_+1}')
        a(f'v_max_f32 v{m}, v{S_}, v{S_+1}')
    a('s_barrier')
    a('s_lshl_b32 s40, s12, 9')
    a('v_lshlrev_b32 v14, 3, v2')
    a('v_add_u32 v14, s40, v14')
    a(f'ds_write_b64 v14, {v(M0_,2)}')
    a('s_xor_b32 s40, s12, 4')
    a('s_lshl_b32 s40, s40, 9')
    a('v_lshlrev_b32 v14, 3, v2')
    a('v_add_u32 v14, s40, v14')
    a('s_waitcnt lgkmcnt(0)')
    a('s_barrier')
    a(f'ds_read_b64 {v(S_,2)}, v14')
    a('s_waitcnt lgkmcnt(0)')
    a(f'v_max_f32 v{M0_}, v{M0_}, v{S_}')
    a(f'v_max_f32 v{M1_}, v{M1_}, v{S_+1}')
    rewind()
    for r in range(32): a(f'v_mov_b32 v{R.O+r}, 0')
    a('s_mov_b32 s60, 16')
    a.label('.Lat_fb2')
    load_stage()
    for t in range(2):
        kread(t)
        a(f'ds_read_b128 {v(R.VV,4)}, v13 offset:{SL + t*2048}')
        a(f'ds_read_b128 {v(R.VV+4,4)}, v13 offset:{SL + t*2048 + 1024}')
        a('s_waitcnt lgkmcnt(0)')
        for j in range(2):
            scores(t, j)
            for r in range(16): a(f'v_sub_f32 v{S_+r}, v{S_+r}, v{M0_+j}')
            for r in range(16): a(f'v_exp_f32 v{S_+r}, v{S_+r}')
            for i in range(8): a(f'v_cvt_pk_bf16_f32 v{R.P+i}, v{S_+2*i}, v{S_+2*i+1}')
            a(f'v_mfma_f32_32x32x16_bf16 {v(R.O+16*j,16)}, {v(R.VV,4)}, {v(R.P,4)}, {v(R.O+16*j,16)}')
            a(f'v_mfma_f32_32x32x16_bf16 {v(R.O+16*j,16)}, {v(R.VV+4,4)}, {v(R.P+4,4)}, {v(R.O+16*j,16)}')
    a('s_sub_u32 s60, s60, 1')
    a('s_cmp_lg_u32 s60, 0')
    a('s_cbranch_scc1 .Lat_fb2')
    a('s_nop 15')
    a('s_barrier')
    a('s_branch .Lat_combine')

def phase_oproj(a):
    BF, AF, ACC, XR, T = 16, 56, 96, XR0, 116
    a(f's_and_b32 s20, s{SJ}, 3')
    a(f's_lshr_b32 s21, s{SJ}, 2')
    a('s_and_b32 s22, s12, 3')
    a('s_lshr_b32 s23, s12, 2')
    a(f's_lshl_b32 s29, s{SG}, 4')
    a('s_lshl_b32 s30, s20, 2')
    a('s_add_u32 s29, s29, s30')
    a('s_add_u32 s29, s29, s22')
    a('v_and_b32 v5, 15, v2')
    a('v_lshrrev_b32 v6, 4, v2')
    a('s_mul_i32 s30, s29, 20480')
    a('s_mul_i32 s31, s23, 10240')
    a('s_add_u32 s30, s30, s31')
    a(f's_add_u32 s30, s30, {WS_O}')
    a('s_mul_i32 s33, s23, 10240')
    a(f's_add_u32 s33, s33, {LDS_WO}')
    a('v_add_u32 v8, s33, v10')
    a(f'v_add_u32 v9, {3*20480}, v8')
    def pre(): pass
    def mask():
        a('s_mov_b32 s44, -1'); a('s_mov_b32 s45, 0')
    sync(a, 0, 0, mask, pre, drained=True)
    stamp(a, 8)
    for i in range(10):
        if i % 4 == 0: a(f's_add_u32 s31, s30, {i*1024}')
        a(f'buffer_load_dwordx4 {v(BF+4*i,4)}, v10, s[8:11], s31 offen offset:{(i%4)*1024} sc1')
    def areads(i, buf):
        for ft in range(5):
            off = ft * 20480 + i * 1024
            base = 8
            if ft >= 3: off -= 3 * 20480; base = 9
            a(f'ds_read_b128 {v(AF+20*buf+4*ft,4)}, v{base} offset:{off}')
    areads(0, 0)
    for i in range(10):
        if i < 9:
            areads(i + 1, (i + 1) & 1)
            a(f's_waitcnt vmcnt({9-i}) lgkmcnt(5)')
        else:
            a('s_waitcnt vmcnt(0) lgkmcnt(0)')
        for ft in range(5):
            acc = v(ACC + 4 * ft, 4)
            a(f'v_mfma_f32_16x16x32_bf16 {acc}, {v(AF+20*(i&1)+4*ft,4)}, {v(BF+4*i,4)}, {"0" if i == 0 else acc}')
    stamp(a, 9)
    a('s_mul_i32 s40, s12, 3072')
    a('s_add_u32 s40, s40, 32768')
    a('v_add_u32 v14, s40, v10')
    l1, l2 = lab('ox'), lab('ox')
    a('s_nop 7')
    a('s_cmp_eq_u32 s23, 0')
    a(f's_cbranch_scc0 {l1}')
    for i, ft in enumerate((3, 4)): a(f'ds_write_b128 v14, {v(ACC+4*ft,4)} offset:{1024*i}')
    a(f's_branch {l2}')
    a.label(l1)
    for ft in range(3): a(f'ds_write_b128 v14, {v(ACC+4*ft,4)} offset:{1024*ft}')
    a('s_waitcnt lgkmcnt(0)')
    for r in range(8): a(f'v_mov_b32 v{ACC+r}, v{ACC+12+r}')
    for r in range(8, 12): a(f'v_mov_b32 v{ACC+r}, 0')
    a.label(l2)
    a('s_xor_b32 s40, s12, 4')
    a('s_mul_i32 s40, s40, 3072')
    a('s_add_u32 s40, s40, 32768')
    a('v_add_u32 v14, s40, v10')
    a('s_waitcnt lgkmcnt(0)')
    a('s_barrier')
    for i in range(3): a(f'ds_read_b128 {v(T+4*i,4)}, v14 offset:{1024*i}')
    a('s_waitcnt lgkmcnt(0)')
    for r in range(12): a(f'v_add_f32 v{ACC+r}, v{ACC+r}, v{T+r}')
    for i in range(3):
        for h2 in range(2):
            a(f'v_lshlrev_b32 v{T}, 16, v{XR+2*i+h2}')
            a(f'v_and_b32 v{T+1}, 0xffff0000, v{XR+2*i+h2}')
            a(f'v_add_f32 v{ACC+4*i+2*h2}, v{ACC+4*i+2*h2}, v{T}')
            a(f'v_add_f32 v{ACC+4*i+2*h2+1}, v{ACC+4*i+2*h2+1}, v{T+1}')
    l3 = lab('ox')
    a('s_cmp_eq_u32 s23, 0')
    a(f's_cbranch_scc1 {l3}')
    for r in range(8, 12): a(f'v_mov_b32 v{ACC+r}, 0')
    a.label(l3)
    a(f'v_mov_b32 v{T}, v{ACC}')
    a(f'v_mul_f32 v{T+1}, v{ACC}, v{ACC}')
    for r in range(1, 12):
        a(f'v_add_f32 v{T}, v{T}, v{ACC+r}')
        a(f'v_fmac_f32 v{T+1}, v{ACC+r}, v{ACC+r}')
    sum_q4(a, T, T+2, T+3)
    sum_q4(a, T+1, T+2, T+3)
    for i in range(6): a(f'v_cvt_pk_bf16_f32 v{T+4+i}, v{ACC+2*i}, v{ACC+2*i+1}')
    a('s_mul_i32 s34, s29, 20480')
    a('s_mul_i32 s35, s21, 2560')
    a('s_add_u32 s34, s34, s35')
    a('s_mul_i32 s35, s23, 1536')
    a('s_add_u32 s34, s34, s35')
    a(f's_add_u32 s34, s34, {WS_H}')
    a('v_lshrrev_b32 v11, 1, v6')
    a('v_lshlrev_b32 v11, 8, v11')
    a('v_lshl_add_u32 v11, v5, 4, v11')
    a('v_and_b32 v12, 1, v6')
    a('v_lshl_add_u32 v11, v12, 3, v11')
    a('s_lshl_b32 s33, s29, 7')
    a('s_lshl_b32 s35, s21, 1')
    a('s_add_u32 s35, s35, s23')
    a('s_lshl_b32 s35, s35, 14')
    a('s_add_u32 s33, s33, s35')
    a(f's_add_u32 s33, s33, {WS_ST2}')
    a('v_lshlrev_b32 v12, 3, v5')
    a('s_cmp_eq_u32 s23, 0')
    a(f's_cselect_b32 s35, s34, {0x7ffff000}')
    stores2(a, [f'buffer_store_dwordx2 {v(T+4,2)}, v11, s[8:11], s34 offen',
                f'buffer_store_dwordx2 {v(T+6,2)}, v11, s[8:11], s34 offen offset:512',
                f'buffer_store_dwordx2 {v(T+8,2)}, v11, s[8:11], s35 offen offset:1024',
                's_mov_b64 exec, 0xffff',
                f'buffer_store_dwordx2 {v(T,2)}, v12, s[8:11], s33 offen',
                's_mov_b64 exec, -1'])

F2_SLOT = {0: 81920, 1: 122880, 2: 0, 3: 40960, 4: 81920, 5: 122880, 6: 0}
def w2_setup(a):
    a(f's_lshr_b32 s21, s{SJ}, 2')
    a('s_lshr_b32 s22, s12, 2')
    a('s_mul_i32 s22, s22, 27')
    a('s_and_b32 s23, s12, 3')
    a('s_add_u32 s22, s22, s23')
    a('s_lshl_b32 s22, s22, 10')
    a('s_mul_i32 s47, s21, 276480')
    a(f's_add_u32 s47, s47, {WS_W2}')
    a('s_add_u32 s47, s47, s22')
    a('s_mul_i32 s48, s12, 5120')
def w2_dma(st, ft):
    return [f's_add_u32 m0, s48, {F2_SLOT[st] + ft*1024}', f's_add_u32 s49, s47, {st*4096 + ft*55296}',
            'buffer_load_dwordx4 v10, s[8:11], s49 offen lds']

def far_touch(a, vt, vd):
    a(f'v_lshlrev_b32 v{vt}, 7, v2')
    a(f's_mul_i32 s56, s{SJ}, 69120')
    a('s_lshl_b32 s57, s12, 13')
    a('s_add_u32 s56, s56, s57')
    a(f's_add_u32 s56, s56, {WS_W2}')
    a(f'buffer_load_dword v{vd}, v{vt}, s[8:11], s56 offen')
    a(f's_mul_i32 s56, s{SG}, {16*55296}')
    a(f's_mul_i32 s57, s{SJ}, 27648')
    a('s_add_u32 s56, s56, s57')
    a('s_lshl_b32 s57, s12, 13')
    a('s_add_u32 s56, s56, s57')
    a(f's_add_u32 s56, s56, {WS_G}')
    a(f's_mul_i32 s57, s{SJ}, 69120')
    a(f's_add_u32 s57, s57, {WS_W2 + 65536}')
    a('s_cmp_eq_u32 s12, 4')
    a('s_cselect_b32 s56, s57, s56')
    a('s_cmp_gt_u32 s12, 4')
    a('s_cselect_b32 s56, 0x7ff00000, s56')
    a(f'buffer_load_dword v{vd}, v{vt}, s[8:11], s56 offen')

def phase_ffn1(a, vm_pre):
    ACC, FB = 72, 104
    CS, B1, ST = 192, 168, 128
    SEL, CSA, B1R = 120, 124, 184
    NS = 5
    a(f'v_mov_b32 v{SEL}, 0')
    a('s_mov_b32 s52, 0x00020001')
    a('s_mov_b32 s53, 0x00020001')
    a('v_mov_b32 v15, 0x3f803f80')
    a(f'v_cndmask_b32 v{SEL}, v{SEL}, v15, s[52:53]')
    for r in range(1, 4): a(f'v_mov_b32 v{SEL+r}, v{SEL}')
    for r in range(4): a(f'v_mov_b32 v{CSA+r}, 0')
    srd(a, 52, 68, F * 2)
    w2_setup(a)
    a(f's_and_b32 s13, s{SJ}, 1')
    a(f's_lshl_b32 s15, s{SG}, 1')
    a('s_add_u32 s13, s13, s15')
    a(f's_lshr_b32 s14, s{SJ}, 1')
    a('s_and_b32 s23, s12, 3')
    a('s_lshr_b32 s26, s12, 2')
    a('v_lshrrev_b32 v7, 4, v3')
    a('s_movk_i32 s17, 20480')
    a('v_mul_lo_u32 v7, v7, s17')
    a('v_and_b32 v6, 15, v3')
    a('v_lshl_add_u32 v7, v6, 4, v7')
    a('v_lshl_add_u32 v7, v4, 8, v7')
    a('s_lshl_b32 s20, s13, 3')
    a('s_lshl_b32 s19, s23, 1')
    a('s_add_u32 s20, s20, s19')
    a('s_mul_i32 s20, s20, 20480')
    a('s_lshl_b32 s19, s26, 10')
    a('s_add_u32 s20, s20, s19')
    a(f's_add_u32 s20, s20, {WS_H}')
    a('s_lshl_b32 s22, s23, 10')
    a('s_lshl_b32 s19, s26, 13')
    a('s_add_u32 s22, s22, s19')
    a('s_lshl_b32 s17, s26, 11')
    a('v_add_u32 v12, s17, v10')
    a('v_add_u32 v13, 0x10000, v12')
    vm = VM()
    def pre(): pass
    def mask():
        a(f's_and_b32 s40, s{SJ}, 1')
        a('s_cmp_eq_u32 s40, 0')
        a('s_mov_b32 s44, 0xcccccccc')
        a('s_cselect_b32 s44, 0x33333333, s44')
        a('s_mov_b32 s45, 0')
    sync(a, 1, 1, mask, pre)
    stamp(a, 10)
    nst = 10
    pend = [(st, i) for st in range(nst) for i in range(2)]
    def dma_one():
        st, i = pend.pop(0)
        a(f's_add_u32 m0, s22, {(st % NS)*16384 + i*4096}')
        a(f's_add_u32 s21, s20, {st*2048 + i*512}')
        a('buffer_load_dwordx4 v7, s[8:11], s21 offen sc1 lds')
        vm.issue(('h', st))
    for _ in range(2 * 3): dma_one()
    a('s_lshl_b32 s27, s13, 7')
    a('s_lshl_b32 s28, s26, 6')
    a('s_add_u32 s27, s27, s28')
    a('s_lshl_b32 s28, s13, 7')
    a('s_lshl_b32 s29, s23, 5')
    a('s_add_u32 s28, s28, s29')
    a('s_lshl_b32 s28, s28, 3')
    a(f's_add_u32 s28, s28, {WS_ST2}')
    a('v_lshlrev_b32 v14, 3, v3')
    a('v_lshl_add_u32 v14, v4, 17, v14')
    def st_load(q):
        a(f's_add_u32 s29, s28, {q*16384}')
        a(f'buffer_load_dwordx2 {v(ST+2*q,2)}, v14, s[8:11], s29 offen sc1')
        vm.issue('st')
    w1q = list(range(26, 40))
    def w1_load():
        s_ = w1q.pop(0)
        a(f's_add_u32 s40, s{S_W1}, {s_*512}')
        a(f'buffer_load_dwordx4 {v(w1reg(s_),4)}, v{V_W1}, s[8:11], s40 offen')
        vm.issue(('w1', s_))
    def reads(st, ks, buf):
        off = (st % NS) * 16384 + ks * 4096
        base = 12
        if off + 1024 >= 65536: off -= 65536; base = 13
        a(f'ds_read_b128 {v(FB+8*buf,4)}, v{base} offset:{off}')
        a(f'ds_read_b128 {v(FB+8*buf+4,4)}, v{base} offset:{off+1024}')
    def mfmas(s_, buf):
        for j in range(2):
            c = '0' if s_ == 0 else v(ACC+16*j, 16)
            a(f'v_mfma_f32_32x32x16_bf16 {v(ACC+16*j,16)}, {v(w1reg(s_),4)}, {v(FB+8*buf+4*j,4)}, {c}')
    F1S = 'f1stamp' in gen.EXP
    w2q = [(st, ft) for st in (0, 1) for ft in range(5)]
    if F1S: stamp(a, 2)
    vm.wait(a, lambda x: x == ('h', 0))
    a('s_barrier')
    if F1S: stamp(a, 3)
    reads(0, 0, 0)
    buf = 0
    for st in range(nst):
        for ks in range(4):
            s_ = 4 * st + ks
            if ks < 3:
                reads(st, ks + 1, buf ^ 1)
                if s_ >= 26: vm.wait(a, lambda x: x == ('w1', s_), ' lgkmcnt(2)')
                else: a('s_waitcnt lgkmcnt(2)')
                mfmas(s_, buf)
            else:
                if st + 1 < nst:
                    a('s_waitcnt lgkmcnt(0)')
                    if F1S and st in (0, 2, 4, 6): stamp(a, {0: 4, 2: 7, 4: 9, 6: 13}[st])
                    vm.wait(a, lambda x: x == ('h', st + 1))
                    a('s_barrier')
                    if F1S and st in (0, 2, 4, 6): stamp(a, {0: 5, 2: 8, 4: 12, 6: 14}[st])
                    reads(st + 1, 0, buf ^ 1)
                else:
                    a('s_waitcnt lgkmcnt(0)')
                if s_ >= 26: vm.wait(a, lambda x: x == ('w1', s_))
                mfmas(s_, buf)
            lim = st + NS - 1 + (1 if ks == 3 else 0)
            if pend and pend[0][0] <= lim and (ks in (1, 3) or st == 0): dma_one()
            if ks in (0, 2) and w1q and st <= 6: w1_load()
            if st == 7 and ks < 4:
                st_load(2 * ks); st_load(2 * ks + 1)
            if st >= 8 and not (st == 8 and ks == 0):
                for _ in range(2 if (st == 9 or ks >= 2) else 1):
                    if w2q:
                        for x in w2_dma(*w2q.pop(0)): a(x)
                        vm.issue('w2')
            lc = lab('cs')
            a(f's_cmp_eq_u32 s26, {s_ & 1}')
            a(f's_cbranch_scc0 {lc}')
            a(f'v_mfma_f32_16x16x32_bf16 {v(CSA,4)}, {v(w1reg(s_),4)}, {v(SEL,4)}, {v(CSA,4)}')
            a.label(lc)
            if st == 8 and ks == 0:
                a('s_lshl_b32 s29, s14, 7')
                a('s_lshl_b32 s30, s23, 5')
                a('s_add_u32 s29, s29, s30')
                a('s_lshl_b32 s29, s29, 1')
                a('v_lshlrev_b32 v15, 4, v4')
                a(f'buffer_load_dwordx4 {v(B1R,4)}, v15, s[52:55], s29 offen'); vm.issue('cs')
                a(f'buffer_load_dwordx4 {v(B1R+4,4)}, v15, s[52:55], s29 offen offset:32'); vm.issue('cs')
            buf ^= 1
    assert not w2q, w2q
    stamp(a, 11)
    LST = 0
    l2 = lab('st')
    vm.wait(a, lambda x: x == 'cs')
    a('s_cmp_ge_u32 s12, 4')
    a(f's_cbranch_scc1 {l2}')
    b = ST
    for q in range(1, 8):
        a(f'v_add_f32 v{b}, v{b}, v{b+2*q}')
        a(f'v_add_f32 v{b+1}, v{b+1}, v{b+2*q+1}')
    for r in range(2):
        a(f'v_mov_b32 v{b+2}, v{b+r}'); a(f'v_mov_b32 v{b+3}, v{b+r}')
        a(f'v_permlane32_swap_b32 v{b+2}, v{b+3}')
        a(f'v_add_f32 v{b+r}, v{b+2}, v{b+3}')
    a(f'v_mul_f32 v{b}, {f2hex(1.0/640)}, v{b}')
    a(f'v_mul_f32 v{b+1}, {f2hex(1.0/640)}, v{b+1}')
    a(f'v_fma_f32 v{b+1}, -v{b}, v{b}, v{b+1}')
    a(f'v_add_f32 v{b+1}, 0x3727c5ac, v{b+1}')
    a(f'v_rsq_f32 v{b+1}, v{b+1}')
    a(f'v_mul_f32 v{b}, v{b}, v{b+1}')
    a('s_lshl_b32 s28, s12, 8')
    a('v_lshlrev_b32 v14, 3, v3')
    a('v_add_u32 v14, s28, v14')
    a(f'ds_write_b64 v14, {v(b,2)} offset:{LST}')
    a.label(l2)
    a('s_lshl_b32 s28, s23, 8')
    a('s_lshl_b32 s29, s26, 7')
    a('s_add_u32 s28, s28, s29')
    a('v_and_b32 v14, 1, v2')
    a('v_lshlrev_b32 v14, 6, v14')
    a('v_lshrrev_b32 v15, 4, v2')
    a('v_lshl_add_u32 v14, v15, 4, v14')
    a('v_add_u32 v14, s28, v14')
    a('s_mov_b32 s44, 0x00030003')
    a('s_mov_b32 s45, 0x00030003')
    a('s_mov_b64 exec, s[44:45]')
    a(f'ds_write_b128 v14, {v(CSA,4)} offset:{LST+1024}')
    a('s_mov_b64 exec, -1')
    a('s_waitcnt lgkmcnt(0)')
    a('s_barrier')
    a('s_lshl_b32 s28, s26, 9')
    a('v_lshlrev_b32 v14, 3, v3')
    a('v_add_u32 v14, s28, v14')
    a(f'ds_read_b64 {v(ST,2)}, v14 offset:{LST}')
    a(f'ds_read_b64 {v(ST+4,2)}, v14 offset:{LST+256}')
    a('s_lshl_b32 s28, s23, 8')
    a('v_lshlrev_b32 v14, 4, v4')
    a('v_add_u32 v14, s28, v14')
    for th_ in range(2):
        for g in range(4):
            a(f'ds_read_b128 {v(CS+32*th_+4*g,4)}, v14 offset:{LST + 1024 + th_*128 + g*32}')
    for q in range(8):
        a(f'v_lshlrev_b32 v{B1+2*q}, 16, v{B1R+q}')
        a(f'v_and_b32 v{B1+2*q+1}, 0xffff0000, v{B1R+q}')
    a('s_waitcnt lgkmcnt(0)')
    for r in range(16): a(f'v_add_f32 v{CS+r}, v{CS+r}, v{CS+32+r}')
    for j in range(2):
        b = ST + 4 * j
        for r in range(16):
            a(f'v_fma_f32 v{b+2}, -v{b}, v{CS+r}, v{B1+r}')
            a(f'v_fma_f32 v{ACC+16*j+r}, v{b+1}, v{ACC+16*j+r}, v{b+2}')
            a(f'v_max_f32 v{ACC+16*j+r}, 0, v{ACC+16*j+r}')
            a(f'v_mul_f32 v{ACC+16*j+r}, v{ACC+16*j+r}, v{ACC+16*j+r}')
    PK = 104
    for r in range(16):
        a(f'v_cvt_pk_bf16_f32 v{PK+r}, v{ACC+2*r}, v{ACC+2*r+1}')
    a('v_lshrrev_b32 v13, 4, v3')
    a('s_mov_b32 s18, 55296')
    a('v_mul_lo_u32 v13, v13, s18')
    a('v_and_b32 v14, 15, v3')
    a('v_lshl_add_u32 v13, v14, 4, v13')
    a('v_lshl_add_u32 v13, v4, 8, v13')
    a('s_lshr_b32 s18, s27, 4')
    a('s_mul_i32 s18, s18, 55296')
    a('s_lshl_b32 s17, s14, 2')
    a('s_add_u32 s17, s17, s23')
    a('s_cmp_ge_u32 s17, 54')
    a('s_cselect_b32 s19, 0x40000000, 0')
    a('s_lshl_b32 s17, s17, 10')
    a('s_add_u32 s17, s17, s18')
    a(f's_add_u32 s17, s17, {WS_G}')
    a('s_add_u32 s17, s17, s19')
    a(f's_add_u32 s18, s17, {2*55296}')
    stores2(a, [f'buffer_store_dwordx4 {v(PK,4)}, v13, s[8:11], s17 offen',
                f'buffer_store_dwordx4 {v(PK+4,4)}, v13, s[8:11], s17 offen offset:512',
                f'buffer_store_dwordx4 {v(PK+8,4)}, v13, s[8:11], s18 offen',
                f'buffer_store_dwordx4 {v(PK+12,4)}, v13, s[8:11], s18 offen offset:512'])

def phase_ffn2(a, L, published):
    NST = 7
    vm = VM()
    BF, ACC, AF, T = 16, 128, 168, 16
    def pre():
        for st in (2, 3):
            for ft in range(5):
                for x in w2_dma(st, ft): a(x)
    def mask():
        a(f's_and_b32 s40, s{SJ}, 2')
        a('s_cmp_eq_u32 s40, 0')
        a('s_mov_b32 s44, 0x0aaaaaaa')
        a('s_cselect_b32 s44, 0x05555555, s44')
        a('s_mov_b32 s45, 0')
    a(f's_and_b32 s20, s{SJ}, 3')
    a(f's_lshr_b32 s21, s{SJ}, 2')
    a('s_and_b32 s22, s12, 3')
    a('s_lshr_b32 s23, s12, 2')
    a(f's_lshl_b32 s29, s{SG}, 4')
    a('s_lshl_b32 s30, s20, 2')
    a('s_add_u32 s29, s29, s30')
    a('s_add_u32 s29, s29, s22')
    a('s_mul_i32 s32, s29, 55296')
    a('s_mul_i32 s33, s23, 27648')
    a('s_add_u32 s32, s32, s33')
    a(f's_add_u32 s32, s32, {WS_G}')
    a('s_mul_i32 s34, s23, 20480')
    a('v_add_u32 v8, s34, v10')
    a('v_add_u32 v9, 0x10000, v8')
    a('v_add_u32 v11, 0x20000, v8')
    srd(a, 52, 70, D * 2)
    sync(a, 2 if published else None, 2, mask, pre)
    return vm

def ffn2_body(a, L):
    NST = 7
    vm = VM()
    for st in (0, 1, 2, 3):
        for ft in range(5): vm.issue(('w', st))
    BF, ACC, AF, T, HR, BB = 16, 124, 144, 184, 200, 208
    if 'f1stamp' not in gen.EXP: stamp(a, 12)
    def bload(i):
        a(f's_add_u32 s33, s32, {i*1024}')
        a(f'buffer_load_dwordx4 {v(BF+4*i,4)}, v10, s[8:11], s33 offen sc1')
        vm.issue(('b', i))
    NB0 = 6 if 'oldb' in gen.EXP else 4
    for i in range(NB0): bload(i)
    bq = list(range(NB0, 27))
    wq = [(st, ft) for st in range(4, 7) for ft in range(5)]
    def areads(ks, buf):
        st, i = ks >> 2, ks & 3
        for ft in range(5):
            off = F2_SLOT[st] + i * 5120 + ft * 1024
            base = {0: 8, 1: 9, 2: 11}[off >> 16]
            a(f'ds_read_b128 {v(AF+20*buf+4*ft,4)}, v{base} offset:{off & 65535}')
    F2S = 'f2stamp' in gen.EXP
    BX = 6
    if F2S: stamp(a, 2)
    vm.wait(a, lambda x: x == ('w', 0))
    a('s_barrier')
    if F2S: stamp(a, 3)
    areads(0, 0)
    for ks in range(27):
        if F2S and ks in (1, 4, 8, 12, 16, 20, 24): stamp(a, {1: 4, 4: 5, 8: 7, 12: 8, 16: 9, 20: 10, 24: 11}[ks])
        st, i = ks >> 2, ks & 3
        buf = ks & 1
        nxt = ks + 1
        if nxt < 27:
            if (nxt & 3) == 0:
                a('s_waitcnt lgkmcnt(0)')
                vm.wait(a, lambda x: x == ('w', nxt >> 2))
                a('s_barrier')
                areads(nxt, buf ^ 1)
                vm.wait(a, lambda x: x == ('b', ks))
            else:
                areads(nxt, buf ^ 1)
                vm.wait(a, lambda x: x == ('b', ks), ' lgkmcnt(5)')
        else:
            vm.wait(a, lambda x: x == ('b', ks), ' lgkmcnt(0)')
        for ft in range(5):
            acc = v(ACC + 4 * ft, 4)
            a(f'v_mfma_f32_16x16x32_bf16 {acc}, {v(AF+20*buf+4*ft,4)}, {v(BF+4*ks,4)}, {"0" if ks == 0 else acc}')
            if 'oldb' in gen.EXP:
                if ft in (1, 3) and bq and bq[0] <= ks + 12: bload(bq.pop(0))
            elif (ft == 1 or (ft == 3 and ks < BX)) and bq and bq[0] <= ks + 10: bload(bq.pop(0))
            if ft in (0, 2, 4) and wq and (wq[0][0] - 4) < st + (1 if (nxt & 3) == 0 and nxt < 27 else 0):
                x_ = wq.pop(0)
                for x in w2_dma(*x_): a(x)
                vm.issue(('w', x_[0]))
        if ks == 20:
            a('v_and_b32 v5, 15, v2')
            a('v_lshrrev_b32 v6, 4, v2')
            a('s_mul_i32 s34, s29, 20480')
            a('s_mul_i32 s35, s21, 2560')
            a('s_add_u32 s34, s34, s35')
            a('s_mul_i32 s35, s23, 1536')
            a('s_add_u32 s34, s34, s35')
            a(f's_add_u32 s34, s34, {WS_H}')
            a('v_lshrrev_b32 v12, 1, v6')
            a('v_lshlrev_b32 v12, 8, v12')
            a('v_lshl_add_u32 v12, v5, 4, v12')
            a('v_and_b32 v13, 1, v6')
            a('v_lshl_add_u32 v12, v13, 3, v12')
            for i_ in range(3):
                a(f'buffer_load_dwordx2 {v(HR+2*i_,2)}, v12, s[8:11], s34 offen offset:{512*i_} sc1'); vm.issue('hr')
            a('s_mul_i32 s35, s21, 160')
            a('s_mul_i32 s36, s23, 96')
            a('s_add_u32 s35, s35, s36')
            a('v_lshlrev_b32 v13, 3, v6')
            for i_ in range(3):
                a(f'buffer_load_dwordx2 {v(BB+2*i_,2)}, v13, s[52:55], s35 offen offset:{32*i_}'); vm.issue('hr')
    assert not bq and not wq, (bq, wq)
    if 'f1stamp' not in gen.EXP: stamp(a, 13)
    XB = 81920
    a('s_mul_i32 s40, s12, 3072')
    a(f's_add_u32 s40, s40, {XB}')
    a('v_add_u32 v14, s40, v10')
    l1, l2 = lab('fx'), lab('fx')
    a('s_nop 7')
    a('s_cmp_eq_u32 s23, 0')
    a(f's_cbranch_scc0 {l1}')
    for i_, ft in enumerate((3, 4)): a(f'ds_write_b128 v14, {v(ACC+4*ft,4)} offset:{1024*i_}')
    a(f's_branch {l2}')
    a.label(l1)
    for ft in range(3): a(f'ds_write_b128 v14, {v(ACC+4*ft,4)} offset:{1024*ft}')
    a('s_waitcnt lgkmcnt(0)')
    for r in range(8): a(f'v_mov_b32 v{ACC+r}, v{ACC+12+r}')
    a.label(l2)
    a('s_xor_b32 s40, s12, 4')
    a('s_mul_i32 s40, s40, 3072')
    a(f's_add_u32 s40, s40, {XB}')
    a('v_add_u32 v14, s40, v10')
    a('s_waitcnt lgkmcnt(0)')
    a('s_barrier')
    for i_ in range(3): a(f'ds_read_b128 {v(T+4*i_,4)}, v14 offset:{1024*i_}')
    a('s_waitcnt vmcnt(0) lgkmcnt(0)')
    for r in range(12): a(f'v_add_f32 v{ACC+r}, v{ACC+r}, v{T+r}')
    for i_ in range(3):
        for h2 in range(2):
            a(f'v_lshlrev_b32 v{T}, 16, v{HR+2*i_+h2}')
            a(f'v_and_b32 v{T+1}, 0xffff0000, v{HR+2*i_+h2}')
            a(f'v_lshlrev_b32 v{T+2}, 16, v{BB+2*i_+h2}')
            a(f'v_and_b32 v{T+3}, 0xffff0000, v{BB+2*i_+h2}')
            a(f'v_add_f32 v{ACC+4*i_+2*h2}, v{ACC+4*i_+2*h2}, v{T+2}')
            a(f'v_add_f32 v{ACC+4*i_+2*h2+1}, v{ACC+4*i_+2*h2+1}, v{T+3}')
            a(f'v_add_f32 v{ACC+4*i_+2*h2}, v{ACC+4*i_+2*h2}, v{T}')
            a(f'v_add_f32 v{ACC+4*i_+2*h2+1}, v{ACC+4*i_+2*h2+1}, v{T+1}')
    for i_ in range(6): a(f'v_cvt_pk_bf16_f32 v{T+4+i_}, v{ACC+2*i_}, v{ACC+2*i_+1}')
    a('s_lshl_b32 s33, s29, 4')
    a('v_add_u32 v7, s33, v5')
    a('s_movk_i32 s34, 1280')
    a('v_mul_lo_u32 v7, v7, s34')
    a('v_lshl_add_u32 v7, v6, 3, v7')
    a('s_mul_i32 s34, s21, 160')
    a('s_mul_i32 s35, s23, 96')
    a('s_add_u32 s34, s34, s35')
    a('s_cmp_eq_u32 s23, 0')
    a('s_cselect_b32 s35, s34, 0x7ff00000')
    a(f'buffer_store_dwordx2 {v(T+4,2)}, v7, s[76:79], s34 offen')
    a(f'buffer_store_dwordx2 {v(T+6,2)}, v7, s[76:79], s34 offen offset:32')
    a(f'buffer_store_dwordx2 {v(T+8,2)}, v7, s[76:79], s35 offen offset:64')

def kf():
    a = Asm()
    merged = 'merge' in gen.EXP
    L = NAME + '_kernel' if merged else 'kf_kernel'
    kernel_begin(a, L)
    a('s_cmp_ge_u32 s2, 256')
    a(f's_cbranch_scc1 {L}_end')
    if merged:
        import gen5
        if gen.PROF: a('v_mov_b32 v254, v0')
        gen5.k1s(a, '.Ljoin')
        a.label('.Ljoin')
        a('s_waitcnt vmcnt(0) lgkmcnt(0)')
        a('s_barrier')
        if gen.PROF:
            srd(a, 8, 4, WS_END)
            stamp_flush(a, 1, 12, 8, 12)
            a('v_mov_b32 v0, v254')
            a('s_waitcnt vmcnt(0)')
        lj, lp, ld = lab('gb'), lab('gb'), lab('gb')
        a('s_cmp_lg_u32 s12, 0')
        a(f's_cbranch_scc1 {lj}')
        a(f's_load_dwordx2 s[20:21], s[0:1], {A_DBG}')
        a('s_and_b32 s40, s2, 7')
        a('s_lshl_b32 s40, s40, 5')
        a('v_mov_b32 v5, s40')
        a('v_mov_b32 v6, 1')
        a('v_and_b32 v7, 7, v0')
        a('v_lshlrev_b32 v7, 5, v7')
        a('s_waitcnt lgkmcnt(0)')
        a('s_mov_b64 exec, 1')
        a('global_atomic_add v5, v6, s[20:21] sc1')
        a('s_mov_b64 exec, 0xff')
        a('s_mov_b32 s41, 0')
        a.label(lp)
        a('global_load_dword v8, v7, s[20:21] sc1')
        a('s_add_u32 s41, s41, 1')
        a('s_waitcnt vmcnt(0)')
        a('v_cmp_ne_u32 vcc, 32, v8')
        a(f's_cbranch_vccz {ld}')
        a(f's_cmp_lt_u32 s41, {SPIN_MAX}')
        a(f's_cbranch_scc1 {lp}')
        a.label(ld)
        a('s_mov_b64 exec, -1')
        a.label(lj)
        a('s_barrier')
    stamp(a, 0, True); stamp(a, 1)
    if 'dbg' in gen.EXP:
        a('s_memrealtime s[90:91]'); a('s_memtime s[92:93]'); a(f's_load_dwordx2 s[94:95], s[0:1], {A_DBG}')
    if 'nocodepf' not in gen.EXP and not merged:
        code_touch(a, L, '.Lkf_last', '.Lpc_kf', 144, 151, 2)
    a(f's_load_dwordx2 s[4:5], s[0:1], {A_WS}')
    a(f's_load_dwordx2 s[68:69], s[0:1], {A_X}')
    a(f's_load_dwordx2 s[70:71], s[0:1], {A_OUT}')
    a(f's_and_b32 s{SG}, s2, 7')
    a(f's_lshr_b32 s{SJ}, s2, 3')
    a(f's_mov_b32 s{SH}, s{SJ}')
    a(f's_mov_b32 s{SR}, s{SG}')
    a('v_lshrrev_b32 v1, 6, v0')
    a('v_and_b32 v2, 63, v0')
    a('v_readfirstlane_b32 s12, v1')
    a('v_and_b32 v3, 31, v2')
    a('v_lshrrev_b32 v4, 5, v2')
    a(f's_getreg_b32 s{SPURE}, hwreg(HW_REG_XCC_ID, 0, 4)')
    a(f's_add_u32 s{SPURE}, s{SPURE}, 1')
    attn_setup(a, SH, SR, 12, 8, defer=True)
    a('s_waitcnt lgkmcnt(0)')
    srd(a, 8, 4, WS_END)
    attn_dma(a, 0, 8)
    attn_qloads(a, 8)
    srd(a, 72, 68, S * D * 2)
    srd(a, 76, 70, S * D * 2)
    a(f's_load_dwordx2 s[68:69], s[0:1], {A_B1}')
    a(f's_load_dwordx2 s[70:71], s[0:1], {A_B2}')
    stamp(a, 2)
    phase_attn(a, L)
    phase_oproj(a)
    stamp(a, 5)
    a(f's_cmp_ge_u32 s{SJ}, 28')
    a(f's_cbranch_scc1 {L}_idle')
    phase_ffn1(a, None)
    phase_ffn2(a, L, True)
    a(f's_branch {L}_f2')
    a.label(f'{L}_idle')
    a('s_waitcnt vmcnt(0)')
    a('s_barrier')
    li = lab('id')
    a('s_cmp_lg_u32 s12, 0')
    a(f's_cbranch_scc1 {li}')
    flag_store(a, 1, 14)
    a.label(li)
    w2_setup(a)
    for st in (0, 1):
        for ft in range(5):
            for x in w2_dma(st, ft): a(x)
    a('s_waitcnt vmcnt(0)')
    phase_ffn2(a, L, False)
    a.label(f'{L}_f2')
    ffn2_body(a, L)
    a.label(f'{L}_fin')
    if 'f1stamp' not in gen.EXP: stamp(a, 14)
    if 'dbg' in gen.EXP:
        a('s_waitcnt vmcnt(0)')
        a('s_memrealtime s[96:97]'); a('s_memtime s[86:87]'); a('s_waitcnt lgkmcnt(0)')
        ldb = lab('db')
        a('s_cmp_lg_u32 s2, 0'); a(f's_cbranch_scc1 {ldb}'); a('s_cmp_lg_u32 s12, 0'); a(f's_cbranch_scc1 {ldb}')
        a('s_sub_u32 s96, s96, s90'); a('s_sub_u32 s86, s86, s92')
        a('v_mov_b32 v0, 0'); a('v_mov_b32 v2, s96'); a('v_mov_b32 v3, s86'); a('v_mov_b32 v4, s90'); a('v_mov_b32 v5, 0')
        a('global_store_dwordx4 v0, v[2:5], s[94:95] offset:16')
        a(f's_mov_b32 s86, {WS_PROF}')
        a('buffer_load_dwordx4 v[6:9], v0, s[8:11], s86 offen')
        a('s_waitcnt vmcnt(0)')
        a('global_store_dwordx4 v0, v[6:9], s[94:95]')
        a.label(ldb)
    if gen.PROF: a('s_waitcnt vmcnt(0)')
    stamp(a, 6, True)
    stamp_flush(a, 2, 15, 8, 12)
    a.label(f'{L}_end')
    a('s_endpgm')
    attn_fallback(a)
    a.label('.Lkf_last')
    a('s_endpgm')
    if merged: return a, descriptor(L, 256, 102), '; @launch grid=(256,1,1) block=(512,1,1) lds=163840'
    return a, descriptor(L, 256, 102), f'; @launch kernel={L} grid=(256,1,1) block=(512,1,1) lds=163840'

if __name__ == '__main__':
    if 'prof' in sys.argv: gen.PROF = True
    for x in sys.argv[2:]:
        if x.startswith('x:'): gen.EXP.add(x[2:])
    out = sys.argv[1]
    import gen4, gen5
    ks_ = [kf] if 'merge' in gen.EXP else ([k0, k1, kf] if 'old' in gen.EXP else [gen4.k1p if 'k1p' in gen.EXP else gen5.k1s, kf])
    open(out, 'w').write(build(ks_))
    print('wrote', out)
```

```python
import sys
sys.path.insert(0, 'dev')
import gen
from gen import *
from asmlib import *

WS_XT = WS_FLAG + 4096
SG, SJ, SPURE = 64, 65, 66
LDS_WO = 4 * AT_SLOT
SPIN_MAX = 40000

uid = [0]
def lab(p):
    uid[0] += 1
    return f'.L{p}{uid[0]}'

def stores2(a, instrs):
    l1, l2 = lab('st'), lab('st')
    a(f's_cmp_eq_u32 s{SPURE}, 1')
    a(f's_cbranch_scc0 {l1}')
    for x in instrs: a(x)
    a(f's_branch {l2}')
    a.label(l1)
    for x in instrs:
        a(x + ' sc1' if x.startswith('buffer_store') else x)
    a.label(l2)

def publish(a, p, vt):
    a('s_waitcnt vmcnt(0)')
    a('s_barrier')
    l = lab('pub')
    a('s_cmp_lg_u32 s12, 0')
    a(f's_cbranch_scc1 {l}')
    a(f's_lshl_b32 s40, s{SG}, 7')
    a(f's_lshl_b32 s41, s{SJ}, 2')
    a('s_add_u32 s40, s40, s41')
    a(f's_add_u32 s40, s40, {WS_FLAG + p*1024}')
    a(f'v_mov_b32 v{vt}, 0')
    a(f'v_mov_b32 v{vt+1}, 1')
    a('s_mov_b64 exec, 1')
    stores2(a, [f'buffer_store_dword v{vt+1}, v{vt}, s[8:11], s40 offen'])
    a('s_mov_b64 exec, -1')
    a.label(l)

def await_flags(a, p, smask, vt):
    l, lp, ld = lab('aw'), lab('aw'), lab('aw')
    a('s_cmp_lg_u32 s12, 0')
    a(f's_cbranch_scc1 {l}')
    a(f's_lshl_b32 s40, s{SG}, 7')
    a(f's_add_u32 s40, s40, {WS_FLAG + p*1024}')
    a(f'v_lshlrev_b32 v{vt}, 2, v2')
    a(f's_mov_b64 exec, s[{smask}:{smask+1}]')
    a('s_mov_b32 s41, 0')
    a.label(lp)
    a(f'buffer_load_dword v{vt+1}, v{vt}, s[8:11], s40 offen sc1')
    a('s_add_u32 s41, s41, 1')
    a('s_waitcnt vmcnt(0)')
    a(f'v_cmp_eq_u32 vcc, 0, v{vt+1}')
    a(f's_cbranch_vccz {ld}')
    a(f's_cmp_lt_u32 s41, {SPIN_MAX}')
    a(f's_cbranch_scc1 {lp}')
    a.label(ld)
    a('s_mov_b64 exec, -1')
    l3 = lab('aw')
    a(f's_cmp_eq_u32 s{SPURE}, 1')
    a(f's_cbranch_scc1 {l3}')
    a('buffer_inv sc1')
    a('s_waitcnt vmcnt(0)')
    a.label(l3)
    a.label(l)
    a('s_barrier')

def attn_units(a, ssrd, stages, dma_kv, extra, first_wait, prio=None, start=False):
    R = AR
    def kreads(slot, t, buf):
        return [f'ds_read_b128 {v(R.KA+4*buf,4)}, v11 offset:{slot*AT_SLOT + t*1024}',
                f'ds_read_b64 {v(R.KC+2*buf,2)}, v12 offset:{slot*AT_SLOT + t*512}']
    def vreads(slot, t, buf):
        return [f'ds_read_b128 {v(R.VV+8*buf,4)}, v13 offset:{slot*AT_SLOT + t*2048}',
                f'ds_read_b128 {v(R.VV+8*buf+4,4)}, v13 offset:{slot*AT_SLOT + t*2048 + 1024}']
    def m1(sb, kb, j): return f'v_mfma_f32_32x32x16_bf16 {v(R.S+16*sb,16)}, {v(R.KA+4*kb,4)}, {v(R.QA+4*j,4)}, 0'
    def m2(sb, kb, j): return f'v_mfma_f32_32x32x8bf16_1k {v(R.S+16*sb,16)}, {v(R.KC+2*kb,2)}, {v(R.QC+2*j,2)}, {v(R.S+16*sb,16)}'
    def m3(j, vb, pb): return f'v_mfma_f32_32x32x16_bf16 {v(R.O+16*j,16)}, {v(R.VV+8*vb,4)}, {v(R.P+8*pb,4)}, {v(R.O+16*j,16)}'
    def m4(j, vb, pb): return f'v_mfma_f32_32x32x16_bf16 {v(R.O+16*j,16)}, {v(R.VV+8*vb+4,4)}, {v(R.P+8*pb+4,4)}, {v(R.O+16*j,16)}'
    for st, last in stages:
        for u in range(4):
            n = st * 4 + u
            T = n >> 1
            sb = n & 1; Tn = (n + 1) >> 1; jn = (n + 1) & 1
            Tp = (n - 1) >> 1; jp = (n - 1) & 1
            if 'noprio' not in gen.EXP: a(f's_setprio {prio(st, u) if prio else {2: 3, 3: 2, 0: 1, 1: 0}[u]}')
            extras = {}
            for pos, l in extra(st, u).items(): extras.setdefault(pos, []).extend(l)
            final = last and u >= 2
            if u == 2 and not last:
                a(f's_waitcnt vmcnt({first_wait(st)})')
                a('s_barrier')
            if u == 3 and dma_kv(st):
                d = attn_dma_parts((st + 3) % 4, ssrd)
                extras.setdefault(3, []).extend(d[0])
                extras.setdefault(15, []).extend(d[1])
            if n % 2 == 0:
                T1 = T + 1
                kr = kreads((T1 >> 1) % 4, T1 & 1, T1 & 1) if not (last and u == 2) else []
                vr = vreads((T >> 1) % 4, T & 1, T & 1)
                for pos, x in zip((2, 6), kr): extras.setdefault(pos, []).append(x)
                for pos, x in zip((11, 16), vr): extras.setdefault(pos, []).append(x)
            else:
                a('s_waitcnt lgkmcnt(0)')
            S_ = R.S + 16 * sb
            ex = [f'v_exp_f32 v{S_+i}, v{S_+i}' for i in range(16)]
            cv = [f'v_cvt_pk_bf16_f32 v{R.P+8*sb+i}, v{S_+2*i}, v{S_+2*i+1}' for i in range(8)]
            M = [m1(sb ^ 1, Tn & 1, jn), m2(sb ^ 1, Tn & 1, jn), m3(jp, Tp & 1, (n - 1) & 1), m4(jp, Tp & 1, (n - 1) & 1)]
            if last and u == 3: M[0] = M[1] = None
            if start and st == 0:
                if u == 0: M[2] = M[3] = None
                if u in (1, 2): M[2] = M[2].rsplit(',', 1)[0] + ', 0'
            seq = [M[0], ex[0], ex[1], ex[2], ex[3], cv[0], ex[4], M[1], ex[5], cv[1], ex[6], ex[7], cv[2],
                   M[2], ex[8], ex[9], cv[3], ex[10], ex[11], cv[4], M[3], ex[12], ex[13], cv[5], ex[14], ex[15], cv[6], cv[7]]
            for i, x in enumerate(seq):
                for y in extras.get(i, []): a(y)
                if x: a(x)
    return m1, m2, m3, m4, kreads

def wo_dma():
    return ['s_mov_b32 m0, s61', 's_nop 0', 'buffer_load_dwordx4 v10, s[8:11], s62 offen lds',
            's_cmp_lt_u32 s62, s63', 's_cselect_b32 s67, 8192, 0', 's_add_u32 s62, s62, s67', 's_add_u32 s61, s61, s67']

def phase_attn(a):
    R = AR
    attn_setup(a, SJ, SG, 12, 8)
    a(f's_lshr_b32 s62, s{SJ}, 2')
    a('s_mul_i32 s62, s62, 102400')
    a(f's_add_u32 s62, s62, {WS_WO}')
    a('s_lshl_b32 s61, s12, 10')
    a('s_add_u32 s62, s62, s61')
    a('s_cmp_lt_u32 s12, 4')
    a(f's_mov_b32 s63, {11*8192}')
    a(f's_cselect_b32 s63, {12*8192}, s63')
    a('s_add_u32 s63, s63, s62')
    a(f's_add_u32 s61, s61, {LDS_WO}')
    for r in range(32): a(f'v_mov_b32 v{R.O+r}, 0')
    for r in range(16): a(f'v_mov_b32 v{R.P+r}, 0')
    for r in range(16): a(f'v_mov_b32 v{R.VV+r}, 0')
    attn_dma(a, 0, 8)
    a('s_waitcnt vmcnt(0)')
    for st in range(1, 3): attn_dma(a, st, 8)
    for x in wo_dma(): a(x)
    a('v_cmp_gt_u32 vcc, 32, v2')
    for r in range(4): a(f'v_cndmask_b32 v{R.QC+r}, 0, v{R.QC+r}, vcc')
    a('s_waitcnt lgkmcnt(0)')
    a('s_barrier')
    a('v_lshlrev_b32 v151, 7, v2')
    a(f's_mul_i32 s56, s{SJ}, 69120')
    a(f's_add_u32 s56, s56, {WS_W1}')
    a('s_add_u32 s57, s56, 65536')
    a('s_lshl_b32 s40, s12, 13')
    a('s_add_u32 s56, s56, s40')
    a('s_cmp_eq_u32 s12, 0')
    a('s_cselect_b32 s57, s57, s56')
    def pf(k):
        return [f'buffer_load_dword v150, v151, s[8:11], s{56+k} offen']
    ex = lambda st, u: ({8: wo_dma()} if u == 0 else {})
    a(f'ds_read_b128 {v(R.KA,4)}, v11 offset:0')
    a(f'ds_read_b64 {v(R.KC,2)}, v12 offset:0')
    a('s_waitcnt lgkmcnt(0)')
    a(f'v_mfma_f32_32x32x16_bf16 {v(R.S,16)}, {v(R.KA,4)}, {v(R.QA,4)}, 0')
    a(f'v_mfma_f32_32x32x8bf16_1k {v(R.S,16)}, {v(R.KC,2)}, {v(R.QC,2)}, {v(R.S,16)}')
    a('s_mov_b32 s60, 3')
    stamp(a, 7)
    a.label('.Lat_loop')
    attn_units(a, 8, [(st, False) for st in range(4)], lambda st: True, ex, lambda st: 4)
    a('s_sub_u32 s60, s60, 1')
    a('s_cmp_lg_u32 s60, 0')
    a('s_cbranch_scc1 .Lat_loop')
    tail_wait = {0: 4, 1: 4, 2: 2}
    def tail_extra(st, u):
        if st == 0 and u == 0: return {8: wo_dma()}
        if st == 0 and u == 3: return {22: pf(0)}
        if st == 1 and u == 3: return {8: pf(1)}
        return {}
    m1, m2, m3, m4, _ = attn_units(a, 8, [(0, False), (1, False), (2, False), (3, True)], lambda st: st == 0,
                                   tail_extra, lambda st: tail_wait[st])
    a(m3(1, 1, 1)); a(m4(1, 1, 1))
    a('s_setprio 0')
    stamp(a, 3)
    a(f's_lshl_b32 s40, s{SG}, 7')
    a(f's_add_u32 s40, s40, {WS_XT}')
    a('v_lshlrev_b32 v14, 2, v3')
    a('buffer_load_dword v15, v14, s[8:11], s40 offen sc1')
    a('s_barrier')
    a('s_cmp_eq_u32 s46, 0')
    a('s_cbranch_scc1 .Lat_noswap')
    a('s_nop 7')
    for r in range(12): a(f'v_swap_b32 v{R.O+r}, v{R.O+16+r}')
    a.label('.Lat_noswap')
    a('s_nop 7')
    a(f's_mul_i32 s40, s12, 3072')
    a('v_add_u32 v14, s40, v10')
    for i in range(3): a(f'ds_write_b128 v14, {v(R.O+16+4*i,4)} offset:{1024*i}')
    a('s_xor_b32 s40, s12, 4')
    a('s_mul_i32 s40, s40, 3072')
    a('v_add_u32 v14, s40, v10')
    a('s_waitcnt lgkmcnt(0)')
    a('s_barrier')
    for i in range(3): a(f'ds_read_b128 {v(R.T+4*i,4)}, v14 offset:{1024*i}')
    lp, ld = lab('xt'), lab('xt')
    a('s_mov_b32 s41, 0')
    a.label(lp)
    a('s_waitcnt vmcnt(0)')
    a('v_cmp_eq_u32 vcc, 0, v15')
    a(f's_cbranch_vccz {ld}')
    a(f's_lshl_b32 s40, s{SG}, 7')
    a(f's_add_u32 s40, s40, {WS_XT}')
    a('v_lshlrev_b32 v14, 2, v3')
    a('buffer_load_dword v15, v14, s[8:11], s40 offen sc1')
    a('s_add_u32 s41, s41, 1')
    a(f's_cmp_lt_u32 s41, {SPIN_MAX}')
    a(f's_cbranch_scc1 {lp}')
    a.label(ld)
    a('v_cmp_ne_u32 vcc, s67, v15') if False else None
    a(f'v_cmp_ne_u32 vcc, s{SPURE}, v15')
    a('s_cmp_eq_u64 vcc, 0')
    a(f's_cselect_b32 s{SPURE}, 1, 0')
    if 'slow' in gen.EXP: a(f's_mov_b32 s{SPURE}, 0')
    a('s_waitcnt lgkmcnt(0)')
    for r in range(12): a(f'v_add_f32 v{R.O+r}, v{R.O+r}, v{R.T+r}')
    a(f'v_mov_b32 v{R.T}, v{R.O+8}')
    a(f'v_mov_b32 v{R.T+1}, v{R.O+8}')
    a(f'v_permlane32_swap_b32 v{R.T}, v{R.T+1}')
    a(f'v_rcp_f32 v{R.T+1}, v{R.T+1}')
    for r in range(12): a(f'v_mul_f32 v{R.O+r}, v{R.O+r}, v{R.T+1}')
    for i in range(6): a(f'v_cvt_pk_bf16_f32 v{R.T+4+i}, v{R.O+2*i}, v{R.O+2*i+1}')
    a('s_mul_i32 s61, s46, 40960')
    a('s_add_u32 s61, s61, s47')
    a(f's_add_u32 s61, s61, {WS_O}')
    a('s_lshl_b32 s62, s42, 8')
    a('s_add_u32 s62, s62, s61')
    a('s_lshl_b32 s63, s43, 8')
    a('s_add_u32 s63, s63, s61')
    a('s_lshl_b32 s61, s41, 3') if False else None
    a(f's_and_b32 s61, s{SJ}, 1')
    a('s_lshl_b32 s61, s61, 3')
    a('s_add_u32 s63, s63, s61')
    stores2(a, [f'buffer_store_dwordx4 {v(R.T+4,4)}, v7, s[8:11], s62 offen',
                's_mov_b64 exec, 0xffffffff',
                f'buffer_store_dwordx2 {v(R.T+8,2)}, v5, s[8:11], s63 offen',
                's_mov_b64 exec, -1'])

def phase_oproj(a):
    BF, AF, ACC, XR, T = 16, 56, 96, 116, 128
    a(f's_and_b32 s20, s{SJ}, 3')
    a(f's_lshr_b32 s21, s{SJ}, 2')
    a('s_and_b32 s22, s12, 3')
    a('s_lshr_b32 s23, s12, 2')
    a(f's_lshl_b32 s29, s{SG}, 4')
    a('s_lshl_b32 s30, s20, 2')
    a('s_add_u32 s29, s29, s30')
    a('s_add_u32 s29, s29, s22')
    a('v_and_b32 v5, 15, v2')
    a('v_lshrrev_b32 v6, 4, v2')
    a('s_lshl_b32 s31, s29, 4')
    a('v_add_u32 v7, s31, v5')
    a('s_movk_i32 s32, 1280')
    a('v_mul_lo_u32 v7, v7, s32')
    a('v_lshl_add_u32 v7, v6, 3, v7')
    a('s_mul_i32 s32, s21, 160')
    a('s_mul_i32 s33, s23, 96')
    a('s_add_u32 s32, s32, s33')
    for i in range(3):
        a(f'buffer_load_dwordx2 {v(XR+2*i,2)}, v7, s[72:75], s32 offen offset:{32*i}')
    a('s_mov_b32 s44, -1')
    a('s_mov_b32 s45, 0')
    await_flags(a, 0, 44, 14)
    stamp(a, 8)
    a('s_mul_i32 s30, s29, 20480')
    a('s_mul_i32 s31, s23, 10240')
    a('s_add_u32 s30, s30, s31')
    a(f's_add_u32 s30, s30, {WS_O}')
    for i in range(10):
        if i % 4 == 0: a(f's_add_u32 s31, s30, {i*1024}')
        a(f'buffer_load_dwordx4 {v(BF+4*i,4)}, v10, s[8:11], s31 offen offset:{(i%4)*1024}' + ('' if 'f1plain' in gen.EXP else ' sc1'))
    a('s_mul_i32 s33, s23, 10240')
    a(f's_add_u32 s33, s33, {LDS_WO}')
    a('v_add_u32 v8, s33, v10')
    a(f'v_add_u32 v9, {3*20480}, v8')
    def areads(i, buf):
        for ft in range(5):
            off = ft * 20480 + i * 1024
            base = 8
            if ft >= 3: off -= 3 * 20480; base = 9
            a(f'ds_read_b128 {v(AF+20*buf+4*ft,4)}, v{base} offset:{off}')
    areads(0, 0)
    for i in range(10):
        if i < 9:
            areads(i + 1, (i + 1) & 1)
            a(f's_waitcnt vmcnt({9-i}) lgkmcnt(5)')
        else:
            a('s_waitcnt vmcnt(0) lgkmcnt(0)')
        for ft in range(5):
            acc = v(ACC + 4 * ft, 4)
            a(f'v_mfma_f32_16x16x32_bf16 {acc}, {v(AF+20*(i&1)+4*ft,4)}, {v(BF+4*i,4)}, {"0" if i == 0 else acc}')
    stamp(a, 9)
    a('s_mul_i32 s40, s12, 3072')
    a('s_add_u32 s40, s40, 32768')
    a('v_add_u32 v14, s40, v10')
    l1, l2 = lab('ox'), lab('ox')
    a('s_nop 7')
    a('s_cmp_eq_u32 s23, 0')
    a(f's_cbranch_scc0 {l1}')
    for i, ft in enumerate((3, 4)): a(f'ds_write_b128 v14, {v(ACC+4*ft,4)} offset:{1024*i}')
    a(f's_branch {l2}')
    a.label(l1)
    for ft in range(3): a(f'ds_write_b128 v14, {v(ACC+4*ft,4)} offset:{1024*ft}')
    a('s_waitcnt lgkmcnt(0)')
    for r in range(8): a(f'v_mov_b32 v{ACC+r}, v{ACC+12+r}')
    for r in range(8, 12): a(f'v_mov_b32 v{ACC+r}, 0')
    a.label(l2)
    a('s_xor_b32 s40, s12, 4')
    a('s_mul_i32 s40, s40, 3072')
    a('s_add_u32 s40, s40, 32768')
    a('v_add_u32 v14, s40, v10')
    a('s_waitcnt lgkmcnt(0)')
    a('s_barrier')
    for i in range(3): a(f'ds_read_b128 {v(T+4*i,4)}, v14 offset:{1024*i}')
    a('s_waitcnt lgkmcnt(0)')
    for r in range(12): a(f'v_add_f32 v{ACC+r}, v{ACC+r}, v{T+r}')
    for i in range(3):
        for h2 in range(2):
            a(f'v_lshlrev_b32 v{T}, 16, v{XR+2*i+h2}')
            a(f'v_and_b32 v{T+1}, 0xffff0000, v{XR+2*i+h2}')
            a(f'v_add_f32 v{ACC+4*i+2*h2}, v{ACC+4*i+2*h2}, v{T}')
            a(f'v_add_f32 v{ACC+4*i+2*h2+1}, v{ACC+4*i+2*h2+1}, v{T+1}')
    l3 = lab('ox')
    a('s_cmp_eq_u32 s23, 0')
    a(f's_cbranch_scc1 {l3}')
    for r in range(8, 12): a(f'v_mov_b32 v{ACC+r}, 0')
    a.label(l3)
    a(f'v_mov_b32 v{T}, v{ACC}')
    a(f'v_mul_f32 v{T+1}, v{ACC}, v{ACC}')
    for r in range(1, 12):
        a(f'v_add_f32 v{T}, v{T}, v{ACC+r}')
        a(f'v_fmac_f32 v{T+1}, v{ACC+r}, v{ACC+r}')
    sum_q4(a, T, T+2, T+3)
    sum_q4(a, T+1, T+2, T+3)
    for i in range(6): a(f'v_cvt_pk_bf16_f32 v{T+4+i}, v{ACC+2*i}, v{ACC+2*i+1}')
    a('s_mul_i32 s34, s29, 20480')
    a('s_mul_i32 s35, s21, 2560')
    a('s_add_u32 s34, s34, s35')
    a('s_mul_i32 s35, s23, 1536')
    a('s_add_u32 s34, s34, s35')
    a(f's_add_u32 s34, s34, {WS_H}')
    a('v_lshrrev_b32 v11, 1, v6')
    a('v_lshlrev_b32 v11, 8, v11')
    a('v_lshl_add_u32 v11, v5, 4, v11')
    a('v_and_b32 v12, 1, v6')
    a('v_lshl_add_u32 v11, v12, 3, v11')
    a('s_lshl_b32 s33, s29, 7')
    a('s_lshl_b32 s35, s21, 1')
    a('s_add_u32 s35, s35, s23')
    a('s_lshl_b32 s35, s35, 14')
    a('s_add_u32 s33, s33, s35')
    a(f's_add_u32 s33, s33, {WS_ST2}')
    a('v_lshlrev_b32 v12, 3, v5')
    a('s_cmp_eq_u32 s23, 0')
    a(f's_cselect_b32 s35, s34, {0x7ffff000}')
    stores2(a, [f'buffer_store_dwordx2 {v(T+4,2)}, v11, s[8:11], s34 offen',
                f'buffer_store_dwordx2 {v(T+6,2)}, v11, s[8:11], s34 offen offset:512',
                f'buffer_store_dwordx2 {v(T+8,2)}, v11, s[8:11], s35 offen offset:1024',
                's_mov_b64 exec, 0xffff',
                f'buffer_store_dwordx2 {v(T,2)}, v12, s[8:11], s33 offen',
                's_mov_b64 exec, -1'])

F1_WB, F1_HB, F1_NS = 0, 65536, 4
def phase_ffn1(a):
    ACC, FA, FB = 32, 16, 64
    ST, CS, B1 = 96, 160, 176
    a(f's_and_b32 s13, s{SJ}, 1')
    a(f's_lshl_b32 s15, s{SG}, 1')
    a('s_add_u32 s13, s13, s15')
    a(f's_lshr_b32 s14, s{SJ}, 1')
    lane_swap23(a, 5, 3, 6)
    a('s_cmp_lt_u32 s12, 4')
    a('s_cselect_b64 vcc, -1, 0')
    a('v_cndmask_b32 v6, v3, v5, vcc')
    a('v_lshrrev_b32 v7, 4, v6')
    a('s_movk_i32 s17, 20480')
    a('v_mul_lo_u32 v7, v7, s17')
    a('v_and_b32 v6, 15, v6')
    a('v_lshl_add_u32 v7, v6, 4, v7')
    a('v_lshl_add_u32 v7, v4, 8, v7')
    a('s_lshl_b32 s18, s14, 3')
    a('s_lshl_b32 s19, s12, 1')
    a('s_add_u32 s18, s18, s19')
    a('s_mul_i32 s18, s18, 20480')
    a(f's_add_u32 s18, s18, {WS_W1}')
    a('s_lshl_b32 s20, s13, 3')
    a('s_add_u32 s20, s20, s19')
    a('s_sub_u32 s20, s20, 8')
    a('s_mul_i32 s20, s20, 20480')
    a(f's_add_u32 s20, s20, {WS_H}')
    a('s_cmp_lt_u32 s12, 4')
    a('s_cselect_b32 s20, s18, s20')
    a('s_and_b32 s23, s12, 3')
    a('s_lshr_b32 s26, s12, 2')
    a('s_lshl_b32 s22, s23, 10')
    a('s_cmp_lt_u32 s12, 4')
    a(f's_cselect_b32 s17, {F1_WB}, {F1_HB}')
    a('s_add_u32 s22, s22, s17')
    a('s_lshl_b32 s17, s23, 10')
    a(f's_add_u32 s17, s17, {F1_WB}')
    a('v_add_u32 v9, s17, v10')
    a('s_lshl_b32 s17, s26, 11')
    a(f's_add_u32 s17, s17, {F1_HB}')
    a('v_add_u32 v12, s17, v10')
    a(f's_and_b32 s40, s{SJ}, 1')
    a('s_cmp_eq_u32 s40, 0')
    a('s_mov_b32 s44, 0xcccccccc')
    a('s_cselect_b32 s44, 0x33333333, s44')
    a('s_mov_b32 s45, 0')
    await_flags(a, 1, 44, 14)
    stamp(a, 10)
    a('s_lshl_b32 s27, s13, 7')
    a('s_lshl_b32 s28, s26, 6')
    a('s_add_u32 s27, s27, s28')
    lst = lab('st')
    a('s_cmp_ge_u32 s12, 4')
    a(f's_cbranch_scc1 {lst}')
    a('s_lshl_b32 s28, s13, 7')
    a('s_lshl_b32 s29, s12, 5')
    a('s_add_u32 s28, s28, s29')
    a('s_lshl_b32 s28, s28, 3')
    a(f's_add_u32 s28, s28, {WS_ST2}')
    a('v_lshlrev_b32 v14, 3, v3')
    a('v_lshl_add_u32 v14, v4, 17, v14')
    for q in range(8):
        a(f's_add_u32 s29, s28, {q*16384}')
        a(f'buffer_load_dwordx2 {v(ST+2*q,2)}, v14, s[8:11], s29 offen sc1')
    a.label(lst)
    a('s_lshl_b32 s29, s14, 7')
    a('s_lshl_b32 s30, s23, 5')
    a('s_add_u32 s29, s29, s30')
    a('s_lshl_b32 s29, s29, 2')
    a('v_lshlrev_b32 v15, 5, v4')
    a(f's_add_u32 s30, s29, {WS_CS1}')
    a(f's_add_u32 s31, s29, {WS_B1F}')
    for q, off in enumerate((0, 16, 64, 80)):
        a(f'buffer_load_dwordx4 {v(CS+4*q,4)}, v15, s[8:11], s30 offen offset:{off}')
        a(f'buffer_load_dwordx4 {v(B1+4*q,4)}, v15, s[8:11], s31 offen offset:{off}')
    nst, NS = 10, F1_NS
    pend = [(st, ks) for st in range(nst) for ks in range(4)]
    issued = []
    def dma_one():
        st, ks = pend.pop(0)
        a(f's_add_u32 m0, s22, {(st % NS)*16384 + ks*4096}')
        a(f's_add_u32 s21, s20, {st*2048 + ks*512}')
        a('buffer_load_dwordx4 v7, s[8:11], s21 offen ' + ('' if 'f1plain' in gen.EXP else 'sc1 ') + 'lds')
        issued.append(st)
    def wait_stage(st):
        n = 0
        for x in reversed(issued):
            if x <= st: break
            n += 1
        a(f's_waitcnt vmcnt({n})')
    def reads(st, ks, buf):
        off = (st % NS) * 16384 + ks * 4096
        a(f'ds_read_b128 {v(FA+4*buf,4)}, v9 offset:{off}')
        a(f'ds_read_b128 {v(FB+8*buf,4)}, v12 offset:{off}')
        a(f'ds_read_b128 {v(FB+8*buf+4,4)}, v12 offset:{off+1024}')
    def mfmas(buf, first):
        for j in range(2):
            c = '0' if first else v(ACC+16*j, 16)
            a(f'v_mfma_f32_32x32x16_bf16 {v(ACC+16*j,16)}, {v(FA+4*buf,4)}, {v(FB+8*buf+4*j,4)}, {c}')
    for _ in range(8): dma_one()
    if 'f1stamp' in gen.EXP: stamp(a, 2)
    wait_stage(0)
    a('s_barrier')
    if 'f1stamp' in gen.EXP: stamp(a, 3)
    reads(0, 0, 0)
    buf = 0
    for st in range(nst):
        for ks in range(4):
            if ks < 3:
                reads(st, ks + 1, buf ^ 1)
                a('s_waitcnt lgkmcnt(3)')
                mfmas(buf, st == 0 and ks == 0)
            else:
                if st + 1 < nst:
                    a('s_waitcnt lgkmcnt(0)')
                    if 'f1stamp' in gen.EXP and st in (0, 1, 4): stamp(a, {0: 4, 1: 7, 4: 9}[st])
                    wait_stage(st + 1)
                    a('s_barrier')
                    if 'f1stamp' in gen.EXP and st in (0, 1, 4): stamp(a, {0: 5, 1: 8, 4: 12}[st])
                    reads(st + 1, 0, buf ^ 1)
                else:
                    a('s_waitcnt lgkmcnt(0)')
                mfmas(buf, False)
            lim = st + NS - 1 + (1 if ks == 3 else 0)
            if pend and pend[0][0] <= lim: dma_one()
            buf ^= 1
    a('s_nop 15')
    stamp(a, 11)
    LST = 159744
    l2 = lab('st')
    a('s_cmp_ge_u32 s12, 4')
    a(f's_cbranch_scc1 {l2}')
    b = ST
    for q in range(1, 8):
        a(f'v_add_f32 v{b}, v{b}, v{b+2*q}')
        a(f'v_add_f32 v{b+1}, v{b+1}, v{b+2*q+1}')
    for r in range(2):
        a(f'v_mov_b32 v{b+2}, v{b+r}'); a(f'v_mov_b32 v{b+3}, v{b+r}')
        a(f'v_permlane32_swap_b32 v{b+2}, v{b+3}')
        a(f'v_add_f32 v{b+r}, v{b+2}, v{b+3}')
    a(f'v_mul_f32 v{b}, {f2hex(1.0/640)}, v{b}')
    a(f'v_mul_f32 v{b+1}, {f2hex(1.0/640)}, v{b+1}')
    a(f'v_fma_f32 v{b+1}, -v{b}, v{b}, v{b+1}')
    a(f'v_add_f32 v{b+1}, 0x3727c5ac, v{b+1}')
    a(f'v_rsq_f32 v{b+1}, v{b+1}')
    a(f'v_mul_f32 v{b}, v{b}, v{b+1}')
    a('s_lshl_b32 s28, s12, 8')
    a(f's_add_u32 s28, s28, {LST}')
    a('v_lshlrev_b32 v14, 3, v3')
    a('v_add_u32 v14, s28, v14')
    a(f'ds_write_b64 v14, {v(b,2)}')
    a.label(l2)
    a('s_waitcnt lgkmcnt(0)')
    a('s_barrier')
    a('s_lshl_b32 s28, s26, 9')
    a(f's_add_u32 s28, s28, {LST}')
    a('v_lshlrev_b32 v14, 3, v3')
    a('v_add_u32 v14, s28, v14')
    a(f'ds_read_b64 {v(ST,2)}, v14')
    a(f'ds_read_b64 {v(ST+32,2)}, v14 offset:256')
    a('s_waitcnt lgkmcnt(0)')
    for j in range(2):
        b = ST + 32 * j
        for r in range(16):
            a(f'v_fma_f32 v{b+2}, -v{b}, v{CS+r}, v{B1+r}')
            a(f'v_fma_f32 v{ACC+16*j+r}, v{b+1}, v{ACC+16*j+r}, v{b+2}')
            a(f'v_max_f32 v{ACC+16*j+r}, 0, v{ACC+16*j+r}')
            a(f'v_mul_f32 v{ACC+16*j+r}, v{ACC+16*j+r}, v{ACC+16*j+r}')
    for r in range(16):
        a(f'v_cvt_pk_bf16_f32 v{64+r}, v{ACC+2*r}, v{ACC+2*r+1}')
    a('v_lshrrev_b32 v13, 4, v3')
    a('s_mov_b32 s18, 55296')
    a('v_mul_lo_u32 v13, v13, s18')
    a('v_and_b32 v14, 15, v3')
    a('v_lshl_add_u32 v13, v14, 4, v13')
    a('v_lshl_add_u32 v13, v4, 8, v13')
    a('s_lshr_b32 s18, s27, 4')
    a('s_mul_i32 s18, s18, 55296')
    a('s_lshl_b32 s17, s14, 2')
    a('s_add_u32 s17, s17, s23')
    a('s_cmp_ge_u32 s17, 54')
    a('s_cselect_b32 s19, 0x40000000, 0')
    a('s_lshl_b32 s17, s17, 10')
    a('s_add_u32 s17, s17, s18')
    a(f's_add_u32 s17, s17, {WS_G}')
    a('s_add_u32 s17, s17, s19')
    a(f's_add_u32 s18, s17, {2*55296}')
    stores2(a, [f'buffer_store_dwordx4 {v(64,4)}, v13, s[8:11], s17 offen',
                f'buffer_store_dwordx4 {v(68,4)}, v13, s[8:11], s17 offen offset:512',
                f'buffer_store_dwordx4 {v(72,4)}, v13, s[8:11], s18 offen',
                f'buffer_store_dwordx4 {v(76,4)}, v13, s[8:11], s18 offen offset:512'])

def phase_ffn2(a, L):
    a(f's_and_b32 s20, s{SJ}, 3')
    a(f's_lshr_b32 s21, s{SJ}, 2')
    a('s_lshr_b32 s22, s12, 2')
    a('s_and_b32 s23, s12, 3')
    a('s_mul_i32 s26, s23, 14')
    a('s_cmp_eq_u32 s23, 3')
    a('s_cselect_b32 s27, 1, 0')
    a('s_sub_u32 s26, s26, s27')
    a('s_mul_i32 s28, s21, 276480')
    a(f's_add_u32 s28, s28, {WS_W2}')
    a('s_add_u32 s29, s26, s22')
    a('s_lshl_b32 s29, s29, 10')
    a('s_add_u32 s28, s28, s29')
    a('s_lshl_b32 s29, s23, 1')
    a('s_add_u32 s29, s29, s22')
    a('s_mul_i32 s29, s29, 5120')
    NST = 7
    issued = []
    def dma_stage(st):
        slot = st % 3
        for ft in range(5):
            a(f's_add_u32 m0, s29, {slot*40960 + ft*1024}')
            a(f's_add_u32 s30, s28, {st*2048 + ft*55296}')
            a('buffer_load_dwordx4 v10, s[8:11], s30 offen lds')
            issued.append(('w', st))
    BF, ACC, AF, T = 16, 128, 168, 16
    dma_stage(0); dma_stage(1); dma_stage(2)
    a('s_lshr_b32 s40, s20, 1')
    a('s_cmp_eq_u32 s40, 0')
    a('s_mov_b32 s44, 0x0aaaaaaa')
    a('s_cselect_b32 s44, 0x05555555, s44')
    a('s_mov_b32 s45, 0')
    await_flags(a, 2, 44, 14)
    if 'f1stamp' not in gen.EXP: stamp(a, 12)
    a(f's_lshl_b32 s31, s{SG}, 4')
    a('s_lshl_b32 s32, s20, 2')
    a('s_add_u32 s31, s31, s32')
    a('s_lshl_b32 s32, s22, 1')
    a('s_add_u32 s32, s32, s31')
    a('s_mul_i32 s32, s32, 55296')
    a('s_lshl_b32 s33, s26, 10')
    a('s_add_u32 s32, s32, s33')
    a(f's_add_u32 s32, s32, {WS_G}')
    for i in range(14):
        for j in range(2):
            a(f's_add_u32 s33, s32, {j*55296 + i*1024}')
            a(f'buffer_load_dwordx4 {v(BF+8*i+4*j,4)}, v10, s[8:11], s33 offen' + ('' if 'f1plain' in gen.EXP else ' sc1'))
            issued.append(('b', i))
    def wait_for(pred):
        n = 0
        for x in reversed(issued):
            if pred(x): break
            n += 1
        a(f's_waitcnt vmcnt({min(n, 63)})')
    a('s_mul_i32 s34, s23, 10240')
    a('v_add_u32 v8, s34, v10')
    a('v_add_u32 v9, 0x10000, v8')
    def areads(st, i, buf):
        for ft in range(5):
            off = (st % 3) * 40960 + i * 5120 + ft * 1024
            base = 8
            if off >= 65536: off -= 65536; base = 9
            a(f'ds_read_b128 {v(AF+20*buf+4*ft,4)}, v{base} offset:{off}')
    for st in range(NST):
        wait_for(lambda x: x == ('w', st) or x == ('b', min(2*st+1, 13)))
        a('s_barrier')
        if st >= 1 and st + 2 < NST: dma_stage(st + 2)
        areads(st, 0, 0)
        areads(st, 1, 1)
        for i in range(2):
            ks = 2 * st + i
            a(f's_waitcnt lgkmcnt({5 if i == 0 else 0})')
            last = (ks == 13)
            if last:
                a('s_cmp_ge_u32 s23, 2')
                a(f's_cbranch_scc1 {L}_skip')
            for ft in range(5):
                for j in range(2):
                    acc = v(ACC + 4 * (2 * ft + j), 4)
                    a(f'v_mfma_f32_16x16x32_bf16 {acc}, {v(AF+20*i+4*ft,4)}, {v(BF+8*ks+4*j,4)}, {"0" if ks == 0 else acc}')
            if last: a.label(f'{L}_skip')
    stamp(a, 13)
    a('s_nop 7')
    a('s_barrier')
    ksplit_reduce(a, ACC, T, 12, 22, 23, 10, 11)
    a('s_cmp_ge_u32 s12, 4')
    a(f's_cbranch_scc1 {L}_fin')
    a('v_and_b32 v5, 15, v2')
    a('v_lshrrev_b32 v6, 4, v2')
    HR, BB = 100, 112
    a('s_add_u32 s33, s31, s12')
    a('s_mul_i32 s34, s33, 20480')
    a('s_mul_i32 s35, s21, 2560')
    a('s_add_u32 s34, s34, s35')
    a(f's_add_u32 s34, s34, {WS_H}')
    a('v_lshrrev_b32 v11, 1, v6')
    a('v_lshlrev_b32 v11, 8, v11')
    a('v_lshl_add_u32 v11, v5, 4, v11')
    a('v_and_b32 v12, 1, v6')
    a('v_lshl_add_u32 v11, v12, 3, v11')
    for ft in range(5):
        a(f'buffer_load_dwordx2 {v(HR+2*ft,2)}, v11, s[8:11], s34 offen offset:{512*ft} sc1')
    a('s_mul_i32 s35, s21, 320')
    a(f's_add_u32 s35, s35, {WS_B2F}')
    a('v_lshlrev_b32 v12, 4, v6')
    for ft in range(5):
        a(f'buffer_load_dwordx4 {v(BB+4*ft,4)}, v12, s[8:11], s35 offen offset:{64*ft}')
    ksplit_gather(a, T, 12, 10, 13)
    a('s_waitcnt vmcnt(0)')
    for ft in range(5):
        for h2 in range(2):
            a(f'v_lshlrev_b32 v{T+20}, 16, v{HR+2*ft+h2}')
            a(f'v_and_b32 v{T+21}, 0xffff0000, v{HR+2*ft+h2}')
            a(f'v_add_f32 v{T+4*ft+2*h2}, v{T+4*ft+2*h2}, v{BB+4*ft+2*h2}')
            a(f'v_add_f32 v{T+4*ft+2*h2+1}, v{T+4*ft+2*h2+1}, v{BB+4*ft+2*h2+1}')
            a(f'v_add_f32 v{T+4*ft+2*h2}, v{T+4*ft+2*h2}, v{T+20}')
            a(f'v_add_f32 v{T+4*ft+2*h2+1}, v{T+4*ft+2*h2+1}, v{T+21}')
    for i in range(10):
        a(f'v_cvt_pk_bf16_f32 v{T+24+i}, v{T+2*i}, v{T+2*i+1}')
    a('s_lshl_b32 s33, s33, 4')
    a('v_add_u32 v7, s33, v5')
    a('s_movk_i32 s34, 1280')
    a('v_mul_lo_u32 v7, v7, s34')
    a('v_lshl_add_u32 v7, v6, 3, v7')
    a('s_mul_i32 s34, s21, 160')
    for ft in range(5):
        a(f'buffer_store_dwordx2 {v(T+24+2*ft,2)}, v7, s[76:79], s34 offen offset:{32*ft}')

def kf():
    a = Asm()
    L = 'kf_kernel'
    kernel_begin(a, L)
    a('s_cmp_ge_u32 s2, 256')
    a(f's_cbranch_scc1 {L}_end')
    stamp(a, 0, True); stamp(a, 1)
    a(f's_load_dwordx2 s[4:5], s[0:1], {A_WS}')
    a(f's_load_dwordx2 s[68:69], s[0:1], {A_X}')
    a(f's_load_dwordx2 s[70:71], s[0:1], {A_OUT}')
    a(f's_and_b32 s{SG}, s2, 7')
    a(f's_lshr_b32 s{SJ}, s2, 3')
    a('v_lshrrev_b32 v1, 6, v0')
    a('v_and_b32 v2, 63, v0')
    a('v_readfirstlane_b32 s12, v1')
    a('v_and_b32 v3, 31, v2')
    a('v_lshrrev_b32 v4, 5, v2')
    a(f's_getreg_b32 s{SPURE}, hwreg(HW_REG_XCC_ID, 0, 4)')
    a(f's_add_u32 s{SPURE}, s{SPURE}, 1')
    a('s_waitcnt lgkmcnt(0)')
    srd(a, 8, 4, WS_END)
    srd(a, 72, 68, S * D * 2)
    srd(a, 76, 70, S * D * 2)
    l = lab('xp')
    a('s_cmp_lg_u32 s12, 0')
    a(f's_cbranch_scc1 {l}')
    a(f's_lshl_b32 s40, s{SG}, 7')
    a(f's_lshl_b32 s41, s{SJ}, 2')
    a('s_add_u32 s40, s40, s41')
    a(f's_add_u32 s40, s40, {WS_XT}')
    a('v_mov_b32 v14, 0')
    a(f'v_mov_b32 v15, s{SPURE}')
    a('s_mov_b64 exec, 1')
    a('buffer_store_dword v15, v14, s[8:11], s40 offen sc1')
    a('s_mov_b64 exec, -1')
    a.label(l)
    stamp(a, 2)
    phase_attn(a)
    stamp(a, 4)
    publish(a, 0, 14)
    phase_oproj(a)
    publish(a, 1, 14)
    stamp(a, 5)
    a(f's_cmp_ge_u32 s{SJ}, 28')
    a(f's_cbranch_scc1 {L}_idle')
    phase_ffn1(a)
    publish(a, 2, 14)
    a(f's_branch {L}_f2')
    a.label(f'{L}_idle')
    a('v_lshlrev_b32 v201, 7, v2')
    a(f's_sub_u32 s56, s{SJ}, 28')
    a('s_mul_i32 s56, s56, 552960')
    a(f's_add_u32 s56, s56, {WS_W2}')
    a('s_lshl_b32 s40, s12, 13')
    a('s_add_u32 s56, s56, s40')
    for i in range(9):
        a('buffer_load_dword v200, v201, s[8:11], s56 offen')
        a('s_add_u32 s56, s56, 65536')
    a('s_waitcnt vmcnt(0)')
    a.label(f'{L}_f2')
    phase_ffn2(a, L)
    a.label(f'{L}_fin')
    stamp(a, 14)
    if gen.PROF: a(f's_add_u32 s{PS+14}, s{PS+1}, s{SPURE}')
    if gen.PROF: a('s_waitcnt vmcnt(0)')
    stamp(a, 6, True)
    stamp_flush(a, 2, 15, 8, 12)
    a.label(f'{L}_end')
    a('s_endpgm')
    return a, descriptor(L, 256, 102), f'; @launch kernel={L} grid=(256,1,1) block=(512,1,1) lds=163840'

if __name__ == '__main__':
    if 'prof' in sys.argv: gen.PROF = True
    for x in sys.argv[2:]:
        if x.startswith('x:'): gen.EXP.add(x[2:])
    out = sys.argv[1]
    open(out, 'w').write(build([k0, k1, kf]))
    print('wrote', out)
```

```python
import sys
sys.path.insert(0, 'dev')
import gen
from gen import *
from gen2 import lab
from gen3 import VM
from asmlib import *

PK_LDS = 131072
TB_LDS = PK_LDS + 24576
ST_T = TB_LDS
CS_T = TB_LDS + 1024

def k1s(a=None, join=None):
    WT = '' if 'k1plain' in gen.EXP else ' sc1'
    merged = a is not None
    L = 'k1_kernel' if not merged else '.Lk1'
    NS = 4
    if not merged:
        a = Asm()
        kernel_begin(a, L)
        a('s_cmp_ge_u32 s2, 256')
        a(f's_cbranch_scc1 {L}_end')
    def finish():
        if merged: a(f's_branch {join}')
        else: a('s_endpgm')
    stamp(a, 0, True); stamp(a, 1)
    if not merged and 'nok1pf' not in gen.EXP:
        code_touch(a, L, '.Lkf_last' if 'k1pfall' in gen.EXP else f'{L}_end', '.Lpc_k1', 144, 151, 2 if 'k1pfall' in gen.EXP else 1)
    a(f's_load_dwordx2 s[24:25], s[0:1], {A_X}')
    a(f's_load_dwordx2 s[26:27], s[0:1], {A_WQKV}')
    a(f's_load_dwordx2 s[4:5], s[0:1], {A_WS}')
    a(f's_load_dwordx2 s[28:29], s[0:1], {A_WO}')
    a(f's_load_dwordx2 s[30:31], s[0:1], {A_W1}')
    a(f's_load_dwordx2 s[32:33], s[0:1], {A_W2}')
    a('s_and_b32 s15, s2, 7')
    a('s_lshr_b32 s16, s2, 3')
    a('s_and_b32 s13, s15, 3')
    a('s_lshl_b32 s13, s13, 2')
    a('s_and_b32 s17, s16, 3')
    a('s_add_u32 s13, s13, s17')
    a('s_lshr_b32 s14, s15, 2')
    a('s_lshl_b32 s14, s14, 3')
    a('s_lshr_b32 s17, s16, 2')
    a('s_add_u32 s14, s14, s17')
    a('v_lshrrev_b32 v1, 6, v0')
    a('v_and_b32 v2, 63, v0')
    a('v_readfirstlane_b32 s12, v1')
    a('v_and_b32 v3, 31, v2')
    a('v_lshrrev_b32 v4, 5, v2')
    a('v_lshlrev_b32 v10, 4, v2')
    a('s_and_b32 s23, s12, 3')
    if merged:
        from gen2 import WS_XT
        li = lab('in')
        a('s_cmp_lg_u32 s12, 0')
        a(f's_cbranch_scc1 {li}')
        a('s_waitcnt lgkmcnt(0)')
        srd(a, 8, 4, WS_END)
        a('s_and_b32 s40, s2, 7')
        a('s_lshl_b32 s40, s40, 7')
        a('s_lshr_b32 s41, s2, 3')
        a('s_lshl_b32 s41, s41, 2')
        a('s_add_u32 s40, s40, s41')
        a(f's_add_u32 s40, s40, {WS_FLAG}')
        a('v_lshlrev_b32 v5, 10, v2')
        a(f'v_mov_b32 v6, {WS_XT - WS_FLAG}')
        a('v_cmp_eq_u32 vcc, 3, v2')
        a('v_cndmask_b32 v5, v5, v6, vcc')
        a('s_getreg_b32 s41, hwreg(HW_REG_XCC_ID, 0, 4)')
        a('s_add_u32 s41, s41, 1')
        a('v_mov_b32 v6, 0')
        a('v_mov_b32 v7, s41')
        a('v_cndmask_b32 v6, v6, v7, vcc')
        a('s_mov_b64 exec, 15')
        a('buffer_store_dword v6, v5, s[8:11], s40 offen sc1')
        a('s_mov_b64 exec, -1')
        a.label(li)
    a('s_cmp_lt_u32 s12, 4')
    a(f's_cbranch_scc1 {L}_compute')
    a('v_lshrrev_b32 v5, 3, v2')
    a('s_lshl_b32 s40, s23, 3')
    a('v_add_u32 v5, s40, v5')
    a('v_lshrrev_b32 v6, 4, v2')
    a('s_lshl_b32 s40, s23, 2')
    a('v_add_u32 v7, s40, v6')
    a('v_and_b32 v7, 7, v7')
    a('v_and_b32 v8, 7, v2')
    a('v_xor_b32 v7, v7, v8')
    a('s_movk_i32 s40, 1280')
    a('v_mul_lo_u32 v5, v5, s40')
    a('v_lshl_add_u32 v5, v7, 4, v5')
    a('s_mul_i32 s35, s13, 163840')
    a('s_lshl_b32 s40, s23, 2')
    a('v_add_u32 v7, s40, v6')
    a('s_movk_i32 s40, 3840')
    a('v_mul_lo_u32 v7, v7, s40')
    a('v_and_b32 v8, 15, v2')
    a('v_lshlrev_b32 v9, 2, v6')
    a('v_xor_b32 v8, v8, v9')
    a('v_lshl_add_u32 v6, v8, 4, v7')
    a('s_lshl_b32 s36, s14, 8')
    a('s_lshl_b32 s37, s23, 10')
    a('s_waitcnt lgkmcnt(0)')
    srd(a, 56, 24, S * D * 2)
    srd(a, 60, 26, D * 3 * D * 2)
    srd(a, 8, 4, WS_END)
    vm = VM()
    def dma(st, k):
        slot = (st % NS) * 32768
        if k < 4:
            a(f's_add_u32 m0, s37, {slot + k*4096}')
            a(f's_add_u32 s38, s35, {st*128 + k*32*1280}')
            a('buffer_load_dwordx4 v5, s[56:59], s38 offen lds')
        else:
            a(f's_add_u32 m0, s37, {slot + 16384 + (k-4)*4096}')
            a(f's_add_u32 s38, s36, {(st*64 + (k-4)*16)*3840}')
            a('buffer_load_dwordx4 v6, s[60:63], s38 offen lds')
        vm.issue(('r', st))
    def decode():
        l1_, l2_, ld = lab('pk'), lab('pk'), lab('pk')
        a('s_cmp_lt_u32 s2, 40')
        a(f's_cbranch_scc0 {l1_}')
        srd(a, 64, 28, D * D * 2)
        a(f's_mul_hi_u32 s46, s2, {magic(10)}')
        a('s_mul_i32 s47, s46, 10')
        a('s_sub_u32 s47, s2, s47')
        a('s_movk_i32 s41, 160'); a('s_movk_i32 s42, 1280'); a(f's_mov_b32 s44, {WS_WO}'); a('s_movk_i32 s45, 20480')
        a(f's_branch {ld}')
        a.label(l1_)
        a('s_cmp_lt_u32 s2, 148')
        a(f's_cbranch_scc0 {l2_}')
        srd(a, 64, 30, D * F * 2)
        a('s_sub_u32 s40, s2, 40')
        a(f's_mul_hi_u32 s46, s40, {magic(27)}')
        a('s_mul_i32 s47, s46, 27')
        a('s_sub_u32 s47, s40, s47')
        a('s_movk_i32 s41, 160'); a('s_movk_i32 s42, 3456'); a(f's_mov_b32 s44, {WS_W1}'); a('s_movk_i32 s45, 20480')
        a(f's_branch {ld}')
        a.label(l2_)
        srd(a, 64, 32, F * D * 2)
        a('s_sub_u32 s40, s2, 148')
        a(f's_mul_hi_u32 s46, s40, {magic(10)}')
        a('s_mul_i32 s47, s46, 10')
        a('s_sub_u32 s47, s40, s47')
        a('s_movk_i32 s41, 192'); a('s_movk_i32 s42, 1280'); a(f's_mov_b32 s44, {WS_W2}'); a('s_mov_b32 s45, 55296')
        a.label(ld)
        a('s_mul_i32 s43, s46, s41')
        a('s_lshr_b32 s48, s43, 3')
        a('s_mul_i32 s43, s43, s42')
        a('s_lshl_b32 s40, s47, 7')
        a('s_add_u32 s43, s43, s40')
        a('s_lshl_b32 s40, s47, 2')
        a('s_mul_i32 s40, s40, s45')
        a('s_add_u32 s44, s44, s40')
        a('s_lshl_b32 s40, s48, 8')
        a('s_add_u32 s44, s44, s40')
    def pack_dma_setup():
        a('v_lshrrev_b32 v11, 3, v2')
        a('s_lshl_b32 s40, s23, 3')
        a('v_add_u32 v11, s40, v11')
        a('v_mul_lo_u32 v11, v11, s42')
        a('v_and_b32 v12, 7, v2')
        a('v_lshl_add_u32 v11, v12, 4, v11')
        a('s_cmp_lt_u32 s2, 238')
        a('s_cselect_b32 s49, s43, 0x7ff00000')
        a('s_lshl_b32 s50, s42, 5')
    def pack_dma_one(i):
        a(f's_add_u32 m0, s37, {PK_LDS + i*4096}')
        a('s_nop 0')
        a('buffer_load_dwordx4 v11, s[64:67], s49 offen lds')
        a('s_add_u32 s49, s49, s50')
    def pack_dma():
        pack_dma_setup()
        for i in range(6): pack_dma_one(i)
    def pack_setup():
        a('v_lshrrev_b32 v12, 4, v2')
        a('v_lshrrev_b32 v13, 2, v2')
        a('v_and_b32 v13, 3, v13')
        a('v_lshl_add_u32 v12, v12, 3, v13')
        a('v_lshlrev_b32 v12, 7, v12')
        a('v_and_b32 v13, 3, v2')
        a('v_lshl_add_u32 v12, v13, 3, v12')
        a('s_lshl_b32 s49, s23, 5')
        a(f's_add_u32 s49, s49, {PK_LDS}')
        a('v_add_u32 v12, s49, v12')
        a('s_mul_i32 s54, s23, s45')
        a('s_add_u32 s54, s54, s44')
        a('s_cmp_lt_u32 s2, 238')
        a('s_cselect_b32 s54, s54, 0x7ff00000')
        a('s_cmp_gt_u32 s41, 160')
        a('s_cselect_b32 s55, s54, 0x7ff00000')
    def pack_read(i, T):
        a(f'ds_read_b64_tr_b16 {v(T,2)}, v12 offset:{i*4096}')
        a(f'ds_read_b64_tr_b16 {v(T+2,2)}, v12 offset:{i*4096 + 512}')
    def pack_store(i, T):
        a(f's_add_u32 s49, {"s54" if i < 5 else "s55"}, {i*1024}')
        a(f'buffer_store_dwordx4 {v(T,4)}, v10, s[8:11], s49 offen' + WT)
    def pack_work(T):
        pack_setup()
        for i in range(6): pack_read(i, T + 4*i)
        a('s_waitcnt lgkmcnt(0)')
        for i in range(6): pack_store(i, T + 4*i)
    lz = f'{L}_nogemm'
    a('s_cmp_ge_u32 s14, 15')
    a(f's_cbranch_scc1 {lz}')
    for st in range(2):
        for k in range(4): dma(st, k)
    decode()
    pack_dma_setup()
    VB = 14
    a('v_lshrrev_b32 v7, 1, v3')
    a('v_and_b32 v7, 7, v7')
    a('s_lshl_b32 s40, s23, 12')
    a('v_lshlrev_b32 v8, 7, v3')
    a('v_add_u32 v8, s40, v8')
    for ks in range(4):
        a(f'v_or_b32 v9, {2*ks}, v4')
        a('v_xor_b32 v9, v9, v7')
        a(f'v_lshl_add_u32 v{VB+ks}, v9, 4, v8')
        a(f'v_add_u32 v{VB+4+ks}, 0x10000, v{VB+ks}')
    XS, S1, T = 24, 40, 44
    for r in range(4): a(f'v_mov_b32 v{S1+r}, 0')
    pend = [(st, k) for st in range(2, 10) for k in range(4)]
    stamp(a, 2)
    vm.wait(a, lambda x: x == ('r', 0))
    a('s_barrier')
    stamp(a, 3)
    for st in range(10):
        off = (st % NS) * 32768
        hi = off >= 65536
        if hi: off -= 65536
        for ks in range(4): a(f'ds_read_b128 {v(XS+4*ks,4)}, v{VB+(4 if hi else 0)+ks} offset:{off}')
        n_iss = 8 if st == 0 else 4
        todo = []
        while pend and pend[0][0] <= st + NS - 1 and len(todo) < n_iss: todo.append(pend.pop(0))
        if todo: dma(*todo.pop(0))
        a('s_waitcnt lgkmcnt(0)')
        for r in range(16):
            src = XS + r; t = T + 2 * (r & 1); acc = S1 + (r & 1)
            if 'k1nostat' not in gen.EXP:
                a(f'v_lshlrev_b32 v{t}, 16, v{src}'); a(f'v_and_b32 v{t+1}, 0xffff0000, v{src}')
                a(f'v_add_f32 v{acc}, v{acc}, v{t}'); a(f'v_fmac_f32 v{acc+2}, v{t}, v{t}')
                a(f'v_add_f32 v{acc}, v{acc}, v{t+1}'); a(f'v_fmac_f32 v{acc+2}, v{t+1}, v{t+1}')
            if todo and ((r & 3) == 3 or (st == 0 and (r & 1))): dma(*todo.pop(0))
        while todo: dma(*todo.pop(0))
        if st <= 2 and 'k1nopk' not in gen.EXP:
            for i in (2*st, 2*st+1):
                pack_dma_one(i); vm.issue('pk')
        if st + 1 < 10:
            if st == 3 and 'k1nopk' not in gen.EXP: vm.wait(a, lambda x: x == ('r', 4) or x == 'pk')
            else: vm.wait(a, lambda x: x == ('r', st + 1))
            a('s_barrier')
    a(f'v_add_f32 v{S1}, v{S1}, v{S1+1}')
    a(f'v_add_f32 v{S1+2}, v{S1+2}, v{S1+3}')
    for r in (0, 2):
        a(f'v_mov_b32 v{T}, v{S1+r}'); a(f'v_mov_b32 v{T+1}, v{S1+r}')
        a(f'v_permlane32_swap_b32 v{T}, v{T+1}')
        a(f'v_add_f32 v{S1+r}, v{T}, v{T+1}')
    a(f'v_mul_f32 v{S1}, {f2hex(1.0/640)}, v{S1}')
    a(f'v_mul_f32 v{S1+1}, {f2hex(1.0/640)}, v{S1+2}')
    a(f'v_fma_f32 v{S1+1}, -v{S1}, v{S1}, v{S1+1}')
    a(f'v_add_f32 v{S1+1}, 0x3727c5ac, v{S1+1}')
    a(f'v_rsq_f32 v{S1+1}, v{S1+1}')
    a(f'v_mul_f32 v{S1}, v{S1}, v{S1+1}')
    a('s_lshl_b32 s40, s23, 7')
    a(f's_add_u32 s40, s40, {ST_T}')
    a('v_lshlrev_b32 v7, 2, v3')
    a('v_add_u32 v7, s40, v7')
    a(f'ds_write_b32 v7, v{S1}')
    a(f'ds_write_b32 v7, v{S1+1} offset:512')
    a('s_waitcnt lgkmcnt(0)')
    a('s_barrier')
    finish()
    a.label(lz)
    decode()
    pack_dma()
    if not merged:
        a('v_lshlrev_b32 v1, 4, v2')
        a('s_lshl_b32 s40, s23, 10')
        a('v_add_u32 v1, s40, v1')
        for r in range(4): a(f'v_mov_b32 v{100+r}, 0')
        a(f's_mov_b32 s17, {WS_FLAG}')
        a('buffer_store_dwordx4 v[100:103], v1, s[8:11], s17 offen')
        a('buffer_store_dwordx4 v[100:103], v1, s[8:11], s17 offen offset:4095' if False else 's_add_u32 s17, s17, 4096')
        a('buffer_store_dwordx4 v[100:103], v1, s[8:11], s17 offen')
    a('s_waitcnt vmcnt(0)')
    a('s_barrier')
    pack_work(48)
    finish()
    a.label(f'{L}_compute')
    a('s_cmp_ge_u32 s14, 15')
    if merged:
        lq = lab('ng')
        a(f's_cbranch_scc0 {lq}')
        a('s_barrier')
        finish()
        a.label(lq)
    else:
        a(f's_cbranch_scc1 {L}_end')
    a('s_and_b32 s21, s12, 1')
    a('s_lshr_b32 s22, s12, 1')
    a('v_lshrrev_b32 v6, 4, v2')
    a('s_lshl_b32 s40, s23, 2')
    a('v_add_u32 v7, s40, v6')
    a('s_movk_i32 s40, 3840')
    a('v_mul_lo_u32 v7, v7, s40')
    a('v_and_b32 v8, 15, v2')
    a('v_lshlrev_b32 v9, 2, v6')
    a('v_xor_b32 v8, v8, v9')
    a('v_lshl_add_u32 v6, v8, 4, v7')
    a('s_lshl_b32 s36, s14, 8')
    a('s_lshl_b32 s37, s23, 10')
    a('s_waitcnt lgkmcnt(0)')
    srd(a, 60, 26, D * 3 * D * 2)
    vc = VM()
    def wdma(st, k):
        slot = (st % NS) * 32768
        a(f's_add_u32 m0, s37, {slot + 16384 + k*4096}')
        a(f's_add_u32 s38, s36, {(st*64 + k*16)*3840}')
        a('buffer_load_dwordx4 v6, s[60:63], s38 offen lds')
        vc.issue(('r', st))
    for st in range(2):
        for k in range(4): wdma(st, k)
    base_ops = list(vc.ops)
    VB, VA = 14, 22
    a('v_lshrrev_b32 v7, 1, v3')
    a('v_and_b32 v7, 7, v7')
    a('s_lshl_b32 s40, s22, 13')
    a('v_lshlrev_b32 v8, 7, v3')
    a('v_add_u32 v8, s40, v8')
    for ks in range(4):
        a(f'v_or_b32 v9, {2*ks}, v4')
        a('v_xor_b32 v9, v9, v7')
        a(f'v_lshl_add_u32 v{VB+ks}, v9, 4, v8')
        a(f'v_add_u32 v{VB+4+ks}, 0x10000, v{VB+ks}')
    a('v_lshrrev_b32 v7, 2, v2')
    a('v_and_b32 v7, 3, v7')
    a('v_and_b32 v8, 3, v2')
    a('v_and_b32 v9, 1, v8')
    a('v_lshlrev_b32 v9, 1, v9')
    a('v_lshrrev_b32 v11, 1, v8')
    a('v_or_b32 v9, v9, v11')
    a('s_cmp_lt_u32 s14, 10')
    a('s_cselect_b64 vcc, -1, 0')
    a('v_cndmask_b32 v8, v8, v9, vcc')
    a('v_lshrrev_b32 v9, 4, v2')
    a('v_and_b32 v9, 1, v9')
    a('v_lshl_add_u32 v8, v9, 2, v8')
    a('v_lshl_add_u32 v12, v4, 3, v7')
    a('v_lshlrev_b32 v12, 8, v12')
    a('v_and_b32 v13, 1, v8')
    a('v_lshl_add_u32 v12, v13, 3, v12')
    a('v_lshrrev_b32 v8, 1, v8')
    a('v_lshlrev_b32 v11, 2, v7')
    for aa in range(2):
        a(f's_xor_b32 s40, s22, {aa}')
        a('s_lshl_b32 s41, s21, 1')
        a('s_add_u32 s40, s40, s41')
        a(f's_mov_b32 s{50+aa}, s40')
        a('s_lshl_b32 s40, s40, 2')
        a('v_add_u32 v9, s40, v8')
        a('v_xor_b32 v9, v9, v11')
        a(f'v_lshl_add_u32 v{VA+2*aa}, v9, 4, v12')
        a(f'v_add_u32 v{VA+2*aa}, 16384, v{VA+2*aa}')
        a(f'v_add_u32 v{VA+2*aa+1}, 0x10000, v{VA+2*aa}')
    SEL, CSA = 28, 32
    a(f'v_mov_b32 v{SEL}, 0')
    a('s_mov_b32 s52, 0x00020001')
    a('s_mov_b32 s53, 0x00020001')
    a('v_mov_b32 v7, 0x3f803f80')
    a(f'v_cndmask_b32 v{SEL}, v{SEL}, v7, s[52:53]')
    for r in range(1, 4): a(f'v_mov_b32 v{SEL+r}, v{SEL}')
    for r in range(4): a(f'v_mov_b32 v{CSA+r}, 0')
    ACC, FA, FB, T = 40, 104, 120, 136
    a('s_waitcnt lgkmcnt(0)')
    srd(a, 8, 4, WS_END)
    a('s_mov_b32 s56, s50'); a('s_mov_b32 s57, s51')
    decode()
    pack_setup()
    PKT, CS4, ONES = 140, 152, 156
    for r in range(4):
        a(f'v_mov_b32 v{CS4+r}, 0'); a(f'v_mov_b32 v{ONES+r}, 0x3f803f80')
    def w1_colsum_store():
        a('s_sub_u32 s40, s2, 40')
        a('s_mul_i32 s58, s46, 6912')
        a('s_lshl_b32 s59, s47, 8')
        a('s_add_u32 s58, s58, s59')
        a('s_lshl_b32 s59, s23, 6')
        a('s_add_u32 s58, s58, s59')
        a(f's_add_u32 s58, s58, {WS_CS1}')
        a('s_cmp_lt_u32 s40, 108')
        a('s_cselect_b32 s58, s58, 0x7ff00000')
        a('v_lshrrev_b32 v11, 4, v2')
        a('v_lshlrev_b32 v11, 4, v11')
        a('s_mov_b32 s52, 0x00010001')
        a('s_mov_b32 s53, 0x00010001')
        a('s_mov_b64 exec, s[52:53]')
        a(f'buffer_store_dwordx4 {v(CS4,4)}, v11, s[8:11], s58 offen' + WT)
        a('s_mov_b64 exec, -1')
    def reads(st, ks, buf):
        off = (st % NS) * 32768
        hi = 1 if off >= 65536 else 0
        off -= hi * 65536
        for aa in range(2):
            a(f'ds_read_b64_tr_b16 {v(FA+8*buf+4*aa,2)}, v{VA+2*aa+hi} offset:{off + ks*4096}')
            a(f'ds_read_b64_tr_b16 {v(FA+8*buf+4*aa+2,2)}, v{VA+2*aa+hi} offset:{off + ks*4096 + 1024}')
        bb = VB + 4 * hi + ks
        a(f'ds_read_b128 {v(FB+8*buf,4)}, v{bb} offset:{off}')
        a(f'ds_read_b128 {v(FB+8*buf+4,4)}, v{bb} offset:{off + 4096}')
    def main(swap):
        vc.ops = list(base_ops)
        pend = [(st, k) for st in range(2, 10) for k in range(4)]
        vc.wait(a, lambda x: x == ('r', 0))
        a('s_barrier')
        stamp(a, 3)
        reads(0, 0, 0)
        buf = 0
        for st in range(10):
            for ks in range(4):
                if ks < 3:
                    if st >= 4 and ks == 0 and 'k1nopk' not in gen.EXP: pack_read(st - 4, PKT)
                    reads(st, ks + 1, buf ^ 1)
                    a('s_waitcnt lgkmcnt(%d)' % (8 if (st >= 4 and ks == 0 and 'k1nopk' not in gen.EXP) else 6))
                else:
                    a('s_waitcnt lgkmcnt(0)')
                    if st + 1 < 10:
                        if 'k1stamp' in gen.EXP and st in (2, 5): stamp(a, {2: 8, 5: 10}[st])
                        vc.wait(a, lambda x: x == ('r', st + 1))
                        a('s_barrier')
                        if 'k1stamp' in gen.EXP and st in (2, 5): stamp(a, {2: 9, 5: 11}[st])
                        reads(st + 1, 0, buf ^ 1)
                for aa in range(2):
                    for j in range(2):
                        A_ = v(FA+8*buf+4*aa, 4); B_ = v(FB+8*buf+4*j, 4)
                        acc = v(ACC+32*aa+16*j, 16)
                        c = '0' if (st == 0 and ks == 0) else acc
                        if swap: a(f'v_mfma_f32_32x32x16_bf16 {acc}, {B_}, {A_}, {c}')
                        else: a(f'v_mfma_f32_32x32x16_bf16 {acc}, {A_}, {B_}, {c}')
                if 'k1nocs' not in gen.EXP: a(f'v_mfma_f32_16x16x32_bf16 {v(CSA,4)}, {v(FA+8*buf,4)}, {v(SEL,4)}, {v(CSA,4)}')
                if st >= 4 and ks == 1 and 'k1nopk' not in gen.EXP:
                    pack_store(st - 4, PKT); vc.issue('pks')
                    if st - 4 < 5: a(f'v_mfma_f32_16x16x32_bf16 {v(CS4,4)}, {v(PKT,4)}, {v(ONES,4)}, {v(CS4,4)}')
                if st == 9 and ks == 2 and 'k1nopk' not in gen.EXP:
                    w1_colsum_store(); vc.issue('pks')
                lim = st + NS - 1 + (1 if ks == 3 else 0)
                for _ in range(2 if st == 0 else 1):
                    if pend and pend[0][0] <= lim: wdma(*pend.pop(0))
                buf ^= 1
        stamp(a, 4)
        a('s_lshl_b32 s40, s56, 7')
        a(f's_add_u32 s40, s40, {CS_T}')
        a('v_and_b32 v8, 1, v2')
        a('v_lshlrev_b32 v8, 6, v8')
        a('v_lshrrev_b32 v9, 4, v2')
        a('v_lshl_add_u32 v8, v9, 4, v8')
        a('v_add_u32 v8, s40, v8')
        a('s_mov_b32 s52, 0x00030003')
        a('s_mov_b32 s53, 0x00030003')
        a('s_nop 7')
        a('s_mov_b64 exec, s[52:53]')
        a(f'ds_write_b128 v8, {v(CSA,4)}')
        a('s_mov_b64 exec, -1')
        a('s_waitcnt lgkmcnt(0)')
        a('s_barrier')
    a('s_cmp_ge_u32 s14, 10')
    a(f's_cbranch_scc1 {L}_v')
    main(False)
    C, P = 104, 136
    a('s_lshl_b32 s40, s22, 8')
    a(f's_add_u32 s40, s40, {ST_T}')
    a('v_lshlrev_b32 v7, 2, v3')
    a('v_add_u32 v7, s40, v7')
    for j in range(2):
        a(f'ds_read_b32 v{P+2*j}, v7 offset:{j*128}')
        a(f'ds_read_b32 v{P+2*j+1}, v7 offset:{512 + j*128}')
    for aa in range(2):
        a(f's_lshl_b32 s40, s{56+aa}, 7')
        a(f's_add_u32 s40, s40, {CS_T}')
        a('v_lshlrev_b32 v7, 4, v4')
        a('v_add_u32 v7, s40, v7')
        for g in range(4): a(f'ds_read_b128 {v(C+16*aa+4*g,4)}, v7 offset:{g*32}')
    a(f's_mov_b32 s40, {f2hex(QSCALE)}')
    a('s_cmp_lt_u32 s14, 5')
    a('s_cselect_b32 s40, s40, 1.0')
    a('s_waitcnt lgkmcnt(0)')
    for r in range(4): a(f'v_mul_f32 v{P+r}, s40, v{P+r}')
    a('v_lshrrev_b32 v13, 4, v3')
    a('s_movk_i32 s17, 20480')
    a('v_mul_lo_u32 v13, v13, s17')
    a('v_and_b32 v14, 15, v3')
    a('v_lshl_add_u32 v13, v14, 4, v13')
    a('v_lshl_add_u32 v13, v4, 8, v13')
    a('s_lshl_b32 s17, s13, 3')
    a('s_lshl_b32 s18, s22, 2')
    a('s_add_u32 s17, s17, s18')
    a('s_mul_i32 s17, s17, 20480')
    a(f's_mov_b32 s18, {WS_Q}')
    a(f's_mov_b32 s19, {WS_K - 80*256}')
    a('s_cmp_lt_u32 s14, 5')
    a('s_cselect_b32 s18, s18, s19')
    a('s_add_u32 s17, s17, s18')
    a('s_lshl_b32 s18, s14, 12')
    a('s_add_u32 s17, s17, s18')
    PK = 144
    for aa in range(2):
        for j in range(2):
            acc = ACC + 32 * aa + 16 * j
            for r in range(16):
                a(f'v_mul_f32 v{P+4}, v{P+2*j}, v{C+16*aa+r}')
                a(f'v_fma_f32 v{acc+r}, v{P+2*j+1}, v{acc+r}, -v{P+4}')
            pk = PK + 8 * ((2 * aa + j) & 1)
            for r in range(8): a(f'v_cvt_pk_bf16_f32 v{pk+r}, v{acc+2*r}, v{acc+2*r+1}')
            a(f's_lshl_b32 s18, s{56+aa}, 10')
            a('s_add_u32 s18, s18, s17')
            if j: a(f's_add_u32 s18, s18, {2*20480}')
            a(f'buffer_store_dwordx4 {v(pk,4)}, v13, s[8:11], s18 offen' + WT)
            a(f'buffer_store_dwordx4 {v(pk+4,4)}, v13, s[8:11], s18 offen offset:512' + WT)
    stamp(a, 5)
    if gen.PROF: a('s_waitcnt vmcnt(0)')
    stamp(a, 6); stamp(a, 7, True)
    if not merged: stamp_flush(a, 1, 12, 8, 12)
    finish()
    a.label(f'{L}_v')
    main(True)
    C = 104
    TT = 136
    for aa in range(2):
        a(f's_lshl_b32 s40, s{56+aa}, 7')
        a(f's_add_u32 s40, s40, {CS_T}')
        a('v_lshlrev_b32 v8, 2, v3')
        a('v_add_u32 v8, s40, v8')
        a(f'ds_read_b32 v{TT+aa}, v8')
    a('s_lshl_b32 s40, s22, 8')
    a(f's_add_u32 s40, s40, {ST_T}')
    a('v_lshlrev_b32 v7, 4, v4')
    a('v_add_u32 v7, s40, v7')
    for aa in range(2):
        a('s_sub_u32 s17, s14, 10')
        a('s_lshl_b32 s17, s17, 7')
        a(f's_lshl_b32 s18, s{56+aa}, 5')
        a('s_add_u32 s17, s17, s18')
        a('v_add_u32 v13, s17, v3')
        a(f's_mov_b32 s17, {magic(20)}')
        a('v_mul_hi_u32 v14, v13, s17')
        a('v_mul_u32_u24 v15, 20, v14')
        a('v_sub_u32 v15, v13, v15')
        a('s_mov_b32 s17, 81920')
        a('v_mul_lo_u32 v14, v14, s17')
        a('v_lshl_add_u32 v14, v15, 4, v14')
        a('v_mul_u32_u24 v15, 320, v4')
        a(f'v_add_u32 v{TT+2+aa}, v14, v15')
    a('s_lshl_b32 s17, s13, 3')
    a('s_lshl_b32 s18, s22, 2')
    a('s_add_u32 s17, s17, s18')
    a('s_mul_i32 s17, s17, 640')
    a(f's_add_u32 s17, s17, {WS_VT}')
    PK = 144
    for j in range(2):
        for g in range(4):
            a(f'ds_read_b128 {v(C+4*g,4)}, v7 offset:{j*128 + g*32}')
            a(f'ds_read_b128 {v(C+16+4*g,4)}, v7 offset:{512 + j*128 + g*32}')
        a('s_waitcnt lgkmcnt(0)')
        for aa in range(2):
            acc = ACC + 32 * aa + 16 * j
            for r in range(16):
                a(f'v_mul_f32 v{TT+4}, v{C+r}, v{TT+aa}')
                a(f'v_fma_f32 v{acc+r}, v{C+16+r}, v{acc+r}, -v{TT+4}')
            pk = PK + 8 * aa
            for r in range(8): a(f'v_cvt_pk_bf16_f32 v{pk+r}, v{acc+2*r}, v{acc+2*r+1}')
            for gg in range(2):
                a(f'buffer_store_dwordx4 {v(pk+4*gg,4)}, v{TT+2+aa}, s[8:11], s17 offen offset:{(2*j+gg)*640}' + WT)
    stamp(a, 5)
    if gen.PROF: a('s_waitcnt vmcnt(0)')
    stamp(a, 6); stamp(a, 7, True)
    if merged:
        finish()
        return
    stamp_flush(a, 1, 12, 8, 12)
    a.label(f'{L}_end')
    a('s_endpgm')
    return a, descriptor(L, 160, 102), f'; @launch kernel={L} grid=(256,1,1) block=(512,1,1) lds=163840'
```

```python
import sys
sys.path.insert(0, 'dev')
import gen, gen2
from gen import *
from gen2 import lab, stores2, attn_units, wo_dma, WS_XT, SG, SJ, SPURE, LDS_WO, SPIN_MAX
from asmlib import *

class VM:
    def __init__(self): self.ops = []
    def issue(self, tag): self.ops.append(tag)
    def count_after(self, pred):
        n = 0
        for x in reversed(self.ops):
            if pred(x): return n
            n += 1
        raise Exception('no op matches')
    def wait(self, a, pred, extra=''):
        a(f's_waitcnt vmcnt({min(self.count_after(pred), 63)}){extra}')

XR0 = 136
W1A, W1B = 152, 16
def w1reg(s): return W1A + 4 * s if s < 26 else W1B + 4 * (s - 26)
SH, SR = 36, 37
S_OOB = 38
S_DONE = 39
FB_LDS = 159744
S_W1 = 98
V_W1 = 1

def flag_store(a, p, vt):
    g_, j_ = (SR, SH) if p == 0 else (SG, SJ)
    a(f's_lshl_b32 s40, s{g_}, 7')
    a(f's_lshl_b32 s41, s{j_}, 2')
    a('s_add_u32 s40, s40, s41')
    a(f's_add_u32 s40, s40, {WS_FLAG + p*1024}')
    a(f'v_mov_b32 v{vt}, 0')
    a(f'v_mov_b32 v{vt+1}, 1')
    a('s_mov_b64 exec, 1')
    stores2(a, [f'buffer_store_dword v{vt+1}, v{vt}, s[8:11], s40 offen'])
    a('s_mov_b64 exec, -1')

def sync(a, p_pub, p_wait, smask_setup, prefetch, vt=14, drained=False, w0_prefetch=True):
    if p_pub is not None and not drained:
        a('s_waitcnt vmcnt(0)')
        a('s_barrier')
    l0, l1, lp, ld, l3 = lab('sy'), lab('sy'), lab('sy'), lab('sy'), lab('sy')
    a('s_cmp_lg_u32 s12, 0')
    a(f's_cbranch_scc1 {l0}')
    if p_pub is not None: flag_store(a, p_pub, vt)
    smask_setup()
    a(f's_lshl_b32 s40, s{SG}, 7')
    a(f's_add_u32 s40, s40, {WS_FLAG + p_wait*1024}')
    a(f'v_lshlrev_b32 v{vt}, 2, v2')
    a('s_mov_b64 exec, s[44:45]')
    a('s_mov_b32 s41, 0')
    a.label(lp)
    a(f'buffer_load_dword v{vt+1}, v{vt}, s[8:11], s40 offen sc1')
    a('s_add_u32 s41, s41, 1')
    a('s_waitcnt vmcnt(0)')
    a(f'v_cmp_eq_u32 vcc, 0, v{vt+1}')
    a(f's_cbranch_vccz {ld}')
    a(f's_cmp_lt_u32 s41, {SPIN_MAX}')
    a(f's_cbranch_scc1 {lp}')
    a.label(ld)
    a('s_mov_b64 exec, -1')
    a(f's_cmp_eq_u32 s{SPURE}, 1')
    a(f's_cbranch_scc1 {l3}')
    a('buffer_inv sc1')
    a('s_waitcnt vmcnt(0)')
    a.label(l3)
    a('s_barrier')
    if w0_prefetch: prefetch()
    a(f's_branch {l1}')
    a.label(l0)
    prefetch()
    a('s_barrier')
    a.label(l1)

def late_init(a, vm, L):
    merged = 'merge' in gen.EXP
    if not merged:
        a(f's_lshl_b32 s40, s{SG}, 7')
        a(f's_lshl_b32 s41, s{SJ}, 2')
        a('s_add_u32 s40, s40, s41')
        a(f's_add_u32 s40, s40, {WS_XT}')
        a('s_cmp_eq_u32 s12, 0')
        a('s_cselect_b32 s40, s40, 0x7ff00000')
        a('v_mov_b32 v14, 0')
        a(f'v_mov_b32 v15, s{SPURE}')
        a('s_mov_b64 exec, 1')
        a('buffer_store_dword v15, v14, s[8:11], s40 offen sc1')
        a('s_mov_b64 exec, -1')
        vm.issue('xts')

def phase_attn(a, L):
    R = AR
    attn_ones(a)
    a(f's_lshr_b32 s62, s{SJ}, 2')
    a('s_mul_i32 s62, s62, 102400')
    a(f's_add_u32 s62, s62, {WS_WO}')
    a('s_lshl_b32 s61, s12, 10')
    a('s_add_u32 s62, s62, s61')
    a('s_cmp_lt_u32 s12, 4')
    a(f's_mov_b32 s63, {11*8192}')
    a(f's_cselect_b32 s63, {12*8192}, s63')
    a('s_add_u32 s63, s63, s62')
    a(f's_add_u32 s61, s61, {LDS_WO}')
    if 'rolled' in gen.EXP:
        for r in range(32): a(f'v_mov_b32 v{R.O+r}, 0')
        for r in range(16): a(f'v_mov_b32 v{R.P+r}, 0')
        for r in range(16): a(f'v_mov_b32 v{R.VV+r}, 0')
    vm = VM()
    a(f's_mov_b32 s{S_DONE}, 0')
    a(f'v_mov_b32 v14, {FB_LDS}')
    a('v_mov_b32 v15, 0')
    a('ds_write_b32 v14, v15')
    def w1_addr(a_):
        lane_swap23(a_, 14, 3, 15)
        a_('v_lshrrev_b32 v15, 4, v14')
        a_('s_movk_i32 s40, 20480')
        a_('v_mul_lo_u32 v15, v15, s40')
        a_('v_and_b32 v14, 15, v14')
        a_('v_lshl_add_u32 v15, v14, 4, v15')
        a_(f'v_lshl_add_u32 v{V_W1}, v4, 8, v15')
        a_(f's_lshr_b32 s40, s{SJ}, 1')
        a_('s_lshl_b32 s40, s40, 2')
        a_('s_and_b32 s41, s12, 3')
        a_('s_add_u32 s40, s40, s41')
        a_('s_mul_i32 s41, s40, 40960')
        a_(f's_add_u32 s41, s41, {WS_W1}')
        a_('s_cmp_lt_u32 s40, 54')
        a_(f's_cselect_b32 s{S_W1}, s41, 0x7ff00000')
    def touch_addr(a_):
        a_(f's_mov_b32 s{S_OOB}, 0x7ff00000')
        lt1, lt2 = lab('tc'), lab('tc')
        a_('v_lshlrev_b32 v148, 7, v2')
        a_('s_cmp_ge_u32 s12, 4')
        a_(f's_cbranch_scc1 {lt1}')
        a_(f's_mul_i32 s50, s{SG}, {16*20480}')
        a_(f's_mul_i32 s40, s{SJ}, 10240')
        a_('s_add_u32 s50, s50, s40')
        a_('s_and_b32 s40, s12, 1')
        a_('s_mul_i32 s40, s40, 5120')
        a_('s_add_u32 s50, s50, s40')
        a_('s_lshr_b32 s40, s12, 1')
        a_(f's_mul_i32 s40, s40, {WS_H - WS_O}')
        a_('s_add_u32 s50, s50, s40')
        a_(f's_add_u32 s50, s50, {WS_O}')
        a_('v_add_u32 v148, s50, v148')
        a_(f's_lshr_b32 s40, s{SJ}, 1')
        a_('s_lshl_b32 s40, s40, 14')
        a_(f's_lshl_b32 s41, s{SG}, 11')
        a_('s_add_u32 s40, s40, s41')
        a_(f's_and_b32 s41, s{SJ}, 1')
        a_('s_lshl_b32 s41, s41, 10')
        a_('s_add_u32 s40, s40, s41')
        a_(f's_add_u32 s40, s40, {WS_ST2 - 40*128}')
        a_('s_cmp_eq_u32 s12, 2')
        a_('s_cselect_b32 s40, s40, 0x7ff00000')
        a_('v_lshlrev_b32 v149, 7, v2')
        a_('v_add_u32 v149, s40, v149')
        a_('v_mov_b32 v14, 0x7ff00000')
        a_('v_cmp_gt_u32 vcc, 48, v2')
        a_('v_cndmask_b32 v149, v14, v149, vcc')
        a_('v_cmp_gt_u32 vcc, 40, v2')
        a_('v_cndmask_b32 v148, v149, v148, vcc')
        a_(f's_branch {lt2}')
        a_.label(lt1)
        a_('s_sub_u32 s40, s12, 4')
        a_('s_lshl_b32 s40, s40, 5')
        a_(f's_add_u32 s40, s40, s{SJ}')
        a_('s_mul_i32 s50, s40, 20480')
        a_(f's_add_u32 s50, s50, {WS_W1 + 13312}')
        a_('s_cmp_lt_u32 s40, 108')
        a_('s_cselect_b32 s50, s50, 0x7ff00000')
        a_('v_add_u32 v148, s50, v148')
        a_('v_mov_b32 v14, 0x7ff00000')
        a_('v_cmp_gt_u32 vcc, 56, v2')
        a_('v_cndmask_b32 v148, v14, v148, vcc')
        a_.label(lt2)
        a_('v_lshlrev_b32 v147, 7, v2')
        a_('s_lshl_b32 s40, s12, 13')
        a_(f's_mul_i32 s51, s{SG}, {16*55296}')
        a_(f's_mul_i32 s41, s{SJ}, 27648')
        a_('s_add_u32 s51, s51, s41')
        a_('s_add_u32 s51, s51, s40')
        a_(f's_add_u32 s51, s51, {WS_G}')
        a_('s_cmp_ge_u32 s12, 4')
        a_('s_cselect_b32 s51, 0x7ff00000, s51')
        a_(f's_and_b32 s40, s{SJ}, 3')
        a_('s_lshl_b32 s40, s40, 2')
        a_(f's_lshl_b32 s41, s{SG}, 4')
        a_('s_add_u32 s40, s40, s41')
        a_('s_and_b32 s41, s12, 3')
        a_('s_add_u32 s40, s40, s41')
        a_('s_lshl_b32 s40, s40, 4')
        a_('v_and_b32 v0, 15, v2')
        a_('v_add_u32 v0, s40, v0')
        a_('s_movk_i32 s41, 1280')
        a_('v_mul_lo_u32 v0, v0, s41')
        a_('v_lshrrev_b32 v14, 4, v2')
        a_('v_lshl_add_u32 v0, v14, 3, v0')
        a_(f's_lshr_b32 s57, s{SJ}, 2')
        a_('s_mul_i32 s57, s57, 160')
        a_('s_lshr_b32 s40, s12, 2')
        a_('s_mul_i32 s40, s40, 96')
        a_('s_add_u32 s57, s57, s40')
    INLOOP = 'rolled' not in gen.EXP
    if not INLOOP:
        w1_addr(a); touch_addr(a)
    def rec(fn):
        t_ = Asm(); fn(t_); return list(t_.lines)
    if 'earlyinit' in gen.EXP: late_init(a, VM(), L)
    a('s_waitcnt vmcnt(0)')
    for st in (1, 2):
        attn_dma(a, st, 8); vm.issue(('kv', st)); vm.issue(('kv', st))
    for x in wo_dma(): a(x)
    vm.issue('wo')
    if 'earlyinit' not in gen.EXP: late_init(a, vm, L)
    if 'notlb' not in gen.EXP:
        a('v_lshlrev_b32 v149, 16, v2')
        a('s_lshl_b32 s40, s12, 22')
        a('buffer_load_dword v149, v149, s[8:11], s40 offen')
        a('v_lshlrev_b32 v148, 16, v2')
        a('buffer_load_dword v148, v148, s[76:79], 0 offen')
    a('v_cmp_gt_u32 vcc, 32, v2')
    for r in range(4): a(f'v_cndmask_b32 v{R.QC+r}, 0, v{R.QC+r}, vcc')
    a('s_waitcnt lgkmcnt(0)')
    a('s_barrier')
    a(f'ds_read_b128 {v(R.KA,4)}, v11 offset:0')
    a(f'ds_read_b64 {v(R.KC,2)}, v12 offset:0')
    a('s_waitcnt lgkmcnt(0)')
    a(f'v_mfma_f32_32x32x16_bf16 {v(R.S,16)}, {v(R.KA,4)}, {v(R.QA,4)}, 0')
    a(f'v_mfma_f32_32x32x8bf16_1k {v(R.S,16)}, {v(R.KC,2)}, {v(R.QC,2)}, {v(R.S,16)}')
    stamp(a, 7)
    wnext = [0]
    def w1load():
        s_ = wnext[0]; wnext[0] += 1
        return [f's_add_u32 s40, s{S_W1}, {s_*512}', f'buffer_load_dwordx4 {v(w1reg(s_),4)}, v{V_W1}, s[8:11], s40 offen']
    plan = {}
    waits = {}
    nW = {2: 3, 3: 3, 4: 3, 5: 3, 6: 4, 7: 4, 8: 3, 9: 3}
    if 'now1a' in gen.EXP: nW = {}
    ROLL = 'rolled' in gen.EXP
    if ROLL: nW = {8: 4, 9: 4, 10: 4, 11: 4, 12: 4, 13: 3, 14: 3}
    def masked(sreg, cond_lo, cond_hi, vreg):
        return [f's_sub_u32 s40, s12, {cond_lo}', f's_cmp_lt_u32 s40, {cond_hi - cond_lo}', f's_cselect_b32 s40, {sreg}, s{S_OOB}',
                f'buffer_load_dword v149, v{vreg}, s[8:11], s40 offen']
    for g in range(16):
        ex = {}
        k = nW.get(g, 0)
        slots = sorted([(0, 20), (1, 8), (1, 20), (2, 20)][:k])
        if g <= 11:
            ex.setdefault(0, {})[8] = wo_dma(); vm.issue('wo')
        if INLOOP and g == 0: ex.setdefault(1, {})[9] = rec(w1_addr)
        if INLOOP and g == 1:
            tl_ = rec(touch_addr)
            ex.setdefault(1, {})[9] = tl_
        if g == 12:
            ex.setdefault(0, {})[8] = [f's_lshl_b32 s40, s{SG}, 7', f's_add_u32 s40, s40, {WS_XT}', 'v_lshlrev_b32 v150, 2, v3',
                                       'buffer_load_dword v150, v150, s[8:11], s40 offen sc1']
            vm.issue('xt')
        tl = None
        if g == 10: tl = masked('0', 4, 6, 148)
        if g == 11: tl = masked('0', 6, 8, 148)
        if g == 12: tl = masked('0', 0, 4, 148)
        if g == 13: tl = ['buffer_load_dword v149, v147, s[8:11], s51 offen']
        if tl and 'notouch' not in gen.EXP:
            ex.setdefault(1, {})[14] = tl; vm.issue('touch')
        post = []
        pre_ops = []
        for (u, pos) in slots:
            if u < 2: ex.setdefault(u, {})[pos] = w1load(); vm.issue('w1')
            else: post.append((u, pos))
        if g < 15: waits[g] = vm.count_after(lambda x: x == ('kv', g + 1))
        if ROLL and g < 8: waits[g] = 4
        for (u, pos) in post:
            ex.setdefault(u, {})[pos] = w1load(); vm.issue('w1')
        if g <= 12:
            vm.issue(('kv', g + 3)); vm.issue(('kv', g + 3))
        if g == 13:
            ex.setdefault(3, {})[20] = [f'buffer_load_dwordx2 {v(XR0+2*i,2)}, v0, s[72:75], s57 offen offset:{32*i}' for i in range(3)]
            for i in range(3): vm.issue('xr')
        plan[g] = ex
    assert wnext[0] == 26 or 'now1a' in gen.EXP, wnext
    def run(stages_g):
        loc = {g % 4: g for g in stages_g}
        def prio(st, u):
            g = loc[st]
            if g == 15: return {0: 2, 1: 1, 2: 1, 3: 0}[u]
            if g == 14 and u >= 2: return 3
            return {2: 3, 3: 2, 0: 1, 1: 0}[u]
        return attn_units(a, 8, [(g % 4, g == 15) for g in stages_g], lambda st: loc[st] <= 12,
                          lambda st, u: plan[loc[st]].get(u, {}), lambda st: waits[loc[st]], prio,
                          start=(stages_g[0] == 0 and 'rolled' not in gen.EXP))
    if ROLL:
        a('s_mov_b32 s60, 2')
        a.label('.Lat_loop')
        run([4, 5, 6, 7])
        a('s_sub_u32 s60, s60, 1')
        a('s_cmp_lg_u32 s60, 0')
        a('s_cbranch_scc1 .Lat_loop')
        run([8, 9, 10, 11])
    else:
        for b_ in range(3): run([4*b_ + i for i in range(4)])
    m1, m2, m3, m4, _ = run([12, 13, 14, 15])
    a(m3(1, 1, 1)); a(m4(1, 1, 1))
    a('s_setprio 0')
    stamp(a, 3)
    lp, ld = lab('xt'), lab('xt')
    a('s_mov_b32 s41, 0')
    a('v_cmp_eq_u32 vcc, 0, v150')
    a(f's_cbranch_vccz {ld}')
    a.label(lp)
    a(f's_lshl_b32 s40, s{SG}, 7')
    a(f's_add_u32 s40, s40, {WS_XT}')
    a('v_lshlrev_b32 v14, 2, v3')
    a('buffer_load_dword v150, v14, s[8:11], s40 offen sc1')
    a('s_add_u32 s41, s41, 1')
    a('s_waitcnt vmcnt(0)')
    a('v_cmp_eq_u32 vcc, 0, v150')
    a(f's_cbranch_vccz {ld}')
    a(f's_cmp_lt_u32 s41, {SPIN_MAX}')
    a(f's_cbranch_scc1 {lp}')
    a.label(ld)
    a(f'v_cmp_ne_u32 vcc, s{SPURE}, v150')
    a('s_cmp_eq_u64 vcc, 0')
    a(f's_cselect_b32 s{SPURE}, 1, 0')
    if 'slow' in gen.EXP: a(f's_mov_b32 s{SPURE}, 0')
    TT = R.S
    a.label('.Lat_combine')
    a('s_cmp_eq_u32 s46, 0')
    a('s_cbranch_scc1 .Lat_noswap')
    a('s_nop 7')
    for r in range(12): a(f'v_swap_b32 v{R.O+r}, v{R.O+16+r}')
    a.label('.Lat_noswap')
    a('s_nop 7')
    a(f's_mul_i32 s40, s12, 3072')
    a('v_add_u32 v14, s40, v10')
    for i in range(3): a(f'ds_write_b128 v14, {v(R.O+16+4*i,4)} offset:{1024*i}')
    a('s_xor_b32 s40, s12, 4')
    a('s_mul_i32 s40, s40, 3072')
    a('v_add_u32 v14, s40, v10')
    a('s_waitcnt lgkmcnt(0)')
    a('s_barrier')
    for i in range(3): a(f'ds_read_b128 {v(TT+4*i,4)}, v14 offset:{1024*i}')
    a('s_waitcnt lgkmcnt(0)')
    for r in range(12): a(f'v_add_f32 v{R.O+r}, v{R.O+r}, v{TT+r}')
    a(f'v_mov_b32 v{TT}, v{R.O+8}')
    a(f'v_mov_b32 v{TT+1}, v{R.O+8}')
    a(f'v_permlane32_swap_b32 v{TT}, v{TT+1}')
    a(f'v_mov_b32 v{TT+2}, 0')
    for r in range(12): a(f'v_fmac_f32 v{TT+2}, 0, v{R.O+r}')
    a('s_mov_b32 s40, 0x1f800000')
    a(f'v_cmp_nle_f32 vcc, s40, v{TT+1}')
    a('s_mov_b32 s40, 0x5f800000')
    a(f'v_cmp_nge_f32 s[44:45], s40, v{TT+1}')
    a('s_or_b64 s[44:45], s[44:45], vcc')
    a(f'v_cmp_u_f32 vcc, v{TT+2}, v{TT+2}')
    a('s_or_b64 s[44:45], s[44:45], vcc')
    if 'forcefb' in gen.EXP: a('s_mov_b64 s[44:45], -1')
    lok = lab('ok')
    a('s_cmp_eq_u64 s[44:45], 0')
    a(f's_cbranch_scc1 {lok}')
    a(f'v_mov_b32 v{TT+2}, {FB_LDS}')
    a(f'v_mov_b32 v{TT+3}, 1')
    a(f'ds_write_b32 v{TT+2}, v{TT+3}')
    a.label(lok)
    a(f'v_rcp_f32 v{TT+1}, v{TT+1}')
    for r in range(12): a(f'v_mul_f32 v{R.O+r}, v{R.O+r}, v{TT+1}')
    for i in range(6): a(f'v_cvt_pk_bf16_f32 v{TT+4+i}, v{R.O+2*i}, v{R.O+2*i+1}')
    a('s_mul_i32 s61, s46, 40960')
    a('s_add_u32 s61, s61, s47')
    a(f's_add_u32 s61, s61, {WS_O}')
    a('s_lshl_b32 s62, s42, 8')
    a('s_add_u32 s62, s62, s61')
    a('s_lshl_b32 s63, s43, 8')
    a('s_add_u32 s63, s63, s61')
    a(f's_and_b32 s61, s{SH}, 1')
    a('s_lshl_b32 s61, s61, 3')
    a('s_add_u32 s63, s63, s61')
    stores2(a, [f'buffer_store_dwordx4 {v(TT+4,4)}, v7, s[8:11], s62 offen',
                's_mov_b64 exec, 0xffffffff',
                f'buffer_store_dwordx2 {v(TT+8,2)}, v5, s[8:11], s63 offen',
                's_mov_b64 exec, -1'])
    stamp(a, 4)
    oproj_setup(a)
    a('s_waitcnt vmcnt(0) lgkmcnt(0)')
    a('s_barrier')
    a(f'v_mov_b32 v14, {FB_LDS}')
    a('ds_read_b32 v15, v14')
    a('s_waitcnt lgkmcnt(0)')
    a('v_readfirstlane_b32 s40, v15')
    a(f's_sub_u32 s40, s40, s{S_DONE}')
    a('s_cmp_eq_u32 s40, 1')
    a('s_cbranch_scc1 .Lat_fallback')
    a.label('.Lat_done')

def attn_fallback(a):
    R = AR
    SL = 2 * AT_SLOT
    S_, M0_, M1_ = R.S, R.S + 16, R.S + 17
    a.label('.Lat_fallback')
    a(f's_mov_b32 s{S_DONE}, 1')
    def load_stage():
        a('s_barrier')
        for x in attn_dma_parts(2, 8)[0] + attn_dma_parts(2, 8)[1]: a(x)
        a('s_waitcnt vmcnt(0)')
        a('s_barrier')
    def rewind():
        a(f's_sub_u32 s52, s52, {16*5120}')
        a(f's_sub_u32 s53, s53, {16*163840}')
    def scores(t, j):
        a(f'v_mfma_f32_32x32x16_bf16 {v(S_,16)}, {v(R.KA,4)}, {v(R.QA+4*j,4)}, 0')
        a(f'v_mfma_f32_32x32x8bf16_1k {v(S_,16)}, {v(R.KC,2)}, {v(R.QC+2*j,2)}, {v(S_,16)}')
    def kread(t):
        a(f'ds_read_b128 {v(R.KA,4)}, v11 offset:{SL + t*1024}')
        a(f'ds_read_b64 {v(R.KC,2)}, v12 offset:{SL + t*512}')
    rewind()
    a(f'v_mov_b32 v{M0_}, 0xff7fffff'); a(f'v_mov_b32 v{M1_}, 0xff7fffff')
    a('s_mov_b32 s60, 16')
    a.label('.Lat_fb1')
    load_stage()
    for t in range(2):
        kread(t)
        a('s_waitcnt lgkmcnt(0)')
        for j in range(2):
            scores(t, j)
            m = M0_ + j
            for r in range(0, 16, 2): a(f'v_max3_f32 v{m}, v{S_+r}, v{S_+r+1}, v{m}')
    a('s_sub_u32 s60, s60, 1')
    a('s_cmp_lg_u32 s60, 0')
    a('s_cbranch_scc1 .Lat_fb1')
    for j in range(2):
        m = M0_ + j
        a(f'v_mov_b32 v{S_}, v{m}'); a(f'v_mov_b32 v{S_+1}, v{m}')
        a(f'v_permlane32_swap_b32 v{S_}, v{S_+1}')
        a(f'v_max_f32 v{m}, v{S_}, v{S_+1}')
    a('s_barrier')
    a('s_lshl_b32 s40, s12, 9')
    a('v_lshlrev_b32 v14, 3, v2')
    a('v_add_u32 v14, s40, v14')
    a(f'ds_write_b64 v14, {v(M0_,2)}')
    a('s_xor_b32 s40, s12, 4')
    a('s_lshl_b32 s40, s40, 9')
    a('v_lshlrev_b32 v14, 3, v2')
    a('v_add_u32 v14, s40, v14')
    a('s_waitcnt lgkmcnt(0)')
    a('s_barrier')
    a(f'ds_read_b64 {v(S_,2)}, v14')
    a('s_waitcnt lgkmcnt(0)')
    a(f'v_max_f32 v{M0_}, v{M0_}, v{S_}')
    a(f'v_max_f32 v{M1_}, v{M1_}, v{S_+1}')
    rewind()
    for r in range(32): a(f'v_mov_b32 v{R.O+r}, 0')
    a('s_mov_b32 s60, 16')
    a.label('.Lat_fb2')
    load_stage()
    for t in range(2):
        kread(t)
        a(f'ds_read_b128 {v(R.VV,4)}, v13 offset:{SL + t*2048}')
        a(f'ds_read_b128 {v(R.VV+4,4)}, v13 offset:{SL + t*2048 + 1024}')
        a('s_waitcnt lgkmcnt(0)')
        for j in range(2):
            scores(t, j)
            for r in range(16): a(f'v_sub_f32 v{S_+r}, v{S_+r}, v{M0_+j}')
            for r in range(16): a(f'v_exp_f32 v{S_+r}, v{S_+r}')
            for i in range(8): a(f'v_cvt_pk_bf16_f32 v{R.P+i}, v{S_+2*i}, v{S_+2*i+1}')
            a(f'v_mfma_f32_32x32x16_bf16 {v(R.O+16*j,16)}, {v(R.VV,4)}, {v(R.P,4)}, {v(R.O+16*j,16)}')
            a(f'v_mfma_f32_32x32x16_bf16 {v(R.O+16*j,16)}, {v(R.VV+4,4)}, {v(R.P+4,4)}, {v(R.O+16*j,16)}')
    a('s_sub_u32 s60, s60, 1')
    a('s_cmp_lg_u32 s60, 0')
    a('s_cbranch_scc1 .Lat_fb2')
    a('s_nop 15')
    a('s_barrier')
    a('s_branch .Lat_combine')

def oproj_setup(a):
    BF, AF, ACC, XR, T = 16, 56, 96, XR0, 116
    a(f's_and_b32 s20, s{SJ}, 3')
    a(f's_lshr_b32 s21, s{SJ}, 2')
    a('s_and_b32 s22, s12, 3')
    a('s_lshr_b32 s23, s12, 2')
    a(f's_lshl_b32 s29, s{SG}, 4')
    a('s_lshl_b32 s30, s20, 2')
    a('s_add_u32 s29, s29, s30')
    a('s_add_u32 s29, s29, s22')
    a('v_and_b32 v14, 15, v2')
    a('v_lshrrev_b32 v15, 4, v2')
    a('s_mul_i32 s30, s29, 20480')
    a('s_mul_i32 s31, s23, 10240')
    a('s_add_u32 s30, s30, s31')
    a(f's_add_u32 s30, s30, {WS_O}')
    a('s_mul_i32 s33, s23, 10240')
    a(f's_add_u32 s33, s33, {LDS_WO}')
    a('s_cmp_eq_u32 s23, 0')
    a(f's_cselect_b32 s34, 0, {3*20480}')
    a('s_add_u32 s34, s34, s33')
    a('v_add_u32 v142, s34, v10')
    a(f's_cselect_b32 s34, {2*20480}, 0') if False else None
    a('s_cmp_eq_u32 s23, 0')
    a(f's_cselect_b32 s34, {2*20480}, 0')
    a('s_add_u32 s34, s34, s33')
    a('v_add_u32 v143, s34, v10')
    a('s_cmp_eq_u32 s23, 0')
    a(f's_mov_b32 s35, {20480}')
    a(f's_cselect_b32 s34, {3*20480}, s35')
    a('s_add_u32 s34, s34, s33')
    a('v_add_u32 v145, s34, v10')
    a('s_mul_i32 s40, s12, 3072')
    a('s_add_u32 s40, s40, 32768')
    a('v_add_u32 v146, s40, v10')
    a('s_xor_b32 s40, s12, 4')
    a('s_mul_i32 s40, s40, 3072')
    a('s_lshl_b32 s41, s23, 10')
    a('s_add_u32 s40, s40, s41')
    a('s_add_u32 s40, s40, 32768')
    a('v_add_u32 v147, s40, v10')
    a('s_mul_i32 s34, s29, 20480')
    a('s_mul_i32 s35, s21, 2560')
    a('s_add_u32 s34, s34, s35')
    a('s_mul_i32 s35, s23, 1536')
    a('s_add_u32 s34, s34, s35')
    a(f's_add_u32 s34, s34, {WS_H}')
    a('v_lshrrev_b32 v148, 1, v15')
    a('v_lshlrev_b32 v148, 8, v148')
    a('v_lshl_add_u32 v148, v14, 4, v148')
    a('v_and_b32 v144, 1, v15')
    a('v_lshl_add_u32 v148, v144, 3, v148')
    a('s_lshl_b32 s33, s29, 7')
    a('s_lshl_b32 s35, s21, 1')
    a('s_add_u32 s35, s35, s23')
    a('s_lshl_b32 s35, s35, 14')
    a('s_add_u32 s33, s33, s35')
    a(f's_add_u32 s33, s33, {WS_ST2}')
    a('v_lshlrev_b32 v144, 3, v14')
    a('s_cmp_eq_u32 s23, 0')
    a(f's_cselect_b32 s35, s34, {0x7ffff000}')
    a('s_waitcnt vmcnt(2)')
    for i in range(3):
        for h2 in range(2):
            a(f'v_lshlrev_b32 v{ACC+4*i+2*h2}, 16, v{XR+2*i+h2}')
            a(f'v_and_b32 v{ACC+4*i+2*h2+1}, 0xffff0000, v{XR+2*i+h2}')
    a('s_cmp_eq_u32 s23, 0')
    a('s_cselect_b64 vcc, -1, 0')
    for r in range(8, 12): a(f'v_cndmask_b32 v{ACC+r}, 0, v{ACC+r}, vcc')
    for r in range(12, 20): a(f'v_mov_b32 v{ACC+r}, 0')

def phase_oproj(a):
    BF, AF, ACC, XR, T = 16, 56, 96, XR0, 116
    def pre(): pass
    def mask():
        a('s_mov_b32 s44, -1'); a('s_mov_b32 s45, 0')
    sync(a, 0, 0, mask, pre, drained=True)
    stamp(a, 8)
    for i in range(10):
        if i % 4 == 0: a(f's_add_u32 s31, s30, {i*1024}')
        a(f'buffer_load_dwordx4 {v(BF+4*i,4)}, v10, s[8:11], s31 offen offset:{(i%4)*1024} sc1')
    def areads(i, buf):
        for sl in range(5):
            base, off = {0: (142, 0), 1: (142, 20480), 2: (143, 0), 3: (145, 0), 4: (145, 20480)}[sl]
            a(f'ds_read_b128 {v(AF+20*buf+4*sl,4)}, v{base} offset:{off + i*1024}')
    areads(0, 0)
    for i in range(10):
        if i < 9:
            areads(i + 1, (i + 1) & 1)
            a(f's_waitcnt vmcnt({9-i}) lgkmcnt(5)')
        else:
            a('s_waitcnt vmcnt(0) lgkmcnt(0)')
        for sl in (2, 3, 4, 0, 1):
            acc = v(ACC + 4 * sl, 4)
            a(f'v_mfma_f32_16x16x32_bf16 {acc}, {v(AF+20*(i&1)+4*sl,4)}, {v(BF+4*i,4)}, {acc}')
    stamp(a, 9)
    a('s_nop 3')
    for i, sl in enumerate((2, 3, 4)): a(f'ds_write_b128 v146, {v(ACC+4*sl,4)} offset:{1024*i}')
    a('s_waitcnt lgkmcnt(0)')
    a('s_barrier')
    for i in range(3): a(f'ds_read_b128 {v(T+4*i,4)}, v147 offset:{1024*i}')
    a('s_waitcnt lgkmcnt(0)')
    for r in range(12): a(f'v_add_f32 v{ACC+r}, v{ACC+r}, v{T+r}')
    a('s_cmp_eq_u32 s23, 0')
    a('s_cselect_b64 vcc, -1, 0')
    for r in range(8, 12): a(f'v_cndmask_b32 v{ACC+r}, 0, v{ACC+r}, vcc')
    a(f'v_add_f32 v{T}, v{ACC}, v{ACC+1}')
    a(f'v_mul_f32 v{T+1}, v{ACC}, v{ACC}')
    a(f'v_fmac_f32 v{T+1}, v{ACC+1}, v{ACC+1}')
    for r in range(2, 12):
        a(f'v_add_f32 v{T}, v{T}, v{ACC+r}')
        a(f'v_fmac_f32 v{T+1}, v{ACC+r}, v{ACC+r}')
    for i in range(6): a(f'v_cvt_pk_bf16_f32 v{T+4+i}, v{ACC+2*i}, v{ACC+2*i+1}')
    sum_q4(a, T, T+2, T+3)
    sum_q4(a, T+1, T+2, T+3)
    stores2(a, [f'buffer_store_dwordx2 {v(T+4,2)}, v148, s[8:11], s34 offen',
                f'buffer_store_dwordx2 {v(T+6,2)}, v148, s[8:11], s34 offen offset:512',
                f'buffer_store_dwordx2 {v(T+8,2)}, v148, s[8:11], s35 offen offset:1024',
                's_mov_b64 exec, 0xffff',
                f'buffer_store_dwordx2 {v(T,2)}, v144, s[8:11], s33 offen',
                's_mov_b64 exec, -1'])

F2_SLOT = {0: 81920, 1: 122880, 2: 0, 3: 40960, 4: 81920, 5: 122880, 6: 0}
def w2_setup(a):
    a(f's_lshr_b32 s21, s{SJ}, 2')
    a('s_lshr_b32 s22, s12, 2')
    a('s_mul_i32 s22, s22, 27')
    a('s_and_b32 s23, s12, 3')
    a('s_add_u32 s22, s22, s23')
    a('s_lshl_b32 s22, s22, 10')
    a('s_mul_i32 s47, s21, 276480')
    a(f's_add_u32 s47, s47, {WS_W2}')
    a('s_add_u32 s47, s47, s22')
    a('s_mul_i32 s48, s12, 5120')
def w2_dma(st, ft):
    return [f's_add_u32 m0, s48, {F2_SLOT[st] + ft*1024}', f's_add_u32 s49, s47, {st*4096 + ft*55296}',
            'buffer_load_dwordx4 v10, s[8:11], s49 offen lds']

def far_touch(a, vt, vd):
    a(f'v_lshlrev_b32 v{vt}, 7, v2')
    a(f's_mul_i32 s56, s{SJ}, 69120')
    a('s_lshl_b32 s57, s12, 13')
    a('s_add_u32 s56, s56, s57')
    a(f's_add_u32 s56, s56, {WS_W2}')
    a(f'buffer_load_dword v{vd}, v{vt}, s[8:11], s56 offen')
    a(f's_mul_i32 s56, s{SG}, {16*55296}')
    a(f's_mul_i32 s57, s{SJ}, 27648')
    a('s_add_u32 s56, s56, s57')
    a('s_lshl_b32 s57, s12, 13')
    a('s_add_u32 s56, s56, s57')
    a(f's_add_u32 s56, s56, {WS_G}')
    a(f's_mul_i32 s57, s{SJ}, 69120')
    a(f's_add_u32 s57, s57, {WS_W2 + 65536}')
    a('s_cmp_eq_u32 s12, 4')
    a('s_cselect_b32 s56, s57, s56')
    a('s_cmp_gt_u32 s12, 4')
    a('s_cselect_b32 s56, 0x7ff00000, s56')
    a(f'buffer_load_dword v{vd}, v{vt}, s[8:11], s56 offen')

def f1_tables(a, vm, ST, CP, LST):
    vm.wait(a, lambda x: x in ('st', 'cp'))
    a(f'v_add_f32 v{CP}, v{CP}, v{CP+1}')
    a(f'v_add_f32 v{CP+2}, v{CP+2}, v{CP+3}')
    a(f'v_add_f32 v{CP}, v{CP}, v{CP+2}')
    a('s_lshl_b32 s28, s23, 7')
    a('v_lshlrev_b32 v14, 2, v3')
    a('v_add_u32 v14, s28, v14')
    a(f'ds_write_b32 v14, v{CP} offset:{LST+1024}')
    l2 = lab('st')
    a('s_cmp_ge_u32 s12, 4')
    a(f's_cbranch_scc1 {l2}')
    b = ST
    for q in range(1, 8):
        a(f'v_add_f32 v{b}, v{b}, v{b+2*q}')
        a(f'v_add_f32 v{b+1}, v{b+1}, v{b+2*q+1}')
    for r in range(2):
        a(f'v_mov_b32 v{b+2}, v{b+r}'); a(f'v_mov_b32 v{b+3}, v{b+r}')
        a(f'v_permlane32_swap_b32 v{b+2}, v{b+3}')
        a(f'v_add_f32 v{b+r}, v{b+2}, v{b+3}')
    a(f'v_mul_f32 v{b}, {f2hex(1.0/640)}, v{b}')
    a(f'v_mul_f32 v{b+1}, {f2hex(1.0/640)}, v{b+1}')
    a(f'v_fma_f32 v{b+1}, -v{b}, v{b}, v{b+1}')
    a(f'v_add_f32 v{b+1}, 0x3727c5ac, v{b+1}')
    a(f'v_rsq_f32 v{b+1}, v{b+1}')
    a(f'v_mul_f32 v{b}, v{b}, v{b+1}')
    a('s_lshl_b32 s28, s12, 8')
    a('v_lshlrev_b32 v14, 3, v3')
    a('v_add_u32 v14, s28, v14')
    a(f'ds_write_b64 v14, {v(b,2)} offset:{LST}')
    a.label(l2)

def phase_ffn1(a, vm_pre):
    ACC, FB = 72, 104
    CS, B1, ST = 192, 168, 128
    CP, B1R = 144, 184
    LST = 0
    NS = 5
    srd(a, 52, 68, F * 2)
    w2_setup(a)
    a(f's_and_b32 s13, s{SJ}, 1')
    a(f's_lshl_b32 s15, s{SG}, 1')
    a('s_add_u32 s13, s13, s15')
    a(f's_lshr_b32 s14, s{SJ}, 1')
    a('s_and_b32 s23, s12, 3')
    a('s_lshr_b32 s26, s12, 2')
    a('v_lshrrev_b32 v7, 4, v3')
    a('s_movk_i32 s17, 20480')
    a('v_mul_lo_u32 v7, v7, s17')
    a('v_and_b32 v6, 15, v3')
    a('v_lshl_add_u32 v7, v6, 4, v7')
    a('v_lshl_add_u32 v7, v4, 8, v7')
    a('s_lshl_b32 s20, s13, 3')
    a('s_lshl_b32 s19, s23, 1')
    a('s_add_u32 s20, s20, s19')
    a('s_mul_i32 s20, s20, 20480')
    a('s_lshl_b32 s19, s26, 10')
    a('s_add_u32 s20, s20, s19')
    a(f's_add_u32 s20, s20, {WS_H}')
    a('s_lshl_b32 s22, s23, 10')
    a('s_lshl_b32 s19, s26, 13')
    a('s_add_u32 s22, s22, s19')
    a('s_lshl_b32 s17, s26, 11')
    a('v_add_u32 v12, s17, v10')
    a('v_add_u32 v13, 0x10000, v12')
    vm = VM()
    def pre(): pass
    def mask():
        a(f's_and_b32 s40, s{SJ}, 1')
        a('s_cmp_eq_u32 s40, 0')
        a('s_mov_b32 s44, 0xcccccccc')
        a('s_cselect_b32 s44, 0x33333333, s44')
        a('s_mov_b32 s45, 0')
    sync(a, 1, 1, mask, pre)
    stamp(a, 10)
    nst = 10
    pend = [(st, i) for st in range(nst) for i in range(2)]
    def dma_one():
        st, i = pend.pop(0)
        a(f's_add_u32 m0, s22, {(st % NS)*16384 + i*4096}')
        a(f's_add_u32 s21, s20, {st*2048 + i*512}')
        a('buffer_load_dwordx4 v7, s[8:11], s21 offen sc1 lds')
        vm.issue(('h', st))
    for _ in range(2 * 3): dma_one()
    a('s_lshl_b32 s27, s13, 7')
    a('s_lshl_b32 s28, s26, 6')
    a('s_add_u32 s27, s27, s28')
    a('s_lshl_b32 s28, s13, 7')
    a('s_lshl_b32 s29, s23, 5')
    a('s_add_u32 s28, s28, s29')
    a('s_lshl_b32 s28, s28, 3')
    a(f's_add_u32 s28, s28, {WS_ST2}')
    a('v_lshlrev_b32 v14, 3, v3')
    a('v_lshl_add_u32 v14, v4, 17, v14')
    def st_load(q):
        a(f's_add_u32 s29, s28, {q*16384}')
        a(f'buffer_load_dwordx2 {v(ST+2*q,2)}, v14, s[8:11], s29 offen sc1')
        vm.issue('st')
    w1q = list(range(26, 40))
    def w1_load():
        s_ = w1q.pop(0)
        a(f's_add_u32 s40, s{S_W1}, {s_*512}')
        a(f'buffer_load_dwordx4 {v(w1reg(s_),4)}, v{V_W1}, s[8:11], s40 offen')
        vm.issue(('w1', s_))
    def reads(st, ks, buf):
        off = (st % NS) * 16384 + ks * 4096
        base = 12
        if off + 1024 >= 65536: off -= 65536; base = 13
        a(f'ds_read_b128 {v(FB+8*buf,4)}, v{base} offset:{off}')
        a(f'ds_read_b128 {v(FB+8*buf+4,4)}, v{base} offset:{off+1024}')
    def mfmas(s_, buf):
        for j in range(2):
            c = '0' if s_ == 0 else v(ACC+16*j, 16)
            a(f'v_mfma_f32_32x32x16_bf16 {v(ACC+16*j,16)}, {v(w1reg(s_),4)}, {v(FB+8*buf+4*j,4)}, {c}')
    F1S = 'f1stamp' in gen.EXP
    w2q = [(st, ft) for st in (0, 1) for ft in range(5)]
    if F1S: stamp(a, 2)
    vm.wait(a, lambda x: x == ('h', 0))
    a('s_barrier')
    if F1S: stamp(a, 3)
    reads(0, 0, 0)
    reads(0, 1, 1)
    for st in range(nst):
        for ks in range(4):
            s_ = 4 * st + ks
            buf = s_ % 3
            n2 = s_ + 2
            if st == 8 and ks == 2:
                f1_tables(a, vm, ST, CP, LST)
            if st == 9 and ks == 0:
                a('s_lshl_b32 s28, s26, 9')
                a('v_lshlrev_b32 v14, 3, v3')
                a('v_add_u32 v14, s28, v14')
                a(f'ds_read_b64 {v(ST,2)}, v14 offset:{LST}')
                a(f'ds_read_b64 {v(ST+4,2)}, v14 offset:{LST+256}')
                a('s_lshl_b32 s28, s23, 7')
                a('v_lshlrev_b32 v14, 5, v4')
                a('v_add_u32 v14, s28, v14')
                for g in range(4):
                    a(f'ds_read_b128 {v(CS+4*g,4)}, v14 offset:{LST + 1024 + (g&1)*16 + (g>>1)*64}')
            if ks == 2 and st + 1 < nst:
                if s_ >= 26 and 'f1now1b' not in gen.EXP: vm.wait(a, lambda x: x == ('w1', s_), ' lgkmcnt(0)')
                else: a('s_waitcnt lgkmcnt(0)')
                mfmas(s_, buf)
                if F1S and st in (0, 2, 4, 6): stamp(a, {0: 4, 2: 7, 4: 9, 6: 13}[st])
                vm.wait(a, lambda x: x == ('h', st + 1))
                a('s_barrier')
                if F1S and st in (0, 2, 4, 6): stamp(a, {0: 5, 2: 8, 4: 12, 6: 14}[st])
                reads(n2 >> 2, n2 & 3, n2 % 3)
            else:
                if n2 < 40:
                    reads(n2 >> 2, n2 & 3, n2 % 3)
                    lg = 4
                else:
                    lg = 2 if s_ == 38 else 0
                if ks == 3 and st + 1 < nst: lg = 4
                if st == 9 and ks == 0: lg = 2
                if s_ >= 26 and 'f1now1b' not in gen.EXP: vm.wait(a, lambda x: x == ('w1', s_), f' lgkmcnt({lg})')
                else: a(f's_waitcnt lgkmcnt({lg})')
                mfmas(s_, buf)
            lim = st + NS - 1 + (1 if ks >= 2 else 0)
            if pend and pend[0][0] <= lim and (ks in (1, 3) or st == 0): dma_one()
            if ks in (0, 2) and w1q and st <= 6:
                if 'f1now1b' in gen.EXP:
                    w1q.pop(0)
                else: w1_load()
            if st == 5 and ks < 4:
                st_load(2 * ks); st_load(2 * ks + 1)
            if st >= 8 and not (st == 8 and ks == 0):
                for _ in range(2 if (st == 9 or ks >= 2) else 1):
                    if w2q:
                        for x in w2_dma(*w2q.pop(0)): a(x)
                        vm.issue('w2')
            if st == 6 and ks == 1:
                a('s_lshl_b32 s29, s14, 7')
                a('s_lshl_b32 s30, s23, 5')
                a('s_add_u32 s29, s29, s30')
                a('s_lshl_b32 s29, s29, 2')
                a(f's_add_u32 s29, s29, {WS_CS1}')
                a('v_lshlrev_b32 v15, 2, v3')
                for kb in range(4):
                    a(f'buffer_load_dword v{CP+kb}, v15, s[8:11], s29 offen'); vm.issue('cp')
                    if kb < 3: a('s_add_u32 s29, s29, 6912')
            if st == 8 and ks == 0:
                a('s_lshl_b32 s29, s14, 7')
                a('s_lshl_b32 s30, s23, 5')
                a('s_add_u32 s29, s29, s30')
                a('s_lshl_b32 s29, s29, 1')
                a('v_lshlrev_b32 v15, 4, v4')
                a(f'buffer_load_dwordx4 {v(B1R,4)}, v15, s[52:55], s29 offen'); vm.issue('cs')
                a(f'buffer_load_dwordx4 {v(B1R+4,4)}, v15, s[52:55], s29 offen offset:32'); vm.issue('cs')
    assert not w2q, w2q
    stamp(a, 11)
    vm.wait(a, lambda x: x == 'cs')
    for q in range(8):
        a(f'v_lshlrev_b32 v{B1+2*q}, 16, v{B1R+q}')
        a(f'v_and_b32 v{B1+2*q+1}, 0xffff0000, v{B1R+q}')
    for j in range(2):
        b = ST + 4 * j
        for r in range(16):
            a(f'v_fma_f32 v{b+2}, -v{b}, v{CS+r}, v{B1+r}')
            a(f'v_fma_f32 v{ACC+16*j+r}, v{b+1}, v{ACC+16*j+r}, v{b+2}')
            a(f'v_max_f32 v{ACC+16*j+r}, 0, v{ACC+16*j+r}')
            a(f'v_mul_f32 v{ACC+16*j+r}, v{ACC+16*j+r}, v{ACC+16*j+r}')
    PK = 104
    for r in range(16):
        a(f'v_cvt_pk_bf16_f32 v{PK+r}, v{ACC+2*r}, v{ACC+2*r+1}')
    a('v_lshrrev_b32 v13, 4, v3')
    a('s_mov_b32 s18, 55296')
    a('v_mul_lo_u32 v13, v13, s18')
    a('v_and_b32 v14, 15, v3')
    a('v_lshl_add_u32 v13, v14, 4, v13')
    a('v_lshl_add_u32 v13, v4, 8, v13')
    a('s_lshr_b32 s18, s27, 4')
    a('s_mul_i32 s18, s18, 55296')
    a('s_lshl_b32 s17, s14, 2')
    a('s_add_u32 s17, s17, s23')
    a('s_cmp_ge_u32 s17, 54')
    a('s_cselect_b32 s19, 0x40000000, 0')
    a('s_lshl_b32 s17, s17, 10')
    a('s_add_u32 s17, s17, s18')
    a(f's_add_u32 s17, s17, {WS_G}')
    a('s_add_u32 s17, s17, s19')
    a(f's_add_u32 s18, s17, {2*55296}')
    stores2(a, [f'buffer_store_dwordx4 {v(PK,4)}, v13, s[8:11], s17 offen',
                f'buffer_store_dwordx4 {v(PK+4,4)}, v13, s[8:11], s17 offen offset:512',
                f'buffer_store_dwordx4 {v(PK+8,4)}, v13, s[8:11], s18 offen',
                f'buffer_store_dwordx4 {v(PK+12,4)}, v13, s[8:11], s18 offen offset:512'])

def phase_ffn2(a, L, published):
    NST = 7
    vm = VM()
    BF, ACC, AF, T = 16, 128, 168, 16
    def pre():
        lx = lab('w7')
        a('s_cmp_lg_u32 s12, 7')
        a(f's_cbranch_scc1 {lx}')
        a(f's_sub_u32 s47, s47, {(27 + 3)*1024}')
        a(f's_sub_u32 s48, s48, {7*5120}')
        for st in (2, 3):
            for ft in range(5):
                for x in w2_dma(st, ft): a(x)
        a(f's_add_u32 s47, s47, {(27 + 3)*1024}')
        a(f's_add_u32 s48, s48, {7*5120}')
        a.label(lx)
        for st in (2, 3):
            for ft in range(5):
                for x in w2_dma(st, ft): a(x)
    def mask():
        a(f's_and_b32 s40, s{SJ}, 2')
        a('s_cmp_eq_u32 s40, 0')
        a('s_mov_b32 s44, 0x0aaaaaaa')
        a('s_cselect_b32 s44, 0x05555555, s44')
        a('s_mov_b32 s45, 0')
    a(f's_and_b32 s20, s{SJ}, 3')
    a(f's_lshr_b32 s21, s{SJ}, 2')
    a('s_and_b32 s22, s12, 3')
    a('s_lshr_b32 s23, s12, 2')
    a(f's_lshl_b32 s29, s{SG}, 4')
    a('s_lshl_b32 s30, s20, 2')
    a('s_add_u32 s29, s29, s30')
    a('s_add_u32 s29, s29, s22')
    a('s_mul_i32 s32, s29, 55296')
    a('s_mul_i32 s33, s23, 27648')
    a('s_add_u32 s32, s32, s33')
    a(f's_add_u32 s32, s32, {WS_G}')
    a('s_mul_i32 s34, s23, 20480')
    a('v_add_u32 v8, s34, v10')
    a('v_add_u32 v9, 0x10000, v8')
    a('v_add_u32 v11, 0x20000, v8')
    srd(a, 52, 70, D * 2)
    sync(a, 2 if published else None, 2, mask, pre, w0_prefetch=False)
    return vm

def ffn2_body(a, L):
    NST = 7
    vm = VM()
    for st in (0, 1, 2, 3):
        for ft in range(5): vm.issue(('w', st))
    BF, ACC, AF, T, HR, BB = 16, 124, 144, 184, 200, 208
    if 'f1stamp' not in gen.EXP: stamp(a, 12)
    def bload(i):
        a(f's_add_u32 s33, s32, {i*1024}')
        a(f'buffer_load_dwordx4 {v(BF+4*i,4)}, v10, s[8:11], s33 offen sc1')
        vm.issue(('b', i))
    NB0 = 6
    for i in range(NB0): bload(i)
    bq = list(range(NB0, 27))
    wq = [(st, ft) for st in range(4, 7) for ft in range(5)]
    def areads(ks, buf):
        st, i = ks >> 2, ks & 3
        for ft in range(5):
            off = F2_SLOT[st] + i * 5120 + ft * 1024
            base = {0: 8, 1: 9, 2: 11}[off >> 16]
            a(f'ds_read_b128 {v(AF+20*buf+4*ft,4)}, v{base} offset:{off & 65535}')
    F2S = 'f2stamp' in gen.EXP
    BX = 6
    if F2S: stamp(a, 2)
    vm.wait(a, lambda x: x == ('w', 0))
    a('s_barrier')
    if F2S: stamp(a, 3)
    areads(0, 0)
    for ks in range(27):
        if F2S and ks in (1, 4, 8, 12, 16, 20, 24): stamp(a, {1: 4, 4: 5, 8: 7, 12: 8, 16: 9, 20: 10, 24: 11}[ks])
        st, i = ks >> 2, ks & 3
        buf = ks & 1
        nxt = ks + 1
        if nxt < 27:
            if (nxt & 3) == 0:
                a('s_waitcnt lgkmcnt(0)')
                vm.wait(a, lambda x: x == ('w', nxt >> 2))
                a('s_barrier')
                areads(nxt, buf ^ 1)
                vm.wait(a, lambda x: x == ('b', ks))
            else:
                areads(nxt, buf ^ 1)
                vm.wait(a, lambda x: x == ('b', ks), ' lgkmcnt(5)')
        else:
            vm.wait(a, lambda x: x == ('b', ks), ' lgkmcnt(0)')
        for ft in range(5):
            acc = v(ACC + 4 * ft, 4)
            a(f'v_mfma_f32_16x16x32_bf16 {acc}, {v(AF+20*buf+4*ft,4)}, {v(BF+4*ks,4)}, {"0" if ks == 0 else acc}')
            if 'oldb' in gen.EXP:
                if ft in (1, 3) and bq and bq[0] <= ks + 12: bload(bq.pop(0))
            elif 'midb' in gen.EXP:
                if (ft == 1 or (ft == 3 and ks < BX)) and bq and bq[0] <= ks + 10: bload(bq.pop(0))
            elif ft == 1 and bq: bload(bq.pop(0))
            WS_ = (0, 2, 4) if ('oldb' in gen.EXP or 'midb' in gen.EXP) else ((2, 4) if (ks & 3) == 3 else (3,))
            if ft in WS_ and wq and (wq[0][0] - 4) < st + (1 if (nxt & 3) == 0 and nxt < 27 else 0):
                x_ = wq.pop(0)
                for x in w2_dma(*x_): a(x)
                vm.issue(('w', x_[0]))
        if ks == 20:
            a('v_and_b32 v5, 15, v2')
            a('v_lshrrev_b32 v6, 4, v2')
            a('s_mul_i32 s34, s29, 20480')
            a('s_mul_i32 s35, s21, 2560')
            a('s_add_u32 s34, s34, s35')
            a('s_mul_i32 s35, s23, 1536')
            a('s_add_u32 s34, s34, s35')
            a(f's_add_u32 s34, s34, {WS_H}')
            a('v_lshrrev_b32 v12, 1, v6')
            a('v_lshlrev_b32 v12, 8, v12')
            a('v_lshl_add_u32 v12, v5, 4, v12')
            a('v_and_b32 v13, 1, v6')
            a('v_lshl_add_u32 v12, v13, 3, v12')
            for i_ in range(3):
                a(f'buffer_load_dwordx2 {v(HR+2*i_,2)}, v12, s[8:11], s34 offen offset:{512*i_} sc1'); vm.issue('hr')
            a('s_mul_i32 s35, s21, 160')
            a('s_mul_i32 s36, s23, 96')
            a('s_add_u32 s35, s35, s36')
            a('v_lshlrev_b32 v13, 3, v6')
            for i_ in range(3):
                a(f'buffer_load_dwordx2 {v(BB+2*i_,2)}, v13, s[52:55], s35 offen offset:{32*i_}'); vm.issue('hr')
    assert not bq and not wq, (bq, wq)
    if 'f1stamp' not in gen.EXP: stamp(a, 13)
    XB = 81920
    a('s_mul_i32 s40, s12, 3072')
    a(f's_add_u32 s40, s40, {XB}')
    a('v_add_u32 v14, s40, v10')
    l1, l2 = lab('fx'), lab('fx')
    a('s_nop 7')
    a('s_cmp_eq_u32 s23, 0')
    a(f's_cbranch_scc0 {l1}')
    for i_, ft in enumerate((3, 4)): a(f'ds_write_b128 v14, {v(ACC+4*ft,4)} offset:{1024*i_}')
    a(f's_branch {l2}')
    a.label(l1)
    for ft in range(3): a(f'ds_write_b128 v14, {v(ACC+4*ft,4)} offset:{1024*ft}')
    a('s_waitcnt lgkmcnt(0)')
    for r in range(8): a(f'v_mov_b32 v{ACC+r}, v{ACC+12+r}')
    a.label(l2)
    a('s_xor_b32 s40, s12, 4')
    a('s_mul_i32 s40, s40, 3072')
    a(f's_add_u32 s40, s40, {XB}')
    a('v_add_u32 v14, s40, v10')
    a('s_waitcnt lgkmcnt(0)')
    a('s_barrier')
    for i_ in range(3): a(f'ds_read_b128 {v(T+4*i_,4)}, v14 offset:{1024*i_}')
    a('s_waitcnt vmcnt(0) lgkmcnt(0)')
    for r in range(12): a(f'v_add_f32 v{ACC+r}, v{ACC+r}, v{T+r}')
    for i_ in range(3):
        for h2 in range(2):
            a(f'v_lshlrev_b32 v{T}, 16, v{HR+2*i_+h2}')
            a(f'v_and_b32 v{T+1}, 0xffff0000, v{HR+2*i_+h2}')
            a(f'v_lshlrev_b32 v{T+2}, 16, v{BB+2*i_+h2}')
            a(f'v_and_b32 v{T+3}, 0xffff0000, v{BB+2*i_+h2}')
            a(f'v_add_f32 v{ACC+4*i_+2*h2}, v{ACC+4*i_+2*h2}, v{T+2}')
            a(f'v_add_f32 v{ACC+4*i_+2*h2+1}, v{ACC+4*i_+2*h2+1}, v{T+3}')
            a(f'v_add_f32 v{ACC+4*i_+2*h2}, v{ACC+4*i_+2*h2}, v{T}')
            a(f'v_add_f32 v{ACC+4*i_+2*h2+1}, v{ACC+4*i_+2*h2+1}, v{T+1}')
    for i_ in range(6): a(f'v_cvt_pk_bf16_f32 v{T+4+i_}, v{ACC+2*i_}, v{ACC+2*i_+1}')
    a('s_lshl_b32 s33, s29, 4')
    a('v_add_u32 v7, s33, v5')
    a('s_movk_i32 s34, 1280')
    a('v_mul_lo_u32 v7, v7, s34')
    a('v_lshl_add_u32 v7, v6, 3, v7')
    a('s_mul_i32 s34, s21, 160')
    a('s_mul_i32 s35, s23, 96')
    a('s_add_u32 s34, s34, s35')
    a('s_cmp_eq_u32 s23, 0')
    a('s_cselect_b32 s35, s34, 0x7ff00000')
    a(f'buffer_store_dwordx2 {v(T+4,2)}, v7, s[76:79], s34 offen')
    a(f'buffer_store_dwordx2 {v(T+6,2)}, v7, s[76:79], s34 offen offset:32')
    a(f'buffer_store_dwordx2 {v(T+8,2)}, v7, s[76:79], s35 offen offset:64')

def kf():
    a = Asm()
    merged = 'merge' in gen.EXP
    L = NAME + '_kernel' if merged else 'kf_kernel'
    kernel_begin(a, L)
    a('s_cmp_ge_u32 s2, 256')
    a(f's_cbranch_scc1 {L}_end')
    if merged:
        import gen5
        if gen.PROF: a('v_mov_b32 v254, v0')
        gen5.k1s(a, '.Ljoin')
        a.label('.Ljoin')
        a('s_waitcnt vmcnt(0) lgkmcnt(0)')
        a('s_barrier')
        if gen.PROF:
            srd(a, 8, 4, WS_END)
            stamp_flush(a, 1, 12, 8, 12)
            a('v_mov_b32 v0, v254')
            a('s_waitcnt vmcnt(0)')
        lj, lp, ld = lab('gb'), lab('gb'), lab('gb')
        a('s_cmp_lg_u32 s12, 0')
        a(f's_cbranch_scc1 {lj}')
        a(f's_load_dwordx2 s[20:21], s[0:1], {A_DBG}')
        a('s_and_b32 s40, s2, 7')
        a('s_lshl_b32 s40, s40, 5')
        a('v_mov_b32 v5, s40')
        a('v_mov_b32 v6, 1')
        a('v_and_b32 v7, 7, v0')
        a('v_lshlrev_b32 v7, 5, v7')
        a('s_waitcnt lgkmcnt(0)')
        a('s_mov_b64 exec, 1')
        a('global_atomic_add v5, v6, s[20:21] sc1')
        a('s_mov_b64 exec, 0xff')
        a('s_mov_b32 s41, 0')
        a.label(lp)
        a('global_load_dword v8, v7, s[20:21] sc1')
        a('s_add_u32 s41, s41, 1')
        a('s_waitcnt vmcnt(0)')
        a('v_cmp_ne_u32 vcc, 32, v8')
        a(f's_cbranch_vccz {ld}')
        a(f's_cmp_lt_u32 s41, {SPIN_MAX}')
        a(f's_cbranch_scc1 {lp}')
        a.label(ld)
        a('s_mov_b64 exec, -1')
        a.label(lj)
        a('s_barrier')
    stamp(a, 0, True); stamp(a, 1)
    if 'dbg' in gen.EXP:
        a('s_memrealtime s[90:91]'); a('s_memtime s[92:93]'); a(f's_load_dwordx2 s[94:95], s[0:1], {A_DBG}')
    if 'nocodepf' not in gen.EXP and not merged:
        code_touch(a, L, '.Lkf_last', '.Lpc_kf', 144, 151, 2)
    a(f's_load_dwordx2 s[4:5], s[0:1], {A_WS}')
    a(f's_load_dwordx2 s[68:69], s[0:1], {A_X}')
    a(f's_load_dwordx2 s[70:71], s[0:1], {A_OUT}')
    a(f's_and_b32 s{SG}, s2, 7')
    a(f's_lshr_b32 s{SJ}, s2, 3')
    a(f's_mov_b32 s{SH}, s{SJ}')
    a(f's_mov_b32 s{SR}, s{SG}')
    a('v_lshrrev_b32 v1, 6, v0')
    a('v_and_b32 v2, 63, v0')
    a('v_readfirstlane_b32 s12, v1')
    a('v_and_b32 v3, 31, v2')
    a('v_lshrrev_b32 v4, 5, v2')
    a(f's_getreg_b32 s{SPURE}, hwreg(HW_REG_XCC_ID, 0, 4)')
    a(f's_add_u32 s{SPURE}, s{SPURE}, 1')
    attn_setup(a, SH, SR, 12, 8, defer=True)
    a('s_waitcnt lgkmcnt(0)')
    srd(a, 8, 4, WS_END)
    attn_dma(a, 0, 8)
    attn_qloads(a, 8)
    srd(a, 72, 68, S * D * 2)
    srd(a, 76, 70, S * D * 2)
    a(f's_load_dwordx2 s[68:69], s[0:1], {A_B1}')
    a(f's_load_dwordx2 s[70:71], s[0:1], {A_B2}')
    stamp(a, 2)
    phase_attn(a, L)
    phase_oproj(a)
    stamp(a, 5)
    a(f's_cmp_ge_u32 s{SJ}, 28')
    a(f's_cbranch_scc1 {L}_idle')
    phase_ffn1(a, None)
    phase_ffn2(a, L, True)
    a(f's_branch {L}_f2')
    a.label(f'{L}_idle')
    a('s_waitcnt vmcnt(0)')
    a('s_barrier')
    li = lab('id')
    a('s_cmp_lg_u32 s12, 0')
    a(f's_cbranch_scc1 {li}')
    flag_store(a, 1, 14)
    a.label(li)
    w2_setup(a)
    for st in (0, 1):
        for ft in range(5):
            for x in w2_dma(st, ft): a(x)
    a('s_waitcnt vmcnt(0)')
    phase_ffn2(a, L, False)
    a.label(f'{L}_f2')
    ffn2_body(a, L)
    a.label(f'{L}_fin')
    if 'f1stamp' not in gen.EXP: stamp(a, 14)
    if 'dbg' in gen.EXP:
        a('s_waitcnt vmcnt(0)')
        a('s_memrealtime s[96:97]'); a('s_memtime s[86:87]'); a('s_waitcnt lgkmcnt(0)')
        ldb = lab('db')
        a('s_cmp_lg_u32 s2, 0'); a(f's_cbranch_scc1 {ldb}'); a('s_cmp_lg_u32 s12, 0'); a(f's_cbranch_scc1 {ldb}')
        a('s_sub_u32 s96, s96, s90'); a('s_sub_u32 s86, s86, s92')
        a('v_mov_b32 v0, 0'); a('v_mov_b32 v2, s96'); a('v_mov_b32 v3, s86'); a('v_mov_b32 v4, s90'); a('v_mov_b32 v5, 0')
        a('global_store_dwordx4 v0, v[2:5], s[94:95] offset:16')
        a(f's_mov_b32 s86, {WS_PROF}')
        a('buffer_load_dwordx4 v[6:9], v0, s[8:11], s86 offen')
        a('s_waitcnt vmcnt(0)')
        a('global_store_dwordx4 v0, v[6:9], s[94:95]')
        a.label(ldb)
    if gen.PROF: a('s_waitcnt vmcnt(0)')
    stamp(a, 6, True)
    stamp_flush(a, 2, 15, 8, 12)
    a.label(f'{L}_end')
    a('s_endpgm')
    attn_fallback(a)
    a.label('.Lkf_last')
    a('s_endpgm')
    if merged: return a, descriptor(L, 256, 102), '; @launch grid=(256,1,1) block=(512,1,1) lds=163840'
    return a, descriptor(L, 256, 102), f'; @launch kernel={L} grid=(256,1,1) block=(512,1,1) lds=163840'

if __name__ == '__main__':
    if 'prof' in sys.argv: gen.PROF = True
    for x in sys.argv[2:]:
        if x.startswith('x:'): gen.EXP.add(x[2:])
    out = sys.argv[1]
    import gen4, gen5
    ks_ = [kf] if 'merge' in gen.EXP else ([k0, k1, kf] if 'old' in gen.EXP else [gen4.k1p if 'k1p' in gen.EXP else gen5.k1s, kf])
    open(out, 'w').write(build(ks_))
    print('wrote', out)
```

```python
import re

def v(i, n=1):
    return f"v{i}" if n == 1 else f"v[{i}:{i+n-1}]"
def s(i, n=1):
    return f"s{i}" if n == 1 else f"s[{i}:{i+n-1}]"

TRANS = ('v_exp_f32', 'v_log_f32', 'v_rcp_f32', 'v_rsq_f32', 'v_sqrt_f32', 'v_sin_f32', 'v_cos_f32', 'v_rcp_iflag_f32')
_reg_re = re.compile(r'^(v|s|a)(\d+)$')
_rng_re = re.compile(r'^(v|s|a)\[(\d+):(\d+)\]$')

def regs_of(tok):
    tok = tok.strip()
    neg = tok.lstrip('-')
    if neg.startswith('abs(') or neg.startswith('|'):
        neg = neg.replace('abs(', '').replace(')', '').replace('|', '')
    m = _reg_re.match(neg)
    if m: return {(m.group(1), int(m.group(2)))}
    m = _rng_re.match(neg)
    if m: return {(m.group(1), i) for i in range(int(m.group(2)), int(m.group(3)) + 1)}
    if neg == 'vcc': return {('s', 'vcc')}
    if neg == 'exec': return {('s', 'exec')}
    if neg == 'm0': return {('s', 'm0')}
    return set()

class Ins:
    __slots__ = ('text', 'op', 'ops', 'kind', 'dst', 'src', 'passes', 'srcC', 'nops')
    def __init__(self, text):
        self.text = text
        t = text.split(';')[0].strip()
        parts = t.split(None, 1)
        self.op = parts[0]
        rest = parts[1] if len(parts) > 1 else ''
        ops = []; cur = ''; depth = 0
        for ch in rest:
            if ch == '[': depth += 1
            if ch == ']': depth -= 1
            if ch == ',' and depth == 0:
                ops.append(cur.strip()); cur = ''
            else:
                cur += ch
        if cur.strip(): ops.append(cur.strip())
        mods = ''
        if ops:
            l = ops[-1].split()
            if len(l) > 1:
                ops[-1] = l[0]; mods = ' '.join(l[1:])
        self.ops = ops
        self.dst = set(); self.src = set(); self.passes = 0; self.srcC = set(); self.nops = 1
        op = self.op
        if op == 's_nop':
            self.kind = 'nop'; self.nops = int(ops[0], 0) + 1
        elif op.startswith('v_mfma'):
            self.kind = 'mfma'
            self.dst = regs_of(ops[0]); self.src = regs_of(ops[1]) | regs_of(ops[2]); self.srcC = regs_of(ops[3])
            self.passes = 4 if '16x16' in op else 8
        elif op.startswith('v_'):
            self.kind = 'valu'
            base = op.replace('_e32', '').replace('_e64', '').replace('_dpp', '').replace('_sdwa', '')
            if base.startswith('v_cmp'):
                self.dst = regs_of(ops[0])
                for o in ops[1:]: self.src |= regs_of(o)
            elif base in ('v_permlane32_swap_b32', 'v_permlane16_swap_b32'):
                self.dst = regs_of(ops[0]) | regs_of(ops[1]); self.src = set(self.dst); self.kind = 'permlane'
            elif base in ('v_add_co_u32', 'v_sub_co_u32', 'v_addc_co_u32', 'v_subb_co_u32'):
                self.dst = regs_of(ops[0]) | regs_of(ops[1])
                for o in ops[2:]: self.src |= regs_of(o)
            else:
                self.dst = regs_of(ops[0])
                for o in ops[1:]: self.src |= regs_of(o)
                if base in ('v_fmac_f32', 'v_dot2c_f32_bf16', 'v_pk_fmac_f16'): self.src |= self.dst
                if base == 'v_cndmask_b32' and len(ops) == 3: self.src |= {('s', 'vcc')}
                if '_dpp' in op or 'row_' in mods or 'quad_perm' in mods: self.kind = 'dpp'; self.src |= self.dst
                if base in ('v_readfirstlane_b32', 'v_readlane_b32'): self.kind = 'readlane'
                if base in TRANS: self.kind = 'trans'
        elif op.startswith('ds_'):
            self.kind = 'ds'
            if op.startswith('ds_read') or op.startswith('ds_bpermute') or op.startswith('ds_swizzle') or op.startswith('ds_permute'):
                self.dst = regs_of(ops[0])
                for o in ops[1:]: self.src |= regs_of(o)
            else:
                for o in ops: self.src |= regs_of(o)
        elif op.startswith('buffer_') or op.startswith('global_'):
            self.kind = 'vmem'
            is_lds = 'lds' in mods.split() or 'lds' in op
            if 'load' in op and not is_lds:
                self.dst = regs_of(ops[0])
                for o in ops[1:]: self.src |= regs_of(o)
            elif 'atomic' in op and ('sc0' in mods.split()):
                self.dst = regs_of(ops[0])
                for o in ops[1:]: self.src |= regs_of(o)
            else:
                for o in ops: self.src |= regs_of(o)
                if is_lds: self.src |= {('s', 'm0')}
            if 'store' in op and ('x4' in op or 'x3' in op): self.kind = 'vmem_wstore'
        elif op.startswith('s_'):
            self.kind = 'salu'
            if op.startswith('s_cmp') or op.startswith('s_cbranch') or op in ('s_branch', 's_barrier', 's_waitcnt', 's_endpgm', 's_sleep', 's_setprio', 's_bitcmp1_b32', 's_bitcmp0_b32'):
                for o in ops: self.src |= regs_of(o)
            else:
                if ops: self.dst = regs_of(ops[0])
                for o in ops[1:]: self.src |= regs_of(o)
        else:
            self.kind = 'other'
    def is_valu(self):
        return self.kind in ('valu', 'permlane', 'dpp', 'readlane', 'trans')

def isv(r): return r[0] in ('v', 'a')
def iss(r): return r[0] == 's'

def need_states(prev, cur):
    n = 0
    pv = {r for r in prev.dst if isv(r)}
    ps = {r for r in prev.dst if iss(r)}
    if prev.kind == 'mfma':
        big = prev.passes == 8
        if cur.kind == 'mfma':
            if pv & cur.src: n = max(n, 12 if big else 8)
            if pv & cur.srcC:
                if not (cur.srcC == prev.dst and cur.passes == prev.passes): n = max(n, 10 if big else 6)
            if pv & cur.dst and not (cur.srcC == prev.dst and cur.dst == prev.dst):
                n = max(n, 12 if big else 8)
        else:
            if pv & (cur.src | cur.dst): n = max(n, 12 if big else 8)
        if cur.is_valu() and (prev.srcC & cur.dst): n = max(n, 7 if big else 3)
    if prev.is_valu():
        if cur.kind == 'mfma' and pv & (cur.src | cur.srcC): n = max(n, 2)
        if cur.kind == 'readlane' and pv & cur.src: n = max(n, 1)
        if cur.kind == 'permlane' and pv & cur.src: n = max(n, 2)
        if cur.kind == 'dpp' and pv & cur.src: n = max(n, 2)
        if prev.kind == 'trans' and cur.is_valu() and cur.kind != 'trans' and pv & cur.src: n = max(n, 1)
        if prev.kind == 'trans' and cur.kind == 'mfma' and pv & (cur.src | cur.srcC): n = max(n, 2)
        if ps:
            if cur.is_valu() and ps & cur.src: n = max(n, 2)
            if cur.kind in ('vmem', 'vmem_wstore') and ps & cur.src: n = max(n, 5)
            if cur.kind == 'readlane' and ps & cur.src: n = max(n, 4)
            if cur.kind == 'salu' and ps & cur.src: n = max(n, 4)
            if ('s', 'exec') in ps and cur.kind == 'mfma': n = max(n, 4)
    if prev.kind == 'salu' and ('s', 'm0') in prev.dst and cur.kind in ('vmem',) and ('s', 'm0') in cur.src:
        n = max(n, 1)
    if prev.kind == 'vmem_wstore':
        data = {r for r in prev.src if isv(r)}
        if cur.is_valu() and data & cur.dst: n = max(n, 2)
        elif cur.kind in ('ds', 'vmem', 'mfma') and data & cur.dst: n = max(n, 1)
    return n

class Asm:
    def __init__(self):
        self.lines = []
    def __call__(self, text):
        for l in text.split('\n'):
            if l.strip(): self.lines.append(l.strip())
    def label(self, name): self.lines.append(name + ':')
    def comment(self, t): self.lines.append('; ' + t)
    def raw(self, t): self.lines.append('\x00' + t)

def is_ins(l):
    return not (l.endswith(':') or l.startswith(';') or l.startswith('.') or l.startswith('\x00'))

WIN = 24
def fix_hazards(lines):
    out = []
    hist = []
    for l in lines:
        if not is_ins(l):
            out.append(l); continue
        ins = Ins(l)
        need = 0; dist = 0
        for p in reversed(hist[-WIN:]):
            req = need_states(p, ins)
            if req > dist: need = max(need, req - dist)
            dist += p.nops
        while need > 0:
            k = min(need, 16)
            nop = Ins(f's_nop {k-1}')
            out.append(nop.text); hist.append(nop); need -= k
        out.append(l); hist.append(ins)
        if ins.op in ('s_branch', 's_endpgm'): hist = []
    labels = {}
    for i, l in enumerate(out):
        if l.endswith(':') and not l.startswith(';'): labels[l[:-1]] = i
    problems = []
    for i, l in enumerate(out):
        if is_ins(l) and (l.startswith('s_cbranch') or l.startswith('s_branch')):
            tgt = l.split()[1]
            if tgt not in labels: continue
            before = [Ins(x) for x in out[max(0, i - WIN):i + 1] if is_ins(x)]
            after = [Ins(x) for x in out[labels[tgt]:labels[tgt] + WIN + 8] if is_ins(x)][:WIN]
            seq = list(before)
            for ins in after:
                dist = 0
                for p in reversed(seq[-WIN:]):
                    req = need_states(p, ins)
                    if req > dist: problems.append((l, p.text, ins.text, req, dist))
                    dist += p.nops
                seq.append(ins)
                if ins.op in ('s_branch', 's_endpgm'): break
    return out, problems

def render(lines):
    o = []
    for l in lines:
        if l.startswith('\x00'): o.append(l[1:])
        elif l.endswith(':') and not l.startswith(';'): o.append(l)
        elif l.startswith('.'): o.append(l)
        else: o.append('    ' + l)
    return '\n'.join(o) + '\n'

def check_async(lines, name=''):
    vm = []; lg = []
    pending = {}
    dead = False
    probs = []
    def merge(states):
        bv = max((s_[0] for s_ in states), key=len); bl = max((s_[1] for s_ in states), key=len)
        for s_ in states:
            for e in s_[0]:
                if e not in bv and e[1]: bv = [e] + bv
            for e in s_[1]:
                if e not in bl and e[1]: bl = [e] + bl
        return list(bv), list(bl)
    for idx, l in enumerate(lines):
        if l.endswith(':') and not l.startswith(';') and not l.startswith('\x00'):
            lab_ = l[:-1]
            st = list(pending.get(lab_, []))
            if not dead: st.append((vm, lg))
            if st: vm, lg = merge(st)
            else: vm, lg = [], []
            dead = False
            continue
        if not is_ins(l): continue
        ins = Ins(l)
        if ins.op == 's_waitcnt':
            m = re.search(r'vmcnt\((\d+)\)', l)
            if m:
                n = int(m.group(1)); vm = vm[len(vm) - n:] if 0 < n < len(vm) else ([] if n == 0 else vm)
            m = re.search(r'lgkmcnt\((\d+)\)', l)
            if m:
                n = int(m.group(1)); lg = lg[len(lg) - n:] if 0 < n < len(lg) else ([] if n == 0 else lg)
            continue
        if ins.op.startswith('s_cbranch') or ins.op == 's_branch':
            pending.setdefault(ins.ops[0], []).append((list(vm), list(lg)))
            if ins.op == 's_branch': dead = True
            continue
        if ins.op == 's_endpgm':
            dead = True; continue
        touched = {r for r in (ins.dst | ins.src | ins.srcC) if isv(r)}
        for lst, kind in ((vm, 'vm'), (lg, 'lgkm')):
            for (i0, d, t) in lst:
                if d & touched:
                    if ins.kind in ('vmem',) and (d & ins.dst) and not (d & ins.src) and kind == 'vm': continue
                    probs.append((name, idx, l, t))
        if ins.kind in ('vmem', 'vmem_wstore'):
            vm = vm + [(idx, frozenset(r for r in ins.dst if isv(r)), l)]
        elif ins.kind == 'ds':
            lg = lg + [(idx, frozenset(r for r in ins.dst if isv(r)), l)]
        elif ins.op.startswith('s_load'):
            lg = lg + [(idx, frozenset(), l)]
    return probs
```

```python
import sys
sys.path.insert(0, 'dev')
import gen, gen2
from gen import *
from gen2 import lab, stores2, attn_units, wo_dma, WS_XT, SG, SJ, SPURE, LDS_WO, SPIN_MAX
from asmlib import *

class VM:
    def __init__(self): self.ops = []
    def issue(self, tag): self.ops.append(tag)
    def count_after(self, pred):
        n = 0
        for x in reversed(self.ops):
            if pred(x): return n
            n += 1
        raise Exception('no op matches')
    def wait(self, a, pred, extra=''):
        a(f's_waitcnt vmcnt({min(self.count_after(pred), 63)}){extra}')

XR0 = 136
W1A, W1B = 152, 16
def w1reg(s): return W1A + 4 * s if s < 26 else W1B + 4 * (s - 26)
SH, SR = 36, 37
S_OOB = 38
S_DONE = 39
FB_LDS = 159744
S_W1 = 98
V_W1 = 1

def flag_store(a, p, vt):
    g_, j_ = (SR, SH) if p == 0 else (SG, SJ)
    a(f's_lshl_b32 s40, s{g_}, 7')
    a(f's_lshl_b32 s41, s{j_}, 2')
    a('s_add_u32 s40, s40, s41')
    a(f's_add_u32 s40, s40, {WS_FLAG + p*1024}')
    a(f'v_mov_b32 v{vt}, 0')
    a(f'v_mov_b32 v{vt+1}, 1')
    a('s_mov_b64 exec, 1')
    stores2(a, [f'buffer_store_dword v{vt+1}, v{vt}, s[8:11], s40 offen'])
    a('s_mov_b64 exec, -1')

def sync(a, p_pub, p_wait, smask_setup, prefetch, vt=14, drained=False, w0_prefetch=True):
    if p_pub is not None and not drained:
        a('s_waitcnt vmcnt(0)')
        a('s_barrier')
    l0, l1, lp, ld, l3 = lab('sy'), lab('sy'), lab('sy'), lab('sy'), lab('sy')
    a('s_cmp_lg_u32 s12, 0')
    a(f's_cbranch_scc1 {l0}')
    if p_pub is not None: flag_store(a, p_pub, vt)
    smask_setup()
    a(f's_lshl_b32 s40, s{SG}, 7')
    a(f's_add_u32 s40, s40, {WS_FLAG + p_wait*1024}')
    a(f'v_lshlrev_b32 v{vt}, 2, v2')
    a('s_mov_b64 exec, s[44:45]')
    a('s_mov_b32 s41, 0')
    a.label(lp)
    a(f'buffer_load_dword v{vt+1}, v{vt}, s[8:11], s40 offen sc1')
    a('s_add_u32 s41, s41, 1')
    a('s_waitcnt vmcnt(0)')
    a(f'v_cmp_eq_u32 vcc, 0, v{vt+1}')
    a(f's_cbranch_vccz {ld}')
    a(f's_cmp_lt_u32 s41, {SPIN_MAX}')
    a(f's_cbranch_scc1 {lp}')
    a.label(ld)
    a('s_mov_b64 exec, -1')
    a(f's_cmp_eq_u32 s{SPURE}, 1')
    a(f's_cbranch_scc1 {l3}')
    a('buffer_inv sc1')
    a('s_waitcnt vmcnt(0)')
    a.label(l3)
    a('s_barrier')
    if w0_prefetch: prefetch()
    a(f's_branch {l1}')
    a.label(l0)
    prefetch()
    a('s_barrier')
    a.label(l1)

def late_init(a, vm, L):
    merged = 'merge' in gen.EXP
    if not merged:
        a(f's_lshl_b32 s40, s{SG}, 7')
        a(f's_lshl_b32 s41, s{SJ}, 2')
        a('s_add_u32 s40, s40, s41')
        a(f's_add_u32 s40, s40, {WS_XT}')
        a('s_cmp_eq_u32 s12, 0')
        a('s_cselect_b32 s40, s40, 0x7ff00000')
        a('v_mov_b32 v14, 0')
        a(f'v_mov_b32 v15, s{SPURE}')
        a('s_mov_b64 exec, 1')
        a('buffer_store_dword v15, v14, s[8:11], s40 offen sc1')
        a('s_mov_b64 exec, -1')
        vm.issue('xts')

def phase_attn(a, L):
    R = AR
    attn_ones(a)
    a(f's_lshr_b32 s62, s{SJ}, 2')
    a('s_mul_i32 s62, s62, 102400')
    a(f's_add_u32 s62, s62, {WS_WO}')
    a('s_lshl_b32 s61, s12, 10')
    a('s_add_u32 s62, s62, s61')
    a('s_cmp_lt_u32 s12, 4')
    a(f's_mov_b32 s63, {11*8192}')
    a(f's_cselect_b32 s63, {12*8192}, s63')
    a('s_add_u32 s63, s63, s62')
    a(f's_add_u32 s61, s61, {LDS_WO}')
    if 'rolled' in gen.EXP:
        for r in range(32): a(f'v_mov_b32 v{R.O+r}, 0')
        for r in range(16): a(f'v_mov_b32 v{R.P+r}, 0')
        for r in range(16): a(f'v_mov_b32 v{R.VV+r}, 0')
    vm = VM()
    a(f's_mov_b32 s{S_DONE}, 0')
    a(f'v_mov_b32 v14, {FB_LDS}')
    a('v_mov_b32 v15, 0')
    a('ds_write_b32 v14, v15')
    def w1_addr(a_):
        lane_swap23(a_, 14, 3, 15)
        a_('v_lshrrev_b32 v15, 4, v14')
        a_('s_movk_i32 s40, 20480')
        a_('v_mul_lo_u32 v15, v15, s40')
        a_('v_and_b32 v14, 15, v14')
        a_('v_lshl_add_u32 v15, v14, 4, v15')
        a_(f'v_lshl_add_u32 v{V_W1}, v4, 8, v15')
        a_(f's_lshr_b32 s40, s{SJ}, 1')
        a_('s_lshl_b32 s40, s40, 2')
        a_('s_and_b32 s41, s12, 3')
        a_('s_add_u32 s40, s40, s41')
        a_('s_mul_i32 s41, s40, 40960')
        a_(f's_add_u32 s41, s41, {WS_W1}')
        a_('s_cmp_lt_u32 s40, 54')
        a_(f's_cselect_b32 s{S_W1}, s41, 0x7ff00000')
    def touch_addr(a_):
        a_(f's_mov_b32 s{S_OOB}, 0x7ff00000')
        lt1, lt2 = lab('tc'), lab('tc')
        a_('v_lshlrev_b32 v148, 7, v2')
        a_('s_cmp_ge_u32 s12, 4')
        a_(f's_cbranch_scc1 {lt1}')
        a_(f's_mul_i32 s50, s{SG}, {16*20480}')
        a_(f's_mul_i32 s40, s{SJ}, 10240')
        a_('s_add_u32 s50, s50, s40')
        a_('s_and_b32 s40, s12, 1')
        a_('s_mul_i32 s40, s40, 5120')
        a_('s_add_u32 s50, s50, s40')
        a_('s_lshr_b32 s40, s12, 1')
        a_(f's_mul_i32 s40, s40, {WS_H - WS_O}')
        a_('s_add_u32 s50, s50, s40')
        a_(f's_add_u32 s50, s50, {WS_O}')
        a_('v_add_u32 v148, s50, v148')
        a_(f's_lshr_b32 s40, s{SJ}, 1')
        a_('s_lshl_b32 s40, s40, 14')
        a_(f's_lshl_b32 s41, s{SG}, 11')
        a_('s_add_u32 s40, s40, s41')
        a_(f's_and_b32 s41, s{SJ}, 1')
        a_('s_lshl_b32 s41, s41, 10')
        a_('s_add_u32 s40, s40, s41')
        a_(f's_add_u32 s40, s40, {WS_ST2 - 40*128}')
        a_('s_cmp_eq_u32 s12, 2')
        a_('s_cselect_b32 s40, s40, 0x7ff00000')
        a_('v_lshlrev_b32 v149, 7, v2')
        a_('v_add_u32 v149, s40, v149')
        a_('v_mov_b32 v14, 0x7ff00000')
        a_('v_cmp_gt_u32 vcc, 48, v2')
        a_('v_cndmask_b32 v149, v14, v149, vcc')
        a_('v_cmp_gt_u32 vcc, 40, v2')
        a_('v_cndmask_b32 v148, v149, v148, vcc')
        a_(f's_branch {lt2}')
        a_.label(lt1)
        a_('s_sub_u32 s40, s12, 4')
        a_('s_lshl_b32 s40, s40, 5')
        a_(f's_add_u32 s40, s40, s{SJ}')
        a_('s_mul_i32 s50, s40, 20480')
        a_(f's_add_u32 s50, s50, {WS_W1 + 13312}')
        a_('s_cmp_lt_u32 s40, 108')
        a_('s_cselect_b32 s50, s50, 0x7ff00000')
        a_('v_add_u32 v148, s50, v148')
        a_('v_mov_b32 v14, 0x7ff00000')
        a_('v_cmp_gt_u32 vcc, 56, v2')
        a_('v_cndmask_b32 v148, v14, v148, vcc')
        a_.label(lt2)
        a_('v_lshlrev_b32 v147, 7, v2')
        a_('s_lshl_b32 s40, s12, 13')
        a_(f's_mul_i32 s51, s{SG}, {16*55296}')
        a_(f's_mul_i32 s41, s{SJ}, 27648')
        a_('s_add_u32 s51, s51, s41')
        a_('s_add_u32 s51, s51, s40')
        a_(f's_add_u32 s51, s51, {WS_G}')
        a_('s_cmp_ge_u32 s12, 4')
        a_('s_cselect_b32 s51, 0x7ff00000, s51')
        a_(f's_and_b32 s40, s{SJ}, 3')
        a_('s_lshl_b32 s40, s40, 2')
        a_(f's_lshl_b32 s41, s{SG}, 4')
        a_('s_add_u32 s40, s40, s41')
        a_('s_and_b32 s41, s12, 3')
        a_('s_add_u32 s40, s40, s41')
        a_('s_lshl_b32 s40, s40, 4')
        a_('v_and_b32 v0, 15, v2')
        a_('v_add_u32 v0, s40, v0')
        a_('s_movk_i32 s41, 1280')
        a_('v_mul_lo_u32 v0, v0, s41')
        a_('v_lshrrev_b32 v14, 4, v2')
        a_('v_lshl_add_u32 v0, v14, 3, v0')
        a_(f's_lshr_b32 s57, s{SJ}, 2')
        a_('s_mul_i32 s57, s57, 160')
        a_('s_lshr_b32 s40, s12, 2')
        a_('s_mul_i32 s40, s40, 96')
        a_('s_add_u32 s57, s57, s40')
    INLOOP = 'rolled' not in gen.EXP
    if not INLOOP:
        w1_addr(a); touch_addr(a)
    def rec(fn):
        t_ = Asm(); fn(t_); return list(t_.lines)
    if 'earlyinit' in gen.EXP: late_init(a, VM(), L)
    a('s_waitcnt vmcnt(0)')
    for st in (1, 2):
        attn_dma(a, st, 8); vm.issue(('kv', st)); vm.issue(('kv', st))
    for x in wo_dma(): a(x)
    vm.issue('wo')
    if 'earlyinit' not in gen.EXP: late_init(a, vm, L)
    if 'notlb' not in gen.EXP:
        a('v_lshlrev_b32 v149, 16, v2')
        a('s_lshl_b32 s40, s12, 22')
        a('buffer_load_dword v149, v149, s[8:11], s40 offen')
        a('v_lshlrev_b32 v148, 16, v2')
        a('buffer_load_dword v148, v148, s[76:79], 0 offen')
    a('v_cmp_gt_u32 vcc, 32, v2')
    for r in range(4): a(f'v_cndmask_b32 v{R.QC+r}, 0, v{R.QC+r}, vcc')
    a('s_waitcnt lgkmcnt(0)')
    a('s_barrier')
    a(f'ds_read_b128 {v(R.KA,4)}, v11 offset:0')
    a(f'ds_read_b64 {v(R.KC,2)}, v12 offset:0')
    a('s_waitcnt lgkmcnt(0)')
    a(f'v_mfma_f32_32x32x16_bf16 {v(R.S,16)}, {v(R.KA,4)}, {v(R.QA,4)}, 0')
    a(f'v_mfma_f32_32x32x8bf16_1k {v(R.S,16)}, {v(R.KC,2)}, {v(R.QC,2)}, {v(R.S,16)}')
    stamp(a, 7)
    wnext = [0]
    def w1load():
        s_ = wnext[0]; wnext[0] += 1
        return [f's_add_u32 s40, s{S_W1}, {s_*512}', f'buffer_load_dwordx4 {v(w1reg(s_),4)}, v{V_W1}, s[8:11], s40 offen']
    plan = {}
    waits = {}
    nW = {2: 3, 3: 3, 4: 3, 5: 3, 6: 4, 7: 4, 8: 3, 9: 3}
    if 'now1a' in gen.EXP: nW = {}
    ROLL = 'rolled' in gen.EXP
    if ROLL: nW = {8: 4, 9: 4, 10: 4, 11: 4, 12: 4, 13: 3, 14: 3}
    def masked(sreg, cond_lo, cond_hi, vreg):
        return [f's_sub_u32 s40, s12, {cond_lo}', f's_cmp_lt_u32 s40, {cond_hi - cond_lo}', f's_cselect_b32 s40, {sreg}, s{S_OOB}',
                f'buffer_load_dword v149, v{vreg}, s[8:11], s40 offen']
    for g in range(16):
        ex = {}
        k = nW.get(g, 0)
        slots = sorted([(0, 20), (1, 8), (1, 20), (2, 20)][:k])
        if g <= 11:
            ex.setdefault(0, {})[8] = wo_dma(); vm.issue('wo')
        if INLOOP and g == 0: ex.setdefault(1, {})[9] = rec(w1_addr)
        if INLOOP and g == 1:
            tl_ = rec(touch_addr)
            ex.setdefault(1, {})[9] = tl_
        if g == 12:
            ex.setdefault(0, {})[8] = [f's_lshl_b32 s40, s{SG}, 7', f's_add_u32 s40, s40, {WS_XT}', 'v_lshlrev_b32 v150, 2, v3',
                                       'buffer_load_dword v150, v150, s[8:11], s40 offen sc1']
            vm.issue('xt')
        tl = None
        if g == 10: tl = masked('0', 4, 6, 148)
        if g == 11: tl = masked('0', 6, 8, 148)
        if g == 12: tl = masked('0', 0, 4, 148)
        if g == 13: tl = ['buffer_load_dword v149, v147, s[8:11], s51 offen']
        if tl and 'notouch' not in gen.EXP:
            ex.setdefault(1, {})[14] = tl; vm.issue('touch')
        post = []
        pre_ops = []
        for (u, pos) in slots:
            if u < 2: ex.setdefault(u, {})[pos] = w1load(); vm.issue('w1')
            else: post.append((u, pos))
        if g < 15: waits[g] = vm.count_after(lambda x: x == ('kv', g + 1))
        if ROLL and g < 8: waits[g] = 4
        for (u, pos) in post:
            ex.setdefault(u, {})[pos] = w1load(); vm.issue('w1')
        if g <= 12:
            vm.issue(('kv', g + 3)); vm.issue(('kv', g + 3))
        if g == 13:
            ex.setdefault(3, {})[20] = [f'buffer_load_dwordx2 {v(XR0+2*i,2)}, v0, s[72:75], s57 offen offset:{32*i}' for i in range(3)]
            for i in range(3): vm.issue('xr')
        plan[g] = ex
    assert wnext[0] == 26 or 'now1a' in gen.EXP, wnext
    def run(stages_g):
        loc = {g % 4: g for g in stages_g}
        def prio(st, u):
            g = loc[st]
            if g == 15: return {0: 2, 1: 1, 2: 1, 3: 0}[u]
            if g == 14 and u >= 2: return 3
            return {2: 3, 3: 2, 0: 1, 1: 0}[u]
        return attn_units(a, 8, [(g % 4, g == 15) for g in stages_g], lambda st: loc[st] <= 12,
                          lambda st, u: plan[loc[st]].get(u, {}), lambda st: waits[loc[st]], prio,
                          start=(stages_g[0] == 0 and 'rolled' not in gen.EXP))
    if ROLL:
        a('s_mov_b32 s60, 2')
        a.label('.Lat_loop')
        run([4, 5, 6, 7])
        a('s_sub_u32 s60, s60, 1')
        a('s_cmp_lg_u32 s60, 0')
        a('s_cbranch_scc1 .Lat_loop')
        run([8, 9, 10, 11])
    else:
        for b_ in range(3): run([4*b_ + i for i in range(4)])
    m1, m2, m3, m4, _ = run([12, 13, 14, 15])
    a(m3(1, 1, 1)); a(m4(1, 1, 1))
    a('s_setprio 0')
    stamp(a, 3)
    lp, ld = lab('xt'), lab('xt')
    a('s_mov_b32 s41, 0')
    a('v_cmp_eq_u32 vcc, 0, v150')
    a(f's_cbranch_vccz {ld}')
    a.label(lp)
    a(f's_lshl_b32 s40, s{SG}, 7')
    a(f's_add_u32 s40, s40, {WS_XT}')
    a('v_lshlrev_b32 v14, 2, v3')
    a('buffer_load_dword v150, v14, s[8:11], s40 offen sc1')
    a('s_add_u32 s41, s41, 1')
    a('s_waitcnt vmcnt(0)')
    a('v_cmp_eq_u32 vcc, 0, v150')
    a(f's_cbranch_vccz {ld}')
    a(f's_cmp_lt_u32 s41, {SPIN_MAX}')
    a(f's_cbranch_scc1 {lp}')
    a.label(ld)
    a(f'v_cmp_ne_u32 vcc, s{SPURE}, v150')
    a('s_cmp_eq_u64 vcc, 0')
    a(f's_cselect_b32 s{SPURE}, 1, 0')
    if 'slow' in gen.EXP: a(f's_mov_b32 s{SPURE}, 0')
    TT = R.S
    a.label('.Lat_combine')
    a('s_cmp_eq_u32 s46, 0')
    a('s_cbranch_scc1 .Lat_noswap')
    a('s_nop 7')
    for r in range(12): a(f'v_swap_b32 v{R.O+r}, v{R.O+16+r}')
    a.label('.Lat_noswap')
    a('s_nop 7')
    a(f's_mul_i32 s40, s12, 3072')
    a('v_add_u32 v14, s40, v10')
    for i in range(3): a(f'ds_write_b128 v14, {v(R.O+16+4*i,4)} offset:{1024*i}')
    a('s_xor_b32 s40, s12, 4')
    a('s_mul_i32 s40, s40, 3072')
    a('v_add_u32 v14, s40, v10')
    a('s_waitcnt lgkmcnt(0)')
    a('s_barrier')
    for i in range(3): a(f'ds_read_b128 {v(TT+4*i,4)}, v14 offset:{1024*i}')
    a('s_waitcnt lgkmcnt(0)')
    for r in range(12): a(f'v_add_f32 v{R.O+r}, v{R.O+r}, v{TT+r}')
    a(f'v_mov_b32 v{TT}, v{R.O+8}')
    a(f'v_mov_b32 v{TT+1}, v{R.O+8}')
    a(f'v_permlane32_swap_b32 v{TT}, v{TT+1}')
    a(f'v_mov_b32 v{TT+2}, 0')
    for r in range(12): a(f'v_fmac_f32 v{TT+2}, 0, v{R.O+r}')
    a('s_mov_b32 s40, 0x1f800000')
    a(f'v_cmp_nle_f32 vcc, s40, v{TT+1}')
    a('s_mov_b32 s40, 0x5f800000')
    a(f'v_cmp_nge_f32 s[44:45], s40, v{TT+1}')
    a('s_or_b64 s[44:45], s[44:45], vcc')
    a(f'v_cmp_u_f32 vcc, v{TT+2}, v{TT+2}')
    a('s_or_b64 s[44:45], s[44:45], vcc')
    if 'forcefb' in gen.EXP: a('s_mov_b64 s[44:45], -1')
    lok = lab('ok')
    a('s_cmp_eq_u64 s[44:45], 0')
    a(f's_cbranch_scc1 {lok}')
    a(f'v_mov_b32 v{TT+2}, {FB_LDS}')
    a(f'v_mov_b32 v{TT+3}, 1')
    a(f'ds_write_b32 v{TT+2}, v{TT+3}')
    a.label(lok)
    a(f'v_rcp_f32 v{TT+1}, v{TT+1}')
    for r in range(12): a(f'v_mul_f32 v{R.O+r}, v{R.O+r}, v{TT+1}')
    for i in range(6): a(f'v_cvt_pk_bf16_f32 v{TT+4+i}, v{R.O+2*i}, v{R.O+2*i+1}')
    a('s_mul_i32 s61, s46, 40960')
    a('s_add_u32 s61, s61, s47')
    a(f's_add_u32 s61, s61, {WS_O}')
    a('s_lshl_b32 s62, s42, 8')
    a('s_add_u32 s62, s62, s61')
    a('s_lshl_b32 s63, s43, 8')
    a('s_add_u32 s63, s63, s61')
    a(f's_and_b32 s61, s{SH}, 1')
    a('s_lshl_b32 s61, s61, 3')
    a('s_add_u32 s63, s63, s61')
    stores2(a, [f'buffer_store_dwordx4 {v(TT+4,4)}, v7, s[8:11], s62 offen',
                's_mov_b64 exec, 0xffffffff',
                f'buffer_store_dwordx2 {v(TT+8,2)}, v5, s[8:11], s63 offen',
                's_mov_b64 exec, -1'])
    stamp(a, 4)
    oproj_setup(a)
    a('s_waitcnt vmcnt(0) lgkmcnt(0)')
    a('s_barrier')
    a(f'v_mov_b32 v14, {FB_LDS}')
    a('ds_read_b32 v15, v14')
    a('s_waitcnt lgkmcnt(0)')
    a('v_readfirstlane_b32 s40, v15')
    a(f's_sub_u32 s40, s40, s{S_DONE}')
    a('s_cmp_eq_u32 s40, 1')
    a('s_cbranch_scc1 .Lat_fallback')
    a.label('.Lat_done')

def attn_fallback(a):
    R = AR
    SL = 2 * AT_SLOT
    S_, M0_, M1_ = R.S, R.S + 16, R.S + 17
    a.label('.Lat_fallback')
    a(f's_mov_b32 s{S_DONE}, 1')
    def load_stage():
        a('s_barrier')
        for x in attn_dma_parts(2, 8)[0] + attn_dma_parts(2, 8)[1]: a(x)
        a('s_waitcnt vmcnt(0)')
        a('s_barrier')
    def rewind():
        a(f's_sub_u32 s52, s52, {16*5120}')
        a(f's_sub_u32 s53, s53, {16*163840}')
    def scores(t, j):
        a(f'v_mfma_f32_32x32x16_bf16 {v(S_,16)}, {v(R.KA,4)}, {v(R.QA+4*j,4)}, 0')
        a(f'v_mfma_f32_32x32x8bf16_1k {v(S_,16)}, {v(R.KC,2)}, {v(R.QC+2*j,2)}, {v(S_,16)}')
    def kread(t):
        a(f'ds_read_b128 {v(R.KA,4)}, v11 offset:{SL + t*1024}')
        a(f'ds_read_b64 {v(R.KC,2)}, v12 offset:{SL + t*512}')
    rewind()
    a(f'v_mov_b32 v{M0_}, 0xff7fffff'); a(f'v_mov_b32 v{M1_}, 0xff7fffff')
    a('s_mov_b32 s60, 16')
    a.label('.Lat_fb1')
    load_stage()
    for t in range(2):
        kread(t)
        a('s_waitcnt lgkmcnt(0)')
        for j in range(2):
            scores(t, j)
            m = M0_ + j
            for r in range(0, 16, 2): a(f'v_max3_f32 v{m}, v{S_+r}, v{S_+r+1}, v{m}')
    a('s_sub_u32 s60, s60, 1')
    a('s_cmp_lg_u32 s60, 0')
    a('s_cbranch_scc1 .Lat_fb1')
    for j in range(2):
        m = M0_ + j
        a(f'v_mov_b32 v{S_}, v{m}'); a(f'v_mov_b32 v{S_+1}, v{m}')
        a(f'v_permlane32_swap_b32 v{S_}, v{S_+1}')
        a(f'v_max_f32 v{m}, v{S_}, v{S_+1}')
    a('s_barrier')
    a('s_lshl_b32 s40, s12, 9')
    a('v_lshlrev_b32 v14, 3, v2')
    a('v_add_u32 v14, s40, v14')
    a(f'ds_write_b64 v14, {v(M0_,2)}')
    a('s_xor_b32 s40, s12, 4')
    a('s_lshl_b32 s40, s40, 9')
    a('v_lshlrev_b32 v14, 3, v2')
    a('v_add_u32 v14, s40, v14')
    a('s_waitcnt lgkmcnt(0)')
    a('s_barrier')
    a(f'ds_read_b64 {v(S_,2)}, v14')
    a('s_waitcnt lgkmcnt(0)')
    a(f'v_max_f32 v{M0_}, v{M0_}, v{S_}')
    a(f'v_max_f32 v{M1_}, v{M1_}, v{S_+1}')
    rewind()
    for r in range(32): a(f'v_mov_b32 v{R.O+r}, 0')
    a('s_mov_b32 s60, 16')
    a.label('.Lat_fb2')
    load_stage()
    for t in range(2):
        kread(t)
        a(f'ds_read_b128 {v(R.VV,4)}, v13 offset:{SL + t*2048}')
        a(f'ds_read_b128 {v(R.VV+4,4)}, v13 offset:{SL + t*2048 + 1024}')
        a('s_waitcnt lgkmcnt(0)')
        for j in range(2):
            scores(t, j)
            for r in range(16): a(f'v_sub_f32 v{S_+r}, v{S_+r}, v{M0_+j}')
            for r in range(16): a(f'v_exp_f32 v{S_+r}, v{S_+r}')
            for i in range(8): a(f'v_cvt_pk_bf16_f32 v{R.P+i}, v{S_+2*i}, v{S_+2*i+1}')
            a(f'v_mfma_f32_32x32x16_bf16 {v(R.O+16*j,16)}, {v(R.VV,4)}, {v(R.P,4)}, {v(R.O+16*j,16)}')
            a(f'v_mfma_f32_32x32x16_bf16 {v(R.O+16*j,16)}, {v(R.VV+4,4)}, {v(R.P+4,4)}, {v(R.O+16*j,16)}')
    a('s_sub_u32 s60, s60, 1')
    a('s_cmp_lg_u32 s60, 0')
    a('s_cbranch_scc1 .Lat_fb2')
    a('s_nop 15')
    a('s_barrier')
    a('s_branch .Lat_combine')

def oproj_setup(a):
    BF, AF, ACC, XR, T = 16, 56, 96, XR0, 116
    a(f's_and_b32 s20, s{SJ}, 3')
    a(f's_lshr_b32 s21, s{SJ}, 2')
    a('s_and_b32 s22, s12, 3')
    a('s_lshr_b32 s23, s12, 2')
    a(f's_lshl_b32 s29, s{SG}, 4')
    a('s_lshl_b32 s30, s20, 2')
    a('s_add_u32 s29, s29, s30')
    a('s_add_u32 s29, s29, s22')
    a('v_and_b32 v14, 15, v2')
    a('v_lshrrev_b32 v15, 4, v2')
    a('s_mul_i32 s30, s29, 20480')
    a('s_mul_i32 s31, s23, 10240')
    a('s_add_u32 s30, s30, s31')
    a(f's_add_u32 s30, s30, {WS_O}')
    a('s_mul_i32 s33, s23, 10240')
    a(f's_add_u32 s33, s33, {LDS_WO}')
    a('s_cmp_eq_u32 s23, 0')
    a(f's_cselect_b32 s34, 0, {3*20480}')
    a('s_add_u32 s34, s34, s33')
    a('v_add_u32 v142, s34, v10')
    a(f's_cselect_b32 s34, {2*20480}, 0') if False else None
    a('s_cmp_eq_u32 s23, 0')
    a(f's_cselect_b32 s34, {2*20480}, 0')
    a('s_add_u32 s34, s34, s33')
    a('v_add_u32 v143, s34, v10')
    a('s_cmp_eq_u32 s23, 0')
    a(f's_mov_b32 s35, {20480}')
    a(f's_cselect_b32 s34, {3*20480}, s35')
    a('s_add_u32 s34, s34, s33')
    a('v_add_u32 v145, s34, v10')
    a('s_mul_i32 s40, s12, 3072')
    a('s_add_u32 s40, s40, 32768')
    a('v_add_u32 v146, s40, v10')
    a('s_xor_b32 s40, s12, 4')
    a('s_mul_i32 s40, s40, 3072')
    a('s_lshl_b32 s41, s23, 10')
    a('s_add_u32 s40, s40, s41')
    a('s_add_u32 s40, s40, 32768')
    a('v_add_u32 v147, s40, v10')
    a('s_mul_i32 s34, s29, 20480')
    a('s_mul_i32 s35, s21, 2560')
    a('s_add_u32 s34, s34, s35')
    a('s_mul_i32 s35, s23, 1536')
    a('s_add_u32 s34, s34, s35')
    a(f's_add_u32 s34, s34, {WS_H}')
    a('v_lshrrev_b32 v148, 1, v15')
    a('v_lshlrev_b32 v148, 8, v148')
    a('v_lshl_add_u32 v148, v14, 4, v148')
    a('v_and_b32 v144, 1, v15')
    a('v_lshl_add_u32 v148, v144, 3, v148')
    a('s_lshl_b32 s33, s29, 7')
    a('s_lshl_b32 s35, s21, 1')
    a('s_add_u32 s35, s35, s23')
    a('s_lshl_b32 s35, s35, 14')
    a('s_add_u32 s33, s33, s35')
    a(f's_add_u32 s33, s33, {WS_ST2}')
    a('v_lshlrev_b32 v144, 3, v14')
    a('s_cmp_eq_u32 s23, 0')
    a(f's_cselect_b32 s35, s34, {0x7ffff000}')
    a('s_waitcnt vmcnt(2)')
    for i in range(3):
        for h2 in range(2):
            a(f'v_lshlrev_b32 v{ACC+4*i+2*h2}, 16, v{XR+2*i+h2}')
            a(f'v_and_b32 v{ACC+4*i+2*h2+1}, 0xffff0000, v{XR+2*i+h2}')
    a('s_cmp_eq_u32 s23, 0')
    a('s_cselect_b64 vcc, -1, 0')
    for r in range(8, 12): a(f'v_cndmask_b32 v{ACC+r}, 0, v{ACC+r}, vcc')
    for r in range(12, 20): a(f'v_mov_b32 v{ACC+r}, 0')

def phase_oproj(a):
    BF, AF, ACC, XR, T = 16, 56, 96, XR0, 116
    def pre(): pass
    def mask():
        a('s_mov_b32 s44, -1'); a('s_mov_b32 s45, 0')
    sync(a, 0, 0, mask, pre, drained=True)
    stamp(a, 8)
    for i in range(10):
        if i % 4 == 0: a(f's_add_u32 s31, s30, {i*1024}')
        a(f'buffer_load_dwordx4 {v(BF+4*i,4)}, v10, s[8:11], s31 offen offset:{(i%4)*1024} sc1')
    def areads(i, buf):
        for sl in range(5):
            base, off = {0: (142, 0), 1: (142, 20480), 2: (143, 0), 3: (145, 0), 4: (145, 20480)}[sl]
            a(f'ds_read_b128 {v(AF+20*buf+4*sl,4)}, v{base} offset:{off + i*1024}')
    areads(0, 0)
    for i in range(10):
        if i < 9:
            areads(i + 1, (i + 1) & 1)
            a(f's_waitcnt vmcnt({9-i}) lgkmcnt(5)')
        else:
            a('s_waitcnt vmcnt(0) lgkmcnt(0)')
        for sl in (2, 3, 4, 0, 1):
            acc = v(ACC + 4 * sl, 4)
            a(f'v_mfma_f32_16x16x32_bf16 {acc}, {v(AF+20*(i&1)+4*sl,4)}, {v(BF+4*i,4)}, {acc}')
    stamp(a, 9)
    a('s_nop 3')
    for i, sl in enumerate((2, 3, 4)): a(f'ds_write_b128 v146, {v(ACC+4*sl,4)} offset:{1024*i}')
    a('s_waitcnt lgkmcnt(0)')
    a('s_barrier')
    for i in range(3): a(f'ds_read_b128 {v(T+4*i,4)}, v147 offset:{1024*i}')
    a('s_waitcnt lgkmcnt(0)')
    for r in range(12): a(f'v_add_f32 v{ACC+r}, v{ACC+r}, v{T+r}')
    a('s_cmp_eq_u32 s23, 0')
    a('s_cselect_b64 vcc, -1, 0')
    for r in range(8, 12): a(f'v_cndmask_b32 v{ACC+r}, 0, v{ACC+r}, vcc')
    a(f'v_add_f32 v{T}, v{ACC}, v{ACC+1}')
    a(f'v_mul_f32 v{T+1}, v{ACC}, v{ACC}')
    a(f'v_fmac_f32 v{T+1}, v{ACC+1}, v{ACC+1}')
    for r in range(2, 12):
        a(f'v_add_f32 v{T}, v{T}, v{ACC+r}')
        a(f'v_fmac_f32 v{T+1}, v{ACC+r}, v{ACC+r}')
    for i in range(6): a(f'v_cvt_pk_bf16_f32 v{T+4+i}, v{ACC+2*i}, v{ACC+2*i+1}')
    sum_q4(a, T, T+2, T+3)
    sum_q4(a, T+1, T+2, T+3)
    stores2(a, [f'buffer_store_dwordx2 {v(T+4,2)}, v148, s[8:11], s34 offen',
                f'buffer_store_dwordx2 {v(T+6,2)}, v148, s[8:11], s34 offen offset:512',
                f'buffer_store_dwordx2 {v(T+8,2)}, v148, s[8:11], s35 offen offset:1024',
                's_mov_b64 exec, 0xffff',
                f'buffer_store_dwordx2 {v(T,2)}, v144, s[8:11], s33 offen',
                's_mov_b64 exec, -1'])

F2_SLOT = {0: 81920, 1: 122880, 2: 0, 3: 40960, 4: 81920, 5: 122880, 6: 0}
def w2_setup(a):
    a(f's_lshr_b32 s21, s{SJ}, 2')
    a('s_lshr_b32 s22, s12, 2')
    a('s_mul_i32 s22, s22, 27')
    a('s_and_b32 s23, s12, 3')
    a('s_add_u32 s22, s22, s23')
    a('s_lshl_b32 s22, s22, 10')
    a('s_mul_i32 s47, s21, 276480')
    a(f's_add_u32 s47, s47, {WS_W2}')
    a('s_add_u32 s47, s47, s22')
    a('s_mul_i32 s48, s12, 5120')
def w2_dma(st, ft):
    return [f's_add_u32 m0, s48, {F2_SLOT[st] + ft*1024}', f's_add_u32 s49, s47, {st*4096 + ft*55296}',
            'buffer_load_dwordx4 v10, s[8:11], s49 offen lds']

def far_touch(a, vt, vd):
    a(f'v_lshlrev_b32 v{vt}, 7, v2')
    a(f's_mul_i32 s56, s{SJ}, 69120')
    a('s_lshl_b32 s57, s12, 13')
    a('s_add_u32 s56, s56, s57')
    a(f's_add_u32 s56, s56, {WS_W2}')
    a(f'buffer_load_dword v{vd}, v{vt}, s[8:11], s56 offen')
    a(f's_mul_i32 s56, s{SG}, {16*55296}')
    a(f's_mul_i32 s57, s{SJ}, 27648')
    a('s_add_u32 s56, s56, s57')
    a('s_lshl_b32 s57, s12, 13')
    a('s_add_u32 s56, s56, s57')
    a(f's_add_u32 s56, s56, {WS_G}')
    a(f's_mul_i32 s57, s{SJ}, 69120')
    a(f's_add_u32 s57, s57, {WS_W2 + 65536}')
    a('s_cmp_eq_u32 s12, 4')
    a('s_cselect_b32 s56, s57, s56')
    a('s_cmp_gt_u32 s12, 4')
    a('s_cselect_b32 s56, 0x7ff00000, s56')
    a(f'buffer_load_dword v{vd}, v{vt}, s[8:11], s56 offen')

def f1_tables(a, vm, ST, CP, LST):
    vm.wait(a, lambda x: x in ('st', 'cp'))
    a(f'v_add_f32 v{CP}, v{CP}, v{CP+1}')
    a(f'v_add_f32 v{CP+2}, v{CP+2}, v{CP+3}')
    a(f'v_add_f32 v{CP}, v{CP}, v{CP+2}')
    a('s_lshl_b32 s28, s23, 7')
    a('v_lshlrev_b32 v14, 2, v3')
    a('v_add_u32 v14, s28, v14')
    a(f'ds_write_b32 v14, v{CP} offset:{LST+1024}')
    l2 = lab('st')
    a('s_cmp_ge_u32 s12, 4')
    a(f's_cbranch_scc1 {l2}')
    b = ST
    for q in range(1, 8):
        a(f'v_add_f32 v{b}, v{b}, v{b+2*q}')
        a(f'v_add_f32 v{b+1}, v{b+1}, v{b+2*q+1}')
    for r in range(2):
        a(f'v_mov_b32 v{b+2}, v{b+r}'); a(f'v_mov_b32 v{b+3}, v{b+r}')
        a(f'v_permlane32_swap_b32 v{b+2}, v{b+3}')
        a(f'v_add_f32 v{b+r}, v{b+2}, v{b+3}')
    a(f'v_mul_f32 v{b}, {f2hex(1.0/640)}, v{b}')
    a(f'v_mul_f32 v{b+1}, {f2hex(1.0/640)}, v{b+1}')
    a(f'v_fma_f32 v{b+1}, -v{b}, v{b}, v{b+1}')
    a(f'v_add_f32 v{b+1}, 0x3727c5ac, v{b+1}')
    a(f'v_rsq_f32 v{b+1}, v{b+1}')
    a(f'v_mul_f32 v{b}, v{b}, v{b+1}')
    a('s_lshl_b32 s28, s12, 8')
    a('v_lshlrev_b32 v14, 3, v3')
    a('v_add_u32 v14, s28, v14')
    a(f'ds_write_b64 v14, {v(b,2)} offset:{LST}')
    a.label(l2)

def phase_ffn1(a, vm_pre):
    ACC, FB = 72, 104
    CS, B1, ST = 192, 168, 128
    CP, B1R = 144, 184
    LST = 0
    NS = 5
    srd(a, 52, 68, F * 2)
    w2_setup(a)
    a(f's_and_b32 s13, s{SJ}, 1')
    a(f's_lshl_b32 s15, s{SG}, 1')
    a('s_add_u32 s13, s13, s15')
    a(f's_lshr_b32 s14, s{SJ}, 1')
    a('s_and_b32 s23, s12, 3')
    a('s_lshr_b32 s26, s12, 2')
    a('v_lshrrev_b32 v7, 4, v3')
    a('s_movk_i32 s17, 20480')
    a('v_mul_lo_u32 v7, v7, s17')
    a('v_and_b32 v6, 15, v3')
    a('v_lshl_add_u32 v7, v6, 4, v7')
    a('v_lshl_add_u32 v7, v4, 8, v7')
    a('s_lshl_b32 s20, s13, 3')
    a('s_lshl_b32 s19, s23, 1')
    a('s_add_u32 s20, s20, s19')
    a('s_mul_i32 s20, s20, 20480')
    a('s_lshl_b32 s19, s26, 10')
    a('s_add_u32 s20, s20, s19')
    a(f's_add_u32 s20, s20, {WS_H}')
    a('s_lshl_b32 s22, s23, 10')
    a('s_lshl_b32 s19, s26, 13')
    a('s_add_u32 s22, s22, s19')
    a('s_lshl_b32 s17, s26, 11')
    a('v_add_u32 v12, s17, v10')
    a('v_add_u32 v13, 0x10000, v12')
    vm = VM()
    def pre(): pass
    def mask():
        a(f's_and_b32 s40, s{SJ}, 1')
        a('s_cmp_eq_u32 s40, 0')
        a('s_mov_b32 s44, 0xcccccccc')
        a('s_cselect_b32 s44, 0x33333333, s44')
        a('s_mov_b32 s45, 0')
    sync(a, 1, 1, mask, pre)
    stamp(a, 10)
    nst = 10
    pend = [(st, i) for st in range(nst) for i in range(2)]
    def dma_one():
        st, i = pend.pop(0)
        a(f's_add_u32 m0, s22, {(st % NS)*16384 + i*4096}')
        a(f's_add_u32 s21, s20, {st*2048 + i*512}')
        a('buffer_load_dwordx4 v7, s[8:11], s21 offen sc1 lds')
        vm.issue(('h', st))
    for _ in range(2 * 3): dma_one()
    a('s_lshl_b32 s27, s13, 7')
    a('s_lshl_b32 s28, s26, 6')
    a('s_add_u32 s27, s27, s28')
    a('s_lshl_b32 s28, s13, 7')
    a('s_lshl_b32 s29, s23, 5')
    a('s_add_u32 s28, s28, s29')
    a('s_lshl_b32 s28, s28, 3')
    a(f's_add_u32 s28, s28, {WS_ST2}')
    a('v_lshlrev_b32 v14, 3, v3')
    a('v_lshl_add_u32 v14, v4, 17, v14')
    def st_load(q):
        a(f's_add_u32 s29, s28, {q*16384}')
        a(f'buffer_load_dwordx2 {v(ST+2*q,2)}, v14, s[8:11], s29 offen sc1')
        vm.issue('st')
    w1q = list(range(26, 40))
    def w1_load():
        s_ = w1q.pop(0)
        a(f's_add_u32 s40, s{S_W1}, {s_*512}')
        a(f'buffer_load_dwordx4 {v(w1reg(s_),4)}, v{V_W1}, s[8:11], s40 offen')
        vm.issue(('w1', s_))
    def reads(st, ks, buf):
        off = (st % NS) * 16384 + ks * 4096
        base = 12
        if off + 1024 >= 65536: off -= 65536; base = 13
        a(f'ds_read_b128 {v(FB+8*buf,4)}, v{base} offset:{off}')
        a(f'ds_read_b128 {v(FB+8*buf+4,4)}, v{base} offset:{off+1024}')
    def mfmas(s_, buf):
        for j in range(2):
            c = '0' if s_ == 0 else v(ACC+16*j, 16)
            a(f'v_mfma_f32_32x32x16_bf16 {v(ACC+16*j,16)}, {v(w1reg(s_),4)}, {v(FB+8*buf+4*j,4)}, {c}')
    F1S = 'f1stamp' in gen.EXP
    w2q = [(st, ft) for st in (0, 1) for ft in range(5)]
    if F1S: stamp(a, 2)
    vm.wait(a, lambda x: x == ('h', 0))
    a('s_barrier')
    if F1S: stamp(a, 3)
    reads(0, 0, 0)
    reads(0, 1, 1)
    for st in range(nst):
        for ks in range(4):
            s_ = 4 * st + ks
            buf = s_ % 3
            n2 = s_ + 2
            if st == 8 and ks == 2:
                f1_tables(a, vm, ST, CP, LST)
            if st == 9 and ks == 0:
                a('s_lshl_b32 s28, s26, 9')
                a('v_lshlrev_b32 v14, 3, v3')
                a('v_add_u32 v14, s28, v14')
                a(f'ds_read_b64 {v(ST,2)}, v14 offset:{LST}')
                a(f'ds_read_b64 {v(ST+4,2)}, v14 offset:{LST+256}')
                a('s_lshl_b32 s28, s23, 7')
                a('v_lshlrev_b32 v14, 5, v4')
                a('v_add_u32 v14, s28, v14')
                for g in range(4):
                    a(f'ds_read_b128 {v(CS+4*g,4)}, v14 offset:{LST + 1024 + (g&1)*16 + (g>>1)*64}')
            if ks == 2 and st + 1 < nst:
                if s_ >= 26 and 'f1now1b' not in gen.EXP: vm.wait(a, lambda x: x == ('w1', s_), ' lgkmcnt(0)')
                else: a('s_waitcnt lgkmcnt(0)')
                mfmas(s_, buf)
                if F1S and st in (0, 2, 4, 6): stamp(a, {0: 4, 2: 7, 4: 9, 6: 13}[st])
                vm.wait(a, lambda x: x == ('h', st + 1))
                a('s_barrier')
                if F1S and st in (0, 2, 4, 6): stamp(a, {0: 5, 2: 8, 4: 12, 6: 14}[st])
                reads(n2 >> 2, n2 & 3, n2 % 3)
            else:
                if n2 < 40:
                    reads(n2 >> 2, n2 & 3, n2 % 3)
                    lg = 4
                else:
                    lg = 2 if s_ == 38 else 0
                if ks == 3 and st + 1 < nst: lg = 4
                if st == 9 and ks == 0: lg = 2
                if s_ >= 26 and 'f1now1b' not in gen.EXP: vm.wait(a, lambda x: x == ('w1', s_), f' lgkmcnt({lg})')
                else: a(f's_waitcnt lgkmcnt({lg})')
                mfmas(s_, buf)
            lim = st + NS - 1 + (1 if ks >= 2 else 0)
            if pend and pend[0][0] <= lim and (ks in (1, 3) or st == 0): dma_one()
            if ks in (0, 2) and w1q and st <= 6:
                if 'f1now1b' in gen.EXP:
                    w1q.pop(0)
                else: w1_load()
            if st == 5 and ks < 4:
                st_load(2 * ks); st_load(2 * ks + 1)
            if st >= 8 and not (st == 8 and ks == 0):
                for _ in range(2 if (st == 9 or ks >= 2) else 1):
                    if w2q:
                        for x in w2_dma(*w2q.pop(0)): a(x)
                        vm.issue('w2')
            if st == 6 and ks == 1:
                a('s_lshl_b32 s29, s14, 7')
                a('s_lshl_b32 s30, s23, 5')
                a('s_add_u32 s29, s29, s30')
                a('s_lshl_b32 s29, s29, 2')
                a(f's_add_u32 s29, s29, {WS_CS1}')
                a('v_lshlrev_b32 v15, 2, v3')
                for kb in range(4):
                    a(f'buffer_load_dword v{CP+kb}, v15, s[8:11], s29 offen'); vm.issue('cp')
                    if kb < 3: a('s_add_u32 s29, s29, 6912')
            if st == 8 and ks == 0:
                a('s_lshl_b32 s29, s14, 7')
                a('s_lshl_b32 s30, s23, 5')
                a('s_add_u32 s29, s29, s30')
                a('s_lshl_b32 s29, s29, 1')
                a('v_lshlrev_b32 v15, 4, v4')
                a(f'buffer_load_dwordx4 {v(B1R,4)}, v15, s[52:55], s29 offen'); vm.issue('cs')
                a(f'buffer_load_dwordx4 {v(B1R+4,4)}, v15, s[52:55], s29 offen offset:32'); vm.issue('cs')
    assert not w2q, w2q
    stamp(a, 11)
    vm.wait(a, lambda x: x == 'cs')
    for q in range(8):
        a(f'v_lshlrev_b32 v{B1+2*q}, 16, v{B1R+q}')
        a(f'v_and_b32 v{B1+2*q+1}, 0xffff0000, v{B1R+q}')
    for j in range(2):
        b = ST + 4 * j
        for r in range(16):
            a(f'v_fma_f32 v{b+2}, -v{b}, v{CS+r}, v{B1+r}')
            a(f'v_fma_f32 v{ACC+16*j+r}, v{b+1}, v{ACC+16*j+r}, v{b+2}')
            a(f'v_max_f32 v{ACC+16*j+r}, 0, v{ACC+16*j+r}')
            a(f'v_mul_f32 v{ACC+16*j+r}, v{ACC+16*j+r}, v{ACC+16*j+r}')
    PK = 104
    for r in range(16):
        a(f'v_cvt_pk_bf16_f32 v{PK+r}, v{ACC+2*r}, v{ACC+2*r+1}')
    a('v_lshrrev_b32 v13, 4, v3')
    a('s_mov_b32 s18, 55296')
    a('v_mul_lo_u32 v13, v13, s18')
    a('v_and_b32 v14, 15, v3')
    a('v_lshl_add_u32 v13, v14, 4, v13')
    a('v_lshl_add_u32 v13, v4, 8, v13')
    a('s_lshr_b32 s18, s27, 4')
    a('s_mul_i32 s18, s18, 55296')
    a('s_lshl_b32 s17, s14, 2')
    a('s_add_u32 s17, s17, s23')
    a('s_cmp_ge_u32 s17, 54')
    a('s_cselect_b32 s19, 0x40000000, 0')
    a('s_lshl_b32 s17, s17, 10')
    a('s_add_u32 s17, s17, s18')
    a(f's_add_u32 s17, s17, {WS_G}')
    a('s_add_u32 s17, s17, s19')
    a(f's_add_u32 s18, s17, {2*55296}')
    stores2(a, [f'buffer_store_dwordx4 {v(PK,4)}, v13, s[8:11], s17 offen',
                f'buffer_store_dwordx4 {v(PK+4,4)}, v13, s[8:11], s17 offen offset:512',
                f'buffer_store_dwordx4 {v(PK+8,4)}, v13, s[8:11], s18 offen',
                f'buffer_store_dwordx4 {v(PK+12,4)}, v13, s[8:11], s18 offen offset:512'])

def phase_ffn2(a, L, published):
    NST = 7
    vm = VM()
    BF, ACC, AF, T = 16, 128, 168, 16
    def pre():
        lx = lab('w7')
        a('s_cmp_lg_u32 s12, 7')
        a(f's_cbranch_scc1 {lx}')
        a(f's_sub_u32 s47, s47, {(27 + 3)*1024}')
        a(f's_sub_u32 s48, s48, {7*5120}')
        for st in (2, 3):
            for ft in range(5):
                for x in w2_dma(st, ft): a(x)
        a(f's_add_u32 s47, s47, {(27 + 3)*1024}')
        a(f's_add_u32 s48, s48, {7*5120}')
        a.label(lx)
        for st in (2, 3):
            for ft in range(5):
                for x in w2_dma(st, ft): a(x)
    def mask():
        a(f's_and_b32 s40, s{SJ}, 2')
        a('s_cmp_eq_u32 s40, 0')
        a('s_mov_b32 s44, 0x0aaaaaaa')
        a('s_cselect_b32 s44, 0x05555555, s44')
        a('s_mov_b32 s45, 0')
    a(f's_and_b32 s20, s{SJ}, 3')
    a(f's_lshr_b32 s21, s{SJ}, 2')
    a('s_and_b32 s22, s12, 3')
    a('s_lshr_b32 s23, s12, 2')
    a(f's_lshl_b32 s29, s{SG}, 4')
    a('s_lshl_b32 s30, s20, 2')
    a('s_add_u32 s29, s29, s30')
    a('s_add_u32 s29, s29, s22')
    a('s_mul_i32 s32, s29, 55296')
    a('s_mul_i32 s33, s23, 27648')
    a('s_add_u32 s32, s32, s33')
    a(f's_add_u32 s32, s32, {WS_G}')
    a('s_mul_i32 s34, s23, 20480')
    a('v_add_u32 v8, s34, v10')
    a('v_add_u32 v9, 0x10000, v8')
    a('v_add_u32 v11, 0x20000, v8')
    srd(a, 52, 70, D * 2)
    sync(a, 2 if published else None, 2, mask, pre, w0_prefetch=False)
    return vm

def ffn2_body(a, L):
    NST = 7
    vm = VM()
    for st in (0, 1, 2, 3):
        for ft in range(5): vm.issue(('w', st))
    BF, ACC, AF, T, HR, BB = 16, 124, 144, 184, 200, 208
    if 'f1stamp' not in gen.EXP: stamp(a, 12)
    def bload(i):
        a(f's_add_u32 s33, s32, {i*1024}')
        a(f'buffer_load_dwordx4 {v(BF+4*i,4)}, v10, s[8:11], s33 offen sc1')
        vm.issue(('b', i))
    NB0 = 6
    for i in range(NB0): bload(i)
    bq = list(range(NB0, 27))
    wq = [(st, ft) for st in range(4, 7) for ft in range(5)]
    def areads(ks, buf):
        st, i = ks >> 2, ks & 3
        for ft in range(5):
            off = F2_SLOT[st] + i * 5120 + ft * 1024
            base = {0: 8, 1: 9, 2: 11}[off >> 16]
            a(f'ds_read_b128 {v(AF+20*buf+4*ft,4)}, v{base} offset:{off & 65535}')
    F2S = 'f2stamp' in gen.EXP
    BX = 6
    if F2S: stamp(a, 2)
    vm.wait(a, lambda x: x == ('w', 0))
    a('s_barrier')
    if F2S: stamp(a, 3)
    areads(0, 0)
    for ks in range(27):
        if F2S and ks in (1, 4, 8, 12, 16, 20, 24): stamp(a, {1: 4, 4: 5, 8: 7, 12: 8, 16: 9, 20: 10, 24: 11}[ks])
        st, i = ks >> 2, ks & 3
        buf = ks & 1
        nxt = ks + 1
        if nxt < 27:
            if (nxt & 3) == 0:
                a('s_waitcnt lgkmcnt(0)')
                vm.wait(a, lambda x: x == ('w', nxt >> 2))
                a('s_barrier')
                areads(nxt, buf ^ 1)
                vm.wait(a, lambda x: x == ('b', ks))
            else:
                areads(nxt, buf ^ 1)
                vm.wait(a, lambda x: x == ('b', ks), ' lgkmcnt(5)')
        else:
            vm.wait(a, lambda x: x == ('b', ks), ' lgkmcnt(0)')
        for ft in range(5):
            acc = v(ACC + 4 * ft, 4)
            a(f'v_mfma_f32_16x16x32_bf16 {acc}, {v(AF+20*buf+4*ft,4)}, {v(BF+4*ks,4)}, {"0" if ks == 0 else acc}')
            if 'oldb' in gen.EXP:
                if ft in (1, 3) and bq and bq[0] <= ks + 12: bload(bq.pop(0))
            elif 'midb' in gen.EXP:
                if (ft == 1 or (ft == 3 and ks < BX)) and bq and bq[0] <= ks + 10: bload(bq.pop(0))
            elif ft == 1 and bq: bload(bq.pop(0))
            WS_ = (0, 2, 4) if ('oldb' in gen.EXP or 'midb' in gen.EXP) else ((2, 4) if (ks & 3) == 3 else (3,))
            if ft in WS_ and wq and (wq[0][0] - 4) < st + (1 if (nxt & 3) == 0 and nxt < 27 else 0):
                x_ = wq.pop(0)
                for x in w2_dma(*x_): a(x)
                vm.issue(('w', x_[0]))
        if ks == 20:
            a('v_and_b32 v5, 15, v2')
            a('v_lshrrev_b32 v6, 4, v2')
            a('s_mul_i32 s34, s29, 20480')
            a('s_mul_i32 s35, s21, 2560')
            a('s_add_u32 s34, s34, s35')
            a('s_mul_i32 s35, s23, 1536')
            a('s_add_u32 s34, s34, s35')
            a(f's_add_u32 s34, s34, {WS_H}')
            a('v_lshrrev_b32 v12, 1, v6')
            a('v_lshlrev_b32 v12, 8, v12')
            a('v_lshl_add_u32 v12, v5, 4, v12')
            a('v_and_b32 v13, 1, v6')
            a('v_lshl_add_u32 v12, v13, 3, v12')
            for i_ in range(3):
                a(f'buffer_load_dwordx2 {v(HR+2*i_,2)}, v12, s[8:11], s34 offen offset:{512*i_} sc1'); vm.issue('hr')
            a('s_mul_i32 s35, s21, 160')
            a('s_mul_i32 s36, s23, 96')
            a('s_add_u32 s35, s35, s36')
            a('v_lshlrev_b32 v13, 3, v6')
            for i_ in range(3):
                a(f'buffer_load_dwordx2 {v(BB+2*i_,2)}, v13, s[52:55], s35 offen offset:{32*i_}'); vm.issue('hr')
    assert not bq and not wq, (bq, wq)
    if 'f1stamp' not in gen.EXP: stamp(a, 13)
    XB = 81920
    a('s_mul_i32 s40, s12, 3072')
    a(f's_add_u32 s40, s40, {XB}')
    a('v_add_u32 v14, s40, v10')
    l1, l2 = lab('fx'), lab('fx')
    a('s_nop 7')
    a('s_cmp_eq_u32 s23, 0')
    a(f's_cbranch_scc0 {l1}')
    for i_, ft in enumerate((3, 4)): a(f'ds_write_b128 v14, {v(ACC+4*ft,4)} offset:{1024*i_}')
    a(f's_branch {l2}')
    a.label(l1)
    for ft in range(3): a(f'ds_write_b128 v14, {v(ACC+4*ft,4)} offset:{1024*ft}')
    a('s_waitcnt lgkmcnt(0)')
    for r in range(8): a(f'v_mov_b32 v{ACC+r}, v{ACC+12+r}')
    a.label(l2)
    a('s_xor_b32 s40, s12, 4')
    a('s_mul_i32 s40, s40, 3072')
    a(f's_add_u32 s40, s40, {XB}')
    a('v_add_u32 v14, s40, v10')
    a('s_waitcnt lgkmcnt(0)')
    a('s_barrier')
    for i_ in range(3): a(f'ds_read_b128 {v(T+4*i_,4)}, v14 offset:{1024*i_}')
    a('s_waitcnt vmcnt(0) lgkmcnt(0)')
    for r in range(12): a(f'v_add_f32 v{ACC+r}, v{ACC+r}, v{T+r}')
    for i_ in range(3):
        for h2 in range(2):
            a(f'v_lshlrev_b32 v{T}, 16, v{HR+2*i_+h2}')
            a(f'v_and_b32 v{T+1}, 0xffff0000, v{HR+2*i_+h2}')
            a(f'v_lshlrev_b32 v{T+2}, 16, v{BB+2*i_+h2}')
            a(f'v_and_b32 v{T+3}, 0xffff0000, v{BB+2*i_+h2}')
            a(f'v_add_f32 v{ACC+4*i_+2*h2}, v{ACC+4*i_+2*h2}, v{T+2}')
            a(f'v_add_f32 v{ACC+4*i_+2*h2+1}, v{ACC+4*i_+2*h2+1}, v{T+3}')
            a(f'v_add_f32 v{ACC+4*i_+2*h2}, v{ACC+4*i_+2*h2}, v{T}')
            a(f'v_add_f32 v{ACC+4*i_+2*h2+1}, v{ACC+4*i_+2*h2+1}, v{T+1}')
    for i_ in range(6): a(f'v_cvt_pk_bf16_f32 v{T+4+i_}, v{ACC+2*i_}, v{ACC+2*i_+1}')
    a('s_lshl_b32 s33, s29, 4')
    a('v_add_u32 v7, s33, v5')
    a('s_movk_i32 s34, 1280')
    a('v_mul_lo_u32 v7, v7, s34')
    a('v_lshl_add_u32 v7, v6, 3, v7')
    a('s_mul_i32 s34, s21, 160')
    a('s_mul_i32 s35, s23, 96')
    a('s_add_u32 s34, s34, s35')
    a('s_cmp_eq_u32 s23, 0')
    a('s_cselect_b32 s35, s34, 0x7ff00000')
    a(f'buffer_store_dwordx2 {v(T+4,2)}, v7, s[76:79], s34 offen')
    a(f'buffer_store_dwordx2 {v(T+6,2)}, v7, s[76:79], s34 offen offset:32')
    a(f'buffer_store_dwordx2 {v(T+8,2)}, v7, s[76:79], s35 offen offset:64')

def kf():
    a = Asm()
    merged = 'merge' in gen.EXP
    L = NAME + '_kernel' if merged else 'kf_kernel'
    kernel_begin(a, L)
    a('s_cmp_ge_u32 s2, 256')
    a(f's_cbranch_scc1 {L}_end')
    if merged:
        import gen5
        if gen.PROF: a('v_mov_b32 v254, v0')
        gen5.k1s(a, '.Ljoin')
        a.label('.Ljoin')
        a('s_waitcnt vmcnt(0) lgkmcnt(0)')
        a('s_barrier')
        if gen.PROF:
            srd(a, 8, 4, WS_END)
            stamp_flush(a, 1, 12, 8, 12)
            a('v_mov_b32 v0, v254')
            a('s_waitcnt vmcnt(0)')
        lj, lp, ld = lab('gb'), lab('gb'), lab('gb')
        a('s_cmp_lg_u32 s12, 0')
        a(f's_cbranch_scc1 {lj}')
        a(f's_load_dwordx2 s[20:21], s[0:1], {A_DBG}')
        a('s_and_b32 s40, s2, 7')
        a('s_lshl_b32 s40, s40, 5')
        a('v_mov_b32 v5, s40')
        a('v_mov_b32 v6, 1')
        a('v_and_b32 v7, 7, v0')
        a('v_lshlrev_b32 v7, 5, v7')
        a('s_waitcnt lgkmcnt(0)')
        a('s_mov_b64 exec, 1')
        a('global_atomic_add v5, v6, s[20:21] sc1')
        a('s_mov_b64 exec, 0xff')
        a('s_mov_b32 s41, 0')
        a.label(lp)
        a('global_load_dword v8, v7, s[20:21] sc1')
        a('s_add_u32 s41, s41, 1')
        a('s_waitcnt vmcnt(0)')
        a('v_cmp_ne_u32 vcc, 32, v8')
        a(f's_cbranch_vccz {ld}')
        a(f's_cmp_lt_u32 s41, {SPIN_MAX}')
        a(f's_cbranch_scc1 {lp}')
        a.label(ld)
        a('s_mov_b64 exec, -1')
        a.label(lj)
        a('s_barrier')
    stamp(a, 0, True); stamp(a, 1)
    if 'dbg' in gen.EXP:
        a('s_memrealtime s[90:91]'); a('s_memtime s[92:93]'); a(f's_load_dwordx2 s[94:95], s[0:1], {A_DBG}')
    if 'nocodepf' not in gen.EXP and not merged:
        code_touch(a, L, '.Lkf_last', '.Lpc_kf', 144, 151, 2)
    a(f's_load_dwordx2 s[4:5], s[0:1], {A_WS}')
    a(f's_load_dwordx2 s[68:69], s[0:1], {A_X}')
    a(f's_load_dwordx2 s[70:71], s[0:1], {A_OUT}')
    a(f's_and_b32 s{SG}, s2, 7')
    a(f's_lshr_b32 s{SJ}, s2, 3')
    a(f's_mov_b32 s{SH}, s{SJ}')
    a(f's_mov_b32 s{SR}, s{SG}')
    a('v_lshrrev_b32 v1, 6, v0')
    a('v_and_b32 v2, 63, v0')
    a('v_readfirstlane_b32 s12, v1')
    a('v_and_b32 v3, 31, v2')
    a('v_lshrrev_b32 v4, 5, v2')
    a(f's_getreg_b32 s{SPURE}, hwreg(HW_REG_XCC_ID, 0, 4)')
    a(f's_add_u32 s{SPURE}, s{SPURE}, 1')
    attn_setup(a, SH, SR, 12, 8, defer=True)
    a('s_waitcnt lgkmcnt(0)')
    srd(a, 8, 4, WS_END)
    attn_dma(a, 0, 8)
    attn_qloads(a, 8)
    srd(a, 72, 68, S * D * 2)
    srd(a, 76, 70, S * D * 2)
    a(f's_load_dwordx2 s[68:69], s[0:1], {A_B1}')
    a(f's_load_dwordx2 s[70:71], s[0:1], {A_B2}')
    stamp(a, 2)
    phase_attn(a, L)
    phase_oproj(a)
    stamp(a, 5)
    a(f's_cmp_ge_u32 s{SJ}, 28')
    a(f's_cbranch_scc1 {L}_idle')
    phase_ffn1(a, None)
    phase_ffn2(a, L, True)
    a(f's_branch {L}_f2')
    a.label(f'{L}_idle')
    a('s_waitcnt vmcnt(0)')
    a('s_barrier')
    li = lab('id')
    a('s_cmp_lg_u32 s12, 0')
    a(f's_cbranch_scc1 {li}')
    flag_store(a, 1, 14)
    a.label(li)
    w2_setup(a)
    for st in (0, 1):
        for ft in range(5):
            for x in w2_dma(st, ft): a(x)
    a('s_waitcnt vmcnt(0)')
    phase_ffn2(a, L, False)
    a.label(f'{L}_f2')
    ffn2_body(a, L)
    a.label(f'{L}_fin')
    if 'f1stamp' not in gen.EXP: stamp(a, 14)
    if 'dbg' in gen.EXP:
        a('s_waitcnt vmcnt(0)')
        a('s_memrealtime s[96:97]'); a('s_memtime s[86:87]'); a('s_waitcnt lgkmcnt(0)')
        ldb = lab('db')
        a('s_cmp_lg_u32 s2, 0'); a(f's_cbranch_scc1 {ldb}'); a('s_cmp_lg_u32 s12, 0'); a(f's_cbranch_scc1 {ldb}')
        a('s_sub_u32 s96, s96, s90'); a('s_sub_u32 s86, s86, s92')
        a('v_mov_b32 v0, 0'); a('v_mov_b32 v2, s96'); a('v_mov_b32 v3, s86'); a('v_mov_b32 v4, s90'); a('v_mov_b32 v5, 0')
        a('global_store_dwordx4 v0, v[2:5], s[94:95] offset:16')
        a(f's_mov_b32 s86, {WS_PROF}')
        a('buffer_load_dwordx4 v[6:9], v0, s[8:11], s86 offen')
        a('s_waitcnt vmcnt(0)')
        a('global_store_dwordx4 v0, v[6:9], s[94:95]')
        a.label(ldb)
    if gen.PROF: a('s_waitcnt vmcnt(0)')
    stamp(a, 6, True)
    if 'dbgst' in gen.EXP:
        ldb = lab('db')
        a(f's_load_dwordx2 s[20:21], s[0:1], {A_DBG}')
        a('s_waitcnt lgkmcnt(0)')
        a('s_cmp_lg_u32 s2, 8'); a(f's_cbranch_scc1 {ldb}'); a('s_cmp_lg_u32 s12, 0'); a(f's_cbranch_scc1 {ldb}')
        a('v_mbcnt_lo_u32_b32 v0, -1, 0'); a('v_mbcnt_hi_u32_b32 v0, -1, v0'); a('v_mov_b32 v1, 0')
        for i in range(16):
            src = PS + i if i != 15 else PS + 1
            a(f's_sub_u32 s22, s{src}, s{PS+1}') if i not in (0, 6) else a(f's_mov_b32 s22, s{src}')
            a('v_mov_b32 v2, s22'); a(f'v_cmp_eq_u32 vcc, {i}, v0'); a('v_cndmask_b32 v1, v1, v2, vcc')
        a('v_lshlrev_b32 v0, 2, v0')
        a('s_mov_b64 exec, 0xffff')
        a('global_store_dword v0, v1, s[20:21]')
        a('s_mov_b64 exec, -1')
        a.label(ldb)
    else:
        stamp_flush(a, 2, 15, 8, 12)
    a.label(f'{L}_end')
    a('s_endpgm')
    attn_fallback(a)
    a.label('.Lkf_last')
    a('s_endpgm')
    if merged: return a, descriptor(L, 256, 102), '; @launch grid=(256,1,1) block=(512,1,1) lds=163840'
    return a, descriptor(L, 256, 102), f'; @launch kernel={L} grid=(256,1,1) block=(512,1,1) lds=163840'

if __name__ == '__main__':
    if 'prof' in sys.argv: gen.PROF = True
    for x in sys.argv[2:]:
        if x.startswith('x:'): gen.EXP.add(x[2:])
    out = sys.argv[1]
    import gen4, gen5
    ks_ = [kf] if 'merge' in gen.EXP else ([k0, k1, kf] if 'old' in gen.EXP else [gen4.k1p if 'k1p' in gen.EXP else gen5.k1s, kf])
    open(out, 'w').write(build(ks_))
    print('wrote', out)
```

```python
import sys
sys.path.insert(0, 'dev')
import gen, gen2
from gen import *
from gen2 import lab, stores2, attn_units, wo_dma, WS_XT, SG, SJ, SPURE, LDS_WO, SPIN_MAX
from asmlib import *

class VM:
    def __init__(self): self.ops = []
    def issue(self, tag): self.ops.append(tag)
    def count_after(self, pred):
        n = 0
        for x in reversed(self.ops):
            if pred(x): return n
            n += 1
        raise Exception('no op matches')
    def wait(self, a, pred, extra=''):
        a(f's_waitcnt vmcnt({min(self.count_after(pred), 63)}){extra}')

XR0 = 136
W1A, W1B = 152, 16
def w1reg(s): return W1A + 4 * s if s < 26 else W1B + 4 * (s - 26)
SH, SR = 36, 37
S_OOB = 38
S_DONE = 39
FB_LDS = 159744
S_W1 = 98
V_W1 = 1

def flag_store(a, p, vt):
    g_, j_ = (SR, SH) if p == 0 else (SG, SJ)
    a(f's_lshl_b32 s40, s{g_}, 7')
    a(f's_lshl_b32 s41, s{j_}, 2')
    a('s_add_u32 s40, s40, s41')
    a(f's_add_u32 s40, s40, {WS_FLAG + p*1024}')
    a(f'v_mov_b32 v{vt}, 0')
    a(f'v_mov_b32 v{vt+1}, 1')
    a('s_mov_b64 exec, 1')
    stores2(a, [f'buffer_store_dword v{vt+1}, v{vt}, s[8:11], s40 offen'])
    a('s_mov_b64 exec, -1')

def sync(a, p_pub, p_wait, smask_setup, prefetch, vt=14, drained=False, w0_prefetch=True):
    if p_pub is not None and not drained:
        a('s_waitcnt vmcnt(0)')
        a('s_barrier')
    l0, l1, lp, ld, l3 = lab('sy'), lab('sy'), lab('sy'), lab('sy'), lab('sy')
    a('s_cmp_lg_u32 s12, 0')
    a(f's_cbranch_scc1 {l0}')
    if p_pub is not None: flag_store(a, p_pub, vt)
    smask_setup()
    a(f's_lshl_b32 s40, s{SG}, 7')
    a(f's_add_u32 s40, s40, {WS_FLAG + p_wait*1024}')
    a(f'v_lshlrev_b32 v{vt}, 2, v2')
    a('s_mov_b64 exec, s[44:45]')
    a('s_mov_b32 s41, 0')
    a.label(lp)
    a(f'buffer_load_dword v{vt+1}, v{vt}, s[8:11], s40 offen sc1')
    a('s_add_u32 s41, s41, 1')
    a('s_waitcnt vmcnt(0)')
    a(f'v_cmp_eq_u32 vcc, 0, v{vt+1}')
    a(f's_cbranch_vccz {ld}')
    a(f's_cmp_lt_u32 s41, {SPIN_MAX}')
    a(f's_cbranch_scc1 {lp}')
    a.label(ld)
    a('s_mov_b64 exec, -1')
    a(f's_cmp_eq_u32 s{SPURE}, 1')
    a(f's_cbranch_scc1 {l3}')
    a('buffer_inv sc1')
    a('s_waitcnt vmcnt(0)')
    a.label(l3)
    a('s_barrier')
    if w0_prefetch: prefetch()
    a(f's_branch {l1}')
    a.label(l0)
    prefetch()
    a('s_barrier')
    a.label(l1)

def late_init(a, vm, L):
    merged = 'merge' in gen.EXP
    if not merged:
        a(f's_lshl_b32 s40, s{SG}, 7')
        a(f's_lshl_b32 s41, s{SJ}, 2')
        a('s_add_u32 s40, s40, s41')
        a(f's_add_u32 s40, s40, {WS_XT}')
        a('s_cmp_eq_u32 s12, 0')
        a('s_cselect_b32 s40, s40, 0x7ff00000')
        a('v_mov_b32 v14, 0')
        a(f'v_mov_b32 v15, s{SPURE}')
        a('s_mov_b64 exec, 1')
        a('buffer_store_dword v15, v14, s[8:11], s40 offen sc1')
        a('s_mov_b64 exec, -1')
        vm.issue('xts')

def phase_attn(a, L):
    R = AR
    attn_ones(a)
    a(f's_lshr_b32 s62, s{SJ}, 2')
    a('s_mul_i32 s62, s62, 102400')
    a(f's_add_u32 s62, s62, {WS_WO}')
    a('s_lshl_b32 s61, s12, 10')
    a('s_add_u32 s62, s62, s61')
    a('s_cmp_lt_u32 s12, 4')
    a(f's_mov_b32 s63, {11*8192}')
    a(f's_cselect_b32 s63, {12*8192}, s63')
    a('s_add_u32 s63, s63, s62')
    a(f's_add_u32 s61, s61, {LDS_WO}')
    if 'rolled' in gen.EXP:
        for r in range(32): a(f'v_mov_b32 v{R.O+r}, 0')
        for r in range(16): a(f'v_mov_b32 v{R.P+r}, 0')
        for r in range(16): a(f'v_mov_b32 v{R.VV+r}, 0')
    vm = VM()
    a(f's_mov_b32 s{S_DONE}, 0')
    a(f'v_mov_b32 v14, {FB_LDS}')
    a('v_mov_b32 v15, 0')
    a('ds_write_b32 v14, v15')
    def w1_addr(a_):
        lane_swap23(a_, 14, 3, 15)
        a_('v_lshrrev_b32 v15, 4, v14')
        a_('s_movk_i32 s40, 20480')
        a_('v_mul_lo_u32 v15, v15, s40')
        a_('v_and_b32 v14, 15, v14')
        a_('v_lshl_add_u32 v15, v14, 4, v15')
        a_(f'v_lshl_add_u32 v{V_W1}, v4, 8, v15')
        a_(f's_lshr_b32 s40, s{SJ}, 1')
        a_('s_lshl_b32 s40, s40, 2')
        a_('s_and_b32 s41, s12, 3')
        a_('s_add_u32 s40, s40, s41')
        a_('s_mul_i32 s41, s40, 40960')
        a_(f's_add_u32 s41, s41, {WS_W1}')
        a_('s_cmp_lt_u32 s40, 54')
        a_(f's_cselect_b32 s{S_W1}, s41, 0x7ff00000')
    def touch_addr(a_):
        a_(f's_mov_b32 s{S_OOB}, 0x7ff00000')
        lt1, lt2 = lab('tc'), lab('tc')
        a_('v_lshlrev_b32 v148, 7, v2')
        a_('s_cmp_ge_u32 s12, 4')
        a_(f's_cbranch_scc1 {lt1}')
        a_(f's_mul_i32 s50, s{SG}, {16*20480}')
        a_(f's_mul_i32 s40, s{SJ}, 10240')
        a_('s_add_u32 s50, s50, s40')
        a_('s_and_b32 s40, s12, 1')
        a_('s_mul_i32 s40, s40, 5120')
        a_('s_add_u32 s50, s50, s40')
        a_('s_lshr_b32 s40, s12, 1')
        a_(f's_mul_i32 s40, s40, {WS_H - WS_O}')
        a_('s_add_u32 s50, s50, s40')
        a_(f's_add_u32 s50, s50, {WS_O}')
        a_('v_add_u32 v148, s50, v148')
        a_(f's_lshr_b32 s40, s{SJ}, 1')
        a_('s_lshl_b32 s40, s40, 14')
        a_(f's_lshl_b32 s41, s{SG}, 11')
        a_('s_add_u32 s40, s40, s41')
        a_(f's_and_b32 s41, s{SJ}, 1')
        a_('s_lshl_b32 s41, s41, 10')
        a_('s_add_u32 s40, s40, s41')
        a_(f's_add_u32 s40, s40, {WS_ST2 - 40*128}')
        a_('s_cmp_eq_u32 s12, 2')
        a_('s_cselect_b32 s40, s40, 0x7ff00000')
        a_('v_lshlrev_b32 v149, 7, v2')
        a_('v_add_u32 v149, s40, v149')
        a_('v_mov_b32 v14, 0x7ff00000')
        a_('v_cmp_gt_u32 vcc, 48, v2')
        a_('v_cndmask_b32 v149, v14, v149, vcc')
        a_('v_cmp_gt_u32 vcc, 40, v2')
        a_('v_cndmask_b32 v148, v149, v148, vcc')
        a_(f's_branch {lt2}')
        a_.label(lt1)
        a_('s_sub_u32 s40, s12, 4')
        a_('s_lshl_b32 s40, s40, 5')
        a_(f's_add_u32 s40, s40, s{SJ}')
        a_('s_mul_i32 s50, s40, 20480')
        a_(f's_add_u32 s50, s50, {WS_W1 + 13312}')
        a_('s_cmp_lt_u32 s40, 108')
        a_('s_cselect_b32 s50, s50, 0x7ff00000')
        a_('v_add_u32 v148, s50, v148')
        a_('v_mov_b32 v14, 0x7ff00000')
        a_('v_cmp_gt_u32 vcc, 56, v2')
        a_('v_cndmask_b32 v148, v14, v148, vcc')
        a_.label(lt2)
        a_('v_lshlrev_b32 v147, 7, v2')
        a_('s_lshl_b32 s40, s12, 13')
        a_(f's_mul_i32 s51, s{SG}, {16*55296}')
        a_(f's_mul_i32 s41, s{SJ}, 27648')
        a_('s_add_u32 s51, s51, s41')
        a_('s_add_u32 s51, s51, s40')
        a_(f's_add_u32 s51, s51, {WS_G}')
        a_('s_cmp_ge_u32 s12, 4')
        a_('s_cselect_b32 s51, 0x7ff00000, s51')
        a_(f's_and_b32 s40, s{SJ}, 3')
        a_('s_lshl_b32 s40, s40, 2')
        a_(f's_lshl_b32 s41, s{SG}, 4')
        a_('s_add_u32 s40, s40, s41')
        a_('s_and_b32 s41, s12, 3')
        a_('s_add_u32 s40, s40, s41')
        a_('s_lshl_b32 s40, s40, 4')
        a_('v_and_b32 v0, 15, v2')
        a_('v_add_u32 v0, s40, v0')
        a_('s_movk_i32 s41, 1280')
        a_('v_mul_lo_u32 v0, v0, s41')
        a_('v_lshrrev_b32 v14, 4, v2')
        a_('v_lshl_add_u32 v0, v14, 3, v0')
        a_(f's_lshr_b32 s57, s{SJ}, 2')
        a_('s_mul_i32 s57, s57, 160')
        a_('s_lshr_b32 s40, s12, 2')
        a_('s_mul_i32 s40, s40, 96')
        a_('s_add_u32 s57, s57, s40')
    INLOOP = 'rolled' not in gen.EXP
    if not INLOOP:
        w1_addr(a); touch_addr(a)
    def rec(fn):
        t_ = Asm(); fn(t_); return list(t_.lines)
    if 'earlyinit' in gen.EXP: late_init(a, VM(), L)
    a('s_waitcnt vmcnt(0)')
    for st in (1, 2):
        attn_dma(a, st, 8); vm.issue(('kv', st)); vm.issue(('kv', st))
    for x in wo_dma(): a(x)
    vm.issue('wo')
    if 'earlyinit' not in gen.EXP: late_init(a, vm, L)
    if 'notlb' not in gen.EXP:
        a('v_lshlrev_b32 v149, 16, v2')
        a('s_lshl_b32 s40, s12, 22')
        a('buffer_load_dword v149, v149, s[8:11], s40 offen')
        a('v_lshlrev_b32 v148, 16, v2')
        a('buffer_load_dword v148, v148, s[76:79], 0 offen')
    a('v_cmp_gt_u32 vcc, 32, v2')
    for r in range(4): a(f'v_cndmask_b32 v{R.QC+r}, 0, v{R.QC+r}, vcc')
    a('s_waitcnt lgkmcnt(0)')
    a('s_barrier')
    a(f'ds_read_b128 {v(R.KA,4)}, v11 offset:0')
    a(f'ds_read_b64 {v(R.KC,2)}, v12 offset:0')
    a('s_waitcnt lgkmcnt(0)')
    a(f'v_mfma_f32_32x32x16_bf16 {v(R.S,16)}, {v(R.KA,4)}, {v(R.QA,4)}, 0')
    a(f'v_mfma_f32_32x32x8bf16_1k {v(R.S,16)}, {v(R.KC,2)}, {v(R.QC,2)}, {v(R.S,16)}')
    stamp(a, 7)
    wnext = [0]
    def w1load():
        s_ = wnext[0]; wnext[0] += 1
        return [f's_add_u32 s40, s{S_W1}, {s_*512}', f'buffer_load_dwordx4 {v(w1reg(s_),4)}, v{V_W1}, s[8:11], s40 offen']
    plan = {}
    waits = {}
    nW = {2: 3, 3: 3, 4: 3, 5: 3, 6: 4, 7: 4, 8: 3, 9: 3}
    if 'now1a' in gen.EXP: nW = {}
    ROLL = 'rolled' in gen.EXP
    if ROLL: nW = {8: 4, 9: 4, 10: 4, 11: 4, 12: 4, 13: 3, 14: 3}
    def masked(sreg, cond_lo, cond_hi, vreg):
        return [f's_sub_u32 s40, s12, {cond_lo}', f's_cmp_lt_u32 s40, {cond_hi - cond_lo}', f's_cselect_b32 s40, {sreg}, s{S_OOB}',
                f'buffer_load_dword v149, v{vreg}, s[8:11], s40 offen']
    for g in range(16):
        ex = {}
        k = nW.get(g, 0)
        slots = sorted([(0, 20), (1, 8), (1, 20), (2, 20)][:k])
        if g <= 11:
            ex.setdefault(0, {})[8] = wo_dma(); vm.issue('wo')
        if INLOOP and g == 0: ex.setdefault(1, {})[9] = rec(w1_addr)
        if INLOOP and g == 1:
            tl_ = rec(touch_addr)
            ex.setdefault(1, {})[9] = tl_
        if g == 12:
            ex.setdefault(0, {})[8] = [f's_lshl_b32 s40, s{SG}, 7', f's_add_u32 s40, s40, {WS_XT}', 'v_lshlrev_b32 v150, 2, v3',
                                       'buffer_load_dword v150, v150, s[8:11], s40 offen sc1']
            vm.issue('xt')
        tl = None
        if g == 10: tl = masked('0', 4, 6, 148)
        if g == 11: tl = masked('0', 6, 8, 148)
        if g == 12: tl = masked('0', 0, 4, 148)
        if g == 13: tl = ['buffer_load_dword v149, v147, s[8:11], s51 offen']
        if tl and 'notouch' not in gen.EXP:
            ex.setdefault(1, {})[14] = tl; vm.issue('touch')
        post = []
        pre_ops = []
        for (u, pos) in slots:
            if u < 2: ex.setdefault(u, {})[pos] = w1load(); vm.issue('w1')
            else: post.append((u, pos))
        if g < 15: waits[g] = vm.count_after(lambda x: x == ('kv', g + 1))
        if ROLL and g < 8: waits[g] = 4
        for (u, pos) in post:
            ex.setdefault(u, {})[pos] = w1load(); vm.issue('w1')
        if g <= 12:
            vm.issue(('kv', g + 3)); vm.issue(('kv', g + 3))
        if g == 13:
            ex.setdefault(3, {})[20] = [f'buffer_load_dwordx2 {v(XR0+2*i,2)}, v0, s[72:75], s57 offen offset:{32*i}' for i in range(3)]
            for i in range(3): vm.issue('xr')
        plan[g] = ex
    assert wnext[0] == 26 or 'now1a' in gen.EXP, wnext
    def run(stages_g):
        loc = {g % 4: g for g in stages_g}
        def prio(st, u):
            g = loc[st]
            if g == 15: return {0: 2, 1: 1, 2: 1, 3: 0}[u]
            if g == 14 and u >= 2: return 3
            return {2: 3, 3: 2, 0: 1, 1: 0}[u]
        return attn_units(a, 8, [(g % 4, g == 15) for g in stages_g], lambda st: loc[st] <= 12,
                          lambda st, u: plan[loc[st]].get(u, {}), lambda st: waits[loc[st]], prio,
                          start=(stages_g[0] == 0 and 'rolled' not in gen.EXP))
    if ROLL:
        a('s_mov_b32 s60, 2')
        a.label('.Lat_loop')
        run([4, 5, 6, 7])
        a('s_sub_u32 s60, s60, 1')
        a('s_cmp_lg_u32 s60, 0')
        a('s_cbranch_scc1 .Lat_loop')
        run([8, 9, 10, 11])
    else:
        for b_ in range(3): run([4*b_ + i for i in range(4)])
    m1, m2, m3, m4, _ = run([12, 13, 14, 15])
    a(m3(1, 1, 1)); a(m4(1, 1, 1))
    a('s_setprio 0')
    stamp(a, 3)
    lp, ld = lab('xt'), lab('xt')
    a('s_mov_b32 s41, 0')
    a('v_cmp_eq_u32 vcc, 0, v150')
    a(f's_cbranch_vccz {ld}')
    a.label(lp)
    a(f's_lshl_b32 s40, s{SG}, 7')
    a(f's_add_u32 s40, s40, {WS_XT}')
    a('v_lshlrev_b32 v14, 2, v3')
    a('buffer_load_dword v150, v14, s[8:11], s40 offen sc1')
    a('s_add_u32 s41, s41, 1')
    a('s_waitcnt vmcnt(0)')
    a('v_cmp_eq_u32 vcc, 0, v150')
    a(f's_cbranch_vccz {ld}')
    a(f's_cmp_lt_u32 s41, {SPIN_MAX}')
    a(f's_cbranch_scc1 {lp}')
    a.label(ld)
    a(f'v_cmp_ne_u32 vcc, s{SPURE}, v150')
    a('s_cmp_eq_u64 vcc, 0')
    a(f's_cselect_b32 s{SPURE}, 1, 0')
    if 'slow' in gen.EXP: a(f's_mov_b32 s{SPURE}, 0')
    TT = R.S
    a.label('.Lat_combine')
    a('s_cmp_eq_u32 s46, 0')
    a('s_cbranch_scc1 .Lat_noswap')
    a('s_nop 7')
    for r in range(12): a(f'v_swap_b32 v{R.O+r}, v{R.O+16+r}')
    a.label('.Lat_noswap')
    a('s_nop 7')
    a(f's_mul_i32 s40, s12, 3072')
    a('v_add_u32 v14, s40, v10')
    for i in range(3): a(f'ds_write_b128 v14, {v(R.O+16+4*i,4)} offset:{1024*i}')
    a('s_xor_b32 s40, s12, 4')
    a('s_mul_i32 s40, s40, 3072')
    a('v_add_u32 v14, s40, v10')
    a('s_waitcnt lgkmcnt(0)')
    a('s_barrier')
    for i in range(3): a(f'ds_read_b128 {v(TT+4*i,4)}, v14 offset:{1024*i}')
    a('s_waitcnt lgkmcnt(0)')
    for r in range(12): a(f'v_add_f32 v{R.O+r}, v{R.O+r}, v{TT+r}')
    a(f'v_mov_b32 v{TT}, v{R.O+8}')
    a(f'v_mov_b32 v{TT+1}, v{R.O+8}')
    a(f'v_permlane32_swap_b32 v{TT}, v{TT+1}')
    a(f'v_mov_b32 v{TT+2}, 0')
    for r in range(12): a(f'v_fmac_f32 v{TT+2}, 0, v{R.O+r}')
    a('s_mov_b32 s40, 0x1f800000')
    a(f'v_cmp_nle_f32 vcc, s40, v{TT+1}')
    a('s_mov_b32 s40, 0x5f800000')
    a(f'v_cmp_nge_f32 s[44:45], s40, v{TT+1}')
    a('s_or_b64 s[44:45], s[44:45], vcc')
    a(f'v_cmp_u_f32 vcc, v{TT+2}, v{TT+2}')
    a('s_or_b64 s[44:45], s[44:45], vcc')
    if 'forcefb' in gen.EXP: a('s_mov_b64 s[44:45], -1')
    lok = lab('ok')
    a('s_cmp_eq_u64 s[44:45], 0')
    a(f's_cbranch_scc1 {lok}')
    a(f'v_mov_b32 v{TT+2}, {FB_LDS}')
    a(f'v_mov_b32 v{TT+3}, 1')
    a(f'ds_write_b32 v{TT+2}, v{TT+3}')
    a.label(lok)
    a(f'v_rcp_f32 v{TT+1}, v{TT+1}')
    for r in range(12): a(f'v_mul_f32 v{R.O+r}, v{R.O+r}, v{TT+1}')
    for i in range(6): a(f'v_cvt_pk_bf16_f32 v{TT+4+i}, v{R.O+2*i}, v{R.O+2*i+1}')
    a('s_mul_i32 s61, s46, 40960')
    a('s_add_u32 s61, s61, s47')
    a(f's_add_u32 s61, s61, {WS_O}')
    a('s_lshl_b32 s62, s42, 8')
    a('s_add_u32 s62, s62, s61')
    a('s_lshl_b32 s63, s43, 8')
    a('s_add_u32 s63, s63, s61')
    a(f's_and_b32 s61, s{SH}, 1')
    a('s_lshl_b32 s61, s61, 3')
    a('s_add_u32 s63, s63, s61')
    stores2(a, [f'buffer_store_dwordx4 {v(TT+4,4)}, v7, s[8:11], s62 offen',
                's_mov_b64 exec, 0xffffffff',
                f'buffer_store_dwordx2 {v(TT+8,2)}, v5, s[8:11], s63 offen',
                's_mov_b64 exec, -1'])
    stamp(a, 4)
    oproj_setup(a)
    a('s_waitcnt vmcnt(0) lgkmcnt(0)')
    a('s_barrier')
    a(f'v_mov_b32 v14, {FB_LDS}')
    a('ds_read_b32 v15, v14')
    a('s_waitcnt lgkmcnt(0)')
    a('v_readfirstlane_b32 s40, v15')
    a(f's_sub_u32 s40, s40, s{S_DONE}')
    a('s_cmp_eq_u32 s40, 1')
    a('s_cbranch_scc1 .Lat_fallback')
    a.label('.Lat_done')

def attn_fallback(a):
    R = AR
    SL = 2 * AT_SLOT
    S_, M0_, M1_ = R.S, R.S + 16, R.S + 17
    a.label('.Lat_fallback')
    a(f's_mov_b32 s{S_DONE}, 1')
    def load_stage():
        a('s_barrier')
        for x in attn_dma_parts(2, 8)[0] + attn_dma_parts(2, 8)[1]: a(x)
        a('s_waitcnt vmcnt(0)')
        a('s_barrier')
    def rewind():
        a(f's_sub_u32 s52, s52, {16*5120}')
        a(f's_sub_u32 s53, s53, {16*163840}')
    def scores(t, j):
        a(f'v_mfma_f32_32x32x16_bf16 {v(S_,16)}, {v(R.KA,4)}, {v(R.QA+4*j,4)}, 0')
        a(f'v_mfma_f32_32x32x8bf16_1k {v(S_,16)}, {v(R.KC,2)}, {v(R.QC+2*j,2)}, {v(S_,16)}')
    def kread(t):
        a(f'ds_read_b128 {v(R.KA,4)}, v11 offset:{SL + t*1024}')
        a(f'ds_read_b64 {v(R.KC,2)}, v12 offset:{SL + t*512}')
    rewind()
    a(f'v_mov_b32 v{M0_}, 0xff7fffff'); a(f'v_mov_b32 v{M1_}, 0xff7fffff')
    a('s_mov_b32 s60, 16')
    a.label('.Lat_fb1')
    load_stage()
    for t in range(2):
        kread(t)
        a('s_waitcnt lgkmcnt(0)')
        for j in range(2):
            scores(t, j)
            m = M0_ + j
            for r in range(0, 16, 2): a(f'v_max3_f32 v{m}, v{S_+r}, v{S_+r+1}, v{m}')
    a('s_sub_u32 s60, s60, 1')
    a('s_cmp_lg_u32 s60, 0')
    a('s_cbranch_scc1 .Lat_fb1')
    for j in range(2):
        m = M0_ + j
        a(f'v_mov_b32 v{S_}, v{m}'); a(f'v_mov_b32 v{S_+1}, v{m}')
        a(f'v_permlane32_swap_b32 v{S_}, v{S_+1}')
        a(f'v_max_f32 v{m}, v{S_}, v{S_+1}')
    a('s_barrier')
    a('s_lshl_b32 s40, s12, 9')
    a('v_lshlrev_b32 v14, 3, v2')
    a('v_add_u32 v14, s40, v14')
    a(f'ds_write_b64 v14, {v(M0_,2)}')
    a('s_xor_b32 s40, s12, 4')
    a('s_lshl_b32 s40, s40, 9')
    a('v_lshlrev_b32 v14, 3, v2')
    a('v_add_u32 v14, s40, v14')
    a('s_waitcnt lgkmcnt(0)')
    a('s_barrier')
    a(f'ds_read_b64 {v(S_,2)}, v14')
    a('s_waitcnt lgkmcnt(0)')
    a(f'v_max_f32 v{M0_}, v{M0_}, v{S_}')
    a(f'v_max_f32 v{M1_}, v{M1_}, v{S_+1}')
    rewind()
    for r in range(32): a(f'v_mov_b32 v{R.O+r}, 0')
    a('s_mov_b32 s60, 16')
    a.label('.Lat_fb2')
    load_stage()
    for t in range(2):
        kread(t)
        a(f'ds_read_b128 {v(R.VV,4)}, v13 offset:{SL + t*2048}')
        a(f'ds_read_b128 {v(R.VV+4,4)}, v13 offset:{SL + t*2048 + 1024}')
        a('s_waitcnt lgkmcnt(0)')
        for j in range(2):
            scores(t, j)
            for r in range(16): a(f'v_sub_f32 v{S_+r}, v{S_+r}, v{M0_+j}')
            for r in range(16): a(f'v_exp_f32 v{S_+r}, v{S_+r}')
            for i in range(8): a(f'v_cvt_pk_bf16_f32 v{R.P+i}, v{S_+2*i}, v{S_+2*i+1}')
            a(f'v_mfma_f32_32x32x16_bf16 {v(R.O+16*j,16)}, {v(R.VV,4)}, {v(R.P,4)}, {v(R.O+16*j,16)}')
            a(f'v_mfma_f32_32x32x16_bf16 {v(R.O+16*j,16)}, {v(R.VV+4,4)}, {v(R.P+4,4)}, {v(R.O+16*j,16)}')
    a('s_sub_u32 s60, s60, 1')
    a('s_cmp_lg_u32 s60, 0')
    a('s_cbranch_scc1 .Lat_fb2')
    a('s_nop 15')
    a('s_barrier')
    a('s_branch .Lat_combine')

def oproj_setup(a):
    BF, AF, ACC, XR, T = 16, 56, 96, XR0, 116
    a(f's_and_b32 s20, s{SJ}, 3')
    a(f's_lshr_b32 s21, s{SJ}, 2')
    a('s_and_b32 s22, s12, 3')
    a('s_lshr_b32 s23, s12, 2')
    a(f's_lshl_b32 s29, s{SG}, 4')
    a('s_lshl_b32 s30, s20, 2')
    a('s_add_u32 s29, s29, s30')
    a('s_add_u32 s29, s29, s22')
    a('v_and_b32 v14, 15, v2')
    a('v_lshrrev_b32 v15, 4, v2')
    a('s_mul_i32 s30, s29, 20480')
    a('s_mul_i32 s31, s23, 10240')
    a('s_add_u32 s30, s30, s31')
    a(f's_add_u32 s30, s30, {WS_O}')
    a('s_mul_i32 s33, s23, 10240')
    a(f's_add_u32 s33, s33, {LDS_WO}')
    a('s_cmp_eq_u32 s23, 0')
    a(f's_cselect_b32 s34, 0, {3*20480}')
    a('s_add_u32 s34, s34, s33')
    a('v_add_u32 v142, s34, v10')
    a(f's_cselect_b32 s34, {2*20480}, 0') if False else None
    a('s_cmp_eq_u32 s23, 0')
    a(f's_cselect_b32 s34, {2*20480}, 0')
    a('s_add_u32 s34, s34, s33')
    a('v_add_u32 v143, s34, v10')
    a('s_cmp_eq_u32 s23, 0')
    a(f's_mov_b32 s35, {20480}')
    a(f's_cselect_b32 s34, {3*20480}, s35')
    a('s_add_u32 s34, s34, s33')
    a('v_add_u32 v145, s34, v10')
    a('s_mul_i32 s40, s12, 3072')
    a('s_add_u32 s40, s40, 32768')
    a('v_add_u32 v146, s40, v10')
    a('s_xor_b32 s40, s12, 4')
    a('s_mul_i32 s40, s40, 3072')
    a('s_lshl_b32 s41, s23, 10')
    a('s_add_u32 s40, s40, s41')
    a('s_add_u32 s40, s40, 32768')
    a('v_add_u32 v147, s40, v10')
    a('s_mul_i32 s34, s29, 20480')
    a('s_mul_i32 s35, s21, 2560')
    a('s_add_u32 s34, s34, s35')
    a('s_mul_i32 s35, s23, 1536')
    a('s_add_u32 s34, s34, s35')
    a(f's_add_u32 s34, s34, {WS_H}')
    a('v_lshrrev_b32 v148, 1, v15')
    a('v_lshlrev_b32 v148, 8, v148')
    a('v_lshl_add_u32 v148, v14, 4, v148')
    a('v_and_b32 v144, 1, v15')
    a('v_lshl_add_u32 v148, v144, 3, v148')
    a('s_lshl_b32 s33, s29, 7')
    a('s_lshl_b32 s35, s21, 1')
    a('s_add_u32 s35, s35, s23')
    a('s_lshl_b32 s35, s35, 14')
    a('s_add_u32 s33, s33, s35')
    a(f's_add_u32 s33, s33, {WS_ST2}')
    a('v_lshlrev_b32 v144, 3, v14')
    a('s_cmp_eq_u32 s23, 0')
    a(f's_cselect_b32 s35, s34, {0x7ffff000}')
    a('s_waitcnt vmcnt(2)')
    for i in range(3):
        for h2 in range(2):
            a(f'v_lshlrev_b32 v{ACC+4*i+2*h2}, 16, v{XR+2*i+h2}')
            a(f'v_and_b32 v{ACC+4*i+2*h2+1}, 0xffff0000, v{XR+2*i+h2}')
    a('s_cmp_eq_u32 s23, 0')
    a('s_cselect_b64 vcc, -1, 0')
    for r in range(8, 12): a(f'v_cndmask_b32 v{ACC+r}, 0, v{ACC+r}, vcc')
    for r in range(12, 20): a(f'v_mov_b32 v{ACC+r}, 0')

def phase_oproj(a):
    BF, AF, ACC, XR, T = 16, 56, 96, XR0, 116
    def pre(): pass
    def mask():
        a('s_mov_b32 s44, -1'); a('s_mov_b32 s45, 0')
    sync(a, 0, 0, mask, pre, drained=True)
    stamp(a, 8)
    for i in range(10):
        if i % 4 == 0: a(f's_add_u32 s31, s30, {i*1024}')
        a(f'buffer_load_dwordx4 {v(BF+4*i,4)}, v10, s[8:11], s31 offen offset:{(i%4)*1024} sc1')
    def areads(i, buf):
        for sl in range(5):
            base, off = {0: (142, 0), 1: (142, 20480), 2: (143, 0), 3: (145, 0), 4: (145, 20480)}[sl]
            a(f'ds_read_b128 {v(AF+20*buf+4*sl,4)}, v{base} offset:{off + i*1024}')
    areads(0, 0)
    for i in range(10):
        if i < 9:
            areads(i + 1, (i + 1) & 1)
            a(f's_waitcnt vmcnt({9-i}) lgkmcnt(5)')
        else:
            a('s_waitcnt vmcnt(0) lgkmcnt(0)')
        for sl in (2, 3, 4, 0, 1):
            acc = v(ACC + 4 * sl, 4)
            a(f'v_mfma_f32_16x16x32_bf16 {acc}, {v(AF+20*(i&1)+4*sl,4)}, {v(BF+4*i,4)}, {acc}')
    stamp(a, 9)
    a('s_nop 3')
    for i, sl in enumerate((2, 3, 4)): a(f'ds_write_b128 v146, {v(ACC+4*sl,4)} offset:{1024*i}')
    a('s_waitcnt lgkmcnt(0)')
    a('s_barrier')
    for i in range(3): a(f'ds_read_b128 {v(T+4*i,4)}, v147 offset:{1024*i}')
    a('s_waitcnt lgkmcnt(0)')
    for r in range(12): a(f'v_add_f32 v{ACC+r}, v{ACC+r}, v{T+r}')
    a('s_cmp_eq_u32 s23, 0')
    a('s_cselect_b64 vcc, -1, 0')
    for r in range(8, 12): a(f'v_cndmask_b32 v{ACC+r}, 0, v{ACC+r}, vcc')
    a(f'v_add_f32 v{T}, v{ACC}, v{ACC+1}')
    a(f'v_mul_f32 v{T+1}, v{ACC}, v{ACC}')
    a(f'v_fmac_f32 v{T+1}, v{ACC+1}, v{ACC+1}')
    for r in range(2, 12):
        a(f'v_add_f32 v{T}, v{T}, v{ACC+r}')
        a(f'v_fmac_f32 v{T+1}, v{ACC+r}, v{ACC+r}')
    for i in range(6): a(f'v_cvt_pk_bf16_f32 v{T+4+i}, v{ACC+2*i}, v{ACC+2*i+1}')
    sum_q4(a, T, T+2, T+3)
    sum_q4(a, T+1, T+2, T+3)
    stores2(a, [f'buffer_store_dwordx2 {v(T+4,2)}, v148, s[8:11], s34 offen',
                f'buffer_store_dwordx2 {v(T+6,2)}, v148, s[8:11], s34 offen offset:512',
                f'buffer_store_dwordx2 {v(T+8,2)}, v148, s[8:11], s35 offen offset:1024',
                's_mov_b64 exec, 0xffff',
                f'buffer_store_dwordx2 {v(T,2)}, v144, s[8:11], s33 offen',
                's_mov_b64 exec, -1'])

F2_SLOT = {0: 81920, 1: 122880, 2: 0, 3: 40960, 4: 81920, 5: 122880, 6: 0}
def w2_setup(a):
    a(f's_lshr_b32 s21, s{SJ}, 2')
    a('s_lshr_b32 s22, s12, 2')
    a('s_mul_i32 s22, s22, 27')
    a('s_and_b32 s23, s12, 3')
    a('s_add_u32 s22, s22, s23')
    a('s_lshl_b32 s22, s22, 10')
    a('s_mul_i32 s47, s21, 276480')
    a(f's_add_u32 s47, s47, {WS_W2}')
    a('s_add_u32 s47, s47, s22')
    a('s_mul_i32 s48, s12, 5120')
def w2_dma(st, ft):
    return [f's_add_u32 m0, s48, {F2_SLOT[st] + ft*1024}', f's_add_u32 s49, s47, {st*4096 + ft*55296}',
            'buffer_load_dwordx4 v10, s[8:11], s49 offen lds']

def far_touch(a, vt, vd):
    a(f'v_lshlrev_b32 v{vt}, 7, v2')
    a(f's_mul_i32 s56, s{SJ}, 69120')
    a('s_lshl_b32 s57, s12, 13')
    a('s_add_u32 s56, s56, s57')
    a(f's_add_u32 s56, s56, {WS_W2}')
    a(f'buffer_load_dword v{vd}, v{vt}, s[8:11], s56 offen')
    a(f's_mul_i32 s56, s{SG}, {16*55296}')
    a(f's_mul_i32 s57, s{SJ}, 27648')
    a('s_add_u32 s56, s56, s57')
    a('s_lshl_b32 s57, s12, 13')
    a('s_add_u32 s56, s56, s57')
    a(f's_add_u32 s56, s56, {WS_G}')
    a(f's_mul_i32 s57, s{SJ}, 69120')
    a(f's_add_u32 s57, s57, {WS_W2 + 65536}')
    a('s_cmp_eq_u32 s12, 4')
    a('s_cselect_b32 s56, s57, s56')
    a('s_cmp_gt_u32 s12, 4')
    a('s_cselect_b32 s56, 0x7ff00000, s56')
    a(f'buffer_load_dword v{vd}, v{vt}, s[8:11], s56 offen')

def f1_tables(a, vm, ST, CP, LST):
    vm.wait(a, lambda x: x in ('st', 'cp'))
    a(f'v_add_f32 v{CP}, v{CP}, v{CP+1}')
    a(f'v_add_f32 v{CP+2}, v{CP+2}, v{CP+3}')
    a(f'v_add_f32 v{CP}, v{CP}, v{CP+2}')
    a('s_lshl_b32 s28, s23, 7')
    a('v_lshlrev_b32 v14, 2, v3')
    a('v_add_u32 v14, s28, v14')
    a(f'ds_write_b32 v14, v{CP} offset:{LST+1024}')
    l2 = lab('st')
    a('s_cmp_ge_u32 s12, 4')
    a(f's_cbranch_scc1 {l2}')
    b = ST
    for q in range(1, 8):
        a(f'v_add_f32 v{b}, v{b}, v{b+2*q}')
        a(f'v_add_f32 v{b+1}, v{b+1}, v{b+2*q+1}')
    for r in range(2):
        a(f'v_mov_b32 v{b+2}, v{b+r}'); a(f'v_mov_b32 v{b+3}, v{b+r}')
        a(f'v_permlane32_swap_b32 v{b+2}, v{b+3}')
        a(f'v_add_f32 v{b+r}, v{b+2}, v{b+3}')
    a(f'v_mul_f32 v{b}, {f2hex(1.0/640)}, v{b}')
    a(f'v_mul_f32 v{b+1}, {f2hex(1.0/640)}, v{b+1}')
    a(f'v_fma_f32 v{b+1}, -v{b}, v{b}, v{b+1}')
    a(f'v_add_f32 v{b+1}, 0x3727c5ac, v{b+1}')
    a(f'v_rsq_f32 v{b+1}, v{b+1}')
    a(f'v_mul_f32 v{b}, v{b}, v{b+1}')
    a('s_lshl_b32 s28, s12, 8')
    a('v_lshlrev_b32 v14, 3, v3')
    a('v_add_u32 v14, s28, v14')
    a(f'ds_write_b64 v14, {v(b,2)} offset:{LST}')
    a.label(l2)

def phase_ffn1(a, vm_pre):
    ACC, FB = 72, 104
    CS, B1, ST = 192, 168, 128
    CP, B1R = 144, 184
    LST = 0
    NS = 5
    srd(a, 52, 68, F * 2)
    w2_setup(a)
    a(f's_and_b32 s13, s{SJ}, 1')
    a(f's_lshl_b32 s15, s{SG}, 1')
    a('s_add_u32 s13, s13, s15')
    a(f's_lshr_b32 s14, s{SJ}, 1')
    a('s_and_b32 s23, s12, 3')
    a('s_lshr_b32 s26, s12, 2')
    a('v_lshrrev_b32 v7, 4, v3')
    a('s_movk_i32 s17, 20480')
    a('v_mul_lo_u32 v7, v7, s17')
    a('v_and_b32 v6, 15, v3')
    a('v_lshl_add_u32 v7, v6, 4, v7')
    a('v_lshl_add_u32 v7, v4, 8, v7')
    a('s_lshl_b32 s20, s13, 3')
    a('s_lshl_b32 s19, s23, 1')
    a('s_add_u32 s20, s20, s19')
    a('s_mul_i32 s20, s20, 20480')
    a('s_lshl_b32 s19, s26, 10')
    a('s_add_u32 s20, s20, s19')
    a(f's_add_u32 s20, s20, {WS_H}')
    a('s_lshl_b32 s22, s23, 10')
    a('s_lshl_b32 s19, s26, 13')
    a('s_add_u32 s22, s22, s19')
    a('s_lshl_b32 s17, s26, 11')
    a('v_add_u32 v12, s17, v10')
    a('v_add_u32 v13, 0x10000, v12')
    vm = VM()
    def pre(): pass
    def mask():
        a(f's_and_b32 s40, s{SJ}, 1')
        a('s_cmp_eq_u32 s40, 0')
        a('s_mov_b32 s44, 0xcccccccc')
        a('s_cselect_b32 s44, 0x33333333, s44')
        a('s_mov_b32 s45, 0')
    sync(a, 1, 1, mask, pre)
    stamp(a, 10)
    nst = 10
    pend = [(st, i) for st in range(nst) for i in range(2)]
    def dma_one():
        st, i = pend.pop(0)
        a(f's_add_u32 m0, s22, {(st % NS)*16384 + i*4096}')
        a(f's_add_u32 s21, s20, {st*2048 + i*512}')
        a('buffer_load_dwordx4 v7, s[8:11], s21 offen sc1 lds')
        vm.issue(('h', st))
    for _ in range(2 * 3): dma_one()
    a('s_lshl_b32 s27, s13, 7')
    a('s_lshl_b32 s28, s26, 6')
    a('s_add_u32 s27, s27, s28')
    a('s_lshl_b32 s28, s13, 7')
    a('s_lshl_b32 s29, s23, 5')
    a('s_add_u32 s28, s28, s29')
    a('s_lshl_b32 s28, s28, 3')
    a(f's_add_u32 s28, s28, {WS_ST2}')
    a('v_lshlrev_b32 v14, 3, v3')
    a('v_lshl_add_u32 v14, v4, 17, v14')
    def st_load(q):
        a(f's_add_u32 s29, s28, {q*16384}')
        a(f'buffer_load_dwordx2 {v(ST+2*q,2)}, v14, s[8:11], s29 offen sc1')
        vm.issue('st')
    w1q = list(range(26, 40))
    def w1_load():
        s_ = w1q.pop(0)
        a(f's_add_u32 s40, s{S_W1}, {s_*512}')
        a(f'buffer_load_dwordx4 {v(w1reg(s_),4)}, v{V_W1}, s[8:11], s40 offen')
        vm.issue(('w1', s_))
    def reads(st, ks, buf):
        off = (st % NS) * 16384 + ks * 4096
        base = 12
        if off + 1024 >= 65536: off -= 65536; base = 13
        a(f'ds_read_b128 {v(FB+8*buf,4)}, v{base} offset:{off}')
        a(f'ds_read_b128 {v(FB+8*buf+4,4)}, v{base} offset:{off+1024}')
    def mfmas(s_, buf):
        for j in range(2):
            c = '0' if s_ == 0 else v(ACC+16*j, 16)
            a(f'v_mfma_f32_32x32x16_bf16 {v(ACC+16*j,16)}, {v(w1reg(s_),4)}, {v(FB+8*buf+4*j,4)}, {c}')
    F1S = 'f1stamp' in gen.EXP
    w2q = [(st, ft) for st in (0, 1) for ft in range(5)]
    if F1S: stamp(a, 2)
    vm.wait(a, lambda x: x == ('h', 0))
    a('s_barrier')
    if F1S: stamp(a, 3)
    reads(0, 0, 0)
    reads(0, 1, 1)
    for st in range(nst):
        for ks in range(4):
            s_ = 4 * st + ks
            buf = s_ % 3
            n2 = s_ + 2
            if st == 8 and ks == 2:
                f1_tables(a, vm, ST, CP, LST)
            if st == 9 and ks == 0:
                a('s_lshl_b32 s28, s26, 9')
                a('v_lshlrev_b32 v14, 3, v3')
                a('v_add_u32 v14, s28, v14')
                a(f'ds_read_b64 {v(ST,2)}, v14 offset:{LST}')
                a(f'ds_read_b64 {v(ST+4,2)}, v14 offset:{LST+256}')
                a('s_lshl_b32 s28, s23, 7')
                a('v_lshlrev_b32 v14, 5, v4')
                a('v_add_u32 v14, s28, v14')
                for g in range(4):
                    a(f'ds_read_b128 {v(CS+4*g,4)}, v14 offset:{LST + 1024 + (g&1)*16 + (g>>1)*64}')
            if ks == 2 and st + 1 < nst:
                if s_ >= 26 and 'f1now1b' not in gen.EXP: vm.wait(a, lambda x: x == ('w1', s_), ' lgkmcnt(0)')
                else: a('s_waitcnt lgkmcnt(0)')
                mfmas(s_, buf)
                if F1S and st in (0, 2, 4, 6): stamp(a, {0: 4, 2: 7, 4: 9, 6: 13}[st])
                vm.wait(a, lambda x: x == ('h', st + 1))
                a('s_barrier')
                if F1S and st in (0, 2, 4, 6): stamp(a, {0: 5, 2: 8, 4: 12, 6: 14}[st])
                reads(n2 >> 2, n2 & 3, n2 % 3)
            else:
                if n2 < 40:
                    reads(n2 >> 2, n2 & 3, n2 % 3)
                    lg = 4
                else:
                    lg = 2 if s_ == 38 else 0
                if ks == 3 and st + 1 < nst: lg = 4
                if st == 9 and ks == 0: lg = 2
                if s_ >= 26 and 'f1now1b' not in gen.EXP: vm.wait(a, lambda x: x == ('w1', s_), f' lgkmcnt({lg})')
                else: a(f's_waitcnt lgkmcnt({lg})')
                mfmas(s_, buf)
            lim = st + NS - 1 + (1 if ks >= 2 else 0)
            if pend and pend[0][0] <= lim and (ks in (1, 3) or st == 0): dma_one()
            if ks in (0, 2) and w1q and st <= 6:
                if 'f1now1b' in gen.EXP:
                    w1q.pop(0)
                else: w1_load()
            if st == 5 and ks < 4:
                st_load(2 * ks); st_load(2 * ks + 1)
            if st >= 8 and not (st == 8 and ks == 0):
                for _ in range(2 if (st == 9 or ks >= 2) else 1):
                    if w2q:
                        for x in w2_dma(*w2q.pop(0)): a(x)
                        vm.issue('w2')
            if st == 6 and ks == 1:
                a('s_lshl_b32 s29, s14, 7')
                a('s_lshl_b32 s30, s23, 5')
                a('s_add_u32 s29, s29, s30')
                a('s_lshl_b32 s29, s29, 2')
                a(f's_add_u32 s29, s29, {WS_CS1}')
                a('v_lshlrev_b32 v15, 2, v3')
                for kb in range(4):
                    a(f'buffer_load_dword v{CP+kb}, v15, s[8:11], s29 offen'); vm.issue('cp')
                    if kb < 3: a('s_add_u32 s29, s29, 6912')
            if st == 8 and ks == 0:
                a('s_lshl_b32 s29, s14, 7')
                a('s_lshl_b32 s30, s23, 5')
                a('s_add_u32 s29, s29, s30')
                a('s_lshl_b32 s29, s29, 1')
                a('v_lshlrev_b32 v15, 4, v4')
                a(f'buffer_load_dwordx4 {v(B1R,4)}, v15, s[52:55], s29 offen'); vm.issue('cs')
                a(f'buffer_load_dwordx4 {v(B1R+4,4)}, v15, s[52:55], s29 offen offset:32'); vm.issue('cs')
    assert not w2q, w2q
    stamp(a, 11)
    vm.wait(a, lambda x: x == 'cs')
    for q in range(8):
        a(f'v_lshlrev_b32 v{B1+2*q}, 16, v{B1R+q}')
        a(f'v_and_b32 v{B1+2*q+1}, 0xffff0000, v{B1R+q}')
    for j in range(2):
        b = ST + 4 * j
        for r in range(16):
            a(f'v_fma_f32 v{b+2}, -v{b}, v{CS+r}, v{B1+r}')
            a(f'v_fma_f32 v{ACC+16*j+r}, v{b+1}, v{ACC+16*j+r}, v{b+2}')
            a(f'v_max_f32 v{ACC+16*j+r}, 0, v{ACC+16*j+r}')
            a(f'v_mul_f32 v{ACC+16*j+r}, v{ACC+16*j+r}, v{ACC+16*j+r}')
    PK = 104
    for r in range(16):
        a(f'v_cvt_pk_bf16_f32 v{PK+r}, v{ACC+2*r}, v{ACC+2*r+1}')
    a('v_lshrrev_b32 v13, 4, v3')
    a('s_mov_b32 s18, 55296')
    a('v_mul_lo_u32 v13, v13, s18')
    a('v_and_b32 v14, 15, v3')
    a('v_lshl_add_u32 v13, v14, 4, v13')
    a('v_lshl_add_u32 v13, v4, 8, v13')
    a('s_lshr_b32 s18, s27, 4')
    a('s_mul_i32 s18, s18, 55296')
    a('s_lshl_b32 s17, s14, 2')
    a('s_add_u32 s17, s17, s23')
    a('s_cmp_ge_u32 s17, 54')
    a('s_cselect_b32 s19, 0x40000000, 0')
    a('s_lshl_b32 s17, s17, 10')
    a('s_add_u32 s17, s17, s18')
    a(f's_add_u32 s17, s17, {WS_G}')
    a('s_add_u32 s17, s17, s19')
    a(f's_add_u32 s18, s17, {2*55296}')
    stores2(a, [f'buffer_store_dwordx4 {v(PK,4)}, v13, s[8:11], s17 offen',
                f'buffer_store_dwordx4 {v(PK+4,4)}, v13, s[8:11], s17 offen offset:512',
                f'buffer_store_dwordx4 {v(PK+8,4)}, v13, s[8:11], s18 offen',
                f'buffer_store_dwordx4 {v(PK+12,4)}, v13, s[8:11], s18 offen offset:512'])

def phase_ffn2(a, L, published):
    NST = 7
    vm = VM()
    BF, ACC, AF, T = 16, 128, 168, 16
    def pre():
        lx = lab('w7')
        a('s_cmp_lg_u32 s12, 7')
        a(f's_cbranch_scc1 {lx}')
        a(f's_sub_u32 s47, s47, {(27 + 3)*1024}')
        a(f's_sub_u32 s48, s48, {7*5120}')
        for st in (2, 3):
            for ft in range(5):
                for x in w2_dma(st, ft): a(x)
        a(f's_add_u32 s47, s47, {(27 + 3)*1024}')
        a(f's_add_u32 s48, s48, {7*5120}')
        a.label(lx)
        for st in (2, 3):
            for ft in range(5):
                for x in w2_dma(st, ft): a(x)
    def mask():
        a(f's_and_b32 s40, s{SJ}, 2')
        a('s_cmp_eq_u32 s40, 0')
        a('s_mov_b32 s44, 0x0aaaaaaa')
        a('s_cselect_b32 s44, 0x05555555, s44')
        a('s_mov_b32 s45, 0')
    a(f's_and_b32 s20, s{SJ}, 3')
    a(f's_lshr_b32 s21, s{SJ}, 2')
    a('s_and_b32 s22, s12, 3')
    a('s_lshr_b32 s23, s12, 2')
    a(f's_lshl_b32 s29, s{SG}, 4')
    a('s_lshl_b32 s30, s20, 2')
    a('s_add_u32 s29, s29, s30')
    a('s_add_u32 s29, s29, s22')
    a('s_mul_i32 s32, s29, 55296')
    a('s_mul_i32 s33, s23, 27648')
    a('s_add_u32 s32, s32, s33')
    a(f's_add_u32 s32, s32, {WS_G}')
    a('s_mul_i32 s34, s23, 20480')
    a('v_add_u32 v8, s34, v10')
    a('v_add_u32 v9, 0x10000, v8')
    a('v_add_u32 v11, 0x20000, v8')
    srd(a, 52, 70, D * 2)
    sync(a, 2 if published else None, 2, mask, pre, w0_prefetch=False)
    return vm

def ffn2_body(a, L):
    NST = 7
    vm = VM()
    for st in (0, 1, 2, 3):
        for ft in range(5): vm.issue(('w', st))
    BF, ACC, AF, T, HR, BB = 16, 124, 144, 184, 200, 208
    if 'f1stamp' not in gen.EXP: stamp(a, 12)
    def bload(i):
        a(f's_add_u32 s33, s32, {i*1024}')
        a(f'buffer_load_dwordx4 {v(BF+4*i,4)}, v10, s[8:11], s33 offen sc1')
        vm.issue(('b', i))
    NB0 = 6
    for i in range(NB0): bload(i)
    bq = list(range(NB0, 27))
    wq = [(st, ft) for st in range(4, 7) for ft in range(5)]
    def areads(ks, buf):
        st, i = ks >> 2, ks & 3
        for ft in range(5):
            off = F2_SLOT[st] + i * 5120 + ft * 1024
            base = {0: 8, 1: 9, 2: 11}[off >> 16]
            a(f'ds_read_b128 {v(AF+20*buf+4*ft,4)}, v{base} offset:{off & 65535}')
    F2S = 'f2stamp' in gen.EXP
    BX = 6
    if F2S: stamp(a, 2)
    vm.wait(a, lambda x: x == ('w', 0))
    a('s_barrier')
    if F2S: stamp(a, 3)
    areads(0, 0)
    for ks in range(27):
        if F2S and ks in (1, 4, 8, 12, 16, 20, 24): stamp(a, {1: 4, 4: 5, 8: 7, 12: 8, 16: 9, 20: 10, 24: 11}[ks])
        st, i = ks >> 2, ks & 3
        buf = ks & 1
        nxt = ks + 1
        if nxt < 27:
            if (nxt & 3) == 0:
                a('s_waitcnt lgkmcnt(0)')
                vm.wait(a, lambda x: x == ('w', nxt >> 2))
                a('s_barrier')
                areads(nxt, buf ^ 1)
                vm.wait(a, lambda x: x == ('b', ks))
            else:
                areads(nxt, buf ^ 1)
                vm.wait(a, lambda x: x == ('b', ks), ' lgkmcnt(5)')
        else:
            vm.wait(a, lambda x: x == ('b', ks), ' lgkmcnt(0)')
        for ft in range(5):
            acc = v(ACC + 4 * ft, 4)
            a(f'v_mfma_f32_16x16x32_bf16 {acc}, {v(AF+20*buf+4*ft,4)}, {v(BF+4*ks,4)}, {"0" if ks == 0 else acc}')
            if 'oldb' in gen.EXP:
                if ft in (1, 3) and bq and bq[0] <= ks + 12: bload(bq.pop(0))
            elif 'midb' in gen.EXP:
                if (ft == 1 or (ft == 3 and ks < BX)) and bq and bq[0] <= ks + 10: bload(bq.pop(0))
            elif ft == 1 and bq: bload(bq.pop(0))
            WS_ = (0, 2, 4) if ('oldb' in gen.EXP or 'midb' in gen.EXP) else ((2, 4) if (ks & 3) == 3 else (3,))
            if ft in WS_ and wq and (wq[0][0] - 4) < st + (1 if (nxt & 3) == 0 and nxt < 27 else 0):
                x_ = wq.pop(0)
                for x in w2_dma(*x_): a(x)
                vm.issue(('w', x_[0]))
        if ks == 21 and 'wbB' in gen.EXP:
            lw, lw2 = lab('wb'), lab('wb')
            a(f's_cmp_lg_u32 s{SJ}, 0'); a(f's_cbranch_scc1 {lw}')
            a('s_cmp_lg_u32 s12, 7'); a(f's_cbranch_scc1 {lw}')
            a('buffer_wbl2 sc1')
            a(f's_branch {lw2}')
            a.label(lw)
            a('buffer_load_dword v255, v10, s[8:11], s38 offen')
            a.label(lw2)
            vm.issue('wb')
        if ks == 20:
            a('v_and_b32 v5, 15, v2')
            a('v_lshrrev_b32 v6, 4, v2')
            a('s_mul_i32 s34, s29, 20480')
            a('s_mul_i32 s35, s21, 2560')
            a('s_add_u32 s34, s34, s35')
            a('s_mul_i32 s35, s23, 1536')
            a('s_add_u32 s34, s34, s35')
            a(f's_add_u32 s34, s34, {WS_H}')
            a('v_lshrrev_b32 v12, 1, v6')
            a('v_lshlrev_b32 v12, 8, v12')
            a('v_lshl_add_u32 v12, v5, 4, v12')
            a('v_and_b32 v13, 1, v6')
            a('v_lshl_add_u32 v12, v13, 3, v12')
            for i_ in range(3):
                a(f'buffer_load_dwordx2 {v(HR+2*i_,2)}, v12, s[8:11], s34 offen offset:{512*i_} sc1'); vm.issue('hr')
            a('s_mul_i32 s35, s21, 160')
            a('s_mul_i32 s36, s23, 96')
            a('s_add_u32 s35, s35, s36')
            a('v_lshlrev_b32 v13, 3, v6')
            for i_ in range(3):
                a(f'buffer_load_dwordx2 {v(BB+2*i_,2)}, v13, s[52:55], s35 offen offset:{32*i_}'); vm.issue('hr')
    assert not bq and not wq, (bq, wq)
    if 'f1stamp' not in gen.EXP: stamp(a, 13)
    XB = 81920
    a('s_mul_i32 s40, s12, 3072')
    a(f's_add_u32 s40, s40, {XB}')
    a('v_add_u32 v14, s40, v10')
    l1, l2 = lab('fx'), lab('fx')
    a('s_nop 7')
    a('s_cmp_eq_u32 s23, 0')
    a(f's_cbranch_scc0 {l1}')
    for i_, ft in enumerate((3, 4)): a(f'ds_write_b128 v14, {v(ACC+4*ft,4)} offset:{1024*i_}')
    a(f's_branch {l2}')
    a.label(l1)
    for ft in range(3): a(f'ds_write_b128 v14, {v(ACC+4*ft,4)} offset:{1024*ft}')
    a('s_waitcnt lgkmcnt(0)')
    for r in range(8): a(f'v_mov_b32 v{ACC+r}, v{ACC+12+r}')
    a.label(l2)
    a('s_xor_b32 s40, s12, 4')
    a('s_mul_i32 s40, s40, 3072')
    a(f's_add_u32 s40, s40, {XB}')
    a('v_add_u32 v14, s40, v10')
    a('s_waitcnt lgkmcnt(0)')
    a('s_barrier')
    for i_ in range(3): a(f'ds_read_b128 {v(T+4*i_,4)}, v14 offset:{1024*i_}')
    vm.wait(a, lambda x: x == 'hr', ' lgkmcnt(0)')
    for r in range(12): a(f'v_add_f32 v{ACC+r}, v{ACC+r}, v{T+r}')
    for i_ in range(3):
        for h2 in range(2):
            a(f'v_lshlrev_b32 v{T}, 16, v{HR+2*i_+h2}')
            a(f'v_and_b32 v{T+1}, 0xffff0000, v{HR+2*i_+h2}')
            a(f'v_lshlrev_b32 v{T+2}, 16, v{BB+2*i_+h2}')
            a(f'v_and_b32 v{T+3}, 0xffff0000, v{BB+2*i_+h2}')
            a(f'v_add_f32 v{ACC+4*i_+2*h2}, v{ACC+4*i_+2*h2}, v{T+2}')
            a(f'v_add_f32 v{ACC+4*i_+2*h2+1}, v{ACC+4*i_+2*h2+1}, v{T+3}')
            a(f'v_add_f32 v{ACC+4*i_+2*h2}, v{ACC+4*i_+2*h2}, v{T}')
            a(f'v_add_f32 v{ACC+4*i_+2*h2+1}, v{ACC+4*i_+2*h2+1}, v{T+1}')
    for i_ in range(6): a(f'v_cvt_pk_bf16_f32 v{T+4+i_}, v{ACC+2*i_}, v{ACC+2*i_+1}')
    a('s_lshl_b32 s33, s29, 4')
    a('v_add_u32 v7, s33, v5')
    a('s_movk_i32 s34, 1280')
    a('v_mul_lo_u32 v7, v7, s34')
    a('v_lshl_add_u32 v7, v6, 3, v7')
    a('s_mul_i32 s34, s21, 160')
    a('s_mul_i32 s35, s23, 96')
    a('s_add_u32 s34, s34, s35')
    a('s_cmp_eq_u32 s23, 0')
    a('s_cselect_b32 s35, s34, 0x7ff00000')
    OW = ' sc1' if 'outsc1' in gen.EXP else (' nt' if 'outnt' in gen.EXP else '')
    a(f'buffer_store_dwordx2 {v(T+4,2)}, v7, s[76:79], s34 offen' + OW)
    a(f'buffer_store_dwordx2 {v(T+6,2)}, v7, s[76:79], s34 offen offset:32' + OW)
    a(f'buffer_store_dwordx2 {v(T+8,2)}, v7, s[76:79], s35 offen offset:64' + OW)

def kf():
    a = Asm()
    merged = 'merge' in gen.EXP
    L = NAME + '_kernel' if merged else 'kf_kernel'
    kernel_begin(a, L)
    a('s_cmp_ge_u32 s2, 256')
    a(f's_cbranch_scc1 {L}_end')
    if merged:
        import gen5
        if gen.PROF: a('v_mov_b32 v254, v0')
        gen5.k1s(a, '.Ljoin')
        a.label('.Ljoin')
        a('s_waitcnt vmcnt(0) lgkmcnt(0)')
        a('s_barrier')
        if gen.PROF:
            srd(a, 8, 4, WS_END)
            stamp_flush(a, 1, 12, 8, 12)
            a('v_mov_b32 v0, v254')
            a('s_waitcnt vmcnt(0)')
        lj, lp, ld = lab('gb'), lab('gb'), lab('gb')
        a('s_cmp_lg_u32 s12, 0')
        a(f's_cbranch_scc1 {lj}')
        a(f's_load_dwordx2 s[20:21], s[0:1], {A_DBG}')
        a('s_and_b32 s40, s2, 7')
        a('s_lshl_b32 s40, s40, 5')
        a('v_mov_b32 v5, s40')
        a('v_mov_b32 v6, 1')
        a('v_and_b32 v7, 7, v0')
        a('v_lshlrev_b32 v7, 5, v7')
        a('s_waitcnt lgkmcnt(0)')
        a('s_mov_b64 exec, 1')
        a('global_atomic_add v5, v6, s[20:21] sc1')
        a('s_mov_b64 exec, 0xff')
        a('s_mov_b32 s41, 0')
        a.label(lp)
        a('global_load_dword v8, v7, s[20:21] sc1')
        a('s_add_u32 s41, s41, 1')
        a('s_waitcnt vmcnt(0)')
        a('v_cmp_ne_u32 vcc, 32, v8')
        a(f's_cbranch_vccz {ld}')
        a(f's_cmp_lt_u32 s41, {SPIN_MAX}')
        a(f's_cbranch_scc1 {lp}')
        a.label(ld)
        a('s_mov_b64 exec, -1')
        a.label(lj)
        a('s_barrier')
    stamp(a, 0, True); stamp(a, 1)
    if 'dbg' in gen.EXP:
        a('s_memrealtime s[90:91]'); a('s_memtime s[92:93]'); a(f's_load_dwordx2 s[94:95], s[0:1], {A_DBG}')
    if 'nocodepf' not in gen.EXP and not merged:
        code_touch(a, L, '.Lkf_last', '.Lpc_kf', 144, 151, 2)
    a(f's_load_dwordx2 s[4:5], s[0:1], {A_WS}')
    a(f's_load_dwordx2 s[68:69], s[0:1], {A_X}')
    a(f's_load_dwordx2 s[70:71], s[0:1], {A_OUT}')
    a(f's_and_b32 s{SG}, s2, 7')
    a(f's_lshr_b32 s{SJ}, s2, 3')
    a(f's_mov_b32 s{SH}, s{SJ}')
    a(f's_mov_b32 s{SR}, s{SG}')
    a('v_lshrrev_b32 v1, 6, v0')
    a('v_and_b32 v2, 63, v0')
    a('v_readfirstlane_b32 s12, v1')
    a('v_and_b32 v3, 31, v2')
    a('v_lshrrev_b32 v4, 5, v2')
    a(f's_getreg_b32 s{SPURE}, hwreg(HW_REG_XCC_ID, 0, 4)')
    a(f's_add_u32 s{SPURE}, s{SPURE}, 1')
    attn_setup(a, SH, SR, 12, 8, defer=True)
    a('s_waitcnt lgkmcnt(0)')
    srd(a, 8, 4, WS_END)
    attn_dma(a, 0, 8)
    attn_qloads(a, 8)
    srd(a, 72, 68, S * D * 2)
    srd(a, 76, 70, S * D * 2)
    a(f's_load_dwordx2 s[68:69], s[0:1], {A_B1}')
    a(f's_load_dwordx2 s[70:71], s[0:1], {A_B2}')
    stamp(a, 2)
    phase_attn(a, L)
    phase_oproj(a)
    stamp(a, 5)
    a(f's_cmp_ge_u32 s{SJ}, 28')
    a(f's_cbranch_scc1 {L}_idle')
    phase_ffn1(a, None)
    phase_ffn2(a, L, True)
    a(f's_branch {L}_f2')
    a.label(f'{L}_idle')
    a('s_waitcnt vmcnt(0)')
    a('s_barrier')
    li = lab('id')
    a('s_cmp_lg_u32 s12, 0')
    a(f's_cbranch_scc1 {li}')
    flag_store(a, 1, 14)
    a.label(li)
    if 'wbA' in gen.EXP:
        lw = lab('wb')
        a(f's_cmp_lg_u32 s{SJ}, 28'); a(f's_cbranch_scc1 {lw}')
        a('s_cmp_lg_u32 s12, 1'); a(f's_cbranch_scc1 {lw}')
        a('s_sleep 40')
        a('buffer_wbl2 sc1')
        a('s_waitcnt vmcnt(0)')
        a.label(lw)
    w2_setup(a)
    for st in (0, 1):
        for ft in range(5):
            for x in w2_dma(st, ft): a(x)
    a('s_waitcnt vmcnt(0)')
    phase_ffn2(a, L, False)
    a.label(f'{L}_f2')
    ffn2_body(a, L)
    a.label(f'{L}_fin')
    if 'f1stamp' not in gen.EXP: stamp(a, 14)
    if 'dbg' in gen.EXP:
        a('s_waitcnt vmcnt(0)')
        a('s_memrealtime s[96:97]'); a('s_memtime s[86:87]'); a('s_waitcnt lgkmcnt(0)')
        ldb = lab('db')
        a('s_cmp_lg_u32 s2, 0'); a(f's_cbranch_scc1 {ldb}'); a('s_cmp_lg_u32 s12, 0'); a(f's_cbranch_scc1 {ldb}')
        a('s_sub_u32 s96, s96, s90'); a('s_sub_u32 s86, s86, s92')
        a('v_mov_b32 v0, 0'); a('v_mov_b32 v2, s96'); a('v_mov_b32 v3, s86'); a('v_mov_b32 v4, s90'); a('v_mov_b32 v5, 0')
        a('global_store_dwordx4 v0, v[2:5], s[94:95] offset:16')
        a(f's_mov_b32 s86, {WS_PROF}')
        a('buffer_load_dwordx4 v[6:9], v0, s[8:11], s86 offen')
        a('s_waitcnt vmcnt(0)')
        a('global_store_dwordx4 v0, v[6:9], s[94:95]')
        a.label(ldb)
    if gen.PROF: a('s_waitcnt vmcnt(0)')
    stamp(a, 6, True)
    if 'dbgst' in gen.EXP:
        ldb = lab('db')
        a(f's_load_dwordx2 s[20:21], s[0:1], {A_DBG}')
        a('s_waitcnt lgkmcnt(0)')
        a('s_cmp_lg_u32 s2, 8'); a(f's_cbranch_scc1 {ldb}'); a('s_cmp_lg_u32 s12, 0'); a(f's_cbranch_scc1 {ldb}')
        a('v_mbcnt_lo_u32_b32 v0, -1, 0'); a('v_mbcnt_hi_u32_b32 v0, -1, v0'); a('v_mov_b32 v1, 0')
        for i in range(16):
            src = PS + i if i != 15 else PS + 1
            a(f's_sub_u32 s22, s{src}, s{PS+1}') if i not in (0, 6) else a(f's_mov_b32 s22, s{src}')
            a('v_mov_b32 v2, s22'); a(f'v_cmp_eq_u32 vcc, {i}, v0'); a('v_cndmask_b32 v1, v1, v2, vcc')
        a('v_lshlrev_b32 v0, 2, v0')
        a('s_mov_b64 exec, 0xffff')
        a('global_store_dword v0, v1, s[20:21]')
        a('s_mov_b64 exec, -1')
        a.label(ldb)
    else:
        stamp_flush(a, 2, 15, 8, 12)
    a.label(f'{L}_end')
    a('s_endpgm')
    attn_fallback(a)
    a.label('.Lkf_last')
    a('s_endpgm')
    if merged: return a, descriptor(L, 256, 102), '; @launch grid=(256,1,1) block=(512,1,1) lds=163840'
    return a, descriptor(L, 256, 102), f'; @launch kernel={L} grid=(256,1,1) block=(512,1,1) lds=163840'

if __name__ == '__main__':
    if 'prof' in sys.argv: gen.PROF = True
    for x in sys.argv[2:]:
        if x.startswith('x:'): gen.EXP.add(x[2:])
    out = sys.argv[1]
    import gen4, gen5
    ks_ = [kf] if 'merge' in gen.EXP else ([k0, k1, kf] if 'old' in gen.EXP else [gen4.k1p if 'k1p' in gen.EXP else gen5.k1s, kf])
    open(out, 'w').write(build(ks_))
    print('wrote', out)
```

```python
import sys
sys.path.insert(0, 'dev')
import gen
from gen import *
from gen2 import lab
from gen3 import VM
from asmlib import *

PK_LDS = 131072
TB_LDS = PK_LDS + 24576
ST_T = TB_LDS
CS_T = TB_LDS + 1024

def k1s(a=None, join=None):
    WT = '' if 'k1plain' in gen.EXP else ' sc1'
    merged = a is not None
    L = 'k1_kernel' if not merged else '.Lk1'
    NS = 4
    if not merged:
        a = Asm()
        kernel_begin(a, L)
        a('s_cmp_ge_u32 s2, 256')
        a(f's_cbranch_scc1 {L}_end')
    def finish():
        if merged: a(f's_branch {join}')
        else: a('s_endpgm')
    stamp(a, 0, True); stamp(a, 1)
    if not merged and 'nok1pf' not in gen.EXP:
        code_touch(a, L, '.Lkf_last' if 'k1pfall' in gen.EXP else f'{L}_end', '.Lpc_k1', 144, 151, 2 if 'k1pfall' in gen.EXP else 1)
    a(f's_load_dwordx2 s[24:25], s[0:1], {A_X}')
    a(f's_load_dwordx2 s[26:27], s[0:1], {A_WQKV}')
    a(f's_load_dwordx2 s[4:5], s[0:1], {A_WS}')
    a(f's_load_dwordx2 s[28:29], s[0:1], {A_WO}')
    a(f's_load_dwordx2 s[30:31], s[0:1], {A_W1}')
    a(f's_load_dwordx2 s[32:33], s[0:1], {A_W2}')
    a('s_and_b32 s15, s2, 7')
    a('s_lshr_b32 s16, s2, 3')
    a('s_and_b32 s13, s15, 3')
    a('s_lshl_b32 s13, s13, 2')
    a('s_and_b32 s17, s16, 3')
    a('s_add_u32 s13, s13, s17')
    a('s_lshr_b32 s14, s15, 2')
    a('s_lshl_b32 s14, s14, 3')
    a('s_lshr_b32 s17, s16, 2')
    a('s_add_u32 s14, s14, s17')
    a('v_lshrrev_b32 v1, 6, v0')
    a('v_and_b32 v2, 63, v0')
    a('v_readfirstlane_b32 s12, v1')
    a('v_and_b32 v3, 31, v2')
    a('v_lshrrev_b32 v4, 5, v2')
    a('v_lshlrev_b32 v10, 4, v2')
    a('s_and_b32 s23, s12, 3')
    if merged:
        from gen2 import WS_XT
        li = lab('in')
        a('s_cmp_lg_u32 s12, 0')
        a(f's_cbranch_scc1 {li}')
        a('s_waitcnt lgkmcnt(0)')
        srd(a, 8, 4, WS_END)
        a('s_and_b32 s40, s2, 7')
        a('s_lshl_b32 s40, s40, 7')
        a('s_lshr_b32 s41, s2, 3')
        a('s_lshl_b32 s41, s41, 2')
        a('s_add_u32 s40, s40, s41')
        a(f's_add_u32 s40, s40, {WS_FLAG}')
        a('v_lshlrev_b32 v5, 10, v2')
        a(f'v_mov_b32 v6, {WS_XT - WS_FLAG}')
        a('v_cmp_eq_u32 vcc, 3, v2')
        a('v_cndmask_b32 v5, v5, v6, vcc')
        a('s_getreg_b32 s41, hwreg(HW_REG_XCC_ID, 0, 4)')
        a('s_add_u32 s41, s41, 1')
        a('v_mov_b32 v6, 0')
        a('v_mov_b32 v7, s41')
        a('v_cndmask_b32 v6, v6, v7, vcc')
        a('s_mov_b64 exec, 15')
        a('buffer_store_dword v6, v5, s[8:11], s40 offen sc1')
        a('s_mov_b64 exec, -1')
        a.label(li)
    a('s_cmp_lt_u32 s12, 4')
    a(f's_cbranch_scc1 {L}_compute')
    a('v_lshrrev_b32 v5, 3, v2')
    a('s_lshl_b32 s40, s23, 3')
    a('v_add_u32 v5, s40, v5')
    a('v_lshrrev_b32 v6, 4, v2')
    a('s_lshl_b32 s40, s23, 2')
    a('v_add_u32 v7, s40, v6')
    a('v_and_b32 v7, 7, v7')
    a('v_and_b32 v8, 7, v2')
    a('v_xor_b32 v7, v7, v8')
    a('s_movk_i32 s40, 1280')
    a('v_mul_lo_u32 v5, v5, s40')
    a('v_lshl_add_u32 v5, v7, 4, v5')
    a('s_mul_i32 s35, s13, 163840')
    a('s_lshl_b32 s40, s23, 2')
    a('v_add_u32 v7, s40, v6')
    a('s_movk_i32 s40, 3840')
    a('v_mul_lo_u32 v7, v7, s40')
    a('v_and_b32 v8, 15, v2')
    a('v_lshlrev_b32 v9, 2, v6')
    a('v_xor_b32 v8, v8, v9')
    a('v_lshl_add_u32 v6, v8, 4, v7')
    a('s_lshl_b32 s36, s14, 8')
    a('s_lshl_b32 s37, s23, 10')
    a('s_waitcnt lgkmcnt(0)')
    srd(a, 56, 24, S * D * 2)
    srd(a, 60, 26, D * 3 * D * 2)
    srd(a, 8, 4, WS_END)
    def operand_touch(srdx, srdw, vt, vd):
        if 'notouchk1' in gen.EXP: return 0
        lx, ld_ = lab('ot'), lab('ot')
        a('s_sub_u32 s40, s12, 4')
        a('s_cmp_lt_u32 s40, 3')
        a(f's_cbranch_scc0 {lx}')
        a('s_lshl_b32 s40, s40, 6')
        a(f'v_add_u32 v{vt}, s40, v2')
        a(f's_mov_b32 s41, {magic(10)}')
        a(f'v_mul_hi_u32 v{vt+1}, v{vt}, s41')
        a(f'v_mul_u32_u24 v{vt+2}, 10, v{vt+1}')
        a(f'v_sub_u32 v{vt+2}, v{vt}, v{vt+2}')
        a('s_lshr_b32 s41, s16, 2')
        a('s_lshl_b32 s41, s41, 4')
        a('s_lshl_b32 s40, s13, 7')
        a('s_add_u32 s41, s41, s40')
        a(f'v_add_u32 v{vt+1}, s41, v{vt+1}')
        a('s_movk_i32 s41, 1280')
        a(f'v_mul_lo_u32 v{vt+1}, v{vt+1}, s41')
        a(f'v_lshl_add_u32 v{vt+1}, v{vt+2}, 7, v{vt+1}')
        a(f'v_mov_b32 v{vt+2}, 0x7ff00000')
        a(f'v_cmp_gt_u32 vcc, 160, v{vt}')
        a(f'v_cndmask_b32 v{vt+1}, v{vt+2}, v{vt+1}, vcc')
        a(f'buffer_load_dword v{vd}, v{vt+1}, s[{srdx}:{srdx+3}], 0 offen')
        a(f's_branch {ld_}')
        a.label(lx)
        a('s_add_u32 s40, s12, 1')
        a('s_cmp_eq_u32 s12, 7')
        a('s_cselect_b32 s40, 0, s40')
        a('s_lshl_b32 s40, s40, 6')
        a(f'v_add_u32 v{vt}, s40, v2')
        a(f'v_lshrrev_b32 v{vt+1}, 1, v{vt}')
        a('s_and_b32 s41, s16, 3')
        a('s_mul_i32 s41, s41, 160')
        a(f'v_add_u32 v{vt+1}, s41, v{vt+1}')
        a('s_movk_i32 s41, 3840')
        a(f'v_mul_lo_u32 v{vt+1}, v{vt+1}, s41')
        a(f'v_and_b32 v{vt+2}, 1, v{vt}')
        a(f'v_lshl_add_u32 v{vt+1}, v{vt+2}, 7, v{vt+1}')
        a('s_lshl_b32 s41, s14, 8')
        a('s_cmp_lt_u32 s14, 15')
        a('s_cselect_b32 s41, s41, 0x7ff00000')
        a(f'buffer_load_dword v{vd}, v{vt+1}, s[{srdw}:{srdw+3}], s41 offen')
        a.label(ld_)
        return 1
    vm = VM()
    def dma(st, k):
        slot = (st % NS) * 32768
        if k < 4:
            a(f's_add_u32 m0, s37, {slot + k*4096}')
            a(f's_add_u32 s38, s35, {st*128 + k*32*1280}')
            a('buffer_load_dwordx4 v5, s[56:59], s38 offen lds')
        else:
            a(f's_add_u32 m0, s37, {slot + 16384 + (k-4)*4096}')
            a(f's_add_u32 s38, s36, {(st*64 + (k-4)*16)*3840}')
            a('buffer_load_dwordx4 v6, s[60:63], s38 offen lds')
        vm.issue(('r', st))
    def decode():
        l1_, l2_, ld = lab('pk'), lab('pk'), lab('pk')
        a('s_cmp_lt_u32 s2, 40')
        a(f's_cbranch_scc0 {l1_}')
        srd(a, 64, 28, D * D * 2)
        a(f's_mul_hi_u32 s46, s2, {magic(10)}')
        a('s_mul_i32 s47, s46, 10')
        a('s_sub_u32 s47, s2, s47')
        a('s_movk_i32 s41, 160'); a('s_movk_i32 s42, 1280'); a(f's_mov_b32 s44, {WS_WO}'); a('s_movk_i32 s45, 20480')
        a(f's_branch {ld}')
        a.label(l1_)
        a('s_cmp_lt_u32 s2, 148')
        a(f's_cbranch_scc0 {l2_}')
        srd(a, 64, 30, D * F * 2)
        a('s_sub_u32 s40, s2, 40')
        a(f's_mul_hi_u32 s46, s40, {magic(27)}')
        a('s_mul_i32 s47, s46, 27')
        a('s_sub_u32 s47, s40, s47')
        a('s_movk_i32 s41, 160'); a('s_movk_i32 s42, 3456'); a(f's_mov_b32 s44, {WS_W1}'); a('s_movk_i32 s45, 20480')
        a(f's_branch {ld}')
        a.label(l2_)
        srd(a, 64, 32, F * D * 2)
        a('s_sub_u32 s40, s2, 148')
        a(f's_mul_hi_u32 s46, s40, {magic(10)}')
        a('s_mul_i32 s47, s46, 10')
        a('s_sub_u32 s47, s40, s47')
        a('s_movk_i32 s41, 192'); a('s_movk_i32 s42, 1280'); a(f's_mov_b32 s44, {WS_W2}'); a('s_mov_b32 s45, 55296')
        a.label(ld)
        a('s_mul_i32 s43, s46, s41')
        a('s_lshr_b32 s48, s43, 3')
        a('s_mul_i32 s43, s43, s42')
        a('s_lshl_b32 s40, s47, 7')
        a('s_add_u32 s43, s43, s40')
        a('s_lshl_b32 s40, s47, 2')
        a('s_mul_i32 s40, s40, s45')
        a('s_add_u32 s44, s44, s40')
        a('s_lshl_b32 s40, s48, 8')
        a('s_add_u32 s44, s44, s40')
    def pack_dma_setup():
        a('v_lshrrev_b32 v11, 3, v2')
        a('s_lshl_b32 s40, s23, 3')
        a('v_add_u32 v11, s40, v11')
        a('v_mul_lo_u32 v11, v11, s42')
        a('v_and_b32 v12, 7, v2')
        a('v_lshl_add_u32 v11, v12, 4, v11')
        a('s_cmp_lt_u32 s2, 238')
        a('s_cselect_b32 s49, s43, 0x7ff00000')
        a('s_lshl_b32 s50, s42, 5')
    def pack_dma_one(i):
        a(f's_add_u32 m0, s37, {PK_LDS + i*4096}')
        a('s_nop 0')
        a('buffer_load_dwordx4 v11, s[64:67], s49 offen lds')
        a('s_add_u32 s49, s49, s50')
    def pack_dma():
        pack_dma_setup()
        for i in range(6): pack_dma_one(i)
    def pack_setup():
        a('v_lshrrev_b32 v12, 4, v2')
        a('v_lshrrev_b32 v13, 2, v2')
        a('v_and_b32 v13, 3, v13')
        a('v_lshl_add_u32 v12, v12, 3, v13')
        a('v_lshlrev_b32 v12, 7, v12')
        a('v_and_b32 v13, 3, v2')
        a('v_lshl_add_u32 v12, v13, 3, v12')
        a('s_lshl_b32 s49, s23, 5')
        a(f's_add_u32 s49, s49, {PK_LDS}')
        a('v_add_u32 v12, s49, v12')
        a('s_mul_i32 s54, s23, s45')
        a('s_add_u32 s54, s54, s44')
        a('s_cmp_lt_u32 s2, 238')
        a('s_cselect_b32 s54, s54, 0x7ff00000')
        a('s_cmp_gt_u32 s41, 160')
        a('s_cselect_b32 s55, s54, 0x7ff00000')
    def pack_read(i, T):
        a(f'ds_read_b64_tr_b16 {v(T,2)}, v12 offset:{i*4096}')
        a(f'ds_read_b64_tr_b16 {v(T+2,2)}, v12 offset:{i*4096 + 512}')
    def pack_store(i, T):
        a(f's_add_u32 s49, {"s54" if i < 5 else "s55"}, {i*1024}')
        a(f'buffer_store_dwordx4 {v(T,4)}, v10, s[8:11], s49 offen' + WT)
    def pack_work(T):
        pack_setup()
        for i in range(6): pack_read(i, T + 4*i)
        a('s_waitcnt lgkmcnt(0)')
        for i in range(6): pack_store(i, T + 4*i)
    lz = f'{L}_nogemm'
    a('s_cmp_ge_u32 s14, 15')
    a(f's_cbranch_scc1 {lz}')
    for st in range(2):
        for k in range(4): dma(st, k)
    if operand_touch(56, 60, 96, 100): vm.issue('touch')
    decode()
    pack_dma_setup()
    VB = 14
    a('v_lshrrev_b32 v7, 1, v3')
    a('v_and_b32 v7, 7, v7')
    a('s_lshl_b32 s40, s23, 12')
    a('v_lshlrev_b32 v8, 7, v3')
    a('v_add_u32 v8, s40, v8')
    for ks in range(4):
        a(f'v_or_b32 v9, {2*ks}, v4')
        a('v_xor_b32 v9, v9, v7')
        a(f'v_lshl_add_u32 v{VB+ks}, v9, 4, v8')
        a(f'v_add_u32 v{VB+4+ks}, 0x10000, v{VB+ks}')
    XS, S1, T = 24, 40, 44
    for r in range(4): a(f'v_mov_b32 v{S1+r}, 0')
    pend = [(st, k) for st in range(2, 10) for k in range(4)]
    stamp(a, 2)
    vm.wait(a, lambda x: x == ('r', 0))
    a('s_barrier')
    stamp(a, 3)
    for st in range(10):
        off = (st % NS) * 32768
        hi = off >= 65536
        if hi: off -= 65536
        for ks in range(4): a(f'ds_read_b128 {v(XS+4*ks,4)}, v{VB+(4 if hi else 0)+ks} offset:{off}')
        n_iss = 8 if st == 0 else 4
        todo = []
        while pend and pend[0][0] <= st + NS - 1 and len(todo) < n_iss: todo.append(pend.pop(0))
        if todo: dma(*todo.pop(0))
        a('s_waitcnt lgkmcnt(0)')
        for r in range(16):
            src = XS + r; t = T + 2 * (r & 1); acc = S1 + (r & 1)
            if 'k1nostat' not in gen.EXP:
                a(f'v_lshlrev_b32 v{t}, 16, v{src}'); a(f'v_and_b32 v{t+1}, 0xffff0000, v{src}')
                a(f'v_add_f32 v{acc}, v{acc}, v{t}'); a(f'v_fmac_f32 v{acc+2}, v{t}, v{t}')
                a(f'v_add_f32 v{acc}, v{acc}, v{t+1}'); a(f'v_fmac_f32 v{acc+2}, v{t+1}, v{t+1}')
            if todo and ((r & 3) == 3 or (st == 0 and (r & 1))): dma(*todo.pop(0))
        while todo: dma(*todo.pop(0))
        if st <= 2 and 'k1nopk' not in gen.EXP:
            for i in (2*st, 2*st+1):
                pack_dma_one(i); vm.issue('pk')
        if st + 1 < 10:
            if st == 3 and 'k1nopk' not in gen.EXP: vm.wait(a, lambda x: x == ('r', 4) or x == 'pk')
            else: vm.wait(a, lambda x: x == ('r', st + 1))
            a('s_barrier')
    a(f'v_add_f32 v{S1}, v{S1}, v{S1+1}')
    a(f'v_add_f32 v{S1+2}, v{S1+2}, v{S1+3}')
    for r in (0, 2):
        a(f'v_mov_b32 v{T}, v{S1+r}'); a(f'v_mov_b32 v{T+1}, v{S1+r}')
        a(f'v_permlane32_swap_b32 v{T}, v{T+1}')
        a(f'v_add_f32 v{S1+r}, v{T}, v{T+1}')
    a(f'v_mul_f32 v{S1}, {f2hex(1.0/640)}, v{S1}')
    a(f'v_mul_f32 v{S1+1}, {f2hex(1.0/640)}, v{S1+2}')
    a(f'v_fma_f32 v{S1+1}, -v{S1}, v{S1}, v{S1+1}')
    a(f'v_add_f32 v{S1+1}, 0x3727c5ac, v{S1+1}')
    a(f'v_rsq_f32 v{S1+1}, v{S1+1}')
    a(f'v_mul_f32 v{S1}, v{S1}, v{S1+1}')
    a('s_lshl_b32 s40, s23, 7')
    a(f's_add_u32 s40, s40, {ST_T}')
    a('v_lshlrev_b32 v7, 2, v3')
    a('v_add_u32 v7, s40, v7')
    a(f'ds_write_b32 v7, v{S1}')
    a(f'ds_write_b32 v7, v{S1+1} offset:512')
    a('s_waitcnt lgkmcnt(0)')
    a('s_barrier')
    finish()
    a.label(lz)
    decode()
    pack_dma()
    if not merged:
        a('v_lshlrev_b32 v1, 4, v2')
        a('s_lshl_b32 s40, s23, 10')
        a('v_add_u32 v1, s40, v1')
        for r in range(4): a(f'v_mov_b32 v{100+r}, 0')
        a(f's_mov_b32 s17, {WS_FLAG}')
        a('buffer_store_dwordx4 v[100:103], v1, s[8:11], s17 offen')
        a('buffer_store_dwordx4 v[100:103], v1, s[8:11], s17 offen offset:4095' if False else 's_add_u32 s17, s17, 4096')
        a('buffer_store_dwordx4 v[100:103], v1, s[8:11], s17 offen')
    a('s_waitcnt vmcnt(0)')
    a('s_barrier')
    pack_work(48)
    finish()
    a.label(f'{L}_compute')
    a('s_cmp_ge_u32 s14, 15')
    if merged:
        lq = lab('ng')
        a(f's_cbranch_scc0 {lq}')
        a('s_barrier')
        finish()
        a.label(lq)
    else:
        a(f's_cbranch_scc1 {L}_end')
    a('s_and_b32 s21, s12, 1')
    a('s_lshr_b32 s22, s12, 1')
    a('v_lshrrev_b32 v6, 4, v2')
    a('s_lshl_b32 s40, s23, 2')
    a('v_add_u32 v7, s40, v6')
    a('s_movk_i32 s40, 3840')
    a('v_mul_lo_u32 v7, v7, s40')
    a('v_and_b32 v8, 15, v2')
    a('v_lshlrev_b32 v9, 2, v6')
    a('v_xor_b32 v8, v8, v9')
    a('v_lshl_add_u32 v6, v8, 4, v7')
    a('s_lshl_b32 s36, s14, 8')
    a('s_lshl_b32 s37, s23, 10')
    a('s_waitcnt lgkmcnt(0)')
    srd(a, 60, 26, D * 3 * D * 2)
    vc = VM()
    def wdma(st, k):
        slot = (st % NS) * 32768
        a(f's_add_u32 m0, s37, {slot + 16384 + k*4096}')
        a(f's_add_u32 s38, s36, {(st*64 + k*16)*3840}')
        a('buffer_load_dwordx4 v6, s[60:63], s38 offen lds')
        vc.issue(('r', st))
    for st in range(2):
        for k in range(4): wdma(st, k)
    if operand_touch(60, 60, 136, 150): vc.issue('touch')
    base_ops = list(vc.ops)
    VB, VA = 14, 22
    a('v_lshrrev_b32 v7, 1, v3')
    a('v_and_b32 v7, 7, v7')
    a('s_lshl_b32 s40, s22, 13')
    a('v_lshlrev_b32 v8, 7, v3')
    a('v_add_u32 v8, s40, v8')
    for ks in range(4):
        a(f'v_or_b32 v9, {2*ks}, v4')
        a('v_xor_b32 v9, v9, v7')
        a(f'v_lshl_add_u32 v{VB+ks}, v9, 4, v8')
        a(f'v_add_u32 v{VB+4+ks}, 0x10000, v{VB+ks}')
    a('v_lshrrev_b32 v7, 2, v2')
    a('v_and_b32 v7, 3, v7')
    a('v_and_b32 v8, 3, v2')
    a('v_and_b32 v9, 1, v8')
    a('v_lshlrev_b32 v9, 1, v9')
    a('v_lshrrev_b32 v11, 1, v8')
    a('v_or_b32 v9, v9, v11')
    a('s_cmp_lt_u32 s14, 10')
    a('s_cselect_b64 vcc, -1, 0')
    a('v_cndmask_b32 v8, v8, v9, vcc')
    a('v_lshrrev_b32 v9, 4, v2')
    a('v_and_b32 v9, 1, v9')
    a('v_lshl_add_u32 v8, v9, 2, v8')
    a('v_lshl_add_u32 v12, v4, 3, v7')
    a('v_lshlrev_b32 v12, 8, v12')
    a('v_and_b32 v13, 1, v8')
    a('v_lshl_add_u32 v12, v13, 3, v12')
    a('v_lshrrev_b32 v8, 1, v8')
    a('v_lshlrev_b32 v11, 2, v7')
    for aa in range(2):
        a(f's_xor_b32 s40, s22, {aa}')
        a('s_lshl_b32 s41, s21, 1')
        a('s_add_u32 s40, s40, s41')
        a(f's_mov_b32 s{50+aa}, s40')
        a('s_lshl_b32 s40, s40, 2')
        a('v_add_u32 v9, s40, v8')
        a('v_xor_b32 v9, v9, v11')
        a(f'v_lshl_add_u32 v{VA+2*aa}, v9, 4, v12')
        a(f'v_add_u32 v{VA+2*aa}, 16384, v{VA+2*aa}')
        a(f'v_add_u32 v{VA+2*aa+1}, 0x10000, v{VA+2*aa}')
    SEL, CSA = 28, 32
    a(f'v_mov_b32 v{SEL}, 0')
    a('s_mov_b32 s52, 0x00020001')
    a('s_mov_b32 s53, 0x00020001')
    a('v_mov_b32 v7, 0x3f803f80')
    a(f'v_cndmask_b32 v{SEL}, v{SEL}, v7, s[52:53]')
    for r in range(1, 4): a(f'v_mov_b32 v{SEL+r}, v{SEL}')
    for r in range(4): a(f'v_mov_b32 v{CSA+r}, 0')
    ACC, FA, FB, T = 40, 104, 120, 136
    a('s_waitcnt lgkmcnt(0)')
    srd(a, 8, 4, WS_END)
    a('s_mov_b32 s56, s50'); a('s_mov_b32 s57, s51')
    decode()
    pack_setup()
    PKT, CS4, ONES = 140, 152, 156
    for r in range(4):
        a(f'v_mov_b32 v{CS4+r}, 0'); a(f'v_mov_b32 v{ONES+r}, 0x3f803f80')
    def w1_colsum_store():
        a('s_sub_u32 s40, s2, 40')
        a('s_mul_i32 s58, s46, 6912')
        a('s_lshl_b32 s59, s47, 8')
        a('s_add_u32 s58, s58, s59')
        a('s_lshl_b32 s59, s23, 6')
        a('s_add_u32 s58, s58, s59')
        a(f's_add_u32 s58, s58, {WS_CS1}')
        a('s_cmp_lt_u32 s40, 108')
        a('s_cselect_b32 s58, s58, 0x7ff00000')
        a('v_lshrrev_b32 v11, 4, v2')
        a('v_lshlrev_b32 v11, 4, v11')
        a('s_mov_b32 s52, 0x00010001')
        a('s_mov_b32 s53, 0x00010001')
        a('s_mov_b64 exec, s[52:53]')
        a(f'buffer_store_dwordx4 {v(CS4,4)}, v11, s[8:11], s58 offen' + WT)
        a('s_mov_b64 exec, -1')
    def reads(st, ks, buf):
        off = (st % NS) * 32768
        hi = 1 if off >= 65536 else 0
        off -= hi * 65536
        for aa in range(2):
            a(f'ds_read_b64_tr_b16 {v(FA+8*buf+4*aa,2)}, v{VA+2*aa+hi} offset:{off + ks*4096}')
            a(f'ds_read_b64_tr_b16 {v(FA+8*buf+4*aa+2,2)}, v{VA+2*aa+hi} offset:{off + ks*4096 + 1024}')
        bb = VB + 4 * hi + ks
        a(f'ds_read_b128 {v(FB+8*buf,4)}, v{bb} offset:{off}')
        a(f'ds_read_b128 {v(FB+8*buf+4,4)}, v{bb} offset:{off + 4096}')
    def main(swap):
        vc.ops = list(base_ops)
        pend = [(st, k) for st in range(2, 10) for k in range(4)]
        vc.wait(a, lambda x: x == ('r', 0))
        a('s_barrier')
        stamp(a, 3)
        reads(0, 0, 0)
        buf = 0
        for st in range(10):
            for ks in range(4):
                if ks < 3:
                    if st >= 4 and ks == 0 and 'k1nopk' not in gen.EXP: pack_read(st - 4, PKT)
                    reads(st, ks + 1, buf ^ 1)
                    a('s_waitcnt lgkmcnt(%d)' % (8 if (st >= 4 and ks == 0 and 'k1nopk' not in gen.EXP) else 6))
                else:
                    a('s_waitcnt lgkmcnt(0)')
                    if st + 1 < 10:
                        if 'k1stamp' in gen.EXP and st in (2, 5): stamp(a, {2: 8, 5: 10}[st])
                        vc.wait(a, lambda x: x == ('r', st + 1))
                        a('s_barrier')
                        if 'k1stamp' in gen.EXP and st in (2, 5): stamp(a, {2: 9, 5: 11}[st])
                        reads(st + 1, 0, buf ^ 1)
                for aa in range(2):
                    for j in range(2):
                        A_ = v(FA+8*buf+4*aa, 4); B_ = v(FB+8*buf+4*j, 4)
                        acc = v(ACC+32*aa+16*j, 16)
                        c = '0' if (st == 0 and ks == 0) else acc
                        if swap: a(f'v_mfma_f32_32x32x16_bf16 {acc}, {B_}, {A_}, {c}')
                        else: a(f'v_mfma_f32_32x32x16_bf16 {acc}, {A_}, {B_}, {c}')
                if 'k1nocs' not in gen.EXP: a(f'v_mfma_f32_16x16x32_bf16 {v(CSA,4)}, {v(FA+8*buf,4)}, {v(SEL,4)}, {v(CSA,4)}')
                if st >= 4 and ks == 1 and 'k1nopk' not in gen.EXP:
                    pack_store(st - 4, PKT); vc.issue('pks')
                    if st - 4 < 5: a(f'v_mfma_f32_16x16x32_bf16 {v(CS4,4)}, {v(PKT,4)}, {v(ONES,4)}, {v(CS4,4)}')
                if st == 9 and ks == 2 and 'k1nopk' not in gen.EXP:
                    w1_colsum_store(); vc.issue('pks')
                lim = st + NS - 1 + (1 if ks == 3 else 0)
                for _ in range(2 if st == 0 else 1):
                    if pend and pend[0][0] <= lim: wdma(*pend.pop(0))
                buf ^= 1
        stamp(a, 4)
        a('s_lshl_b32 s40, s56, 7')
        a(f's_add_u32 s40, s40, {CS_T}')
        a('v_and_b32 v8, 1, v2')
        a('v_lshlrev_b32 v8, 6, v8')
        a('v_lshrrev_b32 v9, 4, v2')
        a('v_lshl_add_u32 v8, v9, 4, v8')
        a('v_add_u32 v8, s40, v8')
        a('s_mov_b32 s52, 0x00030003')
        a('s_mov_b32 s53, 0x00030003')
        a('s_nop 7')
        a('s_mov_b64 exec, s[52:53]')
        a(f'ds_write_b128 v8, {v(CSA,4)}')
        a('s_mov_b64 exec, -1')
        a('s_waitcnt lgkmcnt(0)')
        a('s_barrier')
    a('s_cmp_ge_u32 s14, 10')
    a(f's_cbranch_scc1 {L}_v')
    main(False)
    C, P = 104, 136
    a('s_lshl_b32 s40, s22, 8')
    a(f's_add_u32 s40, s40, {ST_T}')
    a('v_lshlrev_b32 v7, 2, v3')
    a('v_add_u32 v7, s40, v7')
    for j in range(2):
        a(f'ds_read_b32 v{P+2*j}, v7 offset:{j*128}')
        a(f'ds_read_b32 v{P+2*j+1}, v7 offset:{512 + j*128}')
    for aa in range(2):
        a(f's_lshl_b32 s40, s{56+aa}, 7')
        a(f's_add_u32 s40, s40, {CS_T}')
        a('v_lshlrev_b32 v7, 4, v4')
        a('v_add_u32 v7, s40, v7')
        for g in range(4): a(f'ds_read_b128 {v(C+16*aa+4*g,4)}, v7 offset:{g*32}')
    a(f's_mov_b32 s40, {f2hex(QSCALE)}')
    a('s_cmp_lt_u32 s14, 5')
    a('s_cselect_b32 s40, s40, 1.0')
    a('s_waitcnt lgkmcnt(0)')
    for r in range(4): a(f'v_mul_f32 v{P+r}, s40, v{P+r}')
    a('v_lshrrev_b32 v13, 4, v3')
    a('s_movk_i32 s17, 20480')
    a('v_mul_lo_u32 v13, v13, s17')
    a('v_and_b32 v14, 15, v3')
    a('v_lshl_add_u32 v13, v14, 4, v13')
    a('v_lshl_add_u32 v13, v4, 8, v13')
    a('s_lshl_b32 s17, s13, 3')
    a('s_lshl_b32 s18, s22, 2')
    a('s_add_u32 s17, s17, s18')
    a('s_mul_i32 s17, s17, 20480')
    a(f's_mov_b32 s18, {WS_Q}')
    a(f's_mov_b32 s19, {WS_K - 80*256}')
    a('s_cmp_lt_u32 s14, 5')
    a('s_cselect_b32 s18, s18, s19')
    a('s_add_u32 s17, s17, s18')
    a('s_lshl_b32 s18, s14, 12')
    a('s_add_u32 s17, s17, s18')
    PK = 144
    for aa in range(2):
        for j in range(2):
            acc = ACC + 32 * aa + 16 * j
            for r in range(16):
                a(f'v_mul_f32 v{P+4}, v{P+2*j}, v{C+16*aa+r}')
                a(f'v_fma_f32 v{acc+r}, v{P+2*j+1}, v{acc+r}, -v{P+4}')
            pk = PK + 8 * ((2 * aa + j) & 1)
            for r in range(8): a(f'v_cvt_pk_bf16_f32 v{pk+r}, v{acc+2*r}, v{acc+2*r+1}')
            a(f's_lshl_b32 s18, s{56+aa}, 10')
            a('s_add_u32 s18, s18, s17')
            if j: a(f's_add_u32 s18, s18, {2*20480}')
            a(f'buffer_store_dwordx4 {v(pk,4)}, v13, s[8:11], s18 offen' + WT)
            a(f'buffer_store_dwordx4 {v(pk+4,4)}, v13, s[8:11], s18 offen offset:512' + WT)
    stamp(a, 5)
    if gen.PROF: a('s_waitcnt vmcnt(0)')
    stamp(a, 6); stamp(a, 7, True)
    if not merged: stamp_flush(a, 1, 12, 8, 12)
    finish()
    a.label(f'{L}_v')
    main(True)
    C = 104
    TT = 136
    for aa in range(2):
        a(f's_lshl_b32 s40, s{56+aa}, 7')
        a(f's_add_u32 s40, s40, {CS_T}')
        a('v_lshlrev_b32 v8, 2, v3')
        a('v_add_u32 v8, s40, v8')
        a(f'ds_read_b32 v{TT+aa}, v8')
    a('s_lshl_b32 s40, s22, 8')
    a(f's_add_u32 s40, s40, {ST_T}')
    a('v_lshlrev_b32 v7, 4, v4')
    a('v_add_u32 v7, s40, v7')
    for aa in range(2):
        a('s_sub_u32 s17, s14, 10')
        a('s_lshl_b32 s17, s17, 7')
        a(f's_lshl_b32 s18, s{56+aa}, 5')
        a('s_add_u32 s17, s17, s18')
        a('v_add_u32 v13, s17, v3')
        a(f's_mov_b32 s17, {magic(20)}')
        a('v_mul_hi_u32 v14, v13, s17')
        a('v_mul_u32_u24 v15, 20, v14')
        a('v_sub_u32 v15, v13, v15')
        a('s_mov_b32 s17, 81920')
        a('v_mul_lo_u32 v14, v14, s17')
        a('v_lshl_add_u32 v14, v15, 4, v14')
        a('v_mul_u32_u24 v15, 320, v4')
        a(f'v_add_u32 v{TT+2+aa}, v14, v15')
    a('s_lshl_b32 s17, s13, 3')
    a('s_lshl_b32 s18, s22, 2')
    a('s_add_u32 s17, s17, s18')
    a('s_mul_i32 s17, s17, 640')
    a(f's_add_u32 s17, s17, {WS_VT}')
    PK = 144
    for j in range(2):
        for g in range(4):
            a(f'ds_read_b128 {v(C+4*g,4)}, v7 offset:{j*128 + g*32}')
            a(f'ds_read_b128 {v(C+16+4*g,4)}, v7 offset:{512 + j*128 + g*32}')
        a('s_waitcnt lgkmcnt(0)')
        for aa in range(2):
            acc = ACC + 32 * aa + 16 * j
            for r in range(16):
                a(f'v_mul_f32 v{TT+4}, v{C+r}, v{TT+aa}')
                a(f'v_fma_f32 v{acc+r}, v{C+16+r}, v{acc+r}, -v{TT+4}')
            pk = PK + 8 * aa
            for r in range(8): a(f'v_cvt_pk_bf16_f32 v{pk+r}, v{acc+2*r}, v{acc+2*r+1}')
            for gg in range(2):
                a(f'buffer_store_dwordx4 {v(pk+4*gg,4)}, v{TT+2+aa}, s[8:11], s17 offen offset:{(2*j+gg)*640}' + ('' if 'vplain' in gen.EXP else WT))
    stamp(a, 5)
    if gen.PROF: a('s_waitcnt vmcnt(0)')
    stamp(a, 6); stamp(a, 7, True)
    if merged:
        finish()
        return
    stamp_flush(a, 1, 12, 8, 12)
    a.label(f'{L}_end')
    a('s_endpgm')
    return a, descriptor(L, 160, 102), f'; @launch kernel={L} grid=(256,1,1) block=(512,1,1) lds=163840'
```

```python
import sys
sys.path.insert(0, 'dev')
import gen, gen2
from gen import *
from gen2 import lab, stores2, attn_units, wo_dma, WS_XT, SG, SJ, SPURE, LDS_WO, SPIN_MAX
from asmlib import *

class VM:
    def __init__(self): self.ops = []
    def issue(self, tag): self.ops.append(tag)
    def count_after(self, pred):
        n = 0
        for x in reversed(self.ops):
            if pred(x): return n
            n += 1
        raise Exception('no op matches')
    def wait(self, a, pred, extra=''):
        a(f's_waitcnt vmcnt({min(self.count_after(pred), 63)}){extra}')

XR0 = 136
W1A, W1B = 152, 16
def w1reg(s): return W1A + 4 * s if s < 26 else W1B + 4 * (s - 26)
SH, SR = 36, 37
S_OOB = 38
S_DONE = 39
FB_LDS = 159744
S_W1 = 98
V_W1 = 1

def flag_store(a, p, vt):
    g_, j_ = (SR, SH) if p == 0 else (SG, SJ)
    a(f's_lshl_b32 s40, s{g_}, 7')
    a(f's_lshl_b32 s41, s{j_}, 2')
    a('s_add_u32 s40, s40, s41')
    a(f's_add_u32 s40, s40, {WS_FLAG + p*1024}')
    a(f'v_mov_b32 v{vt}, 0')
    a(f'v_mov_b32 v{vt+1}, 1')
    a('s_mov_b64 exec, 1')
    stores2(a, [f'buffer_store_dword v{vt+1}, v{vt}, s[8:11], s40 offen'])
    a('s_mov_b64 exec, -1')

def sync(a, p_pub, p_wait, smask_setup, prefetch, vt=14, drained=False, w0_prefetch=True, pre_pub=None, pr=(149, 150)):
    if pre_pub is not None:
        lpa, lpb = lab('pp'), lab('pp')
        a('s_cmp_lg_u32 s12, 0')
        a(f's_cbranch_scc0 {lpa}')
        n_after = pre_pub()
        a(f's_waitcnt vmcnt({n_after})')
        a(f's_branch {lpb}')
        a.label(lpa)
        a('s_waitcnt vmcnt(0)')
        a.label(lpb)
        if p_pub is not None: a('s_barrier')
    elif p_pub is not None and not drained:
        a('s_waitcnt vmcnt(0)')
        a('s_barrier')
    l0, l1, lp, ld, l3 = lab('sy'), lab('sy'), lab('sy'), lab('sy'), lab('sy')
    a('s_cmp_lg_u32 s12, 0')
    a(f's_cbranch_scc1 {l0}')
    if p_pub is not None: flag_store(a, p_pub, vt)
    smask_setup()
    a(f's_lshl_b32 s40, s{SG}, 7')
    a(f's_add_u32 s40, s40, {WS_FLAG + p_wait*1024}')
    a(f'v_lshlrev_b32 v{vt}, 2, v2')
    a('s_mov_b64 exec, s[44:45]')
    a('s_mov_b32 s41, 0')
    if 'poll1' in gen.EXP:
        a.label(lp)
        a(f'buffer_load_dword v{vt+1}, v{vt}, s[8:11], s40 offen sc1')
        a('s_add_u32 s41, s41, 1')
        a('s_waitcnt vmcnt(0)')
        a(f'v_cmp_eq_u32 vcc, 0, v{vt+1}')
        a(f's_cbranch_vccz {ld}')
        a(f's_cmp_lt_u32 s41, {SPIN_MAX}')
        a(f's_cbranch_scc1 {lp}')
        a.label(ld)
    else:
        p0, p1 = pr
        a(f'buffer_load_dword v{p0}, v{vt}, s[8:11], s40 offen sc1')
        a.label(lp)
        a(f'buffer_load_dword v{p1}, v{vt}, s[8:11], s40 offen sc1')
        a('s_waitcnt vmcnt(1)')
        a(f'v_cmp_eq_u32 vcc, 0, v{p0}')
        a(f's_cbranch_vccz {ld}')
        a(f'buffer_load_dword v{p0}, v{vt}, s[8:11], s40 offen sc1')
        a('s_add_u32 s41, s41, 1')
        a('s_waitcnt vmcnt(1)')
        a(f'v_cmp_eq_u32 vcc, 0, v{p1}')
        a(f's_cbranch_vccz {ld}')
        a(f's_cmp_lt_u32 s41, {SPIN_MAX}')
        a(f's_cbranch_scc1 {lp}')
        a.label(ld)
    a('s_mov_b64 exec, -1')
    a(f's_cmp_eq_u32 s{SPURE}, 1')
    a(f's_cbranch_scc1 {l3}')
    a('buffer_inv sc1')
    a('s_waitcnt vmcnt(0)')
    a.label(l3)
    a('s_barrier')
    if w0_prefetch: prefetch()
    a(f's_branch {l1}')
    a.label(l0)
    prefetch()
    a('s_barrier')
    a.label(l1)

def late_init(a, vm, L):
    merged = 'merge' in gen.EXP
    if not merged:
        a(f's_lshl_b32 s40, s{SG}, 7')
        a(f's_lshl_b32 s41, s{SJ}, 2')
        a('s_add_u32 s40, s40, s41')
        a(f's_add_u32 s40, s40, {WS_XT}')
        a('s_cmp_eq_u32 s12, 0')
        a('s_cselect_b32 s40, s40, 0x7ff00000')
        a('v_mov_b32 v14, 0')
        a(f'v_mov_b32 v15, s{SPURE}')
        a('s_mov_b64 exec, 1')
        a('buffer_store_dword v15, v14, s[8:11], s40 offen sc1')
        a('s_mov_b64 exec, -1')
        vm.issue('xts')

def phase_attn(a, L):
    R = AR
    attn_ones(a)
    a(f's_lshr_b32 s62, s{SJ}, 2')
    a('s_mul_i32 s62, s62, 102400')
    a(f's_add_u32 s62, s62, {WS_WO}')
    a('s_lshl_b32 s61, s12, 10')
    a('s_add_u32 s62, s62, s61')
    a('s_cmp_lt_u32 s12, 4')
    a(f's_mov_b32 s63, {11*8192}')
    a(f's_cselect_b32 s63, {12*8192}, s63')
    a('s_add_u32 s63, s63, s62')
    a(f's_add_u32 s61, s61, {LDS_WO}')
    if 'rolled' in gen.EXP:
        for r in range(32): a(f'v_mov_b32 v{R.O+r}, 0')
        for r in range(16): a(f'v_mov_b32 v{R.P+r}, 0')
        for r in range(16): a(f'v_mov_b32 v{R.VV+r}, 0')
    vm = VM()
    a(f's_mov_b32 s{S_DONE}, 0')
    a(f'v_mov_b32 v14, {FB_LDS}')
    a('v_mov_b32 v15, 0')
    a('ds_write_b32 v14, v15')
    def w1_addr(a_):
        lane_swap23(a_, 14, 3, 15)
        a_('v_lshrrev_b32 v15, 4, v14')
        a_('s_movk_i32 s40, 20480')
        a_('v_mul_lo_u32 v15, v15, s40')
        a_('v_and_b32 v14, 15, v14')
        a_('v_lshl_add_u32 v15, v14, 4, v15')
        a_(f'v_lshl_add_u32 v{V_W1}, v4, 8, v15')
        a_(f's_lshr_b32 s40, s{SJ}, 1')
        a_('s_lshl_b32 s40, s40, 2')
        a_('s_and_b32 s41, s12, 3')
        a_('s_add_u32 s40, s40, s41')
        a_('s_mul_i32 s41, s40, 40960')
        a_(f's_add_u32 s41, s41, {WS_W1}')
        a_('s_cmp_lt_u32 s40, 54')
        a_(f's_cselect_b32 s{S_W1}, s41, 0x7ff00000')
    def touch_addr(a_):
        a_(f's_mov_b32 s{S_OOB}, 0x7ff00000')
        lt1, lt2 = lab('tc'), lab('tc')
        a_('v_lshlrev_b32 v148, 7, v2')
        a_('s_cmp_ge_u32 s12, 4')
        a_(f's_cbranch_scc1 {lt1}')
        a_(f's_mul_i32 s50, s{SG}, {16*20480}')
        a_(f's_mul_i32 s40, s{SJ}, 10240')
        a_('s_add_u32 s50, s50, s40')
        a_('s_and_b32 s40, s12, 1')
        a_('s_mul_i32 s40, s40, 5120')
        a_('s_add_u32 s50, s50, s40')
        a_('s_lshr_b32 s40, s12, 1')
        a_(f's_mul_i32 s40, s40, {WS_H - WS_O}')
        a_('s_add_u32 s50, s50, s40')
        a_(f's_add_u32 s50, s50, {WS_O}')
        a_('v_add_u32 v148, s50, v148')
        a_(f's_lshr_b32 s40, s{SJ}, 1')
        a_('s_lshl_b32 s40, s40, 14')
        a_(f's_lshl_b32 s41, s{SG}, 11')
        a_('s_add_u32 s40, s40, s41')
        a_(f's_and_b32 s41, s{SJ}, 1')
        a_('s_lshl_b32 s41, s41, 10')
        a_('s_add_u32 s40, s40, s41')
        a_(f's_add_u32 s40, s40, {WS_ST2 - 40*128}')
        a_('s_cmp_eq_u32 s12, 2')
        a_('s_cselect_b32 s40, s40, 0x7ff00000')
        a_('v_lshlrev_b32 v149, 7, v2')
        a_('v_add_u32 v149, s40, v149')
        a_('v_mov_b32 v14, 0x7ff00000')
        a_('v_cmp_gt_u32 vcc, 48, v2')
        a_('v_cndmask_b32 v149, v14, v149, vcc')
        a_('v_cmp_gt_u32 vcc, 40, v2')
        a_('v_cndmask_b32 v148, v149, v148, vcc')
        a_(f's_branch {lt2}')
        a_.label(lt1)
        a_('s_sub_u32 s40, s12, 4')
        a_('s_lshl_b32 s40, s40, 5')
        a_(f's_add_u32 s40, s40, s{SJ}')
        a_('s_mul_i32 s50, s40, 20480')
        a_(f's_add_u32 s50, s50, {WS_W1 + 13312}')
        a_('s_cmp_lt_u32 s40, 108')
        a_('s_cselect_b32 s50, s50, 0x7ff00000')
        a_('v_add_u32 v148, s50, v148')
        a_('v_mov_b32 v14, 0x7ff00000')
        a_('v_cmp_gt_u32 vcc, 56, v2')
        a_('v_cndmask_b32 v148, v14, v148, vcc')
        a_.label(lt2)
        a_('v_lshlrev_b32 v147, 7, v2')
        a_('s_lshl_b32 s40, s12, 13')
        a_(f's_mul_i32 s51, s{SG}, {16*55296}')
        a_(f's_mul_i32 s41, s{SJ}, 27648')
        a_('s_add_u32 s51, s51, s41')
        a_('s_add_u32 s51, s51, s40')
        a_(f's_add_u32 s51, s51, {WS_G}')
        a_('s_cmp_ge_u32 s12, 4')
        a_('s_cselect_b32 s51, 0x7ff00000, s51')
        a_(f's_and_b32 s40, s{SJ}, 3')
        a_('s_lshl_b32 s40, s40, 2')
        a_(f's_lshl_b32 s41, s{SG}, 4')
        a_('s_add_u32 s40, s40, s41')
        a_('s_and_b32 s41, s12, 3')
        a_('s_add_u32 s40, s40, s41')
        a_('s_lshl_b32 s40, s40, 4')
        a_('v_and_b32 v0, 15, v2')
        a_('v_add_u32 v0, s40, v0')
        a_('s_movk_i32 s41, 1280')
        a_('v_mul_lo_u32 v0, v0, s41')
        a_('v_lshrrev_b32 v14, 4, v2')
        a_('v_lshl_add_u32 v0, v14, 3, v0')
        a_(f's_lshr_b32 s57, s{SJ}, 2')
        a_('s_mul_i32 s57, s57, 160')
        a_('s_lshr_b32 s40, s12, 2')
        a_('s_mul_i32 s40, s40, 96')
        a_('s_add_u32 s57, s57, s40')
    INLOOP = 'rolled' not in gen.EXP
    if not INLOOP:
        w1_addr(a); touch_addr(a)
    def rec(fn):
        t_ = Asm(); fn(t_); return list(t_.lines)
    if 'earlyinit' in gen.EXP: late_init(a, VM(), L)
    a('s_waitcnt vmcnt(0)')
    for st in (1, 2):
        attn_dma(a, st, 8); vm.issue(('kv', st)); vm.issue(('kv', st))
    for x in wo_dma(): a(x)
    vm.issue('wo')
    if 'earlyinit' not in gen.EXP: late_init(a, vm, L)
    if 'notlb' not in gen.EXP:
        a('v_lshlrev_b32 v149, 16, v2')
        a('s_lshl_b32 s40, s12, 22')
        a('buffer_load_dword v149, v149, s[8:11], s40 offen')
        a('v_lshlrev_b32 v148, 16, v2')
        a('buffer_load_dword v148, v148, s[76:79], 0 offen')
    a('v_cmp_gt_u32 vcc, 32, v2')
    for r in range(4): a(f'v_cndmask_b32 v{R.QC+r}, 0, v{R.QC+r}, vcc')
    a('s_waitcnt lgkmcnt(0)')
    a('s_barrier')
    a(f'ds_read_b128 {v(R.KA,4)}, v11 offset:0')
    a(f'ds_read_b64 {v(R.KC,2)}, v12 offset:0')
    a('s_waitcnt lgkmcnt(0)')
    a(f'v_mfma_f32_32x32x16_bf16 {v(R.S,16)}, {v(R.KA,4)}, {v(R.QA,4)}, 0')
    a(f'v_mfma_f32_32x32x8bf16_1k {v(R.S,16)}, {v(R.KC,2)}, {v(R.QC,2)}, {v(R.S,16)}')
    stamp(a, 7)
    wnext = [0]
    def w1load():
        s_ = wnext[0]; wnext[0] += 1
        return [f's_add_u32 s40, s{S_W1}, {s_*512}', f'buffer_load_dwordx4 {v(w1reg(s_),4)}, v{V_W1}, s[8:11], s40 offen']
    plan = {}
    waits = {}
    nW = {2: 3, 3: 3, 4: 3, 5: 3, 6: 4, 7: 4, 8: 3, 9: 3}
    if 'now1a' in gen.EXP: nW = {}
    ROLL = 'rolled' in gen.EXP
    if ROLL: nW = {8: 4, 9: 4, 10: 4, 11: 4, 12: 4, 13: 3, 14: 3}
    def masked(sreg, cond_lo, cond_hi, vreg):
        return [f's_sub_u32 s40, s12, {cond_lo}', f's_cmp_lt_u32 s40, {cond_hi - cond_lo}', f's_cselect_b32 s40, {sreg}, s{S_OOB}',
                f'buffer_load_dword v149, v{vreg}, s[8:11], s40 offen']
    for g in range(16):
        ex = {}
        k = nW.get(g, 0)
        slots = sorted([(0, 20), (1, 8), (1, 20), (2, 20)][:k])
        if g <= 11:
            ex.setdefault(0, {})[8] = wo_dma(); vm.issue('wo')
        if INLOOP and g == 0: ex.setdefault(1, {})[9] = rec(w1_addr)
        if INLOOP and g == 1:
            tl_ = rec(touch_addr)
            ex.setdefault(1, {})[9] = tl_
        if g == 12:
            ex.setdefault(0, {})[8] = [f's_lshl_b32 s40, s{SG}, 7', f's_add_u32 s40, s40, {WS_XT}', 'v_lshlrev_b32 v150, 2, v3',
                                       'buffer_load_dword v150, v150, s[8:11], s40 offen sc1']
            vm.issue('xt')
        tl = None
        if g == 10: tl = masked('0', 4, 6, 148)
        if g == 11: tl = masked('0', 6, 8, 148)
        if g == 12: tl = masked('0', 0, 4, 148)
        if g == 13: tl = ['buffer_load_dword v149, v147, s[8:11], s51 offen']
        if tl and 'notouch' not in gen.EXP:
            ex.setdefault(1, {})[14] = tl; vm.issue('touch')
        post = []
        pre_ops = []
        for (u, pos) in slots:
            if u < 2: ex.setdefault(u, {})[pos] = w1load(); vm.issue('w1')
            else: post.append((u, pos))
        if g < 15: waits[g] = vm.count_after(lambda x: x == ('kv', g + 1))
        if ROLL and g < 8: waits[g] = 4
        for (u, pos) in post:
            ex.setdefault(u, {})[pos] = w1load(); vm.issue('w1')
        if g <= 12:
            vm.issue(('kv', g + 3)); vm.issue(('kv', g + 3))
        if g == 13:
            ex.setdefault(3, {})[20] = [f'buffer_load_dwordx2 {v(XR0+2*i,2)}, v0, s[72:75], s57 offen offset:{32*i}' for i in range(3)]
            for i in range(3): vm.issue('xr')
        plan[g] = ex
    assert wnext[0] == 26 or 'now1a' in gen.EXP, wnext
    def run(stages_g):
        loc = {g % 4: g for g in stages_g}
        def prio(st, u):
            g = loc[st]
            if g == 15: return {0: 2, 1: 1, 2: 1, 3: 0}[u]
            if g == 14 and u >= 2: return 3
            return {2: 3, 3: 2, 0: 1, 1: 0}[u]
        return attn_units(a, 8, [(g % 4, g == 15) for g in stages_g], lambda st: loc[st] <= 12,
                          lambda st, u: plan[loc[st]].get(u, {}), lambda st: waits[loc[st]], prio,
                          start=(stages_g[0] == 0 and 'rolled' not in gen.EXP))
    if ROLL:
        a('s_mov_b32 s60, 2')
        a.label('.Lat_loop')
        run([4, 5, 6, 7])
        a('s_sub_u32 s60, s60, 1')
        a('s_cmp_lg_u32 s60, 0')
        a('s_cbranch_scc1 .Lat_loop')
        run([8, 9, 10, 11])
    else:
        for b_ in range(3): run([4*b_ + i for i in range(4)])
    m1, m2, m3, m4, _ = run([12, 13, 14, 15])
    a(m3(1, 1, 1)); a(m4(1, 1, 1))
    a('s_setprio 0')
    stamp(a, 3)
    lp, ld = lab('xt'), lab('xt')
    a('s_mov_b32 s41, 0')
    a('v_cmp_eq_u32 vcc, 0, v150')
    a(f's_cbranch_vccz {ld}')
    a.label(lp)
    a(f's_lshl_b32 s40, s{SG}, 7')
    a(f's_add_u32 s40, s40, {WS_XT}')
    a('v_lshlrev_b32 v14, 2, v3')
    a('buffer_load_dword v150, v14, s[8:11], s40 offen sc1')
    a('s_add_u32 s41, s41, 1')
    a('s_waitcnt vmcnt(0)')
    a('v_cmp_eq_u32 vcc, 0, v150')
    a(f's_cbranch_vccz {ld}')
    a(f's_cmp_lt_u32 s41, {SPIN_MAX}')
    a(f's_cbranch_scc1 {lp}')
    a.label(ld)
    a(f'v_cmp_ne_u32 vcc, s{SPURE}, v150')
    a('s_cmp_eq_u64 vcc, 0')
    a(f's_cselect_b32 s{SPURE}, 1, 0')
    if 'slow' in gen.EXP: a(f's_mov_b32 s{SPURE}, 0')
    TT = R.S
    a.label('.Lat_combine')
    a('s_cmp_eq_u32 s46, 0')
    a('s_cbranch_scc1 .Lat_noswap')
    a('s_nop 7')
    for r in range(12): a(f'v_swap_b32 v{R.O+r}, v{R.O+16+r}')
    a.label('.Lat_noswap')
    a('s_nop 7')
    a(f's_mul_i32 s40, s12, 3072')
    a('v_add_u32 v14, s40, v10')
    for i in range(3): a(f'ds_write_b128 v14, {v(R.O+16+4*i,4)} offset:{1024*i}')
    a('s_xor_b32 s40, s12, 4')
    a('s_mul_i32 s40, s40, 3072')
    a('v_add_u32 v14, s40, v10')
    a('s_waitcnt lgkmcnt(0)')
    a('s_barrier')
    for i in range(3): a(f'ds_read_b128 {v(TT+4*i,4)}, v14 offset:{1024*i}')
    a('s_waitcnt lgkmcnt(0)')
    for r in range(12): a(f'v_add_f32 v{R.O+r}, v{R.O+r}, v{TT+r}')
    a(f'v_mov_b32 v{TT}, v{R.O+8}')
    a(f'v_mov_b32 v{TT+1}, v{R.O+8}')
    a(f'v_permlane32_swap_b32 v{TT}, v{TT+1}')
    a(f'v_mov_b32 v{TT+2}, 0')
    for r in range(12): a(f'v_fmac_f32 v{TT+2}, 0, v{R.O+r}')
    a('s_mov_b32 s40, 0x1f800000')
    a(f'v_cmp_nle_f32 vcc, s40, v{TT+1}')
    a('s_mov_b32 s40, 0x5f800000')
    a(f'v_cmp_nge_f32 s[44:45], s40, v{TT+1}')
    a('s_or_b64 s[44:45], s[44:45], vcc')
    a(f'v_cmp_u_f32 vcc, v{TT+2}, v{TT+2}')
    a('s_or_b64 s[44:45], s[44:45], vcc')
    if 'forcefb' in gen.EXP: a('s_mov_b64 s[44:45], -1')
    lok = lab('ok')
    a('s_cmp_eq_u64 s[44:45], 0')
    a(f's_cbranch_scc1 {lok}')
    a(f'v_mov_b32 v{TT+2}, {FB_LDS}')
    a(f'v_mov_b32 v{TT+3}, 1')
    a(f'ds_write_b32 v{TT+2}, v{TT+3}')
    a.label(lok)
    a(f'v_rcp_f32 v{TT+1}, v{TT+1}')
    for r in range(12): a(f'v_mul_f32 v{R.O+r}, v{R.O+r}, v{TT+1}')
    for i in range(6): a(f'v_cvt_pk_bf16_f32 v{TT+4+i}, v{R.O+2*i}, v{R.O+2*i+1}')
    a('s_mul_i32 s61, s46, 40960')
    a('s_add_u32 s61, s61, s47')
    a(f's_add_u32 s61, s61, {WS_O}')
    a('s_lshl_b32 s62, s42, 8')
    a('s_add_u32 s62, s62, s61')
    a('s_lshl_b32 s63, s43, 8')
    a('s_add_u32 s63, s63, s61')
    a(f's_and_b32 s61, s{SH}, 1')
    a('s_lshl_b32 s61, s61, 3')
    a('s_add_u32 s63, s63, s61')
    stores2(a, [f'buffer_store_dwordx4 {v(TT+4,4)}, v7, s[8:11], s62 offen',
                's_mov_b64 exec, 0xffffffff',
                f'buffer_store_dwordx2 {v(TT+8,2)}, v5, s[8:11], s63 offen',
                's_mov_b64 exec, -1'])
    stamp(a, 4)
    oproj_setup(a)
    a('s_waitcnt vmcnt(0) lgkmcnt(0)')
    a('s_barrier')
    a(f'v_mov_b32 v14, {FB_LDS}')
    a('ds_read_b32 v15, v14')
    a('s_waitcnt lgkmcnt(0)')
    a('v_readfirstlane_b32 s40, v15')
    a(f's_sub_u32 s40, s40, s{S_DONE}')
    a('s_cmp_eq_u32 s40, 1')
    a('s_cbranch_scc1 .Lat_fallback')
    a.label('.Lat_done')

def attn_fallback(a):
    R = AR
    SL = 2 * AT_SLOT
    S_, M0_, M1_ = R.S, R.S + 16, R.S + 17
    a.label('.Lat_fallback')
    a(f's_mov_b32 s{S_DONE}, 1')
    def load_stage():
        a('s_barrier')
        for x in attn_dma_parts(2, 8)[0] + attn_dma_parts(2, 8)[1]: a(x)
        a('s_waitcnt vmcnt(0)')
        a('s_barrier')
    def rewind():
        a(f's_sub_u32 s52, s52, {16*5120}')
        a(f's_sub_u32 s53, s53, {16*163840}')
    def scores(t, j):
        a(f'v_mfma_f32_32x32x16_bf16 {v(S_,16)}, {v(R.KA,4)}, {v(R.QA+4*j,4)}, 0')
        a(f'v_mfma_f32_32x32x8bf16_1k {v(S_,16)}, {v(R.KC,2)}, {v(R.QC+2*j,2)}, {v(S_,16)}')
    def kread(t):
        a(f'ds_read_b128 {v(R.KA,4)}, v11 offset:{SL + t*1024}')
        a(f'ds_read_b64 {v(R.KC,2)}, v12 offset:{SL + t*512}')
    rewind()
    a(f'v_mov_b32 v{M0_}, 0xff7fffff'); a(f'v_mov_b32 v{M1_}, 0xff7fffff')
    a('s_mov_b32 s60, 16')
    a.label('.Lat_fb1')
    load_stage()
    for t in range(2):
        kread(t)
        a('s_waitcnt lgkmcnt(0)')
        for j in range(2):
            scores(t, j)
            m = M0_ + j
            for r in range(0, 16, 2): a(f'v_max3_f32 v{m}, v{S_+r}, v{S_+r+1}, v{m}')
    a('s_sub_u32 s60, s60, 1')
    a('s_cmp_lg_u32 s60, 0')
    a('s_cbranch_scc1 .Lat_fb1')
    for j in range(2):
        m = M0_ + j
        a(f'v_mov_b32 v{S_}, v{m}'); a(f'v_mov_b32 v{S_+1}, v{m}')
        a(f'v_permlane32_swap_b32 v{S_}, v{S_+1}')
        a(f'v_max_f32 v{m}, v{S_}, v{S_+1}')
    a('s_barrier')
    a('s_lshl_b32 s40, s12, 9')
    a('v_lshlrev_b32 v14, 3, v2')
    a('v_add_u32 v14, s40, v14')
    a(f'ds_write_b64 v14, {v(M0_,2)}')
    a('s_xor_b32 s40, s12, 4')
    a('s_lshl_b32 s40, s40, 9')
    a('v_lshlrev_b32 v14, 3, v2')
    a('v_add_u32 v14, s40, v14')
    a('s_waitcnt lgkmcnt(0)')
    a('s_barrier')
    a(f'ds_read_b64 {v(S_,2)}, v14')
    a('s_waitcnt lgkmcnt(0)')
    a(f'v_max_f32 v{M0_}, v{M0_}, v{S_}')
    a(f'v_max_f32 v{M1_}, v{M1_}, v{S_+1}')
    rewind()
    for r in range(32): a(f'v_mov_b32 v{R.O+r}, 0')
    a('s_mov_b32 s60, 16')
    a.label('.Lat_fb2')
    load_stage()
    for t in range(2):
        kread(t)
        a(f'ds_read_b128 {v(R.VV,4)}, v13 offset:{SL + t*2048}')
        a(f'ds_read_b128 {v(R.VV+4,4)}, v13 offset:{SL + t*2048 + 1024}')
        a('s_waitcnt lgkmcnt(0)')
        for j in range(2):
            scores(t, j)
            for r in range(16): a(f'v_sub_f32 v{S_+r}, v{S_+r}, v{M0_+j}')
            for r in range(16): a(f'v_exp_f32 v{S_+r}, v{S_+r}')
            for i in range(8): a(f'v_cvt_pk_bf16_f32 v{R.P+i}, v{S_+2*i}, v{S_+2*i+1}')
            a(f'v_mfma_f32_32x32x16_bf16 {v(R.O+16*j,16)}, {v(R.VV,4)}, {v(R.P,4)}, {v(R.O+16*j,16)}')
            a(f'v_mfma_f32_32x32x16_bf16 {v(R.O+16*j,16)}, {v(R.VV+4,4)}, {v(R.P+4,4)}, {v(R.O+16*j,16)}')
    a('s_sub_u32 s60, s60, 1')
    a('s_cmp_lg_u32 s60, 0')
    a('s_cbranch_scc1 .Lat_fb2')
    a('s_nop 15')
    a('s_barrier')
    a('s_branch .Lat_combine')

def oproj_setup(a):
    BF, AF, ACC, XR, T = 16, 56, 96, XR0, 116
    a(f's_and_b32 s20, s{SJ}, 3')
    a(f's_lshr_b32 s21, s{SJ}, 2')
    a('s_and_b32 s22, s12, 3')
    a('s_lshr_b32 s23, s12, 2')
    a(f's_lshl_b32 s29, s{SG}, 4')
    a('s_lshl_b32 s30, s20, 2')
    a('s_add_u32 s29, s29, s30')
    a('s_add_u32 s29, s29, s22')
    a('v_and_b32 v14, 15, v2')
    a('v_lshrrev_b32 v15, 4, v2')
    a('s_mul_i32 s30, s29, 20480')
    a('s_mul_i32 s31, s23, 10240')
    a('s_add_u32 s30, s30, s31')
    a(f's_add_u32 s30, s30, {WS_O}')
    a('s_mul_i32 s33, s23, 10240')
    a(f's_add_u32 s33, s33, {LDS_WO}')
    a('s_cmp_eq_u32 s23, 0')
    a(f's_cselect_b32 s34, 0, {3*20480}')
    a('s_add_u32 s34, s34, s33')
    a('v_add_u32 v142, s34, v10')
    a(f's_cselect_b32 s34, {2*20480}, 0') if False else None
    a('s_cmp_eq_u32 s23, 0')
    a(f's_cselect_b32 s34, {2*20480}, 0')
    a('s_add_u32 s34, s34, s33')
    a('v_add_u32 v143, s34, v10')
    a('s_cmp_eq_u32 s23, 0')
    a(f's_mov_b32 s35, {20480}')
    a(f's_cselect_b32 s34, {3*20480}, s35')
    a('s_add_u32 s34, s34, s33')
    a('v_add_u32 v145, s34, v10')
    a('s_mul_i32 s40, s12, 3072')
    a('s_add_u32 s40, s40, 32768')
    a('v_add_u32 v146, s40, v10')
    a('s_xor_b32 s40, s12, 4')
    a('s_mul_i32 s40, s40, 3072')
    a('s_lshl_b32 s41, s23, 10')
    a('s_add_u32 s40, s40, s41')
    a('s_add_u32 s40, s40, 32768')
    a('v_add_u32 v147, s40, v10')
    a('s_mul_i32 s34, s29, 20480')
    a('s_mul_i32 s35, s21, 2560')
    a('s_add_u32 s34, s34, s35')
    a('s_mul_i32 s35, s23, 1536')
    a('s_add_u32 s34, s34, s35')
    a(f's_add_u32 s34, s34, {WS_H}')
    a('v_lshrrev_b32 v148, 1, v15')
    a('v_lshlrev_b32 v148, 8, v148')
    a('v_lshl_add_u32 v148, v14, 4, v148')
    a('v_and_b32 v144, 1, v15')
    a('v_lshl_add_u32 v148, v144, 3, v148')
    a('s_lshl_b32 s33, s29, 7')
    a('s_lshl_b32 s35, s21, 1')
    a('s_add_u32 s35, s35, s23')
    a('s_lshl_b32 s35, s35, 14')
    a('s_add_u32 s33, s33, s35')
    a(f's_add_u32 s33, s33, {WS_ST2}')
    a('v_lshlrev_b32 v144, 3, v14')
    a('s_cmp_eq_u32 s23, 0')
    a(f's_cselect_b32 s35, s34, {0x7ffff000}')
    a('s_waitcnt vmcnt(2)')
    for i in range(3):
        for h2 in range(2):
            a(f'v_lshlrev_b32 v{ACC+4*i+2*h2}, 16, v{XR+2*i+h2}')
            a(f'v_and_b32 v{ACC+4*i+2*h2+1}, 0xffff0000, v{XR+2*i+h2}')
    a('s_cmp_eq_u32 s23, 0')
    a('s_cselect_b64 vcc, -1, 0')
    for r in range(8, 12): a(f'v_cndmask_b32 v{ACC+r}, 0, v{ACC+r}, vcc')
    for r in range(12, 20): a(f'v_mov_b32 v{ACC+r}, 0')

def phase_oproj(a):
    BF, AF, ACC, XR, T = 16, 56, 96, XR0, 116
    def pre(): pass
    def mask():
        a('s_mov_b32 s44, -1'); a('s_mov_b32 s45, 0')
    sync(a, 0, 0, mask, pre, drained=True)
    stamp(a, 8)
    for i in range(10):
        if i % 4 == 0: a(f's_add_u32 s31, s30, {i*1024}')
        a(f'buffer_load_dwordx4 {v(BF+4*i,4)}, v10, s[8:11], s31 offen offset:{(i%4)*1024} sc1')
    def areads(i, buf):
        for sl in range(5):
            base, off = {0: (142, 0), 1: (142, 20480), 2: (143, 0), 3: (145, 0), 4: (145, 20480)}[sl]
            a(f'ds_read_b128 {v(AF+20*buf+4*sl,4)}, v{base} offset:{off + i*1024}')
    areads(0, 0)
    for i in range(10):
        if i < 9:
            areads(i + 1, (i + 1) & 1)
            a(f's_waitcnt vmcnt({9-i}) lgkmcnt(5)')
        else:
            a('s_waitcnt vmcnt(0) lgkmcnt(0)')
        for sl in (2, 3, 4, 0, 1):
            acc = v(ACC + 4 * sl, 4)
            a(f'v_mfma_f32_16x16x32_bf16 {acc}, {v(AF+20*(i&1)+4*sl,4)}, {v(BF+4*i,4)}, {acc}')
    stamp(a, 9)
    a('s_nop 3')
    for i, sl in enumerate((2, 3, 4)): a(f'ds_write_b128 v146, {v(ACC+4*sl,4)} offset:{1024*i}')
    a('s_waitcnt lgkmcnt(0)')
    a('s_barrier')
    for i in range(3): a(f'ds_read_b128 {v(T+4*i,4)}, v147 offset:{1024*i}')
    a('s_waitcnt lgkmcnt(0)')
    for r in range(12): a(f'v_add_f32 v{ACC+r}, v{ACC+r}, v{T+r}')
    a('s_cmp_eq_u32 s23, 0')
    a('s_cselect_b64 vcc, -1, 0')
    for r in range(8, 12): a(f'v_cndmask_b32 v{ACC+r}, 0, v{ACC+r}, vcc')
    a(f'v_add_f32 v{T}, v{ACC}, v{ACC+1}')
    a(f'v_mul_f32 v{T+1}, v{ACC}, v{ACC}')
    a(f'v_fmac_f32 v{T+1}, v{ACC+1}, v{ACC+1}')
    for r in range(2, 12):
        a(f'v_add_f32 v{T}, v{T}, v{ACC+r}')
        a(f'v_fmac_f32 v{T+1}, v{ACC+r}, v{ACC+r}')
    for i in range(6): a(f'v_cvt_pk_bf16_f32 v{T+4+i}, v{ACC+2*i}, v{ACC+2*i+1}')
    sum_q4(a, T, T+2, T+3)
    sum_q4(a, T+1, T+2, T+3)
    stores2(a, [f'buffer_store_dwordx2 {v(T+4,2)}, v148, s[8:11], s34 offen',
                f'buffer_store_dwordx2 {v(T+6,2)}, v148, s[8:11], s34 offen offset:512',
                f'buffer_store_dwordx2 {v(T+8,2)}, v148, s[8:11], s35 offen offset:1024',
                's_mov_b64 exec, 0xffff',
                f'buffer_store_dwordx2 {v(T,2)}, v144, s[8:11], s33 offen',
                's_mov_b64 exec, -1'])

F2_SLOT = {0: 81920, 1: 122880, 2: 0, 3: 40960, 4: 81920, 5: 122880, 6: 0}
def w2_setup(a):
    a(f's_lshr_b32 s21, s{SJ}, 2')
    a('s_lshr_b32 s22, s12, 2')
    a('s_mul_i32 s22, s22, 27')
    a('s_and_b32 s23, s12, 3')
    a('s_add_u32 s22, s22, s23')
    a('s_lshl_b32 s22, s22, 10')
    a('s_mul_i32 s47, s21, 276480')
    a(f's_add_u32 s47, s47, {WS_W2}')
    a('s_add_u32 s47, s47, s22')
    a('s_mul_i32 s48, s12, 5120')
def w2_dma(st, ft):
    return [f's_add_u32 m0, s48, {F2_SLOT[st] + ft*1024}', f's_add_u32 s49, s47, {st*4096 + ft*55296}',
            'buffer_load_dwordx4 v10, s[8:11], s49 offen lds']

def far_touch(a, vt, vd):
    a(f'v_lshlrev_b32 v{vt}, 7, v2')
    a(f's_mul_i32 s56, s{SJ}, 69120')
    a('s_lshl_b32 s57, s12, 13')
    a('s_add_u32 s56, s56, s57')
    a(f's_add_u32 s56, s56, {WS_W2}')
    a(f'buffer_load_dword v{vd}, v{vt}, s[8:11], s56 offen')
    a(f's_mul_i32 s56, s{SG}, {16*55296}')
    a(f's_mul_i32 s57, s{SJ}, 27648')
    a('s_add_u32 s56, s56, s57')
    a('s_lshl_b32 s57, s12, 13')
    a('s_add_u32 s56, s56, s57')
    a(f's_add_u32 s56, s56, {WS_G}')
    a(f's_mul_i32 s57, s{SJ}, 69120')
    a(f's_add_u32 s57, s57, {WS_W2 + 65536}')
    a('s_cmp_eq_u32 s12, 4')
    a('s_cselect_b32 s56, s57, s56')
    a('s_cmp_gt_u32 s12, 4')
    a('s_cselect_b32 s56, 0x7ff00000, s56')
    a(f'buffer_load_dword v{vd}, v{vt}, s[8:11], s56 offen')

def f1_tables(a, vm, ST, CP, LST):
    vm.wait(a, lambda x: x in ('st', 'cp'))
    a(f'v_add_f32 v{CP}, v{CP}, v{CP+1}')
    a(f'v_add_f32 v{CP+2}, v{CP+2}, v{CP+3}')
    a(f'v_add_f32 v{CP}, v{CP}, v{CP+2}')
    a('s_lshl_b32 s28, s23, 7')
    a('v_lshlrev_b32 v14, 2, v3')
    a('v_add_u32 v14, s28, v14')
    a(f'ds_write_b32 v14, v{CP} offset:{LST+1024}')
    l2 = lab('st')
    a('s_cmp_ge_u32 s12, 4')
    a(f's_cbranch_scc1 {l2}')
    b = ST
    for q in range(1, 8):
        a(f'v_add_f32 v{b}, v{b}, v{b+2*q}')
        a(f'v_add_f32 v{b+1}, v{b+1}, v{b+2*q+1}')
    for r in range(2):
        a(f'v_mov_b32 v{b+2}, v{b+r}'); a(f'v_mov_b32 v{b+3}, v{b+r}')
        a(f'v_permlane32_swap_b32 v{b+2}, v{b+3}')
        a(f'v_add_f32 v{b+r}, v{b+2}, v{b+3}')
    a(f'v_mul_f32 v{b}, {f2hex(1.0/640)}, v{b}')
    a(f'v_mul_f32 v{b+1}, {f2hex(1.0/640)}, v{b+1}')
    a(f'v_fma_f32 v{b+1}, -v{b}, v{b}, v{b+1}')
    a(f'v_add_f32 v{b+1}, 0x3727c5ac, v{b+1}')
    a(f'v_rsq_f32 v{b+1}, v{b+1}')
    a(f'v_mul_f32 v{b}, v{b}, v{b+1}')
    a('s_lshl_b32 s28, s12, 8')
    a('v_lshlrev_b32 v14, 3, v3')
    a('v_add_u32 v14, s28, v14')
    a(f'ds_write_b64 v14, {v(b,2)} offset:{LST}')
    a.label(l2)

def phase_ffn1(a, vm_pre):
    ACC, FB = 72, 104
    CS, B1, ST = 192, 168, 128
    CP, B1R = 144, 184
    LST = 0
    NS = 5
    srd(a, 52, 68, F * 2)
    w2_setup(a)
    a(f's_and_b32 s13, s{SJ}, 1')
    a(f's_lshl_b32 s15, s{SG}, 1')
    a('s_add_u32 s13, s13, s15')
    a(f's_lshr_b32 s14, s{SJ}, 1')
    a('s_and_b32 s23, s12, 3')
    a('s_lshr_b32 s26, s12, 2')
    a('v_lshrrev_b32 v7, 4, v3')
    a('s_movk_i32 s17, 20480')
    a('v_mul_lo_u32 v7, v7, s17')
    a('v_and_b32 v6, 15, v3')
    a('v_lshl_add_u32 v7, v6, 4, v7')
    a('v_lshl_add_u32 v7, v4, 8, v7')
    a('s_lshl_b32 s20, s13, 3')
    a('s_lshl_b32 s19, s23, 1')
    a('s_add_u32 s20, s20, s19')
    a('s_mul_i32 s20, s20, 20480')
    a('s_lshl_b32 s19, s26, 10')
    a('s_add_u32 s20, s20, s19')
    a(f's_add_u32 s20, s20, {WS_H}')
    a('s_lshl_b32 s22, s23, 10')
    a('s_lshl_b32 s19, s26, 13')
    a('s_add_u32 s22, s22, s19')
    a('s_lshl_b32 s17, s26, 11')
    a('v_add_u32 v12, s17, v10')
    a('v_add_u32 v13, 0x10000, v12')
    vm = VM()
    def pre(): pass
    def mask():
        a(f's_and_b32 s40, s{SJ}, 1')
        a('s_cmp_eq_u32 s40, 0')
        a('s_mov_b32 s44, 0xcccccccc')
        a('s_cselect_b32 s44, 0x33333333, s44')
        a('s_mov_b32 s45, 0')
    sync(a, 1, 1, mask, pre)
    stamp(a, 10)
    nst = 10
    pend = [(st, i) for st in range(nst) for i in range(2)]
    def dma_one():
        st, i = pend.pop(0)
        a(f's_add_u32 m0, s22, {(st % NS)*16384 + i*4096}')
        a(f's_add_u32 s21, s20, {st*2048 + i*512}')
        a('buffer_load_dwordx4 v7, s[8:11], s21 offen sc1 lds')
        vm.issue(('h', st))
    for _ in range(2 * 3): dma_one()
    a('s_lshl_b32 s27, s13, 7')
    a('s_lshl_b32 s28, s26, 6')
    a('s_add_u32 s27, s27, s28')
    a('s_lshl_b32 s28, s13, 7')
    a('s_lshl_b32 s29, s23, 5')
    a('s_add_u32 s28, s28, s29')
    a('s_lshl_b32 s28, s28, 3')
    a(f's_add_u32 s28, s28, {WS_ST2}')
    a('v_lshlrev_b32 v14, 3, v3')
    a('v_lshl_add_u32 v14, v4, 17, v14')
    def st_load(q):
        a(f's_add_u32 s29, s28, {q*16384}')
        a(f'buffer_load_dwordx2 {v(ST+2*q,2)}, v14, s[8:11], s29 offen sc1')
        vm.issue('st')
    w1q = list(range(26, 40))
    def w1_load():
        s_ = w1q.pop(0)
        a(f's_add_u32 s40, s{S_W1}, {s_*512}')
        a(f'buffer_load_dwordx4 {v(w1reg(s_),4)}, v{V_W1}, s[8:11], s40 offen')
        vm.issue(('w1', s_))
    def reads(st, ks, buf):
        off = (st % NS) * 16384 + ks * 4096
        base = 12
        if off + 1024 >= 65536: off -= 65536; base = 13
        a(f'ds_read_b128 {v(FB+8*buf,4)}, v{base} offset:{off}')
        a(f'ds_read_b128 {v(FB+8*buf+4,4)}, v{base} offset:{off+1024}')
    def mfmas(s_, buf):
        for j in range(2):
            c = '0' if s_ == 0 else v(ACC+16*j, 16)
            a(f'v_mfma_f32_32x32x16_bf16 {v(ACC+16*j,16)}, {v(w1reg(s_),4)}, {v(FB+8*buf+4*j,4)}, {c}')
    F1S = 'f1stamp' in gen.EXP
    w2q = [(st, ft) for st in (0, 1) for ft in range(5)]
    if F1S: stamp(a, 2)
    vm.wait(a, lambda x: x == ('h', 0))
    a('s_barrier')
    if F1S: stamp(a, 3)
    reads(0, 0, 0)
    reads(0, 1, 1)
    for st in range(nst):
        for ks in range(4):
            s_ = 4 * st + ks
            buf = s_ % 3
            n2 = s_ + 2
            if st == 8 and ks == 2:
                f1_tables(a, vm, ST, CP, LST)
            if st == 9 and ks == 0:
                a('s_lshl_b32 s28, s26, 9')
                a('v_lshlrev_b32 v14, 3, v3')
                a('v_add_u32 v14, s28, v14')
                a(f'ds_read_b64 {v(ST,2)}, v14 offset:{LST}')
                a(f'ds_read_b64 {v(ST+4,2)}, v14 offset:{LST+256}')
                a('s_lshl_b32 s28, s23, 7')
                a('v_lshlrev_b32 v14, 5, v4')
                a('v_add_u32 v14, s28, v14')
                for g in range(4):
                    a(f'ds_read_b128 {v(CS+4*g,4)}, v14 offset:{LST + 1024 + (g&1)*16 + (g>>1)*64}')
            if ks == 2 and st + 1 < nst:
                if s_ >= 26: vm.wait(a, lambda x: x == ('w1', s_), ' lgkmcnt(0)')
                else: a('s_waitcnt lgkmcnt(0)')
                mfmas(s_, buf)
                if F1S and st in (0, 2, 4, 6): stamp(a, {0: 4, 2: 7, 4: 9, 6: 13}[st])
                vm.wait(a, lambda x: x == ('h', st + 1))
                a('s_barrier')
                if F1S and st in (0, 2, 4, 6): stamp(a, {0: 5, 2: 8, 4: 12, 6: 14}[st])
                reads(n2 >> 2, n2 & 3, n2 % 3)
            else:
                if n2 < 40:
                    reads(n2 >> 2, n2 & 3, n2 % 3)
                    lg = 4
                else:
                    lg = 2 if s_ == 38 else 0
                if st == 9 and ks == 0: lg = 2
                if s_ >= 26: vm.wait(a, lambda x: x == ('w1', s_), f' lgkmcnt({lg})')
                else: a(f's_waitcnt lgkmcnt({lg})')
                mfmas(s_, buf)
            lim = st + NS - 1 + (1 if ks >= 2 else 0)
            if pend and pend[0][0] <= lim and (ks in (1, 3) or st == 0): dma_one()
            if ks in (0, 2) and w1q and st <= 6: w1_load()
            if st == 5 and ks < 4:
                st_load(2 * ks); st_load(2 * ks + 1)
            if st >= 8 and not (st == 8 and ks == 0):
                for _ in range(2 if (st == 9 or ks >= 2) else 1):
                    if w2q:
                        for x in w2_dma(*w2q.pop(0)): a(x)
                        vm.issue('w2')
            if st == 6 and ks == 1:
                a('s_lshl_b32 s29, s14, 7')
                a('s_lshl_b32 s30, s23, 5')
                a('s_add_u32 s29, s29, s30')
                a('s_lshl_b32 s29, s29, 2')
                a(f's_add_u32 s29, s29, {WS_CS1}')
                a('v_lshlrev_b32 v15, 2, v3')
                for kb in range(4):
                    a(f'buffer_load_dword v{CP+kb}, v15, s[8:11], s29 offen'); vm.issue('cp')
                    if kb < 3: a('s_add_u32 s29, s29, 6912')
            if st == 8 and ks == 0:
                a('s_lshl_b32 s29, s14, 7')
                a('s_lshl_b32 s30, s23, 5')
                a('s_add_u32 s29, s29, s30')
                a('s_lshl_b32 s29, s29, 1')
                a('v_lshlrev_b32 v15, 4, v4')
                a(f'buffer_load_dwordx4 {v(B1R,4)}, v15, s[52:55], s29 offen'); vm.issue('cs')
                a(f'buffer_load_dwordx4 {v(B1R+4,4)}, v15, s[52:55], s29 offen offset:32'); vm.issue('cs')
    assert not w2q and not w1q, (w2q, w1q)
    stamp(a, 11)
    vm.wait(a, lambda x: x == 'cs')
    for q in range(8):
        a(f'v_lshlrev_b32 v{B1+2*q}, 16, v{B1R+q}')
        a(f'v_and_b32 v{B1+2*q+1}, 0xffff0000, v{B1R+q}')
    for j in range(2):
        b = ST + 4 * j
        for r in range(16):
            a(f'v_fma_f32 v{b+2}, -v{b}, v{CS+r}, v{B1+r}')
            a(f'v_fma_f32 v{ACC+16*j+r}, v{b+1}, v{ACC+16*j+r}, v{b+2}')
            a(f'v_max_f32 v{ACC+16*j+r}, 0, v{ACC+16*j+r}')
            a(f'v_mul_f32 v{ACC+16*j+r}, v{ACC+16*j+r}, v{ACC+16*j+r}')
    PK = 104
    for r in range(16):
        a(f'v_cvt_pk_bf16_f32 v{PK+r}, v{ACC+2*r}, v{ACC+2*r+1}')
    a('v_lshrrev_b32 v13, 4, v3')
    a('s_mov_b32 s18, 55296')
    a('v_mul_lo_u32 v13, v13, s18')
    a('v_and_b32 v14, 15, v3')
    a('v_lshl_add_u32 v13, v14, 4, v13')
    a('v_lshl_add_u32 v13, v4, 8, v13')
    a('s_lshr_b32 s18, s27, 4')
    a('s_mul_i32 s18, s18, 55296')
    a('s_lshl_b32 s17, s14, 2')
    a('s_add_u32 s17, s17, s23')
    a('s_cmp_ge_u32 s17, 54')
    a('s_cselect_b32 s19, 0x40000000, 0')
    a('s_lshl_b32 s17, s17, 10')
    a('s_add_u32 s17, s17, s18')
    a(f's_add_u32 s17, s17, {WS_G}')
    a('s_add_u32 s17, s17, s19')
    a(f's_add_u32 s18, s17, {2*55296}')
    stores2(a, [f'buffer_store_dwordx4 {v(PK,4)}, v13, s[8:11], s17 offen',
                f'buffer_store_dwordx4 {v(PK+4,4)}, v13, s[8:11], s17 offen offset:512',
                f'buffer_store_dwordx4 {v(PK+8,4)}, v13, s[8:11], s18 offen',
                f'buffer_store_dwordx4 {v(PK+12,4)}, v13, s[8:11], s18 offen offset:512'])

def phase_ffn2(a, L, published):
    NST = 7
    vm = VM()
    BF, ACC, AF, T = 16, 128, 168, 16
    def pre():
        lx = lab('w7')
        a('s_cmp_lg_u32 s12, 7')
        a(f's_cbranch_scc1 {lx}')
        a(f's_sub_u32 s47, s47, {(27 + 3)*1024}')
        a(f's_sub_u32 s48, s48, {7*5120}')
        for st in (2, 3):
            for ft in range(5):
                for x in w2_dma(st, ft): a(x)
        a(f's_add_u32 s47, s47, {(27 + 3)*1024}')
        a(f's_add_u32 s48, s48, {7*5120}')
        a.label(lx)
        for st in (2, 3):
            for ft in range(5):
                for x in w2_dma(st, ft): a(x)
    def mask():
        a(f's_and_b32 s40, s{SJ}, 2')
        a('s_cmp_eq_u32 s40, 0')
        a('s_mov_b32 s44, 0x0aaaaaaa')
        a('s_cselect_b32 s44, 0x05555555, s44')
        a('s_mov_b32 s45, 0')
    a(f's_and_b32 s20, s{SJ}, 3')
    a(f's_lshr_b32 s21, s{SJ}, 2')
    a('s_and_b32 s22, s12, 3')
    a('s_lshr_b32 s23, s12, 2')
    a(f's_lshl_b32 s29, s{SG}, 4')
    a('s_lshl_b32 s30, s20, 2')
    a('s_add_u32 s29, s29, s30')
    a('s_add_u32 s29, s29, s22')
    a('s_mul_i32 s32, s29, 55296')
    a('s_mul_i32 s33, s23, 27648')
    a('s_add_u32 s32, s32, s33')
    a(f's_add_u32 s32, s32, {WS_G}')
    a('s_mul_i32 s34, s23, 20480')
    a('v_add_u32 v8, s34, v10')
    a('v_add_u32 v9, 0x10000, v8')
    a('v_add_u32 v11, 0x20000, v8')
    srd(a, 52, 70, D * 2)
    sync(a, 2 if published else None, 2, mask, pre, w0_prefetch=False, pr=(253, 254))
    return vm

def ffn2_body(a, L):
    NST = 7
    vm = VM()
    for st in (0, 1, 2, 3):
        for ft in range(5): vm.issue(('w', st))
    BF, ACC, AF, T, HR, BB = 16, 124, 144, 184, 200, 208
    if 'f1stamp' not in gen.EXP: stamp(a, 12)
    def bload(i):
        a(f's_add_u32 s33, s32, {i*1024}')
        a(f'buffer_load_dwordx4 {v(BF+4*i,4)}, v10, s[8:11], s33 offen sc1')
        vm.issue(('b', i))
    NB0 = 6
    for i in range(NB0): bload(i)
    bq = list(range(NB0, 27))
    wq = [(st, ft) for st in range(4, 7) for ft in range(5)]
    def areads(ks, buf):
        st, i = ks >> 2, ks & 3
        for ft in range(5):
            off = F2_SLOT[st] + i * 5120 + ft * 1024
            base = {0: 8, 1: 9, 2: 11}[off >> 16]
            a(f'ds_read_b128 {v(AF+20*buf+4*ft,4)}, v{base} offset:{off & 65535}')
    F2S = 'f2stamp' in gen.EXP
    BX = 6
    if F2S: stamp(a, 2)
    vm.wait(a, lambda x: x == ('w', 0))
    a('s_barrier')
    if F2S: stamp(a, 3)
    areads(0, 0)
    for ks in range(27):
        if F2S and ks in (1, 4, 8, 12, 16, 20, 24): stamp(a, {1: 4, 4: 5, 8: 7, 12: 8, 16: 9, 20: 10, 24: 11}[ks])
        st, i = ks >> 2, ks & 3
        buf = ks & 1
        nxt = ks + 1
        if nxt < 27:
            if (nxt & 3) == 0:
                a('s_waitcnt lgkmcnt(0)')
                vm.wait(a, lambda x: x == ('w', nxt >> 2))
                a('s_barrier')
                areads(nxt, buf ^ 1)
                vm.wait(a, lambda x: x == ('b', ks))
            else:
                areads(nxt, buf ^ 1)
                vm.wait(a, lambda x: x == ('b', ks), ' lgkmcnt(5)')
        else:
            vm.wait(a, lambda x: x == ('b', ks), ' lgkmcnt(0)')
        for ft in range(5):
            acc = v(ACC + 4 * ft, 4)
            a(f'v_mfma_f32_16x16x32_bf16 {acc}, {v(AF+20*buf+4*ft,4)}, {v(BF+4*ks,4)}, {"0" if ks == 0 else acc}')
            if 'oldb' in gen.EXP:
                if ft in (1, 3) and bq and bq[0] <= ks + 12: bload(bq.pop(0))
            elif 'midb' in gen.EXP:
                if (ft == 1 or (ft == 3 and ks < BX)) and bq and bq[0] <= ks + 10: bload(bq.pop(0))
            elif ft == 1 and bq: bload(bq.pop(0))
            WS_ = (0, 2, 4) if ('oldb' in gen.EXP or 'midb' in gen.EXP) else ((2, 4) if (ks & 3) == 3 else (3,))
            if ft in WS_ and wq and (wq[0][0] - 4) < st + (1 if (nxt & 3) == 0 and nxt < 27 else 0):
                x_ = wq.pop(0)
                for x in w2_dma(*x_): a(x)
                vm.issue(('w', x_[0]))
        if ks == 21 and 'wbB' in gen.EXP:
            lw, lw2 = lab('wb'), lab('wb')
            a(f's_cmp_lg_u32 s{SJ}, 0'); a(f's_cbranch_scc1 {lw}')
            a('s_cmp_lg_u32 s12, 7'); a(f's_cbranch_scc1 {lw}')
            a('buffer_wbl2 sc1')
            a(f's_branch {lw2}')
            a.label(lw)
            a('buffer_load_dword v255, v10, s[8:11], s38 offen')
            a.label(lw2)
            vm.issue('wb')
        if ks == 20:
            a('v_and_b32 v5, 15, v2')
            a('v_lshrrev_b32 v6, 4, v2')
            a('s_mul_i32 s34, s29, 20480')
            a('s_mul_i32 s35, s21, 2560')
            a('s_add_u32 s34, s34, s35')
            a('s_mul_i32 s35, s23, 1536')
            a('s_add_u32 s34, s34, s35')
            a(f's_add_u32 s34, s34, {WS_H}')
            a('v_lshrrev_b32 v12, 1, v6')
            a('v_lshlrev_b32 v12, 8, v12')
            a('v_lshl_add_u32 v12, v5, 4, v12')
            a('v_and_b32 v13, 1, v6')
            a('v_lshl_add_u32 v12, v13, 3, v12')
            for i_ in range(3):
                a(f'buffer_load_dwordx2 {v(HR+2*i_,2)}, v12, s[8:11], s34 offen offset:{512*i_} sc1'); vm.issue('hr')
            a('s_mul_i32 s35, s21, 160')
            a('s_mul_i32 s36, s23, 96')
            a('s_add_u32 s35, s35, s36')
            a('v_lshlrev_b32 v13, 3, v6')
            for i_ in range(3):
                a(f'buffer_load_dwordx2 {v(BB+2*i_,2)}, v13, s[52:55], s35 offen offset:{32*i_}'); vm.issue('hr')
    assert not bq and not wq, (bq, wq)
    if 'f1stamp' not in gen.EXP: stamp(a, 13)
    XB = 81920
    a('s_mul_i32 s40, s12, 3072')
    a(f's_add_u32 s40, s40, {XB}')
    a('v_add_u32 v14, s40, v10')
    l1, l2 = lab('fx'), lab('fx')
    a('s_nop 7')
    a('s_cmp_eq_u32 s23, 0')
    a(f's_cbranch_scc0 {l1}')
    for i_, ft in enumerate((3, 4)): a(f'ds_write_b128 v14, {v(ACC+4*ft,4)} offset:{1024*i_}')
    a(f's_branch {l2}')
    a.label(l1)
    for ft in range(3): a(f'ds_write_b128 v14, {v(ACC+4*ft,4)} offset:{1024*ft}')
    a('s_waitcnt lgkmcnt(0)')
    for r in range(8): a(f'v_mov_b32 v{ACC+r}, v{ACC+12+r}')
    a.label(l2)
    a('s_xor_b32 s40, s12, 4')
    a('s_mul_i32 s40, s40, 3072')
    a(f's_add_u32 s40, s40, {XB}')
    a('v_add_u32 v14, s40, v10')
    a('s_waitcnt lgkmcnt(0)')
    a('s_barrier')
    for i_ in range(3): a(f'ds_read_b128 {v(T+4*i_,4)}, v14 offset:{1024*i_}')
    vm.wait(a, lambda x: x == 'hr', ' lgkmcnt(0)')
    for r in range(12): a(f'v_add_f32 v{ACC+r}, v{ACC+r}, v{T+r}')
    for i_ in range(3):
        for h2 in range(2):
            a(f'v_lshlrev_b32 v{T}, 16, v{HR+2*i_+h2}')
            a(f'v_and_b32 v{T+1}, 0xffff0000, v{HR+2*i_+h2}')
            a(f'v_lshlrev_b32 v{T+2}, 16, v{BB+2*i_+h2}')
            a(f'v_and_b32 v{T+3}, 0xffff0000, v{BB+2*i_+h2}')
            a(f'v_add_f32 v{ACC+4*i_+2*h2}, v{ACC+4*i_+2*h2}, v{T+2}')
            a(f'v_add_f32 v{ACC+4*i_+2*h2+1}, v{ACC+4*i_+2*h2+1}, v{T+3}')
            a(f'v_add_f32 v{ACC+4*i_+2*h2}, v{ACC+4*i_+2*h2}, v{T}')
            a(f'v_add_f32 v{ACC+4*i_+2*h2+1}, v{ACC+4*i_+2*h2+1}, v{T+1}')
    for i_ in range(6): a(f'v_cvt_pk_bf16_f32 v{T+4+i_}, v{ACC+2*i_}, v{ACC+2*i_+1}')
    a('s_lshl_b32 s33, s29, 4')
    a('v_add_u32 v7, s33, v5')
    a('s_movk_i32 s34, 1280')
    a('v_mul_lo_u32 v7, v7, s34')
    a('v_lshl_add_u32 v7, v6, 3, v7')
    a('s_mul_i32 s34, s21, 160')
    a('s_mul_i32 s35, s23, 96')
    a('s_add_u32 s34, s34, s35')
    a('s_cmp_eq_u32 s23, 0')
    a('s_cselect_b32 s35, s34, 0x7ff00000')
    OW = ' sc1' if 'outsc1' in gen.EXP else (' nt' if 'outnt' in gen.EXP else '')
    a(f'buffer_store_dwordx2 {v(T+4,2)}, v7, s[76:79], s34 offen' + OW)
    a(f'buffer_store_dwordx2 {v(T+6,2)}, v7, s[76:79], s34 offen offset:32' + OW)
    a(f'buffer_store_dwordx2 {v(T+8,2)}, v7, s[76:79], s35 offen offset:64' + OW)

def kf():
    a = Asm()
    merged = 'merge' in gen.EXP
    L = NAME + '_kernel' if merged else 'kf_kernel'
    kernel_begin(a, L)
    a('s_cmp_ge_u32 s2, 256')
    a(f's_cbranch_scc1 {L}_end')
    if merged:
        import gen5
        if gen.PROF: a('v_mov_b32 v254, v0')
        gen5.k1s(a, '.Ljoin')
        a.label('.Ljoin')
        a('s_waitcnt vmcnt(0) lgkmcnt(0)')
        a('s_barrier')
        if gen.PROF:
            srd(a, 8, 4, WS_END)
            stamp_flush(a, 1, 12, 8, 12)
            a('v_mov_b32 v0, v254')
            a('s_waitcnt vmcnt(0)')
        lj, lp, ld = lab('gb'), lab('gb'), lab('gb')
        a('s_cmp_lg_u32 s12, 0')
        a(f's_cbranch_scc1 {lj}')
        a(f's_load_dwordx2 s[20:21], s[0:1], {A_DBG}')
        a('s_and_b32 s40, s2, 7')
        a('s_lshl_b32 s40, s40, 5')
        a('v_mov_b32 v5, s40')
        a('v_mov_b32 v6, 1')
        a('v_and_b32 v7, 7, v0')
        a('v_lshlrev_b32 v7, 5, v7')
        a('s_waitcnt lgkmcnt(0)')
        a('s_mov_b64 exec, 1')
        a('global_atomic_add v5, v6, s[20:21] sc1')
        a('s_mov_b64 exec, 0xff')
        a('s_mov_b32 s41, 0')
        a.label(lp)
        a('global_load_dword v8, v7, s[20:21] sc1')
        a('s_add_u32 s41, s41, 1')
        a('s_waitcnt vmcnt(0)')
        a('v_cmp_ne_u32 vcc, 32, v8')
        a(f's_cbranch_vccz {ld}')
        a(f's_cmp_lt_u32 s41, {SPIN_MAX}')
        a(f's_cbranch_scc1 {lp}')
        a.label(ld)
        a('s_mov_b64 exec, -1')
        a.label(lj)
        a('s_barrier')
    stamp(a, 0, True); stamp(a, 1)
    if 'dbg' in gen.EXP:
        a('s_memrealtime s[90:91]'); a('s_memtime s[92:93]'); a(f's_load_dwordx2 s[94:95], s[0:1], {A_DBG}')
    if 'nocodepf' not in gen.EXP and not merged:
        code_touch(a, L, '.Lkf_last', '.Lpc_kf', 144, 151, 2)
    a(f's_load_dwordx2 s[4:5], s[0:1], {A_WS}')
    a(f's_load_dwordx2 s[68:69], s[0:1], {A_X}')
    a(f's_load_dwordx2 s[70:71], s[0:1], {A_OUT}')
    a(f's_and_b32 s{SG}, s2, 7')
    a(f's_lshr_b32 s{SJ}, s2, 3')
    a(f's_mov_b32 s{SH}, s{SJ}')
    a(f's_mov_b32 s{SR}, s{SG}')
    a('v_lshrrev_b32 v1, 6, v0')
    a('v_and_b32 v2, 63, v0')
    a('v_readfirstlane_b32 s12, v1')
    a('v_and_b32 v3, 31, v2')
    a('v_lshrrev_b32 v4, 5, v2')
    a(f's_getreg_b32 s{SPURE}, hwreg(HW_REG_XCC_ID, 0, 4)')
    a(f's_add_u32 s{SPURE}, s{SPURE}, 1')
    attn_setup(a, SH, SR, 12, 8, defer=True)
    a('s_waitcnt lgkmcnt(0)')
    srd(a, 8, 4, WS_END)
    attn_dma(a, 0, 8)
    attn_qloads(a, 8)
    srd(a, 72, 68, S * D * 2)
    srd(a, 76, 70, S * D * 2)
    a(f's_load_dwordx2 s[68:69], s[0:1], {A_B1}')
    a(f's_load_dwordx2 s[70:71], s[0:1], {A_B2}')
    stamp(a, 2)
    phase_attn(a, L)
    phase_oproj(a)
    stamp(a, 5)
    a(f's_cmp_ge_u32 s{SJ}, 28')
    a(f's_cbranch_scc1 {L}_idle')
    phase_ffn1(a, None)
    phase_ffn2(a, L, True)
    a(f's_branch {L}_f2')
    a.label(f'{L}_idle')
    a('s_waitcnt vmcnt(0)')
    a('s_barrier')
    li = lab('id')
    a('s_cmp_lg_u32 s12, 0')
    a(f's_cbranch_scc1 {li}')
    flag_store(a, 1, 14)
    a.label(li)
    if 'wbA' in gen.EXP:
        lw = lab('wb')
        a(f's_cmp_lg_u32 s{SJ}, 28'); a(f's_cbranch_scc1 {lw}')
        a('s_cmp_lg_u32 s12, 1'); a(f's_cbranch_scc1 {lw}')
        a('s_sleep 40')
        a('buffer_wbl2 sc1')
        a('s_waitcnt vmcnt(0)')
        a.label(lw)
    w2_setup(a)
    for st in (0, 1):
        for ft in range(5):
            for x in w2_dma(st, ft): a(x)
    a('s_waitcnt vmcnt(0)')
    phase_ffn2(a, L, False)
    a.label(f'{L}_f2')
    ffn2_body(a, L)
    a.label(f'{L}_fin')
    if 'f1stamp' not in gen.EXP: stamp(a, 14)
    if 'dbg' in gen.EXP:
        a('s_waitcnt vmcnt(0)')
        a('s_memrealtime s[96:97]'); a('s_memtime s[86:87]'); a('s_waitcnt lgkmcnt(0)')
        ldb = lab('db')
        a('s_cmp_lg_u32 s2, 0'); a(f's_cbranch_scc1 {ldb}'); a('s_cmp_lg_u32 s12, 0'); a(f's_cbranch_scc1 {ldb}')
        a('s_sub_u32 s96, s96, s90'); a('s_sub_u32 s86, s86, s92')
        a('v_mov_b32 v0, 0'); a('v_mov_b32 v2, s96'); a('v_mov_b32 v3, s86'); a('v_mov_b32 v4, s90'); a('v_mov_b32 v5, 0')
        a('global_store_dwordx4 v0, v[2:5], s[94:95] offset:16')
        a(f's_mov_b32 s86, {WS_PROF}')
        a('buffer_load_dwordx4 v[6:9], v0, s[8:11], s86 offen')
        a('s_waitcnt vmcnt(0)')
        a('global_store_dwordx4 v0, v[6:9], s[94:95]')
        a.label(ldb)
    if gen.PROF: a('s_waitcnt vmcnt(0)')
    stamp(a, 6, True)
    if 'dbgst' in gen.EXP:
        ldb = lab('db')
        a(f's_load_dwordx2 s[20:21], s[0:1], {A_DBG}')
        a('s_waitcnt lgkmcnt(0)')
        a('s_cmp_lg_u32 s2, 8'); a(f's_cbranch_scc1 {ldb}'); a('s_cmp_lg_u32 s12, 0'); a(f's_cbranch_scc1 {ldb}')
        a('v_mbcnt_lo_u32_b32 v0, -1, 0'); a('v_mbcnt_hi_u32_b32 v0, -1, v0'); a('v_mov_b32 v1, 0')
        for i in range(16):
            src = PS + i if i != 15 else PS + 1
            a(f's_sub_u32 s22, s{src}, s{PS+1}') if i not in (0, 6) else a(f's_mov_b32 s22, s{src}')
            a('v_mov_b32 v2, s22'); a(f'v_cmp_eq_u32 vcc, {i}, v0'); a('v_cndmask_b32 v1, v1, v2, vcc')
        a('v_lshlrev_b32 v0, 2, v0')
        a('s_mov_b64 exec, 0xffff')
        a('global_store_dword v0, v1, s[20:21]')
        a('s_mov_b64 exec, -1')
        a.label(ldb)
    else:
        stamp_flush(a, 2, 15, 8, 12)
    a.label(f'{L}_end')
    a('s_endpgm')
    attn_fallback(a)
    a.label('.Lkf_last')
    a('s_endpgm')
    if merged: return a, descriptor(L, 256, 102), '; @launch grid=(256,1,1) block=(512,1,1) lds=163840'
    return a, descriptor(L, 256, 102), f'; @launch kernel={L} grid=(256,1,1) block=(512,1,1) lds=163840'

if __name__ == '__main__':
    if 'prof' in sys.argv: gen.PROF = True
    for x in sys.argv[2:]:
        if x.startswith('x:'): gen.EXP.add(x[2:])
    out = sys.argv[1]
    import gen4, gen5
    ks_ = [kf] if 'merge' in gen.EXP else ([k0, k1, kf] if 'old' in gen.EXP else [gen4.k1p if 'k1p' in gen.EXP else gen5.k1s, kf])
    open(out, 'w').write(build(ks_))
    print('wrote', out)
```

```python
import sys
sys.path.insert(0, 'dev')
import gen, gen2
from gen import *
from gen2 import lab, stores2, attn_units, wo_dma, WS_XT, SG, SJ, SPURE, LDS_WO, SPIN_MAX
from asmlib import *

class VM:
    def __init__(self): self.ops = []
    def issue(self, tag): self.ops.append(tag)
    def count_after(self, pred):
        n = 0
        for x in reversed(self.ops):
            if pred(x): return n
            n += 1
        raise Exception('no op matches')
    def wait(self, a, pred, extra=''):
        a(f's_waitcnt vmcnt({min(self.count_after(pred), 63)}){extra}')

XR0 = 136
W1A, W1B = 152, 16
def w1reg(s): return W1A + 4 * s if s < 26 else W1B + 4 * (s - 26)
SH, SR = 36, 37
S_OOB = 38
S_DONE = 39
FB_LDS = 159744
S_W1 = 98
V_W1 = 1

def flag_store(a, p, vt):
    g_, j_ = (SR, SH) if p == 0 else (SG, SJ)
    a(f's_lshl_b32 s40, s{g_}, 7')
    a(f's_lshl_b32 s41, s{j_}, 2')
    a('s_add_u32 s40, s40, s41')
    a(f's_add_u32 s40, s40, {WS_FLAG + p*1024}')
    a(f'v_mov_b32 v{vt}, 0')
    a(f'v_mov_b32 v{vt+1}, 1')
    a('s_mov_b64 exec, 1')
    stores2(a, [f'buffer_store_dword v{vt+1}, v{vt}, s[8:11], s40 offen'])
    a('s_mov_b64 exec, -1')

def sync(a, p_pub, p_wait, smask_setup, prefetch, vt=14, drained=False, w0_prefetch=True, pre_pub=None, pr=(149, 150)):
    if pre_pub is not None:
        lpa, lpb = lab('pp'), lab('pp')
        a('s_cmp_lg_u32 s12, 0')
        a(f's_cbranch_scc0 {lpa}')
        n_after = pre_pub()
        a(f's_waitcnt vmcnt({n_after})')
        a(f's_branch {lpb}')
        a.label(lpa)
        a('s_waitcnt vmcnt(0)')
        a.label(lpb)
        if p_pub is not None: a('s_barrier')
    elif p_pub is not None and not drained:
        a('s_waitcnt vmcnt(0)')
        a('s_barrier')
    l0, l1, lp, ld, l3 = lab('sy'), lab('sy'), lab('sy'), lab('sy'), lab('sy')
    a('s_cmp_lg_u32 s12, 0')
    a(f's_cbranch_scc1 {l0}')
    if p_pub is not None: flag_store(a, p_pub, vt)
    smask_setup()
    a(f's_lshl_b32 s40, s{SG}, 7')
    a(f's_add_u32 s40, s40, {WS_FLAG + p_wait*1024}')
    a(f'v_lshlrev_b32 v{vt}, 2, v2')
    a('s_mov_b64 exec, s[44:45]')
    a('s_mov_b32 s41, 0')
    if 'poll1' in gen.EXP:
        a.label(lp)
        a(f'buffer_load_dword v{vt+1}, v{vt}, s[8:11], s40 offen sc1')
        a('s_add_u32 s41, s41, 1')
        a('s_waitcnt vmcnt(0)')
        a(f'v_cmp_eq_u32 vcc, 0, v{vt+1}')
        a(f's_cbranch_vccz {ld}')
        a(f's_cmp_lt_u32 s41, {SPIN_MAX}')
        a(f's_cbranch_scc1 {lp}')
        a.label(ld)
    else:
        p0, p1 = pr
        a(f'buffer_load_dword v{p0}, v{vt}, s[8:11], s40 offen sc1')
        a.label(lp)
        a(f'buffer_load_dword v{p1}, v{vt}, s[8:11], s40 offen sc1')
        a('s_waitcnt vmcnt(1)')
        a(f'v_cmp_eq_u32 vcc, 0, v{p0}')
        a(f's_cbranch_vccz {ld}')
        a(f'buffer_load_dword v{p0}, v{vt}, s[8:11], s40 offen sc1')
        a('s_add_u32 s41, s41, 1')
        a('s_waitcnt vmcnt(1)')
        a(f'v_cmp_eq_u32 vcc, 0, v{p1}')
        a(f's_cbranch_vccz {ld}')
        a(f's_cmp_lt_u32 s41, {SPIN_MAX}')
        a(f's_cbranch_scc1 {lp}')
        a.label(ld)
    a('s_mov_b64 exec, -1')
    a(f's_cmp_eq_u32 s{SPURE}, 1')
    a(f's_cbranch_scc1 {l3}')
    a('buffer_inv sc1')
    a('s_waitcnt vmcnt(0)')
    a.label(l3)
    a('s_barrier')
    if w0_prefetch: prefetch()
    a(f's_branch {l1}')
    a.label(l0)
    prefetch()
    a('s_barrier')
    a.label(l1)

def late_init(a, vm, L):
    merged = 'merge' in gen.EXP
    if not merged:
        a(f's_lshl_b32 s40, s{SG}, 7')
        a(f's_lshl_b32 s41, s{SJ}, 2')
        a('s_add_u32 s40, s40, s41')
        a(f's_add_u32 s40, s40, {WS_XT}')
        a('s_cmp_eq_u32 s12, 0')
        a('s_cselect_b32 s40, s40, 0x7ff00000')
        a('v_mov_b32 v14, 0')
        a(f'v_mov_b32 v15, s{SPURE}')
        a('s_mov_b64 exec, 1')
        a('buffer_store_dword v15, v14, s[8:11], s40 offen sc1')
        a('s_mov_b64 exec, -1')
        vm.issue('xts')

def phase_attn(a, L):
    R = AR
    attn_ones(a)
    a(f's_lshr_b32 s62, s{SJ}, 2')
    a('s_mul_i32 s62, s62, 102400')
    a(f's_add_u32 s62, s62, {WS_WO}')
    a('s_lshl_b32 s61, s12, 10')
    a('s_add_u32 s62, s62, s61')
    a('s_cmp_lt_u32 s12, 4')
    a(f's_mov_b32 s63, {11*8192}')
    a(f's_cselect_b32 s63, {12*8192}, s63')
    a('s_add_u32 s63, s63, s62')
    a(f's_add_u32 s61, s61, {LDS_WO}')
    if 'rolled' in gen.EXP:
        for r in range(32): a(f'v_mov_b32 v{R.O+r}, 0')
        for r in range(16): a(f'v_mov_b32 v{R.P+r}, 0')
        for r in range(16): a(f'v_mov_b32 v{R.VV+r}, 0')
    vm = VM()
    a(f's_mov_b32 s{S_DONE}, 0')
    a(f'v_mov_b32 v14, {FB_LDS}')
    a('v_mov_b32 v15, 0')
    a('ds_write_b32 v14, v15')
    def w1_addr(a_):
        lane_swap23(a_, 14, 3, 15)
        a_('v_lshrrev_b32 v15, 4, v14')
        a_('s_movk_i32 s40, 20480')
        a_('v_mul_lo_u32 v15, v15, s40')
        a_('v_and_b32 v14, 15, v14')
        a_('v_lshl_add_u32 v15, v14, 4, v15')
        a_(f'v_lshl_add_u32 v{V_W1}, v4, 8, v15')
        a_(f's_lshr_b32 s40, s{SJ}, 1')
        a_('s_lshl_b32 s40, s40, 2')
        a_('s_and_b32 s41, s12, 3')
        a_('s_add_u32 s40, s40, s41')
        a_('s_mul_i32 s41, s40, 40960')
        a_(f's_add_u32 s41, s41, {WS_W1}')
        a_('s_cmp_lt_u32 s40, 54')
        a_(f's_cselect_b32 s{S_W1}, s41, 0x7ff00000')
    def touch_addr(a_):
        a_(f's_mov_b32 s{S_OOB}, 0x7ff00000')
        lt1, lt2 = lab('tc'), lab('tc')
        a_('v_lshlrev_b32 v148, 7, v2')
        a_('s_cmp_ge_u32 s12, 4')
        a_(f's_cbranch_scc1 {lt1}')
        a_(f's_mul_i32 s50, s{SG}, {16*20480}')
        a_(f's_mul_i32 s40, s{SJ}, 10240')
        a_('s_add_u32 s50, s50, s40')
        a_('s_and_b32 s40, s12, 1')
        a_('s_mul_i32 s40, s40, 5120')
        a_('s_add_u32 s50, s50, s40')
        a_('s_lshr_b32 s40, s12, 1')
        a_(f's_mul_i32 s40, s40, {WS_H - WS_O}')
        a_('s_add_u32 s50, s50, s40')
        a_(f's_add_u32 s50, s50, {WS_O}')
        a_('v_add_u32 v148, s50, v148')
        a_(f's_lshr_b32 s40, s{SJ}, 1')
        a_('s_lshl_b32 s40, s40, 14')
        a_(f's_lshl_b32 s41, s{SG}, 11')
        a_('s_add_u32 s40, s40, s41')
        a_(f's_and_b32 s41, s{SJ}, 1')
        a_('s_lshl_b32 s41, s41, 10')
        a_('s_add_u32 s40, s40, s41')
        a_(f's_add_u32 s40, s40, {WS_ST2 - 40*128}')
        a_('s_cmp_eq_u32 s12, 2')
        a_('s_cselect_b32 s40, s40, 0x7ff00000')
        a_('v_lshlrev_b32 v149, 7, v2')
        a_('v_add_u32 v149, s40, v149')
        a_('v_mov_b32 v14, 0x7ff00000')
        a_('v_cmp_gt_u32 vcc, 48, v2')
        a_('v_cndmask_b32 v149, v14, v149, vcc')
        a_('v_cmp_gt_u32 vcc, 40, v2')
        a_('v_cndmask_b32 v148, v149, v148, vcc')
        a_(f's_branch {lt2}')
        a_.label(lt1)
        a_('s_sub_u32 s40, s12, 4')
        a_('s_lshl_b32 s40, s40, 5')
        a_(f's_add_u32 s40, s40, s{SJ}')
        a_('s_mul_i32 s50, s40, 20480')
        a_(f's_add_u32 s50, s50, {WS_W1 + 13312}')
        a_('s_cmp_lt_u32 s40, 108')
        a_('s_cselect_b32 s50, s50, 0x7ff00000')
        a_('v_add_u32 v148, s50, v148')
        a_('v_mov_b32 v14, 0x7ff00000')
        a_('v_cmp_gt_u32 vcc, 56, v2')
        a_('v_cndmask_b32 v148, v14, v148, vcc')
        a_.label(lt2)
        a_('v_lshlrev_b32 v147, 7, v2')
        a_('s_lshl_b32 s40, s12, 13')
        a_(f's_mul_i32 s51, s{SG}, {16*55296}')
        a_(f's_mul_i32 s41, s{SJ}, 27648')
        a_('s_add_u32 s51, s51, s41')
        a_('s_add_u32 s51, s51, s40')
        a_(f's_add_u32 s51, s51, {WS_G}')
        a_('s_cmp_ge_u32 s12, 4')
        a_('s_cselect_b32 s51, 0x7ff00000, s51')
        a_(f's_and_b32 s40, s{SJ}, 3')
        a_('s_lshl_b32 s40, s40, 2')
        a_(f's_lshl_b32 s41, s{SG}, 4')
        a_('s_add_u32 s40, s40, s41')
        a_('s_and_b32 s41, s12, 3')
        a_('s_add_u32 s40, s40, s41')
        a_('s_lshl_b32 s40, s40, 4')
        a_('v_and_b32 v0, 15, v2')
        a_('v_add_u32 v0, s40, v0')
        a_('s_movk_i32 s41, 1280')
        a_('v_mul_lo_u32 v0, v0, s41')
        a_('v_lshrrev_b32 v14, 4, v2')
        a_('v_lshl_add_u32 v0, v14, 3, v0')
        a_(f's_lshr_b32 s57, s{SJ}, 2')
        a_('s_mul_i32 s57, s57, 160')
        a_('s_lshr_b32 s40, s12, 2')
        a_('s_mul_i32 s40, s40, 96')
        a_('s_add_u32 s57, s57, s40')
    INLOOP = 'rolled' not in gen.EXP
    if not INLOOP:
        w1_addr(a); touch_addr(a)
    def rec(fn):
        t_ = Asm(); fn(t_); return list(t_.lines)
    if 'earlyinit' in gen.EXP: late_init(a, VM(), L)
    a('s_waitcnt vmcnt(0)')
    for st in (1, 2):
        attn_dma(a, st, 8); vm.issue(('kv', st)); vm.issue(('kv', st))
    for x in wo_dma(): a(x)
    vm.issue('wo')
    if 'earlyinit' not in gen.EXP: late_init(a, vm, L)
    if 'notlb' not in gen.EXP:
        a('v_lshlrev_b32 v149, 16, v2')
        a('s_lshl_b32 s40, s12, 22')
        a('buffer_load_dword v149, v149, s[8:11], s40 offen')
        a('v_lshlrev_b32 v148, 16, v2')
        a('buffer_load_dword v148, v148, s[76:79], 0 offen')
    a('v_cmp_gt_u32 vcc, 32, v2')
    for r in range(4): a(f'v_cndmask_b32 v{R.QC+r}, 0, v{R.QC+r}, vcc')
    a('s_waitcnt lgkmcnt(0)')
    a('s_barrier')
    a(f'ds_read_b128 {v(R.KA,4)}, v11 offset:0')
    a(f'ds_read_b64 {v(R.KC,2)}, v12 offset:0')
    a('s_waitcnt lgkmcnt(0)')
    a(f'v_mfma_f32_32x32x16_bf16 {v(R.S,16)}, {v(R.KA,4)}, {v(R.QA,4)}, 0')
    a(f'v_mfma_f32_32x32x8bf16_1k {v(R.S,16)}, {v(R.KC,2)}, {v(R.QC,2)}, {v(R.S,16)}')
    stamp(a, 7)
    wnext = [0]
    def w1load():
        s_ = wnext[0]; wnext[0] += 1
        return [f's_add_u32 s40, s{S_W1}, {s_*512}', f'buffer_load_dwordx4 {v(w1reg(s_),4)}, v{V_W1}, s[8:11], s40 offen']
    plan = {}
    waits = {}
    nW = {2: 3, 3: 3, 4: 3, 5: 3, 6: 4, 7: 4, 8: 3, 9: 3}
    if 'now1a' in gen.EXP: nW = {}
    ROLL = 'rolled' in gen.EXP
    if ROLL: nW = {8: 4, 9: 4, 10: 4, 11: 4, 12: 4, 13: 3, 14: 3}
    def masked(sreg, cond_lo, cond_hi, vreg):
        return [f's_sub_u32 s40, s12, {cond_lo}', f's_cmp_lt_u32 s40, {cond_hi - cond_lo}', f's_cselect_b32 s40, {sreg}, s{S_OOB}',
                f'buffer_load_dword v149, v{vreg}, s[8:11], s40 offen']
    for g in range(16):
        ex = {}
        k = nW.get(g, 0)
        slots = sorted([(0, 20), (1, 8), (1, 20), (2, 20)][:k])
        if g <= 11:
            ex.setdefault(0, {})[8] = wo_dma(); vm.issue('wo')
        if INLOOP and g == 0: ex.setdefault(1, {})[9] = rec(w1_addr)
        if INLOOP and g == 1:
            tl_ = rec(touch_addr)
            ex.setdefault(1, {})[9] = tl_
        if g == 12:
            ex.setdefault(0, {})[8] = [f's_lshl_b32 s40, s{SG}, 7', f's_add_u32 s40, s40, {WS_XT}', 'v_lshlrev_b32 v150, 2, v3',
                                       'buffer_load_dword v150, v150, s[8:11], s40 offen sc1']
            vm.issue('xt')
        tl = None
        if g == 10: tl = masked('0', 4, 6, 148)
        if g == 11: tl = masked('0', 6, 8, 148)
        if g == 12: tl = masked('0', 0, 4, 148)
        if g == 13: tl = ['buffer_load_dword v149, v147, s[8:11], s51 offen']
        if tl and 'notouch' not in gen.EXP:
            ex.setdefault(1, {})[14] = tl; vm.issue('touch')
        post = []
        pre_ops = []
        for (u, pos) in slots:
            if u < 2: ex.setdefault(u, {})[pos] = w1load(); vm.issue('w1')
            else: post.append((u, pos))
        if g < 15: waits[g] = vm.count_after(lambda x: x == ('kv', g + 1))
        if ROLL and g < 8: waits[g] = 4
        for (u, pos) in post:
            ex.setdefault(u, {})[pos] = w1load(); vm.issue('w1')
        if g <= 12:
            vm.issue(('kv', g + 3)); vm.issue(('kv', g + 3))
        if g == 13:
            ex.setdefault(3, {})[20] = [f'buffer_load_dwordx2 {v(XR0+2*i,2)}, v0, s[72:75], s57 offen offset:{32*i}' for i in range(3)]
            for i in range(3): vm.issue('xr')
        plan[g] = ex
    assert wnext[0] == 26 or 'now1a' in gen.EXP, wnext
    def run(stages_g):
        loc = {g % 4: g for g in stages_g}
        def prio(st, u):
            g = loc[st]
            if g == 15: return {0: 2, 1: 1, 2: 1, 3: 0}[u]
            if g == 14 and u >= 2: return 3
            return {2: 3, 3: 2, 0: 1, 1: 0}[u]
        return attn_units(a, 8, [(g % 4, g == 15) for g in stages_g], lambda st: loc[st] <= 12,
                          lambda st, u: plan[loc[st]].get(u, {}), lambda st: waits[loc[st]], prio,
                          start=(stages_g[0] == 0 and 'rolled' not in gen.EXP))
    if ROLL:
        a('s_mov_b32 s60, 2')
        a.label('.Lat_loop')
        run([4, 5, 6, 7])
        a('s_sub_u32 s60, s60, 1')
        a('s_cmp_lg_u32 s60, 0')
        a('s_cbranch_scc1 .Lat_loop')
        run([8, 9, 10, 11])
    else:
        for b_ in range(3): run([4*b_ + i for i in range(4)])
    m1, m2, m3, m4, _ = run([12, 13, 14, 15])
    a(m3(1, 1, 1)); a(m4(1, 1, 1))
    a('s_setprio 0')
    stamp(a, 3)
    lp, ld = lab('xt'), lab('xt')
    a('s_mov_b32 s41, 0')
    a('v_cmp_eq_u32 vcc, 0, v150')
    a(f's_cbranch_vccz {ld}')
    a.label(lp)
    a(f's_lshl_b32 s40, s{SG}, 7')
    a(f's_add_u32 s40, s40, {WS_XT}')
    a('v_lshlrev_b32 v14, 2, v3')
    a('buffer_load_dword v150, v14, s[8:11], s40 offen sc1')
    a('s_add_u32 s41, s41, 1')
    a('s_waitcnt vmcnt(0)')
    a('v_cmp_eq_u32 vcc, 0, v150')
    a(f's_cbranch_vccz {ld}')
    a(f's_cmp_lt_u32 s41, {SPIN_MAX}')
    a(f's_cbranch_scc1 {lp}')
    a.label(ld)
    a(f'v_cmp_ne_u32 vcc, s{SPURE}, v150')
    a('s_cmp_eq_u64 vcc, 0')
    a(f's_cselect_b32 s{SPURE}, 1, 0')
    if 'slow' in gen.EXP: a(f's_mov_b32 s{SPURE}, 0')
    TT = R.S
    a.label('.Lat_combine')
    a('s_cmp_eq_u32 s46, 0')
    a('s_cbranch_scc1 .Lat_noswap')
    a('s_nop 7')
    for r in range(12): a(f'v_swap_b32 v{R.O+r}, v{R.O+16+r}')
    a.label('.Lat_noswap')
    a('s_nop 7')
    a(f's_mul_i32 s40, s12, 3072')
    a('v_add_u32 v14, s40, v10')
    for i in range(3): a(f'ds_write_b128 v14, {v(R.O+16+4*i,4)} offset:{1024*i}')
    a('s_xor_b32 s40, s12, 4')
    a('s_mul_i32 s40, s40, 3072')
    a('v_add_u32 v14, s40, v10')
    a('s_waitcnt lgkmcnt(0)')
    a('s_barrier')
    for i in range(3): a(f'ds_read_b128 {v(TT+4*i,4)}, v14 offset:{1024*i}')
    a('s_waitcnt lgkmcnt(0)')
    for r in range(12): a(f'v_add_f32 v{R.O+r}, v{R.O+r}, v{TT+r}')
    a(f'v_mov_b32 v{TT}, v{R.O+8}')
    a(f'v_mov_b32 v{TT+1}, v{R.O+8}')
    a(f'v_permlane32_swap_b32 v{TT}, v{TT+1}')
    a(f'v_mov_b32 v{TT+2}, 0')
    for r in range(12): a(f'v_fmac_f32 v{TT+2}, 0, v{R.O+r}')
    a('s_mov_b32 s40, 0x1f800000')
    a(f'v_cmp_nle_f32 vcc, s40, v{TT+1}')
    a('s_mov_b32 s40, 0x5f800000')
    a(f'v_cmp_nge_f32 s[44:45], s40, v{TT+1}')
    a('s_or_b64 s[44:45], s[44:45], vcc')
    a(f'v_cmp_u_f32 vcc, v{TT+2}, v{TT+2}')
    a('s_or_b64 s[44:45], s[44:45], vcc')
    if 'forcefb' in gen.EXP: a('s_mov_b64 s[44:45], -1')
    lok = lab('ok')
    a('s_cmp_eq_u64 s[44:45], 0')
    a(f's_cbranch_scc1 {lok}')
    a(f'v_mov_b32 v{TT+2}, {FB_LDS}')
    a(f'v_mov_b32 v{TT+3}, 1')
    a(f'ds_write_b32 v{TT+2}, v{TT+3}')
    a.label(lok)
    a(f'v_rcp_f32 v{TT+1}, v{TT+1}')
    for r in range(12): a(f'v_mul_f32 v{R.O+r}, v{R.O+r}, v{TT+1}')
    for i in range(6): a(f'v_cvt_pk_bf16_f32 v{TT+4+i}, v{R.O+2*i}, v{R.O+2*i+1}')
    a('s_mul_i32 s61, s46, 40960')
    a('s_add_u32 s61, s61, s47')
    a(f's_add_u32 s61, s61, {WS_O}')
    a('s_lshl_b32 s62, s42, 8')
    a('s_add_u32 s62, s62, s61')
    a('s_lshl_b32 s63, s43, 8')
    a('s_add_u32 s63, s63, s61')
    a(f's_and_b32 s61, s{SH}, 1')
    a('s_lshl_b32 s61, s61, 3')
    a('s_add_u32 s63, s63, s61')
    stores2(a, [f'buffer_store_dwordx4 {v(TT+4,4)}, v7, s[8:11], s62 offen',
                's_mov_b64 exec, 0xffffffff',
                f'buffer_store_dwordx2 {v(TT+8,2)}, v5, s[8:11], s63 offen',
                's_mov_b64 exec, -1'])
    stamp(a, 4)
    oproj_setup(a)
    a('s_waitcnt vmcnt(0) lgkmcnt(0)')
    a('s_barrier')
    a(f'v_mov_b32 v14, {FB_LDS}')
    a('ds_read_b32 v15, v14')
    a('s_waitcnt lgkmcnt(0)')
    a('v_readfirstlane_b32 s40, v15')
    a(f's_sub_u32 s40, s40, s{S_DONE}')
    a('s_cmp_eq_u32 s40, 1')
    a('s_cbranch_scc1 .Lat_fallback')
    a.label('.Lat_done')

def attn_fallback(a):
    R = AR
    SL = 2 * AT_SLOT
    S_, M0_, M1_ = R.S, R.S + 16, R.S + 17
    a.label('.Lat_fallback')
    a(f's_mov_b32 s{S_DONE}, 1')
    def load_stage():
        a('s_barrier')
        for x in attn_dma_parts(2, 8)[0] + attn_dma_parts(2, 8)[1]: a(x)
        a('s_waitcnt vmcnt(0)')
        a('s_barrier')
    def rewind():
        a(f's_sub_u32 s52, s52, {16*5120}')
        a(f's_sub_u32 s53, s53, {16*163840}')
    def scores(t, j):
        a(f'v_mfma_f32_32x32x16_bf16 {v(S_,16)}, {v(R.KA,4)}, {v(R.QA+4*j,4)}, 0')
        a(f'v_mfma_f32_32x32x8bf16_1k {v(S_,16)}, {v(R.KC,2)}, {v(R.QC+2*j,2)}, {v(S_,16)}')
    def kread(t):
        a(f'ds_read_b128 {v(R.KA,4)}, v11 offset:{SL + t*1024}')
        a(f'ds_read_b64 {v(R.KC,2)}, v12 offset:{SL + t*512}')
    rewind()
    a(f'v_mov_b32 v{M0_}, 0xff7fffff'); a(f'v_mov_b32 v{M1_}, 0xff7fffff')
    a('s_mov_b32 s60, 16')
    a.label('.Lat_fb1')
    load_stage()
    for t in range(2):
        kread(t)
        a('s_waitcnt lgkmcnt(0)')
        for j in range(2):
            scores(t, j)
            m = M0_ + j
            for r in range(0, 16, 2): a(f'v_max3_f32 v{m}, v{S_+r}, v{S_+r+1}, v{m}')
    a('s_sub_u32 s60, s60, 1')
    a('s_cmp_lg_u32 s60, 0')
    a('s_cbranch_scc1 .Lat_fb1')
    for j in range(2):
        m = M0_ + j
        a(f'v_mov_b32 v{S_}, v{m}'); a(f'v_mov_b32 v{S_+1}, v{m}')
        a(f'v_permlane32_swap_b32 v{S_}, v{S_+1}')
        a(f'v_max_f32 v{m}, v{S_}, v{S_+1}')
    a('s_barrier')
    a('s_lshl_b32 s40, s12, 9')
    a('v_lshlrev_b32 v14, 3, v2')
    a('v_add_u32 v14, s40, v14')
    a(f'ds_write_b64 v14, {v(M0_,2)}')
    a('s_xor_b32 s40, s12, 4')
    a('s_lshl_b32 s40, s40, 9')
    a('v_lshlrev_b32 v14, 3, v2')
    a('v_add_u32 v14, s40, v14')
    a('s_waitcnt lgkmcnt(0)')
    a('s_barrier')
    a(f'ds_read_b64 {v(S_,2)}, v14')
    a('s_waitcnt lgkmcnt(0)')
    a(f'v_max_f32 v{M0_}, v{M0_}, v{S_}')
    a(f'v_max_f32 v{M1_}, v{M1_}, v{S_+1}')
    rewind()
    for r in range(32): a(f'v_mov_b32 v{R.O+r}, 0')
    a('s_mov_b32 s60, 16')
    a.label('.Lat_fb2')
    load_stage()
    for t in range(2):
        kread(t)
        a(f'ds_read_b128 {v(R.VV,4)}, v13 offset:{SL + t*2048}')
        a(f'ds_read_b128 {v(R.VV+4,4)}, v13 offset:{SL + t*2048 + 1024}')
        a('s_waitcnt lgkmcnt(0)')
        for j in range(2):
            scores(t, j)
            for r in range(16): a(f'v_sub_f32 v{S_+r}, v{S_+r}, v{M0_+j}')
            for r in range(16): a(f'v_exp_f32 v{S_+r}, v{S_+r}')
            for i in range(8): a(f'v_cvt_pk_bf16_f32 v{R.P+i}, v{S_+2*i}, v{S_+2*i+1}')
            a(f'v_mfma_f32_32x32x16_bf16 {v(R.O+16*j,16)}, {v(R.VV,4)}, {v(R.P,4)}, {v(R.O+16*j,16)}')
            a(f'v_mfma_f32_32x32x16_bf16 {v(R.O+16*j,16)}, {v(R.VV+4,4)}, {v(R.P+4,4)}, {v(R.O+16*j,16)}')
    a('s_sub_u32 s60, s60, 1')
    a('s_cmp_lg_u32 s60, 0')
    a('s_cbranch_scc1 .Lat_fb2')
    a('s_nop 15')
    a('s_barrier')
    a('s_branch .Lat_combine')

def oproj_setup(a):
    BF, AF, ACC, XR, T = 16, 56, 96, XR0, 116
    a(f's_and_b32 s20, s{SJ}, 3')
    a(f's_lshr_b32 s21, s{SJ}, 2')
    a('s_and_b32 s22, s12, 3')
    a('s_lshr_b32 s23, s12, 2')
    a(f's_lshl_b32 s29, s{SG}, 4')
    a('s_lshl_b32 s30, s20, 2')
    a('s_add_u32 s29, s29, s30')
    a('s_add_u32 s29, s29, s22')
    a('v_and_b32 v14, 15, v2')
    a('v_lshrrev_b32 v15, 4, v2')
    a('s_mul_i32 s30, s29, 20480')
    a('s_mul_i32 s31, s23, 10240')
    a('s_add_u32 s30, s30, s31')
    a(f's_add_u32 s30, s30, {WS_O}')
    a('s_mul_i32 s33, s23, 10240')
    a(f's_add_u32 s33, s33, {LDS_WO}')
    a('s_cmp_eq_u32 s23, 0')
    a(f's_cselect_b32 s34, 0, {3*20480}')
    a('s_add_u32 s34, s34, s33')
    a('v_add_u32 v142, s34, v10')
    a(f's_cselect_b32 s34, {2*20480}, 0') if False else None
    a('s_cmp_eq_u32 s23, 0')
    a(f's_cselect_b32 s34, {2*20480}, 0')
    a('s_add_u32 s34, s34, s33')
    a('v_add_u32 v143, s34, v10')
    a('s_cmp_eq_u32 s23, 0')
    a(f's_mov_b32 s35, {20480}')
    a(f's_cselect_b32 s34, {3*20480}, s35')
    a('s_add_u32 s34, s34, s33')
    a('v_add_u32 v145, s34, v10')
    a('s_mul_i32 s40, s12, 3072')
    a('s_add_u32 s40, s40, 32768')
    a('v_add_u32 v146, s40, v10')
    a('s_xor_b32 s40, s12, 4')
    a('s_mul_i32 s40, s40, 3072')
    a('s_lshl_b32 s41, s23, 10')
    a('s_add_u32 s40, s40, s41')
    a('s_add_u32 s40, s40, 32768')
    a('v_add_u32 v147, s40, v10')
    a('s_mul_i32 s34, s29, 20480')
    a('s_mul_i32 s35, s21, 2560')
    a('s_add_u32 s34, s34, s35')
    a('s_mul_i32 s35, s23, 1536')
    a('s_add_u32 s34, s34, s35')
    a(f's_add_u32 s34, s34, {WS_H}')
    a('v_lshrrev_b32 v148, 1, v15')
    a('v_lshlrev_b32 v148, 8, v148')
    a('v_lshl_add_u32 v148, v14, 4, v148')
    a('v_and_b32 v144, 1, v15')
    a('v_lshl_add_u32 v148, v144, 3, v148')
    a('s_lshl_b32 s33, s29, 7')
    a('s_lshl_b32 s35, s21, 1')
    a('s_add_u32 s35, s35, s23')
    a('s_lshl_b32 s35, s35, 14')
    a('s_add_u32 s33, s33, s35')
    a(f's_add_u32 s33, s33, {WS_ST2}')
    a('v_lshlrev_b32 v144, 3, v14')
    a('s_cmp_eq_u32 s23, 0')
    a(f's_cselect_b32 s35, s34, {0x7ffff000}')
    a('s_waitcnt vmcnt(2)')
    for i in range(3):
        for h2 in range(2):
            a(f'v_lshlrev_b32 v{ACC+4*i+2*h2}, 16, v{XR+2*i+h2}')
            a(f'v_and_b32 v{ACC+4*i+2*h2+1}, 0xffff0000, v{XR+2*i+h2}')
    a('s_cmp_eq_u32 s23, 0')
    a('s_cselect_b64 vcc, -1, 0')
    for r in range(8, 12): a(f'v_cndmask_b32 v{ACC+r}, 0, v{ACC+r}, vcc')
    for r in range(12, 20): a(f'v_mov_b32 v{ACC+r}, 0')

def phase_oproj(a):
    BF, AF, ACC, XR, T = 16, 56, 96, XR0, 116
    def pre(): pass
    def mask():
        a('s_mov_b32 s44, -1'); a('s_mov_b32 s45, 0')
    sync(a, 0, 0, mask, pre, drained=True)
    stamp(a, 8)
    for i in range(10):
        if i % 4 == 0: a(f's_add_u32 s31, s30, {i*1024}')
        a(f'buffer_load_dwordx4 {v(BF+4*i,4)}, v10, s[8:11], s31 offen offset:{(i%4)*1024} sc1')
    def areads(i, buf):
        for sl in range(5):
            base, off = {0: (142, 0), 1: (142, 20480), 2: (143, 0), 3: (145, 0), 4: (145, 20480)}[sl]
            a(f'ds_read_b128 {v(AF+20*buf+4*sl,4)}, v{base} offset:{off + i*1024}')
    areads(0, 0)
    for i in range(10):
        if i < 9:
            areads(i + 1, (i + 1) & 1)
            a(f's_waitcnt vmcnt({9-i}) lgkmcnt(5)')
        else:
            a('s_waitcnt vmcnt(0) lgkmcnt(0)')
        for sl in (2, 3, 4, 0, 1):
            acc = v(ACC + 4 * sl, 4)
            a(f'v_mfma_f32_16x16x32_bf16 {acc}, {v(AF+20*(i&1)+4*sl,4)}, {v(BF+4*i,4)}, {acc}')
    stamp(a, 9)
    a('s_nop 3')
    for i, sl in enumerate((2, 3, 4)): a(f'ds_write_b128 v146, {v(ACC+4*sl,4)} offset:{1024*i}')
    a('s_waitcnt lgkmcnt(0)')
    a('s_barrier')
    for i in range(3): a(f'ds_read_b128 {v(T+4*i,4)}, v147 offset:{1024*i}')
    a('s_waitcnt lgkmcnt(0)')
    for r in range(12): a(f'v_add_f32 v{ACC+r}, v{ACC+r}, v{T+r}')
    a('s_cmp_eq_u32 s23, 0')
    a('s_cselect_b64 vcc, -1, 0')
    for r in range(8, 12): a(f'v_cndmask_b32 v{ACC+r}, 0, v{ACC+r}, vcc')
    a(f'v_add_f32 v{T}, v{ACC}, v{ACC+1}')
    a(f'v_mul_f32 v{T+1}, v{ACC}, v{ACC}')
    a(f'v_fmac_f32 v{T+1}, v{ACC+1}, v{ACC+1}')
    for r in range(2, 12):
        a(f'v_add_f32 v{T}, v{T}, v{ACC+r}')
        a(f'v_fmac_f32 v{T+1}, v{ACC+r}, v{ACC+r}')
    for i in range(6): a(f'v_cvt_pk_bf16_f32 v{T+4+i}, v{ACC+2*i}, v{ACC+2*i+1}')
    sum_q4(a, T, T+2, T+3)
    sum_q4(a, T+1, T+2, T+3)
    stores2(a, [f'buffer_store_dwordx2 {v(T+4,2)}, v148, s[8:11], s34 offen',
                f'buffer_store_dwordx2 {v(T+6,2)}, v148, s[8:11], s34 offen offset:512',
                f'buffer_store_dwordx2 {v(T+8,2)}, v148, s[8:11], s35 offen offset:1024',
                's_mov_b64 exec, 0xffff',
                f'buffer_store_dwordx2 {v(T,2)}, v144, s[8:11], s33 offen',
                's_mov_b64 exec, -1'])

F2_SLOT = {0: 81920, 1: 122880, 2: 0, 3: 40960, 4: 81920, 5: 122880, 6: 0}
def w2_setup(a):
    a(f's_lshr_b32 s21, s{SJ}, 2')
    a('s_lshr_b32 s22, s12, 2')
    a('s_mul_i32 s22, s22, 27')
    a('s_and_b32 s23, s12, 3')
    a('s_add_u32 s22, s22, s23')
    a('s_lshl_b32 s22, s22, 10')
    a('s_mul_i32 s47, s21, 276480')
    a(f's_add_u32 s47, s47, {WS_W2}')
    a('s_add_u32 s47, s47, s22')
    a('s_mul_i32 s48, s12, 5120')
def w2_dma(st, ft):
    return [f's_add_u32 m0, s48, {F2_SLOT[st] + ft*1024}', f's_add_u32 s49, s47, {st*4096 + ft*55296}',
            'buffer_load_dwordx4 v10, s[8:11], s49 offen lds']

def far_touch(a, vt, vd):
    a(f'v_lshlrev_b32 v{vt}, 7, v2')
    a(f's_mul_i32 s56, s{SJ}, 69120')
    a('s_lshl_b32 s57, s12, 13')
    a('s_add_u32 s56, s56, s57')
    a(f's_add_u32 s56, s56, {WS_W2}')
    a(f'buffer_load_dword v{vd}, v{vt}, s[8:11], s56 offen')
    a(f's_mul_i32 s56, s{SG}, {16*55296}')
    a(f's_mul_i32 s57, s{SJ}, 27648')
    a('s_add_u32 s56, s56, s57')
    a('s_lshl_b32 s57, s12, 13')
    a('s_add_u32 s56, s56, s57')
    a(f's_add_u32 s56, s56, {WS_G}')
    a(f's_mul_i32 s57, s{SJ}, 69120')
    a(f's_add_u32 s57, s57, {WS_W2 + 65536}')
    a('s_cmp_eq_u32 s12, 4')
    a('s_cselect_b32 s56, s57, s56')
    a('s_cmp_gt_u32 s12, 4')
    a('s_cselect_b32 s56, 0x7ff00000, s56')
    a(f'buffer_load_dword v{vd}, v{vt}, s[8:11], s56 offen')

def f1_tables(a, vm, ST, CP, LST):
    vm.wait(a, lambda x: x in ('st', 'cp'))
    a(f'v_add_f32 v{CP}, v{CP}, v{CP+1}')
    a(f'v_add_f32 v{CP+2}, v{CP+2}, v{CP+3}')
    a(f'v_add_f32 v{CP}, v{CP}, v{CP+2}')
    a('s_lshl_b32 s28, s23, 7')
    a('v_lshlrev_b32 v14, 2, v3')
    a('v_add_u32 v14, s28, v14')
    a(f'ds_write_b32 v14, v{CP} offset:{LST+1024}')
    l2 = lab('st')
    a('s_cmp_ge_u32 s12, 4')
    a(f's_cbranch_scc1 {l2}')
    b = ST
    for q in range(1, 8):
        a(f'v_add_f32 v{b}, v{b}, v{b+2*q}')
        a(f'v_add_f32 v{b+1}, v{b+1}, v{b+2*q+1}')
    for r in range(2):
        a(f'v_mov_b32 v{b+2}, v{b+r}'); a(f'v_mov_b32 v{b+3}, v{b+r}')
        a(f'v_permlane32_swap_b32 v{b+2}, v{b+3}')
        a(f'v_add_f32 v{b+r}, v{b+2}, v{b+3}')
    a(f'v_mul_f32 v{b}, {f2hex(1.0/640)}, v{b}')
    a(f'v_mul_f32 v{b+1}, {f2hex(1.0/640)}, v{b+1}')
    a(f'v_fma_f32 v{b+1}, -v{b}, v{b}, v{b+1}')
    a(f'v_add_f32 v{b+1}, 0x3727c5ac, v{b+1}')
    a(f'v_rsq_f32 v{b+1}, v{b+1}')
    a(f'v_mul_f32 v{b}, v{b}, v{b+1}')
    a('s_lshl_b32 s28, s12, 8')
    a('v_lshlrev_b32 v14, 3, v3')
    a('v_add_u32 v14, s28, v14')
    a(f'ds_write_b64 v14, {v(b,2)} offset:{LST}')
    a.label(l2)

def phase_ffn1(a, vm_pre):
    ACC, FB = 72, 104
    CS, B1, ST = 192, 168, 128
    CP, B1R = 144, 184
    LST = 0
    NS = 5
    srd(a, 52, 68, F * 2)
    w2_setup(a)
    a(f's_and_b32 s13, s{SJ}, 1')
    a(f's_lshl_b32 s15, s{SG}, 1')
    a('s_add_u32 s13, s13, s15')
    a(f's_lshr_b32 s14, s{SJ}, 1')
    a('s_and_b32 s23, s12, 3')
    a('s_lshr_b32 s26, s12, 2')
    a('v_lshrrev_b32 v7, 4, v3')
    a('s_movk_i32 s17, 20480')
    a('v_mul_lo_u32 v7, v7, s17')
    a('v_and_b32 v6, 15, v3')
    a('v_lshl_add_u32 v7, v6, 4, v7')
    a('v_lshl_add_u32 v7, v4, 8, v7')
    a('s_lshl_b32 s20, s13, 3')
    a('s_lshl_b32 s19, s23, 1')
    a('s_add_u32 s20, s20, s19')
    a('s_mul_i32 s20, s20, 20480')
    a('s_lshl_b32 s19, s26, 10')
    a('s_add_u32 s20, s20, s19')
    a(f's_add_u32 s20, s20, {WS_H}')
    a('s_lshl_b32 s22, s23, 10')
    a('s_lshl_b32 s19, s26, 13')
    a('s_add_u32 s22, s22, s19')
    a('s_lshl_b32 s17, s26, 11')
    a('v_add_u32 v12, s17, v10')
    a('v_add_u32 v13, 0x10000, v12')
    vm = VM()
    def pre(): pass
    def mask():
        a(f's_and_b32 s40, s{SJ}, 1')
        a('s_cmp_eq_u32 s40, 0')
        a('s_mov_b32 s44, 0xcccccccc')
        a('s_cselect_b32 s44, 0x33333333, s44')
        a('s_mov_b32 s45, 0')
    sync(a, 1, 1, mask, pre)
    stamp(a, 10)
    nst = 10
    pend = [(st, i) for st in range(nst) for i in range(2)]
    def dma_one():
        st, i = pend.pop(0)
        a(f's_add_u32 m0, s22, {(st % NS)*16384 + i*4096}')
        a(f's_add_u32 s21, s20, {st*2048 + i*512}')
        a('buffer_load_dwordx4 v7, s[8:11], s21 offen sc1 lds')
        vm.issue(('h', st))
    for _ in range(2 * 3): dma_one()
    a('s_lshl_b32 s27, s13, 7')
    a('s_lshl_b32 s28, s26, 6')
    a('s_add_u32 s27, s27, s28')
    a('s_lshl_b32 s28, s13, 7')
    a('s_lshl_b32 s29, s23, 5')
    a('s_add_u32 s28, s28, s29')
    a('s_lshl_b32 s28, s28, 3')
    a(f's_add_u32 s28, s28, {WS_ST2}')
    a('v_lshlrev_b32 v14, 3, v3')
    a('v_lshl_add_u32 v14, v4, 17, v14')
    def st_load(q):
        a(f's_add_u32 s29, s28, {q*16384}')
        a(f'buffer_load_dwordx2 {v(ST+2*q,2)}, v14, s[8:11], s29 offen sc1')
        vm.issue('st')
    w1q = list(range(26, 40))
    def w1_load():
        s_ = w1q.pop(0)
        a(f's_add_u32 s40, s{S_W1}, {s_*512}')
        a(f'buffer_load_dwordx4 {v(w1reg(s_),4)}, v{V_W1}, s[8:11], s40 offen')
        vm.issue(('w1', s_))
    def reads(st, ks, buf):
        off = (st % NS) * 16384 + ks * 4096
        base = 12
        if off + 1024 >= 65536: off -= 65536; base = 13
        a(f'ds_read_b128 {v(FB+8*buf,4)}, v{base} offset:{off}')
        a(f'ds_read_b128 {v(FB+8*buf+4,4)}, v{base} offset:{off+1024}')
    def mfmas(s_, buf):
        for j in range(2):
            c = '0' if s_ == 0 else v(ACC+16*j, 16)
            a(f'v_mfma_f32_32x32x16_bf16 {v(ACC+16*j,16)}, {v(w1reg(s_),4)}, {v(FB+8*buf+4*j,4)}, {c}')
    F1S = 'f1stamp' in gen.EXP
    w2q = [(st, ft) for st in (0, 1) for ft in range(5)]
    if F1S: stamp(a, 2)
    vm.wait(a, lambda x: x == ('h', 0))
    a('s_barrier')
    if F1S: stamp(a, 3)
    reads(0, 0, 0)
    reads(0, 1, 1)
    for st in range(nst):
        for ks in range(4):
            s_ = 4 * st + ks
            buf = s_ % 3
            n2 = s_ + 2
            if st == 8 and ks == 2:
                f1_tables(a, vm, ST, CP, LST)
            if st == 9 and ks == 0:
                a('s_lshl_b32 s28, s26, 9')
                a('v_lshlrev_b32 v14, 3, v3')
                a('v_add_u32 v14, s28, v14')
                a(f'ds_read_b64 {v(ST,2)}, v14 offset:{LST}')
                a(f'ds_read_b64 {v(ST+4,2)}, v14 offset:{LST+256}')
                a('s_lshl_b32 s28, s23, 7')
                a('v_lshlrev_b32 v14, 5, v4')
                a('v_add_u32 v14, s28, v14')
                for g in range(4):
                    a(f'ds_read_b128 {v(CS+4*g,4)}, v14 offset:{LST + 1024 + (g&1)*16 + (g>>1)*64}')
            if ks == 2 and st + 1 < nst:
                if s_ >= 26: vm.wait(a, lambda x: x == ('w1', s_), ' lgkmcnt(0)')
                else: a('s_waitcnt lgkmcnt(0)')
                mfmas(s_, buf)
                if F1S and st in (0, 2, 4, 6): stamp(a, {0: 4, 2: 7, 4: 9, 6: 13}[st])
                vm.wait(a, lambda x: x == ('h', st + 1))
                if 'f1nobar' not in gen.EXP: a('s_barrier')
                if F1S and st in (0, 2, 4, 6): stamp(a, {0: 5, 2: 8, 4: 12, 6: 14}[st])
                reads(n2 >> 2, n2 & 3, n2 % 3)
            else:
                if n2 < 40:
                    reads(n2 >> 2, n2 & 3, n2 % 3)
                    lg = 4
                else:
                    lg = 2 if s_ == 38 else 0
                if st == 9 and ks == 0: lg = 2
                if s_ >= 26: vm.wait(a, lambda x: x == ('w1', s_), f' lgkmcnt({lg})')
                else: a(f's_waitcnt lgkmcnt({lg})')
                mfmas(s_, buf)
            lim = st + NS - 1 + (1 if ks >= 2 else 0)
            if pend and pend[0][0] <= lim and (ks in (1, 3) or st == 0):
                if 'f1nodma' in gen.EXP:
                    st__, i__ = pend.pop(0); vm.issue(('h', st__))
                else: dma_one()
            if ks in (0, 2) and w1q and st <= 6:
                if 'f1now1b' in gen.EXP:
                    s__ = w1q.pop(0); vm.issue(('w1', s__))
                else: w1_load()
            if st == 5 and ks < 4:
                st_load(2 * ks); st_load(2 * ks + 1)
            if st >= 8 and not (st == 8 and ks == 0):
                for _ in range(2 if (st == 9 or ks >= 2) else 1):
                    if w2q:
                        for x in w2_dma(*w2q.pop(0)): a(x)
                        vm.issue('w2')
            if st == 6 and ks == 1:
                a('s_lshl_b32 s29, s14, 7')
                a('s_lshl_b32 s30, s23, 5')
                a('s_add_u32 s29, s29, s30')
                a('s_lshl_b32 s29, s29, 2')
                a(f's_add_u32 s29, s29, {WS_CS1}')
                a('v_lshlrev_b32 v15, 2, v3')
                for kb in range(4):
                    a(f'buffer_load_dword v{CP+kb}, v15, s[8:11], s29 offen'); vm.issue('cp')
                    if kb < 3: a('s_add_u32 s29, s29, 6912')
            if st == 8 and ks == 0:
                a('s_lshl_b32 s29, s14, 7')
                a('s_lshl_b32 s30, s23, 5')
                a('s_add_u32 s29, s29, s30')
                a('s_lshl_b32 s29, s29, 1')
                a('v_lshlrev_b32 v15, 4, v4')
                a(f'buffer_load_dwordx4 {v(B1R,4)}, v15, s[52:55], s29 offen'); vm.issue('cs')
                a(f'buffer_load_dwordx4 {v(B1R+4,4)}, v15, s[52:55], s29 offen offset:32'); vm.issue('cs')
    assert not w2q and not w1q, (w2q, w1q)
    stamp(a, 11)
    vm.wait(a, lambda x: x == 'cs')
    for q in range(8):
        a(f'v_lshlrev_b32 v{B1+2*q}, 16, v{B1R+q}')
        a(f'v_and_b32 v{B1+2*q+1}, 0xffff0000, v{B1R+q}')
    for j in range(2):
        b = ST + 4 * j
        for r in range(16):
            a(f'v_fma_f32 v{b+2}, -v{b}, v{CS+r}, v{B1+r}')
            a(f'v_fma_f32 v{ACC+16*j+r}, v{b+1}, v{ACC+16*j+r}, v{b+2}')
            a(f'v_max_f32 v{ACC+16*j+r}, 0, v{ACC+16*j+r}')
            a(f'v_mul_f32 v{ACC+16*j+r}, v{ACC+16*j+r}, v{ACC+16*j+r}')
    PK = 104
    for r in range(16):
        a(f'v_cvt_pk_bf16_f32 v{PK+r}, v{ACC+2*r}, v{ACC+2*r+1}')
    a('v_lshrrev_b32 v13, 4, v3')
    a('s_mov_b32 s18, 55296')
    a('v_mul_lo_u32 v13, v13, s18')
    a('v_and_b32 v14, 15, v3')
    a('v_lshl_add_u32 v13, v14, 4, v13')
    a('v_lshl_add_u32 v13, v4, 8, v13')
    a('s_lshr_b32 s18, s27, 4')
    a('s_mul_i32 s18, s18, 55296')
    a('s_lshl_b32 s17, s14, 2')
    a('s_add_u32 s17, s17, s23')
    a('s_cmp_ge_u32 s17, 54')
    a('s_cselect_b32 s19, 0x40000000, 0')
    a('s_lshl_b32 s17, s17, 10')
    a('s_add_u32 s17, s17, s18')
    a(f's_add_u32 s17, s17, {WS_G}')
    a('s_add_u32 s17, s17, s19')
    a(f's_add_u32 s18, s17, {2*55296}')
    stores2(a, [f'buffer_store_dwordx4 {v(PK,4)}, v13, s[8:11], s17 offen',
                f'buffer_store_dwordx4 {v(PK+4,4)}, v13, s[8:11], s17 offen offset:512',
                f'buffer_store_dwordx4 {v(PK+8,4)}, v13, s[8:11], s18 offen',
                f'buffer_store_dwordx4 {v(PK+12,4)}, v13, s[8:11], s18 offen offset:512'])

def phase_ffn2(a, L, published):
    NST = 7
    vm = VM()
    BF, ACC, AF, T = 16, 128, 168, 16
    def pre():
        lx = lab('w7')
        a('s_cmp_lg_u32 s12, 7')
        a(f's_cbranch_scc1 {lx}')
        a(f's_sub_u32 s47, s47, {(27 + 3)*1024}')
        a(f's_sub_u32 s48, s48, {7*5120}')
        for st in (2, 3):
            for ft in range(5):
                for x in w2_dma(st, ft): a(x)
        a(f's_add_u32 s47, s47, {(27 + 3)*1024}')
        a(f's_add_u32 s48, s48, {7*5120}')
        a.label(lx)
        for st in (2, 3):
            for ft in range(5):
                for x in w2_dma(st, ft): a(x)
    def mask():
        a(f's_and_b32 s40, s{SJ}, 2')
        a('s_cmp_eq_u32 s40, 0')
        a('s_mov_b32 s44, 0x0aaaaaaa')
        a('s_cselect_b32 s44, 0x05555555, s44')
        a('s_mov_b32 s45, 0')
    a(f's_and_b32 s20, s{SJ}, 3')
    a(f's_lshr_b32 s21, s{SJ}, 2')
    a('s_and_b32 s22, s12, 3')
    a('s_lshr_b32 s23, s12, 2')
    a(f's_lshl_b32 s29, s{SG}, 4')
    a('s_lshl_b32 s30, s20, 2')
    a('s_add_u32 s29, s29, s30')
    a('s_add_u32 s29, s29, s22')
    a('s_mul_i32 s32, s29, 55296')
    a('s_mul_i32 s33, s23, 27648')
    a('s_add_u32 s32, s32, s33')
    a(f's_add_u32 s32, s32, {WS_G}')
    a('s_mul_i32 s34, s23, 20480')
    a('v_add_u32 v8, s34, v10')
    a('v_add_u32 v9, 0x10000, v8')
    a('v_add_u32 v11, 0x20000, v8')
    srd(a, 52, 70, D * 2)
    sync(a, 2 if published else None, 2, mask, pre, w0_prefetch=False, pr=(253, 254))
    return vm

def ffn2_body(a, L):
    NST = 7
    vm = VM()
    for st in (0, 1, 2, 3):
        for ft in range(5): vm.issue(('w', st))
    BF, ACC, AF, T, HR, BB = 16, 124, 144, 184, 200, 208
    if 'f1stamp' not in gen.EXP: stamp(a, 12)
    def bload(i):
        a(f's_add_u32 s33, s32, {i*1024}')
        a(f'buffer_load_dwordx4 {v(BF+4*i,4)}, v10, s[8:11], s33 offen sc1')
        vm.issue(('b', i))
    NB0 = 6
    for i in range(NB0): bload(i)
    bq = list(range(NB0, 27))
    wq = [(st, ft) for st in range(4, 7) for ft in range(5)]
    def areads(ks, buf):
        st, i = ks >> 2, ks & 3
        for ft in range(5):
            off = F2_SLOT[st] + i * 5120 + ft * 1024
            base = {0: 8, 1: 9, 2: 11}[off >> 16]
            a(f'ds_read_b128 {v(AF+20*buf+4*ft,4)}, v{base} offset:{off & 65535}')
    F2S = 'f2stamp' in gen.EXP
    BX = 6
    if F2S: stamp(a, 2)
    vm.wait(a, lambda x: x == ('w', 0))
    a('s_barrier')
    if F2S: stamp(a, 3)
    areads(0, 0)
    for ks in range(27):
        if F2S and ks in (1, 4, 8, 12, 16, 20, 24): stamp(a, {1: 4, 4: 5, 8: 7, 12: 8, 16: 9, 20: 10, 24: 11}[ks])
        st, i = ks >> 2, ks & 3
        buf = ks & 1
        nxt = ks + 1
        if nxt < 27:
            if (nxt & 3) == 0:
                a('s_waitcnt lgkmcnt(0)')
                vm.wait(a, lambda x: x == ('w', nxt >> 2))
                a('s_barrier')
                areads(nxt, buf ^ 1)
                vm.wait(a, lambda x: x == ('b', ks))
            else:
                areads(nxt, buf ^ 1)
                vm.wait(a, lambda x: x == ('b', ks), ' lgkmcnt(5)')
        else:
            vm.wait(a, lambda x: x == ('b', ks), ' lgkmcnt(0)')
        for ft in range(5):
            acc = v(ACC + 4 * ft, 4)
            a(f'v_mfma_f32_16x16x32_bf16 {acc}, {v(AF+20*buf+4*ft,4)}, {v(BF+4*ks,4)}, {"0" if ks == 0 else acc}')
            if 'oldb' in gen.EXP:
                if ft in (1, 3) and bq and bq[0] <= ks + 12: bload(bq.pop(0))
            elif 'midb' in gen.EXP:
                if (ft == 1 or (ft == 3 and ks < BX)) and bq and bq[0] <= ks + 10: bload(bq.pop(0))
            elif ft == 1 and bq: bload(bq.pop(0))
            WS_ = (0, 2, 4) if ('oldb' in gen.EXP or 'midb' in gen.EXP) else ((2, 4) if (ks & 3) == 3 else (3,))
            if ft in WS_ and wq and (wq[0][0] - 4) < st + (1 if (nxt & 3) == 0 and nxt < 27 else 0):
                x_ = wq.pop(0)
                for x in w2_dma(*x_): a(x)
                vm.issue(('w', x_[0]))
        if ks == 21 and 'wbB' in gen.EXP:
            lw, lw2 = lab('wb'), lab('wb')
            a(f's_cmp_lg_u32 s{SJ}, 0'); a(f's_cbranch_scc1 {lw}')
            a('s_cmp_lg_u32 s12, 7'); a(f's_cbranch_scc1 {lw}')
            a('buffer_wbl2 sc1')
            a(f's_branch {lw2}')
            a.label(lw)
            a('buffer_load_dword v255, v10, s[8:11], s38 offen')
            a.label(lw2)
            vm.issue('wb')
        if ks == 20:
            a('v_and_b32 v5, 15, v2')
            a('v_lshrrev_b32 v6, 4, v2')
            a('s_mul_i32 s34, s29, 20480')
            a('s_mul_i32 s35, s21, 2560')
            a('s_add_u32 s34, s34, s35')
            a('s_mul_i32 s35, s23, 1536')
            a('s_add_u32 s34, s34, s35')
            a(f's_add_u32 s34, s34, {WS_H}')
            a('v_lshrrev_b32 v12, 1, v6')
            a('v_lshlrev_b32 v12, 8, v12')
            a('v_lshl_add_u32 v12, v5, 4, v12')
            a('v_and_b32 v13, 1, v6')
            a('v_lshl_add_u32 v12, v13, 3, v12')
            for i_ in range(3):
                a(f'buffer_load_dwordx2 {v(HR+2*i_,2)}, v12, s[8:11], s34 offen offset:{512*i_} sc1'); vm.issue('hr')
            a('s_mul_i32 s35, s21, 160')
            a('s_mul_i32 s36, s23, 96')
            a('s_add_u32 s35, s35, s36')
            a('v_lshlrev_b32 v13, 3, v6')
            for i_ in range(3):
                a(f'buffer_load_dwordx2 {v(BB+2*i_,2)}, v13, s[52:55], s35 offen offset:{32*i_}'); vm.issue('hr')
    assert not bq and not wq, (bq, wq)
    if 'f1stamp' not in gen.EXP: stamp(a, 13)
    XB = 81920
    a('s_mul_i32 s40, s12, 3072')
    a(f's_add_u32 s40, s40, {XB}')
    a('v_add_u32 v14, s40, v10')
    l1, l2 = lab('fx'), lab('fx')
    a('s_nop 7')
    a('s_cmp_eq_u32 s23, 0')
    a(f's_cbranch_scc0 {l1}')
    for i_, ft in enumerate((3, 4)): a(f'ds_write_b128 v14, {v(ACC+4*ft,4)} offset:{1024*i_}')
    a(f's_branch {l2}')
    a.label(l1)
    for ft in range(3): a(f'ds_write_b128 v14, {v(ACC+4*ft,4)} offset:{1024*ft}')
    a('s_waitcnt lgkmcnt(0)')
    for r in range(8): a(f'v_mov_b32 v{ACC+r}, v{ACC+12+r}')
    a.label(l2)
    a('s_xor_b32 s40, s12, 4')
    a('s_mul_i32 s40, s40, 3072')
    a(f's_add_u32 s40, s40, {XB}')
    a('v_add_u32 v14, s40, v10')
    a('s_waitcnt lgkmcnt(0)')
    a('s_barrier')
    for i_ in range(3): a(f'ds_read_b128 {v(T+4*i_,4)}, v14 offset:{1024*i_}')
    vm.wait(a, lambda x: x == 'hr', ' lgkmcnt(0)')
    for r in range(12): a(f'v_add_f32 v{ACC+r}, v{ACC+r}, v{T+r}')
    for i_ in range(3):
        for h2 in range(2):
            a(f'v_lshlrev_b32 v{T}, 16, v{HR+2*i_+h2}')
            a(f'v_and_b32 v{T+1}, 0xffff0000, v{HR+2*i_+h2}')
            a(f'v_lshlrev_b32 v{T+2}, 16, v{BB+2*i_+h2}')
            a(f'v_and_b32 v{T+3}, 0xffff0000, v{BB+2*i_+h2}')
            a(f'v_add_f32 v{ACC+4*i_+2*h2}, v{ACC+4*i_+2*h2}, v{T+2}')
            a(f'v_add_f32 v{ACC+4*i_+2*h2+1}, v{ACC+4*i_+2*h2+1}, v{T+3}')
            a(f'v_add_f32 v{ACC+4*i_+2*h2}, v{ACC+4*i_+2*h2}, v{T}')
            a(f'v_add_f32 v{ACC+4*i_+2*h2+1}, v{ACC+4*i_+2*h2+1}, v{T+1}')
    for i_ in range(6): a(f'v_cvt_pk_bf16_f32 v{T+4+i_}, v{ACC+2*i_}, v{ACC+2*i_+1}')
    a('s_lshl_b32 s33, s29, 4')
    a('v_add_u32 v7, s33, v5')
    a('s_movk_i32 s34, 1280')
    a('v_mul_lo_u32 v7, v7, s34')
    a('v_lshl_add_u32 v7, v6, 3, v7')
    a('s_mul_i32 s34, s21, 160')
    a('s_mul_i32 s35, s23, 96')
    a('s_add_u32 s34, s34, s35')
    a('s_cmp_eq_u32 s23, 0')
    a('s_cselect_b32 s35, s34, 0x7ff00000')
    OW = ' sc1' if 'outsc1' in gen.EXP else (' nt' if 'outnt' in gen.EXP else '')
    a(f'buffer_store_dwordx2 {v(T+4,2)}, v7, s[76:79], s34 offen' + OW)
    a(f'buffer_store_dwordx2 {v(T+6,2)}, v7, s[76:79], s34 offen offset:32' + OW)
    a(f'buffer_store_dwordx2 {v(T+8,2)}, v7, s[76:79], s35 offen offset:64' + OW)

def kf():
    a = Asm()
    merged = 'merge' in gen.EXP
    L = NAME + '_kernel' if merged else 'kf_kernel'
    kernel_begin(a, L)
    a('s_cmp_ge_u32 s2, 256')
    a(f's_cbranch_scc1 {L}_end')
    if merged:
        import gen5
        if gen.PROF: a('v_mov_b32 v254, v0')
        gen5.k1s(a, '.Ljoin')
        a.label('.Ljoin')
        a('s_waitcnt vmcnt(0) lgkmcnt(0)')
        a('s_barrier')
        if gen.PROF:
            srd(a, 8, 4, WS_END)
            stamp_flush(a, 1, 12, 8, 12)
            a('v_mov_b32 v0, v254')
            a('s_waitcnt vmcnt(0)')
        lj, lp, ld = lab('gb'), lab('gb'), lab('gb')
        a('s_cmp_lg_u32 s12, 0')
        a(f's_cbranch_scc1 {lj}')
        a(f's_load_dwordx2 s[20:21], s[0:1], {A_DBG}')
        a('s_and_b32 s40, s2, 7')
        a('s_lshl_b32 s40, s40, 5')
        a('v_mov_b32 v5, s40')
        a('v_mov_b32 v6, 1')
        a('v_and_b32 v7, 7, v0')
        a('v_lshlrev_b32 v7, 5, v7')
        a('s_waitcnt lgkmcnt(0)')
        a('s_mov_b64 exec, 1')
        a('global_atomic_add v5, v6, s[20:21] sc1')
        a('s_mov_b64 exec, 0xff')
        a('s_mov_b32 s41, 0')
        a.label(lp)
        a('global_load_dword v8, v7, s[20:21] sc1')
        a('s_add_u32 s41, s41, 1')
        a('s_waitcnt vmcnt(0)')
        a('v_cmp_ne_u32 vcc, 32, v8')
        a(f's_cbranch_vccz {ld}')
        a(f's_cmp_lt_u32 s41, {SPIN_MAX}')
        a(f's_cbranch_scc1 {lp}')
        a.label(ld)
        a('s_mov_b64 exec, -1')
        a.label(lj)
        a('s_barrier')
    stamp(a, 0, True); stamp(a, 1)
    if 'dbg' in gen.EXP:
        a('s_memrealtime s[90:91]'); a('s_memtime s[92:93]'); a(f's_load_dwordx2 s[94:95], s[0:1], {A_DBG}')
    if 'nocodepf' not in gen.EXP and not merged:
        code_touch(a, L, '.Lkf_last', '.Lpc_kf', 144, 151, 2)
    a(f's_load_dwordx2 s[4:5], s[0:1], {A_WS}')
    a(f's_load_dwordx2 s[68:69], s[0:1], {A_X}')
    a(f's_load_dwordx2 s[70:71], s[0:1], {A_OUT}')
    a(f's_and_b32 s{SG}, s2, 7')
    a(f's_lshr_b32 s{SJ}, s2, 3')
    a(f's_mov_b32 s{SH}, s{SJ}')
    a(f's_mov_b32 s{SR}, s{SG}')
    a('v_lshrrev_b32 v1, 6, v0')
    a('v_and_b32 v2, 63, v0')
    a('v_readfirstlane_b32 s12, v1')
    a('v_and_b32 v3, 31, v2')
    a('v_lshrrev_b32 v4, 5, v2')
    a(f's_getreg_b32 s{SPURE}, hwreg(HW_REG_XCC_ID, 0, 4)')
    a(f's_add_u32 s{SPURE}, s{SPURE}, 1')
    attn_setup(a, SH, SR, 12, 8, defer=True)
    a('s_waitcnt lgkmcnt(0)')
    srd(a, 8, 4, WS_END)
    attn_dma(a, 0, 8)
    attn_qloads(a, 8)
    srd(a, 72, 68, S * D * 2)
    srd(a, 76, 70, S * D * 2)
    a(f's_load_dwordx2 s[68:69], s[0:1], {A_B1}')
    a(f's_load_dwordx2 s[70:71], s[0:1], {A_B2}')
    stamp(a, 2)
    phase_attn(a, L)
    phase_oproj(a)
    stamp(a, 5)
    a(f's_cmp_ge_u32 s{SJ}, 28')
    a(f's_cbranch_scc1 {L}_idle')
    phase_ffn1(a, None)
    phase_ffn2(a, L, True)
    a(f's_branch {L}_f2')
    a.label(f'{L}_idle')
    a('s_waitcnt vmcnt(0)')
    a('s_barrier')
    li = lab('id')
    a('s_cmp_lg_u32 s12, 0')
    a(f's_cbranch_scc1 {li}')
    flag_store(a, 1, 14)
    a.label(li)
    if 'wbA' in gen.EXP:
        lw = lab('wb')
        a(f's_cmp_lg_u32 s{SJ}, 28'); a(f's_cbranch_scc1 {lw}')
        a('s_cmp_lg_u32 s12, 1'); a(f's_cbranch_scc1 {lw}')
        a('s_sleep 40')
        a('buffer_wbl2 sc1')
        a('s_waitcnt vmcnt(0)')
        a.label(lw)
    w2_setup(a)
    for st in (0, 1):
        for ft in range(5):
            for x in w2_dma(st, ft): a(x)
    a('s_waitcnt vmcnt(0)')
    phase_ffn2(a, L, False)
    a.label(f'{L}_f2')
    ffn2_body(a, L)
    a.label(f'{L}_fin')
    if 'f1stamp' not in gen.EXP: stamp(a, 14)
    if 'dbg' in gen.EXP:
        a('s_waitcnt vmcnt(0)')
        a('s_memrealtime s[96:97]'); a('s_memtime s[86:87]'); a('s_waitcnt lgkmcnt(0)')
        ldb = lab('db')
        a('s_cmp_lg_u32 s2, 0'); a(f's_cbranch_scc1 {ldb}'); a('s_cmp_lg_u32 s12, 0'); a(f's_cbranch_scc1 {ldb}')
        a('s_sub_u32 s96, s96, s90'); a('s_sub_u32 s86, s86, s92')
        a('v_mov_b32 v0, 0'); a('v_mov_b32 v2, s96'); a('v_mov_b32 v3, s86'); a('v_mov_b32 v4, s90'); a('v_mov_b32 v5, 0')
        a('global_store_dwordx4 v0, v[2:5], s[94:95] offset:16')
        a(f's_mov_b32 s86, {WS_PROF}')
        a('buffer_load_dwordx4 v[6:9], v0, s[8:11], s86 offen')
        a('s_waitcnt vmcnt(0)')
        a('global_store_dwordx4 v0, v[6:9], s[94:95]')
        a.label(ldb)
    if gen.PROF: a('s_waitcnt vmcnt(0)')
    stamp(a, 6, True)
    if 'dbgst' in gen.EXP:
        ldb = lab('db')
        a(f's_load_dwordx2 s[20:21], s[0:1], {A_DBG}')
        a('s_waitcnt lgkmcnt(0)')
        a('s_cmp_lg_u32 s2, 8'); a(f's_cbranch_scc1 {ldb}'); a('s_cmp_lg_u32 s12, 0'); a(f's_cbranch_scc1 {ldb}')
        a('v_mbcnt_lo_u32_b32 v0, -1, 0'); a('v_mbcnt_hi_u32_b32 v0, -1, v0'); a('v_mov_b32 v1, 0')
        for i in range(16):
            src = PS + i if i != 15 else PS + 1
            a(f's_sub_u32 s22, s{src}, s{PS+1}') if i not in (0, 6) else a(f's_mov_b32 s22, s{src}')
            a('v_mov_b32 v2, s22'); a(f'v_cmp_eq_u32 vcc, {i}, v0'); a('v_cndmask_b32 v1, v1, v2, vcc')
        a('v_lshlrev_b32 v0, 2, v0')
        a('s_mov_b64 exec, 0xffff')
        a('global_store_dword v0, v1, s[20:21]')
        a('s_mov_b64 exec, -1')
        a.label(ldb)
    else:
        stamp_flush(a, 2, 15, 8, 12)
    a.label(f'{L}_end')
    a('s_endpgm')
    attn_fallback(a)
    a.label('.Lkf_last')
    a('s_endpgm')
    if merged: return a, descriptor(L, 256, 102), '; @launch grid=(256,1,1) block=(512,1,1) lds=163840'
    return a, descriptor(L, 256, 102), f'; @launch kernel={L} grid=(256,1,1) block=(512,1,1) lds=163840'

if __name__ == '__main__':
    if 'prof' in sys.argv: gen.PROF = True
    for x in sys.argv[2:]:
        if x.startswith('x:'): gen.EXP.add(x[2:])
    out = sys.argv[1]
    import gen4, gen5
    ks_ = [kf] if 'merge' in gen.EXP else ([k0, k1, kf] if 'old' in gen.EXP else [gen4.k1p if 'k1p' in gen.EXP else gen5.k1s, kf])
    open(out, 'w').write(build(ks_))
    print('wrote', out)
```

```python
import sys
sys.path.insert(0, 'dev')
import gen
from gen import *
from asmlib import *

WS_XT = WS_FLAG + 4096
SG, SJ, SPURE = 64, 65, 66
LDS_WO = 4 * AT_SLOT
SPIN_MAX = 40000

uid = [0]
def lab(p):
    uid[0] += 1
    return f'.L{p}{uid[0]}'

def stores2(a, instrs):
    l1, l2 = lab('st'), lab('st')
    a(f's_cmp_eq_u32 s{SPURE}, 1')
    a(f's_cbranch_scc0 {l1}')
    for x in instrs: a(x)
    a(f's_branch {l2}')
    a.label(l1)
    for x in instrs:
        a(x + ' sc1' if x.startswith('buffer_store') else x)
    a.label(l2)

def publish(a, p, vt):
    a('s_waitcnt vmcnt(0)')
    a('s_barrier')
    l = lab('pub')
    a('s_cmp_lg_u32 s12, 0')
    a(f's_cbranch_scc1 {l}')
    a(f's_lshl_b32 s40, s{SG}, 7')
    a(f's_lshl_b32 s41, s{SJ}, 2')
    a('s_add_u32 s40, s40, s41')
    a(f's_add_u32 s40, s40, {WS_FLAG + p*1024}')
    a(f'v_mov_b32 v{vt}, 0')
    a(f'v_mov_b32 v{vt+1}, 1')
    a('s_mov_b64 exec, 1')
    stores2(a, [f'buffer_store_dword v{vt+1}, v{vt}, s[8:11], s40 offen'])
    a('s_mov_b64 exec, -1')
    a.label(l)

def await_flags(a, p, smask, vt):
    l, lp, ld = lab('aw'), lab('aw'), lab('aw')
    a('s_cmp_lg_u32 s12, 0')
    a(f's_cbranch_scc1 {l}')
    a(f's_lshl_b32 s40, s{SG}, 7')
    a(f's_add_u32 s40, s40, {WS_FLAG + p*1024}')
    a(f'v_lshlrev_b32 v{vt}, 2, v2')
    a(f's_mov_b64 exec, s[{smask}:{smask+1}]')
    a('s_mov_b32 s41, 0')
    a.label(lp)
    a(f'buffer_load_dword v{vt+1}, v{vt}, s[8:11], s40 offen sc1')
    a('s_add_u32 s41, s41, 1')
    a('s_waitcnt vmcnt(0)')
    a(f'v_cmp_eq_u32 vcc, 0, v{vt+1}')
    a(f's_cbranch_vccz {ld}')
    a(f's_cmp_lt_u32 s41, {SPIN_MAX}')
    a(f's_cbranch_scc1 {lp}')
    a.label(ld)
    a('s_mov_b64 exec, -1')
    l3 = lab('aw')
    a(f's_cmp_eq_u32 s{SPURE}, 1')
    a(f's_cbranch_scc1 {l3}')
    a('buffer_inv sc1')
    a('s_waitcnt vmcnt(0)')
    a.label(l3)
    a.label(l)
    a('s_barrier')

def attn_units(a, ssrd, stages, dma_kv, extra, first_wait, prio=None, start=False, gstamp=None):
    R = AR
    def kreads(slot, t, buf):
        return [f'ds_read_b128 {v(R.KA+4*buf,4)}, v11 offset:{slot*AT_SLOT + t*1024}',
                f'ds_read_b64 {v(R.KC+2*buf,2)}, v12 offset:{slot*AT_SLOT + t*512}']
    def vreads(slot, t, buf):
        return [f'ds_read_b128 {v(R.VV+8*buf,4)}, v13 offset:{slot*AT_SLOT + t*2048}',
                f'ds_read_b128 {v(R.VV+8*buf+4,4)}, v13 offset:{slot*AT_SLOT + t*2048 + 1024}']
    def m1(sb, kb, j): return f'v_mfma_f32_32x32x16_bf16 {v(R.S+16*sb,16)}, {v(R.KA+4*kb,4)}, {v(R.QA+4*j,4)}, 0'
    def m2(sb, kb, j): return f'v_mfma_f32_32x32x8bf16_1k {v(R.S+16*sb,16)}, {v(R.KC+2*kb,2)}, {v(R.QC+2*j,2)}, {v(R.S+16*sb,16)}'
    def m3(j, vb, pb): return f'v_mfma_f32_32x32x16_bf16 {v(R.O+16*j,16)}, {v(R.VV+8*vb,4)}, {v(R.P+8*pb,4)}, {v(R.O+16*j,16)}'
    def m4(j, vb, pb): return f'v_mfma_f32_32x32x16_bf16 {v(R.O+16*j,16)}, {v(R.VV+8*vb+4,4)}, {v(R.P+8*pb+4,4)}, {v(R.O+16*j,16)}'
    for st, last in stages:
        for u in range(4):
            n = st * 4 + u
            T = n >> 1
            sb = n & 1; Tn = (n + 1) >> 1; jn = (n + 1) & 1
            Tp = (n - 1) >> 1; jp = (n - 1) & 1
            if 'noprio' not in gen.EXP: a(f's_setprio {prio(st, u) if prio else {2: 3, 3: 2, 0: 1, 1: 0}[u]}')
            extras = {}
            for pos, l in extra(st, u).items(): extras.setdefault(pos, []).extend(l)
            final = last and u >= 2
            if u == 2 and not last:
                a(f's_waitcnt vmcnt({first_wait(st)})')
                a('s_barrier')
                if gstamp is not None: gstamp(st)
            if u == 3 and dma_kv(st):
                d = attn_dma_parts((st + 3) % 4, ssrd)
                dp = (3, 15)
                if 'dmA' in gen.EXP: dp = (2, 8)
                if 'dmB' in gen.EXP: dp = (6, 16)
                extras.setdefault(dp[0], []).extend(d[0])
                extras.setdefault(dp[1], []).extend(d[1])
            if n % 2 == 0:
                T1 = T + 1
                kr = kreads((T1 >> 1) % 4, T1 & 1, T1 & 1) if not (last and u == 2) else []
                vr = vreads((T >> 1) % 4, T & 1, T & 1)
                kp, vp = (2, 6), (11, 16)
                if 'dsA' in gen.EXP: kp, vp = (1, 3), (7, 9)
                if 'dsB' in gen.EXP: kp, vp = (3, 8), (13, 18)
                if 'dsD' in gen.EXP: kp, vp = (1, 2), (3, 4)
                if 'dsE' in gen.EXP: kp, vp = (1, 2), (6, 7)
                if 'dsF' in gen.EXP: kp, vp = (2, 3), (5, 8)
                if 'dsC' in gen.EXP: kp, vp = (2, 4), (14, 19)
                for pos, x in zip(kp, kr): extras.setdefault(pos, []).append(x)
                for pos, x in zip(vp, vr): extras.setdefault(pos, []).append(x)
            else:
                a('s_waitcnt lgkmcnt(0)')
            S_ = R.S + 16 * sb
            ex = [f'v_exp_f32 v{S_+i}, v{S_+i}' for i in range(16)]
            cv = [f'v_cvt_pk_bf16_f32 v{R.P+8*sb+i}, v{S_+2*i}, v{S_+2*i+1}' for i in range(8)]
            M = [m1(sb ^ 1, Tn & 1, jn), m2(sb ^ 1, Tn & 1, jn), m3(jp, Tp & 1, (n - 1) & 1), m4(jp, Tp & 1, (n - 1) & 1)]
            if last and u == 3: M[0] = M[1] = None
            if start and st == 0:
                if u == 0: M[2] = M[3] = None
                if u in (1, 2): M[2] = M[2].rsplit(',', 1)[0] + ', 0'
            seq = [M[0], ex[0], ex[1], ex[2], ex[3], cv[0], ex[4], M[1], ex[5], cv[1], ex[6], ex[7], cv[2],
                   M[2], ex[8], ex[9], cv[3], ex[10], ex[11], cv[4], M[3], ex[12], ex[13], cv[5], ex[14], ex[15], cv[6], cv[7]]
            if 'latecvt' in gen.EXP:
                seq = [M[0]] + ex[0:4] + [cv_ for cv_ in []] + [ex[4], ex[5], M[1]] + ex[6:8] + cv[0:1] + [ex[8]] + cv[1:2] + [ex[9], M[2]] + ex[10:12] + cv[2:3] + [ex[12]] + cv[3:4] + [ex[13], M[3]] + ex[14:16] + cv[4:8]
            if 'seqB' in gen.EXP:
                seq = [M[0]] + ex[0:5] + [M[1]] + ex[5:10] + [M[2]] + ex[10:15] + [M[3]] + ex[15:16] + cv
            if 'seqC' in gen.EXP:
                seq = [M[0]] + ex[0:5] + [M[2]] + ex[5:8] + cv[0:2] + ex[8:9] + [M[1]] + ex[9:12] + cv[2:4] + ex[12:13] + [M[3]] + ex[13:16] + cv[4:8]
            if 'seqD' in gen.EXP:
                seq = [M[0], M[2]] + ex[0:8] + cv[0:2] + [M[1]] + ex[8:10] + cv[2:4] + [M[3]] + ex[10:16] + cv[4:8]
            if 'seqF' in gen.EXP:
                seq = [M[2]] + ex[0:5] + [M[0]] + ex[5:10] + [M[3]] + ex[10:15] + [M[1]] + ex[15:16] + cv
            if 'seqG' in gen.EXP:
                seq = [M[2]] + ex[0:4] + [M[0]] + ex[4:8] + [M[3]] + ex[8:12] + cv[0:2] + [M[1]] + ex[12:16] + cv[2:8]
            if 'seqE' in gen.EXP:
                seq = [M[2]] + ex[0:4] + [M[0]] + ex[4:6] + cv[0:1] + ex[6:8] + cv[1:2] + [M[3]] + ex[8:10] + cv[2:3] + ex[10:12] + cv[3:4] + [M[1]] + ex[12:16] + cv[4:8]
            for i, x in enumerate(seq):
                for y in extras.get(i, []): a(y)
                if x: a(x)
    return m1, m2, m3, m4, kreads

def wo_dma():
    return ['s_mov_b32 m0, s61', 's_nop 0', 'buffer_load_dwordx4 v10, s[8:11], s62 offen ' + ('nt ' if 'wont' in gen.EXP else '') + 'lds',
            's_cmp_lt_u32 s62, s63', 's_cselect_b32 s67, 8192, 0', 's_add_u32 s62, s62, s67', 's_add_u32 s61, s61, s67']

def phase_attn(a):
    R = AR
    attn_setup(a, SJ, SG, 12, 8)
    a(f's_lshr_b32 s62, s{SJ}, 2')
    a('s_mul_i32 s62, s62, 102400')
    a(f's_add_u32 s62, s62, {WS_WO}')
    a('s_lshl_b32 s61, s12, 10')
    a('s_add_u32 s62, s62, s61')
    a('s_cmp_lt_u32 s12, 4')
    a(f's_mov_b32 s63, {11*8192}')
    a(f's_cselect_b32 s63, {12*8192}, s63')
    a('s_add_u32 s63, s63, s62')
    a(f's_add_u32 s61, s61, {LDS_WO}')
    for r in range(32): a(f'v_mov_b32 v{R.O+r}, 0')
    for r in range(16): a(f'v_mov_b32 v{R.P+r}, 0')
    for r in range(16): a(f'v_mov_b32 v{R.VV+r}, 0')
    attn_dma(a, 0, 8)
    a('s_waitcnt vmcnt(0)')
    for st in range(1, 3): attn_dma(a, st, 8)
    for x in wo_dma(): a(x)
    a('v_cmp_gt_u32 vcc, 32, v2')
    for r in range(4): a(f'v_cndmask_b32 v{R.QC+r}, 0, v{R.QC+r}, vcc')
    a('s_waitcnt lgkmcnt(0)')
    a('s_barrier')
    a('v_lshlrev_b32 v151, 7, v2')
    a(f's_mul_i32 s56, s{SJ}, 69120')
    a(f's_add_u32 s56, s56, {WS_W1}')
    a('s_add_u32 s57, s56, 65536')
    a('s_lshl_b32 s40, s12, 13')
    a('s_add_u32 s56, s56, s40')
    a('s_cmp_eq_u32 s12, 0')
    a('s_cselect_b32 s57, s57, s56')
    def pf(k):
        return [f'buffer_load_dword v150, v151, s[8:11], s{56+k} offen']
    ex = lambda st, u: ({8: wo_dma()} if u == 0 else {})
    a(f'ds_read_b128 {v(R.KA,4)}, v11 offset:0')
    a(f'ds_read_b64 {v(R.KC,2)}, v12 offset:0')
    a('s_waitcnt lgkmcnt(0)')
    a(f'v_mfma_f32_32x32x16_bf16 {v(R.S,16)}, {v(R.KA,4)}, {v(R.QA,4)}, 0')
    a(f'v_mfma_f32_32x32x8bf16_1k {v(R.S,16)}, {v(R.KC,2)}, {v(R.QC,2)}, {v(R.S,16)}')
    a('s_mov_b32 s60, 3')
    stamp(a, 7)
    a.label('.Lat_loop')
    attn_units(a, 8, [(st, False) for st in range(4)], lambda st: True, ex, lambda st: 4)
    a('s_sub_u32 s60, s60, 1')
    a('s_cmp_lg_u32 s60, 0')
    a('s_cbranch_scc1 .Lat_loop')
    tail_wait = {0: 4, 1: 4, 2: 2}
    def tail_extra(st, u):
        if st == 0 and u == 0: return {8: wo_dma()}
        if st == 0 and u == 3: return {22: pf(0)}
        if st == 1 and u == 3: return {8: pf(1)}
        return {}
    m1, m2, m3, m4, _ = attn_units(a, 8, [(0, False), (1, False), (2, False), (3, True)], lambda st: st == 0,
                                   tail_extra, lambda st: tail_wait[st])
    a(m3(1, 1, 1)); a(m4(1, 1, 1))
    a('s_setprio 0')
    stamp(a, 3)
    a(f's_lshl_b32 s40, s{SG}, 7')
    a(f's_add_u32 s40, s40, {WS_XT}')
    a('v_lshlrev_b32 v14, 2, v3')
    a('buffer_load_dword v15, v14, s[8:11], s40 offen sc1')
    a('s_barrier')
    a('s_cmp_eq_u32 s46, 0')
    a('s_cbranch_scc1 .Lat_noswap')
    a('s_nop 7')
    for r in range(12): a(f'v_swap_b32 v{R.O+r}, v{R.O+16+r}')
    a.label('.Lat_noswap')
    a('s_nop 7')
    a(f's_mul_i32 s40, s12, 3072')
    a('v_add_u32 v14, s40, v10')
    for i in range(3): a(f'ds_write_b128 v14, {v(R.O+16+4*i,4)} offset:{1024*i}')
    a('s_xor_b32 s40, s12, 4')
    a('s_mul_i32 s40, s40, 3072')
    a('v_add_u32 v14, s40, v10')
    a('s_waitcnt lgkmcnt(0)')
    a('s_barrier')
    for i in range(3): a(f'ds_read_b128 {v(R.T+4*i,4)}, v14 offset:{1024*i}')
    lp, ld = lab('xt'), lab('xt')
    a('s_mov_b32 s41, 0')
    a.label(lp)
    a('s_waitcnt vmcnt(0)')
    a('v_cmp_eq_u32 vcc, 0, v15')
    a(f's_cbranch_vccz {ld}')
    a(f's_lshl_b32 s40, s{SG}, 7')
    a(f's_add_u32 s40, s40, {WS_XT}')
    a('v_lshlrev_b32 v14, 2, v3')
    a('buffer_load_dword v15, v14, s[8:11], s40 offen sc1')
    a('s_add_u32 s41, s41, 1')
    a(f's_cmp_lt_u32 s41, {SPIN_MAX}')
    a(f's_cbranch_scc1 {lp}')
    a.label(ld)
    a('v_cmp_ne_u32 vcc, s67, v15') if False else None
    a(f'v_cmp_ne_u32 vcc, s{SPURE}, v15')
    a('s_cmp_eq_u64 vcc, 0')
    a(f's_cselect_b32 s{SPURE}, 1, 0')
    if 'slow' in gen.EXP: a(f's_mov_b32 s{SPURE}, 0')
    a('s_waitcnt lgkmcnt(0)')
    for r in range(12): a(f'v_add_f32 v{R.O+r}, v{R.O+r}, v{R.T+r}')
    a(f'v_mov_b32 v{R.T}, v{R.O+8}')
    a(f'v_mov_b32 v{R.T+1}, v{R.O+8}')
    a(f'v_permlane32_swap_b32 v{R.T}, v{R.T+1}')
    a(f'v_rcp_f32 v{R.T+1}, v{R.T+1}')
    for r in range(12): a(f'v_mul_f32 v{R.O+r}, v{R.O+r}, v{R.T+1}')
    for i in range(6): a(f'v_cvt_pk_bf16_f32 v{R.T+4+i}, v{R.O+2*i}, v{R.O+2*i+1}')
    a('s_mul_i32 s61, s46, 40960')
    a('s_add_u32 s61, s61, s47')
    a(f's_add_u32 s61, s61, {WS_O}')
    a('s_lshl_b32 s62, s42, 8')
    a('s_add_u32 s62, s62, s61')
    a('s_lshl_b32 s63, s43, 8')
    a('s_add_u32 s63, s63, s61')
    a('s_lshl_b32 s61, s41, 3') if False else None
    a(f's_and_b32 s61, s{SJ}, 1')
    a('s_lshl_b32 s61, s61, 3')
    a('s_add_u32 s63, s63, s61')
    stores2(a, [f'buffer_store_dwordx4 {v(R.T+4,4)}, v7, s[8:11], s62 offen',
                's_mov_b64 exec, 0xffffffff',
                f'buffer_store_dwordx2 {v(R.T+8,2)}, v5, s[8:11], s63 offen',
                's_mov_b64 exec, -1'])

def phase_oproj(a):
    BF, AF, ACC, XR, T = 16, 56, 96, 116, 128
    a(f's_and_b32 s20, s{SJ}, 3')
    a(f's_lshr_b32 s21, s{SJ}, 2')
    a('s_and_b32 s22, s12, 3')
    a('s_lshr_b32 s23, s12, 2')
    a(f's_lshl_b32 s29, s{SG}, 4')
    a('s_lshl_b32 s30, s20, 2')
    a('s_add_u32 s29, s29, s30')
    a('s_add_u32 s29, s29, s22')
    a('v_and_b32 v5, 15, v2')
    a('v_lshrrev_b32 v6, 4, v2')
    a('s_lshl_b32 s31, s29, 4')
    a('v_add_u32 v7, s31, v5')
    a('s_movk_i32 s32, 1280')
    a('v_mul_lo_u32 v7, v7, s32')
    a('v_lshl_add_u32 v7, v6, 3, v7')
    a('s_mul_i32 s32, s21, 160')
    a('s_mul_i32 s33, s23, 96')
    a('s_add_u32 s32, s32, s33')
    for i in range(3):
        a(f'buffer_load_dwordx2 {v(XR+2*i,2)}, v7, s[72:75], s32 offen offset:{32*i}')
    a('s_mov_b32 s44, -1')
    a('s_mov_b32 s45, 0')
    await_flags(a, 0, 44, 14)
    stamp(a, 8)
    a('s_mul_i32 s30, s29, 20480')
    a('s_mul_i32 s31, s23, 10240')
    a('s_add_u32 s30, s30, s31')
    a(f's_add_u32 s30, s30, {WS_O}')
    for i in range(10):
        if i % 4 == 0: a(f's_add_u32 s31, s30, {i*1024}')
        a(f'buffer_load_dwordx4 {v(BF+4*i,4)}, v10, s[8:11], s31 offen offset:{(i%4)*1024}' + ('' if 'f1plain' in gen.EXP else ' sc1'))
    a('s_mul_i32 s33, s23, 10240')
    a(f's_add_u32 s33, s33, {LDS_WO}')
    a('v_add_u32 v8, s33, v10')
    a(f'v_add_u32 v9, {3*20480}, v8')
    def areads(i, buf):
        for ft in range(5):
            off = ft * 20480 + i * 1024
            base = 8
            if ft >= 3: off -= 3 * 20480; base = 9
            a(f'ds_read_b128 {v(AF+20*buf+4*ft,4)}, v{base} offset:{off}')
    areads(0, 0)
    for i in range(10):
        if i < 9:
            areads(i + 1, (i + 1) & 1)
            a(f's_waitcnt vmcnt({9-i}) lgkmcnt(5)')
        else:
            a('s_waitcnt vmcnt(0) lgkmcnt(0)')
        for ft in range(5):
            acc = v(ACC + 4 * ft, 4)
            a(f'v_mfma_f32_16x16x32_bf16 {acc}, {v(AF+20*(i&1)+4*ft,4)}, {v(BF+4*i,4)}, {"0" if i == 0 else acc}')
    stamp(a, 9)
    a('s_mul_i32 s40, s12, 3072')
    a('s_add_u32 s40, s40, 32768')
    a('v_add_u32 v14, s40, v10')
    l1, l2 = lab('ox'), lab('ox')
    a('s_nop 7')
    a('s_cmp_eq_u32 s23, 0')
    a(f's_cbranch_scc0 {l1}')
    for i, ft in enumerate((3, 4)): a(f'ds_write_b128 v14, {v(ACC+4*ft,4)} offset:{1024*i}')
    a(f's_branch {l2}')
    a.label(l1)
    for ft in range(3): a(f'ds_write_b128 v14, {v(ACC+4*ft,4)} offset:{1024*ft}')
    a('s_waitcnt lgkmcnt(0)')
    for r in range(8): a(f'v_mov_b32 v{ACC+r}, v{ACC+12+r}')
    for r in range(8, 12): a(f'v_mov_b32 v{ACC+r}, 0')
    a.label(l2)
    a('s_xor_b32 s40, s12, 4')
    a('s_mul_i32 s40, s40, 3072')
    a('s_add_u32 s40, s40, 32768')
    a('v_add_u32 v14, s40, v10')
    a('s_waitcnt lgkmcnt(0)')
    a('s_barrier')
    for i in range(3): a(f'ds_read_b128 {v(T+4*i,4)}, v14 offset:{1024*i}')
    a('s_waitcnt lgkmcnt(0)')
    for r in range(12): a(f'v_add_f32 v{ACC+r}, v{ACC+r}, v{T+r}')
    for i in range(3):
        for h2 in range(2):
            a(f'v_lshlrev_b32 v{T}, 16, v{XR+2*i+h2}')
            a(f'v_and_b32 v{T+1}, 0xffff0000, v{XR+2*i+h2}')
            a(f'v_add_f32 v{ACC+4*i+2*h2}, v{ACC+4*i+2*h2}, v{T}')
            a(f'v_add_f32 v{ACC+4*i+2*h2+1}, v{ACC+4*i+2*h2+1}, v{T+1}')
    l3 = lab('ox')
    a('s_cmp_eq_u32 s23, 0')
    a(f's_cbranch_scc1 {l3}')
    for r in range(8, 12): a(f'v_mov_b32 v{ACC+r}, 0')
    a.label(l3)
    a(f'v_mov_b32 v{T}, v{ACC}')
    a(f'v_mul_f32 v{T+1}, v{ACC}, v{ACC}')
    for r in range(1, 12):
        a(f'v_add_f32 v{T}, v{T}, v{ACC+r}')
        a(f'v_fmac_f32 v{T+1}, v{ACC+r}, v{ACC+r}')
    sum_q4(a, T, T+2, T+3)
    sum_q4(a, T+1, T+2, T+3)
    for i in range(6): a(f'v_cvt_pk_bf16_f32 v{T+4+i}, v{ACC+2*i}, v{ACC+2*i+1}')
    a('s_mul_i32 s34, s29, 20480')
    a('s_mul_i32 s35, s21, 2560')
    a('s_add_u32 s34, s34, s35')
    a('s_mul_i32 s35, s23, 1536')
    a('s_add_u32 s34, s34, s35')
    a(f's_add_u32 s34, s34, {WS_H}')
    a('v_lshrrev_b32 v11, 1, v6')
    a('v_lshlrev_b32 v11, 8, v11')
    a('v_lshl_add_u32 v11, v5, 4, v11')
    a('v_and_b32 v12, 1, v6')
    a('v_lshl_add_u32 v11, v12, 3, v11')
    a('s_lshl_b32 s33, s29, 7')
    a('s_lshl_b32 s35, s21, 1')
    a('s_add_u32 s35, s35, s23')
    a('s_lshl_b32 s35, s35, 14')
    a('s_add_u32 s33, s33, s35')
    a(f's_add_u32 s33, s33, {WS_ST2}')
    a('v_lshlrev_b32 v12, 3, v5')
    a('s_cmp_eq_u32 s23, 0')
    a(f's_cselect_b32 s35, s34, {0x7ffff000}')
    stores2(a, [f'buffer_store_dwordx2 {v(T+4,2)}, v11, s[8:11], s34 offen',
                f'buffer_store_dwordx2 {v(T+6,2)}, v11, s[8:11], s34 offen offset:512',
                f'buffer_store_dwordx2 {v(T+8,2)}, v11, s[8:11], s35 offen offset:1024',
                's_mov_b64 exec, 0xffff',
                f'buffer_store_dwordx2 {v(T,2)}, v12, s[8:11], s33 offen',
                's_mov_b64 exec, -1'])

F1_WB, F1_HB, F1_NS = 0, 65536, 4
def phase_ffn1(a):
    ACC, FA, FB = 32, 16, 64
    ST, CS, B1 = 96, 160, 176
    a(f's_and_b32 s13, s{SJ}, 1')
    a(f's_lshl_b32 s15, s{SG}, 1')
    a('s_add_u32 s13, s13, s15')
    a(f's_lshr_b32 s14, s{SJ}, 1')
    lane_swap23(a, 5, 3, 6)
    a('s_cmp_lt_u32 s12, 4')
    a('s_cselect_b64 vcc, -1, 0')
    a('v_cndmask_b32 v6, v3, v5, vcc')
    a('v_lshrrev_b32 v7, 4, v6')
    a('s_movk_i32 s17, 20480')
    a('v_mul_lo_u32 v7, v7, s17')
    a('v_and_b32 v6, 15, v6')
    a('v_lshl_add_u32 v7, v6, 4, v7')
    a('v_lshl_add_u32 v7, v4, 8, v7')
    a('s_lshl_b32 s18, s14, 3')
    a('s_lshl_b32 s19, s12, 1')
    a('s_add_u32 s18, s18, s19')
    a('s_mul_i32 s18, s18, 20480')
    a(f's_add_u32 s18, s18, {WS_W1}')
    a('s_lshl_b32 s20, s13, 3')
    a('s_add_u32 s20, s20, s19')
    a('s_sub_u32 s20, s20, 8')
    a('s_mul_i32 s20, s20, 20480')
    a(f's_add_u32 s20, s20, {WS_H}')
    a('s_cmp_lt_u32 s12, 4')
    a('s_cselect_b32 s20, s18, s20')
    a('s_and_b32 s23, s12, 3')
    a('s_lshr_b32 s26, s12, 2')
    a('s_lshl_b32 s22, s23, 10')
    a('s_cmp_lt_u32 s12, 4')
    a(f's_cselect_b32 s17, {F1_WB}, {F1_HB}')
    a('s_add_u32 s22, s22, s17')
    a('s_lshl_b32 s17, s23, 10')
    a(f's_add_u32 s17, s17, {F1_WB}')
    a('v_add_u32 v9, s17, v10')
    a('s_lshl_b32 s17, s26, 11')
    a(f's_add_u32 s17, s17, {F1_HB}')
    a('v_add_u32 v12, s17, v10')
    a(f's_and_b32 s40, s{SJ}, 1')
    a('s_cmp_eq_u32 s40, 0')
    a('s_mov_b32 s44, 0xcccccccc')
    a('s_cselect_b32 s44, 0x33333333, s44')
    a('s_mov_b32 s45, 0')
    await_flags(a, 1, 44, 14)
    stamp(a, 10)
    a('s_lshl_b32 s27, s13, 7')
    a('s_lshl_b32 s28, s26, 6')
    a('s_add_u32 s27, s27, s28')
    lst = lab('st')
    a('s_cmp_ge_u32 s12, 4')
    a(f's_cbranch_scc1 {lst}')
    a('s_lshl_b32 s28, s13, 7')
    a('s_lshl_b32 s29, s12, 5')
    a('s_add_u32 s28, s28, s29')
    a('s_lshl_b32 s28, s28, 3')
    a(f's_add_u32 s28, s28, {WS_ST2}')
    a('v_lshlrev_b32 v14, 3, v3')
    a('v_lshl_add_u32 v14, v4, 17, v14')
    for q in range(8):
        a(f's_add_u32 s29, s28, {q*16384}')
        a(f'buffer_load_dwordx2 {v(ST+2*q,2)}, v14, s[8:11], s29 offen sc1')
    a.label(lst)
    a('s_lshl_b32 s29, s14, 7')
    a('s_lshl_b32 s30, s23, 5')
    a('s_add_u32 s29, s29, s30')
    a('s_lshl_b32 s29, s29, 2')
    a('v_lshlrev_b32 v15, 5, v4')
    a(f's_add_u32 s30, s29, {WS_CS1}')
    a(f's_add_u32 s31, s29, {WS_B1F}')
    for q, off in enumerate((0, 16, 64, 80)):
        a(f'buffer_load_dwordx4 {v(CS+4*q,4)}, v15, s[8:11], s30 offen offset:{off}')
        a(f'buffer_load_dwordx4 {v(B1+4*q,4)}, v15, s[8:11], s31 offen offset:{off}')
    nst, NS = 10, F1_NS
    pend = [(st, ks) for st in range(nst) for ks in range(4)]
    issued = []
    def dma_one():
        st, ks = pend.pop(0)
        a(f's_add_u32 m0, s22, {(st % NS)*16384 + ks*4096}')
        a(f's_add_u32 s21, s20, {st*2048 + ks*512}')
        a('buffer_load_dwordx4 v7, s[8:11], s21 offen ' + ('' if 'f1plain' in gen.EXP else 'sc1 ') + 'lds')
        issued.append(st)
    def wait_stage(st):
        n = 0
        for x in reversed(issued):
            if x <= st: break
            n += 1
        a(f's_waitcnt vmcnt({n})')
    def reads(st, ks, buf):
        off = (st % NS) * 16384 + ks * 4096
        a(f'ds_read_b128 {v(FA+4*buf,4)}, v9 offset:{off}')
        a(f'ds_read_b128 {v(FB+8*buf,4)}, v12 offset:{off}')
        a(f'ds_read_b128 {v(FB+8*buf+4,4)}, v12 offset:{off+1024}')
    def mfmas(buf, first):
        for j in range(2):
            c = '0' if first else v(ACC+16*j, 16)
            a(f'v_mfma_f32_32x32x16_bf16 {v(ACC+16*j,16)}, {v(FA+4*buf,4)}, {v(FB+8*buf+4*j,4)}, {c}')
    for _ in range(8): dma_one()
    if 'f1stamp' in gen.EXP: stamp(a, 2)
    wait_stage(0)
    a('s_barrier')
    if 'f1stamp' in gen.EXP: stamp(a, 3)
    reads(0, 0, 0)
    buf = 0
    for st in range(nst):
        for ks in range(4):
            if ks < 3:
                reads(st, ks + 1, buf ^ 1)
                a('s_waitcnt lgkmcnt(3)')
                mfmas(buf, st == 0 and ks == 0)
            else:
                if st + 1 < nst:
                    a('s_waitcnt lgkmcnt(0)')
                    if 'f1stamp' in gen.EXP and st in (0, 1, 4): stamp(a, {0: 4, 1: 7, 4: 9}[st])
                    wait_stage(st + 1)
                    a('s_barrier')
                    if 'f1stamp' in gen.EXP and st in (0, 1, 4): stamp(a, {0: 5, 1: 8, 4: 12}[st])
                    reads(st + 1, 0, buf ^ 1)
                else:
                    a('s_waitcnt lgkmcnt(0)')
                mfmas(buf, False)
            lim = st + NS - 1 + (1 if ks == 3 else 0)
            if pend and pend[0][0] <= lim: dma_one()
            buf ^= 1
    a('s_nop 15')
    stamp(a, 11)
    LST = 159744
    l2 = lab('st')
    a('s_cmp_ge_u32 s12, 4')
    a(f's_cbranch_scc1 {l2}')
    b = ST
    for q in range(1, 8):
        a(f'v_add_f32 v{b}, v{b}, v{b+2*q}')
        a(f'v_add_f32 v{b+1}, v{b+1}, v{b+2*q+1}')
    for r in range(2):
        a(f'v_mov_b32 v{b+2}, v{b+r}'); a(f'v_mov_b32 v{b+3}, v{b+r}')
        a(f'v_permlane32_swap_b32 v{b+2}, v{b+3}')
        a(f'v_add_f32 v{b+r}, v{b+2}, v{b+3}')
    a(f'v_mul_f32 v{b}, {f2hex(1.0/640)}, v{b}')
    a(f'v_mul_f32 v{b+1}, {f2hex(1.0/640)}, v{b+1}')
    a(f'v_fma_f32 v{b+1}, -v{b}, v{b}, v{b+1}')
    a(f'v_add_f32 v{b+1}, 0x3727c5ac, v{b+1}')
    a(f'v_rsq_f32 v{b+1}, v{b+1}')
    a(f'v_mul_f32 v{b}, v{b}, v{b+1}')
    a('s_lshl_b32 s28, s12, 8')
    a(f's_add_u32 s28, s28, {LST}')
    a('v_lshlrev_b32 v14, 3, v3')
    a('v_add_u32 v14, s28, v14')
    a(f'ds_write_b64 v14, {v(b,2)}')
    a.label(l2)
    a('s_waitcnt lgkmcnt(0)')
    a('s_barrier')
    a('s_lshl_b32 s28, s26, 9')
    a(f's_add_u32 s28, s28, {LST}')
    a('v_lshlrev_b32 v14, 3, v3')
    a('v_add_u32 v14, s28, v14')
    a(f'ds_read_b64 {v(ST,2)}, v14')
    a(f'ds_read_b64 {v(ST+32,2)}, v14 offset:256')
    a('s_waitcnt lgkmcnt(0)')
    for j in range(2):
        b = ST + 32 * j
        for r in range(16):
            a(f'v_fma_f32 v{b+2}, -v{b}, v{CS+r}, v{B1+r}')
            a(f'v_fma_f32 v{ACC+16*j+r}, v{b+1}, v{ACC+16*j+r}, v{b+2}')
            a(f'v_max_f32 v{ACC+16*j+r}, 0, v{ACC+16*j+r}')
            a(f'v_mul_f32 v{ACC+16*j+r}, v{ACC+16*j+r}, v{ACC+16*j+r}')
    for r in range(16):
        a(f'v_cvt_pk_bf16_f32 v{64+r}, v{ACC+2*r}, v{ACC+2*r+1}')
    a('v_lshrrev_b32 v13, 4, v3')
    a('s_mov_b32 s18, 55296')
    a('v_mul_lo_u32 v13, v13, s18')
    a('v_and_b32 v14, 15, v3')
    a('v_lshl_add_u32 v13, v14, 4, v13')
    a('v_lshl_add_u32 v13, v4, 8, v13')
    a('s_lshr_b32 s18, s27, 4')
    a('s_mul_i32 s18, s18, 55296')
    a('s_lshl_b32 s17, s14, 2')
    a('s_add_u32 s17, s17, s23')
    a('s_cmp_ge_u32 s17, 54')
    a('s_cselect_b32 s19, 0x40000000, 0')
    a('s_lshl_b32 s17, s17, 10')
    a('s_add_u32 s17, s17, s18')
    a(f's_add_u32 s17, s17, {WS_G}')
    a('s_add_u32 s17, s17, s19')
    a(f's_add_u32 s18, s17, {2*55296}')
    stores2(a, [f'buffer_store_dwordx4 {v(64,4)}, v13, s[8:11], s17 offen',
                f'buffer_store_dwordx4 {v(68,4)}, v13, s[8:11], s17 offen offset:512',
                f'buffer_store_dwordx4 {v(72,4)}, v13, s[8:11], s18 offen',
                f'buffer_store_dwordx4 {v(76,4)}, v13, s[8:11], s18 offen offset:512'])

def phase_ffn2(a, L):
    a(f's_and_b32 s20, s{SJ}, 3')
    a(f's_lshr_b32 s21, s{SJ}, 2')
    a('s_lshr_b32 s22, s12, 2')
    a('s_and_b32 s23, s12, 3')
    a('s_mul_i32 s26, s23, 14')
    a('s_cmp_eq_u32 s23, 3')
    a('s_cselect_b32 s27, 1, 0')
    a('s_sub_u32 s26, s26, s27')
    a('s_mul_i32 s28, s21, 276480')
    a(f's_add_u32 s28, s28, {WS_W2}')
    a('s_add_u32 s29, s26, s22')
    a('s_lshl_b32 s29, s29, 10')
    a('s_add_u32 s28, s28, s29')
    a('s_lshl_b32 s29, s23, 1')
    a('s_add_u32 s29, s29, s22')
    a('s_mul_i32 s29, s29, 5120')
    NST = 7
    issued = []
    def dma_stage(st):
        slot = st % 3
        for ft in range(5):
            a(f's_add_u32 m0, s29, {slot*40960 + ft*1024}')
            a(f's_add_u32 s30, s28, {st*2048 + ft*55296}')
            a('buffer_load_dwordx4 v10, s[8:11], s30 offen lds')
            issued.append(('w', st))
    BF, ACC, AF, T = 16, 128, 168, 16
    dma_stage(0); dma_stage(1); dma_stage(2)
    a('s_lshr_b32 s40, s20, 1')
    a('s_cmp_eq_u32 s40, 0')
    a('s_mov_b32 s44, 0x0aaaaaaa')
    a('s_cselect_b32 s44, 0x05555555, s44')
    a('s_mov_b32 s45, 0')
    await_flags(a, 2, 44, 14)
    if 'f1stamp' not in gen.EXP: stamp(a, 12)
    a(f's_lshl_b32 s31, s{SG}, 4')
    a('s_lshl_b32 s32, s20, 2')
    a('s_add_u32 s31, s31, s32')
    a('s_lshl_b32 s32, s22, 1')
    a('s_add_u32 s32, s32, s31')
    a('s_mul_i32 s32, s32, 55296')
    a('s_lshl_b32 s33, s26, 10')
    a('s_add_u32 s32, s32, s33')
    a(f's_add_u32 s32, s32, {WS_G}')
    for i in range(14):
        for j in range(2):
            a(f's_add_u32 s33, s32, {j*55296 + i*1024}')
            a(f'buffer_load_dwordx4 {v(BF+8*i+4*j,4)}, v10, s[8:11], s33 offen' + ('' if 'f1plain' in gen.EXP else ' sc1'))
            issued.append(('b', i))
    def wait_for(pred):
        n = 0
        for x in reversed(issued):
            if pred(x): break
            n += 1
        a(f's_waitcnt vmcnt({min(n, 63)})')
    a('s_mul_i32 s34, s23, 10240')
    a('v_add_u32 v8, s34, v10')
    a('v_add_u32 v9, 0x10000, v8')
    def areads(st, i, buf):
        for ft in range(5):
            off = (st % 3) * 40960 + i * 5120 + ft * 1024
            base = 8
            if off >= 65536: off -= 65536; base = 9
            a(f'ds_read_b128 {v(AF+20*buf+4*ft,4)}, v{base} offset:{off}')
    for st in range(NST):
        wait_for(lambda x: x == ('w', st) or x == ('b', min(2*st+1, 13)))
        a('s_barrier')
        if st >= 1 and st + 2 < NST: dma_stage(st + 2)
        areads(st, 0, 0)
        areads(st, 1, 1)
        for i in range(2):
            ks = 2 * st + i
            a(f's_waitcnt lgkmcnt({5 if i == 0 else 0})')
            last = (ks == 13)
            if last:
                a('s_cmp_ge_u32 s23, 2')
                a(f's_cbranch_scc1 {L}_skip')
            for ft in range(5):
                for j in range(2):
                    acc = v(ACC + 4 * (2 * ft + j), 4)
                    a(f'v_mfma_f32_16x16x32_bf16 {acc}, {v(AF+20*i+4*ft,4)}, {v(BF+8*ks+4*j,4)}, {"0" if ks == 0 else acc}')
            if last: a.label(f'{L}_skip')
    stamp(a, 13)
    a('s_nop 7')
    a('s_barrier')
    ksplit_reduce(a, ACC, T, 12, 22, 23, 10, 11)
    a('s_cmp_ge_u32 s12, 4')
    a(f's_cbranch_scc1 {L}_fin')
    a('v_and_b32 v5, 15, v2')
    a('v_lshrrev_b32 v6, 4, v2')
    HR, BB = 100, 112
    a('s_add_u32 s33, s31, s12')
    a('s_mul_i32 s34, s33, 20480')
    a('s_mul_i32 s35, s21, 2560')
    a('s_add_u32 s34, s34, s35')
    a(f's_add_u32 s34, s34, {WS_H}')
    a('v_lshrrev_b32 v11, 1, v6')
    a('v_lshlrev_b32 v11, 8, v11')
    a('v_lshl_add_u32 v11, v5, 4, v11')
    a('v_and_b32 v12, 1, v6')
    a('v_lshl_add_u32 v11, v12, 3, v11')
    for ft in range(5):
        a(f'buffer_load_dwordx2 {v(HR+2*ft,2)}, v11, s[8:11], s34 offen offset:{512*ft} sc1')
    a('s_mul_i32 s35, s21, 320')
    a(f's_add_u32 s35, s35, {WS_B2F}')
    a('v_lshlrev_b32 v12, 4, v6')
    for ft in range(5):
        a(f'buffer_load_dwordx4 {v(BB+4*ft,4)}, v12, s[8:11], s35 offen offset:{64*ft}')
    ksplit_gather(a, T, 12, 10, 13)
    a('s_waitcnt vmcnt(0)')
    for ft in range(5):
        for h2 in range(2):
            a(f'v_lshlrev_b32 v{T+20}, 16, v{HR+2*ft+h2}')
            a(f'v_and_b32 v{T+21}, 0xffff0000, v{HR+2*ft+h2}')
            a(f'v_add_f32 v{T+4*ft+2*h2}, v{T+4*ft+2*h2}, v{BB+4*ft+2*h2}')
            a(f'v_add_f32 v{T+4*ft+2*h2+1}, v{T+4*ft+2*h2+1}, v{BB+4*ft+2*h2+1}')
            a(f'v_add_f32 v{T+4*ft+2*h2}, v{T+4*ft+2*h2}, v{T+20}')
            a(f'v_add_f32 v{T+4*ft+2*h2+1}, v{T+4*ft+2*h2+1}, v{T+21}')
    for i in range(10):
        a(f'v_cvt_pk_bf16_f32 v{T+24+i}, v{T+2*i}, v{T+2*i+1}')
    a('s_lshl_b32 s33, s33, 4')
    a('v_add_u32 v7, s33, v5')
    a('s_movk_i32 s34, 1280')
    a('v_mul_lo_u32 v7, v7, s34')
    a('v_lshl_add_u32 v7, v6, 3, v7')
    a('s_mul_i32 s34, s21, 160')
    for ft in range(5):
        a(f'buffer_store_dwordx2 {v(T+24+2*ft,2)}, v7, s[76:79], s34 offen offset:{32*ft}')

def kf():
    a = Asm()
    L = 'kf_kernel'
    kernel_begin(a, L)
    a('s_cmp_ge_u32 s2, 256')
    a(f's_cbranch_scc1 {L}_end')
    stamp(a, 0, True); stamp(a, 1)
    a(f's_load_dwordx2 s[4:5], s[0:1], {A_WS}')
    a(f's_load_dwordx2 s[68:69], s[0:1], {A_X}')
    a(f's_load_dwordx2 s[70:71], s[0:1], {A_OUT}')
    a(f's_and_b32 s{SG}, s2, 7')
    a(f's_lshr_b32 s{SJ}, s2, 3')
    a('v_lshrrev_b32 v1, 6, v0')
    a('v_and_b32 v2, 63, v0')
    a('v_readfirstlane_b32 s12, v1')
    a('v_and_b32 v3, 31, v2')
    a('v_lshrrev_b32 v4, 5, v2')
    a(f's_getreg_b32 s{SPURE}, hwreg(HW_REG_XCC_ID, 0, 4)')
    a(f's_add_u32 s{SPURE}, s{SPURE}, 1')
    a('s_waitcnt lgkmcnt(0)')
    srd(a, 8, 4, WS_END)
    srd(a, 72, 68, S * D * 2)
    srd(a, 76, 70, S * D * 2)
    l = lab('xp')
    a('s_cmp_lg_u32 s12, 0')
    a(f's_cbranch_scc1 {l}')
    a(f's_lshl_b32 s40, s{SG}, 7')
    a(f's_lshl_b32 s41, s{SJ}, 2')
    a('s_add_u32 s40, s40, s41')
    a(f's_add_u32 s40, s40, {WS_XT}')
    a('v_mov_b32 v14, 0')
    a(f'v_mov_b32 v15, s{SPURE}')
    a('s_mov_b64 exec, 1')
    a('buffer_store_dword v15, v14, s[8:11], s40 offen sc1')
    a('s_mov_b64 exec, -1')
    a.label(l)
    stamp(a, 2)
    phase_attn(a)
    stamp(a, 4)
    publish(a, 0, 14)
    phase_oproj(a)
    publish(a, 1, 14)
    stamp(a, 5)
    a(f's_cmp_ge_u32 s{SJ}, 28')
    a(f's_cbranch_scc1 {L}_idle')
    phase_ffn1(a)
    publish(a, 2, 14)
    a(f's_branch {L}_f2')
    a.label(f'{L}_idle')
    a('v_lshlrev_b32 v201, 7, v2')
    a(f's_sub_u32 s56, s{SJ}, 28')
    a('s_mul_i32 s56, s56, 552960')
    a(f's_add_u32 s56, s56, {WS_W2}')
    a('s_lshl_b32 s40, s12, 13')
    a('s_add_u32 s56, s56, s40')
    for i in range(9):
        a('buffer_load_dword v200, v201, s[8:11], s56 offen')
        a('s_add_u32 s56, s56, 65536')
    a('s_waitcnt vmcnt(0)')
    a.label(f'{L}_f2')
    phase_ffn2(a, L)
    a.label(f'{L}_fin')
    stamp(a, 14)
    if gen.PROF: a(f's_add_u32 s{PS+14}, s{PS+1}, s{SPURE}')
    if gen.PROF: a('s_waitcnt vmcnt(0)')
    stamp(a, 6, True)
    stamp_flush(a, 2, 15, 8, 12)
    a.label(f'{L}_end')
    a('s_endpgm')
    return a, descriptor(L, 256, 102), f'; @launch kernel={L} grid=(256,1,1) block=(512,1,1) lds=163840'

if __name__ == '__main__':
    if 'prof' in sys.argv: gen.PROF = True
    for x in sys.argv[2:]:
        if x.startswith('x:'): gen.EXP.add(x[2:])
    out = sys.argv[1]
    open(out, 'w').write(build([k0, k1, kf]))
    print('wrote', out)
```

```python
import sys, math
sys.path.insert(0, 'dev')
from asmlib import *

NAME = 'sequential_preLN__mha_block__dense_activation_squared_relu__prompt'
S, D, H, DH, F = 2048, 640, 32, 20, 1728
A_X, A_WQKV, A_WO, A_BX, A_W1, A_B1, A_W2, A_B2, A_OUT, A_DBG, A_WS = [8 * i for i in range(11)]
WS_XN = 0
WS_WQKV = WS_XN + S * D * 2
WS_WO = WS_WQKV + D * 3 * D * 2
WS_W1 = WS_WO + D * D * 2
WS_W2 = WS_W1 + D * F * 2
WS_Q = WS_W2 + F * D * 2
WS_K = WS_Q + S * D * 2
WS_VT = WS_K + S * D * 2
WS_O = WS_VT + S * D * 2
WS_H = WS_O + S * D * 2
WS_G = WS_H + S * D * 2
WS_CS1 = WS_G + S * F * 2
WS_B1F = WS_CS1 + 32768
WS_B2F = WS_B1F + 8192
WS_ST2 = WS_B2F + 8192
WS_FLAG = WS_ST2 + S * 16 * 8
WS_PROF = WS_FLAG + 65536
WS_END = WS_PROF + 8 * 256 * 8 * 64
PROF = False
EXP = set()
PS = 80

def code_touch(a, first, last, here, vt, vd, nrounds, swave_v=None):
    a('s_getpc_b64 s[40:41]')
    a.label(here)
    a(f's_add_u32 s40, s40, ({first} - {here})') if False else None
    a(f's_sub_u32 s40, s40, ({here} - {first})')
    a('s_subb_u32 s41, s41, 0')
    a(f'v_lshlrev_b32 v{vt}, 6, v0')
    a(f's_mov_b32 s42, ({last} - {first} - 4)')
    for r in range(nrounds):
        a(f'v_add_u32 v{vt+2}, {r*32768}, v{vt}')
        a(f'v_min_u32 v{vt+2}, s42, v{vt+2}')
        a(f'v_mov_b32 v{vt+3}, s41')
        a(f'v_add_co_u32 v{vt+2}, vcc, s40, v{vt+2}')
        a(f'v_addc_co_u32 v{vt+3}, vcc, 0, v{vt+3}, vcc')
        a(f'global_load_dword v{vd}, v[{vt+2}:{vt+3}], off')

def magic(d):
    return (2 ** 32 + d - 1) // d

def srd(a, base_s, ptr_lo, nbytes):
    a(f's_mov_b32 s{base_s}, s{ptr_lo}')
    a(f's_and_b32 s{base_s+1}, s{ptr_lo+1}, 0xffff')
    a(f's_mov_b32 s{base_s+2}, {nbytes}')
    a(f's_mov_b32 s{base_s+3}, 0x20000')

def kernel_begin(a, label):
    a.raw(f'.globl {label}')
    a.raw('.p2align 8')
    a.raw(f'.type {label},@function')
    a.label(label)

def descriptor(label, nvgpr, nsgpr, accum=None):
    if accum is None: accum = (nvgpr + 3) // 4 * 4
    return f""".amdhsa_kernel {label}
  .amdhsa_next_free_vgpr {nvgpr}
  .amdhsa_next_free_sgpr {nsgpr}
  .amdhsa_accum_offset {accum}
  .amdhsa_group_segment_fixed_size 0
  .amdhsa_kernarg_size 88
  .amdhsa_user_sgpr_count 2
  .amdhsa_user_sgpr_kernarg_segment_ptr 1
  .amdhsa_system_sgpr_workgroup_id_x 1
.end_amdhsa_kernel
"""


def stamp(a, i, real=False):
    if not PROF: return
    a(f's_{"memrealtime" if real else "memtime"} s[{PS+16}:{PS+17}]')
    a('s_waitcnt lgkmcnt(0)')
    a(f's_mov_b32 s{PS+i}, s{PS+16}')

def stamp_flush(a, kidx, n, ssrd, swave):
    if not PROF: return
    a(f's_lshl_b32 s{PS+18}, s2, 3')
    a(f's_add_u32 s{PS+18}, s{PS+18}, s{swave}')
    a(f's_lshl_b32 s{PS+18}, s{PS+18}, 6')
    a(f's_add_u32 s{PS+18}, s{PS+18}, {WS_PROF + kidx*256*8*64}')
    a(f'v_mbcnt_lo_u32_b32 v0, -1, 0')
    a(f'v_mbcnt_hi_u32_b32 v0, -1, v0')
    a('v_lshlrev_b32 v0, 2, v0')
    a('v_mov_b32 v1, 0')
    for i in range(n):
        a(f'v_mov_b32 v2, s{PS+i}')
        a(f'v_cmp_eq_u32 vcc, {4*i}, v0')
        a('v_cndmask_b32 v1, v1, v2, vcc')
    a(f'v_cmp_gt_u32 vcc, {4*n}, v0')
    a(f's_and_saveexec_b64 s[{PS+20}:{PS+21}], vcc')
    a(f'buffer_store_dword v1, v0, s[{ssrd}:{ssrd+3}], s{PS+18} offen')
    a(f's_mov_b64 exec, s[{PS+20}:{PS+21}]')

K0_LN = 128
K0_PK = 470
K0_CS = 27
K0_GRID = K0_LN + K0_PK + K0_CS + 1

def k0():
    a = Asm()
    L = 'k0_kernel'
    kernel_begin(a, L)
    a(f's_cmp_ge_u32 s2, {K0_GRID}')
    a(f's_cbranch_scc1 {L}_end')
    a(f's_load_dwordx2 s[4:5], s[0:1], {A_X}')
    a(f's_load_dwordx2 s[6:7], s[0:1], {A_WQKV}')
    a(f's_load_dwordx2 s[8:9], s[0:1], {A_WO}')
    a(f's_load_dwordx2 s[10:11], s[0:1], {A_W1}')
    a(f's_load_dwordx2 s[12:13], s[0:1], {A_W2}')
    a(f's_load_dwordx2 s[14:15], s[0:1], {A_WS}')
    a(f's_load_dwordx2 s[16:17], s[0:1], {A_B1}')
    a(f's_load_dwordx2 s[18:19], s[0:1], {A_B2}')
    a('v_lshrrev_b32 v1, 6, v0')
    a('v_and_b32 v2, 63, v0')
    a('s_nop 0')
    a('v_readfirstlane_b32 s3, v1')
    a('s_waitcnt lgkmcnt(0)')
    srd(a, 20, 14, WS_END)
    a(f's_cmp_ge_u32 s2, {K0_LN}')
    a(f's_cbranch_scc1 {L}_pk')
    srd(a, 24, 4, S * D * 2)
    a('v_lshrrev_b32 v3, 4, v2')
    a('v_and_b32 v4, 15, v2')
    a('s_lshl_b32 s28, s2, 4')
    a('s_lshl_b32 s29, s3, 2')
    a('s_add_u32 s28, s28, s29')
    a('v_add_u32 v5, s28, v3')
    a('s_movk_i32 s30, 1280')
    a('v_mul_lo_u32 v5, v5, s30')
    a('v_lshl_add_u32 v5, v4, 4, v5')
    for i in range(5):
        a(f'buffer_load_dwordx4 v[{8+4*i}:{11+4*i}], v5, s[24:27], 0 offen offset:{256*i}')
    for i in range(20):
        if i % 4 == 0: a(f's_waitcnt vmcnt({4 - i // 4})')
        a(f'v_lshlrev_b32 v{32+2*i}, 16, v{8+i}')
        a(f'v_and_b32 v{33+2*i}, 0xffff0000, v{8+i}')
    a('v_add_f32 v6, v32, v33')
    for i in range(2, 40):
        a(f'v_add_f32 v6, v6, v{32+i}')
    for r in (8, 4, 2, 1):
        a(f'v_add_f32_dpp v7, v6, v6 row_ror:{r} row_mask:0xf bank_mask:0xf')
        a('v_mov_b32 v6, v7')
    a(f'v_mul_f32 v6, {1.0/640:.9e}, v6'.replace('e-03', 'e-03'))
    for i in range(40):
        a(f'v_sub_f32 v{32+i}, v{32+i}, v6')
    a('v_mul_f32 v7, v32, v32')
    for i in range(1, 40):
        a(f'v_fmac_f32 v7, v{32+i}, v{32+i}')
    for r in (8, 4, 2, 1):
        a(f'v_add_f32_dpp v6, v7, v7 row_ror:{r} row_mask:0xf bank_mask:0xf')
        a('v_mov_b32 v7, v6')
    a('v_mov_b32 v6, 0x3727c5ac')
    a(f'v_fmac_f32 v6, {f2hex(1.0/640)}, v7')
    a('v_rsq_f32 v6, v6')
    for i in range(40):
        a(f'v_mul_f32 v{32+i}, v{32+i}, v6')
    for i in range(20):
        a(f'v_cvt_pk_bf16_f32 v{8+i}, v{32+2*i}, v{33+2*i}')
    a('s_mul_i32 s28, s2, 20480')
    a('s_lshl_b32 s29, s3, 6')
    a('s_add_u32 s28, s28, s29')
    a('v_lshlrev_b32 v5, 8, v4')
    a('v_lshl_add_u32 v5, v3, 4, v5')
    a('v_add_u32 v5, s28, v5')
    for i in range(5):
        a(f's_mov_b32 s29, {WS_XN + 4096*i}')
        a(f'buffer_store_dwordx4 v[{8+4*i}:{11+4*i}], v5, s[20:23], s29 offen')
    a('s_endpgm')
    a.label(f'{L}_pk')
    a(f's_cmp_ge_u32 s2, {K0_LN + K0_PK}')
    a(f's_cbranch_scc1 {L}_cs')
    a(f's_sub_u32 s28, s2, {K0_LN}')
    a('s_lshl_b32 s28, s28, 2')
    a('s_add_u32 s28, s28, s3')
    mats = [(600, 6, 1920, 640, WS_WQKV, 30), (200, 8, 640, 640, WS_WO, 10), (540, 10, 1728, 640, WS_W1, 27), (540, 12, 640, 1728, WS_W2, 10)]
    start = 0
    for mi, (cnt, ptr, N, K, off, ncb) in enumerate(mats):
        if mi < len(mats) - 1:
            a(f's_cmp_lt_u32 s28, {start + cnt}')
            a(f's_cbranch_scc0 {L}_m{mi+1}')
        srd(a, 24, ptr, N * K * 2)
        a(f's_mov_b32 s30, {N*2}')
        a(f's_mov_b32 s31, {K//8*256}')
        a(f's_mov_b32 s32, {off}')
        a(f's_sub_u32 s28, s28, {start}')
        a(f's_mul_hi_u32 s34, s28, {magic(ncb)}')
        a(f's_mul_i32 s35, s34, {ncb}')
        a('s_sub_u32 s35, s28, s35')
        a(f's_branch {L}_go')
        if mi < len(mats) - 1: a.label(f'{L}_m{mi+1}')
        start += cnt
    a.label(f'{L}_go')
    a('s_lshl_b32 s36, s34, 5')
    a('s_mul_i32 s36, s36, s30')
    a('s_lshl_b32 s37, s35, 7')
    a('s_add_u32 s36, s36, s37')
    a('v_lshlrev_b32 v5, 1, v2')
    for r in range(32):
        a(f'buffer_load_ushort v{40+r}, v5, s[24:27], s36 offen')
        a('s_add_u32 s36, s36, s30')
    a('v_lshrrev_b32 v6, 4, v2')
    a('s_lshl_b32 s37, s35, 2')
    a('v_add_u32 v6, s37, v6')
    a('v_mul_lo_u32 v6, v6, s31')
    a('v_and_b32 v7, 15, v2')
    a('v_lshl_add_u32 v6, v7, 4, v6')
    a('s_lshl_b32 s37, s34, 10')
    a('s_add_u32 s37, s37, s32')
    a('s_waitcnt vmcnt(0)')
    for r in range(16):
        a(f'v_lshl_or_b32 v{8+r}, v{41+2*r}, 16, v{40+2*r}')
    for oc in range(4):
        a(f'buffer_store_dwordx4 v[{8+4*oc}:{11+4*oc}], v6, s[20:23], s37 offen offset:{256*oc}')
    a('s_endpgm')
    a.label(f'{L}_cs')
    a(f's_cmp_ge_u32 s2, {K0_LN + K0_PK + K0_CS}')
    a(f's_cbranch_scc1 {L}_bias')
    srd(a, 24, 10, D * F * 2)
    a(f's_sub_u32 s28, s2, {K0_LN + K0_PK}')
    a('v_lshrrev_b32 v3, 5, v2')
    a('v_and_b32 v4, 31, v2')
    a('s_mul_i32 s29, s3, 160')
    a('v_add_u32 v3, s29, v3')
    a('s_movk_i32 s30, 3456')
    a('v_mul_lo_u32 v5, v3, s30')
    a('v_lshl_add_u32 v5, v4, 2, v5')
    a('s_lshl_b32 s29, s28, 7')
    a('v_mov_b32 v6, 0')
    a('v_mov_b32 v7, 0')
    a('s_mov_b32 s31, 5')
    a.label(f'{L}_csl')
    for i in range(16):
        a(f'buffer_load_dword v{8+i}, v5, s[24:27], s29 offen')
        a(f's_add_u32 s29, s29, {2*3456}')
    a('s_waitcnt vmcnt(0)')
    for i in range(16):
        a(f'v_lshlrev_b32 v24, 16, v{8+i}')
        a(f'v_and_b32 v25, 0xffff0000, v{8+i}')
        a('v_add_f32 v6, v6, v24')
        a('v_add_f32 v7, v7, v25')
    a('s_sub_u32 s31, s31, 1')
    a('s_cmp_lg_u32 s31, 0')
    a(f's_cbranch_scc1 {L}_csl')
    a('v_lshlrev_b32 v8, 3, v0')
    a('ds_write_b64 v8, v[6:7]')
    a('s_waitcnt lgkmcnt(0)')
    a('s_barrier')
    a('v_cmp_gt_u32 vcc, 32, v0')
    a('s_and_saveexec_b64 s[40:41], vcc')
    a(f's_cbranch_execz {L}_end')
    for i in range(8):
        a(f'ds_read_b64 v[{10+2*i}:{11+2*i}], v8 offset:{256*i}')
    a('s_waitcnt lgkmcnt(0)')
    for i in range(1, 8):
        a(f'v_add_f32 v10, v10, v{10+2*i}')
        a(f'v_add_f32 v11, v11, v{11+2*i}')
    a('s_lshl_b32 s29, s28, 8')
    a(f's_add_u32 s29, s29, {WS_CS1}')
    a('buffer_store_dwordx2 v[10:11], v8, s[20:23], s29 offen')
    a('s_endpgm')
    a.label(f'{L}_bias')
    srd(a, 24, 16, F * 2)
    srd(a, 28, 18, D * 2)
    a('v_lshlrev_b32 v5, 1, v0')
    a('v_lshlrev_b32 v6, 2, v0')
    for i in range(7):
        a(f'buffer_load_ushort v{8+i}, v5, s[24:27], 0 offen offset:{512*i}')
    for i in range(3):
        a(f'buffer_load_ushort v{16+i}, v5, s[28:31], 0 offen offset:{512*i}')
    a('s_waitcnt vmcnt(0)')
    for i in range(7):
        a(f'v_lshlrev_b32 v{8+i}, 16, v{8+i}')
        a(f's_mov_b32 s32, {WS_B1F + 1024*i}')
        a(f'buffer_store_dword v{8+i}, v6, s[20:23], s32 offen')
    for i in range(3):
        a(f'v_lshlrev_b32 v{16+i}, 16, v{16+i}')
        a(f's_mov_b32 s32, {WS_B2F + 1024*i}')
        a(f'buffer_store_dword v{16+i}, v6, s[20:23], s32 offen')
    a.label(f'{L}_end')
    a('s_endpgm')
    return a, descriptor(L, 80, 48), f'; @launch kernel={L} grid=({K0_GRID},1,1) block=(256,1,1) lds=4096'


def ring_gemm(a, nst, ACC, FA, FB, vdma, vrdA, vrdB, ssrd, sdma, sm0, swap, tag, pro=2, NSLOT=4, pre=0):
    pend = [(st, ks) for st in range(nst) for ks in range(4)]
    issued = []
    def dma_one():
        st, ks = pend.pop(0)
        slot = st % NSLOT
        a(f's_add_u32 m0, s{sm0}, {slot*32768 + ks*8192}')
        a(f's_add_u32 s{sdma+1}, s{sdma}, {st*2048 + ks*512}')
        a(f'buffer_load_dwordx4 v{vdma}, s[{ssrd}:{ssrd+3}], s{sdma+1} offen lds')
        issued.append(st)
    def wait_stage(st):
        n = 0
        for x in reversed(issued):
            if x <= st: break
            n += 1
        assert issued.count(st) == 4
        a(f's_waitcnt vmcnt({n})')
    def reads(st, ks, buf):
        slot = st % NSLOT
        off = slot * 32768 + ks * 8192
        hi = 1 if off >= 65536 else 0
        off -= hi * 65536
        a(f'ds_read_b128 {v(FA+4*buf,4)}, v{vrdA[hi]} offset:{off}')
        a(f'ds_read_b128 {v(FB+8*buf,4)}, v{vrdB[hi]} offset:{off}')
        a(f'ds_read_b128 {v(FB+8*buf+4,4)}, v{vrdB[hi]} offset:{off+1024}')
    def mfmas(buf, first):
        for j in range(2):
            A = v(FA+4*buf, 4); B = v(FB+8*buf+4*j, 4)
            c = '0' if first else v(ACC+16*j, 16)
            if swap: a(f'v_mfma_f32_32x32x16_bf16 {v(ACC+16*j,16)}, {B}, {A}, {c}')
            else: a(f'v_mfma_f32_32x32x16_bf16 {v(ACC+16*j,16)}, {A}, {B}, {c}')
    for _ in range(4 * pro): dma_one()
    stamp(a, 2)
    wait_stage(0)
    a('s_barrier')
    stamp(a, 3)
    reads(0, 0, 0)
    buf = 0
    for st in range(nst):
        for ks in range(4):
            if ks < 3:
                reads(st, ks + 1, buf ^ 1)
                a('s_waitcnt lgkmcnt(3)')
                mfmas(buf, st == 0 and ks == 0)
            else:
                if st + 1 < nst:
                    a('s_waitcnt lgkmcnt(0)')
                    wait_stage(st + 1)
                    a('s_barrier')
                    reads(st + 1, 0, buf ^ 1)
                else:
                    a('s_waitcnt lgkmcnt(0)')
                mfmas(buf, False)
            lim = st + NSLOT - 1 + (1 if ks == 3 else 0)
            nq = 2 if (pend and pend[0][0] < lim and st == 0) else 1
            for _ in range(nq):
                if pend and pend[0][0] <= lim: dma_one()
            buf ^= 1
    a('s_nop 15')
    stamp(a, 4)

def lane_swap23(a, dst, src, tmp):
    a(f'v_and_b32 v{dst}, 0x13, v{src}')
    a(f'v_and_b32 v{tmp}, 4, v{src}')
    a(f'v_lshl_or_b32 v{dst}, v{tmp}, 1, v{dst}')
    a(f'v_and_b32 v{tmp}, 8, v{src}')
    a(f'v_lshrrev_b32 v{tmp}, 1, v{tmp}')
    a(f'v_or_b32 v{dst}, v{dst}, v{tmp}')

QSCALE = (DH ** -0.5) * 1.4426950408889634

def k1():
    a = Asm()
    L = 'k1_kernel'
    kernel_begin(a, L)
    a('s_cmp_ge_u32 s2, 256')
    a(f's_cbranch_scc1 {L}_end')
    stamp(a, 0, True); stamp(a, 1)
    a(f's_load_dwordx2 s[4:5], s[0:1], {A_WS}')
    a('s_and_b32 s15, s2, 7')
    a('s_lshr_b32 s16, s2, 3')
    a('s_and_b32 s13, s15, 3')
    a('s_lshl_b32 s13, s13, 2')
    a('s_and_b32 s17, s16, 3')
    a('s_add_u32 s13, s13, s17')
    a('s_lshr_b32 s14, s15, 2')
    a('s_lshl_b32 s14, s14, 3')
    a('s_lshr_b32 s17, s16, 2')
    a('s_add_u32 s14, s14, s17')
    a('s_cmp_ge_u32 s14, 15')
    a(f's_cbranch_scc1 {L}_zero')
    a('v_lshrrev_b32 v1, 6, v0')
    a('v_and_b32 v2, 63, v0')
    a('v_readfirstlane_b32 s12, v1')
    a('v_and_b32 v3, 31, v2')
    a('v_lshrrev_b32 v4, 5, v2')
    lane_swap23(a, 5, 3, 6)
    a('s_waitcnt lgkmcnt(0)')
    srd(a, 8, 4, WS_END)
    a('s_cmp_lt_u32 s12, 4')
    a('s_cselect_b32 s17, 1, 0')
    a('s_cmp_lt_u32 s14, 10')
    a('s_cselect_b32 s18, s17, 0')
    a('s_cmp_eq_u32 s18, 1')
    a('s_cselect_b64 vcc, -1, 0')
    a('v_cndmask_b32 v6, v3, v5, vcc')
    a('v_lshrrev_b32 v7, 4, v6')
    a('s_movk_i32 s17, 20480')
    a('v_mul_lo_u32 v7, v7, s17')
    a('v_and_b32 v6, 15, v6')
    a('v_lshl_add_u32 v7, v6, 4, v7')
    a('v_lshl_add_u32 v7, v4, 8, v7')
    a('s_lshl_b32 s18, s14, 3')
    a('s_lshl_b32 s19, s12, 1')
    a('s_add_u32 s18, s18, s19')
    a('s_mul_i32 s18, s18, 20480')
    a(f's_add_u32 s18, s18, {WS_WQKV}')
    a('s_lshl_b32 s20, s13, 3')
    a('s_add_u32 s20, s20, s19')
    a('s_sub_u32 s20, s20, 8')
    a('s_mul_i32 s20, s20, 20480')
    a(f's_add_u32 s20, s20, {WS_XN}')
    a('s_cmp_lt_u32 s12, 4')
    a('s_cselect_b32 s20, s18, s20')
    a('s_lshl_b32 s22, s12, 10')
    a('s_and_b32 s23, s12, 3')
    a('s_lshr_b32 s24, s12, 2')
    a('v_lshlrev_b32 v8, 4, v2')
    a('s_lshl_b32 s17, s23, 10')
    a('v_add_u32 v9, s17, v8')
    a('v_add_u32 v10, 0x10000, v9')
    a('s_lshl_b32 s17, s24, 11')
    a('s_add_u32 s17, s17, 4096')
    a('v_add_u32 v11, s17, v8')
    a('v_add_u32 v12, 0x10000, v11')
    ACC, FA, FB = 32, 16, 64
    a('s_cmp_ge_u32 s14, 10')
    a(f's_cbranch_scc1 {L}_v')
    ring_gemm(a, 10, ACC, FA, FB, 7, (9, 10), (11, 12), 8, 20, 22, False, 'qk')
    a('s_cmp_ge_u32 s14, 5')
    a(f's_cbranch_scc1 {L}_noscale')
    a(f's_mov_b32 s17, {f2hex(QSCALE)}')
    for r in range(32):
        a(f'v_mul_f32 v{ACC+r}, s17, v{ACC+r}')
    a.label(f'{L}_noscale')
    for r in range(16):
        a(f'v_cvt_pk_bf16_f32 v{64+r}, v{ACC+2*r}, v{ACC+2*r+1}')
    a('v_lshrrev_b32 v13, 4, v3')
    a('s_movk_i32 s17, 20480')
    a('v_mul_lo_u32 v13, v13, s17')
    a('v_and_b32 v14, 15, v3')
    a('v_lshl_add_u32 v13, v14, 4, v13')
    a('v_lshl_add_u32 v13, v4, 8, v13')
    a('s_lshl_b32 s17, s13, 3')
    a('s_lshl_b32 s18, s24, 2')
    a('s_add_u32 s17, s17, s18')
    a('s_mul_i32 s17, s17, 20480')
    a(f's_mov_b32 s18, {WS_Q}')
    a(f's_mov_b32 s19, {WS_K - 80*256}')
    a('s_cmp_lt_u32 s14, 5')
    a('s_cselect_b32 s18, s18, s19')
    a('s_add_u32 s17, s17, s18')
    a('s_lshl_b32 s18, s14, 12')
    a('s_add_u32 s17, s17, s18')
    a('s_lshl_b32 s18, s23, 10')
    a('s_add_u32 s17, s17, s18')
    for j in range(2):
        a(f'buffer_store_dwordx4 {v(64+8*j,4)}, v13, s[8:11], s17 offen')
        a(f'buffer_store_dwordx4 {v(68+8*j,4)}, v13, s[8:11], s17 offen offset:512')
        if j == 0: a(f's_add_u32 s17, s17, {2*20480}')
    stamp(a, 5)
    if PROF: a('s_waitcnt vmcnt(0)')
    stamp(a, 6); stamp(a, 7, True)
    stamp_flush(a, 1, 8, 8, 12)
    a('s_endpgm')
    a.label(f'{L}_v')
    ring_gemm(a, 10, ACC, FA, FB, 7, (9, 10), (11, 12), 8, 20, 22, True, 'v')
    for r in range(16):
        a(f'v_cvt_pk_bf16_f32 v{64+r}, v{ACC+2*r}, v{ACC+2*r+1}')
    a('s_sub_u32 s17, s14, 10')
    a('s_lshl_b32 s17, s17, 7')
    a('s_lshl_b32 s18, s23, 5')
    a('s_add_u32 s17, s17, s18')
    a('v_add_u32 v13, s17, v3')
    a(f's_mov_b32 s17, {magic(20)}')
    a('v_mul_hi_u32 v14, v13, s17')
    a('v_mul_u32_u24 v15, 20, v14')
    a('v_sub_u32 v15, v13, v15')
    a('s_mov_b32 s17, 81920')
    a('v_mul_lo_u32 v14, v14, s17')
    a('v_lshl_add_u32 v14, v15, 4, v14')
    a('v_mul_u32_u24 v15, 320, v4')
    a('v_add_u32 v14, v14, v15')
    a('s_lshl_b32 s17, s13, 3')
    a('s_lshl_b32 s18, s24, 2')
    a('s_add_u32 s17, s17, s18')
    a('s_mul_i32 s17, s17, 640')
    a(f's_add_u32 s17, s17, {WS_VT}')
    for j in range(2):
        for gg in range(2):
            a(f'buffer_store_dwordx4 {v(64+8*j+4*gg,4)}, v14, s[8:11], s17 offen offset:{(2*j+gg)*640}')
    stamp(a, 5)
    if PROF: a('s_waitcnt vmcnt(0)')
    stamp(a, 6); stamp(a, 7, True)
    stamp_flush(a, 1, 8, 8, 12)
    a('s_endpgm')
    a.label(f'{L}_zero')
    a('s_waitcnt lgkmcnt(0)')
    srd(a, 8, 4, WS_END)
    a('v_lshlrev_b32 v1, 4, v0')
    for r in range(4, 8): a(f'v_mov_b32 v{r}, 0')
    a(f's_mov_b32 s17, {WS_FLAG}')
    a('buffer_store_dwordx4 v[4:7], v1, s[8:11], s17 offen')
    a.label(f'{L}_end')
    a('s_endpgm')
    return a, descriptor(L, 96, 102), f'; @launch kernel={L} grid=(256,1,1) block=(512,1,1) lds=131072'


AT_SLOT = 14336
class AR:
    QA = 16
    QC = 24
    KA = 28
    KC = 36
    VV = 40
    S = 56
    P = 88
    O = 104
    T = 136

def attn_setup(a, s_h, s_r, s_w, ssrd, defer=False):
    a(f's_lshr_b32 s40, s{s_h}, 1')
    a(f's_and_b32 s41, s{s_h}, 1')
    a('s_mul_i32 s42, s40, 5')
    a('s_add_u32 s43, s42, 2')
    a('s_mul_i32 s44, s41, 3')
    a('s_add_u32 s42, s42, s44')
    a(f's_and_b32 s45, s{s_w}, 3')
    a(f's_lshr_b32 s46, s{s_w}, 2')
    a('v_lshrrev_b32 v5, 4, v3')
    a('s_movk_i32 s47, 20480')
    a('v_mul_lo_u32 v5, v5, s47')
    a('v_and_b32 v6, 15, v3')
    a('v_lshl_add_u32 v5, v6, 4, v5')
    a('v_lshl_add_u32 v7, v4, 8, v5')
    a(f's_lshl_b32 s47, s{s_r}, 4')
    a('s_lshl_b32 s48, s45, 2')
    a('s_add_u32 s47, s47, s48')
    a('s_mul_i32 s47, s47, 20480')
    a(f's_add_u32 s48, s47, {WS_Q}')
    a('s_lshl_b32 s49, s42, 8')
    a('s_add_u32 s49, s49, s48')
    a('s_lshl_b32 s50, s43, 8')
    a('s_add_u32 s50, s50, s48')
    a('s_lshl_b32 s51, s41, 3')
    a('s_add_u32 s50, s50, s51')
    if not defer: attn_qloads(a, ssrd)
    lane_swap23(a, 8, 3, 9)
    a('v_cmp_gt_u32 vcc, 16, v3')
    a('v_cndmask_b32 v8, v3, v8, vcc')
    a('s_lshl_b32 s51, s41, 2')
    a('v_add_u32 v8, s51, v8')
    a('v_subrev_u32 v9, 20, v8')
    a('v_cmp_le_u32 vcc, 20, v8')
    a('v_cndmask_b32 v8, v8, v9, vcc')
    a('v_mul_u32_u24 v9, 320, v4')
    a('v_lshl_add_u32 v8, v8, 4, v9')
    a(f's_mul_i32 s52, s{s_h}, 81920')
    a(f's_mul_i32 s53, s{s_w}, 640')
    a('s_add_u32 s52, s52, s53')
    a(f's_add_u32 s52, s52, {WS_VT}')
    a(f's_cmp_lt_u32 s{s_w}, 4')
    a(f's_cbranch_scc0 .Lat_kc')
    a('v_mov_b32 v9, v7')
    a(f's_lshl_b32 s53, s{s_w}, 1')
    a('s_mul_i32 s53, s53, 20480')
    a('s_lshl_b32 s54, s42, 8')
    a('s_add_u32 s53, s53, s54')
    a(f's_lshl_b32 s55, s{s_w}, 10')
    a('s_branch .Lat_kd')
    a.label('.Lat_kc')
    a('v_lshrrev_b32 v9, 4, v2')
    a('s_movk_i32 s53, 20480')
    a('v_mul_lo_u32 v9, v9, s53')
    a('v_lshl_add_u32 v9, v6, 4, v9')
    a(f's_and_b32 s55, s{s_w}, 1')
    a('s_lshl_b32 s53, s55, 2')
    a('s_mul_i32 s53, s53, 20480')
    a('s_lshl_b32 s54, s43, 8')
    a('s_add_u32 s53, s53, s54')
    a('s_lshl_b32 s55, s55, 10')
    a('s_add_u32 s55, s55, 4096')
    a.label('.Lat_kd')
    a(f's_add_u32 s53, s53, {WS_K}')
    a(f's_lshl_b32 s54, s{s_w}, 10')
    a('s_add_u32 s54, s54, 6144')
    a('v_lshlrev_b32 v10, 4, v2')
    a('s_lshl_b32 s56, s46, 11')
    a('v_add_u32 v11, s56, v10')
    a('v_lshlrev_b32 v12, 4, v3')
    a('s_lshl_b32 s56, s46, 10')
    a('s_lshl_b32 s57, s41, 3')
    a('s_add_u32 s56, s56, s57')
    a('s_add_u32 s56, s56, 4096')
    a('v_add_u32 v12, s56, v12')
    a('s_lshl_b32 s56, s46, 12')
    a('s_add_u32 s56, s56, 6144')
    a('v_add_u32 v13, s56, v10')
    a('s_mov_b32 s58, 0x000fffff')
    a('s_mov_b32 s59, 0x000fffff')
    if not defer: attn_ones(a)

def attn_qloads(a, ssrd):
    for j in range(2):
        a(f'buffer_load_dwordx4 {v(AR.QA+4*j,4)}, v7, s[{ssrd}:{ssrd+3}], s49 offen')
        a(f'buffer_load_dwordx2 {v(AR.QC+2*j,2)}, v5, s[{ssrd}:{ssrd+3}], s50 offen')
        if j == 0:
            a(f's_add_u32 s49, s49, {2*20480}')
            a(f's_add_u32 s50, s50, {2*20480}')

def attn_ones(a):
    a('v_mov_b32 v132, 0x3f803f80')
    a('v_cmp_eq_u32 vcc, 20, v3')
    if 'allones' not in EXP: a('v_cndmask_b32 v132, 0, v132, vcc')
    for r in (133, 134, 135): a(f'v_mov_b32 v{r}, v132')
    a('v_add_u32 v14, s54, v10')
    a('s_mov_b32 s40, 0xfff00000')
    a('s_mov_b32 s41, 0xfff00000')
    a('s_mov_b64 exec, s[40:41]')
    for sl in range(4):
        a(f'ds_write_b128 v14, v[132:135] offset:{sl*AT_SLOT}')
    a('s_mov_b64 exec, -1')

def attn_dma(a, slot, ssrd):
    a(f's_add_u32 m0, s54, {slot*AT_SLOT}')
    a('s_mov_b64 exec, s[58:59]')
    a(f'buffer_load_dwordx4 v8, s[{ssrd}:{ssrd+3}], s52 offen lds')
    a('s_mov_b64 exec, -1')
    a(f's_add_u32 m0, s55, {slot*AT_SLOT}')
    a('s_add_u32 s52, s52, 5120')
    a(f'buffer_load_dwordx4 v9, s[{ssrd}:{ssrd+3}], s53 offen lds')
    a('s_add_u32 s53, s53, 163840')

def attn_dma_parts(slot, ssrd):
    NT = 'nt ' if 'nt' in EXP else ''
    return ([f's_add_u32 m0, s54, {slot*AT_SLOT}', 's_mov_b64 exec, s[58:59]',
             f'buffer_load_dwordx4 v8, s[{ssrd}:{ssrd+3}], s52 offen {NT}lds', 's_mov_b64 exec, -1', 's_add_u32 s52, s52, 5120'],
            [f's_add_u32 m0, s55, {slot*AT_SLOT}', 's_nop 0',
             f'buffer_load_dwordx4 v9, s[{ssrd}:{ssrd+3}], s53 offen {NT}lds', 's_add_u32 s53, s53, 163840'])

def attn_main(a, ssrd, tag):
    R = AR
    def kreads(slot, t, buf):
        return [f'ds_read_b128 {v(R.KA+4*buf,4)}, v11 offset:{slot*AT_SLOT + t*1024}',
                f'ds_read_b64 {v(R.KC+2*buf,2)}, v12 offset:{slot*AT_SLOT + t*512}']
    def vreads(slot, t, buf):
        return [f'ds_read_b128 {v(R.VV+8*buf,4)}, v13 offset:{slot*AT_SLOT + t*2048}',
                f'ds_read_b128 {v(R.VV+8*buf+4,4)}, v13 offset:{slot*AT_SLOT + t*2048 + 1024}']
    def m1(sb, kb, j): return f'v_mfma_f32_32x32x16_bf16 {v(R.S+16*sb,16)}, {v(R.KA+4*kb,4)}, {v(R.QA+4*j,4)}, 0'
    def m2(sb, kb, j): return f'v_mfma_f32_32x32x8bf16_1k {v(R.S+16*sb,16)}, {v(R.KC+2*kb,2)}, {v(R.QC+2*j,2)}, {v(R.S+16*sb,16)}'
    def m3(j, vb, pb): return f'v_mfma_f32_32x32x16_bf16 {v(R.O+16*j,16)}, {v(R.VV+8*vb,4)}, {v(R.P+8*pb,4)}, {v(R.O+16*j,16)}'
    def m4(j, vb, pb): return f'v_mfma_f32_32x32x16_bf16 {v(R.O+16*j,16)}, {v(R.VV+8*vb+4,4)}, {v(R.P+8*pb+4,4)}, {v(R.O+16*j,16)}'
    for r in range(32): a(f'v_mov_b32 v{R.O+r}, 0')
    for r in range(16): a(f'v_mov_b32 v{R.P+r}, 0')
    for r in range(16): a(f'v_mov_b32 v{R.VV+r}, 0')
    attn_dma(a, 0, ssrd)
    if 'pro3' in EXP:
        for st in range(1, 3): attn_dma(a, st, ssrd)
        a('s_waitcnt vmcnt(4)')
    else:
        a('s_waitcnt vmcnt(0)')
        for st in range(1, 3): attn_dma(a, st, ssrd)
    a('v_cmp_gt_u32 vcc, 32, v2')
    for r in range(4): a(f'v_cndmask_b32 v{R.QC+r}, 0, v{R.QC+r}, vcc')
    a('s_waitcnt lgkmcnt(0)')
    a('s_barrier')
    for x in kreads(0, 0, 0): a(x)
    a('s_waitcnt lgkmcnt(0)')
    a(m1(0, 0, 0)); a(m2(0, 0, 0))
    a('s_mov_b32 s60, 4')
    if 'barstamp' not in EXP: stamp(a, 7)
    if 'align' in EXP: a.raw('.p2align 6')
    a.label(f'.Lat_loop{tag}')
    for st in range(4):
        for u in range(4):
            n = st * 4 + u
            T = n >> 1; j = n & 1
            sb = n & 1; Tn = (n + 1) >> 1; jn = (n + 1) & 1
            Tp = (n - 1) >> 1; jp = (n - 1) & 1
            if 'prio' in EXP: a(f's_setprio {3-u}')
            extras = {}
            if u == 2 and 'nobar' not in EXP:
                if 'barstamp' in EXP: stamp(a, 7 + 2*st)
                a('s_waitcnt vmcnt(2)')
                a('s_barrier')
                if 'barstamp' in EXP: stamp(a, 8 + 2*st)
            if u == 3 and 'nodma' not in EXP:
                d = attn_dma_parts((st + 3) % 4, ssrd)
                extras.setdefault(3, []).extend(d[0])
                extras.setdefault(15, []).extend(d[1])
            if n % 2 == 0:
                T1 = T + 1
                if 'nods' not in EXP:
                    kr = kreads((T1 >> 1) % 4, T1 & 1, T1 & 1)
                    vr = vreads((T >> 1) % 4, T & 1, T & 1)
                    for pos, x in zip((2, 6, 11, 16), kr + vr): extras.setdefault(pos, []).append(x)
            else:
                a('s_waitcnt lgkmcnt(0)')
            S = R.S + 16 * sb
            ex = [f'v_exp_f32 v{S+i}, v{S+i}' for i in range(16)]
            cv = [f'v_cvt_pk_bf16_f32 v{R.P+8*sb+i}, v{S+2*i}, v{S+2*i+1}' for i in range(8)]
            M = [m1(sb ^ 1, Tn & 1, jn), m2(sb ^ 1, Tn & 1, jn), m3(jp, Tp & 1, (n - 1) & 1), m4(jp, Tp & 1, (n - 1) & 1)]
            seq = [M[0], ex[0], ex[1], ex[2], ex[3], cv[0], ex[4], M[1], ex[5], cv[1], ex[6], ex[7], cv[2],
                   M[2], ex[8], ex[9], cv[3], ex[10], ex[11], cv[4], M[3], ex[12], ex[13], cv[5], ex[14], ex[15], cv[6], cv[7]]
            for i, x in enumerate(seq):
                for y in extras.get(i, []): a(y)
                a(x)
    a('s_sub_u32 s60, s60, 1')
    a('s_cmp_lg_u32 s60, 0')
    a(f's_cbranch_scc1 .Lat_loop{tag}')
    a(m3(1, 1, 1)); a(m4(1, 1, 1))

def attn_stage_wrap_note(): pass

def k2():
    a = Asm()
    L = 'k2_kernel'
    kernel_begin(a, L)
    a('s_cmp_ge_u32 s2, 256')
    a(f's_cbranch_scc1 {L}_end')
    stamp(a, 0, True); stamp(a, 1)
    a(f's_load_dwordx2 s[4:5], s[0:1], {A_WS}')
    a('s_and_b32 s13, s2, 7')
    a('s_lshr_b32 s14, s2, 3')
    a('v_lshrrev_b32 v1, 6, v0')
    a('v_and_b32 v2, 63, v0')
    a('v_readfirstlane_b32 s12, v1')
    a('v_and_b32 v3, 31, v2')
    a('v_lshrrev_b32 v4, 5, v2')
    a('s_waitcnt lgkmcnt(0)')
    srd(a, 8, 4, WS_END)
    attn_setup(a, 14, 13, 12, 8)
    stamp(a, 2)
    attn_main(a, 8, '')
    stamp(a, 3)
    R = AR
    a('s_waitcnt vmcnt(0)')
    a('s_barrier')
    a('s_cmp_eq_u32 s46, 0')
    a('s_cbranch_scc1 .Lat_noswap')
    a('s_nop 7')
    for r in range(12): a(f'v_swap_b32 v{R.O+r}, v{R.O+16+r}')
    a.label('.Lat_noswap')
    a('s_nop 7')
    a(f's_mul_i32 s61, s12, 3072')
    a('v_add_u32 v14, s61, v10')
    for i in range(3): a(f'ds_write_b128 v14, {v(R.O+16+4*i,4)} offset:{1024*i}')
    a('s_xor_b32 s61, s12, 4')
    a('s_mul_i32 s61, s61, 3072')
    a('v_add_u32 v14, s61, v10')
    a('s_waitcnt lgkmcnt(0)')
    a('s_barrier')
    for i in range(3): a(f'ds_read_b128 {v(R.T+4*i,4)}, v14 offset:{1024*i}')
    a('s_waitcnt lgkmcnt(0)')
    for r in range(12): a(f'v_add_f32 v{R.O+r}, v{R.O+r}, v{R.T+r}')
    a(f'v_mov_b32 v{R.T}, v{R.O+8}')
    a(f'v_mov_b32 v{R.T+1}, v{R.O+8}')
    a(f'v_permlane32_swap_b32 v{R.T}, v{R.T+1}')
    a(f'v_rcp_f32 v{R.T+1}, v{R.T+1}')
    for r in range(12): a(f'v_mul_f32 v{R.O+r}, v{R.O+r}, v{R.T+1}')
    for i in range(6): a(f'v_cvt_pk_bf16_f32 v{R.T+4+i}, v{R.O+2*i}, v{R.O+2*i+1}')
    a('s_mul_i32 s61, s46, 40960')
    a('s_add_u32 s61, s61, s47')
    a(f's_add_u32 s61, s61, {WS_O}')
    a('s_lshl_b32 s62, s42, 8')
    a('s_add_u32 s62, s62, s61')
    a(f'buffer_store_dwordx4 {v(R.T+4,4)}, v7, s[8:11], s62 offen')
    a('s_lshl_b32 s62, s43, 8')
    a('s_add_u32 s62, s62, s61')
    a('s_lshl_b32 s63, s41, 3')
    a('s_add_u32 s62, s62, s63')
    a('s_mov_b64 exec, 0xffffffff')
    a(f'buffer_store_dwordx2 {v(R.T+8,2)}, v5, s[8:11], s62 offen')
    a('s_mov_b64 exec, -1')
    stamp(a, 4)
    if PROF: a('s_waitcnt vmcnt(0)')
    stamp(a, 5); stamp(a, 6, True)
    stamp_flush(a, 2, 15, 8, 12)
    a.label(f'{L}_end')
    a('s_endpgm')
    return a, descriptor(L, 160, 102), f'; @launch kernel={L} grid=(256,1,1) block=(512,1,1) lds={4*AT_SLOT}'


def common_prologue(a, L, kidx):
    a('s_cmp_ge_u32 s2, 256')
    a(f's_cbranch_scc1 {L}_end')
    stamp(a, 0, True); stamp(a, 1)
    a(f's_load_dwordx2 s[4:5], s[0:1], {A_WS}')
    a(f's_load_dwordx2 s[6:7], s[0:1], {A_X}')
    a(f's_load_dwordx2 s[24:25], s[0:1], {A_OUT}')
    a('s_and_b32 s13, s2, 7')
    a('s_lshr_b32 s14, s2, 3')
    a('v_lshrrev_b32 v1, 6, v0')
    a('v_and_b32 v2, 63, v0')
    a('v_readfirstlane_b32 s12, v1')
    a('v_and_b32 v3, 31, v2')
    a('v_lshrrev_b32 v4, 5, v2')
    a('v_lshlrev_b32 v10, 4, v2')
    a('s_waitcnt lgkmcnt(0)')
    srd(a, 8, 4, WS_END)

def ksplit_reduce(a, ACC, T, sw, sth, skq, vl16, vtmp):
    a(f's_lshl_b32 s40, s{skq}, 1')
    a(f's_add_u32 s40, s40, s{sth}')
    a('s_mul_i32 s40, s40, 10240')
    a(f'v_add_u32 v{vtmp}, s40, v{vl16}')
    for j in range(2):
        for ft in range(5):
            a(f'ds_write_b128 v{vtmp}, {v(ACC+4*(2*ft+j),4)} offset:{(j*5+ft)*1024}')
    a('s_waitcnt lgkmcnt(0)')
    a('s_barrier')

def ksplit_gather(a, T, sw, vl16, vtmp):
    a(f's_mul_i32 s40, s{sw}, 5120')
    a(f'v_add_u32 v{vtmp}, s40, v{vl16}')
    for kq in range(4):
        if kq == 2: a(f'v_add_u32 v{vtmp}, 40960, v{vtmp}')
        for ft in range(5):
            a(f'ds_read_b128 {v(T+20*kq+4*ft,4)}, v{vtmp} offset:{(kq&1)*20480 + ft*1024}')
    a('s_waitcnt lgkmcnt(0)')
    for r in range(20):
        a(f'v_add_f32 v{T+r}, v{T+r}, v{T+20+r}')
        a(f'v_add_f32 v{T+40+r}, v{T+40+r}, v{T+60+r}')
    for r in range(20):
        a(f'v_add_f32 v{T+r}, v{T+r}, v{T+40+r}')

def sum_q4(a, x, t1, t2):
    a(f'v_mov_b32 v{t1}, v{x}'); a(f'v_mov_b32 v{t2}, v{x}')
    a(f'v_permlane16_swap_b32 v{t1}, v{t2}')
    a(f'v_add_f32 v{x}, v{t1}, v{t2}')
    a(f'v_mov_b32 v{t1}, v{x}'); a(f'v_mov_b32 v{t2}, v{x}')
    a(f'v_permlane32_swap_b32 v{t1}, v{t2}')
    a(f'v_add_f32 v{x}, v{t1}, v{t2}')

def k3():
    a = Asm()
    L = 'k3_kernel'
    kernel_begin(a, L)
    common_prologue(a, L, 3)
    srd(a, 16, 6, S * D * 2)
    a('s_and_b32 s20, s14, 3')
    a('s_lshr_b32 s21, s14, 2')
    a('s_lshr_b32 s22, s12, 2')
    a('s_and_b32 s23, s12, 3')
    a('s_mul_i32 s26, s21, 102400')
    a(f's_add_u32 s26, s26, {WS_WO}')
    a('s_lshl_b32 s27, s12, 10')
    a('s_add_u32 s26, s26, s27')
    for i in range(13):
        if i == 12:
            a('s_cmp_ge_u32 s12, 4')
            a(f's_cbranch_scc1 {L}_nod')
        a(f's_add_u32 m0, s27, {i*8192}')
        a(f's_add_u32 s28, s26, {i*8192}')
        a('buffer_load_dwordx4 v10, s[8:11], s28 offen lds')
    a.label(f'{L}_nod')
    BF, AF, ACC, T, XR = 16, 56, 96, 136, 216
    a('s_lshl_b32 s29, s13, 4')
    a('s_lshl_b32 s30, s20, 2')
    a('s_add_u32 s29, s29, s30')
    a('s_lshl_b32 s30, s22, 1')
    a('s_add_u32 s30, s30, s29')
    a('s_mul_i32 s30, s30, 20480')
    a('s_mul_i32 s31, s23, 5120')
    a('s_add_u32 s30, s30, s31')
    a(f's_add_u32 s30, s30, {WS_O}')
    for j in range(2):
        for i in range(5):
            a(f's_add_u32 s31, s30, {j*20480 + i*1024}')
            a(f'buffer_load_dwordx4 {v(BF+4*(5*j+i),4)}, v10, s[8:11], s31 offen')
    a('v_and_b32 v5, 15, v2')
    a('v_lshrrev_b32 v6, 4, v2')
    a('s_and_b32 s31, s12, 3')
    a('s_add_u32 s31, s31, s29')
    a('s_lshl_b32 s31, s31, 4')
    a('v_add_u32 v7, s31, v5')
    a('s_movk_i32 s32, 1280')
    a('v_mul_lo_u32 v7, v7, s32')
    a('v_lshl_add_u32 v7, v6, 3, v7')
    a('s_mul_i32 s32, s21, 160')
    for ft in range(5):
        a(f'buffer_load_dwordx2 {v(XR+2*ft,2)}, v7, s[16:19], s32 offen offset:{32*ft}')
    stamp(a, 2)
    a('s_waitcnt vmcnt(0)')
    a('s_barrier')
    stamp(a, 3)
    a('s_mul_i32 s33, s23, 5120')
    a('v_add_u32 v8, s33, v10')
    a('v_add_u32 v9, 0x10000, v8')
    def areads(i, buf):
        for ft in range(5):
            off = ft * 20480 + i * 1024
            base = 8
            if off >= 65536: off -= 65536; base = 9
            a(f'ds_read_b128 {v(AF+20*buf+4*ft,4)}, v{base} offset:{off}')
    areads(0, 0)
    for i in range(5):
        if i < 4:
            areads(i + 1, (i + 1) & 1)
            a('s_waitcnt lgkmcnt(5)')
        else:
            a('s_waitcnt lgkmcnt(0)')
        for ft in range(5):
            for j in range(2):
                acc = v(ACC + 4 * (2 * ft + j), 4)
                a(f'v_mfma_f32_16x16x32_bf16 {acc}, {v(AF+20*(i&1)+4*ft,4)}, {v(BF+4*(5*j+i),4)}, {"0" if i == 0 else acc}')
    stamp(a, 4)
    a('s_barrier')
    ksplit_reduce(a, ACC, T, 12, 22, 23, 10, 11)
    a('s_cmp_ge_u32 s12, 4')
    a(f's_cbranch_scc1 {L}_end')
    ksplit_gather(a, T, 12, 10, 11)
    for ft in range(5):
        for h2 in range(2):
            a(f'v_lshlrev_b32 v{T+20}, 16, v{XR+2*ft+h2}')
            a(f'v_and_b32 v{T+21}, 0xffff0000, v{XR+2*ft+h2}')
            a(f'v_add_f32 v{T+4*ft+2*h2}, v{T+4*ft+2*h2}, v{T+20}')
            a(f'v_add_f32 v{T+4*ft+2*h2+1}, v{T+4*ft+2*h2+1}, v{T+21}')
    a(f'v_mov_b32 v{T+20}, v{T}')
    a(f'v_mul_f32 v{T+21}, v{T}, v{T}')
    for r in range(1, 20):
        a(f'v_add_f32 v{T+20}, v{T+20}, v{T+r}')
        a(f'v_fmac_f32 v{T+21}, v{T+r}, v{T+r}')
    sum_q4(a, T+20, T+22, T+23)
    sum_q4(a, T+21, T+22, T+23)
    for i in range(10):
        a(f'v_cvt_pk_bf16_f32 v{T+24+i}, v{T+2*i}, v{T+2*i+1}')
    a('s_add_u32 s33, s29, s12')
    a('s_mul_i32 s34, s33, 20480')
    a('s_mul_i32 s35, s21, 2560')
    a('s_add_u32 s34, s34, s35')
    a(f's_add_u32 s34, s34, {WS_H}')
    a('v_lshrrev_b32 v11, 1, v6')
    a('v_lshlrev_b32 v11, 8, v11')
    a('v_lshl_add_u32 v11, v5, 4, v11')
    a('v_and_b32 v12, 1, v6')
    a('v_lshl_add_u32 v11, v12, 3, v11')
    for ft in range(5):
        a(f'buffer_store_dwordx2 {v(T+24+2*ft,2)}, v11, s[8:11], s34 offen offset:{512*ft}')
    a('s_lshl_b32 s33, s33, 10')
    a('s_lshl_b32 s35, s21, 3')
    a('s_add_u32 s33, s33, s35')
    a(f's_add_u32 s33, s33, {WS_ST2}')
    a('v_lshlrev_b32 v12, 6, v5')
    a('s_mov_b64 exec, 0xffff')
    a(f'buffer_store_dwordx2 {v(T+20,2)}, v12, s[8:11], s33 offen')
    a('s_mov_b64 exec, -1')
    stamp(a, 5)
    if PROF: a('s_waitcnt vmcnt(0)')
    stamp(a, 6, True)
    stamp_flush(a, 3, 7, 8, 12)
    a.label(f'{L}_end')
    a('s_endpgm')
    return a, descriptor(L, 232, 102), f'; @launch kernel={L} grid=(256,1,1) block=(512,1,1) lds=102400'

def k4():
    a = Asm()
    L = 'k4_kernel'
    kernel_begin(a, L)
    common_prologue(a, L, 4)
    a('s_cmp_ge_u32 s14, 28')
    a(f's_cbranch_scc1 {L}_end')
    a('s_and_b32 s13, s14, 1')
    a('s_and_b32 s15, s2, 7')
    a('s_lshl_b32 s15, s15, 1')
    a('s_add_u32 s13, s13, s15')
    a('s_lshr_b32 s14, s14, 1')
    lane_swap23(a, 5, 3, 6)
    a('s_cmp_lt_u32 s12, 4')
    a('s_cselect_b64 vcc, -1, 0')
    a('v_cndmask_b32 v6, v3, v5, vcc')
    a('v_lshrrev_b32 v7, 4, v6')
    a('s_movk_i32 s17, 20480')
    a('v_mul_lo_u32 v7, v7, s17')
    a('v_and_b32 v6, 15, v6')
    a('v_lshl_add_u32 v7, v6, 4, v7')
    a('v_lshl_add_u32 v7, v4, 8, v7')
    a('s_lshl_b32 s18, s14, 3')
    a('s_lshl_b32 s19, s12, 1')
    a('s_add_u32 s18, s18, s19')
    a('s_mul_i32 s18, s18, 20480')
    a(f's_add_u32 s18, s18, {WS_W1}')
    a('s_lshl_b32 s20, s13, 3')
    a('s_add_u32 s20, s20, s19')
    a('s_sub_u32 s20, s20, 8')
    a('s_mul_i32 s20, s20, 20480')
    a(f's_add_u32 s20, s20, {WS_H}')
    a('s_cmp_lt_u32 s12, 4')
    a('s_cselect_b32 s20, s18, s20')
    a('s_lshl_b32 s22, s12, 10')
    a('s_and_b32 s23, s12, 3')
    a('s_lshr_b32 s26, s12, 2')
    a('s_lshl_b32 s17, s23, 10')
    a('v_add_u32 v9, s17, v10')
    a('v_add_u32 v11, 0x10000, v9')
    a('s_lshl_b32 s17, s26, 11')
    a('s_add_u32 s17, s17, 4096')
    a('v_add_u32 v12, s17, v10')
    a('v_add_u32 v13, 0x10000, v12')
    ST, CS, B1 = 96, 128, 144
    a('s_lshl_b32 s27, s13, 7')
    a('s_lshl_b32 s28, s26, 6')
    a('s_add_u32 s27, s27, s28')
    a('v_add_u32 v14, s27, v3')
    a('v_lshlrev_b32 v14, 6, v14')
    a(f's_mov_b32 s28, {WS_ST2}')
    for j in range(2):
        for q in range(4):
            a(f'buffer_load_dwordx4 {v(ST+16*j+4*q,4)}, v14, s[8:11], s28 offen offset:{j*2048 + 16*q}')
    a('s_lshl_b32 s29, s14, 7')
    a('s_lshl_b32 s30, s23, 5')
    a('s_add_u32 s29, s29, s30')
    a('s_lshl_b32 s29, s29, 2')
    a('v_lshlrev_b32 v15, 5, v4')
    a(f's_add_u32 s30, s29, {WS_CS1}')
    a(f's_add_u32 s31, s29, {WS_B1F}')
    for q, off in enumerate((0, 16, 64, 80)):
        a(f'buffer_load_dwordx4 {v(CS+4*q,4)}, v15, s[8:11], s30 offen offset:{off}')
        a(f'buffer_load_dwordx4 {v(B1+4*q,4)}, v15, s[8:11], s31 offen offset:{off}')
    ACC, FA, FB = 32, 16, 64
    ring_gemm(a, 10, ACC, FA, FB, 7, (9, 11), (12, 13), 8, 20, 22, False, 'f1', pre=16)
    for j in range(2):
        b = ST + 16 * j
        for q in range(1, 8):
            a(f'v_add_f32 v{b}, v{b}, v{b+2*q}')
            a(f'v_add_f32 v{b+1}, v{b+1}, v{b+2*q+1}')
        a(f'v_mul_f32 v{b}, {f2hex(1.0/640)}, v{b}')
        a(f'v_mul_f32 v{b+1}, {f2hex(1.0/640)}, v{b+1}')
        a(f'v_fma_f32 v{b+1}, -v{b}, v{b}, v{b+1}')
        a(f'v_add_f32 v{b+1}, 0x3727c5ac, v{b+1}')
        a(f'v_rsq_f32 v{b+1}, v{b+1}')
        a(f'v_mul_f32 v{b}, v{b}, v{b+1}')
    for j in range(2):
        b = ST + 16 * j
        for r in range(16):
            a(f'v_fma_f32 v{b+2}, -v{b}, v{CS+r}, v{B1+r}')
            a(f'v_fma_f32 v{ACC+16*j+r}, v{b+1}, v{ACC+16*j+r}, v{b+2}')
            a(f'v_max_f32 v{ACC+16*j+r}, 0, v{ACC+16*j+r}')
            a(f'v_mul_f32 v{ACC+16*j+r}, v{ACC+16*j+r}, v{ACC+16*j+r}')
    for r in range(16):
        a(f'v_cvt_pk_bf16_f32 v{64+r}, v{ACC+2*r}, v{ACC+2*r+1}')
    a('s_lshl_b32 s17, s14, 2')
    a('s_add_u32 s17, s17, s23')
    a('s_cmp_ge_u32 s17, 54')
    a(f's_cbranch_scc1 {L}_end')
    a('v_lshrrev_b32 v13, 4, v3')
    a('s_mov_b32 s18, 55296')
    a('v_mul_lo_u32 v13, v13, s18')
    a('v_and_b32 v14, 15, v3')
    a('v_lshl_add_u32 v13, v14, 4, v13')
    a('v_lshl_add_u32 v13, v4, 8, v13')
    a('s_lshr_b32 s18, s27, 4')
    a('s_mul_i32 s18, s18, 55296')
    a('s_lshl_b32 s17, s17, 10')
    a('s_add_u32 s17, s17, s18')
    a(f's_add_u32 s17, s17, {WS_G}')
    for j in range(2):
        a(f'buffer_store_dwordx4 {v(64+8*j,4)}, v13, s[8:11], s17 offen')
        a(f'buffer_store_dwordx4 {v(68+8*j,4)}, v13, s[8:11], s17 offen offset:512')
        if j == 0: a(f's_add_u32 s17, s17, {2*55296}')
    stamp(a, 5)
    if PROF: a('s_waitcnt vmcnt(0)')
    stamp(a, 6, True)
    stamp_flush(a, 4, 7, 8, 12)
    a.label(f'{L}_end')
    a('s_endpgm')
    return a, descriptor(L, 160, 102), f'; @launch kernel={L} grid=(256,1,1) block=(512,1,1) lds=131072'

F2_KS = (14, 14, 13, 13)
F2_K0 = (0, 14, 28, 41)
def k5():
    a = Asm()
    L = 'k5_kernel'
    kernel_begin(a, L)
    common_prologue(a, L, 5)
    srd(a, 16, 24, S * D * 2)
    a('s_and_b32 s20, s14, 3')
    a('s_lshr_b32 s21, s14, 2')
    a('s_lshr_b32 s22, s12, 2')
    a('s_and_b32 s23, s12, 3')
    a('s_mul_i32 s26, s23, 14')
    a('s_cmp_eq_u32 s23, 3')
    a('s_cselect_b32 s27, 1, 0')
    a('s_sub_u32 s26, s26, s27')
    a('s_mul_i32 s28, s21, 276480')
    a(f's_add_u32 s28, s28, {WS_W2}')
    a('s_add_u32 s29, s26, s22')
    a('s_lshl_b32 s29, s29, 10')
    a('s_add_u32 s28, s28, s29')
    a('s_lshl_b32 s29, s23, 1')
    a('s_add_u32 s29, s29, s22')
    a('s_mul_i32 s29, s29, 5120')
    NST = 7
    issued = []
    def dma_stage(st):
        slot = st % 3
        for ft in range(5):
            a(f's_add_u32 m0, s29, {slot*40960 + ft*1024}')
            a(f's_add_u32 s30, s28, {st*2048 + ft*55296}')
            a('buffer_load_dwordx4 v10, s[8:11], s30 offen lds')
            issued.append(('w', st))
    BF, ACC, AF, T = 16, 128, 168, 16
    dma_stage(0)
    a('s_lshl_b32 s31, s13, 4')
    a('s_lshl_b32 s32, s20, 2')
    a('s_add_u32 s31, s31, s32')
    a('s_lshl_b32 s32, s22, 1')
    a('s_add_u32 s32, s32, s31')
    a('s_mul_i32 s32, s32, 55296')
    a('s_lshl_b32 s33, s26, 10')
    a('s_add_u32 s32, s32, s33')
    a(f's_add_u32 s32, s32, {WS_G}')
    def bload(i):
        for j in range(2):
            a(f's_add_u32 s33, s32, {j*55296 + i*1024}')
            a(f'buffer_load_dwordx4 {v(BF+8*i+4*j,4)}, v10, s[8:11], s33 offen')
            issued.append(('b', i))
    for i in range(4): bload(i)
    dma_stage(1)
    for i in range(4, 8): bload(i)
    dma_stage(2)
    for i in range(8, 14): bload(i)
    def wait_for(pred):
        n = 0
        for x in reversed(issued):
            if pred(x): break
            n += 1
        a(f's_waitcnt vmcnt({min(n, 63)})')
    a('s_mul_i32 s34, s23, 10240')
    a('v_add_u32 v8, s34, v10')
    a('v_add_u32 v9, 0x10000, v8')
    def areads(st, i, buf):
        for ft in range(5):
            off = (st % 3) * 40960 + i * 5120 + ft * 1024
            base = 8
            if off >= 65536: off -= 65536; base = 9
            a(f'ds_read_b128 {v(AF+20*buf+4*ft,4)}, v{base} offset:{off}')
    stamp(a, 2)
    for st in range(NST):
        wait_for(lambda x: x == ('w', st) or x == ('b', min(2*st+1, 13)))
        a('s_barrier')
        if st == 0: stamp(a, 3)
        if st >= 1 and st + 2 < NST: dma_stage(st + 2)
        areads(st, 0, 0)
        areads(st, 1, 1)
        for i in range(2):
            ks = 2 * st + i
            a(f's_waitcnt lgkmcnt({5 if i == 0 else 0})')
            last = (ks == 13)
            if last:
                a('s_cmp_ge_u32 s23, 2')
                a(f's_cbranch_scc1 {L}_skip')
            for ft in range(5):
                for j in range(2):
                    acc = v(ACC + 4 * (2 * ft + j), 4)
                    a(f'v_mfma_f32_16x16x32_bf16 {acc}, {v(AF+20*i+4*ft,4)}, {v(BF+8*ks+4*j,4)}, {"0" if ks == 0 else acc}')
            if last: a.label(f'{L}_skip')
    stamp(a, 4)
    a('s_nop 7')
    a('s_barrier')
    ksplit_reduce(a, ACC, T, 12, 22, 23, 10, 11)
    a('s_cmp_ge_u32 s12, 4')
    a(f's_cbranch_scc1 {L}_end')
    a('v_and_b32 v5, 15, v2')
    a('v_lshrrev_b32 v6, 4, v2')
    HR, BB = 100, 112
    a('s_add_u32 s33, s31, s12')
    a('s_mul_i32 s34, s33, 20480')
    a('s_mul_i32 s35, s21, 2560')
    a('s_add_u32 s34, s34, s35')
    a(f's_add_u32 s34, s34, {WS_H}')
    a('v_lshrrev_b32 v11, 1, v6')
    a('v_lshlrev_b32 v11, 8, v11')
    a('v_lshl_add_u32 v11, v5, 4, v11')
    a('v_and_b32 v12, 1, v6')
    a('v_lshl_add_u32 v11, v12, 3, v11')
    for ft in range(5):
        a(f'buffer_load_dwordx2 {v(HR+2*ft,2)}, v11, s[8:11], s34 offen offset:{512*ft}')
    a('s_mul_i32 s35, s21, 320')
    a(f's_add_u32 s35, s35, {WS_B2F}')
    a('v_lshlrev_b32 v12, 4, v6')
    for ft in range(5):
        a(f'buffer_load_dwordx4 {v(BB+4*ft,4)}, v12, s[8:11], s35 offen offset:{64*ft}')
    ksplit_gather(a, T, 12, 10, 13)
    a('s_waitcnt vmcnt(0)')
    for ft in range(5):
        for h2 in range(2):
            a(f'v_lshlrev_b32 v{T+20}, 16, v{HR+2*ft+h2}')
            a(f'v_and_b32 v{T+21}, 0xffff0000, v{HR+2*ft+h2}')
            a(f'v_add_f32 v{T+4*ft+2*h2}, v{T+4*ft+2*h2}, v{BB+4*ft+2*h2}')
            a(f'v_add_f32 v{T+4*ft+2*h2+1}, v{T+4*ft+2*h2+1}, v{BB+4*ft+2*h2+1}')
            a(f'v_add_f32 v{T+4*ft+2*h2}, v{T+4*ft+2*h2}, v{T+20}')
            a(f'v_add_f32 v{T+4*ft+2*h2+1}, v{T+4*ft+2*h2+1}, v{T+21}')
    for i in range(10):
        a(f'v_cvt_pk_bf16_f32 v{T+24+i}, v{T+2*i}, v{T+2*i+1}')
    a('s_lshl_b32 s33, s33, 4')
    a('v_add_u32 v7, s33, v5')
    a('s_movk_i32 s34, 1280')
    a('v_mul_lo_u32 v7, v7, s34')
    a('v_lshl_add_u32 v7, v6, 3, v7')
    a('s_mul_i32 s34, s21, 160')
    for ft in range(5):
        a(f'buffer_store_dwordx2 {v(T+24+2*ft,2)}, v7, s[16:19], s34 offen offset:{32*ft}')
    stamp(a, 5)
    if PROF: a('s_waitcnt vmcnt(0)')
    stamp(a, 6, True)
    stamp_flush(a, 5, 7, 8, 12)
    a.label(f'{L}_end')
    a('s_endpgm')
    return a, descriptor(L, 232, 102), f'; @launch kernel={L} grid=(256,1,1) block=(512,1,1) lds=122880'

import struct
def f2hex(x):
    return '0x%08x' % struct.unpack('<I', struct.pack('<f', x))[0]

HEADER = """; preLN MHA block + squared-ReLU FFN, S=2048 D=640 H=32 Dh=20 F=1728, bf16 in / bf16 out, fp32 accumulation.
; Launch 1 (k1_kernel): LayerNorm1 folded into the QKV GEMM (128x128 tiles; waves 0-3 multiply, waves 4-7 reduce the row
;   statistics), q/k/v written in MFMA-fragment order, wo/w1/w2 repacked to fragment order, column sums of w1.
;   attention -> O projection (+residual) -> LayerNorm2 + FFN1 -> FFN2 (+residual), handing data over through flags in ws.
"""

def build(kernels):
    txt = HEADER
    bodies = []; descs = []
    for k in kernels:
        a, d, launch = k()
        txt += launch + '\n'
        lines, probs = fix_hazards(a.lines)
        if probs:
            for p in probs: print('HAZARD on branch edge:', p, file=sys.stderr)
        for p in check_async(lines)[:20]: print('ASYNC:', p, file=sys.stderr)
        bodies.append(render(lines)); descs.append(d)
    txt += '.amdgcn_target "amdgcn-amd-amdhsa--gfx950"\n.text\n'
    txt += '\n'.join(bodies)
    txt += '.section .rodata,"a"\n.p2align 6\n' + '\n.p2align 6\n'.join(descs)
    return txt

if __name__ == '__main__':
    if 'prof' in sys.argv: PROF = True
    for x in sys.argv[2:]:
        if x.startswith('x:'): EXP.add(x[2:])
    ks = [k0, k1, k2, k3, k4, k5]
    out = sys.argv[1] if len(sys.argv) > 1 else 'test.s'
    open(out, 'w').write(build(ks))
    print('wrote', out)
```

```python
import sys
sys.path.insert(0, 'dev')
import gen
from gen import *
from gen2 import lab
from gen3 import VM
from asmlib import *

PK_LDS = 131072
TB_LDS = PK_LDS + 24576
ST_T = TB_LDS
CS_T = TB_LDS + 1024

def k1s(a=None, join=None):
    WT = '' if 'k1plain' in gen.EXP else ' sc1'
    merged = a is not None
    L = 'k1_kernel' if not merged else '.Lk1'
    NS = 4
    if not merged:
        a = Asm()
        kernel_begin(a, L)
        a('s_cmp_ge_u32 s2, 256')
        a(f's_cbranch_scc1 {L}_end')
    def finish():
        if merged: a(f's_branch {join}')
        else: a('s_endpgm')
    stamp(a, 0, True); stamp(a, 1)
    if not merged and 'nok1pf' not in gen.EXP:
        code_touch(a, L, '.Lkf_last' if 'k1pfall' in gen.EXP else f'{L}_end', '.Lpc_k1', 144, 151, 2 if 'k1pfall' in gen.EXP else 1)
    a(f's_load_dwordx2 s[24:25], s[0:1], {A_X}')
    a(f's_load_dwordx2 s[26:27], s[0:1], {A_WQKV}')
    a(f's_load_dwordx2 s[4:5], s[0:1], {A_WS}')
    a(f's_load_dwordx2 s[28:29], s[0:1], {A_WO}')
    a(f's_load_dwordx2 s[30:31], s[0:1], {A_W1}')
    a(f's_load_dwordx2 s[32:33], s[0:1], {A_W2}')
    a('s_and_b32 s15, s2, 7')
    a('s_lshr_b32 s16, s2, 3')
    a('s_and_b32 s13, s15, 3')
    a('s_lshl_b32 s13, s13, 2')
    a('s_and_b32 s17, s16, 3')
    a('s_add_u32 s13, s13, s17')
    a('s_lshr_b32 s14, s15, 2')
    a('s_lshl_b32 s14, s14, 3')
    a('s_lshr_b32 s17, s16, 2')
    a('s_add_u32 s14, s14, s17')
    a('v_lshrrev_b32 v1, 6, v0')
    a('v_and_b32 v2, 63, v0')
    a('v_readfirstlane_b32 s12, v1')
    a('v_and_b32 v3, 31, v2')
    a('v_lshrrev_b32 v4, 5, v2')
    a('v_lshlrev_b32 v10, 4, v2')
    a('s_and_b32 s23, s12, 3')
    if merged:
        from gen2 import WS_XT
        li = lab('in')
        a('s_cmp_lg_u32 s12, 0')
        a(f's_cbranch_scc1 {li}')
        a('s_waitcnt lgkmcnt(0)')
        srd(a, 8, 4, WS_END)
        a('s_and_b32 s40, s2, 7')
        a('s_lshl_b32 s40, s40, 7')
        a('s_lshr_b32 s41, s2, 3')
        a('s_lshl_b32 s41, s41, 2')
        a('s_add_u32 s40, s40, s41')
        a(f's_add_u32 s40, s40, {WS_FLAG}')
        a('v_lshlrev_b32 v5, 10, v2')
        a(f'v_mov_b32 v6, {WS_XT - WS_FLAG}')
        a('v_cmp_eq_u32 vcc, 3, v2')
        a('v_cndmask_b32 v5, v5, v6, vcc')
        a('s_getreg_b32 s41, hwreg(HW_REG_XCC_ID, 0, 4)')
        a('s_add_u32 s41, s41, 1')
        a('v_mov_b32 v6, 0')
        a('v_mov_b32 v7, s41')
        a('v_cndmask_b32 v6, v6, v7, vcc')
        a('s_mov_b64 exec, 15')
        a('buffer_store_dword v6, v5, s[8:11], s40 offen sc1')
        a('s_mov_b64 exec, -1')
        a.label(li)
    a('s_cmp_lt_u32 s12, 4')
    a(f's_cbranch_scc1 {L}_compute')
    a('v_lshrrev_b32 v5, 3, v2')
    a('s_lshl_b32 s40, s23, 3')
    a('v_add_u32 v5, s40, v5')
    a('v_lshrrev_b32 v6, 4, v2')
    a('s_lshl_b32 s40, s23, 2')
    a('v_add_u32 v7, s40, v6')
    a('v_and_b32 v7, 7, v7')
    a('v_and_b32 v8, 7, v2')
    a('v_xor_b32 v7, v7, v8')
    a('s_movk_i32 s40, 1280')
    a('v_mul_lo_u32 v5, v5, s40')
    a('v_lshl_add_u32 v5, v7, 4, v5')
    a('s_mul_i32 s35, s13, 163840')
    a('s_lshl_b32 s40, s23, 2')
    a('v_add_u32 v7, s40, v6')
    a('s_movk_i32 s40, 3840')
    a('v_mul_lo_u32 v7, v7, s40')
    a('v_and_b32 v8, 15, v2')
    a('v_lshlrev_b32 v9, 2, v6')
    a('v_xor_b32 v8, v8, v9')
    a('v_lshl_add_u32 v6, v8, 4, v7')
    a('s_lshl_b32 s36, s14, 8')
    a('s_lshl_b32 s37, s23, 10')
    a('s_waitcnt lgkmcnt(0)')
    srd(a, 56, 24, S * D * 2)
    srd(a, 60, 26, D * 3 * D * 2)
    srd(a, 8, 4, WS_END)
    def operand_touch(srdx, srdw, vt, vd):
        if 'notouchk1' in gen.EXP: return 0
        lx, ld_ = lab('ot'), lab('ot')
        a('s_sub_u32 s40, s12, 4')
        a('s_cmp_lt_u32 s40, 3')
        a(f's_cbranch_scc0 {lx}')
        a('s_lshl_b32 s40, s40, 6')
        a(f'v_add_u32 v{vt}, s40, v2')
        a(f's_mov_b32 s41, {magic(10)}')
        a(f'v_mul_hi_u32 v{vt+1}, v{vt}, s41')
        a(f'v_mul_u32_u24 v{vt+2}, 10, v{vt+1}')
        a(f'v_sub_u32 v{vt+2}, v{vt}, v{vt+2}')
        a('s_lshr_b32 s41, s16, 2')
        a('s_lshl_b32 s41, s41, 4')
        a('s_lshl_b32 s40, s13, 7')
        a('s_add_u32 s41, s41, s40')
        a(f'v_add_u32 v{vt+1}, s41, v{vt+1}')
        a('s_movk_i32 s41, 1280')
        a(f'v_mul_lo_u32 v{vt+1}, v{vt+1}, s41')
        a(f'v_lshl_add_u32 v{vt+1}, v{vt+2}, 7, v{vt+1}')
        a(f'v_mov_b32 v{vt+2}, 0x7ff00000')
        a(f'v_cmp_gt_u32 vcc, 160, v{vt}')
        a(f'v_cndmask_b32 v{vt+1}, v{vt+2}, v{vt+1}, vcc')
        a(f'buffer_load_dword v{vd}, v{vt+1}, s[{srdx}:{srdx+3}], 0 offen')
        a(f's_branch {ld_}')
        a.label(lx)
        a('s_add_u32 s40, s12, 1')
        a('s_cmp_eq_u32 s12, 7')
        a('s_cselect_b32 s40, 0, s40')
        a('s_lshl_b32 s40, s40, 6')
        a(f'v_add_u32 v{vt}, s40, v2')
        a(f'v_lshrrev_b32 v{vt+1}, 1, v{vt}')
        a('s_and_b32 s41, s16, 3')
        a('s_mul_i32 s41, s41, 160')
        a(f'v_add_u32 v{vt+1}, s41, v{vt+1}')
        a('s_movk_i32 s41, 3840')
        a(f'v_mul_lo_u32 v{vt+1}, v{vt+1}, s41')
        a(f'v_and_b32 v{vt+2}, 1, v{vt}')
        a(f'v_lshl_add_u32 v{vt+1}, v{vt+2}, 7, v{vt+1}')
        a('s_lshl_b32 s41, s14, 8')
        a('s_cmp_lt_u32 s14, 15')
        a('s_cselect_b32 s41, s41, 0x7ff00000')
        a(f'buffer_load_dword v{vd}, v{vt+1}, s[{srdw}:{srdw+3}], s41 offen')
        a.label(ld_)
        return 1
    vm = VM()
    def dma(st, k):
        slot = (st % NS) * 32768
        if k < 4:
            a(f's_add_u32 m0, s37, {slot + k*4096}')
            a(f's_add_u32 s38, s35, {st*128 + k*32*1280}')
            a('buffer_load_dwordx4 v5, s[56:59], s38 offen lds')
        else:
            a(f's_add_u32 m0, s37, {slot + 16384 + (k-4)*4096}')
            a(f's_add_u32 s38, s36, {(st*64 + (k-4)*16)*3840}')
            a('buffer_load_dwordx4 v6, s[60:63], s38 offen lds')
        vm.issue(('r', st))
    def decode():
        l1_, l2_, ld = lab('pk'), lab('pk'), lab('pk')
        a('s_cmp_lt_u32 s2, 40')
        a(f's_cbranch_scc0 {l1_}')
        srd(a, 64, 28, D * D * 2)
        a(f's_mul_hi_u32 s46, s2, {magic(10)}')
        a('s_mul_i32 s47, s46, 10')
        a('s_sub_u32 s47, s2, s47')
        a('s_movk_i32 s41, 160'); a('s_movk_i32 s42, 1280'); a(f's_mov_b32 s44, {WS_WO}'); a('s_movk_i32 s45, 20480')
        a(f's_branch {ld}')
        a.label(l1_)
        a('s_cmp_lt_u32 s2, 148')
        a(f's_cbranch_scc0 {l2_}')
        srd(a, 64, 30, D * F * 2)
        a('s_sub_u32 s40, s2, 40')
        a(f's_mul_hi_u32 s46, s40, {magic(27)}')
        a('s_mul_i32 s47, s46, 27')
        a('s_sub_u32 s47, s40, s47')
        a('s_movk_i32 s41, 160'); a('s_movk_i32 s42, 3456'); a(f's_mov_b32 s44, {WS_W1}'); a('s_movk_i32 s45, 20480')
        a(f's_branch {ld}')
        a.label(l2_)
        srd(a, 64, 32, F * D * 2)
        a('s_sub_u32 s40, s2, 148')
        a(f's_mul_hi_u32 s46, s40, {magic(10)}')
        a('s_mul_i32 s47, s46, 10')
        a('s_sub_u32 s47, s40, s47')
        a('s_movk_i32 s41, 192'); a('s_movk_i32 s42, 1280'); a(f's_mov_b32 s44, {WS_W2}'); a('s_mov_b32 s45, 55296')
        a.label(ld)
        a('s_mul_i32 s43, s46, s41')
        a('s_lshr_b32 s48, s43, 3')
        a('s_mul_i32 s43, s43, s42')
        a('s_lshl_b32 s40, s47, 7')
        a('s_add_u32 s43, s43, s40')
        a('s_lshl_b32 s40, s47, 2')
        a('s_mul_i32 s40, s40, s45')
        a('s_add_u32 s44, s44, s40')
        a('s_lshl_b32 s40, s48, 8')
        a('s_add_u32 s44, s44, s40')
    def pack_dma_setup():
        a('v_lshrrev_b32 v11, 3, v2')
        a('s_lshl_b32 s40, s23, 3')
        a('v_add_u32 v11, s40, v11')
        a('v_mul_lo_u32 v11, v11, s42')
        a('v_and_b32 v12, 7, v2')
        a('v_lshl_add_u32 v11, v12, 4, v11')
        a('s_cmp_lt_u32 s2, 238')
        a('s_cselect_b32 s49, s43, 0x7ff00000')
        a('s_lshl_b32 s50, s42, 5')
    def pack_dma_one(i):
        a(f's_add_u32 m0, s37, {PK_LDS + i*4096}')
        a('s_nop 0')
        a('buffer_load_dwordx4 v11, s[64:67], s49 offen lds')
        a('s_add_u32 s49, s49, s50')
    def pack_dma():
        pack_dma_setup()
        for i in range(6): pack_dma_one(i)
    def pack_setup():
        a('v_lshrrev_b32 v12, 4, v2')
        a('v_lshrrev_b32 v13, 2, v2')
        a('v_and_b32 v13, 3, v13')
        a('v_lshl_add_u32 v12, v12, 3, v13')
        a('v_lshlrev_b32 v12, 7, v12')
        a('v_and_b32 v13, 3, v2')
        a('v_lshl_add_u32 v12, v13, 3, v12')
        a('s_lshl_b32 s49, s23, 5')
        a(f's_add_u32 s49, s49, {PK_LDS}')
        a('v_add_u32 v12, s49, v12')
        a('s_mul_i32 s54, s23, s45')
        a('s_add_u32 s54, s54, s44')
        a('s_cmp_lt_u32 s2, 238')
        a('s_cselect_b32 s54, s54, 0x7ff00000')
        a('s_cmp_gt_u32 s41, 160')
        a('s_cselect_b32 s55, s54, 0x7ff00000')
    def pack_read(i, T):
        a(f'ds_read_b64_tr_b16 {v(T,2)}, v12 offset:{i*4096}')
        a(f'ds_read_b64_tr_b16 {v(T+2,2)}, v12 offset:{i*4096 + 512}')
    def pack_store(i, T):
        a(f's_add_u32 s49, {"s54" if i < 5 else "s55"}, {i*1024}')
        a(f'buffer_store_dwordx4 {v(T,4)}, v10, s[8:11], s49 offen' + WT)
    def pack_work(T):
        pack_setup()
        for i in range(6): pack_read(i, T + 4*i)
        a('s_waitcnt lgkmcnt(0)')
        for i in range(6): pack_store(i, T + 4*i)
    lz = f'{L}_nogemm'
    a('s_cmp_ge_u32 s14, 15')
    a(f's_cbranch_scc1 {lz}')
    for st in range(2):
        for k in range(4): dma(st, k)
    if operand_touch(56, 60, 96, 100): vm.issue('touch')
    decode()
    pack_dma_setup()
    VB = 14
    a('v_lshrrev_b32 v7, 1, v3')
    a('v_and_b32 v7, 7, v7')
    a('s_lshl_b32 s40, s23, 12')
    a('v_lshlrev_b32 v8, 7, v3')
    a('v_add_u32 v8, s40, v8')
    for ks in range(4):
        a(f'v_or_b32 v9, {2*ks}, v4')
        a('v_xor_b32 v9, v9, v7')
        a(f'v_lshl_add_u32 v{VB+ks}, v9, 4, v8')
        a(f'v_add_u32 v{VB+4+ks}, 0x10000, v{VB+ks}')
    XS, S1, T = 24, 40, 44
    for r in range(4): a(f'v_mov_b32 v{S1+r}, 0')
    pend = [(st, k) for st in range(2, 10) for k in range(4)]
    stamp(a, 2)
    vm.wait(a, lambda x: x == ('r', 0))
    a('s_barrier')
    stamp(a, 3)
    for st in range(10):
        off = (st % NS) * 32768
        hi = off >= 65536
        if hi: off -= 65536
        for ks in range(4): a(f'ds_read_b128 {v(XS+4*ks,4)}, v{VB+(4 if hi else 0)+ks} offset:{off}')
        n_iss = 8 if st == 0 else 4
        todo = []
        while pend and pend[0][0] <= st + NS - 1 and len(todo) < n_iss: todo.append(pend.pop(0))
        if todo: dma(*todo.pop(0))
        a('s_waitcnt lgkmcnt(0)')
        for r in range(16):
            src = XS + r; t = T + 2 * (r & 1); acc = S1 + (r & 1)
            if 'k1nostat' not in gen.EXP:
                a(f'v_lshlrev_b32 v{t}, 16, v{src}'); a(f'v_and_b32 v{t+1}, 0xffff0000, v{src}')
                a(f'v_add_f32 v{acc}, v{acc}, v{t}'); a(f'v_fmac_f32 v{acc+2}, v{t}, v{t}')
                a(f'v_add_f32 v{acc}, v{acc}, v{t+1}'); a(f'v_fmac_f32 v{acc+2}, v{t+1}, v{t+1}')
            if todo and ((r & 3) == 3 or (st == 0 and (r & 1))): dma(*todo.pop(0))
        while todo: dma(*todo.pop(0))
        if st <= 2 and 'k1nopk' not in gen.EXP:
            for i in (2*st, 2*st+1):
                pack_dma_one(i); vm.issue('pk')
        if st + 1 < 10:
            if st == 3 and 'k1nopk' not in gen.EXP: vm.wait(a, lambda x: x == ('r', 4) or x == 'pk')
            else: vm.wait(a, lambda x: x == ('r', st + 1))
            a('s_barrier')
    a(f'v_add_f32 v{S1}, v{S1}, v{S1+1}')
    a(f'v_add_f32 v{S1+2}, v{S1+2}, v{S1+3}')
    for r in (0, 2):
        a(f'v_mov_b32 v{T}, v{S1+r}'); a(f'v_mov_b32 v{T+1}, v{S1+r}')
        a(f'v_permlane32_swap_b32 v{T}, v{T+1}')
        a(f'v_add_f32 v{S1+r}, v{T}, v{T+1}')
    a(f'v_mul_f32 v{S1}, {f2hex(1.0/640)}, v{S1}')
    a(f'v_mul_f32 v{S1+1}, {f2hex(1.0/640)}, v{S1+2}')
    a(f'v_fma_f32 v{S1+1}, -v{S1}, v{S1}, v{S1+1}')
    a(f'v_max_f32 v{S1+1}, 0, v{S1+1}')
    a(f'v_add_f32 v{S1+1}, 0x3727c5ac, v{S1+1}')
    a(f'v_rsq_f32 v{S1+1}, v{S1+1}')
    a(f'v_mul_f32 v{S1}, v{S1}, v{S1+1}')
    a('s_lshl_b32 s40, s23, 7')
    a(f's_add_u32 s40, s40, {ST_T}')
    a('v_lshlrev_b32 v7, 2, v3')
    a('v_add_u32 v7, s40, v7')
    a(f'ds_write_b32 v7, v{S1}')
    a(f'ds_write_b32 v7, v{S1+1} offset:512')
    a('s_waitcnt lgkmcnt(0)')
    a('s_barrier')
    finish()
    a.label(lz)
    decode()
    pack_dma()
    if not merged:
        a('v_lshlrev_b32 v1, 4, v2')
        a('s_lshl_b32 s40, s23, 10')
        a('v_add_u32 v1, s40, v1')
        for r in range(4): a(f'v_mov_b32 v{100+r}, 0')
        a(f's_mov_b32 s17, {WS_FLAG}')
        a('buffer_store_dwordx4 v[100:103], v1, s[8:11], s17 offen')
        a('buffer_store_dwordx4 v[100:103], v1, s[8:11], s17 offen offset:4095' if False else 's_add_u32 s17, s17, 4096')
        a('buffer_store_dwordx4 v[100:103], v1, s[8:11], s17 offen')
    a('s_waitcnt vmcnt(0)')
    a('s_barrier')
    pack_work(48)
    finish()
    a.label(f'{L}_compute')
    a('s_cmp_ge_u32 s14, 15')
    if merged:
        lq = lab('ng')
        a(f's_cbranch_scc0 {lq}')
        a('s_barrier')
        finish()
        a.label(lq)
    else:
        a(f's_cbranch_scc1 {L}_end')
    a('s_and_b32 s21, s12, 1')
    a('s_lshr_b32 s22, s12, 1')
    a('v_lshrrev_b32 v6, 4, v2')
    a('s_lshl_b32 s40, s23, 2')
    a('v_add_u32 v7, s40, v6')
    a('s_movk_i32 s40, 3840')
    a('v_mul_lo_u32 v7, v7, s40')
    a('v_and_b32 v8, 15, v2')
    a('v_lshlrev_b32 v9, 2, v6')
    a('v_xor_b32 v8, v8, v9')
    a('v_lshl_add_u32 v6, v8, 4, v7')
    a('s_lshl_b32 s36, s14, 8')
    a('s_lshl_b32 s37, s23, 10')
    a('s_waitcnt lgkmcnt(0)')
    srd(a, 60, 26, D * 3 * D * 2)
    vc = VM()
    def wdma(st, k):
        slot = (st % NS) * 32768
        a(f's_add_u32 m0, s37, {slot + 16384 + k*4096}')
        a(f's_add_u32 s38, s36, {(st*64 + k*16)*3840}')
        a('buffer_load_dwordx4 v6, s[60:63], s38 offen lds')
        vc.issue(('r', st))
    for st in range(2):
        for k in range(4): wdma(st, k)
    if operand_touch(60, 60, 136, 150): vc.issue('touch')
    base_ops = list(vc.ops)
    VB, VA = 14, 22
    a('v_lshrrev_b32 v7, 1, v3')
    a('v_and_b32 v7, 7, v7')
    a('s_lshl_b32 s40, s22, 13')
    a('v_lshlrev_b32 v8, 7, v3')
    a('v_add_u32 v8, s40, v8')
    for ks in range(4):
        a(f'v_or_b32 v9, {2*ks}, v4')
        a('v_xor_b32 v9, v9, v7')
        a(f'v_lshl_add_u32 v{VB+ks}, v9, 4, v8')
        a(f'v_add_u32 v{VB+4+ks}, 0x10000, v{VB+ks}')
    a('v_lshrrev_b32 v7, 2, v2')
    a('v_and_b32 v7, 3, v7')
    a('v_and_b32 v8, 3, v2')
    a('v_and_b32 v9, 1, v8')
    a('v_lshlrev_b32 v9, 1, v9')
    a('v_lshrrev_b32 v11, 1, v8')
    a('v_or_b32 v9, v9, v11')
    a('s_cmp_lt_u32 s14, 10')
    a('s_cselect_b64 vcc, -1, 0')
    a('v_cndmask_b32 v8, v8, v9, vcc')
    a('v_lshrrev_b32 v9, 4, v2')
    a('v_and_b32 v9, 1, v9')
    a('v_lshl_add_u32 v8, v9, 2, v8')
    a('v_lshl_add_u32 v12, v4, 3, v7')
    a('v_lshlrev_b32 v12, 8, v12')
    a('v_and_b32 v13, 1, v8')
    a('v_lshl_add_u32 v12, v13, 3, v12')
    a('v_lshrrev_b32 v8, 1, v8')
    a('v_lshlrev_b32 v11, 2, v7')
    for aa in range(2):
        a(f's_xor_b32 s40, s22, {aa}')
        a('s_lshl_b32 s41, s21, 1')
        a('s_add_u32 s40, s40, s41')
        a(f's_mov_b32 s{50+aa}, s40')
        a('s_lshl_b32 s40, s40, 2')
        a('v_add_u32 v9, s40, v8')
        a('v_xor_b32 v9, v9, v11')
        a(f'v_lshl_add_u32 v{VA+2*aa}, v9, 4, v12')
        a(f'v_add_u32 v{VA+2*aa}, 16384, v{VA+2*aa}')
        a(f'v_add_u32 v{VA+2*aa+1}, 0x10000, v{VA+2*aa}')
    SEL, CSA = 28, 32
    a(f'v_mov_b32 v{SEL}, 0')
    a('s_mov_b32 s52, 0x00020001')
    a('s_mov_b32 s53, 0x00020001')
    a('v_mov_b32 v7, 0x3f803f80')
    a(f'v_cndmask_b32 v{SEL}, v{SEL}, v7, s[52:53]')
    for r in range(1, 4): a(f'v_mov_b32 v{SEL+r}, v{SEL}')
    for r in range(4): a(f'v_mov_b32 v{CSA+r}, 0')
    ACC, FA, FB, T = 40, 104, 120, 136
    a('s_waitcnt lgkmcnt(0)')
    srd(a, 8, 4, WS_END)
    a('s_mov_b32 s56, s50'); a('s_mov_b32 s57, s51')
    decode()
    pack_setup()
    PKT, CS4, ONES = 140, 152, 156
    for r in range(4):
        a(f'v_mov_b32 v{CS4+r}, 0'); a(f'v_mov_b32 v{ONES+r}, 0x3f803f80')
    def w1_colsum_store():
        a('s_sub_u32 s40, s2, 40')
        a('s_mul_i32 s58, s46, 6912')
        a('s_lshl_b32 s59, s47, 8')
        a('s_add_u32 s58, s58, s59')
        a('s_lshl_b32 s59, s23, 6')
        a('s_add_u32 s58, s58, s59')
        a(f's_add_u32 s58, s58, {WS_CS1}')
        a('s_cmp_lt_u32 s40, 108')
        a('s_cselect_b32 s58, s58, 0x7ff00000')
        a('v_lshrrev_b32 v11, 4, v2')
        a('v_lshlrev_b32 v11, 4, v11')
        a('s_mov_b32 s52, 0x00010001')
        a('s_mov_b32 s53, 0x00010001')
        a('s_mov_b64 exec, s[52:53]')
        a(f'buffer_store_dwordx4 {v(CS4,4)}, v11, s[8:11], s58 offen' + WT)
        a('s_mov_b64 exec, -1')
    def reads(st, ks, buf):
        off = (st % NS) * 32768
        hi = 1 if off >= 65536 else 0
        off -= hi * 65536
        for aa in range(2):
            a(f'ds_read_b64_tr_b16 {v(FA+8*buf+4*aa,2)}, v{VA+2*aa+hi} offset:{off + ks*4096}')
            a(f'ds_read_b64_tr_b16 {v(FA+8*buf+4*aa+2,2)}, v{VA+2*aa+hi} offset:{off + ks*4096 + 1024}')
        bb = VB + 4 * hi + ks
        a(f'ds_read_b128 {v(FB+8*buf,4)}, v{bb} offset:{off}')
        a(f'ds_read_b128 {v(FB+8*buf+4,4)}, v{bb} offset:{off + 4096}')
    def main(swap):
        vc.ops = list(base_ops)
        pend = [(st, k) for st in range(2, 10) for k in range(4)]
        vc.wait(a, lambda x: x == ('r', 0))
        a('s_barrier')
        stamp(a, 3)
        reads(0, 0, 0)
        buf = 0
        for st in range(10):
            for ks in range(4):
                if ks < 3:
                    if st >= 4 and ks == 0 and 'k1nopk' not in gen.EXP: pack_read(st - 4, PKT)
                    reads(st, ks + 1, buf ^ 1)
                    a('s_waitcnt lgkmcnt(%d)' % (8 if (st >= 4 and ks == 0 and 'k1nopk' not in gen.EXP) else 6))
                else:
                    a('s_waitcnt lgkmcnt(0)')
                    if st + 1 < 10:
                        if 'k1stamp' in gen.EXP and st in (2, 5): stamp(a, {2: 8, 5: 10}[st])
                        vc.wait(a, lambda x: x == ('r', st + 1))
                        a('s_barrier')
                        if 'k1stamp' in gen.EXP and st in (2, 5): stamp(a, {2: 9, 5: 11}[st])
                        reads(st + 1, 0, buf ^ 1)
                for aa in range(2):
                    for j in range(2):
                        A_ = v(FA+8*buf+4*aa, 4); B_ = v(FB+8*buf+4*j, 4)
                        acc = v(ACC+32*aa+16*j, 16)
                        c = '0' if (st == 0 and ks == 0) else acc
                        if swap: a(f'v_mfma_f32_32x32x16_bf16 {acc}, {B_}, {A_}, {c}')
                        else: a(f'v_mfma_f32_32x32x16_bf16 {acc}, {A_}, {B_}, {c}')
                if 'k1nocs' not in gen.EXP: a(f'v_mfma_f32_16x16x32_bf16 {v(CSA,4)}, {v(FA+8*buf,4)}, {v(SEL,4)}, {v(CSA,4)}')
                if st >= 4 and ks == 1 and 'k1nopk' not in gen.EXP:
                    pack_store(st - 4, PKT); vc.issue('pks')
                    if st - 4 < 5: a(f'v_mfma_f32_16x16x32_bf16 {v(CS4,4)}, {v(PKT,4)}, {v(ONES,4)}, {v(CS4,4)}')
                if st == 9 and ks == 2 and 'k1nopk' not in gen.EXP:
                    w1_colsum_store(); vc.issue('pks')
                lim = st + NS - 1 + (1 if ks == 3 else 0)
                for _ in range(2 if st == 0 else 1):
                    if pend and pend[0][0] <= lim: wdma(*pend.pop(0))
                buf ^= 1
        stamp(a, 4)
        a('s_lshl_b32 s40, s56, 7')
        a(f's_add_u32 s40, s40, {CS_T}')
        a('v_and_b32 v8, 1, v2')
        a('v_lshlrev_b32 v8, 6, v8')
        a('v_lshrrev_b32 v9, 4, v2')
        a('v_lshl_add_u32 v8, v9, 4, v8')
        a('v_add_u32 v8, s40, v8')
        a('s_mov_b32 s52, 0x00030003')
        a('s_mov_b32 s53, 0x00030003')
        a('s_nop 7')
        a('s_mov_b64 exec, s[52:53]')
        a(f'ds_write_b128 v8, {v(CSA,4)}')
        a('s_mov_b64 exec, -1')
        a('s_waitcnt lgkmcnt(0)')
        a('s_barrier')
    a('s_cmp_ge_u32 s14, 10')
    a(f's_cbranch_scc1 {L}_v')
    main(False)
    C, P = 104, 136
    a('s_lshl_b32 s40, s22, 8')
    a(f's_add_u32 s40, s40, {ST_T}')
    a('v_lshlrev_b32 v7, 2, v3')
    a('v_add_u32 v7, s40, v7')
    for j in range(2):
        a(f'ds_read_b32 v{P+2*j}, v7 offset:{j*128}')
        a(f'ds_read_b32 v{P+2*j+1}, v7 offset:{512 + j*128}')
    for aa in range(2):
        a(f's_lshl_b32 s40, s{56+aa}, 7')
        a(f's_add_u32 s40, s40, {CS_T}')
        a('v_lshlrev_b32 v7, 4, v4')
        a('v_add_u32 v7, s40, v7')
        for g in range(4): a(f'ds_read_b128 {v(C+16*aa+4*g,4)}, v7 offset:{g*32}')
    a(f's_mov_b32 s40, {f2hex(QSCALE)}')
    a('s_cmp_lt_u32 s14, 5')
    a('s_cselect_b32 s40, s40, 1.0')
    a('s_waitcnt lgkmcnt(0)')
    for r in range(4): a(f'v_mul_f32 v{P+r}, s40, v{P+r}')
    a('v_lshrrev_b32 v13, 4, v3')
    a('s_movk_i32 s17, 20480')
    a('v_mul_lo_u32 v13, v13, s17')
    a('v_and_b32 v14, 15, v3')
    a('v_lshl_add_u32 v13, v14, 4, v13')
    a('v_lshl_add_u32 v13, v4, 8, v13')
    a('s_lshl_b32 s17, s13, 3')
    a('s_lshl_b32 s18, s22, 2')
    a('s_add_u32 s17, s17, s18')
    a('s_mul_i32 s17, s17, 20480')
    a(f's_mov_b32 s18, {WS_Q}')
    a(f's_mov_b32 s19, {WS_K - 80*256}')
    a('s_cmp_lt_u32 s14, 5')
    a('s_cselect_b32 s18, s18, s19')
    a('s_add_u32 s17, s17, s18')
    a('s_lshl_b32 s18, s14, 12')
    a('s_add_u32 s17, s17, s18')
    PK = 144
    for aa in range(2):
        for j in range(2):
            acc = ACC + 32 * aa + 16 * j
            for r in range(16):
                a(f'v_mul_f32 v{P+4}, v{P+2*j}, v{C+16*aa+r}')
                a(f'v_fma_f32 v{acc+r}, v{P+2*j+1}, v{acc+r}, -v{P+4}')
            pk = PK + 8 * ((2 * aa + j) & 1)
            for r in range(8): a(f'v_cvt_pk_bf16_f32 v{pk+r}, v{acc+2*r}, v{acc+2*r+1}')
            a(f's_lshl_b32 s18, s{56+aa}, 10')
            a('s_add_u32 s18, s18, s17')
            if j: a(f's_add_u32 s18, s18, {2*20480}')
            a(f'buffer_store_dwordx4 {v(pk,4)}, v13, s[8:11], s18 offen' + WT)
            a(f'buffer_store_dwordx4 {v(pk+4,4)}, v13, s[8:11], s18 offen offset:512' + WT)
    stamp(a, 5)
    if gen.PROF: a('s_waitcnt vmcnt(0)')
    stamp(a, 6); stamp(a, 7, True)
    if 'dbgst' in gen.EXP:
        ldb = lab('db')
        a('s_cmp_lg_u32 s2, 8'); a(f's_cbranch_scc1 {ldb}'); a('s_cmp_lg_u32 s12, 0'); a(f's_cbranch_scc1 {ldb}')
        a('s_sub_u32 s83, s83, s81'); a('s_sub_u32 s84, s84, s81'); a('s_sub_u32 s86, s86, s81')
        a('v_mov_b32 v0, 0'); a('v_mov_b32 v2, s83'); a('v_mov_b32 v3, s84'); a('v_mov_b32 v4, s86'); a('v_mov_b32 v5, s80')
        a(f's_mov_b32 s94, {WS_PROF}'); a('buffer_store_dwordx4 v[2:5], v0, s[8:11], s94 offen')
        a('v_mov_b32 v2, s87'); a('buffer_store_dword v2, v0, s[8:11], s94 offen offset:16')
        a.label(ldb)
    elif not merged: stamp_flush(a, 1, 12, 8, 12)
    finish()
    a.label(f'{L}_v')
    main(True)
    C = 104
    TT = 136
    for aa in range(2):
        a(f's_lshl_b32 s40, s{56+aa}, 7')
        a(f's_add_u32 s40, s40, {CS_T}')
        a('v_lshlrev_b32 v8, 2, v3')
        a('v_add_u32 v8, s40, v8')
        a(f'ds_read_b32 v{TT+aa}, v8')
    a('s_lshl_b32 s40, s22, 8')
    a(f's_add_u32 s40, s40, {ST_T}')
    a('v_lshlrev_b32 v7, 4, v4')
    a('v_add_u32 v7, s40, v7')
    for aa in range(2):
        a('s_sub_u32 s17, s14, 10')
        a('s_lshl_b32 s17, s17, 7')
        a(f's_lshl_b32 s18, s{56+aa}, 5')
        a('s_add_u32 s17, s17, s18')
        a('v_add_u32 v13, s17, v3')
        a(f's_mov_b32 s17, {magic(20)}')
        a('v_mul_hi_u32 v14, v13, s17')
        a('v_mul_u32_u24 v15, 20, v14')
        a('v_sub_u32 v15, v13, v15')
        a('s_mov_b32 s17, 81920')
        a('v_mul_lo_u32 v14, v14, s17')
        a('v_lshl_add_u32 v14, v15, 4, v14')
        a('v_mul_u32_u24 v15, 320, v4')
        a(f'v_add_u32 v{TT+2+aa}, v14, v15')
    a('s_lshl_b32 s17, s13, 3')
    a('s_lshl_b32 s18, s22, 2')
    a('s_add_u32 s17, s17, s18')
    a('s_mul_i32 s17, s17, 640')
    a(f's_add_u32 s17, s17, {WS_VT}')
    PK = 144
    for j in range(2):
        for g in range(4):
            a(f'ds_read_b128 {v(C+4*g,4)}, v7 offset:{j*128 + g*32}')
            a(f'ds_read_b128 {v(C+16+4*g,4)}, v7 offset:{512 + j*128 + g*32}')
        a('s_waitcnt lgkmcnt(0)')
        for aa in range(2):
            acc = ACC + 32 * aa + 16 * j
            for r in range(16):
                a(f'v_mul_f32 v{TT+4}, v{C+r}, v{TT+aa}')
                a(f'v_fma_f32 v{acc+r}, v{C+16+r}, v{acc+r}, -v{TT+4}')
            pk = PK + 8 * aa
            for r in range(8): a(f'v_cvt_pk_bf16_f32 v{pk+r}, v{acc+2*r}, v{acc+2*r+1}')
            for gg in range(2):
                a(f'buffer_store_dwordx4 {v(pk+4*gg,4)}, v{TT+2+aa}, s[8:11], s17 offen offset:{(2*j+gg)*640}' + ('' if 'vplain' in gen.EXP else WT))
    stamp(a, 5)
    if gen.PROF: a('s_waitcnt vmcnt(0)')
    stamp(a, 6); stamp(a, 7, True)
    if merged:
        finish()
        return
    stamp_flush(a, 1, 12, 8, 12)
    a.label(f'{L}_end')
    a('s_endpgm')
    return a, descriptor(L, 160, 102), f'; @launch kernel={L} grid=(256,1,1) block=(512,1,1) lds=163840'
```

```python
import sys
sys.path.insert(0, 'dev')
import gen, gen2
from gen import *
from gen2 import lab, stores2, attn_units, wo_dma, WS_XT, SG, SJ, SPURE, LDS_WO, SPIN_MAX
from asmlib import *

class VM:
    def __init__(self): self.ops = []
    def issue(self, tag): self.ops.append(tag)
    def count_after(self, pred):
        n = 0
        for x in reversed(self.ops):
            if pred(x): return n
            n += 1
        raise Exception('no op matches')
    def wait(self, a, pred, extra=''):
        a(f's_waitcnt vmcnt({min(self.count_after(pred), 63)}){extra}')

XR0 = 136
W1A, W1B = 152, 16
def w1reg(s): return W1A + 4 * s if s < 26 else W1B + 4 * (s - 26)
SH, SR = 36, 37
S_OOB = 38
S_DONE = 39
FB_LDS = 159744
S_W1 = 98
V_W1 = 1

def flag_store(a, p, vt):
    g_, j_ = (SR, SH) if p == 0 else (SG, SJ)
    a(f's_lshl_b32 s40, s{g_}, 7')
    a(f's_lshl_b32 s41, s{j_}, 2')
    a('s_add_u32 s40, s40, s41')
    a(f's_add_u32 s40, s40, {WS_FLAG + p*1024}')
    a(f'v_mov_b32 v{vt}, 0')
    a(f'v_mov_b32 v{vt+1}, 1')
    a('s_mov_b64 exec, 1')
    stores2(a, [f'buffer_store_dword v{vt+1}, v{vt}, s[8:11], s40 offen'])
    a('s_mov_b64 exec, -1')

def sync(a, p_pub, p_wait, smask_setup, prefetch, vt=14, drained=False, w0_prefetch=True, pre_pub=None, pr=(149, 150)):
    if pre_pub is not None:
        lpa, lpb = lab('pp'), lab('pp')
        a('s_cmp_lg_u32 s12, 0')
        a(f's_cbranch_scc0 {lpa}')
        n_after = pre_pub()
        a(f's_waitcnt vmcnt({n_after})')
        a(f's_branch {lpb}')
        a.label(lpa)
        a('s_waitcnt vmcnt(0)')
        a.label(lpb)
        if p_pub is not None: a('s_barrier')
    elif p_pub is not None and not drained:
        a('s_waitcnt vmcnt(0)')
        a('s_barrier')
    l0, l1, lp, ld, l3 = lab('sy'), lab('sy'), lab('sy'), lab('sy'), lab('sy')
    a('s_cmp_lg_u32 s12, 0')
    a(f's_cbranch_scc1 {l0}')
    if p_pub is not None: flag_store(a, p_pub, vt)
    smask_setup()
    a(f's_lshl_b32 s40, s{SG}, 7')
    a(f's_add_u32 s40, s40, {WS_FLAG + p_wait*1024}')
    a(f'v_lshlrev_b32 v{vt}, 2, v2')
    a('s_mov_b64 exec, s[44:45]')
    a('s_mov_b32 s41, 0')
    if 'poll1' in gen.EXP:
        a.label(lp)
        a(f'buffer_load_dword v{vt+1}, v{vt}, s[8:11], s40 offen sc1')
        a('s_add_u32 s41, s41, 1')
        a('s_waitcnt vmcnt(0)')
        a(f'v_cmp_eq_u32 vcc, 0, v{vt+1}')
        a(f's_cbranch_vccz {ld}')
        a(f's_cmp_lt_u32 s41, {SPIN_MAX}')
        a(f's_cbranch_scc1 {lp}')
        a.label(ld)
    else:
        p0, p1 = pr
        a(f'buffer_load_dword v{p0}, v{vt}, s[8:11], s40 offen sc1')
        a.label(lp)
        a(f'buffer_load_dword v{p1}, v{vt}, s[8:11], s40 offen sc1')
        a('s_waitcnt vmcnt(1)')
        a(f'v_cmp_eq_u32 vcc, 0, v{p0}')
        a(f's_cbranch_vccz {ld}')
        a(f'buffer_load_dword v{p0}, v{vt}, s[8:11], s40 offen sc1')
        a('s_add_u32 s41, s41, 1')
        a('s_waitcnt vmcnt(1)')
        a(f'v_cmp_eq_u32 vcc, 0, v{p1}')
        a(f's_cbranch_vccz {ld}')
        a(f's_cmp_lt_u32 s41, {SPIN_MAX}')
        a(f's_cbranch_scc1 {lp}')
        a.label(ld)
    a('s_mov_b64 exec, -1')
    a(f's_cmp_eq_u32 s{SPURE}, 1')
    a(f's_cbranch_scc1 {l3}')
    a('buffer_inv sc1')
    a('s_waitcnt vmcnt(0)')
    a.label(l3)
    a('s_barrier')
    if w0_prefetch: prefetch()
    a(f's_branch {l1}')
    a.label(l0)
    prefetch()
    a('s_barrier')
    a.label(l1)

def late_init(a, vm, L):
    merged = 'merge' in gen.EXP
    if not merged:
        a(f's_lshl_b32 s40, s{SG}, 7')
        a(f's_lshl_b32 s41, s{SJ}, 2')
        a('s_add_u32 s40, s40, s41')
        a(f's_add_u32 s40, s40, {WS_XT}')
        a('s_cmp_eq_u32 s12, 0')
        a('s_cselect_b32 s40, s40, 0x7ff00000')
        a('v_mov_b32 v14, 0')
        a(f'v_mov_b32 v15, s{SPURE}')
        a('s_mov_b64 exec, 1')
        a('buffer_store_dword v15, v14, s[8:11], s40 offen sc1')
        a('s_mov_b64 exec, -1')
        vm.issue('xts')

def phase_attn(a, L):
    R = AR
    attn_ones(a)
    a(f's_lshr_b32 s62, s{SJ}, 2')
    a('s_mul_i32 s62, s62, 102400')
    a(f's_add_u32 s62, s62, {WS_WO}')
    a('s_lshl_b32 s61, s12, 10')
    a('s_add_u32 s62, s62, s61')
    a('s_cmp_lt_u32 s12, 4')
    a(f's_mov_b32 s63, {11*8192}')
    a(f's_cselect_b32 s63, {12*8192}, s63')
    a('s_add_u32 s63, s63, s62')
    a(f's_add_u32 s61, s61, {LDS_WO}')
    if 'rolled' in gen.EXP:
        for r in range(32): a(f'v_mov_b32 v{R.O+r}, 0')
        for r in range(16): a(f'v_mov_b32 v{R.P+r}, 0')
        for r in range(16): a(f'v_mov_b32 v{R.VV+r}, 0')
    vm = VM()
    a(f's_mov_b32 s{S_DONE}, 0')
    a(f'v_mov_b32 v14, {FB_LDS}')
    a('v_mov_b32 v15, 0')
    a('ds_write_b32 v14, v15')
    def w1_addr(a_):
        lane_swap23(a_, 14, 3, 15)
        a_('v_lshrrev_b32 v15, 4, v14')
        a_('s_movk_i32 s40, 20480')
        a_('v_mul_lo_u32 v15, v15, s40')
        a_('v_and_b32 v14, 15, v14')
        a_('v_lshl_add_u32 v15, v14, 4, v15')
        a_(f'v_lshl_add_u32 v{V_W1}, v4, 8, v15')
        a_(f's_lshr_b32 s40, s{SJ}, 1')
        a_('s_lshl_b32 s40, s40, 2')
        a_('s_and_b32 s41, s12, 3')
        a_('s_add_u32 s40, s40, s41')
        a_('s_mul_i32 s41, s40, 40960')
        a_(f's_add_u32 s41, s41, {WS_W1}')
        a_('s_cmp_lt_u32 s40, 54')
        a_(f's_cselect_b32 s{S_W1}, s41, 0x7ff00000')
    def touch_addr(a_):
        a_(f's_mov_b32 s{S_OOB}, 0x7ff00000')
        lt1, lt2 = lab('tc'), lab('tc')
        a_('v_lshlrev_b32 v148, 7, v2')
        a_('s_cmp_ge_u32 s12, 4')
        a_(f's_cbranch_scc1 {lt1}')
        a_(f's_mul_i32 s50, s{SG}, {16*20480}')
        a_(f's_mul_i32 s40, s{SJ}, 10240')
        a_('s_add_u32 s50, s50, s40')
        a_('s_and_b32 s40, s12, 1')
        a_('s_mul_i32 s40, s40, 5120')
        a_('s_add_u32 s50, s50, s40')
        a_('s_lshr_b32 s40, s12, 1')
        a_(f's_mul_i32 s40, s40, {WS_H - WS_O}')
        a_('s_add_u32 s50, s50, s40')
        a_(f's_add_u32 s50, s50, {WS_O}')
        a_('v_add_u32 v148, s50, v148')
        a_(f's_lshr_b32 s40, s{SJ}, 1')
        a_('s_lshl_b32 s40, s40, 14')
        a_(f's_lshl_b32 s41, s{SG}, 11')
        a_('s_add_u32 s40, s40, s41')
        a_(f's_and_b32 s41, s{SJ}, 1')
        a_('s_lshl_b32 s41, s41, 10')
        a_('s_add_u32 s40, s40, s41')
        a_(f's_add_u32 s40, s40, {WS_ST2 - 40*128}')
        a_('s_cmp_eq_u32 s12, 2')
        a_('s_cselect_b32 s40, s40, 0x7ff00000')
        a_('v_lshlrev_b32 v149, 7, v2')
        a_('v_add_u32 v149, s40, v149')
        a_('v_mov_b32 v14, 0x7ff00000')
        a_('v_cmp_gt_u32 vcc, 48, v2')
        a_('v_cndmask_b32 v149, v14, v149, vcc')
        a_('v_cmp_gt_u32 vcc, 40, v2')
        a_('v_cndmask_b32 v148, v149, v148, vcc')
        a_(f's_branch {lt2}')
        a_.label(lt1)
        a_('s_sub_u32 s40, s12, 4')
        a_('s_lshl_b32 s40, s40, 5')
        a_(f's_add_u32 s40, s40, s{SJ}')
        a_('s_mul_i32 s50, s40, 20480')
        a_(f's_add_u32 s50, s50, {WS_W1 + 13312}')
        a_('s_cmp_lt_u32 s40, 108')
        a_('s_cselect_b32 s50, s50, 0x7ff00000')
        a_('v_add_u32 v148, s50, v148')
        a_('v_mov_b32 v14, 0x7ff00000')
        a_('v_cmp_gt_u32 vcc, 56, v2')
        a_('v_cndmask_b32 v148, v14, v148, vcc')
        a_.label(lt2)
        a_('v_lshlrev_b32 v147, 7, v2')
        a_('s_lshl_b32 s40, s12, 13')
        a_(f's_mul_i32 s51, s{SG}, {16*55296}')
        a_(f's_mul_i32 s41, s{SJ}, 27648')
        a_('s_add_u32 s51, s51, s41')
        a_('s_add_u32 s51, s51, s40')
        a_(f's_add_u32 s51, s51, {WS_G}')
        a_('s_cmp_ge_u32 s12, 4')
        a_('s_cselect_b32 s51, 0x7ff00000, s51')
        a_(f's_and_b32 s40, s{SJ}, 3')
        a_('s_lshl_b32 s40, s40, 2')
        a_(f's_lshl_b32 s41, s{SG}, 4')
        a_('s_add_u32 s40, s40, s41')
        a_('s_and_b32 s41, s12, 3')
        a_('s_add_u32 s40, s40, s41')
        a_('s_lshl_b32 s40, s40, 4')
        a_('v_and_b32 v0, 15, v2')
        a_('v_add_u32 v0, s40, v0')
        a_('s_movk_i32 s41, 1280')
        a_('v_mul_lo_u32 v0, v0, s41')
        a_('v_lshrrev_b32 v14, 4, v2')
        a_('v_lshl_add_u32 v0, v14, 3, v0')
        a_(f's_lshr_b32 s57, s{SJ}, 2')
        a_('s_mul_i32 s57, s57, 160')
        a_('s_lshr_b32 s40, s12, 2')
        a_('s_mul_i32 s40, s40, 96')
        a_('s_add_u32 s57, s57, s40')
    INLOOP = 'rolled' not in gen.EXP
    if not INLOOP:
        w1_addr(a); touch_addr(a)
    def rec(fn):
        t_ = Asm(); fn(t_); return list(t_.lines)
    if 'earlyinit' in gen.EXP: late_init(a, VM(), L)
    a('s_waitcnt vmcnt(0)')
    for st in (1, 2):
        attn_dma(a, st, 8); vm.issue(('kv', st)); vm.issue(('kv', st))
    for x in wo_dma(): a(x)
    vm.issue('wo')
    if 'earlyinit' not in gen.EXP: late_init(a, vm, L)
    if 'notlb' not in gen.EXP:
        a('v_lshlrev_b32 v149, 16, v2')
        a('s_lshl_b32 s40, s12, 22')
        a('buffer_load_dword v149, v149, s[8:11], s40 offen')
        a('v_lshlrev_b32 v148, 16, v2')
        a('buffer_load_dword v148, v148, s[76:79], 0 offen')
    a('v_cmp_gt_u32 vcc, 32, v2')
    for r in range(4): a(f'v_cndmask_b32 v{R.QC+r}, 0, v{R.QC+r}, vcc')
    a('s_waitcnt lgkmcnt(0)')
    a('s_barrier')
    a(f'ds_read_b128 {v(R.KA,4)}, v11 offset:0')
    a(f'ds_read_b64 {v(R.KC,2)}, v12 offset:0')
    a('s_waitcnt lgkmcnt(0)')
    a(f'v_mfma_f32_32x32x16_bf16 {v(R.S,16)}, {v(R.KA,4)}, {v(R.QA,4)}, 0')
    a(f'v_mfma_f32_32x32x8bf16_1k {v(R.S,16)}, {v(R.KC,2)}, {v(R.QC,2)}, {v(R.S,16)}')
    stamp(a, 7)
    wnext = [0]
    def w1load():
        s_ = wnext[0]; wnext[0] += 1
        return [f's_add_u32 s40, s{S_W1}, {s_*512}', f'buffer_load_dwordx4 {v(w1reg(s_),4)}, v{V_W1}, s[8:11], s40 offen']
    plan = {}
    waits = {}
    nW = {2: 3, 3: 3, 4: 3, 5: 3, 6: 4, 7: 4, 8: 3, 9: 3}
    if 'now1a' in gen.EXP: nW = {}
    if 'w1aL' in gen.EXP: nW = {5: 3, 6: 3, 7: 4, 8: 4, 9: 3, 10: 3, 11: 3, 12: 3}
    if 'w1aE' in gen.EXP: nW = {1: 4, 2: 4, 3: 4, 4: 4, 5: 4, 6: 3, 7: 3}
    if 'w1aM' in gen.EXP: nW = {3: 2, 4: 3, 5: 3, 6: 3, 7: 3, 8: 3, 9: 3, 10: 3, 11: 3}
    ROLL = 'rolled' in gen.EXP
    if ROLL: nW = {8: 4, 9: 4, 10: 4, 11: 4, 12: 4, 13: 3, 14: 3}
    def masked(sreg, cond_lo, cond_hi, vreg):
        return [f's_sub_u32 s40, s12, {cond_lo}', f's_cmp_lt_u32 s40, {cond_hi - cond_lo}', f's_cselect_b32 s40, {sreg}, s{S_OOB}',
                f'buffer_load_dword v149, v{vreg}, s[8:11], s40 offen']
    for g in range(16):
        ex = {}
        late_ops = []
        k = nW.get(g, 0)
        slots = sorted([(0, 20), (1, 8), (1, 20), (2, 20)][:k])
        if g <= 11:
            ex.setdefault(0, {})[8] = wo_dma(); vm.issue('wo')
        if INLOOP and g == 0: ex.setdefault(1, {})[9] = rec(w1_addr)
        if INLOOP and g == 1:
            tl_ = rec(touch_addr)
            ex.setdefault(1, {})[9] = tl_
        if g == 12:
            ex.setdefault(0, {})[8] = [f's_lshl_b32 s40, s{SG}, 7', f's_add_u32 s40, s40, {WS_XT}', 'v_lshlrev_b32 v150, 2, v3',
                                       'buffer_load_dword v150, v150, s[8:11], s40 offen sc1']
            vm.issue('xt')
        tl = None
        if g == 10: tl = masked('0', 4, 6, 148)
        if g == 11: tl = masked('0', 6, 8, 148)
        if g == 12: tl = masked('0', 0, 4, 148)
        if g == 13: tl = ['buffer_load_dword v149, v147, s[8:11], s51 offen']
        if g == 9 and 'outtouch' in gen.EXP:
            ex.setdefault(2, {})[12] = [f's_and_b32 s40, s{SJ}, 3', 's_lshl_b32 s40, s40, 6', f's_lshl_b32 s41, s{SG}, 8', 's_add_u32 s40, s40, s41',
                                        'v_add_u32 v14, s40, v2', 's_movk_i32 s41, 1280', 'v_mul_lo_u32 v14, v14, s41',
                                        f's_lshr_b32 s40, s{SJ}, 2', 's_mul_i32 s40, s40, 160', 's_lshl_b32 s41, s12, 7', 's_add_u32 s40, s40, s41',
                                        's_cmp_lt_u32 s12, 2', f's_cselect_b32 s40, s40, s{S_OOB}',
                                        'buffer_load_dword v149, v14, s[76:79], s40 offen']
            late_ops.append('touch')
        if g in (5, 6, 7, 8) and 'w2touch' in gen.EXP:
            q_ = g - 5
            ex.setdefault(2, {})[12] = [f's_mul_i32 s41, s{SJ}, 69120', 's_lshl_b32 s40, s12, 13', 's_add_u32 s41, s41, s40', f's_add_u32 s41, s41, {WS_W2}',
                                        f's_sub_u32 s40, s12, {2*q_}', 's_cmp_lt_u32 s40, 2', f's_cselect_b32 s40, s41, s{S_OOB}',
                                        'v_lshlrev_b32 v14, 7, v2', 'buffer_load_dword v149, v14, s[8:11], s40 offen']
            late_ops.append('touch')
        if tl and 'notouch' not in gen.EXP:
            ex.setdefault(1, {})[14] = tl; vm.issue('touch')
        post = []
        pre_ops = []
        for (u, pos) in slots:
            if u < 2: ex.setdefault(u, {})[pos] = w1load(); vm.issue('w1')
            else: post.append((u, pos))
        if g < 15: waits[g] = vm.count_after(lambda x: x == ('kv', g + 1))
        if ROLL and g < 8: waits[g] = 4
        for x_ in late_ops: vm.issue(x_)
        for (u, pos) in post:
            ex.setdefault(u, {})[pos] = w1load(); vm.issue('w1')
        if g <= 12:
            vm.issue(('kv', g + 3)); vm.issue(('kv', g + 3))
        if g == 13:
            ex.setdefault(3, {})[20] = [f'buffer_load_dwordx2 {v(XR0+2*i,2)}, v0, s[72:75], s57 offen offset:{32*i}' for i in range(3)]
            for i in range(3): vm.issue('xr')
        plan[g] = ex
    assert wnext[0] == 26 or 'now1a' in gen.EXP, wnext
    def run(stages_g):
        loc = {g % 4: g for g in stages_g}
        def prio(st, u):
            g = loc[st]
            if g == 15: return {0: 2, 1: 1, 2: 1, 3: 0}[u]
            if g == 14 and u >= 2: return 3
            return {2: 3, 3: 2, 0: 1, 1: 0}[u]
        return attn_units(a, 8, [(g % 4, g == 15) for g in stages_g], lambda st: loc[st] <= 12,
                          lambda st, u: plan[loc[st]].get(u, {}), lambda st: waits[loc[st]], prio,
                          start=(stages_g[0] == 0 and 'rolled' not in gen.EXP))
    if ROLL:
        a('s_mov_b32 s60, 2')
        a.label('.Lat_loop')
        run([4, 5, 6, 7])
        a('s_sub_u32 s60, s60, 1')
        a('s_cmp_lg_u32 s60, 0')
        a('s_cbranch_scc1 .Lat_loop')
        run([8, 9, 10, 11])
    else:
        for b_ in range(3): run([4*b_ + i for i in range(4)])
    m1, m2, m3, m4, _ = run([12, 13, 14, 15])
    a(m3(1, 1, 1)); a(m4(1, 1, 1))
    a('s_setprio 0')
    stamp(a, 3)
    lp, ld = lab('xt'), lab('xt')
    a('s_mov_b32 s41, 0')
    a('v_cmp_eq_u32 vcc, 0, v150')
    a(f's_cbranch_vccz {ld}')
    a.label(lp)
    a(f's_lshl_b32 s40, s{SG}, 7')
    a(f's_add_u32 s40, s40, {WS_XT}')
    a('v_lshlrev_b32 v14, 2, v3')
    a('buffer_load_dword v150, v14, s[8:11], s40 offen sc1')
    a('s_add_u32 s41, s41, 1')
    a('s_waitcnt vmcnt(0)')
    a('v_cmp_eq_u32 vcc, 0, v150')
    a(f's_cbranch_vccz {ld}')
    a(f's_cmp_lt_u32 s41, {SPIN_MAX}')
    a(f's_cbranch_scc1 {lp}')
    a.label(ld)
    a(f'v_cmp_ne_u32 vcc, s{SPURE}, v150')
    a('s_cmp_eq_u64 vcc, 0')
    a(f's_cselect_b32 s{SPURE}, 1, 0')
    if 'slow' in gen.EXP: a(f's_mov_b32 s{SPURE}, 0')
    TT = R.S
    a.label('.Lat_combine')
    a('s_cmp_eq_u32 s46, 0')
    a('s_cbranch_scc1 .Lat_noswap')
    a('s_nop 7')
    for r in range(12): a(f'v_swap_b32 v{R.O+r}, v{R.O+16+r}')
    a.label('.Lat_noswap')
    a('s_nop 7')
    a(f's_mul_i32 s40, s12, 3072')
    a('v_add_u32 v14, s40, v10')
    for i in range(3): a(f'ds_write_b128 v14, {v(R.O+16+4*i,4)} offset:{1024*i}')
    a('s_xor_b32 s40, s12, 4')
    a('s_mul_i32 s40, s40, 3072')
    a('v_add_u32 v14, s40, v10')
    a('s_waitcnt lgkmcnt(0)')
    a('s_barrier')
    for i in range(3): a(f'ds_read_b128 {v(TT+4*i,4)}, v14 offset:{1024*i}')
    a('s_waitcnt lgkmcnt(0)')
    for r in range(12): a(f'v_add_f32 v{R.O+r}, v{R.O+r}, v{TT+r}')
    a(f'v_mov_b32 v{TT}, v{R.O+8}')
    a(f'v_mov_b32 v{TT+1}, v{R.O+8}')
    a(f'v_permlane32_swap_b32 v{TT}, v{TT+1}')
    a(f'v_mov_b32 v{TT+2}, 0')
    for r in range(12): a(f'v_fmac_f32 v{TT+2}, 0, v{R.O+r}')
    a('s_mov_b32 s40, 0x1f800000')
    a(f'v_cmp_nle_f32 vcc, s40, v{TT+1}')
    a('s_mov_b32 s40, 0x5f800000')
    a(f'v_cmp_nge_f32 s[44:45], s40, v{TT+1}')
    a('s_or_b64 s[44:45], s[44:45], vcc')
    a(f'v_cmp_u_f32 vcc, v{TT+2}, v{TT+2}')
    a('s_or_b64 s[44:45], s[44:45], vcc')
    if 'forcefb' in gen.EXP: a('s_mov_b64 s[44:45], -1')
    lok = lab('ok')
    a('s_cmp_eq_u64 s[44:45], 0')
    a(f's_cbranch_scc1 {lok}')
    a(f'v_mov_b32 v{TT+2}, {FB_LDS}')
    a(f'v_mov_b32 v{TT+3}, 1')
    a(f'ds_write_b32 v{TT+2}, v{TT+3}')
    a.label(lok)
    a(f'v_rcp_f32 v{TT+1}, v{TT+1}')
    for r in range(12): a(f'v_mul_f32 v{R.O+r}, v{R.O+r}, v{TT+1}')
    for i in range(6): a(f'v_cvt_pk_bf16_f32 v{TT+4+i}, v{R.O+2*i}, v{R.O+2*i+1}')
    a('s_mul_i32 s61, s46, 40960')
    a('s_add_u32 s61, s61, s47')
    a(f's_add_u32 s61, s61, {WS_O}')
    a('s_lshl_b32 s62, s42, 8')
    a('s_add_u32 s62, s62, s61')
    a('s_lshl_b32 s63, s43, 8')
    a('s_add_u32 s63, s63, s61')
    a(f's_and_b32 s61, s{SH}, 1')
    a('s_lshl_b32 s61, s61, 3')
    a('s_add_u32 s63, s63, s61')
    stores2(a, [f'buffer_store_dwordx4 {v(TT+4,4)}, v7, s[8:11], s62 offen',
                's_mov_b64 exec, 0xffffffff',
                f'buffer_store_dwordx2 {v(TT+8,2)}, v5, s[8:11], s63 offen',
                's_mov_b64 exec, -1'])
    stamp(a, 4)
    oproj_setup(a)
    a('s_waitcnt vmcnt(0) lgkmcnt(0)')
    a('s_barrier')
    a(f'v_mov_b32 v14, {FB_LDS}')
    a('ds_read_b32 v15, v14')
    a('s_waitcnt lgkmcnt(0)')
    a('v_readfirstlane_b32 s40, v15')
    a(f's_sub_u32 s40, s40, s{S_DONE}')
    a('s_cmp_eq_u32 s40, 1')
    a('s_cbranch_scc1 .Lat_fallback')
    a.label('.Lat_done')

def attn_fallback(a):
    R = AR
    SL = 2 * AT_SLOT
    S_, M0_, M1_ = R.S, R.S + 16, R.S + 17
    a.label('.Lat_fallback')
    a(f's_mov_b32 s{S_DONE}, 1')
    def load_stage():
        a('s_barrier')
        for x in attn_dma_parts(2, 8)[0] + attn_dma_parts(2, 8)[1]: a(x)
        a('s_waitcnt vmcnt(0)')
        a('s_barrier')
    def rewind():
        a(f's_sub_u32 s52, s52, {16*5120}')
        a(f's_sub_u32 s53, s53, {16*163840}')
    def scores(t, j):
        a(f'v_mfma_f32_32x32x16_bf16 {v(S_,16)}, {v(R.KA,4)}, {v(R.QA+4*j,4)}, 0')
        a(f'v_mfma_f32_32x32x8bf16_1k {v(S_,16)}, {v(R.KC,2)}, {v(R.QC+2*j,2)}, {v(S_,16)}')
    def kread(t):
        a(f'ds_read_b128 {v(R.KA,4)}, v11 offset:{SL + t*1024}')
        a(f'ds_read_b64 {v(R.KC,2)}, v12 offset:{SL + t*512}')
    rewind()
    a(f'v_mov_b32 v{M0_}, 0xff7fffff'); a(f'v_mov_b32 v{M1_}, 0xff7fffff')
    a('s_mov_b32 s60, 16')
    a.label('.Lat_fb1')
    load_stage()
    for t in range(2):
        kread(t)
        a('s_waitcnt lgkmcnt(0)')
        for j in range(2):
            scores(t, j)
            m = M0_ + j
            for r in range(0, 16, 2): a(f'v_max3_f32 v{m}, v{S_+r}, v{S_+r+1}, v{m}')
    a('s_sub_u32 s60, s60, 1')
    a('s_cmp_lg_u32 s60, 0')
    a('s_cbranch_scc1 .Lat_fb1')
    for j in range(2):
        m = M0_ + j
        a(f'v_mov_b32 v{S_}, v{m}'); a(f'v_mov_b32 v{S_+1}, v{m}')
        a(f'v_permlane32_swap_b32 v{S_}, v{S_+1}')
        a(f'v_max_f32 v{m}, v{S_}, v{S_+1}')
    a('s_barrier')
    a('s_lshl_b32 s40, s12, 9')
    a('v_lshlrev_b32 v14, 3, v2')
    a('v_add_u32 v14, s40, v14')
    a(f'ds_write_b64 v14, {v(M0_,2)}')
    a('s_xor_b32 s40, s12, 4')
    a('s_lshl_b32 s40, s40, 9')
    a('v_lshlrev_b32 v14, 3, v2')
    a('v_add_u32 v14, s40, v14')
    a('s_waitcnt lgkmcnt(0)')
    a('s_barrier')
    a(f'ds_read_b64 {v(S_,2)}, v14')
    a('s_waitcnt lgkmcnt(0)')
    a(f'v_max_f32 v{M0_}, v{M0_}, v{S_}')
    a(f'v_max_f32 v{M1_}, v{M1_}, v{S_+1}')
    rewind()
    for r in range(32): a(f'v_mov_b32 v{R.O+r}, 0')
    a('s_mov_b32 s60, 16')
    a.label('.Lat_fb2')
    load_stage()
    for t in range(2):
        kread(t)
        a(f'ds_read_b128 {v(R.VV,4)}, v13 offset:{SL + t*2048}')
        a(f'ds_read_b128 {v(R.VV+4,4)}, v13 offset:{SL + t*2048 + 1024}')
        a('s_waitcnt lgkmcnt(0)')
        for j in range(2):
            scores(t, j)
            for r in range(16): a(f'v_sub_f32 v{S_+r}, v{S_+r}, v{M0_+j}')
            for r in range(16): a(f'v_exp_f32 v{S_+r}, v{S_+r}')
            for i in range(8): a(f'v_cvt_pk_bf16_f32 v{R.P+i}, v{S_+2*i}, v{S_+2*i+1}')
            a(f'v_mfma_f32_32x32x16_bf16 {v(R.O+16*j,16)}, {v(R.VV,4)}, {v(R.P,4)}, {v(R.O+16*j,16)}')
            a(f'v_mfma_f32_32x32x16_bf16 {v(R.O+16*j,16)}, {v(R.VV+4,4)}, {v(R.P+4,4)}, {v(R.O+16*j,16)}')
    a('s_sub_u32 s60, s60, 1')
    a('s_cmp_lg_u32 s60, 0')
    a('s_cbranch_scc1 .Lat_fb2')
    a('s_nop 15')
    a('s_barrier')
    a('s_branch .Lat_combine')

def oproj_setup(a):
    BF, AF, ACC, XR, T = 16, 56, 96, XR0, 116
    a(f's_and_b32 s20, s{SJ}, 3')
    a(f's_lshr_b32 s21, s{SJ}, 2')
    a('s_and_b32 s22, s12, 3')
    a('s_lshr_b32 s23, s12, 2')
    a(f's_lshl_b32 s29, s{SG}, 4')
    a('s_lshl_b32 s30, s20, 2')
    a('s_add_u32 s29, s29, s30')
    a('s_add_u32 s29, s29, s22')
    a('v_and_b32 v14, 15, v2')
    a('v_lshrrev_b32 v15, 4, v2')
    a('s_mul_i32 s30, s29, 20480')
    a('s_mul_i32 s31, s23, 10240')
    a('s_add_u32 s30, s30, s31')
    a(f's_add_u32 s30, s30, {WS_O}')
    a('s_mul_i32 s33, s23, 10240')
    a(f's_add_u32 s33, s33, {LDS_WO}')
    a('s_cmp_eq_u32 s23, 0')
    a(f's_cselect_b32 s34, 0, {3*20480}')
    a('s_add_u32 s34, s34, s33')
    a('v_add_u32 v142, s34, v10')
    a(f's_cselect_b32 s34, {2*20480}, 0') if False else None
    a('s_cmp_eq_u32 s23, 0')
    a(f's_cselect_b32 s34, {2*20480}, 0')
    a('s_add_u32 s34, s34, s33')
    a('v_add_u32 v143, s34, v10')
    a('s_cmp_eq_u32 s23, 0')
    a(f's_mov_b32 s35, {20480}')
    a(f's_cselect_b32 s34, {3*20480}, s35')
    a('s_add_u32 s34, s34, s33')
    a('v_add_u32 v145, s34, v10')
    a('s_mul_i32 s40, s12, 3072')
    a('s_add_u32 s40, s40, 32768')
    a('v_add_u32 v146, s40, v10')
    a('s_xor_b32 s40, s12, 4')
    a('s_mul_i32 s40, s40, 3072')
    a('s_lshl_b32 s41, s23, 10')
    a('s_add_u32 s40, s40, s41')
    a('s_add_u32 s40, s40, 32768')
    a('v_add_u32 v147, s40, v10')
    a('s_mul_i32 s34, s29, 20480')
    a('s_mul_i32 s35, s21, 2560')
    a('s_add_u32 s34, s34, s35')
    a('s_mul_i32 s35, s23, 1536')
    a('s_add_u32 s34, s34, s35')
    a(f's_add_u32 s34, s34, {WS_H}')
    a('v_lshrrev_b32 v148, 1, v15')
    a('v_lshlrev_b32 v148, 8, v148')
    a('v_lshl_add_u32 v148, v14, 4, v148')
    a('v_and_b32 v144, 1, v15')
    a('v_lshl_add_u32 v148, v144, 3, v148')
    a('s_lshl_b32 s33, s29, 7')
    a('s_lshl_b32 s35, s21, 1')
    a('s_add_u32 s35, s35, s23')
    a('s_lshl_b32 s35, s35, 14')
    a('s_add_u32 s33, s33, s35')
    a(f's_add_u32 s33, s33, {WS_ST2}')
    a('v_lshlrev_b32 v144, 3, v14')
    a('s_cmp_eq_u32 s23, 0')
    a(f's_cselect_b32 s35, s34, {0x7ffff000}')
    a('s_waitcnt vmcnt(2)')
    for i in range(3):
        for h2 in range(2):
            a(f'v_lshlrev_b32 v{ACC+4*i+2*h2}, 16, v{XR+2*i+h2}')
            a(f'v_and_b32 v{ACC+4*i+2*h2+1}, 0xffff0000, v{XR+2*i+h2}')
    a('s_cmp_eq_u32 s23, 0')
    a('s_cselect_b64 vcc, -1, 0')
    for r in range(8, 12): a(f'v_cndmask_b32 v{ACC+r}, 0, v{ACC+r}, vcc')
    for r in range(12, 20): a(f'v_mov_b32 v{ACC+r}, 0')

def phase_oproj(a):
    BF, AF, ACC, XR, T = 16, 56, 96, XR0, 116
    def pre(): pass
    def mask():
        a('s_mov_b32 s44, -1'); a('s_mov_b32 s45, 0')
    sync(a, 0, 0, mask, pre, drained=True)
    stamp(a, 8)
    for i in range(10):
        if i % 4 == 0: a(f's_add_u32 s31, s30, {i*1024}')
        a(f'buffer_load_dwordx4 {v(BF+4*i,4)}, v10, s[8:11], s31 offen offset:{(i%4)*1024} sc1')
    def areads(i, buf):
        for sl in range(5):
            base, off = {0: (142, 0), 1: (142, 20480), 2: (143, 0), 3: (145, 0), 4: (145, 20480)}[sl]
            a(f'ds_read_b128 {v(AF+20*buf+4*sl,4)}, v{base} offset:{off + i*1024}')
    areads(0, 0)
    for i in range(10):
        if i < 9:
            areads(i + 1, (i + 1) & 1)
            a(f's_waitcnt vmcnt({9-i}) lgkmcnt(5)')
        else:
            a('s_waitcnt vmcnt(0) lgkmcnt(0)')
        for sl in (2, 3, 4, 0, 1):
            acc = v(ACC + 4 * sl, 4)
            a(f'v_mfma_f32_16x16x32_bf16 {acc}, {v(AF+20*(i&1)+4*sl,4)}, {v(BF+4*i,4)}, {acc}')
    stamp(a, 9)
    a('s_nop 3')
    for i, sl in enumerate((2, 3, 4)): a(f'ds_write_b128 v146, {v(ACC+4*sl,4)} offset:{1024*i}')
    a('s_waitcnt lgkmcnt(0)')
    a('s_barrier')
    for i in range(3): a(f'ds_read_b128 {v(T+4*i,4)}, v147 offset:{1024*i}')
    a('s_waitcnt lgkmcnt(0)')
    for r in range(12): a(f'v_add_f32 v{ACC+r}, v{ACC+r}, v{T+r}')
    a('s_cmp_eq_u32 s23, 0')
    a('s_cselect_b64 vcc, -1, 0')
    for r in range(8, 12): a(f'v_cndmask_b32 v{ACC+r}, 0, v{ACC+r}, vcc')
    a(f'v_add_f32 v{T}, v{ACC}, v{ACC+1}')
    a(f'v_mul_f32 v{T+1}, v{ACC}, v{ACC}')
    a(f'v_fmac_f32 v{T+1}, v{ACC+1}, v{ACC+1}')
    for r in range(2, 12):
        a(f'v_add_f32 v{T}, v{T}, v{ACC+r}')
        a(f'v_fmac_f32 v{T+1}, v{ACC+r}, v{ACC+r}')
    for i in range(6): a(f'v_cvt_pk_bf16_f32 v{T+4+i}, v{ACC+2*i}, v{ACC+2*i+1}')
    sum_q4(a, T, T+2, T+3)
    sum_q4(a, T+1, T+2, T+3)
    stores2(a, [f'buffer_store_dwordx2 {v(T+4,2)}, v148, s[8:11], s34 offen',
                f'buffer_store_dwordx2 {v(T+6,2)}, v148, s[8:11], s34 offen offset:512',
                f'buffer_store_dwordx2 {v(T+8,2)}, v148, s[8:11], s35 offen offset:1024',
                's_mov_b64 exec, 0xffff',
                f'buffer_store_dwordx2 {v(T,2)}, v144, s[8:11], s33 offen',
                's_mov_b64 exec, -1'])

F2_SLOT = {0: 81920, 1: 122880, 2: 0, 3: 40960, 4: 81920, 5: 122880, 6: 0}
def w2_setup(a):
    a(f's_lshr_b32 s21, s{SJ}, 2')
    a('s_lshr_b32 s22, s12, 2')
    a('s_mul_i32 s22, s22, 27')
    a('s_and_b32 s23, s12, 3')
    a('s_add_u32 s22, s22, s23')
    a('s_lshl_b32 s22, s22, 10')
    a('s_mul_i32 s47, s21, 276480')
    a(f's_add_u32 s47, s47, {WS_W2}')
    a('s_add_u32 s47, s47, s22')
    a('s_mul_i32 s48, s12, 5120')
def w2_dma(st, ft):
    return [f's_add_u32 m0, s48, {F2_SLOT[st] + ft*1024}', f's_add_u32 s49, s47, {st*4096 + ft*55296}',
            'buffer_load_dwordx4 v10, s[8:11], s49 offen lds']

def far_touch(a, vt, vd):
    a(f'v_lshlrev_b32 v{vt}, 7, v2')
    a(f's_mul_i32 s56, s{SJ}, 69120')
    a('s_lshl_b32 s57, s12, 13')
    a('s_add_u32 s56, s56, s57')
    a(f's_add_u32 s56, s56, {WS_W2}')
    a(f'buffer_load_dword v{vd}, v{vt}, s[8:11], s56 offen')
    a(f's_mul_i32 s56, s{SG}, {16*55296}')
    a(f's_mul_i32 s57, s{SJ}, 27648')
    a('s_add_u32 s56, s56, s57')
    a('s_lshl_b32 s57, s12, 13')
    a('s_add_u32 s56, s56, s57')
    a(f's_add_u32 s56, s56, {WS_G}')
    a(f's_mul_i32 s57, s{SJ}, 69120')
    a(f's_add_u32 s57, s57, {WS_W2 + 65536}')
    a('s_cmp_eq_u32 s12, 4')
    a('s_cselect_b32 s56, s57, s56')
    a('s_cmp_gt_u32 s12, 4')
    a('s_cselect_b32 s56, 0x7ff00000, s56')
    a(f'buffer_load_dword v{vd}, v{vt}, s[8:11], s56 offen')

def f1_tables(a, vm, ST, CP, LST):
    vm.wait(a, lambda x: x in ('st', 'cp'))
    a(f'v_add_f32 v{CP}, v{CP}, v{CP+1}')
    a(f'v_add_f32 v{CP+2}, v{CP+2}, v{CP+3}')
    a(f'v_add_f32 v{CP}, v{CP}, v{CP+2}')
    a('s_lshl_b32 s28, s23, 7')
    a('v_lshlrev_b32 v14, 2, v3')
    a('v_add_u32 v14, s28, v14')
    a(f'ds_write_b32 v14, v{CP} offset:{LST+1024}')
    l2 = lab('st')
    a('s_cmp_ge_u32 s12, 4')
    a(f's_cbranch_scc1 {l2}')
    b = ST
    for q in range(1, 8):
        a(f'v_add_f32 v{b}, v{b}, v{b+2*q}')
        a(f'v_add_f32 v{b+1}, v{b+1}, v{b+2*q+1}')
    for r in range(2):
        a(f'v_mov_b32 v{b+2}, v{b+r}'); a(f'v_mov_b32 v{b+3}, v{b+r}')
        a(f'v_permlane32_swap_b32 v{b+2}, v{b+3}')
        a(f'v_add_f32 v{b+r}, v{b+2}, v{b+3}')
    a(f'v_mul_f32 v{b}, {f2hex(1.0/640)}, v{b}')
    a(f'v_mul_f32 v{b+1}, {f2hex(1.0/640)}, v{b+1}')
    a(f'v_fma_f32 v{b+1}, -v{b}, v{b}, v{b+1}')
    a(f'v_max_f32 v{b+1}, 0, v{b+1}')
    a(f'v_add_f32 v{b+1}, 0x3727c5ac, v{b+1}')
    a(f'v_rsq_f32 v{b+1}, v{b+1}')
    a(f'v_mul_f32 v{b}, v{b}, v{b+1}')
    a('s_lshl_b32 s28, s12, 8')
    a('v_lshlrev_b32 v14, 3, v3')
    a('v_add_u32 v14, s28, v14')
    a(f'ds_write_b64 v14, {v(b,2)} offset:{LST}')
    a.label(l2)

def phase_ffn1(a, vm_pre):
    ACC, FB = 72, 104
    CS, B1, ST = 192, 168, 128
    CP, B1R = 144, 184
    LST = 0
    NS = 5
    srd(a, 52, 68, F * 2)
    w2_setup(a)
    a(f's_and_b32 s13, s{SJ}, 1')
    a(f's_lshl_b32 s15, s{SG}, 1')
    a('s_add_u32 s13, s13, s15')
    a(f's_lshr_b32 s14, s{SJ}, 1')
    a('s_and_b32 s23, s12, 3')
    a('s_lshr_b32 s26, s12, 2')
    a('v_lshrrev_b32 v7, 4, v3')
    a('s_movk_i32 s17, 20480')
    a('v_mul_lo_u32 v7, v7, s17')
    a('v_and_b32 v6, 15, v3')
    a('v_lshl_add_u32 v7, v6, 4, v7')
    a('v_lshl_add_u32 v7, v4, 8, v7')
    a('s_lshl_b32 s20, s13, 3')
    a('s_lshl_b32 s19, s23, 1')
    a('s_add_u32 s20, s20, s19')
    a('s_mul_i32 s20, s20, 20480')
    a('s_lshl_b32 s19, s26, 10')
    a('s_add_u32 s20, s20, s19')
    a(f's_add_u32 s20, s20, {WS_H}')
    a('s_lshl_b32 s22, s23, 10')
    a('s_lshl_b32 s19, s26, 13')
    a('s_add_u32 s22, s22, s19')
    a('s_lshl_b32 s17, s26, 11')
    a('v_add_u32 v12, s17, v10')
    a('v_add_u32 v13, 0x10000, v12')
    vm = VM()
    def pre(): pass
    def mask():
        a(f's_and_b32 s40, s{SJ}, 1')
        a('s_cmp_eq_u32 s40, 0')
        a('s_mov_b32 s44, 0xcccccccc')
        a('s_cselect_b32 s44, 0x33333333, s44')
        a('s_mov_b32 s45, 0')
    sync(a, 1, 1, mask, pre)
    stamp(a, 10)
    nst = 10
    pend = [(st, i) for st in range(nst) for i in range(2)]
    def dma_one():
        st, i = pend.pop(0)
        a(f's_add_u32 m0, s22, {(st % NS)*16384 + i*4096}')
        a(f's_add_u32 s21, s20, {st*2048 + i*512}')
        a('buffer_load_dwordx4 v7, s[8:11], s21 offen sc1 lds')
        vm.issue(('h', st))
    for _ in range(2 * 3): dma_one()
    a('s_lshl_b32 s27, s13, 7')
    a('s_lshl_b32 s28, s26, 6')
    a('s_add_u32 s27, s27, s28')
    a('s_lshl_b32 s28, s13, 7')
    a('s_lshl_b32 s29, s23, 5')
    a('s_add_u32 s28, s28, s29')
    a('s_lshl_b32 s28, s28, 3')
    a(f's_add_u32 s28, s28, {WS_ST2}')
    a('v_lshlrev_b32 v14, 3, v3')
    a('v_lshl_add_u32 v14, v4, 17, v14')
    def st_load(q):
        a(f's_add_u32 s29, s28, {q*16384}')
        a(f'buffer_load_dwordx2 {v(ST+2*q,2)}, v14, s[8:11], s29 offen sc1')
        vm.issue('st')
    w1q = list(range(26, 40))
    def w1_load():
        s_ = w1q.pop(0)
        a(f's_add_u32 s40, s{S_W1}, {s_*512}')
        a(f'buffer_load_dwordx4 {v(w1reg(s_),4)}, v{V_W1}, s[8:11], s40 offen')
        vm.issue(('w1', s_))
    def reads(st, ks, buf):
        off = (st % NS) * 16384 + ks * 4096
        base = 12
        if off + 1024 >= 65536: off -= 65536; base = 13
        a(f'ds_read_b128 {v(FB+8*buf,4)}, v{base} offset:{off}')
        a(f'ds_read_b128 {v(FB+8*buf+4,4)}, v{base} offset:{off+1024}')
    def mfmas(s_, buf):
        for j in range(2):
            c = '0' if s_ == 0 else v(ACC+16*j, 16)
            a(f'v_mfma_f32_32x32x16_bf16 {v(ACC+16*j,16)}, {v(w1reg(s_),4)}, {v(FB+8*buf+4*j,4)}, {c}')
    F1S = 'f1stamp' in gen.EXP
    w2q = [(st, ft) for st in (0, 1) for ft in range(5)]
    if F1S: stamp(a, 2)
    vm.wait(a, lambda x: x == ('h', 0))
    a('s_barrier')
    if F1S: stamp(a, 3)
    reads(0, 0, 0)
    reads(0, 1, 1)
    for st in range(nst):
        for ks in range(4):
            s_ = 4 * st + ks
            buf = s_ % 3
            n2 = s_ + 2
            if st == 8 and ks == 2:
                f1_tables(a, vm, ST, CP, LST)
            if st == 9 and ks == 0:
                a('s_lshl_b32 s28, s26, 9')
                a('v_lshlrev_b32 v14, 3, v3')
                a('v_add_u32 v14, s28, v14')
                a(f'ds_read_b64 {v(ST,2)}, v14 offset:{LST}')
                a(f'ds_read_b64 {v(ST+4,2)}, v14 offset:{LST+256}')
                a('s_lshl_b32 s28, s23, 7')
                a('v_lshlrev_b32 v14, 5, v4')
                a('v_add_u32 v14, s28, v14')
                for g in range(4):
                    a(f'ds_read_b128 {v(CS+4*g,4)}, v14 offset:{LST + 1024 + (g&1)*16 + (g>>1)*64}')
            if ks == 2 and st + 1 < nst:
                if s_ >= 26: vm.wait(a, lambda x: x == ('w1', s_), ' lgkmcnt(0)')
                else: a('s_waitcnt lgkmcnt(0)')
                mfmas(s_, buf)
                if F1S and st in (0, 2, 4, 6): stamp(a, {0: 4, 2: 7, 4: 9, 6: 13}[st])
                vm.wait(a, lambda x: x == ('h', st + 1))
                if 'f1nobar' not in gen.EXP: a('s_barrier')
                if F1S and st in (0, 2, 4, 6): stamp(a, {0: 5, 2: 8, 4: 12, 6: 14}[st])
                reads(n2 >> 2, n2 & 3, n2 % 3)
            else:
                if n2 < 40:
                    reads(n2 >> 2, n2 & 3, n2 % 3)
                    lg = 4
                else:
                    lg = 2 if s_ == 38 else 0
                if st == 9 and ks == 0: lg = 2
                if s_ >= 26: vm.wait(a, lambda x: x == ('w1', s_), f' lgkmcnt({lg})')
                else: a(f's_waitcnt lgkmcnt({lg})')
                mfmas(s_, buf)
            lim = st + NS - 1 + (1 if ks >= 2 else 0)
            if pend and pend[0][0] <= lim and (ks in (1, 3) or st == 0):
                if 'f1nodma' in gen.EXP:
                    st__, i__ = pend.pop(0); vm.issue(('h', st__))
                else: dma_one()
            if ks in (0, 2) and w1q and st <= 6:
                if 'f1now1b' in gen.EXP:
                    s__ = w1q.pop(0); vm.issue(('w1', s__))
                else: w1_load()
            if st == 5 and ks < 4:
                st_load(2 * ks); st_load(2 * ks + 1)
            if st >= 8 and not (st == 8 and ks == 0):
                for _ in range(2 if (st == 9 or ks >= 2) else 1):
                    if w2q:
                        for x in w2_dma(*w2q.pop(0)): a(x)
                        vm.issue('w2')
            if st == 6 and ks == 1:
                a('s_lshl_b32 s29, s14, 7')
                a('s_lshl_b32 s30, s23, 5')
                a('s_add_u32 s29, s29, s30')
                a('s_lshl_b32 s29, s29, 2')
                a(f's_add_u32 s29, s29, {WS_CS1}')
                a('v_lshlrev_b32 v15, 2, v3')
                for kb in range(4):
                    a(f'buffer_load_dword v{CP+kb}, v15, s[8:11], s29 offen'); vm.issue('cp')
                    if kb < 3: a('s_add_u32 s29, s29, 6912')
            if st == 8 and ks == 0:
                a('s_lshl_b32 s29, s14, 7')
                a('s_lshl_b32 s30, s23, 5')
                a('s_add_u32 s29, s29, s30')
                a('s_lshl_b32 s29, s29, 1')
                a('v_lshlrev_b32 v15, 4, v4')
                a(f'buffer_load_dwordx4 {v(B1R,4)}, v15, s[52:55], s29 offen'); vm.issue('cs')
                a(f'buffer_load_dwordx4 {v(B1R+4,4)}, v15, s[52:55], s29 offen offset:32'); vm.issue('cs')
    assert not w2q and not w1q, (w2q, w1q)
    stamp(a, 11)
    vm.wait(a, lambda x: x == 'cs')
    for q in range(8):
        a(f'v_lshlrev_b32 v{B1+2*q}, 16, v{B1R+q}')
        a(f'v_and_b32 v{B1+2*q+1}, 0xffff0000, v{B1R+q}')
    for j in range(2):
        b = ST + 4 * j
        for r in range(16):
            a(f'v_fma_f32 v{b+2}, -v{b}, v{CS+r}, v{B1+r}')
            a(f'v_fma_f32 v{ACC+16*j+r}, v{b+1}, v{ACC+16*j+r}, v{b+2}')
            a(f'v_max_f32 v{ACC+16*j+r}, 0, v{ACC+16*j+r}')
            a(f'v_mul_f32 v{ACC+16*j+r}, v{ACC+16*j+r}, v{ACC+16*j+r}')
    PK = 104
    for r in range(16):
        a(f'v_cvt_pk_bf16_f32 v{PK+r}, v{ACC+2*r}, v{ACC+2*r+1}')
    a('v_lshrrev_b32 v13, 4, v3')
    a('s_mov_b32 s18, 55296')
    a('v_mul_lo_u32 v13, v13, s18')
    a('v_and_b32 v14, 15, v3')
    a('v_lshl_add_u32 v13, v14, 4, v13')
    a('v_lshl_add_u32 v13, v4, 8, v13')
    a('s_lshr_b32 s18, s27, 4')
    a('s_mul_i32 s18, s18, 55296')
    a('s_lshl_b32 s17, s14, 2')
    a('s_add_u32 s17, s17, s23')
    a('s_cmp_ge_u32 s17, 54')
    a('s_cselect_b32 s19, 0x40000000, 0')
    a('s_lshl_b32 s17, s17, 10')
    a('s_add_u32 s17, s17, s18')
    a(f's_add_u32 s17, s17, {WS_G}')
    a('s_add_u32 s17, s17, s19')
    a(f's_add_u32 s18, s17, {2*55296}')
    stores2(a, [f'buffer_store_dwordx4 {v(PK,4)}, v13, s[8:11], s17 offen',
                f'buffer_store_dwordx4 {v(PK+4,4)}, v13, s[8:11], s17 offen offset:512',
                f'buffer_store_dwordx4 {v(PK+8,4)}, v13, s[8:11], s18 offen',
                f'buffer_store_dwordx4 {v(PK+12,4)}, v13, s[8:11], s18 offen offset:512'])

def phase_ffn2(a, L, published):
    NST = 7
    vm = VM()
    BF, ACC, AF, T = 16, 128, 168, 16
    def pre():
        lx = lab('w7')
        a('s_cmp_lg_u32 s12, 7')
        a(f's_cbranch_scc1 {lx}')
        a(f's_sub_u32 s47, s47, {(27 + 3)*1024}')
        a(f's_sub_u32 s48, s48, {7*5120}')
        for st in (2, 3):
            for ft in range(5):
                for x in w2_dma(st, ft): a(x)
        a(f's_add_u32 s47, s47, {(27 + 3)*1024}')
        a(f's_add_u32 s48, s48, {7*5120}')
        a.label(lx)
        for st in (2, 3):
            for ft in range(5):
                for x in w2_dma(st, ft): a(x)
    def mask():
        a(f's_and_b32 s40, s{SJ}, 2')
        a('s_cmp_eq_u32 s40, 0')
        a('s_mov_b32 s44, 0x0aaaaaaa')
        a('s_cselect_b32 s44, 0x05555555, s44')
        a('s_mov_b32 s45, 0')
    a(f's_and_b32 s20, s{SJ}, 3')
    a(f's_lshr_b32 s21, s{SJ}, 2')
    a('s_and_b32 s22, s12, 3')
    a('s_lshr_b32 s23, s12, 2')
    a(f's_lshl_b32 s29, s{SG}, 4')
    a('s_lshl_b32 s30, s20, 2')
    a('s_add_u32 s29, s29, s30')
    a('s_add_u32 s29, s29, s22')
    a('s_mul_i32 s32, s29, 55296')
    a('s_mul_i32 s33, s23, 27648')
    a('s_add_u32 s32, s32, s33')
    a(f's_add_u32 s32, s32, {WS_G}')
    a('s_mul_i32 s34, s23, 20480')
    a('v_add_u32 v8, s34, v10')
    a('v_add_u32 v9, 0x10000, v8')
    a('v_add_u32 v11, 0x20000, v8')
    srd(a, 52, 70, D * 2)
    a('v_and_b32 v5, 15, v2')
    a('v_lshrrev_b32 v6, 4, v2')
    a('s_mul_i32 s34, s29, 20480')
    a('s_mul_i32 s35, s21, 2560')
    a('s_add_u32 s34, s34, s35')
    a('s_mul_i32 s35, s23, 1536')
    a('s_add_u32 s34, s34, s35')
    a(f's_add_u32 s34, s34, {WS_H}')
    a('v_lshrrev_b32 v12, 1, v6')
    a('v_lshlrev_b32 v12, 8, v12')
    a('v_lshl_add_u32 v12, v5, 4, v12')
    a('v_and_b32 v13, 1, v6')
    a('v_lshl_add_u32 v12, v13, 3, v12')
    a('s_mul_i32 s35, s21, 160')
    a('s_mul_i32 s36, s23, 96')
    a('s_add_u32 s35, s35, s36')
    a('v_lshlrev_b32 v13, 3, v6')
    sync(a, 2 if published else None, 2, mask, pre, w0_prefetch=False, pr=(253, 254))
    return vm

def ffn2_body(a, L):
    NST = 7
    vm = VM()
    for st in (0, 1, 2, 3):
        for ft in range(5): vm.issue(('w', st))
    BF, ACC, AF, T, HR, BB = 16, 124, 144, 184, 200, 208
    if 'f1stamp' not in gen.EXP: stamp(a, 12)
    def bload(i):
        a(f's_add_u32 s33, s32, {i*1024}')
        a(f'buffer_load_dwordx4 {v(BF+4*i,4)}, v10, s[8:11], s33 offen sc1')
        vm.issue(('b', i))
    NB0 = 6
    for i in range(NB0): bload(i)
    bq = list(range(NB0, 27))
    wq = [(st, ft) for st in range(4, 7) for ft in range(5)]
    def areads(ks, buf):
        st, i = ks >> 2, ks & 3
        for ft in range(5):
            off = F2_SLOT[st] + i * 5120 + ft * 1024
            base = {0: 8, 1: 9, 2: 11}[off >> 16]
            a(f'ds_read_b128 {v(AF+20*buf+4*ft,4)}, v{base} offset:{off & 65535}')
    F2S = 'f2stamp' in gen.EXP
    BX = 6
    WSM = [3, 4, 6, 7, 9, 10, 11, 12, 13, 14, 14, 15, 16, 17, 18]
    if F2S: stamp(a, 2)
    vm.wait(a, lambda x: x == ('w', 0))
    a('s_barrier')
    if F2S: stamp(a, 3)
    areads(0, 0)
    for ks in range(27):
        if F2S and ks in (1, 4, 8, 12, 16, 20, 24): stamp(a, {1: 4, 4: 5, 8: 7, 12: 8, 16: 9, 20: 10, 24: 11}[ks])
        st, i = ks >> 2, ks & 3
        buf = ks & 1
        nxt = ks + 1
        if nxt < 27:
            if (nxt & 3) == 0:
                a('s_waitcnt lgkmcnt(0)')
                vm.wait(a, lambda x: x == ('w', nxt >> 2))
                a('s_barrier')
                areads(nxt, buf ^ 1)
                vm.wait(a, lambda x: x == ('b', ks))
            else:
                areads(nxt, buf ^ 1)
                vm.wait(a, lambda x: x == ('b', ks), ' lgkmcnt(5)')
        else:
            vm.wait(a, lambda x: x == ('b', ks), ' lgkmcnt(0)')
        for ft in range(5):
            acc = v(ACC + 4 * ft, 4)
            a(f'v_mfma_f32_16x16x32_bf16 {acc}, {v(AF+20*buf+4*ft,4)}, {v(BF+4*ks,4)}, {"0" if ks == 0 else acc}')
            if 'oldb' in gen.EXP:
                if ft in (1, 3) and bq and bq[0] <= ks + 12: bload(bq.pop(0))
            elif 'midb' in gen.EXP:
                if (ft == 1 or (ft == 3 and ks < BX)) and bq and bq[0] <= ks + 10: bload(bq.pop(0))
            elif ft == 1 and bq: bload(bq.pop(0))
            WS_ = (0, 2, 4) if ('oldb' in gen.EXP or 'midb' in gen.EXP) else ((2, 4) if (ks & 3) == 3 else (3,))
            if 'wsm' in gen.EXP: WS_ = (3,) * WSM.count(ks) if WSM.count(ks) == 1 else ((2, 4) if WSM.count(ks) == 2 else ())
            if ft in WS_ and wq and (wq[0][0] - 4) < st + (1 if (nxt & 3) == 0 and nxt < 27 else 0):
                x_ = wq.pop(0)
                for x in w2_dma(*x_): a(x)
                vm.issue(('w', x_[0]))
        if ks == 21 and 'wbB' in gen.EXP:
            lw, lw2 = lab('wb'), lab('wb')
            a(f's_cmp_lg_u32 s{SJ}, 0'); a(f's_cbranch_scc1 {lw}')
            a('s_cmp_lg_u32 s12, 7'); a(f's_cbranch_scc1 {lw}')
            a('buffer_wbl2 sc1')
            a(f's_branch {lw2}')
            a.label(lw)
            a('buffer_load_dword v255, v10, s[8:11], s38 offen')
            a.label(lw2)
            vm.issue('wb')
        if ks == 20:
            for i_ in range(3):
                a(f'buffer_load_dwordx2 {v(HR+2*i_,2)}, v12, s[8:11], s34 offen offset:{512*i_} sc1'); vm.issue('hr')
            for i_ in range(3):
                a(f'buffer_load_dwordx2 {v(BB+2*i_,2)}, v13, s[52:55], s35 offen offset:{32*i_}'); vm.issue('hr')
    assert not bq and not wq, (bq, wq)
    if 'f1stamp' not in gen.EXP: stamp(a, 13)
    XB = 81920
    a('s_mul_i32 s40, s12, 3072')
    a(f's_add_u32 s40, s40, {XB}')
    a('v_add_u32 v14, s40, v10')
    l1, l2 = lab('fx'), lab('fx')
    a('s_nop 7')
    a('s_cmp_eq_u32 s23, 0')
    a(f's_cbranch_scc0 {l1}')
    for i_, ft in enumerate((3, 4)): a(f'ds_write_b128 v14, {v(ACC+4*ft,4)} offset:{1024*i_}')
    a(f's_branch {l2}')
    a.label(l1)
    for ft in range(3): a(f'ds_write_b128 v14, {v(ACC+4*ft,4)} offset:{1024*ft}')
    a('s_waitcnt lgkmcnt(0)')
    for r in range(8): a(f'v_mov_b32 v{ACC+r}, v{ACC+12+r}')
    a.label(l2)
    a('s_xor_b32 s40, s12, 4')
    a('s_mul_i32 s40, s40, 3072')
    a(f's_add_u32 s40, s40, {XB}')
    a('v_add_u32 v14, s40, v10')
    a('s_waitcnt lgkmcnt(0)')
    a('s_barrier')
    for i_ in range(3): a(f'ds_read_b128 {v(T+4*i_,4)}, v14 offset:{1024*i_}')
    vm.wait(a, lambda x: x == 'hr', ' lgkmcnt(0)')
    for r in range(12): a(f'v_add_f32 v{ACC+r}, v{ACC+r}, v{T+r}')
    for i_ in range(3):
        for h2 in range(2):
            a(f'v_lshlrev_b32 v{T}, 16, v{HR+2*i_+h2}')
            a(f'v_and_b32 v{T+1}, 0xffff0000, v{HR+2*i_+h2}')
            a(f'v_lshlrev_b32 v{T+2}, 16, v{BB+2*i_+h2}')
            a(f'v_and_b32 v{T+3}, 0xffff0000, v{BB+2*i_+h2}')
            a(f'v_add_f32 v{ACC+4*i_+2*h2}, v{ACC+4*i_+2*h2}, v{T+2}')
            a(f'v_add_f32 v{ACC+4*i_+2*h2+1}, v{ACC+4*i_+2*h2+1}, v{T+3}')
            a(f'v_add_f32 v{ACC+4*i_+2*h2}, v{ACC+4*i_+2*h2}, v{T}')
            a(f'v_add_f32 v{ACC+4*i_+2*h2+1}, v{ACC+4*i_+2*h2+1}, v{T+1}')
    for i_ in range(6): a(f'v_cvt_pk_bf16_f32 v{T+4+i_}, v{ACC+2*i_}, v{ACC+2*i_+1}')
    a('s_lshl_b32 s33, s29, 4')
    a('v_add_u32 v7, s33, v5')
    a('s_movk_i32 s34, 1280')
    a('v_mul_lo_u32 v7, v7, s34')
    a('v_lshl_add_u32 v7, v6, 3, v7')
    a('s_mul_i32 s34, s21, 160')
    a('s_mul_i32 s35, s23, 96')
    a('s_add_u32 s34, s34, s35')
    a('s_cmp_eq_u32 s23, 0')
    a('s_cselect_b32 s35, s34, 0x7ff00000')
    OW = ' sc1' if 'outsc1' in gen.EXP else (' nt' if 'outnt' in gen.EXP else '')
    a(f'buffer_store_dwordx2 {v(T+4,2)}, v7, s[76:79], s34 offen' + OW)
    a(f'buffer_store_dwordx2 {v(T+6,2)}, v7, s[76:79], s34 offen offset:32' + OW)
    a(f'buffer_store_dwordx2 {v(T+8,2)}, v7, s[76:79], s35 offen offset:64' + OW)

def kf():
    a = Asm()
    merged = 'merge' in gen.EXP
    L = NAME + '_kernel' if merged else 'kf_kernel'
    kernel_begin(a, L)
    a('s_cmp_ge_u32 s2, 256')
    a(f's_cbranch_scc1 {L}_end')
    if merged:
        import gen5
        if gen.PROF: a('v_mov_b32 v254, v0')
        gen5.k1s(a, '.Ljoin')
        a.label('.Ljoin')
        a('s_waitcnt vmcnt(0) lgkmcnt(0)')
        a('s_barrier')
        if gen.PROF:
            srd(a, 8, 4, WS_END)
            stamp_flush(a, 1, 12, 8, 12)
            a('v_mov_b32 v0, v254')
            a('s_waitcnt vmcnt(0)')
        lj, lp, ld = lab('gb'), lab('gb'), lab('gb')
        a('s_cmp_lg_u32 s12, 0')
        a(f's_cbranch_scc1 {lj}')
        a(f's_load_dwordx2 s[20:21], s[0:1], {A_DBG}')
        a('s_and_b32 s40, s2, 7')
        a('s_lshl_b32 s40, s40, 5')
        a('v_mov_b32 v5, s40')
        a('v_mov_b32 v6, 1')
        a('v_and_b32 v7, 7, v0')
        a('v_lshlrev_b32 v7, 5, v7')
        a('s_waitcnt lgkmcnt(0)')
        a('s_mov_b64 exec, 1')
        a('global_atomic_add v5, v6, s[20:21] sc1')
        a('s_mov_b64 exec, 0xff')
        a('s_mov_b32 s41, 0')
        a.label(lp)
        a('global_load_dword v8, v7, s[20:21] sc1')
        a('s_add_u32 s41, s41, 1')
        a('s_waitcnt vmcnt(0)')
        a('v_cmp_ne_u32 vcc, 32, v8')
        a(f's_cbranch_vccz {ld}')
        a(f's_cmp_lt_u32 s41, {SPIN_MAX}')
        a(f's_cbranch_scc1 {lp}')
        a.label(ld)
        a('s_mov_b64 exec, -1')
        a.label(lj)
        a('s_barrier')
    stamp(a, 0, True); stamp(a, 1)
    if 'dbg' in gen.EXP:
        a('s_memrealtime s[90:91]'); a('s_memtime s[92:93]'); a(f's_load_dwordx2 s[94:95], s[0:1], {A_DBG}')
    if 'nocodepf' not in gen.EXP and not merged:
        code_touch(a, L, '.Lkf_last', '.Lpc_kf', 144, 151, 2)
    a(f's_load_dwordx2 s[4:5], s[0:1], {A_WS}')
    a(f's_load_dwordx2 s[68:69], s[0:1], {A_X}')
    a(f's_load_dwordx2 s[70:71], s[0:1], {A_OUT}')
    a(f's_and_b32 s{SG}, s2, 7')
    a(f's_lshr_b32 s{SJ}, s2, 3')
    a(f's_mov_b32 s{SH}, s{SJ}')
    a(f's_mov_b32 s{SR}, s{SG}')
    a('v_lshrrev_b32 v1, 6, v0')
    a('v_and_b32 v2, 63, v0')
    a('v_readfirstlane_b32 s12, v1')
    a('v_and_b32 v3, 31, v2')
    a('v_lshrrev_b32 v4, 5, v2')
    a(f's_getreg_b32 s{SPURE}, hwreg(HW_REG_XCC_ID, 0, 4)')
    a(f's_add_u32 s{SPURE}, s{SPURE}, 1')
    attn_setup(a, SH, SR, 12, 8, defer=True)
    a('s_waitcnt lgkmcnt(0)')
    srd(a, 8, 4, WS_END)
    attn_dma(a, 0, 8)
    attn_qloads(a, 8)
    srd(a, 72, 68, S * D * 2)
    srd(a, 76, 70, S * D * 2)
    a(f's_load_dwordx2 s[68:69], s[0:1], {A_B1}')
    a(f's_load_dwordx2 s[70:71], s[0:1], {A_B2}')
    stamp(a, 2)
    phase_attn(a, L)
    phase_oproj(a)
    stamp(a, 5)
    a(f's_cmp_ge_u32 s{SJ}, 28')
    a(f's_cbranch_scc1 {L}_idle')
    phase_ffn1(a, None)
    phase_ffn2(a, L, True)
    a(f's_branch {L}_f2')
    a.label(f'{L}_idle')
    a('s_waitcnt vmcnt(0)')
    a('s_barrier')
    li = lab('id')
    a('s_cmp_lg_u32 s12, 0')
    a(f's_cbranch_scc1 {li}')
    flag_store(a, 1, 14)
    a.label(li)
    if 'wbA' in gen.EXP:
        lw = lab('wb')
        a(f's_cmp_lg_u32 s{SJ}, 28'); a(f's_cbranch_scc1 {lw}')
        a('s_cmp_lg_u32 s12, 1'); a(f's_cbranch_scc1 {lw}')
        a('s_sleep 40')
        a('buffer_wbl2 sc1')
        a('s_waitcnt vmcnt(0)')
        a.label(lw)
    w2_setup(a)
    for st in (0, 1):
        for ft in range(5):
            for x in w2_dma(st, ft): a(x)
    a('s_waitcnt vmcnt(0)')
    phase_ffn2(a, L, False)
    a.label(f'{L}_f2')
    ffn2_body(a, L)
    a.label(f'{L}_fin')
    if 'f1stamp' not in gen.EXP: stamp(a, 14)
    if 'dbg' in gen.EXP:
        a('s_waitcnt vmcnt(0)')
        a('s_memrealtime s[96:97]'); a('s_memtime s[86:87]'); a('s_waitcnt lgkmcnt(0)')
        ldb = lab('db')
        a('s_cmp_lg_u32 s2, 0'); a(f's_cbranch_scc1 {ldb}'); a('s_cmp_lg_u32 s12, 0'); a(f's_cbranch_scc1 {ldb}')
        a('s_sub_u32 s96, s96, s90'); a('s_sub_u32 s86, s86, s92')
        a('v_mov_b32 v0, 0'); a('v_mov_b32 v2, s96'); a('v_mov_b32 v3, s86'); a('v_mov_b32 v4, s90'); a('v_mov_b32 v5, 0')
        a('global_store_dwordx4 v0, v[2:5], s[94:95] offset:16')
        a(f's_mov_b32 s86, {WS_PROF}')
        a('buffer_load_dwordx4 v[6:9], v0, s[8:11], s86 offen')
        a('s_waitcnt vmcnt(0)')
        a('global_store_dwordx4 v0, v[6:9], s[94:95]')
        a.label(ldb)
    if gen.PROF: a('s_waitcnt vmcnt(0)')
    stamp(a, 6, True)
    if 'dbgst' in gen.EXP:
        ldb = lab('db')
        a(f's_load_dwordx2 s[20:21], s[0:1], {A_DBG}')
        a('s_waitcnt lgkmcnt(0)')
        a('s_cmp_lg_u32 s2, 8'); a(f's_cbranch_scc1 {ldb}'); a('s_cmp_lg_u32 s12, 0'); a(f's_cbranch_scc1 {ldb}')
        a('v_mbcnt_lo_u32_b32 v0, -1, 0'); a('v_mbcnt_hi_u32_b32 v0, -1, v0'); a('v_mov_b32 v1, 0')
        for i in range(16):
            src = PS + i if i != 15 else PS + 1
            a(f's_sub_u32 s22, s{src}, s{PS+1}') if i not in (0, 6) else a(f's_mov_b32 s22, s{src}')
            a('v_mov_b32 v2, s22'); a(f'v_cmp_eq_u32 vcc, {i}, v0'); a('v_cndmask_b32 v1, v1, v2, vcc')
        a('v_lshlrev_b32 v0, 2, v0')
        if 'dbgk1' in gen.EXP:
            a(f's_mov_b32 s22, {WS_PROF - 8}')
            a('buffer_load_dword v3, v0, s[8:11], s22 offen')
            a('s_waitcnt vmcnt(0)')
            a('v_cmp_lt_u32 vcc, 7, v0'); a('v_cmp_gt_u32 s[22:23], 28, v0'); a('s_and_b64 vcc, vcc, s[22:23]')
            a('v_cndmask_b32 v1, v1, v3, vcc')
        a('s_mov_b64 exec, 0xffff')
        a('global_store_dword v0, v1, s[20:21]')
        a('s_mov_b64 exec, -1')
        a.label(ldb)
    else:
        stamp_flush(a, 2, 15, 8, 12)
    a.label(f'{L}_end')
    a('s_endpgm')
    attn_fallback(a)
    a.label('.Lkf_last')
    a('s_endpgm')
    if merged: return a, descriptor(L, 256, 102), '; @launch grid=(256,1,1) block=(512,1,1) lds=163840'
    return a, descriptor(L, 256, 102), f'; @launch kernel={L} grid=(256,1,1) block=(512,1,1) lds=163840'

if __name__ == '__main__':
    if 'prof' in sys.argv: gen.PROF = True
    for x in sys.argv[2:]:
        if x.startswith('x:'): gen.EXP.add(x[2:])
    out = sys.argv[1]
    import gen4, gen5
    ks_ = [kf] if 'merge' in gen.EXP else ([k0, k1, kf] if 'old' in gen.EXP else [gen4.k1p if 'k1p' in gen.EXP else gen5.k1s, kf])
    open(out, 'w').write(build(ks_))
    print('wrote', out)
```

```python
import sys
sys.path.insert(0, 'dev')
import gen
from gen import *
from gen2 import lab
from gen3 import VM
from asmlib import *

PK_LDS = 131072
TB_LDS = PK_LDS + 24576
ST_T = TB_LDS
CS_T = TB_LDS + 1024

def k1s(a=None, join=None):
    WT = '' if 'k1plain' in gen.EXP else ' sc1'
    merged = a is not None
    L = 'k1_kernel' if not merged else '.Lk1'
    NS = 4
    if not merged:
        a = Asm()
        kernel_begin(a, L)
        a('s_cmp_ge_u32 s2, 256')
        a(f's_cbranch_scc1 {L}_end')
    def finish():
        if merged: a(f's_branch {join}')
        else: a('s_endpgm')
    stamp(a, 0, True); stamp(a, 1)
    def code_pf(tag):
        if merged or 'nok1pf' in gen.EXP: return 0
        code_touch(a, L, '.Lkf_last' if 'k1pfall' in gen.EXP else f'{L}_end', '.Lpc_k1' + tag, 144, 151, 2 if 'k1pfall' in gen.EXP else 1)
        return 2 if 'k1pfall' in gen.EXP else 1
    if 'k1pflate' not in gen.EXP: code_pf('')
    a(f's_load_dwordx2 s[24:25], s[0:1], {A_X}')
    a(f's_load_dwordx2 s[26:27], s[0:1], {A_WQKV}')
    a(f's_load_dwordx2 s[4:5], s[0:1], {A_WS}')
    a(f's_load_dwordx2 s[28:29], s[0:1], {A_WO}')
    a(f's_load_dwordx2 s[30:31], s[0:1], {A_W1}')
    a(f's_load_dwordx2 s[32:33], s[0:1], {A_W2}')
    a('s_and_b32 s15, s2, 7')
    a('s_lshr_b32 s16, s2, 3')
    a('s_and_b32 s13, s15, 3')
    a('s_lshl_b32 s13, s13, 2')
    a('s_and_b32 s17, s16, 3')
    a('s_add_u32 s13, s13, s17')
    a('s_lshr_b32 s14, s15, 2')
    a('s_lshl_b32 s14, s14, 3')
    a('s_lshr_b32 s17, s16, 2')
    a('s_add_u32 s14, s14, s17')
    a('v_lshrrev_b32 v1, 6, v0')
    a('v_and_b32 v2, 63, v0')
    a('v_readfirstlane_b32 s12, v1')
    a('v_and_b32 v3, 31, v2')
    a('v_lshrrev_b32 v4, 5, v2')
    a('v_lshlrev_b32 v10, 4, v2')
    a('s_and_b32 s23, s12, 3')
    if merged:
        from gen2 import WS_XT
        li = lab('in')
        a('s_cmp_lg_u32 s12, 0')
        a(f's_cbranch_scc1 {li}')
        a('s_waitcnt lgkmcnt(0)')
        srd(a, 8, 4, WS_END)
        a('s_and_b32 s40, s2, 7')
        a('s_lshl_b32 s40, s40, 7')
        a('s_lshr_b32 s41, s2, 3')
        a('s_lshl_b32 s41, s41, 2')
        a('s_add_u32 s40, s40, s41')
        a(f's_add_u32 s40, s40, {WS_FLAG}')
        a('v_lshlrev_b32 v5, 10, v2')
        a(f'v_mov_b32 v6, {WS_XT - WS_FLAG}')
        a('v_cmp_eq_u32 vcc, 3, v2')
        a('v_cndmask_b32 v5, v5, v6, vcc')
        a('s_getreg_b32 s41, hwreg(HW_REG_XCC_ID, 0, 4)')
        a('s_add_u32 s41, s41, 1')
        a('v_mov_b32 v6, 0')
        a('v_mov_b32 v7, s41')
        a('v_cndmask_b32 v6, v6, v7, vcc')
        a('s_mov_b64 exec, 15')
        a('buffer_store_dword v6, v5, s[8:11], s40 offen sc1')
        a('s_mov_b64 exec, -1')
        a.label(li)
    a('s_cmp_lt_u32 s12, 4')
    a(f's_cbranch_scc1 {L}_compute')
    a('v_lshrrev_b32 v5, 3, v2')
    a('s_lshl_b32 s40, s23, 3')
    a('v_add_u32 v5, s40, v5')
    a('v_lshrrev_b32 v6, 4, v2')
    a('s_lshl_b32 s40, s23, 2')
    a('v_add_u32 v7, s40, v6')
    a('v_and_b32 v7, 7, v7')
    a('v_and_b32 v8, 7, v2')
    a('v_xor_b32 v7, v7, v8')
    a('s_movk_i32 s40, 1280')
    a('v_mul_lo_u32 v5, v5, s40')
    a('v_lshl_add_u32 v5, v7, 4, v5')
    a('s_mul_i32 s35, s13, 163840')
    a('s_lshl_b32 s40, s23, 2')
    a('v_add_u32 v7, s40, v6')
    a('s_movk_i32 s40, 3840')
    a('v_mul_lo_u32 v7, v7, s40')
    a('v_and_b32 v8, 15, v2')
    a('v_lshlrev_b32 v9, 2, v6')
    a('v_xor_b32 v8, v8, v9')
    a('v_lshl_add_u32 v6, v8, 4, v7')
    a('s_lshl_b32 s36, s14, 8')
    a('s_lshl_b32 s37, s23, 10')
    a('s_waitcnt lgkmcnt(0)')
    srd(a, 56, 24, S * D * 2)
    srd(a, 60, 26, D * 3 * D * 2)
    srd(a, 8, 4, WS_END)
    def operand_touch(srdx, srdw, vt, vd):
        if 'notouchk1' in gen.EXP: return 0
        lx, ld_ = lab('ot'), lab('ot')
        a('s_sub_u32 s40, s12, 4')
        a('s_cmp_lt_u32 s40, 3')
        a(f's_cbranch_scc0 {lx}')
        a('s_lshl_b32 s40, s40, 6')
        a(f'v_add_u32 v{vt}, s40, v2')
        a(f's_mov_b32 s41, {magic(10)}')
        a(f'v_mul_hi_u32 v{vt+1}, v{vt}, s41')
        a(f'v_mul_u32_u24 v{vt+2}, 10, v{vt+1}')
        a(f'v_sub_u32 v{vt+2}, v{vt}, v{vt+2}')
        a('s_lshr_b32 s41, s16, 2')
        a('s_lshl_b32 s41, s41, 4')
        a('s_lshl_b32 s40, s13, 7')
        a('s_add_u32 s41, s41, s40')
        a(f'v_add_u32 v{vt+1}, s41, v{vt+1}')
        a('s_movk_i32 s41, 1280')
        a(f'v_mul_lo_u32 v{vt+1}, v{vt+1}, s41')
        a(f'v_lshl_add_u32 v{vt+1}, v{vt+2}, 7, v{vt+1}')
        a(f'v_mov_b32 v{vt+2}, 0x7ff00000')
        a(f'v_cmp_gt_u32 vcc, 160, v{vt}')
        a(f'v_cndmask_b32 v{vt+1}, v{vt+2}, v{vt+1}, vcc')
        a(f'buffer_load_dword v{vd}, v{vt+1}, s[{srdx}:{srdx+3}], 0 offen')
        a(f's_branch {ld_}')
        a.label(lx)
        a('s_add_u32 s40, s12, 1')
        a('s_cmp_eq_u32 s12, 7')
        a('s_cselect_b32 s40, 0, s40')
        a('s_lshl_b32 s40, s40, 6')
        a(f'v_add_u32 v{vt}, s40, v2')
        a(f'v_lshrrev_b32 v{vt+1}, 1, v{vt}')
        a('s_and_b32 s41, s16, 3')
        a('s_mul_i32 s41, s41, 160')
        a(f'v_add_u32 v{vt+1}, s41, v{vt+1}')
        a('s_movk_i32 s41, 3840')
        a(f'v_mul_lo_u32 v{vt+1}, v{vt+1}, s41')
        a(f'v_and_b32 v{vt+2}, 1, v{vt}')
        a(f'v_lshl_add_u32 v{vt+1}, v{vt+2}, 7, v{vt+1}')
        a('s_lshl_b32 s41, s14, 8')
        a('s_cmp_lt_u32 s14, 15')
        a('s_cselect_b32 s41, s41, 0x7ff00000')
        a(f'buffer_load_dword v{vd}, v{vt+1}, s[{srdw}:{srdw+3}], s41 offen')
        a.label(ld_)
        return 1
    vm = VM()
    def dma(st, k):
        slot = (st % NS) * 32768
        if k < 4:
            a(f's_add_u32 m0, s37, {slot + k*4096}')
            a(f's_add_u32 s38, s35, {st*128 + k*32*1280}')
            a('buffer_load_dwordx4 v5, s[56:59], s38 offen lds')
        else:
            a(f's_add_u32 m0, s37, {slot + 16384 + (k-4)*4096}')
            a(f's_add_u32 s38, s36, {(st*64 + (k-4)*16)*3840}')
            a('buffer_load_dwordx4 v6, s[60:63], s38 offen lds')
        vm.issue(('r', st))
    def decode():
        l1_, l2_, ld = lab('pk'), lab('pk'), lab('pk')
        a('s_cmp_lt_u32 s2, 40')
        a(f's_cbranch_scc0 {l1_}')
        srd(a, 64, 28, D * D * 2)
        a(f's_mul_hi_u32 s46, s2, {magic(10)}')
        a('s_mul_i32 s47, s46, 10')
        a('s_sub_u32 s47, s2, s47')
        a('s_movk_i32 s41, 160'); a('s_movk_i32 s42, 1280'); a(f's_mov_b32 s44, {WS_WO}'); a('s_movk_i32 s45, 20480')
        a(f's_branch {ld}')
        a.label(l1_)
        a('s_cmp_lt_u32 s2, 148')
        a(f's_cbranch_scc0 {l2_}')
        srd(a, 64, 30, D * F * 2)
        a('s_sub_u32 s40, s2, 40')
        a(f's_mul_hi_u32 s46, s40, {magic(27)}')
        a('s_mul_i32 s47, s46, 27')
        a('s_sub_u32 s47, s40, s47')
        a('s_movk_i32 s41, 160'); a('s_movk_i32 s42, 3456'); a(f's_mov_b32 s44, {WS_W1}'); a('s_movk_i32 s45, 20480')
        a(f's_branch {ld}')
        a.label(l2_)
        srd(a, 64, 32, F * D * 2)
        a('s_sub_u32 s40, s2, 148')
        a(f's_mul_hi_u32 s46, s40, {magic(10)}')
        a('s_mul_i32 s47, s46, 10')
        a('s_sub_u32 s47, s40, s47')
        a('s_movk_i32 s41, 192'); a('s_movk_i32 s42, 1280'); a(f's_mov_b32 s44, {WS_W2}'); a('s_mov_b32 s45, 55296')
        a.label(ld)
        a('s_mul_i32 s43, s46, s41')
        a('s_lshr_b32 s48, s43, 3')
        a('s_mul_i32 s43, s43, s42')
        a('s_lshl_b32 s40, s47, 7')
        a('s_add_u32 s43, s43, s40')
        a('s_lshl_b32 s40, s47, 2')
        a('s_mul_i32 s40, s40, s45')
        a('s_add_u32 s44, s44, s40')
        a('s_lshl_b32 s40, s48, 8')
        a('s_add_u32 s44, s44, s40')
    def pack_dma_setup():
        a('v_lshrrev_b32 v11, 3, v2')
        a('s_lshl_b32 s40, s23, 3')
        a('v_add_u32 v11, s40, v11')
        a('v_mul_lo_u32 v11, v11, s42')
        a('v_and_b32 v12, 7, v2')
        a('v_lshl_add_u32 v11, v12, 4, v11')
        a('s_cmp_lt_u32 s2, 238')
        a('s_cselect_b32 s49, s43, 0x7ff00000')
        a('s_lshl_b32 s50, s42, 5')
    def pack_dma_one(i):
        a(f's_add_u32 m0, s37, {PK_LDS + i*4096}')
        a('s_nop 0')
        a('buffer_load_dwordx4 v11, s[64:67], s49 offen lds')
        a('s_add_u32 s49, s49, s50')
    def pack_dma():
        pack_dma_setup()
        for i in range(6): pack_dma_one(i)
    def pack_setup():
        a('v_lshrrev_b32 v12, 4, v2')
        a('v_lshrrev_b32 v13, 2, v2')
        a('v_and_b32 v13, 3, v13')
        a('v_lshl_add_u32 v12, v12, 3, v13')
        a('v_lshlrev_b32 v12, 7, v12')
        a('v_and_b32 v13, 3, v2')
        a('v_lshl_add_u32 v12, v13, 3, v12')
        a('s_lshl_b32 s49, s23, 5')
        a(f's_add_u32 s49, s49, {PK_LDS}')
        a('v_add_u32 v12, s49, v12')
        a('s_mul_i32 s54, s23, s45')
        a('s_add_u32 s54, s54, s44')
        a('s_cmp_lt_u32 s2, 238')
        a('s_cselect_b32 s54, s54, 0x7ff00000')
        a('s_cmp_gt_u32 s41, 160')
        a('s_cselect_b32 s55, s54, 0x7ff00000')
    def pack_read(i, T):
        a(f'ds_read_b64_tr_b16 {v(T,2)}, v12 offset:{i*4096}')
        a(f'ds_read_b64_tr_b16 {v(T+2,2)}, v12 offset:{i*4096 + 512}')
    def pack_store(i, T):
        a(f's_add_u32 s49, {"s54" if i < 5 else "s55"}, {i*1024}')
        a(f'buffer_store_dwordx4 {v(T,4)}, v10, s[8:11], s49 offen' + WT)
    def pack_work(T):
        pack_setup()
        for i in range(6): pack_read(i, T + 4*i)
        a('s_waitcnt lgkmcnt(0)')
        for i in range(6): pack_store(i, T + 4*i)
    lz = f'{L}_nogemm'
    a('s_cmp_ge_u32 s14, 15')
    a(f's_cbranch_scc1 {lz}')
    for st in range(2):
        for k in range(4): dma(st, k)
    if 'k1pflate' in gen.EXP:
        for _ in range(code_pf('h')): vm.issue('code')
    if operand_touch(56, 60, 96, 100): vm.issue('touch')
    decode()
    pack_dma_setup()
    VB = 14
    a('v_lshrrev_b32 v7, 1, v3')
    a('v_and_b32 v7, 7, v7')
    a('s_lshl_b32 s40, s23, 12')
    a('v_lshlrev_b32 v8, 7, v3')
    a('v_add_u32 v8, s40, v8')
    for ks in range(4):
        a(f'v_or_b32 v9, {2*ks}, v4')
        a('v_xor_b32 v9, v9, v7')
        a(f'v_lshl_add_u32 v{VB+ks}, v9, 4, v8')
        a(f'v_add_u32 v{VB+4+ks}, 0x10000, v{VB+ks}')
    XS, S1, T = 24, 40, 44
    for r in range(4): a(f'v_mov_b32 v{S1+r}, 0')
    pend = [(st, k) for st in range(2, 10) for k in range(4)]
    stamp(a, 2)
    vm.wait(a, lambda x: x == ('r', 0))
    a('s_barrier')
    stamp(a, 3)
    for st in range(10):
        off = (st % NS) * 32768
        hi = off >= 65536
        if hi: off -= 65536
        for ks in range(4): a(f'ds_read_b128 {v(XS+4*ks,4)}, v{VB+(4 if hi else 0)+ks} offset:{off}')
        n_iss = 8 if st == 0 else 4
        todo = []
        while pend and pend[0][0] <= st + NS - 1 and len(todo) < n_iss: todo.append(pend.pop(0))
        if todo: dma(*todo.pop(0))
        a('s_waitcnt lgkmcnt(0)')
        for r in range(16):
            src = XS + r; t = T + 2 * (r & 1); acc = S1 + (r & 1)
            if 'k1nostat' not in gen.EXP:
                a(f'v_lshlrev_b32 v{t}, 16, v{src}'); a(f'v_and_b32 v{t+1}, 0xffff0000, v{src}')
                a(f'v_add_f32 v{acc}, v{acc}, v{t}'); a(f'v_fmac_f32 v{acc+2}, v{t}, v{t}')
                a(f'v_add_f32 v{acc}, v{acc}, v{t+1}'); a(f'v_fmac_f32 v{acc+2}, v{t+1}, v{t+1}')
            if todo and ((r & 3) == 3 or (st == 0 and (r & 1))): dma(*todo.pop(0))
        while todo: dma(*todo.pop(0))
        if st <= 2 and 'k1nopk' not in gen.EXP:
            for i in (2*st, 2*st+1):
                pack_dma_one(i); vm.issue('pk')
        if st + 1 < 10:
            if st == 3 and 'k1nopk' not in gen.EXP: vm.wait(a, lambda x: x == ('r', 4) or x == 'pk')
            else: vm.wait(a, lambda x: x == ('r', st + 1))
            a('s_barrier')
    a(f'v_add_f32 v{S1}, v{S1}, v{S1+1}')
    a(f'v_add_f32 v{S1+2}, v{S1+2}, v{S1+3}')
    for r in (0, 2):
        a(f'v_mov_b32 v{T}, v{S1+r}'); a(f'v_mov_b32 v{T+1}, v{S1+r}')
        a(f'v_permlane32_swap_b32 v{T}, v{T+1}')
        a(f'v_add_f32 v{S1+r}, v{T}, v{T+1}')
    a(f'v_mul_f32 v{S1}, {f2hex(1.0/640)}, v{S1}')
    a(f'v_mul_f32 v{S1+1}, {f2hex(1.0/640)}, v{S1+2}')
    a(f'v_fma_f32 v{S1+1}, -v{S1}, v{S1}, v{S1+1}')
    a(f'v_max_f32 v{S1+1}, 0, v{S1+1}')
    a(f'v_add_f32 v{S1+1}, 0x3727c5ac, v{S1+1}')
    a(f'v_rsq_f32 v{S1+1}, v{S1+1}')
    a(f'v_mul_f32 v{S1}, v{S1}, v{S1+1}')
    a('s_lshl_b32 s40, s23, 7')
    a(f's_add_u32 s40, s40, {ST_T}')
    a('v_lshlrev_b32 v7, 2, v3')
    a('v_add_u32 v7, s40, v7')
    a(f'ds_write_b32 v7, v{S1}')
    a(f'ds_write_b32 v7, v{S1+1} offset:512')
    a('s_waitcnt lgkmcnt(0)')
    a('s_barrier')
    finish()
    a.label(lz)
    decode()
    pack_dma()
    if not merged:
        a('v_lshlrev_b32 v1, 4, v2')
        a('s_lshl_b32 s40, s23, 10')
        a('v_add_u32 v1, s40, v1')
        for r in range(4): a(f'v_mov_b32 v{100+r}, 0')
        a(f's_mov_b32 s17, {WS_FLAG}')
        a('buffer_store_dwordx4 v[100:103], v1, s[8:11], s17 offen')
        a('buffer_store_dwordx4 v[100:103], v1, s[8:11], s17 offen offset:4095' if False else 's_add_u32 s17, s17, 4096')
        a('buffer_store_dwordx4 v[100:103], v1, s[8:11], s17 offen')
    a('s_waitcnt vmcnt(0)')
    a('s_barrier')
    pack_work(48)
    finish()
    a.label(f'{L}_compute')
    a('s_cmp_ge_u32 s14, 15')
    if merged:
        lq = lab('ng')
        a(f's_cbranch_scc0 {lq}')
        a('s_barrier')
        finish()
        a.label(lq)
    else:
        a(f's_cbranch_scc1 {L}_end')
    a('s_and_b32 s21, s12, 1')
    a('s_lshr_b32 s22, s12, 1')
    a('v_lshrrev_b32 v6, 4, v2')
    a('s_lshl_b32 s40, s23, 2')
    a('v_add_u32 v7, s40, v6')
    a('s_movk_i32 s40, 3840')
    a('v_mul_lo_u32 v7, v7, s40')
    a('v_and_b32 v8, 15, v2')
    a('v_lshlrev_b32 v9, 2, v6')
    a('v_xor_b32 v8, v8, v9')
    a('v_lshl_add_u32 v6, v8, 4, v7')
    a('s_lshl_b32 s36, s14, 8')
    a('s_lshl_b32 s37, s23, 10')
    a('s_waitcnt lgkmcnt(0)')
    srd(a, 60, 26, D * 3 * D * 2)
    vc = VM()
    def wdma(st, k):
        slot = (st % NS) * 32768
        a(f's_add_u32 m0, s37, {slot + 16384 + k*4096}')
        a(f's_add_u32 s38, s36, {(st*64 + k*16)*3840}')
        a('buffer_load_dwordx4 v6, s[60:63], s38 offen lds')
        vc.issue(('r', st))
    for st in range(2):
        for k in range(4): wdma(st, k)
    if 'k1pflate' in gen.EXP:
        for _ in range(code_pf('c')): vc.issue('code')
    if operand_touch(60, 60, 136, 150): vc.issue('touch')
    base_ops = list(vc.ops)
    VB, VA = 14, 22
    a('v_lshrrev_b32 v7, 1, v3')
    a('v_and_b32 v7, 7, v7')
    a('s_lshl_b32 s40, s22, 13')
    a('v_lshlrev_b32 v8, 7, v3')
    a('v_add_u32 v8, s40, v8')
    for ks in range(4):
        a(f'v_or_b32 v9, {2*ks}, v4')
        a('v_xor_b32 v9, v9, v7')
        a(f'v_lshl_add_u32 v{VB+ks}, v9, 4, v8')
        a(f'v_add_u32 v{VB+4+ks}, 0x10000, v{VB+ks}')
    a('v_lshrrev_b32 v7, 2, v2')
    a('v_and_b32 v7, 3, v7')
    a('v_and_b32 v8, 3, v2')
    a('v_and_b32 v9, 1, v8')
    a('v_lshlrev_b32 v9, 1, v9')
    a('v_lshrrev_b32 v11, 1, v8')
    a('v_or_b32 v9, v9, v11')
    a('s_cmp_lt_u32 s14, 10')
    a('s_cselect_b64 vcc, -1, 0')
    a('v_cndmask_b32 v8, v8, v9, vcc')
    a('v_lshrrev_b32 v9, 4, v2')
    a('v_and_b32 v9, 1, v9')
    a('v_lshl_add_u32 v8, v9, 2, v8')
    a('v_lshl_add_u32 v12, v4, 3, v7')
    a('v_lshlrev_b32 v12, 8, v12')
    a('v_and_b32 v13, 1, v8')
    a('v_lshl_add_u32 v12, v13, 3, v12')
    a('v_lshrrev_b32 v8, 1, v8')
    a('v_lshlrev_b32 v11, 2, v7')
    for aa in range(2):
        a(f's_xor_b32 s40, s22, {aa}')
        a('s_lshl_b32 s41, s21, 1')
        a('s_add_u32 s40, s40, s41')
        a(f's_mov_b32 s{50+aa}, s40')
        a('s_lshl_b32 s40, s40, 2')
        a('v_add_u32 v9, s40, v8')
        a('v_xor_b32 v9, v9, v11')
        a(f'v_lshl_add_u32 v{VA+2*aa}, v9, 4, v12')
        a(f'v_add_u32 v{VA+2*aa}, 16384, v{VA+2*aa}')
        a(f'v_add_u32 v{VA+2*aa+1}, 0x10000, v{VA+2*aa}')
    SEL, CSA = 28, 32
    a(f'v_mov_b32 v{SEL}, 0')
    a('s_mov_b32 s52, 0x00020001')
    a('s_mov_b32 s53, 0x00020001')
    a('v_mov_b32 v7, 0x3f803f80')
    a(f'v_cndmask_b32 v{SEL}, v{SEL}, v7, s[52:53]')
    for r in range(1, 4): a(f'v_mov_b32 v{SEL+r}, v{SEL}')
    for r in range(4): a(f'v_mov_b32 v{CSA+r}, 0')
    ACC, FA, FB, T = 40, 104, 120, 136
    a('s_waitcnt lgkmcnt(0)')
    srd(a, 8, 4, WS_END)
    a('s_mov_b32 s56, s50'); a('s_mov_b32 s57, s51')
    decode()
    pack_setup()
    PKT, CS4, ONES = 140, 152, 156
    for r in range(4):
        a(f'v_mov_b32 v{CS4+r}, 0'); a(f'v_mov_b32 v{ONES+r}, 0x3f803f80')
    def w1_colsum_store():
        a('s_sub_u32 s40, s2, 40')
        a('s_mul_i32 s58, s46, 6912')
        a('s_lshl_b32 s59, s47, 8')
        a('s_add_u32 s58, s58, s59')
        a('s_lshl_b32 s59, s23, 6')
        a('s_add_u32 s58, s58, s59')
        a(f's_add_u32 s58, s58, {WS_CS1}')
        a('s_cmp_lt_u32 s40, 108')
        a('s_cselect_b32 s58, s58, 0x7ff00000')
        a('v_lshrrev_b32 v11, 4, v2')
        a('v_lshlrev_b32 v11, 4, v11')
        a('s_mov_b32 s52, 0x00010001')
        a('s_mov_b32 s53, 0x00010001')
        a('s_mov_b64 exec, s[52:53]')
        a(f'buffer_store_dwordx4 {v(CS4,4)}, v11, s[8:11], s58 offen' + WT)
        a('s_mov_b64 exec, -1')
    def reads(st, ks, buf):
        off = (st % NS) * 32768
        hi = 1 if off >= 65536 else 0
        off -= hi * 65536
        for aa in range(2):
            a(f'ds_read_b64_tr_b16 {v(FA+8*buf+4*aa,2)}, v{VA+2*aa+hi} offset:{off + ks*4096}')
            a(f'ds_read_b64_tr_b16 {v(FA+8*buf+4*aa+2,2)}, v{VA+2*aa+hi} offset:{off + ks*4096 + 1024}')
        bb = VB + 4 * hi + ks
        a(f'ds_read_b128 {v(FB+8*buf,4)}, v{bb} offset:{off}')
        a(f'ds_read_b128 {v(FB+8*buf+4,4)}, v{bb} offset:{off + 4096}')
    def main(swap):
        vc.ops = list(base_ops)
        pend = [(st, k) for st in range(2, 10) for k in range(4)]
        vc.wait(a, lambda x: x == ('r', 0))
        a('s_barrier')
        stamp(a, 3)
        reads(0, 0, 0)
        buf = 0
        for st in range(10):
            for ks in range(4):
                if ks < 3:
                    if st >= 4 and ks == 0 and 'k1nopk' not in gen.EXP: pack_read(st - 4, PKT)
                    reads(st, ks + 1, buf ^ 1)
                    a('s_waitcnt lgkmcnt(%d)' % (8 if (st >= 4 and ks == 0 and 'k1nopk' not in gen.EXP) else 6))
                else:
                    a('s_waitcnt lgkmcnt(0)')
                    if st + 1 < 10:
                        if 'k1stamp' in gen.EXP and st in (2, 5): stamp(a, {2: 8, 5: 10}[st])
                        vc.wait(a, lambda x: x == ('r', st + 1))
                        a('s_barrier')
                        if 'k1stamp' in gen.EXP and st in (2, 5): stamp(a, {2: 9, 5: 11}[st])
                        reads(st + 1, 0, buf ^ 1)
                for aa in range(2):
                    for j in range(2):
                        A_ = v(FA+8*buf+4*aa, 4); B_ = v(FB+8*buf+4*j, 4)
                        acc = v(ACC+32*aa+16*j, 16)
                        c = '0' if (st == 0 and ks == 0) else acc
                        if swap: a(f'v_mfma_f32_32x32x16_bf16 {acc}, {B_}, {A_}, {c}')
                        else: a(f'v_mfma_f32_32x32x16_bf16 {acc}, {A_}, {B_}, {c}')
                if 'k1nocs' not in gen.EXP: a(f'v_mfma_f32_16x16x32_bf16 {v(CSA,4)}, {v(FA+8*buf,4)}, {v(SEL,4)}, {v(CSA,4)}')
                if st >= 4 and ks == 1 and 'k1nopk' not in gen.EXP:
                    pack_store(st - 4, PKT); vc.issue('pks')
                    if st - 4 < 5: a(f'v_mfma_f32_16x16x32_bf16 {v(CS4,4)}, {v(PKT,4)}, {v(ONES,4)}, {v(CS4,4)}')
                if st == 9 and ks == 2 and 'k1nopk' not in gen.EXP:
                    w1_colsum_store(); vc.issue('pks')
                lim = st + NS - 1 + (1 if ks == 3 else 0)
                for _ in range(2 if st == 0 else 1):
                    if pend and pend[0][0] <= lim: wdma(*pend.pop(0))
                buf ^= 1
        stamp(a, 4)
        a('s_lshl_b32 s40, s56, 7')
        a(f's_add_u32 s40, s40, {CS_T}')
        a('v_and_b32 v8, 1, v2')
        a('v_lshlrev_b32 v8, 6, v8')
        a('v_lshrrev_b32 v9, 4, v2')
        a('v_lshl_add_u32 v8, v9, 4, v8')
        a('v_add_u32 v8, s40, v8')
        a('s_mov_b32 s52, 0x00030003')
        a('s_mov_b32 s53, 0x00030003')
        a('s_nop 7')
        a('s_mov_b64 exec, s[52:53]')
        a(f'ds_write_b128 v8, {v(CSA,4)}')
        a('s_mov_b64 exec, -1')
        a('s_waitcnt lgkmcnt(0)')
        a('s_barrier')
    a('s_cmp_ge_u32 s14, 10')
    a(f's_cbranch_scc1 {L}_v')
    main(False)
    C, P = 104, 136
    a('s_lshl_b32 s40, s22, 8')
    a(f's_add_u32 s40, s40, {ST_T}')
    a('v_lshlrev_b32 v7, 2, v3')
    a('v_add_u32 v7, s40, v7')
    for j in range(2):
        a(f'ds_read_b32 v{P+2*j}, v7 offset:{j*128}')
        a(f'ds_read_b32 v{P+2*j+1}, v7 offset:{512 + j*128}')
    for aa in range(2):
        a(f's_lshl_b32 s40, s{56+aa}, 7')
        a(f's_add_u32 s40, s40, {CS_T}')
        a('v_lshlrev_b32 v7, 4, v4')
        a('v_add_u32 v7, s40, v7')
        for g in range(4): a(f'ds_read_b128 {v(C+16*aa+4*g,4)}, v7 offset:{g*32}')
    a(f's_mov_b32 s40, {f2hex(QSCALE)}')
    a('s_cmp_lt_u32 s14, 5')
    a('s_cselect_b32 s40, s40, 1.0')
    a('s_waitcnt lgkmcnt(0)')
    for r in range(4): a(f'v_mul_f32 v{P+r}, s40, v{P+r}')
    a('v_lshrrev_b32 v13, 4, v3')
    a('s_movk_i32 s17, 20480')
    a('v_mul_lo_u32 v13, v13, s17')
    a('v_and_b32 v14, 15, v3')
    a('v_lshl_add_u32 v13, v14, 4, v13')
    a('v_lshl_add_u32 v13, v4, 8, v13')
    a('s_lshl_b32 s17, s13, 3')
    a('s_lshl_b32 s18, s22, 2')
    a('s_add_u32 s17, s17, s18')
    a('s_mul_i32 s17, s17, 20480')
    a(f's_mov_b32 s18, {WS_Q}')
    a(f's_mov_b32 s19, {WS_K - 80*256}')
    a('s_cmp_lt_u32 s14, 5')
    a('s_cselect_b32 s18, s18, s19')
    a('s_add_u32 s17, s17, s18')
    a('s_lshl_b32 s18, s14, 12')
    a('s_add_u32 s17, s17, s18')
    PK = 144
    for aa in range(2):
        for j in range(2):
            acc = ACC + 32 * aa + 16 * j
            for r in range(16):
                a(f'v_mul_f32 v{P+4}, v{P+2*j}, v{C+16*aa+r}')
                a(f'v_fma_f32 v{acc+r}, v{P+2*j+1}, v{acc+r}, -v{P+4}')
            pk = PK + 8 * ((2 * aa + j) & 1)
            for r in range(8): a(f'v_cvt_pk_bf16_f32 v{pk+r}, v{acc+2*r}, v{acc+2*r+1}')
            a(f's_lshl_b32 s18, s{56+aa}, 10')
            a('s_add_u32 s18, s18, s17')
            if j: a(f's_add_u32 s18, s18, {2*20480}')
            a(f'buffer_store_dwordx4 {v(pk,4)}, v13, s[8:11], s18 offen' + WT)
            a(f'buffer_store_dwordx4 {v(pk+4,4)}, v13, s[8:11], s18 offen offset:512' + WT)
    stamp(a, 5)
    if gen.PROF: a('s_waitcnt vmcnt(0)')
    stamp(a, 6); stamp(a, 7, True)
    if 'dbgst' in gen.EXP:
        ldb = lab('db')
        a('s_cmp_lg_u32 s2, 8'); a(f's_cbranch_scc1 {ldb}'); a('s_cmp_lg_u32 s12, 0'); a(f's_cbranch_scc1 {ldb}')
        a('s_sub_u32 s83, s83, s81'); a('s_sub_u32 s84, s84, s81'); a('s_sub_u32 s86, s86, s81')
        a('v_mov_b32 v0, 0'); a('v_mov_b32 v2, s83'); a('v_mov_b32 v3, s84'); a('v_mov_b32 v4, s86'); a('v_mov_b32 v5, s80')
        a(f's_mov_b32 s94, {WS_PROF}'); a('buffer_store_dwordx4 v[2:5], v0, s[8:11], s94 offen')
        a('v_mov_b32 v2, s87'); a('buffer_store_dword v2, v0, s[8:11], s94 offen offset:16')
        a.label(ldb)
    elif not merged: stamp_flush(a, 1, 12, 8, 12)
    finish()
    a.label(f'{L}_v')
    main(True)
    C = 104
    TT = 136
    for aa in range(2):
        a(f's_lshl_b32 s40, s{56+aa}, 7')
        a(f's_add_u32 s40, s40, {CS_T}')
        a('v_lshlrev_b32 v8, 2, v3')
        a('v_add_u32 v8, s40, v8')
        a(f'ds_read_b32 v{TT+aa}, v8')
    a('s_lshl_b32 s40, s22, 8')
    a(f's_add_u32 s40, s40, {ST_T}')
    a('v_lshlrev_b32 v7, 4, v4')
    a('v_add_u32 v7, s40, v7')
    for aa in range(2):
        a('s_sub_u32 s17, s14, 10')
        a('s_lshl_b32 s17, s17, 7')
        a(f's_lshl_b32 s18, s{56+aa}, 5')
        a('s_add_u32 s17, s17, s18')
        a('v_add_u32 v13, s17, v3')
        a(f's_mov_b32 s17, {magic(20)}')
        a('v_mul_hi_u32 v14, v13, s17')
        a('v_mul_u32_u24 v15, 20, v14')
        a('v_sub_u32 v15, v13, v15')
        a('s_mov_b32 s17, 81920')
        a('v_mul_lo_u32 v14, v14, s17')
        a('v_lshl_add_u32 v14, v15, 4, v14')
        a('v_mul_u32_u24 v15, 320, v4')
        a(f'v_add_u32 v{TT+2+aa}, v14, v15')
    a('s_lshl_b32 s17, s13, 3')
    a('s_lshl_b32 s18, s22, 2')
    a('s_add_u32 s17, s17, s18')
    a('s_mul_i32 s17, s17, 640')
    a(f's_add_u32 s17, s17, {WS_VT}')
    PK = 144
    for j in range(2):
        for g in range(4):
            a(f'ds_read_b128 {v(C+4*g,4)}, v7 offset:{j*128 + g*32}')
            a(f'ds_read_b128 {v(C+16+4*g,4)}, v7 offset:{512 + j*128 + g*32}')
        a('s_waitcnt lgkmcnt(0)')
        for aa in range(2):
            acc = ACC + 32 * aa + 16 * j
            for r in range(16):
                a(f'v_mul_f32 v{TT+4}, v{C+r}, v{TT+aa}')
                a(f'v_fma_f32 v{acc+r}, v{C+16+r}, v{acc+r}, -v{TT+4}')
            pk = PK + 8 * aa
            for r in range(8): a(f'v_cvt_pk_bf16_f32 v{pk+r}, v{acc+2*r}, v{acc+2*r+1}')
            for gg in range(2):
                a(f'buffer_store_dwordx4 {v(pk+4*gg,4)}, v{TT+2+aa}, s[8:11], s17 offen offset:{(2*j+gg)*640}' + ('' if 'vplain' in gen.EXP else WT))
    stamp(a, 5)
    if gen.PROF: a('s_waitcnt vmcnt(0)')
    stamp(a, 6); stamp(a, 7, True)
    if merged:
        finish()
        return
    stamp_flush(a, 1, 12, 8, 12)
    a.label(f'{L}_end')
    a('s_endpgm')
    return a, descriptor(L, 160, 102), f'; @launch kernel={L} grid=(256,1,1) block=(512,1,1) lds=163840'
```

```python
import sys
sys.path.insert(0, 'dev')
import gen
from gen import *
from gen2 import lab
from gen3 import VM
from asmlib import *

PK_LDS = 131072
TB_LDS = PK_LDS + 24576
ST_T = TB_LDS
CS_T = TB_LDS + 1024

def k1s(a=None, join=None):
    WT = '' if 'k1plain' in gen.EXP else ' sc1'
    merged = a is not None
    L = 'k1_kernel' if not merged else '.Lk1'
    NS = 4
    if not merged:
        a = Asm()
        kernel_begin(a, L)
        a('s_cmp_ge_u32 s2, 256')
        a(f's_cbranch_scc1 {L}_end')
    def finish():
        if merged: a(f's_branch {join}')
        else: a('s_endpgm')
    stamp(a, 0, True); stamp(a, 1)
    def code_pf(tag):
        if merged or 'nok1pf' in gen.EXP: return 0
        code_touch(a, L, '.Lkf_last' if 'k1pfall' in gen.EXP else f'{L}_end', '.Lpc_k1' + tag, 144, 151, 2 if 'k1pfall' in gen.EXP else 1)
        return 2 if 'k1pfall' in gen.EXP else 1
    if 'k1pflate' not in gen.EXP: code_pf('')
    a(f's_load_dwordx2 s[24:25], s[0:1], {A_X}')
    a(f's_load_dwordx2 s[26:27], s[0:1], {A_WQKV}')
    a(f's_load_dwordx2 s[4:5], s[0:1], {A_WS}')
    a(f's_load_dwordx2 s[28:29], s[0:1], {A_WO}')
    a(f's_load_dwordx2 s[30:31], s[0:1], {A_W1}')
    a(f's_load_dwordx2 s[32:33], s[0:1], {A_W2}')
    a('s_and_b32 s15, s2, 7')
    a('s_lshr_b32 s16, s2, 3')
    a('s_and_b32 s13, s15, 3')
    a('s_lshl_b32 s13, s13, 2')
    a('s_and_b32 s17, s16, 3')
    a('s_add_u32 s13, s13, s17')
    a('s_lshr_b32 s14, s15, 2')
    a('s_lshl_b32 s14, s14, 3')
    a('s_lshr_b32 s17, s16, 2')
    a('s_add_u32 s14, s14, s17')
    a('v_lshrrev_b32 v1, 6, v0')
    a('v_and_b32 v2, 63, v0')
    a('v_readfirstlane_b32 s12, v1')
    a('v_and_b32 v3, 31, v2')
    a('v_lshrrev_b32 v4, 5, v2')
    a('v_lshlrev_b32 v10, 4, v2')
    a('s_and_b32 s23, s12, 3')
    if merged:
        from gen2 import WS_XT
        li = lab('in')
        a('s_cmp_lg_u32 s12, 0')
        a(f's_cbranch_scc1 {li}')
        a('s_waitcnt lgkmcnt(0)')
        srd(a, 8, 4, WS_END)
        a('s_and_b32 s40, s2, 7')
        a('s_lshl_b32 s40, s40, 7')
        a('s_lshr_b32 s41, s2, 3')
        a('s_lshl_b32 s41, s41, 2')
        a('s_add_u32 s40, s40, s41')
        a(f's_add_u32 s40, s40, {WS_FLAG}')
        a('v_lshlrev_b32 v5, 10, v2')
        a(f'v_mov_b32 v6, {WS_XT - WS_FLAG}')
        a('v_cmp_eq_u32 vcc, 3, v2')
        a('v_cndmask_b32 v5, v5, v6, vcc')
        a('s_getreg_b32 s41, hwreg(HW_REG_XCC_ID, 0, 4)')
        a('s_add_u32 s41, s41, 1')
        a('v_mov_b32 v6, 0')
        a('v_mov_b32 v7, s41')
        a('v_cndmask_b32 v6, v6, v7, vcc')
        a('s_mov_b64 exec, 15')
        a('buffer_store_dword v6, v5, s[8:11], s40 offen sc1')
        a('s_mov_b64 exec, -1')
        a.label(li)
    a('s_cmp_lt_u32 s12, 4')
    a(f's_cbranch_scc1 {L}_compute')
    a('v_lshrrev_b32 v5, 3, v2')
    a('s_lshl_b32 s40, s23, 3')
    a('v_add_u32 v5, s40, v5')
    a('v_lshrrev_b32 v6, 4, v2')
    a('s_lshl_b32 s40, s23, 2')
    a('v_add_u32 v7, s40, v6')
    a('v_and_b32 v7, 7, v7')
    a('v_and_b32 v8, 7, v2')
    a('v_xor_b32 v7, v7, v8')
    a('s_movk_i32 s40, 1280')
    a('v_mul_lo_u32 v5, v5, s40')
    a('v_lshl_add_u32 v5, v7, 4, v5')
    a('s_mul_i32 s35, s13, 163840')
    a('s_lshl_b32 s40, s23, 2')
    a('v_add_u32 v7, s40, v6')
    a('s_movk_i32 s40, 3840')
    a('v_mul_lo_u32 v7, v7, s40')
    a('v_and_b32 v8, 15, v2')
    a('v_lshlrev_b32 v9, 2, v6')
    a('v_xor_b32 v8, v8, v9')
    a('v_lshl_add_u32 v6, v8, 4, v7')
    a('s_lshl_b32 s36, s14, 8')
    a('s_lshl_b32 s37, s23, 10')
    a('s_waitcnt lgkmcnt(0)')
    srd(a, 56, 24, S * D * 2)
    srd(a, 60, 26, D * 3 * D * 2)
    srd(a, 8, 4, WS_END)
    def operand_touch(srdx, srdw, vt, vd):
        if 'notouchk1' in gen.EXP: return 0
        lx, ld_ = lab('ot'), lab('ot')
        a('s_sub_u32 s40, s12, 4')
        a('s_cmp_lt_u32 s40, 3')
        a(f's_cbranch_scc0 {lx}')
        a('s_lshl_b32 s40, s40, 6')
        a(f'v_add_u32 v{vt}, s40, v2')
        a(f's_mov_b32 s41, {magic(10)}')
        a(f'v_mul_hi_u32 v{vt+1}, v{vt}, s41')
        a(f'v_mul_u32_u24 v{vt+2}, 10, v{vt+1}')
        a(f'v_sub_u32 v{vt+2}, v{vt}, v{vt+2}')
        a('s_lshr_b32 s41, s16, 2')
        a('s_lshl_b32 s41, s41, 4')
        a('s_lshl_b32 s40, s13, 7')
        a('s_add_u32 s41, s41, s40')
        a(f'v_add_u32 v{vt+1}, s41, v{vt+1}')
        a('s_movk_i32 s41, 1280')
        a(f'v_mul_lo_u32 v{vt+1}, v{vt+1}, s41')
        a(f'v_lshl_add_u32 v{vt+1}, v{vt+2}, 7, v{vt+1}')
        a(f'v_mov_b32 v{vt+2}, 0x7ff00000')
        a(f'v_cmp_gt_u32 vcc, 160, v{vt}')
        a(f'v_cndmask_b32 v{vt+1}, v{vt+2}, v{vt+1}, vcc')
        a(f'buffer_load_dword v{vd}, v{vt+1}, s[{srdx}:{srdx+3}], 0 offen')
        a(f's_branch {ld_}')
        a.label(lx)
        a('s_add_u32 s40, s12, 1')
        a('s_cmp_eq_u32 s12, 7')
        a('s_cselect_b32 s40, 0, s40')
        a('s_lshl_b32 s40, s40, 6')
        a(f'v_add_u32 v{vt}, s40, v2')
        a(f'v_lshrrev_b32 v{vt+1}, 1, v{vt}')
        a('s_and_b32 s41, s16, 3')
        a('s_mul_i32 s41, s41, 160')
        a(f'v_add_u32 v{vt+1}, s41, v{vt+1}')
        a('s_movk_i32 s41, 3840')
        a(f'v_mul_lo_u32 v{vt+1}, v{vt+1}, s41')
        a(f'v_and_b32 v{vt+2}, 1, v{vt}')
        a(f'v_lshl_add_u32 v{vt+1}, v{vt+2}, 7, v{vt+1}')
        a('s_lshl_b32 s41, s14, 8')
        a('s_cmp_lt_u32 s14, 15')
        a('s_cselect_b32 s41, s41, 0x7ff00000')
        a(f'buffer_load_dword v{vd}, v{vt+1}, s[{srdw}:{srdw+3}], s41 offen')
        a.label(ld_)
        return 1
    vm = VM()
    def dma(st, k):
        slot = (st % NS) * 32768
        if k < 4:
            a(f's_add_u32 m0, s37, {slot + k*4096}')
            a(f's_add_u32 s38, s35, {st*128 + k*32*1280}')
            a('buffer_load_dwordx4 v5, s[56:59], s38 offen lds')
        else:
            a(f's_add_u32 m0, s37, {slot + 16384 + (k-4)*4096}')
            a(f's_add_u32 s38, s36, {(st*64 + (k-4)*16)*3840}')
            a('buffer_load_dwordx4 v6, s[60:63], s38 offen lds')
        vm.issue(('r', st))
    def decode():
        l1_, l2_, ld = lab('pk'), lab('pk'), lab('pk')
        a('s_cmp_lt_u32 s2, 40')
        a(f's_cbranch_scc0 {l1_}')
        srd(a, 64, 28, D * D * 2)
        a(f's_mul_hi_u32 s46, s2, {magic(10)}')
        a('s_mul_i32 s47, s46, 10')
        a('s_sub_u32 s47, s2, s47')
        a('s_movk_i32 s41, 160'); a('s_movk_i32 s42, 1280'); a(f's_mov_b32 s44, {WS_WO}'); a('s_movk_i32 s45, 20480')
        a(f's_branch {ld}')
        a.label(l1_)
        a('s_cmp_lt_u32 s2, 148')
        a(f's_cbranch_scc0 {l2_}')
        srd(a, 64, 30, D * F * 2)
        a('s_sub_u32 s40, s2, 40')
        a(f's_mul_hi_u32 s46, s40, {magic(27)}')
        a('s_mul_i32 s47, s46, 27')
        a('s_sub_u32 s47, s40, s47')
        a('s_movk_i32 s41, 160'); a('s_movk_i32 s42, 3456'); a(f's_mov_b32 s44, {WS_W1}'); a('s_movk_i32 s45, 20480')
        a(f's_branch {ld}')
        a.label(l2_)
        srd(a, 64, 32, F * D * 2)
        a('s_sub_u32 s40, s2, 148')
        a(f's_mul_hi_u32 s46, s40, {magic(10)}')
        a('s_mul_i32 s47, s46, 10')
        a('s_sub_u32 s47, s40, s47')
        a('s_movk_i32 s41, 192'); a('s_movk_i32 s42, 1280'); a(f's_mov_b32 s44, {WS_W2}'); a('s_mov_b32 s45, 55296')
        a.label(ld)
        a('s_mul_i32 s43, s46, s41')
        a('s_lshr_b32 s48, s43, 3')
        a('s_mul_i32 s43, s43, s42')
        a('s_lshl_b32 s40, s47, 7')
        a('s_add_u32 s43, s43, s40')
        a('s_lshl_b32 s40, s47, 2')
        a('s_mul_i32 s40, s40, s45')
        a('s_add_u32 s44, s44, s40')
        a('s_lshl_b32 s40, s48, 8')
        a('s_add_u32 s44, s44, s40')
    def pack_dma_setup():
        a('v_lshrrev_b32 v11, 3, v2')
        a('s_lshl_b32 s40, s23, 3')
        a('v_add_u32 v11, s40, v11')
        a('v_mul_lo_u32 v11, v11, s42')
        a('v_and_b32 v12, 7, v2')
        a('v_lshl_add_u32 v11, v12, 4, v11')
        a('s_cmp_lt_u32 s2, 238')
        a('s_cselect_b32 s49, s43, 0x7ff00000')
        a('s_lshl_b32 s50, s42, 5')
    def pack_dma_one(i):
        a(f's_add_u32 m0, s37, {PK_LDS + i*4096}')
        a('s_nop 0')
        a('buffer_load_dwordx4 v11, s[64:67], s49 offen lds')
        a('s_add_u32 s49, s49, s50')
    def pack_dma():
        pack_dma_setup()
        for i in range(6): pack_dma_one(i)
    def pack_setup():
        a('v_lshrrev_b32 v12, 4, v2')
        a('v_lshrrev_b32 v13, 2, v2')
        a('v_and_b32 v13, 3, v13')
        a('v_lshl_add_u32 v12, v12, 3, v13')
        a('v_lshlrev_b32 v12, 7, v12')
        a('v_and_b32 v13, 3, v2')
        a('v_lshl_add_u32 v12, v13, 3, v12')
        a('s_lshl_b32 s49, s23, 5')
        a(f's_add_u32 s49, s49, {PK_LDS}')
        a('v_add_u32 v12, s49, v12')
        a('s_mul_i32 s54, s23, s45')
        a('s_add_u32 s54, s54, s44')
        a('s_cmp_lt_u32 s2, 238')
        a('s_cselect_b32 s54, s54, 0x7ff00000')
        a('s_cmp_gt_u32 s41, 160')
        a('s_cselect_b32 s55, s54, 0x7ff00000')
    def pack_read(i, T):
        a(f'ds_read_b64_tr_b16 {v(T,2)}, v12 offset:{i*4096}')
        a(f'ds_read_b64_tr_b16 {v(T+2,2)}, v12 offset:{i*4096 + 512}')
    def pack_store(i, T):
        a(f's_add_u32 s49, {"s54" if i < 5 else "s55"}, {i*1024}')
        a(f'buffer_store_dwordx4 {v(T,4)}, v10, s[8:11], s49 offen' + WT)
    def pack_work(T):
        pack_setup()
        for i in range(6): pack_read(i, T + 4*i)
        a('s_waitcnt lgkmcnt(0)')
        for i in range(6): pack_store(i, T + 4*i)
    lz = f'{L}_nogemm'
    a('s_cmp_ge_u32 s14, 15')
    a(f's_cbranch_scc1 {lz}')
    for st in range(2):
        for k in range(4): dma(st, k)
    if 'k1pflate' in gen.EXP:
        for _ in range(code_pf('h')): vm.issue('code')
    if operand_touch(56, 60, 96, 100): vm.issue('touch')
    decode()
    pack_dma_setup()
    VB = 14
    a('v_lshrrev_b32 v7, 1, v3')
    a('v_and_b32 v7, 7, v7')
    a('s_lshl_b32 s40, s23, 12')
    a('v_lshlrev_b32 v8, 7, v3')
    a('v_add_u32 v8, s40, v8')
    for ks in range(4):
        a(f'v_or_b32 v9, {2*ks}, v4')
        a('v_xor_b32 v9, v9, v7')
        a(f'v_lshl_add_u32 v{VB+ks}, v9, 4, v8')
        a(f'v_add_u32 v{VB+4+ks}, 0x10000, v{VB+ks}')
    XS, S1, T = 24, 40, 44
    for r in range(4): a(f'v_mov_b32 v{S1+r}, 0')
    pend = [(st, k) for st in range(2, 10) for k in range(4)]
    stamp(a, 2)
    vm.wait(a, lambda x: x == ('r', 0))
    a('s_barrier')
    stamp(a, 3)
    for st in range(10):
        off = (st % NS) * 32768
        hi = off >= 65536
        if hi: off -= 65536
        for ks in range(4): a(f'ds_read_b128 {v(XS+4*ks,4)}, v{VB+(4 if hi else 0)+ks} offset:{off}')
        n_iss = 8 if st == 0 else 4
        todo = []
        while pend and pend[0][0] <= st + NS - 1 and len(todo) < n_iss: todo.append(pend.pop(0))
        if todo: dma(*todo.pop(0))
        a('s_waitcnt lgkmcnt(0)')
        for r in range(16):
            src = XS + r; t = T + 2 * (r & 1); acc = S1 + (r & 1)
            if 'k1nostat' not in gen.EXP:
                a(f'v_lshlrev_b32 v{t}, 16, v{src}'); a(f'v_and_b32 v{t+1}, 0xffff0000, v{src}')
                a(f'v_add_f32 v{acc}, v{acc}, v{t}'); a(f'v_fmac_f32 v{acc+2}, v{t}, v{t}')
                a(f'v_add_f32 v{acc}, v{acc}, v{t+1}'); a(f'v_fmac_f32 v{acc+2}, v{t+1}, v{t+1}')
            if todo and ((r & 3) == 3 or (st == 0 and (r & 1))): dma(*todo.pop(0))
        while todo: dma(*todo.pop(0))
        if st <= 2 and 'k1nopk' not in gen.EXP:
            for i in (2*st, 2*st+1):
                pack_dma_one(i); vm.issue('pk')
        if st + 1 < 10:
            if st == 3 and 'k1nopk' not in gen.EXP: vm.wait(a, lambda x: x == ('r', 4) or x == 'pk')
            else: vm.wait(a, lambda x: x == ('r', st + 1))
            a('s_barrier')
    a(f'v_add_f32 v{S1}, v{S1}, v{S1+1}')
    a(f'v_add_f32 v{S1+2}, v{S1+2}, v{S1+3}')
    for r in (0, 2):
        a(f'v_mov_b32 v{T}, v{S1+r}'); a(f'v_mov_b32 v{T+1}, v{S1+r}')
        a(f'v_permlane32_swap_b32 v{T}, v{T+1}')
        a(f'v_add_f32 v{S1+r}, v{T}, v{T+1}')
    a(f'v_mul_f32 v{S1}, {f2hex(1.0/640)}, v{S1}')
    a(f'v_mul_f32 v{S1+1}, {f2hex(1.0/640)}, v{S1+2}')
    a(f'v_fma_f32 v{S1+1}, -v{S1}, v{S1}, v{S1+1}')
    a(f'v_max_f32 v{S1+1}, 0, v{S1+1}')
    a(f'v_add_f32 v{S1+1}, 0x3727c5ac, v{S1+1}')
    a(f'v_rsq_f32 v{S1+1}, v{S1+1}')
    a(f'v_mul_f32 v{S1}, v{S1}, v{S1+1}')
    a('s_lshl_b32 s40, s23, 7')
    a(f's_add_u32 s40, s40, {ST_T}')
    a('v_lshlrev_b32 v7, 2, v3')
    a('v_add_u32 v7, s40, v7')
    a(f'ds_write_b32 v7, v{S1}')
    a(f'ds_write_b32 v7, v{S1+1} offset:512')
    a('s_waitcnt lgkmcnt(0)')
    a('s_barrier')
    finish()
    a.label(lz)
    decode()
    pack_dma()
    if not merged:
        a('v_lshlrev_b32 v1, 4, v2')
        a('s_lshl_b32 s40, s23, 10')
        a('v_add_u32 v1, s40, v1')
        for r in range(4): a(f'v_mov_b32 v{100+r}, 0')
        a(f's_mov_b32 s17, {WS_FLAG}')
        a('buffer_store_dwordx4 v[100:103], v1, s[8:11], s17 offen')
        a('buffer_store_dwordx4 v[100:103], v1, s[8:11], s17 offen offset:4095' if False else 's_add_u32 s17, s17, 4096')
        a('buffer_store_dwordx4 v[100:103], v1, s[8:11], s17 offen')
    a('s_waitcnt vmcnt(0)')
    a('s_barrier')
    pack_work(48)
    finish()
    a.label(f'{L}_compute')
    a('s_cmp_ge_u32 s14, 15')
    if merged:
        lq = lab('ng')
        a(f's_cbranch_scc0 {lq}')
        a('s_barrier')
        finish()
        a.label(lq)
    else:
        a(f's_cbranch_scc1 {L}_end')
    a('s_and_b32 s21, s12, 1')
    a('s_lshr_b32 s22, s12, 1')
    a('v_lshrrev_b32 v6, 4, v2')
    a('s_lshl_b32 s40, s23, 2')
    a('v_add_u32 v7, s40, v6')
    a('s_movk_i32 s40, 3840')
    a('v_mul_lo_u32 v7, v7, s40')
    a('v_and_b32 v8, 15, v2')
    a('v_lshlrev_b32 v9, 2, v6')
    a('v_xor_b32 v8, v8, v9')
    a('v_lshl_add_u32 v6, v8, 4, v7')
    a('s_lshl_b32 s36, s14, 8')
    a('s_lshl_b32 s37, s23, 10')
    a('s_waitcnt lgkmcnt(0)')
    srd(a, 60, 26, D * 3 * D * 2)
    vc = VM()
    def wdma(st, k):
        slot = (st % NS) * 32768
        a(f's_add_u32 m0, s37, {slot + 16384 + k*4096}')
        a(f's_add_u32 s38, s36, {(st*64 + k*16)*3840}')
        a('buffer_load_dwordx4 v6, s[60:63], s38 offen lds')
        vc.issue(('r', st))
    stamp(a, 8)
    for st in range(2):
        for k in range(4): wdma(st, k)
    stamp(a, 2)
    if 'k1pflate' in gen.EXP:
        for _ in range(code_pf('c')): vc.issue('code')
    if operand_touch(60, 60, 136, 150): vc.issue('touch')
    base_ops = list(vc.ops)
    VB, VA = 14, 22
    a('v_lshrrev_b32 v7, 1, v3')
    a('v_and_b32 v7, 7, v7')
    a('s_lshl_b32 s40, s22, 13')
    a('v_lshlrev_b32 v8, 7, v3')
    a('v_add_u32 v8, s40, v8')
    for ks in range(4):
        a(f'v_or_b32 v9, {2*ks}, v4')
        a('v_xor_b32 v9, v9, v7')
        a(f'v_lshl_add_u32 v{VB+ks}, v9, 4, v8')
        a(f'v_add_u32 v{VB+4+ks}, 0x10000, v{VB+ks}')
    a('v_lshrrev_b32 v7, 2, v2')
    a('v_and_b32 v7, 3, v7')
    a('v_and_b32 v8, 3, v2')
    a('v_and_b32 v9, 1, v8')
    a('v_lshlrev_b32 v9, 1, v9')
    a('v_lshrrev_b32 v11, 1, v8')
    a('v_or_b32 v9, v9, v11')
    a('s_cmp_lt_u32 s14, 10')
    a('s_cselect_b64 vcc, -1, 0')
    a('v_cndmask_b32 v8, v8, v9, vcc')
    a('v_lshrrev_b32 v9, 4, v2')
    a('v_and_b32 v9, 1, v9')
    a('v_lshl_add_u32 v8, v9, 2, v8')
    a('v_lshl_add_u32 v12, v4, 3, v7')
    a('v_lshlrev_b32 v12, 8, v12')
    a('v_and_b32 v13, 1, v8')
    a('v_lshl_add_u32 v12, v13, 3, v12')
    a('v_lshrrev_b32 v8, 1, v8')
    a('v_lshlrev_b32 v11, 2, v7')
    for aa in range(2):
        a(f's_xor_b32 s40, s22, {aa}')
        a('s_lshl_b32 s41, s21, 1')
        a('s_add_u32 s40, s40, s41')
        a(f's_mov_b32 s{50+aa}, s40')
        a('s_lshl_b32 s40, s40, 2')
        a('v_add_u32 v9, s40, v8')
        a('v_xor_b32 v9, v9, v11')
        a(f'v_lshl_add_u32 v{VA+2*aa}, v9, 4, v12')
        a(f'v_add_u32 v{VA+2*aa}, 16384, v{VA+2*aa}')
        a(f'v_add_u32 v{VA+2*aa+1}, 0x10000, v{VA+2*aa}')
    SEL, CSA = 28, 32
    a(f'v_mov_b32 v{SEL}, 0')
    a('s_mov_b32 s52, 0x00020001')
    a('s_mov_b32 s53, 0x00020001')
    a('v_mov_b32 v7, 0x3f803f80')
    a(f'v_cndmask_b32 v{SEL}, v{SEL}, v7, s[52:53]')
    for r in range(1, 4): a(f'v_mov_b32 v{SEL+r}, v{SEL}')
    for r in range(4): a(f'v_mov_b32 v{CSA+r}, 0')
    ACC, FA, FB, T = 40, 104, 120, 136
    a('s_waitcnt lgkmcnt(0)')
    srd(a, 8, 4, WS_END)
    a('s_mov_b32 s56, s50'); a('s_mov_b32 s57, s51')
    decode()
    pack_setup()
    PKT, CS4, ONES = 140, 152, 156
    for r in range(4):
        a(f'v_mov_b32 v{CS4+r}, 0'); a(f'v_mov_b32 v{ONES+r}, 0x3f803f80')
    def w1_colsum_store():
        a('s_sub_u32 s40, s2, 40')
        a('s_mul_i32 s58, s46, 6912')
        a('s_lshl_b32 s59, s47, 8')
        a('s_add_u32 s58, s58, s59')
        a('s_lshl_b32 s59, s23, 6')
        a('s_add_u32 s58, s58, s59')
        a(f's_add_u32 s58, s58, {WS_CS1}')
        a('s_cmp_lt_u32 s40, 108')
        a('s_cselect_b32 s58, s58, 0x7ff00000')
        a('v_lshrrev_b32 v11, 4, v2')
        a('v_lshlrev_b32 v11, 4, v11')
        a('s_mov_b32 s52, 0x00010001')
        a('s_mov_b32 s53, 0x00010001')
        a('s_mov_b64 exec, s[52:53]')
        a(f'buffer_store_dwordx4 {v(CS4,4)}, v11, s[8:11], s58 offen' + WT)
        a('s_mov_b64 exec, -1')
    def reads(st, ks, buf):
        off = (st % NS) * 32768
        hi = 1 if off >= 65536 else 0
        off -= hi * 65536
        for aa in range(2):
            a(f'ds_read_b64_tr_b16 {v(FA+8*buf+4*aa,2)}, v{VA+2*aa+hi} offset:{off + ks*4096}')
            a(f'ds_read_b64_tr_b16 {v(FA+8*buf+4*aa+2,2)}, v{VA+2*aa+hi} offset:{off + ks*4096 + 1024}')
        bb = VB + 4 * hi + ks
        a(f'ds_read_b128 {v(FB+8*buf,4)}, v{bb} offset:{off}')
        a(f'ds_read_b128 {v(FB+8*buf+4,4)}, v{bb} offset:{off + 4096}')
    def main(swap):
        vc.ops = list(base_ops)
        pend = [(st, k) for st in range(2, 10) for k in range(4)]
        vc.wait(a, lambda x: x == ('r', 0))
        a('s_barrier')
        stamp(a, 3)
        reads(0, 0, 0)
        buf = 0
        for st in range(10):
            for ks in range(4):
                if ks < 3:
                    if st >= 4 and ks == 0 and 'k1nopk' not in gen.EXP: pack_read(st - 4, PKT)
                    reads(st, ks + 1, buf ^ 1)
                    a('s_waitcnt lgkmcnt(%d)' % (8 if (st >= 4 and ks == 0 and 'k1nopk' not in gen.EXP) else 6))
                else:
                    a('s_waitcnt lgkmcnt(0)')
                    if st + 1 < 10:
                        if 'k1stamp' in gen.EXP and st in (2, 5): stamp(a, {2: 8, 5: 10}[st])
                        vc.wait(a, lambda x: x == ('r', st + 1))
                        a('s_barrier')
                        if 'k1stamp' in gen.EXP and st in (2, 5): stamp(a, {2: 9, 5: 11}[st])
                        reads(st + 1, 0, buf ^ 1)
                for aa in range(2):
                    for j in range(2):
                        A_ = v(FA+8*buf+4*aa, 4); B_ = v(FB+8*buf+4*j, 4)
                        acc = v(ACC+32*aa+16*j, 16)
                        c = '0' if (st == 0 and ks == 0) else acc
                        if swap: a(f'v_mfma_f32_32x32x16_bf16 {acc}, {B_}, {A_}, {c}')
                        else: a(f'v_mfma_f32_32x32x16_bf16 {acc}, {A_}, {B_}, {c}')
                if 'k1nocs' not in gen.EXP: a(f'v_mfma_f32_16x16x32_bf16 {v(CSA,4)}, {v(FA+8*buf,4)}, {v(SEL,4)}, {v(CSA,4)}')
                if st >= 4 and ks == 1 and 'k1nopk' not in gen.EXP:
                    pack_store(st - 4, PKT); vc.issue('pks')
                    if st - 4 < 5: a(f'v_mfma_f32_16x16x32_bf16 {v(CS4,4)}, {v(PKT,4)}, {v(ONES,4)}, {v(CS4,4)}')
                if st == 9 and ks == 2 and 'k1nopk' not in gen.EXP:
                    w1_colsum_store(); vc.issue('pks')
                lim = st + NS - 1 + (1 if ks == 3 else 0)
                for _ in range(2 if st == 0 else 1):
                    if pend and pend[0][0] <= lim: wdma(*pend.pop(0))
                buf ^= 1
        stamp(a, 4)
        a('s_lshl_b32 s40, s56, 7')
        a(f's_add_u32 s40, s40, {CS_T}')
        a('v_and_b32 v8, 1, v2')
        a('v_lshlrev_b32 v8, 6, v8')
        a('v_lshrrev_b32 v9, 4, v2')
        a('v_lshl_add_u32 v8, v9, 4, v8')
        a('v_add_u32 v8, s40, v8')
        a('s_mov_b32 s52, 0x00030003')
        a('s_mov_b32 s53, 0x00030003')
        a('s_nop 7')
        a('s_mov_b64 exec, s[52:53]')
        a(f'ds_write_b128 v8, {v(CSA,4)}')
        a('s_mov_b64 exec, -1')
        a('s_waitcnt lgkmcnt(0)')
        a('s_barrier')
    a('s_cmp_ge_u32 s14, 10')
    a(f's_cbranch_scc1 {L}_v')
    main(False)
    C, P = 104, 136
    a('s_lshl_b32 s40, s22, 8')
    a(f's_add_u32 s40, s40, {ST_T}')
    a('v_lshlrev_b32 v7, 2, v3')
    a('v_add_u32 v7, s40, v7')
    for j in range(2):
        a(f'ds_read_b32 v{P+2*j}, v7 offset:{j*128}')
        a(f'ds_read_b32 v{P+2*j+1}, v7 offset:{512 + j*128}')
    for aa in range(2):
        a(f's_lshl_b32 s40, s{56+aa}, 7')
        a(f's_add_u32 s40, s40, {CS_T}')
        a('v_lshlrev_b32 v7, 4, v4')
        a('v_add_u32 v7, s40, v7')
        for g in range(4): a(f'ds_read_b128 {v(C+16*aa+4*g,4)}, v7 offset:{g*32}')
    a(f's_mov_b32 s40, {f2hex(QSCALE)}')
    a('s_cmp_lt_u32 s14, 5')
    a('s_cselect_b32 s40, s40, 1.0')
    a('s_waitcnt lgkmcnt(0)')
    for r in range(4): a(f'v_mul_f32 v{P+r}, s40, v{P+r}')
    a('v_lshrrev_b32 v13, 4, v3')
    a('s_movk_i32 s17, 20480')
    a('v_mul_lo_u32 v13, v13, s17')
    a('v_and_b32 v14, 15, v3')
    a('v_lshl_add_u32 v13, v14, 4, v13')
    a('v_lshl_add_u32 v13, v4, 8, v13')
    a('s_lshl_b32 s17, s13, 3')
    a('s_lshl_b32 s18, s22, 2')
    a('s_add_u32 s17, s17, s18')
    a('s_mul_i32 s17, s17, 20480')
    a(f's_mov_b32 s18, {WS_Q}')
    a(f's_mov_b32 s19, {WS_K - 80*256}')
    a('s_cmp_lt_u32 s14, 5')
    a('s_cselect_b32 s18, s18, s19')
    a('s_add_u32 s17, s17, s18')
    a('s_lshl_b32 s18, s14, 12')
    a('s_add_u32 s17, s17, s18')
    PK = 144
    for aa in range(2):
        for j in range(2):
            acc = ACC + 32 * aa + 16 * j
            for r in range(16):
                a(f'v_mul_f32 v{P+4}, v{P+2*j}, v{C+16*aa+r}')
                a(f'v_fma_f32 v{acc+r}, v{P+2*j+1}, v{acc+r}, -v{P+4}')
            pk = PK + 8 * ((2 * aa + j) & 1)
            for r in range(8): a(f'v_cvt_pk_bf16_f32 v{pk+r}, v{acc+2*r}, v{acc+2*r+1}')
            a(f's_lshl_b32 s18, s{56+aa}, 10')
            a('s_add_u32 s18, s18, s17')
            if j: a(f's_add_u32 s18, s18, {2*20480}')
            a(f'buffer_store_dwordx4 {v(pk,4)}, v13, s[8:11], s18 offen' + WT)
            a(f'buffer_store_dwordx4 {v(pk+4,4)}, v13, s[8:11], s18 offen offset:512' + WT)
    stamp(a, 5)
    if gen.PROF: a('s_waitcnt vmcnt(0)')
    stamp(a, 6); stamp(a, 7, True)
    if 'dbgst' in gen.EXP:
        ldb = lab('db')
        a('s_cmp_lg_u32 s2, 8'); a(f's_cbranch_scc1 {ldb}'); a('s_cmp_lg_u32 s12, 0'); a(f's_cbranch_scc1 {ldb}')
        a('s_sub_u32 s83, s83, s81'); a('s_sub_u32 s84, s84, s81'); a('s_sub_u32 s86, s86, s81'); a('s_sub_u32 s82, s82, s81'); a('s_sub_u32 s88, s88, s81')
        a('v_mov_b32 v0, 0'); a('v_mov_b32 v2, s88'); a('v_mov_b32 v3, s82'); a('v_mov_b32 v4, s83'); a('v_mov_b32 v5, s84')
        a(f's_mov_b32 s94, {WS_PROF}'); a('buffer_store_dwordx4 v[2:5], v0, s[8:11], s94 offen')
        a('v_mov_b32 v2, s86'); a('buffer_store_dword v2, v0, s[8:11], s94 offen offset:16')
        a.label(ldb)
    elif not merged: stamp_flush(a, 1, 12, 8, 12)
    finish()
    a.label(f'{L}_v')
    main(True)
    C = 104
    TT = 136
    for aa in range(2):
        a(f's_lshl_b32 s40, s{56+aa}, 7')
        a(f's_add_u32 s40, s40, {CS_T}')
        a('v_lshlrev_b32 v8, 2, v3')
        a('v_add_u32 v8, s40, v8')
        a(f'ds_read_b32 v{TT+aa}, v8')
    a('s_lshl_b32 s40, s22, 8')
    a(f's_add_u32 s40, s40, {ST_T}')
    a('v_lshlrev_b32 v7, 4, v4')
    a('v_add_u32 v7, s40, v7')
    for aa in range(2):
        a('s_sub_u32 s17, s14, 10')
        a('s_lshl_b32 s17, s17, 7')
        a(f's_lshl_b32 s18, s{56+aa}, 5')
        a('s_add_u32 s17, s17, s18')
        a('v_add_u32 v13, s17, v3')
        a(f's_mov_b32 s17, {magic(20)}')
        a('v_mul_hi_u32 v14, v13, s17')
        a('v_mul_u32_u24 v15, 20, v14')
        a('v_sub_u32 v15, v13, v15')
        a('s_mov_b32 s17, 81920')
        a('v_mul_lo_u32 v14, v14, s17')
        a('v_lshl_add_u32 v14, v15, 4, v14')
        a('v_mul_u32_u24 v15, 320, v4')
        a(f'v_add_u32 v{TT+2+aa}, v14, v15')
    a('s_lshl_b32 s17, s13, 3')
    a('s_lshl_b32 s18, s22, 2')
    a('s_add_u32 s17, s17, s18')
    a('s_mul_i32 s17, s17, 640')
    a(f's_add_u32 s17, s17, {WS_VT}')
    PK = 144
    for j in range(2):
        for g in range(4):
            a(f'ds_read_b128 {v(C+4*g,4)}, v7 offset:{j*128 + g*32}')
            a(f'ds_read_b128 {v(C+16+4*g,4)}, v7 offset:{512 + j*128 + g*32}')
        a('s_waitcnt lgkmcnt(0)')
        for aa in range(2):
            acc = ACC + 32 * aa + 16 * j
            for r in range(16):
                a(f'v_mul_f32 v{TT+4}, v{C+r}, v{TT+aa}')
                a(f'v_fma_f32 v{acc+r}, v{C+16+r}, v{acc+r}, -v{TT+4}')
            pk = PK + 8 * aa
            for r in range(8): a(f'v_cvt_pk_bf16_f32 v{pk+r}, v{acc+2*r}, v{acc+2*r+1}')
            for gg in range(2):
                a(f'buffer_store_dwordx4 {v(pk+4*gg,4)}, v{TT+2+aa}, s[8:11], s17 offen offset:{(2*j+gg)*640}' + ('' if 'vplain' in gen.EXP else WT))
    stamp(a, 5)
    if gen.PROF: a('s_waitcnt vmcnt(0)')
    stamp(a, 6); stamp(a, 7, True)
    if merged:
        finish()
        return
    stamp_flush(a, 1, 12, 8, 12)
    a.label(f'{L}_end')
    a('s_endpgm')
    return a, descriptor(L, 160, 102), f'; @launch kernel={L} grid=(256,1,1) block=(512,1,1) lds=163840'
```

```python
import sys
sys.path.insert(0, 'dev')
import gen
from gen import *
from gen2 import lab
from gen3 import VM
from asmlib import *

PK_LDS = 131072
TB_LDS = PK_LDS + 24576
ST_T = TB_LDS
CS_T = TB_LDS + 1024

def k1s(a=None, join=None):
    WT = '' if 'k1plain' in gen.EXP else ' sc1'
    merged = a is not None
    L = 'k1_kernel' if not merged else '.Lk1'
    NS = 4
    if not merged:
        a = Asm()
        kernel_begin(a, L)
        a('s_cmp_ge_u32 s2, 256')
        a(f's_cbranch_scc1 {L}_end')
    def finish():
        if merged: a(f's_branch {join}')
        else: a('s_endpgm')
    stamp(a, 0, True); stamp(a, 1)
    def code_pf(tag):
        if merged or 'nok1pf' in gen.EXP: return 0
        code_touch(a, L, '.Lkf_last' if 'k1pfall' in gen.EXP else f'{L}_end', '.Lpc_k1' + tag, 144, 151, 2 if 'k1pfall' in gen.EXP else 1)
        return 2 if 'k1pfall' in gen.EXP else 1
    if 'k1pflate' not in gen.EXP: code_pf('')
    a(f's_load_dwordx2 s[24:25], s[0:1], {A_X}')
    a(f's_load_dwordx2 s[26:27], s[0:1], {A_WQKV}')
    a(f's_load_dwordx2 s[4:5], s[0:1], {A_WS}')
    a(f's_load_dwordx2 s[28:29], s[0:1], {A_WO}')
    a(f's_load_dwordx2 s[30:31], s[0:1], {A_W1}')
    a(f's_load_dwordx2 s[32:33], s[0:1], {A_W2}')
    a('s_and_b32 s15, s2, 7')
    a('s_lshr_b32 s16, s2, 3')
    a('s_and_b32 s13, s15, 3')
    a('s_lshl_b32 s13, s13, 2')
    a('s_and_b32 s17, s16, 3')
    a('s_add_u32 s13, s13, s17')
    a('s_lshr_b32 s14, s15, 2')
    a('s_lshl_b32 s14, s14, 3')
    a('s_lshr_b32 s17, s16, 2')
    a('s_add_u32 s14, s14, s17')
    a('v_lshrrev_b32 v1, 6, v0')
    a('v_and_b32 v2, 63, v0')
    a('v_readfirstlane_b32 s12, v1')
    a('v_and_b32 v3, 31, v2')
    a('v_lshrrev_b32 v4, 5, v2')
    a('v_lshlrev_b32 v10, 4, v2')
    a('s_and_b32 s23, s12, 3')
    if merged:
        from gen2 import WS_XT
        li = lab('in')
        a('s_cmp_lg_u32 s12, 0')
        a(f's_cbranch_scc1 {li}')
        a('s_waitcnt lgkmcnt(0)')
        srd(a, 8, 4, WS_END)
        a('s_and_b32 s40, s2, 7')
        a('s_lshl_b32 s40, s40, 7')
        a('s_lshr_b32 s41, s2, 3')
        a('s_lshl_b32 s41, s41, 2')
        a('s_add_u32 s40, s40, s41')
        a(f's_add_u32 s40, s40, {WS_FLAG}')
        a('v_lshlrev_b32 v5, 10, v2')
        a(f'v_mov_b32 v6, {WS_XT - WS_FLAG}')
        a('v_cmp_eq_u32 vcc, 3, v2')
        a('v_cndmask_b32 v5, v5, v6, vcc')
        a('s_getreg_b32 s41, hwreg(HW_REG_XCC_ID, 0, 4)')
        a('s_add_u32 s41, s41, 1')
        a('v_mov_b32 v6, 0')
        a('v_mov_b32 v7, s41')
        a('v_cndmask_b32 v6, v6, v7, vcc')
        a('s_mov_b64 exec, 15')
        a('buffer_store_dword v6, v5, s[8:11], s40 offen sc1')
        a('s_mov_b64 exec, -1')
        a.label(li)
    a('s_cmp_lt_u32 s12, 4')
    a(f's_cbranch_scc1 {L}_compute')
    a('v_lshrrev_b32 v5, 3, v2')
    a('s_lshl_b32 s40, s23, 3')
    a('v_add_u32 v5, s40, v5')
    a('v_lshrrev_b32 v6, 4, v2')
    a('s_lshl_b32 s40, s23, 2')
    a('v_add_u32 v7, s40, v6')
    a('v_and_b32 v7, 7, v7')
    a('v_and_b32 v8, 7, v2')
    a('v_xor_b32 v7, v7, v8')
    a('s_movk_i32 s40, 1280')
    a('v_mul_lo_u32 v5, v5, s40')
    a('v_lshl_add_u32 v5, v7, 4, v5')
    a('s_mul_i32 s35, s13, 163840')
    a('s_lshl_b32 s40, s23, 2')
    a('v_add_u32 v7, s40, v6')
    a('s_movk_i32 s40, 3840')
    a('v_mul_lo_u32 v7, v7, s40')
    a('v_and_b32 v8, 15, v2')
    a('v_lshlrev_b32 v9, 2, v6')
    a('v_xor_b32 v8, v8, v9')
    a('v_lshl_add_u32 v6, v8, 4, v7')
    a('s_lshl_b32 s36, s14, 8')
    a('s_lshl_b32 s37, s23, 10')
    a('s_waitcnt lgkmcnt(0)')
    srd(a, 56, 24, S * D * 2)
    srd(a, 60, 26, D * 3 * D * 2)
    srd(a, 8, 4, WS_END)
    def operand_touch(srdx, srdw, vt, vd):
        if 'notouchk1' in gen.EXP: return 0
        lx, ld_ = lab('ot'), lab('ot')
        a('s_sub_u32 s40, s12, 4')
        a('s_cmp_lt_u32 s40, 3')
        a(f's_cbranch_scc0 {lx}')
        a('s_lshl_b32 s40, s40, 6')
        a(f'v_add_u32 v{vt}, s40, v2')
        a(f's_mov_b32 s41, {magic(10)}')
        a(f'v_mul_hi_u32 v{vt+1}, v{vt}, s41')
        a(f'v_mul_u32_u24 v{vt+2}, 10, v{vt+1}')
        a(f'v_sub_u32 v{vt+2}, v{vt}, v{vt+2}')
        a('s_lshr_b32 s41, s16, 2')
        a('s_lshl_b32 s41, s41, 4')
        a('s_lshl_b32 s40, s13, 7')
        a('s_add_u32 s41, s41, s40')
        a(f'v_add_u32 v{vt+1}, s41, v{vt+1}')
        a('s_movk_i32 s41, 1280')
        a(f'v_mul_lo_u32 v{vt+1}, v{vt+1}, s41')
        a(f'v_lshl_add_u32 v{vt+1}, v{vt+2}, 7, v{vt+1}')
        a(f'v_mov_b32 v{vt+2}, 0x7ff00000')
        a(f'v_cmp_gt_u32 vcc, 160, v{vt}')
        a(f'v_cndmask_b32 v{vt+1}, v{vt+2}, v{vt+1}, vcc')
        a(f'buffer_load_dword v{vd}, v{vt+1}, s[{srdx}:{srdx+3}], 0 offen')
        a(f's_branch {ld_}')
        a.label(lx)
        a('s_add_u32 s40, s12, 1')
        a('s_cmp_eq_u32 s12, 7')
        a('s_cselect_b32 s40, 0, s40')
        a('s_lshl_b32 s40, s40, 6')
        a(f'v_add_u32 v{vt}, s40, v2')
        a(f'v_lshrrev_b32 v{vt+1}, 1, v{vt}')
        a('s_and_b32 s41, s16, 3')
        a('s_mul_i32 s41, s41, 160')
        a(f'v_add_u32 v{vt+1}, s41, v{vt+1}')
        a('s_movk_i32 s41, 3840')
        a(f'v_mul_lo_u32 v{vt+1}, v{vt+1}, s41')
        a(f'v_and_b32 v{vt+2}, 1, v{vt}')
        a(f'v_lshl_add_u32 v{vt+1}, v{vt+2}, 7, v{vt+1}')
        a('s_lshl_b32 s41, s14, 8')
        a('s_cmp_lt_u32 s14, 15')
        a('s_cselect_b32 s41, s41, 0x7ff00000')
        a(f'buffer_load_dword v{vd}, v{vt+1}, s[{srdw}:{srdw+3}], s41 offen')
        a.label(ld_)
        return 1
    vm = VM()
    def dma(st, k):
        slot = (st % NS) * 32768
        if k < 4:
            a(f's_add_u32 m0, s37, {slot + k*4096}')
            a(f's_add_u32 s38, s35, {st*128 + k*32*1280}')
            a('buffer_load_dwordx4 v5, s[56:59], s38 offen ' + ('nt ' if 'xnt' in gen.EXP else '') + 'lds')
        else:
            a(f's_add_u32 m0, s37, {slot + 16384 + (k-4)*4096}')
            a(f's_add_u32 s38, s36, {(st*64 + (k-4)*16)*3840}')
            a('buffer_load_dwordx4 v6, s[60:63], s38 offen lds')
        vm.issue(('r', st))
    def decode():
        l1_, l2_, ld = lab('pk'), lab('pk'), lab('pk')
        a('s_cmp_lt_u32 s2, 40')
        a(f's_cbranch_scc0 {l1_}')
        srd(a, 64, 28, D * D * 2)
        a(f's_mul_hi_u32 s46, s2, {magic(10)}')
        a('s_mul_i32 s47, s46, 10')
        a('s_sub_u32 s47, s2, s47')
        a('s_movk_i32 s41, 160'); a('s_movk_i32 s42, 1280'); a(f's_mov_b32 s44, {WS_WO}'); a('s_movk_i32 s45, 20480')
        a(f's_branch {ld}')
        a.label(l1_)
        a('s_cmp_lt_u32 s2, 148')
        a(f's_cbranch_scc0 {l2_}')
        srd(a, 64, 30, D * F * 2)
        a('s_sub_u32 s40, s2, 40')
        a(f's_mul_hi_u32 s46, s40, {magic(27)}')
        a('s_mul_i32 s47, s46, 27')
        a('s_sub_u32 s47, s40, s47')
        a('s_movk_i32 s41, 160'); a('s_movk_i32 s42, 3456'); a(f's_mov_b32 s44, {WS_W1}'); a('s_movk_i32 s45, 20480')
        a(f's_branch {ld}')
        a.label(l2_)
        srd(a, 64, 32, F * D * 2)
        a('s_sub_u32 s40, s2, 148')
        a(f's_mul_hi_u32 s46, s40, {magic(10)}')
        a('s_mul_i32 s47, s46, 10')
        a('s_sub_u32 s47, s40, s47')
        a('s_movk_i32 s41, 192'); a('s_movk_i32 s42, 1280'); a(f's_mov_b32 s44, {WS_W2}'); a('s_mov_b32 s45, 55296')
        a.label(ld)
        a('s_mul_i32 s43, s46, s41')
        a('s_lshr_b32 s48, s43, 3')
        a('s_mul_i32 s43, s43, s42')
        a('s_lshl_b32 s40, s47, 7')
        a('s_add_u32 s43, s43, s40')
        a('s_lshl_b32 s40, s47, 2')
        a('s_mul_i32 s40, s40, s45')
        a('s_add_u32 s44, s44, s40')
        a('s_lshl_b32 s40, s48, 8')
        a('s_add_u32 s44, s44, s40')
    def pack_dma_setup():
        a('v_lshrrev_b32 v11, 3, v2')
        a('s_lshl_b32 s40, s23, 3')
        a('v_add_u32 v11, s40, v11')
        a('v_mul_lo_u32 v11, v11, s42')
        a('v_and_b32 v12, 7, v2')
        a('v_lshl_add_u32 v11, v12, 4, v11')
        a('s_cmp_lt_u32 s2, 238')
        a('s_cselect_b32 s49, s43, 0x7ff00000')
        a('s_lshl_b32 s50, s42, 5')
    def pack_dma_one(i):
        a(f's_add_u32 m0, s37, {PK_LDS + i*4096}')
        a('s_nop 0')
        a('buffer_load_dwordx4 v11, s[64:67], s49 offen ' + ('nt ' if 'pknt' in gen.EXP else '') + 'lds')
        a('s_add_u32 s49, s49, s50')
    def pack_dma():
        pack_dma_setup()
        for i in range(6): pack_dma_one(i)
    def pack_setup():
        a('v_lshrrev_b32 v12, 4, v2')
        a('v_lshrrev_b32 v13, 2, v2')
        a('v_and_b32 v13, 3, v13')
        a('v_lshl_add_u32 v12, v12, 3, v13')
        a('v_lshlrev_b32 v12, 7, v12')
        a('v_and_b32 v13, 3, v2')
        a('v_lshl_add_u32 v12, v13, 3, v12')
        a('s_lshl_b32 s49, s23, 5')
        a(f's_add_u32 s49, s49, {PK_LDS}')
        a('v_add_u32 v12, s49, v12')
        a('s_mul_i32 s54, s23, s45')
        a('s_add_u32 s54, s54, s44')
        a('s_cmp_lt_u32 s2, 238')
        a('s_cselect_b32 s54, s54, 0x7ff00000')
        a('s_cmp_gt_u32 s41, 160')
        a('s_cselect_b32 s55, s54, 0x7ff00000')
    def pack_read(i, T):
        a(f'ds_read_b64_tr_b16 {v(T,2)}, v12 offset:{i*4096}')
        a(f'ds_read_b64_tr_b16 {v(T+2,2)}, v12 offset:{i*4096 + 512}')
    def pack_store(i, T):
        a(f's_add_u32 s49, {"s54" if i < 5 else "s55"}, {i*1024}')
        a(f'buffer_store_dwordx4 {v(T,4)}, v10, s[8:11], s49 offen' + WT + (' nt' if 'pkstnt' in gen.EXP else ''))
    def pack_work(T):
        pack_setup()
        for i in range(6): pack_read(i, T + 4*i)
        a('s_waitcnt lgkmcnt(0)')
        for i in range(6): pack_store(i, T + 4*i)
    lz = f'{L}_nogemm'
    a('s_cmp_ge_u32 s14, 15')
    a(f's_cbranch_scc1 {lz}')
    for st in range(2):
        for k in range(4): dma(st, k)
    if 'k1pflate' in gen.EXP:
        for _ in range(code_pf('h')): vm.issue('code')
    if operand_touch(56, 60, 96, 100): vm.issue('touch')
    decode()
    pack_dma_setup()
    VB = 14
    a('v_lshrrev_b32 v7, 1, v3')
    a('v_and_b32 v7, 7, v7')
    a('s_lshl_b32 s40, s23, 12')
    a('v_lshlrev_b32 v8, 7, v3')
    a('v_add_u32 v8, s40, v8')
    for ks in range(4):
        a(f'v_or_b32 v9, {2*ks}, v4')
        a('v_xor_b32 v9, v9, v7')
        a(f'v_lshl_add_u32 v{VB+ks}, v9, 4, v8')
        a(f'v_add_u32 v{VB+4+ks}, 0x10000, v{VB+ks}')
    XS, S1, T = 24, 40, 44
    for r in range(4): a(f'v_mov_b32 v{S1+r}, 0')
    pend = [(st, k) for st in range(2, 10) for k in range(4)]
    stamp(a, 2)
    vm.wait(a, lambda x: x == ('r', 0))
    a('s_barrier')
    stamp(a, 3)
    for st in range(10):
        off = (st % NS) * 32768
        hi = off >= 65536
        if hi: off -= 65536
        for ks in range(4): a(f'ds_read_b128 {v(XS+4*ks,4)}, v{VB+(4 if hi else 0)+ks} offset:{off}')
        n_iss = 8 if st == 0 else 4
        todo = []
        while pend and pend[0][0] <= st + NS - 1 and len(todo) < n_iss: todo.append(pend.pop(0))
        if todo: dma(*todo.pop(0))
        a('s_waitcnt lgkmcnt(0)')
        for r in range(16):
            src = XS + r; t = T + 2 * (r & 1); acc = S1 + (r & 1)
            if 'k1nostat' not in gen.EXP:
                a(f'v_lshlrev_b32 v{t}, 16, v{src}'); a(f'v_and_b32 v{t+1}, 0xffff0000, v{src}')
                a(f'v_add_f32 v{acc}, v{acc}, v{t}'); a(f'v_fmac_f32 v{acc+2}, v{t}, v{t}')
                a(f'v_add_f32 v{acc}, v{acc}, v{t+1}'); a(f'v_fmac_f32 v{acc+2}, v{t+1}, v{t+1}')
            if todo and ((r & 3) == 3 or (st == 0 and (r & 1))): dma(*todo.pop(0))
        while todo: dma(*todo.pop(0))
        P0 = (3 if 'pk3' in gen.EXP else (1 if 'pk1' in gen.EXP else 2)) if 'pklate' in gen.EXP else 0
        if P0 <= st <= P0 + 2 and 'k1nopk' not in gen.EXP:
            for i in (2*(st-P0), 2*(st-P0)+1):
                pack_dma_one(i); vm.issue('pk')
        if st + 1 < 10:
            if st == P0 + 3 and 'k1nopk' not in gen.EXP: vm.wait(a, lambda x: x == ('r', st + 1) or x == 'pk')
            else: vm.wait(a, lambda x: x == ('r', st + 1))
            a('s_barrier')
    a(f'v_add_f32 v{S1}, v{S1}, v{S1+1}')
    a(f'v_add_f32 v{S1+2}, v{S1+2}, v{S1+3}')
    for r in (0, 2):
        a(f'v_mov_b32 v{T}, v{S1+r}'); a(f'v_mov_b32 v{T+1}, v{S1+r}')
        a(f'v_permlane32_swap_b32 v{T}, v{T+1}')
        a(f'v_add_f32 v{S1+r}, v{T}, v{T+1}')
    a(f'v_mul_f32 v{S1}, {f2hex(1.0/640)}, v{S1}')
    a(f'v_mul_f32 v{S1+1}, {f2hex(1.0/640)}, v{S1+2}')
    a(f'v_fma_f32 v{S1+1}, -v{S1}, v{S1}, v{S1+1}')
    a(f'v_max_f32 v{S1+1}, 0, v{S1+1}')
    a(f'v_add_f32 v{S1+1}, 0x3727c5ac, v{S1+1}')
    a(f'v_rsq_f32 v{S1+1}, v{S1+1}')
    a(f'v_mul_f32 v{S1}, v{S1}, v{S1+1}')
    a('s_lshl_b32 s40, s23, 7')
    a(f's_add_u32 s40, s40, {ST_T}')
    a('v_lshlrev_b32 v7, 2, v3')
    a('v_add_u32 v7, s40, v7')
    a(f'ds_write_b32 v7, v{S1}')
    a(f'ds_write_b32 v7, v{S1+1} offset:512')
    a('s_waitcnt lgkmcnt(0)')
    a('s_barrier')
    finish()
    a.label(lz)
    decode()
    pack_dma()
    if not merged:
        a('v_lshlrev_b32 v1, 4, v2')
        a('s_lshl_b32 s40, s23, 10')
        a('v_add_u32 v1, s40, v1')
        for r in range(4): a(f'v_mov_b32 v{100+r}, 0')
        a(f's_mov_b32 s17, {WS_FLAG}')
        a('buffer_store_dwordx4 v[100:103], v1, s[8:11], s17 offen')
        a('buffer_store_dwordx4 v[100:103], v1, s[8:11], s17 offen offset:4095' if False else 's_add_u32 s17, s17, 4096')
        a('buffer_store_dwordx4 v[100:103], v1, s[8:11], s17 offen')
    a('s_waitcnt vmcnt(0)')
    a('s_barrier')
    pack_work(48)
    finish()
    a.label(f'{L}_compute')
    a('s_cmp_ge_u32 s14, 15')
    if merged:
        lq = lab('ng')
        a(f's_cbranch_scc0 {lq}')
        a('s_barrier')
        finish()
        a.label(lq)
    else:
        a(f's_cbranch_scc1 {L}_end')
    a('s_and_b32 s21, s12, 1')
    a('s_lshr_b32 s22, s12, 1')
    a('v_lshrrev_b32 v6, 4, v2')
    a('s_lshl_b32 s40, s23, 2')
    a('v_add_u32 v7, s40, v6')
    a('s_movk_i32 s40, 3840')
    a('v_mul_lo_u32 v7, v7, s40')
    a('v_and_b32 v8, 15, v2')
    a('v_lshlrev_b32 v9, 2, v6')
    a('v_xor_b32 v8, v8, v9')
    a('v_lshl_add_u32 v6, v8, 4, v7')
    a('s_lshl_b32 s36, s14, 8')
    a('s_lshl_b32 s37, s23, 10')
    a('s_waitcnt lgkmcnt(0)')
    srd(a, 60, 26, D * 3 * D * 2)
    vc = VM()
    def wdma(st, k):
        slot = (st % NS) * 32768
        a(f's_add_u32 m0, s37, {slot + 16384 + k*4096}')
        a(f's_add_u32 s38, s36, {(st*64 + k*16)*3840}')
        a('buffer_load_dwordx4 v6, s[60:63], s38 offen ' + ('nt ' if 'wnt' in gen.EXP else '') + 'lds')
        vc.issue(('r', st))
    stamp(a, 8)
    for st in range(2):
        for k in range(4): wdma(st, k)
    stamp(a, 2)
    if 'k1pflate' in gen.EXP:
        for _ in range(code_pf('c')): vc.issue('code')
    if operand_touch(60, 60, 136, 150): vc.issue('touch')
    base_ops = list(vc.ops)
    VB, VA = 14, 22
    a('v_lshrrev_b32 v7, 1, v3')
    a('v_and_b32 v7, 7, v7')
    a('s_lshl_b32 s40, s22, 13')
    a('v_lshlrev_b32 v8, 7, v3')
    a('v_add_u32 v8, s40, v8')
    for ks in range(4):
        a(f'v_or_b32 v9, {2*ks}, v4')
        a('v_xor_b32 v9, v9, v7')
        a(f'v_lshl_add_u32 v{VB+ks}, v9, 4, v8')
        a(f'v_add_u32 v{VB+4+ks}, 0x10000, v{VB+ks}')
    a('v_lshrrev_b32 v7, 2, v2')
    a('v_and_b32 v7, 3, v7')
    a('v_and_b32 v8, 3, v2')
    a('v_and_b32 v9, 1, v8')
    a('v_lshlrev_b32 v9, 1, v9')
    a('v_lshrrev_b32 v11, 1, v8')
    a('v_or_b32 v9, v9, v11')
    a('s_cmp_lt_u32 s14, 10')
    a('s_cselect_b64 vcc, -1, 0')
    a('v_cndmask_b32 v8, v8, v9, vcc')
    a('v_lshrrev_b32 v9, 4, v2')
    a('v_and_b32 v9, 1, v9')
    a('v_lshl_add_u32 v8, v9, 2, v8')
    a('v_lshl_add_u32 v12, v4, 3, v7')
    a('v_lshlrev_b32 v12, 8, v12')
    a('v_and_b32 v13, 1, v8')
    a('v_lshl_add_u32 v12, v13, 3, v12')
    a('v_lshrrev_b32 v8, 1, v8')
    a('v_lshlrev_b32 v11, 2, v7')
    for aa in range(2):
        a(f's_xor_b32 s40, s22, {aa}')
        a('s_lshl_b32 s41, s21, 1')
        a('s_add_u32 s40, s40, s41')
        a(f's_mov_b32 s{50+aa}, s40')
        a('s_lshl_b32 s40, s40, 2')
        a('v_add_u32 v9, s40, v8')
        a('v_xor_b32 v9, v9, v11')
        a(f'v_lshl_add_u32 v{VA+2*aa}, v9, 4, v12')
        a(f'v_add_u32 v{VA+2*aa}, 16384, v{VA+2*aa}')
        a(f'v_add_u32 v{VA+2*aa+1}, 0x10000, v{VA+2*aa}')
    SEL, CSA = 28, 32
    a(f'v_mov_b32 v{SEL}, 0')
    a('s_mov_b32 s52, 0x00020001')
    a('s_mov_b32 s53, 0x00020001')
    a('v_mov_b32 v7, 0x3f803f80')
    a(f'v_cndmask_b32 v{SEL}, v{SEL}, v7, s[52:53]')
    for r in range(1, 4): a(f'v_mov_b32 v{SEL+r}, v{SEL}')
    for r in range(4): a(f'v_mov_b32 v{CSA+r}, 0')
    ACC, FA, FB, T = 40, 104, 120, 136
    a('s_waitcnt lgkmcnt(0)')
    srd(a, 8, 4, WS_END)
    a('s_mov_b32 s56, s50'); a('s_mov_b32 s57, s51')
    decode()
    pack_setup()
    PKT, CS4, ONES = 140, 152, 156
    for r in range(4):
        a(f'v_mov_b32 v{CS4+r}, 0'); a(f'v_mov_b32 v{ONES+r}, 0x3f803f80')
    def w1_colsum_store():
        a('s_sub_u32 s40, s2, 40')
        a('s_mul_i32 s58, s46, 6912')
        a('s_lshl_b32 s59, s47, 8')
        a('s_add_u32 s58, s58, s59')
        a('s_lshl_b32 s59, s23, 6')
        a('s_add_u32 s58, s58, s59')
        a(f's_add_u32 s58, s58, {WS_CS1}')
        a('s_cmp_lt_u32 s40, 108')
        a('s_cselect_b32 s58, s58, 0x7ff00000')
        a('v_lshrrev_b32 v11, 4, v2')
        a('v_lshlrev_b32 v11, 4, v11')
        a('s_mov_b32 s52, 0x00010001')
        a('s_mov_b32 s53, 0x00010001')
        a('s_mov_b64 exec, s[52:53]')
        a(f'buffer_store_dwordx4 {v(CS4,4)}, v11, s[8:11], s58 offen' + WT)
        a('s_mov_b64 exec, -1')
    def reads(st, ks, buf):
        off = (st % NS) * 32768
        hi = 1 if off >= 65536 else 0
        off -= hi * 65536
        for aa in range(2):
            a(f'ds_read_b64_tr_b16 {v(FA+8*buf+4*aa,2)}, v{VA+2*aa+hi} offset:{off + ks*4096}')
            a(f'ds_read_b64_tr_b16 {v(FA+8*buf+4*aa+2,2)}, v{VA+2*aa+hi} offset:{off + ks*4096 + 1024}')
        bb = VB + 4 * hi + ks
        a(f'ds_read_b128 {v(FB+8*buf,4)}, v{bb} offset:{off}')
        a(f'ds_read_b128 {v(FB+8*buf+4,4)}, v{bb} offset:{off + 4096}')
    def pk_at(st, ks):
        if 'k1nopk' in gen.EXP: return None
        if 'pklate' in gen.EXP:
            if st >= 7 and ks in (0, 2): return 2 * (st - 7) + ks // 2
            return None
        return st - 4 if (st >= 4 and ks == 0) else None
    def main(swap):
        vc.ops = list(base_ops)
        pend = [(st, k) for st in range(2, 10) for k in range(4)]
        vc.wait(a, lambda x: x == ('r', 0))
        a('s_barrier')
        stamp(a, 3)
        reads(0, 0, 0)
        buf = 0
        for st in range(10):
            for ks in range(4):
                if ks < 3:
                    pi = pk_at(st, ks)
                    if pi is not None: pack_read(pi, PKT)
                    reads(st, ks + 1, buf ^ 1)
                    a('s_waitcnt lgkmcnt(%d)' % (8 if pi is not None else 6))
                else:
                    a('s_waitcnt lgkmcnt(0)')
                    if st + 1 < 10:
                        if 'k1stamp' in gen.EXP and st in (2, 5): stamp(a, {2: 8, 5: 10}[st])
                        vc.wait(a, lambda x: x == ('r', st + 1))
                        a('s_barrier')
                        if 'k1stamp' in gen.EXP and st in (2, 5): stamp(a, {2: 9, 5: 11}[st])
                        reads(st + 1, 0, buf ^ 1)
                for aa in range(2):
                    for j in range(2):
                        A_ = v(FA+8*buf+4*aa, 4); B_ = v(FB+8*buf+4*j, 4)
                        acc = v(ACC+32*aa+16*j, 16)
                        c = '0' if (st == 0 and ks == 0) else acc
                        if swap: a(f'v_mfma_f32_32x32x16_bf16 {acc}, {B_}, {A_}, {c}')
                        else: a(f'v_mfma_f32_32x32x16_bf16 {acc}, {A_}, {B_}, {c}')
                if 'k1nocs' not in gen.EXP: a(f'v_mfma_f32_16x16x32_bf16 {v(CSA,4)}, {v(FA+8*buf,4)}, {v(SEL,4)}, {v(CSA,4)}')
                pi = pk_at(st, ks - 1) if ks >= 1 else None
                if pi is not None:
                    pack_store(pi, PKT); vc.issue('pks')
                    if pi < 5: a(f'v_mfma_f32_16x16x32_bf16 {v(CS4,4)}, {v(PKT,4)}, {v(ONES,4)}, {v(CS4,4)}')
                if st == 9 and ks == (3 if 'pklate' in gen.EXP else 2) and 'k1nopk' not in gen.EXP:
                    w1_colsum_store(); vc.issue('pks')
                lim = st + NS - 1 + (1 if ks == 3 else 0)
                for _ in range(2 if st == 0 else 1):
                    if pend and pend[0][0] <= lim: wdma(*pend.pop(0))
                buf ^= 1
        stamp(a, 4)
        a('s_lshl_b32 s40, s56, 7')
        a(f's_add_u32 s40, s40, {CS_T}')
        a('v_and_b32 v8, 1, v2')
        a('v_lshlrev_b32 v8, 6, v8')
        a('v_lshrrev_b32 v9, 4, v2')
        a('v_lshl_add_u32 v8, v9, 4, v8')
        a('v_add_u32 v8, s40, v8')
        a('s_mov_b32 s52, 0x00030003')
        a('s_mov_b32 s53, 0x00030003')
        a('s_nop 7')
        a('s_mov_b64 exec, s[52:53]')
        a(f'ds_write_b128 v8, {v(CSA,4)}')
        a('s_mov_b64 exec, -1')
        a('s_waitcnt lgkmcnt(0)')
        a('s_barrier')
    a('s_cmp_ge_u32 s14, 10')
    a(f's_cbranch_scc1 {L}_v')
    main(False)
    C, P = 104, 136
    a('s_lshl_b32 s40, s22, 8')
    a(f's_add_u32 s40, s40, {ST_T}')
    a('v_lshlrev_b32 v7, 2, v3')
    a('v_add_u32 v7, s40, v7')
    for j in range(2):
        a(f'ds_read_b32 v{P+2*j}, v7 offset:{j*128}')
        a(f'ds_read_b32 v{P+2*j+1}, v7 offset:{512 + j*128}')
    for aa in range(2):
        a(f's_lshl_b32 s40, s{56+aa}, 7')
        a(f's_add_u32 s40, s40, {CS_T}')
        a('v_lshlrev_b32 v7, 4, v4')
        a('v_add_u32 v7, s40, v7')
        for g in range(4): a(f'ds_read_b128 {v(C+16*aa+4*g,4)}, v7 offset:{g*32}')
    a(f's_mov_b32 s40, {f2hex(QSCALE)}')
    a('s_cmp_lt_u32 s14, 5')
    a('s_cselect_b32 s40, s40, 1.0')
    a('s_waitcnt lgkmcnt(0)')
    for r in range(4): a(f'v_mul_f32 v{P+r}, s40, v{P+r}')
    a('v_lshrrev_b32 v13, 4, v3')
    a('s_movk_i32 s17, 20480')
    a('v_mul_lo_u32 v13, v13, s17')
    a('v_and_b32 v14, 15, v3')
    a('v_lshl_add_u32 v13, v14, 4, v13')
    a('v_lshl_add_u32 v13, v4, 8, v13')
    a('s_lshl_b32 s17, s13, 3')
    a('s_lshl_b32 s18, s22, 2')
    a('s_add_u32 s17, s17, s18')
    a('s_mul_i32 s17, s17, 20480')
    a(f's_mov_b32 s18, {WS_Q}')
    a(f's_mov_b32 s19, {WS_K - 80*256}')
    a('s_cmp_lt_u32 s14, 5')
    a('s_cselect_b32 s18, s18, s19')
    a('s_add_u32 s17, s17, s18')
    a('s_lshl_b32 s18, s14, 12')
    a('s_add_u32 s17, s17, s18')
    PK = 144
    for aa in range(2):
        for j in range(2):
            acc = ACC + 32 * aa + 16 * j
            for r in range(16):
                a(f'v_mul_f32 v{P+4}, v{P+2*j}, v{C+16*aa+r}')
                a(f'v_fma_f32 v{acc+r}, v{P+2*j+1}, v{acc+r}, -v{P+4}')
            pk = PK + 8 * ((2 * aa + j) & 1)
            for r in range(8): a(f'v_cvt_pk_bf16_f32 v{pk+r}, v{acc+2*r}, v{acc+2*r+1}')
            a(f's_lshl_b32 s18, s{56+aa}, 10')
            a('s_add_u32 s18, s18, s17')
            if j: a(f's_add_u32 s18, s18, {2*20480}')
            a(f'buffer_store_dwordx4 {v(pk,4)}, v13, s[8:11], s18 offen' + WT)
            a(f'buffer_store_dwordx4 {v(pk+4,4)}, v13, s[8:11], s18 offen offset:512' + WT)
    stamp(a, 5)
    if gen.PROF: a('s_waitcnt vmcnt(0)')
    stamp(a, 6); stamp(a, 7, True)
    if 'dbgst' in gen.EXP:
        ldb = lab('db')
        a('s_cmp_lg_u32 s2, 8'); a(f's_cbranch_scc1 {ldb}'); a('s_cmp_lg_u32 s12, 0'); a(f's_cbranch_scc1 {ldb}')
        a('s_sub_u32 s83, s83, s81'); a('s_sub_u32 s84, s84, s81'); a('s_sub_u32 s86, s86, s81'); a('s_sub_u32 s82, s82, s81'); a('s_sub_u32 s88, s88, s81')
        a('v_mov_b32 v0, 0'); a('v_mov_b32 v2, s88'); a('v_mov_b32 v3, s82'); a('v_mov_b32 v4, s83'); a('v_mov_b32 v5, s84')
        a(f's_mov_b32 s94, {WS_PROF}'); a('buffer_store_dwordx4 v[2:5], v0, s[8:11], s94 offen')
        a('v_mov_b32 v2, s86'); a('buffer_store_dword v2, v0, s[8:11], s94 offen offset:16')
        a.label(ldb)
    elif not merged: stamp_flush(a, 1, 12, 8, 12)
    finish()
    a.label(f'{L}_v')
    main(True)
    C = 104
    TT = 136
    for aa in range(2):
        a(f's_lshl_b32 s40, s{56+aa}, 7')
        a(f's_add_u32 s40, s40, {CS_T}')
        a('v_lshlrev_b32 v8, 2, v3')
        a('v_add_u32 v8, s40, v8')
        a(f'ds_read_b32 v{TT+aa}, v8')
    a('s_lshl_b32 s40, s22, 8')
    a(f's_add_u32 s40, s40, {ST_T}')
    a('v_lshlrev_b32 v7, 4, v4')
    a('v_add_u32 v7, s40, v7')
    for aa in range(2):
        a('s_sub_u32 s17, s14, 10')
        a('s_lshl_b32 s17, s17, 7')
        a(f's_lshl_b32 s18, s{56+aa}, 5')
        a('s_add_u32 s17, s17, s18')
        a('v_add_u32 v13, s17, v3')
        a(f's_mov_b32 s17, {magic(20)}')
        a('v_mul_hi_u32 v14, v13, s17')
        a('v_mul_u32_u24 v15, 20, v14')
        a('v_sub_u32 v15, v13, v15')
        a('s_mov_b32 s17, 81920')
        a('v_mul_lo_u32 v14, v14, s17')
        a('v_lshl_add_u32 v14, v15, 4, v14')
        a('v_mul_u32_u24 v15, 320, v4')
        a(f'v_add_u32 v{TT+2+aa}, v14, v15')
    a('s_lshl_b32 s17, s13, 3')
    a('s_lshl_b32 s18, s22, 2')
    a('s_add_u32 s17, s17, s18')
    a('s_mul_i32 s17, s17, 640')
    a(f's_add_u32 s17, s17, {WS_VT}')
    PK = 144
    for j in range(2):
        for g in range(4):
            a(f'ds_read_b128 {v(C+4*g,4)}, v7 offset:{j*128 + g*32}')
            a(f'ds_read_b128 {v(C+16+4*g,4)}, v7 offset:{512 + j*128 + g*32}')
        a('s_waitcnt lgkmcnt(0)')
        for aa in range(2):
            acc = ACC + 32 * aa + 16 * j
            for r in range(16):
                a(f'v_mul_f32 v{TT+4}, v{C+r}, v{TT+aa}')
                a(f'v_fma_f32 v{acc+r}, v{C+16+r}, v{acc+r}, -v{TT+4}')
            pk = PK + 8 * aa
            for r in range(8): a(f'v_cvt_pk_bf16_f32 v{pk+r}, v{acc+2*r}, v{acc+2*r+1}')
            for gg in range(2):
                a(f'buffer_store_dwordx4 {v(pk+4*gg,4)}, v{TT+2+aa}, s[8:11], s17 offen offset:{(2*j+gg)*640}' + ('' if 'vplain' in gen.EXP else WT))
    stamp(a, 5)
    if gen.PROF: a('s_waitcnt vmcnt(0)')
    stamp(a, 6); stamp(a, 7, True)
    if merged:
        finish()
        return
    stamp_flush(a, 1, 12, 8, 12)
    a.label(f'{L}_end')
    a('s_endpgm')
    return a, descriptor(L, 160, 102), f'; @launch kernel={L} grid=(256,1,1) block=(512,1,1) lds=163840'
```

```python
import sys, math
sys.path.insert(0, 'dev')
from asmlib import *

NAME = 'sequential_preLN__mha_block__dense_activation_squared_relu__prompt'
S, D, H, DH, F = 2048, 640, 32, 20, 1728
A_X, A_WQKV, A_WO, A_BX, A_W1, A_B1, A_W2, A_B2, A_OUT, A_DBG, A_WS = [8 * i for i in range(11)]
WS_XN = 0
WS_WQKV = WS_XN + S * D * 2
WS_WO = WS_WQKV + D * 3 * D * 2
WS_W1 = WS_WO + D * D * 2
WS_W2 = WS_W1 + D * F * 2
WS_Q = WS_W2 + F * D * 2
WS_K = WS_Q + S * D * 2
WS_VT = WS_K + S * D * 2
WS_O = WS_VT + S * D * 2
WS_H = WS_O + S * D * 2
WS_G = WS_H + S * D * 2
WS_CS1 = WS_G + S * F * 2
WS_B1F = WS_CS1 + 32768
WS_B2F = WS_B1F + 8192
WS_ST2 = WS_B2F + 8192
WS_FLAG = WS_ST2 + S * 16 * 8
WS_PROF = WS_FLAG + 65536
WS_END = WS_PROF + 8 * 256 * 8 * 64
PROF = False
EXP = set()
PS = 80

def code_touch(a, first, last, here, vt, vd, nrounds, swave_v=None):
    a('s_getpc_b64 s[40:41]')
    a.label(here)
    a(f's_add_u32 s40, s40, ({first} - {here})') if False else None
    a(f's_sub_u32 s40, s40, ({here} - {first})')
    a('s_subb_u32 s41, s41, 0')
    a(f'v_lshlrev_b32 v{vt}, 6, v0')
    a(f's_mov_b32 s42, ({last} - {first} - 4)')
    for r in range(nrounds):
        a(f'v_add_u32 v{vt+2}, {r*32768}, v{vt}')
        a(f'v_min_u32 v{vt+2}, s42, v{vt+2}')
        a(f'v_mov_b32 v{vt+3}, s41')
        a(f'v_add_co_u32 v{vt+2}, vcc, s40, v{vt+2}')
        a(f'v_addc_co_u32 v{vt+3}, vcc, 0, v{vt+3}, vcc')
        a(f'global_load_dword v{vd}, v[{vt+2}:{vt+3}], off')

def magic(d):
    return (2 ** 32 + d - 1) // d

def srd(a, base_s, ptr_lo, nbytes):
    a(f's_mov_b32 s{base_s}, s{ptr_lo}')
    a(f's_and_b32 s{base_s+1}, s{ptr_lo+1}, 0xffff')
    a(f's_mov_b32 s{base_s+2}, {nbytes}')
    a(f's_mov_b32 s{base_s+3}, 0x20000')

def kernel_begin(a, label):
    a.raw(f'.globl {label}')
    a.raw('.p2align 8')
    a.raw(f'.type {label},@function')
    a.label(label)

def descriptor(label, nvgpr, nsgpr, accum=None):
    if accum is None: accum = (nvgpr + 3) // 4 * 4
    return f""".amdhsa_kernel {label}
  .amdhsa_next_free_vgpr {nvgpr}
  .amdhsa_next_free_sgpr {nsgpr}
  .amdhsa_accum_offset {accum}
  .amdhsa_group_segment_fixed_size 0
  .amdhsa_kernarg_size 88
  .amdhsa_user_sgpr_count 2
  .amdhsa_user_sgpr_kernarg_segment_ptr 1
  .amdhsa_system_sgpr_workgroup_id_x 1
.end_amdhsa_kernel
"""


STAMP_ONCE = set()
def stamp(a, i, real=False):
    if not PROF: return
    if 'atstamp' in EXP:
        key = (id(a), i)
        if key in STAMP_ONCE and i in (2, 4, 5, 8, 9, 10, 11): return
        if i in (2, 4, 5, 8, 9, 10, 11) and not getattr(a, 'in_attn', False): return
        STAMP_ONCE.add(key)
    a(f's_{"memrealtime" if real else "memtime"} s[{PS+16}:{PS+17}]')
    a('s_waitcnt lgkmcnt(0)')
    a(f's_mov_b32 s{PS+i}, s{PS+16}')

def stamp_flush(a, kidx, n, ssrd, swave):
    if not PROF: return
    a(f's_lshl_b32 s{PS+18}, s2, 3')
    a(f's_add_u32 s{PS+18}, s{PS+18}, s{swave}')
    a(f's_lshl_b32 s{PS+18}, s{PS+18}, 6')
    a(f's_add_u32 s{PS+18}, s{PS+18}, {WS_PROF + kidx*256*8*64}')
    a(f'v_mbcnt_lo_u32_b32 v0, -1, 0')
    a(f'v_mbcnt_hi_u32_b32 v0, -1, v0')
    a('v_lshlrev_b32 v0, 2, v0')
    a('v_mov_b32 v1, 0')
    for i in range(n):
        a(f'v_mov_b32 v2, s{PS+i}')
        a(f'v_cmp_eq_u32 vcc, {4*i}, v0')
        a('v_cndmask_b32 v1, v1, v2, vcc')
    a(f'v_cmp_gt_u32 vcc, {4*n}, v0')
    a(f's_and_saveexec_b64 s[{PS+20}:{PS+21}], vcc')
    a(f'buffer_store_dword v1, v0, s[{ssrd}:{ssrd+3}], s{PS+18} offen')
    a(f's_mov_b64 exec, s[{PS+20}:{PS+21}]')

K0_LN = 128
K0_PK = 470
K0_CS = 27
K0_GRID = K0_LN + K0_PK + K0_CS + 1

def k0():
    a = Asm()
    L = 'k0_kernel'
    kernel_begin(a, L)
    a(f's_cmp_ge_u32 s2, {K0_GRID}')
    a(f's_cbranch_scc1 {L}_end')
    a(f's_load_dwordx2 s[4:5], s[0:1], {A_X}')
    a(f's_load_dwordx2 s[6:7], s[0:1], {A_WQKV}')
    a(f's_load_dwordx2 s[8:9], s[0:1], {A_WO}')
    a(f's_load_dwordx2 s[10:11], s[0:1], {A_W1}')
    a(f's_load_dwordx2 s[12:13], s[0:1], {A_W2}')
    a(f's_load_dwordx2 s[14:15], s[0:1], {A_WS}')
    a(f's_load_dwordx2 s[16:17], s[0:1], {A_B1}')
    a(f's_load_dwordx2 s[18:19], s[0:1], {A_B2}')
    a('v_lshrrev_b32 v1, 6, v0')
    a('v_and_b32 v2, 63, v0')
    a('s_nop 0')
    a('v_readfirstlane_b32 s3, v1')
    a('s_waitcnt lgkmcnt(0)')
    srd(a, 20, 14, WS_END)
    a(f's_cmp_ge_u32 s2, {K0_LN}')
    a(f's_cbranch_scc1 {L}_pk')
    srd(a, 24, 4, S * D * 2)
    a('v_lshrrev_b32 v3, 4, v2')
    a('v_and_b32 v4, 15, v2')
    a('s_lshl_b32 s28, s2, 4')
    a('s_lshl_b32 s29, s3, 2')
    a('s_add_u32 s28, s28, s29')
    a('v_add_u32 v5, s28, v3')
    a('s_movk_i32 s30, 1280')
    a('v_mul_lo_u32 v5, v5, s30')
    a('v_lshl_add_u32 v5, v4, 4, v5')
    for i in range(5):
        a(f'buffer_load_dwordx4 v[{8+4*i}:{11+4*i}], v5, s[24:27], 0 offen offset:{256*i}')
    for i in range(20):
        if i % 4 == 0: a(f's_waitcnt vmcnt({4 - i // 4})')
        a(f'v_lshlrev_b32 v{32+2*i}, 16, v{8+i}')
        a(f'v_and_b32 v{33+2*i}, 0xffff0000, v{8+i}')
    a('v_add_f32 v6, v32, v33')
    for i in range(2, 40):
        a(f'v_add_f32 v6, v6, v{32+i}')
    for r in (8, 4, 2, 1):
        a(f'v_add_f32_dpp v7, v6, v6 row_ror:{r} row_mask:0xf bank_mask:0xf')
        a('v_mov_b32 v6, v7')
    a(f'v_mul_f32 v6, {1.0/640:.9e}, v6'.replace('e-03', 'e-03'))
    for i in range(40):
        a(f'v_sub_f32 v{32+i}, v{32+i}, v6')
    a('v_mul_f32 v7, v32, v32')
    for i in range(1, 40):
        a(f'v_fmac_f32 v7, v{32+i}, v{32+i}')
    for r in (8, 4, 2, 1):
        a(f'v_add_f32_dpp v6, v7, v7 row_ror:{r} row_mask:0xf bank_mask:0xf')
        a('v_mov_b32 v7, v6')
    a('v_mov_b32 v6, 0x3727c5ac')
    a(f'v_fmac_f32 v6, {f2hex(1.0/640)}, v7')
    a('v_rsq_f32 v6, v6')
    for i in range(40):
        a(f'v_mul_f32 v{32+i}, v{32+i}, v6')
    for i in range(20):
        a(f'v_cvt_pk_bf16_f32 v{8+i}, v{32+2*i}, v{33+2*i}')
    a('s_mul_i32 s28, s2, 20480')
    a('s_lshl_b32 s29, s3, 6')
    a('s_add_u32 s28, s28, s29')
    a('v_lshlrev_b32 v5, 8, v4')
    a('v_lshl_add_u32 v5, v3, 4, v5')
    a('v_add_u32 v5, s28, v5')
    for i in range(5):
        a(f's_mov_b32 s29, {WS_XN + 4096*i}')
        a(f'buffer_store_dwordx4 v[{8+4*i}:{11+4*i}], v5, s[20:23], s29 offen')
    a('s_endpgm')
    a.label(f'{L}_pk')
    a(f's_cmp_ge_u32 s2, {K0_LN + K0_PK}')
    a(f's_cbranch_scc1 {L}_cs')
    a(f's_sub_u32 s28, s2, {K0_LN}')
    a('s_lshl_b32 s28, s28, 2')
    a('s_add_u32 s28, s28, s3')
    mats = [(600, 6, 1920, 640, WS_WQKV, 30), (200, 8, 640, 640, WS_WO, 10), (540, 10, 1728, 640, WS_W1, 27), (540, 12, 640, 1728, WS_W2, 10)]
    start = 0
    for mi, (cnt, ptr, N, K, off, ncb) in enumerate(mats):
        if mi < len(mats) - 1:
            a(f's_cmp_lt_u32 s28, {start + cnt}')
            a(f's_cbranch_scc0 {L}_m{mi+1}')
        srd(a, 24, ptr, N * K * 2)
        a(f's_mov_b32 s30, {N*2}')
        a(f's_mov_b32 s31, {K//8*256}')
        a(f's_mov_b32 s32, {off}')
        a(f's_sub_u32 s28, s28, {start}')
        a(f's_mul_hi_u32 s34, s28, {magic(ncb)}')
        a(f's_mul_i32 s35, s34, {ncb}')
        a('s_sub_u32 s35, s28, s35')
        a(f's_branch {L}_go')
        if mi < len(mats) - 1: a.label(f'{L}_m{mi+1}')
        start += cnt
    a.label(f'{L}_go')
    a('s_lshl_b32 s36, s34, 5')
    a('s_mul_i32 s36, s36, s30')
    a('s_lshl_b32 s37, s35, 7')
    a('s_add_u32 s36, s36, s37')
    a('v_lshlrev_b32 v5, 1, v2')
    for r in range(32):
        a(f'buffer_load_ushort v{40+r}, v5, s[24:27], s36 offen')
        a('s_add_u32 s36, s36, s30')
    a('v_lshrrev_b32 v6, 4, v2')
    a('s_lshl_b32 s37, s35, 2')
    a('v_add_u32 v6, s37, v6')
    a('v_mul_lo_u32 v6, v6, s31')
    a('v_and_b32 v7, 15, v2')
    a('v_lshl_add_u32 v6, v7, 4, v6')
    a('s_lshl_b32 s37, s34, 10')
    a('s_add_u32 s37, s37, s32')
    a('s_waitcnt vmcnt(0)')
    for r in range(16):
        a(f'v_lshl_or_b32 v{8+r}, v{41+2*r}, 16, v{40+2*r}')
    for oc in range(4):
        a(f'buffer_store_dwordx4 v[{8+4*oc}:{11+4*oc}], v6, s[20:23], s37 offen offset:{256*oc}')
    a('s_endpgm')
    a.label(f'{L}_cs')
    a(f's_cmp_ge_u32 s2, {K0_LN + K0_PK + K0_CS}')
    a(f's_cbranch_scc1 {L}_bias')
    srd(a, 24, 10, D * F * 2)
    a(f's_sub_u32 s28, s2, {K0_LN + K0_PK}')
    a('v_lshrrev_b32 v3, 5, v2')
    a('v_and_b32 v4, 31, v2')
    a('s_mul_i32 s29, s3, 160')
    a('v_add_u32 v3, s29, v3')
    a('s_movk_i32 s30, 3456')
    a('v_mul_lo_u32 v5, v3, s30')
    a('v_lshl_add_u32 v5, v4, 2, v5')
    a('s_lshl_b32 s29, s28, 7')
    a('v_mov_b32 v6, 0')
    a('v_mov_b32 v7, 0')
    a('s_mov_b32 s31, 5')
    a.label(f'{L}_csl')
    for i in range(16):
        a(f'buffer_load_dword v{8+i}, v5, s[24:27], s29 offen')
        a(f's_add_u32 s29, s29, {2*3456}')
    a('s_waitcnt vmcnt(0)')
    for i in range(16):
        a(f'v_lshlrev_b32 v24, 16, v{8+i}')
        a(f'v_and_b32 v25, 0xffff0000, v{8+i}')
        a('v_add_f32 v6, v6, v24')
        a('v_add_f32 v7, v7, v25')
    a('s_sub_u32 s31, s31, 1')
    a('s_cmp_lg_u32 s31, 0')
    a(f's_cbranch_scc1 {L}_csl')
    a('v_lshlrev_b32 v8, 3, v0')
    a('ds_write_b64 v8, v[6:7]')
    a('s_waitcnt lgkmcnt(0)')
    a('s_barrier')
    a('v_cmp_gt_u32 vcc, 32, v0')
    a('s_and_saveexec_b64 s[40:41], vcc')
    a(f's_cbranch_execz {L}_end')
    for i in range(8):
        a(f'ds_read_b64 v[{10+2*i}:{11+2*i}], v8 offset:{256*i}')
    a('s_waitcnt lgkmcnt(0)')
    for i in range(1, 8):
        a(f'v_add_f32 v10, v10, v{10+2*i}')
        a(f'v_add_f32 v11, v11, v{11+2*i}')
    a('s_lshl_b32 s29, s28, 8')
    a(f's_add_u32 s29, s29, {WS_CS1}')
    a('buffer_store_dwordx2 v[10:11], v8, s[20:23], s29 offen')
    a('s_endpgm')
    a.label(f'{L}_bias')
    srd(a, 24, 16, F * 2)
    srd(a, 28, 18, D * 2)
    a('v_lshlrev_b32 v5, 1, v0')
    a('v_lshlrev_b32 v6, 2, v0')
    for i in range(7):
        a(f'buffer_load_ushort v{8+i}, v5, s[24:27], 0 offen offset:{512*i}')
    for i in range(3):
        a(f'buffer_load_ushort v{16+i}, v5, s[28:31], 0 offen offset:{512*i}')
    a('s_waitcnt vmcnt(0)')
    for i in range(7):
        a(f'v_lshlrev_b32 v{8+i}, 16, v{8+i}')
        a(f's_mov_b32 s32, {WS_B1F + 1024*i}')
        a(f'buffer_store_dword v{8+i}, v6, s[20:23], s32 offen')
    for i in range(3):
        a(f'v_lshlrev_b32 v{16+i}, 16, v{16+i}')
        a(f's_mov_b32 s32, {WS_B2F + 1024*i}')
        a(f'buffer_store_dword v{16+i}, v6, s[20:23], s32 offen')
    a.label(f'{L}_end')
    a('s_endpgm')
    return a, descriptor(L, 80, 48), f'; @launch kernel={L} grid=({K0_GRID},1,1) block=(256,1,1) lds=4096'


def ring_gemm(a, nst, ACC, FA, FB, vdma, vrdA, vrdB, ssrd, sdma, sm0, swap, tag, pro=2, NSLOT=4, pre=0):
    pend = [(st, ks) for st in range(nst) for ks in range(4)]
    issued = []
    def dma_one():
        st, ks = pend.pop(0)
        slot = st % NSLOT
        a(f's_add_u32 m0, s{sm0}, {slot*32768 + ks*8192}')
        a(f's_add_u32 s{sdma+1}, s{sdma}, {st*2048 + ks*512}')
        a(f'buffer_load_dwordx4 v{vdma}, s[{ssrd}:{ssrd+3}], s{sdma+1} offen lds')
        issued.append(st)
    def wait_stage(st):
        n = 0
        for x in reversed(issued):
            if x <= st: break
            n += 1
        assert issued.count(st) == 4
        a(f's_waitcnt vmcnt({n})')
    def reads(st, ks, buf):
        slot = st % NSLOT
        off = slot * 32768 + ks * 8192
        hi = 1 if off >= 65536 else 0
        off -= hi * 65536
        a(f'ds_read_b128 {v(FA+4*buf,4)}, v{vrdA[hi]} offset:{off}')
        a(f'ds_read_b128 {v(FB+8*buf,4)}, v{vrdB[hi]} offset:{off}')
        a(f'ds_read_b128 {v(FB+8*buf+4,4)}, v{vrdB[hi]} offset:{off+1024}')
    def mfmas(buf, first):
        for j in range(2):
            A = v(FA+4*buf, 4); B = v(FB+8*buf+4*j, 4)
            c = '0' if first else v(ACC+16*j, 16)
            if swap: a(f'v_mfma_f32_32x32x16_bf16 {v(ACC+16*j,16)}, {B}, {A}, {c}')
            else: a(f'v_mfma_f32_32x32x16_bf16 {v(ACC+16*j,16)}, {A}, {B}, {c}')
    for _ in range(4 * pro): dma_one()
    stamp(a, 2)
    wait_stage(0)
    a('s_barrier')
    stamp(a, 3)
    reads(0, 0, 0)
    buf = 0
    for st in range(nst):
        for ks in range(4):
            if ks < 3:
                reads(st, ks + 1, buf ^ 1)
                a('s_waitcnt lgkmcnt(3)')
                mfmas(buf, st == 0 and ks == 0)
            else:
                if st + 1 < nst:
                    a('s_waitcnt lgkmcnt(0)')
                    wait_stage(st + 1)
                    a('s_barrier')
                    reads(st + 1, 0, buf ^ 1)
                else:
                    a('s_waitcnt lgkmcnt(0)')
                mfmas(buf, False)
            lim = st + NSLOT - 1 + (1 if ks == 3 else 0)
            nq = 2 if (pend and pend[0][0] < lim and st == 0) else 1
            for _ in range(nq):
                if pend and pend[0][0] <= lim: dma_one()
            buf ^= 1
    a('s_nop 15')
    stamp(a, 4)

def lane_swap23(a, dst, src, tmp):
    a(f'v_and_b32 v{dst}, 0x13, v{src}')
    a(f'v_and_b32 v{tmp}, 4, v{src}')
    a(f'v_lshl_or_b32 v{dst}, v{tmp}, 1, v{dst}')
    a(f'v_and_b32 v{tmp}, 8, v{src}')
    a(f'v_lshrrev_b32 v{tmp}, 1, v{tmp}')
    a(f'v_or_b32 v{dst}, v{dst}, v{tmp}')

QSCALE = (DH ** -0.5) * 1.4426950408889634

def k1():
    a = Asm()
    L = 'k1_kernel'
    kernel_begin(a, L)
    a('s_cmp_ge_u32 s2, 256')
    a(f's_cbranch_scc1 {L}_end')
    stamp(a, 0, True); stamp(a, 1)
    a(f's_load_dwordx2 s[4:5], s[0:1], {A_WS}')
    a('s_and_b32 s15, s2, 7')
    a('s_lshr_b32 s16, s2, 3')
    a('s_and_b32 s13, s15, 3')
    a('s_lshl_b32 s13, s13, 2')
    a('s_and_b32 s17, s16, 3')
    a('s_add_u32 s13, s13, s17')
    a('s_lshr_b32 s14, s15, 2')
    a('s_lshl_b32 s14, s14, 3')
    a('s_lshr_b32 s17, s16, 2')
    a('s_add_u32 s14, s14, s17')
    a('s_cmp_ge_u32 s14, 15')
    a(f's_cbranch_scc1 {L}_zero')
    a('v_lshrrev_b32 v1, 6, v0')
    a('v_and_b32 v2, 63, v0')
    a('v_readfirstlane_b32 s12, v1')
    a('v_and_b32 v3, 31, v2')
    a('v_lshrrev_b32 v4, 5, v2')
    lane_swap23(a, 5, 3, 6)
    a('s_waitcnt lgkmcnt(0)')
    srd(a, 8, 4, WS_END)
    a('s_cmp_lt_u32 s12, 4')
    a('s_cselect_b32 s17, 1, 0')
    a('s_cmp_lt_u32 s14, 10')
    a('s_cselect_b32 s18, s17, 0')
    a('s_cmp_eq_u32 s18, 1')
    a('s_cselect_b64 vcc, -1, 0')
    a('v_cndmask_b32 v6, v3, v5, vcc')
    a('v_lshrrev_b32 v7, 4, v6')
    a('s_movk_i32 s17, 20480')
    a('v_mul_lo_u32 v7, v7, s17')
    a('v_and_b32 v6, 15, v6')
    a('v_lshl_add_u32 v7, v6, 4, v7')
    a('v_lshl_add_u32 v7, v4, 8, v7')
    a('s_lshl_b32 s18, s14, 3')
    a('s_lshl_b32 s19, s12, 1')
    a('s_add_u32 s18, s18, s19')
    a('s_mul_i32 s18, s18, 20480')
    a(f's_add_u32 s18, s18, {WS_WQKV}')
    a('s_lshl_b32 s20, s13, 3')
    a('s_add_u32 s20, s20, s19')
    a('s_sub_u32 s20, s20, 8')
    a('s_mul_i32 s20, s20, 20480')
    a(f's_add_u32 s20, s20, {WS_XN}')
    a('s_cmp_lt_u32 s12, 4')
    a('s_cselect_b32 s20, s18, s20')
    a('s_lshl_b32 s22, s12, 10')
    a('s_and_b32 s23, s12, 3')
    a('s_lshr_b32 s24, s12, 2')
    a('v_lshlrev_b32 v8, 4, v2')
    a('s_lshl_b32 s17, s23, 10')
    a('v_add_u32 v9, s17, v8')
    a('v_add_u32 v10, 0x10000, v9')
    a('s_lshl_b32 s17, s24, 11')
    a('s_add_u32 s17, s17, 4096')
    a('v_add_u32 v11, s17, v8')
    a('v_add_u32 v12, 0x10000, v11')
    ACC, FA, FB = 32, 16, 64
    a('s_cmp_ge_u32 s14, 10')
    a(f's_cbranch_scc1 {L}_v')
    ring_gemm(a, 10, ACC, FA, FB, 7, (9, 10), (11, 12), 8, 20, 22, False, 'qk')
    a('s_cmp_ge_u32 s14, 5')
    a(f's_cbranch_scc1 {L}_noscale')
    a(f's_mov_b32 s17, {f2hex(QSCALE)}')
    for r in range(32):
        a(f'v_mul_f32 v{ACC+r}, s17, v{ACC+r}')
    a.label(f'{L}_noscale')
    for r in range(16):
        a(f'v_cvt_pk_bf16_f32 v{64+r}, v{ACC+2*r}, v{ACC+2*r+1}')
    a('v_lshrrev_b32 v13, 4, v3')
    a('s_movk_i32 s17, 20480')
    a('v_mul_lo_u32 v13, v13, s17')
    a('v_and_b32 v14, 15, v3')
    a('v_lshl_add_u32 v13, v14, 4, v13')
    a('v_lshl_add_u32 v13, v4, 8, v13')
    a('s_lshl_b32 s17, s13, 3')
    a('s_lshl_b32 s18, s24, 2')
    a('s_add_u32 s17, s17, s18')
    a('s_mul_i32 s17, s17, 20480')
    a(f's_mov_b32 s18, {WS_Q}')
    a(f's_mov_b32 s19, {WS_K - 80*256}')
    a('s_cmp_lt_u32 s14, 5')
    a('s_cselect_b32 s18, s18, s19')
    a('s_add_u32 s17, s17, s18')
    a('s_lshl_b32 s18, s14, 12')
    a('s_add_u32 s17, s17, s18')
    a('s_lshl_b32 s18, s23, 10')
    a('s_add_u32 s17, s17, s18')
    for j in range(2):
        a(f'buffer_store_dwordx4 {v(64+8*j,4)}, v13, s[8:11], s17 offen')
        a(f'buffer_store_dwordx4 {v(68+8*j,4)}, v13, s[8:11], s17 offen offset:512')
        if j == 0: a(f's_add_u32 s17, s17, {2*20480}')
    stamp(a, 5)
    if PROF: a('s_waitcnt vmcnt(0)')
    stamp(a, 6); stamp(a, 7, True)
    stamp_flush(a, 1, 8, 8, 12)
    a('s_endpgm')
    a.label(f'{L}_v')
    ring_gemm(a, 10, ACC, FA, FB, 7, (9, 10), (11, 12), 8, 20, 22, True, 'v')
    for r in range(16):
        a(f'v_cvt_pk_bf16_f32 v{64+r}, v{ACC+2*r}, v{ACC+2*r+1}')
    a('s_sub_u32 s17, s14, 10')
    a('s_lshl_b32 s17, s17, 7')
    a('s_lshl_b32 s18, s23, 5')
    a('s_add_u32 s17, s17, s18')
    a('v_add_u32 v13, s17, v3')
    a(f's_mov_b32 s17, {magic(20)}')
    a('v_mul_hi_u32 v14, v13, s17')
    a('v_mul_u32_u24 v15, 20, v14')
    a('v_sub_u32 v15, v13, v15')
    a('s_mov_b32 s17, 81920')
    a('v_mul_lo_u32 v14, v14, s17')
    a('v_lshl_add_u32 v14, v15, 4, v14')
    a('v_mul_u32_u24 v15, 320, v4')
    a('v_add_u32 v14, v14, v15')
    a('s_lshl_b32 s17, s13, 3')
    a('s_lshl_b32 s18, s24, 2')
    a('s_add_u32 s17, s17, s18')
    a('s_mul_i32 s17, s17, 640')
    a(f's_add_u32 s17, s17, {WS_VT}')
    for j in range(2):
        for gg in range(2):
            a(f'buffer_store_dwordx4 {v(64+8*j+4*gg,4)}, v14, s[8:11], s17 offen offset:{(2*j+gg)*640}')
    stamp(a, 5)
    if PROF: a('s_waitcnt vmcnt(0)')
    stamp(a, 6); stamp(a, 7, True)
    stamp_flush(a, 1, 8, 8, 12)
    a('s_endpgm')
    a.label(f'{L}_zero')
    a('s_waitcnt lgkmcnt(0)')
    srd(a, 8, 4, WS_END)
    a('v_lshlrev_b32 v1, 4, v0')
    for r in range(4, 8): a(f'v_mov_b32 v{r}, 0')
    a(f's_mov_b32 s17, {WS_FLAG}')
    a('buffer_store_dwordx4 v[4:7], v1, s[8:11], s17 offen')
    a.label(f'{L}_end')
    a('s_endpgm')
    return a, descriptor(L, 96, 102), f'; @launch kernel={L} grid=(256,1,1) block=(512,1,1) lds=131072'


AT_SLOT = 14336
class AR:
    QA = 16
    QC = 24
    KA = 28
    KC = 36
    VV = 40
    S = 56
    P = 88
    O = 104
    T = 136

def attn_setup(a, s_h, s_r, s_w, ssrd, defer=False):
    a(f's_lshr_b32 s40, s{s_h}, 1')
    a(f's_and_b32 s41, s{s_h}, 1')
    a('s_mul_i32 s42, s40, 5')
    a('s_add_u32 s43, s42, 2')
    a('s_mul_i32 s44, s41, 3')
    a('s_add_u32 s42, s42, s44')
    a(f's_and_b32 s45, s{s_w}, 3')
    a(f's_lshr_b32 s46, s{s_w}, 2')
    a('v_lshrrev_b32 v5, 4, v3')
    a('s_movk_i32 s47, 20480')
    a('v_mul_lo_u32 v5, v5, s47')
    a('v_and_b32 v6, 15, v3')
    a('v_lshl_add_u32 v5, v6, 4, v5')
    a('v_lshl_add_u32 v7, v4, 8, v5')
    a(f's_lshl_b32 s47, s{s_r}, 4')
    a('s_lshl_b32 s48, s45, 2')
    a('s_add_u32 s47, s47, s48')
    a('s_mul_i32 s47, s47, 20480')
    a(f's_add_u32 s48, s47, {WS_Q}')
    a('s_lshl_b32 s49, s42, 8')
    a('s_add_u32 s49, s49, s48')
    a('s_lshl_b32 s50, s43, 8')
    a('s_add_u32 s50, s50, s48')
    a('s_lshl_b32 s51, s41, 3')
    a('s_add_u32 s50, s50, s51')
    if not defer: attn_qloads(a, ssrd)
    lane_swap23(a, 8, 3, 9)
    a('v_cmp_gt_u32 vcc, 16, v3')
    a('v_cndmask_b32 v8, v3, v8, vcc')
    a('s_lshl_b32 s51, s41, 2')
    a('v_add_u32 v8, s51, v8')
    a('v_subrev_u32 v9, 20, v8')
    a('v_cmp_le_u32 vcc, 20, v8')
    a('v_cndmask_b32 v8, v8, v9, vcc')
    a('v_mul_u32_u24 v9, 320, v4')
    a('v_lshl_add_u32 v8, v8, 4, v9')
    a(f's_mul_i32 s52, s{s_h}, 81920')
    a(f's_mul_i32 s53, s{s_w}, 640')
    a('s_add_u32 s52, s52, s53')
    a(f's_add_u32 s52, s52, {WS_VT}')
    a(f's_cmp_lt_u32 s{s_w}, 4')
    a(f's_cbranch_scc0 .Lat_kc')
    a('v_mov_b32 v9, v7')
    a(f's_lshl_b32 s53, s{s_w}, 1')
    a('s_mul_i32 s53, s53, 20480')
    a('s_lshl_b32 s54, s42, 8')
    a('s_add_u32 s53, s53, s54')
    a(f's_lshl_b32 s55, s{s_w}, 10')
    a('s_branch .Lat_kd')
    a.label('.Lat_kc')
    a('v_lshrrev_b32 v9, 4, v2')
    a('s_movk_i32 s53, 20480')
    a('v_mul_lo_u32 v9, v9, s53')
    a('v_lshl_add_u32 v9, v6, 4, v9')
    a(f's_and_b32 s55, s{s_w}, 1')
    a('s_lshl_b32 s53, s55, 2')
    a('s_mul_i32 s53, s53, 20480')
    a('s_lshl_b32 s54, s43, 8')
    a('s_add_u32 s53, s53, s54')
    a('s_lshl_b32 s55, s55, 10')
    a('s_add_u32 s55, s55, 4096')
    a.label('.Lat_kd')
    a(f's_add_u32 s53, s53, {WS_K}')
    a(f's_lshl_b32 s54, s{s_w}, 10')
    a('s_add_u32 s54, s54, 6144')
    a('v_lshlrev_b32 v10, 4, v2')
    a('s_lshl_b32 s56, s46, 11')
    a('v_add_u32 v11, s56, v10')
    a('v_lshlrev_b32 v12, 4, v3')
    a('s_lshl_b32 s56, s46, 10')
    a('s_lshl_b32 s57, s41, 3')
    a('s_add_u32 s56, s56, s57')
    a('s_add_u32 s56, s56, 4096')
    a('v_add_u32 v12, s56, v12')
    a('s_lshl_b32 s56, s46, 12')
    a('s_add_u32 s56, s56, 6144')
    a('v_add_u32 v13, s56, v10')
    a('s_mov_b32 s58, 0x000fffff')
    a('s_mov_b32 s59, 0x000fffff')
    if not defer: attn_ones(a)

def attn_qloads(a, ssrd):
    for j in range(2):
        a(f'buffer_load_dwordx4 {v(AR.QA+4*j,4)}, v7, s[{ssrd}:{ssrd+3}], s49 offen')
        a(f'buffer_load_dwordx2 {v(AR.QC+2*j,2)}, v5, s[{ssrd}:{ssrd+3}], s50 offen')
        if j == 0:
            a(f's_add_u32 s49, s49, {2*20480}')
            a(f's_add_u32 s50, s50, {2*20480}')

def attn_ones(a):
    a('v_mov_b32 v132, 0x3f803f80')
    a('v_cmp_eq_u32 vcc, 20, v3')
    if 'allones' not in EXP: a('v_cndmask_b32 v132, 0, v132, vcc')
    for r in (133, 134, 135): a(f'v_mov_b32 v{r}, v132')
    a('v_add_u32 v14, s54, v10')
    a('s_mov_b32 s40, 0xfff00000')
    a('s_mov_b32 s41, 0xfff00000')
    a('s_mov_b64 exec, s[40:41]')
    for sl in range(4):
        a(f'ds_write_b128 v14, v[132:135] offset:{sl*AT_SLOT}')
    a('s_mov_b64 exec, -1')

def attn_dma(a, slot, ssrd):
    a(f's_add_u32 m0, s54, {slot*AT_SLOT}')
    a('s_mov_b64 exec, s[58:59]')
    a(f'buffer_load_dwordx4 v8, s[{ssrd}:{ssrd+3}], s52 offen lds')
    a('s_mov_b64 exec, -1')
    a(f's_add_u32 m0, s55, {slot*AT_SLOT}')
    a('s_add_u32 s52, s52, 5120')
    a(f'buffer_load_dwordx4 v9, s[{ssrd}:{ssrd+3}], s53 offen lds')
    a('s_add_u32 s53, s53, 163840')

def attn_dma_parts(slot, ssrd):
    NT = 'nt ' if 'nt' in EXP else ''
    return ([f's_add_u32 m0, s54, {slot*AT_SLOT}', 's_mov_b64 exec, s[58:59]',
             f'buffer_load_dwordx4 v8, s[{ssrd}:{ssrd+3}], s52 offen {NT}lds', 's_mov_b64 exec, -1', 's_add_u32 s52, s52, 5120'],
            [f's_add_u32 m0, s55, {slot*AT_SLOT}', 's_nop 0',
             f'buffer_load_dwordx4 v9, s[{ssrd}:{ssrd+3}], s53 offen {NT}lds', 's_add_u32 s53, s53, 163840'])

def attn_main(a, ssrd, tag):
    R = AR
    def kreads(slot, t, buf):
        return [f'ds_read_b128 {v(R.KA+4*buf,4)}, v11 offset:{slot*AT_SLOT + t*1024}',
                f'ds_read_b64 {v(R.KC+2*buf,2)}, v12 offset:{slot*AT_SLOT + t*512}']
    def vreads(slot, t, buf):
        return [f'ds_read_b128 {v(R.VV+8*buf,4)}, v13 offset:{slot*AT_SLOT + t*2048}',
                f'ds_read_b128 {v(R.VV+8*buf+4,4)}, v13 offset:{slot*AT_SLOT + t*2048 + 1024}']
    def m1(sb, kb, j): return f'v_mfma_f32_32x32x16_bf16 {v(R.S+16*sb,16)}, {v(R.KA+4*kb,4)}, {v(R.QA+4*j,4)}, 0'
    def m2(sb, kb, j): return f'v_mfma_f32_32x32x8bf16_1k {v(R.S+16*sb,16)}, {v(R.KC+2*kb,2)}, {v(R.QC+2*j,2)}, {v(R.S+16*sb,16)}'
    def m3(j, vb, pb): return f'v_mfma_f32_32x32x16_bf16 {v(R.O+16*j,16)}, {v(R.VV+8*vb,4)}, {v(R.P+8*pb,4)}, {v(R.O+16*j,16)}'
    def m4(j, vb, pb): return f'v_mfma_f32_32x32x16_bf16 {v(R.O+16*j,16)}, {v(R.VV+8*vb+4,4)}, {v(R.P+8*pb+4,4)}, {v(R.O+16*j,16)}'
    for r in range(32): a(f'v_mov_b32 v{R.O+r}, 0')
    for r in range(16): a(f'v_mov_b32 v{R.P+r}, 0')
    for r in range(16): a(f'v_mov_b32 v{R.VV+r}, 0')
    attn_dma(a, 0, ssrd)
    if 'pro3' in EXP:
        for st in range(1, 3): attn_dma(a, st, ssrd)
        a('s_waitcnt vmcnt(4)')
    else:
        a('s_waitcnt vmcnt(0)')
        for st in range(1, 3): attn_dma(a, st, ssrd)
    a('v_cmp_gt_u32 vcc, 32, v2')
    for r in range(4): a(f'v_cndmask_b32 v{R.QC+r}, 0, v{R.QC+r}, vcc')
    a('s_waitcnt lgkmcnt(0)')
    a('s_barrier')
    for x in kreads(0, 0, 0): a(x)
    a('s_waitcnt lgkmcnt(0)')
    a(m1(0, 0, 0)); a(m2(0, 0, 0))
    a('s_mov_b32 s60, 4')
    if 'barstamp' not in EXP: stamp(a, 7)
    if 'align' in EXP: a.raw('.p2align 6')
    a.label(f'.Lat_loop{tag}')
    for st in range(4):
        for u in range(4):
            n = st * 4 + u
            T = n >> 1; j = n & 1
            sb = n & 1; Tn = (n + 1) >> 1; jn = (n + 1) & 1
            Tp = (n - 1) >> 1; jp = (n - 1) & 1
            if 'prio' in EXP: a(f's_setprio {3-u}')
            extras = {}
            if u == 2 and 'nobar' not in EXP:
                if 'barstamp' in EXP: stamp(a, 7 + 2*st)
                a('s_waitcnt vmcnt(2)')
                a('s_barrier')
                if 'barstamp' in EXP: stamp(a, 8 + 2*st)
            if u == 3 and 'nodma' not in EXP:
                d = attn_dma_parts((st + 3) % 4, ssrd)
                extras.setdefault(3, []).extend(d[0])
                extras.setdefault(15, []).extend(d[1])
            if n % 2 == 0:
                T1 = T + 1
                if 'nods' not in EXP:
                    kr = kreads((T1 >> 1) % 4, T1 & 1, T1 & 1)
                    vr = vreads((T >> 1) % 4, T & 1, T & 1)
                    for pos, x in zip((2, 6, 11, 16), kr + vr): extras.setdefault(pos, []).append(x)
            else:
                a('s_waitcnt lgkmcnt(0)')
            S = R.S + 16 * sb
            ex = [f'v_exp_f32 v{S+i}, v{S+i}' for i in range(16)]
            cv = [f'v_cvt_pk_bf16_f32 v{R.P+8*sb+i}, v{S+2*i}, v{S+2*i+1}' for i in range(8)]
            M = [m1(sb ^ 1, Tn & 1, jn), m2(sb ^ 1, Tn & 1, jn), m3(jp, Tp & 1, (n - 1) & 1), m4(jp, Tp & 1, (n - 1) & 1)]
            seq = [M[0], ex[0], ex[1], ex[2], ex[3], cv[0], ex[4], M[1], ex[5], cv[1], ex[6], ex[7], cv[2],
                   M[2], ex[8], ex[9], cv[3], ex[10], ex[11], cv[4], M[3], ex[12], ex[13], cv[5], ex[14], ex[15], cv[6], cv[7]]
            for i, x in enumerate(seq):
                for y in extras.get(i, []): a(y)
                a(x)
    a('s_sub_u32 s60, s60, 1')
    a('s_cmp_lg_u32 s60, 0')
    a(f's_cbranch_scc1 .Lat_loop{tag}')
    a(m3(1, 1, 1)); a(m4(1, 1, 1))

def attn_stage_wrap_note(): pass

def k2():
    a = Asm()
    L = 'k2_kernel'
    kernel_begin(a, L)
    a('s_cmp_ge_u32 s2, 256')
    a(f's_cbranch_scc1 {L}_end')
    stamp(a, 0, True); stamp(a, 1)
    a(f's_load_dwordx2 s[4:5], s[0:1], {A_WS}')
    a('s_and_b32 s13, s2, 7')
    a('s_lshr_b32 s14, s2, 3')
    a('v_lshrrev_b32 v1, 6, v0')
    a('v_and_b32 v2, 63, v0')
    a('v_readfirstlane_b32 s12, v1')
    a('v_and_b32 v3, 31, v2')
    a('v_lshrrev_b32 v4, 5, v2')
    a('s_waitcnt lgkmcnt(0)')
    srd(a, 8, 4, WS_END)
    attn_setup(a, 14, 13, 12, 8)
    stamp(a, 2)
    attn_main(a, 8, '')
    stamp(a, 3)
    R = AR
    a('s_waitcnt vmcnt(0)')
    a('s_barrier')
    a('s_cmp_eq_u32 s46, 0')
    a('s_cbranch_scc1 .Lat_noswap')
    a('s_nop 7')
    for r in range(12): a(f'v_swap_b32 v{R.O+r}, v{R.O+16+r}')
    a.label('.Lat_noswap')
    a('s_nop 7')
    a(f's_mul_i32 s61, s12, 3072')
    a('v_add_u32 v14, s61, v10')
    for i in range(3): a(f'ds_write_b128 v14, {v(R.O+16+4*i,4)} offset:{1024*i}')
    a('s_xor_b32 s61, s12, 4')
    a('s_mul_i32 s61, s61, 3072')
    a('v_add_u32 v14, s61, v10')
    a('s_waitcnt lgkmcnt(0)')
    a('s_barrier')
    for i in range(3): a(f'ds_read_b128 {v(R.T+4*i,4)}, v14 offset:{1024*i}')
    a('s_waitcnt lgkmcnt(0)')
    for r in range(12): a(f'v_add_f32 v{R.O+r}, v{R.O+r}, v{R.T+r}')
    a(f'v_mov_b32 v{R.T}, v{R.O+8}')
    a(f'v_mov_b32 v{R.T+1}, v{R.O+8}')
    a(f'v_permlane32_swap_b32 v{R.T}, v{R.T+1}')
    a(f'v_rcp_f32 v{R.T+1}, v{R.T+1}')
    for r in range(12): a(f'v_mul_f32 v{R.O+r}, v{R.O+r}, v{R.T+1}')
    for i in range(6): a(f'v_cvt_pk_bf16_f32 v{R.T+4+i}, v{R.O+2*i}, v{R.O+2*i+1}')
    a('s_mul_i32 s61, s46, 40960')
    a('s_add_u32 s61, s61, s47')
    a(f's_add_u32 s61, s61, {WS_O}')
    a('s_lshl_b32 s62, s42, 8')
    a('s_add_u32 s62, s62, s61')
    a(f'buffer_store_dwordx4 {v(R.T+4,4)}, v7, s[8:11], s62 offen')
    a('s_lshl_b32 s62, s43, 8')
    a('s_add_u32 s62, s62, s61')
    a('s_lshl_b32 s63, s41, 3')
    a('s_add_u32 s62, s62, s63')
    a('s_mov_b64 exec, 0xffffffff')
    a(f'buffer_store_dwordx2 {v(R.T+8,2)}, v5, s[8:11], s62 offen')
    a('s_mov_b64 exec, -1')
    stamp(a, 4)
    if PROF: a('s_waitcnt vmcnt(0)')
    stamp(a, 5); stamp(a, 6, True)
    stamp_flush(a, 2, 15, 8, 12)
    a.label(f'{L}_end')
    a('s_endpgm')
    return a, descriptor(L, 160, 102), f'; @launch kernel={L} grid=(256,1,1) block=(512,1,1) lds={4*AT_SLOT}'


def common_prologue(a, L, kidx):
    a('s_cmp_ge_u32 s2, 256')
    a(f's_cbranch_scc1 {L}_end')
    stamp(a, 0, True); stamp(a, 1)
    a(f's_load_dwordx2 s[4:5], s[0:1], {A_WS}')
    a(f's_load_dwordx2 s[6:7], s[0:1], {A_X}')
    a(f's_load_dwordx2 s[24:25], s[0:1], {A_OUT}')
    a('s_and_b32 s13, s2, 7')
    a('s_lshr_b32 s14, s2, 3')
    a('v_lshrrev_b32 v1, 6, v0')
    a('v_and_b32 v2, 63, v0')
    a('v_readfirstlane_b32 s12, v1')
    a('v_and_b32 v3, 31, v2')
    a('v_lshrrev_b32 v4, 5, v2')
    a('v_lshlrev_b32 v10, 4, v2')
    a('s_waitcnt lgkmcnt(0)')
    srd(a, 8, 4, WS_END)

def ksplit_reduce(a, ACC, T, sw, sth, skq, vl16, vtmp):
    a(f's_lshl_b32 s40, s{skq}, 1')
    a(f's_add_u32 s40, s40, s{sth}')
    a('s_mul_i32 s40, s40, 10240')
    a(f'v_add_u32 v{vtmp}, s40, v{vl16}')
    for j in range(2):
        for ft in range(5):
            a(f'ds_write_b128 v{vtmp}, {v(ACC+4*(2*ft+j),4)} offset:{(j*5+ft)*1024}')
    a('s_waitcnt lgkmcnt(0)')
    a('s_barrier')

def ksplit_gather(a, T, sw, vl16, vtmp):
    a(f's_mul_i32 s40, s{sw}, 5120')
    a(f'v_add_u32 v{vtmp}, s40, v{vl16}')
    for kq in range(4):
        if kq == 2: a(f'v_add_u32 v{vtmp}, 40960, v{vtmp}')
        for ft in range(5):
            a(f'ds_read_b128 {v(T+20*kq+4*ft,4)}, v{vtmp} offset:{(kq&1)*20480 + ft*1024}')
    a('s_waitcnt lgkmcnt(0)')
    for r in range(20):
        a(f'v_add_f32 v{T+r}, v{T+r}, v{T+20+r}')
        a(f'v_add_f32 v{T+40+r}, v{T+40+r}, v{T+60+r}')
    for r in range(20):
        a(f'v_add_f32 v{T+r}, v{T+r}, v{T+40+r}')

def sum_q4(a, x, t1, t2):
    a(f'v_mov_b32 v{t1}, v{x}'); a(f'v_mov_b32 v{t2}, v{x}')
    a(f'v_permlane16_swap_b32 v{t1}, v{t2}')
    a(f'v_add_f32 v{x}, v{t1}, v{t2}')
    a(f'v_mov_b32 v{t1}, v{x}'); a(f'v_mov_b32 v{t2}, v{x}')
    a(f'v_permlane32_swap_b32 v{t1}, v{t2}')
    a(f'v_add_f32 v{x}, v{t1}, v{t2}')

def k3():
    a = Asm()
    L = 'k3_kernel'
    kernel_begin(a, L)
    common_prologue(a, L, 3)
    srd(a, 16, 6, S * D * 2)
    a('s_and_b32 s20, s14, 3')
    a('s_lshr_b32 s21, s14, 2')
    a('s_lshr_b32 s22, s12, 2')
    a('s_and_b32 s23, s12, 3')
    a('s_mul_i32 s26, s21, 102400')
    a(f's_add_u32 s26, s26, {WS_WO}')
    a('s_lshl_b32 s27, s12, 10')
    a('s_add_u32 s26, s26, s27')
    for i in range(13):
        if i == 12:
            a('s_cmp_ge_u32 s12, 4')
            a(f's_cbranch_scc1 {L}_nod')
        a(f's_add_u32 m0, s27, {i*8192}')
        a(f's_add_u32 s28, s26, {i*8192}')
        a('buffer_load_dwordx4 v10, s[8:11], s28 offen lds')
    a.label(f'{L}_nod')
    BF, AF, ACC, T, XR = 16, 56, 96, 136, 216
    a('s_lshl_b32 s29, s13, 4')
    a('s_lshl_b32 s30, s20, 2')
    a('s_add_u32 s29, s29, s30')
    a('s_lshl_b32 s30, s22, 1')
    a('s_add_u32 s30, s30, s29')
    a('s_mul_i32 s30, s30, 20480')
    a('s_mul_i32 s31, s23, 5120')
    a('s_add_u32 s30, s30, s31')
    a(f's_add_u32 s30, s30, {WS_O}')
    for j in range(2):
        for i in range(5):
            a(f's_add_u32 s31, s30, {j*20480 + i*1024}')
            a(f'buffer_load_dwordx4 {v(BF+4*(5*j+i),4)}, v10, s[8:11], s31 offen')
    a('v_and_b32 v5, 15, v2')
    a('v_lshrrev_b32 v6, 4, v2')
    a('s_and_b32 s31, s12, 3')
    a('s_add_u32 s31, s31, s29')
    a('s_lshl_b32 s31, s31, 4')
    a('v_add_u32 v7, s31, v5')
    a('s_movk_i32 s32, 1280')
    a('v_mul_lo_u32 v7, v7, s32')
    a('v_lshl_add_u32 v7, v6, 3, v7')
    a('s_mul_i32 s32, s21, 160')
    for ft in range(5):
        a(f'buffer_load_dwordx2 {v(XR+2*ft,2)}, v7, s[16:19], s32 offen offset:{32*ft}')
    stamp(a, 2)
    a('s_waitcnt vmcnt(0)')
    a('s_barrier')
    stamp(a, 3)
    a('s_mul_i32 s33, s23, 5120')
    a('v_add_u32 v8, s33, v10')
    a('v_add_u32 v9, 0x10000, v8')
    def areads(i, buf):
        for ft in range(5):
            off = ft * 20480 + i * 1024
            base = 8
            if off >= 65536: off -= 65536; base = 9
            a(f'ds_read_b128 {v(AF+20*buf+4*ft,4)}, v{base} offset:{off}')
    areads(0, 0)
    for i in range(5):
        if i < 4:
            areads(i + 1, (i + 1) & 1)
            a('s_waitcnt lgkmcnt(5)')
        else:
            a('s_waitcnt lgkmcnt(0)')
        for ft in range(5):
            for j in range(2):
                acc = v(ACC + 4 * (2 * ft + j), 4)
                a(f'v_mfma_f32_16x16x32_bf16 {acc}, {v(AF+20*(i&1)+4*ft,4)}, {v(BF+4*(5*j+i),4)}, {"0" if i == 0 else acc}')
    stamp(a, 4)
    a('s_barrier')
    ksplit_reduce(a, ACC, T, 12, 22, 23, 10, 11)
    a('s_cmp_ge_u32 s12, 4')
    a(f's_cbranch_scc1 {L}_end')
    ksplit_gather(a, T, 12, 10, 11)
    for ft in range(5):
        for h2 in range(2):
            a(f'v_lshlrev_b32 v{T+20}, 16, v{XR+2*ft+h2}')
            a(f'v_and_b32 v{T+21}, 0xffff0000, v{XR+2*ft+h2}')
            a(f'v_add_f32 v{T+4*ft+2*h2}, v{T+4*ft+2*h2}, v{T+20}')
            a(f'v_add_f32 v{T+4*ft+2*h2+1}, v{T+4*ft+2*h2+1}, v{T+21}')
    a(f'v_mov_b32 v{T+20}, v{T}')
    a(f'v_mul_f32 v{T+21}, v{T}, v{T}')
    for r in range(1, 20):
        a(f'v_add_f32 v{T+20}, v{T+20}, v{T+r}')
        a(f'v_fmac_f32 v{T+21}, v{T+r}, v{T+r}')
    sum_q4(a, T+20, T+22, T+23)
    sum_q4(a, T+21, T+22, T+23)
    for i in range(10):
        a(f'v_cvt_pk_bf16_f32 v{T+24+i}, v{T+2*i}, v{T+2*i+1}')
    a('s_add_u32 s33, s29, s12')
    a('s_mul_i32 s34, s33, 20480')
    a('s_mul_i32 s35, s21, 2560')
    a('s_add_u32 s34, s34, s35')
    a(f's_add_u32 s34, s34, {WS_H}')
    a('v_lshrrev_b32 v11, 1, v6')
    a('v_lshlrev_b32 v11, 8, v11')
    a('v_lshl_add_u32 v11, v5, 4, v11')
    a('v_and_b32 v12, 1, v6')
    a('v_lshl_add_u32 v11, v12, 3, v11')
    for ft in range(5):
        a(f'buffer_store_dwordx2 {v(T+24+2*ft,2)}, v11, s[8:11], s34 offen offset:{512*ft}')
    a('s_lshl_b32 s33, s33, 10')
    a('s_lshl_b32 s35, s21, 3')
    a('s_add_u32 s33, s33, s35')
    a(f's_add_u32 s33, s33, {WS_ST2}')
    a('v_lshlrev_b32 v12, 6, v5')
    a('s_mov_b64 exec, 0xffff')
    a(f'buffer_store_dwordx2 {v(T+20,2)}, v12, s[8:11], s33 offen')
    a('s_mov_b64 exec, -1')
    stamp(a, 5)
    if PROF: a('s_waitcnt vmcnt(0)')
    stamp(a, 6, True)
    stamp_flush(a, 3, 7, 8, 12)
    a.label(f'{L}_end')
    a('s_endpgm')
    return a, descriptor(L, 232, 102), f'; @launch kernel={L} grid=(256,1,1) block=(512,1,1) lds=102400'

def k4():
    a = Asm()
    L = 'k4_kernel'
    kernel_begin(a, L)
    common_prologue(a, L, 4)
    a('s_cmp_ge_u32 s14, 28')
    a(f's_cbranch_scc1 {L}_end')
    a('s_and_b32 s13, s14, 1')
    a('s_and_b32 s15, s2, 7')
    a('s_lshl_b32 s15, s15, 1')
    a('s_add_u32 s13, s13, s15')
    a('s_lshr_b32 s14, s14, 1')
    lane_swap23(a, 5, 3, 6)
    a('s_cmp_lt_u32 s12, 4')
    a('s_cselect_b64 vcc, -1, 0')
    a('v_cndmask_b32 v6, v3, v5, vcc')
    a('v_lshrrev_b32 v7, 4, v6')
    a('s_movk_i32 s17, 20480')
    a('v_mul_lo_u32 v7, v7, s17')
    a('v_and_b32 v6, 15, v6')
    a('v_lshl_add_u32 v7, v6, 4, v7')
    a('v_lshl_add_u32 v7, v4, 8, v7')
    a('s_lshl_b32 s18, s14, 3')
    a('s_lshl_b32 s19, s12, 1')
    a('s_add_u32 s18, s18, s19')
    a('s_mul_i32 s18, s18, 20480')
    a(f's_add_u32 s18, s18, {WS_W1}')
    a('s_lshl_b32 s20, s13, 3')
    a('s_add_u32 s20, s20, s19')
    a('s_sub_u32 s20, s20, 8')
    a('s_mul_i32 s20, s20, 20480')
    a(f's_add_u32 s20, s20, {WS_H}')
    a('s_cmp_lt_u32 s12, 4')
    a('s_cselect_b32 s20, s18, s20')
    a('s_lshl_b32 s22, s12, 10')
    a('s_and_b32 s23, s12, 3')
    a('s_lshr_b32 s26, s12, 2')
    a('s_lshl_b32 s17, s23, 10')
    a('v_add_u32 v9, s17, v10')
    a('v_add_u32 v11, 0x10000, v9')
    a('s_lshl_b32 s17, s26, 11')
    a('s_add_u32 s17, s17, 4096')
    a('v_add_u32 v12, s17, v10')
    a('v_add_u32 v13, 0x10000, v12')
    ST, CS, B1 = 96, 128, 144
    a('s_lshl_b32 s27, s13, 7')
    a('s_lshl_b32 s28, s26, 6')
    a('s_add_u32 s27, s27, s28')
    a('v_add_u32 v14, s27, v3')
    a('v_lshlrev_b32 v14, 6, v14')
    a(f's_mov_b32 s28, {WS_ST2}')
    for j in range(2):
        for q in range(4):
            a(f'buffer_load_dwordx4 {v(ST+16*j+4*q,4)}, v14, s[8:11], s28 offen offset:{j*2048 + 16*q}')
    a('s_lshl_b32 s29, s14, 7')
    a('s_lshl_b32 s30, s23, 5')
    a('s_add_u32 s29, s29, s30')
    a('s_lshl_b32 s29, s29, 2')
    a('v_lshlrev_b32 v15, 5, v4')
    a(f's_add_u32 s30, s29, {WS_CS1}')
    a(f's_add_u32 s31, s29, {WS_B1F}')
    for q, off in enumerate((0, 16, 64, 80)):
        a(f'buffer_load_dwordx4 {v(CS+4*q,4)}, v15, s[8:11], s30 offen offset:{off}')
        a(f'buffer_load_dwordx4 {v(B1+4*q,4)}, v15, s[8:11], s31 offen offset:{off}')
    ACC, FA, FB = 32, 16, 64
    ring_gemm(a, 10, ACC, FA, FB, 7, (9, 11), (12, 13), 8, 20, 22, False, 'f1', pre=16)
    for j in range(2):
        b = ST + 16 * j
        for q in range(1, 8):
            a(f'v_add_f32 v{b}, v{b}, v{b+2*q}')
            a(f'v_add_f32 v{b+1}, v{b+1}, v{b+2*q+1}')
        a(f'v_mul_f32 v{b}, {f2hex(1.0/640)}, v{b}')
        a(f'v_mul_f32 v{b+1}, {f2hex(1.0/640)}, v{b+1}')
        a(f'v_fma_f32 v{b+1}, -v{b}, v{b}, v{b+1}')
        a(f'v_add_f32 v{b+1}, 0x3727c5ac, v{b+1}')
        a(f'v_rsq_f32 v{b+1}, v{b+1}')
        a(f'v_mul_f32 v{b}, v{b}, v{b+1}')
    for j in range(2):
        b = ST + 16 * j
        for r in range(16):
            a(f'v_fma_f32 v{b+2}, -v{b}, v{CS+r}, v{B1+r}')
            a(f'v_fma_f32 v{ACC+16*j+r}, v{b+1}, v{ACC+16*j+r}, v{b+2}')
            a(f'v_max_f32 v{ACC+16*j+r}, 0, v{ACC+16*j+r}')
            a(f'v_mul_f32 v{ACC+16*j+r}, v{ACC+16*j+r}, v{ACC+16*j+r}')
    for r in range(16):
        a(f'v_cvt_pk_bf16_f32 v{64+r}, v{ACC+2*r}, v{ACC+2*r+1}')
    a('s_lshl_b32 s17, s14, 2')
    a('s_add_u32 s17, s17, s23')
    a('s_cmp_ge_u32 s17, 54')
    a(f's_cbranch_scc1 {L}_end')
    a('v_lshrrev_b32 v13, 4, v3')
    a('s_mov_b32 s18, 55296')
    a('v_mul_lo_u32 v13, v13, s18')
    a('v_and_b32 v14, 15, v3')
    a('v_lshl_add_u32 v13, v14, 4, v13')
    a('v_lshl_add_u32 v13, v4, 8, v13')
    a('s_lshr_b32 s18, s27, 4')
    a('s_mul_i32 s18, s18, 55296')
    a('s_lshl_b32 s17, s17, 10')
    a('s_add_u32 s17, s17, s18')
    a(f's_add_u32 s17, s17, {WS_G}')
    for j in range(2):
        a(f'buffer_store_dwordx4 {v(64+8*j,4)}, v13, s[8:11], s17 offen')
        a(f'buffer_store_dwordx4 {v(68+8*j,4)}, v13, s[8:11], s17 offen offset:512')
        if j == 0: a(f's_add_u32 s17, s17, {2*55296}')
    stamp(a, 5)
    if PROF: a('s_waitcnt vmcnt(0)')
    stamp(a, 6, True)
    stamp_flush(a, 4, 7, 8, 12)
    a.label(f'{L}_end')
    a('s_endpgm')
    return a, descriptor(L, 160, 102), f'; @launch kernel={L} grid=(256,1,1) block=(512,1,1) lds=131072'

F2_KS = (14, 14, 13, 13)
F2_K0 = (0, 14, 28, 41)
def k5():
    a = Asm()
    L = 'k5_kernel'
    kernel_begin(a, L)
    common_prologue(a, L, 5)
    srd(a, 16, 24, S * D * 2)
    a('s_and_b32 s20, s14, 3')
    a('s_lshr_b32 s21, s14, 2')
    a('s_lshr_b32 s22, s12, 2')
    a('s_and_b32 s23, s12, 3')
    a('s_mul_i32 s26, s23, 14')
    a('s_cmp_eq_u32 s23, 3')
    a('s_cselect_b32 s27, 1, 0')
    a('s_sub_u32 s26, s26, s27')
    a('s_mul_i32 s28, s21, 276480')
    a(f's_add_u32 s28, s28, {WS_W2}')
    a('s_add_u32 s29, s26, s22')
    a('s_lshl_b32 s29, s29, 10')
    a('s_add_u32 s28, s28, s29')
    a('s_lshl_b32 s29, s23, 1')
    a('s_add_u32 s29, s29, s22')
    a('s_mul_i32 s29, s29, 5120')
    NST = 7
    issued = []
    def dma_stage(st):
        slot = st % 3
        for ft in range(5):
            a(f's_add_u32 m0, s29, {slot*40960 + ft*1024}')
            a(f's_add_u32 s30, s28, {st*2048 + ft*55296}')
            a('buffer_load_dwordx4 v10, s[8:11], s30 offen lds')
            issued.append(('w', st))
    BF, ACC, AF, T = 16, 128, 168, 16
    dma_stage(0)
    a('s_lshl_b32 s31, s13, 4')
    a('s_lshl_b32 s32, s20, 2')
    a('s_add_u32 s31, s31, s32')
    a('s_lshl_b32 s32, s22, 1')
    a('s_add_u32 s32, s32, s31')
    a('s_mul_i32 s32, s32, 55296')
    a('s_lshl_b32 s33, s26, 10')
    a('s_add_u32 s32, s32, s33')
    a(f's_add_u32 s32, s32, {WS_G}')
    def bload(i):
        for j in range(2):
            a(f's_add_u32 s33, s32, {j*55296 + i*1024}')
            a(f'buffer_load_dwordx4 {v(BF+8*i+4*j,4)}, v10, s[8:11], s33 offen')
            issued.append(('b', i))
    for i in range(4): bload(i)
    dma_stage(1)
    for i in range(4, 8): bload(i)
    dma_stage(2)
    for i in range(8, 14): bload(i)
    def wait_for(pred):
        n = 0
        for x in reversed(issued):
            if pred(x): break
            n += 1
        a(f's_waitcnt vmcnt({min(n, 63)})')
    a('s_mul_i32 s34, s23, 10240')
    a('v_add_u32 v8, s34, v10')
    a('v_add_u32 v9, 0x10000, v8')
    def areads(st, i, buf):
        for ft in range(5):
            off = (st % 3) * 40960 + i * 5120 + ft * 1024
            base = 8
            if off >= 65536: off -= 65536; base = 9
            a(f'ds_read_b128 {v(AF+20*buf+4*ft,4)}, v{base} offset:{off}')
    stamp(a, 2)
    for st in range(NST):
        wait_for(lambda x: x == ('w', st) or x == ('b', min(2*st+1, 13)))
        a('s_barrier')
        if st == 0: stamp(a, 3)
        if st >= 1 and st + 2 < NST: dma_stage(st + 2)
        areads(st, 0, 0)
        areads(st, 1, 1)
        for i in range(2):
            ks = 2 * st + i
            a(f's_waitcnt lgkmcnt({5 if i == 0 else 0})')
            last = (ks == 13)
            if last:
                a('s_cmp_ge_u32 s23, 2')
                a(f's_cbranch_scc1 {L}_skip')
            for ft in range(5):
                for j in range(2):
                    acc = v(ACC + 4 * (2 * ft + j), 4)
                    a(f'v_mfma_f32_16x16x32_bf16 {acc}, {v(AF+20*i+4*ft,4)}, {v(BF+8*ks+4*j,4)}, {"0" if ks == 0 else acc}')
            if last: a.label(f'{L}_skip')
    stamp(a, 4)
    a('s_nop 7')
    a('s_barrier')
    ksplit_reduce(a, ACC, T, 12, 22, 23, 10, 11)
    a('s_cmp_ge_u32 s12, 4')
    a(f's_cbranch_scc1 {L}_end')
    a('v_and_b32 v5, 15, v2')
    a('v_lshrrev_b32 v6, 4, v2')
    HR, BB = 100, 112
    a('s_add_u32 s33, s31, s12')
    a('s_mul_i32 s34, s33, 20480')
    a('s_mul_i32 s35, s21, 2560')
    a('s_add_u32 s34, s34, s35')
    a(f's_add_u32 s34, s34, {WS_H}')
    a('v_lshrrev_b32 v11, 1, v6')
    a('v_lshlrev_b32 v11, 8, v11')
    a('v_lshl_add_u32 v11, v5, 4, v11')
    a('v_and_b32 v12, 1, v6')
    a('v_lshl_add_u32 v11, v12, 3, v11')
    for ft in range(5):
        a(f'buffer_load_dwordx2 {v(HR+2*ft,2)}, v11, s[8:11], s34 offen offset:{512*ft}')
    a('s_mul_i32 s35, s21, 320')
    a(f's_add_u32 s35, s35, {WS_B2F}')
    a('v_lshlrev_b32 v12, 4, v6')
    for ft in range(5):
        a(f'buffer_load_dwordx4 {v(BB+4*ft,4)}, v12, s[8:11], s35 offen offset:{64*ft}')
    ksplit_gather(a, T, 12, 10, 13)
    a('s_waitcnt vmcnt(0)')
    for ft in range(5):
        for h2 in range(2):
            a(f'v_lshlrev_b32 v{T+20}, 16, v{HR+2*ft+h2}')
            a(f'v_and_b32 v{T+21}, 0xffff0000, v{HR+2*ft+h2}')
            a(f'v_add_f32 v{T+4*ft+2*h2}, v{T+4*ft+2*h2}, v{BB+4*ft+2*h2}')
            a(f'v_add_f32 v{T+4*ft+2*h2+1}, v{T+4*ft+2*h2+1}, v{BB+4*ft+2*h2+1}')
            a(f'v_add_f32 v{T+4*ft+2*h2}, v{T+4*ft+2*h2}, v{T+20}')
            a(f'v_add_f32 v{T+4*ft+2*h2+1}, v{T+4*ft+2*h2+1}, v{T+21}')
    for i in range(10):
        a(f'v_cvt_pk_bf16_f32 v{T+24+i}, v{T+2*i}, v{T+2*i+1}')
    a('s_lshl_b32 s33, s33, 4')
    a('v_add_u32 v7, s33, v5')
    a('s_movk_i32 s34, 1280')
    a('v_mul_lo_u32 v7, v7, s34')
    a('v_lshl_add_u32 v7, v6, 3, v7')
    a('s_mul_i32 s34, s21, 160')
    for ft in range(5):
        a(f'buffer_store_dwordx2 {v(T+24+2*ft,2)}, v7, s[16:19], s34 offen offset:{32*ft}')
    stamp(a, 5)
    if PROF: a('s_waitcnt vmcnt(0)')
    stamp(a, 6, True)
    stamp_flush(a, 5, 7, 8, 12)
    a.label(f'{L}_end')
    a('s_endpgm')
    return a, descriptor(L, 232, 102), f'; @launch kernel={L} grid=(256,1,1) block=(512,1,1) lds=122880'

import struct
def f2hex(x):
    return '0x%08x' % struct.unpack('<I', struct.pack('<f', x))[0]

HEADER = """; preLN MHA block + squared-ReLU FFN, S=2048 D=640 H=32 Dh=20 F=1728, bf16 in / bf16 out, fp32 accumulation.
; Launch 1 (k1_kernel): LayerNorm1 folded into the QKV GEMM (128x128 tiles; waves 0-3 multiply, waves 4-7 reduce the row
;   statistics), q/k/v written in MFMA-fragment order, wo/w1/w2 repacked to fragment order, column sums of w1.
;   attention -> O projection (+residual) -> LayerNorm2 + FFN1 -> FFN2 (+residual), handing data over through flags in ws.
"""

def build(kernels):
    txt = HEADER
    bodies = []; descs = []
    for k in kernels:
        a, d, launch = k()
        txt += launch + '\n'
        lines, probs = fix_hazards(a.lines)
        if probs:
            for p in probs: print('HAZARD on branch edge:', p, file=sys.stderr)
        for p in check_async(lines)[:20]: print('ASYNC:', p, file=sys.stderr)
        bodies.append(render(lines)); descs.append(d)
    txt += '.amdgcn_target "amdgcn-amd-amdhsa--gfx950"\n.text\n'
    txt += '\n'.join(bodies)
    txt += '.section .rodata,"a"\n.p2align 6\n' + '\n.p2align 6\n'.join(descs)
    return txt

if __name__ == '__main__':
    if 'prof' in sys.argv: PROF = True
    for x in sys.argv[2:]:
        if x.startswith('x:'): EXP.add(x[2:])
    ks = [k0, k1, k2, k3, k4, k5]
    out = sys.argv[1] if len(sys.argv) > 1 else 'test.s'
    open(out, 'w').write(build(ks))
    print('wrote', out)
```

```python
import sys
sys.path.insert(0, 'dev')
import gen, gen2
from gen import *
from gen2 import lab, stores2, attn_units, wo_dma, WS_XT, SG, SJ, SPURE, LDS_WO, SPIN_MAX
from asmlib import *

class VM:
    def __init__(self): self.ops = []
    def issue(self, tag): self.ops.append(tag)
    def count_after(self, pred):
        n = 0
        for x in reversed(self.ops):
            if pred(x): return n
            n += 1
        raise Exception('no op matches')
    def wait(self, a, pred, extra=''):
        a(f's_waitcnt vmcnt({min(self.count_after(pred), 63)}){extra}')

XR0 = 136
W1A, W1B = 152, 16
def w1reg(s): return W1A + 4 * s if s < 26 else W1B + 4 * (s - 26)
SH, SR = 36, 37
S_OOB = 38
S_DONE = 39
FB_LDS = 159744
S_W1 = 98
V_W1 = 1

def flag_store(a, p, vt):
    g_, j_ = (SR, SH) if p == 0 else (SG, SJ)
    a(f's_lshl_b32 s40, s{g_}, 7')
    a(f's_lshl_b32 s41, s{j_}, 2')
    a('s_add_u32 s40, s40, s41')
    a(f's_add_u32 s40, s40, {WS_FLAG + p*1024}')
    a(f'v_mov_b32 v{vt}, 0')
    a(f'v_mov_b32 v{vt+1}, 1')
    a('s_mov_b64 exec, 1')
    stores2(a, [f'buffer_store_dword v{vt+1}, v{vt}, s[8:11], s40 offen'])
    a('s_mov_b64 exec, -1')

def sync(a, p_pub, p_wait, smask_setup, prefetch, vt=14, drained=False, w0_prefetch=True, pre_pub=None, pr=(149, 150)):
    if pre_pub is not None:
        lpa, lpb = lab('pp'), lab('pp')
        a('s_cmp_lg_u32 s12, 0')
        a(f's_cbranch_scc0 {lpa}')
        n_after = pre_pub()
        a(f's_waitcnt vmcnt({n_after})')
        a(f's_branch {lpb}')
        a.label(lpa)
        a('s_waitcnt vmcnt(0)')
        a.label(lpb)
        if p_pub is not None: a('s_barrier')
    elif p_pub is not None and not drained:
        a('s_waitcnt vmcnt(0)')
        a('s_barrier')
    l0, l1, lp, ld, l3 = lab('sy'), lab('sy'), lab('sy'), lab('sy'), lab('sy')
    a('s_cmp_lg_u32 s12, 0')
    a(f's_cbranch_scc1 {l0}')
    if p_pub is not None: flag_store(a, p_pub, vt)
    smask_setup()
    a(f's_lshl_b32 s40, s{SG}, 7')
    a(f's_add_u32 s40, s40, {WS_FLAG + p_wait*1024}')
    a(f'v_lshlrev_b32 v{vt}, 2, v2')
    a('s_mov_b64 exec, s[44:45]')
    a('s_mov_b32 s41, 0')
    if 'poll1' in gen.EXP:
        a.label(lp)
        a(f'buffer_load_dword v{vt+1}, v{vt}, s[8:11], s40 offen sc1')
        a('s_add_u32 s41, s41, 1')
        a('s_waitcnt vmcnt(0)')
        a(f'v_cmp_eq_u32 vcc, 0, v{vt+1}')
        a(f's_cbranch_vccz {ld}')
        a(f's_cmp_lt_u32 s41, {SPIN_MAX}')
        a(f's_cbranch_scc1 {lp}')
        a.label(ld)
    else:
        p0, p1 = pr
        a(f'buffer_load_dword v{p0}, v{vt}, s[8:11], s40 offen sc1')
        a.label(lp)
        a(f'buffer_load_dword v{p1}, v{vt}, s[8:11], s40 offen sc1')
        a('s_waitcnt vmcnt(1)')
        a(f'v_cmp_eq_u32 vcc, 0, v{p0}')
        a(f's_cbranch_vccz {ld}')
        a(f'buffer_load_dword v{p0}, v{vt}, s[8:11], s40 offen sc1')
        a('s_add_u32 s41, s41, 1')
        a('s_waitcnt vmcnt(1)')
        a(f'v_cmp_eq_u32 vcc, 0, v{p1}')
        a(f's_cbranch_vccz {ld}')
        a(f's_cmp_lt_u32 s41, {SPIN_MAX}')
        a(f's_cbranch_scc1 {lp}')
        a.label(ld)
    a('s_mov_b64 exec, -1')
    a(f's_cmp_eq_u32 s{SPURE}, 1')
    a(f's_cbranch_scc1 {l3}')
    a('buffer_inv sc1')
    a('s_waitcnt vmcnt(0)')
    a.label(l3)
    a('s_barrier')
    if w0_prefetch: prefetch()
    a(f's_branch {l1}')
    a.label(l0)
    prefetch()
    a('s_barrier')
    a.label(l1)

def late_init(a, vm, L):
    merged = 'merge' in gen.EXP
    if not merged:
        a(f's_lshl_b32 s40, s{SG}, 7')
        a(f's_lshl_b32 s41, s{SJ}, 2')
        a('s_add_u32 s40, s40, s41')
        a(f's_add_u32 s40, s40, {WS_XT}')
        a('s_cmp_eq_u32 s12, 0')
        a('s_cselect_b32 s40, s40, 0x7ff00000')
        a('v_mov_b32 v14, 0')
        a(f'v_mov_b32 v15, s{SPURE}')
        a('s_mov_b64 exec, 1')
        a('buffer_store_dword v15, v14, s[8:11], s40 offen sc1')
        a('s_mov_b64 exec, -1')
        vm.issue('xts')

def phase_attn(a, L):
    R = AR
    attn_ones(a)
    a(f's_lshr_b32 s62, s{SJ}, 2')
    a('s_mul_i32 s62, s62, 102400')
    a(f's_add_u32 s62, s62, {WS_WO}')
    a('s_lshl_b32 s61, s12, 10')
    a('s_add_u32 s62, s62, s61')
    a('s_cmp_lt_u32 s12, 4')
    a(f's_mov_b32 s63, {11*8192}')
    a(f's_cselect_b32 s63, {12*8192}, s63')
    a('s_add_u32 s63, s63, s62')
    a(f's_add_u32 s61, s61, {LDS_WO}')
    if 'rolled' in gen.EXP:
        for r in range(32): a(f'v_mov_b32 v{R.O+r}, 0')
        for r in range(16): a(f'v_mov_b32 v{R.P+r}, 0')
        for r in range(16): a(f'v_mov_b32 v{R.VV+r}, 0')
    vm = VM()
    a(f's_mov_b32 s{S_DONE}, 0')
    a(f'v_mov_b32 v14, {FB_LDS}')
    a('v_mov_b32 v15, 0')
    a('ds_write_b32 v14, v15')
    def w1_addr(a_):
        lane_swap23(a_, 14, 3, 15)
        a_('v_lshrrev_b32 v15, 4, v14')
        a_('s_movk_i32 s40, 20480')
        a_('v_mul_lo_u32 v15, v15, s40')
        a_('v_and_b32 v14, 15, v14')
        a_('v_lshl_add_u32 v15, v14, 4, v15')
        a_(f'v_lshl_add_u32 v{V_W1}, v4, 8, v15')
        a_(f's_lshr_b32 s40, s{SJ}, 1')
        a_('s_lshl_b32 s40, s40, 2')
        a_('s_and_b32 s41, s12, 3')
        a_('s_add_u32 s40, s40, s41')
        a_('s_mul_i32 s41, s40, 40960')
        a_(f's_add_u32 s41, s41, {WS_W1}')
        a_('s_cmp_lt_u32 s40, 54')
        a_(f's_cselect_b32 s{S_W1}, s41, 0x7ff00000')
    def touch_addr(a_):
        a_(f's_mov_b32 s{S_OOB}, 0x7ff00000')
        lt1, lt2 = lab('tc'), lab('tc')
        a_('v_lshlrev_b32 v148, 7, v2')
        a_('s_cmp_ge_u32 s12, 4')
        a_(f's_cbranch_scc1 {lt1}')
        a_(f's_mul_i32 s50, s{SG}, {16*20480}')
        a_(f's_mul_i32 s40, s{SJ}, 10240')
        a_('s_add_u32 s50, s50, s40')
        a_('s_and_b32 s40, s12, 1')
        a_('s_mul_i32 s40, s40, 5120')
        a_('s_add_u32 s50, s50, s40')
        a_('s_lshr_b32 s40, s12, 1')
        a_(f's_mul_i32 s40, s40, {WS_H - WS_O}')
        a_('s_add_u32 s50, s50, s40')
        a_(f's_add_u32 s50, s50, {WS_O}')
        a_('v_add_u32 v148, s50, v148')
        a_(f's_lshr_b32 s40, s{SJ}, 1')
        a_('s_lshl_b32 s40, s40, 14')
        a_(f's_lshl_b32 s41, s{SG}, 11')
        a_('s_add_u32 s40, s40, s41')
        a_(f's_and_b32 s41, s{SJ}, 1')
        a_('s_lshl_b32 s41, s41, 10')
        a_('s_add_u32 s40, s40, s41')
        a_(f's_add_u32 s40, s40, {WS_ST2 - 40*128}')
        a_('s_cmp_eq_u32 s12, 2')
        a_('s_cselect_b32 s40, s40, 0x7ff00000')
        a_('v_lshlrev_b32 v149, 7, v2')
        a_('v_add_u32 v149, s40, v149')
        a_('v_mov_b32 v14, 0x7ff00000')
        a_('v_cmp_gt_u32 vcc, 48, v2')
        a_('v_cndmask_b32 v149, v14, v149, vcc')
        a_('v_cmp_gt_u32 vcc, 40, v2')
        a_('v_cndmask_b32 v148, v149, v148, vcc')
        a_(f's_branch {lt2}')
        a_.label(lt1)
        a_('s_sub_u32 s40, s12, 4')
        a_('s_lshl_b32 s40, s40, 5')
        a_(f's_add_u32 s40, s40, s{SJ}')
        a_('s_mul_i32 s50, s40, 20480')
        a_(f's_add_u32 s50, s50, {WS_W1 + 13312}')
        a_('s_cmp_lt_u32 s40, 108')
        a_('s_cselect_b32 s50, s50, 0x7ff00000')
        a_('v_add_u32 v148, s50, v148')
        a_('v_mov_b32 v14, 0x7ff00000')
        a_('v_cmp_gt_u32 vcc, 56, v2')
        a_('v_cndmask_b32 v148, v14, v148, vcc')
        a_.label(lt2)
        a_('v_lshlrev_b32 v147, 7, v2')
        a_('s_lshl_b32 s40, s12, 13')
        a_(f's_mul_i32 s51, s{SG}, {16*55296}')
        a_(f's_mul_i32 s41, s{SJ}, 27648')
        a_('s_add_u32 s51, s51, s41')
        a_('s_add_u32 s51, s51, s40')
        a_(f's_add_u32 s51, s51, {WS_G}')
        a_('s_cmp_ge_u32 s12, 4')
        a_('s_cselect_b32 s51, 0x7ff00000, s51')
        a_(f's_and_b32 s40, s{SJ}, 3')
        a_('s_lshl_b32 s40, s40, 2')
        a_(f's_lshl_b32 s41, s{SG}, 4')
        a_('s_add_u32 s40, s40, s41')
        a_('s_and_b32 s41, s12, 3')
        a_('s_add_u32 s40, s40, s41')
        a_('s_lshl_b32 s40, s40, 4')
        a_('v_and_b32 v0, 15, v2')
        a_('v_add_u32 v0, s40, v0')
        a_('s_movk_i32 s41, 1280')
        a_('v_mul_lo_u32 v0, v0, s41')
        a_('v_lshrrev_b32 v14, 4, v2')
        a_('v_lshl_add_u32 v0, v14, 3, v0')
        a_(f's_lshr_b32 s57, s{SJ}, 2')
        a_('s_mul_i32 s57, s57, 160')
        a_('s_lshr_b32 s40, s12, 2')
        a_('s_mul_i32 s40, s40, 96')
        a_('s_add_u32 s57, s57, s40')
    INLOOP = 'rolled' not in gen.EXP
    if not INLOOP:
        w1_addr(a); touch_addr(a)
    def rec(fn):
        t_ = Asm(); fn(t_); return list(t_.lines)
    if 'earlyinit' in gen.EXP: late_init(a, VM(), L)
    a('s_waitcnt vmcnt(0)')
    for st in (1, 2):
        attn_dma(a, st, 8); vm.issue(('kv', st)); vm.issue(('kv', st))
    for x in wo_dma(): a(x)
    vm.issue('wo')
    if 'earlyinit' not in gen.EXP: late_init(a, vm, L)
    if 'notlb' not in gen.EXP:
        a('v_lshlrev_b32 v149, 16, v2')
        a('s_lshl_b32 s40, s12, 22')
        a('buffer_load_dword v149, v149, s[8:11], s40 offen')
        a('v_lshlrev_b32 v148, 16, v2')
        a('buffer_load_dword v148, v148, s[76:79], 0 offen')
    a('v_cmp_gt_u32 vcc, 32, v2')
    for r in range(4): a(f'v_cndmask_b32 v{R.QC+r}, 0, v{R.QC+r}, vcc')
    a('s_waitcnt lgkmcnt(0)')
    a('s_barrier')
    a(f'ds_read_b128 {v(R.KA,4)}, v11 offset:0')
    a(f'ds_read_b64 {v(R.KC,2)}, v12 offset:0')
    a('s_waitcnt lgkmcnt(0)')
    a(f'v_mfma_f32_32x32x16_bf16 {v(R.S,16)}, {v(R.KA,4)}, {v(R.QA,4)}, 0')
    a(f'v_mfma_f32_32x32x8bf16_1k {v(R.S,16)}, {v(R.KC,2)}, {v(R.QC,2)}, {v(R.S,16)}')
    stamp(a, 7)
    wnext = [0]
    def w1load():
        s_ = wnext[0]; wnext[0] += 1
        return [f's_add_u32 s40, s{S_W1}, {s_*512}', f'buffer_load_dwordx4 {v(w1reg(s_),4)}, v{V_W1}, s[8:11], s40 offen']
    plan = {}
    waits = {}
    nW = {2: 3, 3: 3, 4: 3, 5: 3, 6: 4, 7: 4, 8: 3, 9: 3}
    if 'now1a' in gen.EXP: nW = {}
    if 'w1aL' in gen.EXP: nW = {5: 3, 6: 3, 7: 4, 8: 4, 9: 3, 10: 3, 11: 3, 12: 3}
    if 'w1aE' in gen.EXP: nW = {1: 4, 2: 4, 3: 4, 4: 4, 5: 4, 6: 3, 7: 3}
    if 'w1aM' in gen.EXP: nW = {3: 2, 4: 3, 5: 3, 6: 3, 7: 3, 8: 3, 9: 3, 10: 3, 11: 3}
    ROLL = 'rolled' in gen.EXP
    if ROLL: nW = {8: 4, 9: 4, 10: 4, 11: 4, 12: 4, 13: 3, 14: 3}
    def masked(sreg, cond_lo, cond_hi, vreg):
        return [f's_sub_u32 s40, s12, {cond_lo}', f's_cmp_lt_u32 s40, {cond_hi - cond_lo}', f's_cselect_b32 s40, {sreg}, s{S_OOB}',
                f'buffer_load_dword v149, v{vreg}, s[8:11], s40 offen']
    for g in range(16):
        ex = {}
        late_ops = []
        k = nW.get(g, 0)
        slots = sorted([(0, 20), (1, 8), (1, 20), (2, 20)][:k])
        if g <= 11:
            ex.setdefault(0, {})[8] = wo_dma(); vm.issue('wo')
        if INLOOP and g == 0: ex.setdefault(1, {})[9] = rec(w1_addr)
        if INLOOP and g == 1:
            tl_ = rec(touch_addr)
            ex.setdefault(1, {})[9] = tl_
        if g == 12:
            ex.setdefault(0, {})[8] = [f's_lshl_b32 s40, s{SG}, 7', f's_add_u32 s40, s40, {WS_XT}', 'v_lshlrev_b32 v150, 2, v3',
                                       'buffer_load_dword v150, v150, s[8:11], s40 offen sc1']
            vm.issue('xt')
        tl = None
        if g == 10: tl = masked('0', 4, 6, 148)
        if g == 11: tl = masked('0', 6, 8, 148)
        if g == 12: tl = masked('0', 0, 4, 148)
        if g == 13: tl = ['buffer_load_dword v149, v147, s[8:11], s51 offen']
        if g == 9 and 'outtouch' in gen.EXP:
            ex.setdefault(2, {})[12] = [f's_and_b32 s40, s{SJ}, 3', 's_lshl_b32 s40, s40, 6', f's_lshl_b32 s41, s{SG}, 8', 's_add_u32 s40, s40, s41',
                                        'v_add_u32 v14, s40, v2', 's_movk_i32 s41, 1280', 'v_mul_lo_u32 v14, v14, s41',
                                        f's_lshr_b32 s40, s{SJ}, 2', 's_mul_i32 s40, s40, 160', 's_lshl_b32 s41, s12, 7', 's_add_u32 s40, s40, s41',
                                        's_cmp_lt_u32 s12, 2', f's_cselect_b32 s40, s40, s{S_OOB}',
                                        'buffer_load_dword v149, v14, s[76:79], s40 offen']
            late_ops.append('touch')
        if g in (5, 6, 7, 8) and 'w2touch' in gen.EXP:
            q_ = g - 5
            ex.setdefault(2, {})[12] = [f's_mul_i32 s41, s{SJ}, 69120', 's_lshl_b32 s40, s12, 13', 's_add_u32 s41, s41, s40', f's_add_u32 s41, s41, {WS_W2}',
                                        f's_sub_u32 s40, s12, {2*q_}', 's_cmp_lt_u32 s40, 2', f's_cselect_b32 s40, s41, s{S_OOB}',
                                        'v_lshlrev_b32 v14, 7, v2', 'buffer_load_dword v149, v14, s[8:11], s40 offen']
            late_ops.append('touch')
        if tl and 'notouch' not in gen.EXP:
            ex.setdefault(1, {})[14] = tl; vm.issue('touch')
        post = []
        pre_ops = []
        for (u, pos) in slots:
            if u < 2: ex.setdefault(u, {})[pos] = w1load(); vm.issue('w1')
            else: post.append((u, pos))
        if g < 15: waits[g] = vm.count_after(lambda x: x == ('kv', g + 1))
        if ROLL and g < 8: waits[g] = 4
        for x_ in late_ops: vm.issue(x_)
        for (u, pos) in post:
            ex.setdefault(u, {})[pos] = w1load(); vm.issue('w1')
        if g <= 12:
            vm.issue(('kv', g + 3)); vm.issue(('kv', g + 3))
        if g == 13:
            ex.setdefault(3, {})[20] = [f'buffer_load_dwordx2 {v(XR0+2*i,2)}, v0, s[72:75], s57 offen offset:{32*i}' for i in range(3)]
            for i in range(3): vm.issue('xr')
        plan[g] = ex
    assert wnext[0] == 26 or 'now1a' in gen.EXP, wnext
    def run(stages_g):
        loc = {g % 4: g for g in stages_g}
        def prio(st, u):
            g = loc[st]
            if g == 15: return {0: 2, 1: 1, 2: 1, 3: 0}[u]
            if g == 14 and u >= 2: return 3
            return {2: 3, 3: 2, 0: 1, 1: 0}[u]
        return attn_units(a, 8, [(g % 4, g == 15) for g in stages_g], lambda st: loc[st] <= 12,
                          lambda st, u: plan[loc[st]].get(u, {}), lambda st: waits[loc[st]], prio,
                          start=(stages_g[0] == 0 and 'rolled' not in gen.EXP),
                          gstamp=(lambda st: stamp(a, {1: 2, 3: 4, 5: 5, 7: 8, 9: 9, 11: 10, 13: 11}[loc[st]]) if loc[st] in (1, 3, 5, 7, 9, 11, 13) else None) if 'atstamp' in gen.EXP else None)
    a.in_attn = True
    if ROLL:
        a('s_mov_b32 s60, 2')
        a.label('.Lat_loop')
        run([4, 5, 6, 7])
        a('s_sub_u32 s60, s60, 1')
        a('s_cmp_lg_u32 s60, 0')
        a('s_cbranch_scc1 .Lat_loop')
        run([8, 9, 10, 11])
    else:
        for b_ in range(3): run([4*b_ + i for i in range(4)])
    m1, m2, m3, m4, _ = run([12, 13, 14, 15])
    a.in_attn = False
    a(m3(1, 1, 1)); a(m4(1, 1, 1))
    a('s_setprio 0')
    stamp(a, 3)
    lp, ld = lab('xt'), lab('xt')
    a('s_mov_b32 s41, 0')
    a('v_cmp_eq_u32 vcc, 0, v150')
    a(f's_cbranch_vccz {ld}')
    a.label(lp)
    a(f's_lshl_b32 s40, s{SG}, 7')
    a(f's_add_u32 s40, s40, {WS_XT}')
    a('v_lshlrev_b32 v14, 2, v3')
    a('buffer_load_dword v150, v14, s[8:11], s40 offen sc1')
    a('s_add_u32 s41, s41, 1')
    a('s_waitcnt vmcnt(0)')
    a('v_cmp_eq_u32 vcc, 0, v150')
    a(f's_cbranch_vccz {ld}')
    a(f's_cmp_lt_u32 s41, {SPIN_MAX}')
    a(f's_cbranch_scc1 {lp}')
    a.label(ld)
    a(f'v_cmp_ne_u32 vcc, s{SPURE}, v150')
    a('s_cmp_eq_u64 vcc, 0')
    a(f's_cselect_b32 s{SPURE}, 1, 0')
    if 'slow' in gen.EXP: a(f's_mov_b32 s{SPURE}, 0')
    TT = R.S
    a.label('.Lat_combine')
    a('s_cmp_eq_u32 s46, 0')
    a('s_cbranch_scc1 .Lat_noswap')
    a('s_nop 7')
    for r in range(12): a(f'v_swap_b32 v{R.O+r}, v{R.O+16+r}')
    a.label('.Lat_noswap')
    a('s_nop 7')
    a(f's_mul_i32 s40, s12, 3072')
    a('v_add_u32 v14, s40, v10')
    for i in range(3): a(f'ds_write_b128 v14, {v(R.O+16+4*i,4)} offset:{1024*i}')
    a('s_xor_b32 s40, s12, 4')
    a('s_mul_i32 s40, s40, 3072')
    a('v_add_u32 v14, s40, v10')
    a('s_waitcnt lgkmcnt(0)')
    a('s_barrier')
    for i in range(3): a(f'ds_read_b128 {v(TT+4*i,4)}, v14 offset:{1024*i}')
    a('s_waitcnt lgkmcnt(0)')
    for r in range(12): a(f'v_add_f32 v{R.O+r}, v{R.O+r}, v{TT+r}')
    a(f'v_mov_b32 v{TT}, v{R.O+8}')
    a(f'v_mov_b32 v{TT+1}, v{R.O+8}')
    a(f'v_permlane32_swap_b32 v{TT}, v{TT+1}')
    a(f'v_mov_b32 v{TT+2}, 0')
    for r in range(12): a(f'v_fmac_f32 v{TT+2}, 0, v{R.O+r}')
    a('s_mov_b32 s40, 0x1f800000')
    a(f'v_cmp_nle_f32 vcc, s40, v{TT+1}')
    a('s_mov_b32 s40, 0x5f800000')
    a(f'v_cmp_nge_f32 s[44:45], s40, v{TT+1}')
    a('s_or_b64 s[44:45], s[44:45], vcc')
    a(f'v_cmp_u_f32 vcc, v{TT+2}, v{TT+2}')
    a('s_or_b64 s[44:45], s[44:45], vcc')
    if 'forcefb' in gen.EXP: a('s_mov_b64 s[44:45], -1')
    lok = lab('ok')
    a('s_cmp_eq_u64 s[44:45], 0')
    a(f's_cbranch_scc1 {lok}')
    a(f'v_mov_b32 v{TT+2}, {FB_LDS}')
    a(f'v_mov_b32 v{TT+3}, 1')
    a(f'ds_write_b32 v{TT+2}, v{TT+3}')
    a.label(lok)
    a(f'v_rcp_f32 v{TT+1}, v{TT+1}')
    for r in range(12): a(f'v_mul_f32 v{R.O+r}, v{R.O+r}, v{TT+1}')
    for i in range(6): a(f'v_cvt_pk_bf16_f32 v{TT+4+i}, v{R.O+2*i}, v{R.O+2*i+1}')
    a('s_mul_i32 s61, s46, 40960')
    a('s_add_u32 s61, s61, s47')
    a(f's_add_u32 s61, s61, {WS_O}')
    a('s_lshl_b32 s62, s42, 8')
    a('s_add_u32 s62, s62, s61')
    a('s_lshl_b32 s63, s43, 8')
    a('s_add_u32 s63, s63, s61')
    a(f's_and_b32 s61, s{SH}, 1')
    a('s_lshl_b32 s61, s61, 3')
    a('s_add_u32 s63, s63, s61')
    stores2(a, [f'buffer_store_dwordx4 {v(TT+4,4)}, v7, s[8:11], s62 offen',
                's_mov_b64 exec, 0xffffffff',
                f'buffer_store_dwordx2 {v(TT+8,2)}, v5, s[8:11], s63 offen',
                's_mov_b64 exec, -1'])
    stamp(a, 4)
    oproj_setup(a)
    a('s_waitcnt vmcnt(0) lgkmcnt(0)')
    a('s_barrier')
    a(f'v_mov_b32 v14, {FB_LDS}')
    a('ds_read_b32 v15, v14')
    a('s_waitcnt lgkmcnt(0)')
    a('v_readfirstlane_b32 s40, v15')
    a(f's_sub_u32 s40, s40, s{S_DONE}')
    a('s_cmp_eq_u32 s40, 1')
    a('s_cbranch_scc1 .Lat_fallback')
    a.label('.Lat_done')

def attn_fallback(a):
    R = AR
    SL = 2 * AT_SLOT
    S_, M0_, M1_ = R.S, R.S + 16, R.S + 17
    a.label('.Lat_fallback')
    a(f's_mov_b32 s{S_DONE}, 1')
    def load_stage():
        a('s_barrier')
        for x in attn_dma_parts(2, 8)[0] + attn_dma_parts(2, 8)[1]: a(x)
        a('s_waitcnt vmcnt(0)')
        a('s_barrier')
    def rewind():
        a(f's_sub_u32 s52, s52, {16*5120}')
        a(f's_sub_u32 s53, s53, {16*163840}')
    def scores(t, j):
        a(f'v_mfma_f32_32x32x16_bf16 {v(S_,16)}, {v(R.KA,4)}, {v(R.QA+4*j,4)}, 0')
        a(f'v_mfma_f32_32x32x8bf16_1k {v(S_,16)}, {v(R.KC,2)}, {v(R.QC+2*j,2)}, {v(S_,16)}')
    def kread(t):
        a(f'ds_read_b128 {v(R.KA,4)}, v11 offset:{SL + t*1024}')
        a(f'ds_read_b64 {v(R.KC,2)}, v12 offset:{SL + t*512}')
    rewind()
    a(f'v_mov_b32 v{M0_}, 0xff7fffff'); a(f'v_mov_b32 v{M1_}, 0xff7fffff')
    a('s_mov_b32 s60, 16')
    a.label('.Lat_fb1')
    load_stage()
    for t in range(2):
        kread(t)
        a('s_waitcnt lgkmcnt(0)')
        for j in range(2):
            scores(t, j)
            m = M0_ + j
            for r in range(0, 16, 2): a(f'v_max3_f32 v{m}, v{S_+r}, v{S_+r+1}, v{m}')
    a('s_sub_u32 s60, s60, 1')
    a('s_cmp_lg_u32 s60, 0')
    a('s_cbranch_scc1 .Lat_fb1')
    for j in range(2):
        m = M0_ + j
        a(f'v_mov_b32 v{S_}, v{m}'); a(f'v_mov_b32 v{S_+1}, v{m}')
        a(f'v_permlane32_swap_b32 v{S_}, v{S_+1}')
        a(f'v_max_f32 v{m}, v{S_}, v{S_+1}')
    a('s_barrier')
    a('s_lshl_b32 s40, s12, 9')
    a('v_lshlrev_b32 v14, 3, v2')
    a('v_add_u32 v14, s40, v14')
    a(f'ds_write_b64 v14, {v(M0_,2)}')
    a('s_xor_b32 s40, s12, 4')
    a('s_lshl_b32 s40, s40, 9')
    a('v_lshlrev_b32 v14, 3, v2')
    a('v_add_u32 v14, s40, v14')
    a('s_waitcnt lgkmcnt(0)')
    a('s_barrier')
    a(f'ds_read_b64 {v(S_,2)}, v14')
    a('s_waitcnt lgkmcnt(0)')
    a(f'v_max_f32 v{M0_}, v{M0_}, v{S_}')
    a(f'v_max_f32 v{M1_}, v{M1_}, v{S_+1}')
    rewind()
    for r in range(32): a(f'v_mov_b32 v{R.O+r}, 0')
    a('s_mov_b32 s60, 16')
    a.label('.Lat_fb2')
    load_stage()
    for t in range(2):
        kread(t)
        a(f'ds_read_b128 {v(R.VV,4)}, v13 offset:{SL + t*2048}')
        a(f'ds_read_b128 {v(R.VV+4,4)}, v13 offset:{SL + t*2048 + 1024}')
        a('s_waitcnt lgkmcnt(0)')
        for j in range(2):
            scores(t, j)
            for r in range(16): a(f'v_sub_f32 v{S_+r}, v{S_+r}, v{M0_+j}')
            for r in range(16): a(f'v_exp_f32 v{S_+r}, v{S_+r}')
            for i in range(8): a(f'v_cvt_pk_bf16_f32 v{R.P+i}, v{S_+2*i}, v{S_+2*i+1}')
            a(f'v_mfma_f32_32x32x16_bf16 {v(R.O+16*j,16)}, {v(R.VV,4)}, {v(R.P,4)}, {v(R.O+16*j,16)}')
            a(f'v_mfma_f32_32x32x16_bf16 {v(R.O+16*j,16)}, {v(R.VV+4,4)}, {v(R.P+4,4)}, {v(R.O+16*j,16)}')
    a('s_sub_u32 s60, s60, 1')
    a('s_cmp_lg_u32 s60, 0')
    a('s_cbranch_scc1 .Lat_fb2')
    a('s_nop 15')
    a('s_barrier')
    a('s_branch .Lat_combine')

def oproj_setup(a):
    BF, AF, ACC, XR, T = 16, 56, 96, XR0, 116
    a(f's_and_b32 s20, s{SJ}, 3')
    a(f's_lshr_b32 s21, s{SJ}, 2')
    a('s_and_b32 s22, s12, 3')
    a('s_lshr_b32 s23, s12, 2')
    a(f's_lshl_b32 s29, s{SG}, 4')
    a('s_lshl_b32 s30, s20, 2')
    a('s_add_u32 s29, s29, s30')
    a('s_add_u32 s29, s29, s22')
    a('v_and_b32 v14, 15, v2')
    a('v_lshrrev_b32 v15, 4, v2')
    a('s_mul_i32 s30, s29, 20480')
    a('s_mul_i32 s31, s23, 10240')
    a('s_add_u32 s30, s30, s31')
    a(f's_add_u32 s30, s30, {WS_O}')
    a('s_mul_i32 s33, s23, 10240')
    a(f's_add_u32 s33, s33, {LDS_WO}')
    a('s_cmp_eq_u32 s23, 0')
    a(f's_cselect_b32 s34, 0, {3*20480}')
    a('s_add_u32 s34, s34, s33')
    a('v_add_u32 v142, s34, v10')
    a(f's_cselect_b32 s34, {2*20480}, 0') if False else None
    a('s_cmp_eq_u32 s23, 0')
    a(f's_cselect_b32 s34, {2*20480}, 0')
    a('s_add_u32 s34, s34, s33')
    a('v_add_u32 v143, s34, v10')
    a('s_cmp_eq_u32 s23, 0')
    a(f's_mov_b32 s35, {20480}')
    a(f's_cselect_b32 s34, {3*20480}, s35')
    a('s_add_u32 s34, s34, s33')
    a('v_add_u32 v145, s34, v10')
    a('s_mul_i32 s40, s12, 3072')
    a('s_add_u32 s40, s40, 32768')
    a('v_add_u32 v146, s40, v10')
    a('s_xor_b32 s40, s12, 4')
    a('s_mul_i32 s40, s40, 3072')
    a('s_lshl_b32 s41, s23, 10')
    a('s_add_u32 s40, s40, s41')
    a('s_add_u32 s40, s40, 32768')
    a('v_add_u32 v147, s40, v10')
    a('s_mul_i32 s34, s29, 20480')
    a('s_mul_i32 s35, s21, 2560')
    a('s_add_u32 s34, s34, s35')
    a('s_mul_i32 s35, s23, 1536')
    a('s_add_u32 s34, s34, s35')
    a(f's_add_u32 s34, s34, {WS_H}')
    a('v_lshrrev_b32 v148, 1, v15')
    a('v_lshlrev_b32 v148, 8, v148')
    a('v_lshl_add_u32 v148, v14, 4, v148')
    a('v_and_b32 v144, 1, v15')
    a('v_lshl_add_u32 v148, v144, 3, v148')
    a('s_lshl_b32 s33, s29, 7')
    a('s_lshl_b32 s35, s21, 1')
    a('s_add_u32 s35, s35, s23')
    a('s_lshl_b32 s35, s35, 14')
    a('s_add_u32 s33, s33, s35')
    a(f's_add_u32 s33, s33, {WS_ST2}')
    a('v_lshlrev_b32 v144, 3, v14')
    a('s_cmp_eq_u32 s23, 0')
    a(f's_cselect_b32 s35, s34, {0x7ffff000}')
    a('s_waitcnt vmcnt(2)')
    for i in range(3):
        for h2 in range(2):
            a(f'v_lshlrev_b32 v{ACC+4*i+2*h2}, 16, v{XR+2*i+h2}')
            a(f'v_and_b32 v{ACC+4*i+2*h2+1}, 0xffff0000, v{XR+2*i+h2}')
    a('s_cmp_eq_u32 s23, 0')
    a('s_cselect_b64 vcc, -1, 0')
    for r in range(8, 12): a(f'v_cndmask_b32 v{ACC+r}, 0, v{ACC+r}, vcc')
    for r in range(12, 20): a(f'v_mov_b32 v{ACC+r}, 0')

def phase_oproj(a):
    BF, AF, ACC, XR, T = 16, 56, 96, XR0, 116
    def pre(): pass
    def mask():
        a('s_mov_b32 s44, -1'); a('s_mov_b32 s45, 0')
    sync(a, 0, 0, mask, pre, drained=True)
    stamp(a, 8)
    for i in range(10):
        if i % 4 == 0: a(f's_add_u32 s31, s30, {i*1024}')
        a(f'buffer_load_dwordx4 {v(BF+4*i,4)}, v10, s[8:11], s31 offen offset:{(i%4)*1024} sc1')
    def areads(i, buf):
        for sl in range(5):
            base, off = {0: (142, 0), 1: (142, 20480), 2: (143, 0), 3: (145, 0), 4: (145, 20480)}[sl]
            a(f'ds_read_b128 {v(AF+20*buf+4*sl,4)}, v{base} offset:{off + i*1024}')
    areads(0, 0)
    for i in range(10):
        if i < 9:
            areads(i + 1, (i + 1) & 1)
            a(f's_waitcnt vmcnt({9-i}) lgkmcnt(5)')
        else:
            a('s_waitcnt vmcnt(0) lgkmcnt(0)')
        for sl in (2, 3, 4, 0, 1):
            acc = v(ACC + 4 * sl, 4)
            a(f'v_mfma_f32_16x16x32_bf16 {acc}, {v(AF+20*(i&1)+4*sl,4)}, {v(BF+4*i,4)}, {acc}')
    stamp(a, 9)
    a('s_nop 3')
    for i, sl in enumerate((2, 3, 4)): a(f'ds_write_b128 v146, {v(ACC+4*sl,4)} offset:{1024*i}')
    a('s_waitcnt lgkmcnt(0)')
    a('s_barrier')
    for i in range(3): a(f'ds_read_b128 {v(T+4*i,4)}, v147 offset:{1024*i}')
    a('s_waitcnt lgkmcnt(0)')
    for r in range(12): a(f'v_add_f32 v{ACC+r}, v{ACC+r}, v{T+r}')
    a('s_cmp_eq_u32 s23, 0')
    a('s_cselect_b64 vcc, -1, 0')
    for r in range(8, 12): a(f'v_cndmask_b32 v{ACC+r}, 0, v{ACC+r}, vcc')
    a(f'v_add_f32 v{T}, v{ACC}, v{ACC+1}')
    a(f'v_mul_f32 v{T+1}, v{ACC}, v{ACC}')
    a(f'v_fmac_f32 v{T+1}, v{ACC+1}, v{ACC+1}')
    for r in range(2, 12):
        a(f'v_add_f32 v{T}, v{T}, v{ACC+r}')
        a(f'v_fmac_f32 v{T+1}, v{ACC+r}, v{ACC+r}')
    for i in range(6): a(f'v_cvt_pk_bf16_f32 v{T+4+i}, v{ACC+2*i}, v{ACC+2*i+1}')
    sum_q4(a, T, T+2, T+3)
    sum_q4(a, T+1, T+2, T+3)
    stores2(a, [f'buffer_store_dwordx2 {v(T+4,2)}, v148, s[8:11], s34 offen',
                f'buffer_store_dwordx2 {v(T+6,2)}, v148, s[8:11], s34 offen offset:512',
                f'buffer_store_dwordx2 {v(T+8,2)}, v148, s[8:11], s35 offen offset:1024',
                's_mov_b64 exec, 0xffff',
                f'buffer_store_dwordx2 {v(T,2)}, v144, s[8:11], s33 offen',
                's_mov_b64 exec, -1'])

F2_SLOT = {0: 81920, 1: 122880, 2: 0, 3: 40960, 4: 81920, 5: 122880, 6: 0}
def w2_setup(a):
    a(f's_lshr_b32 s21, s{SJ}, 2')
    a('s_lshr_b32 s22, s12, 2')
    a('s_mul_i32 s22, s22, 27')
    a('s_and_b32 s23, s12, 3')
    a('s_add_u32 s22, s22, s23')
    a('s_lshl_b32 s22, s22, 10')
    a('s_mul_i32 s47, s21, 276480')
    a(f's_add_u32 s47, s47, {WS_W2}')
    a('s_add_u32 s47, s47, s22')
    a('s_mul_i32 s48, s12, 5120')
def w2_dma(st, ft):
    return [f's_add_u32 m0, s48, {F2_SLOT[st] + ft*1024}', f's_add_u32 s49, s47, {st*4096 + ft*55296}',
            'buffer_load_dwordx4 v10, s[8:11], s49 offen lds']

def far_touch(a, vt, vd):
    a(f'v_lshlrev_b32 v{vt}, 7, v2')
    a(f's_mul_i32 s56, s{SJ}, 69120')
    a('s_lshl_b32 s57, s12, 13')
    a('s_add_u32 s56, s56, s57')
    a(f's_add_u32 s56, s56, {WS_W2}')
    a(f'buffer_load_dword v{vd}, v{vt}, s[8:11], s56 offen')
    a(f's_mul_i32 s56, s{SG}, {16*55296}')
    a(f's_mul_i32 s57, s{SJ}, 27648')
    a('s_add_u32 s56, s56, s57')
    a('s_lshl_b32 s57, s12, 13')
    a('s_add_u32 s56, s56, s57')
    a(f's_add_u32 s56, s56, {WS_G}')
    a(f's_mul_i32 s57, s{SJ}, 69120')
    a(f's_add_u32 s57, s57, {WS_W2 + 65536}')
    a('s_cmp_eq_u32 s12, 4')
    a('s_cselect_b32 s56, s57, s56')
    a('s_cmp_gt_u32 s12, 4')
    a('s_cselect_b32 s56, 0x7ff00000, s56')
    a(f'buffer_load_dword v{vd}, v{vt}, s[8:11], s56 offen')

def f1_tables(a, vm, ST, CP, LST):
    vm.wait(a, lambda x: x in ('st', 'cp'))
    a(f'v_add_f32 v{CP}, v{CP}, v{CP+1}')
    a(f'v_add_f32 v{CP+2}, v{CP+2}, v{CP+3}')
    a(f'v_add_f32 v{CP}, v{CP}, v{CP+2}')
    a('s_lshl_b32 s28, s23, 7')
    a('v_lshlrev_b32 v14, 2, v3')
    a('v_add_u32 v14, s28, v14')
    a(f'ds_write_b32 v14, v{CP} offset:{LST+1024}')
    l2 = lab('st')
    a('s_cmp_ge_u32 s12, 4')
    a(f's_cbranch_scc1 {l2}')
    b = ST
    for q in range(1, 8):
        a(f'v_add_f32 v{b}, v{b}, v{b+2*q}')
        a(f'v_add_f32 v{b+1}, v{b+1}, v{b+2*q+1}')
    for r in range(2):
        a(f'v_mov_b32 v{b+2}, v{b+r}'); a(f'v_mov_b32 v{b+3}, v{b+r}')
        a(f'v_permlane32_swap_b32 v{b+2}, v{b+3}')
        a(f'v_add_f32 v{b+r}, v{b+2}, v{b+3}')
    a(f'v_mul_f32 v{b}, {f2hex(1.0/640)}, v{b}')
    a(f'v_mul_f32 v{b+1}, {f2hex(1.0/640)}, v{b+1}')
    a(f'v_fma_f32 v{b+1}, -v{b}, v{b}, v{b+1}')
    a(f'v_max_f32 v{b+1}, 0, v{b+1}')
    a(f'v_add_f32 v{b+1}, 0x3727c5ac, v{b+1}')
    a(f'v_rsq_f32 v{b+1}, v{b+1}')
    a(f'v_mul_f32 v{b}, v{b}, v{b+1}')
    a('s_lshl_b32 s28, s12, 8')
    a('v_lshlrev_b32 v14, 3, v3')
    a('v_add_u32 v14, s28, v14')
    a(f'ds_write_b64 v14, {v(b,2)} offset:{LST}')
    a.label(l2)

def phase_ffn1(a, vm_pre):
    ACC, FB = 72, 104
    CS, B1, ST = 192, 168, 128
    CP, B1R = 144, 184
    LST = 0
    NS = 5
    srd(a, 52, 68, F * 2)
    w2_setup(a)
    a(f's_and_b32 s13, s{SJ}, 1')
    a(f's_lshl_b32 s15, s{SG}, 1')
    a('s_add_u32 s13, s13, s15')
    a(f's_lshr_b32 s14, s{SJ}, 1')
    a('s_and_b32 s23, s12, 3')
    a('s_lshr_b32 s26, s12, 2')
    a('v_lshrrev_b32 v7, 4, v3')
    a('s_movk_i32 s17, 20480')
    a('v_mul_lo_u32 v7, v7, s17')
    a('v_and_b32 v6, 15, v3')
    a('v_lshl_add_u32 v7, v6, 4, v7')
    a('v_lshl_add_u32 v7, v4, 8, v7')
    a('s_lshl_b32 s20, s13, 3')
    a('s_lshl_b32 s19, s23, 1')
    a('s_add_u32 s20, s20, s19')
    a('s_mul_i32 s20, s20, 20480')
    a('s_lshl_b32 s19, s26, 10')
    a('s_add_u32 s20, s20, s19')
    a(f's_add_u32 s20, s20, {WS_H}')
    a('s_lshl_b32 s22, s23, 10')
    a('s_lshl_b32 s19, s26, 13')
    a('s_add_u32 s22, s22, s19')
    a('s_lshl_b32 s17, s26, 11')
    a('v_add_u32 v12, s17, v10')
    a('v_add_u32 v13, 0x10000, v12')
    vm = VM()
    def pre(): pass
    def mask():
        a(f's_and_b32 s40, s{SJ}, 1')
        a('s_cmp_eq_u32 s40, 0')
        a('s_mov_b32 s44, 0xcccccccc')
        a('s_cselect_b32 s44, 0x33333333, s44')
        a('s_mov_b32 s45, 0')
    sync(a, 1, 1, mask, pre)
    stamp(a, 10)
    nst = 10
    pend = [(st, i) for st in range(nst) for i in range(2)]
    def dma_one():
        st, i = pend.pop(0)
        a(f's_add_u32 m0, s22, {(st % NS)*16384 + i*4096}')
        a(f's_add_u32 s21, s20, {st*2048 + i*512}')
        a('buffer_load_dwordx4 v7, s[8:11], s21 offen sc1 lds')
        vm.issue(('h', st))
    for _ in range(2 * 3): dma_one()
    a('s_lshl_b32 s27, s13, 7')
    a('s_lshl_b32 s28, s26, 6')
    a('s_add_u32 s27, s27, s28')
    a('s_lshl_b32 s28, s13, 7')
    a('s_lshl_b32 s29, s23, 5')
    a('s_add_u32 s28, s28, s29')
    a('s_lshl_b32 s28, s28, 3')
    a(f's_add_u32 s28, s28, {WS_ST2}')
    a('v_lshlrev_b32 v14, 3, v3')
    a('v_lshl_add_u32 v14, v4, 17, v14')
    def st_load(q):
        a(f's_add_u32 s29, s28, {q*16384}')
        a(f'buffer_load_dwordx2 {v(ST+2*q,2)}, v14, s[8:11], s29 offen sc1')
        vm.issue('st')
    w1q = list(range(26, 40))
    def w1_load():
        s_ = w1q.pop(0)
        a(f's_add_u32 s40, s{S_W1}, {s_*512}')
        a(f'buffer_load_dwordx4 {v(w1reg(s_),4)}, v{V_W1}, s[8:11], s40 offen')
        vm.issue(('w1', s_))
    def reads(st, ks, buf):
        off = (st % NS) * 16384 + ks * 4096
        base = 12
        if off + 1024 >= 65536: off -= 65536; base = 13
        a(f'ds_read_b128 {v(FB+8*buf,4)}, v{base} offset:{off}')
        a(f'ds_read_b128 {v(FB+8*buf+4,4)}, v{base} offset:{off+1024}')
    def mfmas(s_, buf):
        for j in range(2):
            c = '0' if s_ == 0 else v(ACC+16*j, 16)
            a(f'v_mfma_f32_32x32x16_bf16 {v(ACC+16*j,16)}, {v(w1reg(s_),4)}, {v(FB+8*buf+4*j,4)}, {c}')
    F1S = 'f1stamp' in gen.EXP
    w2q = [(st, ft) for st in (0, 1) for ft in range(5)]
    if F1S: stamp(a, 2)
    vm.wait(a, lambda x: x == ('h', 0))
    a('s_barrier')
    if F1S: stamp(a, 3)
    reads(0, 0, 0)
    reads(0, 1, 1)
    for st in range(nst):
        for ks in range(4):
            s_ = 4 * st + ks
            buf = s_ % 3
            n2 = s_ + 2
            if st == 8 and ks == 2:
                f1_tables(a, vm, ST, CP, LST)
            if st == 9 and ks == 0:
                a('s_lshl_b32 s28, s26, 9')
                a('v_lshlrev_b32 v14, 3, v3')
                a('v_add_u32 v14, s28, v14')
                a(f'ds_read_b64 {v(ST,2)}, v14 offset:{LST}')
                a(f'ds_read_b64 {v(ST+4,2)}, v14 offset:{LST+256}')
                a('s_lshl_b32 s28, s23, 7')
                a('v_lshlrev_b32 v14, 5, v4')
                a('v_add_u32 v14, s28, v14')
                for g in range(4):
                    a(f'ds_read_b128 {v(CS+4*g,4)}, v14 offset:{LST + 1024 + (g&1)*16 + (g>>1)*64}')
            if ks == 2 and st + 1 < nst:
                if s_ >= 26: vm.wait(a, lambda x: x == ('w1', s_), ' lgkmcnt(0)')
                else: a('s_waitcnt lgkmcnt(0)')
                mfmas(s_, buf)
                if F1S and st in (0, 2, 4, 6): stamp(a, {0: 4, 2: 7, 4: 9, 6: 13}[st])
                vm.wait(a, lambda x: x == ('h', st + 1))
                if 'f1nobar' not in gen.EXP: a('s_barrier')
                if F1S and st in (0, 2, 4, 6): stamp(a, {0: 5, 2: 8, 4: 12, 6: 14}[st])
                reads(n2 >> 2, n2 & 3, n2 % 3)
            else:
                if n2 < 40:
                    reads(n2 >> 2, n2 & 3, n2 % 3)
                    lg = 4
                else:
                    lg = 2 if s_ == 38 else 0
                if st == 9 and ks == 0: lg = 2
                if s_ >= 26: vm.wait(a, lambda x: x == ('w1', s_), f' lgkmcnt({lg})')
                else: a(f's_waitcnt lgkmcnt({lg})')
                mfmas(s_, buf)
            lim = st + NS - 1 + (1 if ks >= 2 else 0)
            if pend and pend[0][0] <= lim and (ks in (1, 3) or st == 0):
                if 'f1nodma' in gen.EXP:
                    st__, i__ = pend.pop(0); vm.issue(('h', st__))
                else: dma_one()
            if ks in (0, 2) and w1q and st <= 6:
                if 'f1now1b' in gen.EXP:
                    s__ = w1q.pop(0); vm.issue(('w1', s__))
                else: w1_load()
            if st == 5 and ks < 4:
                st_load(2 * ks); st_load(2 * ks + 1)
            if st >= 8 and not (st == 8 and ks == 0):
                for _ in range(2 if (st == 9 or ks >= 2) else 1):
                    if w2q:
                        for x in w2_dma(*w2q.pop(0)): a(x)
                        vm.issue('w2')
            if st == 6 and ks == 1:
                a('s_lshl_b32 s29, s14, 7')
                a('s_lshl_b32 s30, s23, 5')
                a('s_add_u32 s29, s29, s30')
                a('s_lshl_b32 s29, s29, 2')
                a(f's_add_u32 s29, s29, {WS_CS1}')
                a('v_lshlrev_b32 v15, 2, v3')
                for kb in range(4):
                    a(f'buffer_load_dword v{CP+kb}, v15, s[8:11], s29 offen'); vm.issue('cp')
                    if kb < 3: a('s_add_u32 s29, s29, 6912')
            if st == 8 and ks == 0:
                a('s_lshl_b32 s29, s14, 7')
                a('s_lshl_b32 s30, s23, 5')
                a('s_add_u32 s29, s29, s30')
                a('s_lshl_b32 s29, s29, 1')
                a('v_lshlrev_b32 v15, 4, v4')
                a(f'buffer_load_dwordx4 {v(B1R,4)}, v15, s[52:55], s29 offen'); vm.issue('cs')
                a(f'buffer_load_dwordx4 {v(B1R+4,4)}, v15, s[52:55], s29 offen offset:32'); vm.issue('cs')
    assert not w2q and not w1q, (w2q, w1q)
    stamp(a, 11)
    vm.wait(a, lambda x: x == 'cs')
    for q in range(8):
        a(f'v_lshlrev_b32 v{B1+2*q}, 16, v{B1R+q}')
        a(f'v_and_b32 v{B1+2*q+1}, 0xffff0000, v{B1R+q}')
    for j in range(2):
        b = ST + 4 * j
        for r in range(16):
            a(f'v_fma_f32 v{b+2}, -v{b}, v{CS+r}, v{B1+r}')
            a(f'v_fma_f32 v{ACC+16*j+r}, v{b+1}, v{ACC+16*j+r}, v{b+2}')
            a(f'v_max_f32 v{ACC+16*j+r}, 0, v{ACC+16*j+r}')
            a(f'v_mul_f32 v{ACC+16*j+r}, v{ACC+16*j+r}, v{ACC+16*j+r}')
    PK = 104
    for r in range(16):
        a(f'v_cvt_pk_bf16_f32 v{PK+r}, v{ACC+2*r}, v{ACC+2*r+1}')
    a('v_lshrrev_b32 v13, 4, v3')
    a('s_mov_b32 s18, 55296')
    a('v_mul_lo_u32 v13, v13, s18')
    a('v_and_b32 v14, 15, v3')
    a('v_lshl_add_u32 v13, v14, 4, v13')
    a('v_lshl_add_u32 v13, v4, 8, v13')
    a('s_lshr_b32 s18, s27, 4')
    a('s_mul_i32 s18, s18, 55296')
    a('s_lshl_b32 s17, s14, 2')
    a('s_add_u32 s17, s17, s23')
    a('s_cmp_ge_u32 s17, 54')
    a('s_cselect_b32 s19, 0x40000000, 0')
    a('s_lshl_b32 s17, s17, 10')
    a('s_add_u32 s17, s17, s18')
    a(f's_add_u32 s17, s17, {WS_G}')
    a('s_add_u32 s17, s17, s19')
    a(f's_add_u32 s18, s17, {2*55296}')
    stores2(a, [f'buffer_store_dwordx4 {v(PK,4)}, v13, s[8:11], s17 offen',
                f'buffer_store_dwordx4 {v(PK+4,4)}, v13, s[8:11], s17 offen offset:512',
                f'buffer_store_dwordx4 {v(PK+8,4)}, v13, s[8:11], s18 offen',
                f'buffer_store_dwordx4 {v(PK+12,4)}, v13, s[8:11], s18 offen offset:512'])

def phase_ffn2(a, L, published):
    NST = 7
    vm = VM()
    BF, ACC, AF, T = 16, 128, 168, 16
    def pre():
        lx = lab('w7')
        a('s_cmp_lg_u32 s12, 7')
        a(f's_cbranch_scc1 {lx}')
        a(f's_sub_u32 s47, s47, {(27 + 3)*1024}')
        a(f's_sub_u32 s48, s48, {7*5120}')
        for st in (2, 3):
            for ft in range(5):
                for x in w2_dma(st, ft): a(x)
        a(f's_add_u32 s47, s47, {(27 + 3)*1024}')
        a(f's_add_u32 s48, s48, {7*5120}')
        a.label(lx)
        for st in (2, 3):
            for ft in range(5):
                for x in w2_dma(st, ft): a(x)
    def mask():
        a(f's_and_b32 s40, s{SJ}, 2')
        a('s_cmp_eq_u32 s40, 0')
        a('s_mov_b32 s44, 0x0aaaaaaa')
        a('s_cselect_b32 s44, 0x05555555, s44')
        a('s_mov_b32 s45, 0')
    a(f's_and_b32 s20, s{SJ}, 3')
    a(f's_lshr_b32 s21, s{SJ}, 2')
    a('s_and_b32 s22, s12, 3')
    a('s_lshr_b32 s23, s12, 2')
    a(f's_lshl_b32 s29, s{SG}, 4')
    a('s_lshl_b32 s30, s20, 2')
    a('s_add_u32 s29, s29, s30')
    a('s_add_u32 s29, s29, s22')
    a('s_mul_i32 s32, s29, 55296')
    a('s_mul_i32 s33, s23, 27648')
    a('s_add_u32 s32, s32, s33')
    a(f's_add_u32 s32, s32, {WS_G}')
    a('s_mul_i32 s34, s23, 20480')
    a('v_add_u32 v8, s34, v10')
    a('v_add_u32 v9, 0x10000, v8')
    a('v_add_u32 v11, 0x20000, v8')
    srd(a, 52, 70, D * 2)
    a('v_and_b32 v5, 15, v2')
    a('v_lshrrev_b32 v6, 4, v2')
    a('s_mul_i32 s34, s29, 20480')
    a('s_mul_i32 s35, s21, 2560')
    a('s_add_u32 s34, s34, s35')
    a('s_mul_i32 s35, s23, 1536')
    a('s_add_u32 s34, s34, s35')
    a(f's_add_u32 s34, s34, {WS_H}')
    a('v_lshrrev_b32 v12, 1, v6')
    a('v_lshlrev_b32 v12, 8, v12')
    a('v_lshl_add_u32 v12, v5, 4, v12')
    a('v_and_b32 v13, 1, v6')
    a('v_lshl_add_u32 v12, v13, 3, v12')
    a('s_mul_i32 s35, s21, 160')
    a('s_mul_i32 s36, s23, 96')
    a('s_add_u32 s35, s35, s36')
    a('v_lshlrev_b32 v13, 3, v6')
    sync(a, 2 if published else None, 2, mask, pre, w0_prefetch=False, pr=(253, 254))
    return vm

def ffn2_body(a, L):
    NST = 7
    vm = VM()
    for st in (0, 1, 2, 3):
        for ft in range(5): vm.issue(('w', st))
    BF, ACC, AF, T, HR, BB = 16, 124, 144, 184, 200, 208
    if 'f1stamp' not in gen.EXP: stamp(a, 12)
    def bload(i):
        a(f's_add_u32 s33, s32, {i*1024}')
        a(f'buffer_load_dwordx4 {v(BF+4*i,4)}, v10, s[8:11], s33 offen sc1')
        vm.issue(('b', i))
    NB0 = 6
    for i in range(NB0): bload(i)
    bq = list(range(NB0, 27))
    wq = [(st, ft) for st in range(4, 7) for ft in range(5)]
    def areads(ks, buf):
        st, i = ks >> 2, ks & 3
        for ft in range(5):
            off = F2_SLOT[st] + i * 5120 + ft * 1024
            base = {0: 8, 1: 9, 2: 11}[off >> 16]
            a(f'ds_read_b128 {v(AF+20*buf+4*ft,4)}, v{base} offset:{off & 65535}')
    F2S = 'f2stamp' in gen.EXP
    BX = 6
    WSM = [3, 4, 6, 7, 9, 10, 11, 12, 13, 14, 14, 15, 16, 17, 18]
    if F2S: stamp(a, 2)
    vm.wait(a, lambda x: x == ('w', 0))
    a('s_barrier')
    if F2S: stamp(a, 3)
    areads(0, 0)
    for ks in range(27):
        if F2S and ks in (1, 4, 8, 12, 16, 20, 24): stamp(a, {1: 4, 4: 5, 8: 7, 12: 8, 16: 9, 20: 10, 24: 11}[ks])
        st, i = ks >> 2, ks & 3
        buf = ks & 1
        nxt = ks + 1
        if nxt < 27:
            if (nxt & 3) == 0:
                a('s_waitcnt lgkmcnt(0)')
                vm.wait(a, lambda x: x == ('w', nxt >> 2))
                a('s_barrier')
                areads(nxt, buf ^ 1)
                vm.wait(a, lambda x: x == ('b', ks))
            else:
                areads(nxt, buf ^ 1)
                vm.wait(a, lambda x: x == ('b', ks), ' lgkmcnt(5)')
        else:
            vm.wait(a, lambda x: x == ('b', ks), ' lgkmcnt(0)')
        for ft in range(5):
            acc = v(ACC + 4 * ft, 4)
            a(f'v_mfma_f32_16x16x32_bf16 {acc}, {v(AF+20*buf+4*ft,4)}, {v(BF+4*ks,4)}, {"0" if ks == 0 else acc}')
            if 'oldb' in gen.EXP:
                if ft in (1, 3) and bq and bq[0] <= ks + 12: bload(bq.pop(0))
            elif 'midb' in gen.EXP:
                if (ft == 1 or (ft == 3 and ks < BX)) and bq and bq[0] <= ks + 10: bload(bq.pop(0))
            elif ft == 1 and bq: bload(bq.pop(0))
            WS_ = (0, 2, 4) if ('oldb' in gen.EXP or 'midb' in gen.EXP) else ((2, 4) if (ks & 3) == 3 else (3,))
            if 'wsm' in gen.EXP: WS_ = (3,) * WSM.count(ks) if WSM.count(ks) == 1 else ((2, 4) if WSM.count(ks) == 2 else ())
            if ft in WS_ and wq and (wq[0][0] - 4) < st + (1 if (nxt & 3) == 0 and nxt < 27 else 0):
                x_ = wq.pop(0)
                for x in w2_dma(*x_): a(x)
                vm.issue(('w', x_[0]))
        if ks == 21 and 'wbB' in gen.EXP:
            lw, lw2 = lab('wb'), lab('wb')
            a(f's_cmp_lg_u32 s{SJ}, 0'); a(f's_cbranch_scc1 {lw}')
            a('s_cmp_lg_u32 s12, 7'); a(f's_cbranch_scc1 {lw}')
            a('buffer_wbl2 sc1')
            a(f's_branch {lw2}')
            a.label(lw)
            a('buffer_load_dword v255, v10, s[8:11], s38 offen')
            a.label(lw2)
            vm.issue('wb')
        if ks == 20:
            for i_ in range(3):
                a(f'buffer_load_dwordx2 {v(HR+2*i_,2)}, v12, s[8:11], s34 offen offset:{512*i_} sc1'); vm.issue('hr')
            for i_ in range(3):
                a(f'buffer_load_dwordx2 {v(BB+2*i_,2)}, v13, s[52:55], s35 offen offset:{32*i_}'); vm.issue('hr')
    assert not bq and not wq, (bq, wq)
    if 'f1stamp' not in gen.EXP: stamp(a, 13)
    XB = 81920
    a('s_mul_i32 s40, s12, 3072')
    a(f's_add_u32 s40, s40, {XB}')
    a('v_add_u32 v14, s40, v10')
    l1, l2 = lab('fx'), lab('fx')
    a('s_nop 7')
    a('s_cmp_eq_u32 s23, 0')
    a(f's_cbranch_scc0 {l1}')
    for i_, ft in enumerate((3, 4)): a(f'ds_write_b128 v14, {v(ACC+4*ft,4)} offset:{1024*i_}')
    a(f's_branch {l2}')
    a.label(l1)
    for ft in range(3): a(f'ds_write_b128 v14, {v(ACC+4*ft,4)} offset:{1024*ft}')
    a('s_waitcnt lgkmcnt(0)')
    for r in range(8): a(f'v_mov_b32 v{ACC+r}, v{ACC+12+r}')
    a.label(l2)
    a('s_xor_b32 s40, s12, 4')
    a('s_mul_i32 s40, s40, 3072')
    a(f's_add_u32 s40, s40, {XB}')
    a('v_add_u32 v14, s40, v10')
    a('s_waitcnt lgkmcnt(0)')
    a('s_barrier')
    for i_ in range(3): a(f'ds_read_b128 {v(T+4*i_,4)}, v14 offset:{1024*i_}')
    vm.wait(a, lambda x: x == 'hr', ' lgkmcnt(0)')
    for r in range(12): a(f'v_add_f32 v{ACC+r}, v{ACC+r}, v{T+r}')
    for i_ in range(3):
        for h2 in range(2):
            a(f'v_lshlrev_b32 v{T}, 16, v{HR+2*i_+h2}')
            a(f'v_and_b32 v{T+1}, 0xffff0000, v{HR+2*i_+h2}')
            a(f'v_lshlrev_b32 v{T+2}, 16, v{BB+2*i_+h2}')
            a(f'v_and_b32 v{T+3}, 0xffff0000, v{BB+2*i_+h2}')
            a(f'v_add_f32 v{ACC+4*i_+2*h2}, v{ACC+4*i_+2*h2}, v{T+2}')
            a(f'v_add_f32 v{ACC+4*i_+2*h2+1}, v{ACC+4*i_+2*h2+1}, v{T+3}')
            a(f'v_add_f32 v{ACC+4*i_+2*h2}, v{ACC+4*i_+2*h2}, v{T}')
            a(f'v_add_f32 v{ACC+4*i_+2*h2+1}, v{ACC+4*i_+2*h2+1}, v{T+1}')
    for i_ in range(6): a(f'v_cvt_pk_bf16_f32 v{T+4+i_}, v{ACC+2*i_}, v{ACC+2*i_+1}')
    a('s_lshl_b32 s33, s29, 4')
    a('v_add_u32 v7, s33, v5')
    a('s_movk_i32 s34, 1280')
    a('v_mul_lo_u32 v7, v7, s34')
    a('v_lshl_add_u32 v7, v6, 3, v7')
    a('s_mul_i32 s34, s21, 160')
    a('s_mul_i32 s35, s23, 96')
    a('s_add_u32 s34, s34, s35')
    a('s_cmp_eq_u32 s23, 0')
    a('s_cselect_b32 s35, s34, 0x7ff00000')
    OW = ' sc1' if 'outsc1' in gen.EXP else (' nt' if 'outnt' in gen.EXP else '')
    a(f'buffer_store_dwordx2 {v(T+4,2)}, v7, s[76:79], s34 offen' + OW)
    a(f'buffer_store_dwordx2 {v(T+6,2)}, v7, s[76:79], s34 offen offset:32' + OW)
    a(f'buffer_store_dwordx2 {v(T+8,2)}, v7, s[76:79], s35 offen offset:64' + OW)

def kf():
    a = Asm()
    merged = 'merge' in gen.EXP
    L = NAME + '_kernel' if merged else 'kf_kernel'
    kernel_begin(a, L)
    a('s_cmp_ge_u32 s2, 256')
    a(f's_cbranch_scc1 {L}_end')
    if merged:
        import gen5
        if gen.PROF: a('v_mov_b32 v254, v0')
        gen5.k1s(a, '.Ljoin')
        a.label('.Ljoin')
        a('s_waitcnt vmcnt(0) lgkmcnt(0)')
        a('s_barrier')
        if gen.PROF:
            srd(a, 8, 4, WS_END)
            stamp_flush(a, 1, 12, 8, 12)
            a('v_mov_b32 v0, v254')
            a('s_waitcnt vmcnt(0)')
        lj, lp, ld = lab('gb'), lab('gb'), lab('gb')
        a('s_cmp_lg_u32 s12, 0')
        a(f's_cbranch_scc1 {lj}')
        a(f's_load_dwordx2 s[20:21], s[0:1], {A_DBG}')
        a('s_and_b32 s40, s2, 7')
        a('s_lshl_b32 s40, s40, 5')
        a('v_mov_b32 v5, s40')
        a('v_mov_b32 v6, 1')
        a('v_and_b32 v7, 7, v0')
        a('v_lshlrev_b32 v7, 5, v7')
        a('s_waitcnt lgkmcnt(0)')
        a('s_mov_b64 exec, 1')
        a('global_atomic_add v5, v6, s[20:21] sc1')
        a('s_mov_b64 exec, 0xff')
        a('s_mov_b32 s41, 0')
        a.label(lp)
        a('global_load_dword v8, v7, s[20:21] sc1')
        a('s_add_u32 s41, s41, 1')
        a('s_waitcnt vmcnt(0)')
        a('v_cmp_ne_u32 vcc, 32, v8')
        a(f's_cbranch_vccz {ld}')
        a(f's_cmp_lt_u32 s41, {SPIN_MAX}')
        a(f's_cbranch_scc1 {lp}')
        a.label(ld)
        a('s_mov_b64 exec, -1')
        a.label(lj)
        a('s_barrier')
    stamp(a, 0, True); stamp(a, 1)
    if 'dbg' in gen.EXP:
        a('s_memrealtime s[90:91]'); a('s_memtime s[92:93]'); a(f's_load_dwordx2 s[94:95], s[0:1], {A_DBG}')
    if 'nocodepf' not in gen.EXP and not merged:
        code_touch(a, L, '.Lkf_last', '.Lpc_kf', 144, 151, 2)
    a(f's_load_dwordx2 s[4:5], s[0:1], {A_WS}')
    a(f's_load_dwordx2 s[68:69], s[0:1], {A_X}')
    a(f's_load_dwordx2 s[70:71], s[0:1], {A_OUT}')
    a(f's_and_b32 s{SG}, s2, 7')
    a(f's_lshr_b32 s{SJ}, s2, 3')
    a(f's_mov_b32 s{SH}, s{SJ}')
    a(f's_mov_b32 s{SR}, s{SG}')
    a('v_lshrrev_b32 v1, 6, v0')
    a('v_and_b32 v2, 63, v0')
    a('v_readfirstlane_b32 s12, v1')
    a('v_and_b32 v3, 31, v2')
    a('v_lshrrev_b32 v4, 5, v2')
    a(f's_getreg_b32 s{SPURE}, hwreg(HW_REG_XCC_ID, 0, 4)')
    a(f's_add_u32 s{SPURE}, s{SPURE}, 1')
    attn_setup(a, SH, SR, 12, 8, defer=True)
    a('s_waitcnt lgkmcnt(0)')
    srd(a, 8, 4, WS_END)
    attn_dma(a, 0, 8)
    attn_qloads(a, 8)
    srd(a, 72, 68, S * D * 2)
    srd(a, 76, 70, S * D * 2)
    a(f's_load_dwordx2 s[68:69], s[0:1], {A_B1}')
    a(f's_load_dwordx2 s[70:71], s[0:1], {A_B2}')
    stamp(a, 2)
    phase_attn(a, L)
    phase_oproj(a)
    stamp(a, 5)
    a(f's_cmp_ge_u32 s{SJ}, 28')
    a(f's_cbranch_scc1 {L}_idle')
    phase_ffn1(a, None)
    phase_ffn2(a, L, True)
    a(f's_branch {L}_f2')
    a.label(f'{L}_idle')
    a('s_waitcnt vmcnt(0)')
    a('s_barrier')
    li = lab('id')
    a('s_cmp_lg_u32 s12, 0')
    a(f's_cbranch_scc1 {li}')
    flag_store(a, 1, 14)
    a.label(li)
    if 'wbA' in gen.EXP:
        lw = lab('wb')
        a(f's_cmp_lg_u32 s{SJ}, 28'); a(f's_cbranch_scc1 {lw}')
        a('s_cmp_lg_u32 s12, 1'); a(f's_cbranch_scc1 {lw}')
        a('s_sleep 40')
        a('buffer_wbl2 sc1')
        a('s_waitcnt vmcnt(0)')
        a.label(lw)
    w2_setup(a)
    for st in (0, 1):
        for ft in range(5):
            for x in w2_dma(st, ft): a(x)
    a('s_waitcnt vmcnt(0)')
    phase_ffn2(a, L, False)
    a.label(f'{L}_f2')
    ffn2_body(a, L)
    a.label(f'{L}_fin')
    if 'f1stamp' not in gen.EXP: stamp(a, 14)
    if 'dbg' in gen.EXP:
        a('s_waitcnt vmcnt(0)')
        a('s_memrealtime s[96:97]'); a('s_memtime s[86:87]'); a('s_waitcnt lgkmcnt(0)')
        ldb = lab('db')
        a('s_cmp_lg_u32 s2, 0'); a(f's_cbranch_scc1 {ldb}'); a('s_cmp_lg_u32 s12, 0'); a(f's_cbranch_scc1 {ldb}')
        a('s_sub_u32 s96, s96, s90'); a('s_sub_u32 s86, s86, s92')
        a('v_mov_b32 v0, 0'); a('v_mov_b32 v2, s96'); a('v_mov_b32 v3, s86'); a('v_mov_b32 v4, s90'); a('v_mov_b32 v5, 0')
        a('global_store_dwordx4 v0, v[2:5], s[94:95] offset:16')
        a(f's_mov_b32 s86, {WS_PROF}')
        a('buffer_load_dwordx4 v[6:9], v0, s[8:11], s86 offen')
        a('s_waitcnt vmcnt(0)')
        a('global_store_dwordx4 v0, v[6:9], s[94:95]')
        a.label(ldb)
    if gen.PROF: a('s_waitcnt vmcnt(0)')
    stamp(a, 6, True)
    if 'dbgst' in gen.EXP:
        ldb = lab('db')
        a(f's_load_dwordx2 s[20:21], s[0:1], {A_DBG}')
        a('s_waitcnt lgkmcnt(0)')
        a('s_cmp_lg_u32 s2, 8'); a(f's_cbranch_scc1 {ldb}'); a('s_cmp_lg_u32 s12, 0'); a(f's_cbranch_scc1 {ldb}')
        a('v_mbcnt_lo_u32_b32 v0, -1, 0'); a('v_mbcnt_hi_u32_b32 v0, -1, v0'); a('v_mov_b32 v1, 0')
        for i in range(16):
            src = PS + i if i != 15 else PS + 1
            a(f's_sub_u32 s22, s{src}, s{PS+1}') if i not in (0, 6) else a(f's_mov_b32 s22, s{src}')
            a('v_mov_b32 v2, s22'); a(f'v_cmp_eq_u32 vcc, {i}, v0'); a('v_cndmask_b32 v1, v1, v2, vcc')
        a('v_lshlrev_b32 v0, 2, v0')
        if 'dbgk1' in gen.EXP:
            a(f's_mov_b32 s22, {WS_PROF - 8}')
            a('buffer_load_dword v3, v0, s[8:11], s22 offen')
            a('s_waitcnt vmcnt(0)')
            a('v_cmp_lt_u32 vcc, 7, v0'); a('v_cmp_gt_u32 s[22:23], 28, v0'); a('s_and_b64 vcc, vcc, s[22:23]')
            a('v_cndmask_b32 v1, v1, v3, vcc')
        a('s_mov_b64 exec, 0xffff')
        a('global_store_dword v0, v1, s[20:21]')
        a('s_mov_b64 exec, -1')
        a.label(ldb)
    else:
        stamp_flush(a, 2, 15, 8, 12)
    a.label(f'{L}_end')
    a('s_endpgm')
    attn_fallback(a)
    a.label('.Lkf_last')
    a('s_endpgm')
    if merged: return a, descriptor(L, 256, 102), '; @launch grid=(256,1,1) block=(512,1,1) lds=163840'
    return a, descriptor(L, 256, 102), f'; @launch kernel={L} grid=(256,1,1) block=(512,1,1) lds=163840'

if __name__ == '__main__':
    if 'prof' in sys.argv: gen.PROF = True
    for x in sys.argv[2:]:
        if x.startswith('x:'): gen.EXP.add(x[2:])
    out = sys.argv[1]
    import gen4, gen5
    ks_ = [kf] if 'merge' in gen.EXP else ([k0, k1, kf] if 'old' in gen.EXP else [gen4.k1p if 'k1p' in gen.EXP else gen5.k1s, kf])
    open(out, 'w').write(build(ks_))
    print('wrote', out)
```

```python
import sys
sys.path.insert(0, 'dev')
import gen
from gen import *
from gen2 import lab
from gen3 import VM
from asmlib import *

PK_LDS = 131072
TB_LDS = PK_LDS + 24576
ST_T = TB_LDS
CS_T = TB_LDS + 1024

def k1s(a=None, join=None):
    WT = '' if 'k1plain' in gen.EXP else ' sc1'
    merged = a is not None
    L = 'k1_kernel' if not merged else '.Lk1'
    NS = 4
    if not merged:
        a = Asm()
        kernel_begin(a, L)
        a('s_cmp_ge_u32 s2, 256')
        a(f's_cbranch_scc1 {L}_end')
    def finish():
        if merged: a(f's_branch {join}')
        else: a('s_endpgm')
    stamp(a, 0, True); stamp(a, 1)
    def code_pf(tag):
        if merged or 'nok1pf' in gen.EXP: return 0
        code_touch(a, L, '.Lkf_last' if 'k1pfall' in gen.EXP else f'{L}_end', '.Lpc_k1' + tag, 144, 151, 2 if 'k1pfall' in gen.EXP else 1)
        return 2 if 'k1pfall' in gen.EXP else 1
    if 'k1pflate' not in gen.EXP: code_pf('')
    a(f's_load_dwordx2 s[24:25], s[0:1], {A_X}')
    a(f's_load_dwordx2 s[26:27], s[0:1], {A_WQKV}')
    a(f's_load_dwordx2 s[4:5], s[0:1], {A_WS}')
    a(f's_load_dwordx2 s[28:29], s[0:1], {A_WO}')
    a(f's_load_dwordx2 s[30:31], s[0:1], {A_W1}')
    a(f's_load_dwordx2 s[32:33], s[0:1], {A_W2}')
    a('s_and_b32 s15, s2, 7')
    a('s_lshr_b32 s16, s2, 3')
    a('s_and_b32 s13, s15, 3')
    a('s_lshl_b32 s13, s13, 2')
    a('s_and_b32 s17, s16, 3')
    a('s_add_u32 s13, s13, s17')
    a('s_lshr_b32 s14, s15, 2')
    a('s_lshl_b32 s14, s14, 3')
    a('s_lshr_b32 s17, s16, 2')
    a('s_add_u32 s14, s14, s17')
    a('v_lshrrev_b32 v1, 6, v0')
    a('v_and_b32 v2, 63, v0')
    a('v_readfirstlane_b32 s12, v1')
    a('v_and_b32 v3, 31, v2')
    a('v_lshrrev_b32 v4, 5, v2')
    a('v_lshlrev_b32 v10, 4, v2')
    a('s_and_b32 s23, s12, 3')
    if merged:
        from gen2 import WS_XT
        li = lab('in')
        a('s_cmp_lg_u32 s12, 0')
        a(f's_cbranch_scc1 {li}')
        a('s_waitcnt lgkmcnt(0)')
        srd(a, 8, 4, WS_END)
        a('s_and_b32 s40, s2, 7')
        a('s_lshl_b32 s40, s40, 7')
        a('s_lshr_b32 s41, s2, 3')
        a('s_lshl_b32 s41, s41, 2')
        a('s_add_u32 s40, s40, s41')
        a(f's_add_u32 s40, s40, {WS_FLAG}')
        a('v_lshlrev_b32 v5, 10, v2')
        a(f'v_mov_b32 v6, {WS_XT - WS_FLAG}')
        a('v_cmp_eq_u32 vcc, 3, v2')
        a('v_cndmask_b32 v5, v5, v6, vcc')
        a('s_getreg_b32 s41, hwreg(HW_REG_XCC_ID, 0, 4)')
        a('s_add_u32 s41, s41, 1')
        a('v_mov_b32 v6, 0')
        a('v_mov_b32 v7, s41')
        a('v_cndmask_b32 v6, v6, v7, vcc')
        a('s_mov_b64 exec, 15')
        a('buffer_store_dword v6, v5, s[8:11], s40 offen sc1')
        a('s_mov_b64 exec, -1')
        a.label(li)
    a('s_cmp_lt_u32 s12, 4')
    a(f's_cbranch_scc1 {L}_compute')
    a('v_lshrrev_b32 v5, 3, v2')
    a('s_lshl_b32 s40, s23, 3')
    a('v_add_u32 v5, s40, v5')
    a('v_lshrrev_b32 v6, 4, v2')
    a('s_lshl_b32 s40, s23, 2')
    a('v_add_u32 v7, s40, v6')
    a('v_and_b32 v7, 7, v7')
    a('v_and_b32 v8, 7, v2')
    a('v_xor_b32 v7, v7, v8')
    a('s_movk_i32 s40, 1280')
    a('v_mul_lo_u32 v5, v5, s40')
    a('v_lshl_add_u32 v5, v7, 4, v5')
    a('s_mul_i32 s35, s13, 163840')
    a('s_lshl_b32 s40, s23, 2')
    a('v_add_u32 v7, s40, v6')
    a('s_movk_i32 s40, 3840')
    a('v_mul_lo_u32 v7, v7, s40')
    a('v_and_b32 v8, 15, v2')
    a('v_lshlrev_b32 v9, 2, v6')
    a('v_xor_b32 v8, v8, v9')
    a('v_lshl_add_u32 v6, v8, 4, v7')
    a('s_lshl_b32 s36, s14, 8')
    a('s_lshl_b32 s37, s23, 10')
    a('s_waitcnt lgkmcnt(0)')
    srd(a, 56, 24, S * D * 2)
    srd(a, 60, 26, D * 3 * D * 2)
    srd(a, 8, 4, WS_END)
    def operand_touch(srdx, srdw, vt, vd):
        if 'notouchk1' in gen.EXP: return 0
        lx, ld_ = lab('ot'), lab('ot')
        a('s_sub_u32 s40, s12, 4')
        a('s_cmp_lt_u32 s40, 3')
        a(f's_cbranch_scc0 {lx}')
        a('s_lshl_b32 s40, s40, 6')
        a(f'v_add_u32 v{vt}, s40, v2')
        a(f's_mov_b32 s41, {magic(10)}')
        a(f'v_mul_hi_u32 v{vt+1}, v{vt}, s41')
        a(f'v_mul_u32_u24 v{vt+2}, 10, v{vt+1}')
        a(f'v_sub_u32 v{vt+2}, v{vt}, v{vt+2}')
        a('s_lshr_b32 s41, s16, 2')
        a('s_lshl_b32 s41, s41, 4')
        a('s_lshl_b32 s40, s13, 7')
        a('s_add_u32 s41, s41, s40')
        a(f'v_add_u32 v{vt+1}, s41, v{vt+1}')
        a('s_movk_i32 s41, 1280')
        a(f'v_mul_lo_u32 v{vt+1}, v{vt+1}, s41')
        a(f'v_lshl_add_u32 v{vt+1}, v{vt+2}, 7, v{vt+1}')
        a(f'v_mov_b32 v{vt+2}, 0x7ff00000')
        a(f'v_cmp_gt_u32 vcc, 160, v{vt}')
        a(f'v_cndmask_b32 v{vt+1}, v{vt+2}, v{vt+1}, vcc')
        a(f'buffer_load_dword v{vd}, v{vt+1}, s[{srdx}:{srdx+3}], 0 offen')
        a(f's_branch {ld_}')
        a.label(lx)
        a('s_add_u32 s40, s12, 1')
        a('s_cmp_eq_u32 s12, 7')
        a('s_cselect_b32 s40, 0, s40')
        a('s_lshl_b32 s40, s40, 6')
        a(f'v_add_u32 v{vt}, s40, v2')
        a(f'v_lshrrev_b32 v{vt+1}, 1, v{vt}')
        a('s_and_b32 s41, s16, 3')
        a('s_mul_i32 s41, s41, 160')
        a(f'v_add_u32 v{vt+1}, s41, v{vt+1}')
        a('s_movk_i32 s41, 3840')
        a(f'v_mul_lo_u32 v{vt+1}, v{vt+1}, s41')
        a(f'v_and_b32 v{vt+2}, 1, v{vt}')
        a(f'v_lshl_add_u32 v{vt+1}, v{vt+2}, 7, v{vt+1}')
        a('s_lshl_b32 s41, s14, 8')
        a('s_cmp_lt_u32 s14, 15')
        a('s_cselect_b32 s41, s41, 0x7ff00000')
        a(f'buffer_load_dword v{vd}, v{vt+1}, s[{srdw}:{srdw+3}], s41 offen')
        a.label(ld_)
        return 1
    vm = VM()
    def dma(st, k):
        slot = (st % NS) * 32768
        if k < 4:
            a(f's_add_u32 m0, s37, {slot + k*4096}')
            a(f's_add_u32 s38, s35, {st*128 + k*32*1280}')
            a('buffer_load_dwordx4 v5, s[56:59], s38 offen ' + ('nt ' if 'xnt' in gen.EXP else '') + 'lds')
        else:
            a(f's_add_u32 m0, s37, {slot + 16384 + (k-4)*4096}')
            a(f's_add_u32 s38, s36, {(st*64 + (k-4)*16)*3840}')
            a('buffer_load_dwordx4 v6, s[60:63], s38 offen lds')
        vm.issue(('r', st))
    def decode():
        l1_, l2_, ld = lab('pk'), lab('pk'), lab('pk')
        a('s_cmp_lt_u32 s2, 40')
        a(f's_cbranch_scc0 {l1_}')
        srd(a, 64, 28, D * D * 2)
        a(f's_mul_hi_u32 s46, s2, {magic(10)}')
        a('s_mul_i32 s47, s46, 10')
        a('s_sub_u32 s47, s2, s47')
        a('s_movk_i32 s41, 160'); a('s_movk_i32 s42, 1280'); a(f's_mov_b32 s44, {WS_WO}'); a('s_movk_i32 s45, 20480')
        a(f's_branch {ld}')
        a.label(l1_)
        a('s_cmp_lt_u32 s2, 148')
        a(f's_cbranch_scc0 {l2_}')
        srd(a, 64, 30, D * F * 2)
        a('s_sub_u32 s40, s2, 40')
        a(f's_mul_hi_u32 s46, s40, {magic(27)}')
        a('s_mul_i32 s47, s46, 27')
        a('s_sub_u32 s47, s40, s47')
        a('s_movk_i32 s41, 160'); a('s_movk_i32 s42, 3456'); a(f's_mov_b32 s44, {WS_W1}'); a('s_movk_i32 s45, 20480')
        a(f's_branch {ld}')
        a.label(l2_)
        srd(a, 64, 32, F * D * 2)
        a('s_sub_u32 s40, s2, 148')
        a(f's_mul_hi_u32 s46, s40, {magic(10)}')
        a('s_mul_i32 s47, s46, 10')
        a('s_sub_u32 s47, s40, s47')
        a('s_movk_i32 s41, 192'); a('s_movk_i32 s42, 1280'); a(f's_mov_b32 s44, {WS_W2}'); a('s_mov_b32 s45, 55296')
        a.label(ld)
        a('s_mul_i32 s43, s46, s41')
        a('s_lshr_b32 s48, s43, 3')
        a('s_mul_i32 s43, s43, s42')
        a('s_lshl_b32 s40, s47, 7')
        a('s_add_u32 s43, s43, s40')
        a('s_lshl_b32 s40, s47, 2')
        a('s_mul_i32 s40, s40, s45')
        a('s_add_u32 s44, s44, s40')
        a('s_lshl_b32 s40, s48, 8')
        a('s_add_u32 s44, s44, s40')
    def pack_dma_setup():
        a('v_lshrrev_b32 v11, 3, v2')
        a('s_lshl_b32 s40, s23, 3')
        a('v_add_u32 v11, s40, v11')
        a('v_mul_lo_u32 v11, v11, s42')
        a('v_and_b32 v12, 7, v2')
        a('v_lshl_add_u32 v11, v12, 4, v11')
        a('s_cmp_lt_u32 s2, 238')
        a('s_cselect_b32 s49, s43, 0x7ff00000')
        a('s_lshl_b32 s50, s42, 5')
    def pack_dma_one(i):
        a(f's_add_u32 m0, s37, {PK_LDS + i*4096}')
        a('s_nop 0')
        a('buffer_load_dwordx4 v11, s[64:67], s49 offen ' + ('nt ' if 'pknt' in gen.EXP else '') + 'lds')
        a('s_add_u32 s49, s49, s50')
    def pack_dma():
        pack_dma_setup()
        for i in range(6): pack_dma_one(i)
    def pack_setup():
        a('v_lshrrev_b32 v12, 4, v2')
        a('v_lshrrev_b32 v13, 2, v2')
        a('v_and_b32 v13, 3, v13')
        a('v_lshl_add_u32 v12, v12, 3, v13')
        a('v_lshlrev_b32 v12, 7, v12')
        a('v_and_b32 v13, 3, v2')
        a('v_lshl_add_u32 v12, v13, 3, v12')
        a('s_lshl_b32 s49, s23, 5')
        a(f's_add_u32 s49, s49, {PK_LDS}')
        a('v_add_u32 v12, s49, v12')
        a('s_mul_i32 s54, s23, s45')
        a('s_add_u32 s54, s54, s44')
        a('s_cmp_lt_u32 s2, 238')
        a('s_cselect_b32 s54, s54, 0x7ff00000')
        a('s_cmp_gt_u32 s41, 160')
        a('s_cselect_b32 s55, s54, 0x7ff00000')
    def pack_read(i, T):
        a(f'ds_read_b64_tr_b16 {v(T,2)}, v12 offset:{i*4096}')
        a(f'ds_read_b64_tr_b16 {v(T+2,2)}, v12 offset:{i*4096 + 512}')
    def pack_store(i, T):
        a(f's_add_u32 s49, {"s54" if i < 5 else "s55"}, {i*1024}')
        a(f'buffer_store_dwordx4 {v(T,4)}, v10, s[8:11], s49 offen' + WT + (' nt' if 'pkstnt' in gen.EXP else ''))
    def pack_work(T):
        pack_setup()
        for i in range(6): pack_read(i, T + 4*i)
        a('s_waitcnt lgkmcnt(0)')
        for i in range(6): pack_store(i, T + 4*i)
    lz = f'{L}_nogemm'
    a('s_cmp_ge_u32 s14, 15')
    a(f's_cbranch_scc1 {lz}')
    for st in range(2):
        for k in range(4): dma(st, k)
    if 'k1pflate' in gen.EXP:
        for _ in range(code_pf('h')): vm.issue('code')
    if 'k1tlb' in gen.EXP:
        a('v_lshlrev_b32 v96, 17, v2')
        a('s_lshl_b32 s40, s23, 23')
        a('buffer_load_dword v100, v96, s[8:11], s40 offen')
        vm.issue('tlb')
    if operand_touch(56, 60, 96, 100): vm.issue('touch')
    decode()
    pack_dma_setup()
    VB = 14
    a('v_lshrrev_b32 v7, 1, v3')
    a('v_and_b32 v7, 7, v7')
    a('s_lshl_b32 s40, s23, 12')
    a('v_lshlrev_b32 v8, 7, v3')
    a('v_add_u32 v8, s40, v8')
    for ks in range(4):
        a(f'v_or_b32 v9, {2*ks}, v4')
        a('v_xor_b32 v9, v9, v7')
        a(f'v_lshl_add_u32 v{VB+ks}, v9, 4, v8')
        a(f'v_add_u32 v{VB+4+ks}, 0x10000, v{VB+ks}')
    XS, S1, T = 24, 40, 44
    for r in range(4): a(f'v_mov_b32 v{S1+r}, 0')
    pend = [(st, k) for st in range(2, 10) for k in range(4)]
    stamp(a, 2)
    vm.wait(a, lambda x: x == ('r', 0))
    a('s_barrier')
    stamp(a, 3)
    for st in range(10):
        off = (st % NS) * 32768
        hi = off >= 65536
        if hi: off -= 65536
        for ks in range(4): a(f'ds_read_b128 {v(XS+4*ks,4)}, v{VB+(4 if hi else 0)+ks} offset:{off}')
        n_iss = 8 if st == 0 else 4
        todo = []
        while pend and pend[0][0] <= st + NS - 1 and len(todo) < n_iss: todo.append(pend.pop(0))
        if todo: dma(*todo.pop(0))
        a('s_waitcnt lgkmcnt(0)')
        for r in range(16):
            src = XS + r; t = T + 2 * (r & 1); acc = S1 + (r & 1)
            if 'k1nostat' not in gen.EXP:
                a(f'v_lshlrev_b32 v{t}, 16, v{src}'); a(f'v_and_b32 v{t+1}, 0xffff0000, v{src}')
                a(f'v_add_f32 v{acc}, v{acc}, v{t}'); a(f'v_fmac_f32 v{acc+2}, v{t}, v{t}')
                a(f'v_add_f32 v{acc}, v{acc}, v{t+1}'); a(f'v_fmac_f32 v{acc+2}, v{t+1}, v{t+1}')
            if todo and ((r & 3) == 3 or (st == 0 and (r & 1))): dma(*todo.pop(0))
        while todo: dma(*todo.pop(0))
        P0 = (3 if 'pk3' in gen.EXP else (1 if 'pk1' in gen.EXP else 2)) if 'pklate' in gen.EXP else 0
        if P0 <= st <= P0 + 2 and 'k1nopk' not in gen.EXP:
            for i in (2*(st-P0), 2*(st-P0)+1):
                pack_dma_one(i); vm.issue('pk')
        if st + 1 < 10:
            if st == P0 + 3 and 'k1nopk' not in gen.EXP: vm.wait(a, lambda x: x == ('r', st + 1) or x == 'pk')
            else: vm.wait(a, lambda x: x == ('r', st + 1))
            a('s_barrier')
    a(f'v_add_f32 v{S1}, v{S1}, v{S1+1}')
    a(f'v_add_f32 v{S1+2}, v{S1+2}, v{S1+3}')
    for r in (0, 2):
        a(f'v_mov_b32 v{T}, v{S1+r}'); a(f'v_mov_b32 v{T+1}, v{S1+r}')
        a(f'v_permlane32_swap_b32 v{T}, v{T+1}')
        a(f'v_add_f32 v{S1+r}, v{T}, v{T+1}')
    a(f'v_mul_f32 v{S1}, {f2hex(1.0/640)}, v{S1}')
    a(f'v_mul_f32 v{S1+1}, {f2hex(1.0/640)}, v{S1+2}')
    a(f'v_fma_f32 v{S1+1}, -v{S1}, v{S1}, v{S1+1}')
    a(f'v_max_f32 v{S1+1}, 0, v{S1+1}')
    a(f'v_add_f32 v{S1+1}, 0x3727c5ac, v{S1+1}')
    a(f'v_rsq_f32 v{S1+1}, v{S1+1}')
    a(f'v_mul_f32 v{S1}, v{S1}, v{S1+1}')
    a('s_lshl_b32 s40, s23, 7')
    a(f's_add_u32 s40, s40, {ST_T}')
    a('v_lshlrev_b32 v7, 2, v3')
    a('v_add_u32 v7, s40, v7')
    a(f'ds_write_b32 v7, v{S1}')
    a(f'ds_write_b32 v7, v{S1+1} offset:512')
    a('s_waitcnt lgkmcnt(0)')
    a('s_barrier')
    finish()
    a.label(lz)
    decode()
    pack_dma()
    if not merged:
        a('v_lshlrev_b32 v1, 4, v2')
        a('s_lshl_b32 s40, s23, 10')
        a('v_add_u32 v1, s40, v1')
        for r in range(4): a(f'v_mov_b32 v{100+r}, 0')
        a(f's_mov_b32 s17, {WS_FLAG}')
        a('buffer_store_dwordx4 v[100:103], v1, s[8:11], s17 offen')
        a('buffer_store_dwordx4 v[100:103], v1, s[8:11], s17 offen offset:4095' if False else 's_add_u32 s17, s17, 4096')
        a('buffer_store_dwordx4 v[100:103], v1, s[8:11], s17 offen')
    a('s_waitcnt vmcnt(0)')
    a('s_barrier')
    pack_work(48)
    finish()
    a.label(f'{L}_compute')
    a('s_cmp_ge_u32 s14, 15')
    if merged:
        lq = lab('ng')
        a(f's_cbranch_scc0 {lq}')
        a('s_barrier')
        finish()
        a.label(lq)
    else:
        a(f's_cbranch_scc1 {L}_end')
    a('s_and_b32 s21, s12, 1')
    a('s_lshr_b32 s22, s12, 1')
    a('v_lshrrev_b32 v6, 4, v2')
    a('s_lshl_b32 s40, s23, 2')
    a('v_add_u32 v7, s40, v6')
    a('s_movk_i32 s40, 3840')
    a('v_mul_lo_u32 v7, v7, s40')
    a('v_and_b32 v8, 15, v2')
    a('v_lshlrev_b32 v9, 2, v6')
    a('v_xor_b32 v8, v8, v9')
    a('v_lshl_add_u32 v6, v8, 4, v7')
    a('s_lshl_b32 s36, s14, 8')
    a('s_lshl_b32 s37, s23, 10')
    a('s_waitcnt lgkmcnt(0)')
    srd(a, 60, 26, D * 3 * D * 2)
    vc = VM()
    def wdma(st, k):
        slot = (st % NS) * 32768
        a(f's_add_u32 m0, s37, {slot + 16384 + k*4096}')
        a(f's_add_u32 s38, s36, {(st*64 + k*16)*3840}')
        a('buffer_load_dwordx4 v6, s[60:63], s38 offen ' + ('nt ' if 'wnt' in gen.EXP else '') + 'lds')
        vc.issue(('r', st))
    stamp(a, 8)
    for st in range(2):
        for k in range(4): wdma(st, k)
    stamp(a, 2)
    if 'k1pflate' in gen.EXP:
        for _ in range(code_pf('c')): vc.issue('code')
    if operand_touch(60, 60, 136, 150): vc.issue('touch')
    base_ops = list(vc.ops)
    VB, VA = 14, 22
    a('v_lshrrev_b32 v7, 1, v3')
    a('v_and_b32 v7, 7, v7')
    a('s_lshl_b32 s40, s22, 13')
    a('v_lshlrev_b32 v8, 7, v3')
    a('v_add_u32 v8, s40, v8')
    for ks in range(4):
        a(f'v_or_b32 v9, {2*ks}, v4')
        a('v_xor_b32 v9, v9, v7')
        a(f'v_lshl_add_u32 v{VB+ks}, v9, 4, v8')
        a(f'v_add_u32 v{VB+4+ks}, 0x10000, v{VB+ks}')
    a('v_lshrrev_b32 v7, 2, v2')
    a('v_and_b32 v7, 3, v7')
    a('v_and_b32 v8, 3, v2')
    a('v_and_b32 v9, 1, v8')
    a('v_lshlrev_b32 v9, 1, v9')
    a('v_lshrrev_b32 v11, 1, v8')
    a('v_or_b32 v9, v9, v11')
    a('s_cmp_lt_u32 s14, 10')
    a('s_cselect_b64 vcc, -1, 0')
    a('v_cndmask_b32 v8, v8, v9, vcc')
    a('v_lshrrev_b32 v9, 4, v2')
    a('v_and_b32 v9, 1, v9')
    a('v_lshl_add_u32 v8, v9, 2, v8')
    a('v_lshl_add_u32 v12, v4, 3, v7')
    a('v_lshlrev_b32 v12, 8, v12')
    a('v_and_b32 v13, 1, v8')
    a('v_lshl_add_u32 v12, v13, 3, v12')
    a('v_lshrrev_b32 v8, 1, v8')
    a('v_lshlrev_b32 v11, 2, v7')
    for aa in range(2):
        a(f's_xor_b32 s40, s22, {aa}')
        a('s_lshl_b32 s41, s21, 1')
        a('s_add_u32 s40, s40, s41')
        a(f's_mov_b32 s{50+aa}, s40')
        a('s_lshl_b32 s40, s40, 2')
        a('v_add_u32 v9, s40, v8')
        a('v_xor_b32 v9, v9, v11')
        a(f'v_lshl_add_u32 v{VA+2*aa}, v9, 4, v12')
        a(f'v_add_u32 v{VA+2*aa}, 16384, v{VA+2*aa}')
        a(f'v_add_u32 v{VA+2*aa+1}, 0x10000, v{VA+2*aa}')
    SEL, CSA = 28, 32
    a(f'v_mov_b32 v{SEL}, 0')
    a('s_mov_b32 s52, 0x00020001')
    a('s_mov_b32 s53, 0x00020001')
    a('v_mov_b32 v7, 0x3f803f80')
    a(f'v_cndmask_b32 v{SEL}, v{SEL}, v7, s[52:53]')
    for r in range(1, 4): a(f'v_mov_b32 v{SEL+r}, v{SEL}')
    for r in range(4): a(f'v_mov_b32 v{CSA+r}, 0')
    ACC, FA, FB, T = 40, 104, 120, 136
    a('s_waitcnt lgkmcnt(0)')
    srd(a, 8, 4, WS_END)
    a('s_mov_b32 s56, s50'); a('s_mov_b32 s57, s51')
    decode()
    pack_setup()
    PKT, CS4, ONES = 140, 152, 156
    for r in range(4):
        a(f'v_mov_b32 v{CS4+r}, 0'); a(f'v_mov_b32 v{ONES+r}, 0x3f803f80')
    def w1_colsum_store():
        a('s_sub_u32 s40, s2, 40')
        a('s_mul_i32 s58, s46, 6912')
        a('s_lshl_b32 s59, s47, 8')
        a('s_add_u32 s58, s58, s59')
        a('s_lshl_b32 s59, s23, 6')
        a('s_add_u32 s58, s58, s59')
        a(f's_add_u32 s58, s58, {WS_CS1}')
        a('s_cmp_lt_u32 s40, 108')
        a('s_cselect_b32 s58, s58, 0x7ff00000')
        a('v_lshrrev_b32 v11, 4, v2')
        a('v_lshlrev_b32 v11, 4, v11')
        a('s_mov_b32 s52, 0x00010001')
        a('s_mov_b32 s53, 0x00010001')
        a('s_mov_b64 exec, s[52:53]')
        a(f'buffer_store_dwordx4 {v(CS4,4)}, v11, s[8:11], s58 offen' + WT)
        a('s_mov_b64 exec, -1')
    def reads(st, ks, buf):
        off = (st % NS) * 32768
        hi = 1 if off >= 65536 else 0
        off -= hi * 65536
        for aa in range(2):
            a(f'ds_read_b64_tr_b16 {v(FA+8*buf+4*aa,2)}, v{VA+2*aa+hi} offset:{off + ks*4096}')
            a(f'ds_read_b64_tr_b16 {v(FA+8*buf+4*aa+2,2)}, v{VA+2*aa+hi} offset:{off + ks*4096 + 1024}')
        bb = VB + 4 * hi + ks
        a(f'ds_read_b128 {v(FB+8*buf,4)}, v{bb} offset:{off}')
        a(f'ds_read_b128 {v(FB+8*buf+4,4)}, v{bb} offset:{off + 4096}')
    def pk_at(st, ks):
        if 'k1nopk' in gen.EXP: return None
        if 'pklate' in gen.EXP:
            if st >= 7 and ks in (0, 2): return 2 * (st - 7) + ks // 2
            return None
        return st - 4 if (st >= 4 and ks == 0) else None
    def main(swap):
        vc.ops = list(base_ops)
        pend = [(st, k) for st in range(2, 10) for k in range(4)]
        vc.wait(a, lambda x: x == ('r', 0))
        a('s_barrier')
        stamp(a, 3)
        reads(0, 0, 0)
        buf = 0
        for st in range(10):
            for ks in range(4):
                if ks < 3:
                    pi = pk_at(st, ks)
                    if pi is not None: pack_read(pi, PKT)
                    reads(st, ks + 1, buf ^ 1)
                    a('s_waitcnt lgkmcnt(%d)' % (8 if pi is not None else 6))
                else:
                    a('s_waitcnt lgkmcnt(0)')
                    if st + 1 < 10:
                        if 'k1stamp' in gen.EXP and st in (2, 5): stamp(a, {2: 8, 5: 10}[st])
                        vc.wait(a, lambda x: x == ('r', st + 1))
                        a('s_barrier')
                        if 'k1stamp' in gen.EXP and st in (2, 5): stamp(a, {2: 9, 5: 11}[st])
                        reads(st + 1, 0, buf ^ 1)
                for aa in range(2):
                    for j in range(2):
                        A_ = v(FA+8*buf+4*aa, 4); B_ = v(FB+8*buf+4*j, 4)
                        acc = v(ACC+32*aa+16*j, 16)
                        c = '0' if (st == 0 and ks == 0) else acc
                        if swap: a(f'v_mfma_f32_32x32x16_bf16 {acc}, {B_}, {A_}, {c}')
                        else: a(f'v_mfma_f32_32x32x16_bf16 {acc}, {A_}, {B_}, {c}')
                if 'k1nocs' not in gen.EXP: a(f'v_mfma_f32_16x16x32_bf16 {v(CSA,4)}, {v(FA+8*buf,4)}, {v(SEL,4)}, {v(CSA,4)}')
                pi = pk_at(st, ks - 1) if ks >= 1 else None
                if pi is not None:
                    pack_store(pi, PKT); vc.issue('pks')
                    if pi < 5: a(f'v_mfma_f32_16x16x32_bf16 {v(CS4,4)}, {v(PKT,4)}, {v(ONES,4)}, {v(CS4,4)}')
                if st == 9 and ks == (3 if 'pklate' in gen.EXP else 2) and 'k1nopk' not in gen.EXP:
                    w1_colsum_store(); vc.issue('pks')
                lim = st + NS - 1 + (1 if ks == 3 else 0)
                for _ in range(2 if st == 0 else 1):
                    if pend and pend[0][0] <= lim: wdma(*pend.pop(0))
                buf ^= 1
        stamp(a, 4)
        a('s_lshl_b32 s40, s56, 7')
        a(f's_add_u32 s40, s40, {CS_T}')
        a('v_and_b32 v8, 1, v2')
        a('v_lshlrev_b32 v8, 6, v8')
        a('v_lshrrev_b32 v9, 4, v2')
        a('v_lshl_add_u32 v8, v9, 4, v8')
        a('v_add_u32 v8, s40, v8')
        a('s_mov_b32 s52, 0x00030003')
        a('s_mov_b32 s53, 0x00030003')
        a('s_nop 7')
        a('s_mov_b64 exec, s[52:53]')
        a(f'ds_write_b128 v8, {v(CSA,4)}')
        a('s_mov_b64 exec, -1')
        a('s_waitcnt lgkmcnt(0)')
        a('s_barrier')
    a('s_cmp_ge_u32 s14, 10')
    a(f's_cbranch_scc1 {L}_v')
    main(False)
    C, P = 104, 136
    a('s_lshl_b32 s40, s22, 8')
    a(f's_add_u32 s40, s40, {ST_T}')
    a('v_lshlrev_b32 v7, 2, v3')
    a('v_add_u32 v7, s40, v7')
    for j in range(2):
        a(f'ds_read_b32 v{P+2*j}, v7 offset:{j*128}')
        a(f'ds_read_b32 v{P+2*j+1}, v7 offset:{512 + j*128}')
    for aa in range(2):
        a(f's_lshl_b32 s40, s{56+aa}, 7')
        a(f's_add_u32 s40, s40, {CS_T}')
        a('v_lshlrev_b32 v7, 4, v4')
        a('v_add_u32 v7, s40, v7')
        for g in range(4): a(f'ds_read_b128 {v(C+16*aa+4*g,4)}, v7 offset:{g*32}')
    a(f's_mov_b32 s40, {f2hex(QSCALE)}')
    a('s_cmp_lt_u32 s14, 5')
    a('s_cselect_b32 s40, s40, 1.0')
    a('s_waitcnt lgkmcnt(0)')
    for r in range(4): a(f'v_mul_f32 v{P+r}, s40, v{P+r}')
    a('v_lshrrev_b32 v13, 4, v3')
    a('s_movk_i32 s17, 20480')
    a('v_mul_lo_u32 v13, v13, s17')
    a('v_and_b32 v14, 15, v3')
    a('v_lshl_add_u32 v13, v14, 4, v13')
    a('v_lshl_add_u32 v13, v4, 8, v13')
    a('s_lshl_b32 s17, s13, 3')
    a('s_lshl_b32 s18, s22, 2')
    a('s_add_u32 s17, s17, s18')
    a('s_mul_i32 s17, s17, 20480')
    a(f's_mov_b32 s18, {WS_Q}')
    a(f's_mov_b32 s19, {WS_K - 80*256}')
    a('s_cmp_lt_u32 s14, 5')
    a('s_cselect_b32 s18, s18, s19')
    a('s_add_u32 s17, s17, s18')
    a('s_lshl_b32 s18, s14, 12')
    a('s_add_u32 s17, s17, s18')
    PK = 144
    for aa in range(2):
        for j in range(2):
            acc = ACC + 32 * aa + 16 * j
            for r in range(16):
                a(f'v_mul_f32 v{P+4}, v{P+2*j}, v{C+16*aa+r}')
                a(f'v_fma_f32 v{acc+r}, v{P+2*j+1}, v{acc+r}, -v{P+4}')
            pk = PK + 8 * ((2 * aa + j) & 1)
            for r in range(8): a(f'v_cvt_pk_bf16_f32 v{pk+r}, v{acc+2*r}, v{acc+2*r+1}')
            a(f's_lshl_b32 s18, s{56+aa}, 10')
            a('s_add_u32 s18, s18, s17')
            if j: a(f's_add_u32 s18, s18, {2*20480}')
            a(f'buffer_store_dwordx4 {v(pk,4)}, v13, s[8:11], s18 offen' + WT)
            a(f'buffer_store_dwordx4 {v(pk+4,4)}, v13, s[8:11], s18 offen offset:512' + WT)
    stamp(a, 5)
    if gen.PROF: a('s_waitcnt vmcnt(0)')
    stamp(a, 6); stamp(a, 7, True)
    if 'dbgst' in gen.EXP:
        ldb = lab('db')
        a('s_cmp_lg_u32 s2, 8'); a(f's_cbranch_scc1 {ldb}'); a('s_cmp_lg_u32 s12, 0'); a(f's_cbranch_scc1 {ldb}')
        a('s_sub_u32 s83, s83, s81'); a('s_sub_u32 s84, s84, s81'); a('s_sub_u32 s86, s86, s81'); a('s_sub_u32 s82, s82, s81'); a('s_sub_u32 s88, s88, s81')
        a('v_mov_b32 v0, 0'); a('v_mov_b32 v2, s88'); a('v_mov_b32 v3, s82'); a('v_mov_b32 v4, s83'); a('v_mov_b32 v5, s84')
        a(f's_mov_b32 s94, {WS_PROF}'); a('buffer_store_dwordx4 v[2:5], v0, s[8:11], s94 offen')
        a('v_mov_b32 v2, s86'); a('buffer_store_dword v2, v0, s[8:11], s94 offen offset:16')
        a.label(ldb)
    elif not merged: stamp_flush(a, 1, 12, 8, 12)
    finish()
    a.label(f'{L}_v')
    main(True)
    C = 104
    TT = 136
    for aa in range(2):
        a(f's_lshl_b32 s40, s{56+aa}, 7')
        a(f's_add_u32 s40, s40, {CS_T}')
        a('v_lshlrev_b32 v8, 2, v3')
        a('v_add_u32 v8, s40, v8')
        a(f'ds_read_b32 v{TT+aa}, v8')
    a('s_lshl_b32 s40, s22, 8')
    a(f's_add_u32 s40, s40, {ST_T}')
    a('v_lshlrev_b32 v7, 4, v4')
    a('v_add_u32 v7, s40, v7')
    for aa in range(2):
        a('s_sub_u32 s17, s14, 10')
        a('s_lshl_b32 s17, s17, 7')
        a(f's_lshl_b32 s18, s{56+aa}, 5')
        a('s_add_u32 s17, s17, s18')
        a('v_add_u32 v13, s17, v3')
        a(f's_mov_b32 s17, {magic(20)}')
        a('v_mul_hi_u32 v14, v13, s17')
        a('v_mul_u32_u24 v15, 20, v14')
        a('v_sub_u32 v15, v13, v15')
        a('s_mov_b32 s17, 81920')
        a('v_mul_lo_u32 v14, v14, s17')
        a('v_lshl_add_u32 v14, v15, 4, v14')
        a('v_mul_u32_u24 v15, 320, v4')
        a(f'v_add_u32 v{TT+2+aa}, v14, v15')
    a('s_lshl_b32 s17, s13, 3')
    a('s_lshl_b32 s18, s22, 2')
    a('s_add_u32 s17, s17, s18')
    a('s_mul_i32 s17, s17, 640')
    a(f's_add_u32 s17, s17, {WS_VT}')
    PK = 144
    for j in range(2):
        for g in range(4):
            a(f'ds_read_b128 {v(C+4*g,4)}, v7 offset:{j*128 + g*32}')
            a(f'ds_read_b128 {v(C+16+4*g,4)}, v7 offset:{512 + j*128 + g*32}')
        a('s_waitcnt lgkmcnt(0)')
        for aa in range(2):
            acc = ACC + 32 * aa + 16 * j
            for r in range(16):
                a(f'v_mul_f32 v{TT+4}, v{C+r}, v{TT+aa}')
                a(f'v_fma_f32 v{acc+r}, v{C+16+r}, v{acc+r}, -v{TT+4}')
            pk = PK + 8 * aa
            for r in range(8): a(f'v_cvt_pk_bf16_f32 v{pk+r}, v{acc+2*r}, v{acc+2*r+1}')
            for gg in range(2):
                a(f'buffer_store_dwordx4 {v(pk+4*gg,4)}, v{TT+2+aa}, s[8:11], s17 offen offset:{(2*j+gg)*640}' + ('' if 'vplain' in gen.EXP else WT))
    stamp(a, 5)
    if gen.PROF: a('s_waitcnt vmcnt(0)')
    stamp(a, 6); stamp(a, 7, True)
    if merged:
        finish()
        return
    stamp_flush(a, 1, 12, 8, 12)
    a.label(f'{L}_end')
    a('s_endpgm')
    return a, descriptor(L, 160, 102), f'; @launch kernel={L} grid=(256,1,1) block=(512,1,1) lds=163840'
```

```python
import sys
sys.path.insert(0, 'dev')
import gen
from gen import *
from gen2 import lab
from gen3 import VM
from asmlib import *

PK_LDS = 131072
TB_LDS = PK_LDS + 24576
ST_T = TB_LDS
CS_T = TB_LDS + 1024

def k1s(a=None, join=None):
    WT = '' if 'k1plain' in gen.EXP else ' sc1'
    merged = a is not None
    L = 'k1_kernel' if not merged else '.Lk1'
    NS = 4
    if not merged:
        a = Asm()
        kernel_begin(a, L)
        a('s_cmp_ge_u32 s2, 256')
        a(f's_cbranch_scc1 {L}_end')
    def finish():
        if merged: a(f's_branch {join}')
        else: a('s_endpgm')
    stamp(a, 0, True); stamp(a, 1)
    def code_pf(tag):
        if merged or 'nok1pf' in gen.EXP: return 0
        code_touch(a, L, '.Lkf_last' if 'k1pfall' in gen.EXP else f'{L}_end', '.Lpc_k1' + tag, 144, 151, 2 if 'k1pfall' in gen.EXP else 1)
        return 2 if 'k1pfall' in gen.EXP else 1
    if 'k1pflate' not in gen.EXP: code_pf('')
    a(f's_load_dwordx2 s[24:25], s[0:1], {A_X}')
    a(f's_load_dwordx2 s[26:27], s[0:1], {A_WQKV}')
    a(f's_load_dwordx2 s[4:5], s[0:1], {A_WS}')
    a(f's_load_dwordx2 s[28:29], s[0:1], {A_WO}')
    a(f's_load_dwordx2 s[30:31], s[0:1], {A_W1}')
    a(f's_load_dwordx2 s[32:33], s[0:1], {A_W2}')
    a('s_and_b32 s15, s2, 7')
    a('s_lshr_b32 s16, s2, 3')
    a('s_and_b32 s13, s15, 3')
    a('s_lshl_b32 s13, s13, 2')
    a('s_and_b32 s17, s16, 3')
    a('s_add_u32 s13, s13, s17')
    a('s_lshr_b32 s14, s15, 2')
    a('s_lshl_b32 s14, s14, 3')
    a('s_lshr_b32 s17, s16, 2')
    a('s_add_u32 s14, s14, s17')
    a('v_lshrrev_b32 v1, 6, v0')
    a('v_and_b32 v2, 63, v0')
    a('v_readfirstlane_b32 s12, v1')
    a('v_and_b32 v3, 31, v2')
    a('v_lshrrev_b32 v4, 5, v2')
    a('v_lshlrev_b32 v10, 4, v2')
    a('s_and_b32 s23, s12, 3')
    if merged:
        from gen2 import WS_XT
        li = lab('in')
        a('s_cmp_lg_u32 s12, 0')
        a(f's_cbranch_scc1 {li}')
        a('s_waitcnt lgkmcnt(0)')
        srd(a, 8, 4, WS_END)
        a('s_and_b32 s40, s2, 7')
        a('s_lshl_b32 s40, s40, 7')
        a('s_lshr_b32 s41, s2, 3')
        a('s_lshl_b32 s41, s41, 2')
        a('s_add_u32 s40, s40, s41')
        a(f's_add_u32 s40, s40, {WS_FLAG}')
        a('v_lshlrev_b32 v5, 10, v2')
        a(f'v_mov_b32 v6, {WS_XT - WS_FLAG}')
        a('v_cmp_eq_u32 vcc, 3, v2')
        a('v_cndmask_b32 v5, v5, v6, vcc')
        a('s_getreg_b32 s41, hwreg(HW_REG_XCC_ID, 0, 4)')
        a('s_add_u32 s41, s41, 1')
        a('v_mov_b32 v6, 0')
        a('v_mov_b32 v7, s41')
        a('v_cndmask_b32 v6, v6, v7, vcc')
        a('s_mov_b64 exec, 15')
        a('buffer_store_dword v6, v5, s[8:11], s40 offen sc1')
        a('s_mov_b64 exec, -1')
        a.label(li)
    a('s_cmp_lt_u32 s12, 4')
    a(f's_cbranch_scc1 {L}_compute')
    a('v_lshrrev_b32 v5, 3, v2')
    a('s_lshl_b32 s40, s23, 3')
    a('v_add_u32 v5, s40, v5')
    a('v_lshrrev_b32 v6, 4, v2')
    a('s_lshl_b32 s40, s23, 2')
    a('v_add_u32 v7, s40, v6')
    a('v_and_b32 v7, 7, v7')
    a('v_and_b32 v8, 7, v2')
    a('v_xor_b32 v7, v7, v8')
    a('s_movk_i32 s40, 1280')
    a('v_mul_lo_u32 v5, v5, s40')
    a('v_lshl_add_u32 v5, v7, 4, v5')
    a('s_mul_i32 s35, s13, 163840')
    a('s_lshl_b32 s40, s23, 2')
    a('v_add_u32 v7, s40, v6')
    a('s_movk_i32 s40, 3840')
    a('v_mul_lo_u32 v7, v7, s40')
    a('v_and_b32 v8, 15, v2')
    a('v_lshlrev_b32 v9, 2, v6')
    a('v_xor_b32 v8, v8, v9')
    a('v_lshl_add_u32 v6, v8, 4, v7')
    a('s_lshl_b32 s36, s14, 8')
    a('s_lshl_b32 s37, s23, 10')
    a('s_waitcnt lgkmcnt(0)')
    srd(a, 56, 24, S * D * 2)
    srd(a, 60, 26, D * 3 * D * 2)
    srd(a, 8, 4, WS_END)
    def operand_touch(srdx, srdw, vt, vd):
        if 'notouchk1' in gen.EXP: return 0
        lx, ld_ = lab('ot'), lab('ot')
        a('s_sub_u32 s40, s12, 4')
        a('s_cmp_lt_u32 s40, 3')
        a(f's_cbranch_scc0 {lx}')
        a('s_lshl_b32 s40, s40, 6')
        a(f'v_add_u32 v{vt}, s40, v2')
        a(f's_mov_b32 s41, {magic(10)}')
        a(f'v_mul_hi_u32 v{vt+1}, v{vt}, s41')
        a(f'v_mul_u32_u24 v{vt+2}, 10, v{vt+1}')
        a(f'v_sub_u32 v{vt+2}, v{vt}, v{vt+2}')
        a('s_lshr_b32 s41, s16, 2')
        a('s_lshl_b32 s41, s41, 4')
        a('s_lshl_b32 s40, s13, 7')
        a('s_add_u32 s41, s41, s40')
        a(f'v_add_u32 v{vt+1}, s41, v{vt+1}')
        a('s_movk_i32 s41, 1280')
        a(f'v_mul_lo_u32 v{vt+1}, v{vt+1}, s41')
        a(f'v_lshl_add_u32 v{vt+1}, v{vt+2}, 7, v{vt+1}')
        a(f'v_mov_b32 v{vt+2}, 0x7ff00000')
        a(f'v_cmp_gt_u32 vcc, 160, v{vt}')
        a(f'v_cndmask_b32 v{vt+1}, v{vt+2}, v{vt+1}, vcc')
        a(f'buffer_load_dword v{vd}, v{vt+1}, s[{srdx}:{srdx+3}], 0 offen')
        a(f's_branch {ld_}')
        a.label(lx)
        a('s_add_u32 s40, s12, 1')
        a('s_cmp_eq_u32 s12, 7')
        a('s_cselect_b32 s40, 0, s40')
        a('s_lshl_b32 s40, s40, 6')
        a(f'v_add_u32 v{vt}, s40, v2')
        a(f'v_lshrrev_b32 v{vt+1}, 1, v{vt}')
        a('s_and_b32 s41, s16, 3')
        a('s_mul_i32 s41, s41, 160')
        a(f'v_add_u32 v{vt+1}, s41, v{vt+1}')
        a('s_movk_i32 s41, 3840')
        a(f'v_mul_lo_u32 v{vt+1}, v{vt+1}, s41')
        a(f'v_and_b32 v{vt+2}, 1, v{vt}')
        a(f'v_lshl_add_u32 v{vt+1}, v{vt+2}, 7, v{vt+1}')
        a('s_lshl_b32 s41, s14, 8')
        a('s_cmp_lt_u32 s14, 15')
        a('s_cselect_b32 s41, s41, 0x7ff00000')
        a(f'buffer_load_dword v{vd}, v{vt+1}, s[{srdw}:{srdw+3}], s41 offen')
        a.label(ld_)
        return 1
    vm = VM()
    def dma(st, k):
        slot = (st % NS) * 32768
        if k < 4:
            a(f's_add_u32 m0, s37, {slot + k*4096}')
            a(f's_add_u32 s38, s35, {st*128 + k*32*1280}')
            a('buffer_load_dwordx4 v5, s[56:59], s38 offen ' + ('nt ' if 'xnt' in gen.EXP else '') + 'lds')
        else:
            a(f's_add_u32 m0, s37, {slot + 16384 + (k-4)*4096}')
            a(f's_add_u32 s38, s36, {(st*64 + (k-4)*16)*3840}')
            a('buffer_load_dwordx4 v6, s[60:63], s38 offen lds')
        vm.issue(('r', st))
    def decode():
        l1_, l2_, ld = lab('pk'), lab('pk'), lab('pk')
        a('s_cmp_lt_u32 s2, 40')
        a(f's_cbranch_scc0 {l1_}')
        srd(a, 64, 28, D * D * 2)
        a(f's_mul_hi_u32 s46, s2, {magic(10)}')
        a('s_mul_i32 s47, s46, 10')
        a('s_sub_u32 s47, s2, s47')
        a('s_movk_i32 s41, 160'); a('s_movk_i32 s42, 1280'); a(f's_mov_b32 s44, {WS_WO}'); a('s_movk_i32 s45, 20480')
        a(f's_branch {ld}')
        a.label(l1_)
        a('s_cmp_lt_u32 s2, 148')
        a(f's_cbranch_scc0 {l2_}')
        srd(a, 64, 30, D * F * 2)
        a('s_sub_u32 s40, s2, 40')
        a(f's_mul_hi_u32 s46, s40, {magic(27)}')
        a('s_mul_i32 s47, s46, 27')
        a('s_sub_u32 s47, s40, s47')
        a('s_movk_i32 s41, 160'); a('s_movk_i32 s42, 3456'); a(f's_mov_b32 s44, {WS_W1}'); a('s_movk_i32 s45, 20480')
        a(f's_branch {ld}')
        a.label(l2_)
        srd(a, 64, 32, F * D * 2)
        a('s_sub_u32 s40, s2, 148')
        a(f's_mul_hi_u32 s46, s40, {magic(10)}')
        a('s_mul_i32 s47, s46, 10')
        a('s_sub_u32 s47, s40, s47')
        a('s_movk_i32 s41, 192'); a('s_movk_i32 s42, 1280'); a(f's_mov_b32 s44, {WS_W2}'); a('s_mov_b32 s45, 55296')
        a.label(ld)
        a('s_mul_i32 s43, s46, s41')
        a('s_lshr_b32 s48, s43, 3')
        a('s_mul_i32 s43, s43, s42')
        a('s_lshl_b32 s40, s47, 7')
        a('s_add_u32 s43, s43, s40')
        a('s_lshl_b32 s40, s47, 2')
        a('s_mul_i32 s40, s40, s45')
        a('s_add_u32 s44, s44, s40')
        a('s_lshl_b32 s40, s48, 8')
        a('s_add_u32 s44, s44, s40')
    def pack_dma_setup():
        a('v_lshrrev_b32 v11, 3, v2')
        a('s_lshl_b32 s40, s23, 3')
        a('v_add_u32 v11, s40, v11')
        a('v_mul_lo_u32 v11, v11, s42')
        a('v_and_b32 v12, 7, v2')
        a('v_lshl_add_u32 v11, v12, 4, v11')
        a('s_cmp_lt_u32 s2, 238')
        a('s_cselect_b32 s49, s43, 0x7ff00000')
        a('s_lshl_b32 s50, s42, 5')
    def pack_dma_one(i):
        a(f's_add_u32 m0, s37, {PK_LDS + i*4096}')
        a('s_nop 0')
        a('buffer_load_dwordx4 v11, s[64:67], s49 offen ' + ('nt ' if 'pknt' in gen.EXP else '') + 'lds')
        a('s_add_u32 s49, s49, s50')
    def pack_dma():
        pack_dma_setup()
        for i in range(6): pack_dma_one(i)
    def pack_setup():
        a('v_lshrrev_b32 v12, 4, v2')
        a('v_lshrrev_b32 v13, 2, v2')
        a('v_and_b32 v13, 3, v13')
        a('v_lshl_add_u32 v12, v12, 3, v13')
        a('v_lshlrev_b32 v12, 7, v12')
        a('v_and_b32 v13, 3, v2')
        a('v_lshl_add_u32 v12, v13, 3, v12')
        a('s_lshl_b32 s49, s23, 5')
        a(f's_add_u32 s49, s49, {PK_LDS}')
        a('v_add_u32 v12, s49, v12')
        a('s_mul_i32 s54, s23, s45')
        a('s_add_u32 s54, s54, s44')
        a('s_cmp_lt_u32 s2, 238')
        a('s_cselect_b32 s54, s54, 0x7ff00000')
        a('s_cmp_gt_u32 s41, 160')
        a('s_cselect_b32 s55, s54, 0x7ff00000')
    def pack_read(i, T):
        a(f'ds_read_b64_tr_b16 {v(T,2)}, v12 offset:{i*4096}')
        a(f'ds_read_b64_tr_b16 {v(T+2,2)}, v12 offset:{i*4096 + 512}')
    def pack_store(i, T):
        a(f's_add_u32 s49, {"s54" if i < 5 else "s55"}, {i*1024}')
        a(f'buffer_store_dwordx4 {v(T,4)}, v10, s[8:11], s49 offen' + WT + (' nt' if 'pkstnt' in gen.EXP else ''))
    def pack_work(T):
        pack_setup()
        for i in range(6): pack_read(i, T + 4*i)
        a('s_waitcnt lgkmcnt(0)')
        for i in range(6): pack_store(i, T + 4*i)
    lz = f'{L}_nogemm'
    a('s_cmp_ge_u32 s14, 15')
    a(f's_cbranch_scc1 {lz}')
    for st in range(2):
        for k in range(4): dma(st, k)
    if 'k1pflate' in gen.EXP:
        for _ in range(code_pf('h')): vm.issue('code')
    if 'k1tlb' in gen.EXP:
        a('v_lshlrev_b32 v96, 17, v2')
        a('s_lshl_b32 s40, s23, 23')
        a('buffer_load_dword v100, v96, s[8:11], s40 offen')
        vm.issue('tlb')
        if 'k1tlbout' in gen.EXP:
            a(f's_load_dwordx2 s[68:69], s[0:1], {A_OUT}')
            a('s_waitcnt lgkmcnt(0)')
            srd(a, 68, 68, S * D * 2) if False else None
            a('s_mov_b32 s72, s68'); a('s_and_b32 s73, s69, 0xffff'); a(f's_mov_b32 s74, {S*D*2}'); a('s_mov_b32 s75, 0x20000')
            a('v_lshlrev_b32 v96, 16, v2')
            a('buffer_load_dword v100, v96, s[72:75], 0 offen')
            vm.issue('tlb')
    if operand_touch(56, 60, 96, 100): vm.issue('touch')
    decode()
    pack_dma_setup()
    VB = 14
    a('v_lshrrev_b32 v7, 1, v3')
    a('v_and_b32 v7, 7, v7')
    a('s_lshl_b32 s40, s23, 12')
    a('v_lshlrev_b32 v8, 7, v3')
    a('v_add_u32 v8, s40, v8')
    for ks in range(4):
        a(f'v_or_b32 v9, {2*ks}, v4')
        a('v_xor_b32 v9, v9, v7')
        a(f'v_lshl_add_u32 v{VB+ks}, v9, 4, v8')
        a(f'v_add_u32 v{VB+4+ks}, 0x10000, v{VB+ks}')
    XS, S1, T = 24, 40, 44
    for r in range(4): a(f'v_mov_b32 v{S1+r}, 0')
    pend = [(st, k) for st in range(2, 10) for k in range(4)]
    stamp(a, 2)
    vm.wait(a, lambda x: x == ('r', 0))
    a('s_barrier')
    stamp(a, 3)
    for st in range(10):
        off = (st % NS) * 32768
        hi = off >= 65536
        if hi: off -= 65536
        for ks in range(4): a(f'ds_read_b128 {v(XS+4*ks,4)}, v{VB+(4 if hi else 0)+ks} offset:{off}')
        n_iss = 8 if st == 0 else 4
        todo = []
        while pend and pend[0][0] <= st + NS - 1 and len(todo) < n_iss: todo.append(pend.pop(0))
        if todo: dma(*todo.pop(0))
        a('s_waitcnt lgkmcnt(0)')
        for r in range(16):
            src = XS + r; t = T + 2 * (r & 1); acc = S1 + (r & 1)
            if 'k1nostat' not in gen.EXP:
                a(f'v_lshlrev_b32 v{t}, 16, v{src}'); a(f'v_and_b32 v{t+1}, 0xffff0000, v{src}')
                a(f'v_add_f32 v{acc}, v{acc}, v{t}'); a(f'v_fmac_f32 v{acc+2}, v{t}, v{t}')
                a(f'v_add_f32 v{acc}, v{acc}, v{t+1}'); a(f'v_fmac_f32 v{acc+2}, v{t+1}, v{t+1}')
            if todo and ((r & 3) == 3 or (st == 0 and (r & 1))): dma(*todo.pop(0))
        while todo: dma(*todo.pop(0))
        P0 = (3 if 'pk3' in gen.EXP else (1 if 'pk1' in gen.EXP else 2)) if 'pklate' in gen.EXP else 0
        if P0 <= st <= P0 + 2 and 'k1nopk' not in gen.EXP:
            for i in (2*(st-P0), 2*(st-P0)+1):
                pack_dma_one(i); vm.issue('pk')
        if st + 1 < 10:
            if st == P0 + 3 and 'k1nopk' not in gen.EXP: vm.wait(a, lambda x: x == ('r', st + 1) or x == 'pk')
            else: vm.wait(a, lambda x: x == ('r', st + 1))
            a('s_barrier')
    a(f'v_add_f32 v{S1}, v{S1}, v{S1+1}')
    a(f'v_add_f32 v{S1+2}, v{S1+2}, v{S1+3}')
    for r in (0, 2):
        a(f'v_mov_b32 v{T}, v{S1+r}'); a(f'v_mov_b32 v{T+1}, v{S1+r}')
        a(f'v_permlane32_swap_b32 v{T}, v{T+1}')
        a(f'v_add_f32 v{S1+r}, v{T}, v{T+1}')
    a(f'v_mul_f32 v{S1}, {f2hex(1.0/640)}, v{S1}')
    a(f'v_mul_f32 v{S1+1}, {f2hex(1.0/640)}, v{S1+2}')
    a(f'v_fma_f32 v{S1+1}, -v{S1}, v{S1}, v{S1+1}')
    a(f'v_max_f32 v{S1+1}, 0, v{S1+1}')
    a(f'v_add_f32 v{S1+1}, 0x3727c5ac, v{S1+1}')
    a(f'v_rsq_f32 v{S1+1}, v{S1+1}')
    a(f'v_mul_f32 v{S1}, v{S1}, v{S1+1}')
    a('s_lshl_b32 s40, s23, 7')
    a(f's_add_u32 s40, s40, {ST_T}')
    a('v_lshlrev_b32 v7, 2, v3')
    a('v_add_u32 v7, s40, v7')
    a(f'ds_write_b32 v7, v{S1}')
    a(f'ds_write_b32 v7, v{S1+1} offset:512')
    a('s_waitcnt lgkmcnt(0)')
    a('s_barrier')
    finish()
    a.label(lz)
    decode()
    pack_dma()
    if not merged:
        a('v_lshlrev_b32 v1, 4, v2')
        a('s_lshl_b32 s40, s23, 10')
        a('v_add_u32 v1, s40, v1')
        for r in range(4): a(f'v_mov_b32 v{100+r}, 0')
        a(f's_mov_b32 s17, {WS_FLAG}')
        a('buffer_store_dwordx4 v[100:103], v1, s[8:11], s17 offen')
        a('buffer_store_dwordx4 v[100:103], v1, s[8:11], s17 offen offset:4095' if False else 's_add_u32 s17, s17, 4096')
        a('buffer_store_dwordx4 v[100:103], v1, s[8:11], s17 offen')
    a('s_waitcnt vmcnt(0)')
    a('s_barrier')
    pack_work(48)
    finish()
    a.label(f'{L}_compute')
    a('s_cmp_ge_u32 s14, 15')
    if merged:
        lq = lab('ng')
        a(f's_cbranch_scc0 {lq}')
        a('s_barrier')
        finish()
        a.label(lq)
    else:
        a(f's_cbranch_scc1 {L}_end')
    a('s_and_b32 s21, s12, 1')
    a('s_lshr_b32 s22, s12, 1')
    a('v_lshrrev_b32 v6, 4, v2')
    a('s_lshl_b32 s40, s23, 2')
    a('v_add_u32 v7, s40, v6')
    a('s_movk_i32 s40, 3840')
    a('v_mul_lo_u32 v7, v7, s40')
    a('v_and_b32 v8, 15, v2')
    a('v_lshlrev_b32 v9, 2, v6')
    a('v_xor_b32 v8, v8, v9')
    a('v_lshl_add_u32 v6, v8, 4, v7')
    a('s_lshl_b32 s36, s14, 8')
    a('s_lshl_b32 s37, s23, 10')
    a('s_waitcnt lgkmcnt(0)')
    srd(a, 60, 26, D * 3 * D * 2)
    vc = VM()
    def wdma(st, k):
        slot = (st % NS) * 32768
        a(f's_add_u32 m0, s37, {slot + 16384 + k*4096}')
        a(f's_add_u32 s38, s36, {(st*64 + k*16)*3840}')
        a('buffer_load_dwordx4 v6, s[60:63], s38 offen ' + ('nt ' if 'wnt' in gen.EXP else '') + 'lds')
        vc.issue(('r', st))
    stamp(a, 8)
    for st in range(2):
        for k in range(4): wdma(st, k)
    stamp(a, 2)
    if 'k1pflate' in gen.EXP:
        for _ in range(code_pf('c')): vc.issue('code')
    if operand_touch(60, 60, 136, 150): vc.issue('touch')
    base_ops = list(vc.ops)
    VB, VA = 14, 22
    a('v_lshrrev_b32 v7, 1, v3')
    a('v_and_b32 v7, 7, v7')
    a('s_lshl_b32 s40, s22, 13')
    a('v_lshlrev_b32 v8, 7, v3')
    a('v_add_u32 v8, s40, v8')
    for ks in range(4):
        a(f'v_or_b32 v9, {2*ks}, v4')
        a('v_xor_b32 v9, v9, v7')
        a(f'v_lshl_add_u32 v{VB+ks}, v9, 4, v8')
        a(f'v_add_u32 v{VB+4+ks}, 0x10000, v{VB+ks}')
    a('v_lshrrev_b32 v7, 2, v2')
    a('v_and_b32 v7, 3, v7')
    a('v_and_b32 v8, 3, v2')
    a('v_and_b32 v9, 1, v8')
    a('v_lshlrev_b32 v9, 1, v9')
    a('v_lshrrev_b32 v11, 1, v8')
    a('v_or_b32 v9, v9, v11')
    a('s_cmp_lt_u32 s14, 10')
    a('s_cselect_b64 vcc, -1, 0')
    a('v_cndmask_b32 v8, v8, v9, vcc')
    a('v_lshrrev_b32 v9, 4, v2')
    a('v_and_b32 v9, 1, v9')
    a('v_lshl_add_u32 v8, v9, 2, v8')
    a('v_lshl_add_u32 v12, v4, 3, v7')
    a('v_lshlrev_b32 v12, 8, v12')
    a('v_and_b32 v13, 1, v8')
    a('v_lshl_add_u32 v12, v13, 3, v12')
    a('v_lshrrev_b32 v8, 1, v8')
    a('v_lshlrev_b32 v11, 2, v7')
    for aa in range(2):
        a(f's_xor_b32 s40, s22, {aa}')
        a('s_lshl_b32 s41, s21, 1')
        a('s_add_u32 s40, s40, s41')
        a(f's_mov_b32 s{50+aa}, s40')
        a('s_lshl_b32 s40, s40, 2')
        a('v_add_u32 v9, s40, v8')
        a('v_xor_b32 v9, v9, v11')
        a(f'v_lshl_add_u32 v{VA+2*aa}, v9, 4, v12')
        a(f'v_add_u32 v{VA+2*aa}, 16384, v{VA+2*aa}')
        a(f'v_add_u32 v{VA+2*aa+1}, 0x10000, v{VA+2*aa}')
    SEL, CSA = 28, 32
    a(f'v_mov_b32 v{SEL}, 0')
    a('s_mov_b32 s52, 0x00020001')
    a('s_mov_b32 s53, 0x00020001')
    a('v_mov_b32 v7, 0x3f803f80')
    a(f'v_cndmask_b32 v{SEL}, v{SEL}, v7, s[52:53]')
    for r in range(1, 4): a(f'v_mov_b32 v{SEL+r}, v{SEL}')
    for r in range(4): a(f'v_mov_b32 v{CSA+r}, 0')
    ACC, FA, FB, T = 40, 104, 120, 136
    a('s_waitcnt lgkmcnt(0)')
    srd(a, 8, 4, WS_END)
    a('s_mov_b32 s56, s50'); a('s_mov_b32 s57, s51')
    decode()
    pack_setup()
    PKT, CS4, ONES = 140, 152, 156
    for r in range(4):
        a(f'v_mov_b32 v{CS4+r}, 0'); a(f'v_mov_b32 v{ONES+r}, 0x3f803f80')
    def w1_colsum_store():
        a('s_sub_u32 s40, s2, 40')
        a('s_mul_i32 s58, s46, 6912')
        a('s_lshl_b32 s59, s47, 8')
        a('s_add_u32 s58, s58, s59')
        a('s_lshl_b32 s59, s23, 6')
        a('s_add_u32 s58, s58, s59')
        a(f's_add_u32 s58, s58, {WS_CS1}')
        a('s_cmp_lt_u32 s40, 108')
        a('s_cselect_b32 s58, s58, 0x7ff00000')
        a('v_lshrrev_b32 v11, 4, v2')
        a('v_lshlrev_b32 v11, 4, v11')
        a('s_mov_b32 s52, 0x00010001')
        a('s_mov_b32 s53, 0x00010001')
        a('s_mov_b64 exec, s[52:53]')
        a(f'buffer_store_dwordx4 {v(CS4,4)}, v11, s[8:11], s58 offen' + WT)
        a('s_mov_b64 exec, -1')
    def reads(st, ks, buf):
        off = (st % NS) * 32768
        hi = 1 if off >= 65536 else 0
        off -= hi * 65536
        for aa in range(2):
            a(f'ds_read_b64_tr_b16 {v(FA+8*buf+4*aa,2)}, v{VA+2*aa+hi} offset:{off + ks*4096}')
            a(f'ds_read_b64_tr_b16 {v(FA+8*buf+4*aa+2,2)}, v{VA+2*aa+hi} offset:{off + ks*4096 + 1024}')
        bb = VB + 4 * hi + ks
        a(f'ds_read_b128 {v(FB+8*buf,4)}, v{bb} offset:{off}')
        a(f'ds_read_b128 {v(FB+8*buf+4,4)}, v{bb} offset:{off + 4096}')
    def pk_at(st, ks):
        if 'k1nopk' in gen.EXP: return None
        if 'pklate' in gen.EXP:
            if st >= 7 and ks in (0, 2): return 2 * (st - 7) + ks // 2
            return None
        return st - 4 if (st >= 4 and ks == 0) else None
    def main(swap):
        vc.ops = list(base_ops)
        pend = [(st, k) for st in range(2, 10) for k in range(4)]
        vc.wait(a, lambda x: x == ('r', 0))
        a('s_barrier')
        stamp(a, 3)
        reads(0, 0, 0)
        buf = 0
        for st in range(10):
            for ks in range(4):
                if ks < 3:
                    pi = pk_at(st, ks)
                    if pi is not None: pack_read(pi, PKT)
                    reads(st, ks + 1, buf ^ 1)
                    a('s_waitcnt lgkmcnt(%d)' % (8 if pi is not None else 6))
                else:
                    a('s_waitcnt lgkmcnt(0)')
                    if st + 1 < 10:
                        if 'k1stamp' in gen.EXP and st in (2, 5): stamp(a, {2: 8, 5: 10}[st])
                        vc.wait(a, lambda x: x == ('r', st + 1))
                        a('s_barrier')
                        if 'k1stamp' in gen.EXP and st in (2, 5): stamp(a, {2: 9, 5: 11}[st])
                        reads(st + 1, 0, buf ^ 1)
                for aa in range(2):
                    for j in range(2):
                        A_ = v(FA+8*buf+4*aa, 4); B_ = v(FB+8*buf+4*j, 4)
                        acc = v(ACC+32*aa+16*j, 16)
                        c = '0' if (st == 0 and ks == 0) else acc
                        if swap: a(f'v_mfma_f32_32x32x16_bf16 {acc}, {B_}, {A_}, {c}')
                        else: a(f'v_mfma_f32_32x32x16_bf16 {acc}, {A_}, {B_}, {c}')
                if 'k1nocs' not in gen.EXP: a(f'v_mfma_f32_16x16x32_bf16 {v(CSA,4)}, {v(FA+8*buf,4)}, {v(SEL,4)}, {v(CSA,4)}')
                pi = pk_at(st, ks - 1) if ks >= 1 else None
                if pi is not None:
                    pack_store(pi, PKT); vc.issue('pks')
                    if pi < 5: a(f'v_mfma_f32_16x16x32_bf16 {v(CS4,4)}, {v(PKT,4)}, {v(ONES,4)}, {v(CS4,4)}')
                if st == 9 and ks == (3 if 'pklate' in gen.EXP else 2) and 'k1nopk' not in gen.EXP:
                    w1_colsum_store(); vc.issue('pks')
                lim = st + NS - 1 + (1 if ks == 3 else 0)
                for _ in range(2 if st == 0 else 1):
                    if pend and pend[0][0] <= lim: wdma(*pend.pop(0))
                buf ^= 1
        stamp(a, 4)
        a('s_lshl_b32 s40, s56, 7')
        a(f's_add_u32 s40, s40, {CS_T}')
        a('v_and_b32 v8, 1, v2')
        a('v_lshlrev_b32 v8, 6, v8')
        a('v_lshrrev_b32 v9, 4, v2')
        a('v_lshl_add_u32 v8, v9, 4, v8')
        a('v_add_u32 v8, s40, v8')
        a('s_mov_b32 s52, 0x00030003')
        a('s_mov_b32 s53, 0x00030003')
        a('s_nop 7')
        a('s_mov_b64 exec, s[52:53]')
        a(f'ds_write_b128 v8, {v(CSA,4)}')
        a('s_mov_b64 exec, -1')
        a('s_waitcnt lgkmcnt(0)')
        a('s_barrier')
    a('s_cmp_ge_u32 s14, 10')
    a(f's_cbranch_scc1 {L}_v')
    main(False)
    C, P = 104, 136
    a('s_lshl_b32 s40, s22, 8')
    a(f's_add_u32 s40, s40, {ST_T}')
    a('v_lshlrev_b32 v7, 2, v3')
    a('v_add_u32 v7, s40, v7')
    for j in range(2):
        a(f'ds_read_b32 v{P+2*j}, v7 offset:{j*128}')
        a(f'ds_read_b32 v{P+2*j+1}, v7 offset:{512 + j*128}')
    for aa in range(2):
        a(f's_lshl_b32 s40, s{56+aa}, 7')
        a(f's_add_u32 s40, s40, {CS_T}')
        a('v_lshlrev_b32 v7, 4, v4')
        a('v_add_u32 v7, s40, v7')
        for g in range(4): a(f'ds_read_b128 {v(C+16*aa+4*g,4)}, v7 offset:{g*32}')
    a(f's_mov_b32 s40, {f2hex(QSCALE)}')
    a('s_cmp_lt_u32 s14, 5')
    a('s_cselect_b32 s40, s40, 1.0')
    a('s_waitcnt lgkmcnt(0)')
    for r in range(4): a(f'v_mul_f32 v{P+r}, s40, v{P+r}')
    a('v_lshrrev_b32 v13, 4, v3')
    a('s_movk_i32 s17, 20480')
    a('v_mul_lo_u32 v13, v13, s17')
    a('v_and_b32 v14, 15, v3')
    a('v_lshl_add_u32 v13, v14, 4, v13')
    a('v_lshl_add_u32 v13, v4, 8, v13')
    a('s_lshl_b32 s17, s13, 3')
    a('s_lshl_b32 s18, s22, 2')
    a('s_add_u32 s17, s17, s18')
    a('s_mul_i32 s17, s17, 20480')
    a(f's_mov_b32 s18, {WS_Q}')
    a(f's_mov_b32 s19, {WS_K - 80*256}')
    a('s_cmp_lt_u32 s14, 5')
    a('s_cselect_b32 s18, s18, s19')
    a('s_add_u32 s17, s17, s18')
    a('s_lshl_b32 s18, s14, 12')
    a('s_add_u32 s17, s17, s18')
    PK = 144
    for aa in range(2):
        for j in range(2):
            acc = ACC + 32 * aa + 16 * j
            for r in range(16):
                a(f'v_mul_f32 v{P+4}, v{P+2*j}, v{C+16*aa+r}')
                a(f'v_fma_f32 v{acc+r}, v{P+2*j+1}, v{acc+r}, -v{P+4}')
            pk = PK + 8 * ((2 * aa + j) & 1)
            for r in range(8): a(f'v_cvt_pk_bf16_f32 v{pk+r}, v{acc+2*r}, v{acc+2*r+1}')
            a(f's_lshl_b32 s18, s{56+aa}, 10')
            a('s_add_u32 s18, s18, s17')
            if j: a(f's_add_u32 s18, s18, {2*20480}')
            a(f'buffer_store_dwordx4 {v(pk,4)}, v13, s[8:11], s18 offen' + WT)
            a(f'buffer_store_dwordx4 {v(pk+4,4)}, v13, s[8:11], s18 offen offset:512' + WT)
    stamp(a, 5)
    if gen.PROF: a('s_waitcnt vmcnt(0)')
    stamp(a, 6); stamp(a, 7, True)
    if 'dbgst' in gen.EXP:
        ldb = lab('db')
        a('s_cmp_lg_u32 s2, 8'); a(f's_cbranch_scc1 {ldb}'); a('s_cmp_lg_u32 s12, 0'); a(f's_cbranch_scc1 {ldb}')
        a('s_sub_u32 s83, s83, s81'); a('s_sub_u32 s84, s84, s81'); a('s_sub_u32 s86, s86, s81'); a('s_sub_u32 s82, s82, s81'); a('s_sub_u32 s88, s88, s81')
        a('v_mov_b32 v0, 0'); a('v_mov_b32 v2, s88'); a('v_mov_b32 v3, s82'); a('v_mov_b32 v4, s83'); a('v_mov_b32 v5, s84')
        a(f's_mov_b32 s94, {WS_PROF}'); a('buffer_store_dwordx4 v[2:5], v0, s[8:11], s94 offen')
        a('v_mov_b32 v2, s86'); a('buffer_store_dword v2, v0, s[8:11], s94 offen offset:16')
        a.label(ldb)
    elif not merged: stamp_flush(a, 1, 12, 8, 12)
    finish()
    a.label(f'{L}_v')
    main(True)
    C = 104
    TT = 136
    for aa in range(2):
        a(f's_lshl_b32 s40, s{56+aa}, 7')
        a(f's_add_u32 s40, s40, {CS_T}')
        a('v_lshlrev_b32 v8, 2, v3')
        a('v_add_u32 v8, s40, v8')
        a(f'ds_read_b32 v{TT+aa}, v8')
    a('s_lshl_b32 s40, s22, 8')
    a(f's_add_u32 s40, s40, {ST_T}')
    a('v_lshlrev_b32 v7, 4, v4')
    a('v_add_u32 v7, s40, v7')
    for aa in range(2):
        a('s_sub_u32 s17, s14, 10')
        a('s_lshl_b32 s17, s17, 7')
        a(f's_lshl_b32 s18, s{56+aa}, 5')
        a('s_add_u32 s17, s17, s18')
        a('v_add_u32 v13, s17, v3')
        a(f's_mov_b32 s17, {magic(20)}')
        a('v_mul_hi_u32 v14, v13, s17')
        a('v_mul_u32_u24 v15, 20, v14')
        a('v_sub_u32 v15, v13, v15')
        a('s_mov_b32 s17, 81920')
        a('v_mul_lo_u32 v14, v14, s17')
        a('v_lshl_add_u32 v14, v15, 4, v14')
        a('v_mul_u32_u24 v15, 320, v4')
        a(f'v_add_u32 v{TT+2+aa}, v14, v15')
    a('s_lshl_b32 s17, s13, 3')
    a('s_lshl_b32 s18, s22, 2')
    a('s_add_u32 s17, s17, s18')
    a('s_mul_i32 s17, s17, 640')
    a(f's_add_u32 s17, s17, {WS_VT}')
    PK = 144
    for j in range(2):
        for g in range(4):
            a(f'ds_read_b128 {v(C+4*g,4)}, v7 offset:{j*128 + g*32}')
            a(f'ds_read_b128 {v(C+16+4*g,4)}, v7 offset:{512 + j*128 + g*32}')
        a('s_waitcnt lgkmcnt(0)')
        for aa in range(2):
            acc = ACC + 32 * aa + 16 * j
            for r in range(16):
                a(f'v_mul_f32 v{TT+4}, v{C+r}, v{TT+aa}')
                a(f'v_fma_f32 v{acc+r}, v{C+16+r}, v{acc+r}, -v{TT+4}')
            pk = PK + 8 * aa
            for r in range(8): a(f'v_cvt_pk_bf16_f32 v{pk+r}, v{acc+2*r}, v{acc+2*r+1}')
            for gg in range(2):
                a(f'buffer_store_dwordx4 {v(pk+4*gg,4)}, v{TT+2+aa}, s[8:11], s17 offen offset:{(2*j+gg)*640}' + ('' if 'vplain' in gen.EXP else WT))
    stamp(a, 5)
    if gen.PROF: a('s_waitcnt vmcnt(0)')
    stamp(a, 6); stamp(a, 7, True)
    if merged:
        finish()
        return
    stamp_flush(a, 1, 12, 8, 12)
    a.label(f'{L}_end')
    a('s_endpgm')
    return a, descriptor(L, 160, 102), f'; @launch kernel={L} grid=(256,1,1) block=(512,1,1) lds=163840'
```
